```python
import torch

def _softmax(x, axis=-1):
    return torch.softmax(x, dim=axis)

def _gelu(x):
    return torch.nn.functional.gelu(x, approximate='tanh')

def _silu(x):
    return torch.nn.functional.silu(x)

def _sigmoid(x):
    return torch.sigmoid(x)

def _layernorm(x, axis=-1, eps=1e-05):
    m = x.mean(dim=axis, keepdim=True)
    v = x.var(dim=axis, keepdim=True, unbiased=False)
    return (x - m) / torch.sqrt(v + eps)

def _scatter_add(tgt, idx, src, axis=0):
    return tgt.clone().index_add_(axis, idx, src)

def _segment_sum(src, seg, n):
    out = torch.zeros((n,) + src.shape[1:], dtype=src.dtype)
    return out.index_add_(0, seg, src)

def _pad(x, pw):
    flat = tuple((v for pair in reversed(pw) for v in pair))
    return torch.nn.functional.pad(x, flat)
kernel_name = 'adaLN_cond__linear_kernel_hedgehog__moe_arch_mod__prompt'

def setup_inputs():

    _w = lambda a: (lambda t: t.to(torch.bfloat16) if t.is_floating_point() else t)(torch.as_tensor(a))

    def _A_setup():
        B, S, D, H = (1, 2048, 1024, 32)
        Dh = D // H
        return {'x': _w((lambda *s: torch.randn(*s, dtype=torch.bfloat16) * 0.05)(B, S, D)), 'wqkv': _w((lambda *s: torch.randn(*s, dtype=torch.bfloat16) * 0.4)(D, 3 * D)), 'w_phi': _w((lambda *s: torch.randn(*s, dtype=torch.bfloat16) * 0.4)(H, Dh, Dh) * Dh ** (-0.5)), 'wo': _w((lambda *s: torch.randn(*s, dtype=torch.bfloat16) * 0.05)(D, D))}
    _A_in = _A_setup()

    def _B_setup():
        B, S, D, F, C = (1, 2048, 1024, 3584, 2)
        return {'x': _w((lambda *s: torch.randn(*s, dtype=torch.bfloat16) * 0.05)(B, S, D)), 'w_r': _w((lambda *s: torch.randn(*s, dtype=torch.bfloat16) * 0.1)(D)), 'w_gate': _w((lambda *s: torch.randn(*s, dtype=torch.bfloat16) * 0.05)(D, F)), 'w_up': _w((lambda *s: torch.randn(*s, dtype=torch.bfloat16) * 0.05)(D, F)), 'w_down': _w((lambda *s: torch.randn(*s, dtype=torch.bfloat16) * 0.05)(F, D))}
    _B_in = _B_setup()
    return {'A_x': _A_in['x'], 'A_wqkv': _A_in['wqkv'], 'A_w_phi': _A_in['w_phi'], 'A_wo': _A_in['wo'], 'B_x': _B_in['x'], 'B_w_r': _B_in['w_r'], 'B_w_gate': _B_in['w_gate'], 'B_w_up': _B_in['w_up'], 'B_w_down': _B_in['w_down'], 'c': _w((lambda *s: torch.randn(*s, dtype=torch.bfloat16) * 0.2)(1, 1024) * 8.0), 'w_mod': _w((lambda *s: torch.randn(*s, dtype=torch.bfloat16) * 0.2)(1024, 6 * 1024) * 1024 ** (-0.5) * 8.0)}

def reference(A_x, A_wqkv, A_w_phi, A_wo, B_x, B_w_r, B_w_gate, B_w_up, B_w_down, c, w_mod):

    def _A_ref(x, wqkv, w_phi, wo):
        B, S, D = x.shape
        H = 32
        Dh = D // H
        qkv = (lambda x, *d: x.permute(*d))((x @ wqkv).reshape(B, S, 3, H, Dh), 2, 0, 3, 1, 4)
        q, k, v = (qkv[0], qkv[1], qkv[2])
        pq = torch.einsum('bhsd,hdf->bhsf', q, w_phi)
        pk = torch.einsum('bhsd,hdf->bhsf', k, w_phi)
        phi_q = torch.concatenate([_softmax(pq, axis=-1), _softmax(-pq, axis=-1)], axis=-1)
        phi_k = torch.concatenate([_softmax(pk, axis=-1), _softmax(-pk, axis=-1)], axis=-1)
        kv = torch.einsum('bhsf,bhsd->bhfd', phi_k, v)
        z = torch.einsum('bhsf->bhf', phi_k)
        num = torch.einsum('bhqf,bhfd->bhqd', phi_q, kv)
        den = torch.einsum('bhqf,bhf->bhq', phi_q, z)[..., None] + 1e-06
        o = num / den
        return (lambda x, *d: x.permute(*d))(o, 0, 2, 1, 3).reshape(B, S, D) @ wo

    def _B_ref(x, w_r, w_gate, w_up, w_down):
        B, S, D = x.shape
        C = 2
        r = x @ w_r
        idx = torch.argsort(-r, axis=-1)[:, :C]
        idx_e = (lambda x, n, axis: torch.repeat_interleave(x, n, dim=axis))(idx.reshape(B, C, 1), D, axis=2)
        x_sel = (lambda x, i, axis: torch.take_along_dim(x, i, dim=axis))(x, idx_e, axis=1)
        g = _silu(x_sel @ w_gate)
        u = x_sel @ w_up
        y = g * u @ w_down
        r_sel = _sigmoid((lambda x, i, axis: torch.take_along_dim(x, i, dim=axis))(r, idx, axis=1))
        y = y * r_sel.reshape(B, C, 1)
        b_off = (torch.arange(B) * S).reshape(B, 1)
        flat_idx = (idx + b_off).reshape(B * C)
        zero = (x * 0.0).reshape(B * S, D)
        upd = _scatter_add(zero, flat_idx, y.reshape(B * C, D), axis=0)
        return x + upd.reshape(B, S, D)
    x = A_x
    mod = (_silu(c) @ w_mod).reshape(c.shape[0], 6, 1, -1)
    sa, ca, ga, sb, cb, gb = (mod[:, 0].clone(), mod[:, 1].clone(), mod[:, 2].clone(), mod[:, 3].clone(), mod[:, 4].clone(), mod[:, 5].clone())
    h = _layernorm(x, axis=-1) * (1 + ca) + sa
    x = x + ga * _A_ref(h, A_wqkv, A_w_phi, A_wo)
    h = _layernorm(x, axis=-1) * (1 + cb) + sb
    x = x + gb * _B_ref(h, B_w_r, B_w_gate, B_w_up, B_w_down)
    return x
```

```python
import re

TRANS = ('v_exp_f32','v_log_f32','v_rcp_f32','v_rsq_f32','v_sqrt_f32','v_sin_f32','v_cos_f32','v_rcp_iflag_f32',
         'v_rcp_f64','v_rsq_f64','v_sqrt_f64','v_exp_f16','v_rcp_f16')

def _regs(tok):
    tok = tok.strip()
    neg = tok.lstrip('-')
    m = re.fullmatch(r'(?:abs\(|\|)?([vas])(\d+)(?:\)|\|)?', neg)
    if m: return [(m.group(1), int(m.group(2)))]
    m = re.fullmatch(r'(?:abs\(|\|)?([vas])\[(\d+):(\d+)\](?:\)|\|)?', neg)
    if m: return [(m.group(1), i) for i in range(int(m.group(2)), int(m.group(3)) + 1)]
    if neg == 'vcc': return [('s', 'vcc_lo'), ('s', 'vcc_hi')]
    if neg in ('vcc_lo', 'vcc_hi'): return [('s', neg)]
    if neg == 'exec': return [('s', 'exec_lo'), ('s', 'exec_hi')]
    if neg in ('exec_lo', 'exec_hi'): return [('s', neg)]
    if neg == 'm0': return [('s', 'm0')]
    return []

def _split_ops(s):
    ops, depth, cur = [], 0, ''
    for ch in s:
        if ch in '[(': depth += 1
        if ch in '])': depth -= 1
        if ch == ',' and depth == 0:
            ops.append(cur.strip()); cur = ''
        else:
            cur += ch
    if cur.strip(): ops.append(cur.strip())
    return ops

class Ins:
    __slots__ = ('text','mn','ops','mods','dst','src','cls','passes','srcC','srcAB','lds_dma','wide_store_data')
    def __init__(self, text):
        self.text = text
        t = text.split(';')[0].split('//')[0].strip()
        parts = t.split(None, 1)
        self.mn = mn = parts[0]
        rest = parts[1] if len(parts) > 1 else ''
        ops = _split_ops(rest)
        mods = ''
        if ops:
            last = ops[-1].split(None, 1)
            if len(last) > 1 and not ops[-1].startswith('hwreg') :
                ops[-1] = last[0]; mods = last[1]
        self.ops, self.mods = ops, mods
        self.dst, self.src = [], []
        self.passes = 0; self.srcC = []; self.srcAB = []; self.lds_dma = False; self.wide_store_data = []
        R = [_regs(o) for o in ops]
        base = re.sub(r'_(e32|e64|dpp|sdwa)$', '', mn)
        if mn.startswith('v_mfma') or mn.startswith('v_smfma'):
            self.cls = 'mfma'
            self.passes = 8 if '32x32' in mn else 4
            if mn in ('v_mfma_f32_32x32x2_f32',): self.passes = 16
            if mn in ('v_mfma_f32_16x16x4_f32',): self.passes = 8
            self.dst = R[0]; self.srcAB = R[1] + R[2]; self.srcC = R[3]; self.src = self.srcAB + self.srcC
        elif mn.startswith('v_'):
            self.cls = 'valu'
            if base.startswith('v_cmpx'):
                self.dst = R[0] + _regs('exec'); self.src = sum(R[1:], [])
            elif base.startswith('v_cmp'):
                self.dst = R[0]; self.src = sum(R[1:], [])
            elif base in ('v_add_co_u32','v_sub_co_u32','v_subrev_co_u32','v_addc_co_u32','v_subb_co_u32','v_div_scale_f32','v_mad_u64_u32'):
                self.dst = R[0] + R[1]; self.src = sum(R[2:], [])
            elif base.startswith('v_permlane') and 'swap' in base or base == 'v_swap_b32':
                self.dst = R[0] + R[1]; self.src = R[0] + R[1]
            elif base == 'v_nop':
                pass
            else:
                self.dst = R[0]; self.src = sum(R[1:], [])
                if base in ('v_fmac_f32','v_dot2c_f32_bf16','v_pk_fmac_f16','v_writelane_b32','v_fmac_f64') or mn.endswith('_dpp') or 'row_' in mods or 'quad_perm' in mods:
                    self.src = self.src + R[0]
                if base == 'v_div_fmas_f32': self.src = self.src + _regs('vcc')
                if base == 'v_cndmask_b32' and len(ops) == 3: self.src = self.src + _regs('vcc')
        elif mn.startswith('ds_'):
            self.cls = 'ds'
            if mn.startswith('ds_read') or mn.startswith('ds_bpermute') or mn.startswith('ds_permute') or mn.startswith('ds_swizzle') or '_rtn' in mn:
                self.dst = R[0]; self.src = sum(R[1:], [])
            else:
                self.src = sum(R, [])
        elif mn.startswith(('buffer_', 'global_', 'flat_')):
            self.cls = 'vmem'
            allmods = ' ' + mods + ' '
            if mn in ('buffer_inv', 'buffer_wbl2'):
                pass
            elif '_lds_' in mn or ' lds ' in allmods:
                self.lds_dma = True; self.src = sum(R, []) + _regs('m0')
            elif '_load' in mn:
                self.dst = R[0]; self.src = sum(R[1:], [])
            elif '_atomic' in mn:
                ret = ' sc0 ' in allmods
                if mn.startswith('buffer_'):
                    self.src = sum(R, []); self.dst = R[0] if ret else []
                else:
                    if ret: self.dst = R[0]; self.src = sum(R[1:], [])
                    else: self.src = sum(R, [])
            else:
                self.src = sum(R, [])
                if 'x3' in mn or 'x4' in mn:
                    self.wide_store_data = R[0] if mn.startswith('buffer_') else R[1]
        elif mn.startswith(('s_load', 's_buffer_load', 's_memtime', 's_memrealtime', 's_atomic')):
            self.cls = 'smem'
            self.dst = R[0]; self.src = sum(R[1:], [])
        elif mn.startswith('s_'):
            self.cls = 'salu'
            if mn.startswith(('s_cmp', 's_cbranch', 's_branch', 's_waitcnt', 's_nop', 's_barrier', 's_endpgm', 's_sleep', 's_setprio', 's_bitcmp', 's_setpc', 's_setreg')):
                self.src = sum(R, [])
            else:
                self.dst = R[0] if R else []; self.src = sum(R[1:], [])
                if 'saveexec' in mn: self.dst = self.dst + _regs('exec'); self.src = self.src + _regs('exec')
                if mn in ('s_addk_i32','s_mulk_i32','s_cmov_b32','s_cmov_b64'): self.src = self.src + R[0]
        else:
            raise ValueError('unknown instr: ' + text)
    @property
    def is_dpp(self): return self.cls == 'valu' and (self.mn.endswith('_dpp') or 'row_' in self.mods or 'quad_perm' in self.mods)
    @property
    def is_trans(self): return re.sub(r'_(e32|e64)$', '', self.mn) in TRANS
    @property
    def states(self):
        if self.mn == 's_nop': return int(self.ops[0], 0) + 1
        return 1

def need_states(p, c):
    n = 0
    pd, cs, cd = set(p.dst), set(c.src), set(c.dst)
    vd = {r for r in pd if r[0] in 'va'}
    sd = {r for r in pd if r[0] == 's'}
    cb = re.sub(r'_(e32|e64|dpp|sdwa)$', '', c.mn)
    if p.cls == 'valu':
        if cb in ('v_readlane_b32', 'v_readfirstlane_b32') and vd & cs: n = max(n, 1)
        if c.is_dpp and vd & cs: n = max(n, 2)
        if cb.startswith('v_permlane') and vd & cs: n = max(n, 2)
        if p.is_trans and c.cls in ('valu',) and not c.is_trans and vd & cs: n = max(n, 1)
        if c.cls == 'mfma' and vd & cs: n = max(n, 2)
        if p.mn.startswith('v_dot') and vd & (cs | cd):
            srcab = set(_regs(c.ops[1]) + _regs(c.ops[2])) if len(c.ops) > 2 else cs
            if not (c.mn == p.mn and not (vd & srcab)): n = max(n, 3)
        if sd & cs:
            if c.cls == 'valu':
                n = max(n, 2)
                if cb in ('v_readlane_b32', 'v_writelane_b32', 'v_div_fmas_f32'): n = max(n, 4)
            if c.cls == 'vmem': n = max(n, 5)
            if c.cls in ('salu', 'smem'): n = max(n, 1)
        if ('s', 'exec_lo') in pd:
            if c.is_dpp: n = max(n, 5)
            if c.cls == 'mfma' or cb.startswith('v_permlane') or cb in ('v_readlane_b32','v_readfirstlane_b32','v_writelane_b32'): n = max(n, 4)
        if ('dst_sel:WORD' in p.mods or 'dst_sel:BYTE' in p.mods) and c.cls == 'valu' and (vd & (cs | cd)): n = max(n, 1)
    if p.cls == 'salu' and ('s', 'm0') in pd and (c.lds_dma or 'addtid' in c.mn or c.mn.startswith('s_movrel')): n = max(n, 1)
    if p.wide_store_data:
        w = set(p.wide_store_data)
        if w & cd: n = max(n, 2 if c.cls in ('valu', 'mfma') else 1)
    if p.cls == 'mfma':
        k = {2: 0, 4: 1, 8: 2, 16: 3}[p.passes]
        if c.cls == 'mfma':
            cC = set(c.srcC)
            if vd & cC:
                if c.srcC == p.dst and c.passes == p.passes: n = max(n, [2, 0, 0, 0][k])
                else: n = max(n, [4, 6, 10, 18][k])
            if vd & set(c.srcAB): n = max(n, [5, 8, 12, 20][k])
            if vd & cd and not (vd & cC): n = max(n, [5, 8, 12, 20][k])
        else:
            if vd & (cs | cd): n = max(n, [5, 8, 12, 20][k])
            if c.cls == 'valu' and set(p.srcC) & cd: n = max(n, [1, 3, 7, 15][k])
    return n

MAXLOOK = 21

class Asm:
    def __init__(self):
        self.items = []
        self.nlab = 0
    def __call__(self, text):
        for line in text.split('\n'):
            s = line.strip()
            if not s: continue
            if s.startswith(';') or s.startswith('.'):
                self.items.append(('raw', s))
            elif s.endswith(':'):
                self.items.append(('label', s[:-1]))
            else:
                self.items.append(('ins', Ins(s)))
    def label(self, base='L'):
        self.nlab += 1
        return f'{base}_{self.nlab}'
    def fix_hazards(self, verbose=False):
        items = self.items
        jumps = {}
        for i, x in enumerate(items):
            if x[0] == 'ins' and x[1].mn.startswith(('s_branch', 's_cbranch')):
                jumps.setdefault(x[1].ops[0], []).append(i)
        extra = [0] * len(items)
        total = 0
        for i, (kind, c) in enumerate(items):
            if kind != 'ins': continue
            worst = 0
            stack = [(i - 1, 0, False)]
            seen = set()
            while stack:
                j, dist, viajump = stack.pop()
                while j >= 0 and dist < MAXLOOK:
                    if (j, dist, viajump) in seen: break
                    seen.add((j, dist, viajump))
                    k2, val = items[j]
                    if k2 == 'label':
                        for src in jumps.get(val, []): stack.append((src, dist, True))
                        j -= 1; viajump = False; continue
                    if k2 == 'raw':
                        j -= 1; continue
                    p = val
                    if not viajump and p.mn in ('s_endpgm', 's_branch', 's_setpc_b64'): break
                    viajump = False
                    nn = need_states(p, c)
                    if nn - dist > worst: worst = nn - dist
                    dist += p.states + extra[j]
                    j -= 1
            if worst > 0:
                extra[i] = worst; total += worst
                if verbose: print('hazard pad', worst, 'before', c.text)
        out = []
        for i, x in enumerate(items):
            w = extra[i]
            while w > 0:
                k = min(w, 16); out.append(('ins', Ins(f's_nop {k-1}'))); w -= k
            out.append(x)
        self.items = out
        return total
    def check_waits(self, entries, maxvisit=4):
        items = self.items
        labpos = {x[1]: i for i, x in enumerate(items) if x[0] == 'label'}
        errs = {}
        visits = {}
        stack = [(labpos[e], (), ()) for e in entries]
        while stack:
            i, vm, lg = stack.pop()
            while i < len(items):
                kind, c = items[i]
                if kind == 'label':
                    key = (i, vm, lg)
                    if key in visits: break
                    visits[key] = 1
                    visits[i] = visits.get(i, 0) + 1
                    if visits[i] > maxvisit: break
                    i += 1; continue
                if kind == 'raw': i += 1; continue
                if c.mn == 's_waitcnt':
                    t = c.text.split(';')[0]
                    m = re.search(r'vmcnt\((\d+)\)', t)
                    if m:
                        n = int(m.group(1)); vm = vm[max(0, len(vm) - n):] if n > 0 else ()
                    m = re.search(r'lgkmcnt\((\d+)\)', t)
                    if m:
                        n = int(m.group(1))
                        if n == 0: lg = ()
                        elif not any(items[q][1].cls == 'smem' for q in lg): lg = lg[max(0, len(lg) - n):]
                    i += 1; continue
                touched = set(c.src) | set(c.dst)
                for q in vm:
                    pd = set(items[q][1].dst)
                    bad = pd & (set(c.src) if c.cls == 'vmem' else touched)
                    if bad: errs[(i, q)] = f'vmcnt: "{c.text}" touches {sorted(bad, key=str)[:4]} pending from "{items[q][1].text}"'
                for q in lg:
                    pd = set(items[q][1].dst)
                    same = (c.cls == 'ds' and items[q][1].cls == 'ds')
                    bad = pd & (set(c.src) if same else touched)
                    if bad: errs[(i, q)] = f'lgkmcnt: "{c.text}" touches {sorted(bad, key=str)[:4]} pending from "{items[q][1].text}"'
                if c.cls == 'vmem':
                    vm = vm + (i,)
                    if len(vm) > 63: errs[(i, -1)] = f'vmcnt overflow (>63 outstanding) at "{c.text}"'; vm = vm[-63:]
                if c.cls in ('ds', 'smem'):
                    lg = lg + (i,)
                    if len(lg) > 40: lg = lg[-40:]
                if c.mn == 's_endpgm' or c.mn == 's_setpc_b64': break
                if c.mn == 's_branch': i = labpos[c.ops[0]]; continue
                if c.mn.startswith('s_cbranch'): stack.append((labpos[c.ops[0]], vm, lg))
                i += 1
        return list(errs.values())
    def text(self):
        out = []
        for k, v in self.items:
            if k == 'ins': out.append('    ' + v.text)
            elif k == 'label': out.append(v + ':')
            else: out.append(v)
        return '\n'.join(out) + '\n'


def kernel_header(name):
    return f""".globl {name}
.p2align 8
.type {name},@function
{name}:
"""

def kernel_desc(name, vgpr, sgpr=102, accum=None, wgy=False):
    if accum is None: accum = (min(vgpr, 256) + 3) // 4 * 4
    return f""".p2align 6
.amdhsa_kernel {name}
  .amdhsa_next_free_vgpr {vgpr}
  .amdhsa_next_free_sgpr {sgpr}
  .amdhsa_accum_offset {accum}
  .amdhsa_group_segment_fixed_size 0
  .amdhsa_kernarg_size 112
  .amdhsa_user_sgpr_count 2
  .amdhsa_user_sgpr_kernarg_segment_ptr 1
  .amdhsa_system_sgpr_workgroup_id_x 1
  .amdhsa_float_denorm_mode_32 3
  .amdhsa_float_denorm_mode_16_64 3
.end_amdhsa_kernel
"""


class RegAlloc:
    def __init__(self, n, start=0):
        self.free = [True] * n
        for i in range(start): self.free[i] = False
        self.hi = start
        self.names = {}
    def alloc(self, n=1, align=None, name=None):
        if align is None: align = 1 if n == 1 else (2 if n == 2 else 4)
        i = 0
        while i + n <= len(self.free):
            if i % align == 0 and all(self.free[i:i + n]):
                for k in range(i, i + n): self.free[k] = False
                self.hi = max(self.hi, i + n)
                return i
            i += 1
        raise RuntimeError(f'out of registers allocating {n} ({name})')
    def release(self, base, n=1):
        for k in range(base, base + n):
            assert not self.free[k], f'double free {k}'
            self.free[k] = True

class Counter:
    def __init__(self, a, name, maxn):
        self.a, self.name, self.maxn = a, name, maxn
        self.q = []
    def issue(self, tag=None):
        self.q.append(tag)
    def wait(self, tag):
        idx = [i for i, t in enumerate(self.q) if t == tag]
        if not idx: return
        n = len(self.q) - 1 - idx[-1]
        n = min(n, self.maxn)
        self.a(f's_waitcnt {self.name}({n})')
        self.q = self.q[len(self.q) - n:] if n > 0 else []
    def wait_all(self):
        self.a(f's_waitcnt {self.name}(0)')
        self.q = []
    def reset(self): self.q = []

def vr(b, n=1): return f'v{b}' if n == 1 else f'v[{b}:{b+n-1}]'
def sr(b, n=1): return f's{b}' if n == 1 else f's[{b}:{b+n-1}]'


import ast as _ast
class SExpr:
    OPS = {_ast.Add: 's_add_u32', _ast.Sub: 's_sub_u32', _ast.Mult: 's_mul_i32', _ast.LShift: 's_lshl_b32', _ast.RShift: 's_lshr_b32',
           _ast.BitAnd: 's_and_b32', _ast.BitOr: 's_or_b32', _ast.BitXor: 's_xor_b32'}
    PY = {_ast.Add: lambda a, b: a + b, _ast.Sub: lambda a, b: a - b, _ast.Mult: lambda a, b: a * b, _ast.LShift: lambda a, b: a << b,
          _ast.RShift: lambda a, b: a >> b, _ast.BitAnd: lambda a, b: a & b, _ast.BitOr: lambda a, b: a | b, _ast.BitXor: lambda a, b: a ^ b}
    def __init__(self, a, env, consts, temps):
        self.a, self.env, self.consts, self.temps = a, env, consts, list(temps)
    def __call__(self, dst, expr, **kw):
        self.kw = kw
        self.free = list(self.temps)
        tree = _ast.parse(expr, mode='eval').body
        r = self._ev(tree, dst)
        d = dst if isinstance(dst, str) else f's{dst}'
        if r != d: self.a(f's_mov_b32 {d}, {r}')
    def _fold(self, n):
        if isinstance(n, _ast.Constant): return n.value
        if isinstance(n, _ast.Name):
            if n.id in self.kw: return self.kw[n.id]
            if n.id in self.consts: return self.consts[n.id]
            return None
        if isinstance(n, _ast.BinOp):
            l, r = self._fold(n.left), self._fold(n.right)
            if l is not None and r is not None: return self.PY[type(n.op)](l, r)
        return None
    def _ev(self, n, dst=None):
        c = self._fold(n)
        if c is not None: return str(c & 0xffffffff) if c < -16 or c > 64 else str(c)
        if isinstance(n, _ast.Name): return f's{self.env[n.id]}'
        assert isinstance(n, _ast.BinOp), _ast.dump(n)
        op = type(n.op)
        rc, lc = self._fold(n.right), self._fold(n.left)
        if rc == 0 and op in (_ast.Add, _ast.Sub, _ast.LShift, _ast.RShift, _ast.BitOr, _ast.BitXor): return self._ev(n.left, dst)
        if lc == 0 and op in (_ast.Add, _ast.BitOr, _ast.BitXor): return self._ev(n.right, dst)
        if rc == 1 and op is _ast.Mult: return self._ev(n.left, dst)
        mn = self.OPS[op]
        left, right = n.left, n.right
        if op is _ast.Add:
            for x, y in ((left, right), (right, left)):
                if isinstance(x, _ast.BinOp) and self._fold(x) is None:
                    k = None
                    if isinstance(x.op, _ast.Mult) and self._fold(x.right) in (2, 4, 8, 16): k = self._fold(x.right).bit_length() - 1
                    if isinstance(x.op, _ast.LShift) and self._fold(x.right) in (1, 2, 3, 4): k = self._fold(x.right)
                    if k: mn = f's_lshl{k}_add_u32'; left, right = x.left, y; break
        if op is _ast.BitAnd and rc is not None and (rc & (rc + 1)) == 0 and isinstance(left, _ast.BinOp) and isinstance(left.op, _ast.RShift) and self._fold(left.right) is not None:
            mn = 's_bfe_u32'; right = _ast.Constant(self._fold(left.right) | (rc.bit_length() << 16)); left = left.left
        if op is _ast.Mult and rc is not None and rc & (rc - 1) == 0:
            mn = 's_lshl_b32'; right = _ast.Constant(rc.bit_length() - 1)
        l = self._ev(left); r = self._ev(right)
        for t in (l, r):
            if t.startswith('s') and t[1:].isdigit() and int(t[1:]) in self.temps and int(t[1:]) not in self.free: self.free.append(int(t[1:]))
        if dst is None: d = f's{self.free.pop(0)}'
        else: d = dst if isinstance(dst, str) else f's{dst}'
        self.a(f'{mn} {d}, {l}, {r}')
        return d
```

```python
import sys, os
sys.path.insert(0, os.path.dirname(os.path.abspath(__file__)))
from asm import *

NAME = 'adaLN_cond__linear_kernel_hedgehog__moe_arch_mod__prompt_kernel'

NONCE = 0x0
MODF = 0x010000
MODP2 = 0x020000
SINB = 0x040000
AINB = 0x080000
INB = 0x100000
HF = 0x400000
OF = 0x800000
X1F = 0xC00000
H2 = 0x2000000
HGR = 0x1400000
ZP = 0x1480000
GGR = 0x1500000
KVP = 0x1800000
KIN = 0x1C00000
STAMPS = 0x1600000
WS_BYTES = 268435456

SLOT = 24576
SCR = 147456
L_A1 = SCR
L_M2 = SCR + 2048
L_WPHI = SCR + 12288
L_ST = SCR + 6144
L_MP = SCR + 8192
L_XF = SCR
L_PHK = 0
L_V = 32768
WO_H0 = 32768
WO_H1 = 98304
GS = 0
L_KVF = GS
L_ZF = GS + 8192
L_EXCH = GS
L_XT = GS
L_MODL = GS + 16640
L_KEY = GS + 24832
L_K1 = GS + 24896
L_K2 = GS + 24960
L_ACT = GS + 25088
L_GU = 32768
L_DN = 98304
L_XS = 131072

SPIN_LIMIT = 200000

sWAVE, sTAG, sSPIN, sMASK, sL2E = 3, 4, 5, 6, 7
sX, sJ, sR1, sHP, sCB = 8, 9, 10, 11, 12
T0, T1, T2, T3, T4, T5, T6, T7 = 13, 14, 15, 16, 17, 18, 19, 20
sRT = 21
sCMP = 22
sPL = 24
rWS, rX, rW, rWO, rWM, rWG, rWU, rWD, rOUT = 32, 36, 40, 44, 48, 52, 56, 60, 64
KA = 68
pWPHI, pWR, pC = KA + 4, KA + 10, KA + 18
sK1, sK2, sROW0, sROW1, sFS, sKQ, sKH, sKF = 68, 69, 70, 71, 74, 75, 76, 77
sFG, sFD, sU, sROT, sWB, sU0 = 80, 81, 82, 83, 84, 85
sWO2, sW1K, sMF = 88, 89, 90
sINB, sRow, sGTB, sC32 = 92, 93, 94, 95
XT = (96, 97, 98, 99)
sTM = 100
ENV = dict(wg=2, w=sWAVE, x=sX, j=sJ, r1=sR1, hp=sHP, cb=sCB, rt=sRT, row=sRow, gtb=sGTB, c32=sC32, kh=sKH, kf=sKF, fs=sFS, kq=sKQ,
           rot=sROT, wb=sWB, u0=sU0, wo2=sWO2, w1k=sW1K, mf=sMF, u=sU, fg=sFG, fd=sFD, T0=T0, T1=T1, T2=T2, T3=T3, T4=T4, T5=T5, T6=T6, T7=T7, row0=sROW0, row1=sROW1)


class Gen:
    def __init__(self, prof=False, opts=None):
        self.a = Asm()
        self.vm = Counter(self.a, 'vmcnt', 63)
        self.lg = Counter(self.a, 'lgkmcnt', 15)
        self.V = RegAlloc(254, 1)
        self.prof = prof
        self.nopk = False
        self.nst = 0
        self.stnames = []
        self.S = SExpr(self.a, ENV, {k: v for k, v in globals().items() if isinstance(v, int) and k.isupper() and k not in ENV}, XT)
        self.o = dict(AD=12, AD2=4, wburst=(2, 1, 3, 0, 6, 3), LASTB=13,
                      sched={1: 'm1 p2', 2: 's4', 3: 'm1 s4', 4: 'p2', 5: 'm1 g2', 7: 'm1 g2 p3', 9: 'g2 q', 10: 'g2', 11: 'r', 12: 'P', 14: 'o4 f4', 15: 'f2'}, fdma=(1, 4, 1), wowin=(2, 4, 3))
        if opts: self.o.update(opts)

    def bl(self, dst, n, voff, srd, soff, imm=0, mods='', tag=None):
        op = {1: 'dword', 2: 'dwordx2', 4: 'dwordx4'}[n]
        so = soff if isinstance(soff, str) else (sr(soff))
        self.a(f'buffer_load_{op} {vr(dst, n)}, v{voff}, {sr(srd, 4)}, {so} offen' + (f' offset:{imm}' if imm else '') + (' ' + mods if mods else ''))
        self.vm.issue(tag)
    def bs(self, src, n, voff, srd, soff, imm=0, mods='', tag=None, count=True):
        op = {1: 'dword', 2: 'dwordx2', 4: 'dwordx4'}[n]
        so = soff if isinstance(soff, str) else (sr(soff))
        self.a(f'buffer_store_{op} {vr(src, n)}, v{voff}, {sr(srd, 4)}, {so} offen' + (f' offset:{imm}' if imm else '') + (' ' + mods if mods else ''))
        if count: self.vm.issue(tag)
    def dma(self, voff, srd, soff, imm=0, mods='', tag=None):
        self.a(f'buffer_load_dwordx4 v{voff}, {sr(srd, 4)}, {sr(soff)} offen' + (f' offset:{imm}' if imm else '') + (' ' + mods if mods else '') + ' lds')
        self.vm.issue(tag)
    def dr(self, op, dst, n, addr, off=0, tag=None):
        assert 0 <= off < 65536, off
        self.a(f'{op} {vr(dst, n)}, v{addr}' + (f' offset:{off}' if off else ''))
        self.lg.issue(tag)
    def tr(self, dst, addr, off, tag=None): self.dr('ds_read_b64_tr_b16', dst, 2, addr, off, tag)
    def r128(self, dst, addr, off=0, tag=None): self.dr('ds_read_b128', dst, 4, addr, off, tag)
    def dw(self, op, addr, src, n, off=0, tag=None):
        assert 0 <= off < 65536, off
        self.a(f'{op} v{addr}, {vr(src, n)}' + (f' offset:{off}' if off else ''))
        self.lg.issue(tag)
    def barrier(self):
        self.lg.wait_all()
        self.a('s_barrier')
    def stamp(self, name):
        ex = self.o.get('exfil')
        if ex and name in ex[:2]:
            self.a(f's_memrealtime {sr(sTM, 2)}')
            self.lg.wait_all()
            self.a(f'v_writelane_b32 v255, s{sTM}, {1 + ex.index(name)}')
        if not self.prof: return
        only = self.o.get('only')
        if only and name not in only and name != 'end': return
        self.a(f's_memtime {sr(sTM, 2)}')
        self.a(f's_memrealtime s[0:1]')
        self.lg.wait_all()
        self.a(f'v_writelane_b32 v255, s{sTM}, {self.nst}')
        self.a(f'v_writelane_b32 v254, s0, {self.nst}')
        self.stnames.append(name)
        self.nst += 1
        assert self.nst <= 60
    def unpack(self, lo, hi, src):
        self.a(f'v_lshlrev_b32 v{lo}, 16, v{src}')
        self.a(f'v_and_b32 v{hi}, s{sMASK}, v{src}')
    def round1(self, r):
        self.a(f'v_cvt_pk_bf16_f32 v{r}, 0, v{r}')
    def round2(self, r0, r1):
        self.round1(r0); self.round1(r1)
    def round_list(self, regs):
        for r in regs: self.round1(r)
    def pk(self, op, d, s0, s1, s2=None, bc=(), neg=()):
        srcs = [s0, s1] + ([s2] if s2 is not None else [])
        if self.nopk:
            for h in range(2):
                t = []
                for k, r in enumerate(srcs):
                    kind, n = r if isinstance(r, tuple) else ('v', r)
                    t.append(('-' if k in neg else '') + f'{kind}{n if k in bc else n + h}')
                e64 = '' if op == 'fma' else ('_e64' if (neg or t[1][0] == 's') else '')
                self.a(f'v_{op}_f32{e64} v{d+h}, ' + ', '.join(t))
            return
        txt, sel, selhi = [], [], []
        for k, r in enumerate(srcs):
            kind, n = r if isinstance(r, tuple) else ('v', r)
            if k in bc:
                txt.append(f'{kind}[{n & ~1}:{(n & ~1) + 1}]'); sel.append(n & 1); selhi.append(n & 1)
            else:
                assert n % 2 == 0
                txt.append(f'{kind}[{n}:{n+1}]'); sel.append(0); selhi.append(1)
        assert d % 2 == 0
        m = ''
        if any(sel): m += ' op_sel:[' + ','.join(map(str, sel)) + ']'
        if not all(selhi): m += ' op_sel_hi:[' + ','.join(map(str, selhi)) + ']'
        if neg:
            ng = ','.join('1' if k in neg else '0' for k in range(len(srcs)))
            m += f' neg_lo:[{ng}] neg_hi:[{ng}]'
        self.a(f'v_pk_{op}_f32 v[{d}:{d+1}], ' + ', '.join(txt) + m)
    def dpp(self, op, d, s0, s1, ctl):
        self.a(f'{op}_dpp v{d}, v{s0}, v{s1} {ctl} row_mask:0xf bank_mask:0xf')
    def allreduce(self, v, t, op='v_add_f32', lo=True, b3=True):
        if lo:
            self.dpp(op, v, v, v, 'quad_perm:[1,0,3,2]')
            self.dpp(op, v, v, v, 'quad_perm:[2,3,0,1]')
            self.dpp(op, v, v, v, 'row_half_mirror')
        self.dpp(op, v, v, v, 'row_ror:8')
        self.a(f'v_mov_b32 v{t}, v{v}')
        self.a(f'v_permlane16_swap_b32 v{v}, v{t}')
        self.a(f'{op} v{v}, v{v}, v{t}')
        self.a(f'v_mov_b32 v{t}, v{v}')
        self.a(f'v_permlane32_swap_b32 v{v}, v{t}')
        self.a(f'{op} v{v}, v{v}, v{t}')
    def poll(self, loads, tagregs, tmp=None):
        a = self.a
        L, D = a.label('POLL'), a.label('PDONE')
        a(f'{L}:')
        loads()
        self.vm.wait_all()
        if len(tagregs) == 1:
            a(f'v_cmp_ne_u32 vcc, s{sTAG}, v{tagregs[0]}')
        else:
            a(f'v_bitop3_b32 v{tmp}, v{tagregs[0]}, v{tagregs[1]}, s{sTAG} bitop3:0x7e')
            for t in tagregs[2:]: a(f'v_bitop3_b32 v{tmp}, v{tmp}, v{t}, s{sTAG} bitop3:0xf6')
            a(f'v_cmp_ne_u32 vcc, 0, v{tmp}')
        a(f's_cbranch_vccz {D}')
        a(f's_add_u32 s{sSPIN}, s{sSPIN}, 1')
        a(f's_cmp_lt_u32 s{sSPIN}, {SPIN_LIMIT}')
        a(f's_cbranch_scc1 {L}')
        a(f'{D}:')
    def weave(self, fn, extras):
        a = self.a
        keep = a.items; a.items = []
        fn()
        body = a.items; a.items = keep
        extras = list(extras); n = len(extras)
        for i, it in enumerate(body):
            while extras and (n - len(extras)) * len(body) <= i * n: extras.pop(0)()
            a.items.append(it)
        for e in extras: e()
    def tagcheck(self, tagregs, tmp):
        a = self.a
        if len(tagregs) == 1:
            a(f'v_cmp_ne_u32 vcc, s{sTAG}, v{tagregs[0]}')
        else:
            a(f'v_bitop3_b32 v{tmp}, v{tagregs[0]}, v{tagregs[1]}, s{sTAG} bitop3:0x7e')
            for t in tagregs[2:]: a(f'v_bitop3_b32 v{tmp}, v{tmp}, v{t}, s{sTAG} bitop3:0xf6')
            a(f'v_cmp_ne_u32 vcc, 0, v{tmp}')
    def try_load(self, loads, tagregs, tmp=None, between=None, pre=None):
        a = self.a
        n0 = len(self.vm.q)
        loads()
        self.vm.q[-1] = tg = ('try', a.label('T'))
        if between: between()
        self.vm.wait(tg)
        OK = a.label('TOK')
        self.tagcheck(tagregs, tmp)
        a(f's_cbranch_vccz {OK}')
        q, l = list(self.vm.q), list(self.lg.q)
        if pre: pre()
        self.poll(loads, tagregs, tmp)
        self.vm.q, self.lg.q = q, l
        a(f'{OK}:')
    def spoll(self, loads, checks, work=None):
        a = self.a
        L, C, D = a.label('SPOLL'), a.label('SCHK'), a.label('SDONE')
        def issue():
            for d, n, so, imm in loads:
                op = {1: 'dword', 2: 'dwordx2', 4: 'dwordx4', 8: 'dwordx8'}[n]
                a(f's_load_{op} {sr(sPL + d, n)}, {sr(rWS, 2)}, s{so} offset:{imm} glc')
        if work:
            issue(); work()
            a(f's_branch {C}')
        a(f'{L}:')
        issue()
        a(f'{C}:')
        a(f's_add_u32 s{sSPIN}, s{sSPIN}, 1')
        a(f's_cmp_ge_u32 s{sSPIN}, {SPIN_LIMIT}')
        self.lg.wait_all()
        a(f's_cbranch_scc1 {D}')
        for k in checks:
            a(f's_cmp_lg_u32 s{sPL + k}, s{sTAG}')
            a(f's_cbranch_scc1 {L}')
        a(f'{D}:')
    def inbox(self, box, n, checks=None, work=None):
        self.spoll([(0, n, sINB, box * 512)], range(n) if checks is None else checks, work)
    def va(self, dst, terms, sreg=None, const=0, tmp=None):
        a = self.a; vL = self.vL
        first = True
        for sh, bits, mult in terms:
            full = sh + bits >= 6
            src = vL
            t = dst if first else tmp
            if sh == 0 and full: pass
            elif full: a(f'v_lshrrev_b32 v{t}, {sh}, v{vL}'); src = t
            elif sh == 0: a(f'v_and_b32 v{t}, {(1 << bits) - 1}, v{vL}'); src = t
            else: a(f'v_bfe_u32 v{t}, v{vL}, {sh}, {bits}'); src = t
            p2 = mult & (mult - 1) == 0
            k = mult.bit_length() - 1
            if first:
                if p2 and sreg is not None: a(f'v_lshl_add_u32 v{dst}, v{src}, {k}, s{sreg}'); sreg = None
                elif p2 and k: a(f'v_lshlrev_b32 v{dst}, {k}, v{src}')
                elif p2:
                    if src != dst: a(f'v_mov_b32 v{dst}, v{src}')
                else: a(f'v_mul_u32_u24 v{dst}, {mult}, v{src}')
            else:
                assert p2
                a(f'v_lshl_add_u32 v{dst}, v{src}, {k}, v{dst}')
            first = False
        if sreg is not None: a(f'v_add_u32 v{dst}, s{sreg}, v{dst}')
        if const: a(f'v_add_u32 v{dst}, {const}, v{dst}')
    def push(self, vaddr, soff, nl, vtmp, lab, wave=0):
        a = self.a
        a(f's_cmp_lg_u32 s{sWAVE}, {wave}')
        a(f's_cbranch_scc1 {lab}')
        a(f'v_mov_b32 v{vtmp}, s{sTAG}')
        a(f's_mov_b32 exec_hi, 0')
        if nl < 32: a(f's_mov_b32 exec_lo, {(1 << nl) - 1}')
        self.bs(vtmp, 1, vaddr, rWS, soff, 0, 'sc1', count=False)
        a('s_mov_b64 exec, -1')
        a(f'{lab}:')
    def silu(self, v, t):
        a = self.a
        a(f'v_mul_f32 v{t}, s{sL2E}, v{v}')
        a(f'v_exp_f32 v{t}, -v{t}')
        a(f'v_add_f32 v{t}, 1.0, v{t}')
        a(f'v_rcp_f32 v{t}, v{t}')
        a(f'v_mul_f32 v{v}, v{v}, v{t}')
        self.round1(v)
    def gemv_ops(self, wregs, cregs, acc, t0, t1, packed):
        ops = []
        assert t0 % 2 == 0 and t1 == t0 + 1
        for i, (w, c) in enumerate(zip(wregs, cregs)):
            cp = f'v[{c & ~1}:{(c & ~1) + 1}]'
            for d in range(4):
                tt = t0 + 2 * (d & 1)
                ops.append(f'v_lshlrev_b32 v{tt}, 16, v{w+d}')
                ops.append(f'v_and_b32 v{tt+1}, s{sMASK}, v{w+d}')
                ac = f'v[{acc+2*d}:{acc+2*d+1}]'
                if not packed:
                    for h in range(2): ops.append(f'v_mul_f32 v{acc+2*d+h}, v{tt+h}, v{c}' if i == 0 else f'v_fmac_f32 v{acc+2*d+h}, v{tt+h}, v{c}')
                elif i == 0: ops.append(f'v_pk_mul_f32 {ac}, v[{tt}:{tt+1}], {cp} op_sel:[0,{c & 1}] op_sel_hi:[1,{c & 1}]')
                else: ops.append(f'v_pk_fma_f32 {ac}, v[{tt}:{tt+1}], {cp}, {ac} op_sel:[0,{c & 1},0] op_sel_hi:[1,{c & 1},1]')
        for i in range(4): ops.append(f'v_permlane32_swap_b32 v{acc+i}, v{acc+4+i}')
        for i in range(4): ops.append(f'v_add_f32 v{acc+i}, v{acc+i}, v{acc+4+i}')
        for i in range(2): ops.append(f'v_permlane16_swap_b32 v{acc+i}, v{acc+2+i}')
        for i in range(2): ops.append(f'v_add_f32 v{acc+i}, v{acc+i}, v{acc+2+i}')
        for i in range(2): ops.append(f'v_add_f32_dpp v{acc+i}, v{acc+i}, v{acc+i} row_ror:8 row_mask:0xf bank_mask:0xf')
        ops.append(f'v_mov_b32_dpp v{acc}, v{acc+1} quad_perm:[0,1,2,3] row_mask:0xf bank_mask:0xc')
        return ops
    def sum8(self, b):
        self.pk('add', b, b, b + 2); self.pk('add', b + 4, b + 4, b + 6); self.pk('add', b, b, b + 4)
        self.a(f'v_add_f32 v{b}, v{b}, v{b+1}')
    def softmax_pm(self, p, e, out, t, mid=None, part=0, split=0):
        a = self.a
        mx, mn, u0, u1, s0, s1 = t, t + 1, t + 2, t + 3, t + 4, t + 6
        if part != 2:
            self.round_list([p + i for i in range(16)])
            a(f'v_max3_f32 v{mx}, v{p}, v{p+1}, v{p+2}')
            a(f'v_min3_f32 v{mn}, v{p}, v{p+1}, v{p+2}')
            for i in range(3, 15, 2):
                a(f'v_max3_f32 v{mx}, v{mx}, v{p+i}, v{p+i+1}')
                a(f'v_min3_f32 v{mn}, v{mn}, v{p+i}, v{p+i+1}')
            a(f'v_max_f32 v{u0}, v{mx}, v{p+15}')
            a(f'v_min_f32 v{u1}, v{mn}, v{p+15}')
            a(f'v_max_f32 v{mx}, v{mx}, v{p+15}')
            a(f'v_min_f32 v{mn}, v{mn}, v{p+15}')
            a(f'v_permlane32_swap_b32 v{mx}, v{u0}')
            a(f'v_permlane32_swap_b32 v{mn}, v{u1}')
            a(f'v_max_f32 v{mx}, v{mx}, v{u0}')
            a(f'v_min_f32 v{mn}, v{mn}, v{u1}')
            self.pk('mul', mx, mx, ('s', sL2E), bc=(1,))
            for i in range(0, 16, 2):
                self.pk('fma', e + i, p + i, ('s', sL2E), mx, bc=(1, 2), neg=(2,))
                self.pk('fma', p + i, p + i, ('s', sL2E), mn, bc=(1, 2), neg=(0,))
        for i in range(split if part == 2 else 0, 16):
            if mid and i == mid[0]: mid[1]()
            if part == 1 and i == split: return
            a(f'v_exp_f32 v{e+i}, v{e+i}')
            a(f'v_exp_f32 v{p+i}, v{p+i}')
        self.pk('add', s0, e, e + 2); self.pk('add', s1, p, p + 2)
        for i in range(4, 16, 2):
            self.pk('add', s0, s0, e + i); self.pk('add', s1, s1, p + i)
        a(f'v_add_f32 v{u0}, v{s0}, v{s0+1}')
        a(f'v_add_f32 v{u1}, v{s1}, v{s1+1}')
        a(f'v_add_f32 v{mx}, v{s0}, v{s0+1}')
        a(f'v_add_f32 v{mn}, v{s1}, v{s1+1}')
        a(f'v_permlane32_swap_b32 v{mx}, v{u0}')
        a(f'v_permlane32_swap_b32 v{mn}, v{u1}')
        self.pk('add', mx, mx, u0)
        a(f'v_rcp_f32 v{mx}, v{mx}')
        a(f'v_rcp_f32 v{mn}, v{mn}')
        for i in range(0, 16, 2):
            self.pk('mul', e + i, e + i, mx, bc=(1,))
            self.pk('mul', p + i, p + i, mn, bc=(1,))
        for i in range(8):
            a(f'v_cvt_pk_bf16_f32 v{out+i}, v{e+2*i}, v{e+2*i+1}')
            a(f'v_cvt_pk_bf16_f32 v{out+8+i}, v{p+2*i}, v{p+2*i+1}')
    def ln_stats(self, xp, t, m_out, sd_out, fill=()):
        a = self.a
        fill = list(fill)
        def pad(n):
            for _ in range(n):
                if fill: a(fill.pop(0))
        s, u = t, t + 4
        a(f'v_mov_b32 v{u}, 0x3f803f80')
        for i in range(8):
            k = 2 * (i & 1)
            a(f'v_dot2_f32_bf16 v{s+k}, v{xp+i}, v{u}, ' + ('0' if i < 2 else f'v{s+k}'))
            a(f'v_dot2_f32_bf16 v{s+k+1}, v{xp+i}, v{xp+i}, ' + ('0' if i < 2 else f'v{s+k+1}'))
        pad(3)
        self.pk('add', s, s, s + 2)
        for ctl in ('quad_perm:[1,0,3,2]', 'quad_perm:[2,3,0,1]', 'row_half_mirror', 'row_ror:8'):
            pad(2 if ctl.endswith('3,2]') else 1)
            self.dpp('v_add_f32', s, s, s, ctl); self.dpp('v_add_f32', s + 1, s + 1, s + 1, ctl)
        pad(2)
        a(f'v_permlane16_swap_b32 v{s}, v{s+1}')
        a(f'v_add_f32 v{u}, v{s}, v{s+1}')
        a(f'v_add_f32 v{s}, v{s}, v{s+1}')
        pad(2)
        a(f'v_permlane32_swap_b32 v{s}, v{u}')
        a(f'v_add_f32 v{s}, v{s}, v{u}')
        a(f'v_mul_f32 v{u}, 0x3a800000, v{s}')
        a(f'v_mul_f32 v{s}, 0x3a800000, v{s}')
        pad(2)
        a(f'v_permlane16_swap_b32 v{s}, v{u}')
        a(f'v_fma_f32 v{sd_out}, -v{s}, v{s}, v{u}')
        a(f'v_cvt_pk_bf16_f32 v{m_out}, 0, v{s}')
        a(f'v_max_f32 v{sd_out}, 0, v{sd_out}')
        self.round1(sd_out)
        a(f'v_add_f32 v{sd_out}, 0x3727c5ac, v{sd_out}')
        self.round1(sd_out)
        a(f'v_sqrt_f32 v{sd_out}, v{sd_out}')
        pad(99)
        self.round1(sd_out)

    def build(self):
        a, V, vm, lg, o, S = self.a, self.V, self.vm, self.lg, self.o, self.S
        E2 = range(0, 16, 2)
        a(f'{NAME}:')
        a(f's_load_dwordx16 {sr(KA, 16)}, s[0:1], 0')
        a(f's_load_dwordx8 {sr(KA + 16, 8)}, s[0:1], 64')
        a(f's_load_dwordx2 {sr(rWS, 2)}, s[0:1], 104')
        a('s_cmp_ge_u32 s2, 256')
        a('s_cbranch_scc1 L_END')
        if self.prof:
            a(f's_memrealtime {sr(sCMP, 2)}')
            a(f's_memtime {sr(sTM, 2)}')
            a('v_mov_b32 v255, 0')
            a('v_mov_b32 v254, 0')
            self.stnames.append('start'); self.nst = 1
        if o.get('exfil'):
            a(f's_memrealtime {sr(sTM, 2)}')
        vL = self.vL = V.alloc()
        vL16 = V.alloc()
        vZ = V.alloc()
        vT = V.alloc(8)
        va = lambda dst, terms, sreg=None, const=0: self.va(dst, terms, sreg, const, vT + 5)
        a(f"""v_lshrrev_b32 v{vT}, 6, v0
        v_and_b32 v{vL}, 63, v0
        v_mov_b32 v{vZ}, 0
        v_readfirstlane_b32 s{sWAVE}, v{vT}
        v_lshlrev_b32 v{vL16}, 4, v{vL}""")
        for srd, size in ((rX, 4194304), (rWM, 12582912), (rWS, WS_BYTES), (rW, 6291456), (rWO, 2097152), (rWG, 7340032), (rWU, 7340032), (rWD, 7340032), (rOUT, 4194304)):
            a(f's_mov_b32 s{srd+2}, {size}')
            a(f's_mov_b32 s{srd+3}, 0x20000')
        a(f"""s_mov_b32 s{sSPIN}, 0
        s_mov_b32 s{sMASK}, 0xffff0000
        s_mov_b32 s{sL2E}, 0x3fb8aa3b""")
        S(sX, 'wg & 7'); S(sJ, 'wg >> 3')
        S(sRow, '(x*32 + j)*8 + w')
        S(sR1, '(x & 4)*2 + (j >> 2)'); S(sHP, '(x & 3)*4 + ((j & 3) ^ q)', q=o.get('hpx', 2))
        S(sCB, '(x & 1)*8 + (j & 7)')
        S(sRT, '(x >> 1)*4 + (j >> 3)')
        S(sGTB, 'rt*4 + (w & 3)')
        S(sC32, 'cb*2 + (w >> 2)')
        S(sINB, '(wg*64 + w)*64 + INB')
        xr = V.alloc(8); acc = V.alloc(8); wphi = V.alloc(8); fr = V.alloc(8); vq = V.alloc(8); vv = V.alloc(8)
        vWM = V.alloc(); vCo = V.alloc(); vWd = V.alloc(); vL8 = V.alloc(); vL32S = V.alloc(); vGA = V.alloc()
        vB = V.alloc(6, 1); vFG = V.alloc(); vFD = V.alloc(); vWo = V.alloc(); vPW = V.alloc(); vXF = V.alloc()
        vXT = vT + 6
        S(T3, 'row*2048')
        S(T2, '(x*8 + w)*32')
        S(T0, 'T2*6144 + (j ^ 1)*128'); S(T1, 'T0 + 8*12288')
        S(T5, 'gtb*65536 + c32*64')
        S(T4, '(((x >> 1)*16 + cb)*16 + w)*512 + AINB')
        va(vWM, [(3, 3, 12288), (0, 3, 16)])
        va(vCo, [(3, 3, 2)], T2)
        va(vXT, [(0, 5, 2048), (5, 1, 32)])
        a('s_waitcnt lgkmcnt(0)')
        if self.prof:
            a(f'v_writelane_b32 v255, s{sTM}, 0')
            a(f'v_writelane_b32 v255, s{sCMP}, 63')
            a(f'v_writelane_b32 v254, s{sCMP}, 0')
        if o.get('exfil'):
            for k in range(3): a(f'v_writelane_b32 v255, s{sTM}, {k}')
        self.stamp('karg')
        wm = V.alloc(8); cv = V.alloc(2); xs_raw = V.alloc(8)
        a(f's_mov_b64 {sr(rX, 2)}, {sr(KA, 2)}')
        self.bl(xs_raw, 4, vL16, rX, T3, 0, o.get('xsmod', ''), 'xs')
        self.bl(xs_raw + 4, 4, vL16, rX, T3, 1024, o.get('xsmod', ''), 'xs')
        a(f's_load_dword s{sTAG}, {sr(rWS, 2)}, {NONCE}')
        a(f's_mov_b64 {sr(rWM, 2)}, {sr(KA + 20, 2)}')
        if o.get('pw0', 1):
            a(f's_load_dword s{sPL}, {sr(rWS, 2)}, s{sINB} offset:0 glc')
            for q in range(2): a(f's_load_dword s{sPL + 1 + q}, {sr(rWS, 2)}, s{T4} offset:{q * 4096 + 508} glc')
        a(f'global_load_ushort v{cv}, v{vCo}, {sr(pC, 2)}'); vm.issue('c')
        a(f'global_load_ushort v{cv+1}, v{vCo}, {sr(pC, 2)} offset:16'); vm.issue('c')
        a('s_barrier')
        self.bl(wm, 4, vWM, rWM, T0, 0, o.get('ntwm', 'nt'), 'wm')
        self.bl(wm + 4, 4, vWM, rWM, T1, 0, o.get('ntwm', 'nt'), 'wm')
        for srd, k in ((rW, 2), (rWO, 6), (rWG, 12), (rWU, 14), (rWD, 16), (rOUT, 22)):
            a(f's_mov_b64 {sr(srd, 2)}, {sr(KA + k, 2)}')
        a(f"""s_getpc_b64 {sr(sCMP, 2)}
        s_and_b32 s{sCMP}, s{sCMP}, 0xfffffc00""")
        S(T6, '(j*8 + w)*128')
        va(vT, [(5, 1, 32768)], T6)
        a(f'v_min_u32 v{vT}, CODE_KB, v{vT}')
        if not o.get('nopf'): a(f'global_load_dword v{vT+7}, v{vT}, {sr(sCMP, 2)}'); vm.issue()
        S(sKH, 'w >> 2'); S(sKF, '(w >> 2) ^ (j >> 4)'); S(sROT, '(((j >> 3) ^ j) & 1)*8')
        S(sFS, 'x*7 + (j >> 2)'); S(sKQ, 'j & 3')
        S(sU0, o.get('u0', 'j & 12'))
        va(vT + 2, [(4, 1, 64)]); va(vWd, [(0, 3, 16)])
        a(f'v_xor_b32 v{vWd}, v{vWd}, v{vT+2}'); va(vT + 2, [(3, 3, 6144)]); a(f'v_add_u32 v{vWd}, v{vWd}, v{vT+2}')
        wq = [(n, t) for n in range(16) for t in range(3)]
        def w_base(n, wexpr):
            if n < 4:
                S(T7, '((j >> 4)*2) ^ n', n=n)
                S(sU, f'(((T7 + u0) & 15)*8 + {wexpr})*(8*6144) + hp*128')
                S(T7, f'T7*SLOT + ({wexpr})*1024')
            else:
                S(sU, f'(((u0 + n) & 15)*8 + {wexpr})*(8*6144) + hp*128', n=n)
                S(T7, f'({wexpr})*1024 + q', q=(n % 6) * SLOT)
        def w_slot(n, t):
            S('m0', 'T7 + q', q=t * 8192)
            self.dma(vWd, rW, sU, 0, o.get('wmod', ''), ('W', n))
            if t < 2: S(sU, 'u + 2048')
        def w_next(cnt=1):
            for _ in range(cnt):
                n, t = wq.pop(0)
                if t == 0: w_base(n, 'w')
                w_slot(n, t)
        wb = list(o['wburst'])
        va(vL8, [(0, 6, 8)])
        va(vL32S, [(0, 6, 32)], None, SCR)
        S(T0, 'w*4 + SCR')
        va(vGA, [(4, 2, 64), (0, 3, 256), (3, 1, 32)], T0)
        self.stamp('issued')
        xs = V.alloc(16); st = V.alloc(4)
        vm.wait('xs')
        self.stamp('xsok')
        self.ln_stats(xs_raw, vT, st, st + 1)
        S(T0, 'w*8 + L_ST')
        a(f"""s_waitcnt lgkmcnt(0)
        s_mul_i32 s{sTAG}, s{sTAG}, 0x9e3779b1
        s_add_u32 s{sTAG}, s{sTAG}, 0x7f4a7c15
        v_lshrrev_b32 v{st}, 16, v{st}
        v_or_b32 v{st}, v{st}, v{st+1}
        v_mov_b32 v{st+1}, s{sTAG}
        v_mov_b32 v{vT}, s{T0}""")
        self.dw('ds_write_b64', vT, st, 2)
        va(vT + 1, [(0, 2, 16)], None, L_ST)
        va(vT, [(0, 2, 16), (2, 1, 1024)])
        S(T0, '((x & 6) + ((x & 1)*2 + (j >> 4))*64 + w*8)*1024 + (j & 15)*64 + SINB')
        self.barrier()
        self.r128(st, vT + 1)
        lg.wait_all()
        a('s_mov_b64 exec, 0xff')
        self.bs(st, 4, vT, rWS, T0, 0, 'sc1')
        a('s_mov_b64 exec, -1')
        self.stamp('A2pub')
        self.bl(xr, 4, vXT, rX, T5, 0, o.get('xtmod', ''), 'xt')
        self.bl(xr + 4, 4, vXT, rX, T5, 16, o.get('xtmod', ''), 'xt')
        S(T0, 'hp*4096 + w*512')
        a(f'v_add_u32 v{vT}, s{T0}, v{vL16}')
        S('m0', 'w*512 + L_WPHI')
        a('s_mov_b32 exec_hi, 0')
        a(f'global_load_lds_dwordx4 v{vT}, {sr(pWPHI, 2)}'); vm.issue()
        a('s_mov_b32 exec_hi, -1')
        w_next(wb[0])
        vm.wait('c')
        for i in range(2):
            a(f'v_lshlrev_b32 v{cv+i}, 16, v{cv+i}')
            self.silu(cv + i, vT + i)
        S(T0, '((((w >> 1)*16 + ((j ^ 1) & 15))*2 + (j >> 4))*8 + x)*512 + AINB')
        S(T1, '(wg*4 + (w & 3))*256 + SINB')
        va(vT + 4, [(0, 5, 8)])
        vm.wait('wm')
        self.stamp('wmok')
        for s in self.gemv_ops([wm, wm + 4], [cv, cv + 1], acc, vT, vT + 1, True): a(s)
        self.dw('ds_write_b32', vGA, acc, 1, L_A1 - SCR)
        self.barrier()
        def gemv_final(ldsoff, soff, half=False):
            a(f'ds_read_b128 {vr(acc, 4)}, v{vL32S} offset:{ldsoff - SCR}')
            a(f'ds_read_b128 {vr(acc + 4, 4)}, v{vL32S} offset:{ldsoff - SCR + 16}')
            a('s_waitcnt lgkmcnt(0)')
            self.sum8(acc)
            a(f'v_mov_b32 v{acc+1}, s{sTAG}')
            if half:
                a(f"""s_bitcmp1_b32 s{sWAVE}, 0
                s_cselect_b32 exec_lo, 0, -1
                s_cselect_b32 exec_hi, -1, 0""")
            self.bs(acc, 2, vL8, rWS, soff, 0, 'sc1', count=half)
            if half: a('s_mov_b64 exec, -1')
        def a1_pub():
            gemv_final(L_A1, T0, True)
            self.stamp('A1pub')
        st_pre = lambda: self.spoll([(q, 1, T1, q * 64 + 60) for q in range(4)], range(4))
        st_ld = lambda: self.bl(st, 2, vT + 4, rWS, T1, 0, 'sc1')
        if o.get('statpre', 0) == 0: self.try_load(st_ld, [st + 1], None, lambda: (a1_pub(), w_next(wb[1])), st_pre)
        elif o['statpre'] == 1: a1_pub(); self.try_load(st_ld, [st + 1], None, lambda: w_next(wb[1]), st_pre)
        else: a1_pub(); st_pre(); self.try_load(st_ld, [st + 1], None, lambda: w_next(wb[1]))
        self.stamp('statok')
        V.release(xs_raw, 8); V.release(wm, 8); V.release(cv, 2)
        def xhat_work():
            self.unpack(st + 1, st, st)
            a(f'v_rcp_f32 v{st}, v{st}')
            for i in range(8): self.unpack(xs + 2 * i, xs + 2 * i + 1, xr + i)
            for i in E2: self.pk('add', xs + i, xs + i, st + 1, bc=(1,), neg=(1,))
            self.round_list([xs + i for i in range(16)])
            for i in E2: self.pk('mul', xs + i, xs + i, st, bc=(1,))
            self.round_list([xs + i for i in range(16)])
        va(vT, [(0, 5, 16), (5, 1, 4096)])
        S(T0, 'T4')
        S(T1, 'w*4 + L_MP'); va(vT + 1, [(0, 6, 64)], T1)
        S(T1, 'kh*1024 + L_MP'); va(vT + 2, [(0, 4, 32), (5, 1, 512)], T1)
        self.spoll([(q, 1, T0, q * 4096 + 508) for q in range(2)], range(2), work=xhat_work)
        self.stamp('apre')
        if o.get('abar', 1): a('s_barrier')
        self.try_load(lambda: self.bl(st, 4, vT, rWS, T0, 0, 'sc1'), [st + 1, st + 3], vT + 3, lambda: w_next(wb[2]))
        self.stamp('modok')
        a(f'ds_write2_b32 v{vT+1}, v{st}, v{st+2} offset0:0 offset1:8'); lg.issue()
        self.barrier()
        mp = V.alloc(16); hp = V.alloc(8)
        for i in (2, 3, 0, 1): self.r128(mp + 4 * i, vT + 2, (i >> 1) * 2048 + (i & 1) * 16, i >> 1)
        w_next(wb[3])
        S(T0, '(((rt*16 + cb)*4 + (w & 3))*2 + kh)*2048 + HF')
        lg.wait(1); self.sum8(mp + 8)
        self.round1(mp + 8)
        lg.wait(0); self.sum8(mp)
        a(f'v_add_f32 v{mp+8}, 1.0, v{mp+8}')
        self.round2(mp + 8, mp)
        for h in range(2):
            rg = range(8 * h, 8 * h + 8)
            for i in rg: self.dpp('v_mul_f32', xs + i, mp + 8, xs + i, f'row_newbcast:{i}')
            self.round_list([xs + i for i in rg])
            for i in rg: self.dpp('v_add_f32', xs + i, mp, xs + i, f'row_newbcast:{i}')
            for i in range(4 * h, 4 * h + 4): a(f'v_cvt_pk_bf16_f32 v{hp+i}, v{xs+2*i}, v{xs+2*i+1}')
            self.bs(hp + 4 * h, 4, vL16, rWS, T0, 1024 * h, 'sc1')
        self.stamp('hst')
        va(vB, [(2, 2, 128), (3, 1, 64), (4, 1, 32), (0, 2, 8), (5, 1, 2048)])
        a(f'v_xor_b32 v{vB+1}, 64, v{vB}')
        for q in (1, 2):
            for h in range(2): a(f'v_add_u32 v{vB+2*q+h}, {2*q*SLOT}, v{vB+h}')
        S(T1, 'kh*2048 + L_WPHI')
        va(vT, [(2, 2, 64), (4, 1, 32), (0, 2, 8), (5, 1, 256)], T1)
        va(vT + 1, [(0, 2, 8 * 4096), (2, 2, 4096)])
        S(T0, '((rt >> 3)*4 + (rt & 7)*32)*4096 + (cb >> 1)*64 + (cb & 1)*4 + INB')
        va(vT + 2, [(4, 1, 64)]); va(vWo, [(0, 3, 16)])
        a(f'v_xor_b32 v{vWo}, v{vWo}, v{vT+2}'); va(vT + 2, [(3, 3, 2048)]); a(f'v_add_u32 v{vWo}, v{vWo}, v{vT+2}')
        S(T1, '(w & 2)*32'); va(vT + 2, [(4, 1, 32)], T1); va(vFG, [(0, 3, 16)])
        a(f'v_xor_b32 v{vFG}, v{vFG}, v{vT+2}'); va(vT + 2, [(3, 3, 7168)]); a(f'v_add_u32 v{vFG}, v{vFG}, v{vT+2}')
        S(T1, '(w & 1)*128')
        va(vT + 2, [(5, 1, 64)], T1); va(vFD, [(0, 5, 16), (5, 1, 2048)])
        a(f'v_xor_b32 v{vFD}, v{vFD}, v{vT+2}')
        S(sFG, '(kq*8 + w)*(32*7168) + fs*128'); S(sFD, '(fs*8 + w)*16384 + kq*512')
        a(f"""s_cmp_ge_u32 s{sJ}, 28
        s_cselect_b32 s{rWG+2}, 0, s{rWG+2}
        s_cselect_b32 s{rWU+2}, 0, s{rWU+2}
        s_cselect_b32 s{rWD+2}, 0, s{rWD+2}""")
        vm.wait_all()
        a('s_barrier')
        self.push(vT + 1, T0, 16, vT + 2, 'L_PB')
        self.stamp('hpub')
        V.release(xs, 16); V.release(mp, 16); V.release(hp, 8); V.release(st, 4)
        w_next(wb[4])
        for s in range(2):
            for u in range(2): self.tr(wphi + 4 * s + 2 * u, vT, s * 1024 + u * 512)
        AD, LOOK, LASTB = o['AD'], 6, o['LASTB']
        accs = V.alloc(96)
        big = V.alloc(76)
        Ar, Br = big, big + 4 * AD
        assert 4 * AD + 4 * (LOOK + 1) <= 76
        S(T2, '(r1*64 + w)*4096 + HF')
        S(T0, '(w & 3)*4096 + L_XF'); a(f'v_add_u32 v{vXF}, s{T0}, v{vL16}')
        S(T0, '(w & 3)*1024 + kh*16384 + L_PHK'); va(vPW, [(0, 5, 32), (5, 1, 16)], T0)
        fq = [(m, i) for m in range(3) for i in range(4)]
        freg = []
        def f_src(m, i, back=0, T0=T0):
            if m < 2: S(T0, 'fg + q', q=i * 8 * 7168 - back * 4 * 32 * 7168)
            else: S(T0, 'fd + q', q=i * 4096 - back * 4 * 16384)
            return (vFG, (rWG, rWU)[m]) if m < 2 else (vFD, rWD)
        def f_lds(m, i): return (L_GU + m * 32768 if m < 2 else L_DN) + i * 1024
        def ffn_reg(n):
            for _ in range(n):
                m, i = fq.pop(0)
                for back in range(2):
                    v, r = f_src(m, i, back)
                    self.bl(big + 8 * len(freg) + 4 * back, 4, v, r, T0, 0, o.get('ntffn', 'nt'), 'ffn')
                freg.append((m, i))
        def ffn_dma(n, T0=T0):
            for _ in range(n):
                m, i = fq.pop(0)
                if o.get('nofd'): continue
                v, r = f_src(m, i, 0, T0)
                S('m0', 'w1k*4 + q', q=f_lds(m, i))
                self.dma(v, r, T0, 0, o.get('ntffn', 'nt'), 'ffn')
        S(sWB, '(rot*4 + w)*16384'); S(sWO2, '(j >> 4)*1048576 + cb*128'); S(sW1K, 'w*1024')
        def wo_dma(it, back=0, T0=T0):
            S(T0, '((wb + q) & 0xfffff) + (wo2 ^ h)', q=(8 * it - 4 * back) * 16384, h=(it >> 3) << 20)
            S('m0', 'w1k + q', q=WO_H0 + it * 8192 - 4096 * back)
            self.dma(vWo, rWO, T0, 0, '', 'wo')
        def modf_duty(g4, part):
            ld = lambda: [self.bl(g4 + 2 * q, 2, vL8, rWS, sMF, q * 512, 'sc1') for q in range(4)]
            tg = [g4 + 1, g4 + 3, g4 + 5, g4 + 7]
            saved = list(vm.q)
            a(f"""s_cmp_eq_u32 s{sMF}, 0
            s_cbranch_scc1 L_NOMF{part}""")
            if part == 0: ld()
            else:
                self.tagcheck(tg, vT)
                a('s_cbranch_vccz L_MFOK')
                self.poll(ld, tg, vT)
                a(f"""L_MFOK:
                v_add_f32 v{g4}, v{g4}, v{g4+2}
                v_add_f32 v{g4+4}, v{g4+4}, v{g4+6}
                v_add_f32 v{g4}, v{g4}, v{g4+4}""")
                self.round1(g4)
                a(f"""s_cmp_eq_u32 s{sX}, 1
                s_cselect_b32 s{T6}, 1.0, 0
                v_add_f32 v{g4}, s{T6}, v{g4}""")
                self.round1(g4)
                S(T6, '(x*16 + j)*512 + MODF')
                self.bs(g4, 2, vL8, rWS, T6, 0, 'sc1', count=False)
            a(f'L_NOMF{part}:')
            vm.q = saved
        S(sMF, '(x*16 + j + 16)*2048 + MODP2')
        a(f"""s_cmp_ge_u32 s{sX}, 3
        s_cselect_b32 s{sMF}, 0, s{sMF}
        s_cmp_ge_u32 s{sJ}, 16
        s_cselect_b32 s{sMF}, 0, s{sMF}
        s_cmp_lg_u32 s{sWAVE}, 1
        s_cselect_b32 s{sMF}, 0, s{sMF}""")
        self.inbox(0, 2, work=lambda: w_next(wb[5]))
        assert len(wq) % 3 == 0 and 30 <= len(wq) <= 36
        NPU = 16 - len(wq) // 3
        vm.wait(('W', 2))
        a('s_barrier')
        self.stamp('hok')
        a(f"""s_cmp_ge_u32 s{sWAVE}, 4
        s_cbranch_scc1 L_HELP
        s_setprio 2""")
        q_hok = list(vm.q)
        if 'pad' in o:
            a('.p2align 6')
            for _ in range(o['pad']): a('s_nop 0')
        def a_load(sg):
            if sg % 4 == 0: S(T3, '((u0 + n) & q)*16384 + T2', n=sg // 4, q=o.get('amask', 15))
            self.bl(Ar + 4 * (sg % AD), 4, vL16, rWS, T3, (sg % 4) * 1024, o.get('amod', 'sc1'), ('A', sg))
        CORD = (2, 3, 0, 1, 4, 5)
        def b_read(n):
            sg, c = divmod(n, 6); t, h = divmod(CORD[c], 2)
            slot = (sg >> 2) % 6
            off = (slot & 1) * SLOT + t * 8192 + ((sg >> 1) & 1) * 4096 + (sg & 1) * 1024
            d = Br + 4 * (n % (LOOK + 1))
            self.tr(d, vB + 2 * (slot >> 1) + h, off, ('B', n)); self.tr(d + 2, vB + 2 * (slot >> 1) + h, off + 512, ('B', n))
        nxt = 0
        def a_more(lim):
            nonlocal nxt
            while nxt < min(lim, 64): a_load(nxt); nxt += 1
        a_more(1)
        for n in range(LOOK): b_read(n)
        a_more(o.get('A0', 4))
        for n in range(384):
            sg, c = divmod(n, 6)
            if c == 0: vm.wait(('A', sg))
            lg.wait(('B', n))
            d = accs + 16 * CORD[c]
            a(f'v_mfma_f32_32x32x16_bf16 {vr(d, 16)}, {vr(Br + 4*(n % (LOOK + 1)), 4)}, {vr(Ar + 4*(sg % AD), 4)}, ' + ('0' if sg == 0 else vr(d, 16)))
            if n + LOOK < 384:
                if (n + LOOK) % 24 == 0 and (n + LOOK) // 24 <= LASTB: a('s_barrier')
                b_read(n + LOOK)
            if c == 5:
                a_more(min(nxt + 2, sg + AD + 1))
                if sg % 4 == 3 and o.get('gst'): self.stamp(f'g{sg//4}')
                if sg == 63 - AD and o.get('b14', 1): a('s_barrier')
        self.stamp('gemm1')
        aq, ak, av = accs, accs + 32, accs + 64
        def cvt8(d, s_):
            for i in range(8): a(f'v_cvt_pk_bf16_f32 v{d+i}, v{s_+2*i}, v{s_+2*i+1}')
        cvt8(vv, ak + 16)
        for q in range(2): self.dw('ds_write_b128', vXF, vv + 4 * q, 4, q * 1024)
        cvt8(fr, ak)
        self.barrier()
        a('s_setprio 0')
        pp = ak; ee = ak + 16
        def phi_logits(src):
            a(f'v_mfma_f32_32x32x16_bf16 {vr(pp, 16)}, {vr(wphi, 4)}, {vr(src, 4)}, 0')
            a(f'v_mfma_f32_32x32x16_bf16 {vr(pp, 16)}, {vr(wphi + 4, 4)}, {vr(src + 4, 4)}, {vr(pp, 16)}')
        phi_logits(fr)
        for h in range(2):
            cvt8(vv if h == 0 else vq, av + 16 * h)
            for db in range(2): self.dw('ds_write_b128', vPW, (vv if h == 0 else vq) + 4 * db, 4, L_V - L_PHK + h * 8192 + db * 4096)
        cvt8(fr, aq + 16)
        for q in range(2): self.dw('ds_write_b128', vXF, fr + 4 * q, 4, 2048 + q * 1024)
        cvt8(vq, aq)
        a('s_branch L_JOIN')
        a('L_HELP:')
        vm.q = [('W', 1)] * len(q_hok); lg.reset()
        m2w = accs; m2c = accs + 32; g4 = accs + 40
        def w_unit(n):
            for wexpr in ('w - 4', 'w'):
                w_base(n, wexpr)
                for t in range(3): w_slot(n, t)
        for n in range(NPU, 6): w_unit(n)
        S(T0, '((x & 3)*4 + w - 4)*128')
        va(vCo, [(3, 3, 2)], T0)
        S(T4, 'T0*6144 + (j*2 + (x >> 2))*128 + 4096')
        for i in range(8): a(f'global_load_ushort v{m2c+i}, v{vCo}, {sr(pC, 2)} offset:{16*i}'); vm.issue('m2c')
        m2l = list(range(8)); wol = [8, 9, 10, 11]; pwl = list(range(1, 8)); sil = list(range(8))
        m2ops = self.gemv_ops([m2w + 4 * i for i in range(8)], [m2c + i for i in range(8)], acc, vT, vT + 1, False)
        m2pos = 0
        def act(op, k):
            nonlocal m2pos
            kind, n = op[0], int(op[1:] or 1)
            if kind == 'm':
                for _ in range(2 * n):
                    i = m2l.pop(0)
                    self.bl(m2w + 4 * i, 4, vWM, rWM, T4, 0, o.get('ntm2', 'nt'), ('m2', i))
                    if m2l: S(T4, 'T4 + 8*12288')
            elif kind == 'f': ffn_reg(n)
            elif kind == 'o':
                assert k >= 13
                for _ in range(n):
                    it = wol.pop(0); wo_dma(it, 1); wo_dma(it)
            elif kind == 'p':
                a('s_waitcnt lgkmcnt(0)')
                for q in range(n):
                    b = pwl.pop(0)
                    a(f's_load_dword s{sPL + 2*q}, {sr(rWS, 2)}, s{sINB} offset:{b * 512} glc')
                    a(f's_load_dword s{sPL + 2*q + 1}, {sr(rWS, 2)}, s{sINB} offset:{b * 512 - 256} glc')
            elif kind == 'q':
                S(T0, 'fs*8192 + (w - 4)*256 + HGR')
                a('s_waitcnt lgkmcnt(0)')
                for q in range(4): a(f's_load_dword s{sPL + q}, {sr(rWS, 2)}, s{T0} offset:{q * 2048 + 1024 + 252} glc')
            elif kind == 's':
                vm.wait('m2c')
                for _ in range(n):
                    i = sil.pop(0)
                    a(f'v_lshlrev_b32 v{m2c+i}, 16, v{m2c+i}')
                    self.silu(m2c + i, vT + (i & 1))
            elif kind == 'g':
                assert not sil
                for _ in range(n):
                    vm.wait(('m2', m2pos // 16))
                    for s_ in m2ops[m2pos:m2pos + 16]: a(s_)
                    m2pos += 16
            elif kind == 'r':
                assert m2pos == 128
                for s_ in m2ops[128:]: a(s_)
                self.dw('ds_write_b32', vGA, acc, 1, L_M2 - SCR)
                lg.wait_all()
            elif kind == 'P':
                a(f"""s_cmp_lg_u32 s{sWAVE}, 4
                s_cbranch_scc1 L_M2F
                ds_read_b128 {vr(acc, 4)}, v{vL32S} offset:{L_M2 - SCR + 16}""")
                S(T0, '((j*2 + (x >> 2))*4 + (x & 3))*512 + MODP2')
                a(f"""s_waitcnt lgkmcnt(0)
                v_add_f32 v{acc}, v{acc}, v{acc+1}
                v_add_f32 v{acc+2}, v{acc+2}, v{acc+3}
                v_mov_b32 v{acc+1}, s{sTAG}
                v_add_f32 v{acc}, v{acc}, v{acc+2}""")
                self.bs(acc, 2, vL8, rWS, T0, 0, 'sc1', count=False)
                a('L_M2F:')
            else: raise ValueError(op)
        sched = {int(k): v.split() for k, v in o['sched'].items()}
        for op in sched.get(0, []): act(op, 0)
        for k in range(1, LASTB + 1):
            for kk in (range(k, 16) if k == LASTB else [k]): vm.wait(('W', kk))
            a('s_barrier')
            ops = sched.get(k, [])
            if 6 <= k + 4 < 16:
                pre = [op[1:] for op in ops if op[0] == '<']
                for op in pre: act(op, k)
                if not o.get('now2'): w_unit(k + 4)
            for op in ops:
                if op[0] != '<': act(op, k)
        if o.get('b14', 1):
            assert LASTB == 13 and AD <= 12
            a('s_barrier')
            for op in sched.get(14, []): act(op, 14)
        assert (not m2l or o.get('nom2')) and not wol
        self.barrier()
        for q in range(2): self.r128(fr + 4 * q, vXF, q * 1024)
        lg.wait_all()
        phi_logits(fr)
        for op in sched.get(15, []): act(op, 15)
        assert 8 * len(freg) <= 76
        a('L_JOIN:')
        vm.reset(); lg.q = [None]
        V.release(vB, 6); V.release(vWd); V.release(vWM); V.release(vCo); V.release(vGA); V.release(vL32S); V.release(acc, 8)
        V.release(big + 8 * len(freg), 76 - 8 * len(freg))
        ph = aq; fx = aq + 16
        vPA = V.alloc(); vPB = V.alloc()
        self.softmax_pm(pp, ee, ph, vT)
        for fb in range(4): self.dw('ds_write_b128', vPW, ph + 4 * fb, 4, fb * 4096)
        S(T0, 'w*4096 + L_PHK'); a(f'v_add_u32 v{vPA}, s{T0}, v{vL8}')
        S(T0, 'kh*8192 + L_V'); a(f'v_add_u32 v{vPB}, s{T0}, v{vL8}')
        ones = fr
        for i in range(4): a(f'v_mov_b32 v{ones+i}, 0x3f803f80')
        S(T0, '((hp*8 + w)*32 + r1)*1024 + KVP'); S(T2, 'T0 + 16384')
        S(T3, '(hp*8 + w)*1024 + ZP'); S(T1, 'r1*64 + T3')
        self.stamp('ksm')
        self.barrier()
        self.stamp('phik')
        fragA = [ee + 4 * i for i in range(4)]
        fragB = [av + 4 * i for i in range(8)]
        kvd = vv; zd = fr + 4
        def kvm(u):
            lg.wait(('kv', u))
            for db in range(2):
                a(f'v_mfma_f32_16x16x32_bf16 {vr(kvd + 4*db, 4)}, {vr(fragA[u], 4)}, {vr(fragB[2*u+db], 4)}, ' + ('0' if u == 0 else vr(kvd + 4*db, 4)))
            a(f'v_mfma_f32_16x16x32_bf16 {vr(zd, 4)}, {vr(fragA[u], 4)}, {vr(ones, 4)}, ' + ('0' if u == 0 else vr(zd, 4)))
        for ts in range(4):
            self.tr(fragA[ts], vPA, ts * 1024, ('kv', ts)); self.tr(fragA[ts] + 2, vPA, ts * 1024 + 512, ('kv', ts))
            for db in range(2):
                self.tr(fragB[2*ts+db], vPB, db * 4096 + ts * 1024, ('kv', ts)); self.tr(fragB[2*ts+db] + 2, vPB, db * 4096 + ts * 1024 + 512, ('kv', ts))
            if ts >= 2: kvm(ts - 2)
        kvm(2); kvm(3)
        a(f"""s_cmp_lt_u32 s{sWAVE}, 4
        s_cbranch_scc1 L_NOQX
        ds_read_b128 {vr(vq, 4)}, v{vXF} offset:2048
        ds_read_b128 {vr(vq + 4, 4)}, v{vXF} offset:3072
        L_NOQX:""")
        self.bs(kvd, 4, vL16, rWS, T0, 0, 'sc1', 'kvs')
        self.bs(kvd + 4, 4, vL16, rWS, T2, 0, 'sc1', 'kvs')
        a('s_mov_b32 exec_lo, 0x00010001')
        a('s_mov_b32 exec_hi, 0x00010001')
        self.bs(zd, 4, vL, rWS, T1, 0, 'sc1', 'kvs')
        a('s_mov_b64 exec, -1')
        lg.wait_all()
        phi_logits(vq)
        self.stamp('kvst')
        va(vPW, [(0, 3, 32 * 4096), (3, 1, 4 * 4096)])
        S(T4, '(wg & 0x1b)*4096 + (r1 >> 1)*64 + (r1 & 1)*4 + INB + 512')
        wl = [2, 3, 4, 5, 6, 7, 12, 13, 14, 15, 0, 1]
        kp = av; zz = av + 16; g4 = vv
        ga = fx; wr1 = fx + 8
        vGa = V.alloc(); vKP = V.alloc()
        va(vGa, [(0, 4, 8), (5, 1, 128)])
        va(vKP, [(3, 3, 1024), (0, 3, 16)])
        va(vXF, [(0, 3, 16), (5, 1, 8)])
        S(T5, 'cb*2048 + kh*256 + MODP2')
        ld_ga = lambda: [self.bl(ga + 2 * q, 2, vGa, rWS, T5, q * 512, 'sc1', 'ga') for q in range(4)]
        def c_push():
            vm.wait('kvs')
            a('s_barrier')
            self.push(vPW, T4, 16, vPB, 'L_PC')
            self.stamp('kvpub')
            modf_duty(g4, 0)
        qm, qs = o.get('qmid', 8), o.get('qsplit', 16)
        wo1 = lambda: wo_dma(wl.pop(0), 0, T6)
        self.softmax_pm(pp, ee, ph, vT, part=1, split=qm)
        c_push()
        self.weave(lambda: [a(f'v_exp_f32 v{r+i}, v{r+i}') for i in range(qm, qs) for r in (ee, pp)], [wo1] * o['wowin'][0])
        S(T0, '(hp*16 + r1)*16384 + w*128 + KVP'); S(T1, 'T0 + 8192')
        S(T2, '(hp*16 + r1)*1024 + w*128 + KIN'); S(T4, 'T4 + 6*512')
        self.inbox(1, 2, work=lambda: (self.weave(lambda: self.softmax_pm(pp, ee, ph, vT, part=2, split=qs), [wo1] * o['wowin'][1]), self.stamp('cw')))
        a('s_barrier')
        self.stamp('kvok')
        self.bl(kp, 4, vKP, rWS, T0, 0, 'sc1', 'kp')
        self.bl(kp + 4, 4, vKP, rWS, T1, 0, 'sc1', 'kp')
        S(T1, 'w*32 + L_ZF'); va(vT + 2, [(0, 2, 8), (5, 1, 4)], T1)
        S(T1, 'w*1024 + L_KVF'); va(vT + 1, [(0, 4, 16), (5, 1, 512), (4, 1, 8)], T1)
        S(T1, 'kh*128 + L_ZF'); va(vT + 3, [(5, 1, 16)], T1)
        S(T1, 'kh*4096 + L_KVF'); a(f'v_add_u32 v{vPA}, s{T1}, v{vL16}')
        self.bl(zz, 4, vL16, rWS, T3, 0, 'sc1', 'z')
        def red4(r, ctls):
            for i in range(2): a(f'v_permlane32_swap_b32 v{r+i}, v{r+2+i}')
            self.pk('add', r, r, r + 2)
            for ctl in ctls:
                for i in range(2): self.dpp('v_add_f32', r + i, r + i, r + i, ctl)
            for i in range(2): a(f'v_mov_b32 v{r+2+i}, v{r+i}')
            for i in range(2): a(f'v_permlane16_swap_b32 v{r+i}, v{r+2+i}')
            self.pk('add', r, r, r + 2)
            a(f'v_cvt_pk_bf16_f32 v{r}, v{r}, v{r+1}')
        vm.wait('kp')
        self.pk('add', kp, kp, kp + 4); self.pk('add', kp + 2, kp + 2, kp + 6)
        red4(kp, ['row_ror:8'])
        a(f"""v_mov_b32 v{kp+1}, s{sTAG}
        s_mov_b32 exec_lo, 0xff
        s_mov_b32 exec_hi, 0xff""")
        self.bs(kp, 2, vXF, rWS, T2, 0, 'sc1')
        a('s_mov_b64 exec, -1')
        a('s_barrier')
        self.push(vPW, T4, 16, vPB, 'L_PC2')
        self.stamp('c2pub')
        kf = av; zf = av + 16; num = pp; den = ee
        vm.wait('z')
        self.weave(lambda: red4(zz, ['row_ror:4', 'row_ror:8']), [wo1] * o['wowin'][2])
        self.dw('ds_write_b32', vT + 2, zz, 1)
        self.barrier()
        for fb in range(4): self.r128(zf + 4 * fb, vT + 3, fb * 32)
        lg.wait_all()
        S(T0, '(hp*8 + w)*2048 + KIN')
        k2 = av + 8
        def den_work():
            for fb in range(4):
                a(f'v_mfma_f32_32x32x16_bf16 {vr(den, 16)}, {vr(zf + 4*fb, 4)}, {vr(ph + 4*fb, 4)}, ' + ('0' if fb == 0 else vr(den, 16)))
            self.round1(den)
            a(f'v_add_f32 v{den}, 0x358637bd, v{den}')
            self.round1(den)
            a(f'v_rcp_f32 v{den}, v{den}')
            modf_duty(g4, 1)
            self.stamp('c2w')
        self.inbox(7, 2, work=den_work)
        self.stamp('c2h')
        self.poll(lambda: [self.bl(k2 + 4 * q, 4, vL16, rWS, T0, q * 1024, 'sc1') for q in range(2)], [k2 + 1, k2 + 3, k2 + 5, k2 + 7], vT)
        for db in range(2):
            a(f'ds_write2_b32 v{vT+1}, v{k2+4*db}, v{k2+4*db+2} offset0:{64*db} offset1:{64*db+1}'); lg.issue()
        self.barrier()
        self.stamp('kvred')
        for fb in range(4): self.r128(kf + 4 * fb, vPA, fb * 1024, ('kf', fb))
        ld_ga()
        S(T0, 'w*256'); va(vT, [(0, 6, 4)], T0)
        a(f'global_load_dword v{wr1}, v{vT}, {sr(pWR, 2)}'); vm.issue('ga')
        S(T0, '(((r1*4 + (w & 3))*16 + hp)*2 + kh)*2048 + OF')
        for fb in range(4):
            lg.wait(('kf', fb))
            a(f'v_mfma_f32_32x32x16_bf16 {vr(num, 16)}, {vr(kf + 4*fb, 4)}, {vr(ph + 4*fb, 4)}, ' + ('0' if fb == 0 else vr(num, 16)))
        for h in range(2):
            self.round_list([num + i for i in range(8 * h, 8 * h + 8)])
            for i in range(8 * h, 8 * h + 8, 2): self.pk('mul', num + i, num + i, den, bc=(1,))
            for i in range(4 * h, 4 * h + 4): a(f'v_cvt_pk_bf16_f32 v{vq+i}, v{num+2*i}, v{num+2*i+1}')
            self.bs(vq + 4 * h, 4, vL16, rWS, T0, 1024 * h, 'sc1', 'os')
        self.stamp('ost')
        for r, n in ((fr, 8), (vv, 8), (vPW, 1), (vXF, 1), (vPA, 1), (vPB, 1), (vKP, 1), (accs, 16), (accs + 32, 64), (wphi, 8)):
            V.release(r, n)
        assert GS == 0
        vG16 = vL16
        vBa = V.alloc(); vBb = V.alloc(); xf = V.alloc(16); mg = V.alloc(12)
        S(T4, 'kh*(65536 + 64) + WO_H0')
        va(vBa, [(2, 2, 128), (3, 1, 64), (5, 1, 1024), (0, 1, 32), (4, 1, 16), (1, 1, 8)])
        a(f'v_xor_b32 v{vBa}, s{T4}, v{vBa}')
        a(f'v_xor_b32 v{vBb}, 64, v{vBa}')
        assert WO_H1 == WO_H0 + 65536
        va(vT + 1, [(0, 3, 8 * 4096), (3, 1, 4096)])
        S(T2, '((r1 >> 2)*2 + (r1 & 3)*64)*4096 + (hp >> 1)*64 + (hp & 1)*4 + INB + 1024')
        for i in range(8): self.unpack(xf + 2 * i, xf + 2 * i + 1, xr + i)
        S(T6, '(gtb*2 + kf)*32768 + OF')
        vm.wait('os')
        a('s_barrier')
        self.push(vT + 1, T2, 16, vT + 2, 'L_PD')
        self.stamp('opub')
        V.release(vq, 8)
        while wl: wo_dma(wl.pop(0))
        V.release(vWo)
        S(T0, 'w*1024 + MODF'); S(T1, 'T0 + 8192'); S(T2, 'T0 + 16384')
        ld_mg = lambda: [self.bl(mg + 4 * q, 4, vL16, rWS, (T0, T1, T2)[q], 0, 'sc1', 'mg') for q in range(3)]
        gaf = V.alloc(16)
        def d_work():
            vm.wait_all()
            tg = [ga + 1 + 2 * q for q in range(4)] + [mg + 1 + 2 * q for q in range(6)]
            self.tagcheck(tg, vT)
            a('s_cbranch_vccz L_MGOK')
            self.poll(lambda: (ld_ga(), ld_mg()), tg, vT)
            a('L_MGOK:')
            a(f"""v_add_f32 v{ga}, v{ga}, v{ga+2}
            v_add_f32 v{ga+4}, v{ga+4}, v{ga+6}
            v_add_f32 v{ga}, v{ga}, v{ga+4}""")
            self.round1(ga)
            for q in range(3): a(f'v_cvt_pk_bf16_f32 v{ga+1+q}, v{mg+4*q}, v{mg+4*q+2}')
        def d_work2():
            for i in range(16): a(f'v_mov_b32_dpp v{gaf+i}, v{ga} row_newbcast:{i} row_mask:0xf bank_mask:0xf')
            self.stamp('dw')
        ld_mg()
        AD2 = o['AD2']
        accA = V.alloc(16); accB = V.alloc(16); Ar = V.alloc(4 * AD2); Br = V.alloc(16)
        nf2 = o.get('fg2', 0); f2 = []; f2r = V.alloc(4 * nf2) if nf2 else None
        def b2_read(s, c):
            d = Br + 8 * (s & 1) + 4 * c
            self.tr(d, (vBa, vBb)[c], s * 2048, ('B', s, c)); self.tr(d + 2, (vBa, vBb)[c], s * 2048 + 512, ('B', s, c))
        def a2_load(s):
            if s % 2 == 0: S(T7, '((rot + n) & 15)*2048 + T6', n=s // 2)
            self.bl(Ar + 4 * (s % AD2), 4, vL16, rWS, T7, (s % 2) * 1024, 'sc1', ('A', s))
        if o.get('dasync', 1): self.inbox(2, 2, work=lambda: (d_work(), d_work2()))
        else: d_work(); self.inbox(2, 2, work=d_work2)
        V.release(mg, 12); V.release(vGa)
        a('s_barrier')
        self.stamp('ook')
        for s in range(AD2):
            a2_load(s)
            if s == 0:
                for c in (1, 0): b2_read(0, c)
        for s in range(32):
            vm.wait(('A', s))
            for c in (1, 0):
                lg.wait(('B', s, c))
                ac = (accA, accB)[c]
                a(f'v_mfma_f32_32x32x16_bf16 {vr(ac, 16)}, {vr(Br + 8*(s & 1) + 4*c, 4)}, {vr(Ar + 4*(s % AD2), 4)}, ' + ('0' if s == 0 else vr(ac, 16)))
                if s + 1 < 32: b2_read(s + 1, c)
            if s + AD2 < 32: a2_load(s + AD2)
            if s == o.get('fg2at', 31):
                for n in range(nf2):
                    m, i = fq.pop(0); f2.append((m, i))
                    v, r = f_src(m, i)
                    self.bl(f2r + 4 * n, 4, v, r, T0, 0, o.get('ntffn', 'nt'), 'ffn')
        self.stamp('gemm2')
        S(T0, 'w*4096')
        a(f"""v_add_u32 v{vT}, s{T0}, v{vG16}
        v_xor_b32 v{vT+1}, 0x4000, v{vT}""")
        S(T0, '(gtb*32 + c32)*2048 + X1F')
        va(vT + 2, [(0, 5, 16), (5, 1, 1024)])
        for q in range(4): self.dw('ds_write_b128', vT, accB + 4 * q, 4, L_EXCH - GS + q * 1024)
        self.barrier()
        for q in range(4): self.r128(accB + 4 * q, vT + 1, L_EXCH - GS + q * 1024, ('ex', q))
        ffn_dma(o.get('fdx', 0), T1)
        for h in range(2):
            for q in (2 * h, 2 * h + 1):
                lg.wait(('ex', q))
                self.pk('add', accA + 4 * q, accA + 4 * q, accB + 4 * q); self.pk('add', accA + 4 * q + 2, accA + 4 * q + 2, accB + 4 * q + 2)
            rg = range(8 * h, 8 * h + 8)
            self.round_list([accA + i for i in rg])
            for i in range(8 * h, 8 * h + 8, 2): self.pk('mul', accA + i, accA + i, gaf + i)
            self.round_list([accA + i for i in rg])
            for i in range(8 * h, 8 * h + 8, 2): self.pk('add', accA + i, accA + i, xf + i)
            for i in range(4 * h, 4 * h + 4): a(f'v_cvt_pk_bf16_f32 v{xr+i}, v{accA+2*i}, v{accA+2*i+1}')
            self.bs(xr + 4 * h, 4, vT + 2, rWS, T0, 512 * h, 'sc1', 'x1s')
        self.stamp('x1st')
        V.release(accA, 16); V.release(accB, 16); V.release(Ar, 4 * AD2); V.release(Br, 16); V.release(vBa); V.release(vBb); V.release(xf, 16); V.release(gaf, 16)
        a(f"""s_cmp_lt_u32 s{sWAVE}, 4
        s_cbranch_scc1 L_NOST""")
        S(T0, '(w - 4)*4096 + L_GU')
        a(f'v_add_u32 v{vT}, s{T0}, v{vL16}')
        a(f'v_add_u32 v{vT+3}, {L_DN - L_GU}, v{vT}')
        for n, (m, i) in enumerate(freg):
            for back in range(2):
                self.dw('ds_write_b128', vT if m < 2 else vT + 3, big + 8 * n + 4 * back, 4, f_lds(m, i) - (L_GU if m < 2 else L_DN) + (1 - back) * 16384)
        a('L_NOST:')
        va(vT + 1, [(0, 4, 8 * 4096)])
        S(T3, '((rt >> 1) + (rt & 1)*128)*4096 + (cb >> 1)*64 + (cb & 1)*4 + INB + 1536')
        vm.wait('x1s')
        a('s_barrier')
        self.push(vT + 1, T3, 16, vT + 2, 'L_PE')
        self.stamp('x1pub')
        if nf2:
            S(T0, 'w*4096 + L_GU + 32768'); a(f'v_add_u32 v{vT}, s{T0}, v{vL16}')
            for n, (m, i) in enumerate(f2): self.dw('ds_write_b128', vT, f2r + 4 * n, 4, f_lds(m, i) - L_GU - 32768)
            V.release(f2r, 4 * nf2)
        fd = list(o['fdma']); assert sum(fd) == len(fq)
        ffn_dma(fd[0])
        S(T0, 'w*256 + L_MODL'); va(vT, [(0, 6, 4)], T0)
        for q in range(3): self.dw('ds_write_b32', vT, ga + 1 + q, 1, q * 2048)
        self.dw('ds_write_b32', vT, wr1, 1, 3 * 2048)
        self.barrier()
        V.release(fx, 16); V.release(big, 8 * len(freg))
        ffn = V.alloc(48)
        mv = V.alloc(32); mf = V.alloc(32); x1 = V.alloc(16); hh = V.alloc(16); uu = V.alloc(16); st = V.alloc(2); op = V.alloc(8); ht = V.alloc(16)
        for q in range(4):
            self.r128(mv + 8 * q, vG16, L_MODL - GS + q * 2048); self.r128(mv + 8 * q + 4, vG16, L_MODL - GS + q * 2048 + 1024)
        S(T1, '((row >> 5)*8 + w)*8192 + kq*128 + X1F'); S(T3, 'T1 + 4096')
        va(vT + 3, [(3, 3, 512), (0, 3, 16)])
        S(T4, 'w*256 + L_XT'); va(vT + 6, [(0, 3, 2064), (3, 3, 16)], T4)
        S(T4, 'w*2064'); a(f'v_add_u32 v{vT+7}, s{T4}, v{vG16}')
        lg.wait_all()
        def e_work():
            for i in range(16): self.unpack(mf + 2 * i, mf + 2 * i + 1, mv + i)
            for i in range(8): a(f'v_mov_b32 v{ht+2*i+1}, s{sTAG}')
            self.stamp('ew')
        self.inbox(3, 2, work=e_work)
        self.stamp('x1ok')
        self.bl(xr, 4, vT + 3, rWS, T1, 0, 'sc1', 'x1a')
        self.bl(xr + 4, 4, vT + 3, rWS, T3, 0, 'sc1', 'x1b')
        vm.wait('x1a')
        self.dw('ds_write_b128', vT + 6, xr, 4, 0)
        vm.wait('x1b')
        self.dw('ds_write_b128', vT + 6, xr + 4, 4, 128)
        self.barrier()
        self.stamp('x1ld')
        self.r128(xr, vT + 7, L_XT - GS, 'xt'); self.r128(xr + 4, vT + 7, L_XT - GS + 1024, 'xt')
        ffn_dma(fd[1])
        lg.wait('xt')
        unp = []
        for i in range(8): unp += [f'v_lshlrev_b32 v{x1+2*i}, 16, v{xr+i}', f'v_and_b32 v{x1+2*i+1}, s{sMASK}, v{xr+i}']
        self.ln_stats(xr, vT, st, st + 1, unp)
        a(f'v_rcp_f32 v{st+1}, v{st+1}')
        for i in E2: self.pk('add', hh + i, x1 + i, st, bc=(1,), neg=(1,))
        self.round_list([hh + i for i in range(16)])
        for i in E2: self.pk('mul', hh + i, hh + i, st + 1, bc=(1,))
        self.round_list([hh + i for i in range(16)])
        for i in E2: self.pk('mul', hh + i, hh + i, mf + 16 + i)
        self.round_list([hh + i for i in range(16)])
        for i in E2: self.pk('add', hh + i, hh + i, mf + i)
        for i in range(8): a(f'v_cvt_pk_bf16_f32 v{ht+2*i}, v{hh+2*i}, v{hh+2*i+1}')
        for i in range(8): a(f'v_dot2_f32_bf16 v{st+(i&1)}, v{ht+2*i}, v{mv+24+i}, ' + ('0' if i < 2 else f'v{st+(i&1)}'))
        a(f'v_add_f32 v{st}, v{st}, v{st+1}')
        self.allreduce(st, st + 1)
        S(T0, '2047 - row'); S(T1, 'w*4 + L_KEY')
        a(f"""v_cvt_pk_bf16_f32 v{st}, 0, v{st}
        v_ashrrev_i32 v{st+1}, 31, v{st}
        v_or_b32 v{st+1}, 0x80000000, v{st+1}
        v_xor_b32 v{st}, v{st}, v{st+1}
        v_lshrrev_b32 v{st}, 16, v{st}
        v_lshl_or_b32 v{st}, v{st}, 11, s{T0}
        v_mov_b32 v{st+1}, s{T1}
        v_readfirstlane_b32 s{T0}, v{st}
        v_mov_b32 v{st}, s{T0}""")
        self.dw('ds_write_b32', st + 1, st, 1, 0)
        va(vT, [(0, 3, 4)], None, L_KEY)
        va(vT + 2, [(0, 4, 8 * 4096)])
        S(T3, 'row*2048')
        S(T4, 'row*4096 + H2')
        S(T1, '(wg & 0x87)*4096 + ((j >> 1) & 7)*64 + (j & 1)*16 + INB + 2048')
        self.barrier()
        self.stamp('ln2')
        self.dr('ds_read_b32', vT + 1, 1, vT)
        a(f'v_mov_b32 v{st+1}, s{sTAG}')
        lg.wait_all()
        a(f"""v_cmp_gt_u32 vcc, v{vT+1}, v{st}
        s_and_b32 s{T2}, vcc_lo, 0xff
        s_bcnt1_i32_b32 s{T2}, s{T2}
        s_cmp_ge_u32 s{T2}, 2
        s_cbranch_scc1 L_NOC1
        s_lshl3_add_u32 s{T1}, s{T2}, s{T1}
        s_mov_b64 exec, 0xffff""")
        self.bs(st, 2, vT + 2, rWS, T1, 0, 'sc1', count=False)
        a('s_mov_b64 exec, -1')
        def h2_store():
            for q in range(4): self.bs(ht + 4 * q, 4, vL16, rWS, T4, (q & 1) * 2048 + (q >> 1) * 1024, 'sc1', count=False)
        if not o.get('h2late', 1): h2_store()
        a('L_NOC1:')
        self.stamp('Fpub')
        def out_calc(part):
            if part == 0:
                for i in range(8): self.unpack(hh + 2 * i, hh + 2 * i + 1, ht + 2 * i)
                for i in range(8): self.unpack(mf + 2 * i, mf + 2 * i + 1, mv + 16 + i)
                return
            for i in E2: self.pk('mul', hh + i, hh + i, mf + i)
            self.round_list([hh + i for i in range(16)])
            for i in E2: self.pk('add', hh + i, hh + i, x1 + i)
            for i in range(8): a(f'v_cvt_pk_bf16_f32 v{op+i}, v{hh+2*i}, v{hh+2*i+1}')
            if o.get('outlate'): return
            a(f"""s_cmp_lt_u32 s{T2}, 2
            s_cbranch_scc1 L_NOC2""")
            self.bs(op, 4, vL16, rOUT, T3, 0, o.get('outmod', ''), count=False)
            self.bs(op + 4, 4, vL16, rOUT, T3, 1024, o.get('outmod', ''), count=False)
            a('L_NOC2:')
        oc = o.get('ocat', 1)
        self.weave(lambda: out_calc(0) if oc < 2 else None, [lambda: ffn_dma(1)] * fd[2])
        V.release(vFG); V.release(vFD)
        def f_level(box, lds, work=None):
            S(T0, 'w*8 + q', q=lds)
            a(f'v_mov_b32 v{vT}, s{T0}')
            a(f'v_mov_b32 v{vT+1}, {lds}')
            self.inbox(box, 8, (1, 3, 5, 7), work)
            P = sPL
            a(f"""s_min_u32 s{P+1}, s{P}, s{P+4}
            s_max_u32 s{P}, s{P}, s{P+4}
            s_max_u32 s{P+2}, s{P+2}, s{P+6}
            s_max_u32 s{P+1}, s{P+1}, s{P+2}
            v_mov_b32 v{uu}, s{P}
            v_mov_b32 v{uu+1}, s{P+1}""")
            self.dw('ds_write_b64', vT, uu, 2)
        def f_merge():
            for step in (2, 4, 8):
                for b in range(0, 16, 2 * step):
                    a(f'v_min_u32 v{vT+2}, v{uu+b}, v{uu+b+step}')
                    a(f'v_max_u32 v{uu+b}, v{uu+b}, v{uu+b+step}')
                    a(f'v_max3_u32 v{uu+b+1}, v{uu+b+1}, v{uu+b+step+1}, v{vT+2}')
        va(vT + 3, [(1, 3, 4096), (0, 1, 128 * 4096)])
        S(T1, '(j & 15)*(8*4096) + x*64 + (j >> 4)*16 + INB + 2560')
        f_level(4, L_K1, (lambda: out_calc(1)) if oc == 0 else None)
        if o.get('h2late', 1):
            a(f"""s_cmp_ge_u32 s{T2}, 2
            s_cbranch_scc1 L_NOC3""")
            h2_store()
            a('L_NOC3:')
        self.stamp('F1p')
        self.barrier()
        a(f"""s_cmp_lg_u32 s{sWAVE}, 0
        s_cbranch_scc1 L_NOF2""")
        for q in range(4): a(f'ds_read_b128 {vr(uu + 4*q, 4)}, v{vT+1} offset:{16*q}')
        a('s_waitcnt lgkmcnt(0)')
        f_merge()
        a(f"""v_mov_b32 v{uu+2}, v{uu+1}
        v_mov_b32 v{uu+1}, s{sTAG}
        v_mov_b32 v{uu+3}, s{sTAG}
        s_mov_b64 exec, 0xffff""")
        self.bs(uu, 4, vT + 3, rWS, T1, 0, 'sc1', count=False)
        a("""s_mov_b64 exec, -1
        L_NOF2:""")
        self.stamp('F1')
        vGr = V.alloc(); vDr = V.alloc(); vXs = V.alloc()
        S(T0, '(w >> 2)*32768 + (w & 3)*32 + L_GU')
        va(vGr, [(4, 2, 8192), (2, 2, 128), (3, 2, 32), (0, 2, 8)]); a(f'v_xor_b32 v{vGr}, s{T0}, v{vGr}')
        S(T0, 'w*64')
        va(vDr, [(2, 1, 512), (3, 1, 4096), (5, 1, 2048), (2, 2, 64), (4, 1, 32), (0, 2, 8)])
        a(f'v_xor_b32 v{vDr}, s{T0}, v{vDr}'); a(f'v_add_u32 v{vDr}, {L_DN}, v{vDr}')
        S(T0, 'kq*512 + H2'); va(vXs, [(0, 3, 16), (4, 2, 128)], T0)
        a(f'v_and_b32 v{vT+4}, 8, v{vL}')
        a(f'v_cmp_eq_u32 {sr(sCMP, 2)}, 0, v{vT+4}')
        va(vT + 4, [(0, 4, 16), (5, 1, 8)])
        S(T1, 'fs*8192 + HGR'); S(T7, '(kq*8 + w)*256 + T1')
        if oc == 2: out_calc(0)
        f_level(5, L_K2, (lambda: out_calc(1)) if oc else None)
        self.stamp('F2p')
        vm.wait_all()
        self.barrier()
        self.stamp('F2')
        for q in range(4): self.r128(uu + 4 * q, vT + 1, 16 * q, 'k2')
        lg.wait('k2'); f_merge()
        a(f"""v_cndmask_b32 v{vT}, v{uu+1}, v{uu}, {sr(sCMP, 2)}
        v_readfirstlane_b32 s{sK1}, v{uu}
        v_bfi_b32 v{vT}, v{vT}, 0, 63
        v_readfirstlane_b32 s{sK2}, v{uu+1}""".replace(f'v_bfi_b32 v{vT}, v{vT}, 0, 63', f'v_not_b32 v{vT}, v{vT}'))
        a(f"""v_and_b32 v{vT}, 2047, v{vT}
        v_lshl_add_u32 v{vT}, v{vT}, 12, v{vXs}""")
        def sel_work():
            self.stamp('sel')
            for s in range(8):
                self.tr(ffn + 4 * s, vGr, s * 1024); self.tr(ffn + 4 * s + 2, vGr, s * 1024 + 512)
            a(f"""s_andn2_b32 s{sROW0}, 2047, s{sK1}
            s_andn2_b32 s{sROW1}, 2047, s{sK2}""")
            lg.wait_all()
        self.try_load(lambda: [self.bl(uu + 4 + 4 * p, 4, vT, rWS, '0', 2048 * p, 'sc1') for p in range(2)], [uu + 5, uu + 7, uu + 9, uu + 11], vT + 1, sel_work)
        a(f"""v_mov_b32 v{uu+5}, v{uu+6}
        v_mov_b32 v{uu+6}, v{uu+8}
        v_mov_b32 v{uu+7}, v{uu+10}""")
        self.stamp('xsel')
        gd = [x1 + 4 * i for i in range(4)] + [hh + 4 * i for i in range(4)]
        for s in range(8):
            a(f'v_mfma_f32_16x16x32_bf16 {vr(gd[s], 4)}, {vr(uu + 4, 4)}, {vr(ffn + 4*s, 4)}, 0')
        for s in range(4):
            self.tr(ffn + 32 + 4 * s, vDr, s * 8192); self.tr(ffn + 32 + 4 * s + 2, vDr, s * 8192 + 1024)
        p0, p1 = uu, uu + 2
        for p, b in ((p0, 0), (p1, 4)):
            a(f'v_add_f32 v{p}, v{gd[b]}, v{gd[b+1]+1}')
            a(f'v_add_f32 v{p+1}, v{gd[b+2]+2}, v{gd[b+3]+3}')
        a(f"""v_add_f32 v{p0}, v{p0}, v{p0+1}
        v_add_f32 v{p1}, v{p1}, v{p1+1}
        v_mov_b32 v{p0+1}, s{sTAG}
        v_permlane16_swap_b32 v{p1}, v{p1+1}
        s_cmp_ge_u32 s{sJ}, 28
        s_cbranch_scc1 L_NOHP
        v_add_f32 v{p0}, v{p0}, v{p1+1}
        s_mov_b32 exec_lo, 0xffff
        s_mov_b32 exec_hi, 0xffff""")
        self.bs(p0, 2, vT + 4, rWS, T7, 0, 'sc1', count=False)
        a("""s_mov_b64 exec, -1
        L_NOHP:""")
        self.stamp('Hpub')
        fz = V.alloc(4)
        sFR, sFK, sFC0 = T4, T5, T6
        a(f"""s_bitcmp1_b32 s{sJ}, 1
        s_cselect_b32 s{sFR}, s{sROW1}, s{sROW0}
        s_cselect_b32 s{sFK}, s{sK2}, s{sK1}""")
        def late_out():
          if not o.get('outlate'): a(f"""s_cmp_ge_u32 s{T2}, 2
          s_cbranch_scc1 L_NOOUT""")
          a(f"""s_cmp_eq_u32 s{sRow}, s{sROW0}
        s_cbranch_scc1 L_NOOUT
        s_cmp_eq_u32 s{sRow}, s{sROW1}
        s_cbranch_scc1 L_NOOUT""")
          self.bs(op, 4, vL16, rOUT, T3, 0, o.get('outmod', ''), count=False)
          self.bs(op + 4, 4, vL16, rOUT, T3, 1024, o.get('outmod', ''), count=False)
          a('L_NOOUT:')
        if o.get('outlate', 0) < 2: late_out()
        a(f"""s_cmp_lg_u32 s{sRow}, 7
        s_cbranch_scc1 L_NONON
        v_mov_b32 v{vT+2}, s{sTAG}
        s_mov_b64 exec, 1""")
        self.bs(vT + 2, 1, vZ, rWS, '0', 0, 'sc1', count=False)
        a(f"""s_mov_b64 exec, -1
        L_NONON:
        s_cmp_ge_u32 s{sJ}, 28
        s_cbranch_scc1 L_FIN
        s_cmp_lg_u32 s{sWAVE}, 7
        s_cbranch_scc1 L_NOFZ""")
        S(sFC0, '(x*4 + ((j >> 2) & 3))*2 + (j & 1)')
        S(T7, '(x*16 + (j & 15))*(56*128) + GGR')
        S(sU, 'T4*2048 + T6*32')
        va(vT + 6, [(0, 3, 4)])
        S(T0, 'T6*32 + L_MODL + 4096'); a(f'v_add_u32 v{vT+1}, s{T0}, v{vT+6}')
        a(f'ds_read_b32 v{fz+2}, v{vT+1}')
        S(sK1, 'T4*4096 + T6*32 + H2')
        va(vT + 7, [(2, 1, 16), (1, 1, 2048), (0, 1, 8)])
        S(T0, '((T4 >> 5)*64 + T6)*1024 + (T4 & 31)*16 + X1F')
        va(vT + 1, [(2, 1, 512), (0, 2, 4)])
        a(f'buffer_load_dword v{fz+1}, v{vT+1}, {sr(rWS, 4)}, s{T0} offen sc1')
        a(f"""s_lshr_b32 s{T0}, s{sFK}, 11
        s_lshl_b32 s{T0}, s{T0}, 16
        s_ashr_i32 s{T2}, s{T0}, 31
        s_andn2_b32 s{T2}, 0x7fff0000, s{T2}
        s_or_b32 s{T2}, s{T2}, 0x80000000
        s_xor_b32 s{T0}, s{T0}, s{T2}
        v_mov_b32 v{fz+3}, s{T0}
        v_mul_f32 v{fz+3}, s{sL2E}, v{fz+3}
        v_exp_f32 v{fz+3}, -v{fz+3}
        v_add_f32 v{fz+3}, 1.0, v{fz+3}
        v_rcp_f32 v{fz+3}, v{fz+3}""")
        self.round1(fz + 3)
        a('L_NOFZ:')
        a(f"""s_cmp_ge_u32 s{sWAVE}, 4
        s_cbranch_scc1 L_NOH""")
        S(T0, 'w*256 + T1')
        va(vT, [(4, 2, 2048), (0, 4, 16)])
        S(T2, 'w*32 + L_ACT'); va(vT + 1, [(5, 1, 128), (2, 1, 16), (1, 1, 8), (3, 1, 4), (0, 1, 2)], T2)
        self.spoll([(q, 1, T0, q * 2048 + 1024 + 252) for q in range(4)], range(4))
        self.stamp('Hpre')
        g, u = x1, x1 + 4
        self.poll(lambda: [self.bl(x1 + 4 * m, 4, vT, rWS, T0, m * 1024, 'sc1') for m in range(2)], [g + 1, g + 3, u + 1, u + 3], vT + 2)
        a(f"""v_permlane32_swap_b32 v{g}, v{g+2}
        v_permlane32_swap_b32 v{u}, v{u+2}
        v_add_f32 v{g}, v{g}, v{g+2}
        v_add_f32 v{u}, v{u}, v{u+2}
        v_mov_b32 v{g+2}, v{g}
        v_mov_b32 v{u+2}, v{u}
        v_permlane16_swap_b32 v{g}, v{g+2}
        v_permlane16_swap_b32 v{u}, v{u+2}
        v_add_f32 v{g}, v{g}, v{g+2}
        v_add_f32 v{u}, v{u}, v{u+2}""")
        self.round2(g, u)
        self.silu(g, vT + 2)
        a(f"""v_mul_f32 v{g}, v{g}, v{u}
        v_cvt_pk_bf16_f32 v{g}, v{g}, v{g}
        ds_write_b16 v{vT+1}, v{g}
        L_NOH:""")
        va(vT, [(2, 1, 128), (5, 1, 16)], None, L_ACT)
        va(vT + 1, [(4, 2, 56 * 128), (0, 4, 8)])
        va(vT + 2, [(0, 2, 8 * 4096)])
        S(T0, '(kq*8 + w)*(4*56*128) + fs*128 + GGR')
        S(T1, '(kq*2 + (w >> 2) + (w & 3)*32)*4096 + x*64 + (j >> 2)*4 + INB + 3072')
        self.barrier()
        self.stamp('Hok')
        for s in range(4): self.r128(x1 + 4 * s, vT, s * 32, ('ac', s))
        for s in range(4):
            lg.wait(('ac', s))
            a(f'v_mfma_f32_32x32x16_bf16 {vr(hh, 16)}, {vr(x1 + 4*s, 4)}, {vr(ffn + 32 + 4*s, 4)}, ' + ('0' if s == 0 else vr(hh, 16)))
        a(f'v_mov_b32 v{hh+1}, s{sTAG}')
        self.bs(hh, 2, vT + 1, rWS, T0, 0, 'sc1')
        a('s_mov_b64 exec, 15')
        self.bs(hh + 1, 1, vT + 2, rWS, T1, 0, 'sc1')
        a('s_mov_b64 exec, -1')
        self.stamp('Gpub')
        a(f"""s_cmp_ge_u32 s{sJ}, 16
        s_cbranch_scc1 L_FIN""")
        self.inbox(6, 8, range(7))
        self.stamp('Gpre')
        a(f"""s_barrier
        s_cmp_lg_u32 s{sWAVE}, 7
        s_cbranch_scc1 L_FIN""")
        S(T0, 'T7 + 4096')
        gg = [x1 + 4 * i for i in range(4)] + [uu + 4 * i for i in range(3)]
        self.poll(lambda: [self.bl(gg[n], 4, vL16, rWS, (T7, T0)[n >> 2], (n & 3) * 1024, 'sc1') for n in range(7)] + [self.bl(st, 2, vT + 7, rWS, sK1, 0, 'sc1')],
                  [gg[n] + 1 + 2 * e for n in range(7) for e in range(2)] + [st + 1], vT)
        self.stamp('Gok')
        for n in range(1, 7):
            for e in (0, 2): a(f'v_add_f32 v{gg[0]+e}, v{gg[0]+e}, v{gg[n]+e}')
        y0, y1 = gg[0], gg[0] + 1
        a(f'v_mov_b32 v{y1}, v{gg[0]+2}')
        for y in (y0, y1): self.dpp('v_add_f32', y, y, y, 'row_ror:8')
        for sw in ('v_permlane16_swap_b32', 'v_permlane32_swap_b32'):
            for y in (y0, y1): a(f'v_mov_b32 v{y+2}, v{y}')
            for y in (y0, y1): a(f'{sw} v{y}, v{y+2}')
            self.pk('add', y0, y0, y0 + 2)
        self.round2(y0, y1)
        self.pk('mul', y0, y0, fz + 3, bc=(1,))
        self.unpack(vT, vT + 1, st)
        self.round2(y0, y1)
        self.pk('add', y0, y0, vT)
        self.unpack(vT, vT + 1, fz + 2)
        self.round2(y0, y1)
        self.pk('mul', y0, y0, vT)
        self.unpack(vT, vT + 1, fz + 1)
        self.round2(y0, y1)
        self.pk('add', y0, y0, vT)
        a(f'v_cvt_pk_bf16_f32 v{y0}, v{y0}, v{y1}')
        a('s_mov_b64 exec, 0xff')
        self.bs(y0, 1, vT + 6, rOUT, sU, 0, 'sc1')
        a('s_mov_b64 exec, -1')
        a('L_FIN:')
        if o.get('outlate', 0) == 2: late_out()
        if o.get('exfil'):
            a('s_waitcnt vmcnt(0) lgkmcnt(0)')
            self.stamp('fin')
            a(f'''v_readlane_b32 s{T0}, v255, 0
            v_readlane_b32 s{T1}, v255, 1
            v_readlane_b32 s{T2}, v255, 2
            s_sub_u32 s{T2}, s{T2}, s{T1}
            s_max_i32 s{T2}, s{T2}, 0
            s_min_u32 s{T2}, s{T2}, 10000
            s_mul_i32 s{T2}, s{T2}, 10''')
            if len(o['exfil']) > 2:
                a(f'''s_cmp_eq_u32 s{sRow}, {o['exfil'][2]}
                s_cselect_b32 s{T2}, s{T2}, 0''')
            a(f'''s_add_u32 s{T2}, s{T2}, 6000
            L_PAD:
            s_memrealtime {sr(sTM, 2)}
            s_waitcnt lgkmcnt(0)
            s_sub_u32 s{T1}, s{sTM}, s{T0}
            s_cmp_lt_u32 s{T1}, s{T2}
            s_cbranch_scc1 L_PAD''')
        if self.prof:
            a('s_waitcnt vmcnt(0) lgkmcnt(0)')
            self.stamp('end')
            a(f's_memrealtime {sr(sTM, 2)}')
            a('s_waitcnt lgkmcnt(0)')
            a(f'v_writelane_b32 v255, s{sTM}, 61')
            S(T0, '(wg*8 + w)*256 + STAMPS')
            a(f'v_writelane_b32 v255, s{sSPIN}, 62')
            a(f'v_lshlrev_b32 v{vT+1}, 2, v{vL}')
            a(f'buffer_store_dword v255, v{vT+1}, {sr(rWS, 4)}, s{T0} offen')
            S(T0, 'T0 + 0x100000')
            a(f'buffer_store_dword v254, v{vT+1}, {sr(rWS, 4)}, s{T0} offen')
        a('L_END:')
        a('s_endpgm')
        return self

    def text(self):
        a = self.a
        npad = a.fix_hazards()
        errs = a.check_waits([NAME])
        for e in errs: print('WAITERR', e, file=sys.stderr)
        assert not errs
        hdr = open(os.path.join(os.path.dirname(os.path.abspath(__file__)), 'header.txt')).read()
        s = hdr + '; @launch grid=(256,1,1) block=(512,1,1) lds=163840\n'
        s += '.amdgcn_target "amdgcn-amd-amdhsa--gfx950"\n.text\n'
        s += f'.globl {NAME}\n.p2align 8\n.type {NAME},@function\n'
        body = a.text()
        import subprocess, tempfile
        with tempfile.TemporaryDirectory() as td:
            open(td + '/t.s', 'w').write('.amdgcn_target "amdgcn-amd-amdhsa--gfx950"\n.text\n' + body.replace('CODE_KB', '20480'))
            subprocess.run(['clang', '-x', 'assembler', '-target', 'amdgcn-amd-amdhsa', '-mcpu=gfx950', '-c', td + '/t.s', '-o', td + '/t.o'], check=True)
            subprocess.run(['llvm-objcopy', '-O', 'binary', '-j', '.text', td + '/t.o', td + '/t.bin'], check=True)
            size = os.path.getsize(td + '/t.bin')
        print('; code bytes', size, file=sys.stderr)
        s += body.replace('CODE_KB', str((size // 1024 + 1) * 1024))
        s += '.p2align 10\n.fill 768, 4, 0xbf800000\n'
        s += '.section .rodata,"a"\n' + kernel_desc(NAME, 256, 102)
        print(f'; vgpr hi {self.V.hi}, nops {npad}, instrs {sum(1 for k, _ in a.items if k == "ins")}', file=sys.stderr)
        return s


if __name__ == '__main__':
    import argparse, json
    ap = argparse.ArgumentParser()
    ap.add_argument('-o', default='/dev/stdout')
    ap.add_argument('--prof', action='store_true')
    ap.add_argument('--opts', default='{}')
    args = ap.parse_args()
    g = Gen(args.prof, json.loads(args.opts)).build()
    t = g.text()
    open(args.o, 'w').write(t)
    if args.prof: open(args.o + '.stamps', 'w').write(json.dumps(g.stnames))
```

```python
import sys, os
sys.path.insert(0, os.path.dirname(os.path.abspath(__file__)))
from asm import *

NAME = 'adaLN_cond__linear_kernel_hedgehog__moe_arch_mod__prompt_kernel'

NONCE = 0x0
MODP2 = 0x020000
SINB = 0x040000
AINB = 0x080000
INB = 0x100000
HF = 0x400000
OF = 0x800000
ST = 0xC00000
XS = 0xD00000
UP = 0xD80000
HGR = 0x1400000
ZP = 0x1480000
GGR = 0x1500000
KVP = 0x1800000
KIN = 0x1C00000
STAMPS = 0x1600000
WS_BYTES = 268435456

REG = 49152
MISC = 147456
L_A1 = MISC
L_ST = MISC + 6144
L_MP = MISC + 8192
L_WPHI = MISC + 12288
L_KH = 0
L_QH = MISC + 4096
L_KVF = MISC
L_ZF = MISC + 8192
L_M2 = MISC + 9984
L_MD = MISC + 12288
L_K1 = MISC + 8704
L_K2 = MISC + 8832
L_ACT = MISC + 9216
L_GB = MISC + 9728
L_HV = 32768
L_PHK = 0
L_TR = 98304
L_GU = 0
L_DN = 65536
UR = 393216

SPIN_LIMIT = 200000

sWAVE, sTAG, sSPIN, sMASK, sL2E = 3, 4, 5, 6, 7
sX, sJ, sR1, sHP, sCB = 8, 9, 10, 11, 12
T0, T1, T2, T3, T4, T5, T6, T7 = 13, 14, 15, 16, 17, 18, 19, 20
sRT = 21
sCMP = 22
sPL = 24
rWS, rX, rW, rWO, rWM, rWG, rWU, rWD, rOUT = 32, 36, 40, 44, 48, 52, 56, 60, 64
KA = 68
pWPHI, pWR, pC = KA + 4, KA + 10, KA + 18
sK1, sK2, sROW0, sROW1, sFS, sKQ, sKH, sRB = 68, 69, 70, 71, 74, 75, 76, 77
sFG, sFD, sU, sW1K, sU0, sWB = 80, 81, 82, 83, 84, 85
sAB, sM2, sWO, sY0 = 88, 89, 90, 91
sINB, sRow, sY1, sY2 = 92, 93, 94, 95
sCM = 84
sC2 = 88
XT = (96, 97, 98, 99)
sTM = 100
ENV = dict(wg=2, w=sWAVE, x=sX, j=sJ, r1=sR1, hp=sHP, cb=sCB, rt=sRT, row=sRow, kh=sKH, rb=sRB, fs=sFS, kq=sKQ,
           w1k=sW1K, u=sU, fg=sFG, fd=sFD, u0=sU0, wb=sWB, ab=sAB, m2=sM2, wo=sWO, y0=sY0, y1=sY1, y2=sY2,
           k1=sK1, k2=sK2, row0=sROW0, row1=sROW1,
           T0=T0, T1=T1, T2=T2, T3=T3, T4=T4, T5=T5, T6=T6, T7=T7)

vL, vL16, vWd, vT = 1, 2, 3, 4
XR = 12
vB = 20
vS0, vS1 = 26, 27
RING = 28
AK, AV, AQ = 56, 88, 120
AR = 152
SP = 248


class Stream:
    def __init__(self, g): self.g, self.q, self.wake = g, [], 0
    def add(self, fn, v=0, l=0): self.q.append((v, l, fn))
    def sleep(self, k): self.q.append(('sleep', k, None))
    def until(self, n): self.q.append(('until', n, None))
    def cap(self, fn):
        a = self.g.a
        keep = a.items; a.items = []
        fn()
        body = a.items; a.items = keep
        run = []
        for it in body:
            i = it[1]
            assert it[0] == 'ins' and i.cls in ('valu', 'salu', 'mfma'), it
            run.append(it)
            if i.cls == 'salu': continue
            c = 8 if (i.cls == 'mfma' or i.is_trans or 'permlane' in i.mn) else 6 if i.mn.startswith(('v_fma', 'v_max3', 'v_min3', 'v_lshl_', 'v_bfe')) else 4.75 if i.mn.startswith('v_cvt') else 4
            self.q.append((c + (len(run) - 1), 0, (lambda r=run: a.items.extend(r)))); run = []
        if run: self.q.append((len(run), 0, (lambda r=run: a.items.extend(r))))
    def mark(self, name): self.q.append((0, 0, lambda: (self.g.marks.add(name), self.g.markn.append((name, self.g.cur[0])))))
    def pull(self, bud, full):
        n = self.g.cur[0]
        while self.q and n >= self.wake:
            v, l, fn = self.q[0]
            if v == 'sleep': self.wake = n + l; self.q.pop(0); continue
            if v == 'until': self.wake = max(n, l); self.q.pop(0); continue
            if l > bud[1]: return
            if v > bud[0] and bud[0] < full:
                bud[0] = -1; return
            self.q.pop(0); fn(); bud[0] -= v; bud[1] -= l


DEFAULTS = dict(wburst=(2, 1, 3, 0, 6, 3), LOOK=6, A0=4, Apos=(6, 5, 5, 5, 5, 7, 7, 7, 7, 6),
                wsched={5: 'k10 v10', 6: 'k11 v11', 7: 'k12 v12', 8: 'k13 v13', 9: 'k14 v14', 10: 'k15 v15', 11: 'q10 q11 q12', 12: 'q13 q14 q15'},
                bH=297, hq=0.75, fA=4, woA=6, hgap=(40, 14), m2c=3, m2k3='(j & 3) + 1', m2g=6, apos=0, hprio=3, qmid=8, qsplit=16, wowin=(2, 4, 4), AD2=8, LOOK2=7, pairw2=1, worot=1, fwin=(0, 0, 0, 2, 2, 4), prio=2, tour=1, al12=1, kofs=0x300)


class Gen:
    def __init__(self, prof=False, opts=None):
        self.a = Asm()
        self.vm = Counter(self.a, 'vmcnt', 63)
        self.lg = Counter(self.a, 'lgkmcnt', 15)
        self.marks = set(); self.markn = []
        self.vL = vL
        self.prof = prof
        self.nopk = False
        self.nst = 0
        self.stnames = []
        self.S = SExpr(self.a, ENV, {k: v for k, v in globals().items() if isinstance(v, int) and k.isupper() and k not in ENV}, XT)
        self.o = dict(DEFAULTS)
        if opts: self.o.update(opts)

    def bl(self, dst, n, voff, srd, soff, imm=0, mods='', tag=None):
        op = {1: 'dword', 2: 'dwordx2', 4: 'dwordx4'}[n]
        so = soff if isinstance(soff, str) else (sr(soff))
        self.a(f'buffer_load_{op} {vr(dst, n)}, v{voff}, {sr(srd, 4)}, {so} offen' + (f' offset:{imm}' if imm else '') + (' ' + mods if mods else ''))
        self.vm.issue(tag)
    def bs(self, src, n, voff, srd, soff, imm=0, mods='', tag=None, count=True):
        op = {1: 'dword', 2: 'dwordx2', 4: 'dwordx4'}[n]
        so = soff if isinstance(soff, str) else (sr(soff))
        self.a(f'buffer_store_{op} {vr(src, n)}, v{voff}, {sr(srd, 4)}, {so} offen' + (f' offset:{imm}' if imm else '') + (' ' + mods if mods else ''))
        if count: self.vm.issue(tag)
    def dma(self, voff, srd, soff, imm=0, mods='', tag=None):
        self.a(f'buffer_load_dwordx4 v{voff}, {sr(srd, 4)}, {sr(soff)} offen' + (f' offset:{imm}' if imm else '') + (' ' + mods if mods else '') + ' lds')
        self.vm.issue(tag)
    def dr(self, op, dst, n, addr, off=0, tag=None):
        assert 0 <= off < 65536, off
        self.a(f'{op} {vr(dst, n)}, v{addr}' + (f' offset:{off}' if off else ''))
        self.lg.issue(tag)
    def tr(self, dst, addr, off, tag=None): self.dr('ds_read_b64_tr_b16', dst, 2, addr, off, tag)
    def r128(self, dst, addr, off=0, tag=None): self.dr('ds_read_b128', dst, 4, addr, off, tag)
    def dw(self, op, addr, src, n, off=0, tag=None):
        assert 0 <= off < 65536, off
        self.a(f'{op} v{addr}, {vr(src, n)}' + (f' offset:{off}' if off else ''))
        self.lg.issue(tag)
    def barrier(self):
        self.lg.wait_all()
        self.a('s_barrier')
    def stamp(self, name):
        ex = self.o.get('exfil')
        if ex and name in ex[:2]:
            self.a(f's_memrealtime {sr(sTM, 2)}')
            self.lg.wait_all()
            self.a(f'v_writelane_b32 v255, s{sTM}, {1 + ex.index(name)}')
        if not self.prof: return
        only = self.o.get('only')
        if only and name not in only and name != 'end': return
        self.a(f's_memtime {sr(sTM, 2)}')
        self.a(f's_memrealtime s[0:1]')
        self.lg.wait_all()
        self.a(f'v_writelane_b32 v255, s{sTM}, {self.nst}')
        self.a(f'v_writelane_b32 v254, s0, {self.nst}')
        self.stnames.append(name)
        self.nst += 1
        assert self.nst <= 60
    def unpack(self, lo, hi, src):
        self.a(f'v_lshlrev_b32 v{lo}, 16, v{src}')
        self.a(f'v_and_b32 v{hi}, s{sMASK}, v{src}')
    def round1(self, r):
        self.a(f'v_cvt_pk_bf16_f32 v{r}, 0, v{r}')
    def round2(self, r0, r1):
        self.round1(r0); self.round1(r1)
    def round_list(self, regs):
        for r in regs: self.round1(r)
    def pk(self, op, d, s0, s1, s2=None, bc=(), neg=()):
        srcs = [s0, s1] + ([s2] if s2 is not None else [])
        if self.nopk:
            for h in range(2):
                t = []
                for k, r in enumerate(srcs):
                    kind, n = r if isinstance(r, tuple) else ('v', r)
                    t.append(('-' if k in neg else '') + f'{kind}{n if k in bc else n + h}')
                e64 = '' if op == 'fma' else ('_e64' if (neg or t[1][0] == 's') else '')
                self.a(f'v_{op}_f32{e64} v{d+h}, ' + ', '.join(t))
            return
        txt, sel, selhi = [], [], []
        for k, r in enumerate(srcs):
            kind, n = r if isinstance(r, tuple) else ('v', r)
            if k in bc:
                txt.append(f'{kind}[{n & ~1}:{(n & ~1) + 1}]'); sel.append(n & 1); selhi.append(n & 1)
            else:
                assert n % 2 == 0
                txt.append(f'{kind}[{n}:{n+1}]'); sel.append(0); selhi.append(1)
        assert d % 2 == 0
        m = ''
        if any(sel): m += ' op_sel:[' + ','.join(map(str, sel)) + ']'
        if not all(selhi): m += ' op_sel_hi:[' + ','.join(map(str, selhi)) + ']'
        if neg:
            ng = ','.join('1' if k in neg else '0' for k in range(len(srcs)))
            m += f' neg_lo:[{ng}] neg_hi:[{ng}]'
        self.a(f'v_pk_{op}_f32 v[{d}:{d+1}], ' + ', '.join(txt) + m)
    def dpp(self, op, d, s0, s1, ctl):
        self.a(f'{op}_dpp v{d}, v{s0}, v{s1} {ctl} row_mask:0xf bank_mask:0xf')
    def allreduce(self, v, t, op='v_add_f32', lo=True, b3=True):
        if lo:
            self.dpp(op, v, v, v, 'quad_perm:[1,0,3,2]')
            self.dpp(op, v, v, v, 'quad_perm:[2,3,0,1]')
            self.dpp(op, v, v, v, 'row_half_mirror')
        self.dpp(op, v, v, v, 'row_ror:8')
        self.a(f'v_mov_b32 v{t}, v{v}')
        self.a(f'v_permlane16_swap_b32 v{v}, v{t}')
        self.a(f'{op} v{v}, v{v}, v{t}')
        self.a(f'v_mov_b32 v{t}, v{v}')
        self.a(f'v_permlane32_swap_b32 v{v}, v{t}')
        self.a(f'{op} v{v}, v{v}, v{t}')
    def poll(self, loads, tagregs, tmp=None, post=None):
        a = self.a
        L, D = a.label('POLL'), a.label('PDONE')
        a(f'{L}:')
        loads()
        self.vm.wait_all()
        if post: post()
        if len(tagregs) == 1:
            a(f'v_cmp_ne_u32 vcc, s{sTAG}, v{tagregs[0]}')
        else:
            a(f'v_bitop3_b32 v{tmp}, v{tagregs[0]}, v{tagregs[1]}, s{sTAG} bitop3:0x7e')
            for t in tagregs[2:]: a(f'v_bitop3_b32 v{tmp}, v{tmp}, v{t}, s{sTAG} bitop3:0xf6')
            a(f'v_cmp_ne_u32 vcc, 0, v{tmp}')
        a(f's_cbranch_vccz {D}')
        a(f's_add_u32 s{sSPIN}, s{sSPIN}, 1')
        a(f's_cmp_lt_u32 s{sSPIN}, {SPIN_LIMIT}')
        a(f's_cbranch_scc1 {L}')
        a(f'{D}:')
    def weave(self, fn, extras):
        a = self.a
        keep = a.items; a.items = []
        fn()
        body = a.items; a.items = keep
        extras = list(extras); n = len(extras)
        for i, it in enumerate(body):
            while extras and (n - len(extras)) * len(body) <= i * n: extras.pop(0)()
            a.items.append(it)
        for e in extras: e()
    def tagcheck(self, tagregs, tmp):
        a = self.a
        if len(tagregs) == 1:
            a(f'v_cmp_ne_u32 vcc, s{sTAG}, v{tagregs[0]}')
        else:
            a(f'v_bitop3_b32 v{tmp}, v{tagregs[0]}, v{tagregs[1]}, s{sTAG} bitop3:0x7e')
            for t in tagregs[2:]: a(f'v_bitop3_b32 v{tmp}, v{tmp}, v{t}, s{sTAG} bitop3:0xf6')
            a(f'v_cmp_ne_u32 vcc, 0, v{tmp}')
    def try_load(self, loads, tagregs, tmp=None, between=None, pre=None):
        a = self.a
        n0 = len(self.vm.q)
        loads()
        self.vm.q[-1] = tg = ('try', a.label('T'))
        if between: between()
        self.vm.wait(tg)
        OK = a.label('TOK')
        self.tagcheck(tagregs, tmp)
        a(f's_cbranch_vccz {OK}')
        q, l = list(self.vm.q), list(self.lg.q)
        if pre: pre()
        self.poll(loads, tagregs, tmp)
        self.vm.q, self.lg.q = q, l
        a(f'{OK}:')
    def spoll(self, loads, checks, work=None):
        a = self.a
        L, C, D = a.label('SPOLL'), a.label('SCHK'), a.label('SDONE')
        def issue():
            for d, n, so, imm in loads:
                op = {1: 'dword', 2: 'dwordx2', 4: 'dwordx4', 8: 'dwordx8'}[n]
                a(f's_load_{op} {sr(sPL + d, n)}, {sr(rWS, 2)}, s{so} offset:{imm} glc')
        if work:
            issue(); work()
            a(f's_branch {C}')
        a(f'{L}:')
        issue()
        a(f'{C}:')
        a(f's_add_u32 s{sSPIN}, s{sSPIN}, 1')
        a(f's_cmp_ge_u32 s{sSPIN}, {SPIN_LIMIT}')
        self.lg.wait_all()
        a(f's_cbranch_scc1 {D}')
        for k in checks:
            a(f's_cmp_lg_u32 s{sPL + k}, s{sTAG}')
            a(f's_cbranch_scc1 {L}')
        a(f'{D}:')
    def inbox(self, box, n, checks=None, work=None):
        self.spoll([(0, n, sINB, box * 512)], range(n) if checks is None else checks, work)
    def va(self, dst, terms, sreg=None, const=0, tmp=None):
        a = self.a; vL = self.vL
        first = True
        for sh, bits, mult in terms:
            full = sh + bits >= 6
            src = vL
            t = dst if first else tmp
            if sh == 0 and full: pass
            elif full: a(f'v_lshrrev_b32 v{t}, {sh}, v{vL}'); src = t
            elif sh == 0: a(f'v_and_b32 v{t}, {(1 << bits) - 1}, v{vL}'); src = t
            else: a(f'v_bfe_u32 v{t}, v{vL}, {sh}, {bits}'); src = t
            p2 = mult & (mult - 1) == 0
            k = mult.bit_length() - 1
            if first:
                if p2 and sreg is not None: a(f'v_lshl_add_u32 v{dst}, v{src}, {k}, s{sreg}'); sreg = None
                elif p2 and k: a(f'v_lshlrev_b32 v{dst}, {k}, v{src}')
                elif p2:
                    if src != dst: a(f'v_mov_b32 v{dst}, v{src}')
                else: a(f'v_mul_u32_u24 v{dst}, {mult}, v{src}')
            else:
                assert p2
                a(f'v_lshl_add_u32 v{dst}, v{src}, {k}, v{dst}')
            first = False
        if sreg is not None: a(f'v_add_u32 v{dst}, s{sreg}, v{dst}')
        if const: a(f'v_add_u32 v{dst}, {const}, v{dst}')
    def push(self, vaddr, soff, nl, vtmp, lab, wave=0):
        a = self.a
        a(f's_cmp_lg_u32 s{sWAVE}, {wave}')
        a(f's_cbranch_scc1 {lab}')
        a(f'v_mov_b32 v{vtmp}, s{sTAG}')
        a(f's_mov_b32 exec_hi, 0')
        if nl < 32: a(f's_mov_b32 exec_lo, {(1 << nl) - 1}')
        self.bs(vtmp, 1, vaddr, rWS, soff, 0, 'sc1', count=False)
        a('s_mov_b64 exec, -1')
        a(f'{lab}:')
    def silu(self, v, t):
        a = self.a
        a(f'v_mul_f32 v{t}, s{sL2E}, v{v}')
        a(f'v_exp_f32 v{t}, -v{t}')
        a(f'v_add_f32 v{t}, 1.0, v{t}')
        a(f'v_rcp_f32 v{t}, v{t}')
        a(f'v_mul_f32 v{v}, v{v}, v{t}')
        self.round1(v)
    def gemv_ops(self, wregs, cregs, acc, t0, t1, packed):
        ops = []
        assert t0 % 2 == 0 and t1 == t0 + 1
        for i, (w, c) in enumerate(zip(wregs, cregs)):
            cp = f'v[{c & ~1}:{(c & ~1) + 1}]'
            for d in range(4):
                tt = t0 + 2 * (d & 1)
                ops.append(f'v_lshlrev_b32 v{tt}, 16, v{w+d}')
                ops.append(f'v_and_b32 v{tt+1}, s{sMASK}, v{w+d}')
                ac = f'v[{acc+2*d}:{acc+2*d+1}]'
                if not packed:
                    for h in range(2): ops.append(f'v_mul_f32 v{acc+2*d+h}, v{tt+h}, v{c}' if i == 0 else f'v_fmac_f32 v{acc+2*d+h}, v{tt+h}, v{c}')
                elif i == 0: ops.append(f'v_pk_mul_f32 {ac}, v[{tt}:{tt+1}], {cp} op_sel:[0,{c & 1}] op_sel_hi:[1,{c & 1}]')
                else: ops.append(f'v_pk_fma_f32 {ac}, v[{tt}:{tt+1}], {cp}, {ac} op_sel:[0,{c & 1},0] op_sel_hi:[1,{c & 1},1]')
        for i in range(4): ops.append(f'v_permlane32_swap_b32 v{acc+i}, v{acc+4+i}')
        for i in range(4): ops.append(f'v_add_f32 v{acc+i}, v{acc+i}, v{acc+4+i}')
        for i in range(2): ops.append(f'v_permlane16_swap_b32 v{acc+i}, v{acc+2+i}')
        for i in range(2): ops.append(f'v_add_f32 v{acc+i}, v{acc+i}, v{acc+2+i}')
        for i in range(2): ops.append(f'v_add_f32_dpp v{acc+i}, v{acc+i}, v{acc+i} row_ror:8 row_mask:0xf bank_mask:0xf')
        ops.append(f'v_mov_b32_dpp v{acc}, v{acc+1} quad_perm:[0,1,2,3] row_mask:0xf bank_mask:0xc')
        return ops
    def sum8(self, b):
        self.pk('add', b, b, b + 2); self.pk('add', b + 4, b + 4, b + 6); self.pk('add', b, b, b + 4)
        self.a(f'v_add_f32 v{b}, v{b}, v{b+1}')
    def softmax_pm(self, p, e, out, t, mid=None, part=0, split=0, stage=None):
        a = self.a
        mx, mn, u0, u1, s0, s1 = t, t + 1, t + 2, t + 3, t + 4, t + 6
        if part != 2:
            self.round_list([p + i for i in range(16)])
            a(f'v_max3_f32 v{mx}, v{p}, v{p+1}, v{p+2}')
            a(f'v_min3_f32 v{mn}, v{p}, v{p+1}, v{p+2}')
            for i in range(3, 15, 2):
                a(f'v_max3_f32 v{mx}, v{mx}, v{p+i}, v{p+i+1}')
                a(f'v_min3_f32 v{mn}, v{mn}, v{p+i}, v{p+i+1}')
            a(f'v_max_f32 v{u0}, v{mx}, v{p+15}')
            a(f'v_min_f32 v{u1}, v{mn}, v{p+15}')
            a(f'v_max_f32 v{mx}, v{mx}, v{p+15}')
            a(f'v_min_f32 v{mn}, v{mn}, v{p+15}')
            a(f'v_permlane32_swap_b32 v{mx}, v{u0}')
            a(f'v_permlane32_swap_b32 v{mn}, v{u1}')
            a(f'v_max_f32 v{mx}, v{mx}, v{u0}')
            a(f'v_min_f32 v{mn}, v{mn}, v{u1}')
            self.pk('mul', mx, mx, ('s', sL2E), bc=(1,))
            for i in range(0, 16, 2):
                self.pk('fma', e + i, p + i, ('s', sL2E), mx, bc=(1, 2), neg=(2,))
                self.pk('fma', p + i, p + i, ('s', sL2E), mn, bc=(1, 2), neg=(0,))
        for i in range(split if part == 2 else 0, 16):
            if mid and i == mid[0]: mid[1]()
            if part == 1 and i == split: return
            a(f'v_exp_f32 v{e+i}, v{e+i}')
            a(f'v_exp_f32 v{p+i}, v{p+i}')
        self.pk('add', s0, e, e + 2); self.pk('add', s1, p, p + 2)
        for i in range(4, 16, 2):
            self.pk('add', s0, s0, e + i); self.pk('add', s1, s1, p + i)
        a(f'v_add_f32 v{u0}, v{s0}, v{s0+1}')
        a(f'v_add_f32 v{u1}, v{s1}, v{s1+1}')
        a(f'v_add_f32 v{mx}, v{s0}, v{s0+1}')
        a(f'v_add_f32 v{mn}, v{s1}, v{s1+1}')
        a(f'v_permlane32_swap_b32 v{mx}, v{u0}')
        a(f'v_permlane32_swap_b32 v{mn}, v{u1}')
        self.pk('add', mx, mx, u0)
        a(f'v_rcp_f32 v{mx}, v{mx}')
        a(f'v_rcp_f32 v{mn}, v{mn}')
        for i in range(0, 16, 2):
            self.pk('mul', e + i, e + i, mx, bc=(1,))
            self.pk('mul', p + i, p + i, mn, bc=(1,))
        for i in range(8): a(f'v_cvt_pk_bf16_f32 v{out+i}, v{e+2*i}, v{e+2*i+1}')
        for i in range(8): a(f'v_cvt_pk_bf16_f32 v{out+8+i}, v{p+2*i}, v{p+2*i+1}')
    def ln_stats(self, xp, t, m_out, sd_out, fill=()):
        a = self.a
        fill = list(fill)
        def pad(n):
            for _ in range(n):
                if fill: a(fill.pop(0))
        s, u = t, t + 4
        a(f'v_mov_b32 v{u}, 0x3f803f80')
        for i in range(8):
            k = 2 * (i & 1)
            a(f'v_dot2_f32_bf16 v{s+k}, v{xp+i}, v{u}, ' + ('0' if i < 2 else f'v{s+k}'))
            a(f'v_dot2_f32_bf16 v{s+k+1}, v{xp+i}, v{xp+i}, ' + ('0' if i < 2 else f'v{s+k+1}'))
        pad(3)
        self.pk('add', s, s, s + 2)
        for ctl in ('quad_perm:[1,0,3,2]', 'quad_perm:[2,3,0,1]', 'row_half_mirror', 'row_ror:8'):
            pad(2 if ctl.endswith('3,2]') else 1)
            self.dpp('v_add_f32', s, s, s, ctl); self.dpp('v_add_f32', s + 1, s + 1, s + 1, ctl)
        pad(2)
        a(f'v_permlane16_swap_b32 v{s}, v{s+1}')
        a(f'v_add_f32 v{u}, v{s}, v{s+1}')
        a(f'v_add_f32 v{s}, v{s}, v{s+1}')
        pad(2)
        a(f'v_permlane32_swap_b32 v{s}, v{u}')
        a(f'v_add_f32 v{s}, v{s}, v{u}')
        a(f'v_mul_f32 v{u}, 0x3a800000, v{s}')
        a(f'v_mul_f32 v{s}, 0x3a800000, v{s}')
        pad(2)
        a(f'v_permlane16_swap_b32 v{s}, v{u}')
        a(f'v_fma_f32 v{sd_out}, -v{s}, v{s}, v{u}')
        a(f'v_cvt_pk_bf16_f32 v{m_out}, 0, v{s}')
        a(f'v_max_f32 v{sd_out}, 0, v{sd_out}')
        self.round1(sd_out)
        a(f'v_add_f32 v{sd_out}, 0x3727c5ac, v{sd_out}')
        self.round1(sd_out)
        a(f'v_sqrt_f32 v{sd_out}, v{sd_out}')
        pad(99)
        self.round1(sd_out)

    def build(self):
        self.front()
        self.gemm1()
        self.middle()
        self.gemm2()
        self.tail()
        self.finish()
        return self

    def vaa(self, dst, terms, sreg=None, const=0): self.va(dst, terms, sreg, const, vT + 5)

    def front(self):
        a, vm, lg, o, S, va = self.a, self.vm, self.lg, self.o, self.S, self.vaa
        E2 = range(0, 16, 2)
        a(f'{NAME}:')
        a(f's_load_dwordx16 {sr(KA, 16)}, s[0:1], 0')
        a(f's_load_dwordx8 {sr(KA + 16, 8)}, s[0:1], 64')
        a(f's_load_dwordx2 {sr(rWS, 2)}, s[0:1], 104')
        a('s_cmp_ge_u32 s2, 256')
        a('s_cbranch_scc1 L_END')
        if self.prof:
            a(f's_memrealtime {sr(sCMP, 2)}')
            a(f's_memtime {sr(sTM, 2)}')
            a('v_mov_b32 v255, 0')
            a('v_mov_b32 v254, 0')
            self.stnames.append('start'); self.nst = 1
        a(f"""v_lshrrev_b32 v{vT}, 6, v0
        v_and_b32 v{vL}, 63, v0
        s_nop 0
        v_readfirstlane_b32 s{sWAVE}, v{vT}
        v_lshlrev_b32 v{vL16}, 4, v{vL}""")
        for srd, size in ((rX, 4194304), (rWM, 12582912), (rWS, WS_BYTES), (rW, 6291456), (rWO, 2097152), (rWG, 7340032), (rWU, 7340032), (rWD, 7340032), (rOUT, 4194304)):
            a(f's_mov_b32 s{srd+2}, {size}')
            a(f's_mov_b32 s{srd+3}, 0x20000')
        a(f"""s_mov_b32 s{sSPIN}, 0
        s_mov_b32 s{sMASK}, 0xffff0000
        s_mov_b32 s{sL2E}, 0x3fb8aa3b""")
        S(sX, 'wg & 7'); S(sJ, 'wg >> 3')
        S(sRow, '(x*32 + j)*8 + w')
        S(sR1, '(x & 4)*2 + (j >> 2)'); S(sHP, '(x & 3)*4 + ((j & 3) ^ q)', q=o.get('hpx', 2))
        S(sCB, '(x & 1)*8 + (j & 7)')
        S(sRT, '(x >> 1)*4 + (j >> 3)')
        S(sINB, '(wg*64 + w)*64 + INB')
        xs_raw, wm, cv, st, acc, xs, mp, hp = AR, AR + 8, AR + 16, AR + 20, AR + 24, AR + 32, AR + 48, AR + 64
        vWM, vCo, vL8, vL32S, vGA, vXT = SP, SP + 1, SP + 2, SP + 3, SP + 4, vT + 6
        self.vWM, self.vL8, self.vL32S, self.vGA = vWM, vL8, vL32S, vGA
        S(T3, 'row*2048')
        S(T2, '(x*8 + w)*32')
        S(T0, 'T2*6144 + (j ^ 1)*128'); S(T1, 'T0 + 8*12288')
        S(T5, '(rt*8 + w)*32768 + cb*128')
        S(T4, '(((x >> 1)*16 + cb)*16 + w)*512 + AINB')
        va(vWM, [(3, 3, 12288), (0, 3, 16)])
        va(vCo, [(3, 3, 2)], T2)
        va(vXT, [(0, 4, 2048), (4, 2, 16)])
        a('s_waitcnt lgkmcnt(0)')
        if self.prof:
            a(f'v_writelane_b32 v255, s{sTM}, 0')
            a(f'v_writelane_b32 v255, s{sCMP}, 63')
            a(f'v_writelane_b32 v254, s{sCMP}, 0')
        self.stamp('karg')
        a(f's_mov_b64 {sr(rX, 2)}, {sr(KA, 2)}')
        self.bl(xs_raw, 4, vL16, rX, T3, 0, '', 'xs')
        self.bl(xs_raw + 4, 4, vL16, rX, T3, 1024, '', 'xs')
        a(f's_load_dword s{sTAG}, {sr(rWS, 2)}, {NONCE}')
        a(f's_mov_b64 {sr(rWM, 2)}, {sr(KA + 20, 2)}')
        a(f's_load_dword s{sPL}, {sr(rWS, 2)}, s{sINB} offset:0 glc')
        for q in range(2): a(f's_load_dword s{sPL + 1 + q}, {sr(rWS, 2)}, s{T4} offset:{q * 4096 + 508} glc')
        a(f'global_load_ushort v{cv}, v{vCo}, {sr(pC, 2)}'); vm.issue('c')
        a(f'global_load_ushort v{cv+1}, v{vCo}, {sr(pC, 2)} offset:16'); vm.issue('c')
        a('s_barrier')
        self.bl(wm, 4, vWM, rWM, T0, 0, 'nt', 'wm')
        self.bl(wm + 4, 4, vWM, rWM, T1, 0, 'nt', 'wm')
        for srd, k in ((rW, 2), (rWO, 6), (rWG, 12), (rWU, 14), (rWD, 16), (rOUT, 22)):
            a(f's_mov_b64 {sr(srd, 2)}, {sr(KA + k, 2)}')
        a(f"""s_getpc_b64 {sr(sCMP, 2)}
        s_and_b32 s{sCMP}, s{sCMP}, 0xfffffc00""")
        S(T6, '(j*8 + w)*128')
        va(vT, [(5, 1, 32768)], T6)
        a(f'v_min_u32 v{vT}, CODE_KB, v{vT}')
        a(f'global_load_dword v{vT+7}, v{vT}, {sr(sCMP, 2)}'); vm.issue()
        S(sKH, 'w >> 2'); S(sRB, 'w & 3'); S(sW1K, 'w*1024')
        S(sFS, 'x*7 + (j >> 2)'); S(sKQ, 'j & 3')
        va(vT + 2, [(4, 1, 64)]); va(vWd, [(0, 3, 16)])
        a(f'v_xor_b32 v{vWd}, v{vWd}, v{vT+2}'); va(vT + 2, [(3, 3, 6144)]); a(f'v_add_u32 v{vWd}, v{vWd}, v{vT+2}')
        S(sU0, o.get('u0', 'j & 12')); S(sWB, 'w*49152 + hp*128')
        wq = self.wq = [(n, t) for n in range(6) for t in 'kvq']
        def w_next(cnt=1):
            for _ in range(cnt):
                n, t = wq.pop(0)
                if t == 'k':
                    if n < 4:
                        S(sY1, '((j >> 4)*2) ^ n', n=n)
                        S(sY0, '((y1 + u0) & 15)*UR + wb'); S(sY1, 'y1*8192 + w1k')
                    else:
                        S(sY0, '((u0 + n) & 15)*UR + wb', n=n); S(sY1, 'w1k + q', q=n * 8192)
                S(sU, 'y0 + q', q=dict(q=0, k=2048, v=4096)[t]); S('m0', 'y1 + q', q='kvq'.index(t) * REG)
                self.dma(vWd, rW, sU, 0, '', ('W', min(n, 3) if n < 4 else n))
        wb = list(o['wburst'])
        va(vL8, [(0, 6, 8)])
        va(vL32S, [(0, 6, 32)], None, MISC)
        S(T0, 'w*4 + MISC')
        va(vGA, [(4, 2, 64), (0, 3, 256), (3, 1, 32)], T0)
        self.stamp('issued')
        vm.wait('xs')
        self.stamp('xsok')
        self.ln_stats(xs_raw, vT, st, st + 1)
        S(T0, 'w*8 + L_ST')
        a(f"""s_waitcnt lgkmcnt(0)
        s_mul_i32 s{sTAG}, s{sTAG}, 0x9e3779b1
        s_add_u32 s{sTAG}, s{sTAG}, 0x7f4a7c15
        v_lshrrev_b32 v{st}, 16, v{st}
        v_or_b32 v{st}, v{st}, v{st+1}
        v_mov_b32 v{st+1}, s{sTAG}
        v_mov_b32 v{vT}, s{T0}""")
        self.dw('ds_write_b64', vT, st, 2)
        va(vT + 1, [(0, 2, 16)], None, L_ST)
        va(vT, [(0, 2, 16), (2, 1, 1024)])
        S(T0, '((x & 6) + ((x & 1)*2 + (j >> 4))*64 + w*8)*1024 + (j & 15)*64 + SINB')
        self.barrier()
        self.r128(st, vT + 1)
        lg.wait_all()
        a('s_mov_b64 exec, 0xff')
        self.bs(st, 4, vT, rWS, T0, 0, 'sc1')
        a('s_mov_b64 exec, -1')
        self.stamp('A2pub')
        self.bl(XR, 4, vXT, rX, T5, 0, '', 'xt')
        self.bl(XR + 4, 4, vXT, rX, T5, 64, '', 'xt')
        S(T0, 'hp*4096 + w*512')
        a(f'v_add_u32 v{vT}, s{T0}, v{vL16}')
        S('m0', 'w*512 + L_WPHI')
        a('s_mov_b32 exec_hi, 0')
        a(f'global_load_lds_dwordx4 v{vT}, {sr(pWPHI, 2)}'); vm.issue()
        a('s_mov_b32 exec_hi, -1')
        w_next(wb[0])
        vm.wait('c')
        for i in range(2):
            a(f'v_lshlrev_b32 v{cv+i}, 16, v{cv+i}')
            self.silu(cv + i, vT + i)
        S(T0, '((((w >> 1)*16 + ((j ^ 1) & 15))*2 + (j >> 4))*8 + x)*512 + AINB')
        S(T1, '(wg*8 + w)*128 + SINB')
        va(vT + 4, [(0, 4, 8)])
        vm.wait('wm')
        self.stamp('wmok')
        for s in self.gemv_ops([wm, wm + 4], [cv, cv + 1], acc, vT, vT + 1, True): a(s)
        self.dw('ds_write_b32', vGA, acc, 1, L_A1 - MISC)
        self.barrier()
        def a1_pub():
            a(f'ds_read_b128 {vr(acc, 4)}, v{vL32S} offset:{L_A1 - MISC}')
            a(f'ds_read_b128 {vr(acc + 4, 4)}, v{vL32S} offset:{L_A1 - MISC + 16}')
            a('s_waitcnt lgkmcnt(0)')
            self.sum8(acc)
            a(f'v_mov_b32 v{acc+1}, s{sTAG}')
            a(f"""s_bitcmp1_b32 s{sWAVE}, 0
            s_cselect_b32 exec_lo, 0, -1
            s_cselect_b32 exec_hi, -1, 0""")
            self.bs(acc, 2, vL8, rWS, T0, 0, 'sc1')
            a('s_mov_b64 exec, -1')
            self.stamp('A1pub')
        st_pre = lambda: self.spoll([(q, 1, T1, q * 64 + 60) for q in range(2)], range(2))
        st_ld = lambda: self.bl(st, 2, vT + 4, rWS, T1, 0, 'sc1')
        self.try_load(st_ld, [st + 1], None, lambda: (a1_pub(), w_next(wb[1])), st_pre)
        self.stamp('statok')
        def xhat_work():
            for p, q in ((0, 2), (1, 3), (4, 6), (5, 7)): a(f'v_permlane32_swap_b32 v{XR+p}, v{XR+q}')
            self.unpack(st + 1, st, st)
            a(f'v_rcp_f32 v{st}, v{st}')
            for i in range(8): self.unpack(xs + 2 * i, xs + 2 * i + 1, XR + i)
            for i in E2: self.pk('add', xs + i, xs + i, st + 1, bc=(1,), neg=(1,))
            self.round_list([xs + i for i in range(16)])
            for i in E2: self.pk('mul', xs + i, xs + i, st, bc=(1,))
            self.round_list([xs + i for i in range(16)])
        va(vT, [(0, 5, 16), (5, 1, 4096)])
        S(T0, 'T4')
        S(T1, 'w*4 + L_MP'); va(vT + 1, [(0, 6, 64)], T1)
        va(vT + 2, [(0, 2, 32), (5, 1, 128), (4, 1, 256), (2, 2, 512)], None, L_MP)
        self.spoll([(q, 1, T0, q * 4096 + 508) for q in range(2)], range(2), work=xhat_work)
        self.stamp('apre')
        a('s_barrier')
        self.try_load(lambda: self.bl(st, 4, vT, rWS, T0, 0, 'sc1'), [st + 1, st + 3], vT + 3, lambda: w_next(wb[2]))
        self.stamp('modok')
        a(f'ds_write2_b32 v{vT+1}, v{st}, v{st+2} offset0:0 offset1:8'); lg.issue()
        self.barrier()
        for i in (2, 3, 0, 1): self.r128(mp + 4 * i, vT + 2, (i >> 1) * 2048 + (i & 1) * 16, i >> 1)
        w_next(wb[3])
        S(T0, '((rt*16 + cb)*4 + (w >> 1))*4096 + (w & 1)*256 + HF')
        va(vT, [(0, 4, 16), (4, 1, 1024), (5, 1, 512)])
        lg.wait(1); self.sum8(mp + 8)
        self.round1(mp + 8)
        lg.wait(0); self.sum8(mp)
        a(f'v_add_f32 v{mp+8}, 1.0, v{mp+8}')
        self.round2(mp + 8, mp)
        for h in range(2):
            rg = range(8 * h, 8 * h + 8)
            for i in rg: self.dpp('v_mul_f32', xs + i, mp + 8, xs + i, f'row_newbcast:{i}')
            self.round_list([xs + i for i in rg])
            for i in rg: self.dpp('v_add_f32', xs + i, mp, xs + i, f'row_newbcast:{i}')
            for i in range(4 * h, 4 * h + 4): a(f'v_cvt_pk_bf16_f32 v{hp+i}, v{xs+2*i}, v{xs+2*i+1}')
            self.bs(hp + 4 * h, 4, vT, rWS, T0, 2048 * h, 'sc1', 'hs')
        self.stamp('hst')
        va(vB, [(2, 2, 128), (3, 1, 64), (4, 1, 32), (0, 2, 8), (5, 1, 512)])
        a(f'v_xor_b32 v{vB+1}, 64, v{vB}')
        for q in (1, 2):
            for h in range(2): a(f'v_add_u32 v{vB+2*q+h}, {q*REG}, v{vB+h}')
        va(vT + 1, [(0, 2, 8 * 4096), (2, 2, 4096)])
        S(T0, '((rt >> 3)*4 + (rt & 7)*32)*4096 + (cb >> 1)*64 + (cb & 1)*4 + INB')
        S(sAB, 'r1*262144 + rb*4096 + HF')
        a(f"""s_cmp_ge_u32 s{sJ}, {0 if o.get('noffn') else 28}
        s_cselect_b32 s{rWG+2}, 0, s{rWG+2}
        s_cselect_b32 s{rWU+2}, 0, s{rWU+2}
        s_cselect_b32 s{rWD+2}, 0, s{rWD+2}""")
        vm.wait('hs')
        a('s_barrier')
        self.push(vT + 1, T0, 16, vT + 2, 'L_PB')
        self.stamp('hpub')
        w_next(wb[4])
        vWo, vFG, vFD = vS0, vS1, SP + 5
        def setup():
            S(sWO, 'w*16384 + cb*128'); S(sY2, '((j & 1)*8 + (j >> 3)*2)*131072' if o['worot'] else '(j & 1)*1048576')
            S(sFG, '(kq*8 + w)*(32*7168) + fs*128'); S(sFD, '(fs*8 + w)*16384 + kq*512')
            S(sM2, '((x & 3)*8 + w)*(32*12288) + (j*2 + (x >> 2))*128 + 4096')
            S(T1, '(w & 1)*64')
            va(vT + 2, [(4, 1, 32)], T1); va(vWo, [(0, 3, 16)])
            a(f'v_xor_b32 v{vWo}, v{vWo}, v{vT+2}'); va(vT + 2, [(3, 3, 2048)]); a(f'v_add_u32 v{vWo}, v{vWo}, v{vT+2}')
            S(T1, '(w & 2)*32'); va(vT + 2, [(4, 1, 32)], T1); va(vFG, [(0, 3, 16)])
            a(f'v_xor_b32 v{vFG}, v{vFG}, v{vT+2}'); va(vT + 2, [(3, 3, 7168)]); a(f'v_add_u32 v{vFG}, v{vFG}, v{vT+2}')
            S(T1, '(w & 1)*128')
            va(vT + 2, [(5, 1, 64)], T1); va(vFD, [(0, 5, 16), (5, 1, 2048)])
            a(f'v_xor_b32 v{vFD}, v{vFD}, v{vT+2}')
            S(T3, 'u0*16384'); a(f'v_add_u32 v{vCo}, s{sAB}, v{vL16}')
            S(T1, 'rb*4096 + L_HV'); a(f'v_add_u32 v0, s{T1}, v{vL16}')
        self.inbox(0, 2, work=lambda: (w_next(wb[5]), setup(), a(';TOUR')))
        assert len(wq) % 3 == 0 and len(wq) <= 6
        vm.wait(('W', 3))
        a('s_barrier')
        self.stamp('hok')

    def gemm1(self):
        a, vm, lg, o, S, va = self.a, self.vm, self.lg, self.o, self.S, self.vaa
        LOOK = o['LOOK']; NB = LOOK + 1; assert NB <= 7
        vWo, vFG, vFD, vHo = vS0, vS1, SP + 5, 0
        self.vWo, self.vFG, self.vFD = vWo, vFG, vFD
        m2w, m2c = AV, AV + 24
        FL = self.FL = AK
        cur = self.cur = [0]
        TOK = [(0, 3, 16), (3, 2, 256), (5, 1, 128)]
        def cvt8(d, s_):
            for i in range(8): a(f'v_cvt_pk_bf16_f32 v{d+i}, v{s_+2*i}, v{s_+2*i+1}')
        self.cvt8 = cvt8
        fq = self.fq = [(m, i) for m in range(3) for i in range(4)]
        held = self.held = ([], [])
        def f_src(m, i, far=0):
            q = (i * 8 * 7168 + far * 4 * 32 * 7168, i * 4096 + far * 4 * 16384)[m == 2]
            S(sU, ('fg', 'fd')[m == 2] + ' + q', q=q & 0xffffffff)
            return (vFG, (rWG, rWU)[m]) if m < 2 else (vFD, rWD)
        def f_lds(m, i): return (L_GU + m * 32768 if m < 2 else L_DN) + i * 1024
        def f_ld(g, k, far, count=True):
            m, i = held[g][k]
            v, r = f_src(m, i, far * (1 - 2 * g))
            a(f'buffer_load_dwordx4 {vr(FL + 8*k + 4*far, 4)}, v{v}, {sr(r, 4)}, s{sU} offen nt')
            if count: vm.issue('ffn')
        def ffn_reg(n=1, g=0):
            if not n: return
            L = a.label('L_FH')
            a(f's_cmp_{"ge" if g == 0 else "lt"}_u32 s{sWAVE}, 4\ns_cbranch_scc1 {L}')
            for _ in range(n):
                held[g].append(fq.pop(0)); assert len(held[g]) <= 4
                for far in range(2): f_ld(g, len(held[g]) - 1, far, False)
            a(f'{L}:')
        def ffn_dma(n=1):
            for _ in range(n):
                m, i = fq.pop(0)
                v, r = f_src(m, i)
                S('m0', 'w1k*4 + q', q=f_lds(m, i))
                self.dma(v, r, sU, 0, 'nt', 'ffn')
        self.ffn_reg, self.ffn_dma, self.f_lds = ffn_reg, ffn_dma, f_lds
        for _ in range(o['fA']): held[1].append(fq.pop(0))
        def m2_ld(i):
            if i == 0:
                S(sU, '((x & 3)*8 + w)*64'); self.va(m2c + 4, [(3, 3, 2)], sU, 0, m2c + 5)
                for k in range(4): a(f'global_load_ushort v{m2c+k}, v{m2c+4}, {sr(pC, 2)} offset:{16*k}'); vm.issue('m2')
            S(sU, 'm2 + q', q=i * 8 * 12288)
            self.bl(m2w + 4 * i, 4, self.vWM, rWM, sU, 0, 'nt', 'm2')
        wslot = self.wslot = lambda p: p if p < 4 else p + 2
        def wo_dma(p, back=0):
            S(sU, '(y2 ^ q) + wo' + (' - 65536' if back else ''), q=p * 131072)
            S('m0', 'w1k + q', q=wslot(p) * 8192 - 4096 * back)
            self.dma(vWo, rWO, sU, 0, '', 'wo')
        self.wo_dma = wo_dma
        def poison():
            a(f'v_mov_b32 v{vT}, -1\nv_mov_b32 v{vT+1}, -1\nv_mov_b32 v{vT+2}, -1\nv_mov_b32 v{vT+3}, -1')
            for back in range(2):
                S(T1, '((rt*8 + w - q)*16 + cb)*256 + ST', q=4 * back); va(vT + 4, [(0, 6, 4)])
                self.bs(vT, 1, vT + 4, rWS, T1, 0, 'sc1')
            S(T1, 'rt*16384 + cb*512 + XS'); va(vT + 4, [(0, 5, 16), (5, 1, 8192)])
            a(f's_cmp_lg_u32 s{sWAVE}, 5\ns_cbranch_scc1 L_NOPO')
            self.bs(vT, 4, vT + 4, rWS, T1, 0, 'sc1', count=False)
            a('L_NOPO:')
        seq = []
        for sg in range(40): seq += [(t, h, sg) for t in 'kqv' for h in range(2)]
        for t in 'kvq':
            for sg in range(40, 64): seq += [(t, h, sg) for h in ((1, 0) if (t, sg) == ('q', 63) else (0, 1))]
        bM, bH, bQ = 263, o['bH'], 335
        bars = [24 * k - 1 for k in range(1, 11)] + [bM, bH, bQ]
        a(f"""s_cmp_ge_u32 s{sWAVE}, 4
        s_cbranch_scc1 L_HELP
        s_setprio {o['prio']}""")
        q_hok = list(vm.q)
        ACC = dict(k=AK, v=AV, q=AQ)
        nxt = [0]; late = []
        def a_load():
            while late: a(late.pop(0))
            sg = nxt[0]; nxt[0] += 1
            if o.get('noA') and sg >= 12: return
            self.bl(AR + 4 * (sg % 24), 4, SP + 1, rWS, T3, (sg % 4) * 1024, 'sc1', ('A', sg))
            if sg % 4 == 3: late.extend([f's_add_u32 s{T3}, s{T3}, 16384', f's_and_b32 s{T3}, s{T3}, 0x3ffff'])
        def b_read(n):
            t, h, sg = seq[n]
            s = sg & 3
            off = ((sg >> 2) % 6) * 8192 + (s >> 1) * 4096 + (s & 1) * 1024
            d = RING + 4 * (n % NB); v = vB + 2 * 'kvq'.index(t) + h
            self.tr(d, v, off, ('B', n)); self.tr(d + 2, v, off + 2048, ('B', n))
        self.nopk = True
        st0, stk, stv = Stream(self), Stream(self), Stream(self)
        for h in range(2):
            for q in range(2):
                stk.cap(lambda: [a(f'v_cvt_pk_bf16_f32 v{AK+16*h+4*q+i}, v{AK+16*h+8*q+2*i}, v{AK+16*h+8*q+2*i+1}') for i in range(4)])
                stk.add(lambda h=h, q=q: self.dw('ds_write_b128', vHo, AK + 16 * h + 4 * q, 4, h * 2048 + q * 1024, 'kh'), 0, 1)
        stk.mark('kh')
        stk.until(bH + 1)
        stk.cap(lambda: (S(T1, 'rb*2048 + L_HV'), self.va(vHo, TOK, T1, 0, vT)))
        for h in range(2):
            for q in range(2):
                stv.cap(lambda: [a(f'v_cvt_pk_bf16_f32 v{AV+16*h+4*q+i}, v{AV+16*h+8*q+2*i}, v{AV+16*h+8*q+2*i+1}') for i in range(4)])
                stv.add(lambda h=h, q=q: self.dw('ds_write_b128', vHo, AV + 16 * h + 4 * q, 4, h * 8192 + q * 1024, 'vst'), 0, 1)
        if o['m2c'] == 0:
            stv.sleep(4)
            stv.add(lambda: lg.wait('vst'))
            for i in range(4): stv.add(lambda i=i: m2_ld(i), 0, 1); stv.sleep(o.get('fgap', 4))
        a_load()
        for n in range(LOOK): b_read(n)
        while nxt[0] < o['A0']: a_load()
        seen = set(); lpend = []
        Apos = list(o['Apos']); assert o['A0'] + sum(Apos) == 64
        for n in range(384):
            t, h, sg = seq[n]; cur[0] = n
            if ('A', sg) not in seen:
                assert sg < nxt[0]
                vm.wait(('A', sg)); seen.add(('A', sg))
            lg.wait(('B', n))
            d = ACC[t] + 16 * h
            a(f'v_mfma_f32_32x32x16_bf16 {vr(d, 16)}, {vr(RING + 4*(n % NB), 4)}, {vr(AR + 4*(sg % 24), 4)}, ' + (vr(d, 16) if sg else '0'))
            if self.prof and o.get('ls'):
                l0, l1, lst = o['ls']
                if lpend and n >= lpend[0][0]:
                    _, r_, k_ = lpend.pop(0); a(f'v_writelane_b32 v255, s{r_}, {k_}')
                if l0 <= n < l1 and (n - l0) % lst == 0:
                    r_ = sPL + 2 * (self.nst % 4)
                    a.items.append(('raw', f'    s_memtime {sr(r_, 2)}')); lpend.append((n + 4, r_, self.nst)); self.stnames.append(f'n{n}'); self.nst += 1
            def a_try():
                p, r = divmod(n, 24)
                if n < 240 and (r + 1) * Apos[p] // 24 > r * Apos[p] // 24:
                    assert nxt[0] - 24 < (n + 1) // 6, (n, nxt)
                    a_load()
                elif late: a(late.pop(0))
            if o['apos'] == 0: a_try()
            bud = [o.get('cbud', 10), 1]
            if n >= 289: stk.pull(bud, bud[0])
            if n > bQ + 1: stv.pull(bud, bud[0])
            if n + LOOK < 384: b_read(n + LOOK)
            if o['apos'] == 1: a_try()
            if n in bars:
                if n == bH:
                    assert 'kh' in self.marks
                    lg.wait('kh')
                    if 'prio2' in o: a(f's_setprio {o["prio2"]}')
                if not (o.get('noB') and n < 200): a('s_barrier')
                if o.get('gst'): self.stamp(f'b{n}')
        assert not (st0.q or stk.q or stv.q) and nxt[0] == 64
        self.stamp('gemm1')
        vq, wph = AR + 16, AR + 24
        S(T1, 'rb*2048 + L_QH'); a(f'v_add_u32 v{vHo}, s{T1}, v{vL16}')
        va(vT, [(2, 2, 64), (4, 1, 32), (0, 2, 8), (5, 1, 256)], None, L_WPHI)
        for s in range(2):
            for u in range(2): self.tr(wph + 4 * s + 2 * u, vT, s * 1024 + u * 512)
        cvt8(AR, AQ + 16)
        for q in range(2): self.dw('ds_write_b128', vHo, AR + 4 * q, 4, q * 1024)
        cvt8(vq, AQ)
        if o['m2c'] == 1:
            for i in range(4): m2_ld(i)
        a('s_setprio 0')
        a('s_branch L_JOIN')
        a('L_HELP:')
        vm.q = [('W', 'pre')] * len(q_hok); lg.reset()
        vis = {}
        def w_sec(t, n):
            if o.get('noW'): return
            for back in (1, 0):
                S(sU, '((u0 + n) & 15)*UR + wb + q', n=n, q=(dict(q=0, k=2048, v=4096)[t] - back * 4 * 49152) & 0xffffffff)
                S('m0', 'w1k + q', q='kvq'.index(t) * REG + (n % 6) * 8192 - back * 4096)
                self.dma(vWd, rW, sU, 0, '', ('W', t, n))
        for n, t in self.wq: w_sec(t, n)
        ka, wp2, pa, pb, ee, vPW = AR, AR + 16, AR + 32, AR + 48, AR + 64, AR + 80
        va(vT, [(2, 2, 64), (4, 1, 32), (0, 2, 8), (5, 1, 256)], None, L_WPHI)
        for hs in range(4):
            for u in range(2): self.tr(wp2 + 4 * hs + 2 * u, vT, hs * 1024 + u * 512)
        S(T1, 'rb*1024 + L_PHK'); va(vPW, TOK, T1)
        def touch(boxes):
            a('s_waitcnt lgkmcnt(0)')
            for q, b in enumerate(boxes):
                a(f's_load_dword s{sPL + 2*q}, {sr(rWS, 2)}, s{sINB} offset:{b * 512} glc')
                a(f's_load_dword s{sPL + 2*q + 1}, {sr(rWS, 2)}, s{sINB} offset:{b * 512 - 256} glc')
        wsched = {int(k): v.split() for k, v in o['wsched'].items()}
        for k in range(1, 5): wsched[k] = [f'{t}{k + 5}' for t in 'kqv'] + wsched.get(k, [])
        need = {k: [f'{t}{k + 1}' for t in 'kqv'] for k in range(1, 9)}
        need.update({9: ['k10'], 10: ['k11', 'k12', 'k13'], 11: ['k14', 'k15', 'v10', 'v11'], 12: ['v12', 'v13', 'v14', 'v15', 'q10'],
                     13: ['q11', 'q12', 'q13', 'q14', 'q15']})
        done = {f'{t}{n}' for n in range(6) for t in 'kvq'}
        def h_bar(k):
            if k == 1: vm.wait(('W', 'pre'))
            for u in need[k]:
                assert u in done, (u, k)
                vm.wait(('W', u[0], int(u[1:])))
            if not (o.get('noB') and k < 9): a('s_barrier')
            for u in wsched.get(k, []):
                assert int(u[1:]) - 5 <= k
                w_sec(u[0], int(u[1:])); done.add(u)
        hm, hc, ha, ht = AV, AQ, AQ + 8, AQ + 16
        if o['m2c'] == 3:
            S(T5, o['m2k3'])
            S(sU, '((x & 3)*4 + w - 4)*128'); va(ht, [(3, 3, 2)], sU)
            for i in range(8): a(f'global_load_ushort v{hc+i}, v{ht}, {sr(pC, 2)} offset:{16*i}'); vm.issue('c2')
            S(T6, '((x & 3)*4 + w - 4)*(64*12288) + (j*2 + (x >> 2))*128 + 4096')
        for k in range(1, 13):
            if k == 12: lg.wait_all()
            if o['m2c'] == 3 and k == 10: lg.wait_all()
            h_bar(k)
            if o['m2c'] == 3:
                if k <= o['m2g'] - 2:
                    a(f's_cmp_lg_u32 s{T5}, {k}\ns_cbranch_scc1 L_NM2_{k}')
                    for i in range(8):
                        S(sU, 'T6 + q', q=i * 8 * 12288)
                        a(f'buffer_load_dwordx4 {vr(hm + 4*i, 4)}, v{self.vWM}, {sr(rWM, 4)}, s{sU} offen nt')
                    a(f'L_NM2_{k}:')
                if k == 3:
                    vm.wait('c2')
                    for i in range(8):
                        a(f'v_lshlrev_b32 v{hc+i}, 16, v{hc+i}')
                        self.silu(hc + i, ht + (i & 1))
                g0 = o['m2g']
                if g0 <= k <= 9:
                    if k == g0:
                        vm.wait(('W', 'k', k + 4))
                        mops = self.gemv_ops([hm + 4 * i for i in range(8)], [hc + i for i in range(8)], ha, ht, ht + 1, False)
                    for _ in range(len(mops) if k == 9 else 144 // (10 - g0)): a(mops.pop(0))
                    if k == 9: self.dw('ds_write_b32', self.vGA, ha, 1, L_M2 - MISC)
                if k == 10:
                    a(f"""s_cmp_lg_u32 s{sWAVE}, 4
                    s_cbranch_scc1 L_M2F
                    ds_read_b128 {vr(ha, 4)}, v{self.vL32S} offset:{L_M2 - MISC + 16}""")
                    S(T0, '((j*2 + (x >> 2))*4 + (x & 3))*512 + MODP2')
                    a(f"""s_waitcnt lgkmcnt(0)
                    v_add_f32 v{ha}, v{ha}, v{ha+1}
                    v_add_f32 v{ha+2}, v{ha+2}, v{ha+3}
                    v_mov_b32 v{ha+1}, s{sTAG}
                    v_add_f32 v{ha}, v{ha}, v{ha+2}""")
                    self.bs(ha, 2, self.vL8, rWS, T0, 0, 'sc1', count=False)
                    a('L_M2F:')
            if k == 2: poison()
            if k in (1, 4, 7) and o.get('touch', 1): touch({1: (1, 7), 4: (2, 3), 7: (5, 6)}[k])
            if k == 9 and o.get('touch', 1):
                S(T0, 'fs*8192 + (w - 4)*256 + HGR')
                a('s_waitcnt lgkmcnt(0)')
                for q in range(4): a(f's_load_dword s{sPL + q}, {sr(rWS, 2)}, s{T0} offset:{q * 2048 + 1024 + 252} glc')
        if o.get('hprio'): a(f's_setprio {o["hprio"]}')
        for q in range(4): self.r128(ka + 4 * q, vHo, q * 1024, ('kh', q))
        for h, pp in ((0, pa), (1, pb)):
            for q in range(2):
                lg.wait(('kh', 2 * h + q))
                a(f'v_mfma_f32_32x32x16_bf16 {vr(pp, 16)}, {vr(wp2 + 8*h + 4*q, 4)}, {vr(ka + 8*h + 4*q, 4)}, ' + (vr(pp, 16) if q else '0'))
        if o.get('hprio') and not o.get('hlong'): a('s_setprio 0')
        self.stamp('klog')
        hs = Stream(self)
        for h, pp in ((0, pa), (1, pb)):
            hs.cap(lambda: self.softmax_pm(pp, ee, ee, vT))
            k = max(i for i, it in enumerate(hs.q) if it[0] == 4.75) - 8
            tailq = hs.q[k + 1:]; hs.q = hs.q[:k + 1]
            wr = lambda fb, h=h: (0, 0, lambda: self.dw('ds_write_b128', vPW, ee + 4 * fb, 4, h * 16384 + fb * 4096, ('phk', h)))
            hs.q += [wr(0)] + tailq[:4] + [wr(1), wr(2)] + tailq[4:] + [wr(3)]
            if h == 0:
                n1 = len(hs.q)
                hs.add(lambda: None)
        hs.q.insert(n1 + 34, (0, 0, lambda: lg.wait(('phk', 0))))
        ex = {}
        def put(i, fn):
            while i in ex: i += 1
            ex[i] = fn
        nq = int(n1 * o['hq'])
        put(nq, lambda: h_bar(13))
        g1, g2 = o['hgap']
        ff = [(lambda k=k, far=far: f_ld(1, k, far)) for k in range(o['fA']) for far in range(2)]
        pre = [(lambda k=k: m2_ld(k)) for k in range(4)] if o['m2c'] < 2 else []
        npre = o.get('fpre', 4) - len(pre)
        pre += ff[:npre]; ff = ff[npre:]
        for k, fn in enumerate(pre): put(5 + g1 * k, fn)
        wl = self.wo_left = [4, 5, 8, 9, 6, 7] + [10, 11, 12, 13, 14, 15] + [0, 1, 2, 3]
        post = []
        for k in range(o['woA']): post += [lambda: wo_dma(wl[0], 1), lambda: wo_dma(wl.pop(0))]
        post = post[:8] + ff + post[8:] if o.get('wofirst', 1) else ff + post
        for k, fn in enumerate(post): put(nq + 5 + g2 * k, fn)
        for i, (v_, l_, fn) in enumerate(hs.q):
            if i in ex: ex.pop(i)()
            fn()
        assert not ex
        self.nopk = False
        S(T1, 'rb*2048 + L_QH'); a(f'v_add_u32 v{vHo}, s{T1}, v{vL16}')
        assert wph == wp2 + 8
        if o.get('hprio'): a('s_setprio 0')
        self.stamp('ksm')
        a('L_JOIN:')
        vm.q = ['m2'] * (8 if o['m2c'] < 2 else 0); lg.q = [None]
        self.m2_ld = m2_ld
        self.vHo = vHo

    def middle(self):
        a, vm, lg, o, S, va = self.a, self.vm, self.lg, self.o, self.S, self.vaa
        vL8, vL32S, vGA, vHo, ffn_reg = self.vL8, self.vL32S, self.vGA, self.vHo, self.ffn_reg
        pp, ee, ph, vq, wph = AQ, AQ + 16, AR, AR + 16, AR + 24
        fA, fB, kvd, zd, ones = AR + 32, AR + 48, AR + 80, AR + 88, AR + 92
        kp, zz, zf, kf, k2 = AR + 32, AR + 40, AR + 44, AR + 60, AR + 76
        m2w, m2a, m2c, m2t = AV, AV + 16, AV + 24, AV + 28
        vPA, vPB, vPC, vKP, vXF = RING + 16, RING + 17, RING + 18, RING + 19, RING + 20
        md, wr1 = RING, RING + 4
        self.md, self.wr1 = md, wr1
        wl = self.wo_left
        wo1 = lambda: self.wo_dma(wl.pop(0))
        fw = o['fwin']
        va(vPB, [(0, 1, 8), (2, 2, 16), (4, 1, 64), (1, 1, 128), (5, 1, 256)])
        S(T0, 'w*4096 + L_PHK'); a(f'v_add_u32 v{vPA}, s{T0}, v{vPB}')
        S(T0, 'kh*8192 + L_HV'); a(f'v_add_u32 v{vPB}, s{T0}, v{vPB}')
        for i in range(4): a(f'v_mov_b32 v{ones+i}, 0x3f803f80')
        S(T0, '((hp*8 + w)*32 + r1)*1024 + KVP'); S(T2, 'T0 + 16384')
        S(T3, '(hp*8 + w)*1024 + ZP'); S(T1, 'r1*64 + T3')
        self.barrier()
        self.stamp('phik')
        def kvm(u):
            lg.wait(('kv', u))
            for db in range(2):
                a(f'v_mfma_f32_16x16x32_bf16 {vr(kvd + 4*db, 4)}, {vr(fA + 4*u, 4)}, {vr(fB + 8*u + 4*db, 4)}, ' + ('0' if u == 0 else vr(kvd + 4*db, 4)))
            a(f'v_mfma_f32_16x16x32_bf16 {vr(zd, 4)}, {vr(fA + 4*u, 4)}, {vr(ones, 4)}, ' + ('0' if u == 0 else vr(zd, 4)))
        for ts in range(4):
            self.tr(fA + 4 * ts, vPA, ts * 1024, ('kv', ts)); self.tr(fA + 4 * ts + 2, vPA, ts * 1024 + 512, ('kv', ts))
            for db in range(2):
                for rd in range(2): self.tr(fB + 8 * ts + 4 * db + 2 * rd, vPB, ts * 2048 + db * 1024 + rd * 512, ('kv', ts))
            if ts >= 2: kvm(ts - 2)
        kvm(2); kvm(3)
        a(f"""s_cmp_lt_u32 s{sWAVE}, 4
        s_cbranch_scc1 L_NOQX
        ds_read_b128 {vr(vq, 4)}, v{vHo}
        ds_read_b128 {vr(vq + 4, 4)}, v{vHo} offset:1024
        L_NOQX:""")
        self.bs(kvd, 4, vL16, rWS, T0, 0, 'sc1', 'kvs')
        self.bs(kvd + 4, 4, vL16, rWS, T2, 0, 'sc1', 'kvs')
        a('s_mov_b32 exec_lo, 0x00010001')
        a('s_mov_b32 exec_hi, 0x00010001')
        self.bs(zd, 4, vL, rWS, T1, 0, 'sc1', 'kvs')
        a('s_mov_b64 exec, -1')
        lg.wait_all()
        a(f'v_mfma_f32_32x32x16_bf16 {vr(pp, 16)}, {vr(wph, 4)}, {vr(vq, 4)}, 0')
        a(f'v_mfma_f32_32x32x16_bf16 {vr(pp, 16)}, {vr(wph + 4, 4)}, {vr(vq + 4, 4)}, {vr(pp, 16)}')
        self.stamp('kvst')
        if o['m2c'] == 2:
            for i in range(4): self.m2_ld(i)
        va(vPC, [(0, 3, 32 * 4096), (3, 1, 4 * 4096)])
        S(T4, '(wg & 0x1b)*4096 + (r1 >> 1)*64 + (r1 & 1)*4 + INB + 512')
        va(vKP, [(3, 3, 1024), (0, 3, 16)])
        va(vXF, [(0, 3, 16), (5, 1, 8)])
        qm, qs = o['qmid'], o['qsplit']
        self.softmax_pm(pp, ee, ph, vT, part=1, split=qm)
        vm.wait('kvs')
        a('s_barrier')
        self.push(vPC, T4, 16, vPB, 'L_PC')
        self.stamp('kvpub')
        self.weave(lambda: [a(f'v_exp_f32 v{r+i}, v{r+i}') for i in range(qm, qs) for r in (ee, pp)], [wo1] * o['wowin'][0])
        S(T0, '(hp*16 + r1)*16384 + w*128 + KVP'); S(T1, 'T0 + 8192')
        S(T2, '(hp*16 + r1)*1024 + w*128 + KIN'); S(T4, 'T4 + 6*512')
        self.inbox(1, 2, work=lambda: (self.weave(lambda: self.softmax_pm(pp, ee, ph, vT, part=2, split=qs), [wo1] * o['wowin'][1]), self.stamp('cw')))
        a('s_barrier')
        self.stamp('kvok')
        self.bl(kp, 4, vKP, rWS, T0, 0, 'sc1', 'kp')
        self.bl(kp + 4, 4, vKP, rWS, T1, 0, 'sc1', 'kp')
        self.bl(zz, 4, vL16, rWS, T3, 0, 'sc1', 'z')
        ffn_reg(fw[0])
        S(T1, 'w*32 + L_ZF'); va(vT + 2, [(0, 2, 8), (5, 1, 4)], T1)
        S(T1, 'w*1024 + L_KVF'); va(vT + 1, [(0, 4, 16), (5, 1, 512), (4, 1, 8)], T1)
        S(T1, 'kh*128 + L_ZF'); va(vT + 3, [(5, 1, 16)], T1)
        S(T1, 'kh*4096 + L_KVF'); a(f'v_add_u32 v{vPA}, s{T1}, v{vL16}')
        M2 = o['m2c'] < 3
        m2ops = []; k = o.get('m2k', 24)
        if M2:
            vm.wait('m2')
            for i in range(4):
                a(f'v_lshlrev_b32 v{m2c+i}, 16, v{m2c+i}')
                self.silu(m2c + i, m2t + (i & 1))
            m2ops = self.gemv_ops([m2w + 4 * i for i in range(4)], [m2c + i for i in range(4)], m2a, m2t, m2t + 1, True)
        for s_ in m2ops[:k]: a(s_)
        def red4(r, ctls):
            for i in range(2): a(f'v_permlane32_swap_b32 v{r+i}, v{r+2+i}')
            self.pk('add', r, r, r + 2)
            for ctl in ctls:
                for i in range(2): self.dpp('v_add_f32', r + i, r + i, r + i, ctl)
            for i in range(2): a(f'v_mov_b32 v{r+2+i}, v{r+i}')
            for i in range(2): a(f'v_permlane16_swap_b32 v{r+i}, v{r+2+i}')
            self.pk('add', r, r, r + 2)
            a(f'v_cvt_pk_bf16_f32 v{r}, v{r}, v{r+1}')
        vm.wait('kp')
        self.pk('add', kp, kp, kp + 4); self.pk('add', kp + 2, kp + 2, kp + 6)
        red4(kp, ['row_ror:8'])
        a(f"""v_mov_b32 v{kp+1}, s{sTAG}
        s_mov_b32 exec_lo, 0xff
        s_mov_b32 exec_hi, 0xff""")
        self.bs(kp, 2, vXF, rWS, T2, 0, 'sc1')
        a('s_mov_b64 exec, -1')
        a('s_barrier')
        self.push(vPC, T4, 16, vPB, 'L_PC2')
        self.stamp('c2pub')
        num, den = pp, ee
        vm.wait('z')
        self.weave(lambda: (red4(zz, ['row_ror:4', 'row_ror:8']), [a(s_) for s_ in m2ops[k:]]), [wo1] * o['wowin'][2])
        self.dw('ds_write_b32', vT + 2, zz, 1)
        if M2: self.dw('ds_write_b32', vGA, m2a, 1, L_M2 - MISC)
        self.barrier()
        for fb in range(4): self.r128(zf + 4 * fb, vT + 3, fb * 32)
        if M2: self.r128(m2a, vL32S, L_M2 - MISC); self.r128(m2a + 4, vL32S, L_M2 - MISC + 16)
        S(T5, '((j*2 + (x >> 2))*4 + (x & 3))*512 + MODP2')
        lg.wait_all()
        S(T0, '(hp*8 + w)*2048 + KIN')
        def den_work():
            for fb in range(4):
                a(f'v_mfma_f32_32x32x16_bf16 {vr(den, 16)}, {vr(zf + 4*fb, 4)}, {vr(ph + 4*fb, 4)}, ' + ('0' if fb == 0 else vr(den, 16)))
            if M2:
                a(f's_cmp_lg_u32 s{sWAVE}, 3\ns_cbranch_scc1 L_M2F')
                self.nopk = True; self.sum8(m2a); self.nopk = False
                a(f'v_mov_b32 v{m2a+1}, s{sTAG}')
                self.bs(m2a, 2, vL8, rWS, T5, 0, 'sc1', count=False)
                a('L_M2F:')
            self.round1(den)
            a(f'v_add_f32 v{den}, 0x358637bd, v{den}')
            self.round1(den)
            a(f'v_rcp_f32 v{den}, v{den}')
            self.stamp('c2w')
        self.inbox(7, 2, work=den_work)
        self.stamp('c2h')
        ldk2 = lambda: [self.bl(k2 + 4 * q, 4, vL16, rWS, T0, q * 1024, 'sc1') for q in range(2)]
        self.try_load(ldk2, [k2 + 1, k2 + 3, k2 + 5, k2 + 7], vT, lambda: ffn_reg(fw[1]))
        for db in range(2):
            a(f'ds_write2_b32 v{vT+1}, v{k2+4*db}, v{k2+4*db+2} offset0:{64*db} offset1:{64*db+1}'); lg.issue()
        self.barrier()
        self.stamp('kvred')
        for fb in range(4): self.r128(kf + 4 * fb, vPA, fb * 1024, ('kf', fb))
        S(T0, '((r1*8 + rb*2)*32 + hp*2 + kh)*1024 + OF')
        va(vKP, [(0, 4, 16), (4, 1, 32768), (5, 1, 256)])
        for fb in range(4):
            lg.wait(('kf', fb))
            a(f'v_mfma_f32_32x32x16_bf16 {vr(num, 16)}, {vr(kf + 4*fb, 4)}, {vr(ph + 4*fb, 4)}, ' + ('0' if fb == 0 else vr(num, 16)))
        S(T5, '((w >> 1)*16 + cb)*2048 + (w & 1)*1024 + MODP2')
        self.ld_md = lambda: self.bl(md, 4, vL16, rWS, T5, 0, 'sc1', 'md')
        S(T6, 'cb*128'); va(vPA, [(0, 2, 2), (5, 1, 8), (4, 1, 16), (2, 2, 32)], T6)
        a(f'global_load_ushort v{wr1}, v{vPA}, {sr(pWR, 2)}'); vm.issue('md')
        self.ld_md()
        for h in range(2):
            self.round_list([num + i for i in range(8 * h, 8 * h + 8)])
            for i in range(8 * h, 8 * h + 8, 2): self.pk('mul', num + i, num + i, den, bc=(1,))
            for i in range(4 * h, 4 * h + 4): a(f'v_cvt_pk_bf16_f32 v{vq+i}, v{num+2*i}, v{num+2*i+1}')
            self.bs(vq + 4 * h, 4, vKP, rWS, T0, 512 * h, 'sc1', 'os')
        self.stamp('ost')
        while wl: wo1()

    def gemm2(self):
        a, vm, lg, o, S, va = self.a, self.vm, self.lg, self.o, self.S, self.vaa
        md, wr1, fw = self.md, self.wr1, o['fwin']
        AD2 = o['AD2']
        R = self.R = dict(acc=AQ, gaf=AQ + 16, cbf=AR + 16, sbf=AV, gbf=AV + 16, xf=AR, fr=AR + 32, Br=AR + 40, Ar=AR + 72, vB=RING + 8, sv=RING, up=RING + 12)
        acc, gaf, cbf, sbf, gbf, xf, fr, Br, Ar, vB, sv, up = [R[k] for k in 'acc gaf cbf sbf gbf xf fr Br Ar vB sv up'.split()]
        ARS = [Ar + 4 * i for i in range(6)] + [RING + 16, RING + 20, RING + 24]; assert AD2 <= 9
        va(vB, [(2, 2, 128), (4, 2, 1024), (0, 1, 16), (1, 1, 8), (3, 2, 32)])
        for ct in range(1, 4): a(f'v_xor_b32 v{vB+ct}, {32*ct}, v{vB}')
        va(vT + 1, [(0, 3, 8 * 4096), (3, 1, 4096)])
        S(T2, '((r1 >> 2)*2 + (r1 & 3)*64)*4096 + (hp >> 1)*64 + (hp & 1)*4 + INB + 1024')
        for i in range(8): self.unpack(xf + 2 * i, xf + 2 * i + 1, XR + i)
        S(T6, '(rt*8 + w)*32768 + OF')
        vm.wait('md')
        self.tagcheck([md + 1, md + 3], vT)
        a('s_cbranch_vccz L_MGOK')
        q0 = list(vm.q)
        self.poll(self.ld_md, [md + 1, md + 3], vT)
        vm.q = q0
        a('L_MGOK:')
        S(T1, '(w >> 1)*1024 + (w & 1)*8 + L_MD'); va(vT, [(0, 5, 32), (5, 1, 4)], T1)
        a(f'ds_write2_b32 v{vT}, v{md}, v{md+2} offset0:0 offset1:4'); lg.issue()
        va(vT + 3, [(0, 2, 16), (5, 1, 64), (4, 1, 128), (2, 2, 256)], None, L_MD)
        vm.wait('os')
        self.barrier()
        self.push(vT + 1, T2, 16, vT + 2, 'L_PD')
        self.stamp('opub')
        self.ffn_reg(fw[2])
        t4 = Br
        for q in range(4): self.r128(t4 + 4 * q, vT + 3, q * 1024)
        va(vT + 4, [(0, 2, 4), (5, 1, 16), (4, 1, 32), (2, 2, 64)], None, L_GB)
        S(T0, '(rt*16 + cb)*64 + UP')
        lg.wait_all()
        def d_work():
            for q in range(4):
                self.pk('add', t4 + 4 * q, t4 + 4 * q, t4 + 4 * q + 2)
                a(f'v_add_f32 v{sv+q}, v{t4+4*q}, v{t4+4*q+1}')
            self.round_list([sv + q for q in range(4)])
            a(f'v_add_f32 v{sv+2}, 1.0, v{sv+2}')
            a(f'v_lshlrev_b32 v{wr1}, 16, v{wr1}')
            self.round1(sv + 2)
            a(f'ds_write_b32 v{vT+4}, v{sv+3}')
            uu, hi, lo, t = t4, t4 + 1, t4 + 2, t4 + 4
            a(f'v_mul_f32 v{uu}, v{sv+2}, v{wr1}')
            a(f'v_cvt_pk_bf16_f32 v{hi}, 0, v{uu}')
            a(f'v_sub_f32 v{lo}, v{uu}, v{hi}')
            self.allreduce(uu, t + 3)
            for k, r in enumerate((hi, lo, wr1)): a(f'v_mov_b32_dpp v{t+k}, v{r} row_shl:1 row_mask:0xf bank_mask:0xf')
            for k, r in enumerate((hi, lo, wr1)): a(f'v_cvt_pk_bf16_f32 v{t+k}, v{r}, v{t+k}')
            a(f"""v_mov_b32 v{uu+1}, s{sTAG}
            v_mov_b32 v{uu+2}, 0
            s_cmp_lg_u32 s{sWAVE}, 2
            s_cbranch_scc1 L_NOUP
            s_mov_b64 exec, 1""")
            self.bs(uu, 2, uu + 2, rWS, T0, 0, 'sc1', count=False)
            a('s_mov_b64 exec, -1\nL_NOUP:')
            for i in range(8):
                a(f'v_mov_b32 v{fr+i}, 0x3f803f80')
                for k in range(3): a(f'v_mov_b32_dpp v{fr+i}, v{t+k} row_newbcast:{2*i} row_mask:0xf bank_mask:{hex(2 << k)}')
            for dst, q in ((gaf, 0), (cbf, 2), (sbf, 1), (gbf, 3)):
                for i in range(16): a(f'v_mov_b32_dpp v{dst+i}, v{sv+q} row_newbcast:{i} row_mask:0xf bank_mask:0xf')
            self.stamp('dw')
        self.inbox(2, 2, work=d_work)
        vm.wait('wo')
        a('s_barrier')
        self.stamp('ook')
        L2 = o['LOOK2']
        def b2_read(m):
            H, ct = divmod(m, 4)
            ad = self.wslot(H >> 1) * 8192 + (H & 1) * 4096
            if H and ad % 65536 == 0: a(f'v_add_u32 v{vB+ct}, 0x10000, v{vB+ct}')
            for rd in range(2): self.tr(Br + 4 * (m % 8) + 2 * rd, vB + ct, ad % 65536 + rd * 512, ('B', m))
        def a2_load(H):
            if H % 4 == 0: S(T7, '((y2 >> 6) ^ n) + T6', n=H * 1024)
            self.bl(ARS[H % AD2], 4, vL16, rWS, T7, (H % 4) * 1024, 'sc1', ('A', H))
        for H in range(AD2):
            a2_load(H)
            if H == 0:
                for m in range(L2): b2_read(m)
        S(T0, 'rt*1024 + UP'); va(vT + 6, [(0, 4, 64)])
        self.ld_up = lambda: self.bl(up, 2, vT + 6, rWS, T0, 0, 'sc1', 'up')
        lpend = []
        for H in range(32):
            if self.prof and o.get('ls2'):
                if lpend: r_, k_ = lpend.pop(0); a(f'v_writelane_b32 v255, s{r_}, {k_}')
                if H < 31:
                    r_ = sPL + 2 * (self.nst % 4)
                    a.items.append(('raw', f'    s_memtime {sr(r_, 2)}')); lpend.append((r_, self.nst)); self.stnames.append(f'n{H}'); self.nst += 1
            if o.get('g2p') and H in (0, o['g2p']):
                a(f's_cmp_lt_u32 s{sWAVE}, 4\ns_cbranch_scc1 L_G2P{H}\ns_setprio {1 if H == 0 else 0}\nL_G2P{H}:')
            vm.wait(('A', H))
            for ct in range(4):
                m = 4 * H + ct
                if o.get('pairw2') and ct & 1: pass
                else: lg.wait(('B', m + 1 if o.get('pairw2') else m))
                a(f'v_mfma_f32_16x16x32_bf16 {vr(acc + 4*ct, 4)}, {vr(Br + 4*(m % 8), 4)}, {vr(ARS[H % AD2], 4)}, ' + ('0' if H == 0 else vr(acc + 4*ct, 4)))
                if m + L2 < 128: b2_read(m + L2)
            if H + AD2 < 32: a2_load(H + AD2)
            if H + AD2 == 31:
                self.ld_up(); self.ffn_reg(fw[3])
        self.stamp('gemm2')
        if o.get('dbg'):
            S(T1, '(wg*8 + w)*32768 + 0x4000000'); va(vT, [(0, 6, 4)])
            for k, r in enumerate(list(range(40, 104)) + [24, 25, 26, 27]):
                if k % 16 == 0 and k: S(T1, 'T1 + 4096')
                self.bs(r, 1, vT, rWS, T1, (k % 16) * 256, '', 'dbg')
                if k % 16 == 15: vm.wait('dbg')

    def tail(self):
        a, vm, lg, o, S, va = self.a, self.vm, self.lg, self.o, self.S, self.vaa
        R, fw = self.R, o['fwin']
        E2 = range(0, 16, 2)
        acc, gaf, cbf, sbf, gbf, xf, fr, up = [R[k] for k in 'acc gaf cbf sbf gbf xf fr up'.split()]
        FR, held, fq = self.FL, self.held, self.fq
        g16, hh, h2p, op, sd4, kk = AR + 40, AR + 56, AR + 72, AR + 80, AR + 88, AR + 92
        vSt, vRow, mm, rs, key, vTa = RING, RING + 1, RING + 2, RING + 3, RING + 4, RING + 5
        x1f = xf
        swp = lambda b: [a(f'v_permlane32_swap_b32 v{b+p}, v{b+q}') for p, q in ((0, 2), (1, 3), (4, 6), (5, 7))]
        S(T1, '((rt*8 + w)*16 + cb)*256 + ST')
        va(vSt, [(0, 4, 16), (4, 2, 4)])
        self.nopk = bool(o.get('g2p'))
        for h in range(2):
            rg = range(8 * h, 8 * h + 8)
            self.round_list([acc + i for i in rg])
            for i in range(8 * h, 8 * h + 8, 2): self.pk('mul', acc + i, acc + i, gaf + i)
            self.round_list([acc + i for i in rg])
            for i in range(8 * h, 8 * h + 8, 2): self.pk('add', acc + i, acc + i, xf + i)
            for i in range(4 * h, 4 * h + 4): a(f'v_cvt_pk_bf16_f32 v{XR+i}, v{acc+2*i}, v{acc+2*i+1}')
            for i in range(4 * h, 4 * h + 4): a(f'v_dot2_f32_bf16 v{vT+(i&1)}, v{XR+i}, v{XR+i}, ' + ('0' if i < 2 else f'v{vT+(i&1)}'))
            a(f'v_mfma_f32_16x16x32_bf16 {vr(sd4, 4)}, {vr(fr + 4*h, 4)}, {vr(XR + 4*h, 4)}, ' + ('0' if h == 0 else vr(sd4, 4)))
        self.nopk = False
        va(vT + 3, [(0, 3, 8 * 4096), (3, 1, 4096)])
        a(f'v_add_f32 v{vT}, v{vT}, v{vT+1}')
        for sw in ('v_permlane32_swap_b32', 'v_permlane16_swap_b32'):
            a(f'v_mov_b32 v{vT+1}, v{vT}')
            a(f'{sw} v{vT}, v{vT+1}')
            a(f'v_add_f32 v{vT}, v{vT}, v{vT+1}')
        a(f'v_mov_b32_dpp v{sd4}, v{vT} quad_perm:[0,1,2,3] row_mask:0x8 bank_mask:0xf')
        self.bs(sd4, 1, vSt, rWS, T1, 0, 'sc1')
        S(T3, '((rt >> 2)*2 + (rt & 3)*64)*4096 + (cb >> 1)*64 + (cb & 1)*4 + INB + 1536')
        a('s_barrier')
        self.push(vT + 3, T3, 16, vT + 2, 'L_PE')
        self.stamp('x1pub')
        self.ffn_dma(fw[4])
        S(T2, 'w*4096')
        a(f'v_add_u32 v{vT}, s{T2}, v{vL16}')
        a(f'v_add_u32 v{vT+3}, {L_DN}, v{vT}')
        vm.wait('up')
        self.tagcheck([up + 1], vT + 2)
        a('s_cbranch_vccz L_UPOK')
        q0 = list(vm.q)
        self.poll(self.ld_up, [up + 1], vT + 2)
        vm.q = q0
        a('L_UPOK:')
        S(T1, '(rt*8 + w)*4096 + ST')
        def e_work():
            for ctl in ('quad_perm:[1,0,3,2]', 'quad_perm:[2,3,0,1]', 'row_half_mirror', 'row_mirror'): self.dpp('v_add_f32', up, up, up, ctl)
            for i in range(8): self.unpack(x1f + 2 * i, x1f + 2 * i + 1, XR + i)
            S(T2, '(2047 - rt*128 - w*16)*2')
            va(vRow, [(0, 4, 2)]); a(f'v_sub_u32 v{vRow}, s{T2}, v{vRow}')
            a(f'v_xor_b32 v{vT+1}, 0x4000, v{vT}\nv_xor_b32 v{vT+4}, 0x4000, v{vT+3}')
            if held[0] or held[1]: a(f's_waitcnt vmcnt({fw[4]})')
            for g in range(2):
                if not held[g]: continue
                a(f's_cmp_{"ge" if g == 0 else "lt"}_u32 s{sWAVE}, 4\ns_cbranch_scc1 L_FW{g}')
                for n, (m, i) in enumerate(held[g]):
                    for far in range(2):
                        a(f'ds_write_b128 v{(vT if m < 2 else vT + 3) + far}, {vr(FR + 8*n + 4*far, 4)} offset:{self.f_lds(m, i) - (L_GU if m < 2 else L_DN)}')
                a(f'L_FW{g}:')
            self.stamp('ew')
        self.inbox(3, 2, work=e_work)
        a('s_barrier')
        self.stamp('x1ok')
        def try_p(loads, check, between):
            loads()
            vm.q[-1] = tg = ('try', a.label('T'))
            between()
            vm.wait(tg)
            OK, L = a.label('POK'), a.label('PRE')
            check()
            a(f's_cbranch_vccz {OK}')
            q = list(vm.q)
            a(f'{L}:')
            loads(); vm.wait_all()
            check()
            a(f"""s_cbranch_vccz {OK}
            s_add_u32 s{sSPIN}, s{sSPIN}, 1
            s_cmp_lt_u32 s{sSPIN}, {SPIN_LIMIT}
            s_cbranch_scc1 {L}""")
            vm.q = q
            a(f'{OK}:')
        def e_between():
            self.ffn_dma(fw[5])
            S(T2, 'w*8 + L_K1'); a(f'v_mov_b32 v{vT}, s{T2}')
            va(vT + 1, [(0, 3, 8)], None, L_K1)
            va(vT + 2, [(0, 2, 64 * 4096), (2, 2, 2 * 4096)])
            S(T3, '((cb >> 3) + (cb & 7)*8)*4096 + (rt >> 1)*64 + (rt & 1)*16 + INB + 2560')
        s_, d_, q_, t_ = g16, g16 + 1, g16 + 3, g16 + 4
        def e_check():
            for h in (0, 2):
                self.pk('add', g16 + h, g16 + h, g16 + 4 + h); self.pk('add', g16 + 8 + h, g16 + 8 + h, g16 + 12 + h)
            for h in (0, 2): self.pk('add', g16 + h, g16 + h, g16 + 8 + h)
            a(f'''v_add_f32 v{d_}, v{d_}, v{g16+2}
            v_add_f32 v{t_+1}, v{s_}, v{q_}
            v_cmp_u_f32 vcc, v{d_}, v{t_+1}''')
        try_p(lambda: [self.bl(g16 + 4 * i, 4, vL16, rWS, T1, i * 1024, 'sc1') for i in range(4)], e_check, e_between)
        self.stamp('x1ld')
        a(f"""
        v_mov_b32 v{t_}, v{q_}
        v_permlane32_swap_b32 v{q_}, v{t_}
        v_permlane32_swap_b32 v{s_}, v{d_}
        v_add_f32 v{q_}, v{q_}, v{t_}
        v_add_f32 v{s_}, v{s_}, v{d_}
        v_permlane16_swap_b32 v{s_}, v{q_}
        v_add_f32 v{d_}, v{s_}, v{q_}
        v_add_f32 v{q_}, v{s_}, v{q_}
        v_permlane16_swap_b32 v{d_}, v{q_}
        v_mov_b32 v{s_}, v{d_}
        v_mul_f32 v{q_}, 0x3a800000, v{q_}
        v_permlane32_swap_b32 v{s_}, v{d_}
        v_mul_f32 v{s_}, 0x3a800000, v{s_}
        v_fma_f32 v{rs}, -v{s_}, v{s_}, v{q_}
        v_cvt_pk_bf16_f32 v{mm}, 0, v{s_}
        v_max_f32 v{rs}, 0, v{rs}""")
        self.round1(rs)
        a(f'v_fma_f32 v{d_}, -v{mm}, v{up}, v{d_}')
        a(f'v_add_f32 v{rs}, 0x3727c5ac, v{rs}')
        self.round1(rs)
        a(f'v_sqrt_f32 v{rs}, v{rs}')
        self.round1(rs)
        a(f"""v_rcp_f32 v{rs}, v{rs}
        v_mul_f32 v{key}, v{d_}, v{rs}
        v_ashrrev_i32 v{t_}, 31, v{key}
        v_or_b32 v{t_}, 0x80000000, v{t_}
        v_xor_b32 v{key}, v{key}, v{t_}
        s_mov_b32 s{T2}, 0xfffff000
        v_and_or_b32 v{key}, v{key}, s{T2}, v{vRow}""")
        hi, lo = kk, kk + 1
        def merge2(ctl):
            self.dpp('v_min_u32', t_, hi, hi, ctl); self.dpp('v_max_u32', lo, lo, lo, ctl); self.dpp('v_max_u32', hi, hi, hi, ctl)
            a(f'v_max_u32 v{lo}, v{lo}, v{t_}')
        self.dpp('v_max_u32', hi, key, key, 'quad_perm:[1,0,3,2]'); self.dpp('v_min_u32', lo, key, key, 'quad_perm:[1,0,3,2]')
        for ctl in ('quad_perm:[2,3,0,1]', 'row_half_mirror', 'row_mirror'): merge2(ctl)
        self.dw('ds_write_b64', vT, hi, 2)
        self.stamp('ln2')
        self.barrier()
        self.dr('ds_read_b64', hi, 2, vT + 1)
        for i in E2: self.pk('add', hh + i, x1f + i, mm, bc=(1,), neg=(1,))
        lg.wait_all()
        for ctl in ('quad_perm:[1,0,3,2]', 'quad_perm:[2,3,0,1]', 'row_half_mirror'): merge2(ctl)
        a(f"""v_cmp_eq_u32 {sr(sC2, 2)}, v{key}, v{lo}
        v_cmp_eq_u32 vcc, v{key}, v{hi}
        v_or_b32 v{kk+2}, 1, v{lo}
        v_mov_b32 v{kk+1}, s{sTAG}
        v_mov_b32 v{kk+3}, s{sTAG}
        s_or_b64 {sr(sCM, 2)}, vcc, {sr(sC2, 2)}
        s_cmp_lg_u32 s{sWAVE}, 0
        s_cbranch_scc1 L_NOF
        s_mov_b64 exec, 0xffff""")
        self.bs(kk, 4, vT + 2, rWS, T3, 0, 'sc1', count=False)
        a(f"""s_mov_b64 exec, -1
        L_NOF:""")
        self.stamp('Fpub')
        vRt = RING + 14
        def out_calc(part):
            oc = o.get('ocut', 1)
            if part == (0 if oc >= 1 else 1):
                for i in range(8): self.unpack(hh + 2 * i, hh + 2 * i + 1, h2p + i)
                for i in E2: self.pk('mul', hh + i, hh + i, gbf + i)
                self.round_list([hh + i for i in range(16)])
            if part == (0 if oc >= 2 else 1):
                for i in E2: self.pk('add', hh + i, hh + i, x1f + i)
                for i in range(8): a(f'v_cvt_pk_bf16_f32 v{op+i}, v{hh+2*i}, v{hh+2*i+1}')
                S(T0, 'w*2048 + L_TR')
                va(vT + 2, [(4, 2, 16)]); va(vT + 3, [(0, 3, 16)]); a(f'v_xor_b32 v{vT+2}, v{vT+2}, v{vT+3}')
                swp(op)
                va(vT + 4, [(0, 4, 128)], T0); a(f'v_add_u32 v{vT+2}, v{vT+2}, v{vT+4}'); a(f'v_xor_b32 v{vT+4}, 64, v{vT+2}')
                a(f'ds_write_b128 v{vT+2}, {vr(op, 4)}\nds_write_b128 v{vT+4}, {vr(op + 4, 4)}')
                va(vT + 2, [(3, 3, 16)]); a(f'v_xor_b32 v{vT+2}, v{vT+2}, v{vT+3}'); va(vT + 4, [(3, 3, 128)], T0); a(f'v_add_u32 v{vT+2}, v{vT+2}, v{vT+4}')
                a(f'ds_read_b128 {vr(op, 4)}, v{vT+2}\nds_read_b128 {vr(op + 4, 4)}, v{vT+2} offset:1024')
                S(T0, '2047 - rt*128 - w*16'); va(vRt + 1, [(3, 3, 1)])
                a(f'v_sub_u32 v{vRt}, s{T0}, v{vRt+1}\nv_subrev_u32 v{vRt+1}, 8, v{vRt}')
                va(vTa, [(3, 3, 2048), (0, 3, 16)])
                S(T3, '(rt*8 + w)*32768 + cb*128'); S(T2, 'T3 + 16384')
        def f_work():
            self.round_list([hh + i for i in range(16)])
            for i in E2: self.pk('mul', hh + i, hh + i, rs, bc=(1,))
            self.round_list([hh + i for i in range(16)])
            for i in E2: self.pk('mul', hh + i, hh + i, cbf + i)
            self.round_list([hh + i for i in range(16)])
            for i in E2: self.pk('add', hh + i, hh + i, sbf + i)
            for i in range(8): a(f'v_cvt_pk_bf16_f32 v{h2p+i}, v{hh+2*i}, v{hh+2*i+1}')
            a(f"""s_cmp_eq_u64 {sr(sCM, 2)}, 0
            s_cbranch_scc1 L_NOCAND""")
            for h in range(2): a(f'v_mfma_f32_16x16x32_bf16 {vr(sd4, 4)}, {vr(fr + 4*h, 4)}, {vr(h2p + 4*h, 4)}, ' + ('0' if h == 0 else vr(sd4, 4)))
            for i in range(8): a(f'v_mov_b32 v{op+i}, v{h2p+i}')
            S(T2, 'rt*16384 + cb*512 + XS')
            va(vT + 3, [(4, 2, 16)])
            a(f'v_add_u32 v{vT+4}, 8192, v{vT+3}')
            swp(op); swp(XR)
            a(f'v_cndmask_b32 v{vT+3}, v{vT+3}, v{vT+4}, {sr(sC2, 2)}')
            a(f's_mov_b64 exec, {sr(sCM, 2)}')
            for h in range(2): self.bs(op + 4 * h, 4, vT + 3, rWS, T2, 64 * h, 'sc1', count=False)
            a(f's_mov_b32 exec_lo, 0\ns_and_b32 exec_hi, s{sCM+1}, 0xffff0000')
            self.bs(sd4, 1, vT + 3, rWS, T2, 256 - 48, 'sc1', count=False)
            a(f's_mov_b64 exec, {sr(sCM, 2)}')
            for h in range(2): self.bs(XR + 4 * h, 4, vT + 3, rWS, T2, 128 + 64 * h, 'sc1', count=False)
            a('s_mov_b64 exec, -1\nL_NOCAND:')
            self.stamp('cand')
            out_calc(0)
        S(T0, 'w*16 + L_K2'); a(f'v_mov_b32 v{vT}, s{T0}')
        va(vT + 1, [(0, 3, 16)], None, L_K2)
        self.inbox(5, 8, (1, 3, 5, 7), f_work)
        P = sPL
        a(f"""s_min_u32 s{P+1}, s{P}, s{P+4}
        s_min_u32 s{P+3}, s{P+2}, s{P+4}
        s_min_u32 s{P+5}, s{P}, s{P+6}
        s_max_u32 s{P}, s{P}, s{P+4}
        s_max_u32 s{P+2}, s{P+2}, s{P+6}
        s_max_u32 s{P+3}, s{P+3}, s{P+5}
        s_max_u32 s{P+1}, s{P+1}, s{P+2}
        v_mov_b32 v{kk}, s{P}
        v_mov_b32 v{kk+2}, s{P+3}
        v_mov_b32 v{kk+1}, s{P+1}""")
        self.dw('ds_write_b128', vT, kk, 4)
        self.stamp('F2p')
        out_calc(1)
        vGr, vDr, vXs, ffn, fdn = RING + 6, RING + 7, RING + 8, FR, AQ
        S(T0, '(w >> 2)*32768 + (w & 3)*32 + L_GU')
        va(vGr, [(4, 2, 8192), (2, 2, 128), (3, 2, 32), (0, 2, 8)]); a(f'v_xor_b32 v{vGr}, s{T0}, v{vGr}')
        S(T0, 'kq*2048 + XS'); va(vXs, [(0, 3, 16), (4, 2, 512)], T0)
        va(vT + 6, [(0, 4, 512)], None, XS + 256)
        gu_late = [p for p in fq if p[0] < 2]; assert not gu_late
        dn_late = len(fq) > 0
        def dn_read(s, tag=None):
            self.tr(fdn + 4 * s, vDr, s * 8192, tag); self.tr(fdn + 4 * s + 2, vDr, s * 8192 + 1024, tag)
        vm.wait('ffn')
        self.barrier()
        self.stamp('F2')
        self.r128(kk, vT + 1, 0, 'k2')
        for s in range(8):
            self.tr(ffn + 4 * s, vGr, s * 1024); self.tr(ffn + 4 * s + 2, vGr, s * 1024 + 512)
        a(f'v_and_b32 v{vT+4}, 8, v{vL}')
        a(f'v_cmp_eq_u32 {sr(sCMP, 2)}, 0, v{vT+4}')
        a(f'v_cmp_gt_u32 {sr(sPL, 2)}, 16, v{vL}')
        a(f'v_cmp_gt_u32 {sr(sPL + 2, 2)}, 32, v{vL}')
        lg.wait('k2')
        t = g16
        for ctl in ('quad_perm:[1,0,3,2]', 'quad_perm:[2,3,0,1]', 'row_half_mirror'):
            self.dpp('v_min_u32', t, kk, kk, ctl); self.dpp('v_min_u32', t + 1, kk + 1, kk, ctl); self.dpp('v_min_u32', t + 2, kk, kk + 1, ctl)
            self.dpp('v_max_u32', kk + 2, kk + 2, kk + 2, ctl); self.dpp('v_max_u32', kk + 1, kk + 1, kk + 1, ctl); self.dpp('v_max_u32', kk, kk, kk, ctl)
            a(f'v_max3_u32 v{kk+2}, v{kk+2}, v{t+1}, v{t+2}')
            a(f'v_max_u32 v{kk+1}, v{kk+1}, v{t}')
        xa, xb, rp, kr = g16, g16 + 4, g16 + 8, g16 + 9
        a(f"""v_cndmask_b32 v{t}, v{kk+1}, v{kk}, {sr(sCMP, 2)}
        v_cndmask_b32 v{kr}, v{kk+2}, v{kk+1}, {sr(sPL + 2, 2)}
        v_xor_b32 v{t+1}, 0xf00, v{kk+2}
        v_cndmask_b32 v{kr}, v{kr}, v{kk}, {sr(sPL, 2)}
        v_xor_b32 v{t}, 0xf00, v{t}
        v_xor_b32 v{t+2}, 0xf00, v{kr}""")
        for k in range(3):
            a(f'v_bfe_u32 v{t+4+k}, v{t+k}, 8, 4')
            a(f'v_and_b32 v{t+k}, 1, v{t+k}')
            a(f'v_lshl_or_b32 v{t+k}, v{t+4+k}, 1, v{t+k}')
            a(f'v_lshl_add_u32 v{vT+k}, v{t+k}, 13, v{vXs if k < 2 else vT + 6}')
        def sel_work():
            self.stamp('sel')
            self.ffn_dma(len(fq))
            for k in range(3): a(f'v_readfirstlane_b32 s{sY0+[0, 3, 4][k]}, v{kk+k}')
            for k in range(3): a(f's_bfe_u32 s{T4+k}, s{sY0+[0, 3, 4][k]}, {1 | (11 << 16)}')
            for h in range(2):
                for k in range(3): a(f'v_cmp_ne_u32 {sr(sPL + 2*k, 2)}, s{T4+k}, v{vRt+h}')
                a(f's_and_b64 vcc, {sr(sPL, 2)}, {sr(sPL + 2, 2)}\ns_and_b64 exec, vcc, {sr(sPL + 4, 2)}')
                self.bs(op + 4 * h, 4, vTa, rOUT, (T3, T2)[h], 0, o.get('outmod', ''))
                a('s_mov_b64 exec, -1')
            S(T0, 'w*64')
            va(vDr, [(2, 1, 512), (3, 1, 4096), (5, 1, 2048), (2, 2, 64), (4, 1, 32), (0, 2, 8)])
            a(f'v_xor_b32 v{vDr}, s{T0}, v{vDr}'); a(f'v_add_u32 v{vDr}, {L_DN}, v{vDr}')
            va(vT + 4, [(0, 4, 16), (5, 1, 8)])
            S(T1, 'fs*8192 + HGR'); S(T7, '(kq*8 + w)*256 + T1')
            a(f'v_bfe_u32 v{kr}, v{kr}, 1, 11')
        try_p(lambda: [self.bl(xa, 4, vT, rWS, '0', 0, 'sc1'), self.bl(xb, 4, vT + 1, rWS, '0', 0, 'sc1'), self.bl(rp, 1, vT + 2, rWS, '0', 0, 'sc1')],
              lambda: a(f'v_max3_u32 v{vT+3}, v{xa}, v{xb}, v{rp}\nv_cmp_eq_u32 vcc, -1, v{vT+3}'), sel_work)
        self.stamp('xsel')
        for ctl in ('quad_perm:[1,0,3,2]', 'quad_perm:[2,3,0,1]', 'row_half_mirror', 'row_mirror'): self.dpp('v_add_f32', rp, rp, rp, ctl)
        a(f"""v_cvt_pk_bf16_f32 v{rp}, 0, v{rp}
        v_ashrrev_i32 v{vT+3}, 31, v{rp}
        v_or_b32 v{vT+3}, 0x80000000, v{vT+3}
        v_xor_b32 v{rp}, v{rp}, v{vT+3}
        v_lshrrev_b32 v{rp}, 16, v{rp}
        v_lshl_or_b32 v{rp}, v{rp}, 11, v{kr}
        v_readlane_b32 s{P}, v{rp}, 0
        v_readlane_b32 s{P+1}, v{rp}, 16
        v_readlane_b32 s{P+2}, v{rp}, 32
        s_not_b64 {sr(P + 4, 2)}, {sr(sCMP, 2)}
        s_cmp_lt_u32 s{P}, s{P+1}
        s_cselect_b64 {sr(P + 4, 2)}, {sr(sCMP, 2)}, {sr(P + 4, 2)}
        s_cselect_b32 s{P+3}, s{P}, s{P+1}
        s_cmp_gt_u32 s{P+2}, s{P+3}
        s_cselect_b64 vcc, {sr(P + 4, 2)}, 0""")
        for i in range(4): a(f'v_cndmask_b32 v{xa+i}, v{xa+i}, v{xb+i}, vcc')
        a(f"""s_bitcmp1_b32 vcc_lo, 0
        s_cselect_b32 s{P}, s{P+2}, s{P}
        s_cselect_b32 s{T6}, s{T4}, s{T6}
        s_cselect_b32 s{T4}, s{sY2}, s{sY0}
        s_bitcmp1_b32 vcc_lo, 8
        s_cselect_b32 s{P+1}, s{P+2}, s{P+1}
        s_cselect_b32 s{T6}, s{T5}, s{T6}
        s_cselect_b32 s{T5}, s{sY2}, s{sY1}""")
        gd = [gaf + 4 * i for i in range(4)] + [cbf + 4 * i for i in range(4)]
        lg.wait_all()
        for s in range(8):
            a(f'v_mfma_f32_16x16x32_bf16 {vr(gd[s], 4)}, {vr(xa, 4)}, {vr(ffn + 4*s, 4)}, 0')
        a(f"""s_andn2_b32 s{sROW0}, 2047, s{P}
        s_andn2_b32 s{sROW1}, 2047, s{P+1}""")
        p0, p1 = xb, xb + 2
        for p, b in ((p0, 0), (p1, 4)):
            a(f'v_add_f32 v{p}, v{gd[b]}, v{gd[b+1]+1}')
            a(f'v_add_f32 v{p+1}, v{gd[b+2]+2}, v{gd[b+3]+3}')
        a(f"""v_add_f32 v{p0}, v{p0}, v{p0+1}
        v_add_f32 v{p1}, v{p1}, v{p1+1}
        v_mov_b32 v{p0+1}, s{sTAG}
        v_permlane16_swap_b32 v{p1}, v{p1+1}
        s_cmp_ge_u32 s{sJ}, 28
        s_cbranch_scc1 L_NOHP
        v_add_f32 v{p0}, v{p0}, v{p1+1}
        s_mov_b32 exec_lo, 0xffff
        s_mov_b32 exec_hi, 0xffff""")
        self.bs(p0, 2, vT + 4, rWS, T7, 0, 'sc1', count=False)
        a("""s_mov_b64 exec, -1
        L_NOHP:""")
        self.stamp('Hpub')
        if not dn_late:
            for s in range(4): dn_read(s)
        for h in range(2):
            a(f"""v_cmp_eq_u32 vcc, s{T6}, v{vRt+h}
            s_and_b64 exec, vcc, -1
            s_cbranch_execz L_NOLO{h}""")
            self.bs(op + 4 * h, 4, vTa, rOUT, (T3, T2)[h], 0, o.get('outmod', ''), count=False)
            a(f'L_NOLO{h}:\ns_mov_b64 exec, -1')
        self.stamp('outst')
        fz, x1, st = g16 + 12, AV, kk
        a(f"""s_cmp_lg_u32 s{sRow}, 7
        s_cbranch_scc1 L_NONON
        v_mov_b32 v{vT+2}, s{sTAG}
        v_mov_b32 v{vT+3}, 0
        s_mov_b64 exec, 1""")
        self.bs(vT + 2, 1, vT + 3, rWS, '0', 0, 'sc1', count=False)
        a(f"""s_mov_b64 exec, -1
        L_NONON:
        s_cmp_ge_u32 s{sJ}, 28
        s_cbranch_scc1 L_FIN
        s_cmp_lg_u32 s{sWAVE}, 7
        s_cbranch_scc1 L_NOFZ""")
        a(f"""s_bitcmp1_b32 s{sJ}, 3
        s_cselect_b32 s{T2}, s{P+1}, s{P}
        s_cselect_b32 s{T4}, s{T5}, s{T4}
        s_andn2_b32 s{T5}, 2047, s{T2}""")
        S(T6, 'cb*4 + (x >> 1)')
        S(T7, '((T6 >> 1)*4 + (j >> 3)*2 + (T6 & 1))*(56*128) + GGR')
        S(sU, 'T5*2048 + T6*32')
        va(vT + 6, [(0, 3, 4)])
        S(T0, '(x >> 1)*64 + L_GB'); va(vT + 1, [(0, 3, 8)], T0)
        a(f'ds_read_b64 {vr(fz + 2, 2)}, v{vT+1}')
        S(sK1, '((((T4 ^ 0xf00) >> 8) & 15)*2 + (T4 & 1))*8192 + cb*512 + (x >> 1)*32 + XS')
        a(f"""s_lshr_b32 s{T0}, s{T2}, 11
        s_lshl_b32 s{T0}, s{T0}, 16
        s_ashr_i32 s{T2}, s{T0}, 31
        s_andn2_b32 s{T2}, 0x7fff0000, s{T2}
        s_or_b32 s{T2}, s{T2}, 0x80000000
        s_xor_b32 s{T0}, s{T0}, s{T2}
        v_mov_b32 v{fz}, s{T0}
        v_mul_f32 v{fz}, s{sL2E}, v{fz}
        v_exp_f32 v{fz}, -v{fz}
        v_add_f32 v{fz}, 1.0, v{fz}
        v_rcp_f32 v{fz}, v{fz}""")
        self.round1(fz)
        a('L_NOFZ:')
        a(f"""s_cmp_ge_u32 s{sWAVE}, 4
        s_cbranch_scc1 L_NOH""")
        S(T0, 'w*256 + T1')
        va(vT, [(4, 2, 2048), (0, 4, 16)])
        S(T2, 'w*32 + L_ACT'); va(vT + 1, [(5, 1, 128), (2, 1, 16), (1, 1, 8), (3, 1, 4), (0, 1, 2)], T2)
        q0 = list(vm.q)
        self.spoll([(q, 1, T0, q * 2048 + 1024 + 252) for q in range(4)], range(4))
        self.stamp('Hpre')
        g, u = x1, x1 + 4
        self.poll(lambda: [self.bl(x1 + 4 * m, 4, vT, rWS, T0, m * 1024, 'sc1') for m in range(2)], [g + 1, g + 3, u + 1, u + 3], vT + 2)
        a(f"""v_permlane32_swap_b32 v{g}, v{g+2}
        v_permlane32_swap_b32 v{u}, v{u+2}
        v_add_f32 v{g}, v{g}, v{g+2}
        v_add_f32 v{u}, v{u}, v{u+2}
        v_mov_b32 v{g+2}, v{g}
        v_mov_b32 v{u+2}, v{u}
        v_permlane16_swap_b32 v{g}, v{g+2}
        v_permlane16_swap_b32 v{u}, v{u+2}
        v_add_f32 v{g}, v{g}, v{g+2}
        v_add_f32 v{u}, v{u}, v{u+2}""")
        self.round2(g, u)
        self.silu(g, vT + 2)
        a(f"""v_mul_f32 v{g}, v{g}, v{u}
        v_cvt_pk_bf16_f32 v{g}, v{g}, v{g}
        ds_write_b16 v{vT+1}, v{g}
        L_NOH:""")
        vm.q = q0
        va(vT, [(2, 1, 128), (5, 1, 16)], None, L_ACT)
        va(vT + 1, [(4, 2, 56 * 128), (0, 4, 8)])
        S(T0, '(kq*8 + w)*(4*56*128) + fs*128 + GGR')
        va(vT + 2, [(0, 1, 2 * 4096), (1, 1, 64 * 4096)])
        S(T1, '((w & 1)*4 + (kq >> 1) + ((kq & 1)*4 + (w >> 1))*8)*4096 + x*64 + (j >> 2)*4 + INB + 3072')
        vm.wait('ffn')
        self.barrier()
        self.stamp('Hok')
        for s in range(4):
            self.r128(x1 + 4 * s, vT, s * 32, ('ac', s))
            if dn_late: dn_read(s, ('ac', s))
        for s in range(4):
            lg.wait(('ac', s))
            a(f'v_mfma_f32_32x32x16_bf16 {vr(hh, 16)}, {vr(x1 + 4*s, 4)}, {vr(fdn + 4*s, 4)}, ' + ('0' if s == 0 else vr(hh, 16)))
        a(f'v_mov_b32 v{hh+1}, s{sTAG}')
        self.bs(hh, 2, vT + 1, rWS, T0, 0, 'sc1')
        a('s_mov_b64 exec, 15')
        self.bs(hh + 1, 1, vT + 2, rWS, T1, 0, 'sc1')
        a('s_mov_b64 exec, -1')
        self.stamp('Gpub')
        a(f"""s_cmp_ge_u32 s{sJ}, 16
        s_cbranch_scc1 L_FIN""")
        self.inbox(6, 8, range(7))
        self.stamp('Gpre')
        a(f"""s_barrier
        s_cmp_lg_u32 s{sWAVE}, 7
        s_cbranch_scc1 L_FIN""")
        S(T0, 'T7 + 4096')
        gg = [x1 + 4 * i for i in range(7)]
        def g_ld():
            [self.bl(gg[n], 4, vL16, rWS, (T7, T0)[n >> 2], (n & 3) * 1024, 'sc1') for n in range(7)]
            self.bl(st, 1, vT + 6, rWS, sK1, 0, 'sc1'); self.bl(st + 1, 1, vT + 6, rWS, sK1, 128, 'sc1')
        def g_post():
            a(f'''v_max_u32 v{st+2}, v{st}, v{st+1}
            v_cmp_ne_u32 vcc, -1, v{st+2}
            v_cndmask_b32 v{st+2}, v{vT+2}, v{vT+1}, vcc''')
        a(f'v_mov_b32 v{vT+1}, s{sTAG}\nv_not_b32 v{vT+2}, v{vT+1}')
        self.poll(g_ld, [gg[n] + 1 + 2 * e for n in range(7) for e in range(2)] + [st + 2], vT, g_post)
        self.stamp('Gok')
        for n in range(1, 7):
            for e in (0, 2): a(f'v_add_f32 v{gg[0]+e}, v{gg[0]+e}, v{gg[n]+e}')
        y0, y1 = gg[0], gg[0] + 1
        a(f'v_mov_b32 v{y1}, v{gg[0]+2}')
        for y in (y0, y1): self.dpp('v_add_f32', y, y, y, 'row_ror:8')
        for sw in ('v_permlane16_swap_b32', 'v_permlane32_swap_b32'):
            for y in (y0, y1): a(f'v_mov_b32 v{y+2}, v{y}')
            for y in (y0, y1): a(f'{sw} v{y}, v{y+2}')
            self.pk('add', y0, y0, y0 + 2)
        self.round2(y0, y1)
        self.pk('mul', y0, y0, fz, bc=(1,))
        self.unpack(vT, vT + 1, st)
        self.round2(y0, y1)
        self.pk('add', y0, y0, vT)
        self.round2(y0, y1)
        self.pk('mul', y0, y0, fz + 2)
        self.unpack(vT, vT + 1, st + 1)
        self.round2(y0, y1)
        self.pk('add', y0, y0, vT)
        a(f'v_cvt_pk_bf16_f32 v{y0}, v{y0}, v{y1}')
        a('s_mov_b64 exec, 0xff')
        self.bs(y0, 1, vT + 6, rOUT, sU, 0, 'sc1')
        a('s_mov_b64 exec, -1')
        a('L_FIN:')

    def finish(self):
        a, S = self.a, self.S
        if self.o.get('dbg2'):
            S(T1, '(wg*8 + w)*32768 + 0x4000000'); self.vaa(vT, [(0, 6, 4)])
            for k, r in enumerate(list(range(72, 104)) + list(range(120, 136)) + list(range(176, 184))):
                if k % 16 == 0 and k: S(T1, 'T1 + 4096')
                self.bs(r, 1, vT, rWS, T1, (k % 16) * 256, '', 'dbg')
                if k % 16 == 15: self.vm.wait('dbg')
        if self.prof:
            a('s_waitcnt vmcnt(0) lgkmcnt(0)')
            self.stamp('end')
            a(f's_memrealtime {sr(sTM, 2)}')
            a('s_waitcnt lgkmcnt(0)')
            a(f'v_writelane_b32 v255, s{sTM}, 61')
            S(T0, '(wg*8 + w)*256 + STAMPS')
            a(f'v_writelane_b32 v255, s{sSPIN}, 62')
            a(f'v_lshlrev_b32 v{vT+1}, 2, v{vL}')
            a(f'buffer_store_dword v255, v{vT+1}, {sr(rWS, 4)}, s{T0} offen')
            S(T0, 'T0 + 0x100000')
            a(f'buffer_store_dword v254, v{vT+1}, {sr(rWS, 4)}, s{T0} offen')
        a('L_END:')
        a('s_endpgm')

    def pads(self):
        import subprocess, re
        a = self.a
        src = '.amdgcn_target "amdgcn-amd-amdhsa--gfx950"\n.text\n' + a.text().replace('CODE_KB', '20480')
        out = subprocess.run(['llvm-mc', '-triple=amdgcn-amd-amdhsa', '-mcpu=gfx950', '-show-encoding'], input=src, capture_output=True, text=True, check=True).stdout
        sizes = [len(m.split(',')) for m in re.findall(r'; encoding: \[([^\]]*)\]', out)]
        tour = next(i for i, x in enumerate(a.items) if x == ('raw', ';TOUR'))
        NT = 16
        addr = self.o['kofs']; full = True; k = 0; items = []; pads = []; page = 0
        for i, (kind, v) in enumerate(a.items):
            isins = kind == 'ins' or (kind == 'raw' and v.startswith('    s_'))
            if i == tour: items.append((kind, v)); addr += 4 * 48; continue
            if isins:
                if addr // 4096 > page and full and i > tour:
                    page = addr // 4096; pads.append(page)
                    items.append(('raw', f'L_PAD{page}:\n    s_cbranch_execz L_RET{page}')); addr += 4
                elif i < tour: page = addr // 4096
                addr += sizes[k]; k += 1
                if kind == 'ins' and ('s', 'exec_lo') in v.dst + [('s', 'exec_lo') if ('s', 'exec_hi') in v.dst else None]:
                    full = v.text.replace(' ', '') in ('s_mov_b64exec,-1', 's_mov_b32exec_hi,-1')
            items.append((kind, v))
        assert k == len(sizes), (k, len(sizes))
        t = ['s_mov_b64 exec, 0']
        chains = [pads[c::4] for c in range(4)]
        for c in range(4): t += [f's_cmp_eq_u32 s{sWAVE}, {4 + c}', f's_cbranch_scc1 L_PAD{chains[c][0]}']
        t.append('s_branch L_TEND')
        n = len(t)
        for ch in chains:
            for p, q in zip(ch, ch[1:] + [None]):
                t += [f'L_RET{p}:', f's_branch ' + (f'L_PAD{q}' if q else 'L_TEND')]; n += 1
        assert n <= 47
        t += ['s_nop 0'] * (47 - n) + ['L_TEND:', 's_mov_b64 exec, -1']
        j = items.index(('raw', ';TOUR'))
        items[j] = ('raw', '\n'.join(x if x.endswith(':') else '    ' + x for x in t))
        a.items = items

    def text(self):
        a = self.a
        npad = a.fix_hazards()
        errs = a.check_waits([NAME])
        for e in errs[:10]: print('WAITERR', e, file=sys.stderr)
        assert not errs
        if self.o['tour']: self.pads()
        hdr = open(os.path.join(os.path.dirname(os.path.abspath(__file__)), 'header.txt')).read()
        s = hdr + '; @launch grid=(256,1,1) block=(512,1,1) lds=163840\n'
        s += '.amdgcn_target "amdgcn-amd-amdhsa--gfx950"\n.text\n'
        s += f'.globl {NAME}\n.p2align {12 if self.o["al12"] else 8}\n.type {NAME},@function\n'
        body = a.text()
        import subprocess, tempfile
        with tempfile.TemporaryDirectory() as td:
            open(td + '/t.s', 'w').write('.amdgcn_target "amdgcn-amd-amdhsa--gfx950"\n.text\n' + body.replace('CODE_KB', '20480'))
            subprocess.run(['clang', '-x', 'assembler', '-target', 'amdgcn-amd-amdhsa', '-mcpu=gfx950', '-c', td + '/t.s', '-o', td + '/t.o'], check=True)
            subprocess.run(['llvm-objcopy', '-O', 'binary', '-j', '.text', td + '/t.o', td + '/t.bin'], check=True)
            size = os.path.getsize(td + '/t.bin')
        print('; code bytes', size, file=sys.stderr)
        s += body.replace('CODE_KB', str((size // 1024 + 1) * 1024))
        s += '.p2align 10\n.fill 768, 4, 0xbf800000\n'
        s += '.section .rodata,"a"\n' + kernel_desc(NAME, 256, 102)
        print(f'; nops {npad}, instrs {sum(1 for k, _ in a.items if k == "ins")}', file=sys.stderr)
        return s


if __name__ == '__main__':
    import argparse, json
    ap = argparse.ArgumentParser()
    ap.add_argument('-o', default='/dev/stdout')
    ap.add_argument('--prof', action='store_true')
    ap.add_argument('--opts', default='{}')
    args = ap.parse_args()
    g = Gen(args.prof, json.loads(args.opts)).build()
    t = g.text()
    open(args.o, 'w').write(t)
    if args.prof: open(args.o + '.stamps', 'w').write(json.dumps(g.stnames))
```

```python
import sys, os
sys.path.insert(0, os.path.dirname(os.path.abspath(__file__)))
from asm import *

NAME = 'adaLN_cond__linear_kernel_hedgehog__moe_arch_mod__prompt_kernel'

NONCE = 0x0
MODP2 = 0x020000
SINB = 0x040000
AINB = 0x080000
INB = 0x100000
HF = 0x400000
OF = 0x800000
ST = 0xC00000
XS = 0xD00000
UP = 0xD80000
HGR = 0x1400000
ZP = 0x1480000
GGR = 0x1500000
KVP = 0x1800000
KIN = 0x1C00000
STAMPS = 0x1600000
WS_BYTES = 268435456

REG = 49152
MISC = 147456
L_A1 = MISC
L_ST = MISC + 6144
L_MP = MISC + 8192
L_WPHI = MISC + 12288
L_KH = 0
L_QH = MISC + 4096
L_KVF = MISC
L_ZF = MISC + 8192
L_M2 = MISC + 9984
L_MD = MISC + 12288
L_K1 = MISC + 8704
L_K2 = MISC + 8832
L_ACT = MISC + 9216
L_GB = MISC + 9728
L_HV = 32768
L_PHK = 0
L_TR = 98304
L_GU = 0
L_DN = 65536
UR = 393216

SPIN_LIMIT = 200000

sWAVE, sTAG, sSPIN, sMASK, sL2E = 3, 4, 5, 6, 7
sX, sJ, sR1, sHP, sCB = 8, 9, 10, 11, 12
T0, T1, T2, T3, T4, T5, T6, T7 = 13, 14, 15, 16, 17, 18, 19, 20
sRT = 21
sCMP = 22
sPL = 24
rWS, rX, rW, rWO, rWM, rWG, rWU, rWD, rOUT = 32, 36, 40, 44, 48, 52, 56, 60, 64
KA = 68
pWPHI, pWR, pC = KA + 4, KA + 10, KA + 18
sK1, sK2, sROW0, sROW1, sFS, sKQ, sKH, sRB = 68, 69, 70, 71, 74, 75, 76, 77
sFG, sFD, sU, sW1K, sU0, sWB = 80, 81, 82, 83, 84, 85
sAB, sM2, sWO, sY0 = 88, 89, 90, 91
sINB, sRow, sY1, sY2 = 92, 93, 94, 95
sCM = 84
sC2 = 88
XT = (96, 97, 98, 99)
sTM = 100
ENV = dict(wg=2, w=sWAVE, x=sX, j=sJ, r1=sR1, hp=sHP, cb=sCB, rt=sRT, row=sRow, kh=sKH, rb=sRB, fs=sFS, kq=sKQ,
           w1k=sW1K, u=sU, fg=sFG, fd=sFD, u0=sU0, wb=sWB, ab=sAB, m2=sM2, wo=sWO, y0=sY0, y1=sY1, y2=sY2,
           k1=sK1, k2=sK2, row0=sROW0, row1=sROW1,
           T0=T0, T1=T1, T2=T2, T3=T3, T4=T4, T5=T5, T6=T6, T7=T7)

vL, vL16, vWd, vT = 1, 2, 3, 4
XR = 12
vB = 20
vS0, vS1 = 26, 27
RING = 28
AK, AV, AQ = 56, 88, 120
AR = 152
SP = 248


class Stream:
    def __init__(self, g): self.g, self.q, self.wake = g, [], 0
    def add(self, fn, v=0, l=0): self.q.append((v, l, fn))
    def sleep(self, k): self.q.append(('sleep', k, None))
    def until(self, n): self.q.append(('until', n, None))
    def cap(self, fn):
        a = self.g.a
        keep = a.items; a.items = []
        fn()
        body = a.items; a.items = keep
        run = []
        for it in body:
            i = it[1]
            assert it[0] == 'ins' and i.cls in ('valu', 'salu', 'mfma'), it
            run.append(it)
            if i.cls == 'salu': continue
            c = 8 if (i.cls == 'mfma' or i.is_trans or 'permlane' in i.mn) else 6 if i.mn.startswith(('v_fma', 'v_max3', 'v_min3', 'v_lshl_', 'v_bfe')) else 4.75 if i.mn.startswith('v_cvt') else 4
            self.q.append((c + (len(run) - 1), 0, (lambda r=run: a.items.extend(r)))); run = []
        if run: self.q.append((len(run), 0, (lambda r=run: a.items.extend(r))))
    def mark(self, name): self.q.append((0, 0, lambda: (self.g.marks.add(name), self.g.markn.append((name, self.g.cur[0])))))
    def pull(self, bud, full):
        n = self.g.cur[0]
        while self.q and n >= self.wake:
            v, l, fn = self.q[0]
            if v == 'sleep': self.wake = n + l; self.q.pop(0); continue
            if v == 'until': self.wake = max(n, l); self.q.pop(0); continue
            if l > bud[1]: return
            if v > bud[0] and bud[0] < full:
                bud[0] = -1; return
            self.q.pop(0); fn(); bud[0] -= v; bud[1] -= l


DEFAULTS = dict(wburst=(2, 1, 3, 0, 6, 3), LOOK=6, A00=6, A0=6, Apos=(5, 5, 5, 5, 5, 7, 7, 7, 6, 6),
                wsched={5: 'k10 v10', 6: 'k11 v11', 7: 'k12 v12', 8: 'k13 v13', 9: 'k14', 10: 'k15', 11: 'v14 v15', 12: 'q10 q11', 13: 'q12 q13', 14: 'q14 q15'},
                bA=271, bH=293, hh=0.25, hq=1.0, fA=4, woA=6, hgap=(40, 14), m2c=3, m2k3='(j & 1)*2 + 1', m2g=5, m2e=7, apos=0, hprio=3, qmid=8, qsplit=16, wowin=(2, 4, 4), AD2=8, LOOK2=7, earlyD=1, ocut=(0, 0, 1), pairw2=1, worot=1, fwin=(0, 0, 0, 2, 2, 4), prio=2, tour=1, al12=1, kofs=0x300)


class Gen:
    def __init__(self, prof=False, opts=None):
        self.a = Asm()
        self.vm = Counter(self.a, 'vmcnt', 63)
        self.lg = Counter(self.a, 'lgkmcnt', 15)
        self.marks = set(); self.markn = []
        self.vL = vL
        self.prof = prof
        self.nopk = False
        self.nst = 0
        self.stnames = []
        self.S = SExpr(self.a, ENV, {k: v for k, v in globals().items() if isinstance(v, int) and k.isupper() and k not in ENV}, XT)
        self.o = dict(DEFAULTS)
        if opts: self.o.update(opts)

    def bl(self, dst, n, voff, srd, soff, imm=0, mods='', tag=None):
        op = {1: 'dword', 2: 'dwordx2', 4: 'dwordx4'}[n]
        so = soff if isinstance(soff, str) else (sr(soff))
        self.a(f'buffer_load_{op} {vr(dst, n)}, v{voff}, {sr(srd, 4)}, {so} offen' + (f' offset:{imm}' if imm else '') + (' ' + mods if mods else ''))
        self.vm.issue(tag)
    def bs(self, src, n, voff, srd, soff, imm=0, mods='', tag=None, count=True):
        op = {1: 'dword', 2: 'dwordx2', 4: 'dwordx4'}[n]
        so = soff if isinstance(soff, str) else (sr(soff))
        self.a(f'buffer_store_{op} {vr(src, n)}, v{voff}, {sr(srd, 4)}, {so} offen' + (f' offset:{imm}' if imm else '') + (' ' + mods if mods else ''))
        if count: self.vm.issue(tag)
    def dma(self, voff, srd, soff, imm=0, mods='', tag=None):
        self.a(f'buffer_load_dwordx4 v{voff}, {sr(srd, 4)}, {sr(soff)} offen' + (f' offset:{imm}' if imm else '') + (' ' + mods if mods else '') + ' lds')
        self.vm.issue(tag)
    def dr(self, op, dst, n, addr, off=0, tag=None):
        assert 0 <= off < 65536, off
        self.a(f'{op} {vr(dst, n)}, v{addr}' + (f' offset:{off}' if off else ''))
        self.lg.issue(tag)
    def tr(self, dst, addr, off, tag=None): self.dr('ds_read_b64_tr_b16', dst, 2, addr, off, tag)
    def r128(self, dst, addr, off=0, tag=None): self.dr('ds_read_b128', dst, 4, addr, off, tag)
    def dw(self, op, addr, src, n, off=0, tag=None):
        assert 0 <= off < 65536, off
        self.a(f'{op} v{addr}, {vr(src, n)}' + (f' offset:{off}' if off else ''))
        self.lg.issue(tag)
    def barrier(self):
        self.lg.wait_all()
        self.a('s_barrier')
    def stamp(self, name):
        ex = self.o.get('exfil')
        if ex and name in ex[:2]:
            self.a(f's_memrealtime {sr(sTM, 2)}')
            self.lg.wait_all()
            self.a(f'v_writelane_b32 v255, s{sTM}, {1 + ex.index(name)}')
        if not self.prof: return
        only = self.o.get('only')
        if only and name not in only and name != 'end': return
        self.a(f's_memtime {sr(sTM, 2)}')
        self.a(f's_memrealtime s[0:1]')
        self.lg.wait_all()
        self.a(f'v_writelane_b32 v255, s{sTM}, {self.nst}')
        self.a(f'v_writelane_b32 v254, s0, {self.nst}')
        self.stnames.append(name)
        self.nst += 1
        assert self.nst <= 60
    def unpack(self, lo, hi, src):
        self.a(f'v_lshlrev_b32 v{lo}, 16, v{src}')
        self.a(f'v_and_b32 v{hi}, s{sMASK}, v{src}')
    def round1(self, r):
        self.a(f'v_cvt_pk_bf16_f32 v{r}, 0, v{r}')
    def round2(self, r0, r1):
        self.round1(r0); self.round1(r1)
    def round_list(self, regs):
        for r in regs: self.round1(r)
    def pk(self, op, d, s0, s1, s2=None, bc=(), neg=()):
        srcs = [s0, s1] + ([s2] if s2 is not None else [])
        if self.nopk:
            for h in range(2):
                t = []
                for k, r in enumerate(srcs):
                    kind, n = r if isinstance(r, tuple) else ('v', r)
                    t.append(('-' if k in neg else '') + f'{kind}{n if k in bc else n + h}')
                e64 = '' if op == 'fma' else ('_e64' if (neg or t[1][0] == 's') else '')
                self.a(f'v_{op}_f32{e64} v{d+h}, ' + ', '.join(t))
            return
        txt, sel, selhi = [], [], []
        for k, r in enumerate(srcs):
            kind, n = r if isinstance(r, tuple) else ('v', r)
            if k in bc:
                txt.append(f'{kind}[{n & ~1}:{(n & ~1) + 1}]'); sel.append(n & 1); selhi.append(n & 1)
            else:
                assert n % 2 == 0
                txt.append(f'{kind}[{n}:{n+1}]'); sel.append(0); selhi.append(1)
        assert d % 2 == 0
        m = ''
        if any(sel): m += ' op_sel:[' + ','.join(map(str, sel)) + ']'
        if not all(selhi): m += ' op_sel_hi:[' + ','.join(map(str, selhi)) + ']'
        if neg:
            ng = ','.join('1' if k in neg else '0' for k in range(len(srcs)))
            m += f' neg_lo:[{ng}] neg_hi:[{ng}]'
        self.a(f'v_pk_{op}_f32 v[{d}:{d+1}], ' + ', '.join(txt) + m)
    def dpp(self, op, d, s0, s1, ctl):
        self.a(f'{op}_dpp v{d}, v{s0}, v{s1} {ctl} row_mask:0xf bank_mask:0xf')
    def allreduce(self, v, t, op='v_add_f32', lo=True, b3=True):
        if lo:
            self.dpp(op, v, v, v, 'quad_perm:[1,0,3,2]')
            self.dpp(op, v, v, v, 'quad_perm:[2,3,0,1]')
            self.dpp(op, v, v, v, 'row_half_mirror')
        self.dpp(op, v, v, v, 'row_ror:8')
        self.a(f'v_mov_b32 v{t}, v{v}')
        self.a(f'v_permlane16_swap_b32 v{v}, v{t}')
        self.a(f'{op} v{v}, v{v}, v{t}')
        self.a(f'v_mov_b32 v{t}, v{v}')
        self.a(f'v_permlane32_swap_b32 v{v}, v{t}')
        self.a(f'{op} v{v}, v{v}, v{t}')
    def poll(self, loads, tagregs, tmp=None, post=None):
        a = self.a
        L, D = a.label('POLL'), a.label('PDONE')
        a(f'{L}:')
        loads()
        self.vm.wait_all()
        if post: post()
        if len(tagregs) == 1:
            a(f'v_cmp_ne_u32 vcc, s{sTAG}, v{tagregs[0]}')
        else:
            a(f'v_bitop3_b32 v{tmp}, v{tagregs[0]}, v{tagregs[1]}, s{sTAG} bitop3:0x7e')
            for t in tagregs[2:]: a(f'v_bitop3_b32 v{tmp}, v{tmp}, v{t}, s{sTAG} bitop3:0xf6')
            a(f'v_cmp_ne_u32 vcc, 0, v{tmp}')
        a(f's_cbranch_vccz {D}')
        a(f's_add_u32 s{sSPIN}, s{sSPIN}, 1')
        a(f's_cmp_lt_u32 s{sSPIN}, {SPIN_LIMIT}')
        a(f's_cbranch_scc1 {L}')
        a(f'{D}:')
    def weave(self, fn, extras):
        a = self.a
        keep = a.items; a.items = []
        fn()
        body = a.items; a.items = keep
        extras = list(extras); n = len(extras)
        for i, it in enumerate(body):
            while extras and (n - len(extras)) * len(body) <= i * n: extras.pop(0)()
            a.items.append(it)
        for e in extras: e()
    def tagcheck(self, tagregs, tmp):
        a = self.a
        if len(tagregs) == 1:
            a(f'v_cmp_ne_u32 vcc, s{sTAG}, v{tagregs[0]}')
        else:
            a(f'v_bitop3_b32 v{tmp}, v{tagregs[0]}, v{tagregs[1]}, s{sTAG} bitop3:0x7e')
            for t in tagregs[2:]: a(f'v_bitop3_b32 v{tmp}, v{tmp}, v{t}, s{sTAG} bitop3:0xf6')
            a(f'v_cmp_ne_u32 vcc, 0, v{tmp}')
    def try_load(self, loads, tagregs, tmp=None, between=None, pre=None):
        a = self.a
        n0 = len(self.vm.q)
        loads()
        self.vm.q[-1] = tg = ('try', a.label('T'))
        if between: between()
        self.vm.wait(tg)
        OK = a.label('TOK')
        self.tagcheck(tagregs, tmp)
        a(f's_cbranch_vccz {OK}')
        q, l = list(self.vm.q), list(self.lg.q)
        if pre: pre()
        self.poll(loads, tagregs, tmp)
        self.vm.q, self.lg.q = q, l
        a(f'{OK}:')
    def spoll(self, loads, checks, work=None):
        a = self.a
        L, C, D = a.label('SPOLL'), a.label('SCHK'), a.label('SDONE')
        def issue():
            for d, n, so, imm in loads:
                op = {1: 'dword', 2: 'dwordx2', 4: 'dwordx4', 8: 'dwordx8'}[n]
                a(f's_load_{op} {sr(sPL + d, n)}, {sr(rWS, 2)}, s{so} offset:{imm} glc')
        if work:
            issue(); work()
            a(f's_branch {C}')
        a(f'{L}:')
        issue()
        a(f'{C}:')
        a(f's_add_u32 s{sSPIN}, s{sSPIN}, 1')
        a(f's_cmp_ge_u32 s{sSPIN}, {SPIN_LIMIT}')
        self.lg.wait_all()
        a(f's_cbranch_scc1 {D}')
        for k in checks:
            a(f's_cmp_lg_u32 s{sPL + k}, s{sTAG}')
            a(f's_cbranch_scc1 {L}')
        a(f'{D}:')
    def inbox(self, box, n, checks=None, work=None):
        self.spoll([(0, n, sINB, box * 512)], range(n) if checks is None else checks, work)
    def va(self, dst, terms, sreg=None, const=0, tmp=None):
        a = self.a; vL = self.vL
        first = True
        for sh, bits, mult in terms:
            full = sh + bits >= 6
            src = vL
            t = dst if first else tmp
            if sh == 0 and full: pass
            elif full: a(f'v_lshrrev_b32 v{t}, {sh}, v{vL}'); src = t
            elif sh == 0: a(f'v_and_b32 v{t}, {(1 << bits) - 1}, v{vL}'); src = t
            else: a(f'v_bfe_u32 v{t}, v{vL}, {sh}, {bits}'); src = t
            p2 = mult & (mult - 1) == 0
            k = mult.bit_length() - 1
            if first:
                if p2 and sreg is not None: a(f'v_lshl_add_u32 v{dst}, v{src}, {k}, s{sreg}'); sreg = None
                elif p2 and k: a(f'v_lshlrev_b32 v{dst}, {k}, v{src}')
                elif p2:
                    if src != dst: a(f'v_mov_b32 v{dst}, v{src}')
                else: a(f'v_mul_u32_u24 v{dst}, {mult}, v{src}')
            else:
                assert p2
                a(f'v_lshl_add_u32 v{dst}, v{src}, {k}, v{dst}')
            first = False
        if sreg is not None: a(f'v_add_u32 v{dst}, s{sreg}, v{dst}')
        if const: a(f'v_add_u32 v{dst}, {const}, v{dst}')
    def push(self, vaddr, soff, nl, vtmp, lab, wave=0):
        a = self.a
        a(f's_cmp_lg_u32 s{sWAVE}, {wave}')
        a(f's_cbranch_scc1 {lab}')
        a(f'v_mov_b32 v{vtmp}, s{sTAG}')
        a(f's_mov_b32 exec_hi, 0')
        if nl < 32: a(f's_mov_b32 exec_lo, {(1 << nl) - 1}')
        self.bs(vtmp, 1, vaddr, rWS, soff, 0, 'sc1', count=False)
        a('s_mov_b64 exec, -1')
        a(f'{lab}:')
    def silu(self, v, t):
        a = self.a
        a(f'v_mul_f32 v{t}, s{sL2E}, v{v}')
        a(f'v_exp_f32 v{t}, -v{t}')
        a(f'v_add_f32 v{t}, 1.0, v{t}')
        a(f'v_rcp_f32 v{t}, v{t}')
        a(f'v_mul_f32 v{v}, v{v}, v{t}')
        self.round1(v)
    def gemv_ops(self, wregs, cregs, acc, t0, t1, packed):
        ops = []
        assert t0 % 2 == 0 and t1 == t0 + 1
        for i, (w, c) in enumerate(zip(wregs, cregs)):
            cp = f'v[{c & ~1}:{(c & ~1) + 1}]'
            for d in range(4):
                tt = t0 + 2 * (d & 1)
                ops.append(f'v_lshlrev_b32 v{tt}, 16, v{w+d}')
                ops.append(f'v_and_b32 v{tt+1}, s{sMASK}, v{w+d}')
                ac = f'v[{acc+2*d}:{acc+2*d+1}]'
                if not packed:
                    for h in range(2): ops.append(f'v_mul_f32 v{acc+2*d+h}, v{tt+h}, v{c}' if i == 0 else f'v_fmac_f32 v{acc+2*d+h}, v{tt+h}, v{c}')
                elif i == 0: ops.append(f'v_pk_mul_f32 {ac}, v[{tt}:{tt+1}], {cp} op_sel:[0,{c & 1}] op_sel_hi:[1,{c & 1}]')
                else: ops.append(f'v_pk_fma_f32 {ac}, v[{tt}:{tt+1}], {cp}, {ac} op_sel:[0,{c & 1},0] op_sel_hi:[1,{c & 1},1]')
        for i in range(4): ops.append(f'v_permlane32_swap_b32 v{acc+i}, v{acc+4+i}')
        for i in range(4): ops.append(f'v_add_f32 v{acc+i}, v{acc+i}, v{acc+4+i}')
        for i in range(2): ops.append(f'v_permlane16_swap_b32 v{acc+i}, v{acc+2+i}')
        for i in range(2): ops.append(f'v_add_f32 v{acc+i}, v{acc+i}, v{acc+2+i}')
        for i in range(2): ops.append(f'v_add_f32_dpp v{acc+i}, v{acc+i}, v{acc+i} row_ror:8 row_mask:0xf bank_mask:0xf')
        ops.append(f'v_mov_b32_dpp v{acc}, v{acc+1} quad_perm:[0,1,2,3] row_mask:0xf bank_mask:0xc')
        return ops
    def sum8(self, b):
        self.pk('add', b, b, b + 2); self.pk('add', b + 4, b + 4, b + 6); self.pk('add', b, b, b + 4)
        self.a(f'v_add_f32 v{b}, v{b}, v{b+1}')
    def softmax_pm(self, p, e, out, t, mid=None, part=0, split=0, stage=None):
        a = self.a
        mx, mn, u0, u1, s0, s1 = t, t + 1, t + 2, t + 3, t + 4, t + 6
        if part != 2:
            self.round_list([p + i for i in range(16)])
            a(f'v_max3_f32 v{mx}, v{p}, v{p+1}, v{p+2}')
            a(f'v_min3_f32 v{mn}, v{p}, v{p+1}, v{p+2}')
            for i in range(3, 15, 2):
                a(f'v_max3_f32 v{mx}, v{mx}, v{p+i}, v{p+i+1}')
                a(f'v_min3_f32 v{mn}, v{mn}, v{p+i}, v{p+i+1}')
            a(f'v_max_f32 v{u0}, v{mx}, v{p+15}')
            a(f'v_min_f32 v{u1}, v{mn}, v{p+15}')
            a(f'v_max_f32 v{mx}, v{mx}, v{p+15}')
            a(f'v_min_f32 v{mn}, v{mn}, v{p+15}')
            a(f'v_permlane32_swap_b32 v{mx}, v{u0}')
            a(f'v_permlane32_swap_b32 v{mn}, v{u1}')
            a(f'v_max_f32 v{mx}, v{mx}, v{u0}')
            a(f'v_min_f32 v{mn}, v{mn}, v{u1}')
            self.pk('mul', mx, mx, ('s', sL2E), bc=(1,))
            for i in range(0, 16, 2):
                self.pk('fma', e + i, p + i, ('s', sL2E), mx, bc=(1, 2), neg=(2,))
                self.pk('fma', p + i, p + i, ('s', sL2E), mn, bc=(1, 2), neg=(0,))
        for i in range(split if part == 2 else 0, 16):
            if mid and i == mid[0]: mid[1]()
            if part == 1 and i == split: return
            a(f'v_exp_f32 v{e+i}, v{e+i}')
            a(f'v_exp_f32 v{p+i}, v{p+i}')
        self.pk('add', s0, e, e + 2); self.pk('add', s1, p, p + 2)
        for i in range(4, 16, 2):
            self.pk('add', s0, s0, e + i); self.pk('add', s1, s1, p + i)
        a(f'v_add_f32 v{u0}, v{s0}, v{s0+1}')
        a(f'v_add_f32 v{u1}, v{s1}, v{s1+1}')
        a(f'v_add_f32 v{mx}, v{s0}, v{s0+1}')
        a(f'v_add_f32 v{mn}, v{s1}, v{s1+1}')
        a(f'v_permlane32_swap_b32 v{mx}, v{u0}')
        a(f'v_permlane32_swap_b32 v{mn}, v{u1}')
        self.pk('add', mx, mx, u0)
        a(f'v_rcp_f32 v{mx}, v{mx}')
        a(f'v_rcp_f32 v{mn}, v{mn}')
        for i in range(0, 16, 2):
            self.pk('mul', e + i, e + i, mx, bc=(1,))
            self.pk('mul', p + i, p + i, mn, bc=(1,))
        for i in range(8): a(f'v_cvt_pk_bf16_f32 v{out+i}, v{e+2*i}, v{e+2*i+1}')
        for i in range(8): a(f'v_cvt_pk_bf16_f32 v{out+8+i}, v{p+2*i}, v{p+2*i+1}')
    def ln_stats(self, xp, t, m_out, sd_out, fill=()):
        a = self.a
        fill = list(fill)
        def pad(n):
            for _ in range(n):
                if fill: a(fill.pop(0))
        s, u = t, t + 4
        a(f'v_mov_b32 v{u}, 0x3f803f80')
        for i in range(8):
            k = 2 * (i & 1)
            a(f'v_dot2_f32_bf16 v{s+k}, v{xp+i}, v{u}, ' + ('0' if i < 2 else f'v{s+k}'))
            a(f'v_dot2_f32_bf16 v{s+k+1}, v{xp+i}, v{xp+i}, ' + ('0' if i < 2 else f'v{s+k+1}'))
        pad(3)
        self.pk('add', s, s, s + 2)
        for ctl in ('quad_perm:[1,0,3,2]', 'quad_perm:[2,3,0,1]', 'row_half_mirror', 'row_ror:8'):
            pad(2 if ctl.endswith('3,2]') else 1)
            self.dpp('v_add_f32', s, s, s, ctl); self.dpp('v_add_f32', s + 1, s + 1, s + 1, ctl)
        pad(2)
        a(f'v_permlane16_swap_b32 v{s}, v{s+1}')
        a(f'v_add_f32 v{u}, v{s}, v{s+1}')
        a(f'v_add_f32 v{s}, v{s}, v{s+1}')
        pad(2)
        a(f'v_permlane32_swap_b32 v{s}, v{u}')
        a(f'v_add_f32 v{s}, v{s}, v{u}')
        a(f'v_mul_f32 v{u}, 0x3a800000, v{s}')
        a(f'v_mul_f32 v{s}, 0x3a800000, v{s}')
        pad(2)
        a(f'v_permlane16_swap_b32 v{s}, v{u}')
        a(f'v_fma_f32 v{sd_out}, -v{s}, v{s}, v{u}')
        a(f'v_cvt_pk_bf16_f32 v{m_out}, 0, v{s}')
        a(f'v_max_f32 v{sd_out}, 0, v{sd_out}')
        self.round1(sd_out)
        a(f'v_add_f32 v{sd_out}, 0x3727c5ac, v{sd_out}')
        self.round1(sd_out)
        a(f'v_sqrt_f32 v{sd_out}, v{sd_out}')
        pad(99)
        self.round1(sd_out)

    def build(self):
        self.front()
        self.gemm1()
        self.middle()
        self.gemm2()
        self.tail()
        self.finish()
        return self

    def vaa(self, dst, terms, sreg=None, const=0): self.va(dst, terms, sreg, const, vT + 5)

    def front(self):
        a, vm, lg, o, S, va = self.a, self.vm, self.lg, self.o, self.S, self.vaa
        E2 = range(0, 16, 2)
        a(f'{NAME}:')
        a(f's_load_dwordx16 {sr(KA, 16)}, s[0:1], 0')
        a(f's_load_dwordx8 {sr(KA + 16, 8)}, s[0:1], 64')
        a(f's_load_dwordx2 {sr(rWS, 2)}, s[0:1], 104')
        a('s_cmp_ge_u32 s2, 256')
        a('s_cbranch_scc1 L_END')
        if self.prof:
            a(f's_memrealtime {sr(sCMP, 2)}')
            a(f's_memtime {sr(sTM, 2)}')
            a('v_mov_b32 v255, 0')
            a('v_mov_b32 v254, 0')
            self.stnames.append('start'); self.nst = 1
        if o.get('exfil'): a(f's_memrealtime {sr(sTM, 2)}')
        a(f"""v_lshrrev_b32 v{vT}, 6, v0
        v_and_b32 v{vL}, 63, v0
        s_nop 0
        v_readfirstlane_b32 s{sWAVE}, v{vT}
        v_lshlrev_b32 v{vL16}, 4, v{vL}""")
        for srd, size in ((rX, 4194304), (rWM, 12582912), (rWS, WS_BYTES), (rW, 6291456), (rWO, 2097152), (rWG, 7340032), (rWU, 7340032), (rWD, 7340032), (rOUT, 4194304)):
            a(f's_mov_b32 s{srd+2}, {size}')
            a(f's_mov_b32 s{srd+3}, 0x20000')
        a(f"""s_mov_b32 s{sSPIN}, 0
        s_mov_b32 s{sMASK}, 0xffff0000
        s_mov_b32 s{sL2E}, 0x3fb8aa3b""")
        S(sX, 'wg & 7'); S(sJ, 'wg >> 3')
        S(sRow, '(x*32 + j)*8 + w')
        S(sR1, '(x & 4)*2 + (j >> 2)'); S(sHP, '(x & 3)*4 + ((j & 3) ^ q)', q=o.get('hpx', 2))
        S(sCB, '(x & 1)*8 + (j & 7)')
        S(sRT, '(x >> 1)*4 + (j >> 3)')
        S(sINB, '(wg*64 + w)*64 + INB')
        xs_raw, wm, cv, st, acc, xs, mp, hp = AR, AR + 8, AR + 16, AR + 20, AR + 24, AR + 32, AR + 48, AR + 64
        vWM, vCo, vL8, vL32S, vGA, vXT = SP, SP + 1, SP + 2, SP + 3, SP + 4, vT + 6
        self.vWM, self.vL8, self.vL32S, self.vGA = vWM, vL8, vL32S, vGA
        S(T3, 'row*2048')
        S(T2, '(x*8 + w)*32')
        S(T0, 'T2*6144 + (j ^ 1)*128'); S(T1, 'T0 + 8*12288')
        S(T5, '(rt*8 + w)*32768 + cb*128')
        S(T4, '(((x >> 1)*16 + cb)*16 + w)*512 + AINB')
        va(vWM, [(3, 3, 12288), (0, 3, 16)])
        va(vCo, [(3, 3, 2)], T2)
        va(vXT, [(0, 4, 2048), (4, 2, 16)])
        a('s_waitcnt lgkmcnt(0)')
        if self.prof:
            a(f'v_writelane_b32 v255, s{sTM}, 0')
            a(f'v_writelane_b32 v255, s{sCMP}, 63')
            a(f'v_writelane_b32 v254, s{sCMP}, 0')
        if o.get('exfil'):
            for k in range(3): a(f'v_writelane_b32 v255, s{sTM}, {k}')
        self.stamp('karg')
        a(f's_mov_b64 {sr(rX, 2)}, {sr(KA, 2)}')
        self.bl(xs_raw, 4, vL16, rX, T3, 0, '', 'xs')
        self.bl(xs_raw + 4, 4, vL16, rX, T3, 1024, '', 'xs')
        a(f's_load_dword s{sTAG}, {sr(rWS, 2)}, {NONCE}')
        a(f's_mov_b64 {sr(rWM, 2)}, {sr(KA + 20, 2)}')
        a(f's_load_dword s{sPL}, {sr(rWS, 2)}, s{sINB} offset:0 glc')
        for q in range(2): a(f's_load_dword s{sPL + 1 + q}, {sr(rWS, 2)}, s{T4} offset:{q * 4096 + 508} glc')
        a(f'global_load_ushort v{cv}, v{vCo}, {sr(pC, 2)}'); vm.issue('c')
        a(f'global_load_ushort v{cv+1}, v{vCo}, {sr(pC, 2)} offset:16'); vm.issue('c')
        a('s_barrier')
        self.bl(wm, 4, vWM, rWM, T0, 0, 'nt', 'wm')
        self.bl(wm + 4, 4, vWM, rWM, T1, 0, 'nt', 'wm')
        for srd, k in ((rW, 2), (rWO, 6), (rWG, 12), (rWU, 14), (rWD, 16), (rOUT, 22)):
            a(f's_mov_b64 {sr(srd, 2)}, {sr(KA + k, 2)}')
        a(f"""s_getpc_b64 {sr(sCMP, 2)}
        s_and_b32 s{sCMP}, s{sCMP}, 0xfffffc00""")
        S(T6, '(j*8 + w)*128')
        va(vT, [(5, 1, 32768)], T6)
        a(f'v_min_u32 v{vT}, CODE_KB, v{vT}')
        a(f'global_load_dword v{vT+7}, v{vT}, {sr(sCMP, 2)}'); vm.issue()
        S(sKH, 'w >> 2'); S(sRB, 'w & 3'); S(sW1K, 'w*1024')
        S(sFS, 'x*7 + (j >> 2)'); S(sKQ, 'j & 3')
        va(vT + 2, [(4, 1, 64)]); va(vWd, [(0, 3, 16)])
        a(f'v_xor_b32 v{vWd}, v{vWd}, v{vT+2}'); va(vT + 2, [(3, 3, 6144)]); a(f'v_add_u32 v{vWd}, v{vWd}, v{vT+2}')
        S(sU0, o.get('u0', 'j & 12')); S(sWB, 'w*49152 + hp*128')
        wq = self.wq = [(n, t) for n in range(6) for t in 'kvq']
        def w_next(cnt=1):
            for _ in range(cnt):
                n, t = wq.pop(0)
                if t == 'k':
                    if n < 4:
                        S(sY1, '((j >> 4)*2) ^ n', n=n)
                        S(sY0, '((y1 + u0) & 15)*UR + wb'); S(sY1, 'y1*8192 + w1k')
                    else:
                        S(sY0, '((u0 + n) & 15)*UR + wb', n=n); S(sY1, 'w1k + q', q=n * 8192)
                S(sU, 'y0 + q', q=dict(q=0, k=2048, v=4096)[t]); S('m0', 'y1 + q', q='kvq'.index(t) * REG)
                self.dma(vWd, rW, sU, 0, '', ('W', min(n, 3) if n < 4 else n))
        wb = list(o['wburst'])
        va(vL8, [(0, 6, 8)])
        va(vL32S, [(0, 6, 32)], None, MISC)
        S(T0, 'w*4 + MISC')
        va(vGA, [(4, 2, 64), (0, 3, 256), (3, 1, 32)], T0)
        self.stamp('issued')
        vm.wait('xs')
        self.stamp('xsok')
        self.ln_stats(xs_raw, vT, st, st + 1)
        S(T0, 'w*8 + L_ST')
        a(f"""s_waitcnt lgkmcnt(0)
        s_mul_i32 s{sTAG}, s{sTAG}, 0x9e3779b1
        s_add_u32 s{sTAG}, s{sTAG}, 0x7f4a7c15
        v_lshrrev_b32 v{st}, 16, v{st}
        v_or_b32 v{st}, v{st}, v{st+1}
        v_mov_b32 v{st+1}, s{sTAG}
        v_mov_b32 v{vT}, s{T0}""")
        self.dw('ds_write_b64', vT, st, 2)
        va(vT + 1, [(0, 2, 16)], None, L_ST)
        va(vT, [(0, 2, 16), (2, 1, 1024)])
        S(T0, '((x & 6) + ((x & 1)*2 + (j >> 4))*64 + w*8)*1024 + (j & 15)*64 + SINB')
        self.barrier()
        self.r128(st, vT + 1)
        lg.wait_all()
        a('s_mov_b64 exec, 0xff')
        self.bs(st, 4, vT, rWS, T0, 0, 'sc1')
        a('s_mov_b64 exec, -1')
        self.stamp('A2pub')
        self.bl(XR, 4, vXT, rX, T5, 0, '', 'xt')
        self.bl(XR + 4, 4, vXT, rX, T5, 64, '', 'xt')
        S(T0, 'hp*4096 + w*512')
        a(f'v_add_u32 v{vT}, s{T0}, v{vL16}')
        S('m0', 'w*512 + L_WPHI')
        a('s_mov_b32 exec_hi, 0')
        a(f'global_load_lds_dwordx4 v{vT}, {sr(pWPHI, 2)}'); vm.issue()
        a('s_mov_b32 exec_hi, -1')
        w_next(wb[0])
        vm.wait('c')
        for i in range(2):
            a(f'v_lshlrev_b32 v{cv+i}, 16, v{cv+i}')
            self.silu(cv + i, vT + i)
        S(T0, '((((w >> 1)*16 + ((j ^ 1) & 15))*2 + (j >> 4))*8 + x)*512 + AINB')
        S(T1, '(wg*8 + w)*128 + SINB')
        va(vT + 4, [(0, 4, 8)])
        vm.wait('wm')
        self.stamp('wmok')
        for s in self.gemv_ops([wm, wm + 4], [cv, cv + 1], acc, vT, vT + 1, True): a(s)
        self.dw('ds_write_b32', vGA, acc, 1, L_A1 - MISC)
        self.barrier()
        def a1_pub():
            a(f'ds_read_b128 {vr(acc, 4)}, v{vL32S} offset:{L_A1 - MISC}')
            a(f'ds_read_b128 {vr(acc + 4, 4)}, v{vL32S} offset:{L_A1 - MISC + 16}')
            a('s_waitcnt lgkmcnt(0)')
            self.sum8(acc)
            a(f'v_mov_b32 v{acc+1}, s{sTAG}')
            a(f"""s_bitcmp1_b32 s{sWAVE}, 0
            s_cselect_b32 exec_lo, 0, -1
            s_cselect_b32 exec_hi, -1, 0""")
            self.bs(acc, 2, vL8, rWS, T0, 0, 'sc1')
            a('s_mov_b64 exec, -1')
            self.stamp('A1pub')
        st_pre = lambda: self.spoll([(q, 1, T1, q * 64 + 60) for q in range(2)], range(2))
        st_ld = lambda: self.bl(st, 2, vT + 4, rWS, T1, 0, 'sc1')
        self.try_load(st_ld, [st + 1], None, lambda: (a1_pub(), w_next(wb[1])), st_pre)
        self.stamp('statok')
        def xhat_work():
            for p, q in ((0, 2), (1, 3), (4, 6), (5, 7)): a(f'v_permlane32_swap_b32 v{XR+p}, v{XR+q}')
            self.unpack(st + 1, st, st)
            a(f'v_rcp_f32 v{st}, v{st}')
            for i in range(8): self.unpack(xs + 2 * i, xs + 2 * i + 1, XR + i)
            for i in E2: self.pk('add', xs + i, xs + i, st + 1, bc=(1,), neg=(1,))
            self.round_list([xs + i for i in range(16)])
            for i in E2: self.pk('mul', xs + i, xs + i, st, bc=(1,))
            self.round_list([xs + i for i in range(16)])
        va(vT, [(0, 5, 16), (5, 1, 4096)])
        S(T0, 'T4')
        S(T1, 'w*4 + L_MP'); va(vT + 1, [(0, 6, 64)], T1)
        va(vT + 2, [(0, 2, 32), (5, 1, 128), (4, 1, 256), (2, 2, 512)], None, L_MP)
        self.spoll([(q, 1, T0, q * 4096 + 508) for q in range(2)], range(2), work=xhat_work)
        self.stamp('apre')
        a('s_barrier')
        self.try_load(lambda: self.bl(st, 4, vT, rWS, T0, 0, 'sc1'), [st + 1, st + 3], vT + 3, lambda: w_next(wb[2]))
        self.stamp('modok')
        a(f'ds_write2_b32 v{vT+1}, v{st}, v{st+2} offset0:0 offset1:8'); lg.issue()
        self.barrier()
        for i in (2, 3, 0, 1): self.r128(mp + 4 * i, vT + 2, (i >> 1) * 2048 + (i & 1) * 16, i >> 1)
        w_next(wb[3])
        S(T0, '((rt*16 + cb)*4 + (w >> 1))*4096 + (w & 1)*256 + HF')
        va(vT, [(0, 4, 16), (4, 1, 1024), (5, 1, 512)])
        lg.wait(1); self.sum8(mp + 8)
        self.round1(mp + 8)
        lg.wait(0); self.sum8(mp)
        a(f'v_add_f32 v{mp+8}, 1.0, v{mp+8}')
        self.round2(mp + 8, mp)
        for h in range(2):
            rg = range(8 * h, 8 * h + 8)
            for i in rg: self.dpp('v_mul_f32', xs + i, mp + 8, xs + i, f'row_newbcast:{i}')
            self.round_list([xs + i for i in rg])
            for i in rg: self.dpp('v_add_f32', xs + i, mp, xs + i, f'row_newbcast:{i}')
            for i in range(4 * h, 4 * h + 4): a(f'v_cvt_pk_bf16_f32 v{hp+i}, v{xs+2*i}, v{xs+2*i+1}')
            self.bs(hp + 4 * h, 4, vT, rWS, T0, 2048 * h, 'sc1', 'hs')
        self.stamp('hst')
        va(vB, [(2, 2, 128), (3, 1, 64), (4, 1, 32), (0, 2, 8), (5, 1, 512)])
        a(f'v_xor_b32 v{vB+1}, 64, v{vB}')
        for q in (1, 2):
            for h in range(2): a(f'v_add_u32 v{vB+2*q+h}, {q*REG}, v{vB+h}')
        va(vT + 1, [(0, 2, 8 * 4096), (2, 2, 4096)])
        S(T0, '((rt >> 3)*4 + (rt & 7)*32)*4096 + (cb >> 1)*64 + (cb & 1)*4 + INB')
        S(sAB, 'r1*262144 + rb*4096 + HF')
        a(f"""s_cmp_ge_u32 s{sJ}, {0 if o.get('noffn') else 28}
        s_cselect_b32 s{rWG+2}, 0, s{rWG+2}
        s_cselect_b32 s{rWU+2}, 0, s{rWU+2}
        s_cselect_b32 s{rWD+2}, 0, s{rWD+2}""")
        vm.wait('hs')
        a('s_barrier')
        self.push(vT + 1, T0, 16, vT + 2, 'L_PB')
        self.stamp('hpub')
        w_next(wb[4])
        vWo, vFG, vFD = vS0, vS1, SP + 5
        def setup():
            S(sWO, 'w*16384 + cb*128'); S(sY2, '((j & 1)*8 + (j >> 3)*2)*131072' if o['worot'] else '(j & 1)*1048576')
            S(sFG, '(kq*8 + w)*(32*7168) + fs*128'); S(sFD, '(fs*8 + w)*16384 + kq*512')
            S(sM2, '((x & 3)*8 + w)*(32*12288) + (j*2 + (x >> 2))*128 + 4096')
            S(T1, '(w & 1)*64')
            va(vT + 2, [(4, 1, 32)], T1); va(vWo, [(0, 3, 16)])
            a(f'v_xor_b32 v{vWo}, v{vWo}, v{vT+2}'); va(vT + 2, [(3, 3, 2048)]); a(f'v_add_u32 v{vWo}, v{vWo}, v{vT+2}')
            S(T1, '(w & 2)*32'); va(vT + 2, [(4, 1, 32)], T1); va(vFG, [(0, 3, 16)])
            a(f'v_xor_b32 v{vFG}, v{vFG}, v{vT+2}'); va(vT + 2, [(3, 3, 7168)]); a(f'v_add_u32 v{vFG}, v{vFG}, v{vT+2}')
            S(T1, '(w & 1)*128')
            va(vT + 2, [(5, 1, 64)], T1); va(vFD, [(0, 5, 16), (5, 1, 2048)])
            a(f'v_xor_b32 v{vFD}, v{vFD}, v{vT+2}')
            S(T3, 'u0*16384'); a(f'v_add_u32 v{vCo}, s{sAB}, v{vL16}')
            S(T1, 'rb*2048 + L_QH'); a(f'v_add_u32 v0, s{T1}, v{vL16}')
        S(T6, 'wg*4096 + INB'); S(T7, '(w & 3)*128 + T6'); S(T6, 'u0*32 + T6')
        a(f's_cmp_ge_u32 s{sWAVE}, 4\ns_cselect_b32 s{T6}, s{T7}, s{T6}')
        self.spoll([(0, 2, T6, 0), (2, 2, T6, 64)], range(4), lambda: (w_next(wb[5]), setup(), a(';TOUR')))
        assert len(wq) % 3 == 0 and len(wq) <= 6

    def gemm1(self):
        a, vm, lg, o, S, va = self.a, self.vm, self.lg, self.o, self.S, self.vaa
        LOOK = o['LOOK']; NB = LOOK + 1; assert NB <= 7
        vWo, vFG, vFD, vHo = vS0, vS1, SP + 5, 0
        self.vWo, self.vFG, self.vFD = vWo, vFG, vFD
        m2w, m2c = AV, AV + 24
        FL = self.FL = AK
        cur = self.cur = [0]
        TOK = [(0, 3, 16), (3, 2, 256), (5, 1, 128)]
        def cvt8(d, s_):
            for i in range(8): a(f'v_cvt_pk_bf16_f32 v{d+i}, v{s_+2*i}, v{s_+2*i+1}')
        self.cvt8 = cvt8
        fq = self.fq = [(m, i) for m in range(3) for i in range(4)]
        held = self.held = ([], [])
        def f_src(m, i, far=0):
            q = (i * 8 * 7168 + far * 4 * 32 * 7168, i * 4096 + far * 4 * 16384)[m == 2]
            S(sU, ('fg', 'fd')[m == 2] + ' + q', q=q & 0xffffffff)
            return (vFG, (rWG, rWU)[m]) if m < 2 else (vFD, rWD)
        def f_lds(m, i): return (L_GU + m * 32768 if m < 2 else L_DN) + i * 1024
        def f_ld(g, k, far, count=True):
            m, i = held[g][k]
            v, r = f_src(m, i, far * (1 - 2 * g))
            a(f'buffer_load_dwordx4 {vr(FL + 8*k + 4*far, 4)}, v{v}, {sr(r, 4)}, s{sU} offen nt')
            if count: vm.issue('ffn')
        def ffn_reg(n=1, g=0):
            if not n: return
            L = a.label('L_FH')
            a(f's_cmp_{"ge" if g == 0 else "lt"}_u32 s{sWAVE}, 4\ns_cbranch_scc1 {L}')
            for _ in range(n):
                held[g].append(fq.pop(0)); assert len(held[g]) <= 4
                for far in range(2): f_ld(g, len(held[g]) - 1, far, False)
            a(f'{L}:')
        def ffn_dma(n=1):
            for _ in range(n):
                m, i = fq.pop(0)
                v, r = f_src(m, i)
                S('m0', 'w1k*4 + q', q=f_lds(m, i))
                self.dma(v, r, sU, 0, 'nt', 'ffn')
        self.ffn_reg, self.ffn_dma, self.f_lds = ffn_reg, ffn_dma, f_lds
        for _ in range(o['fA']): held[1].append(fq.pop(0))
        def m2_ld(i):
            if i == 0:
                S(sU, '((x & 3)*8 + w)*64'); self.va(m2c + 4, [(3, 3, 2)], sU, 0, m2c + 5)
                for k in range(4): a(f'global_load_ushort v{m2c+k}, v{m2c+4}, {sr(pC, 2)} offset:{16*k}'); vm.issue('m2')
            S(sU, 'm2 + q', q=i * 8 * 12288)
            self.bl(m2w + 4 * i, 4, self.vWM, rWM, sU, 0, 'nt', 'm2')
        wslot = lambda p: p
        def wo_dma(p, back=0):
            S(sU, '(y2 ^ q) + wo' + (' - 65536' if back else ''), q=p * 131072)
            S('m0', 'w1k + q', q=wslot(p) * 8192 - 4096 * back)
            self.dma(vWo, rWO, sU, 0, '', 'wo')
        self.wo_dma = wo_dma
        def poison():
            a(f'v_mov_b32 v{vT}, -1\nv_mov_b32 v{vT+1}, -1\nv_mov_b32 v{vT+2}, -1\nv_mov_b32 v{vT+3}, -1')
            for back in range(2):
                S(T1, '((rt*8 + w - q)*16 + cb)*256 + ST', q=4 * back); va(vT + 4, [(0, 6, 4)])
                self.bs(vT, 1, vT + 4, rWS, T1, 0, 'sc1')
            S(T1, 'rt*16384 + cb*512 + XS'); va(vT + 4, [(0, 5, 16), (5, 1, 8192)])
            a(f's_cmp_lg_u32 s{sWAVE}, 5\ns_cbranch_scc1 L_NOPO')
            self.bs(vT, 4, vT + 4, rWS, T1, 0, 'sc1', count=False)
            a('L_NOPO:')
        seq = []
        for sg in range(36): seq += [(t, h, sg) for t in 'kqv' for h in range(2)]
        for sg in range(36, 40): seq += [('k', h, sg) for h in range(2)]
        for sg in range(36, 40): seq += [(t, h, sg) for t in 'qv' for h in range(2)]
        for h in range(2): seq += [('k', h, sg) for sg in range(40, 64)]
        for t in 'vq':
            for sg in range(40, 64): seq += [(t, h, sg) for h in ((1, 0) if (t, sg) == ('q', 63) else (0, 1))]
        bA, bH, bQ = o['bA'], o['bH'], 335
        assert bA >= 271
        bars = [24 * k - 1 for k in range(1, 10)] + [223, 239, 253, bA, bH, bQ]
        first, last = {}, {}
        for n, (t, h, sg) in enumerate(seq):
            first.setdefault(f'{t}{sg >> 2}', n); last[f'{t}{sg >> 2}'] = n; last[('A', sg)] = n
        a(f"""s_cmp_ge_u32 s{sWAVE}, 4
        s_cbranch_scc1 L_HELP
        s_setprio {o['prio']}""")
        q_hok = list(vm.q)
        ACC = dict(k=AK, v=AV, q=AQ)
        nxt = [0]; late = []
        def a_load():
            while late: a(late.pop(0))
            sg = nxt[0]; nxt[0] += 1
            if o.get('noA') and sg >= 12: return
            self.bl(AR + 4 * (sg % 24), 4, SP + 1, rWS, T3, (sg % 4) * 1024, 'sc1', ('A', sg))
            if sg % 4 == 3: late.extend([f's_add_u32 s{T3}, s{T3}, 16384', f's_and_b32 s{T3}, s{T3}, 0x3ffff'])
        def b_read(n):
            t, h, sg = seq[n]
            s = sg & 3
            off = ((sg >> 2) % 6) * 8192 + (s >> 1) * 4096 + (s & 1) * 1024
            d = RING + 4 * (n % NB); v = vB + 2 * 'kvq'.index(t) + h
            self.tr(d, v, off, ('B', n)); self.tr(d + 2, v, off + 2048, ('B', n))
        self.nopk = True
        stk, stv = Stream(self), Stream(self)
        for h in range(2):
            for q in range(2):
                stk.cap(lambda: [a(f'v_cvt_pk_bf16_f32 v{AK+16*h+4*q+i}, v{AK+16*h+8*q+2*i}, v{AK+16*h+8*q+2*i+1}') for i in range(4)])
                stk.add(lambda h=h, q=q: self.dw('ds_write_b128', vHo, AK + 16 * h + 4 * q, 4, q * 1024, f'kh{h}'), 0, 1)
            stk.mark(f'kh{h}')
            if h == 0:
                stk.cap(lambda: a(f'v_subrev_u32 v{vHo}, {L_QH - L_HV}, v{vHo}'))
                stk.until(289)
        stk.until(bH + 1)
        stk.cap(lambda: (S(T1, 'rb*2048 + L_HV'), self.va(vHo, TOK, T1, 0, vT)))
        for h in range(2):
            for q in range(2):
                stv.cap(lambda: [a(f'v_cvt_pk_bf16_f32 v{AV+16*h+4*q+i}, v{AV+16*h+8*q+2*i}, v{AV+16*h+8*q+2*i+1}') for i in range(4)])
                stv.add(lambda h=h, q=q: self.dw('ds_write_b128', vHo, AV + 16 * h + 4 * q, 4, h * 8192 + q * 1024, 'vst'), 0, 1)
        if o['m2c'] == 0:
            stv.sleep(4)
            stv.add(lambda: lg.wait('vst'))
            for i in range(4): stv.add(lambda i=i: m2_ld(i), 0, 1); stv.sleep(o.get('fgap', 4))
        while nxt[0] < o['A00']: a_load()
        vm.wait(('W', 3))
        a('s_barrier')
        self.stamp('hok')
        if not nxt[0]: a_load()
        for n in range(LOOK): b_read(n)
        while nxt[0] < o['A0']: a_load()
        seen = set(); lpend = []; owe = [0]
        Apos = list(o['Apos']); assert o['A0'] + sum(Apos) == 64
        for n in range(384):
            t, h, sg = seq[n]; cur[0] = n
            if ('A', sg) not in seen:
                assert sg < nxt[0]
                vm.wait(('A', sg)); seen.add(('A', sg))
            lg.wait(('B', n))
            d = ACC[t] + 16 * h
            a(f'v_mfma_f32_32x32x16_bf16 {vr(d, 16)}, {vr(RING + 4*(n % NB), 4)}, {vr(AR + 4*(sg % 24), 4)}, ' + (vr(d, 16) if sg else '0'))
            if self.prof and o.get('ls'):
                l0, l1, lst = o['ls']
                if lpend and n >= lpend[0][0]:
                    _, r_, k_ = lpend.pop(0); a(f'v_writelane_b32 v255, s{r_}, {k_}')
                if l0 <= n < l1 and (n - l0) % lst == 0:
                    r_ = sPL + 2 * (self.nst % 4)
                    a.items.append(('raw', f'    s_memtime {sr(r_, 2)}')); lpend.append((n + 4, r_, self.nst)); self.stnames.append(f'n{n}'); self.nst += 1
            def a_try():
                p, r = divmod(n, 24)
                if n < 240 and (r + 1) * Apos[p] // 24 > r * Apos[p] // 24: owe[0] += 1
                if owe[0] and (nxt[0] < 24 or last[('A', nxt[0] - 24)] <= n): a_load(); owe[0] -= 1
                elif late: a(late.pop(0))
            if o['apos'] == 0: a_try()
            bud = [o.get('cbud', 10), 1]
            if n >= 265: stk.pull(bud, bud[0])
            if n > bQ + 1: stv.pull(bud, bud[0])
            if n + LOOK < 384: b_read(n + LOOK)
            if o['apos'] == 1: a_try()
            if n in bars:
                if n in (bA, bH):
                    assert f'kh{int(n == bH)}' in self.marks
                    lg.wait(f'kh{int(n == bH)}')
                    if 'prio2' in o and n == bA: a(f's_setprio {o["prio2"]}')
                if not (o.get('noB') and n < 200): a('s_barrier')
                if o.get('gst'): self.stamp(f'b{n}')
        assert not (stk.q or stv.q) and nxt[0] == 64
        self.stamp('gemm1')
        vq, wph = AR + 16, AR + 24
        S(T1, 'rb*2048 + L_QH'); a(f'v_add_u32 v{vHo}, s{T1}, v{vL16}')
        va(vT, [(2, 2, 64), (4, 1, 32), (0, 2, 8), (5, 1, 256)], None, L_WPHI)
        for s in range(2):
            for u in range(2): self.tr(wph + 4 * s + 2 * u, vT, s * 1024 + u * 512)
        cvt8(AR, AQ + 16)
        for q in range(2): self.dw('ds_write_b128', vHo, AR + 4 * q, 4, q * 1024)
        cvt8(vq, AQ)
        if o['m2c'] == 1:
            for i in range(4): m2_ld(i)
        a('s_setprio 0')
        a('s_branch L_JOIN')
        a('L_HELP:')
        vm.q = list(q_hok); lg.reset()
        vm.wait(('W', 3))
        a('s_barrier')
        vm.q = [('W', 'pre')] * len(vm.q)
        vis = {}
        def w_sec(t, n):
            if o.get('noW'): return
            for back in (1, 0):
                S(sU, '((u0 + n) & 15)*UR + wb + q', n=n, q=(dict(q=0, k=2048, v=4096)[t] - back * 4 * 49152) & 0xffffffff)
                S('m0', 'w1k + q', q='kvq'.index(t) * REG + (n % 6) * 8192 - back * 4096)
                self.dma(vWd, rW, sU, 0, '', ('W', t, n))
        for n, t in self.wq: w_sec(t, n)
        ka, wp2, pa, pb, ee, vPW = AR, AR + 16, AR + 32, AR + 48, AR + 64, AR + 80
        va(vT, [(2, 2, 64), (4, 1, 32), (0, 2, 8), (5, 1, 256)], None, L_WPHI)
        for hs in range(4):
            for u in range(2): self.tr(wp2 + 4 * hs + 2 * u, vT, hs * 1024 + u * 512)
        S(T1, 'rb*1024 + L_PHK'); va(vPW, TOK, T1)
        def touch(boxes):
            a('s_waitcnt lgkmcnt(0)')
            for q, b in enumerate(boxes):
                a(f's_load_dword s{sPL + 2*q}, {sr(rWS, 2)}, s{sINB} offset:{b * 512} glc')
                a(f's_load_dword s{sPL + 2*q + 1}, {sr(rWS, 2)}, s{sINB} offset:{b * 512 - 256} glc')
        wsched = {int(k): v.split() for k, v in o['wsched'].items()}
        for k in range(1, 5): wsched[k] = [f'{t}{k + 5}' for t in 'kqv'] + wsched.get(k, [])
        need = {}
        for u in first:
            k = len([b for b in bars if b < first[u] - LOOK])
            if k: need.setdefault(k, []).append(u)
        done = {f'{t}{n}' for n in range(6) for t in 'kvq'}
        def h_bar(k):
            if k == 1: vm.wait(('W', 'pre'))
            for u in need.get(k, []):
                assert u in done, (u, k)
                vm.wait(('W', u[0], int(u[1:])))
            if not (o.get('noB') and k < 9): a('s_barrier')
            for u in wsched.get(k, []):
                assert last[f'{u[0]}{int(u[1:]) - 6}'] <= bars[k - 1], (u, k)
                w_sec(u[0], int(u[1:])); done.add(u)
        hm, hc, ha, ht = AV, AQ, AQ + 8, AQ + 16
        if o.get('fP'): S(T4, o['fP'])
        if o['m2c'] == 3:
            S(T5, o['m2k3'])
            S(sU, '((x & 3)*4 + w - 4)*128'); va(ht, [(3, 3, 2)], sU)
            for i in range(8): a(f'global_load_ushort v{hc+i}, v{ht}, {sr(pC, 2)} offset:{16*i}'); vm.issue('c2')
            S(T6, '((x & 3)*4 + w - 4)*(64*12288) + (j*2 + (x >> 2))*128 + 4096')
        for k in range(1, 14):
            if k == 13: lg.wait_all()
            if o['m2c'] == 3 and k == o['m2e'] + 1: lg.wait_all()
            h_bar(k)
            if o['m2c'] == 3:
                if k <= o['m2g'] - 2:
                    a(f's_cmp_lg_u32 s{T5}, {k}\ns_cbranch_scc1 L_NM2_{k}')
                    for i in range(8):
                        S(sU, 'T6 + q', q=i * 8 * 12288)
                        a(f'buffer_load_dwordx4 {vr(hm + 4*i, 4)}, v{self.vWM}, {sr(rWM, 4)}, s{sU} offen nt')
                    a(f'L_NM2_{k}:')
                if k == 3:
                    vm.wait('c2')
                    for i in range(8):
                        a(f'v_lshlrev_b32 v{hc+i}, 16, v{hc+i}')
                        self.silu(hc + i, ht + (i & 1))
                g0 = o['m2g']
                ke = o['m2e']
                if g0 <= k <= ke:
                    if k == g0:
                        vm.wait(('W', 'k', k + 4))
                        mops = self.gemv_ops([hm + 4 * i for i in range(8)], [hc + i for i in range(8)], ha, ht, ht + 1, False)
                    for _ in range(len(mops) if k == ke else 144 // (ke + 1 - g0)): a(mops.pop(0))
                    if k == ke: self.dw('ds_write_b32', self.vGA, ha, 1, L_M2 - MISC)
                if k == ke + 1:
                    a(f"""s_cmp_lg_u32 s{sWAVE}, 4
                    s_cbranch_scc1 L_M2F
                    ds_read_b128 {vr(ha, 4)}, v{self.vL32S} offset:{L_M2 - MISC + 16}""")
                    S(T0, '((j*2 + (x >> 2))*4 + (x & 3))*512 + MODP2')
                    a(f"""s_waitcnt lgkmcnt(0)
                    v_add_f32 v{ha}, v{ha}, v{ha+1}
                    v_add_f32 v{ha+2}, v{ha+2}, v{ha+3}
                    v_mov_b32 v{ha+1}, s{sTAG}
                    v_add_f32 v{ha}, v{ha}, v{ha+2}""")
                    self.bs(ha, 2, self.vL8, rWS, T0, 0, 'sc1', count=False)
                    a('L_M2F:')
            if o.get('fP') and k <= 8:
                a(f's_cmp_lg_u32 s{T4}, {k}\ns_cbranch_scc1 L_NFP_{k}')
                for i in range(o['fA']):
                    for far in range(2): f_ld(1, i, far, False)
                a(f'L_NFP_{k}:')
            if k == 2: poison()
            if k in (1, 3, 5) and o.get('touch', 1): touch({1: (1, 7), 3: (2, 3), 5: (5, 6)}[k])
            if k == 8 and o.get('touch', 1):
                S(T0, 'fs*8192 + (w - 4)*256 + HGR')
                a('s_waitcnt lgkmcnt(0)')
                for q in range(4): a(f's_load_dword s{sPL + q}, {sr(rWS, 2)}, s{T0} offset:{q * 2048 + 1024 + 252} glc')
        def logits(h, pp):
            if o.get('hprio'): a(f's_setprio {o["hprio"]}')
            for q in range(2): self.r128(ka + 4 * q, vHo, q * 1024, ('kh', q))
            if h == 0: a(f'v_subrev_u32 v{vHo}, {L_QH - L_HV}, v{vHo}')
            for q in range(2):
                lg.wait(('kh', q))
                a(f'v_mfma_f32_32x32x16_bf16 {vr(pp, 16)}, {vr(wp2 + 8*h + 4*q, 4)}, {vr(ka + 4*q, 4)}, ' + (vr(pp, 16) if q else '0'))
            if o.get('hprio') and not o.get('hlong'): a('s_setprio 0')
        logits(0, pa)
        self.stamp('klog')
        hs = Stream(self)
        for h, pp in ((0, pa), (1, pb)):
            hs.cap(lambda: self.softmax_pm(pp, ee, ee, vT))
            k = max(i for i, it in enumerate(hs.q) if it[0] == 4.75) - 8
            tailq = hs.q[k + 1:]; hs.q = hs.q[:k + 1]
            wr = lambda fb, h=h: (0, 0, lambda: self.dw('ds_write_b128', vPW, ee + 4 * fb, 4, h * 16384 + fb * 4096, ('phk', h)))
            hs.q += [wr(0)] + tailq[:4] + [wr(1), wr(2)] + tailq[4:] + [wr(3)]
            if h == 0:
                n1 = len(hs.q)
                hs.add(lambda: None)
        hs.q.insert(n1 + 34, (0, 0, lambda: lg.wait(('phk', 0))))
        ex = {}
        def put(i, fn):
            while i in ex: i += 1
            ex[i] = fn
        nq = int(n1 * o['hq'])
        put(nq, lambda: h_bar(15))
        nh = int(n1 * o['hh'])
        put(nh, lambda: (h_bar(14), logits(1, pb)))
        g1, g2 = o['hgap']
        ff = [(lambda k=k, far=far: f_ld(1, k, far)) for k in range(o['fA']) for far in range(2) if not o.get('fP')]
        pre = [(lambda k=k: m2_ld(k)) for k in range(4)] if o['m2c'] < 2 else []
        npre = o.get('fpre', 4) - len(pre)
        pre += ff[:npre]; ff = ff[npre:]
        for k, fn in enumerate(pre): put(nh + 5 + g1 * k, fn)
        wl = self.wo_left = [6, 7, 8, 9, 10, 11] + [12, 13, 14, 15] + [0, 1, 2, 3, 4, 5]
        post = []
        for k in range(o['woA']): post += [lambda: wo_dma(wl[0], 1), lambda: wo_dma(wl.pop(0))]
        post = post[:8] + ff + post[8:] if o.get('wofirst', 1) else ff + post
        for k, fn in enumerate(post): put(nq + 5 + g2 * k, fn)
        for i, (v_, l_, fn) in enumerate(hs.q):
            if i in ex: ex.pop(i)()
            fn()
        for i in sorted(ex): ex[i]()
        self.nopk = False
        S(T1, 'rb*2048 + L_QH'); a(f'v_add_u32 v{vHo}, s{T1}, v{vL16}')
        assert wph == wp2 + 8
        if o.get('hprio'): a('s_setprio 0')
        self.stamp('ksm')
        a('L_JOIN:')
        vm.q = ['m2'] * (8 if o['m2c'] < 2 else 0); lg.q = [None]
        self.m2_ld = m2_ld
        self.vHo = vHo

    def middle(self):
        a, vm, lg, o, S, va = self.a, self.vm, self.lg, self.o, self.S, self.vaa
        vL8, vL32S, vGA, vHo, ffn_reg = self.vL8, self.vL32S, self.vGA, self.vHo, self.ffn_reg
        pp, ee, ph, vq, wph = AQ, AQ + 16, AR, AR + 16, AR + 24
        fA, fB, kvd, zd, ones = AR + 32, AR + 48, AR + 80, AR + 88, AR + 92
        kp, zz, zf, kf, k2 = AR + 32, AR + 40, AR + 44, AR + 60, AR + 76
        m2w, m2a, m2c, m2t = AV, AV + 16, AV + 24, AV + 28
        vPA, vPB, vPC, vKP, vXF = RING + 16, RING + 17, RING + 18, RING + 19, RING + 20
        md, wr1 = RING, RING + 4
        self.md, self.wr1 = md, wr1
        wl = self.wo_left
        wo1 = lambda: self.wo_dma(wl.pop(0))
        fw = o['fwin']
        va(vPB, [(0, 1, 8), (2, 2, 16), (4, 1, 64), (1, 1, 128), (5, 1, 256)])
        S(T0, 'w*4096 + L_PHK'); a(f'v_add_u32 v{vPA}, s{T0}, v{vPB}')
        S(T0, 'kh*8192 + L_HV'); a(f'v_add_u32 v{vPB}, s{T0}, v{vPB}')
        for i in range(4): a(f'v_mov_b32 v{ones+i}, 0x3f803f80')
        S(T0, '((hp*8 + w)*32 + r1)*1024 + KVP'); S(T2, 'T0 + 16384')
        S(T3, '(hp*8 + w)*1024 + ZP'); S(T1, 'r1*64 + T3')
        self.barrier()
        self.stamp('phik')
        def kvm(u):
            lg.wait(('kv', u))
            for db in range(2):
                a(f'v_mfma_f32_16x16x32_bf16 {vr(kvd + 4*db, 4)}, {vr(fA + 4*u, 4)}, {vr(fB + 8*u + 4*db, 4)}, ' + ('0' if u == 0 else vr(kvd + 4*db, 4)))
            a(f'v_mfma_f32_16x16x32_bf16 {vr(zd, 4)}, {vr(fA + 4*u, 4)}, {vr(ones, 4)}, ' + ('0' if u == 0 else vr(zd, 4)))
        for ts in range(4):
            self.tr(fA + 4 * ts, vPA, ts * 1024, ('kv', ts)); self.tr(fA + 4 * ts + 2, vPA, ts * 1024 + 512, ('kv', ts))
            for db in range(2):
                for rd in range(2): self.tr(fB + 8 * ts + 4 * db + 2 * rd, vPB, ts * 2048 + db * 1024 + rd * 512, ('kv', ts))
            if ts >= 2: kvm(ts - 2)
        kvm(2); kvm(3)
        a(f"""s_cmp_lt_u32 s{sWAVE}, 4
        s_cbranch_scc1 L_NOQX
        ds_read_b128 {vr(vq, 4)}, v{vHo}
        ds_read_b128 {vr(vq + 4, 4)}, v{vHo} offset:1024
        L_NOQX:""")
        self.bs(kvd, 4, vL16, rWS, T0, 0, 'sc1', 'kvs')
        self.bs(kvd + 4, 4, vL16, rWS, T2, 0, 'sc1', 'kvs')
        a('s_mov_b32 exec_lo, 0x00010001')
        a('s_mov_b32 exec_hi, 0x00010001')
        self.bs(zd, 4, vL, rWS, T1, 0, 'sc1', 'kvs')
        a('s_mov_b64 exec, -1')
        lg.wait_all()
        a(f'v_mfma_f32_32x32x16_bf16 {vr(pp, 16)}, {vr(wph, 4)}, {vr(vq, 4)}, 0')
        a(f'v_mfma_f32_32x32x16_bf16 {vr(pp, 16)}, {vr(wph + 4, 4)}, {vr(vq + 4, 4)}, {vr(pp, 16)}')
        self.stamp('kvst')
        if o['m2c'] == 2:
            for i in range(4): self.m2_ld(i)
        va(vPC, [(0, 3, 32 * 4096), (3, 1, 4 * 4096)])
        S(T4, '(wg & 0x1b)*4096 + (r1 >> 1)*64 + (r1 & 1)*4 + INB + 512')
        va(vKP, [(3, 3, 1024), (0, 3, 16)])
        va(vXF, [(0, 3, 16), (5, 1, 8)])
        qm, qs = o['qmid'], o['qsplit']
        self.softmax_pm(pp, ee, ph, vT, part=1, split=qm)
        vm.wait('kvs')
        a('s_barrier')
        self.push(vPC, T4, 16, vPB, 'L_PC')
        self.stamp('kvpub')
        self.weave(lambda: [a(f'v_exp_f32 v{r+i}, v{r+i}') for i in range(qm, qs) for r in (ee, pp)], [wo1] * o['wowin'][0])
        S(T0, '(hp*16 + r1)*16384 + w*128 + KVP'); S(T1, 'T0 + 8192')
        S(T2, '(hp*16 + r1)*1024 + w*128 + KIN'); S(T4, 'T4 + 6*512')
        self.inbox(1, 2, work=lambda: (self.weave(lambda: self.softmax_pm(pp, ee, ph, vT, part=2, split=qs), [wo1] * o['wowin'][1]), self.stamp('cw')))
        a('s_barrier')
        self.stamp('kvok')
        self.bl(kp, 4, vKP, rWS, T0, 0, 'sc1', 'kp')
        self.bl(kp + 4, 4, vKP, rWS, T1, 0, 'sc1', 'kp')
        self.bl(zz, 4, vL16, rWS, T3, 0, 'sc1', 'z')
        ffn_reg(fw[0])
        S(T1, 'w*32 + L_ZF'); va(vT + 2, [(0, 2, 8), (5, 1, 4)], T1)
        S(T1, 'w*1024 + L_KVF'); va(vT + 1, [(0, 4, 16), (5, 1, 512), (4, 1, 8)], T1)
        S(T1, 'kh*128 + L_ZF'); va(vT + 3, [(5, 1, 16)], T1)
        S(T1, 'kh*4096 + L_KVF'); a(f'v_add_u32 v{vPA}, s{T1}, v{vL16}')
        M2 = o['m2c'] < 3
        m2ops = []; k = o.get('m2k', 24)
        if M2:
            vm.wait('m2')
            for i in range(4):
                a(f'v_lshlrev_b32 v{m2c+i}, 16, v{m2c+i}')
                self.silu(m2c + i, m2t + (i & 1))
            m2ops = self.gemv_ops([m2w + 4 * i for i in range(4)], [m2c + i for i in range(4)], m2a, m2t, m2t + 1, True)
        for s_ in m2ops[:k]: a(s_)
        def red4(r, ctls):
            for i in range(2): a(f'v_permlane32_swap_b32 v{r+i}, v{r+2+i}')
            self.pk('add', r, r, r + 2)
            for ctl in ctls:
                for i in range(2): self.dpp('v_add_f32', r + i, r + i, r + i, ctl)
            for i in range(2): a(f'v_mov_b32 v{r+2+i}, v{r+i}')
            for i in range(2): a(f'v_permlane16_swap_b32 v{r+i}, v{r+2+i}')
            self.pk('add', r, r, r + 2)
            a(f'v_cvt_pk_bf16_f32 v{r}, v{r}, v{r+1}')
        vm.wait('kp')
        self.pk('add', kp, kp, kp + 4); self.pk('add', kp + 2, kp + 2, kp + 6)
        red4(kp, ['row_ror:8'])
        a(f"""v_mov_b32 v{kp+1}, s{sTAG}
        s_mov_b32 exec_lo, 0xff
        s_mov_b32 exec_hi, 0xff""")
        self.bs(kp, 2, vXF, rWS, T2, 0, 'sc1')
        a('s_mov_b64 exec, -1')
        a('s_barrier')
        self.push(vPC, T4, 16, vPB, 'L_PC2')
        self.stamp('c2pub')
        num, den = pp, ee
        vm.wait('z')
        self.weave(lambda: (red4(zz, ['row_ror:4', 'row_ror:8']), [a(s_) for s_ in m2ops[k:]]), [wo1] * o['wowin'][2])
        self.dw('ds_write_b32', vT + 2, zz, 1)
        if M2: self.dw('ds_write_b32', vGA, m2a, 1, L_M2 - MISC)
        self.barrier()
        for fb in range(4): self.r128(zf + 4 * fb, vT + 3, fb * 32)
        if M2: self.r128(m2a, vL32S, L_M2 - MISC); self.r128(m2a + 4, vL32S, L_M2 - MISC + 16)
        S(T5, '((j*2 + (x >> 2))*4 + (x & 3))*512 + MODP2')
        lg.wait_all()
        S(T0, '(hp*8 + w)*2048 + KIN')
        def den_work():
            for fb in range(4):
                a(f'v_mfma_f32_32x32x16_bf16 {vr(den, 16)}, {vr(zf + 4*fb, 4)}, {vr(ph + 4*fb, 4)}, ' + ('0' if fb == 0 else vr(den, 16)))
            if M2:
                a(f's_cmp_lg_u32 s{sWAVE}, 3\ns_cbranch_scc1 L_M2F')
                self.nopk = True; self.sum8(m2a); self.nopk = False
                a(f'v_mov_b32 v{m2a+1}, s{sTAG}')
                self.bs(m2a, 2, vL8, rWS, T5, 0, 'sc1', count=False)
                a('L_M2F:')
            self.round1(den)
            a(f'v_add_f32 v{den}, 0x358637bd, v{den}')
            self.round1(den)
            a(f'v_rcp_f32 v{den}, v{den}')
            self.stamp('c2w')
        self.inbox(7, 2, work=den_work)
        self.stamp('c2h')
        ldk2 = lambda: [self.bl(k2 + 4 * q, 4, vL16, rWS, T0, q * 1024, 'sc1') for q in range(2)]
        self.try_load(ldk2, [k2 + 1, k2 + 3, k2 + 5, k2 + 7], vT, lambda: ffn_reg(fw[1]))
        for db in range(2):
            a(f'ds_write2_b32 v{vT+1}, v{k2+4*db}, v{k2+4*db+2} offset0:{64*db} offset1:{64*db+1}'); lg.issue()
        self.barrier()
        self.stamp('kvred')
        for fb in range(4): self.r128(kf + 4 * fb, vPA, fb * 1024, ('kf', fb))
        S(T0, '((r1*8 + rb*2)*32 + hp*2 + kh)*1024 + OF')
        va(vKP, [(0, 4, 16), (4, 1, 32768), (5, 1, 256)])
        for fb in range(4):
            lg.wait(('kf', fb))
            a(f'v_mfma_f32_32x32x16_bf16 {vr(num, 16)}, {vr(kf + 4*fb, 4)}, {vr(ph + 4*fb, 4)}, ' + ('0' if fb == 0 else vr(num, 16)))
        S(T5, '((w >> 1)*16 + cb)*2048 + (w & 1)*1024 + MODP2')
        self.ld_md = lambda: self.bl(md, 4, vL16, rWS, T5, 0, 'sc1', 'md')
        S(T6, 'cb*128'); va(vPA, [(0, 2, 2), (5, 1, 8), (4, 1, 16), (2, 2, 32)], T6)
        a(f'global_load_ushort v{wr1}, v{vPA}, {sr(pWR, 2)}'); vm.issue('md')
        self.ld_md()
        for h in range(2):
            self.round_list([num + i for i in range(8 * h, 8 * h + 8)])
            for i in range(8 * h, 8 * h + 8, 2): self.pk('mul', num + i, num + i, den, bc=(1,))
            for i in range(4 * h, 4 * h + 4): a(f'v_cvt_pk_bf16_f32 v{vq+i}, v{num+2*i}, v{num+2*i+1}')
            self.bs(vq + 4 * h, 4, vKP, rWS, T0, 512 * h, 'sc1', 'os')
        self.stamp('ost')
        while wl: wo1()

    def gemm2(self):
        a, vm, lg, o, S, va = self.a, self.vm, self.lg, self.o, self.S, self.vaa
        md, wr1, fw = self.md, self.wr1, o['fwin']
        AD2 = o['AD2']
        R = self.R = dict(acc=AQ, gaf=AQ + 16, cbf=AR + 16, sbf=AV, gbf=AV + 16, xf=AR, fr=AR + 32, Br=AR + 40, Ar=AR + 72, vB=RING + 8, sv=RING, up=RING + 12)
        acc, gaf, cbf, sbf, gbf, xf, fr, Br, Ar, vB, sv, up = [R[k] for k in 'acc gaf cbf sbf gbf xf fr Br Ar vB sv up'.split()]
        ARS = [Ar + 4 * i for i in range(6)] + [RING + 16, RING + 20, RING + 24]; assert AD2 <= 9
        va(vB, [(2, 2, 128), (4, 2, 1024), (0, 1, 16), (1, 1, 8), (3, 2, 32)])
        S(T4, '(w ^ ((j & 1)*4))*4096'); S(T1, '(T4*4) ^ (y2 >> 4)')
        a(f'v_add_u32 v{vB}, s{T1}, v{vB}')
        for ct in range(1, 4): a(f'v_xor_b32 v{vB+ct}, {32*ct}, v{vB}')
        va(vT + 1, [(0, 3, 8 * 4096), (3, 1, 4096)])
        S(T2, '((r1 >> 2)*2 + (r1 & 3)*64)*4096 + (hp >> 1)*64 + (hp & 1)*4 + INB + 1024')
        for i in range(8): self.unpack(xf + 2 * i, xf + 2 * i + 1, XR + i)
        S(T6, '(rt*8 + w)*32768 + OF')
        vm.wait('md')
        self.tagcheck([md + 1, md + 3], vT)
        a('s_cbranch_vccz L_MGOK')
        q0 = list(vm.q)
        self.poll(self.ld_md, [md + 1, md + 3], vT)
        vm.q = q0
        a('L_MGOK:')
        S(T1, '(w >> 1)*1024 + (w & 1)*8 + L_MD'); va(vT, [(0, 5, 32), (5, 1, 4)], T1)
        a(f'ds_write2_b32 v{vT}, v{md}, v{md+2} offset0:0 offset1:4'); lg.issue()
        va(vT + 3, [(0, 2, 16), (5, 1, 64), (4, 1, 128), (2, 2, 256)], None, L_MD)
        S(T5, 'wg*4096 + (T4 >> 6) + INB + 1024')
        vm.wait('os'); vm.wait('wo')
        self.barrier()
        self.push(vT + 1, T2, 16, vT + 2, 'L_PD')
        self.stamp('opub')
        self.ffn_reg(fw[2])
        t4 = Br
        for q in range(4): self.r128(t4 + 4 * q, vT + 3, q * 1024)
        va(vT + 4, [(0, 2, 4), (5, 1, 16), (4, 1, 32), (2, 2, 64)], None, L_GB)
        S(T0, '(rt*16 + cb)*64 + UP')
        lg.wait_all()
        def d_work():
            for q in range(4):
                self.pk('add', t4 + 4 * q, t4 + 4 * q, t4 + 4 * q + 2)
                a(f'v_add_f32 v{sv+q}, v{t4+4*q}, v{t4+4*q+1}')
            self.round_list([sv + q for q in range(4)])
            a(f'v_add_f32 v{sv+2}, 1.0, v{sv+2}')
            a(f'v_lshlrev_b32 v{wr1}, 16, v{wr1}')
            self.round1(sv + 2)
            a(f'ds_write_b32 v{vT+4}, v{sv+3}')
            uu, hi, lo, t = t4, t4 + 1, t4 + 2, t4 + 4
            a(f'v_mul_f32 v{uu}, v{sv+2}, v{wr1}')
            a(f'v_cvt_pk_bf16_f32 v{hi}, 0, v{uu}')
            a(f'v_sub_f32 v{lo}, v{uu}, v{hi}')
            self.allreduce(uu, t + 3)
            for k, r in enumerate((hi, lo, wr1)): a(f'v_mov_b32_dpp v{t+k}, v{r} row_shl:1 row_mask:0xf bank_mask:0xf')
            for k, r in enumerate((hi, lo, wr1)): a(f'v_cvt_pk_bf16_f32 v{t+k}, v{r}, v{t+k}')
            a(f"""v_mov_b32 v{uu+1}, s{sTAG}
            v_mov_b32 v{uu+2}, 0
            s_cmp_lg_u32 s{sWAVE}, 2
            s_cbranch_scc1 L_NOUP
            s_mov_b64 exec, 1""")
            self.bs(uu, 2, uu + 2, rWS, T0, 0, 'sc1', count=False)
            a('s_mov_b64 exec, -1\nL_NOUP:')
            for i in range(8):
                a(f'v_mov_b32 v{fr+i}, 0x3f803f80')
                for k in range(3): a(f'v_mov_b32_dpp v{fr+i}, v{t+k} row_newbcast:{2*i} row_mask:0xf bank_mask:{hex(2 << k)}')
            for dst, q in ((gaf, 0), (cbf, 2), (sbf, 1), (gbf, 3)):
                for i in range(16): a(f'v_mov_b32_dpp v{dst+i}, v{sv+q} row_newbcast:{i} row_mask:0xf bank_mask:0xf')
            self.stamp('dw')
        L2 = o['LOOK2']
        def b2_read(m):
            H, ct = divmod(m, 4)
            if H and H % 4 == 0: a(f'v_xor_b32 v{vB+ct}, {((H >> 2) ^ ((H >> 2) - 1)) * 16384}, v{vB+ct}')
            for rd in range(2): self.tr(Br + 4 * (m % 8) + 2 * rd, vB + ct, (H & 3) * 4096 + rd * 512, ('B', m))
        def a2_load(H):
            if H % 4 == 0: S(T7, '(T4 ^ n) + T6', n=H * 1024)
            self.bl(ARS[H % AD2], 4, vL16, rWS, T7, (H % 4) * 1024, 'sc1', ('A', H))
        self.spoll([(0, 2, T5, 0)], range(2), d_work)
        self.stamp('ook1')
        if not o['earlyD']: a('s_barrier')
        for H in range(AD2):
            if H == 4 and o['earlyD']: a('s_barrier')
            a2_load(H)
            if H == 0:
                for m in range(L2): b2_read(m)
        self.stamp('ook')
        S(T0, 'rt*1024 + UP'); va(vT + 6, [(0, 4, 64)])
        self.ld_up = lambda: self.bl(up, 2, vT + 6, rWS, T0, 0, 'sc1', 'up')
        lpend = []
        for H in range(32):
            if self.prof and o.get('ls2'):
                if lpend: r_, k_ = lpend.pop(0); a(f'v_writelane_b32 v255, s{r_}, {k_}')
                if H < 31:
                    r_ = sPL + 2 * (self.nst % 4)
                    a.items.append(('raw', f'    s_memtime {sr(r_, 2)}')); lpend.append((r_, self.nst)); self.stnames.append(f'n{H}'); self.nst += 1
            if o.get('g2p') and H in (0, o['g2p']):
                a(f's_cmp_lt_u32 s{sWAVE}, 4\ns_cbranch_scc1 L_G2P{H}\ns_setprio {1 if H == 0 else 0}\nL_G2P{H}:')
            vm.wait(('A', H))
            for ct in range(4):
                m = 4 * H + ct
                if o.get('pairw2') and ct & 1: pass
                else: lg.wait(('B', m + 1 if o.get('pairw2') else m))
                a(f'v_mfma_f32_16x16x32_bf16 {vr(acc + 4*ct, 4)}, {vr(Br + 4*(m % 8), 4)}, {vr(ARS[H % AD2], 4)}, ' + ('0' if H == 0 else vr(acc + 4*ct, 4)))
                if m + L2 < 128: b2_read(m + L2)
            if H + AD2 < 32: a2_load(H + AD2)
            if H + AD2 == 31:
                self.ld_up(); self.ffn_reg(fw[3])
        self.stamp('gemm2')
        if o.get('dbg'):
            S(T1, '(wg*8 + w)*32768 + 0x4000000'); va(vT, [(0, 6, 4)])
            for k, r in enumerate(list(range(40, 104)) + [24, 25, 26, 27]):
                if k % 16 == 0 and k: S(T1, 'T1 + 4096')
                self.bs(r, 1, vT, rWS, T1, (k % 16) * 256, '', 'dbg')
                if k % 16 == 15: vm.wait('dbg')

    def tail(self):
        a, vm, lg, o, S, va = self.a, self.vm, self.lg, self.o, self.S, self.vaa
        R, fw = self.R, o['fwin']
        E2 = range(0, 16, 2)
        acc, gaf, cbf, sbf, gbf, xf, fr, up = [R[k] for k in 'acc gaf cbf sbf gbf xf fr up'.split()]
        FR, held, fq = self.FL, self.held, self.fq
        g16, hh, h2p, op, sd4, kk = AR + 40, AR + 56, AR + 72, AR + 80, AR + 88, AR + 92
        vSt, vRow, mm, rs, key, vTa = RING, RING + 1, RING + 2, RING + 3, RING + 4, RING + 5
        x1f = xf
        swp = lambda b: [a(f'v_permlane32_swap_b32 v{b+p}, v{b+q}') for p, q in ((0, 2), (1, 3), (4, 6), (5, 7))]
        S(T1, '((rt*8 + w)*16 + cb)*256 + ST')
        va(vSt, [(0, 4, 16), (4, 2, 4)])
        self.nopk = bool(o.get('g2p'))
        for h in range(2):
            rg = range(8 * h, 8 * h + 8)
            self.round_list([acc + i for i in rg])
            for i in range(8 * h, 8 * h + 8, 2): self.pk('mul', acc + i, acc + i, gaf + i)
            self.round_list([acc + i for i in rg])
            for i in range(8 * h, 8 * h + 8, 2): self.pk('add', acc + i, acc + i, xf + i)
            for i in range(4 * h, 4 * h + 4): a(f'v_cvt_pk_bf16_f32 v{XR+i}, v{acc+2*i}, v{acc+2*i+1}')
            for i in range(4 * h, 4 * h + 4): a(f'v_dot2_f32_bf16 v{vT+(i&1)}, v{XR+i}, v{XR+i}, ' + ('0' if i < 2 else f'v{vT+(i&1)}'))
            a(f'v_mfma_f32_16x16x32_bf16 {vr(sd4, 4)}, {vr(fr + 4*h, 4)}, {vr(XR + 4*h, 4)}, ' + ('0' if h == 0 else vr(sd4, 4)))
        self.nopk = False
        va(vT + 3, [(0, 3, 8 * 4096), (3, 1, 4096)])
        a(f'v_add_f32 v{vT}, v{vT}, v{vT+1}')
        for sw in ('v_permlane32_swap_b32', 'v_permlane16_swap_b32'):
            a(f'v_mov_b32 v{vT+1}, v{vT}')
            a(f'{sw} v{vT}, v{vT+1}')
            a(f'v_add_f32 v{vT}, v{vT}, v{vT+1}')
        a(f'v_mov_b32_dpp v{sd4}, v{vT} quad_perm:[0,1,2,3] row_mask:0x8 bank_mask:0xf')
        self.bs(sd4, 1, vSt, rWS, T1, 0, 'sc1')
        S(T3, '((rt >> 2)*2 + (rt & 3)*64)*4096 + (cb >> 1)*64 + (cb & 1)*4 + INB + 1536')
        a('s_barrier')
        self.push(vT + 3, T3, 16, vT + 2, 'L_PE')
        self.stamp('x1pub')
        self.ffn_dma(fw[4])
        S(T2, 'w*4096')
        a(f'v_add_u32 v{vT}, s{T2}, v{vL16}')
        a(f'v_add_u32 v{vT+3}, {L_DN}, v{vT}')
        vm.wait('up')
        self.tagcheck([up + 1], vT + 2)
        a('s_cbranch_vccz L_UPOK')
        q0 = list(vm.q)
        self.poll(self.ld_up, [up + 1], vT + 2)
        vm.q = q0
        a('L_UPOK:')
        S(T1, '(rt*8 + w)*4096 + ST')
        def e_work():
            for ctl in ('quad_perm:[1,0,3,2]', 'quad_perm:[2,3,0,1]', 'row_half_mirror', 'row_mirror'): self.dpp('v_add_f32', up, up, up, ctl)
            for i in range(8): self.unpack(x1f + 2 * i, x1f + 2 * i + 1, XR + i)
            S(T2, 'w*512 + rt*2')
            va(vRow, [(0, 4, 32)], T2)
            a(f'v_xor_b32 v{vT+1}, 0x4000, v{vT}\nv_xor_b32 v{vT+4}, 0x4000, v{vT+3}')
            if held[0] or held[1]: a(f's_waitcnt vmcnt({fw[4]})')
            for g in range(2):
                if not held[g]: continue
                a(f's_cmp_{"ge" if g == 0 else "lt"}_u32 s{sWAVE}, 4\ns_cbranch_scc1 L_FW{g}')
                for n, (m, i) in enumerate(held[g]):
                    for far in range(2):
                        a(f'ds_write_b128 v{(vT if m < 2 else vT + 3) + far}, {vr(FR + 8*n + 4*far, 4)} offset:{self.f_lds(m, i) - (L_GU if m < 2 else L_DN)}')
                a(f'L_FW{g}:')
            self.stamp('ew')
        self.inbox(3, 2, work=e_work)
        a('s_barrier')
        self.stamp('x1ok')
        def try_p(loads, check, between):
            loads()
            vm.q[-1] = tg = ('try', a.label('T'))
            between()
            vm.wait(tg)
            OK, L = a.label('POK'), a.label('PRE')
            check()
            a(f's_cbranch_vccz {OK}')
            q = list(vm.q)
            a(f'{L}:')
            loads(); vm.wait_all()
            check()
            a(f"""s_cbranch_vccz {OK}
            s_add_u32 s{sSPIN}, s{sSPIN}, 1
            s_cmp_lt_u32 s{sSPIN}, {SPIN_LIMIT}
            s_cbranch_scc1 {L}""")
            vm.q = q
            a(f'{OK}:')
        def e_between():
            self.ffn_dma(fw[5])
            S(T2, 'w*8 + L_K1'); a(f'v_mov_b32 v{vT}, s{T2}')
            va(vT + 1, [(0, 3, 8)], None, L_K1)
            va(vT + 2, [(0, 2, 64 * 4096), (2, 2, 2 * 4096)])
            S(T3, '((cb >> 3) + (cb & 7)*8)*4096 + (rt >> 1)*64 + (rt & 1)*16 + INB + 2560')
        s_, d_, q_, t_ = g16, g16 + 1, g16 + 3, g16 + 4
        def e_check():
            for h in (0, 2):
                self.pk('add', g16 + h, g16 + h, g16 + 4 + h); self.pk('add', g16 + 8 + h, g16 + 8 + h, g16 + 12 + h)
            for h in (0, 2): self.pk('add', g16 + h, g16 + h, g16 + 8 + h)
            a(f'''v_add_f32 v{d_}, v{d_}, v{g16+2}
            v_add_f32 v{t_+1}, v{s_}, v{q_}
            v_cmp_u_f32 vcc, v{d_}, v{t_+1}''')
        try_p(lambda: [self.bl(g16 + 4 * i, 4, vL16, rWS, T1, i * 1024, 'sc1') for i in range(4)], e_check, e_between)
        self.stamp('x1ld')
        a(f"""
        v_mov_b32 v{t_}, v{q_}
        v_permlane32_swap_b32 v{q_}, v{t_}
        v_permlane32_swap_b32 v{s_}, v{d_}
        v_add_f32 v{q_}, v{q_}, v{t_}
        v_add_f32 v{s_}, v{s_}, v{d_}
        v_permlane16_swap_b32 v{s_}, v{q_}
        v_add_f32 v{d_}, v{s_}, v{q_}
        v_add_f32 v{q_}, v{s_}, v{q_}
        v_permlane16_swap_b32 v{d_}, v{q_}
        v_mov_b32 v{s_}, v{d_}
        v_mul_f32 v{q_}, 0x3a800000, v{q_}
        v_permlane32_swap_b32 v{s_}, v{d_}
        v_mul_f32 v{s_}, 0x3a800000, v{s_}
        v_fma_f32 v{rs}, -v{s_}, v{s_}, v{q_}
        v_cvt_pk_bf16_f32 v{mm}, 0, v{s_}
        v_max_f32 v{rs}, 0, v{rs}""")
        self.round1(rs)
        a(f'v_fma_f32 v{d_}, -v{mm}, v{up}, v{d_}')
        a(f'v_add_f32 v{rs}, 0x3727c5ac, v{rs}')
        self.round1(rs)
        a(f'v_sqrt_f32 v{rs}, v{rs}')
        self.round1(rs)
        a(f"""v_rcp_f32 v{rs}, v{rs}
        v_mul_f32 v{key}, v{d_}, v{rs}
        v_ashrrev_i32 v{t_}, 31, v{key}
        v_or_b32 v{t_}, 0x80000000, v{t_}
        v_xor_b32 v{key}, v{key}, v{t_}
        s_mov_b32 s{T2}, 0xfffff000
        v_and_or_b32 v{key}, v{key}, s{T2}, v{vRow}""")
        hi, lo = kk, kk + 1
        def merge2(ctl):
            self.dpp('v_min_u32', t_, hi, hi, ctl); self.dpp('v_max_u32', lo, lo, lo, ctl); self.dpp('v_max_u32', hi, hi, hi, ctl)
            a(f'v_max_u32 v{lo}, v{lo}, v{t_}')
        self.dpp('v_max_u32', hi, key, key, 'quad_perm:[1,0,3,2]'); self.dpp('v_min_u32', lo, key, key, 'quad_perm:[1,0,3,2]')
        for ctl in ('quad_perm:[2,3,0,1]', 'row_half_mirror', 'row_mirror'): merge2(ctl)
        self.dw('ds_write_b64', vT, hi, 2)
        self.stamp('ln2')
        self.barrier()
        self.dr('ds_read_b64', hi, 2, vT + 1)
        for i in E2: self.pk('add', hh + i, x1f + i, mm, bc=(1,), neg=(1,))
        lg.wait_all()
        for ctl in ('quad_perm:[1,0,3,2]', 'quad_perm:[2,3,0,1]', 'row_half_mirror'): merge2(ctl)
        a(f"""v_cmp_eq_u32 {sr(sC2, 2)}, v{key}, v{lo}
        v_cmp_eq_u32 vcc, v{key}, v{hi}
        v_or_b32 v{kk+2}, 1, v{lo}
        v_mov_b32 v{kk+1}, s{sTAG}
        v_mov_b32 v{kk+3}, s{sTAG}
        s_or_b64 {sr(sCM, 2)}, vcc, {sr(sC2, 2)}
        s_cmp_lg_u32 s{sWAVE}, 0
        s_cbranch_scc1 L_NOF
        s_mov_b64 exec, 0xffff""")
        self.bs(kk, 4, vT + 2, rWS, T3, 0, 'sc1', count=False)
        a(f"""s_mov_b64 exec, -1
        L_NOF:""")
        self.stamp('Fpub')
        vRt = RING + 14
        def out_calc(part):
            u = g16 + 10
            if part == o['ocut'][0]:
                for i in range(8): self.unpack(hh + 2 * i, hh + 2 * i + 1, h2p + i)
                for i in E2: self.pk('mul', hh + i, hh + i, gbf + i)
                self.round_list([hh + i for i in range(16)])
            if part == o['ocut'][1]:
                S(T0, 'w*2048 + L_TR')
                va(u, [(4, 2, 16)]); va(u + 1, [(0, 3, 16)]); a(f'v_xor_b32 v{u}, v{u}, v{u+1}')
                va(u + 2, [(0, 4, 128)], T0); a(f'v_add_u32 v{u}, v{u}, v{u+2}'); a(f'v_xor_b32 v{u+2}, 64, v{u}')
                va(u + 3, [(3, 3, 16)]); a(f'v_xor_b32 v{u+1}, v{u+3}, v{u+1}'); va(u + 3, [(3, 3, 128)], T0); a(f'v_add_u32 v{u+1}, v{u+1}, v{u+3}')
                S(T0, '2047 - rt*128 - w*16'); va(vRt + 1, [(3, 3, 1)])
                a(f'v_sub_u32 v{vRt}, s{T0}, v{vRt+1}\nv_subrev_u32 v{vRt+1}, 8, v{vRt}')
                va(vTa, [(3, 3, 2048), (0, 3, 16)])
            if part == o['ocut'][2]:
                for i in E2: self.pk('add', hh + i, hh + i, x1f + i)
                for i in range(8): a(f'v_cvt_pk_bf16_f32 v{op+i}, v{hh+2*i}, v{hh+2*i+1}')
                swp(op)
                a(f'ds_write_b128 v{u}, {vr(op, 4)}\nds_write_b128 v{u+2}, {vr(op + 4, 4)}')
                a(f'ds_read_b128 {vr(op, 4)}, v{u+1}\nds_read_b128 {vr(op + 4, 4)}, v{u+1} offset:1024')
                S(T3, '(rt*8 + w)*32768 + cb*128'); S(T2, 'T3 + 16384')
        def f_work():
            self.round_list([hh + i for i in range(16)])
            for i in E2: self.pk('mul', hh + i, hh + i, rs, bc=(1,))
            self.round_list([hh + i for i in range(16)])
            for i in E2: self.pk('mul', hh + i, hh + i, cbf + i)
            self.round_list([hh + i for i in range(16)])
            for i in E2: self.pk('add', hh + i, hh + i, sbf + i)
            for i in range(8): a(f'v_cvt_pk_bf16_f32 v{h2p+i}, v{hh+2*i}, v{hh+2*i+1}')
            a(f"""s_cmp_eq_u64 {sr(sCM, 2)}, 0
            s_cbranch_scc1 L_NOCAND""")
            for h in range(2): a(f'v_mfma_f32_16x16x32_bf16 {vr(sd4, 4)}, {vr(fr + 4*h, 4)}, {vr(h2p + 4*h, 4)}, ' + ('0' if h == 0 else vr(sd4, 4)))
            for i in range(8): a(f'v_mov_b32 v{op+i}, v{h2p+i}')
            S(T2, 'rt*16384 + cb*512 + XS')
            va(vT + 3, [(4, 2, 16)])
            a(f'v_add_u32 v{vT+4}, 8192, v{vT+3}')
            swp(op); swp(XR)
            a(f'v_cndmask_b32 v{vT+3}, v{vT+3}, v{vT+4}, {sr(sC2, 2)}')
            a(f's_mov_b64 exec, {sr(sCM, 2)}')
            for h in range(2): self.bs(op + 4 * h, 4, vT + 3, rWS, T2, 64 * h, 'sc1', count=False)
            a(f's_mov_b32 exec_lo, 0\ns_and_b32 exec_hi, s{sCM+1}, 0xffff0000')
            self.bs(sd4, 1, vT + 3, rWS, T2, 256 - 48, 'sc1', count=False)
            a(f's_mov_b64 exec, {sr(sCM, 2)}')
            for h in range(2): self.bs(XR + 4 * h, 4, vT + 3, rWS, T2, 128 + 64 * h, 'sc1', count=False)
            a('s_mov_b64 exec, -1\nL_NOCAND:')
            self.stamp('cand')
            out_calc(0)
        S(T0, 'w*16 + L_K2'); a(f'v_mov_b32 v{vT}, s{T0}')
        va(vT + 1, [(0, 3, 16)], None, L_K2)
        self.inbox(5, 8, (1, 3, 5, 7), f_work)
        P = sPL
        a(f"""s_min_u32 s{P+1}, s{P}, s{P+4}
        s_min_u32 s{P+3}, s{P+2}, s{P+4}
        s_min_u32 s{P+5}, s{P}, s{P+6}
        s_max_u32 s{P}, s{P}, s{P+4}
        s_max_u32 s{P+2}, s{P+2}, s{P+6}
        s_max_u32 s{P+3}, s{P+3}, s{P+5}
        s_max_u32 s{P+1}, s{P+1}, s{P+2}
        v_mov_b32 v{kk}, s{P}
        v_mov_b32 v{kk+2}, s{P+3}
        v_mov_b32 v{kk+1}, s{P+1}""")
        self.dw('ds_write_b128', vT, kk, 4)
        self.stamp('F2p')
        out_calc(1)
        vGr, vDr, vXs, ffn, fdn = RING + 6, RING + 7, RING + 8, FR, AQ
        S(T0, '(w >> 2)*32768 + (w & 3)*32 + L_GU')
        va(vGr, [(4, 2, 8192), (2, 2, 128), (3, 2, 32), (0, 2, 8)]); a(f'v_xor_b32 v{vGr}, s{T0}, v{vGr}')
        S(T0, 'kq*2048 + XS'); va(vXs, [(0, 3, 16), (4, 2, 512)], T0)
        va(vT + 6, [(0, 4, 512)], None, XS + 256)
        gu_late = [p for p in fq if p[0] < 2]; assert not gu_late
        dn_late = len(fq) > 0
        def dn_read(s, tag=None):
            self.tr(fdn + 4 * s, vDr, s * 8192, tag); self.tr(fdn + 4 * s + 2, vDr, s * 8192 + 1024, tag)
        vm.wait('ffn')
        self.barrier()
        self.stamp('F2')
        self.r128(kk, vT + 1, 0, 'k2')
        a(f'v_and_b32 v{vT+4}, 8, v{vL}')
        a(f'v_cmp_eq_u32 {sr(sCMP, 2)}, 0, v{vT+4}')
        a(f'v_cmp_gt_u32 {sr(sPL, 2)}, 16, v{vL}')
        a(f'v_cmp_gt_u32 {sr(sPL + 2, 2)}, 32, v{vL}')
        lg.wait('k2')
        t = g16
        for ctl in ('quad_perm:[1,0,3,2]', 'quad_perm:[2,3,0,1]', 'row_half_mirror'):
            self.dpp('v_min_u32', t, kk, kk, ctl); self.dpp('v_min_u32', t + 1, kk + 1, kk, ctl); self.dpp('v_min_u32', t + 2, kk, kk + 1, ctl)
            self.dpp('v_max_u32', kk + 2, kk + 2, kk + 2, ctl); self.dpp('v_max_u32', kk + 1, kk + 1, kk + 1, ctl); self.dpp('v_max_u32', kk, kk, kk, ctl)
            a(f'v_max3_u32 v{kk+2}, v{kk+2}, v{t+1}, v{t+2}')
            a(f'v_max_u32 v{kk+1}, v{kk+1}, v{t}')
        xa, xb, rp, kr = g16, g16 + 4, g16 + 8, g16 + 9
        a(f"""v_cndmask_b32 v{t}, v{kk+1}, v{kk}, {sr(sCMP, 2)}
        v_cndmask_b32 v{kr}, v{kk+2}, v{kk+1}, {sr(sPL + 2, 2)}
        v_and_b32 v{t+1}, 31, v{kk+2}
        v_and_b32 v{t}, 31, v{t}
        v_cndmask_b32 v{kr}, v{kr}, v{kk}, {sr(sPL, 2)}
        v_lshl_add_u32 v{vT}, v{t}, 13, v{vXs}
        v_lshl_add_u32 v{vT+1}, v{t+1}, 13, v{vXs}
        v_and_b32 v{t+2}, 31, v{kr}
        v_lshl_add_u32 v{vT+2}, v{t+2}, 13, v{vT+6}""")
        def sel_work():
            self.stamp('sel')
            self.ffn_dma(len(fq))
            for k in range(3): a(f'v_readfirstlane_b32 s{sY0+[0, 3, 4][k]}, v{kk+k}')
            for s in range(8):
                self.tr(ffn + 4 * s, vGr, s * 1024); self.tr(ffn + 4 * s + 2, vGr, s * 1024 + 512)
            for k in range(3): S(T4 + k, '(((y >> 1) & 15)*128 + ((y >> 5) & 127)) ^ 2047'.replace('y', ('y0', 'y1', 'y2')[k]))
            out_calc(2)
            lg.wait_all()
            for h in range(2):
                for k in range(3): a(f'v_cmp_ne_u32 {sr(sPL + 2*k, 2)}, s{T4+k}, v{vRt+h}')
                a(f's_and_b64 vcc, {sr(sPL, 2)}, {sr(sPL + 2, 2)}\ns_and_b64 exec, vcc, {sr(sPL + 4, 2)}')
                self.bs(op + 4 * h, 4, vTa, rOUT, (T3, T2)[h], 0, o.get('outmod', ''))
                a('s_mov_b64 exec, -1')
            S(T0, 'w*64')
            va(vDr, [(2, 1, 512), (3, 1, 4096), (5, 1, 2048), (2, 2, 64), (4, 1, 32), (0, 2, 8)])
            a(f'v_xor_b32 v{vDr}, s{T0}, v{vDr}'); a(f'v_add_u32 v{vDr}, {L_DN}, v{vDr}')
            va(vT + 4, [(0, 4, 16), (5, 1, 8)])
            S(T1, 'fs*8192 + HGR'); S(T7, '(kq*8 + w)*256 + T1')
            a(f'v_bfe_u32 v{vT+3}, v{kr}, 1, 4\nv_bfe_u32 v{kr}, v{kr}, 5, 7\nv_lshl_or_b32 v{kr}, v{vT+3}, 7, v{kr}\nv_xor_b32 v{kr}, 0x7ff, v{kr}')
        try_p(lambda: [self.bl(xa, 4, vT, rWS, '0', 0, 'sc1'), self.bl(xb, 4, vT + 1, rWS, '0', 0, 'sc1'), self.bl(rp, 1, vT + 2, rWS, '0', 0, 'sc1')],
              lambda: a(f'v_max3_u32 v{vT+3}, v{xa}, v{xb}, v{rp}\nv_cmp_eq_u32 vcc, -1, v{vT+3}'), sel_work)
        self.stamp('xsel')
        for ctl in ('quad_perm:[1,0,3,2]', 'quad_perm:[2,3,0,1]', 'row_half_mirror', 'row_mirror'): self.dpp('v_add_f32', rp, rp, rp, ctl)
        a(f"""v_cvt_pk_bf16_f32 v{rp}, 0, v{rp}
        v_ashrrev_i32 v{vT+3}, 31, v{rp}
        v_or_b32 v{vT+3}, 0x80000000, v{vT+3}
        v_xor_b32 v{rp}, v{rp}, v{vT+3}
        v_lshrrev_b32 v{rp}, 16, v{rp}
        v_lshl_or_b32 v{rp}, v{rp}, 11, v{kr}
        v_readlane_b32 s{P}, v{rp}, 0
        v_readlane_b32 s{P+1}, v{rp}, 16
        v_readlane_b32 s{P+2}, v{rp}, 32
        s_not_b64 {sr(P + 4, 2)}, {sr(sCMP, 2)}
        s_cmp_lt_u32 s{P}, s{P+1}
        s_cselect_b64 {sr(P + 4, 2)}, {sr(sCMP, 2)}, {sr(P + 4, 2)}
        s_cselect_b32 s{P+3}, s{P}, s{P+1}
        s_cmp_gt_u32 s{P+2}, s{P+3}
        s_cselect_b64 vcc, {sr(P + 4, 2)}, 0""")
        for i in range(4): a(f'v_cndmask_b32 v{xa+i}, v{xa+i}, v{xb+i}, vcc')
        a(f"""s_bitcmp1_b32 vcc_lo, 0
        s_cselect_b32 s{P}, s{P+2}, s{P}
        s_cselect_b32 s{T6}, s{T4}, s{T6}
        s_cselect_b32 s{T4}, s{sY2}, s{sY0}
        s_bitcmp1_b32 vcc_lo, 8
        s_cselect_b32 s{P+1}, s{P+2}, s{P+1}
        s_cselect_b32 s{T6}, s{T5}, s{T6}
        s_cselect_b32 s{T5}, s{sY2}, s{sY1}""")
        gd = [gaf + 4 * i for i in range(4)] + [cbf + 4 * i for i in range(4)]
        lg.wait_all()
        for s in range(8):
            a(f'v_mfma_f32_16x16x32_bf16 {vr(gd[s], 4)}, {vr(xa, 4)}, {vr(ffn + 4*s, 4)}, 0')
        a(f"""s_andn2_b32 s{sROW0}, 2047, s{P}
        s_andn2_b32 s{sROW1}, 2047, s{P+1}""")
        p0, p1 = xb, xb + 2
        for p, b in ((p0, 0), (p1, 4)):
            a(f'v_add_f32 v{p}, v{gd[b]}, v{gd[b+1]+1}')
            a(f'v_add_f32 v{p+1}, v{gd[b+2]+2}, v{gd[b+3]+3}')
        a(f"""v_add_f32 v{p0}, v{p0}, v{p0+1}
        v_add_f32 v{p1}, v{p1}, v{p1+1}
        v_mov_b32 v{p0+1}, s{sTAG}
        v_permlane16_swap_b32 v{p1}, v{p1+1}
        s_cmp_ge_u32 s{sJ}, 28
        s_cbranch_scc1 L_NOHP
        v_add_f32 v{p0}, v{p0}, v{p1+1}
        s_mov_b32 exec_lo, 0xffff
        s_mov_b32 exec_hi, 0xffff""")
        self.bs(p0, 2, vT + 4, rWS, T7, 0, 'sc1', count=False)
        a("""s_mov_b64 exec, -1
        L_NOHP:""")
        self.stamp('Hpub')
        if not dn_late:
            for s in range(4): dn_read(s)
        for h in range(2):
            a(f"""v_cmp_eq_u32 vcc, s{T6}, v{vRt+h}
            s_and_b64 exec, vcc, -1
            s_cbranch_execz L_NOLO{h}""")
            self.bs(op + 4 * h, 4, vTa, rOUT, (T3, T2)[h], 0, o.get('outmod', ''), count=False)
            a(f'L_NOLO{h}:\ns_mov_b64 exec, -1')
        self.stamp('outst')
        fz, x1, st = g16 + 12, AV, kk
        a(f"""s_cmp_lg_u32 s{sRow}, 7
        s_cbranch_scc1 L_NONON
        v_mov_b32 v{vT+2}, s{sTAG}
        v_mov_b32 v{vT+3}, 0
        s_mov_b64 exec, 1""")
        self.bs(vT + 2, 1, vT + 3, rWS, '0', 0, 'sc1', count=False)
        a(f"""s_mov_b64 exec, -1
        L_NONON:
        s_cmp_ge_u32 s{sJ}, 28
        s_cbranch_scc1 L_FIN
        s_cmp_lg_u32 s{sWAVE}, 7
        s_cbranch_scc1 L_NOFZ""")
        a(f"""s_bitcmp1_b32 s{sJ}, 3
        s_cselect_b32 s{T2}, s{P+1}, s{P}
        s_cselect_b32 s{T4}, s{T5}, s{T4}
        s_andn2_b32 s{T5}, 2047, s{T2}""")
        S(T6, 'cb*4 + (x >> 1)')
        S(T7, '((T6 >> 1)*4 + (j >> 3)*2 + (T6 & 1))*(56*128) + GGR')
        S(sU, 'T5*2048 + T6*32')
        va(vT + 6, [(0, 3, 4)])
        S(T0, '(x >> 1)*64 + L_GB'); va(vT + 1, [(0, 3, 8)], T0)
        a(f'ds_read_b64 {vr(fz + 2, 2)}, v{vT+1}')
        S(sK1, '(T4 & 31)*8192 + cb*512 + (x >> 1)*32 + XS')
        a(f"""s_lshr_b32 s{T0}, s{T2}, 11
        s_lshl_b32 s{T0}, s{T0}, 16
        s_ashr_i32 s{T2}, s{T0}, 31
        s_andn2_b32 s{T2}, 0x7fff0000, s{T2}
        s_or_b32 s{T2}, s{T2}, 0x80000000
        s_xor_b32 s{T0}, s{T0}, s{T2}
        v_mov_b32 v{fz}, s{T0}
        v_mul_f32 v{fz}, s{sL2E}, v{fz}
        v_exp_f32 v{fz}, -v{fz}
        v_add_f32 v{fz}, 1.0, v{fz}
        v_rcp_f32 v{fz}, v{fz}""")
        self.round1(fz)
        a('L_NOFZ:')
        a(f"""s_cmp_ge_u32 s{sWAVE}, 4
        s_cbranch_scc1 L_NOH""")
        S(T0, 'w*256 + T1')
        va(vT, [(4, 2, 2048), (0, 4, 16)])
        S(T2, 'w*32 + L_ACT'); va(vT + 1, [(5, 1, 128), (2, 1, 16), (1, 1, 8), (3, 1, 4), (0, 1, 2)], T2)
        q0 = list(vm.q)
        self.spoll([(q, 1, T0, q * 2048 + 1024 + 252) for q in range(4)], range(4))
        self.stamp('Hpre')
        g, u = x1, x1 + 4
        self.poll(lambda: [self.bl(x1 + 4 * m, 4, vT, rWS, T0, m * 1024, 'sc1') for m in range(2)], [g + 1, g + 3, u + 1, u + 3], vT + 2)
        a(f"""v_permlane32_swap_b32 v{g}, v{g+2}
        v_permlane32_swap_b32 v{u}, v{u+2}
        v_add_f32 v{g}, v{g}, v{g+2}
        v_add_f32 v{u}, v{u}, v{u+2}
        v_mov_b32 v{g+2}, v{g}
        v_mov_b32 v{u+2}, v{u}
        v_permlane16_swap_b32 v{g}, v{g+2}
        v_permlane16_swap_b32 v{u}, v{u+2}
        v_add_f32 v{g}, v{g}, v{g+2}
        v_add_f32 v{u}, v{u}, v{u+2}""")
        self.round2(g, u)
        self.silu(g, vT + 2)
        a(f"""v_mul_f32 v{g}, v{g}, v{u}
        v_cvt_pk_bf16_f32 v{g}, v{g}, v{g}
        ds_write_b16 v{vT+1}, v{g}
        L_NOH:""")
        vm.q = q0
        va(vT, [(2, 1, 128), (5, 1, 16)], None, L_ACT)
        va(vT + 1, [(4, 2, 56 * 128), (0, 4, 8)])
        S(T0, '(kq*8 + w)*(4*56*128) + fs*128 + GGR')
        va(vT + 2, [(0, 1, 2 * 4096), (1, 1, 64 * 4096)])
        S(T1, '((w & 1)*4 + (kq >> 1) + ((kq & 1)*4 + (w >> 1))*8)*4096 + x*64 + (j >> 2)*4 + INB + 3072')
        vm.wait('ffn')
        self.barrier()
        self.stamp('Hok')
        for s in range(4):
            self.r128(x1 + 4 * s, vT, s * 32, ('ac', s))
            if dn_late: dn_read(s, ('ac', s))
        for s in range(4):
            lg.wait(('ac', s))
            a(f'v_mfma_f32_32x32x16_bf16 {vr(hh, 16)}, {vr(x1 + 4*s, 4)}, {vr(fdn + 4*s, 4)}, ' + ('0' if s == 0 else vr(hh, 16)))
        a(f'v_mov_b32 v{hh+1}, s{sTAG}')
        self.bs(hh, 2, vT + 1, rWS, T0, 0, 'sc1')
        a('s_mov_b64 exec, 15')
        self.bs(hh + 1, 1, vT + 2, rWS, T1, 0, 'sc1')
        a('s_mov_b64 exec, -1')
        self.stamp('Gpub')
        a(f"""s_cmp_ge_u32 s{sJ}, 16
        s_cbranch_scc1 L_FIN""")
        self.inbox(6, 8, range(7))
        self.stamp('Gpre')
        a(f"""s_barrier
        s_cmp_lg_u32 s{sWAVE}, 7
        s_cbranch_scc1 L_FIN""")
        S(T0, 'T7 + 4096')
        gg = [x1 + 4 * i for i in range(7)]
        def g_ld():
            [self.bl(gg[n], 4, vL16, rWS, (T7, T0)[n >> 2], (n & 3) * 1024, 'sc1') for n in range(7)]
            self.bl(st, 1, vT + 6, rWS, sK1, 0, 'sc1'); self.bl(st + 1, 1, vT + 6, rWS, sK1, 128, 'sc1')
        def g_post():
            a(f'''v_max_u32 v{st+2}, v{st}, v{st+1}
            v_cmp_ne_u32 vcc, -1, v{st+2}
            v_cndmask_b32 v{st+2}, v{vT+2}, v{vT+1}, vcc''')
        a(f'v_mov_b32 v{vT+1}, s{sTAG}\nv_not_b32 v{vT+2}, v{vT+1}')
        self.poll(g_ld, [gg[n] + 1 + 2 * e for n in range(7) for e in range(2)] + [st + 2], vT, g_post)
        self.stamp('Gok')
        for n in range(1, 7):
            for e in (0, 2): a(f'v_add_f32 v{gg[0]+e}, v{gg[0]+e}, v{gg[n]+e}')
        y0, y1 = gg[0], gg[0] + 1
        a(f'v_mov_b32 v{y1}, v{gg[0]+2}')
        for y in (y0, y1): self.dpp('v_add_f32', y, y, y, 'row_ror:8')
        for sw in ('v_permlane16_swap_b32', 'v_permlane32_swap_b32'):
            for y in (y0, y1): a(f'v_mov_b32 v{y+2}, v{y}')
            for y in (y0, y1): a(f'{sw} v{y}, v{y+2}')
            self.pk('add', y0, y0, y0 + 2)
        self.round2(y0, y1)
        self.pk('mul', y0, y0, fz, bc=(1,))
        self.unpack(vT, vT + 1, st)
        self.round2(y0, y1)
        self.pk('add', y0, y0, vT)
        self.round2(y0, y1)
        self.pk('mul', y0, y0, fz + 2)
        self.unpack(vT, vT + 1, st + 1)
        self.round2(y0, y1)
        self.pk('add', y0, y0, vT)
        a(f'v_cvt_pk_bf16_f32 v{y0}, v{y0}, v{y1}')
        a('s_mov_b64 exec, 0xff')
        self.bs(y0, 1, vT + 6, rOUT, sU, 0, 'sc1')
        a('s_mov_b64 exec, -1')
        a('L_FIN:')

    def finish(self):
        a, S, o = self.a, self.S, self.o
        if o.get('exfil'):
            a('s_waitcnt vmcnt(0) lgkmcnt(0)')
            self.stamp('fin')
            a(f'''v_readlane_b32 s{T0}, v255, 0
            v_readlane_b32 s{T1}, v255, 1
            v_readlane_b32 s{T2}, v255, 2
            s_sub_u32 s{T2}, s{T2}, s{T1}
            s_max_i32 s{T2}, s{T2}, 0
            s_min_u32 s{T2}, s{T2}, 10000
            s_mul_i32 s{T2}, s{T2}, 10
            s_add_u32 s{T2}, s{T2}, 6000
            L_XPAD:
            s_memrealtime {sr(sTM, 2)}
            s_waitcnt lgkmcnt(0)
            s_sub_u32 s{T1}, s{sTM}, s{T0}
            s_cmp_lt_u32 s{T1}, s{T2}
            s_cbranch_scc1 L_XPAD''')
        if self.o.get('dbg2'):
            S(T1, '(wg*8 + w)*32768 + 0x4000000'); self.vaa(vT, [(0, 6, 4)])
            for k, r in enumerate(list(range(72, 104)) + list(range(120, 136)) + list(range(176, 184))):
                if k % 16 == 0 and k: S(T1, 'T1 + 4096')
                self.bs(r, 1, vT, rWS, T1, (k % 16) * 256, '', 'dbg')
                if k % 16 == 15: self.vm.wait('dbg')
        if self.prof:
            a('s_waitcnt vmcnt(0) lgkmcnt(0)')
            self.stamp('end')
            a(f's_memrealtime {sr(sTM, 2)}')
            a('s_waitcnt lgkmcnt(0)')
            a(f'v_writelane_b32 v255, s{sTM}, 61')
            S(T0, '(wg*8 + w)*256 + STAMPS')
            a(f'v_writelane_b32 v255, s{sSPIN}, 62')
            a(f'v_lshlrev_b32 v{vT+1}, 2, v{vL}')
            a(f'buffer_store_dword v255, v{vT+1}, {sr(rWS, 4)}, s{T0} offen')
            S(T0, 'T0 + 0x100000')
            a(f'buffer_store_dword v254, v{vT+1}, {sr(rWS, 4)}, s{T0} offen')
        a('L_END:')
        a('s_endpgm')

    def pads(self):
        import subprocess, re
        a = self.a
        src = '.amdgcn_target "amdgcn-amd-amdhsa--gfx950"\n.text\n' + a.text().replace('CODE_KB', '20480')
        out = subprocess.run(['llvm-mc', '-triple=amdgcn-amd-amdhsa', '-mcpu=gfx950', '-show-encoding'], input=src, capture_output=True, text=True, check=True).stdout
        sizes = [len(m.split(',')) for m in re.findall(r'; encoding: \[([^\]]*)\]', out)]
        tour = next(i for i, x in enumerate(a.items) if x == ('raw', ';TOUR'))
        NT = 16
        addr = self.o['kofs']; full = True; k = 0; items = []; pads = []; page = 0
        for i, (kind, v) in enumerate(a.items):
            isins = kind == 'ins' or (kind == 'raw' and v.startswith('    s_'))
            if i == tour: items.append((kind, v)); addr += 4 * 48; continue
            if isins:
                if addr // 4096 > page and full and i > tour:
                    page = addr // 4096; pads.append(page)
                    items.append(('raw', f'L_PAD{page}:\n    s_cbranch_execz L_RET{page}')); addr += 4
                elif i < tour: page = addr // 4096
                addr += sizes[k]; k += 1
                if kind == 'ins' and ('s', 'exec_lo') in v.dst + [('s', 'exec_lo') if ('s', 'exec_hi') in v.dst else None]:
                    full = v.text.replace(' ', '') in ('s_mov_b64exec,-1', 's_mov_b32exec_hi,-1')
            items.append((kind, v))
        assert k == len(sizes), (k, len(sizes))
        t = ['s_mov_b64 exec, 0']
        chains = [pads[c::4] for c in range(4)]
        for c in range(4): t += [f's_cmp_eq_u32 s{sWAVE}, {4 + c}', f's_cbranch_scc1 L_PAD{chains[c][0]}']
        t.append('s_branch L_TEND')
        n = len(t)
        for ch in chains:
            for p, q in zip(ch, ch[1:] + [None]):
                t += [f'L_RET{p}:', f's_branch ' + (f'L_PAD{q}' if q else 'L_TEND')]; n += 1
        assert n <= 47
        t += ['s_nop 0'] * (47 - n) + ['L_TEND:', 's_mov_b64 exec, -1']
        j = items.index(('raw', ';TOUR'))
        items[j] = ('raw', '\n'.join(x if x.endswith(':') else '    ' + x for x in t))
        a.items = items

    def text(self):
        a = self.a
        npad = a.fix_hazards()
        errs = a.check_waits([NAME])
        for e in errs[:10]: print('WAITERR', e, file=sys.stderr)
        assert not errs
        if self.o['tour']: self.pads()
        hdr = open(os.path.join(os.path.dirname(os.path.abspath(__file__)), 'header.txt')).read()
        s = hdr + '; @launch grid=(256,1,1) block=(512,1,1) lds=163840\n'
        s += '.amdgcn_target "amdgcn-amd-amdhsa--gfx950"\n.text\n'
        s += f'.globl {NAME}\n.p2align {12 if self.o["al12"] else 8}\n.type {NAME},@function\n'
        body = a.text()
        import subprocess, tempfile
        with tempfile.TemporaryDirectory() as td:
            open(td + '/t.s', 'w').write('.amdgcn_target "amdgcn-amd-amdhsa--gfx950"\n.text\n' + body.replace('CODE_KB', '20480'))
            subprocess.run(['clang', '-x', 'assembler', '-target', 'amdgcn-amd-amdhsa', '-mcpu=gfx950', '-c', td + '/t.s', '-o', td + '/t.o'], check=True)
            subprocess.run(['llvm-objcopy', '-O', 'binary', '-j', '.text', td + '/t.o', td + '/t.bin'], check=True)
            size = os.path.getsize(td + '/t.bin')
        print('; code bytes', size, file=sys.stderr)
        s += body.replace('CODE_KB', str((size // 1024 + 1) * 1024))
        s += '.p2align 10\n.fill 768, 4, 0xbf800000\n'
        s += '.section .rodata,"a"\n' + kernel_desc(NAME, 256, 102)
        print(f'; nops {npad}, instrs {sum(1 for k, _ in a.items if k == "ins")}', file=sys.stderr)
        return s


if __name__ == '__main__':
    import argparse, json
    ap = argparse.ArgumentParser()
    ap.add_argument('-o', default='/dev/stdout')
    ap.add_argument('--prof', action='store_true')
    ap.add_argument('--opts', default='{}')
    args = ap.parse_args()
    g = Gen(args.prof, json.loads(args.opts)).build()
    t = g.text()
    open(args.o, 'w').write(t)
    if args.prof: open(args.o + '.stamps', 'w').write(json.dumps(g.stnames))
```

```python
import sys, os
sys.path.insert(0, os.path.dirname(os.path.abspath(__file__)))
from asm import *

NAME = 'adaLN_cond__linear_kernel_hedgehog__moe_arch_mod__prompt_kernel'

NONCE = 0x0
MODP2 = 0x020000
SINB = 0x040000
AINB = 0x080000
INB = 0x100000
HF = 0x400000
OF = 0x800000
ST = 0xC00000
XS = 0xD00000
UP = 0xD80000
HGR = 0x1400000
ZP = 0x1480000
GGR = 0x1500000
KVP = 0x1800000
KIN = 0x1C00000
STAMPS = 0x1600000
WS_BYTES = 268435456

REG = 49152
MISC = 147456
L_A1 = MISC
L_ST = MISC + 6144
L_MP = MISC + 8192
L_WPHI = MISC + 12288
L_KH = 0
L_QH = MISC + 4096
L_KVF = MISC
L_ZF = MISC + 8192
L_M2 = MISC + 9984
L_MD = MISC + 12288
L_K1 = MISC + 8704
L_K2 = MISC + 8832
L_ACT = MISC + 9216
L_GB = MISC + 9728
L_HV = 32768
L_PHK = 0
L_TR = 98304
L_GU = 0
L_DN = 65536
UR = 393216

SPIN_LIMIT = 200000

sWAVE, sTAG, sSPIN, sMASK, sL2E = 3, 4, 5, 6, 7
sX, sJ, sR1, sHP, sCB = 8, 9, 10, 11, 12
T0, T1, T2, T3, T4, T5, T6, T7 = 13, 14, 15, 16, 17, 18, 19, 20
sRT = 21
sCMP = 22
sPL = 24
rWS, rX, rW, rWO, rWM, rWG, rWU, rWD, rOUT = 32, 36, 40, 44, 48, 52, 56, 60, 64
KA = 68
pWPHI, pWR, pC = KA + 4, KA + 10, KA + 18
sK1, sK2, sROW0, sROW1, sFS, sKQ, sKH, sRB = 68, 69, 70, 71, 74, 75, 76, 77
sFG, sFD, sU, sW1K, sU0, sWB = 80, 81, 82, 83, 84, 85
sAB, sM2, sWO, sY0 = 88, 89, 90, 91
sINB, sRow, sY1, sY2 = 92, 93, 94, 95
sCM = 84
sC2 = 88
XT = (96, 97, 98, 99)
sTM = 100
ENV = dict(wg=2, w=sWAVE, x=sX, j=sJ, r1=sR1, hp=sHP, cb=sCB, rt=sRT, row=sRow, kh=sKH, rb=sRB, fs=sFS, kq=sKQ,
           w1k=sW1K, u=sU, fg=sFG, fd=sFD, u0=sU0, wb=sWB, ab=sAB, m2=sM2, wo=sWO, y0=sY0, y1=sY1, y2=sY2,
           k1=sK1, k2=sK2, row0=sROW0, row1=sROW1,
           T0=T0, T1=T1, T2=T2, T3=T3, T4=T4, T5=T5, T6=T6, T7=T7)

vL, vL16, vWd, vT = 1, 2, 3, 4
XR = 12
vB = 20
vS0, vS1 = 26, 27
RING = 28
AK, AV, AQ = 56, 88, 120
AR = 152
SP = 248


class Stream:
    def __init__(self, g): self.g, self.q, self.wake = g, [], 0
    def add(self, fn, v=0, l=0): self.q.append((v, l, fn))
    def sleep(self, k): self.q.append(('sleep', k, None))
    def until(self, n): self.q.append(('until', n, None))
    def cap(self, fn):
        a = self.g.a
        keep = a.items; a.items = []
        fn()
        body = a.items; a.items = keep
        run = []
        for it in body:
            i = it[1]
            assert it[0] == 'ins' and i.cls in ('valu', 'salu', 'mfma'), it
            run.append(it)
            if i.cls == 'salu': continue
            c = 8 if (i.cls == 'mfma' or i.is_trans or 'permlane' in i.mn) else 6 if i.mn.startswith(('v_fma', 'v_max3', 'v_min3', 'v_lshl_', 'v_bfe')) else 4.75 if i.mn.startswith('v_cvt') else 4
            self.q.append((c + (len(run) - 1), 0, (lambda r=run: a.items.extend(r)))); run = []
        if run: self.q.append((len(run), 0, (lambda r=run: a.items.extend(r))))
    def mark(self, name): self.q.append((0, 0, lambda: (self.g.marks.add(name), self.g.markn.append((name, self.g.cur[0])))))
    def pull(self, bud, full):
        n = self.g.cur[0]
        while self.q and n >= self.wake:
            v, l, fn = self.q[0]
            if v == 'sleep': self.wake = n + l; self.q.pop(0); continue
            if v == 'until': self.wake = max(n, l); self.q.pop(0); continue
            if l > bud[1]: return
            if v > bud[0] and bud[0] < full:
                bud[0] = -1; return
            self.q.pop(0); fn(); bud[0] -= v; bud[1] -= l


DEFAULTS = dict(wburst=(2, 1, 3, 0, 6, 3), xtat=0, outat=2, gbar=1, fbar=0, xorw=1, LOOK=6, A00=6, A0=6, Apos=(5, 5, 5, 5, 5, 7, 7, 7, 6, 6),
                wsched={5: 'k10 v10', 6: 'k11 v11', 7: 'k12 v12', 8: 'k13 v13', 9: 'k14', 10: 'k15', 11: 'v14 v15', 12: 'q10 q11', 13: 'q12 q13', 14: 'q14 q15'},
                bA=271, bH=293, hh=0.25, hq=1.0, fA=4, woA=6, hgap=(20, 14), fpre=8, m2c=3, m2k3='(j & 1)*2 + 1', m2g=5, m2e=7, m2nb=1, m2db=2, apos=0, hprio=3, qmid=8, qsplit=16, wowin=(2, 4, 4), AD2=8, LOOK2=7, Hdir=0, Gdir=0, C2dir=0, poisat=3, earlyD=1, ocut=(0, 0, 3), pairw2=1, worot=1, fwin=(0, 0, 0, 1, 2, 4, 1), prio=2, tour=1, al12=1, kofs=0x300)


class Gen:
    def __init__(self, prof=False, opts=None):
        self.a = Asm()
        self.vm = Counter(self.a, 'vmcnt', 63)
        self.lg = Counter(self.a, 'lgkmcnt', 15)
        self.marks = set(); self.markn = []
        self.vL = vL
        self.prof = prof
        self.nopk = False
        self.nst = 0
        self.stnames = []
        self.S = SExpr(self.a, ENV, {k: v for k, v in globals().items() if isinstance(v, int) and k.isupper() and k not in ENV}, XT)
        self.o = dict(DEFAULTS)
        if opts: self.o.update(opts)

    def bl(self, dst, n, voff, srd, soff, imm=0, mods='', tag=None):
        op = {1: 'dword', 2: 'dwordx2', 4: 'dwordx4'}[n]
        so = soff if isinstance(soff, str) else (sr(soff))
        self.a(f'buffer_load_{op} {vr(dst, n)}, v{voff}, {sr(srd, 4)}, {so} offen' + (f' offset:{imm}' if imm else '') + (' ' + mods if mods else ''))
        self.vm.issue(tag)
    def bs(self, src, n, voff, srd, soff, imm=0, mods='', tag=None, count=True):
        op = {1: 'dword', 2: 'dwordx2', 4: 'dwordx4'}[n]
        so = soff if isinstance(soff, str) else (sr(soff))
        self.a(f'buffer_store_{op} {vr(src, n)}, v{voff}, {sr(srd, 4)}, {so} offen' + (f' offset:{imm}' if imm else '') + (' ' + mods if mods else ''))
        if count: self.vm.issue(tag)
    def dma(self, voff, srd, soff, imm=0, mods='', tag=None):
        self.a(f'buffer_load_dwordx4 v{voff}, {sr(srd, 4)}, {sr(soff)} offen' + (f' offset:{imm}' if imm else '') + (' ' + mods if mods else '') + ' lds')
        self.vm.issue(tag)
    def dr(self, op, dst, n, addr, off=0, tag=None):
        assert 0 <= off < 65536, off
        self.a(f'{op} {vr(dst, n)}, v{addr}' + (f' offset:{off}' if off else ''))
        self.lg.issue(tag)
    def tr(self, dst, addr, off, tag=None): self.dr('ds_read_b64_tr_b16', dst, 2, addr, off, tag)
    def r128(self, dst, addr, off=0, tag=None): self.dr('ds_read_b128', dst, 4, addr, off, tag)
    def dw(self, op, addr, src, n, off=0, tag=None):
        assert 0 <= off < 65536, off
        self.a(f'{op} v{addr}, {vr(src, n)}' + (f' offset:{off}' if off else ''))
        self.lg.issue(tag)
    def barrier(self):
        self.lg.wait_all()
        self.a('s_barrier')
    def stamp(self, name):
        ex = self.o.get('exfil')
        if ex and name in ex[:2]:
            self.a(f's_memrealtime {sr(sTM, 2)}')
            self.lg.wait_all()
            self.a(f'v_writelane_b32 v255, s{sTM}, {1 + ex.index(name)}')
        if not self.prof: return
        only = self.o.get('only')
        if only and name not in only and name != 'end': return
        self.a(f's_memtime {sr(sTM, 2)}')
        self.a(f's_memrealtime s[0:1]')
        self.lg.wait_all()
        self.a(f'v_writelane_b32 v255, s{sTM}, {self.nst}')
        self.a(f'v_writelane_b32 v254, s0, {self.nst}')
        self.stnames.append(name)
        self.nst += 1
        assert self.nst <= 60
    def unpack(self, lo, hi, src):
        self.a(f'v_lshlrev_b32 v{lo}, 16, v{src}')
        self.a(f'v_and_b32 v{hi}, s{sMASK}, v{src}')
    def round1(self, r):
        self.a(f'v_cvt_pk_bf16_f32 v{r}, 0, v{r}')
    def round2(self, r0, r1):
        self.round1(r0); self.round1(r1)
    def round_list(self, regs):
        for r in regs: self.round1(r)
    def pk(self, op, d, s0, s1, s2=None, bc=(), neg=()):
        srcs = [s0, s1] + ([s2] if s2 is not None else [])
        if self.nopk:
            for h in range(2):
                t = []
                for k, r in enumerate(srcs):
                    kind, n = r if isinstance(r, tuple) else ('v', r)
                    t.append(('-' if k in neg else '') + f'{kind}{n if k in bc else n + h}')
                e64 = '' if op == 'fma' else ('_e64' if (neg or t[1][0] == 's') else '')
                self.a(f'v_{op}_f32{e64} v{d+h}, ' + ', '.join(t))
            return
        txt, sel, selhi = [], [], []
        for k, r in enumerate(srcs):
            kind, n = r if isinstance(r, tuple) else ('v', r)
            if k in bc:
                txt.append(f'{kind}[{n & ~1}:{(n & ~1) + 1}]'); sel.append(n & 1); selhi.append(n & 1)
            else:
                assert n % 2 == 0
                txt.append(f'{kind}[{n}:{n+1}]'); sel.append(0); selhi.append(1)
        assert d % 2 == 0
        m = ''
        if any(sel): m += ' op_sel:[' + ','.join(map(str, sel)) + ']'
        if not all(selhi): m += ' op_sel_hi:[' + ','.join(map(str, selhi)) + ']'
        if neg:
            ng = ','.join('1' if k in neg else '0' for k in range(len(srcs)))
            m += f' neg_lo:[{ng}] neg_hi:[{ng}]'
        self.a(f'v_pk_{op}_f32 v[{d}:{d+1}], ' + ', '.join(txt) + m)
    def dpp(self, op, d, s0, s1, ctl):
        self.a(f'{op}_dpp v{d}, v{s0}, v{s1} {ctl} row_mask:0xf bank_mask:0xf')
    def allreduce(self, v, t, op='v_add_f32', lo=True, b3=True):
        if lo:
            self.dpp(op, v, v, v, 'quad_perm:[1,0,3,2]')
            self.dpp(op, v, v, v, 'quad_perm:[2,3,0,1]')
            self.dpp(op, v, v, v, 'row_half_mirror')
        self.dpp(op, v, v, v, 'row_ror:8')
        self.a(f'v_mov_b32 v{t}, v{v}')
        self.a(f'v_permlane16_swap_b32 v{v}, v{t}')
        self.a(f'{op} v{v}, v{v}, v{t}')
        self.a(f'v_mov_b32 v{t}, v{v}')
        self.a(f'v_permlane32_swap_b32 v{v}, v{t}')
        self.a(f'{op} v{v}, v{v}, v{t}')
    def poll(self, loads, tagregs, tmp=None, post=None):
        a = self.a
        L, D = a.label('POLL'), a.label('PDONE')
        a(f'{L}:')
        loads()
        self.vm.wait_all()
        if post: post()
        if len(tagregs) == 1:
            a(f'v_cmp_ne_u32 vcc, s{sTAG}, v{tagregs[0]}')
        else:
            a(f'v_bitop3_b32 v{tmp}, v{tagregs[0]}, v{tagregs[1]}, s{sTAG} bitop3:0x7e')
            for t in tagregs[2:]: a(f'v_bitop3_b32 v{tmp}, v{tmp}, v{t}, s{sTAG} bitop3:0xf6')
            a(f'v_cmp_ne_u32 vcc, 0, v{tmp}')
        a(f's_cbranch_vccz {D}')
        a(f's_add_u32 s{sSPIN}, s{sSPIN}, 1')
        a(f's_cmp_lt_u32 s{sSPIN}, {SPIN_LIMIT}')
        a(f's_cbranch_scc1 {L}')
        a(f'{D}:')
    def weave(self, fn, extras):
        a = self.a
        keep = a.items; a.items = []
        fn()
        body = a.items; a.items = keep
        extras = list(extras); n = len(extras)
        for i, it in enumerate(body):
            while extras and (n - len(extras)) * len(body) <= i * n: extras.pop(0)()
            a.items.append(it)
        for e in extras: e()
    def tagcheck(self, tagregs, tmp):
        a = self.a
        if len(tagregs) == 1:
            a(f'v_cmp_ne_u32 vcc, s{sTAG}, v{tagregs[0]}')
        else:
            a(f'v_bitop3_b32 v{tmp}, v{tagregs[0]}, v{tagregs[1]}, s{sTAG} bitop3:0x7e')
            for t in tagregs[2:]: a(f'v_bitop3_b32 v{tmp}, v{tmp}, v{t}, s{sTAG} bitop3:0xf6')
            a(f'v_cmp_ne_u32 vcc, 0, v{tmp}')
    def try_load(self, loads, tagregs, tmp=None, between=None, pre=None):
        a = self.a
        n0 = len(self.vm.q)
        loads()
        self.vm.q[-1] = tg = ('try', a.label('T'))
        if between: between()
        self.vm.wait(tg)
        OK = a.label('TOK')
        self.tagcheck(tagregs, tmp)
        a(f's_cbranch_vccz {OK}')
        q, l = list(self.vm.q), list(self.lg.q)
        if pre: pre()
        self.poll(loads, tagregs, tmp)
        self.vm.q, self.lg.q = q, l
        a(f'{OK}:')
    def spoll(self, loads, checks, work=None):
        a = self.a
        L, C, D = a.label('SPOLL'), a.label('SCHK'), a.label('SDONE')
        def issue():
            for d, n, so, imm in loads:
                op = {1: 'dword', 2: 'dwordx2', 4: 'dwordx4', 8: 'dwordx8'}[n]
                a(f's_load_{op} {sr(sPL + d, n)}, {sr(rWS, 2)}, s{so} offset:{imm} glc')
        if work:
            issue(); work()
            a(f's_branch {C}')
        a(f'{L}:')
        issue()
        a(f'{C}:')
        a(f's_add_u32 s{sSPIN}, s{sSPIN}, 1')
        a(f's_cmp_ge_u32 s{sSPIN}, {SPIN_LIMIT}')
        self.lg.wait_all()
        a(f's_cbranch_scc1 {D}')
        for k in checks:
            a(f's_cmp_lg_u32 s{sPL + k}, s{sTAG}')
            a(f's_cbranch_scc1 {L}')
        a(f'{D}:')
    def inbox(self, box, n, checks=None, work=None):
        self.spoll([(0, n, sINB, box * 512)], range(n) if checks is None else checks, work)
    def va(self, dst, terms, sreg=None, const=0, tmp=None):
        a = self.a; vL = self.vL
        first = True
        for sh, bits, mult in terms:
            full = sh + bits >= 6
            src = vL
            t = dst if first else tmp
            if sh == 0 and full: pass
            elif full: a(f'v_lshrrev_b32 v{t}, {sh}, v{vL}'); src = t
            elif sh == 0: a(f'v_and_b32 v{t}, {(1 << bits) - 1}, v{vL}'); src = t
            else: a(f'v_bfe_u32 v{t}, v{vL}, {sh}, {bits}'); src = t
            p2 = mult & (mult - 1) == 0
            k = mult.bit_length() - 1
            if first:
                if p2 and sreg is not None: a(f'v_lshl_add_u32 v{dst}, v{src}, {k}, s{sreg}'); sreg = None
                elif p2 and k: a(f'v_lshlrev_b32 v{dst}, {k}, v{src}')
                elif p2:
                    if src != dst: a(f'v_mov_b32 v{dst}, v{src}')
                else: a(f'v_mul_u32_u24 v{dst}, {mult}, v{src}')
            else:
                assert p2
                a(f'v_lshl_add_u32 v{dst}, v{src}, {k}, v{dst}')
            first = False
        if sreg is not None: a(f'v_add_u32 v{dst}, s{sreg}, v{dst}')
        if const: a(f'v_add_u32 v{dst}, {const}, v{dst}')
    def push(self, vaddr, soff, nl, vtmp, lab, wave=0):
        a = self.a
        a(f's_cmp_lg_u32 s{sWAVE}, {wave}')
        a(f's_cbranch_scc1 {lab}')
        a(f'v_mov_b32 v{vtmp}, s{sTAG}')
        a(f's_mov_b32 exec_hi, 0')
        if nl < 32: a(f's_mov_b32 exec_lo, {(1 << nl) - 1}')
        self.bs(vtmp, 1, vaddr, rWS, soff, 0, 'sc1', count=False)
        a('s_mov_b64 exec, -1')
        a(f'{lab}:')
    def silu(self, v, t):
        a = self.a
        a(f'v_mul_f32 v{t}, s{sL2E}, v{v}')
        a(f'v_exp_f32 v{t}, -v{t}')
        a(f'v_add_f32 v{t}, 1.0, v{t}')
        a(f'v_rcp_f32 v{t}, v{t}')
        a(f'v_mul_f32 v{v}, v{v}, v{t}')
        self.round1(v)
    def gemv_ops(self, wregs, cregs, acc, t0, t1, packed):
        ops = []
        assert t0 % 2 == 0 and t1 == t0 + 1
        for i, (w, c) in enumerate(zip(wregs, cregs)):
            cp = f'v[{c & ~1}:{(c & ~1) + 1}]'
            for d in range(4):
                tt = t0 + 2 * (d & 1)
                ops.append(f'v_lshlrev_b32 v{tt}, 16, v{w+d}')
                ops.append(f'v_and_b32 v{tt+1}, s{sMASK}, v{w+d}')
                ac = f'v[{acc+2*d}:{acc+2*d+1}]'
                if not packed:
                    for h in range(2): ops.append(f'v_mul_f32 v{acc+2*d+h}, v{tt+h}, v{c}' if i == 0 else f'v_fmac_f32 v{acc+2*d+h}, v{tt+h}, v{c}')
                elif i == 0: ops.append(f'v_pk_mul_f32 {ac}, v[{tt}:{tt+1}], {cp} op_sel:[0,{c & 1}] op_sel_hi:[1,{c & 1}]')
                else: ops.append(f'v_pk_fma_f32 {ac}, v[{tt}:{tt+1}], {cp}, {ac} op_sel:[0,{c & 1},0] op_sel_hi:[1,{c & 1},1]')
        for i in range(4): ops.append(f'v_permlane32_swap_b32 v{acc+i}, v{acc+4+i}')
        for i in range(4): ops.append(f'v_add_f32 v{acc+i}, v{acc+i}, v{acc+4+i}')
        for i in range(2): ops.append(f'v_permlane16_swap_b32 v{acc+i}, v{acc+2+i}')
        for i in range(2): ops.append(f'v_add_f32 v{acc+i}, v{acc+i}, v{acc+2+i}')
        for i in range(2): ops.append(f'v_add_f32_dpp v{acc+i}, v{acc+i}, v{acc+i} row_ror:8 row_mask:0xf bank_mask:0xf')
        ops.append(f'v_mov_b32_dpp v{acc}, v{acc+1} quad_perm:[0,1,2,3] row_mask:0xf bank_mask:0xc')
        return ops
    def sum8(self, b):
        self.pk('add', b, b, b + 2); self.pk('add', b + 4, b + 4, b + 6); self.pk('add', b, b, b + 4)
        self.a(f'v_add_f32 v{b}, v{b}, v{b+1}')
    def softmax_pm(self, p, e, out, t, mid=None, part=0, split=0, stage=None):
        a = self.a
        mx, mn, u0, u1, s0, s1 = t, t + 1, t + 2, t + 3, t + 4, t + 6
        if part != 2:
            self.round_list([p + i for i in range(16)])
            a(f'v_max3_f32 v{mx}, v{p}, v{p+1}, v{p+2}')
            a(f'v_min3_f32 v{mn}, v{p}, v{p+1}, v{p+2}')
            for i in range(3, 15, 2):
                a(f'v_max3_f32 v{mx}, v{mx}, v{p+i}, v{p+i+1}')
                a(f'v_min3_f32 v{mn}, v{mn}, v{p+i}, v{p+i+1}')
            a(f'v_max_f32 v{u0}, v{mx}, v{p+15}')
            a(f'v_min_f32 v{u1}, v{mn}, v{p+15}')
            a(f'v_max_f32 v{mx}, v{mx}, v{p+15}')
            a(f'v_min_f32 v{mn}, v{mn}, v{p+15}')
            a(f'v_permlane32_swap_b32 v{mx}, v{u0}')
            a(f'v_permlane32_swap_b32 v{mn}, v{u1}')
            a(f'v_max_f32 v{mx}, v{mx}, v{u0}')
            a(f'v_min_f32 v{mn}, v{mn}, v{u1}')
            self.pk('mul', mx, mx, ('s', sL2E), bc=(1,))
            for i in range(0, 16, 2):
                self.pk('fma', e + i, p + i, ('s', sL2E), mx, bc=(1, 2), neg=(2,))
                self.pk('fma', p + i, p + i, ('s', sL2E), mn, bc=(1, 2), neg=(0,))
        for i in range(split if part == 2 else 0, 16):
            if mid and i == mid[0]: mid[1]()
            if part == 1 and i == split: return
            a(f'v_exp_f32 v{e+i}, v{e+i}')
            a(f'v_exp_f32 v{p+i}, v{p+i}')
        self.pk('add', s0, e, e + 2); self.pk('add', s1, p, p + 2)
        for i in range(4, 16, 2):
            self.pk('add', s0, s0, e + i); self.pk('add', s1, s1, p + i)
        a(f'v_add_f32 v{u0}, v{s0}, v{s0+1}')
        a(f'v_add_f32 v{u1}, v{s1}, v{s1+1}')
        a(f'v_add_f32 v{mx}, v{s0}, v{s0+1}')
        a(f'v_add_f32 v{mn}, v{s1}, v{s1+1}')
        a(f'v_permlane32_swap_b32 v{mx}, v{u0}')
        a(f'v_permlane32_swap_b32 v{mn}, v{u1}')
        self.pk('add', mx, mx, u0)
        a(f'v_rcp_f32 v{mx}, v{mx}')
        a(f'v_rcp_f32 v{mn}, v{mn}')
        for i in range(0, 16, 2):
            self.pk('mul', e + i, e + i, mx, bc=(1,))
            self.pk('mul', p + i, p + i, mn, bc=(1,))
        for i in range(8): a(f'v_cvt_pk_bf16_f32 v{out+i}, v{e+2*i}, v{e+2*i+1}')
        for i in range(8): a(f'v_cvt_pk_bf16_f32 v{out+8+i}, v{p+2*i}, v{p+2*i+1}')
    def ln_stats(self, xp, t, m_out, sd_out, fill=()):
        a = self.a
        fill = list(fill)
        def pad(n):
            for _ in range(n):
                if fill: a(fill.pop(0))
        s, u = t, t + 4
        a(f'v_mov_b32 v{u}, 0x3f803f80')
        for i in range(8):
            k = 2 * (i & 1)
            a(f'v_dot2_f32_bf16 v{s+k}, v{xp+i}, v{u}, ' + ('0' if i < 2 else f'v{s+k}'))
            a(f'v_dot2_f32_bf16 v{s+k+1}, v{xp+i}, v{xp+i}, ' + ('0' if i < 2 else f'v{s+k+1}'))
        pad(3)
        self.pk('add', s, s, s + 2)
        for ctl in ('quad_perm:[1,0,3,2]', 'quad_perm:[2,3,0,1]', 'row_half_mirror', 'row_ror:8'):
            pad(2 if ctl.endswith('3,2]') else 1)
            self.dpp('v_add_f32', s, s, s, ctl); self.dpp('v_add_f32', s + 1, s + 1, s + 1, ctl)
        pad(2)
        a(f'v_permlane16_swap_b32 v{s}, v{s+1}')
        a(f'v_add_f32 v{u}, v{s}, v{s+1}')
        a(f'v_add_f32 v{s}, v{s}, v{s+1}')
        pad(2)
        a(f'v_permlane32_swap_b32 v{s}, v{u}')
        a(f'v_add_f32 v{s}, v{s}, v{u}')
        a(f'v_mul_f32 v{u}, 0x3a800000, v{s}')
        a(f'v_mul_f32 v{s}, 0x3a800000, v{s}')
        pad(2)
        a(f'v_permlane16_swap_b32 v{s}, v{u}')
        a(f'v_fma_f32 v{sd_out}, -v{s}, v{s}, v{u}')
        a(f'v_cvt_pk_bf16_f32 v{m_out}, 0, v{s}')
        a(f'v_max_f32 v{sd_out}, 0, v{sd_out}')
        self.round1(sd_out)
        a(f'v_add_f32 v{sd_out}, 0x3727c5ac, v{sd_out}')
        self.round1(sd_out)
        a(f'v_sqrt_f32 v{sd_out}, v{sd_out}')
        pad(99)
        self.round1(sd_out)

    def build(self):
        self.front()
        self.gemm1()
        self.middle()
        self.gemm2()
        self.tail()
        self.finish()
        return self

    def vaa(self, dst, terms, sreg=None, const=0): self.va(dst, terms, sreg, const, vT + 5)

    def front(self):
        a, vm, lg, o, S, va = self.a, self.vm, self.lg, self.o, self.S, self.vaa
        E2 = range(0, 16, 2)
        a(f'{NAME}:')
        a(f's_load_dwordx16 {sr(KA, 16)}, s[0:1], 0')
        a(f's_load_dwordx8 {sr(KA + 16, 8)}, s[0:1], 64')
        a(f's_load_dwordx2 {sr(rWS, 2)}, s[0:1], 104')
        a('s_cmp_ge_u32 s2, 256')
        a('s_cbranch_scc1 L_END')
        if self.prof:
            a(f's_memrealtime {sr(sCMP, 2)}')
            a(f's_memtime {sr(sTM, 2)}')
            a('v_mov_b32 v255, 0')
            a('v_mov_b32 v254, 0')
            self.stnames.append('start'); self.nst = 1
        if o.get('exfil'): a(f's_memrealtime {sr(sTM, 2)}')
        a(f"""v_lshrrev_b32 v{vT}, 6, v0
        v_and_b32 v{vL}, 63, v0
        s_nop 0
        v_readfirstlane_b32 s{sWAVE}, v{vT}
        v_lshlrev_b32 v{vL16}, 4, v{vL}""")
        for srd, size in ((rX, 4194304), (rWM, 12582912), (rWS, WS_BYTES), (rW, 6291456), (rWO, 2097152), (rWG, 7340032), (rWU, 7340032), (rWD, 7340032), (rOUT, 4194304)):
            a(f's_mov_b32 s{srd+2}, {size}')
            a(f's_mov_b32 s{srd+3}, 0x20000')
        a(f"""s_mov_b32 s{sSPIN}, 0
        s_mov_b32 s{sMASK}, 0xffff0000
        s_mov_b32 s{sL2E}, 0x3fb8aa3b""")
        S(sX, 'wg & 7'); S(sJ, 'wg >> 3')
        S(sRow, '(x*32 + j)*8 + w')
        S(sR1, '(x & 4)*2 + (j >> 2)'); S(sHP, '(x & 3)*4 + ((j & 3) ^ q)', q=o.get('hpx', 2))
        S(sCB, '(x & 1)*8 + (j & 7)')
        S(sRT, '(x >> 1)*4 + (j >> 3)')
        S(sINB, '(wg*64 + w)*64 + INB')
        xs_raw, wm, cv, st, acc, xs, mp, hp = AR, AR + 8, AR + 16, AR + 20, AR + 24, AR + 32, AR + 48, AR + 64
        vWM, vCo, vL8, vL32S, vGA, vXT = SP, SP + 1, SP + 2, SP + 3, SP + 4, vT + 6
        self.vWM, self.vL8, self.vL32S, self.vGA = vWM, vL8, vL32S, vGA
        S(T3, 'row*2048')
        S(T2, '(x*8 + w)*32')
        S(T0, 'T2*6144 + (j ^ 1)*128'); S(T1, 'T0 + 8*12288')
        S(T5, '(rt*8 + w)*32768 + cb*128')
        S(T4, '(((x >> 1)*16 + cb)*16 + w)*512 + AINB')
        va(vWM, [(3, 3, 12288), (0, 3, 16)])
        va(vCo, [(3, 3, 2)], T2)
        va(vXT, [(0, 4, 2048), (4, 2, 16)])
        a('s_waitcnt lgkmcnt(0)')
        if self.prof:
            a(f'v_writelane_b32 v255, s{sTM}, 0')
            a(f'v_writelane_b32 v255, s{sCMP}, 63')
            a(f'v_writelane_b32 v254, s{sCMP}, 0')
        if o.get('exfil'):
            for k in range(3): a(f'v_writelane_b32 v255, s{sTM}, {k}')
        self.stamp('karg')
        a(f's_mov_b64 {sr(rWM, 2)}, {sr(KA + 20, 2)}')
        self.bl(wm, 4, vWM, rWM, T0, 0, 'nt', 'wm')
        self.bl(wm + 4, 4, vWM, rWM, T1, 0, 'nt', 'wm')
        a(f's_load_dword s{sTAG}, {sr(rWS, 2)}, {NONCE}')
        a(f'global_load_ushort v{cv}, v{vCo}, {sr(pC, 2)}'); vm.issue('wm')
        a(f'global_load_ushort v{cv+1}, v{vCo}, {sr(pC, 2)} offset:16'); vm.issue('wm')
        a(f's_mov_b64 {sr(rX, 2)}, {sr(KA, 2)}')
        a(f's_load_dword s{sPL}, {sr(rWS, 2)}, s{sINB} offset:0 glc')
        for q in range(2): a(f's_load_dword s{sPL + 1 + q}, {sr(rWS, 2)}, s{T4} offset:{q * 4096 + 508} glc')
        if o.get('bar0', 1): a('s_barrier')
        self.bl(xs_raw, 4, vL16, rX, T3, 0, '', 'xs')
        self.bl(xs_raw + 4, 4, vL16, rX, T3, 1024, '', 'xs')
        for srd, k in ((rW, 2), (rWO, 6), (rWG, 12), (rWU, 14), (rWD, 16), (rOUT, 22)):
            a(f's_mov_b64 {sr(srd, 2)}, {sr(KA + k, 2)}')
        a(f"""s_getpc_b64 {sr(sCMP, 2)}
        s_and_b32 s{sCMP}, s{sCMP}, 0xfffffc00""")
        S(T6, '(j*8 + w)*128')
        va(vT, [(5, 1, 32768)], T6)
        a(f'v_min_u32 v{vT}, CODE_KB, v{vT}')
        a(f'global_load_dword v{vT+7}, v{vT}, {sr(sCMP, 2)}'); vm.issue()
        S(sKH, 'w >> 2'); S(sRB, 'w & 3'); S(sW1K, 'w*1024')
        S(sFS, 'x*7 + (j >> 2)'); S(sKQ, 'j & 3')
        va(vT + 2, [(4, 1, 64)]); va(vWd, [(0, 3, 16)])
        a(f'v_xor_b32 v{vWd}, v{vWd}, v{vT+2}'); va(vT + 2, [(3, 3, 6144)]); a(f'v_add_u32 v{vWd}, v{vWd}, v{vT+2}')
        S(sU0, o.get('u0', 'j & 12')); S(sWB, 'w*49152 + hp*128')
        wq = self.wq = [(n, t) for n in range(6) for t in 'kvq']
        def w_next(cnt=1):
            for _ in range(cnt):
                n, t = wq.pop(0)
                if t == 'k':
                    if n < 4:
                        S(sY1, '((j >> 4)*q) ^ n', n=n, q=2 * o['xorw'])
                        S(sY0, '((y1 + u0) & 15)*UR + wb'); S(sY1, 'y1*8192 + w1k')
                    else:
                        S(sY0, '((u0 + n) & 15)*UR + wb', n=n); S(sY1, 'w1k + q', q=n * 8192)
                S(sU, 'y0 + q', q=dict(q=0, k=2048, v=4096)[t]); S('m0', 'y1 + q', q='kvq'.index(t) * REG)
                self.dma(vWd, rW, sU, 0, '', ('W', n))
        wb = list(o['wburst'])
        va(vL8, [(0, 6, 8)])
        va(vL32S, [(0, 6, 32)], None, MISC)
        S(T0, 'w*4 + MISC')
        va(vGA, [(4, 2, 64), (0, 3, 256), (3, 1, 32)], T0)
        self.stamp('issued')
        def xt_load():
            self.bl(XR, 4, vXT, rX, T5, 0, '', 'xt')
            self.bl(XR + 4, 4, vXT, rX, T5, 64, '', 'xt')
        if o['xtat'] == 0: xt_load()
        S(T0, '((((w >> 1)*16 + ((j ^ 1) & 15))*2 + (j >> 4))*8 + x)*512 + AINB')
        vm.wait('wm')
        self.stamp('wmok')
        for i in range(2):
            a(f'v_lshlrev_b32 v{cv+i}, 16, v{cv+i}')
            self.silu(cv + i, vT + i)
        for s in self.gemv_ops([wm, wm + 4], [cv, cv + 1], acc, vT, vT + 1, True): a(s)
        a(f"""s_waitcnt lgkmcnt(0)
        s_mul_i32 s{sTAG}, s{sTAG}, 0x9e3779b1
        s_add_u32 s{sTAG}, s{sTAG}, 0x7f4a7c15""")
        self.dw('ds_write_b32', vGA, acc, 1, L_A1 - MISC)
        self.barrier()
        self.r128(acc, vL32S, L_A1 - MISC); self.r128(acc + 4, vL32S, L_A1 - MISC + 16)
        if o['xtat'] == 1: xt_load()
        lg.wait_all()
        self.sum8(acc)
        a(f'v_mov_b32 v{acc+1}, s{sTAG}')
        a(f"""s_bitcmp1_b32 s{sWAVE}, 0
        s_cselect_b32 exec_lo, 0, -1
        s_cselect_b32 exec_hi, -1, 0""")
        self.bs(acc, 2, vL8, rWS, T0, 0, 'sc1')
        a('s_mov_b64 exec, -1')
        self.stamp('A1pub')
        w_next(wb[0])
        vm.wait('xs')
        self.stamp('xsok')
        self.ln_stats(xs_raw, vT, st, st + 1)
        S(T0, 'w*8 + L_ST')
        a(f"""v_lshrrev_b32 v{st}, 16, v{st}
        v_or_b32 v{st}, v{st}, v{st+1}
        v_mov_b32 v{st+1}, s{sTAG}
        v_mov_b32 v{vT}, s{T0}""")
        self.dw('ds_write_b64', vT, st, 2)
        va(vT + 1, [(0, 2, 16)], None, L_ST)
        va(vT, [(0, 2, 16), (2, 1, 1024)])
        S(T0, '((x & 6) + ((x & 1)*2 + (j >> 4))*64 + w*8)*1024 + (j & 15)*64 + SINB')
        self.barrier()
        self.r128(st, vT + 1)
        lg.wait_all()
        a('s_mov_b64 exec, 0xff')
        self.bs(st, 4, vT, rWS, T0, 0, 'sc1')
        a('s_mov_b64 exec, -1')
        self.stamp('A2pub')
        if o['xtat'] == 2: xt_load()
        w_next(wb[1])
        mg = acc
        def pre_work():
            va(vT, [(0, 5, 16), (5, 1, 4096)])
            S(T1, 'w*4 + L_MP'); va(vT + 1, [(0, 6, 64)], T1)
            va(vT + 2, [(0, 2, 32), (5, 1, 128), (4, 1, 256), (2, 2, 512)], None, L_MP)
            S(T1, '(wg*8 + w)*128 + SINB')
            va(vT + 4, [(0, 4, 8)])
        def x_unpack():
            vm.wait('xt')
            for p, q in ((0, 2), (1, 3), (4, 6), (5, 7)): a(f'v_permlane32_swap_b32 v{XR+p}, v{XR+q}')
            for i in range(8): self.unpack(xs + 2 * i, xs + 2 * i + 1, XR + i)
        self.spoll([(q, 1, T4, q * 4096 + 508) for q in range(2)], range(2), work=pre_work)
        self.stamp('apre')
        if o.get('abar', 0): a('s_barrier')
        st_ld = lambda: self.bl(st, 2, vT + 4, rWS, T1, 0, 'sc1', 'st')
        def st_go():
            self.spoll([(q, 1, T1, q * 64 + 60) for q in range(2)], range(2), work=x_unpack)
            st_ld()
            if o['fbar']: a('s_barrier')
            w_next(wb[2])
        self.try_load(lambda: self.bl(mg, 4, vT, rWS, T4, 0, 'sc1'), [mg + 1, mg + 3], vT + 3, st_go)
        self.stamp('modok')
        a(f'ds_write2_b32 v{vT+1}, v{mg}, v{mg+2} offset0:0 offset1:8'); lg.issue()
        self.barrier()
        for i in (2, 3, 0, 1): self.r128(mp + 4 * i, vT + 2, (i >> 1) * 2048 + (i & 1) * 16, i >> 1)
        S(T0, 'hp*4096 + w*512')
        a(f'v_add_u32 v{vT}, s{T0}, v{vL16}')
        S('m0', 'w*512 + L_WPHI')
        a('s_mov_b32 exec_hi, 0')
        a(f'global_load_lds_dwordx4 v{vT}, {sr(pWPHI, 2)}'); vm.issue()
        a('s_mov_b32 exec_hi, -1')
        w_next(wb[3])
        S(T0, '((rt*16 + cb)*4 + (w >> 1))*4096 + (w & 1)*256 + HF')
        va(vT, [(0, 4, 16), (4, 1, 1024), (5, 1, 512)])
        lg.wait(1); self.sum8(mp + 8)
        self.round1(mp + 8)
        lg.wait(0); self.sum8(mp)
        a(f'v_add_f32 v{mp+8}, 1.0, v{mp+8}')
        self.round2(mp + 8, mp)
        vm.wait('st')
        self.tagcheck([st + 1], None)
        a('s_cbranch_vccz L_STOK')
        q0 = list(vm.q)
        self.poll(st_ld, [st + 1])
        vm.q = q0
        a('L_STOK:')
        self.stamp('statok')
        self.unpack(st + 1, st, st)
        a(f'v_rcp_f32 v{st}, v{st}')
        for i in E2: self.pk('add', xs + i, xs + i, st + 1, bc=(1,), neg=(1,))
        self.round_list([xs + i for i in range(16)])
        for i in E2: self.pk('mul', xs + i, xs + i, st, bc=(1,))
        self.round_list([xs + i for i in range(16)])
        for h in range(2):
            rg = range(8 * h, 8 * h + 8)
            for i in rg: self.dpp('v_mul_f32', xs + i, mp + 8, xs + i, f'row_newbcast:{i}')
            self.round_list([xs + i for i in rg])
            for i in rg: self.dpp('v_add_f32', xs + i, mp, xs + i, f'row_newbcast:{i}')
            for i in range(4 * h, 4 * h + 4): a(f'v_cvt_pk_bf16_f32 v{hp+i}, v{xs+2*i}, v{xs+2*i+1}')
            self.bs(hp + 4 * h, 4, vT, rWS, T0, 2048 * h, 'sc1', 'hs')
        self.stamp('hst')
        va(vB, [(2, 2, 128), (3, 1, 64), (4, 1, 32), (0, 2, 8), (5, 1, 512)])
        a(f'v_xor_b32 v{vB+1}, 64, v{vB}')
        for q in (1, 2):
            for h in range(2): a(f'v_add_u32 v{vB+2*q+h}, {q*REG}, v{vB+h}')
        va(vT + 1, [(0, 2, 8 * 4096), (2, 2, 4096)])
        S(T0, '((rt >> 3)*4 + (rt & 7)*32)*4096 + (cb >> 1)*64 + (cb & 1)*4 + INB')
        S(sAB, 'r1*262144 + rb*4096 + HF')
        a(f"""s_cmp_ge_u32 s{sJ}, {0 if o.get('noffn') else 28}
        s_cselect_b32 s{rWG+2}, 0, s{rWG+2}
        s_cselect_b32 s{rWU+2}, 0, s{rWU+2}
        s_cselect_b32 s{rWD+2}, 0, s{rWD+2}""")
        vm.wait('hs')
        a('s_barrier')
        self.push(vT + 1, T0, 16, vT + 2, 'L_PB')
        self.stamp('hpub')
        w_next(wb[4])
        vWo, vFG, vFD = vS0, vS1, SP + 5
        def setup():
            S(sWO, 'w*16384 + cb*128'); S(sY2, '((j & 1)*8 + (j >> 3)*2)*131072' if o['worot'] else '(j & 1)*1048576')
            S(sFG, '(kq*8 + w)*(32*7168) + fs*128'); S(sFD, '(fs*8 + w)*16384 + kq*512')
            S(sM2, '((x & 3)*8 + w)*(32*12288) + (j*2 + (x >> 2))*128 + 4096')
            S(T1, '(w & 1)*64')
            va(vT + 2, [(4, 1, 32)], T1); va(vWo, [(0, 3, 16)])
            a(f'v_xor_b32 v{vWo}, v{vWo}, v{vT+2}'); va(vT + 2, [(3, 3, 2048)]); a(f'v_add_u32 v{vWo}, v{vWo}, v{vT+2}')
            S(T1, '(w & 2)*32'); va(vT + 2, [(4, 1, 32)], T1); va(vFG, [(0, 3, 16)])
            a(f'v_xor_b32 v{vFG}, v{vFG}, v{vT+2}'); va(vT + 2, [(3, 3, 7168)]); a(f'v_add_u32 v{vFG}, v{vFG}, v{vT+2}')
            S(T1, '(w & 1)*128')
            va(vT + 2, [(5, 1, 64)], T1); va(vFD, [(0, 5, 16), (5, 1, 2048)])
            a(f'v_xor_b32 v{vFD}, v{vFD}, v{vT+2}')
            S(T3, 'u0*16384'); a(f'v_add_u32 v{vCo}, s{sAB}, v{vL16}')
            S(T1, 'rb*2048 + L_QH'); a(f'v_add_u32 v0, s{T1}, v{vL16}')
        S(T6, 'wg*4096 + INB'); S(T7, '(w & 3)*128 + T6'); S(T6, 'u0*32 + T6')
        a(f's_cmp_ge_u32 s{sWAVE}, 4\ns_cselect_b32 s{T6}, s{T7}, s{T6}')
        self.spoll([(0, 2, T6, 0), (2, 2, T6, 64)], range(4), lambda: (w_next(wb[5]), setup(), a(';TOUR')))
        assert len(wq) % 3 == 0 and len(wq) <= (6 if o['xorw'] else 12)

    def gemm1(self):
        a, vm, lg, o, S, va = self.a, self.vm, self.lg, self.o, self.S, self.vaa
        LOOK = o['LOOK']; NB = LOOK + 1; assert NB <= 7
        vWo, vFG, vFD, vHo = vS0, vS1, SP + 5, 0
        self.vWo, self.vFG, self.vFD = vWo, vFG, vFD
        m2w, m2c = AV, AV + 24
        FL = self.FL = AK
        cur = self.cur = [0]
        TOK = [(0, 3, 16), (3, 2, 256), (5, 1, 128)]
        def cvt8(d, s_):
            for i in range(8): a(f'v_cvt_pk_bf16_f32 v{d+i}, v{s_+2*i}, v{s_+2*i+1}')
        self.cvt8 = cvt8
        fq = self.fq = [(m, i) for m in range(3) for i in range(4)]
        held = self.held = ([], [])
        def f_src(m, i, far=0):
            q = (i * 8 * 7168 + far * 4 * 32 * 7168, i * 4096 + far * 4 * 16384)[m == 2]
            S(sU, ('fg', 'fd')[m == 2] + ' + q', q=q & 0xffffffff)
            return (vFG, (rWG, rWU)[m]) if m < 2 else (vFD, rWD)
        def f_lds(m, i): return (L_GU + m * 32768 if m < 2 else L_DN) + i * 1024
        def f_ld(g, k, far, count=True):
            m, i = held[g][k]
            v, r = f_src(m, i, far * (1 - 2 * g))
            a(f'buffer_load_dwordx4 {vr(FL + 8*k + 4*far, 4)}, v{v}, {sr(r, 4)}, s{sU} offen nt')
            if count: vm.issue('ffn')
        def ffn_reg(n=1, g=0):
            if not n: return
            L = a.label('L_FH')
            a(f's_cmp_{"ge" if g == 0 else "lt"}_u32 s{sWAVE}, 4\ns_cbranch_scc1 {L}')
            for _ in range(n):
                held[g].append(fq.pop(0)); assert len(held[g]) <= 4
                for far in range(2): f_ld(g, len(held[g]) - 1, far, False)
            a(f'{L}:')
        def ffn_dma(n=1):
            for _ in range(n):
                m, i = fq.pop(0)
                v, r = f_src(m, i)
                S('m0', 'w1k*4 + q', q=f_lds(m, i))
                self.dma(v, r, sU, 0, 'nt', 'ffn')
        self.ffn_reg, self.ffn_dma, self.f_lds = ffn_reg, ffn_dma, f_lds
        for _ in range(o['fA']): held[1].append(fq.pop(0))
        def m2_ld(i):
            if i == 0:
                S(sU, '((x & 3)*8 + w)*64'); self.va(m2c + 4, [(3, 3, 2)], sU, 0, m2c + 5)
                for k in range(4): a(f'global_load_ushort v{m2c+k}, v{m2c+4}, {sr(pC, 2)} offset:{16*k}'); vm.issue('m2')
            S(sU, 'm2 + q', q=i * 8 * 12288)
            self.bl(m2w + 4 * i, 4, self.vWM, rWM, sU, 0, 'nt', 'm2')
        wslot = lambda p: p
        def wo_dma(p, back=0):
            S(sU, '(y2 ^ q) + wo' + (' - 65536' if back else ''), q=p * 131072)
            S('m0', 'w1k + q', q=wslot(p) * 8192 - 4096 * back)
            self.dma(vWo, rWO, sU, 0, '', 'wo')
        self.wo_dma = wo_dma
        def poison(backs, t):
            a(f'v_mov_b32 v{t}, -1\nv_mov_b32 v{t+1}, -1\nv_mov_b32 v{t+2}, -1\nv_mov_b32 v{t+3}, -1')
            for back in backs:
                S(T6, '((rt*8 + w - q)*16 + cb)*256 + ST', q=4 * back); self.va(t + 4, [(0, 6, 4)])
                self.bs(t, 1, t + 4, rWS, T6, 0, 'sc1')
            S(T6, 'rt*16384 + cb*512 + XS'); self.va(t + 4, [(0, 5, 16), (5, 1, 8192)], None, 0, t + 5)
            a(f's_cmp_lg_u32 s{sWAVE}, 5\ns_cbranch_scc1 L_NOPO')
            self.bs(t, 4, t + 4, rWS, T6, 0, 'sc1', count=False)
            a('L_NOPO:')
        self.poison = poison
        seq = []
        for sg in range(36): seq += [(t, h, sg) for t in 'kqv' for h in range(2)]
        for sg in range(36, 40): seq += [('k', h, sg) for h in range(2)]
        for sg in range(36, 40): seq += [(t, h, sg) for t in 'qv' for h in range(2)]
        for h in range(2): seq += [('k', h, sg) for sg in range(40, 64)]
        for t in 'vq':
            for sg in range(40, 64): seq += [(t, h, sg) for h in ((1, 0) if (t, sg) == ('q', 63) else (0, 1))]
        bA, bH, bQ = o['bA'], o['bH'], 335
        assert bA >= 271
        bars = [24 * k - 1 for k in range(1, 10)] + [223, 239, 253, bA, bH, bQ]
        first, last = {}, {}
        for n, (t, h, sg) in enumerate(seq):
            first.setdefault(f'{t}{sg >> 2}', n); last[f'{t}{sg >> 2}'] = n; last[('A', sg)] = n
        a(f"""s_cmp_ge_u32 s{sWAVE}, 4
        s_cbranch_scc1 L_HELP
        s_setprio {o['prio']}""")
        q_hok = list(vm.q)
        ACC = dict(k=AK, v=AV, q=AQ)
        nxt = [0]; late = []
        def a_load():
            while late: a(late.pop(0))
            sg = nxt[0]; nxt[0] += 1
            if o.get('noA') and sg >= 12: return
            self.bl(AR + 4 * (sg % 24), 4, SP + 1, rWS, T3, (sg % 4) * 1024, 'sc1', ('A', sg))
            if sg % 4 == 3: late.extend([f's_add_u32 s{T3}, s{T3}, 16384', f's_and_b32 s{T3}, s{T3}, 0x3ffff'])
        def b_read(n):
            t, h, sg = seq[n]
            s = sg & 3
            off = ((sg >> 2) % 6) * 8192 + (s >> 1) * 4096 + (s & 1) * 1024
            d = RING + 4 * (n % NB); v = vB + 2 * 'kvq'.index(t) + h
            self.tr(d, v, off, ('B', n)); self.tr(d + 2, v, off + 2048, ('B', n))
        self.nopk = True
        stk, stv = Stream(self), Stream(self)
        for h in range(2):
            for q in range(2):
                stk.cap(lambda: [a(f'v_cvt_pk_bf16_f32 v{AK+16*h+4*q+i}, v{AK+16*h+8*q+2*i}, v{AK+16*h+8*q+2*i+1}') for i in range(4)])
                stk.add(lambda h=h, q=q: self.dw('ds_write_b128', vHo, AK + 16 * h + 4 * q, 4, q * 1024, f'kh{h}'), 0, 1)
            stk.mark(f'kh{h}')
            if h == 0:
                stk.cap(lambda: a(f'v_subrev_u32 v{vHo}, {L_QH - L_HV}, v{vHo}'))
                stk.until(289)
        stk.until(bH + 1)
        stk.cap(lambda: (S(T1, 'rb*2048 + L_HV'), self.va(vHo, TOK, T1, 0, vT)))
        for h in range(2):
            for q in range(2):
                stv.cap(lambda: [a(f'v_cvt_pk_bf16_f32 v{AV+16*h+4*q+i}, v{AV+16*h+8*q+2*i}, v{AV+16*h+8*q+2*i+1}') for i in range(4)])
                stv.add(lambda h=h, q=q: self.dw('ds_write_b128', vHo, AV + 16 * h + 4 * q, 4, h * 8192 + q * 1024, 'vst'), 0, 1)
        if o['m2c'] == 0:
            stv.sleep(4)
            stv.add(lambda: lg.wait('vst'))
            for i in range(4): stv.add(lambda i=i: m2_ld(i), 0, 1); stv.sleep(o.get('fgap', 4))
        while nxt[0] < o['A00']: a_load()
        vm.wait(('W', 3 if o['xorw'] else 1))
        a('s_barrier')
        self.stamp('hok')
        if not nxt[0]: a_load()
        for n in range(LOOK): b_read(n)
        while nxt[0] < o['A0']: a_load()
        seen = set(); lpend = []; owe = [0]
        Apos = list(o['Apos']); assert o['A0'] + sum(Apos) == 64
        for n in range(384):
            t, h, sg = seq[n]; cur[0] = n
            if ('A', sg) not in seen:
                assert sg < nxt[0]
                vm.wait(('A', sg)); seen.add(('A', sg))
            lg.wait(('B', n))
            d = ACC[t] + 16 * h
            a(f'v_mfma_f32_32x32x16_bf16 {vr(d, 16)}, {vr(RING + 4*(n % NB), 4)}, {vr(AR + 4*(sg % 24), 4)}, ' + (vr(d, 16) if sg else '0'))
            if self.prof and o.get('ls'):
                l0, l1, lst = o['ls']
                if lpend and n >= lpend[0][0]:
                    _, r_, k_ = lpend.pop(0); a(f'v_writelane_b32 v255, s{r_}, {k_}')
                if l0 <= n < l1 and (n - l0) % lst == 0:
                    r_ = sPL + 2 * (self.nst % 4)
                    a.items.append(('raw', f'    s_memtime {sr(r_, 2)}')); lpend.append((n + 4, r_, self.nst)); self.stnames.append(f'n{n}'); self.nst += 1
            def a_try():
                p, r = divmod(n, 24)
                if n < 240 and (r + 1) * Apos[p] // 24 > r * Apos[p] // 24: owe[0] += 1
                if owe[0] and (nxt[0] < 24 or last[('A', nxt[0] - 24)] <= n): a_load(); owe[0] -= 1
                elif late: a(late.pop(0))
            if o['apos'] == 0: a_try()
            bud = [o.get('cbud', 10), 1]
            if n >= 265: stk.pull(bud, bud[0])
            if n > bQ + 1: stv.pull(bud, bud[0])
            if n + LOOK < 384: b_read(n + LOOK)
            if o['apos'] == 1: a_try()
            if n in bars:
                if n in (bA, bH):
                    assert f'kh{int(n == bH)}' in self.marks
                    lg.wait(f'kh{int(n == bH)}')
                    if 'prio2' in o and n == bA: a(f's_setprio {o["prio2"]}')
                if not (o.get('noB') and n < 200): a('s_barrier')
                if o.get('gst'): self.stamp(f'b{n}')
        assert not (stk.q or stv.q) and nxt[0] == 64
        self.stamp('gemm1')
        vq, wph = AR + 16, AR + 24
        S(T1, 'rb*2048 + L_QH'); a(f'v_add_u32 v{vHo}, s{T1}, v{vL16}')
        va(vT, [(2, 2, 64), (4, 1, 32), (0, 2, 8), (5, 1, 256)], None, L_WPHI)
        for s in range(2):
            for u in range(2): self.tr(wph + 4 * s + 2 * u, vT, s * 1024 + u * 512)
        cvt8(AR, AQ + 16)
        for q in range(2): self.dw('ds_write_b128', vHo, AR + 4 * q, 4, q * 1024)
        cvt8(vq, AQ)
        if o['m2c'] == 1:
            for i in range(4): m2_ld(i)
        a('s_setprio 0')
        a('s_branch L_JOIN')
        a('L_HELP:')
        vm.q = list(q_hok); lg.reset()
        vm.wait(('W', 3 if o['xorw'] else 1))
        a('s_barrier')
        vis = {}
        def w_sec(t, n):
            if o.get('noW'): return
            for back in (1, 0):
                S(sU, '((u0 + n) & 15)*UR + wb + q', n=n, q=(dict(q=0, k=2048, v=4096)[t] - back * 4 * 49152) & 0xffffffff)
                S('m0', 'w1k + q', q='kvq'.index(t) * REG + (n % 6) * 8192 - back * 4096)
                self.dma(vWd, rW, sU, 0, '', ('W', t, n))
        for n, t in self.wq: w_sec(t, n)
        ka, wp2, pa, pb, ee, vPW = AR, AR + 16, AR + 32, AR + 48, AR + 64, AR + 80
        va(vT, [(2, 2, 64), (4, 1, 32), (0, 2, 8), (5, 1, 256)], None, L_WPHI)
        for hs in range(4):
            for u in range(2): self.tr(wp2 + 4 * hs + 2 * u, vT, hs * 1024 + u * 512)
        S(T1, 'rb*1024 + L_PHK'); va(vPW, TOK, T1)
        def touch(boxes):
            a('s_waitcnt lgkmcnt(0)')
            for q, b in enumerate(boxes):
                a(f's_load_dword s{sPL + 2*q}, {sr(rWS, 2)}, s{sINB} offset:{b * 512} glc')
                a(f's_load_dword s{sPL + 2*q + 1}, {sr(rWS, 2)}, s{sINB} offset:{b * 512 - 256} glc')
        wsched = {int(k): v.split() for k, v in o['wsched'].items()}
        for k in range(1, 5): wsched[k] = [f'{t}{k + 5}' for t in 'kqv'] + wsched.get(k, [])
        need = {}
        for u in first:
            k = len([b for b in bars if b < first[u] - LOOK])
            if k: need.setdefault(k, []).append(u)
        done = {f'{t}{n}' for n in range(6) for t in 'kvq'}
        def h_bar(k):
            if k < 5: vm.wait(('W', k + 1))
            for u in need.get(k, []):
                assert u in done, (u, k)
                vm.wait(('W', u[0], int(u[1:])))
            if not (o.get('noB') and k < 9): a('s_barrier')
            for u in wsched.get(k, []):
                assert last[f'{u[0]}{int(u[1:]) - 6}'] <= bars[k - 1], (u, k)
                w_sec(u[0], int(u[1:])); done.add(u)
        hm, hc, ha, ht = AV, AQ, AQ + 8, AQ + 16
        if o.get('fP'): S(T4, o['fP'])
        if o['m2c'] == 3:
            S(T5, o['m2k3'])
            S(sU, '((x & 3)*4 + w - 4)*128'); va(ht, [(3, 3, 2)], sU)
            for i in range(8): a(f'global_load_ushort v{hc+i}, v{ht}, {sr(pC, 2)} offset:{16*i}'); vm.issue('c2')
            S(T6, '((x & 3)*4 + w - 4)*(64*12288) + (j*2 + (x >> 2))*128 + 4096')
        for k in range(1, 14):
            if k == 13: lg.wait_all()
            if o['m2c'] == 3 and k == o['m2e'] + 1: lg.wait_all()
            h_bar(k)
            if o['m2c'] == 3:
                nb = o['m2nb']
                for b in range(nb):
                    if k <= o['m2g'] - o.get('m2lag', 2) and k - b * o['m2db'] >= 1:
                        a(f's_cmp_lg_u32 s{T5}, {k - b * o["m2db"]}\ns_cbranch_scc1 L_NM2_{k}_{b}')
                        for i in range(b * 8 // nb, (b + 1) * 8 // nb):
                            S(sU, 'T6 + q', q=i * 8 * 12288)
                            a(f'buffer_load_dwordx4 {vr(hm + 4*i, 4)}, v{self.vWM}, {sr(rWM, 4)}, s{sU} offen nt')
                        a(f'L_NM2_{k}_{b}:')
                if k == 3:
                    vm.wait('c2')
                    for i in range(8):
                        a(f'v_lshlrev_b32 v{hc+i}, 16, v{hc+i}')
                        self.silu(hc + i, ht + (i & 1))
                g0 = o['m2g']
                ke = o['m2e']
                if g0 <= k <= ke:
                    if k == g0:
                        vm.wait(('W', 'k', k + 4 if o.get('m2lag', 2) == 2 else k + 5))
                        mops = self.gemv_ops([hm + 4 * i for i in range(8)], [hc + i for i in range(8)], ha, ht, ht + 1, False)
                    if o.get('gprio'): a('s_setprio 3')
                    for _ in range(len(mops) if k == ke else 144 // (ke + 1 - g0)): a(mops.pop(0))
                    if o.get('gprio'): a('s_setprio 0')
                    if k == ke: self.dw('ds_write_b32', self.vGA, ha, 1, L_M2 - MISC)
                if k == ke + 1:
                    a(f"""s_cmp_lg_u32 s{sWAVE}, 4
                    s_cbranch_scc1 L_M2F
                    ds_read_b128 {vr(ha, 4)}, v{self.vL32S} offset:{L_M2 - MISC + 16}""")
                    S(T0, '((j*2 + (x >> 2))*4 + (x & 3))*512 + MODP2')
                    a(f"""s_waitcnt lgkmcnt(0)
                    v_add_f32 v{ha}, v{ha}, v{ha+1}
                    v_add_f32 v{ha+2}, v{ha+2}, v{ha+3}
                    v_mov_b32 v{ha+1}, s{sTAG}
                    v_add_f32 v{ha}, v{ha}, v{ha+2}""")
                    self.bs(ha, 2, self.vL8, rWS, T0, 0, 'sc1', count=False)
                    a('L_M2F:')
            if o.get('fP') and k <= 8:
                a(f's_cmp_lg_u32 s{T4}, {k}\ns_cbranch_scc1 L_NFP_{k}')
                for i in range(o['fA']):
                    for far in range(2): f_ld(1, i, far, False)
                a(f'L_NFP_{k}:')
            if k == 2 and o['poisat'] == 0: poison((0, 1), AR + 88); S(T6, '((x & 3)*4 + w - 4)*(64*12288) + (j*2 + (x >> 2))*128 + 4096')
            if k in (1, 3, 5) and o.get('touch', 1): touch({1: (1, 7), 3: (2, 3), 5: (5, 6)}[k])
            if k == 8 and o.get('touch', 1):
                S(T0, 'fs*8192 + (w - 4)*256 + HGR')
                a('s_waitcnt lgkmcnt(0)')
                for q in range(4): a(f's_load_dword s{sPL + q}, {sr(rWS, 2)}, s{T0} offset:{q * 2048 + 1024 + 252} glc')
        def logits(h, pp):
            if o.get('hprio'): a(f's_setprio {o["hprio"]}')
            for q in range(2): self.r128(ka + 4 * q, vHo, q * 1024, ('kh', q))
            if h == 0: a(f'v_subrev_u32 v{vHo}, {L_QH - L_HV}, v{vHo}')
            for q in range(2):
                lg.wait(('kh', q))
                a(f'v_mfma_f32_32x32x16_bf16 {vr(pp, 16)}, {vr(wp2 + 8*h + 4*q, 4)}, {vr(ka + 4*q, 4)}, ' + (vr(pp, 16) if q else '0'))
            if o.get('hprio') and not o.get('hlong'): a('s_setprio 0')
        logits(0, pa)
        self.stamp('klog')
        hs = Stream(self)
        for h, pp in ((0, pa), (1, pb)):
            hs.cap(lambda: self.softmax_pm(pp, ee, ee, vT))
            k = max(i for i, it in enumerate(hs.q) if it[0] == 4.75) - 8
            tailq = hs.q[k + 1:]; hs.q = hs.q[:k + 1]
            wr = lambda fb, h=h: (0, 0, lambda: self.dw('ds_write_b128', vPW, ee + 4 * fb, 4, h * 16384 + fb * 4096, ('phk', h)))
            hs.q += [wr(0)] + tailq[:4] + [wr(1), wr(2)] + tailq[4:] + [wr(3)]
            if h == 0:
                n1 = len(hs.q)
                hs.add(lambda: None)
        hs.q.insert(n1 + 34, (0, 0, lambda: lg.wait(('phk', 0))))
        ex = {}
        def put(i, fn):
            while i in ex: i += 1
            ex[i] = fn
        nq = int(n1 * o['hq'])
        put(nq, lambda: h_bar(15))
        nh = int(n1 * o['hh'])
        put(nh, lambda: (h_bar(14), logits(1, pb)))
        g1, g2 = o['hgap']
        ff = [(lambda k=k, far=far: f_ld(1, k, far)) for k in range(o['fA']) for far in range(2) if not o.get('fP')]
        pre = [(lambda k=k: m2_ld(k)) for k in range(4)] if o['m2c'] < 2 else []
        npre = o['fpre'] - len(pre)
        pre += ff[:npre]; ff = ff[npre:]
        for k, fn in enumerate(pre): put(nh + 5 + g1 * k, fn)
        wl = self.wo_left = [6, 7, 8, 9, 10, 11] + [12, 13, 14, 15] + [0, 1, 2, 3, 4, 5]
        post = []
        for k in range(o['woA']): post += [lambda: wo_dma(wl[0], 1), lambda: wo_dma(wl.pop(0))]
        post = post[:8] + ff + post[8:] if o.get('wofirst', 1) else ff + post
        for k, fn in enumerate(post): put(nq + 5 + g2 * k, fn)
        for i, (v_, l_, fn) in enumerate(hs.q):
            if i in ex: ex.pop(i)()
            fn()
        for i in sorted(ex): ex[i]()
        self.nopk = False
        S(T1, 'rb*2048 + L_QH'); a(f'v_add_u32 v{vHo}, s{T1}, v{vL16}')
        assert wph == wp2 + 8
        if o.get('hprio'): a('s_setprio 0')
        self.stamp('ksm')
        a('L_JOIN:')
        vm.q = ['m2'] * (8 if o['m2c'] < 2 else 0); lg.q = [None]
        self.m2_ld = m2_ld
        self.vHo = vHo

    def middle(self):
        a, vm, lg, o, S, va = self.a, self.vm, self.lg, self.o, self.S, self.vaa
        vL8, vL32S, vGA, vHo, ffn_reg = self.vL8, self.vL32S, self.vGA, self.vHo, self.ffn_reg
        pp, ee, ph, vq, wph = AQ, AQ + 16, AR, AR + 16, AR + 24
        fA, fB, kvd, zd, ones = AR + 32, AR + 48, AR + 80, AR + 88, AR + 92
        kp, zz, zf, kf, k2 = AR + 32, AR + 40, AR + 44, AR + 60, AR + 76
        m2w, m2a, m2c, m2t = AV, AV + 16, AV + 24, AV + 28
        vPA, vPB, vPC, vKP, vXF = RING + 16, RING + 17, RING + 18, RING + 19, RING + 20
        md, wr1 = RING, RING + 4
        self.md, self.wr1 = md, wr1
        wl = self.wo_left
        wo1 = lambda: self.wo_dma(wl.pop(0))
        fw = o['fwin']
        va(vPB, [(0, 1, 8), (2, 2, 16), (4, 1, 64), (1, 1, 128), (5, 1, 256)])
        S(T0, 'w*4096 + L_PHK'); a(f'v_add_u32 v{vPA}, s{T0}, v{vPB}')
        S(T0, 'kh*8192 + L_HV'); a(f'v_add_u32 v{vPB}, s{T0}, v{vPB}')
        for i in range(4): a(f'v_mov_b32 v{ones+i}, 0x3f803f80')
        S(T0, '((hp*8 + w)*32 + r1)*1024 + KVP'); S(T2, 'T0 + 16384')
        S(T3, '(hp*8 + w)*1024 + ZP'); S(T1, 'r1*64 + T3')
        self.barrier()
        self.stamp('phik')
        def kvm(u):
            lg.wait(('kv', u))
            for db in range(2):
                a(f'v_mfma_f32_16x16x32_bf16 {vr(kvd + 4*db, 4)}, {vr(fA + 4*u, 4)}, {vr(fB + 8*u + 4*db, 4)}, ' + ('0' if u == 0 else vr(kvd + 4*db, 4)))
            a(f'v_mfma_f32_16x16x32_bf16 {vr(zd, 4)}, {vr(fA + 4*u, 4)}, {vr(ones, 4)}, ' + ('0' if u == 0 else vr(zd, 4)))
        for ts in range(4):
            self.tr(fA + 4 * ts, vPA, ts * 1024, ('kv', ts)); self.tr(fA + 4 * ts + 2, vPA, ts * 1024 + 512, ('kv', ts))
            for db in range(2):
                for rd in range(2): self.tr(fB + 8 * ts + 4 * db + 2 * rd, vPB, ts * 2048 + db * 1024 + rd * 512, ('kv', ts))
            if ts >= 2: kvm(ts - 2)
        kvm(2); kvm(3)
        a(f"""s_cmp_lt_u32 s{sWAVE}, 4
        s_cbranch_scc1 L_NOQX
        ds_read_b128 {vr(vq, 4)}, v{vHo}
        ds_read_b128 {vr(vq + 4, 4)}, v{vHo} offset:1024
        L_NOQX:""")
        self.bs(kvd, 4, vL16, rWS, T0, 0, 'sc1', 'kvs')
        self.bs(kvd + 4, 4, vL16, rWS, T2, 0, 'sc1', 'kvs')
        a('s_mov_b32 exec_lo, 0x00010001')
        a('s_mov_b32 exec_hi, 0x00010001')
        self.bs(zd, 4, vL, rWS, T1, 0, 'sc1', 'kvs')
        a('s_mov_b64 exec, -1')
        lg.wait_all()
        a(f'v_mfma_f32_32x32x16_bf16 {vr(pp, 16)}, {vr(wph, 4)}, {vr(vq, 4)}, 0')
        a(f'v_mfma_f32_32x32x16_bf16 {vr(pp, 16)}, {vr(wph + 4, 4)}, {vr(vq + 4, 4)}, {vr(pp, 16)}')
        self.stamp('kvst')
        if o['poisat'] == 1: self.poison((0,), RING + 22)
        if o['m2c'] == 2:
            for i in range(4): self.m2_ld(i)
        va(vPC, [(0, 3, 32 * 4096), (3, 1, 4 * 4096)])
        S(T4, '(wg & 0x1b)*4096 + (r1 >> 1)*64 + (r1 & 1)*4 + INB + 512')
        va(vKP, [(3, 3, 1024), (0, 3, 16)])
        va(vXF, [(0, 3, 16), (5, 1, 8)])
        qm, qs = o['qmid'], o['qsplit']
        self.softmax_pm(pp, ee, ph, vT, part=1, split=qm)
        vm.wait('kvs')
        a('s_barrier')
        self.push(vPC, T4, 16, vPB, 'L_PC')
        self.stamp('kvpub')
        if o['poisat'] == 2: self.poison((0,), RING + 22)
        self.weave(lambda: [a(f'v_exp_f32 v{r+i}, v{r+i}') for i in range(qm, qs) for r in (ee, pp)], [wo1] * o['wowin'][0])
        S(T0, '(hp*16 + r1)*16384 + w*128 + KVP'); S(T1, 'T0 + 8192')
        S(T2, '(hp*16 + r1)*1024 + w*128 + KIN'); S(T4, 'T4 + 6*512')
        self.inbox(1, 2, work=lambda: (self.weave(lambda: self.softmax_pm(pp, ee, ph, vT, part=2, split=qs), [wo1] * o['wowin'][1]), self.stamp('cw')))
        a('s_barrier')
        self.stamp('kvok')
        self.bl(kp, 4, vKP, rWS, T0, 0, 'sc1', 'kp')
        self.bl(kp + 4, 4, vKP, rWS, T1, 0, 'sc1', 'kp')
        self.bl(zz, 4, vL16, rWS, T3, 0, 'sc1', 'z')
        ffn_reg(fw[0])
        S(T1, 'w*32 + L_ZF'); va(vT + 2, [(0, 2, 8), (5, 1, 4)], T1)
        S(T1, 'w*1024 + L_KVF'); va(vT + 1, [(0, 4, 16), (5, 1, 512), (4, 1, 8)], T1)
        S(T1, 'kh*128 + L_ZF'); va(vT + 3, [(5, 1, 16)], T1)
        S(T1, 'kh*4096 + L_KVF'); a(f'v_add_u32 v{vPA}, s{T1}, v{vL16}')
        M2 = o['m2c'] < 3
        m2ops = []; k = o.get('m2k', 24)
        if M2:
            vm.wait('m2')
            for i in range(4):
                a(f'v_lshlrev_b32 v{m2c+i}, 16, v{m2c+i}')
                self.silu(m2c + i, m2t + (i & 1))
            m2ops = self.gemv_ops([m2w + 4 * i for i in range(4)], [m2c + i for i in range(4)], m2a, m2t, m2t + 1, True)
        for s_ in m2ops[:k]: a(s_)
        def red4(r, ctls):
            for i in range(2): a(f'v_permlane32_swap_b32 v{r+i}, v{r+2+i}')
            self.pk('add', r, r, r + 2)
            for ctl in ctls:
                for i in range(2): self.dpp('v_add_f32', r + i, r + i, r + i, ctl)
            for i in range(2): a(f'v_mov_b32 v{r+2+i}, v{r+i}')
            for i in range(2): a(f'v_permlane16_swap_b32 v{r+i}, v{r+2+i}')
            self.pk('add', r, r, r + 2)
            a(f'v_cvt_pk_bf16_f32 v{r}, v{r}, v{r+1}')
        vm.wait('kp')
        self.pk('add', kp, kp, kp + 4); self.pk('add', kp + 2, kp + 2, kp + 6)
        red4(kp, ['row_ror:8'])
        a(f"""v_mov_b32 v{kp+1}, s{sTAG}
        s_mov_b32 exec_lo, 0xff
        s_mov_b32 exec_hi, 0xff""")
        self.bs(kp, 2, vXF, rWS, T2, 0, 'sc1')
        a('s_mov_b64 exec, -1')
        if o['C2dir'] == 0:
            a('s_barrier')
            self.push(vPC, T4, 16, vPB, 'L_PC2')
        self.stamp('c2pub')
        num, den = pp, ee
        vm.wait('z')
        self.weave(lambda: (red4(zz, ['row_ror:4', 'row_ror:8']), [a(s_) for s_ in m2ops[k:]]), [wo1] * o['wowin'][2])
        self.dw('ds_write_b32', vT + 2, zz, 1)
        if M2: self.dw('ds_write_b32', vGA, m2a, 1, L_M2 - MISC)
        self.barrier()
        for fb in range(4): self.r128(zf + 4 * fb, vT + 3, fb * 32)
        if M2: self.r128(m2a, vL32S, L_M2 - MISC); self.r128(m2a + 4, vL32S, L_M2 - MISC + 16)
        S(T5, '((j*2 + (x >> 2))*4 + (x & 3))*512 + MODP2')
        lg.wait_all()
        S(T0, '(hp*8 + w)*2048 + KIN')
        def den_work():
            for fb in range(4):
                a(f'v_mfma_f32_32x32x16_bf16 {vr(den, 16)}, {vr(zf + 4*fb, 4)}, {vr(ph + 4*fb, 4)}, ' + ('0' if fb == 0 else vr(den, 16)))
            if M2:
                a(f's_cmp_lg_u32 s{sWAVE}, 3\ns_cbranch_scc1 L_M2F')
                self.nopk = True; self.sum8(m2a); self.nopk = False
                a(f'v_mov_b32 v{m2a+1}, s{sTAG}')
                self.bs(m2a, 2, vL8, rWS, T5, 0, 'sc1', count=False)
                a('L_M2F:')
            self.round1(den)
            a(f'v_add_f32 v{den}, 0x358637bd, v{den}')
            self.round1(den)
            a(f'v_rcp_f32 v{den}, v{den}')
            self.stamp('c2w')
        ldk2 = lambda: [self.bl(k2 + 4 * q, 4, vL16, rWS, T0, q * 1024, 'sc1') for q in range(2)]
        if o['C2dir'] == 0:
            self.inbox(7, 2, work=den_work)
            self.stamp('c2h')
        if o['C2dir'] == 2: den_work()
        self.try_load(ldk2, [k2 + 1, k2 + 3, k2 + 5, k2 + 7], vT, lambda: (ffn_reg(fw[1]), den_work() if o['C2dir'] == 1 else None))
        for db in range(2):
            a(f'ds_write2_b32 v{vT+1}, v{k2+4*db}, v{k2+4*db+2} offset0:{64*db} offset1:{64*db+1}'); lg.issue()
        self.barrier()
        self.stamp('kvred')
        for fb in range(4): self.r128(kf + 4 * fb, vPA, fb * 1024, ('kf', fb))
        S(T0, '((r1*8 + rb*2)*32 + hp*2 + kh)*1024 + OF')
        va(vKP, [(0, 4, 16), (4, 1, 32768), (5, 1, 256)])
        for fb in range(4):
            lg.wait(('kf', fb))
            a(f'v_mfma_f32_32x32x16_bf16 {vr(num, 16)}, {vr(kf + 4*fb, 4)}, {vr(ph + 4*fb, 4)}, ' + ('0' if fb == 0 else vr(num, 16)))
        S(T5, '((w >> 1)*16 + cb)*2048 + (w & 1)*1024 + MODP2')
        self.ld_md = lambda: self.bl(md, 4, vL16, rWS, T5, 0, 'sc1', 'md')
        S(T6, 'cb*128'); va(vPA, [(0, 2, 2), (5, 1, 8), (4, 1, 16), (2, 2, 32)], T6)
        a(f'global_load_ushort v{wr1}, v{vPA}, {sr(pWR, 2)}'); vm.issue('md')
        self.ld_md()
        for h in range(2):
            self.round_list([num + i for i in range(8 * h, 8 * h + 8)])
            for i in range(8 * h, 8 * h + 8, 2): self.pk('mul', num + i, num + i, den, bc=(1,))
            for i in range(4 * h, 4 * h + 4): a(f'v_cvt_pk_bf16_f32 v{vq+i}, v{num+2*i}, v{num+2*i+1}')
            self.bs(vq + 4 * h, 4, vKP, rWS, T0, 512 * h, 'sc1', 'os')
        self.stamp('ost')
        if o['poisat'] == 3: self.poison((0,), RING + 22)
        while wl: wo1()

    def gemm2(self):
        a, vm, lg, o, S, va = self.a, self.vm, self.lg, self.o, self.S, self.vaa
        md, wr1, fw = self.md, self.wr1, o['fwin']
        AD2 = o['AD2']
        R = self.R = dict(acc=AQ, gaf=AQ + 16, cbf=AR + 16, sbf=AV, gbf=AV + 16, xf=AR, fr=AR + 32, Br=AR + 40, Ar=AR + 72, vB=RING + 8, sv=RING, up=RING + 12)
        acc, gaf, cbf, sbf, gbf, xf, fr, Br, Ar, vB, sv, up = [R[k] for k in 'acc gaf cbf sbf gbf xf fr Br Ar vB sv up'.split()]
        ARS = [Ar + 4 * i for i in range(6)] + [RING + 16, RING + 20, RING + 24]; assert AD2 <= 9
        va(vB, [(2, 2, 128), (4, 2, 1024), (0, 1, 16), (1, 1, 8), (3, 2, 32)])
        S(T4, '(w ^ ((j & 1)*4))*4096'); S(T1, '(T4*4) ^ (y2 >> 4)')
        a(f'v_add_u32 v{vB}, s{T1}, v{vB}')
        for ct in range(1, 4): a(f'v_xor_b32 v{vB+ct}, {32*ct}, v{vB}')
        va(vT + 1, [(0, 3, 8 * 4096), (3, 1, 4096)])
        S(T2, '((r1 >> 2)*2 + (r1 & 3)*64)*4096 + (hp >> 1)*64 + (hp & 1)*4 + INB + 1024')
        for i in range(8): self.unpack(xf + 2 * i, xf + 2 * i + 1, XR + i)
        S(T6, '(rt*8 + w)*32768 + OF')
        vm.wait('md')
        self.tagcheck([md + 1, md + 3], vT)
        a('s_cbranch_vccz L_MGOK')
        q0 = list(vm.q)
        self.poll(self.ld_md, [md + 1, md + 3], vT)
        vm.q = q0
        a('L_MGOK:')
        S(T1, '(w >> 1)*1024 + (w & 1)*8 + L_MD'); va(vT, [(0, 5, 32), (5, 1, 4)], T1)
        a(f'ds_write2_b32 v{vT}, v{md}, v{md+2} offset0:0 offset1:4'); lg.issue()
        va(vT + 3, [(0, 2, 16), (5, 1, 64), (4, 1, 128), (2, 2, 256)], None, L_MD)
        S(T5, 'wg*4096 + (T4 >> 6) + INB + 1024')
        vm.wait('os'); vm.wait('wo')
        self.barrier()
        self.push(vT + 1, T2, 16, vT + 2, 'L_PD')
        self.stamp('opub')
        self.ffn_reg(fw[2])
        t4 = Br
        for q in range(4): self.r128(t4 + 4 * q, vT + 3, q * 1024)
        va(vT + 4, [(0, 2, 4), (5, 1, 16), (4, 1, 32), (2, 2, 64)], None, L_GB)
        S(T0, '(rt*16 + cb)*64 + UP')
        lg.wait_all()
        def d_work():
            for q in range(4):
                self.pk('add', t4 + 4 * q, t4 + 4 * q, t4 + 4 * q + 2)
                a(f'v_add_f32 v{sv+q}, v{t4+4*q}, v{t4+4*q+1}')
            self.round_list([sv + q for q in range(4)])
            a(f'v_add_f32 v{sv+2}, 1.0, v{sv+2}')
            a(f'v_lshlrev_b32 v{wr1}, 16, v{wr1}')
            self.round1(sv + 2)
            a(f'ds_write_b32 v{vT+4}, v{sv+3}')
            uu, hi, lo, t = t4, t4 + 1, t4 + 2, t4 + 4
            a(f'v_mul_f32 v{uu}, v{sv+2}, v{wr1}')
            a(f'v_cvt_pk_bf16_f32 v{hi}, 0, v{uu}')
            a(f'v_sub_f32 v{lo}, v{uu}, v{hi}')
            self.allreduce(uu, t + 3)
            for k, r in enumerate((hi, lo, wr1)): a(f'v_mov_b32_dpp v{t+k}, v{r} row_shl:1 row_mask:0xf bank_mask:0xf')
            for k, r in enumerate((hi, lo, wr1)): a(f'v_cvt_pk_bf16_f32 v{t+k}, v{r}, v{t+k}')
            a(f"""v_mov_b32 v{uu+1}, s{sTAG}
            v_mov_b32 v{uu+2}, 0
            s_cmp_lg_u32 s{sWAVE}, 2
            s_cbranch_scc1 L_NOUP
            s_mov_b64 exec, 1""")
            self.bs(uu, 2, uu + 2, rWS, T0, 0, 'sc1', count=False)
            a('s_mov_b64 exec, -1\nL_NOUP:')
            for i in range(8):
                a(f'v_mov_b32 v{fr+i}, 0x3f803f80')
                for k in range(3): a(f'v_mov_b32_dpp v{fr+i}, v{t+k} row_newbcast:{2*i} row_mask:0xf bank_mask:{hex(2 << k)}')
            for dst, q in ((gaf, 0), (cbf, 2), (sbf, 1), (gbf, 3)):
                for i in range(16): a(f'v_mov_b32_dpp v{dst+i}, v{sv+q} row_newbcast:{i} row_mask:0xf bank_mask:0xf')
            self.stamp('dw')
        L2 = o['LOOK2']
        def b2_read(m):
            H, ct = divmod(m, 4)
            if H and H % 4 == 0: a(f'v_xor_b32 v{vB+ct}, {((H >> 2) ^ ((H >> 2) - 1)) * 16384}, v{vB+ct}')
            for rd in range(2): self.tr(Br + 4 * (m % 8) + 2 * rd, vB + ct, (H & 3) * 4096 + rd * 512, ('B', m))
        def a2_load(H):
            if H % 4 == 0: S(T7, '(T4 ^ n) + T6', n=H * 1024)
            self.bl(ARS[H % AD2], 4, vL16, rWS, T7, (H % 4) * 1024, 'sc1', ('A', H))
        self.spoll([(0, 2, T5, 0)], range(2), d_work)
        self.stamp('ook1')
        if not o['earlyD']: a('s_barrier')
        for H in range(AD2):
            if H == 4 and o['earlyD']: a('s_barrier')
            a2_load(H)
            if H == 0:
                for m in range(L2): b2_read(m)
        self.stamp('ook')
        S(T0, 'rt*1024 + UP'); va(vT + 6, [(0, 4, 64)])
        self.ld_up = lambda: self.bl(up, 2, vT + 6, rWS, T0, 0, 'sc1', 'up')
        lpend = []
        for H in range(32):
            if self.prof and o.get('ls2'):
                if lpend: r_, k_ = lpend.pop(0); a(f'v_writelane_b32 v255, s{r_}, {k_}')
                if H < 31:
                    r_ = sPL + 2 * (self.nst % 4)
                    a.items.append(('raw', f'    s_memtime {sr(r_, 2)}')); lpend.append((r_, self.nst)); self.stnames.append(f'n{H}'); self.nst += 1
            if o.get('g2p') and H in (0, o['g2p']):
                a(f's_cmp_lt_u32 s{sWAVE}, 4\ns_cbranch_scc1 L_G2P{H}\ns_setprio {1 if H == 0 else 0}\nL_G2P{H}:')
            vm.wait(('A', H))
            for ct in range(4):
                m = 4 * H + ct
                if o.get('pairw2') and ct & 1: pass
                else: lg.wait(('B', m + 1 if o.get('pairw2') else m))
                a(f'v_mfma_f32_16x16x32_bf16 {vr(acc + 4*ct, 4)}, {vr(Br + 4*(m % 8), 4)}, {vr(ARS[H % AD2], 4)}, ' + ('0' if H == 0 else vr(acc + 4*ct, 4)))
                if m + L2 < 128: b2_read(m + L2)
            if H + AD2 < 32: a2_load(H + AD2)
            if H + AD2 == 31:
                self.ld_up(); self.ffn_reg(fw[3])
        self.stamp('gemm2')
        if o.get('dbg'):
            S(T1, '(wg*8 + w)*32768 + 0x4000000'); va(vT, [(0, 6, 4)])
            for k, r in enumerate(list(range(40, 104)) + [24, 25, 26, 27]):
                if k % 16 == 0 and k: S(T1, 'T1 + 4096')
                self.bs(r, 1, vT, rWS, T1, (k % 16) * 256, '', 'dbg')
                if k % 16 == 15: vm.wait('dbg')

    def tail(self):
        a, vm, lg, o, S, va = self.a, self.vm, self.lg, self.o, self.S, self.vaa
        R, fw = self.R, o['fwin']
        E2 = range(0, 16, 2)
        acc, gaf, cbf, sbf, gbf, xf, fr, up = [R[k] for k in 'acc gaf cbf sbf gbf xf fr up'.split()]
        FR, held, fq = self.FL, self.held, self.fq
        g16, hh, h2p, op, sd4, kk = AR + 40, AR + 56, AR + 72, AR + 80, AR + 88, AR + 92
        vSt, vRow, mm, rs, key, vTa = RING, RING + 1, RING + 2, RING + 3, RING + 4, RING + 5
        x1f = xf
        swp = lambda b: [a(f'v_permlane32_swap_b32 v{b+p}, v{b+q}') for p, q in ((0, 2), (1, 3), (4, 6), (5, 7))]
        S(T1, '((rt*8 + w)*16 + cb)*256 + ST')
        va(vSt, [(0, 4, 16), (4, 2, 4)])
        self.nopk = bool(o.get('g2p'))
        for h in range(2):
            rg = range(8 * h, 8 * h + 8)
            self.round_list([acc + i for i in rg])
            for i in range(8 * h, 8 * h + 8, 2): self.pk('mul', acc + i, acc + i, gaf + i)
            self.round_list([acc + i for i in rg])
            for i in range(8 * h, 8 * h + 8, 2): self.pk('add', acc + i, acc + i, xf + i)
            for i in range(4 * h, 4 * h + 4): a(f'v_cvt_pk_bf16_f32 v{XR+i}, v{acc+2*i}, v{acc+2*i+1}')
            for i in range(4 * h, 4 * h + 4): a(f'v_dot2_f32_bf16 v{vT+(i&1)}, v{XR+i}, v{XR+i}, ' + ('0' if i < 2 else f'v{vT+(i&1)}'))
            a(f'v_mfma_f32_16x16x32_bf16 {vr(sd4, 4)}, {vr(fr + 4*h, 4)}, {vr(XR + 4*h, 4)}, ' + ('0' if h == 0 else vr(sd4, 4)))
        self.nopk = False
        va(vT + 3, [(0, 3, 8 * 4096), (3, 1, 4096)])
        a(f'v_add_f32 v{vT}, v{vT}, v{vT+1}')
        for sw in ('v_permlane32_swap_b32', 'v_permlane16_swap_b32'):
            a(f'v_mov_b32 v{vT+1}, v{vT}')
            a(f'{sw} v{vT}, v{vT+1}')
            a(f'v_add_f32 v{vT}, v{vT}, v{vT+1}')
        a(f'v_mov_b32_dpp v{sd4}, v{vT} quad_perm:[0,1,2,3] row_mask:0x8 bank_mask:0xf')
        self.bs(sd4, 1, vSt, rWS, T1, 0, 'sc1')
        S(T3, '((rt >> 2)*2 + (rt & 3)*64)*4096 + (cb >> 1)*64 + (cb & 1)*4 + INB + 1536')
        a('s_barrier')
        self.push(vT + 3, T3, 16, vT + 2, 'L_PE')
        self.stamp('x1pub')
        self.ffn_dma(fw[4])
        S(T2, 'w*4096')
        a(f'v_add_u32 v{vT}, s{T2}, v{vL16}')
        a(f'v_add_u32 v{vT+3}, {L_DN}, v{vT}')
        vm.wait('up')
        self.tagcheck([up + 1], vT + 2)
        a('s_cbranch_vccz L_UPOK')
        q0 = list(vm.q)
        self.poll(self.ld_up, [up + 1], vT + 2)
        vm.q = q0
        a('L_UPOK:')
        S(T1, '(rt*8 + w)*4096 + ST')
        def e_work():
            for ctl in ('quad_perm:[1,0,3,2]', 'quad_perm:[2,3,0,1]', 'row_half_mirror', 'row_mirror'): self.dpp('v_add_f32', up, up, up, ctl)
            for i in range(8): self.unpack(x1f + 2 * i, x1f + 2 * i + 1, XR + i)
            S(T2, 'w*512 + rt*2')
            va(vRow, [(0, 4, 32)], T2)
            a(f'v_xor_b32 v{vT+1}, 0x4000, v{vT}\nv_xor_b32 v{vT+4}, 0x4000, v{vT+3}')
            if held[0] or held[1]: a(f's_waitcnt vmcnt({fw[4]})')
            for g in range(2):
                if not held[g]: continue
                a(f's_cmp_{"ge" if g == 0 else "lt"}_u32 s{sWAVE}, 4\ns_cbranch_scc1 L_FW{g}')
                for n, (m, i) in enumerate(held[g]):
                    for far in range(2):
                        a(f'ds_write_b128 v{(vT if m < 2 else vT + 3) + far}, {vr(FR + 8*n + 4*far, 4)} offset:{self.f_lds(m, i) - (L_GU if m < 2 else L_DN)}')
                a(f'L_FW{g}:')
            self.stamp('ew')
        self.inbox(3, 2, work=e_work)
        a('s_barrier')
        self.stamp('x1ok')
        def try_p(loads, check, between):
            loads()
            vm.q[-1] = tg = ('try', a.label('T'))
            between()
            vm.wait(tg)
            OK, L = a.label('POK'), a.label('PRE')
            check()
            a(f's_cbranch_vccz {OK}')
            q = list(vm.q)
            a(f'{L}:')
            loads(); vm.wait_all()
            check()
            a(f"""s_cbranch_vccz {OK}
            s_add_u32 s{sSPIN}, s{sSPIN}, 1
            s_cmp_lt_u32 s{sSPIN}, {SPIN_LIMIT}
            s_cbranch_scc1 {L}""")
            vm.q = q
            a(f'{OK}:')
        def e_between():
            if o['gbar']: a('s_barrier')
            self.ffn_dma(fw[5])
            S(T2, 'w*8 + L_K1'); a(f'v_mov_b32 v{vT}, s{T2}')
            va(vT + 1, [(0, 3, 8)], None, L_K1)
            va(vT + 2, [(0, 2, 64 * 4096), (2, 2, 2 * 4096)])
            S(T3, '((cb >> 3) + (cb & 7)*8)*4096 + (rt >> 1)*64 + (rt & 1)*16 + INB + 2560')
        s_, d_, q_, t_ = g16, g16 + 1, g16 + 3, g16 + 4
        def e_check():
            for h in (0, 2):
                self.pk('add', g16 + h, g16 + h, g16 + 4 + h); self.pk('add', g16 + 8 + h, g16 + 8 + h, g16 + 12 + h)
            for h in (0, 2): self.pk('add', g16 + h, g16 + h, g16 + 8 + h)
            a(f'''v_add_f32 v{d_}, v{d_}, v{g16+2}
            v_add_f32 v{t_+1}, v{s_}, v{q_}
            v_cmp_u_f32 vcc, v{d_}, v{t_+1}''')
        try_p(lambda: [self.bl(g16 + 4 * i, 4, vL16, rWS, T1, i * 1024, 'sc1') for i in range(4)], e_check, e_between)
        self.stamp('x1ld')
        a(f"""
        v_mov_b32 v{t_}, v{q_}
        v_permlane32_swap_b32 v{q_}, v{t_}
        v_permlane32_swap_b32 v{s_}, v{d_}
        v_add_f32 v{q_}, v{q_}, v{t_}
        v_add_f32 v{s_}, v{s_}, v{d_}
        v_permlane16_swap_b32 v{s_}, v{q_}
        v_add_f32 v{d_}, v{s_}, v{q_}
        v_add_f32 v{q_}, v{s_}, v{q_}
        v_permlane16_swap_b32 v{d_}, v{q_}
        v_mov_b32 v{s_}, v{d_}
        v_mul_f32 v{q_}, 0x3a800000, v{q_}
        v_permlane32_swap_b32 v{s_}, v{d_}
        v_mul_f32 v{s_}, 0x3a800000, v{s_}
        v_fma_f32 v{rs}, -v{s_}, v{s_}, v{q_}
        v_cvt_pk_bf16_f32 v{mm}, 0, v{s_}
        v_max_f32 v{rs}, 0, v{rs}""")
        self.round1(rs)
        a(f'v_fma_f32 v{d_}, -v{mm}, v{up}, v{d_}')
        a(f'v_add_f32 v{rs}, 0x3727c5ac, v{rs}')
        self.round1(rs)
        a(f'v_sqrt_f32 v{rs}, v{rs}')
        self.round1(rs)
        a(f"""v_rcp_f32 v{rs}, v{rs}
        v_mul_f32 v{key}, v{d_}, v{rs}
        v_ashrrev_i32 v{t_}, 31, v{key}
        v_or_b32 v{t_}, 0x80000000, v{t_}
        v_xor_b32 v{key}, v{key}, v{t_}
        s_mov_b32 s{T2}, 0xfffff000
        v_and_or_b32 v{key}, v{key}, s{T2}, v{vRow}""")
        hi, lo = kk, kk + 1
        def merge2(ctl):
            self.dpp('v_min_u32', t_, hi, hi, ctl); self.dpp('v_max_u32', lo, lo, lo, ctl); self.dpp('v_max_u32', hi, hi, hi, ctl)
            a(f'v_max_u32 v{lo}, v{lo}, v{t_}')
        self.dpp('v_max_u32', hi, key, key, 'quad_perm:[1,0,3,2]'); self.dpp('v_min_u32', lo, key, key, 'quad_perm:[1,0,3,2]')
        for ctl in ('quad_perm:[2,3,0,1]', 'row_half_mirror', 'row_mirror'): merge2(ctl)
        self.dw('ds_write_b64', vT, hi, 2)
        self.stamp('ln2')
        self.barrier()
        self.dr('ds_read_b64', hi, 2, vT + 1)
        for i in E2: self.pk('add', hh + i, x1f + i, mm, bc=(1,), neg=(1,))
        lg.wait_all()
        for ctl in ('quad_perm:[1,0,3,2]', 'quad_perm:[2,3,0,1]', 'row_half_mirror'): merge2(ctl)
        a(f"""v_cmp_eq_u32 {sr(sC2, 2)}, v{key}, v{lo}
        v_cmp_eq_u32 vcc, v{key}, v{hi}
        v_or_b32 v{kk+2}, 1, v{lo}
        v_mov_b32 v{kk+1}, s{sTAG}
        v_mov_b32 v{kk+3}, s{sTAG}
        s_or_b64 {sr(sCM, 2)}, vcc, {sr(sC2, 2)}
        s_cmp_lg_u32 s{sWAVE}, 0
        s_cbranch_scc1 L_NOF
        s_mov_b64 exec, 0xffff""")
        self.bs(kk, 4, vT + 2, rWS, T3, 0, 'sc1', count=False)
        a(f"""s_mov_b64 exec, -1
        L_NOF:""")
        self.stamp('Fpub')
        vRt = RING + 14
        def out_calc(part):
            u = g16 + 10
            if part == o['ocut'][0]:
                for i in range(8): self.unpack(hh + 2 * i, hh + 2 * i + 1, h2p + i)
                for i in E2: self.pk('mul', hh + i, hh + i, gbf + i)
                self.round_list([hh + i for i in range(16)])
            if part == o['ocut'][1]:
                S(T0, 'w*2048 + L_TR')
                va(u, [(4, 2, 16)]); va(u + 1, [(0, 3, 16)]); a(f'v_xor_b32 v{u}, v{u}, v{u+1}')
                va(u + 2, [(0, 4, 128)], T0); a(f'v_add_u32 v{u}, v{u}, v{u+2}'); a(f'v_xor_b32 v{u+2}, 64, v{u}')
                va(u + 3, [(3, 3, 16)]); a(f'v_xor_b32 v{u+1}, v{u+3}, v{u+1}'); va(u + 3, [(3, 3, 128)], T0); a(f'v_add_u32 v{u+1}, v{u+1}, v{u+3}')
                S(T0, '2047 - rt*128 - w*16'); va(vRt + 1, [(3, 3, 1)])
                a(f'v_sub_u32 v{vRt}, s{T0}, v{vRt+1}\nv_subrev_u32 v{vRt+1}, 8, v{vRt}')
                va(vTa, [(3, 3, 2048), (0, 3, 16)])
                S(T3, '(rt*8 + w)*32768 + cb*128'); S(T2, 'T3 + 16384')
            if part == o['ocut'][2]:
                for i in E2: self.pk('add', hh + i, hh + i, x1f + i)
                for i in range(8): a(f'v_cvt_pk_bf16_f32 v{op+i}, v{hh+2*i}, v{hh+2*i+1}')
                swp(op)
                a(f'ds_write_b128 v{u}, {vr(op, 4)}\nds_write_b128 v{u+2}, {vr(op + 4, 4)}')
                a(f'ds_read_b128 {vr(op, 4)}, v{u+1}\nds_read_b128 {vr(op + 4, 4)}, v{u+1} offset:1024')
        def f_work():
            self.round_list([hh + i for i in range(16)])
            for i in E2: self.pk('mul', hh + i, hh + i, rs, bc=(1,))
            self.round_list([hh + i for i in range(16)])
            for i in E2: self.pk('mul', hh + i, hh + i, cbf + i)
            self.round_list([hh + i for i in range(16)])
            for i in E2: self.pk('add', hh + i, hh + i, sbf + i)
            for i in range(8): a(f'v_cvt_pk_bf16_f32 v{h2p+i}, v{hh+2*i}, v{hh+2*i+1}')
            a(f"""s_cmp_eq_u64 {sr(sCM, 2)}, 0
            s_cbranch_scc1 L_NOCAND""")
            for h in range(2): a(f'v_mfma_f32_16x16x32_bf16 {vr(sd4, 4)}, {vr(fr + 4*h, 4)}, {vr(h2p + 4*h, 4)}, ' + ('0' if h == 0 else vr(sd4, 4)))
            for i in range(8): a(f'v_mov_b32 v{op+i}, v{h2p+i}')
            S(T2, 'rt*16384 + cb*512 + XS')
            va(vT + 3, [(4, 2, 16)])
            a(f'v_add_u32 v{vT+4}, 8192, v{vT+3}')
            swp(op); swp(XR)
            a(f'v_cndmask_b32 v{vT+3}, v{vT+3}, v{vT+4}, {sr(sC2, 2)}')
            a(f's_mov_b64 exec, {sr(sCM, 2)}')
            for h in range(2): self.bs(op + 4 * h, 4, vT + 3, rWS, T2, 64 * h, 'sc1', count=False)
            a(f's_mov_b32 exec_lo, 0\ns_and_b32 exec_hi, s{sCM+1}, 0xffff0000')
            self.bs(sd4, 1, vT + 3, rWS, T2, 256 - 48, 'sc1', count=False)
            a(f's_mov_b64 exec, {sr(sCM, 2)}')
            for h in range(2): self.bs(XR + 4 * h, 4, vT + 3, rWS, T2, 128 + 64 * h, 'sc1', count=False)
            a('s_mov_b64 exec, -1\nL_NOCAND:')
            self.stamp('cand')
            self.ffn_dma(fw[6])
            out_calc(0)
        S(T0, 'w*16 + L_K2'); a(f'v_mov_b32 v{vT}, s{T0}')
        va(vT + 1, [(0, 3, 16)], None, L_K2)
        self.inbox(5, 8, (1, 3, 5, 7), f_work)
        P = sPL
        a(f"""s_min_u32 s{P+1}, s{P}, s{P+4}
        s_min_u32 s{P+3}, s{P+2}, s{P+4}
        s_min_u32 s{P+5}, s{P}, s{P+6}
        s_max_u32 s{P}, s{P}, s{P+4}
        s_max_u32 s{P+2}, s{P+2}, s{P+6}
        s_max_u32 s{P+3}, s{P+3}, s{P+5}
        s_max_u32 s{P+1}, s{P+1}, s{P+2}
        v_mov_b32 v{kk}, s{P}
        v_mov_b32 v{kk+2}, s{P+3}
        v_mov_b32 v{kk+1}, s{P+1}""")
        self.dw('ds_write_b128', vT, kk, 4)
        self.stamp('F2p')
        out_calc(1)
        vGr, vDr, vXs, ffn, fdn = RING + 6, RING + 7, RING + 8, FR, AQ
        S(T0, '(w >> 2)*32768 + (w & 3)*32 + L_GU')
        va(vGr, [(4, 2, 8192), (2, 2, 128), (3, 2, 32), (0, 2, 8)]); a(f'v_xor_b32 v{vGr}, s{T0}, v{vGr}')
        S(T0, 'kq*2048 + XS'); va(vXs, [(0, 3, 16), (4, 2, 512)], T0)
        va(vT + 6, [(0, 4, 512)], None, XS + 256)
        gu_late = [p for p in fq if p[0] < 2]; assert not gu_late
        dn_late = len(fq) > 0
        def dn_read(s, tag=None):
            self.tr(fdn + 4 * s, vDr, s * 8192, tag); self.tr(fdn + 4 * s + 2, vDr, s * 8192 + 1024, tag)
        vm.wait('ffn')
        self.barrier()
        self.stamp('F2')
        self.r128(kk, vT + 1, 0, 'k2')
        a(f'v_and_b32 v{vT+4}, 8, v{vL}')
        a(f'v_cmp_eq_u32 {sr(sCMP, 2)}, 0, v{vT+4}')
        a(f'v_cmp_gt_u32 {sr(sPL, 2)}, 16, v{vL}')
        a(f'v_cmp_gt_u32 {sr(sPL + 2, 2)}, 32, v{vL}')
        lg.wait('k2')
        t = g16
        for ctl in ('quad_perm:[1,0,3,2]', 'quad_perm:[2,3,0,1]', 'row_half_mirror'):
            self.dpp('v_min_u32', t, kk, kk, ctl); self.dpp('v_min_u32', t + 1, kk + 1, kk, ctl); self.dpp('v_min_u32', t + 2, kk, kk + 1, ctl)
            self.dpp('v_max_u32', kk + 2, kk + 2, kk + 2, ctl); self.dpp('v_max_u32', kk + 1, kk + 1, kk + 1, ctl); self.dpp('v_max_u32', kk, kk, kk, ctl)
            a(f'v_max3_u32 v{kk+2}, v{kk+2}, v{t+1}, v{t+2}')
            a(f'v_max_u32 v{kk+1}, v{kk+1}, v{t}')
        xa, xb, rp, kr = g16, g16 + 4, g16 + 8, g16 + 9
        a(f"""v_cndmask_b32 v{t}, v{kk+1}, v{kk}, {sr(sCMP, 2)}
        v_cndmask_b32 v{kr}, v{kk+2}, v{kk+1}, {sr(sPL + 2, 2)}
        v_and_b32 v{t+1}, 31, v{kk+2}
        v_and_b32 v{t}, 31, v{t}
        v_cndmask_b32 v{kr}, v{kr}, v{kk}, {sr(sPL, 2)}
        v_lshl_add_u32 v{vT}, v{t}, 13, v{vXs}
        v_lshl_add_u32 v{vT+1}, v{t+1}, 13, v{vXs}
        v_and_b32 v{t+2}, 31, v{kr}
        v_lshl_add_u32 v{vT+2}, v{t+2}, 13, v{vT+6}""")
        def sel_work():
            self.stamp('sel')
            if o['gbar']: a('s_barrier')
            self.ffn_dma(len(fq))
            for k in range(3): a(f'v_readfirstlane_b32 s{sY0+[0, 3, 4][k]}, v{kk+k}')
            for s in range(8):
                self.tr(ffn + 4 * s, vGr, s * 1024); self.tr(ffn + 4 * s + 2, vGr, s * 1024 + 512)
            for k in range(3): S(T4 + k, '(((y >> 1) & 15)*128 + ((y >> 5) & 127)) ^ 2047'.replace('y', ('y0', 'y1', 'y2')[k]))
            out_calc(2)
            lg.wait_all()
            if o['outat'] == 0:
                for h in range(2):
                    for k in range(3): a(f'v_cmp_ne_u32 {sr(sPL + 2*k, 2)}, s{T4+k}, v{vRt+h}')
                    a(f's_and_b64 vcc, {sr(sPL, 2)}, {sr(sPL + 2, 2)}\ns_and_b64 exec, vcc, {sr(sPL + 4, 2)}')
                    self.bs(op + 4 * h, 4, vTa, rOUT, (T3, T2)[h], 0, o.get('outmod', 'sc1'))
                    a('s_mov_b64 exec, -1')
            S(T0, 'w*64')
            va(vDr, [(2, 1, 512), (3, 1, 4096), (5, 1, 2048), (2, 2, 64), (4, 1, 32), (0, 2, 8)])
            a(f'v_xor_b32 v{vDr}, s{T0}, v{vDr}'); a(f'v_add_u32 v{vDr}, {L_DN}, v{vDr}')
            va(vT + 4, [(0, 4, 16), (5, 1, 8)])
            S(T1, 'fs*8192 + HGR'); S(T7, '(kq*8 + w)*256 + T1')
            a(f'v_bfe_u32 v{vT+3}, v{kr}, 1, 4\nv_bfe_u32 v{kr}, v{kr}, 5, 7\nv_lshl_or_b32 v{kr}, v{vT+3}, 7, v{kr}\nv_xor_b32 v{kr}, 0x7ff, v{kr}')
        try_p(lambda: [self.bl(xa, 4, vT, rWS, '0', 0, 'sc1'), self.bl(xb, 4, vT + 1, rWS, '0', 0, 'sc1'), self.bl(rp, 1, vT + 2, rWS, '0', 0, 'sc1')],
              lambda: a(f'v_max3_u32 v{vT+3}, v{xa}, v{xb}, v{rp}\nv_cmp_eq_u32 vcc, -1, v{vT+3}'), sel_work)
        self.stamp('xsel')
        for ctl in ('quad_perm:[1,0,3,2]', 'quad_perm:[2,3,0,1]', 'row_half_mirror', 'row_mirror'): self.dpp('v_add_f32', rp, rp, rp, ctl)
        a(f"""v_cvt_pk_bf16_f32 v{rp}, 0, v{rp}
        v_ashrrev_i32 v{vT+3}, 31, v{rp}
        v_or_b32 v{vT+3}, 0x80000000, v{vT+3}
        v_xor_b32 v{rp}, v{rp}, v{vT+3}
        v_lshrrev_b32 v{rp}, 16, v{rp}
        v_lshl_or_b32 v{rp}, v{rp}, 11, v{kr}
        v_readlane_b32 s{P}, v{rp}, 0
        v_readlane_b32 s{P+1}, v{rp}, 16
        v_readlane_b32 s{P+2}, v{rp}, 32
        s_not_b64 {sr(P + 4, 2)}, {sr(sCMP, 2)}
        s_cmp_lt_u32 s{P}, s{P+1}
        s_cselect_b64 {sr(P + 4, 2)}, {sr(sCMP, 2)}, {sr(P + 4, 2)}
        s_cselect_b32 s{P+3}, s{P}, s{P+1}
        s_cmp_gt_u32 s{P+2}, s{P+3}
        s_cselect_b64 vcc, {sr(P + 4, 2)}, 0""")
        for i in range(4): a(f'v_cndmask_b32 v{xa+i}, v{xa+i}, v{xb+i}, vcc')
        a(f"""s_bitcmp1_b32 vcc_lo, 0
        s_cselect_b32 s{P}, s{P+2}, s{P}
        s_cselect_b32 s{T6}, s{T4}, s{T6}
        s_cselect_b32 s{T4}, s{sY2}, s{sY0}
        s_bitcmp1_b32 vcc_lo, 8
        s_cselect_b32 s{P+1}, s{P+2}, s{P+1}
        s_cselect_b32 s{T6}, s{T5}, s{T6}
        s_cselect_b32 s{T5}, s{sY2}, s{sY1}""")
        gd = [gaf + 4 * i for i in range(4)] + [cbf + 4 * i for i in range(4)]
        lg.wait_all()
        for s in range(8):
            a(f'v_mfma_f32_16x16x32_bf16 {vr(gd[s], 4)}, {vr(xa, 4)}, {vr(ffn + 4*s, 4)}, 0')
        p0, p1 = xb, xb + 2
        for p, b in ((p0, 0), (p1, 4)):
            a(f'v_add_f32 v{p}, v{gd[b]}, v{gd[b+1]+1}')
            a(f'v_add_f32 v{p+1}, v{gd[b+2]+2}, v{gd[b+3]+3}')
        a(f"""v_add_f32 v{p0}, v{p0}, v{p0+1}
        v_add_f32 v{p1}, v{p1}, v{p1+1}
        v_mov_b32 v{p0+1}, s{sTAG}
        v_permlane16_swap_b32 v{p1}, v{p1+1}
        s_cmp_ge_u32 s{sJ}, 28
        s_cbranch_scc1 L_NOHP
        v_add_f32 v{p0}, v{p0}, v{p1+1}
        s_mov_b32 exec_lo, 0xffff
        s_mov_b32 exec_hi, 0xffff""")
        self.bs(p0, 2, vT + 4, rWS, T7, 0, 'sc1', count=False)
        a("""s_mov_b64 exec, -1
        L_NOHP:""")
        self.stamp('Hpub')
        if not dn_late:
            for s in range(4): dn_read(s)
        def out_store():
            for h in range(2):
                a(f"""v_cmp_ne_u32 vcc, s{sK1}, v{vRt+h}
                v_cmp_ne_u32 {sr(sCMP, 2)}, s{sK2}, v{vRt+h}
                s_and_b64 exec, vcc, {sr(sCMP, 2)}""")
                self.bs(op + 4 * h, 4, vTa, rOUT, (sROW0, sROW1)[h], 0, o.get('outmod', 'sc1'))
                a('s_mov_b64 exec, -1')
        if o['outat']:
            a(f's_and_b32 s{sK1}, s{P}, 2047\ns_and_b32 s{sK2}, s{P+1}, 2047\ns_mov_b32 s{sROW0}, s{T3}\ns_mov_b32 s{sROW1}, s{T2}')
            out_calc(3)
            lg.wait_all()
        if o['outat'] == 1:
            a('s_barrier')
            out_store()
        if o['outat'] == 0:
            for h in range(2):
                a(f"""v_cmp_eq_u32 vcc, s{T6}, v{vRt+h}
                s_and_b64 exec, vcc, -1
                s_cbranch_execz L_NOLO{h}""")
                self.bs(op + 4 * h, 4, vTa, rOUT, (T3, T2)[h], 0, o.get('outmod', 'sc1'), count=False)
                a(f'L_NOLO{h}:\ns_mov_b64 exec, -1')
        self.stamp('outst')
        fz, x1, st = g16 + 12, AV, kk
        a(f"""s_cmp_lg_u32 s{sRow}, 7
        s_cbranch_scc1 L_NONON
        v_mov_b32 v{vT+2}, s{sTAG}
        v_mov_b32 v{vT+3}, 0
        s_mov_b64 exec, 1""")
        self.bs(vT + 2, 1, vT + 3, rWS, '0', 0, 'sc1', count=False)
        a(f"""s_mov_b64 exec, -1
        L_NONON:
        s_cmp_ge_u32 s{sJ}, 28
        s_cbranch_scc1 {'L_FIN2' if o['outat'] == 2 else 'L_FIN'}
        s_cmp_lg_u32 s{sWAVE}, 7
        s_cbranch_scc1 L_NOFZ""")
        a(f"""s_bitcmp1_b32 s{sJ}, 3
        s_cselect_b32 s{T2}, s{P+1}, s{P}
        s_cselect_b32 s{T4}, s{T5}, s{T4}
        s_andn2_b32 s{T5}, 2047, s{T2}""")
        S(T6, 'cb*4 + (x >> 1)')
        S(T7, '((T6 >> 1)*4 + (j >> 3)*2 + (T6 & 1))*(56*128) + GGR')
        S(sU, 'T5*2048 + T6*32')
        va(vT + 6, [(0, 3, 4)])
        S(T0, '(x >> 1)*64 + L_GB'); va(vT + 1, [(0, 3, 8)], T0)
        a(f'ds_read_b64 {vr(fz + 2, 2)}, v{vT+1}')
        S(sY0, '(T4 & 31)*8192 + cb*512 + (x >> 1)*32 + XS')
        a(f"""s_lshr_b32 s{T0}, s{T2}, 11
        s_lshl_b32 s{T0}, s{T0}, 16
        s_ashr_i32 s{T2}, s{T0}, 31
        s_andn2_b32 s{T2}, 0x7fff0000, s{T2}
        s_or_b32 s{T2}, s{T2}, 0x80000000
        s_xor_b32 s{T0}, s{T0}, s{T2}
        v_mov_b32 v{fz}, s{T0}
        v_mul_f32 v{fz}, s{sL2E}, v{fz}
        v_exp_f32 v{fz}, -v{fz}
        v_add_f32 v{fz}, 1.0, v{fz}
        v_rcp_f32 v{fz}, v{fz}""")
        self.round1(fz)
        a('L_NOFZ:')
        a(f"""s_cmp_ge_u32 s{sWAVE}, 4
        s_cbranch_scc1 L_NOH""")
        S(T0, 'w*256 + T1')
        va(vT, [(4, 2, 2048), (0, 4, 16)])
        S(T2, 'w*32 + L_ACT'); va(vT + 1, [(5, 1, 128), (2, 1, 16), (1, 1, 8), (3, 1, 4), (0, 1, 2)], T2)
        q0 = list(vm.q)
        g, u = x1, x1 + 4
        if not o['Hdir']:
            self.spoll([(q, 1, T0, q * 2048 + 1024 + 252) for q in range(4)], range(4))
            self.stamp('Hpre')
        self.poll(lambda: [self.bl(x1 + 4 * m, 4, vT, rWS, T0, m * 1024, 'sc1') for m in range(2)], [g + 1, g + 3, u + 1, u + 3], vT + 2)
        a(f"""v_permlane32_swap_b32 v{g}, v{g+2}
        v_permlane32_swap_b32 v{u}, v{u+2}
        v_add_f32 v{g}, v{g}, v{g+2}
        v_add_f32 v{u}, v{u}, v{u+2}
        v_mov_b32 v{g+2}, v{g}
        v_mov_b32 v{u+2}, v{u}
        v_permlane16_swap_b32 v{g}, v{g+2}
        v_permlane16_swap_b32 v{u}, v{u+2}
        v_add_f32 v{g}, v{g}, v{g+2}
        v_add_f32 v{u}, v{u}, v{u+2}""")
        self.round2(g, u)
        self.silu(g, vT + 2)
        a(f"""v_mul_f32 v{g}, v{g}, v{u}
        v_cvt_pk_bf16_f32 v{g}, v{g}, v{g}
        ds_write_b16 v{vT+1}, v{g}
        L_NOH:""")
        vm.q = q0
        va(vT, [(2, 1, 128), (5, 1, 16)], None, L_ACT)
        va(vT + 1, [(4, 2, 56 * 128), (0, 4, 8)])
        S(T0, '(kq*8 + w)*(4*56*128) + fs*128 + GGR')
        va(vT + 2, [(0, 1, 2 * 4096), (1, 1, 64 * 4096)])
        S(T1, '((w & 1)*4 + (kq >> 1) + ((kq & 1)*4 + (w >> 1))*8)*4096 + x*64 + (j >> 2)*4 + INB + 3072')
        vm.wait('ffn')
        self.barrier()
        self.stamp('Hok')
        for s in range(4):
            self.r128(x1 + 4 * s, vT, s * 32, ('ac', s))
            if dn_late: dn_read(s, ('ac', s))
        for s in range(4):
            lg.wait(('ac', s))
            a(f'v_mfma_f32_32x32x16_bf16 {vr(hh, 16)}, {vr(x1 + 4*s, 4)}, {vr(fdn + 4*s, 4)}, ' + ('0' if s == 0 else vr(hh, 16)))
        a(f'v_mov_b32 v{hh+1}, s{sTAG}')
        self.bs(hh, 2, vT + 1, rWS, T0, 0, 'sc1')
        if not o['Gdir']:
            a('s_mov_b64 exec, 15')
            self.bs(hh + 1, 1, vT + 2, rWS, T1, 0, 'sc1')
            a('s_mov_b64 exec, -1')
        self.stamp('Gpub')
        if o['outat'] == 2:
            a('s_barrier\nL_FIN2:')
            out_store()
        a(f"""s_cmp_ge_u32 s{sJ}, 16
        s_cbranch_scc1 L_FIN""")
        if not o['Gdir']:
            self.inbox(6, 8, range(7))
            self.stamp('Gpre')
            a('s_barrier')
        a(f"""s_cmp_lg_u32 s{sWAVE}, 7
        s_cbranch_scc1 L_FIN""")
        S(T0, 'T7 + 4096')
        gg = [x1 + 4 * i for i in range(7)]
        def g_ld():
            [self.bl(gg[n], 4, vL16, rWS, (T7, T0)[n >> 2], (n & 3) * 1024, 'sc1') for n in range(7)]
            self.bl(st, 1, vT + 6, rWS, sY0, 0, 'sc1'); self.bl(st + 1, 1, vT + 6, rWS, sY0, 128, 'sc1')
        def g_post():
            a(f'''v_max_u32 v{st+2}, v{st}, v{st+1}
            v_cmp_ne_u32 vcc, -1, v{st+2}
            v_cndmask_b32 v{st+2}, v{vT+2}, v{vT+1}, vcc''')
        a(f'v_mov_b32 v{vT+1}, s{sTAG}\nv_not_b32 v{vT+2}, v{vT+1}')
        self.poll(g_ld, [gg[n] + 1 + 2 * e for n in range(7) for e in range(2)] + [st + 2], vT, g_post)
        self.stamp('Gok')
        for n in range(1, 7):
            for e in (0, 2): a(f'v_add_f32 v{gg[0]+e}, v{gg[0]+e}, v{gg[n]+e}')
        y0, y1 = gg[0], gg[0] + 1
        a(f'v_mov_b32 v{y1}, v{gg[0]+2}')
        for y in (y0, y1): self.dpp('v_add_f32', y, y, y, 'row_ror:8')
        for sw in ('v_permlane16_swap_b32', 'v_permlane32_swap_b32'):
            for y in (y0, y1): a(f'v_mov_b32 v{y+2}, v{y}')
            for y in (y0, y1): a(f'{sw} v{y}, v{y+2}')
            self.pk('add', y0, y0, y0 + 2)
        self.round2(y0, y1)
        self.pk('mul', y0, y0, fz, bc=(1,))
        self.unpack(vT, vT + 1, st)
        self.round2(y0, y1)
        self.pk('add', y0, y0, vT)
        self.round2(y0, y1)
        self.pk('mul', y0, y0, fz + 2)
        self.unpack(vT, vT + 1, st + 1)
        self.round2(y0, y1)
        self.pk('add', y0, y0, vT)
        a(f'v_cvt_pk_bf16_f32 v{y0}, v{y0}, v{y1}')
        a('s_mov_b64 exec, 0xff')
        self.bs(y0, 1, vT + 6, rOUT, sU, 0, 'sc1')
        a('s_mov_b64 exec, -1')
        a('L_FIN:')

    def finish(self):
        a, S, o = self.a, self.S, self.o
        if o.get('exfil'):
            a('s_waitcnt vmcnt(0) lgkmcnt(0)')
            self.stamp('fin')
            a(f'''v_readlane_b32 s{T0}, v255, 0
            v_readlane_b32 s{T1}, v255, 1
            v_readlane_b32 s{T2}, v255, 2
            s_sub_u32 s{T2}, s{T2}, s{T1}
            s_max_i32 s{T2}, s{T2}, 0
            s_min_u32 s{T2}, s{T2}, 10000
            s_mul_i32 s{T2}, s{T2}, 10
            s_add_u32 s{T2}, s{T2}, 6000
            L_XPAD:
            s_memrealtime {sr(sTM, 2)}
            s_waitcnt lgkmcnt(0)
            s_sub_u32 s{T1}, s{sTM}, s{T0}
            s_cmp_lt_u32 s{T1}, s{T2}
            s_cbranch_scc1 L_XPAD''')
        if self.o.get('dbg2'):
            S(T1, '(wg*8 + w)*32768 + 0x4000000'); self.vaa(vT, [(0, 6, 4)])
            for k, r in enumerate(list(range(72, 104)) + list(range(120, 136)) + list(range(176, 184))):
                if k % 16 == 0 and k: S(T1, 'T1 + 4096')
                self.bs(r, 1, vT, rWS, T1, (k % 16) * 256, '', 'dbg')
                if k % 16 == 15: self.vm.wait('dbg')
        if self.prof:
            a('s_waitcnt vmcnt(0) lgkmcnt(0)')
            self.stamp('end')
            a(f's_memrealtime {sr(sTM, 2)}')
            a('s_waitcnt lgkmcnt(0)')
            a(f'v_writelane_b32 v255, s{sTM}, 61')
            S(T0, '(wg*8 + w)*256 + STAMPS')
            a(f'v_writelane_b32 v255, s{sSPIN}, 62')
            a(f'v_lshlrev_b32 v{vT+1}, 2, v{vL}')
            a(f'buffer_store_dword v255, v{vT+1}, {sr(rWS, 4)}, s{T0} offen')
            S(T0, 'T0 + 0x100000')
            a(f'buffer_store_dword v254, v{vT+1}, {sr(rWS, 4)}, s{T0} offen')
        a('L_END:')
        a('s_endpgm')

    def pads(self):
        import subprocess, re
        a = self.a
        src = '.amdgcn_target "amdgcn-amd-amdhsa--gfx950"\n.text\n' + a.text().replace('CODE_KB', '20480')
        out = subprocess.run(['llvm-mc', '-triple=amdgcn-amd-amdhsa', '-mcpu=gfx950', '-show-encoding'], input=src, capture_output=True, text=True, check=True).stdout
        sizes = [len(m.split(',')) for m in re.findall(r'; encoding: \[([^\]]*)\]', out)]
        tour = next(i for i, x in enumerate(a.items) if x == ('raw', ';TOUR'))
        NT = 16
        addr = self.o['kofs']; full = True; k = 0; items = []; pads = []; page = 0
        for i, (kind, v) in enumerate(a.items):
            isins = kind == 'ins' or (kind == 'raw' and v.startswith('    s_'))
            if i == tour: items.append((kind, v)); addr += 4 * 48; continue
            if isins:
                if addr // 4096 > page and full and i > tour:
                    page = addr // 4096; pads.append(page)
                    items.append(('raw', f'L_PAD{page}:\n    s_cbranch_execz L_RET{page}')); addr += 4
                elif i < tour: page = addr // 4096
                addr += sizes[k]; k += 1
                if kind == 'ins' and ('s', 'exec_lo') in v.dst + [('s', 'exec_lo') if ('s', 'exec_hi') in v.dst else None]:
                    full = v.text.replace(' ', '') in ('s_mov_b64exec,-1', 's_mov_b32exec_hi,-1')
            items.append((kind, v))
        assert k == len(sizes), (k, len(sizes))
        t = ['s_mov_b64 exec, 0']
        chains = [pads[c::4] for c in range(4)]
        for c in range(4): t += [f's_cmp_eq_u32 s{sWAVE}, {4 + c}', f's_cbranch_scc1 L_PAD{chains[c][0]}']
        t.append('s_branch L_TEND')
        n = len(t)
        for ch in chains:
            for p, q in zip(ch, ch[1:] + [None]):
                t += [f'L_RET{p}:', f's_branch ' + (f'L_PAD{q}' if q else 'L_TEND')]; n += 1
        assert n <= 47
        t += ['s_nop 0'] * (47 - n) + ['L_TEND:', 's_mov_b64 exec, -1']
        j = items.index(('raw', ';TOUR'))
        items[j] = ('raw', '\n'.join(x if x.endswith(':') else '    ' + x for x in t))
        a.items = items

    def text(self):
        a = self.a
        npad = a.fix_hazards()
        errs = a.check_waits([NAME])
        for e in errs[:10]: print('WAITERR', e, file=sys.stderr)
        assert not errs
        if self.o['tour']: self.pads()
        hdr = open(os.path.join(os.path.dirname(os.path.abspath(__file__)), 'header.txt')).read()
        s = hdr + '; @launch grid=(256,1,1) block=(512,1,1) lds=163840\n'
        s += '.amdgcn_target "amdgcn-amd-amdhsa--gfx950"\n.text\n'
        s += f'.globl {NAME}\n.p2align {12 if self.o["al12"] else 8}\n.type {NAME},@function\n'
        body = a.text()
        import subprocess, tempfile
        with tempfile.TemporaryDirectory() as td:
            open(td + '/t.s', 'w').write('.amdgcn_target "amdgcn-amd-amdhsa--gfx950"\n.text\n' + body.replace('CODE_KB', '20480'))
            subprocess.run(['clang', '-x', 'assembler', '-target', 'amdgcn-amd-amdhsa', '-mcpu=gfx950', '-c', td + '/t.s', '-o', td + '/t.o'], check=True)
            subprocess.run(['llvm-objcopy', '-O', 'binary', '-j', '.text', td + '/t.o', td + '/t.bin'], check=True)
            size = os.path.getsize(td + '/t.bin')
        print('; code bytes', size, file=sys.stderr)
        s += body.replace('CODE_KB', str((size // 1024 + 1) * 1024))
        s += '.p2align 10\n.fill 768, 4, 0xbf800000\n'
        s += '.section .rodata,"a"\n' + kernel_desc(NAME, 256, 102)
        print(f'; nops {npad}, instrs {sum(1 for k, _ in a.items if k == "ins")}', file=sys.stderr)
        return s


if __name__ == '__main__':
    import argparse, json
    ap = argparse.ArgumentParser()
    ap.add_argument('-o', default='/dev/stdout')
    ap.add_argument('--prof', action='store_true')
    ap.add_argument('--opts', default='{}')
    args = ap.parse_args()
    g = Gen(args.prof, json.loads(args.opts)).build()
    t = g.text()
    open(args.o, 'w').write(t)
    if args.prof: open(args.o + '.stamps', 'w').write(json.dumps(g.stnames))
```

```python
import sys, os
sys.path.insert(0, os.path.dirname(os.path.abspath(__file__)))
from asm import *

NAME = 'adaLN_cond__linear_kernel_hedgehog__moe_arch_mod__prompt_kernel'

NONCE = 0x0
MODP2 = 0x020000
SINB = 0x040000
AINB = 0x080000
INB = 0x100000
HF = 0x400000
OF = 0x800000
ST = 0xC00000
XS = 0xD00000
UP = 0xD80000
HGR = 0x1400000
ZP = 0x1480000
GGR = 0x1500000
KVP = 0x1800000
KIN = 0x1C00000
STAMPS = 0x1600000
WS_BYTES = 268435456

REG = 49152
MISC = 147456
L_A1 = MISC
L_ST = MISC + 6144
L_MP = MISC + 8192
L_WPHI = MISC + 12288
L_KH = 0
L_QH = MISC + 4096
L_KVF = MISC
L_ZF = MISC + 8192
L_M2 = MISC + 9984
L_MD = MISC + 12288
L_K1 = MISC + 8704
L_K2 = MISC + 8832
L_ACT = MISC + 9216
L_GB = MISC + 9728
L_HV = 32768
L_PHK = 0
L_TR = 98304
L_GU = 0
L_DN = 65536
UR = 393216

SPIN_LIMIT = 200000

sWAVE, sTAG, sSPIN, sMASK, sL2E = 3, 4, 5, 6, 7
sX, sJ, sR1, sHP, sCB = 8, 9, 10, 11, 12
T0, T1, T2, T3, T4, T5, T6, T7 = 13, 14, 15, 16, 17, 18, 19, 20
sRT = 21
sCMP = 22
sPL = 24
rWS, rX, rW, rWO, rWM, rWG, rWU, rWD, rOUT = 32, 36, 40, 44, 48, 52, 56, 60, 64
KA = 68
pWPHI, pWR, pC = KA + 4, KA + 10, KA + 18
sK1, sK2, sROW0, sROW1, sFS, sKQ, sKH, sRB = 68, 69, 70, 71, 74, 75, 76, 77
sFG, sFD, sU, sW1K, sU0, sWB = 80, 81, 82, 83, 84, 85
sAB, sM2, sWO, sY0 = 88, 89, 90, 91
sINB, sRow, sY1, sY2 = 92, 93, 94, 95
sCM = 84
sC2 = 88
XT = (96, 97, 98, 99)
sTM = 100
ENV = dict(wg=2, w=sWAVE, x=sX, j=sJ, r1=sR1, hp=sHP, cb=sCB, rt=sRT, row=sRow, kh=sKH, rb=sRB, fs=sFS, kq=sKQ,
           w1k=sW1K, u=sU, fg=sFG, fd=sFD, u0=sU0, wb=sWB, ab=sAB, m2=sM2, wo=sWO, y0=sY0, y1=sY1, y2=sY2,
           k1=sK1, k2=sK2, row0=sROW0, row1=sROW1,
           T0=T0, T1=T1, T2=T2, T3=T3, T4=T4, T5=T5, T6=T6, T7=T7)

vL, vL16, vWd, vT = 1, 2, 3, 4
XR = 12
vB = 20
vS0, vS1 = 26, 27
RING = 28
AK, AV, AQ = 56, 88, 120
AR = 152
SP = 248


class Stream:
    def __init__(self, g): self.g, self.q, self.wake = g, [], 0
    def add(self, fn, v=0, l=0): self.q.append((v, l, fn))
    def sleep(self, k): self.q.append(('sleep', k, None))
    def until(self, n): self.q.append(('until', n, None))
    def cap(self, fn):
        a = self.g.a
        keep = a.items; a.items = []
        fn()
        body = a.items; a.items = keep
        run = []
        for it in body:
            i = it[1]
            assert it[0] == 'ins' and i.cls in ('valu', 'salu', 'mfma'), it
            run.append(it)
            if i.cls == 'salu': continue
            c = 8 if (i.cls == 'mfma' or i.is_trans or 'permlane' in i.mn) else 6 if i.mn.startswith(('v_fma', 'v_max3', 'v_min3', 'v_lshl_', 'v_bfe')) else 4.75 if i.mn.startswith('v_cvt') else 4
            self.q.append((c + (len(run) - 1), 0, (lambda r=run: a.items.extend(r)))); run = []
        if run: self.q.append((len(run), 0, (lambda r=run: a.items.extend(r))))
    def mark(self, name): self.q.append((0, 0, lambda: (self.g.marks.add(name), self.g.markn.append((name, self.g.cur[0])))))
    def pull(self, bud, full):
        n = self.g.cur[0]
        while self.q and n >= self.wake:
            v, l, fn = self.q[0]
            if v == 'sleep': self.wake = n + l; self.q.pop(0); continue
            if v == 'until': self.wake = max(n, l); self.q.pop(0); continue
            if l > bud[1]: return
            if v > bud[0] and bud[0] < full:
                bud[0] = -1; return
            self.q.pop(0); fn(); bud[0] -= v; bud[1] -= l


DEFAULTS = dict(wburst=(2, 1, 3, 0, 6, 0), xtat=0, tsin=0, tz=0, outat=2, gbar=1, fbar=0, xorw=0, LOOK=6, A00=6, A0=6, Apos=(5, 5, 5, 5, 5, 7, 7, 7, 6, 6),
                wsched={5: 'k10 v10', 6: 'k11 v11', 7: 'k12 v12', 8: 'k13 v13', 9: 'k14', 10: 'k15', 11: 'v14 v15', 12: 'q10 q11', 13: 'q12 q13', 14: 'q14 q15'},
                bA=271, bH=295, kbud=10, vbud=5, wcost=5, kdel=1, hh=0.25, hq=1.0, fA=4, woA=6, hgap=(20, 14), fpre=8, m2c=3, m2k3='(j & 1)*2 + 1', m2g=5, m2e=7, m2nb=1, m2db=2, apos=0, hprio=3, qmid=8, qsplit=16, wowin=(2, 4, 4), AD2=8, LOOK2=7, g2r='(j & 1)*4', Hdir=0, Gdir=0, C2dir=0, poisat=3, earlyD=1, ocut=(0, 0, 3), pairw2=4, worot=1, fwin=(0, 0, 0, 2, 2, 4, 0), prio=2, tour=1, al12=1, kofs=0x300)


class Gen:
    def __init__(self, prof=False, opts=None):
        self.a = Asm()
        self.vm = Counter(self.a, 'vmcnt', 63)
        self.lg = Counter(self.a, 'lgkmcnt', 15)
        self.marks = set(); self.markn = []
        self.vL = vL
        self.prof = prof
        self.nopk = False
        self.nst = 0
        self.stnames = []
        self.S = SExpr(self.a, ENV, {k: v for k, v in globals().items() if isinstance(v, int) and k.isupper() and k not in ENV}, XT)
        self.o = dict(DEFAULTS)
        if opts: self.o.update(opts)

    def bl(self, dst, n, voff, srd, soff, imm=0, mods='', tag=None):
        op = {1: 'dword', 2: 'dwordx2', 4: 'dwordx4'}[n]
        so = soff if isinstance(soff, str) else (sr(soff))
        self.a(f'buffer_load_{op} {vr(dst, n)}, v{voff}, {sr(srd, 4)}, {so} offen' + (f' offset:{imm}' if imm else '') + (' ' + mods if mods else ''))
        self.vm.issue(tag)
    def bs(self, src, n, voff, srd, soff, imm=0, mods='', tag=None, count=True):
        op = {1: 'dword', 2: 'dwordx2', 4: 'dwordx4'}[n]
        so = soff if isinstance(soff, str) else (sr(soff))
        self.a(f'buffer_store_{op} {vr(src, n)}, v{voff}, {sr(srd, 4)}, {so} offen' + (f' offset:{imm}' if imm else '') + (' ' + mods if mods else ''))
        if count: self.vm.issue(tag)
    def dma(self, voff, srd, soff, imm=0, mods='', tag=None):
        self.a(f'buffer_load_dwordx4 v{voff}, {sr(srd, 4)}, {sr(soff)} offen' + (f' offset:{imm}' if imm else '') + (' ' + mods if mods else '') + ' lds')
        self.vm.issue(tag)
    def dr(self, op, dst, n, addr, off=0, tag=None):
        assert 0 <= off < 65536, off
        self.a(f'{op} {vr(dst, n)}, v{addr}' + (f' offset:{off}' if off else ''))
        self.lg.issue(tag)
    def tr(self, dst, addr, off, tag=None): self.dr('ds_read_b64_tr_b16', dst, 2, addr, off, tag)
    def r128(self, dst, addr, off=0, tag=None): self.dr('ds_read_b128', dst, 4, addr, off, tag)
    def dw(self, op, addr, src, n, off=0, tag=None):
        assert 0 <= off < 65536, off
        self.a(f'{op} v{addr}, {vr(src, n)}' + (f' offset:{off}' if off else ''))
        self.lg.issue(tag)
    def barrier(self):
        self.lg.wait_all()
        self.a('s_barrier')
    def stamp(self, name):
        ex = self.o.get('exfil')
        if ex and name in ex[:2]:
            self.a(f's_memrealtime {sr(sTM, 2)}')
            self.lg.wait_all()
            self.a(f'v_writelane_b32 v255, s{sTM}, {1 + ex.index(name)}')
        if not self.prof: return
        only = self.o.get('only')
        if only and name not in only and name != 'end': return
        self.a(f's_memtime {sr(sTM, 2)}')
        self.a(f's_memrealtime s[0:1]')
        self.lg.wait_all()
        self.a(f'v_writelane_b32 v255, s{sTM}, {self.nst}')
        self.a(f'v_writelane_b32 v254, s0, {self.nst}')
        self.stnames.append(name)
        self.nst += 1
        assert self.nst <= 60
    def unpack(self, lo, hi, src):
        self.a(f'v_lshlrev_b32 v{lo}, 16, v{src}')
        self.a(f'v_and_b32 v{hi}, s{sMASK}, v{src}')
    def round1(self, r):
        self.a(f'v_cvt_pk_bf16_f32 v{r}, 0, v{r}')
    def round2(self, r0, r1):
        self.round1(r0); self.round1(r1)
    def round_list(self, regs):
        for r in regs: self.round1(r)
    def pk(self, op, d, s0, s1, s2=None, bc=(), neg=()):
        srcs = [s0, s1] + ([s2] if s2 is not None else [])
        if self.nopk:
            for h in range(2):
                t = []
                for k, r in enumerate(srcs):
                    kind, n = r if isinstance(r, tuple) else ('v', r)
                    t.append(('-' if k in neg else '') + f'{kind}{n if k in bc else n + h}')
                e64 = '' if op == 'fma' else ('_e64' if (neg or t[1][0] == 's') else '')
                self.a(f'v_{op}_f32{e64} v{d+h}, ' + ', '.join(t))
            return
        txt, sel, selhi = [], [], []
        for k, r in enumerate(srcs):
            kind, n = r if isinstance(r, tuple) else ('v', r)
            if k in bc:
                txt.append(f'{kind}[{n & ~1}:{(n & ~1) + 1}]'); sel.append(n & 1); selhi.append(n & 1)
            else:
                assert n % 2 == 0
                txt.append(f'{kind}[{n}:{n+1}]'); sel.append(0); selhi.append(1)
        assert d % 2 == 0
        m = ''
        if any(sel): m += ' op_sel:[' + ','.join(map(str, sel)) + ']'
        if not all(selhi): m += ' op_sel_hi:[' + ','.join(map(str, selhi)) + ']'
        if neg:
            ng = ','.join('1' if k in neg else '0' for k in range(len(srcs)))
            m += f' neg_lo:[{ng}] neg_hi:[{ng}]'
        self.a(f'v_pk_{op}_f32 v[{d}:{d+1}], ' + ', '.join(txt) + m)
    def dpp(self, op, d, s0, s1, ctl):
        self.a(f'{op}_dpp v{d}, v{s0}, v{s1} {ctl} row_mask:0xf bank_mask:0xf')
    def allreduce(self, v, t, op='v_add_f32', lo=True, b3=True):
        if lo:
            self.dpp(op, v, v, v, 'quad_perm:[1,0,3,2]')
            self.dpp(op, v, v, v, 'quad_perm:[2,3,0,1]')
            self.dpp(op, v, v, v, 'row_half_mirror')
        self.dpp(op, v, v, v, 'row_ror:8')
        self.a(f'v_mov_b32 v{t}, v{v}')
        self.a(f'v_permlane16_swap_b32 v{v}, v{t}')
        self.a(f'{op} v{v}, v{v}, v{t}')
        self.a(f'v_mov_b32 v{t}, v{v}')
        self.a(f'v_permlane32_swap_b32 v{v}, v{t}')
        self.a(f'{op} v{v}, v{v}, v{t}')
    def poll(self, loads, tagregs, tmp=None, post=None):
        a = self.a
        L, D = a.label('POLL'), a.label('PDONE')
        a(f'{L}:')
        loads()
        self.vm.wait_all()
        if post: post()
        if len(tagregs) == 1:
            a(f'v_cmp_ne_u32 vcc, s{sTAG}, v{tagregs[0]}')
        else:
            a(f'v_bitop3_b32 v{tmp}, v{tagregs[0]}, v{tagregs[1]}, s{sTAG} bitop3:0x7e')
            for t in tagregs[2:]: a(f'v_bitop3_b32 v{tmp}, v{tmp}, v{t}, s{sTAG} bitop3:0xf6')
            a(f'v_cmp_ne_u32 vcc, 0, v{tmp}')
        a(f's_cbranch_vccz {D}')
        a(f's_add_u32 s{sSPIN}, s{sSPIN}, 1')
        a(f's_cmp_lt_u32 s{sSPIN}, {SPIN_LIMIT}')
        a(f's_cbranch_scc1 {L}')
        a(f'{D}:')
    def weave(self, fn, extras):
        a = self.a
        keep = a.items; a.items = []
        fn()
        body = a.items; a.items = keep
        extras = list(extras); n = len(extras)
        for i, it in enumerate(body):
            while extras and (n - len(extras)) * len(body) <= i * n: extras.pop(0)()
            a.items.append(it)
        for e in extras: e()
    def tagcheck(self, tagregs, tmp):
        a = self.a
        if len(tagregs) == 1:
            a(f'v_cmp_ne_u32 vcc, s{sTAG}, v{tagregs[0]}')
        else:
            a(f'v_bitop3_b32 v{tmp}, v{tagregs[0]}, v{tagregs[1]}, s{sTAG} bitop3:0x7e')
            for t in tagregs[2:]: a(f'v_bitop3_b32 v{tmp}, v{tmp}, v{t}, s{sTAG} bitop3:0xf6')
            a(f'v_cmp_ne_u32 vcc, 0, v{tmp}')
    def try_load(self, loads, tagregs, tmp=None, between=None, pre=None):
        a = self.a
        n0 = len(self.vm.q)
        loads()
        self.vm.q[-1] = tg = ('try', a.label('T'))
        if between: between()
        self.vm.wait(tg)
        OK = a.label('TOK')
        self.tagcheck(tagregs, tmp)
        a(f's_cbranch_vccz {OK}')
        q, l = list(self.vm.q), list(self.lg.q)
        if pre: pre()
        self.poll(loads, tagregs, tmp)
        self.vm.q, self.lg.q = q, l
        a(f'{OK}:')
    def spoll(self, loads, checks, work=None):
        a = self.a
        L, C, D = a.label('SPOLL'), a.label('SCHK'), a.label('SDONE')
        def issue():
            for d, n, so, imm in loads:
                op = {1: 'dword', 2: 'dwordx2', 4: 'dwordx4', 8: 'dwordx8'}[n]
                a(f's_load_{op} {sr(sPL + d, n)}, {sr(rWS, 2)}, s{so} offset:{imm} glc')
        if work:
            issue(); work()
            a(f's_branch {C}')
        a(f'{L}:')
        issue()
        a(f'{C}:')
        a(f's_add_u32 s{sSPIN}, s{sSPIN}, 1')
        a(f's_cmp_ge_u32 s{sSPIN}, {SPIN_LIMIT}')
        self.lg.wait_all()
        a(f's_cbranch_scc1 {D}')
        for k in checks:
            a(f's_cmp_lg_u32 s{sPL + k}, s{sTAG}')
            a(f's_cbranch_scc1 {L}')
        a(f'{D}:')
    def inbox(self, box, n, checks=None, work=None):
        self.spoll([(0, n, sINB, box * 512)], range(n) if checks is None else checks, work)
    def va(self, dst, terms, sreg=None, const=0, tmp=None):
        a = self.a; vL = self.vL
        first = True
        for sh, bits, mult in terms:
            full = sh + bits >= 6
            src = vL
            t = dst if first else tmp
            if sh == 0 and full: pass
            elif full: a(f'v_lshrrev_b32 v{t}, {sh}, v{vL}'); src = t
            elif sh == 0: a(f'v_and_b32 v{t}, {(1 << bits) - 1}, v{vL}'); src = t
            else: a(f'v_bfe_u32 v{t}, v{vL}, {sh}, {bits}'); src = t
            p2 = mult & (mult - 1) == 0
            k = mult.bit_length() - 1
            if first:
                if p2 and sreg is not None: a(f'v_lshl_add_u32 v{dst}, v{src}, {k}, s{sreg}'); sreg = None
                elif p2 and k: a(f'v_lshlrev_b32 v{dst}, {k}, v{src}')
                elif p2:
                    if src != dst: a(f'v_mov_b32 v{dst}, v{src}')
                else: a(f'v_mul_u32_u24 v{dst}, {mult}, v{src}')
            else:
                assert p2
                a(f'v_lshl_add_u32 v{dst}, v{src}, {k}, v{dst}')
            first = False
        if sreg is not None: a(f'v_add_u32 v{dst}, s{sreg}, v{dst}')
        if const: a(f'v_add_u32 v{dst}, {const}, v{dst}')
    def push(self, vaddr, soff, nl, vtmp, lab, wave=0):
        a = self.a
        a(f's_cmp_lg_u32 s{sWAVE}, {wave}')
        a(f's_cbranch_scc1 {lab}')
        a(f'v_mov_b32 v{vtmp}, s{sTAG}')
        a(f's_mov_b32 exec_hi, 0')
        if nl < 32: a(f's_mov_b32 exec_lo, {(1 << nl) - 1}')
        self.bs(vtmp, 1, vaddr, rWS, soff, 0, 'sc1', count=False)
        a('s_mov_b64 exec, -1')
        a(f'{lab}:')
    def silu(self, v, t):
        a = self.a
        a(f'v_mul_f32 v{t}, s{sL2E}, v{v}')
        a(f'v_exp_f32 v{t}, -v{t}')
        a(f'v_add_f32 v{t}, 1.0, v{t}')
        a(f'v_rcp_f32 v{t}, v{t}')
        a(f'v_mul_f32 v{v}, v{v}, v{t}')
        self.round1(v)
    def gemv_ops(self, wregs, cregs, acc, t0, t1, packed):
        ops = []
        assert t0 % 2 == 0 and t1 == t0 + 1
        for i, (w, c) in enumerate(zip(wregs, cregs)):
            cp = f'v[{c & ~1}:{(c & ~1) + 1}]'
            for d in range(4):
                tt = t0 + 2 * (d & 1)
                ops.append(f'v_lshlrev_b32 v{tt}, 16, v{w+d}')
                ops.append(f'v_and_b32 v{tt+1}, s{sMASK}, v{w+d}')
                ac = f'v[{acc+2*d}:{acc+2*d+1}]'
                if not packed:
                    for h in range(2): ops.append(f'v_mul_f32 v{acc+2*d+h}, v{tt+h}, v{c}' if i == 0 else f'v_fmac_f32 v{acc+2*d+h}, v{tt+h}, v{c}')
                elif i == 0: ops.append(f'v_pk_mul_f32 {ac}, v[{tt}:{tt+1}], {cp} op_sel:[0,{c & 1}] op_sel_hi:[1,{c & 1}]')
                else: ops.append(f'v_pk_fma_f32 {ac}, v[{tt}:{tt+1}], {cp}, {ac} op_sel:[0,{c & 1},0] op_sel_hi:[1,{c & 1},1]')
        for i in range(4): ops.append(f'v_permlane32_swap_b32 v{acc+i}, v{acc+4+i}')
        for i in range(4): ops.append(f'v_add_f32 v{acc+i}, v{acc+i}, v{acc+4+i}')
        for i in range(2): ops.append(f'v_permlane16_swap_b32 v{acc+i}, v{acc+2+i}')
        for i in range(2): ops.append(f'v_add_f32 v{acc+i}, v{acc+i}, v{acc+2+i}')
        for i in range(2): ops.append(f'v_add_f32_dpp v{acc+i}, v{acc+i}, v{acc+i} row_ror:8 row_mask:0xf bank_mask:0xf')
        ops.append(f'v_mov_b32_dpp v{acc}, v{acc+1} quad_perm:[0,1,2,3] row_mask:0xf bank_mask:0xc')
        return ops
    def sum8(self, b):
        self.pk('add', b, b, b + 2); self.pk('add', b + 4, b + 4, b + 6); self.pk('add', b, b, b + 4)
        self.a(f'v_add_f32 v{b}, v{b}, v{b+1}')
    def softmax_pm(self, p, e, out, t, mid=None, part=0, split=0, stage=None):
        a = self.a
        mx, mn, u0, u1, s0, s1 = t, t + 1, t + 2, t + 3, t + 4, t + 6
        if part != 2:
            self.round_list([p + i for i in range(16)])
            a(f'v_max3_f32 v{mx}, v{p}, v{p+1}, v{p+2}')
            a(f'v_min3_f32 v{mn}, v{p}, v{p+1}, v{p+2}')
            for i in range(3, 15, 2):
                a(f'v_max3_f32 v{mx}, v{mx}, v{p+i}, v{p+i+1}')
                a(f'v_min3_f32 v{mn}, v{mn}, v{p+i}, v{p+i+1}')
            a(f'v_max_f32 v{u0}, v{mx}, v{p+15}')
            a(f'v_min_f32 v{u1}, v{mn}, v{p+15}')
            a(f'v_max_f32 v{mx}, v{mx}, v{p+15}')
            a(f'v_min_f32 v{mn}, v{mn}, v{p+15}')
            a(f'v_permlane32_swap_b32 v{mx}, v{u0}')
            a(f'v_permlane32_swap_b32 v{mn}, v{u1}')
            a(f'v_max_f32 v{mx}, v{mx}, v{u0}')
            a(f'v_min_f32 v{mn}, v{mn}, v{u1}')
            self.pk('mul', mx, mx, ('s', sL2E), bc=(1,))
            for i in range(0, 16, 2):
                self.pk('fma', e + i, p + i, ('s', sL2E), mx, bc=(1, 2), neg=(2,))
                self.pk('fma', p + i, p + i, ('s', sL2E), mn, bc=(1, 2), neg=(0,))
        for i in range(split if part == 2 else 0, 16):
            if mid and i == mid[0]: mid[1]()
            if part == 1 and i == split: return
            a(f'v_exp_f32 v{e+i}, v{e+i}')
            a(f'v_exp_f32 v{p+i}, v{p+i}')
        self.pk('add', s0, e, e + 2); self.pk('add', s1, p, p + 2)
        for i in range(4, 16, 2):
            self.pk('add', s0, s0, e + i); self.pk('add', s1, s1, p + i)
        a(f'v_add_f32 v{u0}, v{s0}, v{s0+1}')
        a(f'v_add_f32 v{u1}, v{s1}, v{s1+1}')
        a(f'v_add_f32 v{mx}, v{s0}, v{s0+1}')
        a(f'v_add_f32 v{mn}, v{s1}, v{s1+1}')
        a(f'v_permlane32_swap_b32 v{mx}, v{u0}')
        a(f'v_permlane32_swap_b32 v{mn}, v{u1}')
        self.pk('add', mx, mx, u0)
        a(f'v_rcp_f32 v{mx}, v{mx}')
        a(f'v_rcp_f32 v{mn}, v{mn}')
        for i in range(0, 16, 2):
            self.pk('mul', e + i, e + i, mx, bc=(1,))
            self.pk('mul', p + i, p + i, mn, bc=(1,))
        for i in range(8): a(f'v_cvt_pk_bf16_f32 v{out+i}, v{e+2*i}, v{e+2*i+1}')
        for i in range(8): a(f'v_cvt_pk_bf16_f32 v{out+8+i}, v{p+2*i}, v{p+2*i+1}')
    def ln_stats(self, xp, t, m_out, sd_out, fill=()):
        a = self.a
        fill = list(fill)
        def pad(n):
            for _ in range(n):
                if fill: a(fill.pop(0))
        s, u = t, t + 4
        a(f'v_mov_b32 v{u}, 0x3f803f80')
        for i in range(8):
            k = 2 * (i & 1)
            a(f'v_dot2_f32_bf16 v{s+k}, v{xp+i}, v{u}, ' + ('0' if i < 2 else f'v{s+k}'))
            a(f'v_dot2_f32_bf16 v{s+k+1}, v{xp+i}, v{xp+i}, ' + ('0' if i < 2 else f'v{s+k+1}'))
        pad(3)
        self.pk('add', s, s, s + 2)
        for ctl in ('quad_perm:[1,0,3,2]', 'quad_perm:[2,3,0,1]', 'row_half_mirror', 'row_ror:8'):
            pad(2 if ctl.endswith('3,2]') else 1)
            self.dpp('v_add_f32', s, s, s, ctl); self.dpp('v_add_f32', s + 1, s + 1, s + 1, ctl)
        pad(2)
        a(f'v_permlane16_swap_b32 v{s}, v{s+1}')
        a(f'v_add_f32 v{u}, v{s}, v{s+1}')
        a(f'v_add_f32 v{s}, v{s}, v{s+1}')
        pad(2)
        a(f'v_permlane32_swap_b32 v{s}, v{u}')
        a(f'v_add_f32 v{s}, v{s}, v{u}')
        a(f'v_mul_f32 v{u}, 0x3a800000, v{s}')
        a(f'v_mul_f32 v{s}, 0x3a800000, v{s}')
        pad(2)
        a(f'v_permlane16_swap_b32 v{s}, v{u}')
        a(f'v_fma_f32 v{sd_out}, -v{s}, v{s}, v{u}')
        a(f'v_cvt_pk_bf16_f32 v{m_out}, 0, v{s}')
        a(f'v_max_f32 v{sd_out}, 0, v{sd_out}')
        self.round1(sd_out)
        a(f'v_add_f32 v{sd_out}, 0x3727c5ac, v{sd_out}')
        self.round1(sd_out)
        a(f'v_sqrt_f32 v{sd_out}, v{sd_out}')
        pad(99)
        self.round1(sd_out)

    def build(self):
        self.front()
        self.gemm1()
        self.middle()
        self.gemm2()
        self.tail()
        self.finish()
        return self

    def vaa(self, dst, terms, sreg=None, const=0): self.va(dst, terms, sreg, const, vT + 5)

    def front(self):
        a, vm, lg, o, S, va = self.a, self.vm, self.lg, self.o, self.S, self.vaa
        E2 = range(0, 16, 2)
        a(f'{NAME}:')
        a(f's_load_dwordx16 {sr(KA, 16)}, s[0:1], 0')
        a(f's_load_dwordx8 {sr(KA + 16, 8)}, s[0:1], 64')
        a(f's_load_dwordx2 {sr(rWS, 2)}, s[0:1], 104')
        a('s_cmp_ge_u32 s2, 256')
        a('s_cbranch_scc1 L_END')
        if self.prof:
            a(f's_memrealtime {sr(sCMP, 2)}')
            a(f's_memtime {sr(sTM, 2)}')
            a('v_mov_b32 v255, 0')
            a('v_mov_b32 v254, 0')
            self.stnames.append('start'); self.nst = 1
        if o.get('exfil'): a(f's_memrealtime {sr(sTM, 2)}')
        a(f"""v_lshrrev_b32 v{vT}, 6, v0
        v_and_b32 v{vL}, 63, v0
        s_nop 0
        v_readfirstlane_b32 s{sWAVE}, v{vT}
        v_lshlrev_b32 v{vL16}, 4, v{vL}""")
        for srd, size in ((rX, 4194304), (rWM, 12582912), (rWS, WS_BYTES), (rW, 6291456), (rWO, 2097152), (rWG, 7340032), (rWU, 7340032), (rWD, 7340032), (rOUT, 4194304)):
            a(f's_mov_b32 s{srd+2}, {size}')
            a(f's_mov_b32 s{srd+3}, 0x20000')
        a(f"""s_mov_b32 s{sSPIN}, 0
        s_mov_b32 s{sMASK}, 0xffff0000
        s_mov_b32 s{sL2E}, 0x3fb8aa3b""")
        S(sX, 'wg & 7'); S(sJ, 'wg >> 3')
        S(sRow, '(x*32 + j)*8 + w')
        S(sR1, '(x & 4)*2 + (j >> 2)'); S(sHP, '(x & 3)*4 + ((j & 3) ^ q)', q=o.get('hpx', 2))
        S(sCB, '(x & 1)*8 + (j & 7)')
        S(sRT, '(x >> 1)*4 + (j >> 3)')
        S(sINB, '(wg*64 + w)*64 + INB')
        xs_raw, wm, cv, st, acc, xs, mp, hp = AR, AR + 8, AR + 16, AR + 20, AR + 24, AR + 32, AR + 48, AR + 64
        vWM, vCo, vL8, vL32S, vGA, vXT = SP, SP + 1, SP + 2, SP + 3, SP + 4, vT + 6
        self.vWM, self.vL8, self.vL32S, self.vGA = vWM, vL8, vL32S, vGA
        S(T3, 'row*2048')
        S(T2, '(x*8 + w)*32')
        S(T0, 'T2*6144 + (j ^ 1)*128'); S(T1, 'T0 + 8*12288')
        S(T5, '(rt*8 + w)*32768 + cb*128')
        S(T4, '(((x >> 1)*16 + cb)*16 + w)*512 + AINB')
        va(vWM, [(3, 3, 12288), (0, 3, 16)])
        va(vCo, [(3, 3, 2)], T2)
        va(vXT, [(0, 4, 2048), (4, 2, 16)])
        a('s_waitcnt lgkmcnt(0)')
        if self.prof:
            a(f'v_writelane_b32 v255, s{sTM}, 0')
            a(f'v_writelane_b32 v255, s{sCMP}, 63')
            a(f'v_writelane_b32 v254, s{sCMP}, 0')
        if o.get('exfil'):
            for k in range(3): a(f'v_writelane_b32 v255, s{sTM}, {k}')
        self.stamp('karg')
        a(f's_mov_b64 {sr(rWM, 2)}, {sr(KA + 20, 2)}')
        self.bl(wm, 4, vWM, rWM, T0, 0, 'nt', 'wm')
        self.bl(wm + 4, 4, vWM, rWM, T1, 0, 'nt', 'wm')
        a(f's_load_dword s{sTAG}, {sr(rWS, 2)}, {NONCE}')
        a(f'global_load_ushort v{cv}, v{vCo}, {sr(pC, 2)}'); vm.issue('wm')
        a(f'global_load_ushort v{cv+1}, v{vCo}, {sr(pC, 2)} offset:16'); vm.issue('wm')
        a(f's_mov_b64 {sr(rX, 2)}, {sr(KA, 2)}')
        a(f's_load_dword s{sPL}, {sr(rWS, 2)}, s{sINB} offset:0 glc')
        for q in range(2): a(f's_load_dword s{sPL + 1 + q}, {sr(rWS, 2)}, s{T4} offset:{q * 4096 + 508} glc')
        if o['tsin']:
            S(T6, '(wg*8 + w)*128 + SINB')
            for q in range(2): a(f's_load_dword s{sPL + 3 + q}, {sr(rWS, 2)}, s{T6} offset:{q * 64} glc')
        if o.get('bar0', 1): a('s_barrier')
        self.bl(xs_raw, 4, vL16, rX, T3, 0, '', 'xs')
        self.bl(xs_raw + 4, 4, vL16, rX, T3, 1024, '', 'xs')
        for srd, k in ((rW, 2), (rWO, 6), (rWG, 12), (rWU, 14), (rWD, 16), (rOUT, 22)):
            a(f's_mov_b64 {sr(srd, 2)}, {sr(KA + k, 2)}')
        a(f"""s_getpc_b64 {sr(sCMP, 2)}
        s_and_b32 s{sCMP}, s{sCMP}, 0xfffffc00""")
        S(T6, '(j*8 + w)*128')
        va(vT, [(5, 1, 32768)], T6)
        a(f'v_min_u32 v{vT}, CODE_KB, v{vT}')
        a(f'global_load_dword v{vT+7}, v{vT}, {sr(sCMP, 2)}'); vm.issue()
        S(sKH, 'w >> 2'); S(sRB, 'w & 3'); S(sW1K, 'w*1024')
        S(sFS, 'x*7 + (j >> 2)'); S(sKQ, 'j & 3')
        va(vT + 2, [(4, 1, 64)]); va(vWd, [(0, 3, 16)])
        a(f'v_xor_b32 v{vWd}, v{vWd}, v{vT+2}'); va(vT + 2, [(3, 3, 6144)]); a(f'v_add_u32 v{vWd}, v{vWd}, v{vT+2}')
        S(sU0, o.get('u0', 'j & 12')); S(sWB, 'w*49152 + hp*128')
        wq = self.wq = [(n, t) for n in range(6) for t in 'kvq']
        def w_next(cnt=1):
            for _ in range(cnt):
                n, t = wq.pop(0)
                if t == 'k':
                    if n < 4:
                        S(sY1, '((j >> 4)*q) ^ n', n=n, q=2 * o['xorw'])
                        S(sY0, '((y1 + u0) & 15)*UR + wb'); S(sY1, 'y1*8192 + w1k')
                    else:
                        S(sY0, '((u0 + n) & 15)*UR + wb', n=n); S(sY1, 'w1k + q', q=n * 8192)
                S(sU, 'y0 + q', q=dict(q=0, k=2048, v=4096)[t]); S('m0', 'y1 + q', q='kvq'.index(t) * REG)
                self.dma(vWd, rW, sU, 0, '', ('W', n))
        wb = list(o['wburst'])
        va(vL8, [(0, 6, 8)])
        va(vL32S, [(0, 6, 32)], None, MISC)
        S(T0, 'w*4 + MISC')
        va(vGA, [(4, 2, 64), (0, 3, 256), (3, 1, 32)], T0)
        self.stamp('issued')
        def xt_load():
            self.bl(XR, 4, vXT, rX, T5, 0, '', 'xt')
            self.bl(XR + 4, 4, vXT, rX, T5, 64, '', 'xt')
        if o['xtat'] == 0: xt_load()
        S(T0, '((((w >> 1)*16 + ((j ^ 1) & 15))*2 + (j >> 4))*8 + x)*512 + AINB')
        vm.wait('wm')
        self.stamp('wmok')
        for i in range(2):
            a(f'v_lshlrev_b32 v{cv+i}, 16, v{cv+i}')
            self.silu(cv + i, vT + i)
        for s in self.gemv_ops([wm, wm + 4], [cv, cv + 1], acc, vT, vT + 1, True): a(s)
        a(f"""s_waitcnt lgkmcnt(0)
        s_mul_i32 s{sTAG}, s{sTAG}, 0x9e3779b1
        s_add_u32 s{sTAG}, s{sTAG}, 0x7f4a7c15""")
        self.dw('ds_write_b32', vGA, acc, 1, L_A1 - MISC)
        self.barrier()
        self.r128(acc, vL32S, L_A1 - MISC); self.r128(acc + 4, vL32S, L_A1 - MISC + 16)
        if o['xtat'] == 1: xt_load()
        lg.wait_all()
        self.sum8(acc)
        a(f'v_mov_b32 v{acc+1}, s{sTAG}')
        a(f"""s_bitcmp1_b32 s{sWAVE}, 0
        s_cselect_b32 exec_lo, 0, -1
        s_cselect_b32 exec_hi, -1, 0""")
        self.bs(acc, 2, vL8, rWS, T0, 0, 'sc1')
        a('s_mov_b64 exec, -1')
        self.stamp('A1pub')
        w_next(wb[0])
        vm.wait('xs')
        self.stamp('xsok')
        self.ln_stats(xs_raw, vT, st, st + 1)
        S(T0, 'w*8 + L_ST')
        a(f"""v_lshrrev_b32 v{st}, 16, v{st}
        v_or_b32 v{st}, v{st}, v{st+1}
        v_mov_b32 v{st+1}, s{sTAG}
        v_mov_b32 v{vT}, s{T0}""")
        self.dw('ds_write_b64', vT, st, 2)
        va(vT + 1, [(0, 2, 16)], None, L_ST)
        va(vT, [(0, 2, 16), (2, 1, 1024)])
        S(T0, '((x & 6) + ((x & 1)*2 + (j >> 4))*64 + w*8)*1024 + (j & 15)*64 + SINB')
        self.barrier()
        self.r128(st, vT + 1)
        lg.wait_all()
        a('s_mov_b64 exec, 0xff')
        self.bs(st, 4, vT, rWS, T0, 0, 'sc1')
        a('s_mov_b64 exec, -1')
        self.stamp('A2pub')
        if o['xtat'] == 2: xt_load()
        w_next(wb[1])
        mg = acc
        def pre_work():
            va(vT, [(0, 5, 16), (5, 1, 4096)])
            S(T1, 'w*4 + L_MP'); va(vT + 1, [(0, 6, 64)], T1)
            va(vT + 2, [(0, 2, 32), (5, 1, 128), (4, 1, 256), (2, 2, 512)], None, L_MP)
            S(T1, '(wg*8 + w)*128 + SINB')
            va(vT + 4, [(0, 4, 8)])
        def x_unpack():
            vm.wait('xt')
            for p, q in ((0, 2), (1, 3), (4, 6), (5, 7)): a(f'v_permlane32_swap_b32 v{XR+p}, v{XR+q}')
            for i in range(8): self.unpack(xs + 2 * i, xs + 2 * i + 1, XR + i)
        self.spoll([(q, 1, T4, q * 4096 + 508) for q in range(2)], range(2), work=pre_work)
        self.stamp('apre')
        if o.get('abar', 0): a('s_barrier')
        st_ld = lambda: self.bl(st, 2, vT + 4, rWS, T1, 0, 'sc1', 'st')
        def st_go():
            self.spoll([(q, 1, T1, q * 64 + 60) for q in range(2)], range(2), work=x_unpack)
            st_ld()
            if o['fbar']: a('s_barrier')
            w_next(wb[2])
        self.try_load(lambda: self.bl(mg, 4, vT, rWS, T4, 0, 'sc1'), [mg + 1, mg + 3], vT + 3, st_go)
        self.stamp('modok')
        a(f'ds_write2_b32 v{vT+1}, v{mg}, v{mg+2} offset0:0 offset1:8'); lg.issue()
        self.barrier()
        for i in (2, 3, 0, 1): self.r128(mp + 4 * i, vT + 2, (i >> 1) * 2048 + (i & 1) * 16, i >> 1)
        S(T0, 'hp*4096 + w*512')
        a(f'v_add_u32 v{vT}, s{T0}, v{vL16}')
        S('m0', 'w*512 + L_WPHI')
        a('s_mov_b32 exec_hi, 0')
        a(f'global_load_lds_dwordx4 v{vT}, {sr(pWPHI, 2)}'); vm.issue()
        a('s_mov_b32 exec_hi, -1')
        w_next(wb[3])
        S(T0, '((rt*16 + cb)*4 + (w >> 1))*4096 + (w & 1)*256 + HF')
        va(vT, [(0, 4, 16), (4, 1, 1024), (5, 1, 512)])
        lg.wait(1); self.sum8(mp + 8)
        self.round1(mp + 8)
        lg.wait(0); self.sum8(mp)
        a(f'v_add_f32 v{mp+8}, 1.0, v{mp+8}')
        self.round2(mp + 8, mp)
        vm.wait('st')
        self.tagcheck([st + 1], None)
        a('s_cbranch_vccz L_STOK')
        q0 = list(vm.q)
        self.poll(st_ld, [st + 1])
        vm.q = q0
        a('L_STOK:')
        self.stamp('statok')
        self.unpack(st + 1, st, st)
        a(f'v_rcp_f32 v{st}, v{st}')
        for i in E2: self.pk('add', xs + i, xs + i, st + 1, bc=(1,), neg=(1,))
        self.round_list([xs + i for i in range(16)])
        for i in E2: self.pk('mul', xs + i, xs + i, st, bc=(1,))
        self.round_list([xs + i for i in range(16)])
        for h in range(2):
            rg = range(8 * h, 8 * h + 8)
            for i in rg: self.dpp('v_mul_f32', xs + i, mp + 8, xs + i, f'row_newbcast:{i}')
            self.round_list([xs + i for i in rg])
            for i in rg: self.dpp('v_add_f32', xs + i, mp, xs + i, f'row_newbcast:{i}')
            for i in range(4 * h, 4 * h + 4): a(f'v_cvt_pk_bf16_f32 v{hp+i}, v{xs+2*i}, v{xs+2*i+1}')
            self.bs(hp + 4 * h, 4, vT, rWS, T0, 2048 * h, 'sc1', 'hs')
        self.stamp('hst')
        va(vB, [(2, 2, 128), (3, 1, 64), (4, 1, 32), (0, 2, 8), (5, 1, 512)])
        a(f'v_xor_b32 v{vB+1}, 64, v{vB}')
        for q in (1, 2):
            for h in range(2): a(f'v_add_u32 v{vB+2*q+h}, {q*REG}, v{vB+h}')
        va(vT + 1, [(0, 2, 8 * 4096), (2, 2, 4096)])
        S(T0, '((rt >> 3)*4 + (rt & 7)*32)*4096 + (cb >> 1)*64 + (cb & 1)*4 + INB')
        S(sAB, 'r1*262144 + rb*4096 + HF')
        a(f"""s_cmp_ge_u32 s{sJ}, {0 if o.get('noffn') else 28}
        s_cselect_b32 s{rWG+2}, 0, s{rWG+2}
        s_cselect_b32 s{rWU+2}, 0, s{rWU+2}
        s_cselect_b32 s{rWD+2}, 0, s{rWD+2}""")
        vm.wait('hs')
        a('s_barrier')
        self.push(vT + 1, T0, 16, vT + 2, 'L_PB')
        self.stamp('hpub')
        w_next(wb[4])
        vWo, vFG, vFD = vS0, vS1, SP + 5
        def setup():
            S(sWO, 'w*16384 + cb*128'); S(sY2, '((j & 1)*8 + (j >> 3)*2)*131072' if o['worot'] else '(j & 1)*1048576')
            S(sFG, '(kq*8 + w)*(32*7168) + fs*128'); S(sFD, '(fs*8 + w)*16384 + kq*512')
            S(sM2, '((x & 3)*8 + w)*(32*12288) + (j*2 + (x >> 2))*128 + 4096')
            S(T1, '(w & 1)*64')
            va(vT + 2, [(4, 1, 32)], T1); va(vWo, [(0, 3, 16)])
            a(f'v_xor_b32 v{vWo}, v{vWo}, v{vT+2}'); va(vT + 2, [(3, 3, 2048)]); a(f'v_add_u32 v{vWo}, v{vWo}, v{vT+2}')
            S(T1, '(w & 2)*32'); va(vT + 2, [(4, 1, 32)], T1); va(vFG, [(0, 3, 16)])
            a(f'v_xor_b32 v{vFG}, v{vFG}, v{vT+2}'); va(vT + 2, [(3, 3, 7168)]); a(f'v_add_u32 v{vFG}, v{vFG}, v{vT+2}')
            S(T1, '(w & 1)*128')
            va(vT + 2, [(5, 1, 64)], T1); va(vFD, [(0, 5, 16), (5, 1, 2048)])
            a(f'v_xor_b32 v{vFD}, v{vFD}, v{vT+2}')
            S(T3, 'u0*16384'); a(f'v_add_u32 v{vCo}, s{sAB}, v{vL16}')
            S(T1, 'rb*2048 + L_QH'); a(f'v_add_u32 v0, s{T1}, v{vL16}')
        S(T6, 'wg*4096 + INB'); S(T7, '(w & 3)*128 + T6'); S(T6, 'u0*32 + T6')
        a(f's_cmp_ge_u32 s{sWAVE}, 4\ns_cselect_b32 s{T6}, s{T7}, s{T6}')
        self.spoll([(0, 2, T6, 0), (2, 2, T6, 64)], range(4), lambda: (w_next(wb[5]), setup(), a(';TOUR')))
        assert len(wq) % 3 == 0 and len(wq) <= (6 if o['xorw'] else 12)

    def gemm1(self):
        a, vm, lg, o, S, va = self.a, self.vm, self.lg, self.o, self.S, self.vaa
        LOOK = o['LOOK']; NB = LOOK + 1; assert NB <= 7
        vWo, vFG, vFD, vHo = vS0, vS1, SP + 5, 0
        self.vWo, self.vFG, self.vFD = vWo, vFG, vFD
        m2w, m2c = AV, AV + 24
        FL = self.FL = AK
        cur = self.cur = [0]
        TOK = [(0, 3, 16), (3, 2, 256), (5, 1, 128)]
        def cvt8(d, s_):
            for i in range(8): a(f'v_cvt_pk_bf16_f32 v{d+i}, v{s_+2*i}, v{s_+2*i+1}')
        self.cvt8 = cvt8
        fq = self.fq = [(m, i) for m in range(3) for i in range(4)]
        held = self.held = ([], [])
        def f_src(m, i, far=0):
            q = (i * 8 * 7168 + far * 4 * 32 * 7168, i * 4096 + far * 4 * 16384)[m == 2]
            S(sU, ('fg', 'fd')[m == 2] + ' + q', q=q & 0xffffffff)
            return (vFG, (rWG, rWU)[m]) if m < 2 else (vFD, rWD)
        def f_lds(m, i): return (L_GU + m * 32768 if m < 2 else L_DN) + i * 1024
        def f_ld(g, k, far, count=True):
            m, i = held[g][k]
            v, r = f_src(m, i, far * (1 - 2 * g))
            a(f'buffer_load_dwordx4 {vr(FL + 8*k + 4*far, 4)}, v{v}, {sr(r, 4)}, s{sU} offen nt')
            if count: vm.issue('ffn')
        sym = self.sym = []
        def ffn_reg(n=1):
            for _ in range(n):
                m, i = fq.pop(0)
                r0 = 8 * len(held[1]) + 4 * len(sym); assert r0 < 64 and (r0 < 32 or o['m2c'] == 3)
                v, r = f_src(m, i)
                self.bl(FL + r0, 4, v, r, sU, 0, 'nt', 'ffr')
                sym.append((m, i, FL + r0))
        def ffn_dma(n=1):
            for _ in range(n):
                m, i = fq.pop(0)
                v, r = f_src(m, i)
                S('m0', 'w1k*4 + q', q=f_lds(m, i))
                self.dma(v, r, sU, 0, 'nt', 'ffn')
        self.ffn_reg, self.ffn_dma, self.f_lds = ffn_reg, ffn_dma, f_lds
        for _ in range(o['fA']): held[1].append(fq.pop(0))
        def m2_ld(i):
            if i == 0:
                S(sU, '((x & 3)*8 + w)*64'); self.va(m2c + 4, [(3, 3, 2)], sU, 0, m2c + 5)
                for k in range(4): a(f'global_load_ushort v{m2c+k}, v{m2c+4}, {sr(pC, 2)} offset:{16*k}'); vm.issue('m2')
            S(sU, 'm2 + q', q=i * 8 * 12288)
            self.bl(m2w + 4 * i, 4, self.vWM, rWM, sU, 0, 'nt', 'm2')
        wslot = lambda p: p
        def wo_dma(p, back=0):
            S(sU, '(y2 ^ q) + wo' + (' - 65536' if back else ''), q=p * 131072)
            S('m0', 'w1k + q', q=wslot(p) * 8192 - 4096 * back)
            self.dma(vWo, rWO, sU, 0, '', 'wo')
        self.wo_dma = wo_dma
        def poison(backs, t):
            a(f'v_mov_b32 v{t}, -1\nv_mov_b32 v{t+1}, -1\nv_mov_b32 v{t+2}, -1\nv_mov_b32 v{t+3}, -1')
            for back in backs:
                S(T6, '((rt*8 + w - q)*16 + cb)*256 + ST', q=4 * back); self.va(t + 4, [(0, 6, 4)])
                self.bs(t, 1, t + 4, rWS, T6, 0, 'sc1')
            S(T6, 'rt*16384 + cb*512 + XS'); self.va(t + 4, [(0, 5, 16), (5, 1, 8192)], None, 0, t + 5)
            a(f's_cmp_lg_u32 s{sWAVE}, 5\ns_cbranch_scc1 L_NOPO')
            self.bs(t, 4, t + 4, rWS, T6, 0, 'sc1', count=False)
            a('L_NOPO:')
        self.poison = poison
        seq = []
        for sg in range(36): seq += [(t, h, sg) for t in 'kqv' for h in range(2)]
        for sg in range(36, 40): seq += [('k', h, sg) for h in range(2)]
        for sg in range(36, 40): seq += [(t, h, sg) for t in 'qv' for h in range(2)]
        for h in range(2): seq += [('k', h, sg) for sg in range(40, 64)]
        for t in 'vq':
            for sg in range(40, 64): seq += [(t, h, sg) for h in ((1, 0) if (t, sg) == ('q', 63) else (0, 1))]
        bA, bH, bQ = o['bA'], o['bH'], 335
        assert bA >= 271
        bars = [24 * k - 1 for k in range(1, 10)] + [223, 239, 253, bA, bH, bQ]
        first, last = {}, {}
        for n, (t, h, sg) in enumerate(seq):
            first.setdefault(f'{t}{sg >> 2}', n); last[f'{t}{sg >> 2}'] = n; last[('A', sg)] = n
        a(f"""s_cmp_ge_u32 s{sWAVE}, 4
        s_cbranch_scc1 L_HELP
        s_setprio {o['prio']}""")
        q_hok = list(vm.q)
        ACC = dict(k=AK, v=AV, q=AQ)
        nxt = [0]; late = []
        def a_load():
            while late: a(late.pop(0))
            sg = nxt[0]; nxt[0] += 1
            if o.get('noA') and sg >= 12: return
            self.bl(AR + 4 * (sg % 24), 4, SP + 1, rWS, T3, (sg % 4) * 1024, 'sc1', ('A', sg))
            if sg % 4 == 3: late.extend([f's_add_u32 s{T3}, s{T3}, 16384', f's_and_b32 s{T3}, s{T3}, 0x3ffff'])
        def b_read(n):
            t, h, sg = seq[n]
            s = sg & 3
            off = ((sg >> 2) % 6) * 8192 + (s >> 1) * 4096 + (s & 1) * 1024
            d = RING + 4 * (n % NB); v = vB + 2 * 'kvq'.index(t) + h
            self.tr(d, v, off, ('B', n)); self.tr(d + 2, v, off + 2048, ('B', n))
        self.nopk = True
        stk, stv = Stream(self), Stream(self)
        for h in range(2):
            for q in range(2):
                stk.cap(lambda: [a(f'v_cvt_pk_bf16_f32 v{AK+16*h+4*q+i}, v{AK+16*h+8*q+2*i}, v{AK+16*h+8*q+2*i+1}') for i in range(4)])
                stk.add(lambda h=h, q=q: self.dw('ds_write_b128', vHo, AK + 16 * h + 4 * q, 4, q * 1024, f'kh{h}'), o['wcost'], 1)
            stk.mark(f'kh{h}')
            if h == 0:
                stk.cap(lambda: a(f'v_subrev_u32 v{vHo}, {L_QH - L_HV}, v{vHo}'))
                stk.until(288 + o['kdel'])
        stk.until(bH + 1)
        stk.cap(lambda: (S(T1, 'rb*2048 + L_HV'), self.va(vHo, TOK, T1, 0, vT)))
        for h in range(2):
            for q in range(2):
                stv.cap(lambda: [a(f'v_cvt_pk_bf16_f32 v{AV+16*h+4*q+i}, v{AV+16*h+8*q+2*i}, v{AV+16*h+8*q+2*i+1}') for i in range(4)])
                stv.add(lambda h=h, q=q: self.dw('ds_write_b128', vHo, AV + 16 * h + 4 * q, 4, h * 8192 + q * 1024, 'vst'), o['wcost'], 1)
        if o['m2c'] == 0:
            stv.sleep(4)
            stv.add(lambda: lg.wait('vst'))
            for i in range(4): stv.add(lambda i=i: m2_ld(i), 0, 1); stv.sleep(o.get('fgap', 4))
        while nxt[0] < o['A00']: a_load()
        vm.wait(('W', 3 if o['xorw'] else 1))
        a('s_barrier')
        self.stamp('hok')
        if not nxt[0]: a_load()
        for n in range(LOOK): b_read(n)
        while nxt[0] < o['A0']: a_load()
        seen = set(); lpend = []; owe = [0]
        Apos = list(o['Apos']); assert o['A0'] + sum(Apos) == 64
        for n in range(384):
            t, h, sg = seq[n]; cur[0] = n
            if ('A', sg) not in seen:
                assert sg < nxt[0]
                vm.wait(('A', sg)); seen.add(('A', sg))
            lg.wait(('B', n))
            d = ACC[t] + 16 * h
            a(f'v_mfma_f32_32x32x16_bf16 {vr(d, 16)}, {vr(RING + 4*(n % NB), 4)}, {vr(AR + 4*(sg % 24), 4)}, ' + (vr(d, 16) if sg else '0'))
            if self.prof and o.get('ls'):
                l0, l1, lst = o['ls']
                if lpend and n >= lpend[0][0]:
                    _, r_, k_ = lpend.pop(0); a(f'v_writelane_b32 v255, s{r_}, {k_}')
                if l0 <= n < l1 and (n - l0) % lst == 0:
                    r_ = sPL + 2 * (self.nst % 4)
                    a.items.append(('raw', f'    s_memtime {sr(r_, 2)}')); lpend.append((n + 4, r_, self.nst)); self.stnames.append(f'n{n}'); self.nst += 1
            def a_try():
                p, r = divmod(n, 24)
                if n < 240 and (r + 1) * Apos[p] // 24 > r * Apos[p] // 24: owe[0] += 1
                if owe[0] and (nxt[0] < 24 or last[('A', nxt[0] - 24)] <= n): a_load(); owe[0] -= 1
                elif late: a(late.pop(0))
            if o['apos'] == 0: a_try()
            bud = [o['kbud'], 1]
            if n >= 264 + o['kdel']: stk.pull(bud, bud[0])
            bud = [o['vbud'], 1]
            if n > bQ + 2: stv.pull(bud, bud[0])
            if n + LOOK < 384: b_read(n + LOOK)
            if o['apos'] == 1: a_try()
            if n in bars:
                if n in (bA, bH):
                    assert f'kh{int(n == bH)}' in self.marks
                    lg.wait(f'kh{int(n == bH)}')
                    if 'prio2' in o and n == bA: a(f's_setprio {o["prio2"]}')
                if not (o.get('noB') and n < 200): a('s_barrier')
                if o.get('gst'): self.stamp(f'b{n}')
        assert not (stk.q or stv.q) and nxt[0] == 64
        self.stamp('gemm1')
        vq, wph = AR + 16, AR + 24
        S(T1, 'rb*2048 + L_QH'); a(f'v_add_u32 v{vHo}, s{T1}, v{vL16}')
        va(vT, [(2, 2, 64), (4, 1, 32), (0, 2, 8), (5, 1, 256)], None, L_WPHI)
        for s in range(2):
            for u in range(2): self.tr(wph + 4 * s + 2 * u, vT, s * 1024 + u * 512)
        cvt8(AR, AQ + 16)
        for q in range(2): self.dw('ds_write_b128', vHo, AR + 4 * q, 4, q * 1024)
        cvt8(vq, AQ)
        if o['m2c'] == 1:
            for i in range(4): m2_ld(i)
        a('s_setprio 0')
        a('s_branch L_JOIN')
        a('L_HELP:')
        vm.q = list(q_hok); lg.reset()
        vm.wait(('W', 3 if o['xorw'] else 1))
        a('s_barrier')
        vis = {}
        def w_sec(t, n):
            if o.get('noW'): return
            for back in (1, 0):
                S(sU, '((u0 + n) & 15)*UR + wb + q', n=n, q=(dict(q=0, k=2048, v=4096)[t] - back * 4 * 49152) & 0xffffffff)
                S('m0', 'w1k + q', q='kvq'.index(t) * REG + (n % 6) * 8192 - back * 4096)
                self.dma(vWd, rW, sU, 0, '', ('W', t, n))
        for n, t in self.wq: w_sec(t, n)
        ka, wp2, pa, pb, ee, vPW = AR, AR + 16, AR + 32, AR + 48, AR + 64, AR + 80
        va(vT, [(2, 2, 64), (4, 1, 32), (0, 2, 8), (5, 1, 256)], None, L_WPHI)
        for hs in range(4):
            for u in range(2): self.tr(wp2 + 4 * hs + 2 * u, vT, hs * 1024 + u * 512)
        S(T1, 'rb*1024 + L_PHK'); va(vPW, TOK, T1)
        def touch(boxes):
            a('s_waitcnt lgkmcnt(0)')
            for q, b in enumerate(boxes):
                a(f's_load_dword s{sPL + 2*q}, {sr(rWS, 2)}, s{sINB} offset:{b * 512} glc')
                a(f's_load_dword s{sPL + 2*q + 1}, {sr(rWS, 2)}, s{sINB} offset:{b * 512 - 256} glc')
        wsched = {int(k): v.split() for k, v in o['wsched'].items()}
        for k in range(1, 5): wsched[k] = [f'{t}{k + 5}' for t in 'kqv'] + wsched.get(k, [])
        need = {}
        for u in first:
            k = len([b for b in bars if b < first[u] - LOOK])
            if k: need.setdefault(k, []).append(u)
        done = {f'{t}{n}' for n in range(6) for t in 'kvq'}
        def h_bar(k):
            if k < 5: vm.wait(('W', k + 1))
            for u in need.get(k, []):
                assert u in done, (u, k)
                vm.wait(('W', u[0], int(u[1:])))
            if not (o.get('noB') and k < 9): a('s_barrier')
            for u in wsched.get(k, []):
                assert last[f'{u[0]}{int(u[1:]) - 6}'] <= bars[k - 1], (u, k)
                w_sec(u[0], int(u[1:])); done.add(u)
        hm, hc, ha, ht = AV, AQ, AQ + 8, AQ + 16
        if o.get('fP'): S(T4, o['fP'])
        if o['m2c'] == 3:
            S(T5, o['m2k3'])
            S(sU, '((x & 3)*4 + w - 4)*128'); va(ht, [(3, 3, 2)], sU)
            for i in range(8): a(f'global_load_ushort v{hc+i}, v{ht}, {sr(pC, 2)} offset:{16*i}'); vm.issue('c2')
            S(T6, '((x & 3)*4 + w - 4)*(64*12288) + (j*2 + (x >> 2))*128 + 4096')
        for k in range(1, 14):
            if k == 13: lg.wait_all()
            if o['m2c'] == 3 and k == o['m2e'] + 1: lg.wait_all()
            h_bar(k)
            if o['m2c'] == 3:
                nb = o['m2nb']
                for b in range(nb):
                    if k <= o['m2g'] - o.get('m2lag', 2) and k - b * o['m2db'] >= 1:
                        a(f's_cmp_lg_u32 s{T5}, {k - b * o["m2db"]}\ns_cbranch_scc1 L_NM2_{k}_{b}')
                        for i in range(b * 8 // nb, (b + 1) * 8 // nb):
                            S(sU, 'T6 + q', q=i * 8 * 12288)
                            a(f'buffer_load_dwordx4 {vr(hm + 4*i, 4)}, v{self.vWM}, {sr(rWM, 4)}, s{sU} offen nt')
                        a(f'L_NM2_{k}_{b}:')
                if k == 3:
                    vm.wait('c2')
                    for i in range(8):
                        a(f'v_lshlrev_b32 v{hc+i}, 16, v{hc+i}')
                        self.silu(hc + i, ht + (i & 1))
                g0 = o['m2g']
                ke = o['m2e']
                if g0 <= k <= ke:
                    if k == g0:
                        vm.wait(('W', 'k', k + 4 if o.get('m2lag', 2) == 2 else k + 5))
                        mops = self.gemv_ops([hm + 4 * i for i in range(8)], [hc + i for i in range(8)], ha, ht, ht + 1, False)
                    if o.get('gprio'): a('s_setprio 3')
                    for _ in range(len(mops) if k == ke else 144 // (ke + 1 - g0)): a(mops.pop(0))
                    if o.get('gprio'): a('s_setprio 0')
                    if k == ke: self.dw('ds_write_b32', self.vGA, ha, 1, L_M2 - MISC)
                if k == ke + 1:
                    a(f"""s_cmp_lg_u32 s{sWAVE}, 4
                    s_cbranch_scc1 L_M2F
                    ds_read_b128 {vr(ha, 4)}, v{self.vL32S} offset:{L_M2 - MISC + 16}""")
                    S(T0, '((j*2 + (x >> 2))*4 + (x & 3))*512 + MODP2')
                    a(f"""s_waitcnt lgkmcnt(0)
                    v_add_f32 v{ha}, v{ha}, v{ha+1}
                    v_add_f32 v{ha+2}, v{ha+2}, v{ha+3}
                    v_mov_b32 v{ha+1}, s{sTAG}
                    v_add_f32 v{ha}, v{ha}, v{ha+2}""")
                    self.bs(ha, 2, self.vL8, rWS, T0, 0, 'sc1', count=False)
                    a('L_M2F:')
            if o.get('fP') and k <= 8:
                a(f's_cmp_lg_u32 s{T4}, {k}\ns_cbranch_scc1 L_NFP_{k}')
                for i in range(o['fA']):
                    for far in range(2): f_ld(1, i, far, False)
                a(f'L_NFP_{k}:')
            if k == 2 and o['poisat'] == 0: poison((0, 1), AR + 88); S(T6, '((x & 3)*4 + w - 4)*(64*12288) + (j*2 + (x >> 2))*128 + 4096')
            if k in (1, 3, 5) and o.get('touch', 1): touch({1: (1, 7), 3: (2, 3), 5: (5, 6)}[k])
            if k == 6 and o['tz']:
                S(T0, '(hp*8 + w - 4)*1024 + r1*64 + ZP'); S(T1, '(rt*16 + cb)*64 + UP')
                a('s_waitcnt lgkmcnt(0)')
                for q in range(2): a(f's_load_dword s{sPL + q}, {sr(rWS, 2)}, s{T0} offset:{q * 4096} glc')
                a(f's_load_dword s{sPL + 2}, {sr(rWS, 2)}, s{T1} offset:0 glc')
            if k == 8 and o.get('touch', 1):
                S(T0, 'fs*8192 + (w - 4)*256 + HGR')
                a('s_waitcnt lgkmcnt(0)')
                for q in range(4): a(f's_load_dword s{sPL + q}, {sr(rWS, 2)}, s{T0} offset:{q * 2048 + 1024 + 252} glc')
        def logits(h, pp):
            if o.get('hprio'): a(f's_setprio {o["hprio"]}')
            for q in range(2): self.r128(ka + 4 * q, vHo, q * 1024, ('kh', q))
            if h == 0: a(f'v_subrev_u32 v{vHo}, {L_QH - L_HV}, v{vHo}')
            for q in range(2):
                lg.wait(('kh', q))
                a(f'v_mfma_f32_32x32x16_bf16 {vr(pp, 16)}, {vr(wp2 + 8*h + 4*q, 4)}, {vr(ka + 4*q, 4)}, ' + (vr(pp, 16) if q else '0'))
            if o.get('hprio') and not o.get('hlong'): a('s_setprio 0')
        logits(0, pa)
        self.stamp('klog')
        hs = Stream(self)
        for h, pp in ((0, pa), (1, pb)):
            hs.cap(lambda: self.softmax_pm(pp, ee, ee, vT))
            k = max(i for i, it in enumerate(hs.q) if it[0] == 4.75) - 8
            tailq = hs.q[k + 1:]; hs.q = hs.q[:k + 1]
            wr = lambda fb, h=h: (0, 0, lambda: self.dw('ds_write_b128', vPW, ee + 4 * fb, 4, h * 16384 + fb * 4096, ('phk', h)))
            hs.q += [wr(0)] + tailq[:4] + [wr(1), wr(2)] + tailq[4:] + [wr(3)]
            if h == 0:
                n1 = len(hs.q)
                hs.add(lambda: None)
        hs.q.insert(n1 + 34, (0, 0, lambda: lg.wait(('phk', 0))))
        ex = {}
        def put(i, fn):
            while i in ex: i += 1
            ex[i] = fn
        nq = int(n1 * o['hq'])
        put(nq, lambda: h_bar(15))
        nh = int(n1 * o['hh'])
        put(nh, lambda: (h_bar(14), logits(1, pb)))
        g1, g2 = o['hgap']
        ff = [(lambda k=k, far=far: f_ld(1, k, far)) for k in range(o['fA']) for far in range(2) if not o.get('fP')]
        pre = [(lambda k=k: m2_ld(k)) for k in range(4)] if o['m2c'] < 2 else []
        npre = o['fpre'] - len(pre)
        pre += ff[:npre]; ff = ff[npre:]
        for k, fn in enumerate(pre): put(nh + 5 + g1 * k, fn)
        wl = self.wo_left = [6, 7, 8, 9, 10, 11] + [12, 13, 14, 15] + [0, 1, 2, 3, 4, 5]
        post = []
        for k in range(o['woA']): post += [lambda: wo_dma(wl[0], 1), lambda: wo_dma(wl.pop(0))]
        post = post[:8] + ff + post[8:] if o.get('wofirst', 1) else ff + post
        for k, fn in enumerate(post): put(nq + 5 + g2 * k, fn)
        for i, (v_, l_, fn) in enumerate(hs.q):
            if i in ex: ex.pop(i)()
            fn()
        for i in sorted(ex): ex[i]()
        self.nopk = False
        S(T1, 'rb*2048 + L_QH'); a(f'v_add_u32 v{vHo}, s{T1}, v{vL16}')
        assert wph == wp2 + 8
        if o.get('hprio'): a('s_setprio 0')
        self.stamp('ksm')
        a('L_JOIN:')
        vm.q = ['m2'] * (8 if o['m2c'] < 2 else 0); lg.q = [None]
        self.m2_ld = m2_ld
        self.vHo = vHo

    def middle(self):
        a, vm, lg, o, S, va = self.a, self.vm, self.lg, self.o, self.S, self.vaa
        vL8, vL32S, vGA, vHo, ffn_reg = self.vL8, self.vL32S, self.vGA, self.vHo, self.ffn_reg
        pp, ee, ph, vq, wph = AQ, AQ + 16, AR, AR + 16, AR + 24
        fA, fB, kvd, zd, ones = AR + 32, AR + 48, AR + 80, AR + 88, AR + 92
        kp, zz, zf, kf, k2 = AR + 32, AR + 40, AR + 44, AR + 60, AR + 76
        m2w, m2a, m2c, m2t = AV, AV + 16, AV + 24, AV + 28
        vPA, vPB, vPC, vKP, vXF = RING + 16, RING + 17, RING + 18, RING + 19, RING + 20
        md, wr1 = RING, RING + 4
        self.md, self.wr1 = md, wr1
        wl = self.wo_left
        wo1 = lambda: self.wo_dma(wl.pop(0))
        fw = o['fwin']
        va(vPB, [(0, 1, 8), (2, 2, 16), (4, 1, 64), (1, 1, 128), (5, 1, 256)])
        S(T0, 'w*4096 + L_PHK'); a(f'v_add_u32 v{vPA}, s{T0}, v{vPB}')
        S(T0, 'kh*8192 + L_HV'); a(f'v_add_u32 v{vPB}, s{T0}, v{vPB}')
        for i in range(4): a(f'v_mov_b32 v{ones+i}, 0x3f803f80')
        S(T0, '((hp*8 + w)*32 + r1)*1024 + KVP'); S(T2, 'T0 + 16384')
        S(T3, '(hp*8 + w)*1024 + ZP'); S(T1, 'r1*64 + T3')
        self.barrier()
        self.stamp('phik')
        def kvm(u):
            lg.wait(('kv', u))
            for db in range(2):
                a(f'v_mfma_f32_16x16x32_bf16 {vr(kvd + 4*db, 4)}, {vr(fA + 4*u, 4)}, {vr(fB + 8*u + 4*db, 4)}, ' + ('0' if u == 0 else vr(kvd + 4*db, 4)))
            a(f'v_mfma_f32_16x16x32_bf16 {vr(zd, 4)}, {vr(fA + 4*u, 4)}, {vr(ones, 4)}, ' + ('0' if u == 0 else vr(zd, 4)))
        for ts in range(4):
            self.tr(fA + 4 * ts, vPA, ts * 1024, ('kv', ts)); self.tr(fA + 4 * ts + 2, vPA, ts * 1024 + 512, ('kv', ts))
            for db in range(2):
                for rd in range(2): self.tr(fB + 8 * ts + 4 * db + 2 * rd, vPB, ts * 2048 + db * 1024 + rd * 512, ('kv', ts))
            if ts >= 2: kvm(ts - 2)
        kvm(2); kvm(3)
        a(f"""s_cmp_lt_u32 s{sWAVE}, 4
        s_cbranch_scc1 L_NOQX
        ds_read_b128 {vr(vq, 4)}, v{vHo}
        ds_read_b128 {vr(vq + 4, 4)}, v{vHo} offset:1024
        L_NOQX:""")
        self.bs(kvd, 4, vL16, rWS, T0, 0, 'sc1', 'kvs')
        self.bs(kvd + 4, 4, vL16, rWS, T2, 0, 'sc1', 'kvs')
        a('s_mov_b32 exec_lo, 0x00010001')
        a('s_mov_b32 exec_hi, 0x00010001')
        self.bs(zd, 4, vL, rWS, T1, 0, 'sc1', 'kvs')
        a('s_mov_b64 exec, -1')
        lg.wait_all()
        a(f'v_mfma_f32_32x32x16_bf16 {vr(pp, 16)}, {vr(wph, 4)}, {vr(vq, 4)}, 0')
        a(f'v_mfma_f32_32x32x16_bf16 {vr(pp, 16)}, {vr(wph + 4, 4)}, {vr(vq + 4, 4)}, {vr(pp, 16)}')
        self.stamp('kvst')
        if o['poisat'] == 1: self.poison((0,), RING + 22)
        if o['m2c'] == 2:
            for i in range(4): self.m2_ld(i)
        va(vPC, [(0, 3, 32 * 4096), (3, 1, 4 * 4096)])
        S(T4, '(wg & 0x1b)*4096 + (r1 >> 1)*64 + (r1 & 1)*4 + INB + 512')
        va(vKP, [(3, 3, 1024), (0, 3, 16)])
        va(vXF, [(0, 3, 16), (5, 1, 8)])
        qm, qs = o['qmid'], o['qsplit']
        self.softmax_pm(pp, ee, ph, vT, part=1, split=qm)
        vm.wait('kvs')
        a('s_barrier')
        self.push(vPC, T4, 16, vPB, 'L_PC')
        self.stamp('kvpub')
        if o['poisat'] == 2: self.poison((0,), RING + 22)
        self.weave(lambda: [a(f'v_exp_f32 v{r+i}, v{r+i}') for i in range(qm, qs) for r in (ee, pp)], [wo1] * o['wowin'][0])
        S(T0, '(hp*16 + r1)*16384 + w*128 + KVP'); S(T1, 'T0 + 8192')
        S(T2, '(hp*16 + r1)*1024 + w*128 + KIN'); S(T4, 'T4 + 6*512')
        self.inbox(1, 2, work=lambda: (self.weave(lambda: self.softmax_pm(pp, ee, ph, vT, part=2, split=qs), [wo1] * o['wowin'][1]), self.stamp('cw')))
        a('s_barrier')
        self.stamp('kvok')
        self.bl(kp, 4, vKP, rWS, T0, 0, 'sc1', 'kp')
        self.bl(kp + 4, 4, vKP, rWS, T1, 0, 'sc1', 'kp')
        self.bl(zz, 4, vL16, rWS, T3, 0, 'sc1', 'z')
        if fw[0]: a('s_barrier')
        ffn_reg(fw[0])
        S(T1, 'w*32 + L_ZF'); va(vT + 2, [(0, 2, 8), (5, 1, 4)], T1)
        S(T1, 'w*1024 + L_KVF'); va(vT + 1, [(0, 4, 16), (5, 1, 512), (4, 1, 8)], T1)
        S(T1, 'kh*128 + L_ZF'); va(vT + 3, [(5, 1, 16)], T1)
        S(T1, 'kh*4096 + L_KVF'); a(f'v_add_u32 v{vPA}, s{T1}, v{vL16}')
        M2 = o['m2c'] < 3
        m2ops = []; k = o.get('m2k', 24)
        if M2:
            vm.wait('m2')
            for i in range(4):
                a(f'v_lshlrev_b32 v{m2c+i}, 16, v{m2c+i}')
                self.silu(m2c + i, m2t + (i & 1))
            m2ops = self.gemv_ops([m2w + 4 * i for i in range(4)], [m2c + i for i in range(4)], m2a, m2t, m2t + 1, True)
        for s_ in m2ops[:k]: a(s_)
        def red4(r, ctls):
            for i in range(2): a(f'v_permlane32_swap_b32 v{r+i}, v{r+2+i}')
            self.pk('add', r, r, r + 2)
            for ctl in ctls:
                for i in range(2): self.dpp('v_add_f32', r + i, r + i, r + i, ctl)
            for i in range(2): a(f'v_mov_b32 v{r+2+i}, v{r+i}')
            for i in range(2): a(f'v_permlane16_swap_b32 v{r+i}, v{r+2+i}')
            self.pk('add', r, r, r + 2)
            a(f'v_cvt_pk_bf16_f32 v{r}, v{r}, v{r+1}')
        vm.wait('kp')
        self.pk('add', kp, kp, kp + 4); self.pk('add', kp + 2, kp + 2, kp + 6)
        red4(kp, ['row_ror:8'])
        a(f"""v_mov_b32 v{kp+1}, s{sTAG}
        s_mov_b32 exec_lo, 0xff
        s_mov_b32 exec_hi, 0xff""")
        self.bs(kp, 2, vXF, rWS, T2, 0, 'sc1')
        a('s_mov_b64 exec, -1')
        if o['C2dir'] == 0:
            a('s_barrier')
            self.push(vPC, T4, 16, vPB, 'L_PC2')
        self.stamp('c2pub')
        num, den = pp, ee
        vm.wait('z')
        self.weave(lambda: (red4(zz, ['row_ror:4', 'row_ror:8']), [a(s_) for s_ in m2ops[k:]]), [wo1] * o['wowin'][2])
        self.dw('ds_write_b32', vT + 2, zz, 1)
        if M2: self.dw('ds_write_b32', vGA, m2a, 1, L_M2 - MISC)
        self.barrier()
        for fb in range(4): self.r128(zf + 4 * fb, vT + 3, fb * 32)
        if M2: self.r128(m2a, vL32S, L_M2 - MISC); self.r128(m2a + 4, vL32S, L_M2 - MISC + 16)
        S(T5, '((j*2 + (x >> 2))*4 + (x & 3))*512 + MODP2')
        lg.wait_all()
        S(T0, '(hp*8 + w)*2048 + KIN')
        def den_work():
            for fb in range(4):
                a(f'v_mfma_f32_32x32x16_bf16 {vr(den, 16)}, {vr(zf + 4*fb, 4)}, {vr(ph + 4*fb, 4)}, ' + ('0' if fb == 0 else vr(den, 16)))
            if M2:
                a(f's_cmp_lg_u32 s{sWAVE}, 3\ns_cbranch_scc1 L_M2F')
                self.nopk = True; self.sum8(m2a); self.nopk = False
                a(f'v_mov_b32 v{m2a+1}, s{sTAG}')
                self.bs(m2a, 2, vL8, rWS, T5, 0, 'sc1', count=False)
                a('L_M2F:')
            self.round1(den)
            a(f'v_add_f32 v{den}, 0x358637bd, v{den}')
            self.round1(den)
            a(f'v_rcp_f32 v{den}, v{den}')
            self.stamp('c2w')
        ldk2 = lambda: [self.bl(k2 + 4 * q, 4, vL16, rWS, T0, q * 1024, 'sc1') for q in range(2)]
        if o['C2dir'] == 0:
            self.inbox(7, 2, work=den_work)
            self.stamp('c2h')
        if o['C2dir'] == 2: den_work()
        self.try_load(ldk2, [k2 + 1, k2 + 3, k2 + 5, k2 + 7], vT, lambda: (ffn_reg(fw[1]), den_work() if o['C2dir'] == 1 else None))
        for db in range(2):
            a(f'ds_write2_b32 v{vT+1}, v{k2+4*db}, v{k2+4*db+2} offset0:{64*db} offset1:{64*db+1}'); lg.issue()
        self.barrier()
        self.stamp('kvred')
        for fb in range(4): self.r128(kf + 4 * fb, vPA, fb * 1024, ('kf', fb))
        S(T0, '((r1*8 + rb*2)*32 + hp*2 + kh)*1024 + OF')
        va(vKP, [(0, 4, 16), (4, 1, 32768), (5, 1, 256)])
        for fb in range(4):
            lg.wait(('kf', fb))
            a(f'v_mfma_f32_32x32x16_bf16 {vr(num, 16)}, {vr(kf + 4*fb, 4)}, {vr(ph + 4*fb, 4)}, ' + ('0' if fb == 0 else vr(num, 16)))
        S(T5, '((w >> 1)*16 + cb)*2048 + (w & 1)*1024 + MODP2')
        self.ld_md = lambda: self.bl(md, 4, vL16, rWS, T5, 0, 'sc1', 'md')
        S(T6, 'cb*128'); va(vPA, [(0, 2, 2), (5, 1, 8), (4, 1, 16), (2, 2, 32)], T6)
        a(f'global_load_ushort v{wr1}, v{vPA}, {sr(pWR, 2)}'); vm.issue('md')
        self.ld_md()
        for h in range(2):
            self.round_list([num + i for i in range(8 * h, 8 * h + 8)])
            for i in range(8 * h, 8 * h + 8, 2): self.pk('mul', num + i, num + i, den, bc=(1,))
            for i in range(4 * h, 4 * h + 4): a(f'v_cvt_pk_bf16_f32 v{vq+i}, v{num+2*i}, v{num+2*i+1}')
            self.bs(vq + 4 * h, 4, vKP, rWS, T0, 512 * h, 'sc1', 'os')
        self.stamp('ost')
        if o['poisat'] == 3: self.poison((0,), RING + 22)
        while wl: wo1()

    def gemm2(self):
        a, vm, lg, o, S, va = self.a, self.vm, self.lg, self.o, self.S, self.vaa
        md, wr1, fw = self.md, self.wr1, o['fwin']
        AD2 = o['AD2']
        R = self.R = dict(acc=AQ, gaf=AQ + 16, cbf=AR + 16, sbf=AV, gbf=AV + 16, xf=AR, fr=AR + 32, Br=AR + 40, Ar=AR + 72, vB=RING + 8, sv=RING, up=RING + 12)
        acc, gaf, cbf, sbf, gbf, xf, fr, Br, Ar, vB, sv, up = [R[k] for k in 'acc gaf cbf sbf gbf xf fr Br Ar vB sv up'.split()]
        ARS = [Ar + 4 * i for i in range(6)] + [RING + 16, RING + 20, RING + 24]; assert AD2 <= 9
        va(vB, [(2, 2, 128), (4, 2, 1024), (0, 1, 16), (1, 1, 8), (3, 2, 32)])
        S(T4, '(w ^ (%s))*4096' % o['g2r']); S(T1, '(T4*4) ^ (y2 >> 4)')
        a(f'v_add_u32 v{vB}, s{T1}, v{vB}')
        for ct in range(1, 4): a(f'v_xor_b32 v{vB+ct}, {32*ct}, v{vB}')
        va(vT + 1, [(0, 3, 8 * 4096), (3, 1, 4096)])
        S(T2, '((r1 >> 2)*2 + (r1 & 3)*64)*4096 + (hp >> 1)*64 + (hp & 1)*4 + INB + 1024')
        for i in range(8): self.unpack(xf + 2 * i, xf + 2 * i + 1, XR + i)
        S(T6, '(rt*8 + w)*32768 + OF')
        vm.wait('md')
        self.tagcheck([md + 1, md + 3], vT)
        a('s_cbranch_vccz L_MGOK')
        q0 = list(vm.q)
        self.poll(self.ld_md, [md + 1, md + 3], vT)
        vm.q = q0
        a('L_MGOK:')
        S(T1, '(w >> 1)*1024 + (w & 1)*8 + L_MD'); va(vT, [(0, 5, 32), (5, 1, 4)], T1)
        a(f'ds_write2_b32 v{vT}, v{md}, v{md+2} offset0:0 offset1:4'); lg.issue()
        va(vT + 3, [(0, 2, 16), (5, 1, 64), (4, 1, 128), (2, 2, 256)], None, L_MD)
        S(T5, 'wg*4096 + (T4 >> 6) + INB + 1024')
        vm.wait('os'); vm.wait('wo')
        self.barrier()
        self.push(vT + 1, T2, 16, vT + 2, 'L_PD')
        self.stamp('opub')
        self.ffn_reg(fw[2])
        t4 = Br
        for q in range(4): self.r128(t4 + 4 * q, vT + 3, q * 1024)
        va(vT + 4, [(0, 2, 4), (5, 1, 16), (4, 1, 32), (2, 2, 64)], None, L_GB)
        S(T0, '(rt*16 + cb)*64 + UP')
        lg.wait_all()
        def d_work():
            for q in range(4):
                self.pk('add', t4 + 4 * q, t4 + 4 * q, t4 + 4 * q + 2)
                a(f'v_add_f32 v{sv+q}, v{t4+4*q}, v{t4+4*q+1}')
            self.round_list([sv + q for q in range(4)])
            a(f'v_add_f32 v{sv+2}, 1.0, v{sv+2}')
            a(f'v_lshlrev_b32 v{wr1}, 16, v{wr1}')
            self.round1(sv + 2)
            a(f'ds_write_b32 v{vT+4}, v{sv+3}')
            uu, hi, lo, t = t4, t4 + 1, t4 + 2, t4 + 4
            a(f'v_mul_f32 v{uu}, v{sv+2}, v{wr1}')
            a(f'v_cvt_pk_bf16_f32 v{hi}, 0, v{uu}')
            a(f'v_sub_f32 v{lo}, v{uu}, v{hi}')
            self.allreduce(uu, t + 3)
            for k, r in enumerate((hi, lo, wr1)): a(f'v_mov_b32_dpp v{t+k}, v{r} row_shl:1 row_mask:0xf bank_mask:0xf')
            for k, r in enumerate((hi, lo, wr1)): a(f'v_cvt_pk_bf16_f32 v{t+k}, v{r}, v{t+k}')
            a(f"""v_mov_b32 v{uu+1}, s{sTAG}
            v_mov_b32 v{uu+2}, 0
            s_cmp_lg_u32 s{sWAVE}, 2
            s_cbranch_scc1 L_NOUP
            s_mov_b64 exec, 1""")
            self.bs(uu, 2, uu + 2, rWS, T0, 0, 'sc1', count=False)
            a('s_mov_b64 exec, -1\nL_NOUP:')
            for i in range(8):
                a(f'v_mov_b32 v{fr+i}, 0x3f803f80')
                for k in range(3): a(f'v_mov_b32_dpp v{fr+i}, v{t+k} row_newbcast:{2*i} row_mask:0xf bank_mask:{hex(2 << k)}')
            a(f'v_mov_b32 v{RING+14}, v{sv+1}\nv_mov_b32 v{RING+15}, v{sv+3}')
            for dst, q in ((gaf, 0), (cbf, 2)):
                for i in range(16): a(f'v_mov_b32_dpp v{dst+i}, v{sv+q} row_newbcast:{i} row_mask:0xf bank_mask:0xf')
            self.stamp('dw')
        L2 = o['LOOK2']
        def b2_read(m):
            H, ct = divmod(m, 4)
            for rd in range(2): self.tr(Br + 4 * (m % 8) + 2 * rd, vB + ct, (H & 3) * 4096 + rd * 512, ('B', m))
            if H % 4 == 3 and H < 31: a(f'v_xor_b32 v{vB+ct}, {((H >> 2) ^ ((H >> 2) + 1)) * 16384}, v{vB+ct}')
        def a2_load(H):
            if H % 4 == 0: S(T7, '(T4 ^ n) + T6', n=H * 1024)
            self.bl(ARS[H % AD2], 4, vL16, rWS, T7, (H % 4) * 1024, 'sc1', ('A', H))
        self.spoll([(0, 2, T5, 0)], range(2), d_work)
        self.stamp('ook1')
        if not o['earlyD']: a('s_barrier')
        for H in range(AD2):
            if H == 4 and o['earlyD']: a('s_barrier')
            a2_load(H)
            if H == 0:
                for m in range(L2): b2_read(m)
        self.stamp('ook')
        S(T0, 'rt*1024 + UP'); va(vT + 6, [(0, 4, 64)])
        self.ld_up = lambda: self.bl(up, 2, vT + 6, rWS, T0, 0, 'sc1', 'up')
        lpend = []
        for H in range(32):
            if self.prof and o.get('ls2'):
                if lpend: r_, k_ = lpend.pop(0); a(f'v_writelane_b32 v255, s{r_}, {k_}')
                if H < 31:
                    r_ = sPL + 2 * (self.nst % 4)
                    a.items.append(('raw', f'    s_memtime {sr(r_, 2)}')); lpend.append((r_, self.nst)); self.stnames.append(f'n{H}'); self.nst += 1
            if o.get('g2p') and H in (0, o['g2p']):
                a(f's_cmp_lt_u32 s{sWAVE}, 4\ns_cbranch_scc1 L_G2P{H}\ns_setprio {1 if H == 0 else 0}\nL_G2P{H}:')
            vm.wait(('A', H))
            for ct in range(4):
                m = 4 * H + ct
                pw = o['pairw2']
                if ct % pw == 0: lg.wait(('B', m + pw - 1))
                a(f'v_mfma_f32_16x16x32_bf16 {vr(acc + 4*ct, 4)}, {vr(Br + 4*(m % 8), 4)}, {vr(ARS[H % AD2], 4)}, ' + ('0' if H == 0 else vr(acc + 4*ct, 4)))
                if m + L2 < 128: b2_read(m + L2)
            if H + AD2 < 32: a2_load(H + AD2)
            if H + AD2 == 31:
                self.ld_up(); self.ffn_reg(fw[3])
        self.stamp('gemm2')
        if o.get('dbg'):
            S(T1, '(wg*8 + w)*32768 + 0x4000000'); va(vT, [(0, 6, 4)])
            for k, r in enumerate(list(range(40, 104)) + [24, 25, 26, 27]):
                if k % 16 == 0 and k: S(T1, 'T1 + 4096')
                self.bs(r, 1, vT, rWS, T1, (k % 16) * 256, '', 'dbg')
                if k % 16 == 15: vm.wait('dbg')

    def tail(self):
        a, vm, lg, o, S, va = self.a, self.vm, self.lg, self.o, self.S, self.vaa
        R, fw = self.R, o['fwin']
        E2 = range(0, 16, 2)
        acc, gaf, cbf, sbf, gbf, xf, fr, up = [R[k] for k in 'acc gaf cbf sbf gbf xf fr up'.split()]
        FR, held, fq = self.FL, self.held, self.fq
        g16, hh, h2p, op, sd4, kk = AR + 40, AR + 56, AR + 72, AR + 80, AR + 88, AR + 92
        vSt, vRow, mm, rs, key, vTa = RING, RING + 1, RING + 2, RING + 3, RING + 4, RING + 5
        x1f = xf
        swp = lambda b: [a(f'v_permlane32_swap_b32 v{b+p}, v{b+q}') for p, q in ((0, 2), (1, 3), (4, 6), (5, 7))]
        S(T1, '((rt*8 + w)*16 + cb)*256 + ST')
        va(vSt, [(0, 4, 16), (4, 2, 4)])
        self.nopk = bool(o.get('g2p'))
        for h in range(2):
            rg = range(8 * h, 8 * h + 8)
            self.round_list([acc + i for i in rg])
            for i in range(8 * h, 8 * h + 8, 2): self.pk('mul', acc + i, acc + i, gaf + i)
            self.round_list([acc + i for i in rg])
            for i in range(8 * h, 8 * h + 8, 2): self.pk('add', acc + i, acc + i, xf + i)
            for i in range(4 * h, 4 * h + 4): a(f'v_cvt_pk_bf16_f32 v{XR+i}, v{acc+2*i}, v{acc+2*i+1}')
            for i in range(4 * h, 4 * h + 4): a(f'v_dot2_f32_bf16 v{vT+(i&1)}, v{XR+i}, v{XR+i}, ' + ('0' if i < 2 else f'v{vT+(i&1)}'))
            a(f'v_mfma_f32_16x16x32_bf16 {vr(sd4, 4)}, {vr(fr + 4*h, 4)}, {vr(XR + 4*h, 4)}, ' + ('0' if h == 0 else vr(sd4, 4)))
        self.nopk = False
        va(vT + 3, [(0, 3, 8 * 4096), (3, 1, 4096)])
        a(f'v_add_f32 v{vT}, v{vT}, v{vT+1}')
        for sw in ('v_permlane32_swap_b32', 'v_permlane16_swap_b32'):
            a(f'v_mov_b32 v{vT+1}, v{vT}')
            a(f'{sw} v{vT}, v{vT+1}')
            a(f'v_add_f32 v{vT}, v{vT}, v{vT+1}')
        a(f'v_mov_b32_dpp v{sd4}, v{vT} quad_perm:[0,1,2,3] row_mask:0x8 bank_mask:0xf')
        self.bs(sd4, 1, vSt, rWS, T1, 0, 'sc1')
        S(T3, '((rt >> 2)*2 + (rt & 3)*64)*4096 + (cb >> 1)*64 + (cb & 1)*4 + INB + 1536')
        a('s_barrier')
        self.push(vT + 3, T3, 16, vT + 2, 'L_PE')
        self.stamp('x1pub')
        self.ffn_dma(fw[4])
        S(T2, 'w*4096')
        a(f'v_add_u32 v{vT}, s{T2}, v{vL16}')
        a(f'v_add_u32 v{vT+3}, {L_DN}, v{vT}')
        vm.wait('up')
        self.tagcheck([up + 1], vT + 2)
        a('s_cbranch_vccz L_UPOK')
        q0 = list(vm.q)
        self.poll(self.ld_up, [up + 1], vT + 2)
        vm.q = q0
        a('L_UPOK:')
        S(T1, '(rt*8 + w)*4096 + ST')
        def e_work():
            for ctl in ('quad_perm:[1,0,3,2]', 'quad_perm:[2,3,0,1]', 'row_half_mirror', 'row_mirror'): self.dpp('v_add_f32', up, up, up, ctl)
            for i in range(8): self.unpack(x1f + 2 * i, x1f + 2 * i + 1, XR + i)
            S(T2, 'w*512 + rt*2')
            va(vRow, [(0, 4, 32)], T2)
            a(f'v_xor_b32 v{vT+1}, 0x4000, v{vT}\nv_xor_b32 v{vT+4}, 0x4000, v{vT+3}')
            vm.wait('ffr')
            for m, i, r in self.sym:
                a(f'ds_write_b128 v{vT if m < 2 else vT + 3}, {vr(r, 4)} offset:{self.f_lds(m, i) - (L_GU if m < 2 else L_DN)}')
            for g in range(2):
                if not held[g]: continue
                a(f's_cmp_{"ge" if g == 0 else "lt"}_u32 s{sWAVE}, 4\ns_cbranch_scc1 L_FW{g}')
                for n, (m, i) in enumerate(held[g]):
                    for far in range(2):
                        a(f'ds_write_b128 v{(vT if m < 2 else vT + 3) + far}, {vr(FR + 8*n + 4*far, 4)} offset:{self.f_lds(m, i) - (L_GU if m < 2 else L_DN)}')
                a(f'L_FW{g}:')
            self.stamp('ew')
        self.inbox(3, 2, work=e_work)
        a('s_barrier')
        self.stamp('x1ok')
        def try_p(loads, check, between):
            loads()
            vm.q[-1] = tg = ('try', a.label('T'))
            between()
            vm.wait(tg)
            OK, L = a.label('POK'), a.label('PRE')
            check()
            a(f's_cbranch_vccz {OK}')
            q = list(vm.q)
            a(f'{L}:')
            loads(); vm.wait_all()
            check()
            a(f"""s_cbranch_vccz {OK}
            s_add_u32 s{sSPIN}, s{sSPIN}, 1
            s_cmp_lt_u32 s{sSPIN}, {SPIN_LIMIT}
            s_cbranch_scc1 {L}""")
            vm.q = q
            a(f'{OK}:')
        def e_between():
            if o['gbar']: a('s_barrier')
            self.ffn_dma(fw[5])
            for dst, q in ((sbf, 14), (gbf, 15)):
                for i in range(16): a(f'v_mov_b32_dpp v{dst+i}, v{RING+q} row_newbcast:{i} row_mask:0xf bank_mask:0xf')
            S(T2, 'w*8 + L_K1'); a(f'v_mov_b32 v{vT}, s{T2}')
            va(vT + 1, [(0, 3, 8)], None, L_K1)
            va(vT + 2, [(0, 2, 64 * 4096), (2, 2, 2 * 4096)])
            S(T3, '((cb >> 3) + (cb & 7)*8)*4096 + (rt >> 1)*64 + (rt & 1)*16 + INB + 2560')
        s_, d_, q_, t_ = g16, g16 + 1, g16 + 3, g16 + 4
        def e_check():
            for h in (0, 2):
                self.pk('add', g16 + h, g16 + h, g16 + 4 + h); self.pk('add', g16 + 8 + h, g16 + 8 + h, g16 + 12 + h)
            for h in (0, 2): self.pk('add', g16 + h, g16 + h, g16 + 8 + h)
            a(f'''v_add_f32 v{d_}, v{d_}, v{g16+2}
            v_add_f32 v{t_+1}, v{s_}, v{q_}
            v_cmp_u_f32 vcc, v{d_}, v{t_+1}''')
        try_p(lambda: [self.bl(g16 + 4 * i, 4, vL16, rWS, T1, i * 1024, 'sc1') for i in range(4)], e_check, e_between)
        self.stamp('x1ld')
        a(f"""
        v_mov_b32 v{t_}, v{q_}
        v_permlane32_swap_b32 v{q_}, v{t_}
        v_permlane32_swap_b32 v{s_}, v{d_}
        v_add_f32 v{q_}, v{q_}, v{t_}
        v_add_f32 v{s_}, v{s_}, v{d_}
        v_permlane16_swap_b32 v{s_}, v{q_}
        v_add_f32 v{d_}, v{s_}, v{q_}
        v_add_f32 v{q_}, v{s_}, v{q_}
        v_permlane16_swap_b32 v{d_}, v{q_}
        v_mov_b32 v{s_}, v{d_}
        v_mul_f32 v{q_}, 0x3a800000, v{q_}
        v_permlane32_swap_b32 v{s_}, v{d_}
        v_mul_f32 v{s_}, 0x3a800000, v{s_}
        v_fma_f32 v{rs}, -v{s_}, v{s_}, v{q_}
        v_cvt_pk_bf16_f32 v{mm}, 0, v{s_}
        v_max_f32 v{rs}, 0, v{rs}""")
        self.round1(rs)
        a(f'v_fma_f32 v{d_}, -v{mm}, v{up}, v{d_}')
        a(f'v_add_f32 v{rs}, 0x3727c5ac, v{rs}')
        self.round1(rs)
        a(f'v_sqrt_f32 v{rs}, v{rs}')
        self.round1(rs)
        a(f"""v_rcp_f32 v{rs}, v{rs}
        v_mul_f32 v{key}, v{d_}, v{rs}
        v_ashrrev_i32 v{t_}, 31, v{key}
        v_or_b32 v{t_}, 0x80000000, v{t_}
        v_xor_b32 v{key}, v{key}, v{t_}
        s_mov_b32 s{T2}, 0xfffff000
        v_and_or_b32 v{key}, v{key}, s{T2}, v{vRow}""")
        hi, lo = kk, kk + 1
        def merge2(ctl):
            self.dpp('v_min_u32', t_, hi, hi, ctl); self.dpp('v_max_u32', lo, lo, lo, ctl); self.dpp('v_max_u32', hi, hi, hi, ctl)
            a(f'v_max_u32 v{lo}, v{lo}, v{t_}')
        self.dpp('v_max_u32', hi, key, key, 'quad_perm:[1,0,3,2]'); self.dpp('v_min_u32', lo, key, key, 'quad_perm:[1,0,3,2]')
        for ctl in ('quad_perm:[2,3,0,1]', 'row_half_mirror', 'row_mirror'): merge2(ctl)
        self.dw('ds_write_b64', vT, hi, 2)
        self.stamp('ln2')
        self.barrier()
        self.dr('ds_read_b64', hi, 2, vT + 1)
        for i in E2: self.pk('add', hh + i, x1f + i, mm, bc=(1,), neg=(1,))
        lg.wait_all()
        for ctl in ('quad_perm:[1,0,3,2]', 'quad_perm:[2,3,0,1]', 'row_half_mirror'): merge2(ctl)
        a(f"""v_cmp_eq_u32 {sr(sC2, 2)}, v{key}, v{lo}
        v_cmp_eq_u32 vcc, v{key}, v{hi}
        v_or_b32 v{kk+2}, 1, v{lo}
        v_mov_b32 v{kk+1}, s{sTAG}
        v_mov_b32 v{kk+3}, s{sTAG}
        s_or_b64 {sr(sCM, 2)}, vcc, {sr(sC2, 2)}
        s_cmp_lg_u32 s{sWAVE}, 0
        s_cbranch_scc1 L_NOF
        s_mov_b64 exec, 0xffff""")
        self.bs(kk, 4, vT + 2, rWS, T3, 0, 'sc1', count=False)
        a(f"""s_mov_b64 exec, -1
        L_NOF:""")
        self.stamp('Fpub')
        vRt = RING + 14
        def out_calc(part):
            u = g16 + 10
            if part == o['ocut'][0]:
                for i in range(8): self.unpack(hh + 2 * i, hh + 2 * i + 1, h2p + i)
                for i in E2: self.pk('mul', hh + i, hh + i, gbf + i)
                self.round_list([hh + i for i in range(16)])
            if part == o['ocut'][1]:
                S(T0, 'w*2048 + L_TR')
                va(u, [(4, 2, 16)]); va(u + 1, [(0, 3, 16)]); a(f'v_xor_b32 v{u}, v{u}, v{u+1}')
                va(u + 2, [(0, 4, 128)], T0); a(f'v_add_u32 v{u}, v{u}, v{u+2}'); a(f'v_xor_b32 v{u+2}, 64, v{u}')
                va(u + 3, [(3, 3, 16)]); a(f'v_xor_b32 v{u+1}, v{u+3}, v{u+1}'); va(u + 3, [(3, 3, 128)], T0); a(f'v_add_u32 v{u+1}, v{u+1}, v{u+3}')
                S(T0, '2047 - rt*128 - w*16'); va(vRt + 1, [(3, 3, 1)])
                a(f'v_sub_u32 v{vRt}, s{T0}, v{vRt+1}\nv_subrev_u32 v{vRt+1}, 8, v{vRt}')
                va(vTa, [(3, 3, 2048), (0, 3, 16)])
                S(T3, '(rt*8 + w)*32768 + cb*128'); S(T2, 'T3 + 16384')
            if part == o['ocut'][2]:
                for i in E2: self.pk('add', hh + i, hh + i, x1f + i)
                for i in range(8): a(f'v_cvt_pk_bf16_f32 v{op+i}, v{hh+2*i}, v{hh+2*i+1}')
                swp(op)
                a(f'ds_write_b128 v{u}, {vr(op, 4)}\nds_write_b128 v{u+2}, {vr(op + 4, 4)}')
                a(f'ds_read_b128 {vr(op, 4)}, v{u+1}\nds_read_b128 {vr(op + 4, 4)}, v{u+1} offset:1024')
        def f_work():
            self.round_list([hh + i for i in range(16)])
            for i in E2: self.pk('mul', hh + i, hh + i, rs, bc=(1,))
            self.round_list([hh + i for i in range(16)])
            for i in E2: self.pk('mul', hh + i, hh + i, cbf + i)
            self.round_list([hh + i for i in range(16)])
            for i in E2: self.pk('add', hh + i, hh + i, sbf + i)
            for i in range(8): a(f'v_cvt_pk_bf16_f32 v{h2p+i}, v{hh+2*i}, v{hh+2*i+1}')
            a(f"""s_cmp_eq_u64 {sr(sCM, 2)}, 0
            s_cbranch_scc1 L_NOCAND""")
            for h in range(2): a(f'v_mfma_f32_16x16x32_bf16 {vr(sd4, 4)}, {vr(fr + 4*h, 4)}, {vr(h2p + 4*h, 4)}, ' + ('0' if h == 0 else vr(sd4, 4)))
            for i in range(8): a(f'v_mov_b32 v{op+i}, v{h2p+i}')
            S(T2, 'rt*16384 + cb*512 + XS')
            va(vT + 3, [(4, 2, 16)])
            a(f'v_add_u32 v{vT+4}, 8192, v{vT+3}')
            swp(op); swp(XR)
            a(f'v_cndmask_b32 v{vT+3}, v{vT+3}, v{vT+4}, {sr(sC2, 2)}')
            a(f's_mov_b64 exec, {sr(sCM, 2)}')
            for h in range(2): self.bs(op + 4 * h, 4, vT + 3, rWS, T2, 64 * h, 'sc1', count=False)
            a(f's_mov_b32 exec_lo, 0\ns_and_b32 exec_hi, s{sCM+1}, 0xffff0000')
            self.bs(sd4, 1, vT + 3, rWS, T2, 256 - 48, 'sc1', count=False)
            a(f's_mov_b64 exec, {sr(sCM, 2)}')
            for h in range(2): self.bs(XR + 4 * h, 4, vT + 3, rWS, T2, 128 + 64 * h, 'sc1', count=False)
            a('s_mov_b64 exec, -1\nL_NOCAND:')
            self.stamp('cand')
            self.ffn_dma(fw[6])
            out_calc(0)
        S(T0, 'w*16 + L_K2'); a(f'v_mov_b32 v{vT}, s{T0}')
        va(vT + 1, [(0, 3, 16)], None, L_K2)
        self.inbox(5, 8, (1, 3, 5, 7), f_work)
        P = sPL
        a(f"""s_min_u32 s{P+1}, s{P}, s{P+4}
        s_min_u32 s{P+3}, s{P+2}, s{P+4}
        s_min_u32 s{P+5}, s{P}, s{P+6}
        s_max_u32 s{P}, s{P}, s{P+4}
        s_max_u32 s{P+2}, s{P+2}, s{P+6}
        s_max_u32 s{P+3}, s{P+3}, s{P+5}
        s_max_u32 s{P+1}, s{P+1}, s{P+2}
        v_mov_b32 v{kk}, s{P}
        v_mov_b32 v{kk+2}, s{P+3}
        v_mov_b32 v{kk+1}, s{P+1}""")
        self.dw('ds_write_b128', vT, kk, 4)
        self.stamp('F2p')
        out_calc(1)
        vGr, vDr, vXs, ffn, fdn = RING + 6, RING + 7, RING + 8, FR, AQ
        S(T0, '(w >> 2)*32768 + (w & 3)*32 + L_GU')
        va(vGr, [(4, 2, 8192), (2, 2, 128), (3, 2, 32), (0, 2, 8)]); a(f'v_xor_b32 v{vGr}, s{T0}, v{vGr}')
        S(T0, 'kq*2048 + XS'); va(vXs, [(0, 3, 16), (4, 2, 512)], T0)
        va(vT + 6, [(0, 4, 512)], None, XS + 256)
        gu_late = [p for p in fq if p[0] < 2]; assert not gu_late
        dn_late = len(fq) > 0
        def dn_read(s, tag=None):
            self.tr(fdn + 4 * s, vDr, s * 8192, tag); self.tr(fdn + 4 * s + 2, vDr, s * 8192 + 1024, tag)
        vm.wait('ffn')
        self.barrier()
        self.stamp('F2')
        self.r128(kk, vT + 1, 0, 'k2')
        a(f'v_and_b32 v{vT+4}, 8, v{vL}')
        a(f'v_cmp_eq_u32 {sr(sCMP, 2)}, 0, v{vT+4}')
        a(f'v_cmp_gt_u32 {sr(sPL, 2)}, 16, v{vL}')
        a(f'v_cmp_gt_u32 {sr(sPL + 2, 2)}, 32, v{vL}')
        lg.wait('k2')
        t = g16
        for ctl in ('quad_perm:[1,0,3,2]', 'quad_perm:[2,3,0,1]', 'row_half_mirror'):
            self.dpp('v_min_u32', t, kk, kk, ctl); self.dpp('v_min_u32', t + 1, kk + 1, kk, ctl); self.dpp('v_min_u32', t + 2, kk, kk + 1, ctl)
            self.dpp('v_max_u32', kk + 2, kk + 2, kk + 2, ctl); self.dpp('v_max_u32', kk + 1, kk + 1, kk + 1, ctl); self.dpp('v_max_u32', kk, kk, kk, ctl)
            a(f'v_max3_u32 v{kk+2}, v{kk+2}, v{t+1}, v{t+2}')
            a(f'v_max_u32 v{kk+1}, v{kk+1}, v{t}')
        xa, xb, rp, kr = g16, g16 + 4, g16 + 8, g16 + 9
        a(f"""v_cndmask_b32 v{t}, v{kk+1}, v{kk}, {sr(sCMP, 2)}
        v_cndmask_b32 v{kr}, v{kk+2}, v{kk+1}, {sr(sPL + 2, 2)}
        v_and_b32 v{t+1}, 31, v{kk+2}
        v_and_b32 v{t}, 31, v{t}
        v_cndmask_b32 v{kr}, v{kr}, v{kk}, {sr(sPL, 2)}
        v_lshl_add_u32 v{vT}, v{t}, 13, v{vXs}
        v_lshl_add_u32 v{vT+1}, v{t+1}, 13, v{vXs}
        v_and_b32 v{t+2}, 31, v{kr}
        v_lshl_add_u32 v{vT+2}, v{t+2}, 13, v{vT+6}""")
        def sel_work():
            self.stamp('sel')
            if o['gbar']: a('s_barrier')
            self.ffn_dma(len(fq))
            for k in range(3): a(f'v_readfirstlane_b32 s{sY0+[0, 3, 4][k]}, v{kk+k}')
            for s in range(8):
                self.tr(ffn + 4 * s, vGr, s * 1024); self.tr(ffn + 4 * s + 2, vGr, s * 1024 + 512)
            for k in range(3): S(T4 + k, '(((y >> 1) & 15)*128 + ((y >> 5) & 127)) ^ 2047'.replace('y', ('y0', 'y1', 'y2')[k]))
            out_calc(2)
            lg.wait_all()
            if o['outat'] == 0:
                for h in range(2):
                    for k in range(3): a(f'v_cmp_ne_u32 {sr(sPL + 2*k, 2)}, s{T4+k}, v{vRt+h}')
                    a(f's_and_b64 vcc, {sr(sPL, 2)}, {sr(sPL + 2, 2)}\ns_and_b64 exec, vcc, {sr(sPL + 4, 2)}')
                    self.bs(op + 4 * h, 4, vTa, rOUT, (T3, T2)[h], 0, o.get('outmod', 'sc1'))
                    a('s_mov_b64 exec, -1')
            S(T0, 'w*64')
            va(vDr, [(2, 1, 512), (3, 1, 4096), (5, 1, 2048), (2, 2, 64), (4, 1, 32), (0, 2, 8)])
            a(f'v_xor_b32 v{vDr}, s{T0}, v{vDr}'); a(f'v_add_u32 v{vDr}, {L_DN}, v{vDr}')
            va(vT + 4, [(0, 4, 16), (5, 1, 8)])
            S(T1, 'fs*8192 + HGR'); S(T7, '(kq*8 + w)*256 + T1')
            a(f'v_bfe_u32 v{vT+3}, v{kr}, 1, 4\nv_bfe_u32 v{kr}, v{kr}, 5, 7\nv_lshl_or_b32 v{kr}, v{vT+3}, 7, v{kr}\nv_xor_b32 v{kr}, 0x7ff, v{kr}')
        try_p(lambda: [self.bl(xa, 4, vT, rWS, '0', 0, 'sc1'), self.bl(xb, 4, vT + 1, rWS, '0', 0, 'sc1'), self.bl(rp, 1, vT + 2, rWS, '0', 0, 'sc1')],
              lambda: a(f'v_max3_u32 v{vT+3}, v{xa}, v{xb}, v{rp}\nv_cmp_eq_u32 vcc, -1, v{vT+3}'), sel_work)
        self.stamp('xsel')
        for ctl in ('quad_perm:[1,0,3,2]', 'quad_perm:[2,3,0,1]', 'row_half_mirror', 'row_mirror'): self.dpp('v_add_f32', rp, rp, rp, ctl)
        a(f"""v_cvt_pk_bf16_f32 v{rp}, 0, v{rp}
        v_ashrrev_i32 v{vT+3}, 31, v{rp}
        v_or_b32 v{vT+3}, 0x80000000, v{vT+3}
        v_xor_b32 v{rp}, v{rp}, v{vT+3}
        v_lshrrev_b32 v{rp}, 16, v{rp}
        v_lshl_or_b32 v{rp}, v{rp}, 11, v{kr}
        v_readlane_b32 s{P}, v{rp}, 0
        v_readlane_b32 s{P+1}, v{rp}, 16
        v_readlane_b32 s{P+2}, v{rp}, 32
        s_not_b64 {sr(P + 4, 2)}, {sr(sCMP, 2)}
        s_cmp_lt_u32 s{P}, s{P+1}
        s_cselect_b64 {sr(P + 4, 2)}, {sr(sCMP, 2)}, {sr(P + 4, 2)}
        s_cselect_b32 s{P+3}, s{P}, s{P+1}
        s_cmp_gt_u32 s{P+2}, s{P+3}
        s_cselect_b64 vcc, {sr(P + 4, 2)}, 0""")
        for i in range(4): a(f'v_cndmask_b32 v{xa+i}, v{xa+i}, v{xb+i}, vcc')
        a(f"""s_bitcmp1_b32 vcc_lo, 0
        s_cselect_b32 s{P}, s{P+2}, s{P}
        s_cselect_b32 s{T6}, s{T4}, s{T6}
        s_cselect_b32 s{T4}, s{sY2}, s{sY0}
        s_bitcmp1_b32 vcc_lo, 8
        s_cselect_b32 s{P+1}, s{P+2}, s{P+1}
        s_cselect_b32 s{T6}, s{T5}, s{T6}
        s_cselect_b32 s{T5}, s{sY2}, s{sY1}""")
        gd = [gaf + 4 * i for i in range(4)] + [cbf + 4 * i for i in range(4)]
        lg.wait_all()
        for s in range(8):
            a(f'v_mfma_f32_16x16x32_bf16 {vr(gd[s], 4)}, {vr(xa, 4)}, {vr(ffn + 4*s, 4)}, 0')
        p0, p1 = xb, xb + 2
        for p, b in ((p0, 0), (p1, 4)):
            a(f'v_add_f32 v{p}, v{gd[b]}, v{gd[b+1]+1}')
            a(f'v_add_f32 v{p+1}, v{gd[b+2]+2}, v{gd[b+3]+3}')
        a(f"""v_add_f32 v{p0}, v{p0}, v{p0+1}
        v_add_f32 v{p1}, v{p1}, v{p1+1}
        v_mov_b32 v{p0+1}, s{sTAG}
        v_permlane16_swap_b32 v{p1}, v{p1+1}
        s_cmp_ge_u32 s{sJ}, 28
        s_cbranch_scc1 L_NOHP
        v_add_f32 v{p0}, v{p0}, v{p1+1}
        s_mov_b32 exec_lo, 0xffff
        s_mov_b32 exec_hi, 0xffff""")
        self.bs(p0, 2, vT + 4, rWS, T7, 0, 'sc1', count=False)
        a("""s_mov_b64 exec, -1
        L_NOHP:""")
        self.stamp('Hpub')
        if not dn_late:
            for s in range(4): dn_read(s)
        def out_store():
            for h in range(2):
                a(f"""v_cmp_ne_u32 vcc, s{sK1}, v{vRt+h}
                v_cmp_ne_u32 {sr(sCMP, 2)}, s{sK2}, v{vRt+h}
                s_and_b64 exec, vcc, {sr(sCMP, 2)}""")
                self.bs(op + 4 * h, 4, vTa, rOUT, (sROW0, sROW1)[h], 0, o.get('outmod', 'sc1'))
                a('s_mov_b64 exec, -1')
        if o['outat']:
            a(f's_and_b32 s{sK1}, s{P}, 2047\ns_and_b32 s{sK2}, s{P+1}, 2047\ns_mov_b32 s{sROW0}, s{T3}\ns_mov_b32 s{sROW1}, s{T2}')
            out_calc(3)
            lg.wait_all()
        if o['outat'] == 1:
            a('s_barrier')
            out_store()
        if o['outat'] == 0:
            for h in range(2):
                a(f"""v_cmp_eq_u32 vcc, s{T6}, v{vRt+h}
                s_and_b64 exec, vcc, -1
                s_cbranch_execz L_NOLO{h}""")
                self.bs(op + 4 * h, 4, vTa, rOUT, (T3, T2)[h], 0, o.get('outmod', 'sc1'), count=False)
                a(f'L_NOLO{h}:\ns_mov_b64 exec, -1')
        self.stamp('outst')
        fz, x1, st = g16 + 12, AV, kk
        a(f"""s_cmp_lg_u32 s{sRow}, 7
        s_cbranch_scc1 L_NONON
        v_mov_b32 v{vT+2}, s{sTAG}
        v_mov_b32 v{vT+3}, 0
        s_mov_b64 exec, 1""")
        self.bs(vT + 2, 1, vT + 3, rWS, '0', 0, 'sc1', count=False)
        a(f"""s_mov_b64 exec, -1
        L_NONON:
        s_cmp_ge_u32 s{sJ}, 28
        s_cbranch_scc1 {'L_FIN2' if o['outat'] == 2 else 'L_FIN'}
        s_cmp_lg_u32 s{sWAVE}, 7
        s_cbranch_scc1 L_NOFZ""")
        a(f"""s_bitcmp1_b32 s{sJ}, 3
        s_cselect_b32 s{T2}, s{P+1}, s{P}
        s_cselect_b32 s{T4}, s{T5}, s{T4}
        s_andn2_b32 s{T5}, 2047, s{T2}""")
        S(T6, 'cb*4 + (x >> 1)')
        S(T7, '((T6 >> 1)*4 + (j >> 3)*2 + (T6 & 1))*(56*128) + GGR')
        S(sU, 'T5*2048 + T6*32')
        va(vT + 6, [(0, 3, 4)])
        S(T0, '(x >> 1)*64 + L_GB'); va(vT + 1, [(0, 3, 8)], T0)
        a(f'ds_read_b64 {vr(fz + 2, 2)}, v{vT+1}')
        S(sY0, '(T4 & 31)*8192 + cb*512 + (x >> 1)*32 + XS')
        a(f"""s_lshr_b32 s{T0}, s{T2}, 11
        s_lshl_b32 s{T0}, s{T0}, 16
        s_ashr_i32 s{T2}, s{T0}, 31
        s_andn2_b32 s{T2}, 0x7fff0000, s{T2}
        s_or_b32 s{T2}, s{T2}, 0x80000000
        s_xor_b32 s{T0}, s{T0}, s{T2}
        v_mov_b32 v{fz}, s{T0}
        v_mul_f32 v{fz}, s{sL2E}, v{fz}
        v_exp_f32 v{fz}, -v{fz}
        v_add_f32 v{fz}, 1.0, v{fz}
        v_rcp_f32 v{fz}, v{fz}""")
        self.round1(fz)
        a('L_NOFZ:')
        a(f"""s_cmp_ge_u32 s{sWAVE}, 4
        s_cbranch_scc1 L_NOH""")
        S(T0, 'w*256 + T1')
        va(vT, [(4, 2, 2048), (0, 4, 16)])
        S(T2, 'w*32 + L_ACT'); va(vT + 1, [(5, 1, 128), (2, 1, 16), (1, 1, 8), (3, 1, 4), (0, 1, 2)], T2)
        q0 = list(vm.q)
        g, u = x1, x1 + 4
        if not o['Hdir']:
            self.spoll([(q, 1, T0, q * 2048 + 1024 + 252) for q in range(4)], range(4))
            self.stamp('Hpre')
        self.poll(lambda: [self.bl(x1 + 4 * m, 4, vT, rWS, T0, m * 1024, 'sc1') for m in range(2)], [g + 1, g + 3, u + 1, u + 3], vT + 2)
        a(f"""v_permlane32_swap_b32 v{g}, v{g+2}
        v_permlane32_swap_b32 v{u}, v{u+2}
        v_add_f32 v{g}, v{g}, v{g+2}
        v_add_f32 v{u}, v{u}, v{u+2}
        v_mov_b32 v{g+2}, v{g}
        v_mov_b32 v{u+2}, v{u}
        v_permlane16_swap_b32 v{g}, v{g+2}
        v_permlane16_swap_b32 v{u}, v{u+2}
        v_add_f32 v{g}, v{g}, v{g+2}
        v_add_f32 v{u}, v{u}, v{u+2}""")
        self.round2(g, u)
        self.silu(g, vT + 2)
        a(f"""v_mul_f32 v{g}, v{g}, v{u}
        v_cvt_pk_bf16_f32 v{g}, v{g}, v{g}
        ds_write_b16 v{vT+1}, v{g}
        L_NOH:""")
        vm.q = q0
        va(vT, [(2, 1, 128), (5, 1, 16)], None, L_ACT)
        va(vT + 1, [(4, 2, 56 * 128), (0, 4, 8)])
        S(T0, '(kq*8 + w)*(4*56*128) + fs*128 + GGR')
        va(vT + 2, [(0, 1, 2 * 4096), (1, 1, 64 * 4096)])
        S(T1, '((w & 1)*4 + (kq >> 1) + ((kq & 1)*4 + (w >> 1))*8)*4096 + x*64 + (j >> 2)*4 + INB + 3072')
        vm.wait('ffn')
        self.barrier()
        self.stamp('Hok')
        for s in range(4):
            self.r128(x1 + 4 * s, vT, s * 32, ('ac', s))
            if dn_late: dn_read(s, ('ac', s))
        for s in range(4):
            lg.wait(('ac', s))
            a(f'v_mfma_f32_32x32x16_bf16 {vr(hh, 16)}, {vr(x1 + 4*s, 4)}, {vr(fdn + 4*s, 4)}, ' + ('0' if s == 0 else vr(hh, 16)))
        a(f'v_mov_b32 v{hh+1}, s{sTAG}')
        self.bs(hh, 2, vT + 1, rWS, T0, 0, 'sc1')
        if not o['Gdir']:
            a('s_mov_b64 exec, 15')
            self.bs(hh + 1, 1, vT + 2, rWS, T1, 0, 'sc1')
            a('s_mov_b64 exec, -1')
        self.stamp('Gpub')
        if o['outat'] == 2:
            a('s_barrier\nL_FIN2:')
            out_store()
        a(f"""s_cmp_ge_u32 s{sJ}, 16
        s_cbranch_scc1 L_FIN""")
        if not o['Gdir']:
            self.inbox(6, 8, range(7))
            self.stamp('Gpre')
            a('s_barrier')
        a(f"""s_cmp_lg_u32 s{sWAVE}, 7
        s_cbranch_scc1 L_FIN""")
        S(T0, 'T7 + 4096')
        gg = [x1 + 4 * i for i in range(7)]
        def g_ld():
            [self.bl(gg[n], 4, vL16, rWS, (T7, T0)[n >> 2], (n & 3) * 1024, 'sc1') for n in range(7)]
            self.bl(st, 1, vT + 6, rWS, sY0, 0, 'sc1'); self.bl(st + 1, 1, vT + 6, rWS, sY0, 128, 'sc1')
        def g_post():
            a(f'''v_max_u32 v{st+2}, v{st}, v{st+1}
            v_cmp_ne_u32 vcc, -1, v{st+2}
            v_cndmask_b32 v{st+2}, v{vT+2}, v{vT+1}, vcc''')
        a(f'v_mov_b32 v{vT+1}, s{sTAG}\nv_not_b32 v{vT+2}, v{vT+1}')
        self.poll(g_ld, [gg[n] + 1 + 2 * e for n in range(7) for e in range(2)] + [st + 2], vT, g_post)
        self.stamp('Gok')
        for n in range(1, 7):
            for e in (0, 2): a(f'v_add_f32 v{gg[0]+e}, v{gg[0]+e}, v{gg[n]+e}')
        y0, y1 = gg[0], gg[0] + 1
        a(f'v_mov_b32 v{y1}, v{gg[0]+2}')
        for y in (y0, y1): self.dpp('v_add_f32', y, y, y, 'row_ror:8')
        for sw in ('v_permlane16_swap_b32', 'v_permlane32_swap_b32'):
            for y in (y0, y1): a(f'v_mov_b32 v{y+2}, v{y}')
            for y in (y0, y1): a(f'{sw} v{y}, v{y+2}')
            self.pk('add', y0, y0, y0 + 2)
        self.round2(y0, y1)
        self.pk('mul', y0, y0, fz, bc=(1,))
        self.unpack(vT, vT + 1, st)
        self.round2(y0, y1)
        self.pk('add', y0, y0, vT)
        self.round2(y0, y1)
        self.pk('mul', y0, y0, fz + 2)
        self.unpack(vT, vT + 1, st + 1)
        self.round2(y0, y1)
        self.pk('add', y0, y0, vT)
        a(f'v_cvt_pk_bf16_f32 v{y0}, v{y0}, v{y1}')
        a('s_mov_b64 exec, 0xff')
        self.bs(y0, 1, vT + 6, rOUT, sU, 0, o.get('finmod', ''))
        a('s_mov_b64 exec, -1')
        a('L_FIN:')

    def finish(self):
        a, S, o = self.a, self.S, self.o
        if o.get('exfil'):
            a('s_waitcnt vmcnt(0) lgkmcnt(0)')
            self.stamp('fin')
            a(f'''v_readlane_b32 s{T0}, v255, 0
            v_readlane_b32 s{T1}, v255, 1
            v_readlane_b32 s{T2}, v255, 2
            s_sub_u32 s{T2}, s{T2}, s{T1}
            s_max_i32 s{T2}, s{T2}, 0
            s_min_u32 s{T2}, s{T2}, 10000
            s_mul_i32 s{T2}, s{T2}, 10
            s_add_u32 s{T2}, s{T2}, 6000
            L_XPAD:
            s_memrealtime {sr(sTM, 2)}
            s_waitcnt lgkmcnt(0)
            s_sub_u32 s{T1}, s{sTM}, s{T0}
            s_cmp_lt_u32 s{T1}, s{T2}
            s_cbranch_scc1 L_XPAD''')
        if self.o.get('dbg2'):
            S(T1, '(wg*8 + w)*32768 + 0x4000000'); self.vaa(vT, [(0, 6, 4)])
            for k, r in enumerate(list(range(72, 104)) + list(range(120, 136)) + list(range(176, 184))):
                if k % 16 == 0 and k: S(T1, 'T1 + 4096')
                self.bs(r, 1, vT, rWS, T1, (k % 16) * 256, '', 'dbg')
                if k % 16 == 15: self.vm.wait('dbg')
        if self.prof:
            a('s_waitcnt vmcnt(0) lgkmcnt(0)')
            self.stamp('end')
            a(f's_memrealtime {sr(sTM, 2)}')
            a('s_waitcnt lgkmcnt(0)')
            a(f'v_writelane_b32 v255, s{sTM}, 61')
            S(T0, '(wg*8 + w)*256 + STAMPS')
            a(f'v_writelane_b32 v255, s{sSPIN}, 62')
            a(f'v_lshlrev_b32 v{vT+1}, 2, v{vL}')
            a(f'buffer_store_dword v255, v{vT+1}, {sr(rWS, 4)}, s{T0} offen')
            S(T0, 'T0 + 0x100000')
            a(f'buffer_store_dword v254, v{vT+1}, {sr(rWS, 4)}, s{T0} offen')
        a('L_END:')
        a('s_endpgm')

    def pads(self):
        import subprocess, re
        a = self.a
        src = '.amdgcn_target "amdgcn-amd-amdhsa--gfx950"\n.text\n' + a.text().replace('CODE_KB', '20480')
        out = subprocess.run(['llvm-mc', '-triple=amdgcn-amd-amdhsa', '-mcpu=gfx950', '-show-encoding'], input=src, capture_output=True, text=True, check=True).stdout
        sizes = [len(m.split(',')) for m in re.findall(r'; encoding: \[([^\]]*)\]', out)]
        tour = next(i for i, x in enumerate(a.items) if x == ('raw', ';TOUR'))
        NT = 16
        addr = self.o['kofs']; full = True; k = 0; items = []; pads = []; page = 0
        for i, (kind, v) in enumerate(a.items):
            isins = kind == 'ins' or (kind == 'raw' and v.startswith('    s_'))
            if i == tour: items.append((kind, v)); addr += 4 * 48; continue
            if isins:
                if addr // 4096 > page and full and i > tour:
                    page = addr // 4096; pads.append(page)
                    items.append(('raw', f'L_PAD{page}:\n    s_cbranch_execz L_RET{page}')); addr += 4
                elif i < tour: page = addr // 4096
                addr += sizes[k]; k += 1
                if kind == 'ins' and ('s', 'exec_lo') in v.dst + [('s', 'exec_lo') if ('s', 'exec_hi') in v.dst else None]:
                    full = v.text.replace(' ', '') in ('s_mov_b64exec,-1', 's_mov_b32exec_hi,-1')
            items.append((kind, v))
        assert k == len(sizes), (k, len(sizes))
        t = ['s_mov_b64 exec, 0']
        chains = [pads[c::4] for c in range(4)]
        for c in range(4): t += [f's_cmp_eq_u32 s{sWAVE}, {4 + c}', f's_cbranch_scc1 L_PAD{chains[c][0]}']
        t.append('s_branch L_TEND')
        n = len(t)
        for ch in chains:
            for p, q in zip(ch, ch[1:] + [None]):
                t += [f'L_RET{p}:', f's_branch ' + (f'L_PAD{q}' if q else 'L_TEND')]; n += 1
        assert n <= 47
        t += ['s_nop 0'] * (47 - n) + ['L_TEND:', 's_mov_b64 exec, -1']
        j = items.index(('raw', ';TOUR'))
        items[j] = ('raw', '\n'.join(x if x.endswith(':') else '    ' + x for x in t))
        a.items = items

    def text(self):
        a = self.a
        npad = a.fix_hazards()
        errs = a.check_waits([NAME])
        for e in errs[:10]: print('WAITERR', e, file=sys.stderr)
        assert not errs
        if self.o['tour']: self.pads()
        hdr = open(os.path.join(os.path.dirname(os.path.abspath(__file__)), 'header.txt')).read()
        s = hdr + '; @launch grid=(256,1,1) block=(512,1,1) lds=163840\n'
        s += '.amdgcn_target "amdgcn-amd-amdhsa--gfx950"\n.text\n'
        s += f'.globl {NAME}\n.p2align {12 if self.o["al12"] else 8}\n.type {NAME},@function\n'
        body = a.text()
        import subprocess, tempfile
        with tempfile.TemporaryDirectory() as td:
            open(td + '/t.s', 'w').write('.amdgcn_target "amdgcn-amd-amdhsa--gfx950"\n.text\n' + body.replace('CODE_KB', '20480'))
            subprocess.run(['clang', '-x', 'assembler', '-target', 'amdgcn-amd-amdhsa', '-mcpu=gfx950', '-c', td + '/t.s', '-o', td + '/t.o'], check=True)
            subprocess.run(['llvm-objcopy', '-O', 'binary', '-j', '.text', td + '/t.o', td + '/t.bin'], check=True)
            size = os.path.getsize(td + '/t.bin')
        print('; code bytes', size, file=sys.stderr)
        s += body.replace('CODE_KB', str((size // 1024 + 1) * 1024))
        s += '.p2align 10\n.fill 768, 4, 0xbf800000\n'
        s += '.section .rodata,"a"\n' + kernel_desc(NAME, 256, 102)
        print(f'; nops {npad}, instrs {sum(1 for k, _ in a.items if k == "ins")}', file=sys.stderr)
        return s


if __name__ == '__main__':
    import argparse, json
    ap = argparse.ArgumentParser()
    ap.add_argument('-o', default='/dev/stdout')
    ap.add_argument('--prof', action='store_true')
    ap.add_argument('--opts', default='{}')
    args = ap.parse_args()
    g = Gen(args.prof, json.loads(args.opts)).build()
    t = g.text()
    open(args.o, 'w').write(t)
    if args.prof: open(args.o + '.stamps', 'w').write(json.dumps(g.stnames))
```

```python
import sys, os
sys.path.insert(0, os.path.dirname(os.path.abspath(__file__)))
from asm import *

NAME = 'adaLN_cond__linear_kernel_hedgehog__moe_arch_mod__prompt_kernel'

NONCE = 0x0
MODP2 = 0x020000
SINB = 0x040000
AINB = 0x080000
INB = 0x100000
HF = 0x400000
OF = 0x800000
ST = 0xC00000
XS = 0xD00000
UP = 0xD80000
HGR = 0x1400000
ZP = 0x1480000
GGR = 0x1500000
KVP = 0x1800000
KIN = 0x1C00000
STAMPS = 0x1600000
WS_BYTES = 268435456

REG = 49152
MISC = 147456
L_A1 = MISC
L_ST = MISC + 6144
L_MP = MISC + 8192
L_WPHI = MISC + 12288
L_KH = 0
L_QH = MISC + 4096
L_KVF = MISC
L_ZF = MISC + 8192
L_M2 = MISC + 9984
L_MD = MISC + 12288
L_K1 = MISC + 8704
L_K2 = MISC + 8832
L_ACT = MISC + 9216
L_GB = MISC + 9728
L_HV = 32768
L_PHK = 0
L_TR = 98304
L_GU = 0
L_DN = 65536
UR = 393216

SPIN_LIMIT = 200000

sWAVE, sTAG, sSPIN, sMASK, sL2E = 3, 4, 5, 6, 7
sX, sJ, sR1, sHP, sCB = 8, 9, 10, 11, 12
T0, T1, T2, T3, T4, T5, T6, T7 = 13, 14, 15, 16, 17, 18, 19, 20
sRT = 21
sCMP = 22
sPL = 24
rWS, rX, rW, rWO, rWM, rWG, rWU, rWD, rOUT = 32, 36, 40, 44, 48, 52, 56, 60, 64
KA = 68
pWPHI, pWR, pC = KA + 4, KA + 10, KA + 18
sK1, sK2, sROW0, sROW1, sFS, sKQ, sKH, sRB = 68, 69, 70, 71, 74, 75, 76, 77
sFG, sFD, sU, sW1K, sU0, sWB = 80, 81, 82, 83, 84, 85
sAB, sM2, sWO, sY0 = 88, 89, 90, 91
sINB, sRow, sY1, sY2 = 92, 93, 94, 95
sCM = 84
sC2 = 88
XT = (96, 97, 98, 99)
sTM = 100
ENV = dict(wg=2, w=sWAVE, x=sX, j=sJ, r1=sR1, hp=sHP, cb=sCB, rt=sRT, row=sRow, kh=sKH, rb=sRB, fs=sFS, kq=sKQ,
           w1k=sW1K, u=sU, fg=sFG, fd=sFD, u0=sU0, wb=sWB, ab=sAB, m2=sM2, wo=sWO, y0=sY0, y1=sY1, y2=sY2,
           k1=sK1, k2=sK2, row0=sROW0, row1=sROW1,
           T0=T0, T1=T1, T2=T2, T3=T3, T4=T4, T5=T5, T6=T6, T7=T7)

vL, vL16, vWd, vT = 1, 2, 3, 4
XR = 12
vB = 20
vS0, vS1 = 26, 27
RING = 28
AK, AV, AQ = 56, 88, 120
AR = 152
SP = 248


class Stream:
    def __init__(self, g): self.g, self.q, self.wake = g, [], 0
    def add(self, fn, v=0, l=0): self.q.append((v, l, fn))
    def sleep(self, k): self.q.append(('sleep', k, None))
    def until(self, n): self.q.append(('until', n, None))
    def cap(self, fn):
        a = self.g.a
        keep = a.items; a.items = []
        fn()
        body = a.items; a.items = keep
        run = []
        for it in body:
            i = it[1]
            assert it[0] == 'ins' and i.cls in ('valu', 'salu', 'mfma'), it
            run.append(it)
            if i.cls == 'salu': continue
            c = 8 if (i.cls == 'mfma' or i.is_trans or 'permlane' in i.mn) else 6 if i.mn.startswith(('v_fma', 'v_max3', 'v_min3', 'v_lshl_', 'v_bfe')) else 4.75 if i.mn.startswith('v_cvt') else 4
            self.q.append((c + (len(run) - 1), 0, (lambda r=run: a.items.extend(r)))); run = []
        if run: self.q.append((len(run), 0, (lambda r=run: a.items.extend(r))))
    def mark(self, name): self.q.append((0, 0, lambda: (self.g.marks.add(name), self.g.markn.append((name, self.g.cur[0])))))
    def pull(self, bud, full):
        n = self.g.cur[0]
        while self.q and n >= self.wake:
            v, l, fn = self.q[0]
            if v == 'sleep': self.wake = n + l; self.q.pop(0); continue
            if v == 'until': self.wake = max(n, l); self.q.pop(0); continue
            if l > bud[1]: return
            if v > bud[0] and bud[0] < full:
                bud[0] = -1; return
            self.q.pop(0); fn(); bud[0] -= v; bud[1] -= l


DEFAULTS = dict(wburst=(2, 1, 3, 0, 6, 3), xtat=0, mdlate=1, m2gap=10, m2cut=60, aoff=0, wpace=0, cprio=1, g2p=28, tlb=0, tlbk=2, tsin=0, tz=0, outat=2, gbar=1, fbar=0, xorw=1, LOOK=6, A00=6, A0=6, Apos=(5, 5, 5, 5, 5, 7, 7, 7, 6, 6),
                wsched={5: 'k10 v10', 6: 'k11 v11', 7: 'k12 v12', 8: 'k13 v13', 9: 'k14 q10', 10: 'k15 q11', 11: 'v14 v15 q12', 12: 'q13 q14 q15'},
                bA=271, bH=295, kbud=10, vbud=5, wcost=5, kdel=1, hh=0.25, hq=1.0, fA=2, woA=6, hgap=(20, 14), fpre=8, m2c=4, m2k3='(j & 1)*2 + 1', m2g=5, m2e=7, m2nb=1, m2db=2, apos=0, hprio=3, qmid=8, qsplit=16, wowin=(2, 4, 4), AD2=8, LOOK2=7, g2r='(j & 1)*4', Hdir=0, Gdir=0, C2dir=0, poisat=3, earlyD=1, ocut=(0, 0, 3), pairw2=4, worot=1, fwin=(0, 0, 0, 2, 2, 4, 1), prio=2, tour=1, al12=1, kofs=0x300)


class Gen:
    def __init__(self, prof=False, opts=None):
        self.a = Asm()
        self.vm = Counter(self.a, 'vmcnt', 63)
        self.lg = Counter(self.a, 'lgkmcnt', 15)
        self.marks = set(); self.markn = []
        self.vL = vL
        self.prof = prof
        self.nopk = False
        self.nst = 0
        self.stnames = []
        self.S = SExpr(self.a, ENV, {k: v for k, v in globals().items() if isinstance(v, int) and k.isupper() and k not in ENV}, XT)
        self.o = dict(DEFAULTS)
        if opts: self.o.update(opts)

    def bl(self, dst, n, voff, srd, soff, imm=0, mods='', tag=None):
        op = {1: 'dword', 2: 'dwordx2', 4: 'dwordx4'}[n]
        so = soff if isinstance(soff, str) else (sr(soff))
        self.a(f'buffer_load_{op} {vr(dst, n)}, v{voff}, {sr(srd, 4)}, {so} offen' + (f' offset:{imm}' if imm else '') + (' ' + mods if mods else ''))
        self.vm.issue(tag)
    def bs(self, src, n, voff, srd, soff, imm=0, mods='', tag=None, count=True):
        op = {1: 'dword', 2: 'dwordx2', 4: 'dwordx4'}[n]
        so = soff if isinstance(soff, str) else (sr(soff))
        self.a(f'buffer_store_{op} {vr(src, n)}, v{voff}, {sr(srd, 4)}, {so} offen' + (f' offset:{imm}' if imm else '') + (' ' + mods if mods else ''))
        if count: self.vm.issue(tag)
    def dma(self, voff, srd, soff, imm=0, mods='', tag=None):
        self.a(f'buffer_load_dwordx4 v{voff}, {sr(srd, 4)}, {sr(soff)} offen' + (f' offset:{imm}' if imm else '') + (' ' + mods if mods else '') + ' lds')
        self.vm.issue(tag)
    def dr(self, op, dst, n, addr, off=0, tag=None):
        assert 0 <= off < 65536, off
        self.a(f'{op} {vr(dst, n)}, v{addr}' + (f' offset:{off}' if off else ''))
        self.lg.issue(tag)
    def tr(self, dst, addr, off, tag=None): self.dr('ds_read_b64_tr_b16', dst, 2, addr, off, tag)
    def r128(self, dst, addr, off=0, tag=None): self.dr('ds_read_b128', dst, 4, addr, off, tag)
    def dw(self, op, addr, src, n, off=0, tag=None):
        assert 0 <= off < 65536, off
        self.a(f'{op} v{addr}, {vr(src, n)}' + (f' offset:{off}' if off else ''))
        self.lg.issue(tag)
    def barrier(self):
        self.lg.wait_all()
        self.a('s_barrier')
    def stamp(self, name):
        if self.o.get('jit') and name not in ('karg', 'fin', 'end'):
            L = self.a.label('JIT')
            self.a(f's_memtime {sr(sTM, 2)}'); self.lg.wait_all()
            self.a(f's_mul_i32 s{sTM}, s{sTM}, 0x9e3779b1\ns_lshr_b32 s{sTM}, s{sTM}, {32 - self.o["jit"]}\ns_add_u32 s{sTM}, s{sTM}, 1\n{L}:\ns_sleep 1\ns_sub_u32 s{sTM}, s{sTM}, 1\ns_cmp_lg_u32 s{sTM}, 0\ns_cbranch_scc1 {L}')
        ex = self.o.get('exfil')
        if ex and name in ex[:2]:
            self.a(f's_memrealtime {sr(sTM, 2)}')
            self.lg.wait_all()
            self.a(f'v_writelane_b32 v255, s{sTM}, {1 + ex.index(name)}')
        if not self.prof: return
        only = self.o.get('only')
        if only and name not in only and name != 'end': return
        self.a(f's_memtime {sr(sTM, 2)}')
        self.a(f's_memrealtime s[0:1]')
        self.lg.wait_all()
        self.a(f'v_writelane_b32 v255, s{sTM}, {self.nst}')
        self.a(f'v_writelane_b32 v254, s0, {self.nst}')
        self.stnames.append(name)
        self.nst += 1
        assert self.nst <= 60
    def unpack(self, lo, hi, src):
        self.a(f'v_lshlrev_b32 v{lo}, 16, v{src}')
        self.a(f'v_and_b32 v{hi}, s{sMASK}, v{src}')
    def round1(self, r):
        self.a(f'v_cvt_pk_bf16_f32 v{r}, 0, v{r}')
    def round2(self, r0, r1):
        self.round1(r0); self.round1(r1)
    def round_list(self, regs):
        for r in regs: self.round1(r)
    def pk(self, op, d, s0, s1, s2=None, bc=(), neg=()):
        srcs = [s0, s1] + ([s2] if s2 is not None else [])
        if self.nopk:
            for h in range(2):
                t = []
                for k, r in enumerate(srcs):
                    kind, n = r if isinstance(r, tuple) else ('v', r)
                    t.append(('-' if k in neg else '') + f'{kind}{n if k in bc else n + h}')
                e64 = '' if op == 'fma' else ('_e64' if (neg or t[1][0] == 's') else '')
                self.a(f'v_{op}_f32{e64} v{d+h}, ' + ', '.join(t))
            return
        if 1 in bc and not isinstance(s1, tuple) and s1 & 1 and not self.o.get('badpk'):
            assert 0 not in bc
            sw = lambda t: tuple({0: 1, 1: 0}.get(k, k) for k in t)
            srcs[0], srcs[1] = srcs[1], srcs[0]; bc, neg = sw(bc), sw(neg)
        txt, sel, selhi = [], [], []
        for k, r in enumerate(srcs):
            kind, n = r if isinstance(r, tuple) else ('v', r)
            if k in bc:
                txt.append(f'{kind}[{n & ~1}:{(n & ~1) + 1}]'); sel.append(n & 1); selhi.append(n & 1)
            else:
                assert n % 2 == 0
                txt.append(f'{kind}[{n}:{n+1}]'); sel.append(0); selhi.append(1)
        assert d % 2 == 0
        m = ''
        if any(sel): m += ' op_sel:[' + ','.join(map(str, sel)) + ']'
        if not all(selhi): m += ' op_sel_hi:[' + ','.join(map(str, selhi)) + ']'
        if neg:
            ng = ','.join('1' if k in neg else '0' for k in range(len(srcs)))
            m += f' neg_lo:[{ng}] neg_hi:[{ng}]'
        self.a(f'v_pk_{op}_f32 v[{d}:{d+1}], ' + ', '.join(txt) + m)
    def dpp(self, op, d, s0, s1, ctl):
        self.a(f'{op}_dpp v{d}, v{s0}, v{s1} {ctl} row_mask:0xf bank_mask:0xf')
    def allreduce(self, v, t, op='v_add_f32', lo=True, b3=True):
        if lo:
            self.dpp(op, v, v, v, 'quad_perm:[1,0,3,2]')
            self.dpp(op, v, v, v, 'quad_perm:[2,3,0,1]')
            self.dpp(op, v, v, v, 'row_half_mirror')
        self.dpp(op, v, v, v, 'row_ror:8')
        self.a(f'v_mov_b32 v{t}, v{v}')
        self.a(f'v_permlane16_swap_b32 v{v}, v{t}')
        self.a(f'{op} v{v}, v{v}, v{t}')
        self.a(f'v_mov_b32 v{t}, v{v}')
        self.a(f'v_permlane32_swap_b32 v{v}, v{t}')
        self.a(f'{op} v{v}, v{v}, v{t}')
    def poll(self, loads, tagregs, tmp=None, post=None):
        a = self.a
        L, D = a.label('POLL'), a.label('PDONE')
        a(f'{L}:')
        loads()
        self.vm.wait_all()
        if post: post()
        if len(tagregs) == 1:
            a(f'v_cmp_ne_u32 vcc, s{sTAG}, v{tagregs[0]}')
        else:
            a(f'v_bitop3_b32 v{tmp}, v{tagregs[0]}, v{tagregs[1]}, s{sTAG} bitop3:0x7e')
            for t in tagregs[2:]: a(f'v_bitop3_b32 v{tmp}, v{tmp}, v{t}, s{sTAG} bitop3:0xf6')
            a(f'v_cmp_ne_u32 vcc, 0, v{tmp}')
        a(f's_cbranch_vccz {D}')
        a(f's_add_u32 s{sSPIN}, s{sSPIN}, 1')
        a(f's_cmp_lt_u32 s{sSPIN}, {SPIN_LIMIT}')
        a(f's_cbranch_scc1 {L}')
        a(f'{D}:')
    def weave(self, fn, extras):
        a = self.a
        keep = a.items; a.items = []
        fn()
        body = a.items; a.items = keep
        extras = list(extras); n = len(extras)
        for i, it in enumerate(body):
            while extras and (n - len(extras)) * len(body) <= i * n: extras.pop(0)()
            a.items.append(it)
        for e in extras: e()
    def tagcheck(self, tagregs, tmp):
        a = self.a
        if len(tagregs) == 1:
            a(f'v_cmp_ne_u32 vcc, s{sTAG}, v{tagregs[0]}')
        else:
            a(f'v_bitop3_b32 v{tmp}, v{tagregs[0]}, v{tagregs[1]}, s{sTAG} bitop3:0x7e')
            for t in tagregs[2:]: a(f'v_bitop3_b32 v{tmp}, v{tmp}, v{t}, s{sTAG} bitop3:0xf6')
            a(f'v_cmp_ne_u32 vcc, 0, v{tmp}')
    def try_load(self, loads, tagregs, tmp=None, between=None, pre=None):
        a = self.a
        n0 = len(self.vm.q)
        loads()
        self.vm.q[-1] = tg = ('try', a.label('T'))
        if between: between()
        self.vm.wait(tg)
        OK = a.label('TOK')
        self.tagcheck(tagregs, tmp)
        a(f's_cbranch_vccz {OK}')
        q, l = list(self.vm.q), list(self.lg.q)
        if pre: pre()
        self.poll(loads, tagregs, tmp)
        self.vm.q, self.lg.q = q, l
        a(f'{OK}:')
    def spoll(self, loads, checks, work=None):
        a = self.a
        L, C, D = a.label('SPOLL'), a.label('SCHK'), a.label('SDONE')
        def issue():
            for d, n, so, imm in loads:
                op = {1: 'dword', 2: 'dwordx2', 4: 'dwordx4', 8: 'dwordx8'}[n]
                a(f's_load_{op} {sr(sPL + d, n)}, {sr(rWS, 2)}, s{so} offset:{imm} glc')
        if work:
            issue(); work()
            a(f's_branch {C}')
        a(f'{L}:')
        issue()
        a(f'{C}:')
        a(f's_add_u32 s{sSPIN}, s{sSPIN}, 1')
        a(f's_cmp_ge_u32 s{sSPIN}, {SPIN_LIMIT}')
        self.lg.wait_all()
        a(f's_cbranch_scc1 {D}')
        for k in checks:
            a(f's_cmp_lg_u32 s{sPL + k}, s{sTAG}')
            a(f's_cbranch_scc1 {L}')
        a(f'{D}:')
    def inbox(self, box, n, checks=None, work=None):
        self.spoll([(0, n, sINB, box * 512)], range(n) if checks is None else checks, work)
    def va(self, dst, terms, sreg=None, const=0, tmp=None):
        a = self.a; vL = self.vL
        first = True
        for sh, bits, mult in terms:
            full = sh + bits >= 6
            src = vL
            t = dst if first else tmp
            if sh == 0 and full: pass
            elif full: a(f'v_lshrrev_b32 v{t}, {sh}, v{vL}'); src = t
            elif sh == 0: a(f'v_and_b32 v{t}, {(1 << bits) - 1}, v{vL}'); src = t
            else: a(f'v_bfe_u32 v{t}, v{vL}, {sh}, {bits}'); src = t
            p2 = mult & (mult - 1) == 0
            k = mult.bit_length() - 1
            if first:
                if p2 and sreg is not None: a(f'v_lshl_add_u32 v{dst}, v{src}, {k}, s{sreg}'); sreg = None
                elif p2 and k: a(f'v_lshlrev_b32 v{dst}, {k}, v{src}')
                elif p2:
                    if src != dst: a(f'v_mov_b32 v{dst}, v{src}')
                else: a(f'v_mul_u32_u24 v{dst}, {mult}, v{src}')
            else:
                assert p2
                a(f'v_lshl_add_u32 v{dst}, v{src}, {k}, v{dst}')
            first = False
        if sreg is not None: a(f'v_add_u32 v{dst}, s{sreg}, v{dst}')
        if const: a(f'v_add_u32 v{dst}, {const}, v{dst}')
    def push(self, vaddr, soff, nl, vtmp, lab, wave=0):
        a = self.a
        a(f's_cmp_lg_u32 s{sWAVE}, {wave}')
        a(f's_cbranch_scc1 {lab}')
        a(f'v_mov_b32 v{vtmp}, s{sTAG}')
        a(f's_mov_b32 exec_hi, 0')
        if nl < 32: a(f's_mov_b32 exec_lo, {(1 << nl) - 1}')
        self.bs(vtmp, 1, vaddr, rWS, soff, 0, 'sc1', count=False)
        a('s_mov_b64 exec, -1')
        a(f'{lab}:')
    def silu(self, v, t):
        a = self.a
        a(f'v_mul_f32 v{t}, s{sL2E}, v{v}')
        a(f'v_exp_f32 v{t}, -v{t}')
        a(f'v_add_f32 v{t}, 1.0, v{t}')
        a(f'v_rcp_f32 v{t}, v{t}')
        a(f'v_mul_f32 v{v}, v{v}, v{t}')
        self.round1(v)
    def gemv_ops(self, wregs, cregs, acc, t0, t1, packed):
        ops = []
        assert t0 % 2 == 0 and t1 == t0 + 1
        for i, (w, c) in enumerate(zip(wregs, cregs)):
            cp = f'v[{c & ~1}:{(c & ~1) + 1}]'
            for d in range(4):
                tt = t0 + 2 * (d & 1)
                ops.append(f'v_lshlrev_b32 v{tt}, 16, v{w+d}')
                ops.append(f'v_and_b32 v{tt+1}, s{sMASK}, v{w+d}')
                ac = f'v[{acc+2*d}:{acc+2*d+1}]'
                if not packed:
                    for h in range(2): ops.append(f'v_mul_f32 v{acc+2*d+h}, v{tt+h}, v{c}' if i == 0 else f'v_fmac_f32 v{acc+2*d+h}, v{tt+h}, v{c}')
                elif i == 0: ops.append(f'v_pk_mul_f32 {ac}, {cp}, v[{tt}:{tt+1}] op_sel:[{c & 1},0] op_sel_hi:[{c & 1},1]')
                else: ops.append(f'v_pk_fma_f32 {ac}, {cp}, v[{tt}:{tt+1}], {ac} op_sel:[{c & 1},0,0] op_sel_hi:[{c & 1},1,1]')
        for i in range(4): ops.append(f'v_permlane32_swap_b32 v{acc+i}, v{acc+4+i}')
        for i in range(4): ops.append(f'v_add_f32 v{acc+i}, v{acc+i}, v{acc+4+i}')
        for i in range(2): ops.append(f'v_permlane16_swap_b32 v{acc+i}, v{acc+2+i}')
        for i in range(2): ops.append(f'v_add_f32 v{acc+i}, v{acc+i}, v{acc+2+i}')
        for i in range(2): ops.append(f'v_add_f32_dpp v{acc+i}, v{acc+i}, v{acc+i} row_ror:8 row_mask:0xf bank_mask:0xf')
        ops.append(f'v_mov_b32_dpp v{acc}, v{acc+1} quad_perm:[0,1,2,3] row_mask:0xf bank_mask:0xc')
        return ops
    def sum8(self, b):
        self.pk('add', b, b, b + 2); self.pk('add', b + 4, b + 4, b + 6); self.pk('add', b, b, b + 4)
        self.a(f'v_add_f32 v{b}, v{b}, v{b+1}')
    def softmax_pm(self, p, e, out, t, mid=None, part=0, split=0, stage=None):
        a = self.a
        mx, mn, u0, u1, s0, s1 = t, t + 1, t + 2, t + 3, t + 4, t + 6
        if part != 2:
            self.round_list([p + i for i in range(16)])
            a(f'v_max3_f32 v{mx}, v{p}, v{p+1}, v{p+2}')
            a(f'v_min3_f32 v{mn}, v{p}, v{p+1}, v{p+2}')
            for i in range(3, 15, 2):
                a(f'v_max3_f32 v{mx}, v{mx}, v{p+i}, v{p+i+1}')
                a(f'v_min3_f32 v{mn}, v{mn}, v{p+i}, v{p+i+1}')
            a(f'v_max_f32 v{u0}, v{mx}, v{p+15}')
            a(f'v_min_f32 v{u1}, v{mn}, v{p+15}')
            a(f'v_max_f32 v{mx}, v{mx}, v{p+15}')
            a(f'v_min_f32 v{mn}, v{mn}, v{p+15}')
            a(f'v_permlane32_swap_b32 v{mx}, v{u0}')
            a(f'v_permlane32_swap_b32 v{mn}, v{u1}')
            a(f'v_max_f32 v{mx}, v{mx}, v{u0}')
            a(f'v_min_f32 v{mn}, v{mn}, v{u1}')
            self.pk('mul', mx, mx, ('s', sL2E), bc=(1,))
            mn2 = mn
            if not self.nopk: a(f'v_mov_b32 v{u0}, v{mn}'); mn2 = u0
            for i in range(0, 16, 2):
                self.pk('fma', e + i, p + i, ('s', sL2E), mx, bc=(1, 2), neg=(2,))
                self.pk('fma', p + i, p + i, ('s', sL2E), mn2, bc=(1, 2), neg=(0,))
        for i in range(split if part == 2 else 0, 16):
            if mid and i == mid[0]: mid[1]()
            if part == 1 and i == split: return
            a(f'v_exp_f32 v{e+i}, v{e+i}')
            a(f'v_exp_f32 v{p+i}, v{p+i}')
        self.pk('add', s0, e, e + 2); self.pk('add', s1, p, p + 2)
        for i in range(4, 16, 2):
            self.pk('add', s0, s0, e + i); self.pk('add', s1, s1, p + i)
        a(f'v_add_f32 v{u0}, v{s0}, v{s0+1}')
        a(f'v_add_f32 v{u1}, v{s1}, v{s1+1}')
        a(f'v_add_f32 v{mx}, v{s0}, v{s0+1}')
        a(f'v_add_f32 v{mn}, v{s1}, v{s1+1}')
        a(f'v_permlane32_swap_b32 v{mx}, v{u0}')
        a(f'v_permlane32_swap_b32 v{mn}, v{u1}')
        self.pk('add', mx, mx, u0)
        a(f'v_rcp_f32 v{mx}, v{mx}')
        a(f'v_rcp_f32 v{mn}, v{mn}')
        for i in range(0, 16, 2):
            self.pk('mul', e + i, e + i, mx, bc=(1,))
            self.pk('mul', p + i, p + i, mn, bc=(1,))
        for i in range(8): a(f'v_cvt_pk_bf16_f32 v{out+i}, v{e+2*i}, v{e+2*i+1}')
        for i in range(8): a(f'v_cvt_pk_bf16_f32 v{out+8+i}, v{p+2*i}, v{p+2*i+1}')
    def ln_stats(self, xp, t, m_out, sd_out, fill=()):
        a = self.a
        fill = list(fill)
        def pad(n):
            for _ in range(n):
                if fill: a(fill.pop(0))
        s, u = t, t + 4
        a(f'v_mov_b32 v{u}, 0x3f803f80')
        for i in range(8):
            k = 2 * (i & 1)
            a(f'v_dot2_f32_bf16 v{s+k}, v{xp+i}, v{u}, ' + ('0' if i < 2 else f'v{s+k}'))
            a(f'v_dot2_f32_bf16 v{s+k+1}, v{xp+i}, v{xp+i}, ' + ('0' if i < 2 else f'v{s+k+1}'))
        pad(3)
        self.pk('add', s, s, s + 2)
        for ctl in ('quad_perm:[1,0,3,2]', 'quad_perm:[2,3,0,1]', 'row_half_mirror', 'row_ror:8'):
            pad(2 if ctl.endswith('3,2]') else 1)
            self.dpp('v_add_f32', s, s, s, ctl); self.dpp('v_add_f32', s + 1, s + 1, s + 1, ctl)
        pad(2)
        a(f'v_permlane16_swap_b32 v{s}, v{s+1}')
        a(f'v_add_f32 v{u}, v{s}, v{s+1}')
        a(f'v_add_f32 v{s}, v{s}, v{s+1}')
        pad(2)
        a(f'v_permlane32_swap_b32 v{s}, v{u}')
        a(f'v_add_f32 v{s}, v{s}, v{u}')
        a(f'v_mul_f32 v{u}, 0x3a800000, v{s}')
        a(f'v_mul_f32 v{s}, 0x3a800000, v{s}')
        pad(2)
        a(f'v_permlane16_swap_b32 v{s}, v{u}')
        a(f'v_fma_f32 v{sd_out}, -v{s}, v{s}, v{u}')
        a(f'v_cvt_pk_bf16_f32 v{m_out}, 0, v{s}')
        a(f'v_max_f32 v{sd_out}, 0, v{sd_out}')
        self.round1(sd_out)
        a(f'v_add_f32 v{sd_out}, 0x3727c5ac, v{sd_out}')
        self.round1(sd_out)
        a(f'v_sqrt_f32 v{sd_out}, v{sd_out}')
        pad(99)
        self.round1(sd_out)

    def build(self):
        self.front()
        self.gemm1()
        self.middle()
        self.gemm2()
        self.tail()
        self.finish()
        return self

    def vaa(self, dst, terms, sreg=None, const=0): self.va(dst, terms, sreg, const, vT + 5)

    def front(self):
        a, vm, lg, o, S, va = self.a, self.vm, self.lg, self.o, self.S, self.vaa
        E2 = range(0, 16, 2)
        a(f'{NAME}:')
        a(f's_load_dwordx16 {sr(KA, 16)}, s[0:1], 0')
        a(f's_load_dwordx8 {sr(KA + 16, 8)}, s[0:1], 64')
        a(f's_load_dwordx2 {sr(rWS, 2)}, s[0:1], 104')
        a('s_cmp_ge_u32 s2, 256')
        a('s_cbranch_scc1 L_END')
        if self.prof:
            a(f's_memrealtime {sr(sCMP, 2)}')
            a(f's_memtime {sr(sTM, 2)}')
            a('v_mov_b32 v255, 0')
            a('v_mov_b32 v254, 0')
            self.stnames.append('start'); self.nst = 1
        if o.get('exfil'): a(f's_memrealtime {sr(sTM, 2)}')
        a(f"""v_lshrrev_b32 v{vT}, 6, v0
        v_and_b32 v{vL}, 63, v0
        s_nop 0
        v_readfirstlane_b32 s{sWAVE}, v{vT}
        v_lshlrev_b32 v{vL16}, 4, v{vL}""")
        for srd, size in ((rX, 4194304), (rWM, 12582912), (rWS, WS_BYTES), (rW, 6291456), (rWO, 2097152), (rWG, 7340032), (rWU, 7340032), (rWD, 7340032), (rOUT, 4194304)):
            a(f's_mov_b32 s{srd+2}, {size}')
            a(f's_mov_b32 s{srd+3}, 0x20000')
        a(f"""s_mov_b32 s{sSPIN}, 0
        s_mov_b32 s{sMASK}, 0xffff0000
        s_mov_b32 s{sL2E}, 0x3fb8aa3b""")
        S(sX, 'wg & 7'); S(sJ, 'wg >> 3')
        S(sRow, '(x*32 + j)*8 + w')
        S(sR1, '(x & 4)*2 + (j >> 2)'); S(sHP, '(x & 3)*4 + ((j & 3) ^ q)', q=o.get('hpx', 2))
        S(sCB, '(x & 1)*8 + (j & 7)')
        S(sRT, '(x >> 1)*4 + (j >> 3)')
        S(sINB, '(wg*64 + w)*64 + INB')
        xs_raw, wm, cv, st, acc, xs, mp, hp = AR, AR + 8, AR + 16, AR + 20, AR + 24, AR + 32, AR + 48, AR + 64
        vWM, vCo, vL8, vL32S, vGA, vXT = SP, SP + 1, SP + 2, SP + 3, SP + 4, vT + 6
        self.vWM, self.vL8, self.vL32S, self.vGA = vWM, vL8, vL32S, vGA
        S(T3, 'row*2048')
        S(T2, '(x*8 + w)*32')
        S(T0, 'T2*6144 + (j ^ 1)*128'); S(T1, 'T0 + 8*12288')
        S(T5, '(rt*8 + w)*32768 + cb*128')
        S(T4, '(((x >> 1)*16 + cb)*16 + w)*512 + AINB')
        va(vWM, [(3, 3, 12288), (0, 3, 16)])
        va(vCo, [(3, 3, 2)], T2)
        va(vXT, [(0, 4, 2048), (4, 2, 16)])
        a('s_waitcnt lgkmcnt(0)')
        if self.prof:
            a(f'v_writelane_b32 v255, s{sTM}, 0')
            a(f'v_writelane_b32 v255, s{sCMP}, 63')
            a(f'v_writelane_b32 v254, s{sCMP}, 0')
        if o.get('exfil'):
            for k in range(3): a(f'v_writelane_b32 v255, s{sTM}, {k}')
        self.stamp('karg')
        a(f's_mov_b64 {sr(rWM, 2)}, {sr(KA + 20, 2)}')
        self.bl(wm, 4, vWM, rWM, T0, 0, 'nt', 'wm')
        self.bl(wm + 4, 4, vWM, rWM, T1, 0, 'nt', 'wm')
        a(f's_load_dword s{sTAG}, {sr(rWS, 2)}, {NONCE}')
        a(f'global_load_ushort v{cv}, v{vCo}, {sr(pC, 2)}'); vm.issue('wm')
        a(f'global_load_ushort v{cv+1}, v{vCo}, {sr(pC, 2)} offset:16'); vm.issue('wm')
        a(f's_mov_b64 {sr(rX, 2)}, {sr(KA, 2)}')
        a(f's_load_dword s{sPL}, {sr(rWS, 2)}, s{sINB} offset:0 glc')
        for q in range(2): a(f's_load_dword s{sPL + 1 + q}, {sr(rWS, 2)}, s{T4} offset:{q * 4096 + 508} glc')
        if o['tlb'] & 1:
            S(T6, '(w & 1)*2097152 + HF')
            a(f's_load_dword s{sPL + 5}, {sr(rWS, 2)}, s{T6} offset:0')
        if o['tsin']:
            S(T6, '(wg*8 + w)*128 + SINB')
            for q in range(2): a(f's_load_dword s{sPL + 3 + q}, {sr(rWS, 2)}, s{T6} offset:{q * 64} glc')
        if o.get('bar0', 1): a('s_barrier')
        self.bl(xs_raw, 4, vL16, rX, T3, 0, '', 'xs')
        self.bl(xs_raw + 4, 4, vL16, rX, T3, 1024, '', 'xs')
        for srd, k in ((rW, 2), (rWO, 6), (rWG, 12), (rWU, 14), (rWD, 16), (rOUT, 22)):
            a(f's_mov_b64 {sr(srd, 2)}, {sr(KA + k, 2)}')
        a(f"""s_getpc_b64 {sr(sCMP, 2)}
        s_and_b32 s{sCMP}, s{sCMP}, 0xfffffc00""")
        S(T6, '(j*8 + w)*128')
        va(vT, [(5, 1, 32768)], T6)
        a(f'v_min_u32 v{vT}, CODE_KB, v{vT}')
        a(f'global_load_dword v{vT+7}, v{vT}, {sr(sCMP, 2)}'); vm.issue()
        S(sKH, 'w >> 2'); S(sRB, 'w & 3'); S(sW1K, 'w*1024')
        S(sFS, 'x*7 + (j >> 2)'); S(sKQ, 'j & 3')
        va(vT + 2, [(4, 1, 64)]); va(vWd, [(0, 3, 16)])
        a(f'v_xor_b32 v{vWd}, v{vWd}, v{vT+2}'); va(vT + 2, [(3, 3, 6144)]); a(f'v_add_u32 v{vWd}, v{vWd}, v{vT+2}')
        S(sU0, o.get('u0', 'j & 12')); S(sWB, 'w*49152 + hp*128')
        wq = self.wq = [(n, t) for n in range(6) for t in 'kvq']
        def w_next(cnt=1):
            for _ in range(cnt):
                n, t = wq.pop(0)
                if t == 'k':
                    if n < 4:
                        S(sY1, '((j >> 4)*q) ^ n', n=n, q=2 * o['xorw'])
                        S(sY0, '((y1 + u0) & 15)*UR + wb'); S(sY1, 'y1*8192 + w1k')
                    else:
                        S(sY0, '((u0 + n) & 15)*UR + wb', n=n); S(sY1, 'w1k + q', q=n * 8192)
                S(sU, 'y0 + q', q=dict(q=0, k=2048, v=4096)[t]); S('m0', 'y1 + q', q='kvq'.index(t) * REG)
                self.dma(vWd, rW, sU, 0, '', ('W', n))
        wb = list(o['wburst'])
        va(vL8, [(0, 6, 8)])
        va(vL32S, [(0, 6, 32)], None, MISC)
        S(T0, 'w*4 + MISC')
        va(vGA, [(4, 2, 64), (0, 3, 256), (3, 1, 32)], T0)
        self.stamp('issued')
        def xt_load():
            self.bl(XR, 4, vXT, rX, T5, 0, '', 'xt')
            self.bl(XR + 4, 4, vXT, rX, T5, 64, '', 'xt')
        if o['xtat'] == 0: xt_load()
        S(T0, '((((w >> 1)*16 + ((j ^ 1) & 15))*2 + (j >> 4))*8 + x)*512 + AINB')
        vm.wait('wm')
        self.stamp('wmok')
        for i in range(2):
            a(f'v_lshlrev_b32 v{cv+i}, 16, v{cv+i}')
            self.silu(cv + i, vT + i)
        for s in self.gemv_ops([wm, wm + 4], [cv, cv + 1], acc, vT, vT + 1, True): a(s)
        a(f"""s_waitcnt lgkmcnt(0)
        s_mul_i32 s{sTAG}, s{sTAG}, 0x9e3779b1
        s_add_u32 s{sTAG}, s{sTAG}, 0x7f4a7c15""")
        self.dw('ds_write_b32', vGA, acc, 1, L_A1 - MISC)
        self.barrier()
        self.r128(acc, vL32S, L_A1 - MISC); self.r128(acc + 4, vL32S, L_A1 - MISC + 16)
        if o['xtat'] == 1: xt_load()
        lg.wait_all()
        self.sum8(acc)
        a(f'v_mov_b32 v{acc+1}, s{sTAG}')
        a(f"""s_bitcmp1_b32 s{sWAVE}, 0
        s_cselect_b32 exec_lo, 0, -1
        s_cselect_b32 exec_hi, -1, 0""")
        self.bs(acc, 2, vL8, rWS, T0, 0, 'sc1')
        a('s_mov_b64 exec, -1')
        self.stamp('A1pub')
        w_next(wb[0])
        vm.wait('xs')
        self.stamp('xsok')
        self.ln_stats(xs_raw, vT, st, st + 1)
        S(T0, 'w*8 + L_ST')
        a(f"""v_lshrrev_b32 v{st}, 16, v{st}
        v_or_b32 v{st}, v{st}, v{st+1}
        v_mov_b32 v{st+1}, s{sTAG}
        v_mov_b32 v{vT}, s{T0}""")
        self.dw('ds_write_b64', vT, st, 2)
        va(vT + 1, [(0, 2, 16)], None, L_ST)
        va(vT, [(0, 2, 16), (2, 1, 1024)])
        S(T0, '((x & 6) + ((x & 1)*2 + (j >> 4))*64 + w*8)*1024 + (j & 15)*64 + SINB')
        self.barrier()
        self.r128(st, vT + 1)
        lg.wait_all()
        a('s_mov_b64 exec, 0xff')
        self.bs(st, 4, vT, rWS, T0, 0, 'sc1')
        a('s_mov_b64 exec, -1')
        self.stamp('A2pub')
        if o['xtat'] == 2: xt_load()
        w_next(wb[1])
        mg = acc
        def pre_work():
            va(vT, [(0, 5, 16), (5, 1, 4096)])
            S(T1, 'w*4 + L_MP'); va(vT + 1, [(0, 6, 64)], T1)
            va(vT + 2, [(0, 2, 32), (5, 1, 128), (4, 1, 256), (2, 2, 512)], None, L_MP)
            S(T1, '(wg*8 + w)*128 + SINB')
            va(vT + 4, [(0, 4, 8)])
        def x_unpack():
            vm.wait('xt')
            for p, q in ((0, 2), (1, 3), (4, 6), (5, 7)): a(f'v_permlane32_swap_b32 v{XR+p}, v{XR+q}')
            for i in range(8): self.unpack(xs + 2 * i, xs + 2 * i + 1, XR + i)
        self.spoll([(q, 1, T4, q * 4096 + 508) for q in range(2)], range(2), work=pre_work)
        self.stamp('apre')
        if o.get('abar', 0): a('s_barrier')
        st_ld = lambda: self.bl(st, 2, vT + 4, rWS, T1, 0, 'sc1', 'st')
        def st_go():
            self.spoll([(q, 1, T1, q * 64 + 60) for q in range(2)], range(2), work=x_unpack)
            st_ld()
            if o['fbar']: a('s_barrier')
            w_next(wb[2])
        self.try_load(lambda: self.bl(mg, 4, vT, rWS, T4, 0, 'sc1'), [mg + 1, mg + 3], vT + 3, st_go)
        self.stamp('modok')
        a(f'ds_write2_b32 v{vT+1}, v{mg}, v{mg+2} offset0:0 offset1:8'); lg.issue()
        self.barrier()
        for i in (2, 3, 0, 1): self.r128(mp + 4 * i, vT + 2, (i >> 1) * 2048 + (i & 1) * 16, i >> 1)
        S(T0, 'hp*4096 + w*512')
        a(f'v_add_u32 v{vT}, s{T0}, v{vL16}')
        S('m0', 'w*512 + L_WPHI')
        a('s_mov_b32 exec_hi, 0')
        a(f'global_load_lds_dwordx4 v{vT}, {sr(pWPHI, 2)}'); vm.issue()
        a('s_mov_b32 exec_hi, -1')
        w_next(wb[3])
        S(T0, '((rt*16 + cb)*4 + (w >> 1))*4096 + (w & 1)*256 + HF')
        va(vT, [(0, 4, 16), (4, 1, 1024), (5, 1, 512)])
        lg.wait(1); self.sum8(mp + 8)
        self.round1(mp + 8)
        lg.wait(0); self.sum8(mp)
        a(f'v_add_f32 v{mp+8}, 1.0, v{mp+8}')
        self.round2(mp + 8, mp)
        vm.wait('st')
        self.tagcheck([st + 1], None)
        a('s_cbranch_vccz L_STOK')
        q0 = list(vm.q)
        self.poll(st_ld, [st + 1])
        vm.q = q0
        a('L_STOK:')
        self.stamp('statok')
        self.unpack(st + 1, st, st)
        a(f'v_rcp_f32 v{st}, v{st}')
        for i in E2: self.pk('add', xs + i, xs + i, st + 1, bc=(1,), neg=(1,))
        self.round_list([xs + i for i in range(16)])
        for i in E2: self.pk('mul', xs + i, xs + i, st, bc=(1,))
        self.round_list([xs + i for i in range(16)])
        for h in range(2):
            rg = range(8 * h, 8 * h + 8)
            for i in rg: self.dpp('v_mul_f32', xs + i, mp + 8, xs + i, f'row_newbcast:{i}')
            self.round_list([xs + i for i in rg])
            for i in rg: self.dpp('v_add_f32', xs + i, mp, xs + i, f'row_newbcast:{i}')
            for i in range(4 * h, 4 * h + 4): a(f'v_cvt_pk_bf16_f32 v{hp+i}, v{xs+2*i}, v{xs+2*i+1}')
            self.bs(hp + 4 * h, 4, vT, rWS, T0, 2048 * h, 'sc1', 'hs')
        self.stamp('hst')
        va(vB, [(2, 2, 128), (3, 1, 64), (4, 1, 32), (0, 2, 8), (5, 1, 512)])
        a(f'v_xor_b32 v{vB+1}, 64, v{vB}')
        for q in (1, 2):
            for h in range(2): a(f'v_add_u32 v{vB+2*q+h}, {q*REG}, v{vB+h}')
        va(vT + 1, [(0, 2, 8 * 4096), (2, 2, 4096)])
        S(T0, '((rt >> 3)*4 + (rt & 7)*32)*4096 + (cb >> 1)*64 + (cb & 1)*4 + INB')
        S(sAB, 'r1*262144 + rb*4096 + HF')
        a(f"""s_cmp_ge_u32 s{sJ}, {0 if o.get('noffn') else 28}
        s_cselect_b32 s{rWG+2}, 0, s{rWG+2}
        s_cselect_b32 s{rWU+2}, 0, s{rWU+2}
        s_cselect_b32 s{rWD+2}, 0, s{rWD+2}""")
        vm.wait('hs')
        a('s_barrier')
        self.push(vT + 1, T0, 16, vT + 2, 'L_PB')
        self.stamp('hpub')
        w_next(wb[4])
        vWo, vFG, vFD = vS0, vS1, SP + 5
        def setup():
            S(sWO, 'w*16384 + cb*128'); S(sY2, '((j & 1)*8 + (j >> 3)*2)*131072' if o['worot'] else '(j & 1)*1048576')
            S(sFG, '(kq*8 + w)*(32*7168) + fs*128'); S(sFD, '(fs*8 + w)*16384 + kq*512')
            S(sM2, '((x & 3)*8 + w)*(32*12288) + (j*2 + (x >> 2))*128 + 4096')
            S(T1, '(w & 1)*64')
            va(vT + 2, [(4, 1, 32)], T1); va(vWo, [(0, 3, 16)])
            a(f'v_xor_b32 v{vWo}, v{vWo}, v{vT+2}'); va(vT + 2, [(3, 3, 2048)]); a(f'v_add_u32 v{vWo}, v{vWo}, v{vT+2}')
            S(T1, '(w & 2)*32'); va(vT + 2, [(4, 1, 32)], T1); va(vFG, [(0, 3, 16)])
            a(f'v_xor_b32 v{vFG}, v{vFG}, v{vT+2}'); va(vT + 2, [(3, 3, 7168)]); a(f'v_add_u32 v{vFG}, v{vFG}, v{vT+2}')
            S(T1, '(w & 1)*128')
            va(vT + 2, [(5, 1, 64)], T1); va(vFD, [(0, 5, 16), (5, 1, 2048)])
            a(f'v_xor_b32 v{vFD}, v{vFD}, v{vT+2}')
            S(T3, 'u0*16384'); a(f'v_add_u32 v{vCo}, s{sAB}, v{vL16}')
            S(T1, 'rb*2048 + L_QH'); a(f'v_add_u32 v0, s{T1}, v{vL16}')
        S(T6, 'wg*4096 + INB'); S(T7, '(w & 3)*128 + T6'); S(T6, 'u0*32 + T6')
        a(f's_cmp_ge_u32 s{sWAVE}, 4\ns_cselect_b32 s{T6}, s{T7}, s{T6}')
        self.spoll([(0, 2, T6, 0), (2, 2, T6, 64)], range(4), lambda: (w_next(wb[5]), setup(), a(';TOUR')))
        assert len(wq) % 3 == 0 and len(wq) <= (6 if o['xorw'] else 12)

    def gemm1(self):
        a, vm, lg, o, S, va = self.a, self.vm, self.lg, self.o, self.S, self.vaa
        LOOK = o['LOOK']; NB = LOOK + 1; assert NB <= 7
        vWo, vFG, vFD, vHo = vS0, vS1, SP + 5, 0
        self.vWo, self.vFG, self.vFD = vWo, vFG, vFD
        m2w, m2c = AV, AV + 24
        FL = self.FL = AK
        cur = self.cur = [0]
        TOK = [(0, 3, 16), (3, 2, 256), (5, 1, 128)]
        def cvt8(d, s_):
            for i in range(8): a(f'v_cvt_pk_bf16_f32 v{d+i}, v{s_+2*i}, v{s_+2*i+1}')
        self.cvt8 = cvt8
        fq = self.fq = [(m, i) for m in range(3) for i in range(4)]
        held = self.held = ([], [])
        def f_src(m, i, far=0):
            q = (i * 8 * 7168 + far * 4 * 32 * 7168, i * 4096 + far * 4 * 16384)[m == 2]
            S(sU, ('fg', 'fd')[m == 2] + ' + q', q=q & 0xffffffff)
            return (vFG, (rWG, rWU)[m]) if m < 2 else (vFD, rWD)
        def f_lds(m, i): return (L_GU + m * 32768 if m < 2 else L_DN) + i * 1024
        def f_ld(g, k, far, count=True):
            m, i = held[g][k]
            v, r = f_src(m, i, far * (1 - 2 * g))
            a(f'buffer_load_dwordx4 {vr(FL + 8*k + 4*far, 4)}, v{v}, {sr(r, 4)}, s{sU} offen nt')
            if count: vm.issue('ffn')
        sym = self.sym = []
        def ffn_reg(n=1):
            for _ in range(n):
                m, i = fq.pop(0)
                r0 = 8 * len(held[1]) + 4 * len(sym); assert r0 < 64 and (r0 < 32 or o['m2c'] >= 3)
                assert o['m2c'] != 4 or 'm2pub' in self.marks
                v, r = f_src(m, i)
                self.bl(FL + r0, 4, v, r, sU, 0, 'nt', 'ffr')
                sym.append((m, i, FL + r0))
        def ffn_dma(n=1):
            for _ in range(n):
                m, i = fq.pop(0)
                v, r = f_src(m, i)
                S('m0', 'w1k*4 + q', q=f_lds(m, i))
                self.dma(v, r, sU, 0, 'nt', 'ffn')
        self.ffn_reg, self.ffn_dma, self.f_lds = ffn_reg, ffn_dma, f_lds
        for _ in range(o['fA']): held[1].append(fq.pop(0))
        def m2_ld(i):
            if i == 0:
                S(sU, '((x & 3)*8 + w)*64'); self.va(m2c + 4, [(3, 3, 2)], sU, 0, m2c + 5)
                for k in range(4): a(f'global_load_ushort v{m2c+k}, v{m2c+4}, {sr(pC, 2)} offset:{16*k}'); vm.issue('m2')
            S(sU, 'm2 + q', q=i * 8 * 12288)
            self.bl(m2w + 4 * i, 4, self.vWM, rWM, sU, 0, 'nt', 'm2')
        wslot = lambda p: p
        def wo_dma(p, back=0):
            S(sU, '(y2 ^ q) + wo' + (' - 65536' if back else ''), q=p * 131072)
            S('m0', 'w1k + q', q=wslot(p) * 8192 - 4096 * back)
            self.dma(vWo, rWO, sU, 0, '', 'wo')
        self.wo_dma = wo_dma
        def poison(backs, t):
            a(f'v_mov_b32 v{t}, -1\nv_mov_b32 v{t+1}, -1\nv_mov_b32 v{t+2}, -1\nv_mov_b32 v{t+3}, -1')
            for back in backs:
                S(T6, '((rt*8 + w - q)*16 + cb)*256 + ST', q=4 * back); self.va(t + 4, [(0, 6, 4)])
                self.bs(t, 1, t + 4, rWS, T6, 0, 'sc1')
            S(T6, 'rt*16384 + cb*512 + XS'); self.va(t + 4, [(0, 5, 16), (5, 1, 8192)], None, 0, t + 5)
            a(f's_cmp_lg_u32 s{sWAVE}, 5\ns_cbranch_scc1 L_NOPO')
            self.bs(t, 4, t + 4, rWS, T6, 0, 'sc1', count=False)
            a('L_NOPO:')
        self.poison = poison
        seq = []
        for sg in range(36): seq += [(t, h, sg) for t in 'kqv' for h in range(2)]
        for sg in range(36, 40): seq += [('k', h, sg) for h in range(2)]
        for sg in range(36, 40): seq += [(t, h, sg) for t in 'qv' for h in range(2)]
        for h in range(2): seq += [('k', h, sg) for sg in range(40, 64)]
        for t in 'vq':
            for sg in range(40, 64): seq += [(t, h, sg) for h in ((1, 0) if (t, sg) == ('q', 63) else (0, 1))]
        bA, bH, bQ = o['bA'], o['bH'], 335
        assert bA >= 271
        bars = [24 * k - 1 for k in range(1, 10)] + [223, 239, 253, bA, bH, bQ]
        first, last = {}, {}
        for n, (t, h, sg) in enumerate(seq):
            first.setdefault(f'{t}{sg >> 2}', n); last[f'{t}{sg >> 2}'] = n; last[('A', sg)] = n
        a(f"""s_cmp_ge_u32 s{sWAVE}, 4
        s_cbranch_scc1 L_HELP
        s_setprio {o['prio']}""")
        q_hok = list(vm.q)
        ACC = dict(k=AK, v=AV, q=AQ)
        nxt = [0]; late = []
        def a_load():
            while late: a(late.pop(0))
            sg = nxt[0]; nxt[0] += 1
            if o.get('noA') and sg >= 12: return
            self.bl(AR + 4 * (sg % 24), 4, SP + 1, rWS, T3, (sg % 4) * 1024, 'sc1', ('A', sg))
            if sg % 4 == 3: late.extend([f's_add_u32 s{T3}, s{T3}, 16384', f's_and_b32 s{T3}, s{T3}, 0x3ffff'])
        def b_read(n):
            t, h, sg = seq[n]
            s = sg & 3
            off = ((sg >> 2) % 6) * 8192 + (s >> 1) * 4096 + (s & 1) * 1024
            d = RING + 4 * (n % NB); v = vB + 2 * 'kvq'.index(t) + h
            self.tr(d, v, off, ('B', n)); self.tr(d + 2, v, off + 2048, ('B', n))
        self.nopk = True
        stk, stv = Stream(self), Stream(self)
        for h in range(2):
            for q in range(2):
                stk.cap(lambda: [a(f'v_cvt_pk_bf16_f32 v{AK+16*h+4*q+i}, v{AK+16*h+8*q+2*i}, v{AK+16*h+8*q+2*i+1}') for i in range(4)])
                stk.add(lambda h=h, q=q: self.dw('ds_write_b128', vHo, AK + 16 * h + 4 * q, 4, q * 1024, f'kh{h}'), o['wcost'], 1)
            stk.mark(f'kh{h}')
            if h == 0:
                stk.cap(lambda: a(f'v_subrev_u32 v{vHo}, {L_QH - L_HV}, v{vHo}'))
                stk.until(288 + o['kdel'])
        stk.until(bH + 1)
        stk.cap(lambda: (S(T1, 'rb*2048 + L_HV'), self.va(vHo, TOK, T1, 0, vT)))
        for h in range(2):
            for q in range(2):
                stv.cap(lambda: [a(f'v_cvt_pk_bf16_f32 v{AV+16*h+4*q+i}, v{AV+16*h+8*q+2*i}, v{AV+16*h+8*q+2*i+1}') for i in range(4)])
                stv.add(lambda h=h, q=q: self.dw('ds_write_b128', vHo, AV + 16 * h + 4 * q, 4, h * 8192 + q * 1024, 'vst'), o['wcost'], 1)
        if o['m2c'] == 0:
            stv.sleep(4)
            stv.add(lambda: lg.wait('vst'))
            for i in range(4): stv.add(lambda i=i: m2_ld(i), 0, 1); stv.sleep(o.get('fgap', 4))
        while nxt[0] < o['A00']: a_load()
        vm.wait(('W', 3 if o['xorw'] else 1))
        a('s_barrier')
        self.stamp('hok')
        if not nxt[0]: a_load()
        for n in range(LOOK): b_read(n)
        while nxt[0] < o['A0']: a_load()
        seen = set(); lpend = []; owe = [0]
        Apos = list(o['Apos']); assert o['A0'] + sum(Apos) == 64
        for n in range(384):
            t, h, sg = seq[n]; cur[0] = n
            if ('A', sg) not in seen:
                assert sg < nxt[0]
                vm.wait(('A', sg)); seen.add(('A', sg))
            lg.wait(('B', n))
            d = ACC[t] + 16 * h
            a(f'v_mfma_f32_32x32x16_bf16 {vr(d, 16)}, {vr(RING + 4*(n % NB), 4)}, {vr(AR + 4*(sg % 24), 4)}, ' + (vr(d, 16) if sg else '0'))
            if self.prof and o.get('ls'):
                l0, l1, lst = o['ls']
                if lpend and n >= lpend[0][0]:
                    _, r_, k_ = lpend.pop(0); a(f'v_writelane_b32 v255, s{r_}, {k_}')
                if l0 <= n < l1 and (n - l0) % lst == 0:
                    r_ = sPL + 2 * (self.nst % 4)
                    a.items.append(('raw', f'    s_memtime {sr(r_, 2)}')); lpend.append((n + 4, r_, self.nst)); self.stnames.append(f'n{n}'); self.nst += 1
            def a_try():
                p, r = divmod(n, 24)
                ao = o['aoff'] if p else 0; r -= ao
                if n < 240 and r >= 0 and (r + 1) * Apos[p] // (24 - ao) > r * Apos[p] // (24 - ao): owe[0] += 1
                if owe[0] and (nxt[0] < 24 or last[('A', nxt[0] - 24)] <= n): a_load(); owe[0] -= 1
                elif late: a(late.pop(0))
            if o['apos'] == 0: a_try()
            bud = [o['kbud'], 1]
            if n >= 264 + o['kdel']: stk.pull(bud, bud[0])
            bud = [o['vbud'], 1]
            if n > bQ + 2: stv.pull(bud, bud[0])
            if n + LOOK < 384: b_read(n + LOOK)
            if o['apos'] == 1: a_try()
            if n in bars:
                if n in (bA, bH):
                    assert f'kh{int(n == bH)}' in self.marks
                    lg.wait(f'kh{int(n == bH)}')
                    if 'prio2' in o and n == bA: a(f's_setprio {o["prio2"]}')
                if not (o.get('noB') and n < 200): a('s_barrier')
                if o.get('gst'): self.stamp(f'b{n}')
        assert not (stk.q or stv.q) and nxt[0] == 64
        self.stamp('gemm1')
        vq, wph = AR + 16, AR + 24
        S(T1, 'rb*2048 + L_QH'); a(f'v_add_u32 v{vHo}, s{T1}, v{vL16}')
        va(vT, [(2, 2, 64), (4, 1, 32), (0, 2, 8), (5, 1, 256)], None, L_WPHI)
        for s in range(2):
            for u in range(2): self.tr(wph + 4 * s + 2 * u, vT, s * 1024 + u * 512)
        cvt8(AR, AQ + 16)
        for q in range(2): self.dw('ds_write_b128', vHo, AR + 4 * q, 4, q * 1024)
        cvt8(vq, AQ)
        if o['m2c'] == 1:
            for i in range(4): m2_ld(i)
        a('s_setprio 0')
        a('s_branch L_JOIN')
        a('L_HELP:')
        vm.q = list(q_hok); lg.reset()
        vm.wait(('W', 3 if o['xorw'] else 1))
        a('s_barrier')
        vis = {}
        pace = [1]
        def w_sec(t, n):
            if o.get('noW'): return
            for back in (1, 0):
                S(sU, '((u0 + n) & 15)*UR + wb + q', n=n, q=(dict(q=0, k=2048, v=4096)[t] - back * 4 * 49152) & 0xffffffff)
                S('m0', 'w1k + q', q='kvq'.index(t) * REG + (n % 6) * 8192 - back * 4096)
                self.dma(vWd, rW, sU, 0, '', ('W', t, n))
                if o['wpace'] and pace[0]: a(f's_waitcnt vmcnt({o["wpace"]})')
        for n, t in self.wq: w_sec(t, n)
        ka, wp2, pa, pb, ee, vPW = AR, AR + 16, AR + 32, AR + 48, AR + 64, AR + 80
        va(vT, [(2, 2, 64), (4, 1, 32), (0, 2, 8), (5, 1, 256)], None, L_WPHI)
        for hs in range(4):
            for u in range(2): self.tr(wp2 + 4 * hs + 2 * u, vT, hs * 1024 + u * 512)
        S(T1, 'rb*1024 + L_PHK'); va(vPW, TOK, T1)
        def touch(boxes):
            a('s_waitcnt lgkmcnt(0)')
            for q, b in enumerate(boxes):
                a(f's_load_dword s{sPL + 2*q}, {sr(rWS, 2)}, s{sINB} offset:{b * 512} glc')
                a(f's_load_dword s{sPL + 2*q + 1}, {sr(rWS, 2)}, s{sINB} offset:{b * 512 - 256} glc')
        wsched = {int(k): v.split() for k, v in o['wsched'].items()}
        for k in range(1, 5): wsched[k] = [f'{t}{k + 5}' for t in 'kqv'] + wsched.get(k, [])
        need = {}
        for u in first:
            k = len([b for b in bars if b < first[u] - LOOK])
            if k: need.setdefault(k, []).append(u)
        done = {f'{t}{n}' for n in range(6) for t in 'kvq'}
        def h_bar(k):
            if k < 5: vm.wait(('W', k + 1))
            for u in need.get(k, []):
                assert u in done, (u, k)
                vm.wait(('W', u[0], int(u[1:])))
            if not (o.get('noB') and k < 9): a('s_barrier')
            for u in wsched.get(k, []):
                assert last[f'{u[0]}{int(u[1:]) - 6}'] <= bars[k - 1], (u, k)
                w_sec(u[0], int(u[1:])); done.add(u)
        hm, hc, ha, ht = AV, AQ, AQ + 8, AQ + 16
        if o.get('fP'): S(T4, o['fP'])
        if o['m2c'] == 4:
            assert o['fA'] <= 2
            hc, ha, ht = AK + 16, AK + 24, RING + 24
        if o['m2c'] >= 3:
            S(T5, o['m2k3'])
            S(sU, '((x & 3)*4 + w - 4)*128'); va(ht, [(3, 3, 2)], sU)
            for i in range(8): a(f'global_load_ushort v{hc+i}, v{ht}, {sr(pC, 2)} offset:{16*i}'); vm.issue('c2')
            S(T6, '((x & 3)*4 + w - 4)*(64*12288) + (j*2 + (x >> 2))*128 + 4096')
        for k in range(1, 14):
            if k == 13: lg.wait_all()
            if o['m2c'] == 3 and k == o['m2e'] + 1: lg.wait_all()
            h_bar(k)
            if o['m2c'] == 4 and k == 3:
                vm.wait('c2')
                for i in range(8):
                    a(f'v_lshlrev_b32 v{hc+i}, 16, v{hc+i}')
                    self.silu(hc + i, ht + (i & 1))
            if o['m2c'] == 3:
                nb = o['m2nb']
                for b in range(nb):
                    if k <= o['m2g'] - o.get('m2lag', 2) and k - b * o['m2db'] >= 1:
                        a(f's_cmp_lg_u32 s{T5}, {k - b * o["m2db"]}\ns_cbranch_scc1 L_NM2_{k}_{b}')
                        for i in range(b * 8 // nb, (b + 1) * 8 // nb):
                            S(sU, 'T6 + q', q=i * 8 * 12288)
                            a(f'buffer_load_dwordx4 {vr(hm + 4*i, 4)}, v{self.vWM}, {sr(rWM, 4)}, s{sU} offen nt')
                        a(f'L_NM2_{k}_{b}:')
                if k == 3:
                    vm.wait('c2')
                    for i in range(8):
                        a(f'v_lshlrev_b32 v{hc+i}, 16, v{hc+i}')
                        self.silu(hc + i, ht + (i & 1))
                g0 = o['m2g']
                ke = o['m2e']
                if g0 <= k <= ke:
                    if k == g0:
                        vm.wait(('W', 'k', k + 4 if o.get('m2lag', 2) == 2 else k + 5))
                        mops = self.gemv_ops([hm + 4 * i for i in range(8)], [hc + i for i in range(8)], ha, ht, ht + 1, False)
                    if o.get('gprio'): a('s_setprio 3')
                    for _ in range(len(mops) if k == ke else 144 // (ke + 1 - g0)): a(mops.pop(0))
                    if o.get('gprio'): a('s_setprio 0')
                    if k == ke: self.dw('ds_write_b32', self.vGA, ha, 1, L_M2 - MISC)
                if k == ke + 1:
                    a(f"""s_cmp_lg_u32 s{sWAVE}, 4
                    s_cbranch_scc1 L_M2F
                    ds_read_b128 {vr(ha, 4)}, v{self.vL32S} offset:{L_M2 - MISC + 16}""")
                    S(T0, '((j*2 + (x >> 2))*4 + (x & 3))*512 + MODP2')
                    a(f"""s_waitcnt lgkmcnt(0)
                    v_add_f32 v{ha}, v{ha}, v{ha+1}
                    v_add_f32 v{ha+2}, v{ha+2}, v{ha+3}
                    v_mov_b32 v{ha+1}, s{sTAG}
                    v_add_f32 v{ha}, v{ha}, v{ha+2}""")
                    self.bs(ha, 2, self.vL8, rWS, T0, 0, 'sc1', count=False)
                    a('L_M2F:')
            if o.get('fP') and k <= 8:
                a(f's_cmp_lg_u32 s{T4}, {k}\ns_cbranch_scc1 L_NFP_{k}')
                for i in range(o['fA']):
                    for far in range(2): f_ld(1, i, far, False)
                a(f'L_NFP_{k}:')
            if k == 2 and o['poisat'] == 0: poison((0, 1), AR + 88); S(T6, '((x & 3)*4 + w - 4)*(64*12288) + (j*2 + (x >> 2))*128 + 4096')
            if k in (1, 3, 5) and o.get('touch', 1): touch({1: (1, 7), 3: (2, 3), 5: (5, 6)}[k])
            if k == o['tlbk'] and o['tlb'] & 2:
                a(f's_cmp_lg_u32 s{sWAVE}, 7\ns_cbranch_scc1 L_NTLB\ns_waitcnt lgkmcnt(0)')
                S(T0, '(j & 15)*2097152'); S(T1, '(j & 3)*2097152'); S(T2, '(j & 1)*2097152')
                a(f's_load_dword s{sPL}, {sr(rWS, 2)}, s{T0} offset:0')
                for q, r in enumerate((rWG, rWU, rWD)): a(f's_load_dword s{sPL + 1 + q}, {sr(r, 2)}, s{T1} offset:0')
                a(f's_load_dword s{sPL + 4}, {sr(rOUT, 2)}, s{T2} offset:0')
                a(f's_load_dword s{sPL + 5}, {sr(rWO, 2)}, 0')
                a('L_NTLB:')
            if k == 4 and o.get('tm2'):
                S(T0, '((j*2 + (x >> 2))*4 + (x & 3))*512 + (w - 4)*128 + MODP2')
                a('s_waitcnt lgkmcnt(0)')
                for q in range(2): a(f's_load_dword s{sPL + q}, {sr(rWS, 2)}, s{T0} offset:{q * 64} glc')
            if k == 6 and o['tz']:
                S(T0, '(hp*8 + w - 4)*1024 + r1*64 + ZP'); S(T1, '(rt*16 + cb)*64 + UP')
                a('s_waitcnt lgkmcnt(0)')
                for q in range(2): a(f's_load_dword s{sPL + q}, {sr(rWS, 2)}, s{T0} offset:{q * 4096} glc')
                a(f's_load_dword s{sPL + 2}, {sr(rWS, 2)}, s{T1} offset:0 glc')
            if k == 8 and o.get('touch', 1):
                S(T0, 'fs*8192 + (w - 4)*256 + HGR')
                a('s_waitcnt lgkmcnt(0)')
                for q in range(4): a(f's_load_dword s{sPL + q}, {sr(rWS, 2)}, s{T0} offset:{q * 2048 + 1024 + 252} glc')
        pace[0] = 0
        def logits(h, pp):
            if o.get('hprio'): a(f's_setprio {o["hprio"]}')
            for q in range(2): self.r128(ka + 4 * q, vHo, q * 1024, ('kh', q))
            if h == 0: a(f'v_subrev_u32 v{vHo}, {L_QH - L_HV}, v{vHo}')
            for q in range(2):
                lg.wait(('kh', q))
                a(f'v_mfma_f32_32x32x16_bf16 {vr(pp, 16)}, {vr(wp2 + 8*h + 4*q, 4)}, {vr(ka + 4*q, 4)}, ' + (vr(pp, 16) if q else '0'))
            if o.get('hprio') and not o.get('hlong'): a('s_setprio 0')
        logits(0, pa)
        self.stamp('klog')
        hs = Stream(self)
        for h, pp in ((0, pa), (1, pb)):
            hs.cap(lambda: self.softmax_pm(pp, ee, ee, vT))
            k = max(i for i, it in enumerate(hs.q) if it[0] == 4.75) - 8
            tailq = hs.q[k + 1:]; hs.q = hs.q[:k + 1]
            wr = lambda fb, h=h: (0, 0, lambda: self.dw('ds_write_b128', vPW, ee + 4 * fb, 4, h * 16384 + fb * 4096, ('phk', h)))
            hs.q += [wr(0)] + tailq[:4] + [wr(1), wr(2)] + tailq[4:] + [wr(3)]
            if h == 0:
                n1 = len(hs.q)
                hs.add(lambda: None)
        hs.q.insert(n1 + 34, (0, 0, lambda: lg.wait(('phk', 0))))
        ex = {}
        def put(i, fn):
            while i in ex: i += 1
            ex[i] = fn
        nq = int(n1 * o['hq'])
        put(nq, lambda: h_bar(15))
        nh = int(n1 * o['hh'])
        put(nh, lambda: (h_bar(14), logits(1, pb)))
        g1, g2 = o['hgap']
        ff = [(lambda k=k, far=far: f_ld(1, k, far)) for k in range(o['fA']) for far in range(2) if not o.get('fP')]
        pre = [(lambda k=k: m2_ld(k)) for k in range(4)] if o['m2c'] < 2 else []
        if o['m2c'] == 4:
            def m2h(i):
                S(sU, 'T6 + q', q=i * 8 * 12288)
                self.bl(hm + 4 * i, 4, self.vWM, rWM, sU, 0, 'nt')
            for i in range(8): put(3 + o['m2gap'] * i, lambda i=i: m2h(i))
            self.m2h = (hm, hc, ha, ht)
        npre = o['fpre'] - len(pre)
        pre += ff[:npre]; ff = ff[npre:]
        for k, fn in enumerate(pre): put(nh + 5 + g1 * k, fn)
        wl = self.wo_left = [6, 7, 8, 9, 10, 11] + [12, 13, 14, 15] + [0, 1, 2, 3, 4, 5]
        post = []
        for k in range(o['woA']): post += [lambda: wo_dma(wl[0], 1), lambda: wo_dma(wl.pop(0))]
        post = post[:8] + ff + post[8:] if o.get('wofirst', 1) else ff + post
        for k, fn in enumerate(post): put(nq + 5 + g2 * k, fn)
        for i, (v_, l_, fn) in enumerate(hs.q):
            if i in ex: ex.pop(i)()
            fn()
        for i in sorted(ex): ex[i]()
        self.nopk = False
        S(T1, 'rb*2048 + L_QH'); a(f'v_add_u32 v{vHo}, s{T1}, v{vL16}')
        assert wph == wp2 + 8
        if o.get('hprio'): a('s_setprio 0')
        self.stamp('ksm')
        a('L_JOIN:')
        vm.q = ['m2'] * (8 if o['m2c'] < 2 else 0); lg.q = [None]
        self.m2_ld = m2_ld
        self.vHo = vHo

    def middle(self):
        a, vm, lg, o, S, va = self.a, self.vm, self.lg, self.o, self.S, self.vaa
        vL8, vL32S, vGA, vHo, ffn_reg = self.vL8, self.vL32S, self.vGA, self.vHo, self.ffn_reg
        pp, ee, ph, vq, wph = AQ, AQ + 16, AR, AR + 16, AR + 24
        fA, fB, kvd, zd, ones = AR + 32, AR + 48, AR + 80, AR + 88, AR + 92
        kp, zz, zf, kf, k2 = AR + 32, AR + 40, AR + 44, AR + 60, AR + 76
        m2w, m2a, m2c, m2t = AV, AV + 16, AV + 24, AV + 28
        vPA, vPB, vPC, vKP, vXF = RING + 16, RING + 17, RING + 18, RING + 19, RING + 20
        md, wr1 = RING, RING + 4
        self.md, self.wr1 = md, wr1
        wl = self.wo_left
        wo1 = lambda: self.wo_dma(wl.pop(0))
        fw = o['fwin']
        va(vPB, [(0, 1, 8), (2, 2, 16), (4, 1, 64), (1, 1, 128), (5, 1, 256)])
        S(T0, 'w*4096 + L_PHK'); a(f'v_add_u32 v{vPA}, s{T0}, v{vPB}')
        S(T0, 'kh*8192 + L_HV'); a(f'v_add_u32 v{vPB}, s{T0}, v{vPB}')
        for i in range(4): a(f'v_mov_b32 v{ones+i}, 0x3f803f80')
        S(T0, '((hp*8 + w)*32 + r1)*1024 + KVP'); S(T2, 'T0 + 16384')
        S(T3, '(hp*8 + w)*1024 + ZP'); S(T1, 'r1*64 + T3')
        self.barrier()
        self.stamp('phik')
        def kvm(u):
            lg.wait(('kv', u))
            for db in range(2):
                a(f'v_mfma_f32_16x16x32_bf16 {vr(kvd + 4*db, 4)}, {vr(fA + 4*u, 4)}, {vr(fB + 8*u + 4*db, 4)}, ' + ('0' if u == 0 else vr(kvd + 4*db, 4)))
            a(f'v_mfma_f32_16x16x32_bf16 {vr(zd, 4)}, {vr(fA + 4*u, 4)}, {vr(ones, 4)}, ' + ('0' if u == 0 else vr(zd, 4)))
        for ts in range(4):
            self.tr(fA + 4 * ts, vPA, ts * 1024, ('kv', ts)); self.tr(fA + 4 * ts + 2, vPA, ts * 1024 + 512, ('kv', ts))
            for db in range(2):
                for rd in range(2): self.tr(fB + 8 * ts + 4 * db + 2 * rd, vPB, ts * 2048 + db * 1024 + rd * 512, ('kv', ts))
            if ts >= 2: kvm(ts - 2)
        kvm(2); kvm(3)
        a(f"""s_cmp_lt_u32 s{sWAVE}, 4
        s_cbranch_scc1 L_NOQX
        ds_read_b128 {vr(vq, 4)}, v{vHo}
        ds_read_b128 {vr(vq + 4, 4)}, v{vHo} offset:1024
        L_NOQX:""")
        self.bs(kvd, 4, vL16, rWS, T0, 0, 'sc1', 'kvs')
        self.bs(kvd + 4, 4, vL16, rWS, T2, 0, 'sc1', 'kvs')
        a('s_mov_b32 exec_lo, 0x00010001')
        a('s_mov_b32 exec_hi, 0x00010001')
        self.bs(zd, 4, vL, rWS, T1, 0, 'sc1', 'kvs')
        a('s_mov_b64 exec, -1')
        lg.wait_all()
        a(f'v_mfma_f32_32x32x16_bf16 {vr(pp, 16)}, {vr(wph, 4)}, {vr(vq, 4)}, 0')
        a(f'v_mfma_f32_32x32x16_bf16 {vr(pp, 16)}, {vr(wph + 4, 4)}, {vr(vq + 4, 4)}, {vr(pp, 16)}')
        self.stamp('kvst')
        if o['poisat'] == 1: self.poison((0,), RING + 22)
        if o['m2c'] == 2:
            for i in range(4): self.m2_ld(i)
        va(vPC, [(0, 3, 32 * 4096), (3, 1, 4 * 4096)])
        S(T4, '(wg & 0x1b)*4096 + (r1 >> 1)*64 + (r1 & 1)*4 + INB + 512')
        va(vKP, [(3, 3, 1024), (0, 3, 16)])
        va(vXF, [(0, 3, 16), (5, 1, 8)])
        qm, qs = o['qmid'], o['qsplit']
        self.softmax_pm(pp, ee, ph, vT, part=1, split=qm)
        vm.wait('kvs')
        a('s_barrier')
        self.push(vPC, T4, 16, vPB, 'L_PC')
        self.stamp('kvpub')
        if o['poisat'] == 2: self.poison((0,), RING + 22)
        self.weave(lambda: [a(f'v_exp_f32 v{r+i}, v{r+i}') for i in range(qm, qs) for r in (ee, pp)], [wo1] * o['wowin'][0])
        S(T0, '(hp*16 + r1)*16384 + w*128 + KVP'); S(T1, 'T0 + 8192')
        S(T2, '(hp*16 + r1)*1024 + w*128 + KIN'); S(T4, 'T4 + 6*512')
        self.inbox(1, 2, work=lambda: (self.weave(lambda: self.softmax_pm(pp, ee, ph, vT, part=2, split=qs), [wo1] * o['wowin'][1]), self.stamp('cw')))
        a('s_barrier')
        self.stamp('kvok')
        self.bl(kp, 4, vKP, rWS, T0, 0, 'sc1', 'kp')
        self.bl(kp + 4, 4, vKP, rWS, T1, 0, 'sc1', 'kp')
        self.bl(zz, 4, vL16, rWS, T3, 0, 'sc1', 'z')
        if fw[0]: a('s_barrier')
        ffn_reg(fw[0])
        S(T1, 'w*32 + L_ZF'); va(vT + 2, [(0, 2, 8), (5, 1, 4)], T1)
        S(T1, 'w*1024 + L_KVF'); va(vT + 1, [(0, 4, 16), (5, 1, 512), (4, 1, 8)], T1)
        S(T1, 'kh*128 + L_ZF'); va(vT + 3, [(5, 1, 16)], T1)
        S(T1, 'kh*4096 + L_KVF'); a(f'v_add_u32 v{vPA}, s{T1}, v{vL16}')
        M2 = o['m2c'] < 3
        m2ops = []; k = o.get('m2k', 24)
        if M2:
            vm.wait('m2')
            for i in range(4):
                a(f'v_lshlrev_b32 v{m2c+i}, 16, v{m2c+i}')
                self.silu(m2c + i, m2t + (i & 1))
            m2ops = self.gemv_ops([m2w + 4 * i for i in range(4)], [m2c + i for i in range(4)], m2a, m2t, m2t + 1, True)
        for s_ in m2ops[:k]: a(s_)
        if o['m2c'] == 4:
            hm, hc, ha, ht = self.m2h
            hops = self.gemv_ops([hm + 4 * i for i in range(8)], [hc + i for i in range(8)], ha, ht, ht + 1, True)
            a(f's_cmp_lt_u32 s{sWAVE}, 4\ns_cbranch_scc1 L_HG1')
            for s_ in hops: a(s_)
            a(f'ds_write_b32 v{vGA}, v{ha} offset:{L_M2 - MISC}\nL_HG1:')
        def red4(r, ctls):
            for i in range(2): a(f'v_permlane32_swap_b32 v{r+i}, v{r+2+i}')
            self.pk('add', r, r, r + 2)
            for ctl in ctls:
                for i in range(2): self.dpp('v_add_f32', r + i, r + i, r + i, ctl)
            for i in range(2): a(f'v_mov_b32 v{r+2+i}, v{r+i}')
            for i in range(2): a(f'v_permlane16_swap_b32 v{r+i}, v{r+2+i}')
            self.pk('add', r, r, r + 2)
            a(f'v_cvt_pk_bf16_f32 v{r}, v{r}, v{r+1}')
        vm.wait('kp')
        self.pk('add', kp, kp, kp + 4); self.pk('add', kp + 2, kp + 2, kp + 6)
        red4(kp, ['row_ror:8'])
        a(f"""v_mov_b32 v{kp+1}, s{sTAG}
        s_mov_b32 exec_lo, 0xff
        s_mov_b32 exec_hi, 0xff""")
        self.bs(kp, 2, vXF, rWS, T2, 0, 'sc1')
        a('s_mov_b64 exec, -1')
        if o['C2dir'] == 0:
            self.barrier()
            self.push(vPC, T4, 16, vPB, 'L_PC2')
        if o['m2c'] == 4:
            a(f"""s_cmp_lg_u32 s{sWAVE}, 3
            s_cbranch_scc1 L_M2F
            ds_read_b128 {vr(ha, 4)}, v{vL32S} offset:{L_M2 - MISC + 16}""")
            S(T5, '((j*2 + (x >> 2))*4 + (x & 3))*512 + MODP2')
            a(f"""s_waitcnt lgkmcnt(0)
            v_add_f32 v{ha}, v{ha}, v{ha+1}
            v_add_f32 v{ha+2}, v{ha+2}, v{ha+3}
            v_mov_b32 v{ha+1}, s{sTAG}
            v_add_f32 v{ha}, v{ha}, v{ha+2}""")
            self.bs(ha, 2, vL8, rWS, T5, 0, 'sc1', count=False)
            a('L_M2F:')
            self.marks.add('m2pub')
        self.stamp('c2pub')
        num, den = pp, ee
        vm.wait('z')
        self.weave(lambda: (red4(zz, ['row_ror:4', 'row_ror:8']), [a(s_) for s_ in m2ops[k:]]), [wo1] * o['wowin'][2])
        self.dw('ds_write_b32', vT + 2, zz, 1)
        if M2: self.dw('ds_write_b32', vGA, m2a, 1, L_M2 - MISC)
        self.barrier()
        for fb in range(4): self.r128(zf + 4 * fb, vT + 3, fb * 32)
        if M2: self.r128(m2a, vL32S, L_M2 - MISC); self.r128(m2a + 4, vL32S, L_M2 - MISC + 16)
        S(T5, '((j*2 + (x >> 2))*4 + (x & 3))*512 + MODP2')
        lg.wait_all()
        S(T0, '(hp*8 + w)*2048 + KIN')
        def den_work():
            for fb in range(4):
                a(f'v_mfma_f32_32x32x16_bf16 {vr(den, 16)}, {vr(zf + 4*fb, 4)}, {vr(ph + 4*fb, 4)}, ' + ('0' if fb == 0 else vr(den, 16)))
            if M2:
                a(f's_cmp_lg_u32 s{sWAVE}, 3\ns_cbranch_scc1 L_M2F')
                self.nopk = True; self.sum8(m2a); self.nopk = False
                a(f'v_mov_b32 v{m2a+1}, s{sTAG}')
                self.bs(m2a, 2, vL8, rWS, T5, 0, 'sc1', count=False)
                a('L_M2F:')
            self.round1(den)
            a(f'v_add_f32 v{den}, 0x358637bd, v{den}')
            self.round1(den)
            a(f'v_rcp_f32 v{den}, v{den}')
            self.stamp('c2w')
        ldk2 = lambda: [self.bl(k2 + 4 * q, 4, vL16, rWS, T0, q * 1024, 'sc1') for q in range(2)]
        if o['C2dir'] == 0:
            self.inbox(7, 2, work=den_work)
            self.stamp('c2h')
        if o['C2dir'] == 2: den_work()
        self.try_load(ldk2, [k2 + 1, k2 + 3, k2 + 5, k2 + 7], vT, lambda: (ffn_reg(fw[1]), den_work() if o['C2dir'] == 1 else None))
        for db in range(2):
            a(f'ds_write2_b32 v{vT+1}, v{k2+4*db}, v{k2+4*db+2} offset0:{64*db} offset1:{64*db+1}'); lg.issue()
        self.barrier()
        self.stamp('kvred')
        for fb in range(4): self.r128(kf + 4 * fb, vPA, fb * 1024, ('kf', fb))
        S(T0, '((r1*8 + rb*2)*32 + hp*2 + kh)*1024 + OF')
        va(vKP, [(0, 4, 16), (4, 1, 32768), (5, 1, 256)])
        for fb in range(4):
            lg.wait(('kf', fb))
            a(f'v_mfma_f32_32x32x16_bf16 {vr(num, 16)}, {vr(kf + 4*fb, 4)}, {vr(ph + 4*fb, 4)}, ' + ('0' if fb == 0 else vr(num, 16)))
        S(T5, '((w >> 1)*16 + cb)*2048 + (w & 1)*1024 + MODP2')
        self.ld_md = lambda: self.bl(md, 4, vL16, rWS, T5, 0, 'sc1', 'md')
        S(T6, 'cb*128'); va(vPA, [(0, 2, 2), (5, 1, 8), (4, 1, 16), (2, 2, 32)], T6)
        a(f'global_load_ushort v{wr1}, v{vPA}, {sr(pWR, 2)}'); vm.issue('md')
        if not o['mdlate']: self.ld_md()
        for h in range(2):
            self.round_list([num + i for i in range(8 * h, 8 * h + 8)])
            for i in range(8 * h, 8 * h + 8, 2): self.pk('mul', num + i, num + i, den, bc=(1,))
            for i in range(4 * h, 4 * h + 4): a(f'v_cvt_pk_bf16_f32 v{vq+i}, v{num+2*i}, v{num+2*i+1}')
            self.bs(vq + 4 * h, 4, vKP, rWS, T0, 512 * h, 'sc1', 'os')
        self.stamp('ost')
        if o['mdlate']: self.ld_md()
        if o['poisat'] == 3: self.poison((0,), RING + 22)
        while wl: wo1()

    def gemm2(self):
        a, vm, lg, o, S, va = self.a, self.vm, self.lg, self.o, self.S, self.vaa
        md, wr1, fw = self.md, self.wr1, o['fwin']
        AD2 = o['AD2']
        R = self.R = dict(acc=AQ, gaf=AQ + 16, cbf=AR + 16, sbf=AV, gbf=AV + 16, xf=AR, fr=AR + 32, Br=AR + 40, Ar=AR + 72, vB=RING + 8, sv=RING, up=RING + 12)
        acc, gaf, cbf, sbf, gbf, xf, fr, Br, Ar, vB, sv, up = [R[k] for k in 'acc gaf cbf sbf gbf xf fr Br Ar vB sv up'.split()]
        ARS = [Ar + 4 * i for i in range(6)] + [RING + 16, RING + 20, RING + 24]; assert AD2 <= 9
        va(vB, [(2, 2, 128), (4, 2, 1024), (0, 1, 16), (1, 1, 8), (3, 2, 32)])
        S(T4, '(w ^ (%s))*4096' % o['g2r']); S(T1, '(T4*4) ^ (y2 >> 4)')
        a(f'v_add_u32 v{vB}, s{T1}, v{vB}')
        for ct in range(1, 4): a(f'v_xor_b32 v{vB+ct}, {32*ct}, v{vB}')
        va(vT + 1, [(0, 3, 8 * 4096), (3, 1, 4096)])
        S(T2, '((r1 >> 2)*2 + (r1 & 3)*64)*4096 + (hp >> 1)*64 + (hp & 1)*4 + INB + 1024')
        for i in range(8): self.unpack(xf + 2 * i, xf + 2 * i + 1, XR + i)
        S(T6, '(rt*8 + w)*32768 + OF')
        def md_stage():
            vm.wait('md')
            self.tagcheck([md + 1, md + 3], vT + 2)
            a('s_cbranch_vccz L_MGOK')
            q0 = list(vm.q)
            self.poll(self.ld_md, [md + 1, md + 3], vT + 2)
            vm.q = q0
            a('L_MGOK:')
            a(f'ds_write2_b32 v{vT}, v{md}, v{md+2} offset0:0 offset1:4'); lg.issue()
        S(T1, '(w >> 1)*1024 + (w & 1)*8 + L_MD'); va(vT, [(0, 5, 32), (5, 1, 4)], T1)
        va(vT + 3, [(0, 2, 16), (5, 1, 64), (4, 1, 128), (2, 2, 256)], None, L_MD)
        if not o['mdlate']: md_stage()
        vm.wait('os'); vm.wait('wo')
        self.barrier()
        self.push(vT + 1, T2, 16, vT + 2, 'L_PD')
        self.stamp('opub')
        if o['mdlate']: md_stage(); self.barrier()
        S(T5, 'wg*4096 + (T4 >> 6) + INB + 1024')
        self.ffn_reg(fw[2])
        t4 = Br
        for q in range(4): self.r128(t4 + 4 * q, vT + 3, q * 1024)
        va(vT + 4, [(0, 2, 4), (5, 1, 16), (4, 1, 32), (2, 2, 64)], None, L_GB)
        S(T0, '(rt*16 + cb)*64 + UP')
        lg.wait_all()
        def d_work():
            for q in range(4):
                self.pk('add', t4 + 4 * q, t4 + 4 * q, t4 + 4 * q + 2)
                a(f'v_add_f32 v{sv+q}, v{t4+4*q}, v{t4+4*q+1}')
            self.round_list([sv + q for q in range(4)])
            a(f'v_add_f32 v{sv+2}, 1.0, v{sv+2}')
            a(f'v_lshlrev_b32 v{wr1}, 16, v{wr1}')
            self.round1(sv + 2)
            a(f'ds_write_b32 v{vT+4}, v{sv+3}')
            uu, hi, lo, t = t4, t4 + 1, t4 + 2, t4 + 4
            a(f'v_mul_f32 v{uu}, v{sv+2}, v{wr1}')
            a(f'v_cvt_pk_bf16_f32 v{hi}, 0, v{uu}')
            a(f'v_sub_f32 v{lo}, v{uu}, v{hi}')
            self.allreduce(uu, t + 3)
            for k, r in enumerate((hi, lo, wr1)): a(f'v_mov_b32_dpp v{t+k}, v{r} row_shl:1 row_mask:0xf bank_mask:0xf')
            for k, r in enumerate((hi, lo, wr1)): a(f'v_cvt_pk_bf16_f32 v{t+k}, v{r}, v{t+k}')
            a(f"""v_mov_b32 v{uu+1}, s{sTAG}
            v_mov_b32 v{uu+2}, 0
            s_cmp_lg_u32 s{sWAVE}, 2
            s_cbranch_scc1 L_NOUP
            s_mov_b64 exec, 1""")
            self.bs(uu, 2, uu + 2, rWS, T0, 0, 'sc1', count=False)
            a('s_mov_b64 exec, -1\nL_NOUP:')
            for i in range(8):
                a(f'v_mov_b32 v{fr+i}, 0x3f803f80')
                for k in range(3): a(f'v_mov_b32_dpp v{fr+i}, v{t+k} row_newbcast:{2*i} row_mask:0xf bank_mask:{hex(2 << k)}')
            a(f'v_mov_b32 v{RING+14}, v{sv+1}\nv_mov_b32 v{RING+15}, v{sv+3}\nv_mov_b32 v{RING+5}, v{sv+2}')
            for dst, q in ((gaf, 0),):
                for i in range(16): a(f'v_mov_b32_dpp v{dst+i}, v{sv+q} row_newbcast:{i} row_mask:0xf bank_mask:0xf')
            self.stamp('dw')
        L2 = o['LOOK2']
        def b2_read(m):
            H, ct = divmod(m, 4)
            for rd in range(2): self.tr(Br + 4 * (m % 8) + 2 * rd, vB + ct, (H & 3) * 4096 + rd * 512, ('B', m))
            if H % 4 == 3 and H < 31: a(f'v_xor_b32 v{vB+ct}, {((H >> 2) ^ ((H >> 2) + 1)) * 16384}, v{vB+ct}')
        def a2_load(H):
            if H % 4 == 0: S(T7, '(T4 ^ n) + T6', n=H * 1024)
            self.bl(ARS[H % AD2], 4, vL16, rWS, T7, (H % 4) * 1024, 'sc1', ('A', H))
        self.spoll([(0, 2, T5, 0)], range(2), d_work)
        self.stamp('ook1')
        if not o['earlyD']: a('s_barrier')
        for H in range(AD2):
            if H == 4 and o['earlyD']: a('s_barrier')
            a2_load(H)
            if H == 0:
                for m in range(L2): b2_read(m)
        self.stamp('ook')
        S(T0, 'rt*1024 + UP'); va(vT + 6, [(0, 4, 64)])
        self.ld_up = lambda: self.bl(up, 2, vT + 6, rWS, T0, 0, 'sc1', 'up')
        lpend = []
        for H in range(32):
            if self.prof and o.get('ls2'):
                if lpend: r_, k_ = lpend.pop(0); a(f'v_writelane_b32 v255, s{r_}, {k_}')
                if H < 31:
                    r_ = sPL + 2 * (self.nst % 4)
                    a.items.append(('raw', f'    s_memtime {sr(r_, 2)}')); lpend.append((r_, self.nst)); self.stnames.append(f'n{H}'); self.nst += 1
            if o.get('g2p') and H in (0, o['g2p']):
                a(f's_cmp_lt_u32 s{sWAVE}, 4\ns_cbranch_scc1 L_G2P{H}\ns_setprio {1 if H == 0 else 0}\nL_G2P{H}:')
            vm.wait(('A', H))
            for ct in range(4):
                m = 4 * H + ct
                pw = o['pairw2']
                if ct % pw == 0: lg.wait(('B', m + pw - 1))
                a(f'v_mfma_f32_16x16x32_bf16 {vr(acc + 4*ct, 4)}, {vr(Br + 4*(m % 8), 4)}, {vr(ARS[H % AD2], 4)}, ' + ('0' if H == 0 else vr(acc + 4*ct, 4)))
                if m + L2 < 128: b2_read(m + L2)
            if H + AD2 < 32: a2_load(H + AD2)
            if H + AD2 == 31:
                self.ld_up(); self.ffn_reg(fw[3])
        self.stamp('gemm2')
        if o.get('dbg'):
            S(T1, '(wg*8 + w)*32768 + 0x4000000'); va(vT, [(0, 6, 4)])
            for k, r in enumerate(list(range(40, 104)) + [24, 25, 26, 27]):
                if k % 16 == 0 and k: S(T1, 'T1 + 4096')
                self.bs(r, 1, vT, rWS, T1, (k % 16) * 256, '', 'dbg')
                if k % 16 == 15: vm.wait('dbg')

    def tail(self):
        a, vm, lg, o, S, va = self.a, self.vm, self.lg, self.o, self.S, self.vaa
        R, fw = self.R, o['fwin']
        E2 = range(0, 16, 2)
        acc, gaf, cbf, sbf, gbf, xf, fr, up = [R[k] for k in 'acc gaf cbf sbf gbf xf fr up'.split()]
        FR, held, fq = self.FL, self.held, self.fq
        g16, hh, h2p, op, sd4, kk = AR + 40, AR + 56, AR + 72, AR + 80, AR + 88, AR + 92
        vSt, vRow, mm, rs, key, vTa = RING, RING + 1, RING + 2, RING + 3, RING + 4, RING + 5
        x1f = xf
        swp = lambda b: [a(f'v_permlane32_swap_b32 v{b+p}, v{b+q}') for p, q in ((0, 2), (1, 3), (4, 6), (5, 7))]
        S(T1, '((rt*8 + w)*16 + cb)*256 + ST')
        va(vSt, [(0, 4, 16), (4, 2, 4)])
        for h in range(2):
            rg = range(8 * h, 8 * h + 8)
            self.round_list([acc + i for i in rg])
            for i in range(8 * h, 8 * h + 8, 2): self.pk('mul', acc + i, acc + i, gaf + i)
            self.round_list([acc + i for i in rg])
            for i in range(8 * h, 8 * h + 8, 2): self.pk('add', acc + i, acc + i, xf + i)
            for i in range(4 * h, 4 * h + 4): a(f'v_cvt_pk_bf16_f32 v{XR+i}, v{acc+2*i}, v{acc+2*i+1}')
            for i in range(4 * h, 4 * h + 4): a(f'v_dot2_f32_bf16 v{vT+(i&1)}, v{XR+i}, v{XR+i}, ' + ('0' if i < 2 else f'v{vT+(i&1)}'))
            a(f'v_mfma_f32_16x16x32_bf16 {vr(sd4, 4)}, {vr(fr + 4*h, 4)}, {vr(XR + 4*h, 4)}, ' + ('0' if h == 0 else vr(sd4, 4)))
        self.nopk = False
        va(vT + 3, [(0, 3, 8 * 4096), (3, 1, 4096)])
        a(f'v_add_f32 v{vT}, v{vT}, v{vT+1}')
        for sw in ('v_permlane32_swap_b32', 'v_permlane16_swap_b32'):
            a(f'v_mov_b32 v{vT+1}, v{vT}')
            a(f'{sw} v{vT}, v{vT+1}')
            a(f'v_add_f32 v{vT}, v{vT}, v{vT+1}')
        a(f'v_mov_b32_dpp v{sd4}, v{vT} quad_perm:[0,1,2,3] row_mask:0x8 bank_mask:0xf')
        self.bs(sd4, 1, vSt, rWS, T1, 0, 'sc1')
        S(T3, '((rt >> 2)*2 + (rt & 3)*64)*4096 + (cb >> 1)*64 + (cb & 1)*4 + INB + 1536')
        a('s_barrier')
        self.push(vT + 3, T3, 16, vT + 2, 'L_PE')
        self.stamp('x1pub')
        self.ffn_dma(fw[4])
        S(T2, 'w*4096')
        a(f'v_add_u32 v{vT}, s{T2}, v{vL16}')
        a(f'v_add_u32 v{vT+3}, {L_DN}, v{vT}')
        vm.wait('up')
        self.tagcheck([up + 1], vT + 2)
        a('s_cbranch_vccz L_UPOK')
        q0 = list(vm.q)
        self.poll(self.ld_up, [up + 1], vT + 2)
        vm.q = q0
        a('L_UPOK:')
        S(T1, '(rt*8 + w)*4096 + ST')
        def e_work():
            for ctl in ('quad_perm:[1,0,3,2]', 'quad_perm:[2,3,0,1]', 'row_half_mirror', 'row_mirror'): self.dpp('v_add_f32', up, up, up, ctl)
            for i in range(8): self.unpack(x1f + 2 * i, x1f + 2 * i + 1, XR + i)
            S(T2, 'w*512 + rt*2')
            va(vRow, [(0, 4, 32)], T2)
            a(f'v_xor_b32 v{vT+1}, 0x4000, v{vT}\nv_xor_b32 v{vT+4}, 0x4000, v{vT+3}')
            vm.wait('ffr')
            for m, i, r in self.sym:
                a(f'ds_write_b128 v{vT if m < 2 else vT + 3}, {vr(r, 4)} offset:{self.f_lds(m, i) - (L_GU if m < 2 else L_DN)}')
            for g in range(2):
                if not held[g]: continue
                a(f's_cmp_{"ge" if g == 0 else "lt"}_u32 s{sWAVE}, 4\ns_cbranch_scc1 L_FW{g}')
                for n, (m, i) in enumerate(held[g]):
                    for far in range(2):
                        a(f'ds_write_b128 v{(vT if m < 2 else vT + 3) + far}, {vr(FR + 8*n + 4*far, 4)} offset:{self.f_lds(m, i) - (L_GU if m < 2 else L_DN)}')
                a(f'L_FW{g}:')
            self.stamp('ew')
        self.inbox(3, 2, work=e_work)
        a('s_barrier')
        self.stamp('x1ok')
        def try_p(loads, check, between):
            loads()
            vm.q[-1] = tg = ('try', a.label('T'))
            between()
            vm.wait(tg)
            OK, L = a.label('POK'), a.label('PRE')
            check()
            a(f's_cbranch_vccz {OK}')
            q = list(vm.q)
            a(f'{L}:')
            loads(); vm.wait_all()
            check()
            a(f"""s_cbranch_vccz {OK}
            s_add_u32 s{sSPIN}, s{sSPIN}, 1
            s_cmp_lt_u32 s{sSPIN}, {SPIN_LIMIT}
            s_cbranch_scc1 {L}""")
            vm.q = q
            a(f'{OK}:')
        def e_between():
            if o['gbar']: a('s_barrier')
            self.ffn_dma(fw[5])
            for dst, q in ((cbf, 5), (sbf, 14), (gbf, 15)):
                for i in range(16): a(f'v_mov_b32_dpp v{dst+i}, v{RING+q} row_newbcast:{i} row_mask:0xf bank_mask:0xf')
            S(T2, 'w*8 + L_K1'); a(f'v_mov_b32 v{vT}, s{T2}')
            va(vT + 1, [(0, 3, 8)], None, L_K1)
            va(vT + 2, [(0, 2, 64 * 4096), (2, 2, 2 * 4096)])
            S(T3, '((cb >> 3) + (cb & 7)*8)*4096 + (rt >> 1)*64 + (rt & 1)*16 + INB + 2560')
        s_, d_, q_, t_ = g16, g16 + 1, g16 + 3, g16 + 4
        def e_check():
            for h in (0, 2):
                self.pk('add', g16 + h, g16 + h, g16 + 4 + h); self.pk('add', g16 + 8 + h, g16 + 8 + h, g16 + 12 + h)
            for h in (0, 2): self.pk('add', g16 + h, g16 + h, g16 + 8 + h)
            a(f'''v_add_f32 v{d_}, v{d_}, v{g16+2}
            v_add_f32 v{t_+1}, v{s_}, v{q_}
            v_cmp_u_f32 vcc, v{d_}, v{t_+1}''')
        try_p(lambda: [self.bl(g16 + 4 * i, 4, vL16, rWS, T1, i * 1024, 'sc1') for i in range(4)], e_check, e_between)
        self.stamp('x1ld')
        a(f"""
        v_mov_b32 v{t_}, v{q_}
        v_permlane32_swap_b32 v{q_}, v{t_}
        v_permlane32_swap_b32 v{s_}, v{d_}
        v_add_f32 v{q_}, v{q_}, v{t_}
        v_add_f32 v{s_}, v{s_}, v{d_}
        v_permlane16_swap_b32 v{s_}, v{q_}
        v_add_f32 v{d_}, v{s_}, v{q_}
        v_add_f32 v{q_}, v{s_}, v{q_}
        v_permlane16_swap_b32 v{d_}, v{q_}
        v_mov_b32 v{s_}, v{d_}
        v_mul_f32 v{q_}, 0x3a800000, v{q_}
        v_permlane32_swap_b32 v{s_}, v{d_}
        v_mul_f32 v{s_}, 0x3a800000, v{s_}
        v_fma_f32 v{rs}, -v{s_}, v{s_}, v{q_}
        v_cvt_pk_bf16_f32 v{mm}, 0, v{s_}
        v_max_f32 v{rs}, 0, v{rs}""")
        self.round1(rs)
        a(f'v_fma_f32 v{d_}, -v{mm}, v{up}, v{d_}')
        a(f'v_add_f32 v{rs}, 0x3727c5ac, v{rs}')
        self.round1(rs)
        a(f'v_sqrt_f32 v{rs}, v{rs}')
        self.round1(rs)
        a(f"""v_rcp_f32 v{rs}, v{rs}
        v_mul_f32 v{key}, v{d_}, v{rs}
        v_ashrrev_i32 v{t_}, 31, v{key}
        v_or_b32 v{t_}, 0x80000000, v{t_}
        v_xor_b32 v{key}, v{key}, v{t_}
        s_mov_b32 s{T2}, 0xfffff000
        v_and_or_b32 v{key}, v{key}, s{T2}, v{vRow}""")
        hi, lo = kk, kk + 1
        def merge2(ctl):
            self.dpp('v_min_u32', t_, hi, hi, ctl); self.dpp('v_max_u32', lo, lo, lo, ctl); self.dpp('v_max_u32', hi, hi, hi, ctl)
            a(f'v_max_u32 v{lo}, v{lo}, v{t_}')
        self.dpp('v_max_u32', hi, key, key, 'quad_perm:[1,0,3,2]'); self.dpp('v_min_u32', lo, key, key, 'quad_perm:[1,0,3,2]')
        for ctl in ('quad_perm:[2,3,0,1]', 'row_half_mirror', 'row_mirror'): merge2(ctl)
        self.dw('ds_write_b64', vT, hi, 2)
        self.stamp('ln2')
        self.barrier()
        self.dr('ds_read_b64', hi, 2, vT + 1)
        for i in E2: self.pk('add', hh + i, x1f + i, mm, bc=(1,), neg=(1,))
        lg.wait_all()
        for ctl in ('quad_perm:[1,0,3,2]', 'quad_perm:[2,3,0,1]', 'row_half_mirror'): merge2(ctl)
        a(f"""v_cmp_eq_u32 {sr(sC2, 2)}, v{key}, v{lo}
        v_cmp_eq_u32 vcc, v{key}, v{hi}
        v_or_b32 v{kk+2}, 1, v{lo}
        v_mov_b32 v{kk+1}, s{sTAG}
        v_mov_b32 v{kk+3}, s{sTAG}
        s_or_b64 {sr(sCM, 2)}, vcc, {sr(sC2, 2)}
        s_cmp_lg_u32 s{sWAVE}, 0
        s_cbranch_scc1 L_NOF
        s_mov_b64 exec, 0xffff""")
        self.bs(kk, 4, vT + 2, rWS, T3, 0, 'sc1', count=False)
        a(f"""s_mov_b64 exec, -1
        L_NOF:""")
        if o['cprio']: a(f's_cmp_eq_u64 {sr(sCM, 2)}, 0\ns_cbranch_scc1 L_NOPR\ns_setprio 1\nL_NOPR:')
        self.stamp('Fpub')
        vRt = RING + 14
        def out_calc(part):
            u = g16 + 10
            if part == o['ocut'][0]:
                for i in range(8): self.unpack(hh + 2 * i, hh + 2 * i + 1, h2p + i)
                for i in E2: self.pk('mul', hh + i, hh + i, gbf + i)
                self.round_list([hh + i for i in range(16)])
            if part == o['ocut'][1]:
                S(T0, 'w*2048 + L_TR')
                va(u, [(4, 2, 16)]); va(u + 1, [(0, 3, 16)]); a(f'v_xor_b32 v{u}, v{u}, v{u+1}')
                va(u + 2, [(0, 4, 128)], T0); a(f'v_add_u32 v{u}, v{u}, v{u+2}'); a(f'v_xor_b32 v{u+2}, 64, v{u}')
                va(u + 3, [(3, 3, 16)]); a(f'v_xor_b32 v{u+1}, v{u+3}, v{u+1}'); va(u + 3, [(3, 3, 128)], T0); a(f'v_add_u32 v{u+1}, v{u+1}, v{u+3}')
                S(T0, '2047 - rt*128 - w*16'); va(vRt + 1, [(3, 3, 1)])
                a(f'v_sub_u32 v{vRt}, s{T0}, v{vRt+1}\nv_subrev_u32 v{vRt+1}, 8, v{vRt}')
                va(vTa, [(3, 3, 2048), (0, 3, 16)])
                S(T3, '(rt*8 + w)*32768 + cb*128'); S(T2, 'T3 + 16384')
            if part == o['ocut'][2]:
                for i in E2: self.pk('add', hh + i, hh + i, x1f + i)
                for i in range(8): a(f'v_cvt_pk_bf16_f32 v{op+i}, v{hh+2*i}, v{hh+2*i+1}')
                swp(op)
                a(f'ds_write_b128 v{u}, {vr(op, 4)}\nds_write_b128 v{u+2}, {vr(op + 4, 4)}')
                a(f'ds_read_b128 {vr(op, 4)}, v{u+1}\nds_read_b128 {vr(op + 4, 4)}, v{u+1} offset:1024')
        def f_work():
            self.round_list([hh + i for i in range(16)])
            for i in E2: self.pk('mul', hh + i, hh + i, rs, bc=(1,))
            self.round_list([hh + i for i in range(16)])
            for i in E2: self.pk('mul', hh + i, hh + i, cbf + i)
            self.round_list([hh + i for i in range(16)])
            for i in E2: self.pk('add', hh + i, hh + i, sbf + i)
            for i in range(8): a(f'v_cvt_pk_bf16_f32 v{h2p+i}, v{hh+2*i}, v{hh+2*i+1}')
            a(f"""s_cmp_eq_u64 {sr(sCM, 2)}, 0
            s_cbranch_scc1 L_NOCAND""")
            for h in range(2): a(f'v_mfma_f32_16x16x32_bf16 {vr(sd4, 4)}, {vr(fr + 4*h, 4)}, {vr(h2p + 4*h, 4)}, ' + ('0' if h == 0 else vr(sd4, 4)))
            for i in range(8): a(f'v_mov_b32 v{op+i}, v{h2p+i}')
            S(T2, 'rt*16384 + cb*512 + XS')
            va(vT + 3, [(4, 2, 16)])
            a(f'v_add_u32 v{vT+4}, 8192, v{vT+3}')
            swp(op); swp(XR)
            a(f'v_cndmask_b32 v{vT+3}, v{vT+3}, v{vT+4}, {sr(sC2, 2)}')
            a(f's_mov_b64 exec, {sr(sCM, 2)}')
            for h in range(2): self.bs(op + 4 * h, 4, vT + 3, rWS, T2, 64 * h, 'sc1', count=False)
            a(f's_mov_b32 exec_lo, 0\ns_and_b32 exec_hi, s{sCM+1}, 0xffff0000')
            self.bs(sd4, 1, vT + 3, rWS, T2, 256 - 48, 'sc1', count=False)
            a(f's_mov_b64 exec, {sr(sCM, 2)}')
            for h in range(2): self.bs(XR + 4 * h, 4, vT + 3, rWS, T2, 128 + 64 * h, 'sc1', count=False)
            a('s_mov_b64 exec, -1\ns_setprio 0\nL_NOCAND:')
            self.stamp('cand')
            self.ffn_dma(fw[6])
            out_calc(0)
        S(T0, 'w*16 + L_K2'); a(f'v_mov_b32 v{vT}, s{T0}')
        va(vT + 1, [(0, 3, 16)], None, L_K2)
        self.inbox(5, 8, (1, 3, 5, 7), f_work)
        P = sPL
        a(f"""s_min_u32 s{P+1}, s{P}, s{P+4}
        s_min_u32 s{P+3}, s{P+2}, s{P+4}
        s_min_u32 s{P+5}, s{P}, s{P+6}
        s_max_u32 s{P}, s{P}, s{P+4}
        s_max_u32 s{P+2}, s{P+2}, s{P+6}
        s_max_u32 s{P+3}, s{P+3}, s{P+5}
        s_max_u32 s{P+1}, s{P+1}, s{P+2}
        v_mov_b32 v{kk}, s{P}
        v_mov_b32 v{kk+2}, s{P+3}
        v_mov_b32 v{kk+1}, s{P+1}""")
        self.dw('ds_write_b128', vT, kk, 4)
        self.stamp('F2p')
        out_calc(1)
        vGr, vDr, vXs, ffn, fdn = RING + 6, RING + 7, RING + 8, FR, AQ
        S(T0, '(w >> 2)*32768 + (w & 3)*32 + L_GU')
        va(vGr, [(4, 2, 8192), (2, 2, 128), (3, 2, 32), (0, 2, 8)]); a(f'v_xor_b32 v{vGr}, s{T0}, v{vGr}')
        S(T0, 'kq*2048 + XS'); va(vXs, [(0, 3, 16), (4, 2, 512)], T0)
        va(vT + 6, [(0, 4, 512)], None, XS + 256)
        gu_late = [p for p in fq if p[0] < 2]; assert not gu_late
        dn_late = len(fq) > 0
        def dn_read(s, tag=None):
            self.tr(fdn + 4 * s, vDr, s * 8192, tag); self.tr(fdn + 4 * s + 2, vDr, s * 8192 + 1024, tag)
        vm.wait('ffn')
        self.barrier()
        self.stamp('F2')
        self.r128(kk, vT + 1, 0, 'k2')
        a(f'v_and_b32 v{vT+4}, 8, v{vL}')
        a(f'v_cmp_eq_u32 {sr(sCMP, 2)}, 0, v{vT+4}')
        a(f'v_cmp_gt_u32 {sr(sPL, 2)}, 16, v{vL}')
        a(f'v_cmp_gt_u32 {sr(sPL + 2, 2)}, 32, v{vL}')
        lg.wait('k2')
        t = g16
        for ctl in ('quad_perm:[1,0,3,2]', 'quad_perm:[2,3,0,1]', 'row_half_mirror'):
            self.dpp('v_min_u32', t, kk, kk, ctl); self.dpp('v_min_u32', t + 1, kk + 1, kk, ctl); self.dpp('v_min_u32', t + 2, kk, kk + 1, ctl)
            self.dpp('v_max_u32', kk + 2, kk + 2, kk + 2, ctl); self.dpp('v_max_u32', kk + 1, kk + 1, kk + 1, ctl); self.dpp('v_max_u32', kk, kk, kk, ctl)
            a(f'v_max3_u32 v{kk+2}, v{kk+2}, v{t+1}, v{t+2}')
            a(f'v_max_u32 v{kk+1}, v{kk+1}, v{t}')
        xa, xb, rp, kr = g16, g16 + 4, g16 + 8, g16 + 9
        a(f"""v_cndmask_b32 v{t}, v{kk+1}, v{kk}, {sr(sCMP, 2)}
        v_cndmask_b32 v{kr}, v{kk+2}, v{kk+1}, {sr(sPL + 2, 2)}
        v_and_b32 v{t+1}, 31, v{kk+2}
        v_and_b32 v{t}, 31, v{t}
        v_cndmask_b32 v{kr}, v{kr}, v{kk}, {sr(sPL, 2)}
        v_lshl_add_u32 v{vT}, v{t}, 13, v{vXs}
        v_lshl_add_u32 v{vT+1}, v{t+1}, 13, v{vXs}
        v_and_b32 v{t+2}, 31, v{kr}
        v_lshl_add_u32 v{vT+2}, v{t+2}, 13, v{vT+6}""")
        def sel_work():
            self.stamp('sel')
            if o['gbar']: a('s_barrier')
            self.ffn_dma(len(fq))
            for k in range(3): a(f'v_readfirstlane_b32 s{sY0+[0, 3, 4][k]}, v{kk+k}')
            for s in range(8):
                self.tr(ffn + 4 * s, vGr, s * 1024); self.tr(ffn + 4 * s + 2, vGr, s * 1024 + 512)
            for k in range(3): S(T4 + k, '(((y >> 1) & 15)*128 + ((y >> 5) & 127)) ^ 2047'.replace('y', ('y0', 'y1', 'y2')[k]))
            out_calc(2)
            lg.wait_all()
            if o['outat'] == 0:
                for h in range(2):
                    for k in range(3): a(f'v_cmp_ne_u32 {sr(sPL + 2*k, 2)}, s{T4+k}, v{vRt+h}')
                    a(f's_and_b64 vcc, {sr(sPL, 2)}, {sr(sPL + 2, 2)}\ns_and_b64 exec, vcc, {sr(sPL + 4, 2)}')
                    self.bs(op + 4 * h, 4, vTa, rOUT, (T3, T2)[h], 0, o.get('outmod', 'sc1'))
                    a('s_mov_b64 exec, -1')
            S(T0, 'w*64')
            va(vDr, [(2, 1, 512), (3, 1, 4096), (5, 1, 2048), (2, 2, 64), (4, 1, 32), (0, 2, 8)])
            a(f'v_xor_b32 v{vDr}, s{T0}, v{vDr}'); a(f'v_add_u32 v{vDr}, {L_DN}, v{vDr}')
            va(vT + 4, [(0, 4, 16), (5, 1, 8)])
            S(T1, 'fs*8192 + HGR'); S(T7, '(kq*8 + w)*256 + T1')
            a(f'v_bfe_u32 v{vT+3}, v{kr}, 1, 4\nv_bfe_u32 v{kr}, v{kr}, 5, 7\nv_lshl_or_b32 v{kr}, v{vT+3}, 7, v{kr}\nv_xor_b32 v{kr}, 0x7ff, v{kr}')
        try_p(lambda: [self.bl(xa, 4, vT, rWS, '0', 0, 'sc1'), self.bl(xb, 4, vT + 1, rWS, '0', 0, 'sc1'), self.bl(rp, 1, vT + 2, rWS, '0', 0, 'sc1')],
              lambda: a(f'v_max3_u32 v{vT+3}, v{xa}, v{xb}, v{rp}\nv_cmp_eq_u32 vcc, -1, v{vT+3}'), sel_work)
        self.stamp('xsel')
        for ctl in ('quad_perm:[1,0,3,2]', 'quad_perm:[2,3,0,1]', 'row_half_mirror', 'row_mirror'): self.dpp('v_add_f32', rp, rp, rp, ctl)
        a(f"""v_cvt_pk_bf16_f32 v{rp}, 0, v{rp}
        v_ashrrev_i32 v{vT+3}, 31, v{rp}
        v_or_b32 v{vT+3}, 0x80000000, v{vT+3}
        v_xor_b32 v{rp}, v{rp}, v{vT+3}
        v_lshrrev_b32 v{rp}, 16, v{rp}
        v_lshl_or_b32 v{rp}, v{rp}, 11, v{kr}
        v_readlane_b32 s{P}, v{rp}, 0
        v_readlane_b32 s{P+1}, v{rp}, 16
        v_readlane_b32 s{P+2}, v{rp}, 32
        s_not_b64 {sr(P + 4, 2)}, {sr(sCMP, 2)}
        s_cmp_lt_u32 s{P}, s{P+1}
        s_cselect_b64 {sr(P + 4, 2)}, {sr(sCMP, 2)}, {sr(P + 4, 2)}
        s_cselect_b32 s{P+3}, s{P}, s{P+1}
        s_cmp_gt_u32 s{P+2}, s{P+3}
        s_cselect_b64 vcc, {sr(P + 4, 2)}, 0""")
        for i in range(4): a(f'v_cndmask_b32 v{xa+i}, v{xa+i}, v{xb+i}, vcc')
        a(f"""s_bitcmp1_b32 vcc_lo, 0
        s_cselect_b32 s{P}, s{P+2}, s{P}
        s_cselect_b32 s{T6}, s{T4}, s{T6}
        s_cselect_b32 s{T4}, s{sY2}, s{sY0}
        s_bitcmp1_b32 vcc_lo, 8
        s_cselect_b32 s{P+1}, s{P+2}, s{P+1}
        s_cselect_b32 s{T6}, s{T5}, s{T6}
        s_cselect_b32 s{T5}, s{sY2}, s{sY1}""")
        gd = [gaf + 4 * i for i in range(4)] + [cbf + 4 * i for i in range(4)]
        lg.wait_all()
        for s in range(8):
            a(f'v_mfma_f32_16x16x32_bf16 {vr(gd[s], 4)}, {vr(xa, 4)}, {vr(ffn + 4*s, 4)}, 0')
        p0, p1 = xb, xb + 2
        for p, b in ((p0, 0), (p1, 4)):
            a(f'v_add_f32 v{p}, v{gd[b]}, v{gd[b+1]+1}')
            a(f'v_add_f32 v{p+1}, v{gd[b+2]+2}, v{gd[b+3]+3}')
        a(f"""v_add_f32 v{p0}, v{p0}, v{p0+1}
        v_add_f32 v{p1}, v{p1}, v{p1+1}
        v_mov_b32 v{p0+1}, s{sTAG}
        v_permlane16_swap_b32 v{p1}, v{p1+1}
        s_cmp_ge_u32 s{sJ}, 28
        s_cbranch_scc1 L_NOHP
        v_add_f32 v{p0}, v{p0}, v{p1+1}
        s_mov_b32 exec_lo, 0xffff
        s_mov_b32 exec_hi, 0xffff""")
        self.bs(p0, 2, vT + 4, rWS, T7, 0, 'sc1', count=False)
        a("""s_mov_b64 exec, -1
        L_NOHP:""")
        self.stamp('Hpub')
        if not dn_late:
            for s in range(4): dn_read(s)
        def out_store():
            for h in range(2):
                a(f"""v_cmp_ne_u32 vcc, s{sK1}, v{vRt+h}
                v_cmp_ne_u32 {sr(sCMP, 2)}, s{sK2}, v{vRt+h}
                s_and_b64 exec, vcc, {sr(sCMP, 2)}""")
                self.bs(op + 4 * h, 4, vTa, rOUT, (sROW0, sROW1)[h], 0, o.get('outmod', 'sc1'))
                a('s_mov_b64 exec, -1')
        if o['outat']:
            a(f's_and_b32 s{sK1}, s{P}, 2047\ns_and_b32 s{sK2}, s{P+1}, 2047\ns_mov_b32 s{sROW0}, s{T3}\ns_mov_b32 s{sROW1}, s{T2}')
            out_calc(3)
            lg.wait_all()
        if o['outat'] == 1:
            a('s_barrier')
            out_store()
        if o['outat'] == 0:
            for h in range(2):
                a(f"""v_cmp_eq_u32 vcc, s{T6}, v{vRt+h}
                s_and_b64 exec, vcc, -1
                s_cbranch_execz L_NOLO{h}""")
                self.bs(op + 4 * h, 4, vTa, rOUT, (T3, T2)[h], 0, o.get('outmod', 'sc1'), count=False)
                a(f'L_NOLO{h}:\ns_mov_b64 exec, -1')
        self.stamp('outst')
        fz, x1, st = g16 + 12, AV, kk
        a(f"""s_cmp_lg_u32 s{sRow}, 7
        s_cbranch_scc1 L_NONON
        v_mov_b32 v{vT+2}, s{sTAG}
        v_mov_b32 v{vT+3}, 0
        s_mov_b64 exec, 1""")
        self.bs(vT + 2, 1, vT + 3, rWS, '0', 0, 'sc1', count=False)
        a(f"""s_mov_b64 exec, -1
        L_NONON:
        s_cmp_ge_u32 s{sJ}, 28
        s_cbranch_scc1 {'L_FIN2' if o['outat'] == 2 else 'L_FIN'}
        s_cmp_lg_u32 s{sWAVE}, 7
        s_cbranch_scc1 L_NOFZ""")
        a(f"""s_bitcmp1_b32 s{sJ}, 3
        s_cselect_b32 s{T2}, s{P+1}, s{P}
        s_cselect_b32 s{T4}, s{T5}, s{T4}
        s_andn2_b32 s{T5}, 2047, s{T2}""")
        S(T6, 'cb*4 + (x >> 1)')
        S(T7, '((T6 >> 1)*4 + (j >> 3)*2 + (T6 & 1))*(56*128) + GGR')
        S(sU, 'T5*2048 + T6*32')
        va(vT + 6, [(0, 3, 4)])
        S(T0, '(x >> 1)*64 + L_GB'); va(vT + 1, [(0, 3, 8)], T0)
        a(f'ds_read_b64 {vr(fz + 2, 2)}, v{vT+1}')
        S(sY0, '(T4 & 31)*8192 + cb*512 + (x >> 1)*32 + XS')
        a(f"""s_lshr_b32 s{T0}, s{T2}, 11
        s_lshl_b32 s{T0}, s{T0}, 16
        s_ashr_i32 s{T2}, s{T0}, 31
        s_andn2_b32 s{T2}, 0x7fff0000, s{T2}
        s_or_b32 s{T2}, s{T2}, 0x80000000
        s_xor_b32 s{T0}, s{T0}, s{T2}
        v_mov_b32 v{fz}, s{T0}
        v_mul_f32 v{fz}, s{sL2E}, v{fz}
        v_exp_f32 v{fz}, -v{fz}
        v_add_f32 v{fz}, 1.0, v{fz}
        v_rcp_f32 v{fz}, v{fz}""")
        self.round1(fz)
        a('L_NOFZ:')
        a(f"""s_cmp_ge_u32 s{sWAVE}, 4
        s_cbranch_scc1 L_NOH""")
        S(T0, 'w*256 + T1')
        va(vT, [(4, 2, 2048), (0, 4, 16)])
        S(T2, 'w*32 + L_ACT'); va(vT + 1, [(5, 1, 128), (2, 1, 16), (1, 1, 8), (3, 1, 4), (0, 1, 2)], T2)
        q0 = list(vm.q)
        g, u = x1, x1 + 4
        if not o['Hdir']:
            self.spoll([(q, 1, T0, q * 2048 + 1024 + 252) for q in range(4)], range(4))
            self.stamp('Hpre')
        self.poll(lambda: [self.bl(x1 + 4 * m, 4, vT, rWS, T0, m * 1024, 'sc1') for m in range(2)], [g + 1, g + 3, u + 1, u + 3], vT + 2)
        a(f"""v_permlane32_swap_b32 v{g}, v{g+2}
        v_permlane32_swap_b32 v{u}, v{u+2}
        v_add_f32 v{g}, v{g}, v{g+2}
        v_add_f32 v{u}, v{u}, v{u+2}
        v_mov_b32 v{g+2}, v{g}
        v_mov_b32 v{u+2}, v{u}
        v_permlane16_swap_b32 v{g}, v{g+2}
        v_permlane16_swap_b32 v{u}, v{u+2}
        v_add_f32 v{g}, v{g}, v{g+2}
        v_add_f32 v{u}, v{u}, v{u+2}""")
        self.round2(g, u)
        self.silu(g, vT + 2)
        a(f"""v_mul_f32 v{g}, v{g}, v{u}
        v_cvt_pk_bf16_f32 v{g}, v{g}, v{g}
        ds_write_b16 v{vT+1}, v{g}
        L_NOH:""")
        vm.q = q0
        va(vT, [(2, 1, 128), (5, 1, 16)], None, L_ACT)
        va(vT + 1, [(4, 2, 56 * 128), (0, 4, 8)])
        S(T0, '(kq*8 + w)*(4*56*128) + fs*128 + GGR')
        va(vT + 2, [(0, 1, 2 * 4096), (1, 1, 64 * 4096)])
        S(T1, '((w & 1)*4 + (kq >> 1) + ((kq & 1)*4 + (w >> 1))*8)*4096 + x*64 + (j >> 2)*4 + INB + 3072')
        vm.wait('ffn')
        self.barrier()
        self.stamp('Hok')
        for s in range(4):
            self.r128(x1 + 4 * s, vT, s * 32, ('ac', s))
            if dn_late: dn_read(s, ('ac', s))
        for s in range(4):
            lg.wait(('ac', s))
            a(f'v_mfma_f32_32x32x16_bf16 {vr(hh, 16)}, {vr(x1 + 4*s, 4)}, {vr(fdn + 4*s, 4)}, ' + ('0' if s == 0 else vr(hh, 16)))
        a(f'v_mov_b32 v{hh+1}, s{sTAG}')
        self.bs(hh, 2, vT + 1, rWS, T0, 0, 'sc1')
        if not o['Gdir']:
            a('s_mov_b64 exec, 15')
            self.bs(hh + 1, 1, vT + 2, rWS, T1, 0, 'sc1')
            a('s_mov_b64 exec, -1')
        self.stamp('Gpub')
        if o['outat'] == 2:
            a('s_barrier\nL_FIN2:')
            out_store()
        a(f"""s_cmp_ge_u32 s{sJ}, 16
        s_cbranch_scc1 L_FIN""")
        if not o['Gdir']:
            self.inbox(6, 8, range(7))
            self.stamp('Gpre')
            a('s_barrier')
        a(f"""s_cmp_lg_u32 s{sWAVE}, 7
        s_cbranch_scc1 L_FIN""")
        S(T0, 'T7 + 4096')
        gg = [x1 + 4 * i for i in range(7)]
        def g_ld():
            [self.bl(gg[n], 4, vL16, rWS, (T7, T0)[n >> 2], (n & 3) * 1024, 'sc1') for n in range(7)]
            self.bl(st, 1, vT + 6, rWS, sY0, 0, 'sc1'); self.bl(st + 1, 1, vT + 6, rWS, sY0, 128, 'sc1')
        def g_post():
            a(f'''v_max_u32 v{st+2}, v{st}, v{st+1}
            v_cmp_ne_u32 vcc, -1, v{st+2}
            v_cndmask_b32 v{st+2}, v{vT+2}, v{vT+1}, vcc''')
        a(f'v_mov_b32 v{vT+1}, s{sTAG}\nv_not_b32 v{vT+2}, v{vT+1}')
        self.poll(g_ld, [gg[n] + 1 + 2 * e for n in range(7) for e in range(2)] + [st + 2], vT, g_post)
        self.stamp('Gok')
        for n in range(1, 7):
            for e in (0, 2): a(f'v_add_f32 v{gg[0]+e}, v{gg[0]+e}, v{gg[n]+e}')
        y0, y1 = gg[0], gg[0] + 1
        a(f'v_mov_b32 v{y1}, v{gg[0]+2}')
        for y in (y0, y1): self.dpp('v_add_f32', y, y, y, 'row_ror:8')
        for sw in ('v_permlane16_swap_b32', 'v_permlane32_swap_b32'):
            for y in (y0, y1): a(f'v_mov_b32 v{y+2}, v{y}')
            for y in (y0, y1): a(f'{sw} v{y}, v{y+2}')
            self.pk('add', y0, y0, y0 + 2)
        self.round2(y0, y1)
        self.pk('mul', y0, y0, fz, bc=(1,))
        self.unpack(vT, vT + 1, st)
        self.round2(y0, y1)
        self.pk('add', y0, y0, vT)
        self.round2(y0, y1)
        self.pk('mul', y0, y0, fz + 2)
        self.unpack(vT, vT + 1, st + 1)
        self.round2(y0, y1)
        self.pk('add', y0, y0, vT)
        a(f'v_cvt_pk_bf16_f32 v{y0}, v{y0}, v{y1}')
        a('s_mov_b64 exec, 0xff')
        self.bs(y0, 1, vT + 6, rOUT, sU, 0, o.get('finmod', ''))
        a('s_mov_b64 exec, -1')
        a('L_FIN:')

    def finish(self):
        a, S, o = self.a, self.S, self.o
        if o.get('exfil'):
            a('s_waitcnt vmcnt(0) lgkmcnt(0)')
            self.stamp('fin')
            a(f'''v_readlane_b32 s{T0}, v255, 0
            v_readlane_b32 s{T1}, v255, 1
            v_readlane_b32 s{T2}, v255, 2
            s_sub_u32 s{T2}, s{T2}, s{T1}
            s_max_i32 s{T2}, s{T2}, 0
            s_min_u32 s{T2}, s{T2}, 10000
            s_mul_i32 s{T2}, s{T2}, 10
            s_add_u32 s{T2}, s{T2}, 6000
            L_XPAD:
            s_memrealtime {sr(sTM, 2)}
            s_waitcnt lgkmcnt(0)
            s_sub_u32 s{T1}, s{sTM}, s{T0}
            s_cmp_lt_u32 s{T1}, s{T2}
            s_cbranch_scc1 L_XPAD''')
        if self.o.get('dbg2'):
            S(T1, '(wg*8 + w)*32768 + 0x4000000'); self.vaa(vT, [(0, 6, 4)])
            for k, r in enumerate(list(range(72, 104)) + list(range(120, 136)) + list(range(176, 184))):
                if k % 16 == 0 and k: S(T1, 'T1 + 4096')
                self.bs(r, 1, vT, rWS, T1, (k % 16) * 256, '', 'dbg')
                if k % 16 == 15: self.vm.wait('dbg')
        if self.prof:
            a('s_waitcnt vmcnt(0) lgkmcnt(0)')
            self.stamp('end')
            a(f's_memrealtime {sr(sTM, 2)}')
            a('s_waitcnt lgkmcnt(0)')
            a(f'v_writelane_b32 v255, s{sTM}, 61')
            S(T0, '(wg*8 + w)*256 + STAMPS')
            a(f'v_writelane_b32 v255, s{sSPIN}, 62')
            a(f'v_lshlrev_b32 v{vT+1}, 2, v{vL}')
            a(f'buffer_store_dword v255, v{vT+1}, {sr(rWS, 4)}, s{T0} offen')
            S(T0, 'T0 + 0x100000')
            a(f'buffer_store_dword v254, v{vT+1}, {sr(rWS, 4)}, s{T0} offen')
        a('L_END:')
        a('s_endpgm')

    def pads(self):
        import subprocess, re
        a = self.a
        src = '.amdgcn_target "amdgcn-amd-amdhsa--gfx950"\n.text\n' + a.text().replace('CODE_KB', '20480')
        out = subprocess.run(['llvm-mc', '-triple=amdgcn-amd-amdhsa', '-mcpu=gfx950', '-show-encoding'], input=src, capture_output=True, text=True, check=True).stdout
        sizes = [len(m.split(',')) for m in re.findall(r'; encoding: \[([^\]]*)\]', out)]
        tour = next(i for i, x in enumerate(a.items) if x == ('raw', ';TOUR'))
        NT = 16
        addr = self.o['kofs']; full = True; k = 0; items = []; pads = []; page = 0
        for i, (kind, v) in enumerate(a.items):
            isins = kind == 'ins' or (kind == 'raw' and v.startswith('    s_'))
            if i == tour: items.append((kind, v)); addr += 4 * 48; continue
            if isins:
                if addr // 4096 > page and full and i > tour:
                    page = addr // 4096; pads.append(page)
                    items.append(('raw', f'L_PAD{page}:\n    s_cbranch_execz L_RET{page}')); addr += 4
                elif i < tour: page = addr // 4096
                addr += sizes[k]; k += 1
                if kind == 'ins' and ('s', 'exec_lo') in v.dst + [('s', 'exec_lo') if ('s', 'exec_hi') in v.dst else None]:
                    full = v.text.replace(' ', '') in ('s_mov_b64exec,-1', 's_mov_b32exec_hi,-1')
            items.append((kind, v))
        assert k == len(sizes), (k, len(sizes))
        t = ['s_mov_b64 exec, 0']
        chains = [pads[c::4] for c in range(4)]
        for c in range(4): t += [f's_cmp_eq_u32 s{sWAVE}, {4 + c}', f's_cbranch_scc1 L_PAD{chains[c][0]}']
        t.append('s_branch L_TEND')
        n = len(t)
        for ch in chains:
            for p, q in zip(ch, ch[1:] + [None]):
                t += [f'L_RET{p}:', f's_branch ' + (f'L_PAD{q}' if q else 'L_TEND')]; n += 1
        assert n <= 47
        t += ['s_nop 0'] * (47 - n) + ['L_TEND:', 's_mov_b64 exec, -1']
        j = items.index(('raw', ';TOUR'))
        items[j] = ('raw', '\n'.join(x if x.endswith(':') else '    ' + x for x in t))
        a.items = items

    def text(self):
        a = self.a
        npad = a.fix_hazards()
        errs = a.check_waits([NAME])
        for e in errs[:10]: print('WAITERR', e, file=sys.stderr)
        assert not errs
        import re
        for k, v in a.items:
            if k == 'ins' and v.mn.startswith('v_pk_'):
                m = re.search(r'op_sel:\[([\d,]+)\]', v.text)
                vs = [i for i, x in enumerate(v.ops[1:]) if x.startswith('v')]
                assert self.o.get('badpk') or not (m and any(m.group(1).split(',')[i] == '1' for i in vs[1:])), v.text
        if self.o['tour']: self.pads()
        hdr = open(os.path.join(os.path.dirname(os.path.abspath(__file__)), 'header.txt')).read()
        s = hdr + '; @launch grid=(256,1,1) block=(512,1,1) lds=163840\n'
        s += '.amdgcn_target "amdgcn-amd-amdhsa--gfx950"\n.text\n'
        s += f'.globl {NAME}\n.p2align {12 if self.o["al12"] else 8}\n.type {NAME},@function\n'
        body = a.text()
        import subprocess, tempfile
        with tempfile.TemporaryDirectory() as td:
            open(td + '/t.s', 'w').write('.amdgcn_target "amdgcn-amd-amdhsa--gfx950"\n.text\n' + body.replace('CODE_KB', '20480'))
            subprocess.run(['clang', '-x', 'assembler', '-target', 'amdgcn-amd-amdhsa', '-mcpu=gfx950', '-c', td + '/t.s', '-o', td + '/t.o'], check=True)
            subprocess.run(['llvm-objcopy', '-O', 'binary', '-j', '.text', td + '/t.o', td + '/t.bin'], check=True)
            size = os.path.getsize(td + '/t.bin')
        print('; code bytes', size, file=sys.stderr)
        s += body.replace('CODE_KB', str((size // 1024 + 1) * 1024))
        s += '.p2align 10\n.fill 768, 4, 0xbf800000\n'
        s += '.section .rodata,"a"\n' + kernel_desc(NAME, 256, 102)
        print(f'; nops {npad}, instrs {sum(1 for k, _ in a.items if k == "ins")}', file=sys.stderr)
        return s


if __name__ == '__main__':
    import argparse, json
    ap = argparse.ArgumentParser()
    ap.add_argument('-o', default='/dev/stdout')
    ap.add_argument('--prof', action='store_true')
    ap.add_argument('--opts', default='{}')
    args = ap.parse_args()
    g = Gen(args.prof, json.loads(args.opts)).build()
    t = g.text()
    open(args.o, 'w').write(t)
    if args.prof: open(args.o + '.stamps', 'w').write(json.dumps(g.stnames))
```

```python
import sys, os
sys.path.insert(0, os.path.dirname(os.path.abspath(__file__)))
from asm import *

NAME = 'adaLN_cond__linear_kernel_hedgehog__moe_arch_mod__prompt_kernel'

NONCE = 0x0
MODP2 = 0x020000
SINB = 0x040000
AINB = 0x080000
INB = 0x100000
HF = 0x400000
OF = 0x800000
ST = 0xC00000
XS = 0xD00000
UP = 0xD80000
HGR = 0x1400000
ZP = 0x1480000
GGR = 0x1500000
KVP = 0x1800000
KIN = 0x1C00000
STAMPS = 0x1600000
WS_BYTES = 268435456

REG = 49152
MISC = 147456
L_A1 = MISC
L_ST = MISC + 6144
L_MP = MISC + 8192
L_WPHI = MISC + 12288
L_KH = 0
L_QH = MISC + 4096
L_KVF = MISC
L_ZF = MISC + 8192
L_M2 = MISC + 9984
L_MD = MISC + 12288
L_K1 = MISC + 8704
L_K2 = MISC + 8832
L_ACT = MISC + 9216
L_GB = MISC + 9728
L_HV = 32768
L_PHK = 0
L_TR = 98304
L_GU = 0
L_DN = 65536
UR = 393216

SPIN_LIMIT = 200000

sWAVE, sTAG, sSPIN, sMASK, sL2E = 3, 4, 5, 6, 7
sX, sJ, sR1, sHP, sCB = 8, 9, 10, 11, 12
T0, T1, T2, T3, T4, T5, T6, T7 = 13, 14, 15, 16, 17, 18, 19, 20
sRT = 21
sCMP = 22
sPL = 24
rWS, rX, rW, rWO, rWM, rWG, rWU, rWD, rOUT = 32, 36, 40, 44, 48, 52, 56, 60, 64
KA = 68
pWPHI, pWR, pC = KA + 4, KA + 10, KA + 18
sK1, sK2, sROW0, sROW1, sFS, sKQ, sKH, sRB = 68, 69, 70, 71, 74, 75, 76, 77
sFG, sFD, sU, sW1K, sU0, sWB = 80, 81, 82, 83, 84, 85
sAB, sM2, sWO, sY0 = 88, 89, 90, 91
sINB, sRow, sY1, sY2 = 92, 93, 94, 95
sCM = 84
sC2 = 88
XT = (96, 97, 98, 99)
sTM = 100
ENV = dict(wg=2, w=sWAVE, x=sX, j=sJ, r1=sR1, hp=sHP, cb=sCB, rt=sRT, row=sRow, kh=sKH, rb=sRB, fs=sFS, kq=sKQ,
           w1k=sW1K, u=sU, fg=sFG, fd=sFD, u0=sU0, wb=sWB, ab=sAB, m2=sM2, wo=sWO, y0=sY0, y1=sY1, y2=sY2,
           k1=sK1, k2=sK2, row0=sROW0, row1=sROW1,
           T0=T0, T1=T1, T2=T2, T3=T3, T4=T4, T5=T5, T6=T6, T7=T7)

vL, vL16, vWd, vT = 1, 2, 3, 4
XR = 12
vB = 20
vS0, vS1 = 26, 27
RING = 28
AK, AV, AQ = 56, 88, 120
AR = 152
SP = 248


class Stream:
    def __init__(self, g): self.g, self.q, self.wake = g, [], 0
    def add(self, fn, v=0, l=0): self.q.append((v, l, fn))
    def sleep(self, k): self.q.append(('sleep', k, None))
    def until(self, n): self.q.append(('until', n, None))
    def cap(self, fn):
        a = self.g.a
        keep = a.items; a.items = []
        fn()
        body = a.items; a.items = keep
        run = []
        for it in body:
            i = it[1]
            assert it[0] == 'ins' and i.cls in ('valu', 'salu', 'mfma'), it
            run.append(it)
            if i.cls == 'salu': continue
            c = 8 if (i.cls == 'mfma' or i.is_trans or 'permlane' in i.mn) else 6 if i.mn.startswith(('v_fma', 'v_max3', 'v_min3', 'v_lshl_', 'v_bfe')) else 4.75 if i.mn.startswith('v_cvt') else 4
            self.q.append((c + (len(run) - 1), 0, (lambda r=run: a.items.extend(r)))); run = []
        if run: self.q.append((len(run), 0, (lambda r=run: a.items.extend(r))))
    def mark(self, name): self.q.append((0, 0, lambda: (self.g.marks.add(name), self.g.markn.append((name, self.g.cur[0])))))
    def pull(self, bud, full):
        n = self.g.cur[0]
        while self.q and n >= self.wake:
            v, l, fn = self.q[0]
            if v == 'sleep': self.wake = n + l; self.q.pop(0); continue
            if v == 'until': self.wake = max(n, l); self.q.pop(0); continue
            if l > bud[1]: return
            if v > bud[0] and bud[0] < full:
                bud[0] = -1; return
            self.q.pop(0); fn(); bud[0] -= v; bud[1] -= l


DEFAULTS = dict(wburst=(2, 1, 3, 0, 6, 3), xtat=0, m2k0=11, m2n0=0, mdlate=1, m2gap=10, m2cut=60, aoff=0, wpace=0, cprio=1, g2p=28, tlb=0, tlbk=2, tsin=0, tz=0, outat=2, gbar=1, fbar=0, xorw=1, LOOK=6, A00=6, A0=6, Apos=(5, 5, 5, 5, 5, 7, 7, 7, 6, 6),
                wsched={5: 'k10 v10', 6: 'k11 v11', 7: 'k12 v12', 8: 'k13 v13', 9: 'k14 q10', 10: 'k15 q11', 11: 'v14 v15 q12', 12: 'q13 q14 q15'},
                bA=271, bH=295, kbud=10, vbud=5, wcost=5, kdel=1, hh=0.25, hq=1.0, fA=2, woA=6, hgap=(20, 14), fpre=8, m2c=4, m2k3='(j & 1)*2 + 1', m2g=5, m2e=7, m2nb=1, m2db=2, apos=0, hprio=3, qmid=8, qsplit=16, wowin=(2, 4, 4), AD2=8, LOOK2=7, g2r='(j & 1)*4', Hdir=0, Gdir=0, C2dir=0, poisat=3, earlyD=1, ocut=(0, 0, 3), pairw2=4, worot=1, fwin=(0, 0, 0, 2, 2, 2, 2), prio=2, tour=1, al12=1, kofs=0x300)


class Gen:
    def __init__(self, prof=False, opts=None):
        self.a = Asm()
        self.vm = Counter(self.a, 'vmcnt', 63)
        self.lg = Counter(self.a, 'lgkmcnt', 15)
        self.marks = set(); self.markn = []
        self.vL = vL
        self.prof = prof
        self.nopk = False
        self.nst = 0
        self.stnames = []
        self.S = SExpr(self.a, ENV, {k: v for k, v in globals().items() if isinstance(v, int) and k.isupper() and k not in ENV}, XT)
        self.o = dict(DEFAULTS)
        if opts: self.o.update(opts)

    def bl(self, dst, n, voff, srd, soff, imm=0, mods='', tag=None):
        op = {1: 'dword', 2: 'dwordx2', 4: 'dwordx4'}[n]
        so = soff if isinstance(soff, str) else (sr(soff))
        self.a(f'buffer_load_{op} {vr(dst, n)}, v{voff}, {sr(srd, 4)}, {so} offen' + (f' offset:{imm}' if imm else '') + (' ' + mods if mods else ''))
        self.vm.issue(tag)
    def bs(self, src, n, voff, srd, soff, imm=0, mods='', tag=None, count=True):
        op = {1: 'dword', 2: 'dwordx2', 4: 'dwordx4'}[n]
        so = soff if isinstance(soff, str) else (sr(soff))
        self.a(f'buffer_store_{op} {vr(src, n)}, v{voff}, {sr(srd, 4)}, {so} offen' + (f' offset:{imm}' if imm else '') + (' ' + mods if mods else ''))
        if count: self.vm.issue(tag)
    def dma(self, voff, srd, soff, imm=0, mods='', tag=None):
        self.a(f'buffer_load_dwordx4 v{voff}, {sr(srd, 4)}, {sr(soff)} offen' + (f' offset:{imm}' if imm else '') + (' ' + mods if mods else '') + ' lds')
        self.vm.issue(tag)
    def dr(self, op, dst, n, addr, off=0, tag=None):
        assert 0 <= off < 65536, off
        self.a(f'{op} {vr(dst, n)}, v{addr}' + (f' offset:{off}' if off else ''))
        self.lg.issue(tag)
    def tr(self, dst, addr, off, tag=None): self.dr('ds_read_b64_tr_b16', dst, 2, addr, off, tag)
    def r128(self, dst, addr, off=0, tag=None): self.dr('ds_read_b128', dst, 4, addr, off, tag)
    def dw(self, op, addr, src, n, off=0, tag=None):
        assert 0 <= off < 65536, off
        self.a(f'{op} v{addr}, {vr(src, n)}' + (f' offset:{off}' if off else ''))
        self.lg.issue(tag)
    def barrier(self):
        self.lg.wait_all()
        self.a('s_barrier')
    def stamp(self, name):
        if self.o.get('jit') and name not in ('karg', 'fin', 'end'):
            L = self.a.label('JIT')
            self.a(f's_memtime {sr(sTM, 2)}'); self.lg.wait_all()
            self.a(f's_mul_i32 s{sTM}, s{sTM}, 0x9e3779b1\ns_lshr_b32 s{sTM}, s{sTM}, {32 - self.o["jit"]}\ns_add_u32 s{sTM}, s{sTM}, 1\n{L}:\ns_sleep 1\ns_sub_u32 s{sTM}, s{sTM}, 1\ns_cmp_lg_u32 s{sTM}, 0\ns_cbranch_scc1 {L}')
        ex = self.o.get('exfil')
        if ex and name in ex[:2]:
            self.a(f's_memrealtime {sr(sTM, 2)}')
            self.lg.wait_all()
            self.a(f'v_writelane_b32 v255, s{sTM}, {1 + ex.index(name)}')
        if not self.prof: return
        only = self.o.get('only')
        if only and name not in only and name != 'end': return
        self.a(f's_memtime {sr(sTM, 2)}')
        self.a(f's_memrealtime s[0:1]')
        self.lg.wait_all()
        self.a(f'v_writelane_b32 v255, s{sTM}, {self.nst}')
        self.a(f'v_writelane_b32 v254, s0, {self.nst}')
        self.stnames.append(name)
        self.nst += 1
        assert self.nst <= 60
    def unpack(self, lo, hi, src):
        self.a(f'v_lshlrev_b32 v{lo}, 16, v{src}')
        self.a(f'v_and_b32 v{hi}, s{sMASK}, v{src}')
    def round1(self, r):
        self.a(f'v_cvt_pk_bf16_f32 v{r}, 0, v{r}')
    def round2(self, r0, r1):
        self.round1(r0); self.round1(r1)
    def round_list(self, regs):
        for r in regs: self.round1(r)
    def pk(self, op, d, s0, s1, s2=None, bc=(), neg=()):
        srcs = [s0, s1] + ([s2] if s2 is not None else [])
        if self.nopk:
            for h in range(2):
                t = []
                for k, r in enumerate(srcs):
                    kind, n = r if isinstance(r, tuple) else ('v', r)
                    t.append(('-' if k in neg else '') + f'{kind}{n if k in bc else n + h}')
                e64 = '' if op == 'fma' else ('_e64' if (neg or t[1][0] == 's') else '')
                self.a(f'v_{op}_f32{e64} v{d+h}, ' + ', '.join(t))
            return
        if 1 in bc and not isinstance(s1, tuple) and s1 & 1 and not self.o.get('badpk'):
            assert 0 not in bc
            sw = lambda t: tuple({0: 1, 1: 0}.get(k, k) for k in t)
            srcs[0], srcs[1] = srcs[1], srcs[0]; bc, neg = sw(bc), sw(neg)
        txt, sel, selhi = [], [], []
        for k, r in enumerate(srcs):
            kind, n = r if isinstance(r, tuple) else ('v', r)
            if k in bc:
                txt.append(f'{kind}[{n & ~1}:{(n & ~1) + 1}]'); sel.append(n & 1); selhi.append(n & 1)
            else:
                assert n % 2 == 0
                txt.append(f'{kind}[{n}:{n+1}]'); sel.append(0); selhi.append(1)
        assert d % 2 == 0
        m = ''
        if any(sel): m += ' op_sel:[' + ','.join(map(str, sel)) + ']'
        if not all(selhi): m += ' op_sel_hi:[' + ','.join(map(str, selhi)) + ']'
        if neg:
            ng = ','.join('1' if k in neg else '0' for k in range(len(srcs)))
            m += f' neg_lo:[{ng}] neg_hi:[{ng}]'
        self.a(f'v_pk_{op}_f32 v[{d}:{d+1}], ' + ', '.join(txt) + m)
    def dpp(self, op, d, s0, s1, ctl):
        self.a(f'{op}_dpp v{d}, v{s0}, v{s1} {ctl} row_mask:0xf bank_mask:0xf')
    def allreduce(self, v, t, op='v_add_f32', lo=True, b3=True):
        if lo:
            self.dpp(op, v, v, v, 'quad_perm:[1,0,3,2]')
            self.dpp(op, v, v, v, 'quad_perm:[2,3,0,1]')
            self.dpp(op, v, v, v, 'row_half_mirror')
        self.dpp(op, v, v, v, 'row_ror:8')
        self.a(f'v_mov_b32 v{t}, v{v}')
        self.a(f'v_permlane16_swap_b32 v{v}, v{t}')
        self.a(f'{op} v{v}, v{v}, v{t}')
        self.a(f'v_mov_b32 v{t}, v{v}')
        self.a(f'v_permlane32_swap_b32 v{v}, v{t}')
        self.a(f'{op} v{v}, v{v}, v{t}')
    def poll(self, loads, tagregs, tmp=None, post=None):
        a = self.a
        L, D = a.label('POLL'), a.label('PDONE')
        a(f'{L}:')
        loads()
        self.vm.wait_all()
        if post: post()
        if len(tagregs) == 1:
            a(f'v_cmp_ne_u32 vcc, s{sTAG}, v{tagregs[0]}')
        else:
            a(f'v_bitop3_b32 v{tmp}, v{tagregs[0]}, v{tagregs[1]}, s{sTAG} bitop3:0x7e')
            for t in tagregs[2:]: a(f'v_bitop3_b32 v{tmp}, v{tmp}, v{t}, s{sTAG} bitop3:0xf6')
            a(f'v_cmp_ne_u32 vcc, 0, v{tmp}')
        a(f's_cbranch_vccz {D}')
        a(f's_add_u32 s{sSPIN}, s{sSPIN}, 1')
        a(f's_cmp_lt_u32 s{sSPIN}, {SPIN_LIMIT}')
        a(f's_cbranch_scc1 {L}')
        a(f'{D}:')
    def weave(self, fn, extras):
        a = self.a
        keep = a.items; a.items = []
        fn()
        body = a.items; a.items = keep
        extras = list(extras); n = len(extras)
        for i, it in enumerate(body):
            while extras and (n - len(extras)) * len(body) <= i * n: extras.pop(0)()
            a.items.append(it)
        for e in extras: e()
    def tagcheck(self, tagregs, tmp):
        a = self.a
        if len(tagregs) == 1:
            a(f'v_cmp_ne_u32 vcc, s{sTAG}, v{tagregs[0]}')
        else:
            a(f'v_bitop3_b32 v{tmp}, v{tagregs[0]}, v{tagregs[1]}, s{sTAG} bitop3:0x7e')
            for t in tagregs[2:]: a(f'v_bitop3_b32 v{tmp}, v{tmp}, v{t}, s{sTAG} bitop3:0xf6')
            a(f'v_cmp_ne_u32 vcc, 0, v{tmp}')
    def try_load(self, loads, tagregs, tmp=None, between=None, pre=None):
        a = self.a
        n0 = len(self.vm.q)
        loads()
        self.vm.q[-1] = tg = ('try', a.label('T'))
        if between: between()
        self.vm.wait(tg)
        OK = a.label('TOK')
        self.tagcheck(tagregs, tmp)
        a(f's_cbranch_vccz {OK}')
        q, l = list(self.vm.q), list(self.lg.q)
        if pre: pre()
        self.poll(loads, tagregs, tmp)
        self.vm.q, self.lg.q = q, l
        a(f'{OK}:')
    def spoll(self, loads, checks, work=None):
        a = self.a
        L, C, D = a.label('SPOLL'), a.label('SCHK'), a.label('SDONE')
        def issue():
            for d, n, so, imm in loads:
                op = {1: 'dword', 2: 'dwordx2', 4: 'dwordx4', 8: 'dwordx8'}[n]
                a(f's_load_{op} {sr(sPL + d, n)}, {sr(rWS, 2)}, s{so} offset:{imm} glc')
        if work:
            issue(); work()
            a(f's_branch {C}')
        a(f'{L}:')
        issue()
        a(f'{C}:')
        a(f's_add_u32 s{sSPIN}, s{sSPIN}, 1')
        a(f's_cmp_ge_u32 s{sSPIN}, {SPIN_LIMIT}')
        self.lg.wait_all()
        a(f's_cbranch_scc1 {D}')
        for k in checks:
            a(f's_cmp_lg_u32 s{sPL + k}, s{sTAG}')
            a(f's_cbranch_scc1 {L}')
        a(f'{D}:')
    def inbox(self, box, n, checks=None, work=None):
        self.spoll([(0, n, sINB, box * 512)], range(n) if checks is None else checks, work)
    def va(self, dst, terms, sreg=None, const=0, tmp=None):
        a = self.a; vL = self.vL
        first = True
        for sh, bits, mult in terms:
            full = sh + bits >= 6
            src = vL
            t = dst if first else tmp
            if sh == 0 and full: pass
            elif full: a(f'v_lshrrev_b32 v{t}, {sh}, v{vL}'); src = t
            elif sh == 0: a(f'v_and_b32 v{t}, {(1 << bits) - 1}, v{vL}'); src = t
            else: a(f'v_bfe_u32 v{t}, v{vL}, {sh}, {bits}'); src = t
            p2 = mult & (mult - 1) == 0
            k = mult.bit_length() - 1
            if first:
                if p2 and sreg is not None: a(f'v_lshl_add_u32 v{dst}, v{src}, {k}, s{sreg}'); sreg = None
                elif p2 and k: a(f'v_lshlrev_b32 v{dst}, {k}, v{src}')
                elif p2:
                    if src != dst: a(f'v_mov_b32 v{dst}, v{src}')
                else: a(f'v_mul_u32_u24 v{dst}, {mult}, v{src}')
            else:
                assert p2
                a(f'v_lshl_add_u32 v{dst}, v{src}, {k}, v{dst}')
            first = False
        if sreg is not None: a(f'v_add_u32 v{dst}, s{sreg}, v{dst}')
        if const: a(f'v_add_u32 v{dst}, {const}, v{dst}')
    def push(self, vaddr, soff, nl, vtmp, lab, wave=0):
        a = self.a
        a(f's_cmp_lg_u32 s{sWAVE}, {wave}')
        a(f's_cbranch_scc1 {lab}')
        a(f'v_mov_b32 v{vtmp}, s{sTAG}')
        a(f's_mov_b32 exec_hi, 0')
        if nl < 32: a(f's_mov_b32 exec_lo, {(1 << nl) - 1}')
        self.bs(vtmp, 1, vaddr, rWS, soff, 0, 'sc1', count=False)
        a('s_mov_b64 exec, -1')
        a(f'{lab}:')
    def silu(self, v, t):
        a = self.a
        a(f'v_mul_f32 v{t}, s{sL2E}, v{v}')
        a(f'v_exp_f32 v{t}, -v{t}')
        a(f'v_add_f32 v{t}, 1.0, v{t}')
        a(f'v_rcp_f32 v{t}, v{t}')
        a(f'v_mul_f32 v{v}, v{v}, v{t}')
        self.round1(v)
    def gemv_ops(self, wregs, cregs, acc, t0, t1, packed):
        ops = []
        assert t0 % 2 == 0 and t1 == t0 + 1
        for i, (w, c) in enumerate(zip(wregs, cregs)):
            cp = f'v[{c & ~1}:{(c & ~1) + 1}]'
            for d in range(4):
                tt = t0 + 2 * (d & 1)
                ops.append(f'v_lshlrev_b32 v{tt}, 16, v{w+d}')
                ops.append(f'v_and_b32 v{tt+1}, s{sMASK}, v{w+d}')
                ac = f'v[{acc+2*d}:{acc+2*d+1}]'
                if not packed:
                    for h in range(2): ops.append(f'v_mul_f32 v{acc+2*d+h}, v{tt+h}, v{c}' if i == 0 else f'v_fmac_f32 v{acc+2*d+h}, v{tt+h}, v{c}')
                elif i == 0: ops.append(f'v_pk_mul_f32 {ac}, {cp}, v[{tt}:{tt+1}] op_sel:[{c & 1},0] op_sel_hi:[{c & 1},1]')
                else: ops.append(f'v_pk_fma_f32 {ac}, {cp}, v[{tt}:{tt+1}], {ac} op_sel:[{c & 1},0,0] op_sel_hi:[{c & 1},1,1]')
        for i in range(4): ops.append(f'v_permlane32_swap_b32 v{acc+i}, v{acc+4+i}')
        for i in range(4): ops.append(f'v_add_f32 v{acc+i}, v{acc+i}, v{acc+4+i}')
        for i in range(2): ops.append(f'v_permlane16_swap_b32 v{acc+i}, v{acc+2+i}')
        for i in range(2): ops.append(f'v_add_f32 v{acc+i}, v{acc+i}, v{acc+2+i}')
        for i in range(2): ops.append(f'v_add_f32_dpp v{acc+i}, v{acc+i}, v{acc+i} row_ror:8 row_mask:0xf bank_mask:0xf')
        ops.append(f'v_mov_b32_dpp v{acc}, v{acc+1} quad_perm:[0,1,2,3] row_mask:0xf bank_mask:0xc')
        return ops
    def sum8(self, b):
        self.pk('add', b, b, b + 2); self.pk('add', b + 4, b + 4, b + 6); self.pk('add', b, b, b + 4)
        self.a(f'v_add_f32 v{b}, v{b}, v{b+1}')
    def softmax_pm(self, p, e, out, t, mid=None, part=0, split=0, stage=None):
        a = self.a
        mx, mn, u0, u1, s0, s1 = t, t + 1, t + 2, t + 3, t + 4, t + 6
        if part != 2:
            self.round_list([p + i for i in range(16)])
            a(f'v_max3_f32 v{mx}, v{p}, v{p+1}, v{p+2}')
            a(f'v_min3_f32 v{mn}, v{p}, v{p+1}, v{p+2}')
            for i in range(3, 15, 2):
                a(f'v_max3_f32 v{mx}, v{mx}, v{p+i}, v{p+i+1}')
                a(f'v_min3_f32 v{mn}, v{mn}, v{p+i}, v{p+i+1}')
            a(f'v_max_f32 v{u0}, v{mx}, v{p+15}')
            a(f'v_min_f32 v{u1}, v{mn}, v{p+15}')
            a(f'v_max_f32 v{mx}, v{mx}, v{p+15}')
            a(f'v_min_f32 v{mn}, v{mn}, v{p+15}')
            a(f'v_permlane32_swap_b32 v{mx}, v{u0}')
            a(f'v_permlane32_swap_b32 v{mn}, v{u1}')
            a(f'v_max_f32 v{mx}, v{mx}, v{u0}')
            a(f'v_min_f32 v{mn}, v{mn}, v{u1}')
            self.pk('mul', mx, mx, ('s', sL2E), bc=(1,))
            mn2 = mn
            if not self.nopk: a(f'v_mov_b32 v{u0}, v{mn}'); mn2 = u0
            for i in range(0, 16, 2):
                self.pk('fma', e + i, p + i, ('s', sL2E), mx, bc=(1, 2), neg=(2,))
                self.pk('fma', p + i, p + i, ('s', sL2E), mn2, bc=(1, 2), neg=(0,))
        for i in range(split if part == 2 else 0, 16):
            if mid and i == mid[0]: mid[1]()
            if part == 1 and i == split: return
            a(f'v_exp_f32 v{e+i}, v{e+i}')
            a(f'v_exp_f32 v{p+i}, v{p+i}')
        self.pk('add', s0, e, e + 2); self.pk('add', s1, p, p + 2)
        for i in range(4, 16, 2):
            self.pk('add', s0, s0, e + i); self.pk('add', s1, s1, p + i)
        a(f'v_add_f32 v{u0}, v{s0}, v{s0+1}')
        a(f'v_add_f32 v{u1}, v{s1}, v{s1+1}')
        a(f'v_add_f32 v{mx}, v{s0}, v{s0+1}')
        a(f'v_add_f32 v{mn}, v{s1}, v{s1+1}')
        a(f'v_permlane32_swap_b32 v{mx}, v{u0}')
        a(f'v_permlane32_swap_b32 v{mn}, v{u1}')
        self.pk('add', mx, mx, u0)
        a(f'v_rcp_f32 v{mx}, v{mx}')
        a(f'v_rcp_f32 v{mn}, v{mn}')
        for i in range(0, 16, 2):
            self.pk('mul', e + i, e + i, mx, bc=(1,))
            self.pk('mul', p + i, p + i, mn, bc=(1,))
        for i in range(8): a(f'v_cvt_pk_bf16_f32 v{out+i}, v{e+2*i}, v{e+2*i+1}')
        for i in range(8): a(f'v_cvt_pk_bf16_f32 v{out+8+i}, v{p+2*i}, v{p+2*i+1}')
    def ln_stats(self, xp, t, m_out, sd_out, fill=()):
        a = self.a
        fill = list(fill)
        def pad(n):
            for _ in range(n):
                if fill: a(fill.pop(0))
        s, u = t, t + 4
        a(f'v_mov_b32 v{u}, 0x3f803f80')
        for i in range(8):
            k = 2 * (i & 1)
            a(f'v_dot2_f32_bf16 v{s+k}, v{xp+i}, v{u}, ' + ('0' if i < 2 else f'v{s+k}'))
            a(f'v_dot2_f32_bf16 v{s+k+1}, v{xp+i}, v{xp+i}, ' + ('0' if i < 2 else f'v{s+k+1}'))
        pad(3)
        self.pk('add', s, s, s + 2)
        for ctl in ('quad_perm:[1,0,3,2]', 'quad_perm:[2,3,0,1]', 'row_half_mirror', 'row_ror:8'):
            pad(2 if ctl.endswith('3,2]') else 1)
            self.dpp('v_add_f32', s, s, s, ctl); self.dpp('v_add_f32', s + 1, s + 1, s + 1, ctl)
        pad(2)
        a(f'v_permlane16_swap_b32 v{s}, v{s+1}')
        a(f'v_add_f32 v{u}, v{s}, v{s+1}')
        a(f'v_add_f32 v{s}, v{s}, v{s+1}')
        pad(2)
        a(f'v_permlane32_swap_b32 v{s}, v{u}')
        a(f'v_add_f32 v{s}, v{s}, v{u}')
        a(f'v_mul_f32 v{u}, 0x3a800000, v{s}')
        a(f'v_mul_f32 v{s}, 0x3a800000, v{s}')
        pad(2)
        a(f'v_permlane16_swap_b32 v{s}, v{u}')
        a(f'v_fma_f32 v{sd_out}, -v{s}, v{s}, v{u}')
        a(f'v_cvt_pk_bf16_f32 v{m_out}, 0, v{s}')
        a(f'v_max_f32 v{sd_out}, 0, v{sd_out}')
        self.round1(sd_out)
        a(f'v_add_f32 v{sd_out}, 0x3727c5ac, v{sd_out}')
        self.round1(sd_out)
        a(f'v_sqrt_f32 v{sd_out}, v{sd_out}')
        pad(99)
        self.round1(sd_out)

    def build(self):
        self.front()
        self.gemm1()
        self.middle()
        self.gemm2()
        self.tail()
        self.finish()
        return self

    def vaa(self, dst, terms, sreg=None, const=0): self.va(dst, terms, sreg, const, vT + 5)

    def front(self):
        a, vm, lg, o, S, va = self.a, self.vm, self.lg, self.o, self.S, self.vaa
        E2 = range(0, 16, 2)
        a(f'{NAME}:')
        a(f's_load_dwordx16 {sr(KA, 16)}, s[0:1], 0')
        a(f's_load_dwordx8 {sr(KA + 16, 8)}, s[0:1], 64')
        a(f's_load_dwordx2 {sr(rWS, 2)}, s[0:1], 104')
        a('s_cmp_ge_u32 s2, 256')
        a('s_cbranch_scc1 L_END')
        if self.prof:
            a(f's_memrealtime {sr(sCMP, 2)}')
            a(f's_memtime {sr(sTM, 2)}')
            a('v_mov_b32 v255, 0')
            a('v_mov_b32 v254, 0')
            self.stnames.append('start'); self.nst = 1
        if o.get('exfil'): a(f's_memrealtime {sr(sTM, 2)}')
        a(f"""v_lshrrev_b32 v{vT}, 6, v0
        v_and_b32 v{vL}, 63, v0
        s_nop 0
        v_readfirstlane_b32 s{sWAVE}, v{vT}
        v_lshlrev_b32 v{vL16}, 4, v{vL}""")
        for srd, size in ((rX, 4194304), (rWM, 12582912), (rWS, WS_BYTES), (rW, 6291456), (rWO, 2097152), (rWG, 7340032), (rWU, 7340032), (rWD, 7340032), (rOUT, 4194304)):
            a(f's_mov_b32 s{srd+2}, {size}')
            a(f's_mov_b32 s{srd+3}, 0x20000')
        a(f"""s_mov_b32 s{sSPIN}, 0
        s_mov_b32 s{sMASK}, 0xffff0000
        s_mov_b32 s{sL2E}, 0x3fb8aa3b""")
        S(sX, 'wg & 7'); S(sJ, 'wg >> 3')
        S(sRow, '(x*32 + j)*8 + w')
        S(sR1, '(x & 4)*2 + (j >> 2)'); S(sHP, '(x & 3)*4 + ((j & 3) ^ q)', q=o.get('hpx', 2))
        S(sCB, '(x & 1)*8 + (j & 7)')
        S(sRT, '(x >> 1)*4 + (j >> 3)')
        S(sINB, '(wg*64 + w)*64 + INB')
        xs_raw, wm, cv, st, acc, xs, mp, hp = AR, AR + 8, AR + 16, AR + 20, AR + 24, AR + 32, AR + 48, AR + 64
        vWM, vCo, vL8, vL32S, vGA, vXT = SP, SP + 1, SP + 2, SP + 3, SP + 4, vT + 6
        self.vWM, self.vL8, self.vL32S, self.vGA = vWM, vL8, vL32S, vGA
        S(T3, 'row*2048')
        S(T2, '(x*8 + w)*32')
        S(T0, 'T2*6144 + (j ^ 1)*128'); S(T1, 'T0 + 8*12288')
        S(T5, '(rt*8 + w)*32768 + cb*128')
        S(T4, '(((x >> 1)*16 + cb)*16 + w)*512 + AINB')
        va(vWM, [(3, 3, 12288), (0, 3, 16)])
        va(vCo, [(3, 3, 2)], T2)
        va(vXT, [(0, 4, 2048), (4, 2, 16)])
        a('s_waitcnt lgkmcnt(0)')
        if self.prof:
            a(f'v_writelane_b32 v255, s{sTM}, 0')
            a(f'v_writelane_b32 v255, s{sCMP}, 63')
            a(f'v_writelane_b32 v254, s{sCMP}, 0')
        if o.get('exfil'):
            for k in range(3): a(f'v_writelane_b32 v255, s{sTM}, {k}')
        self.stamp('karg')
        a(f's_mov_b64 {sr(rWM, 2)}, {sr(KA + 20, 2)}')
        self.bl(wm, 4, vWM, rWM, T0, 0, 'nt', 'wm')
        self.bl(wm + 4, 4, vWM, rWM, T1, 0, 'nt', 'wm')
        a(f's_load_dword s{sTAG}, {sr(rWS, 2)}, {NONCE}')
        a(f'global_load_ushort v{cv}, v{vCo}, {sr(pC, 2)}'); vm.issue('wm')
        a(f'global_load_ushort v{cv+1}, v{vCo}, {sr(pC, 2)} offset:16'); vm.issue('wm')
        a(f's_mov_b64 {sr(rX, 2)}, {sr(KA, 2)}')
        a(f's_load_dword s{sPL}, {sr(rWS, 2)}, s{sINB} offset:0 glc')
        for q in range(2): a(f's_load_dword s{sPL + 1 + q}, {sr(rWS, 2)}, s{T4} offset:{q * 4096 + 508} glc')
        if o['tlb'] & 1:
            S(T6, '(w & 1)*2097152 + HF')
            a(f's_load_dword s{sPL + 5}, {sr(rWS, 2)}, s{T6} offset:0')
        if o['tsin']:
            S(T6, '(wg*8 + w)*128 + SINB')
            for q in range(2): a(f's_load_dword s{sPL + 3 + q}, {sr(rWS, 2)}, s{T6} offset:{q * 64} glc')
        if o.get('bar0', 1): a('s_barrier')
        self.bl(xs_raw, 4, vL16, rX, T3, 0, '', 'xs')
        self.bl(xs_raw + 4, 4, vL16, rX, T3, 1024, '', 'xs')
        for srd, k in ((rW, 2), (rWO, 6), (rWG, 12), (rWU, 14), (rWD, 16), (rOUT, 22)):
            a(f's_mov_b64 {sr(srd, 2)}, {sr(KA + k, 2)}')
        a(f"""s_getpc_b64 {sr(sCMP, 2)}
        s_and_b32 s{sCMP}, s{sCMP}, 0xfffffc00""")
        S(T6, '(j*8 + w)*128')
        va(vT, [(5, 1, 32768)], T6)
        a(f'v_min_u32 v{vT}, CODE_KB, v{vT}')
        a(f'global_load_dword v{vT+7}, v{vT}, {sr(sCMP, 2)}'); vm.issue()
        S(sKH, 'w >> 2'); S(sRB, 'w & 3'); S(sW1K, 'w*1024')
        S(sFS, 'x*7 + (j >> 2)'); S(sKQ, 'j & 3')
        va(vT + 2, [(4, 1, 64)]); va(vWd, [(0, 3, 16)])
        a(f'v_xor_b32 v{vWd}, v{vWd}, v{vT+2}'); va(vT + 2, [(3, 3, 6144)]); a(f'v_add_u32 v{vWd}, v{vWd}, v{vT+2}')
        S(sU0, o.get('u0', 'j & 12')); S(sWB, 'w*49152 + hp*128')
        wq = self.wq = [(n, t) for n in range(6) for t in 'kvq']
        def w_next(cnt=1):
            for _ in range(cnt):
                n, t = wq.pop(0)
                if t == 'k':
                    if n < 4:
                        S(sY1, '((j >> 4)*q) ^ n', n=n, q=2 * o['xorw'])
                        S(sY0, '((y1 + u0) & 15)*UR + wb'); S(sY1, 'y1*8192 + w1k')
                    else:
                        S(sY0, '((u0 + n) & 15)*UR + wb', n=n); S(sY1, 'w1k + q', q=n * 8192)
                S(sU, 'y0 + q', q=dict(q=0, k=2048, v=4096)[t]); S('m0', 'y1 + q', q='kvq'.index(t) * REG)
                self.dma(vWd, rW, sU, 0, '', ('W', n))
        wb = list(o['wburst'])
        va(vL8, [(0, 6, 8)])
        va(vL32S, [(0, 6, 32)], None, MISC)
        S(T0, 'w*4 + MISC')
        va(vGA, [(4, 2, 64), (0, 3, 256), (3, 1, 32)], T0)
        self.stamp('issued')
        def xt_load():
            self.bl(XR, 4, vXT, rX, T5, 0, '', 'xt')
            self.bl(XR + 4, 4, vXT, rX, T5, 64, '', 'xt')
        if o['xtat'] == 0: xt_load()
        S(T0, '((((w >> 1)*16 + ((j ^ 1) & 15))*2 + (j >> 4))*8 + x)*512 + AINB')
        vm.wait('wm')
        self.stamp('wmok')
        for i in range(2):
            a(f'v_lshlrev_b32 v{cv+i}, 16, v{cv+i}')
            self.silu(cv + i, vT + i)
        for s in self.gemv_ops([wm, wm + 4], [cv, cv + 1], acc, vT, vT + 1, True): a(s)
        a(f"""s_waitcnt lgkmcnt(0)
        s_mul_i32 s{sTAG}, s{sTAG}, 0x9e3779b1
        s_add_u32 s{sTAG}, s{sTAG}, 0x7f4a7c15""")
        self.dw('ds_write_b32', vGA, acc, 1, L_A1 - MISC)
        self.barrier()
        self.r128(acc, vL32S, L_A1 - MISC); self.r128(acc + 4, vL32S, L_A1 - MISC + 16)
        if o['xtat'] == 1: xt_load()
        lg.wait_all()
        self.sum8(acc)
        a(f'v_mov_b32 v{acc+1}, s{sTAG}')
        a(f"""s_bitcmp1_b32 s{sWAVE}, 0
        s_cselect_b32 exec_lo, 0, -1
        s_cselect_b32 exec_hi, -1, 0""")
        self.bs(acc, 2, vL8, rWS, T0, 0, 'sc1')
        a('s_mov_b64 exec, -1')
        self.stamp('A1pub')
        w_next(wb[0])
        vm.wait('xs')
        self.stamp('xsok')
        self.ln_stats(xs_raw, vT, st, st + 1)
        S(T0, 'w*8 + L_ST')
        a(f"""v_lshrrev_b32 v{st}, 16, v{st}
        v_or_b32 v{st}, v{st}, v{st+1}
        v_mov_b32 v{st+1}, s{sTAG}
        v_mov_b32 v{vT}, s{T0}""")
        self.dw('ds_write_b64', vT, st, 2)
        va(vT + 1, [(0, 2, 16)], None, L_ST)
        va(vT, [(0, 2, 16), (2, 1, 1024)])
        S(T0, '((x & 6) + ((x & 1)*2 + (j >> 4))*64 + w*8)*1024 + (j & 15)*64 + SINB')
        self.barrier()
        self.r128(st, vT + 1)
        lg.wait_all()
        a('s_mov_b64 exec, 0xff')
        self.bs(st, 4, vT, rWS, T0, 0, 'sc1')
        a('s_mov_b64 exec, -1')
        self.stamp('A2pub')
        if o['xtat'] == 2: xt_load()
        w_next(wb[1])
        mg = acc
        def pre_work():
            va(vT, [(0, 5, 16), (5, 1, 4096)])
            S(T1, 'w*4 + L_MP'); va(vT + 1, [(0, 6, 64)], T1)
            va(vT + 2, [(0, 2, 32), (5, 1, 128), (4, 1, 256), (2, 2, 512)], None, L_MP)
            S(T1, '(wg*8 + w)*128 + SINB')
            va(vT + 4, [(0, 4, 8)])
        def x_unpack():
            vm.wait('xt')
            for p, q in ((0, 2), (1, 3), (4, 6), (5, 7)): a(f'v_permlane32_swap_b32 v{XR+p}, v{XR+q}')
            for i in range(8): self.unpack(xs + 2 * i, xs + 2 * i + 1, XR + i)
        self.spoll([(q, 1, T4, q * 4096 + 508) for q in range(2)], range(2), work=pre_work)
        self.stamp('apre')
        if o.get('abar', 0): a('s_barrier')
        st_ld = lambda: self.bl(st, 2, vT + 4, rWS, T1, 0, 'sc1', 'st')
        def st_go():
            self.spoll([(q, 1, T1, q * 64 + 60) for q in range(2)], range(2), work=x_unpack)
            st_ld()
            if o['fbar']: a('s_barrier')
            w_next(wb[2])
        self.try_load(lambda: self.bl(mg, 4, vT, rWS, T4, 0, 'sc1'), [mg + 1, mg + 3], vT + 3, st_go)
        self.stamp('modok')
        a(f'ds_write2_b32 v{vT+1}, v{mg}, v{mg+2} offset0:0 offset1:8'); lg.issue()
        self.barrier()
        for i in (2, 3, 0, 1): self.r128(mp + 4 * i, vT + 2, (i >> 1) * 2048 + (i & 1) * 16, i >> 1)
        S(T0, 'hp*4096 + w*512')
        a(f'v_add_u32 v{vT}, s{T0}, v{vL16}')
        S('m0', 'w*512 + L_WPHI')
        a('s_mov_b32 exec_hi, 0')
        a(f'global_load_lds_dwordx4 v{vT}, {sr(pWPHI, 2)}'); vm.issue()
        a('s_mov_b32 exec_hi, -1')
        w_next(wb[3])
        S(T0, '((rt*16 + cb)*4 + (w >> 1))*4096 + (w & 1)*256 + HF')
        va(vT, [(0, 4, 16), (4, 1, 1024), (5, 1, 512)])
        lg.wait(1); self.sum8(mp + 8)
        self.round1(mp + 8)
        lg.wait(0); self.sum8(mp)
        a(f'v_add_f32 v{mp+8}, 1.0, v{mp+8}')
        self.round2(mp + 8, mp)
        vm.wait('st')
        self.tagcheck([st + 1], None)
        a('s_cbranch_vccz L_STOK')
        q0 = list(vm.q)
        self.poll(st_ld, [st + 1])
        vm.q = q0
        a('L_STOK:')
        self.stamp('statok')
        self.unpack(st + 1, st, st)
        a(f'v_rcp_f32 v{st}, v{st}')
        for i in E2: self.pk('add', xs + i, xs + i, st + 1, bc=(1,), neg=(1,))
        self.round_list([xs + i for i in range(16)])
        for i in E2: self.pk('mul', xs + i, xs + i, st, bc=(1,))
        self.round_list([xs + i for i in range(16)])
        for h in range(2):
            rg = range(8 * h, 8 * h + 8)
            for i in rg: self.dpp('v_mul_f32', xs + i, mp + 8, xs + i, f'row_newbcast:{i}')
            self.round_list([xs + i for i in rg])
            for i in rg: self.dpp('v_add_f32', xs + i, mp, xs + i, f'row_newbcast:{i}')
            for i in range(4 * h, 4 * h + 4): a(f'v_cvt_pk_bf16_f32 v{hp+i}, v{xs+2*i}, v{xs+2*i+1}')
            self.bs(hp + 4 * h, 4, vT, rWS, T0, 2048 * h, 'sc1', 'hs')
        self.stamp('hst')
        va(vB, [(2, 2, 128), (3, 1, 64), (4, 1, 32), (0, 2, 8), (5, 1, 512)])
        a(f'v_xor_b32 v{vB+1}, 64, v{vB}')
        for q in (1, 2):
            for h in range(2): a(f'v_add_u32 v{vB+2*q+h}, {q*REG}, v{vB+h}')
        va(vT + 1, [(0, 2, 8 * 4096), (2, 2, 4096)])
        S(T0, '((rt >> 3)*4 + (rt & 7)*32)*4096 + (cb >> 1)*64 + (cb & 1)*4 + INB')
        S(sAB, 'r1*262144 + rb*4096 + HF')
        a(f"""s_cmp_ge_u32 s{sJ}, {0 if o.get('noffn') else 28}
        s_cselect_b32 s{rWG+2}, 0, s{rWG+2}
        s_cselect_b32 s{rWU+2}, 0, s{rWU+2}
        s_cselect_b32 s{rWD+2}, 0, s{rWD+2}""")
        vm.wait('hs')
        a('s_barrier')
        self.push(vT + 1, T0, 16, vT + 2, 'L_PB')
        self.stamp('hpub')
        w_next(wb[4])
        vWo, vFG, vFD = vS0, vS1, SP + 5
        def setup():
            S(sWO, 'w*16384 + cb*128'); S(sY2, '((j & 1)*8 + (j >> 3)*2)*131072' if o['worot'] else '(j & 1)*1048576')
            S(sFG, '(kq*8 + w)*(32*7168) + fs*128'); S(sFD, '(fs*8 + w)*16384 + kq*512')
            S(sM2, '((x & 3)*8 + w)*(32*12288) + (j*2 + (x >> 2))*128 + 4096')
            S(T1, '(w & 1)*64')
            va(vT + 2, [(4, 1, 32)], T1); va(vWo, [(0, 3, 16)])
            a(f'v_xor_b32 v{vWo}, v{vWo}, v{vT+2}'); va(vT + 2, [(3, 3, 2048)]); a(f'v_add_u32 v{vWo}, v{vWo}, v{vT+2}')
            S(T1, '(w & 2)*32'); va(vT + 2, [(4, 1, 32)], T1); va(vFG, [(0, 3, 16)])
            a(f'v_xor_b32 v{vFG}, v{vFG}, v{vT+2}'); va(vT + 2, [(3, 3, 7168)]); a(f'v_add_u32 v{vFG}, v{vFG}, v{vT+2}')
            S(T1, '(w & 1)*128')
            va(vT + 2, [(5, 1, 64)], T1); va(vFD, [(0, 5, 16), (5, 1, 2048)])
            a(f'v_xor_b32 v{vFD}, v{vFD}, v{vT+2}')
            S(T3, 'u0*16384'); a(f'v_add_u32 v{vCo}, s{sAB}, v{vL16}')
            S(T1, 'rb*2048 + L_QH'); a(f'v_add_u32 v0, s{T1}, v{vL16}')
        S(T6, 'wg*4096 + INB'); S(T7, '(w & 3)*128 + T6'); S(T6, 'u0*32 + T6')
        a(f's_cmp_ge_u32 s{sWAVE}, 4\ns_cselect_b32 s{T6}, s{T7}, s{T6}')
        self.spoll([(0, 2, T6, 0), (2, 2, T6, 64)], range(4), lambda: (w_next(wb[5]), setup(), a(';TOUR')))
        assert len(wq) % 3 == 0 and len(wq) <= (6 if o['xorw'] else 12)

    def gemm1(self):
        a, vm, lg, o, S, va = self.a, self.vm, self.lg, self.o, self.S, self.vaa
        LOOK = o['LOOK']; NB = LOOK + 1; assert NB <= 7
        vWo, vFG, vFD, vHo = vS0, vS1, SP + 5, 0
        self.vWo, self.vFG, self.vFD = vWo, vFG, vFD
        m2w, m2c = AV, AV + 24
        FL = self.FL = AK
        cur = self.cur = [0]
        TOK = [(0, 3, 16), (3, 2, 256), (5, 1, 128)]
        def cvt8(d, s_):
            for i in range(8): a(f'v_cvt_pk_bf16_f32 v{d+i}, v{s_+2*i}, v{s_+2*i+1}')
        self.cvt8 = cvt8
        fq = self.fq = [(m, i) for m in range(3) for i in range(4)]
        held = self.held = ([], [])
        def f_src(m, i, far=0):
            q = (i * 8 * 7168 + far * 4 * 32 * 7168, i * 4096 + far * 4 * 16384)[m == 2]
            S(sU, ('fg', 'fd')[m == 2] + ' + q', q=q & 0xffffffff)
            return (vFG, (rWG, rWU)[m]) if m < 2 else (vFD, rWD)
        def f_lds(m, i): return (L_GU + m * 32768 if m < 2 else L_DN) + i * 1024
        def f_ld(g, k, far, count=True):
            m, i = held[g][k]
            v, r = f_src(m, i, far * (1 - 2 * g))
            a(f'buffer_load_dwordx4 {vr(FL + 8*k + 4*far, 4)}, v{v}, {sr(r, 4)}, s{sU} offen nt')
            if count: vm.issue('ffn')
        sym = self.sym = []
        def ffn_reg(n=1):
            for _ in range(n):
                m, i = fq.pop(0)
                r0 = 8 * len(held[1]) + 4 * len(sym); assert r0 < 64 and (r0 < 32 or o['m2c'] >= 3)
                assert o['m2c'] != 4 or r0 < 32 or 'm2pub' in self.marks
                v, r = f_src(m, i)
                self.bl(FL + r0, 4, v, r, sU, 0, 'nt', 'ffr')
                sym.append((m, i, FL + r0))
        def ffn_dma(n=1):
            for _ in range(n):
                m, i = fq.pop(0)
                v, r = f_src(m, i)
                S('m0', 'w1k*4 + q', q=f_lds(m, i))
                self.dma(v, r, sU, 0, 'nt', 'ffn')
        self.ffn_reg, self.ffn_dma, self.f_lds = ffn_reg, ffn_dma, f_lds
        for _ in range(o['fA']): held[1].append(fq.pop(0))
        def m2_ld(i):
            if i == 0:
                S(sU, '((x & 3)*8 + w)*64'); self.va(m2c + 4, [(3, 3, 2)], sU, 0, m2c + 5)
                for k in range(4): a(f'global_load_ushort v{m2c+k}, v{m2c+4}, {sr(pC, 2)} offset:{16*k}'); vm.issue('m2')
            S(sU, 'm2 + q', q=i * 8 * 12288)
            self.bl(m2w + 4 * i, 4, self.vWM, rWM, sU, 0, 'nt', 'm2')
        wslot = lambda p: p
        def wo_dma(p, back=0):
            S(sU, '(y2 ^ q) + wo' + (' - 65536' if back else ''), q=p * 131072)
            S('m0', 'w1k + q', q=wslot(p) * 8192 - 4096 * back)
            self.dma(vWo, rWO, sU, 0, '', 'wo')
        self.wo_dma = wo_dma
        def poison(backs, t):
            a(f'v_mov_b32 v{t}, -1\nv_mov_b32 v{t+1}, -1\nv_mov_b32 v{t+2}, -1\nv_mov_b32 v{t+3}, -1')
            for back in backs:
                S(T6, '((rt*8 + w - q)*16 + cb)*256 + ST', q=4 * back); self.va(t + 4, [(0, 6, 4)])
                self.bs(t, 1, t + 4, rWS, T6, 0, 'sc1')
            S(T6, 'rt*16384 + cb*512 + XS'); self.va(t + 4, [(0, 5, 16), (5, 1, 8192)], None, 0, t + 5)
            a(f's_cmp_lg_u32 s{sWAVE}, 5\ns_cbranch_scc1 L_NOPO')
            self.bs(t, 4, t + 4, rWS, T6, 0, 'sc1', count=False)
            a('L_NOPO:')
        self.poison = poison
        seq = []
        for sg in range(36): seq += [(t, h, sg) for t in 'kqv' for h in range(2)]
        for sg in range(36, 40): seq += [('k', h, sg) for h in range(2)]
        for sg in range(36, 40): seq += [(t, h, sg) for t in 'qv' for h in range(2)]
        for h in range(2): seq += [('k', h, sg) for sg in range(40, 64)]
        for t in 'vq':
            for sg in range(40, 64): seq += [(t, h, sg) for h in ((1, 0) if (t, sg) == ('q', 63) else (0, 1))]
        bA, bH, bQ = o['bA'], o['bH'], 335
        assert bA >= 271
        bars = [24 * k - 1 for k in range(1, 10)] + [223, 239, 253, bA, bH, bQ]
        first, last = {}, {}
        for n, (t, h, sg) in enumerate(seq):
            first.setdefault(f'{t}{sg >> 2}', n); last[f'{t}{sg >> 2}'] = n; last[('A', sg)] = n
        a(f"""s_cmp_ge_u32 s{sWAVE}, 4
        s_cbranch_scc1 L_HELP
        s_setprio {o['prio']}""")
        q_hok = list(vm.q)
        ACC = dict(k=AK, v=AV, q=AQ)
        nxt = [0]; late = []
        def a_load():
            while late: a(late.pop(0))
            sg = nxt[0]; nxt[0] += 1
            if o.get('noA') and sg >= 12: return
            self.bl(AR + 4 * (sg % 24), 4, SP + 1, rWS, T3, (sg % 4) * 1024, 'sc1', ('A', sg))
            if sg % 4 == 3: late.extend([f's_add_u32 s{T3}, s{T3}, 16384', f's_and_b32 s{T3}, s{T3}, 0x3ffff'])
        def b_read(n):
            t, h, sg = seq[n]
            s = sg & 3
            off = ((sg >> 2) % 6) * 8192 + (s >> 1) * 4096 + (s & 1) * 1024
            d = RING + 4 * (n % NB); v = vB + 2 * 'kvq'.index(t) + h
            self.tr(d, v, off, ('B', n)); self.tr(d + 2, v, off + 2048, ('B', n))
        self.nopk = True
        stk, stv = Stream(self), Stream(self)
        for h in range(2):
            for q in range(2):
                stk.cap(lambda: [a(f'v_cvt_pk_bf16_f32 v{AK+16*h+4*q+i}, v{AK+16*h+8*q+2*i}, v{AK+16*h+8*q+2*i+1}') for i in range(4)])
                stk.add(lambda h=h, q=q: self.dw('ds_write_b128', vHo, AK + 16 * h + 4 * q, 4, q * 1024, f'kh{h}'), o['wcost'], 1)
            stk.mark(f'kh{h}')
            if h == 0:
                stk.cap(lambda: a(f'v_subrev_u32 v{vHo}, {L_QH - L_HV}, v{vHo}'))
                stk.until(288 + o['kdel'])
        stk.until(bH + 1)
        stk.cap(lambda: (S(T1, 'rb*2048 + L_HV'), self.va(vHo, TOK, T1, 0, vT)))
        for h in range(2):
            for q in range(2):
                stv.cap(lambda: [a(f'v_cvt_pk_bf16_f32 v{AV+16*h+4*q+i}, v{AV+16*h+8*q+2*i}, v{AV+16*h+8*q+2*i+1}') for i in range(4)])
                stv.add(lambda h=h, q=q: self.dw('ds_write_b128', vHo, AV + 16 * h + 4 * q, 4, h * 8192 + q * 1024, 'vst'), o['wcost'], 1)
        if o['m2c'] == 0:
            stv.sleep(4)
            stv.add(lambda: lg.wait('vst'))
            for i in range(4): stv.add(lambda i=i: m2_ld(i), 0, 1); stv.sleep(o.get('fgap', 4))
        while nxt[0] < o['A00']: a_load()
        vm.wait(('W', 3 if o['xorw'] else 1))
        a('s_barrier')
        self.stamp('hok')
        if not nxt[0]: a_load()
        for n in range(LOOK): b_read(n)
        while nxt[0] < o['A0']: a_load()
        seen = set(); lpend = []; owe = [0]
        Apos = list(o['Apos']); assert o['A0'] + sum(Apos) == 64
        for n in range(384):
            t, h, sg = seq[n]; cur[0] = n
            if ('A', sg) not in seen:
                assert sg < nxt[0]
                vm.wait(('A', sg)); seen.add(('A', sg))
            lg.wait(('B', n))
            d = ACC[t] + 16 * h
            a(f'v_mfma_f32_32x32x16_bf16 {vr(d, 16)}, {vr(RING + 4*(n % NB), 4)}, {vr(AR + 4*(sg % 24), 4)}, ' + (vr(d, 16) if sg else '0'))
            if self.prof and o.get('ls'):
                l0, l1, lst = o['ls']
                if lpend and n >= lpend[0][0]:
                    _, r_, k_ = lpend.pop(0); a(f'v_writelane_b32 v255, s{r_}, {k_}')
                if l0 <= n < l1 and (n - l0) % lst == 0:
                    r_ = sPL + 2 * (self.nst % 4)
                    a.items.append(('raw', f'    s_memtime {sr(r_, 2)}')); lpend.append((n + 4, r_, self.nst)); self.stnames.append(f'n{n}'); self.nst += 1
            def a_try():
                p, r = divmod(n, 24)
                ao = o['aoff'] if p else 0; r -= ao
                if n < 240 and r >= 0 and (r + 1) * Apos[p] // (24 - ao) > r * Apos[p] // (24 - ao): owe[0] += 1
                if owe[0] and (nxt[0] < 24 or last[('A', nxt[0] - 24)] <= n): a_load(); owe[0] -= 1
                elif late: a(late.pop(0))
            if o['apos'] == 0: a_try()
            bud = [o['kbud'], 1]
            if n >= 264 + o['kdel']: stk.pull(bud, bud[0])
            bud = [o['vbud'], 1]
            if n > bQ + 2: stv.pull(bud, bud[0])
            if n + LOOK < 384: b_read(n + LOOK)
            if o['apos'] == 1: a_try()
            if n in bars:
                if n in (bA, bH):
                    assert f'kh{int(n == bH)}' in self.marks
                    lg.wait(f'kh{int(n == bH)}')
                    if 'prio2' in o and n == bA: a(f's_setprio {o["prio2"]}')
                if not (o.get('noB') and n < 200): a('s_barrier')
                if o.get('gst'): self.stamp(f'b{n}')
        assert not (stk.q or stv.q) and nxt[0] == 64
        self.stamp('gemm1')
        vq, wph = AR + 16, AR + 24
        S(T1, 'rb*2048 + L_QH'); a(f'v_add_u32 v{vHo}, s{T1}, v{vL16}')
        va(vT, [(2, 2, 64), (4, 1, 32), (0, 2, 8), (5, 1, 256)], None, L_WPHI)
        for s in range(2):
            for u in range(2): self.tr(wph + 4 * s + 2 * u, vT, s * 1024 + u * 512)
        cvt8(AR, AQ + 16)
        for q in range(2): self.dw('ds_write_b128', vHo, AR + 4 * q, 4, q * 1024)
        cvt8(vq, AQ)
        if o['m2c'] == 1:
            for i in range(4): m2_ld(i)
        a('s_setprio 0')
        a('s_branch L_JOIN')
        a('L_HELP:')
        vm.q = list(q_hok); lg.reset()
        vm.wait(('W', 3 if o['xorw'] else 1))
        a('s_barrier')
        vis = {}
        pace = [1]
        def w_sec(t, n):
            if o.get('noW'): return
            for back in (1, 0):
                S(sU, '((u0 + n) & 15)*UR + wb + q', n=n, q=(dict(q=0, k=2048, v=4096)[t] - back * 4 * 49152) & 0xffffffff)
                S('m0', 'w1k + q', q='kvq'.index(t) * REG + (n % 6) * 8192 - back * 4096)
                self.dma(vWd, rW, sU, 0, '', ('W', t, n))
                if o['wpace'] and pace[0]: a(f's_waitcnt vmcnt({o["wpace"]})')
        for n, t in self.wq: w_sec(t, n)
        ka, wp2, pa, pb, ee, vPW = AR, AR + 16, AR + 32, AR + 48, AR + 64, AR + 80
        va(vT, [(2, 2, 64), (4, 1, 32), (0, 2, 8), (5, 1, 256)], None, L_WPHI)
        for hs in range(4):
            for u in range(2): self.tr(wp2 + 4 * hs + 2 * u, vT, hs * 1024 + u * 512)
        S(T1, 'rb*1024 + L_PHK'); va(vPW, TOK, T1)
        def touch(boxes):
            a('s_waitcnt lgkmcnt(0)')
            for q, b in enumerate(boxes):
                a(f's_load_dword s{sPL + 2*q}, {sr(rWS, 2)}, s{sINB} offset:{b * 512} glc')
                a(f's_load_dword s{sPL + 2*q + 1}, {sr(rWS, 2)}, s{sINB} offset:{b * 512 - 256} glc')
        wsched = {int(k): v.split() for k, v in o['wsched'].items()}
        for k in range(1, 5): wsched[k] = [f'{t}{k + 5}' for t in 'kqv'] + wsched.get(k, [])
        need = {}
        for u in first:
            k = len([b for b in bars if b < first[u] - LOOK])
            if k: need.setdefault(k, []).append(u)
        done = {f'{t}{n}' for n in range(6) for t in 'kvq'}
        def h_bar(k):
            if k < 5: vm.wait(('W', k + 1))
            for u in need.get(k, []):
                assert u in done, (u, k)
                vm.wait(('W', u[0], int(u[1:])))
            if not (o.get('noB') and k < 9): a('s_barrier')
            for u in wsched.get(k, []):
                assert last[f'{u[0]}{int(u[1:]) - 6}'] <= bars[k - 1], (u, k)
                w_sec(u[0], int(u[1:])); done.add(u)
        hm, hc, ha, ht = AV, AQ, AQ + 8, AQ + 16
        if o.get('fP'): S(T4, o['fP'])
        if o['m2c'] == 4:
            hc, ha, ht = RING + 8, AR + 44, RING + 24
            def m2h(i):
                S(sU, 'T6 + q', q=i * 8 * 12288)
                self.bl(hm + 4 * i, 4, self.vWM, rWM, sU, 0, 'nt')
        if o['m2c'] >= 3:
            S(T5, o['m2k3'])
            S(sU, '((x & 3)*4 + w - 4)*128'); va(ht, [(3, 3, 2)], sU)
            for i in range(8): a(f'global_load_ushort v{hc+i}, v{ht}, {sr(pC, 2)} offset:{16*i}'); vm.issue('c2')
            S(T6, '((x & 3)*4 + w - 4)*(64*12288) + (j*2 + (x >> 2))*128 + 4096')
        for k in range(1, 14):
            if k == 13: lg.wait_all()
            if o['m2c'] == 3 and k == o['m2e'] + 1: lg.wait_all()
            h_bar(k)
            if o['m2c'] == 4 and k == o['m2k0']:
                for i in range(o['m2n0']): m2h(i)
            if o['m2c'] == 4 and k == 3:
                vm.wait('c2')
                for i in range(8):
                    a(f'v_lshlrev_b32 v{hc+i}, 16, v{hc+i}')
                    self.silu(hc + i, ht + (i & 1))
            if o['m2c'] == 3:
                nb = o['m2nb']
                for b in range(nb):
                    if k <= o['m2g'] - o.get('m2lag', 2) and k - b * o['m2db'] >= 1:
                        a(f's_cmp_lg_u32 s{T5}, {k - b * o["m2db"]}\ns_cbranch_scc1 L_NM2_{k}_{b}')
                        for i in range(b * 8 // nb, (b + 1) * 8 // nb):
                            S(sU, 'T6 + q', q=i * 8 * 12288)
                            a(f'buffer_load_dwordx4 {vr(hm + 4*i, 4)}, v{self.vWM}, {sr(rWM, 4)}, s{sU} offen nt')
                        a(f'L_NM2_{k}_{b}:')
                if k == 3:
                    vm.wait('c2')
                    for i in range(8):
                        a(f'v_lshlrev_b32 v{hc+i}, 16, v{hc+i}')
                        self.silu(hc + i, ht + (i & 1))
                g0 = o['m2g']
                ke = o['m2e']
                if g0 <= k <= ke:
                    if k == g0:
                        vm.wait(('W', 'k', k + 4 if o.get('m2lag', 2) == 2 else k + 5))
                        mops = self.gemv_ops([hm + 4 * i for i in range(8)], [hc + i for i in range(8)], ha, ht, ht + 1, False)
                    if o.get('gprio'): a('s_setprio 3')
                    for _ in range(len(mops) if k == ke else 144 // (ke + 1 - g0)): a(mops.pop(0))
                    if o.get('gprio'): a('s_setprio 0')
                    if k == ke: self.dw('ds_write_b32', self.vGA, ha, 1, L_M2 - MISC)
                if k == ke + 1:
                    a(f"""s_cmp_lg_u32 s{sWAVE}, 4
                    s_cbranch_scc1 L_M2F
                    ds_read_b128 {vr(ha, 4)}, v{self.vL32S} offset:{L_M2 - MISC + 16}""")
                    S(T0, '((j*2 + (x >> 2))*4 + (x & 3))*512 + MODP2')
                    a(f"""s_waitcnt lgkmcnt(0)
                    v_add_f32 v{ha}, v{ha}, v{ha+1}
                    v_add_f32 v{ha+2}, v{ha+2}, v{ha+3}
                    v_mov_b32 v{ha+1}, s{sTAG}
                    v_add_f32 v{ha}, v{ha}, v{ha+2}""")
                    self.bs(ha, 2, self.vL8, rWS, T0, 0, 'sc1', count=False)
                    a('L_M2F:')
            if o.get('fP') and k <= 8:
                a(f's_cmp_lg_u32 s{T4}, {k}\ns_cbranch_scc1 L_NFP_{k}')
                for i in range(o['fA']):
                    for far in range(2): f_ld(1, i, far, False)
                a(f'L_NFP_{k}:')
            if k == 2 and o['poisat'] == 0: poison((0, 1), AR + 88); S(T6, '((x & 3)*4 + w - 4)*(64*12288) + (j*2 + (x >> 2))*128 + 4096')
            if k in (1, 3, 5) and o.get('touch', 1): touch({1: (1, 7), 3: (2, 3), 5: (5, 6)}[k])
            if k == o['tlbk'] and o['tlb'] & 2:
                a(f's_cmp_lg_u32 s{sWAVE}, 7\ns_cbranch_scc1 L_NTLB\ns_waitcnt lgkmcnt(0)')
                S(T0, '(j & 15)*2097152'); S(T1, '(j & 3)*2097152'); S(T2, '(j & 1)*2097152')
                a(f's_load_dword s{sPL}, {sr(rWS, 2)}, s{T0} offset:0')
                for q, r in enumerate((rWG, rWU, rWD)): a(f's_load_dword s{sPL + 1 + q}, {sr(r, 2)}, s{T1} offset:0')
                a(f's_load_dword s{sPL + 4}, {sr(rOUT, 2)}, s{T2} offset:0')
                a(f's_load_dword s{sPL + 5}, {sr(rWO, 2)}, 0')
                a('L_NTLB:')
            if k == 4 and o.get('tm2'):
                S(T0, '((j*2 + (x >> 2))*4 + (x & 3))*512 + (w - 4)*128 + MODP2')
                a('s_waitcnt lgkmcnt(0)')
                for q in range(2): a(f's_load_dword s{sPL + q}, {sr(rWS, 2)}, s{T0} offset:{q * 64} glc')
            if k == 6 and o['tz']:
                S(T0, '(hp*8 + w - 4)*1024 + r1*64 + ZP'); S(T1, '(rt*16 + cb)*64 + UP')
                a('s_waitcnt lgkmcnt(0)')
                for q in range(2): a(f's_load_dword s{sPL + q}, {sr(rWS, 2)}, s{T0} offset:{q * 4096} glc')
                a(f's_load_dword s{sPL + 2}, {sr(rWS, 2)}, s{T1} offset:0 glc')
            if k == 8 and o.get('touch', 1):
                S(T0, 'fs*8192 + (w - 4)*256 + HGR')
                a('s_waitcnt lgkmcnt(0)')
                for q in range(4): a(f's_load_dword s{sPL + q}, {sr(rWS, 2)}, s{T0} offset:{q * 2048 + 1024 + 252} glc')
        pace[0] = 0
        def logits(h, pp):
            if o.get('hprio'): a(f's_setprio {o["hprio"]}')
            for q in range(2): self.r128(ka + 4 * q, vHo, q * 1024, ('kh', q))
            if h == 0: a(f'v_subrev_u32 v{vHo}, {L_QH - L_HV}, v{vHo}')
            for q in range(2):
                lg.wait(('kh', q))
                a(f'v_mfma_f32_32x32x16_bf16 {vr(pp, 16)}, {vr(wp2 + 8*h + 4*q, 4)}, {vr(ka + 4*q, 4)}, ' + (vr(pp, 16) if q else '0'))
            if o.get('hprio') and not o.get('hlong'): a('s_setprio 0')
        logits(0, pa)
        self.stamp('klog')
        hs = Stream(self)
        for h, pp in ((0, pa), (1, pb)):
            hs.cap(lambda: self.softmax_pm(pp, ee, ee, vT))
            k = max(i for i, it in enumerate(hs.q) if it[0] == 4.75) - 8
            tailq = hs.q[k + 1:]; hs.q = hs.q[:k + 1]
            wr = lambda fb, h=h: (0, 0, lambda: self.dw('ds_write_b128', vPW, ee + 4 * fb, 4, h * 16384 + fb * 4096, ('phk', h)))
            hs.q += [wr(0)] + tailq[:4] + [wr(1), wr(2)] + tailq[4:] + [wr(3)]
            if h == 0:
                n1 = len(hs.q)
                hs.add(lambda: None)
        hs.q.insert(n1 + 34, (0, 0, lambda: lg.wait(('phk', 0))))
        ex = {}
        def put(i, fn):
            while i in ex: i += 1
            ex[i] = fn
        nq = int(n1 * o['hq'])
        put(nq, lambda: h_bar(15))
        nh = int(n1 * o['hh'])
        put(nh, lambda: (h_bar(14), logits(1, pb)))
        g1, g2 = o['hgap']
        ff = [(lambda k=k, far=far: f_ld(1, k, far)) for k in range(o['fA']) for far in range(2) if not o.get('fP')]
        pre = [(lambda k=k: m2_ld(k)) for k in range(4)] if o['m2c'] < 2 else []
        if o['m2c'] == 4:
            for i in range(o['m2n0'], 8): put(3 + o['m2gap'] * (i - o['m2n0']), lambda i=i: m2h(i))
            self.m2h = (hm, hc, ha, ht)
        npre = o['fpre'] - len(pre)
        pre += ff[:npre]; ff = ff[npre:]
        for k, fn in enumerate(pre): put(nh + 5 + g1 * k, fn)
        wl = self.wo_left = [6, 7, 8, 9, 10, 11] + [12, 13, 14, 15] + [0, 1, 2, 3, 4, 5]
        post = []
        for k in range(o['woA']): post += [lambda: wo_dma(wl[0], 1), lambda: wo_dma(wl.pop(0))]
        post = post[:8] + ff + post[8:] if o.get('wofirst', 1) else ff + post
        for k, fn in enumerate(post): put(nq + 5 + g2 * k, fn)
        for i, (v_, l_, fn) in enumerate(hs.q):
            if i in ex: ex.pop(i)()
            fn()
        for i in sorted(ex): ex[i]()
        self.nopk = False
        S(T1, 'rb*2048 + L_QH'); a(f'v_add_u32 v{vHo}, s{T1}, v{vL16}')
        assert wph == wp2 + 8
        if o.get('hprio'): a('s_setprio 0')
        self.stamp('ksm')
        a('L_JOIN:')
        vm.q = ['m2'] * (8 if o['m2c'] < 2 else 0); lg.q = [None]
        self.m2_ld = m2_ld
        self.vHo = vHo

    def middle(self):
        a, vm, lg, o, S, va = self.a, self.vm, self.lg, self.o, self.S, self.vaa
        vL8, vL32S, vGA, vHo, ffn_reg = self.vL8, self.vL32S, self.vGA, self.vHo, self.ffn_reg
        pp, ee, ph, vq, wph = AQ, AQ + 16, AR, AR + 16, AR + 24
        fA, fB, kvd, zd, ones = AR + 32, AR + 48, AR + 80, AR + 88, AR + 92
        kp, zz, zf, kf, k2 = AR + 32, AR + 40, AR + 44, AR + 60, AR + 76
        m2w, m2a, m2c, m2t = AV, AV + 16, AV + 24, AV + 28
        vPA, vPB, vPC, vKP, vXF = RING + 16, RING + 17, RING + 18, RING + 19, RING + 20
        md, wr1 = RING, RING + 4
        self.md, self.wr1 = md, wr1
        wl = self.wo_left
        wo1 = lambda: self.wo_dma(wl.pop(0))
        fw = o['fwin']
        va(vPB, [(0, 1, 8), (2, 2, 16), (4, 1, 64), (1, 1, 128), (5, 1, 256)])
        S(T0, 'w*4096 + L_PHK'); a(f'v_add_u32 v{vPA}, s{T0}, v{vPB}')
        S(T0, 'kh*8192 + L_HV'); a(f'v_add_u32 v{vPB}, s{T0}, v{vPB}')
        for i in range(4): a(f'v_mov_b32 v{ones+i}, 0x3f803f80')
        S(T0, '((hp*8 + w)*32 + r1)*1024 + KVP'); S(T2, 'T0 + 16384')
        S(T3, '(hp*8 + w)*1024 + ZP'); S(T1, 'r1*64 + T3')
        self.barrier()
        self.stamp('phik')
        def kvm(u):
            lg.wait(('kv', u))
            for db in range(2):
                a(f'v_mfma_f32_16x16x32_bf16 {vr(kvd + 4*db, 4)}, {vr(fA + 4*u, 4)}, {vr(fB + 8*u + 4*db, 4)}, ' + ('0' if u == 0 else vr(kvd + 4*db, 4)))
            a(f'v_mfma_f32_16x16x32_bf16 {vr(zd, 4)}, {vr(fA + 4*u, 4)}, {vr(ones, 4)}, ' + ('0' if u == 0 else vr(zd, 4)))
        for ts in range(4):
            self.tr(fA + 4 * ts, vPA, ts * 1024, ('kv', ts)); self.tr(fA + 4 * ts + 2, vPA, ts * 1024 + 512, ('kv', ts))
            for db in range(2):
                for rd in range(2): self.tr(fB + 8 * ts + 4 * db + 2 * rd, vPB, ts * 2048 + db * 1024 + rd * 512, ('kv', ts))
            if ts >= 2: kvm(ts - 2)
        kvm(2); kvm(3)
        a(f"""s_cmp_lt_u32 s{sWAVE}, 4
        s_cbranch_scc1 L_NOQX
        ds_read_b128 {vr(vq, 4)}, v{vHo}
        ds_read_b128 {vr(vq + 4, 4)}, v{vHo} offset:1024
        L_NOQX:""")
        self.bs(kvd, 4, vL16, rWS, T0, 0, 'sc1', 'kvs')
        self.bs(kvd + 4, 4, vL16, rWS, T2, 0, 'sc1', 'kvs')
        a('s_mov_b32 exec_lo, 0x00010001')
        a('s_mov_b32 exec_hi, 0x00010001')
        self.bs(zd, 4, vL, rWS, T1, 0, 'sc1', 'kvs')
        a('s_mov_b64 exec, -1')
        lg.wait_all()
        a(f'v_mfma_f32_32x32x16_bf16 {vr(pp, 16)}, {vr(wph, 4)}, {vr(vq, 4)}, 0')
        a(f'v_mfma_f32_32x32x16_bf16 {vr(pp, 16)}, {vr(wph + 4, 4)}, {vr(vq + 4, 4)}, {vr(pp, 16)}')
        self.stamp('kvst')
        if o['poisat'] == 1: self.poison((0,), RING + 22)
        if o['m2c'] == 2:
            for i in range(4): self.m2_ld(i)
        va(vPC, [(0, 3, 32 * 4096), (3, 1, 4 * 4096)])
        S(T4, '(wg & 0x1b)*4096 + (r1 >> 1)*64 + (r1 & 1)*4 + INB + 512')
        va(vKP, [(3, 3, 1024), (0, 3, 16)])
        va(vXF, [(0, 3, 16), (5, 1, 8)])
        qm, qs = o['qmid'], o['qsplit']
        self.softmax_pm(pp, ee, ph, vT, part=1, split=qm)
        vm.wait('kvs')
        a('s_barrier')
        self.push(vPC, T4, 16, vPB, 'L_PC')
        self.stamp('kvpub')
        if o['poisat'] == 2: self.poison((0,), RING + 22)
        self.weave(lambda: [a(f'v_exp_f32 v{r+i}, v{r+i}') for i in range(qm, qs) for r in (ee, pp)], [wo1] * o['wowin'][0])
        S(T0, '(hp*16 + r1)*16384 + w*128 + KVP'); S(T1, 'T0 + 8192')
        S(T2, '(hp*16 + r1)*1024 + w*128 + KIN'); S(T4, 'T4 + 6*512')
        self.inbox(1, 2, work=lambda: (self.weave(lambda: self.softmax_pm(pp, ee, ph, vT, part=2, split=qs), [wo1] * o['wowin'][1]), self.stamp('cw')))
        a('s_barrier')
        self.stamp('kvok')
        self.bl(kp, 4, vKP, rWS, T0, 0, 'sc1', 'kp')
        self.bl(kp + 4, 4, vKP, rWS, T1, 0, 'sc1', 'kp')
        self.bl(zz, 4, vL16, rWS, T3, 0, 'sc1', 'z')
        if fw[0]: a('s_barrier')
        ffn_reg(fw[0])
        S(T1, 'w*32 + L_ZF'); va(vT + 2, [(0, 2, 8), (5, 1, 4)], T1)
        S(T1, 'w*1024 + L_KVF'); va(vT + 1, [(0, 4, 16), (5, 1, 512), (4, 1, 8)], T1)
        S(T1, 'kh*128 + L_ZF'); va(vT + 3, [(5, 1, 16)], T1)
        S(T1, 'kh*4096 + L_KVF'); a(f'v_add_u32 v{vPA}, s{T1}, v{vL16}')
        M2 = o['m2c'] < 3
        m2ops = []; k = o.get('m2k', 24)
        if M2:
            vm.wait('m2')
            for i in range(4):
                a(f'v_lshlrev_b32 v{m2c+i}, 16, v{m2c+i}')
                self.silu(m2c + i, m2t + (i & 1))
            m2ops = self.gemv_ops([m2w + 4 * i for i in range(4)], [m2c + i for i in range(4)], m2a, m2t, m2t + 1, True)
        for s_ in m2ops[:k]: a(s_)
        if o['m2c'] == 4:
            hm, hc, ha, ht = self.m2h
            hops = self.gemv_ops([hm + 4 * i for i in range(8)], [hc + i for i in range(8)], ha, ht, ht + 1, True)
            a(f's_cmp_lt_u32 s{sWAVE}, 4\ns_cbranch_scc1 L_HG1')
            for s_ in hops: a(s_)
            a(f'ds_write_b32 v{vGA}, v{ha} offset:{L_M2 - MISC}\nL_HG1:')
        def red4(r, ctls):
            for i in range(2): a(f'v_permlane32_swap_b32 v{r+i}, v{r+2+i}')
            self.pk('add', r, r, r + 2)
            for ctl in ctls:
                for i in range(2): self.dpp('v_add_f32', r + i, r + i, r + i, ctl)
            for i in range(2): a(f'v_mov_b32 v{r+2+i}, v{r+i}')
            for i in range(2): a(f'v_permlane16_swap_b32 v{r+i}, v{r+2+i}')
            self.pk('add', r, r, r + 2)
            a(f'v_cvt_pk_bf16_f32 v{r}, v{r}, v{r+1}')
        vm.wait('kp')
        self.pk('add', kp, kp, kp + 4); self.pk('add', kp + 2, kp + 2, kp + 6)
        red4(kp, ['row_ror:8'])
        a(f"""v_mov_b32 v{kp+1}, s{sTAG}
        s_mov_b32 exec_lo, 0xff
        s_mov_b32 exec_hi, 0xff""")
        self.bs(kp, 2, vXF, rWS, T2, 0, 'sc1')
        a('s_mov_b64 exec, -1')
        if o['C2dir'] == 0:
            self.barrier()
            self.push(vPC, T4, 16, vPB, 'L_PC2')
        if o['m2c'] == 4:
            a(f"""s_cmp_lg_u32 s{sWAVE}, 3
            s_cbranch_scc1 L_M2F
            ds_read_b128 {vr(ha, 4)}, v{vL32S} offset:{L_M2 - MISC + 16}""")
            S(T5, '((j*2 + (x >> 2))*4 + (x & 3))*512 + MODP2')
            a(f"""s_waitcnt lgkmcnt(0)
            v_add_f32 v{ha}, v{ha}, v{ha+1}
            v_add_f32 v{ha+2}, v{ha+2}, v{ha+3}
            v_mov_b32 v{ha+1}, s{sTAG}
            v_add_f32 v{ha}, v{ha}, v{ha+2}""")
            self.bs(ha, 2, vL8, rWS, T5, 0, 'sc1', count=False)
            a('L_M2F:')
            self.marks.add('m2pub')
        self.stamp('c2pub')
        num, den = pp, ee
        vm.wait('z')
        self.weave(lambda: (red4(zz, ['row_ror:4', 'row_ror:8']), [a(s_) for s_ in m2ops[k:]]), [wo1] * o['wowin'][2])
        self.dw('ds_write_b32', vT + 2, zz, 1)
        if M2: self.dw('ds_write_b32', vGA, m2a, 1, L_M2 - MISC)
        self.barrier()
        for fb in range(4): self.r128(zf + 4 * fb, vT + 3, fb * 32)
        if M2: self.r128(m2a, vL32S, L_M2 - MISC); self.r128(m2a + 4, vL32S, L_M2 - MISC + 16)
        S(T5, '((j*2 + (x >> 2))*4 + (x & 3))*512 + MODP2')
        lg.wait_all()
        S(T0, '(hp*8 + w)*2048 + KIN')
        def den_work():
            for fb in range(4):
                a(f'v_mfma_f32_32x32x16_bf16 {vr(den, 16)}, {vr(zf + 4*fb, 4)}, {vr(ph + 4*fb, 4)}, ' + ('0' if fb == 0 else vr(den, 16)))
            if M2:
                a(f's_cmp_lg_u32 s{sWAVE}, 3\ns_cbranch_scc1 L_M2F')
                self.nopk = True; self.sum8(m2a); self.nopk = False
                a(f'v_mov_b32 v{m2a+1}, s{sTAG}')
                self.bs(m2a, 2, vL8, rWS, T5, 0, 'sc1', count=False)
                a('L_M2F:')
            self.round1(den)
            a(f'v_add_f32 v{den}, 0x358637bd, v{den}')
            self.round1(den)
            a(f'v_rcp_f32 v{den}, v{den}')
            self.stamp('c2w')
        ldk2 = lambda: [self.bl(k2 + 4 * q, 4, vL16, rWS, T0, q * 1024, 'sc1') for q in range(2)]
        if o['C2dir'] == 0:
            self.inbox(7, 2, work=den_work)
            self.stamp('c2h')
        if o['C2dir'] == 2: den_work()
        self.try_load(ldk2, [k2 + 1, k2 + 3, k2 + 5, k2 + 7], vT, lambda: (ffn_reg(fw[1]), den_work() if o['C2dir'] == 1 else None))
        for db in range(2):
            a(f'ds_write2_b32 v{vT+1}, v{k2+4*db}, v{k2+4*db+2} offset0:{64*db} offset1:{64*db+1}'); lg.issue()
        self.barrier()
        self.stamp('kvred')
        for fb in range(4): self.r128(kf + 4 * fb, vPA, fb * 1024, ('kf', fb))
        S(T0, '((r1*8 + rb*2)*32 + hp*2 + kh)*1024 + OF')
        va(vKP, [(0, 4, 16), (4, 1, 32768), (5, 1, 256)])
        for fb in range(4):
            lg.wait(('kf', fb))
            a(f'v_mfma_f32_32x32x16_bf16 {vr(num, 16)}, {vr(kf + 4*fb, 4)}, {vr(ph + 4*fb, 4)}, ' + ('0' if fb == 0 else vr(num, 16)))
        S(T5, '((w >> 1)*16 + cb)*2048 + (w & 1)*1024 + MODP2')
        self.ld_md = lambda: self.bl(md, 4, vL16, rWS, T5, 0, 'sc1', 'md')
        S(T6, 'cb*128'); va(vPA, [(0, 2, 2), (5, 1, 8), (4, 1, 16), (2, 2, 32)], T6)
        a(f'global_load_ushort v{wr1}, v{vPA}, {sr(pWR, 2)}'); vm.issue('md')
        if not o['mdlate']: self.ld_md()
        for h in range(2):
            self.round_list([num + i for i in range(8 * h, 8 * h + 8)])
            for i in range(8 * h, 8 * h + 8, 2): self.pk('mul', num + i, num + i, den, bc=(1,))
            for i in range(4 * h, 4 * h + 4): a(f'v_cvt_pk_bf16_f32 v{vq+i}, v{num+2*i}, v{num+2*i+1}')
            self.bs(vq + 4 * h, 4, vKP, rWS, T0, 512 * h, 'sc1', 'os')
        self.stamp('ost')
        if o['mdlate']: self.ld_md()
        if o['poisat'] == 3: self.poison((0,), RING + 22)
        while wl: wo1()

    def gemm2(self):
        a, vm, lg, o, S, va = self.a, self.vm, self.lg, self.o, self.S, self.vaa
        md, wr1, fw = self.md, self.wr1, o['fwin']
        AD2 = o['AD2']
        R = self.R = dict(acc=AQ, gaf=AQ + 16, cbf=AR + 16, sbf=AV, gbf=AV + 16, xf=AR, fr=AR + 32, Br=AR + 40, Ar=AR + 72, vB=RING + 8, sv=RING, up=RING + 12)
        acc, gaf, cbf, sbf, gbf, xf, fr, Br, Ar, vB, sv, up = [R[k] for k in 'acc gaf cbf sbf gbf xf fr Br Ar vB sv up'.split()]
        ARS = [Ar + 4 * i for i in range(6)] + [RING + 16, RING + 20, RING + 24]; assert AD2 <= 9
        va(vB, [(2, 2, 128), (4, 2, 1024), (0, 1, 16), (1, 1, 8), (3, 2, 32)])
        S(T4, '(w ^ (%s))*4096' % o['g2r']); S(T1, '(T4*4) ^ (y2 >> 4)')
        a(f'v_add_u32 v{vB}, s{T1}, v{vB}')
        for ct in range(1, 4): a(f'v_xor_b32 v{vB+ct}, {32*ct}, v{vB}')
        va(vT + 1, [(0, 3, 8 * 4096), (3, 1, 4096)])
        S(T2, '((r1 >> 2)*2 + (r1 & 3)*64)*4096 + (hp >> 1)*64 + (hp & 1)*4 + INB + 1024')
        for i in range(8): self.unpack(xf + 2 * i, xf + 2 * i + 1, XR + i)
        S(T6, '(rt*8 + w)*32768 + OF')
        def md_stage():
            vm.wait('md')
            self.tagcheck([md + 1, md + 3], vT + 2)
            a('s_cbranch_vccz L_MGOK')
            q0 = list(vm.q)
            self.poll(self.ld_md, [md + 1, md + 3], vT + 2)
            vm.q = q0
            a('L_MGOK:')
            a(f'ds_write2_b32 v{vT}, v{md}, v{md+2} offset0:0 offset1:4'); lg.issue()
        S(T1, '(w >> 1)*1024 + (w & 1)*8 + L_MD'); va(vT, [(0, 5, 32), (5, 1, 4)], T1)
        va(vT + 3, [(0, 2, 16), (5, 1, 64), (4, 1, 128), (2, 2, 256)], None, L_MD)
        if not o['mdlate']: md_stage()
        vm.wait('os'); vm.wait('wo')
        self.barrier()
        self.push(vT + 1, T2, 16, vT + 2, 'L_PD')
        self.stamp('opub')
        if o['mdlate']: md_stage(); self.barrier()
        S(T5, 'wg*4096 + (T4 >> 6) + INB + 1024')
        self.ffn_reg(fw[2])
        t4 = Br
        for q in range(4): self.r128(t4 + 4 * q, vT + 3, q * 1024)
        va(vT + 4, [(0, 2, 4), (5, 1, 16), (4, 1, 32), (2, 2, 64)], None, L_GB)
        S(T0, '(rt*16 + cb)*64 + UP')
        lg.wait_all()
        def d_work():
            for q in range(4):
                self.pk('add', t4 + 4 * q, t4 + 4 * q, t4 + 4 * q + 2)
                a(f'v_add_f32 v{sv+q}, v{t4+4*q}, v{t4+4*q+1}')
            self.round_list([sv + q for q in range(4)])
            a(f'v_add_f32 v{sv+2}, 1.0, v{sv+2}')
            a(f'v_lshlrev_b32 v{wr1}, 16, v{wr1}')
            self.round1(sv + 2)
            a(f'ds_write_b32 v{vT+4}, v{sv+3}')
            uu, hi, lo, t = t4, t4 + 1, t4 + 2, t4 + 4
            a(f'v_mul_f32 v{uu}, v{sv+2}, v{wr1}')
            a(f'v_cvt_pk_bf16_f32 v{hi}, 0, v{uu}')
            a(f'v_sub_f32 v{lo}, v{uu}, v{hi}')
            self.allreduce(uu, t + 3)
            for k, r in enumerate((hi, lo, wr1)): a(f'v_mov_b32_dpp v{t+k}, v{r} row_shl:1 row_mask:0xf bank_mask:0xf')
            for k, r in enumerate((hi, lo, wr1)): a(f'v_cvt_pk_bf16_f32 v{t+k}, v{r}, v{t+k}')
            a(f"""v_mov_b32 v{uu+1}, s{sTAG}
            v_mov_b32 v{uu+2}, 0
            s_cmp_lg_u32 s{sWAVE}, 2
            s_cbranch_scc1 L_NOUP
            s_mov_b64 exec, 1""")
            self.bs(uu, 2, uu + 2, rWS, T0, 0, 'sc1', count=False)
            a('s_mov_b64 exec, -1\nL_NOUP:')
            for i in range(8):
                a(f'v_mov_b32 v{fr+i}, 0x3f803f80')
                for k in range(3): a(f'v_mov_b32_dpp v{fr+i}, v{t+k} row_newbcast:{2*i} row_mask:0xf bank_mask:{hex(2 << k)}')
            a(f'v_mov_b32 v{RING+14}, v{sv+1}\nv_mov_b32 v{RING+15}, v{sv+3}\nv_mov_b32 v{RING+5}, v{sv+2}')
            for dst, q in ((gaf, 0),):
                for i in range(16): a(f'v_mov_b32_dpp v{dst+i}, v{sv+q} row_newbcast:{i} row_mask:0xf bank_mask:0xf')
            self.stamp('dw')
        L2 = o['LOOK2']
        def b2_read(m):
            H, ct = divmod(m, 4)
            for rd in range(2): self.tr(Br + 4 * (m % 8) + 2 * rd, vB + ct, (H & 3) * 4096 + rd * 512, ('B', m))
            if H % 4 == 3 and H < 31: a(f'v_xor_b32 v{vB+ct}, {((H >> 2) ^ ((H >> 2) + 1)) * 16384}, v{vB+ct}')
        def a2_load(H):
            if H % 4 == 0: S(T7, '(T4 ^ n) + T6', n=H * 1024)
            self.bl(ARS[H % AD2], 4, vL16, rWS, T7, (H % 4) * 1024, 'sc1', ('A', H))
        self.spoll([(0, 2, T5, 0)], range(2), d_work)
        self.stamp('ook1')
        if not o['earlyD']: a('s_barrier')
        for H in range(AD2):
            if H == 4 and o['earlyD']: a('s_barrier')
            a2_load(H)
            if H == 0:
                for m in range(L2): b2_read(m)
        self.stamp('ook')
        S(T0, 'rt*1024 + UP'); va(vT + 6, [(0, 4, 64)])
        self.ld_up = lambda: self.bl(up, 2, vT + 6, rWS, T0, 0, 'sc1', 'up')
        lpend = []
        for H in range(32):
            if self.prof and o.get('ls2'):
                if lpend: r_, k_ = lpend.pop(0); a(f'v_writelane_b32 v255, s{r_}, {k_}')
                if H < 31:
                    r_ = sPL + 2 * (self.nst % 4)
                    a.items.append(('raw', f'    s_memtime {sr(r_, 2)}')); lpend.append((r_, self.nst)); self.stnames.append(f'n{H}'); self.nst += 1
            if o.get('g2p') and H in (0, o['g2p']):
                a(f's_cmp_lt_u32 s{sWAVE}, 4\ns_cbranch_scc1 L_G2P{H}\ns_setprio {1 if H == 0 else 0}\nL_G2P{H}:')
            vm.wait(('A', H))
            for ct in range(4):
                m = 4 * H + ct
                pw = o['pairw2']
                if ct % pw == 0: lg.wait(('B', m + pw - 1))
                a(f'v_mfma_f32_16x16x32_bf16 {vr(acc + 4*ct, 4)}, {vr(Br + 4*(m % 8), 4)}, {vr(ARS[H % AD2], 4)}, ' + ('0' if H == 0 else vr(acc + 4*ct, 4)))
                if m + L2 < 128: b2_read(m + L2)
            if H + AD2 < 32: a2_load(H + AD2)
            if H + AD2 == 31:
                self.ld_up(); self.ffn_reg(fw[3])
        self.stamp('gemm2')
        if o.get('dbg'):
            S(T1, '(wg*8 + w)*32768 + 0x4000000'); va(vT, [(0, 6, 4)])
            for k, r in enumerate(list(range(40, 104)) + [24, 25, 26, 27]):
                if k % 16 == 0 and k: S(T1, 'T1 + 4096')
                self.bs(r, 1, vT, rWS, T1, (k % 16) * 256, '', 'dbg')
                if k % 16 == 15: vm.wait('dbg')

    def tail(self):
        a, vm, lg, o, S, va = self.a, self.vm, self.lg, self.o, self.S, self.vaa
        R, fw = self.R, o['fwin']
        E2 = range(0, 16, 2)
        acc, gaf, cbf, sbf, gbf, xf, fr, up = [R[k] for k in 'acc gaf cbf sbf gbf xf fr up'.split()]
        FR, held, fq = self.FL, self.held, self.fq
        g16, hh, h2p, op, sd4, kk = AR + 40, AR + 56, AR + 72, AR + 80, AR + 88, AR + 92
        vSt, vRow, mm, rs, key, vTa = RING, RING + 1, RING + 2, RING + 3, RING + 4, RING + 5
        x1f = xf
        swp = lambda b: [a(f'v_permlane32_swap_b32 v{b+p}, v{b+q}') for p, q in ((0, 2), (1, 3), (4, 6), (5, 7))]
        S(T1, '((rt*8 + w)*16 + cb)*256 + ST')
        va(vSt, [(0, 4, 16), (4, 2, 4)])
        for h in range(2):
            rg = range(8 * h, 8 * h + 8)
            self.round_list([acc + i for i in rg])
            for i in range(8 * h, 8 * h + 8, 2): self.pk('mul', acc + i, acc + i, gaf + i)
            self.round_list([acc + i for i in rg])
            for i in range(8 * h, 8 * h + 8, 2): self.pk('add', acc + i, acc + i, xf + i)
            for i in range(4 * h, 4 * h + 4): a(f'v_cvt_pk_bf16_f32 v{XR+i}, v{acc+2*i}, v{acc+2*i+1}')
            for i in range(4 * h, 4 * h + 4): a(f'v_dot2_f32_bf16 v{vT+(i&1)}, v{XR+i}, v{XR+i}, ' + ('0' if i < 2 else f'v{vT+(i&1)}'))
            a(f'v_mfma_f32_16x16x32_bf16 {vr(sd4, 4)}, {vr(fr + 4*h, 4)}, {vr(XR + 4*h, 4)}, ' + ('0' if h == 0 else vr(sd4, 4)))
        self.nopk = False
        va(vT + 3, [(0, 3, 8 * 4096), (3, 1, 4096)])
        a(f'v_add_f32 v{vT}, v{vT}, v{vT+1}')
        for sw in ('v_permlane32_swap_b32', 'v_permlane16_swap_b32'):
            a(f'v_mov_b32 v{vT+1}, v{vT}')
            a(f'{sw} v{vT}, v{vT+1}')
            a(f'v_add_f32 v{vT}, v{vT}, v{vT+1}')
        a(f'v_mov_b32_dpp v{sd4}, v{vT} quad_perm:[0,1,2,3] row_mask:0x8 bank_mask:0xf')
        self.bs(sd4, 1, vSt, rWS, T1, 0, 'sc1')
        S(T3, '((rt >> 2)*2 + (rt & 3)*64)*4096 + (cb >> 1)*64 + (cb & 1)*4 + INB + 1536')
        a('s_barrier')
        self.push(vT + 3, T3, 16, vT + 2, 'L_PE')
        self.stamp('x1pub')
        self.ffn_dma(fw[4])
        S(T2, 'w*4096')
        a(f'v_add_u32 v{vT}, s{T2}, v{vL16}')
        a(f'v_add_u32 v{vT+3}, {L_DN}, v{vT}')
        vm.wait('up')
        self.tagcheck([up + 1], vT + 2)
        a('s_cbranch_vccz L_UPOK')
        q0 = list(vm.q)
        self.poll(self.ld_up, [up + 1], vT + 2)
        vm.q = q0
        a('L_UPOK:')
        S(T1, '(rt*8 + w)*4096 + ST')
        def e_work():
            for ctl in ('quad_perm:[1,0,3,2]', 'quad_perm:[2,3,0,1]', 'row_half_mirror', 'row_mirror'): self.dpp('v_add_f32', up, up, up, ctl)
            for i in range(8): self.unpack(x1f + 2 * i, x1f + 2 * i + 1, XR + i)
            S(T2, 'w*512 + rt*2')
            va(vRow, [(0, 4, 32)], T2)
            a(f'v_xor_b32 v{vT+1}, 0x4000, v{vT}\nv_xor_b32 v{vT+4}, 0x4000, v{vT+3}')
            vm.wait('ffr')
            for m, i, r in self.sym:
                a(f'ds_write_b128 v{vT if m < 2 else vT + 3}, {vr(r, 4)} offset:{self.f_lds(m, i) - (L_GU if m < 2 else L_DN)}')
            for g in range(2):
                if not held[g]: continue
                a(f's_cmp_{"ge" if g == 0 else "lt"}_u32 s{sWAVE}, 4\ns_cbranch_scc1 L_FW{g}')
                for n, (m, i) in enumerate(held[g]):
                    for far in range(2):
                        a(f'ds_write_b128 v{(vT if m < 2 else vT + 3) + far}, {vr(FR + 8*n + 4*far, 4)} offset:{self.f_lds(m, i) - (L_GU if m < 2 else L_DN)}')
                a(f'L_FW{g}:')
            self.stamp('ew')
        self.inbox(3, 2, work=e_work)
        a('s_barrier')
        self.stamp('x1ok')
        def try_p(loads, check, between):
            loads()
            vm.q[-1] = tg = ('try', a.label('T'))
            between()
            vm.wait(tg)
            OK, L = a.label('POK'), a.label('PRE')
            check()
            a(f's_cbranch_vccz {OK}')
            q = list(vm.q)
            a(f'{L}:')
            loads(); vm.wait_all()
            check()
            a(f"""s_cbranch_vccz {OK}
            s_add_u32 s{sSPIN}, s{sSPIN}, 1
            s_cmp_lt_u32 s{sSPIN}, {SPIN_LIMIT}
            s_cbranch_scc1 {L}""")
            vm.q = q
            a(f'{OK}:')
        def e_between():
            if o['gbar']: a('s_barrier')
            self.ffn_dma(fw[5])
            for dst, q in ((cbf, 5), (sbf, 14), (gbf, 15)):
                for i in range(16): a(f'v_mov_b32_dpp v{dst+i}, v{RING+q} row_newbcast:{i} row_mask:0xf bank_mask:0xf')
            S(T2, 'w*8 + L_K1'); a(f'v_mov_b32 v{vT}, s{T2}')
            va(vT + 1, [(0, 3, 8)], None, L_K1)
            va(vT + 2, [(0, 2, 64 * 4096), (2, 2, 2 * 4096)])
            S(T3, '((cb >> 3) + (cb & 7)*8)*4096 + (rt >> 1)*64 + (rt & 1)*16 + INB + 2560')
        s_, d_, q_, t_ = g16, g16 + 1, g16 + 3, g16 + 4
        def e_check():
            for h in (0, 2):
                self.pk('add', g16 + h, g16 + h, g16 + 4 + h); self.pk('add', g16 + 8 + h, g16 + 8 + h, g16 + 12 + h)
            for h in (0, 2): self.pk('add', g16 + h, g16 + h, g16 + 8 + h)
            a(f'''v_add_f32 v{d_}, v{d_}, v{g16+2}
            v_add_f32 v{t_+1}, v{s_}, v{q_}
            v_cmp_u_f32 vcc, v{d_}, v{t_+1}''')
        try_p(lambda: [self.bl(g16 + 4 * i, 4, vL16, rWS, T1, i * 1024, 'sc1') for i in range(4)], e_check, e_between)
        self.stamp('x1ld')
        a(f"""
        v_mov_b32 v{t_}, v{q_}
        v_permlane32_swap_b32 v{q_}, v{t_}
        v_permlane32_swap_b32 v{s_}, v{d_}
        v_add_f32 v{q_}, v{q_}, v{t_}
        v_add_f32 v{s_}, v{s_}, v{d_}
        v_permlane16_swap_b32 v{s_}, v{q_}
        v_add_f32 v{d_}, v{s_}, v{q_}
        v_add_f32 v{q_}, v{s_}, v{q_}
        v_permlane16_swap_b32 v{d_}, v{q_}
        v_mov_b32 v{s_}, v{d_}
        v_mul_f32 v{q_}, 0x3a800000, v{q_}
        v_permlane32_swap_b32 v{s_}, v{d_}
        v_mul_f32 v{s_}, 0x3a800000, v{s_}
        v_fma_f32 v{rs}, -v{s_}, v{s_}, v{q_}
        v_cvt_pk_bf16_f32 v{mm}, 0, v{s_}
        v_max_f32 v{rs}, 0, v{rs}""")
        self.round1(rs)
        a(f'v_fma_f32 v{d_}, -v{mm}, v{up}, v{d_}')
        a(f'v_add_f32 v{rs}, 0x3727c5ac, v{rs}')
        self.round1(rs)
        a(f'v_sqrt_f32 v{rs}, v{rs}')
        self.round1(rs)
        a(f"""v_rcp_f32 v{rs}, v{rs}
        v_mul_f32 v{key}, v{d_}, v{rs}
        v_ashrrev_i32 v{t_}, 31, v{key}
        v_or_b32 v{t_}, 0x80000000, v{t_}
        v_xor_b32 v{key}, v{key}, v{t_}
        s_mov_b32 s{T2}, 0xfffff000
        v_and_or_b32 v{key}, v{key}, s{T2}, v{vRow}""")
        hi, lo = kk, kk + 1
        def merge2(ctl):
            self.dpp('v_min_u32', t_, hi, hi, ctl); self.dpp('v_max_u32', lo, lo, lo, ctl); self.dpp('v_max_u32', hi, hi, hi, ctl)
            a(f'v_max_u32 v{lo}, v{lo}, v{t_}')
        self.dpp('v_max_u32', hi, key, key, 'quad_perm:[1,0,3,2]'); self.dpp('v_min_u32', lo, key, key, 'quad_perm:[1,0,3,2]')
        for ctl in ('quad_perm:[2,3,0,1]', 'row_half_mirror', 'row_mirror'): merge2(ctl)
        self.dw('ds_write_b64', vT, hi, 2)
        self.stamp('ln2')
        self.barrier()
        self.dr('ds_read_b64', hi, 2, vT + 1)
        for i in E2: self.pk('add', hh + i, x1f + i, mm, bc=(1,), neg=(1,))
        lg.wait_all()
        for ctl in ('quad_perm:[1,0,3,2]', 'quad_perm:[2,3,0,1]', 'row_half_mirror'): merge2(ctl)
        a(f"""v_cmp_eq_u32 {sr(sC2, 2)}, v{key}, v{lo}
        v_cmp_eq_u32 vcc, v{key}, v{hi}
        v_or_b32 v{kk+2}, 1, v{lo}
        v_mov_b32 v{kk+1}, s{sTAG}
        v_mov_b32 v{kk+3}, s{sTAG}
        s_or_b64 {sr(sCM, 2)}, vcc, {sr(sC2, 2)}
        s_cmp_lg_u32 s{sWAVE}, 0
        s_cbranch_scc1 L_NOF
        s_mov_b64 exec, 0xffff""")
        self.bs(kk, 4, vT + 2, rWS, T3, 0, 'sc1', count=False)
        a(f"""s_mov_b64 exec, -1
        L_NOF:""")
        if o['cprio']: a(f's_cmp_eq_u64 {sr(sCM, 2)}, 0\ns_cbranch_scc1 L_NOPR\ns_setprio 1\nL_NOPR:')
        self.stamp('Fpub')
        vRt = RING + 14
        def out_calc(part):
            u = g16 + 10
            if part == o['ocut'][0]:
                for i in range(8): self.unpack(hh + 2 * i, hh + 2 * i + 1, h2p + i)
                for i in E2: self.pk('mul', hh + i, hh + i, gbf + i)
                self.round_list([hh + i for i in range(16)])
            if part == o['ocut'][1]:
                S(T0, 'w*2048 + L_TR')
                va(u, [(4, 2, 16)]); va(u + 1, [(0, 3, 16)]); a(f'v_xor_b32 v{u}, v{u}, v{u+1}')
                va(u + 2, [(0, 4, 128)], T0); a(f'v_add_u32 v{u}, v{u}, v{u+2}'); a(f'v_xor_b32 v{u+2}, 64, v{u}')
                va(u + 3, [(3, 3, 16)]); a(f'v_xor_b32 v{u+1}, v{u+3}, v{u+1}'); va(u + 3, [(3, 3, 128)], T0); a(f'v_add_u32 v{u+1}, v{u+1}, v{u+3}')
                S(T0, '2047 - rt*128 - w*16'); va(vRt + 1, [(3, 3, 1)])
                a(f'v_sub_u32 v{vRt}, s{T0}, v{vRt+1}\nv_subrev_u32 v{vRt+1}, 8, v{vRt}')
                va(vTa, [(3, 3, 2048), (0, 3, 16)])
                S(T3, '(rt*8 + w)*32768 + cb*128'); S(T2, 'T3 + 16384')
            if part == o['ocut'][2]:
                for i in E2: self.pk('add', hh + i, hh + i, x1f + i)
                for i in range(8): a(f'v_cvt_pk_bf16_f32 v{op+i}, v{hh+2*i}, v{hh+2*i+1}')
                swp(op)
                a(f'ds_write_b128 v{u}, {vr(op, 4)}\nds_write_b128 v{u+2}, {vr(op + 4, 4)}')
                a(f'ds_read_b128 {vr(op, 4)}, v{u+1}\nds_read_b128 {vr(op + 4, 4)}, v{u+1} offset:1024')
        def f_work():
            self.round_list([hh + i for i in range(16)])
            for i in E2: self.pk('mul', hh + i, hh + i, rs, bc=(1,))
            self.round_list([hh + i for i in range(16)])
            for i in E2: self.pk('mul', hh + i, hh + i, cbf + i)
            self.round_list([hh + i for i in range(16)])
            for i in E2: self.pk('add', hh + i, hh + i, sbf + i)
            for i in range(8): a(f'v_cvt_pk_bf16_f32 v{h2p+i}, v{hh+2*i}, v{hh+2*i+1}')
            a(f"""s_cmp_eq_u64 {sr(sCM, 2)}, 0
            s_cbranch_scc1 L_NOCAND""")
            for h in range(2): a(f'v_mfma_f32_16x16x32_bf16 {vr(sd4, 4)}, {vr(fr + 4*h, 4)}, {vr(h2p + 4*h, 4)}, ' + ('0' if h == 0 else vr(sd4, 4)))
            for i in range(8): a(f'v_mov_b32 v{op+i}, v{h2p+i}')
            S(T2, 'rt*16384 + cb*512 + XS')
            va(vT + 3, [(4, 2, 16)])
            a(f'v_add_u32 v{vT+4}, 8192, v{vT+3}')
            swp(op); swp(XR)
            a(f'v_cndmask_b32 v{vT+3}, v{vT+3}, v{vT+4}, {sr(sC2, 2)}')
            a(f's_mov_b64 exec, {sr(sCM, 2)}')
            for h in range(2): self.bs(op + 4 * h, 4, vT + 3, rWS, T2, 64 * h, 'sc1', count=False)
            a(f's_mov_b32 exec_lo, 0\ns_and_b32 exec_hi, s{sCM+1}, 0xffff0000')
            self.bs(sd4, 1, vT + 3, rWS, T2, 256 - 48, 'sc1', count=False)
            a(f's_mov_b64 exec, {sr(sCM, 2)}')
            for h in range(2): self.bs(XR + 4 * h, 4, vT + 3, rWS, T2, 128 + 64 * h, 'sc1', count=False)
            a('s_mov_b64 exec, -1\ns_setprio 0\nL_NOCAND:')
            self.stamp('cand')
            self.ffn_dma(fw[6])
            out_calc(0)
        S(T0, 'w*16 + L_K2'); a(f'v_mov_b32 v{vT}, s{T0}')
        va(vT + 1, [(0, 3, 16)], None, L_K2)
        self.inbox(5, 8, (1, 3, 5, 7), f_work)
        P = sPL
        a(f"""s_min_u32 s{P+1}, s{P}, s{P+4}
        s_min_u32 s{P+3}, s{P+2}, s{P+4}
        s_min_u32 s{P+5}, s{P}, s{P+6}
        s_max_u32 s{P}, s{P}, s{P+4}
        s_max_u32 s{P+2}, s{P+2}, s{P+6}
        s_max_u32 s{P+3}, s{P+3}, s{P+5}
        s_max_u32 s{P+1}, s{P+1}, s{P+2}
        v_mov_b32 v{kk}, s{P}
        v_mov_b32 v{kk+2}, s{P+3}
        v_mov_b32 v{kk+1}, s{P+1}""")
        self.dw('ds_write_b128', vT, kk, 4)
        self.stamp('F2p')
        out_calc(1)
        vGr, vDr, vXs, ffn, fdn = RING + 6, RING + 7, RING + 8, FR, AQ
        S(T0, '(w >> 2)*32768 + (w & 3)*32 + L_GU')
        va(vGr, [(4, 2, 8192), (2, 2, 128), (3, 2, 32), (0, 2, 8)]); a(f'v_xor_b32 v{vGr}, s{T0}, v{vGr}')
        S(T0, 'kq*2048 + XS'); va(vXs, [(0, 3, 16), (4, 2, 512)], T0)
        va(vT + 6, [(0, 4, 512)], None, XS + 256)
        gu_late = [p for p in fq if p[0] < 2]; assert not gu_late
        dn_late = len(fq) > 0
        def dn_read(s, tag=None):
            self.tr(fdn + 4 * s, vDr, s * 8192, tag); self.tr(fdn + 4 * s + 2, vDr, s * 8192 + 1024, tag)
        vm.wait('ffn')
        self.barrier()
        self.stamp('F2')
        self.r128(kk, vT + 1, 0, 'k2')
        a(f'v_and_b32 v{vT+4}, 8, v{vL}')
        a(f'v_cmp_eq_u32 {sr(sCMP, 2)}, 0, v{vT+4}')
        a(f'v_cmp_gt_u32 {sr(sPL, 2)}, 16, v{vL}')
        a(f'v_cmp_gt_u32 {sr(sPL + 2, 2)}, 32, v{vL}')
        lg.wait('k2')
        t = g16
        for ctl in ('quad_perm:[1,0,3,2]', 'quad_perm:[2,3,0,1]', 'row_half_mirror'):
            self.dpp('v_min_u32', t, kk, kk, ctl); self.dpp('v_min_u32', t + 1, kk + 1, kk, ctl); self.dpp('v_min_u32', t + 2, kk, kk + 1, ctl)
            self.dpp('v_max_u32', kk + 2, kk + 2, kk + 2, ctl); self.dpp('v_max_u32', kk + 1, kk + 1, kk + 1, ctl); self.dpp('v_max_u32', kk, kk, kk, ctl)
            a(f'v_max3_u32 v{kk+2}, v{kk+2}, v{t+1}, v{t+2}')
            a(f'v_max_u32 v{kk+1}, v{kk+1}, v{t}')
        xa, xb, rp, kr = g16, g16 + 4, g16 + 8, g16 + 9
        a(f"""v_cndmask_b32 v{t}, v{kk+1}, v{kk}, {sr(sCMP, 2)}
        v_cndmask_b32 v{kr}, v{kk+2}, v{kk+1}, {sr(sPL + 2, 2)}
        v_and_b32 v{t+1}, 31, v{kk+2}
        v_and_b32 v{t}, 31, v{t}
        v_cndmask_b32 v{kr}, v{kr}, v{kk}, {sr(sPL, 2)}
        v_lshl_add_u32 v{vT}, v{t}, 13, v{vXs}
        v_lshl_add_u32 v{vT+1}, v{t+1}, 13, v{vXs}
        v_and_b32 v{t+2}, 31, v{kr}
        v_lshl_add_u32 v{vT+2}, v{t+2}, 13, v{vT+6}""")
        def sel_work():
            self.stamp('sel')
            if o['gbar'] and (fq or o['outat'] in (0, 3)): a('s_barrier')
            self.ffn_dma(len(fq))
            for k in range(3): a(f'v_readfirstlane_b32 s{sY0+[0, 3, 4][k]}, v{kk+k}')
            for s in range(8):
                self.tr(ffn + 4 * s, vGr, s * 1024); self.tr(ffn + 4 * s + 2, vGr, s * 1024 + 512)
            for k in range(3): S(T4 + k, '(((y >> 1) & 15)*128 + ((y >> 5) & 127)) ^ 2047'.replace('y', ('y0', 'y1', 'y2')[k]))
            out_calc(2)
            lg.wait_all()
            if o['outat'] in (0, 3):
                for h in range(2 if o['outat'] == 0 else 1):
                    for k in range(3): a(f'v_cmp_ne_u32 {sr(sPL + 2*k, 2)}, s{T4+k}, v{vRt+h}')
                    a(f's_and_b64 vcc, {sr(sPL, 2)}, {sr(sPL + 2, 2)}\ns_and_b64 exec, vcc, {sr(sPL + 4, 2)}')
                    self.bs(op + 4 * h, 4, vTa, rOUT, (T3, T2)[h], 0, o.get('outmod', 'sc1'))
                    a('s_mov_b64 exec, -1')
            S(T0, 'w*64')
            va(vDr, [(2, 1, 512), (3, 1, 4096), (5, 1, 2048), (2, 2, 64), (4, 1, 32), (0, 2, 8)])
            a(f'v_xor_b32 v{vDr}, s{T0}, v{vDr}'); a(f'v_add_u32 v{vDr}, {L_DN}, v{vDr}')
            va(vT + 4, [(0, 4, 16), (5, 1, 8)])
            S(T1, 'fs*8192 + HGR'); S(T7, '(kq*8 + w)*256 + T1')
            a(f'v_bfe_u32 v{vT+3}, v{kr}, 1, 4\nv_bfe_u32 v{kr}, v{kr}, 5, 7\nv_lshl_or_b32 v{kr}, v{vT+3}, 7, v{kr}\nv_xor_b32 v{kr}, 0x7ff, v{kr}')
        try_p(lambda: [self.bl(xa, 4, vT, rWS, '0', 0, 'sc1'), self.bl(xb, 4, vT + 1, rWS, '0', 0, 'sc1'), self.bl(rp, 1, vT + 2, rWS, '0', 0, 'sc1')],
              lambda: a(f'v_max3_u32 v{vT+3}, v{xa}, v{xb}, v{rp}\nv_cmp_eq_u32 vcc, -1, v{vT+3}'), sel_work)
        self.stamp('xsel')
        for ctl in ('quad_perm:[1,0,3,2]', 'quad_perm:[2,3,0,1]', 'row_half_mirror', 'row_mirror'): self.dpp('v_add_f32', rp, rp, rp, ctl)
        a(f"""v_cvt_pk_bf16_f32 v{rp}, 0, v{rp}
        v_ashrrev_i32 v{vT+3}, 31, v{rp}
        v_or_b32 v{vT+3}, 0x80000000, v{vT+3}
        v_xor_b32 v{rp}, v{rp}, v{vT+3}
        v_lshrrev_b32 v{rp}, 16, v{rp}
        v_lshl_or_b32 v{rp}, v{rp}, 11, v{kr}
        v_readlane_b32 s{P}, v{rp}, 0
        v_readlane_b32 s{P+1}, v{rp}, 16
        v_readlane_b32 s{P+2}, v{rp}, 32
        s_not_b64 {sr(P + 4, 2)}, {sr(sCMP, 2)}
        s_cmp_lt_u32 s{P}, s{P+1}
        s_cselect_b64 {sr(P + 4, 2)}, {sr(sCMP, 2)}, {sr(P + 4, 2)}
        s_cselect_b32 s{P+3}, s{P}, s{P+1}
        s_cmp_gt_u32 s{P+2}, s{P+3}
        s_cselect_b64 vcc, {sr(P + 4, 2)}, 0""")
        for i in range(4): a(f'v_cndmask_b32 v{xa+i}, v{xa+i}, v{xb+i}, vcc')
        a(f"""s_bitcmp1_b32 vcc_lo, 0
        s_cselect_b32 s{P}, s{P+2}, s{P}
        s_cselect_b32 s{T6}, s{T4}, s{T6}
        s_cselect_b32 s{T4}, s{sY2}, s{sY0}
        s_bitcmp1_b32 vcc_lo, 8
        s_cselect_b32 s{P+1}, s{P+2}, s{P+1}
        s_cselect_b32 s{T6}, s{T5}, s{T6}
        s_cselect_b32 s{T5}, s{sY2}, s{sY1}""")
        gd = [gaf + 4 * i for i in range(4)] + [cbf + 4 * i for i in range(4)]
        lg.wait_all()
        for s in range(8):
            a(f'v_mfma_f32_16x16x32_bf16 {vr(gd[s], 4)}, {vr(xa, 4)}, {vr(ffn + 4*s, 4)}, 0')
        p0, p1 = xb, xb + 2
        for p, b in ((p0, 0), (p1, 4)):
            a(f'v_add_f32 v{p}, v{gd[b]}, v{gd[b+1]+1}')
            a(f'v_add_f32 v{p+1}, v{gd[b+2]+2}, v{gd[b+3]+3}')
        a(f"""v_add_f32 v{p0}, v{p0}, v{p0+1}
        v_add_f32 v{p1}, v{p1}, v{p1+1}
        v_mov_b32 v{p0+1}, s{sTAG}
        v_permlane16_swap_b32 v{p1}, v{p1+1}
        s_cmp_ge_u32 s{sJ}, 28
        s_cbranch_scc1 L_NOHP
        v_add_f32 v{p0}, v{p0}, v{p1+1}
        s_mov_b32 exec_lo, 0xffff
        s_mov_b32 exec_hi, 0xffff""")
        self.bs(p0, 2, vT + 4, rWS, T7, 0, 'sc1', count=False)
        a("""s_mov_b64 exec, -1
        L_NOHP:""")
        self.stamp('Hpub')
        if not dn_late:
            for s in range(4): dn_read(s)
        def out_store():
            for h in range(o['outat'] == 3, 2):
                a(f"""v_cmp_ne_u32 vcc, s{sK1}, v{vRt+h}
                v_cmp_ne_u32 {sr(sCMP, 2)}, s{sK2}, v{vRt+h}
                s_and_b64 exec, vcc, {sr(sCMP, 2)}""")
                self.bs(op + 4 * h, 4, vTa, rOUT, (sROW0, sROW1)[h], 0, o.get('outmod', 'sc1'))
                a('s_mov_b64 exec, -1')
        if o['outat']:
            a(f's_and_b32 s{sK1}, s{P}, 2047\ns_and_b32 s{sK2}, s{P+1}, 2047\ns_mov_b32 s{sROW0}, s{T3}\ns_mov_b32 s{sROW1}, s{T2}')
            out_calc(3)
            lg.wait_all()
        if o['outat'] == 1:
            a('s_barrier')
            out_store()
        if o['outat'] in (0, 3):
            for h in range(2 if o['outat'] == 0 else 1):
                a(f"""v_cmp_eq_u32 vcc, s{T6}, v{vRt+h}
                s_and_b64 exec, vcc, -1
                s_cbranch_execz L_NOLO{h}""")
                self.bs(op + 4 * h, 4, vTa, rOUT, (T3, T2)[h], 0, o.get('outmod', 'sc1'), count=False)
                a(f'L_NOLO{h}:\ns_mov_b64 exec, -1')
        self.stamp('outst')
        fz, x1, st = g16 + 12, AV, kk
        a(f"""s_cmp_lg_u32 s{sRow}, 7
        s_cbranch_scc1 L_NONON
        v_mov_b32 v{vT+2}, s{sTAG}
        v_mov_b32 v{vT+3}, 0
        s_mov_b64 exec, 1""")
        self.bs(vT + 2, 1, vT + 3, rWS, '0', 0, 'sc1', count=False)
        a(f"""s_mov_b64 exec, -1
        L_NONON:
        s_cmp_ge_u32 s{sJ}, 28
        s_cbranch_scc1 {'L_FIN2' if o['outat'] >= 2 else 'L_FIN'}
        s_cmp_lg_u32 s{sWAVE}, 7
        s_cbranch_scc1 L_NOFZ""")
        a(f"""s_bitcmp1_b32 s{sJ}, 3
        s_cselect_b32 s{T2}, s{P+1}, s{P}
        s_cselect_b32 s{T4}, s{T5}, s{T4}
        s_andn2_b32 s{T5}, 2047, s{T2}""")
        S(T6, 'cb*4 + (x >> 1)')
        S(T7, '((T6 >> 1)*4 + (j >> 3)*2 + (T6 & 1))*(56*128) + GGR')
        S(sU, 'T5*2048 + T6*32')
        va(vT + 6, [(0, 3, 4)])
        S(T0, '(x >> 1)*64 + L_GB'); va(vT + 1, [(0, 3, 8)], T0)
        a(f'ds_read_b64 {vr(fz + 2, 2)}, v{vT+1}')
        S(sY0, '(T4 & 31)*8192 + cb*512 + (x >> 1)*32 + XS')
        a(f"""s_lshr_b32 s{T0}, s{T2}, 11
        s_lshl_b32 s{T0}, s{T0}, 16
        s_ashr_i32 s{T2}, s{T0}, 31
        s_andn2_b32 s{T2}, 0x7fff0000, s{T2}
        s_or_b32 s{T2}, s{T2}, 0x80000000
        s_xor_b32 s{T0}, s{T0}, s{T2}
        v_mov_b32 v{fz}, s{T0}
        v_mul_f32 v{fz}, s{sL2E}, v{fz}
        v_exp_f32 v{fz}, -v{fz}
        v_add_f32 v{fz}, 1.0, v{fz}
        v_rcp_f32 v{fz}, v{fz}""")
        self.round1(fz)
        a('L_NOFZ:')
        a(f"""s_cmp_ge_u32 s{sWAVE}, 4
        s_cbranch_scc1 L_NOH""")
        S(T0, 'w*256 + T1')
        va(vT, [(4, 2, 2048), (0, 4, 16)])
        S(T2, 'w*32 + L_ACT'); va(vT + 1, [(5, 1, 128), (2, 1, 16), (1, 1, 8), (3, 1, 4), (0, 1, 2)], T2)
        q0 = list(vm.q)
        g, u = x1, x1 + 4
        if not o['Hdir']:
            self.spoll([(q, 1, T0, q * 2048 + 1024 + 252) for q in range(4)], range(4))
            self.stamp('Hpre')
        self.poll(lambda: [self.bl(x1 + 4 * m, 4, vT, rWS, T0, m * 1024, 'sc1') for m in range(2)], [g + 1, g + 3, u + 1, u + 3], vT + 2)
        a(f"""v_permlane32_swap_b32 v{g}, v{g+2}
        v_permlane32_swap_b32 v{u}, v{u+2}
        v_add_f32 v{g}, v{g}, v{g+2}
        v_add_f32 v{u}, v{u}, v{u+2}
        v_mov_b32 v{g+2}, v{g}
        v_mov_b32 v{u+2}, v{u}
        v_permlane16_swap_b32 v{g}, v{g+2}
        v_permlane16_swap_b32 v{u}, v{u+2}
        v_add_f32 v{g}, v{g}, v{g+2}
        v_add_f32 v{u}, v{u}, v{u+2}""")
        self.round2(g, u)
        self.silu(g, vT + 2)
        a(f"""v_mul_f32 v{g}, v{g}, v{u}
        v_cvt_pk_bf16_f32 v{g}, v{g}, v{g}
        ds_write_b16 v{vT+1}, v{g}
        L_NOH:""")
        vm.q = q0
        va(vT, [(2, 1, 128), (5, 1, 16)], None, L_ACT)
        va(vT + 1, [(4, 2, 56 * 128), (0, 4, 8)])
        S(T0, '(kq*8 + w)*(4*56*128) + fs*128 + GGR')
        va(vT + 2, [(0, 1, 2 * 4096), (1, 1, 64 * 4096)])
        S(T1, '((w & 1)*4 + (kq >> 1) + ((kq & 1)*4 + (w >> 1))*8)*4096 + x*64 + (j >> 2)*4 + INB + 3072')
        vm.wait('ffn')
        self.barrier()
        self.stamp('Hok')
        for s in range(4):
            self.r128(x1 + 4 * s, vT, s * 32, ('ac', s))
            if dn_late: dn_read(s, ('ac', s))
        for s in range(4):
            lg.wait(('ac', s))
            a(f'v_mfma_f32_32x32x16_bf16 {vr(hh, 16)}, {vr(x1 + 4*s, 4)}, {vr(fdn + 4*s, 4)}, ' + ('0' if s == 0 else vr(hh, 16)))
        a(f'v_mov_b32 v{hh+1}, s{sTAG}')
        self.bs(hh, 2, vT + 1, rWS, T0, 0, 'sc1')
        if not o['Gdir']:
            a('s_mov_b64 exec, 15')
            self.bs(hh + 1, 1, vT + 2, rWS, T1, 0, 'sc1')
            a('s_mov_b64 exec, -1')
        self.stamp('Gpub')
        if o['outat'] >= 2:
            a('s_barrier\nL_FIN2:')
            out_store()
        a(f"""s_cmp_ge_u32 s{sJ}, 16
        s_cbranch_scc1 L_FIN""")
        if not o['Gdir']:
            self.inbox(6, 8, range(7))
            self.stamp('Gpre')
            a('s_barrier')
        a(f"""s_cmp_lg_u32 s{sWAVE}, 7
        s_cbranch_scc1 L_FIN""")
        S(T0, 'T7 + 4096')
        gg = [x1 + 4 * i for i in range(7)]
        def g_ld():
            [self.bl(gg[n], 4, vL16, rWS, (T7, T0)[n >> 2], (n & 3) * 1024, 'sc1') for n in range(7)]
            self.bl(st, 1, vT + 6, rWS, sY0, 0, 'sc1'); self.bl(st + 1, 1, vT + 6, rWS, sY0, 128, 'sc1')
        def g_post():
            a(f'''v_max_u32 v{st+2}, v{st}, v{st+1}
            v_cmp_ne_u32 vcc, -1, v{st+2}
            v_cndmask_b32 v{st+2}, v{vT+2}, v{vT+1}, vcc''')
        a(f'v_mov_b32 v{vT+1}, s{sTAG}\nv_not_b32 v{vT+2}, v{vT+1}')
        self.poll(g_ld, [gg[n] + 1 + 2 * e for n in range(7) for e in range(2)] + [st + 2], vT, g_post)
        self.stamp('Gok')
        for n in range(1, 7):
            for e in (0, 2): a(f'v_add_f32 v{gg[0]+e}, v{gg[0]+e}, v{gg[n]+e}')
        y0, y1 = gg[0], gg[0] + 1
        a(f'v_mov_b32 v{y1}, v{gg[0]+2}')
        for y in (y0, y1): self.dpp('v_add_f32', y, y, y, 'row_ror:8')
        for sw in ('v_permlane16_swap_b32', 'v_permlane32_swap_b32'):
            for y in (y0, y1): a(f'v_mov_b32 v{y+2}, v{y}')
            for y in (y0, y1): a(f'{sw} v{y}, v{y+2}')
            self.pk('add', y0, y0, y0 + 2)
        self.round2(y0, y1)
        self.pk('mul', y0, y0, fz, bc=(1,))
        self.unpack(vT, vT + 1, st)
        self.round2(y0, y1)
        self.pk('add', y0, y0, vT)
        self.round2(y0, y1)
        self.pk('mul', y0, y0, fz + 2)
        self.unpack(vT, vT + 1, st + 1)
        self.round2(y0, y1)
        self.pk('add', y0, y0, vT)
        a(f'v_cvt_pk_bf16_f32 v{y0}, v{y0}, v{y1}')
        a('s_mov_b64 exec, 0xff')
        self.bs(y0, 1, vT + 6, rOUT, sU, 0, o.get('finmod', ''))
        a('s_mov_b64 exec, -1')
        a('L_FIN:')

    def finish(self):
        a, S, o = self.a, self.S, self.o
        if o.get('exfil'):
            a('s_waitcnt vmcnt(0) lgkmcnt(0)')
            self.stamp('fin')
            a(f'''v_readlane_b32 s{T0}, v255, 0
            v_readlane_b32 s{T1}, v255, 1
            v_readlane_b32 s{T2}, v255, 2
            s_sub_u32 s{T2}, s{T2}, s{T1}
            s_max_i32 s{T2}, s{T2}, 0
            s_min_u32 s{T2}, s{T2}, 10000
            s_mul_i32 s{T2}, s{T2}, 10
            s_add_u32 s{T2}, s{T2}, 6000
            L_XPAD:
            s_memrealtime {sr(sTM, 2)}
            s_waitcnt lgkmcnt(0)
            s_sub_u32 s{T1}, s{sTM}, s{T0}
            s_cmp_lt_u32 s{T1}, s{T2}
            s_cbranch_scc1 L_XPAD''')
        if self.o.get('dbg2'):
            S(T1, '(wg*8 + w)*32768 + 0x4000000'); self.vaa(vT, [(0, 6, 4)])
            for k, r in enumerate(list(range(72, 104)) + list(range(120, 136)) + list(range(176, 184))):
                if k % 16 == 0 and k: S(T1, 'T1 + 4096')
                self.bs(r, 1, vT, rWS, T1, (k % 16) * 256, '', 'dbg')
                if k % 16 == 15: self.vm.wait('dbg')
        if self.prof:
            a('s_waitcnt vmcnt(0) lgkmcnt(0)')
            self.stamp('end')
            a(f's_memrealtime {sr(sTM, 2)}')
            a('s_waitcnt lgkmcnt(0)')
            a(f'v_writelane_b32 v255, s{sTM}, 61')
            S(T0, '(wg*8 + w)*256 + STAMPS')
            a(f'v_writelane_b32 v255, s{sSPIN}, 62')
            a(f'v_lshlrev_b32 v{vT+1}, 2, v{vL}')
            a(f'buffer_store_dword v255, v{vT+1}, {sr(rWS, 4)}, s{T0} offen')
            S(T0, 'T0 + 0x100000')
            a(f'buffer_store_dword v254, v{vT+1}, {sr(rWS, 4)}, s{T0} offen')
        a('L_END:')
        a('s_endpgm')

    def pads(self):
        import subprocess, re
        a = self.a
        src = '.amdgcn_target "amdgcn-amd-amdhsa--gfx950"\n.text\n' + a.text().replace('CODE_KB', '20480')
        out = subprocess.run(['llvm-mc', '-triple=amdgcn-amd-amdhsa', '-mcpu=gfx950', '-show-encoding'], input=src, capture_output=True, text=True, check=True).stdout
        sizes = [len(m.split(',')) for m in re.findall(r'; encoding: \[([^\]]*)\]', out)]
        tour = next(i for i, x in enumerate(a.items) if x == ('raw', ';TOUR'))
        NT = 16
        addr = self.o['kofs']; full = True; k = 0; items = []; pads = []; page = 0
        for i, (kind, v) in enumerate(a.items):
            isins = kind == 'ins' or (kind == 'raw' and v.startswith('    s_'))
            if i == tour: items.append((kind, v)); addr += 4 * 48; continue
            if isins:
                if addr // 4096 > page and full and i > tour:
                    page = addr // 4096; pads.append(page)
                    items.append(('raw', f'L_PAD{page}:\n    s_cbranch_execz L_RET{page}')); addr += 4
                elif i < tour: page = addr // 4096
                addr += sizes[k]; k += 1
                if kind == 'ins' and ('s', 'exec_lo') in v.dst + [('s', 'exec_lo') if ('s', 'exec_hi') in v.dst else None]:
                    full = v.text.replace(' ', '') in ('s_mov_b64exec,-1', 's_mov_b32exec_hi,-1')
            items.append((kind, v))
        assert k == len(sizes), (k, len(sizes))
        t = ['s_mov_b64 exec, 0']
        chains = [pads[c::4] for c in range(4)]
        for c in range(4): t += [f's_cmp_eq_u32 s{sWAVE}, {4 + c}', f's_cbranch_scc1 L_PAD{chains[c][0]}']
        t.append('s_branch L_TEND')
        n = len(t)
        for ch in chains:
            for p, q in zip(ch, ch[1:] + [None]):
                t += [f'L_RET{p}:', f's_branch ' + (f'L_PAD{q}' if q else 'L_TEND')]; n += 1
        assert n <= 47
        t += ['s_nop 0'] * (47 - n) + ['L_TEND:', 's_mov_b64 exec, -1']
        j = items.index(('raw', ';TOUR'))
        items[j] = ('raw', '\n'.join(x if x.endswith(':') else '    ' + x for x in t))
        a.items = items

    def text(self):
        a = self.a
        npad = a.fix_hazards()
        errs = a.check_waits([NAME])
        for e in errs[:10]: print('WAITERR', e, file=sys.stderr)
        assert not errs
        import re
        for k, v in a.items:
            if k == 'ins' and v.mn.startswith('v_pk_'):
                m = re.search(r'op_sel:\[([\d,]+)\]', v.text)
                vs = [i for i, x in enumerate(v.ops[1:]) if x.startswith('v')]
                assert self.o.get('badpk') or not (m and any(m.group(1).split(',')[i] == '1' for i in vs[1:])), v.text
        if self.o['tour']: self.pads()
        hdr = open(os.path.join(os.path.dirname(os.path.abspath(__file__)), 'header.txt')).read()
        s = hdr + '; @launch grid=(256,1,1) block=(512,1,1) lds=163840\n'
        s += '.amdgcn_target "amdgcn-amd-amdhsa--gfx950"\n.text\n'
        s += f'.globl {NAME}\n.p2align {12 if self.o["al12"] else 8}\n.type {NAME},@function\n'
        body = a.text()
        import subprocess, tempfile
        with tempfile.TemporaryDirectory() as td:
            open(td + '/t.s', 'w').write('.amdgcn_target "amdgcn-amd-amdhsa--gfx950"\n.text\n' + body.replace('CODE_KB', '20480'))
            subprocess.run(['clang', '-x', 'assembler', '-target', 'amdgcn-amd-amdhsa', '-mcpu=gfx950', '-c', td + '/t.s', '-o', td + '/t.o'], check=True)
            subprocess.run(['llvm-objcopy', '-O', 'binary', '-j', '.text', td + '/t.o', td + '/t.bin'], check=True)
            size = os.path.getsize(td + '/t.bin')
        print('; code bytes', size, file=sys.stderr)
        s += body.replace('CODE_KB', str((size // 1024 + 1) * 1024))
        s += '.p2align 10\n.fill 768, 4, 0xbf800000\n'
        s += '.section .rodata,"a"\n' + kernel_desc(NAME, 256, 102)
        print(f'; nops {npad}, instrs {sum(1 for k, _ in a.items if k == "ins")}', file=sys.stderr)
        return s


if __name__ == '__main__':
    import argparse, json
    ap = argparse.ArgumentParser()
    ap.add_argument('-o', default='/dev/stdout')
    ap.add_argument('--prof', action='store_true')
    ap.add_argument('--opts', default='{}')
    args = ap.parse_args()
    g = Gen(args.prof, json.loads(args.opts)).build()
    t = g.text()
    open(args.o, 'w').write(t)
    if args.prof: open(args.o + '.stamps', 'w').write(json.dumps(g.stnames))
```

```python
import sys, os
sys.path.insert(0, os.path.dirname(os.path.abspath(__file__)))
from asm import *

NAME = 'adaLN_cond__linear_kernel_hedgehog__moe_arch_mod__prompt_kernel'

NONCE = 0x0
MODP2 = 0x020000
SINB = 0x200000
AINB = 0x080000
INB = 0x100000
HF = 0x400000
OF = 0x800000
ST = 0xC00000
XS = 0xD00000
UP = 0xD80000
HGR = 0x1400000
ZP = 0x1480000
GGR = 0x1500000
KVP = 0x1800000
KIN = 0x1C00000
STAMPS = 0x1600000
WS_BYTES = 268435456

REG = 49152
MISC = 147456
L_A1 = MISC
L_ST = MISC + 6144
L_MP = MISC + 8192
L_WPHI = MISC + 12288
L_KH = 0
L_QH = MISC + 4096
L_KVF = MISC
L_ZF = MISC + 8192
L_M2 = MISC + 9984
L_MD = MISC + 12288
L_K1 = MISC + 8704
L_K2 = MISC + 8832
L_ACT = MISC + 9216
L_GB = MISC + 9728
L_HV = 32768
L_PHK = 0
L_TR = 98304
L_GU = 0
L_DN = 65536
UR = 393216

SPIN_LIMIT = 200000

sWAVE, sTAG, sSPIN, sMASK, sL2E = 3, 4, 5, 6, 7
sX, sJ, sR1, sHP, sCB = 8, 9, 10, 11, 12
T0, T1, T2, T3, T4, T5, T6, T7 = 13, 14, 15, 16, 17, 18, 19, 20
sRT = 21
sCMP = 22
sPL = 24
rWS, rX, rW, rWO, rWM, rWG, rWU, rWD, rOUT = 32, 36, 40, 44, 48, 52, 56, 60, 64
KA = 68
pWPHI, pWR, pC = KA + 4, KA + 10, KA + 18
sK1, sK2, sROW0, sROW1, sFS, sKQ, sKH, sRB = 68, 69, 70, 71, 74, 75, 76, 77
sFG, sFD, sU, sW1K, sU0, sWB = 80, 81, 82, 83, 84, 85
sAB, sM2, sWO, sY0 = 88, 89, 90, 91
sINB, sRow, sY1, sY2 = 92, 93, 94, 95
sCM = 84
sC2 = 88
XT = (96, 97, 98, 99)
sTM = 100
ENV = dict(wg=2, w=sWAVE, x=sX, j=sJ, r1=sR1, hp=sHP, cb=sCB, rt=sRT, row=sRow, kh=sKH, rb=sRB, fs=sFS, kq=sKQ,
           w1k=sW1K, u=sU, fg=sFG, fd=sFD, u0=sU0, wb=sWB, ab=sAB, m2=sM2, wo=sWO, y0=sY0, y1=sY1, y2=sY2,
           k1=sK1, k2=sK2, row0=sROW0, row1=sROW1,
           T0=T0, T1=T1, T2=T2, T3=T3, T4=T4, T5=T5, T6=T6, T7=T7)

vL, vL16, vWd, vT = 1, 2, 3, 4
XR = 12
vB = 20
vS0, vS1 = 26, 27
RING = 28
AK, AV, AQ = 56, 88, 120
AR = 152
SP = 248


class Stream:
    def __init__(self, g): self.g, self.q, self.wake = g, [], 0
    def add(self, fn, v=0, l=0): self.q.append((v, l, fn))
    def sleep(self, k): self.q.append(('sleep', k, None))
    def until(self, n): self.q.append(('until', n, None))
    def cap(self, fn):
        a = self.g.a
        keep = a.items; a.items = []
        fn()
        body = a.items; a.items = keep
        run = []
        for it in body:
            i = it[1]
            assert it[0] == 'ins' and i.cls in ('valu', 'salu', 'mfma'), it
            run.append(it)
            if i.cls == 'salu': continue
            c = 8 if (i.cls == 'mfma' or i.is_trans or 'permlane' in i.mn) else 6 if i.mn.startswith(('v_fma', 'v_max3', 'v_min3', 'v_lshl_', 'v_bfe')) else 4.75 if i.mn.startswith('v_cvt') else 4
            self.q.append((c + (len(run) - 1), 0, (lambda r=run: a.items.extend(r)))); run = []
        if run: self.q.append((len(run), 0, (lambda r=run: a.items.extend(r))))
    def mark(self, name): self.q.append((0, 0, lambda: (self.g.marks.add(name), self.g.markn.append((name, self.g.cur[0])))))
    def pull(self, bud, full):
        n = self.g.cur[0]
        while self.q and n >= self.wake:
            v, l, fn = self.q[0]
            if v == 'sleep': self.wake = n + l; self.q.pop(0); continue
            if v == 'until': self.wake = max(n, l); self.q.pop(0); continue
            if l > bud[1]: return
            if v > bud[0] and bud[0] < full:
                bud[0] = -1; return
            self.q.pop(0); fn(); bud[0] -= v; bud[1] -= l


DEFAULTS = dict(wburst=(2, 2, 2, 0, 6, 0), xtat=0, dnsplit=1, lateB=1, wo0=0, m2k0=11, m2n0=4, mdlate=1, m2gap=10, m2cut=60, aoff=6, wpace=0, cprio=1, g2p=28, tlb=0, tlbk=2, tsin=0, tz=0, outat=2, gbar=1, fbar=0, xorw=1, LOOK=6, A00=8, A0=8, Apos=(6, 6, 6, 6, 6, 6, 5, 5, 5, 5),
                wsched={5: 'k10 v10', 6: 'k11 v11', 7: 'k12 v12', 8: 'k13 v13', 9: 'k14 q10', 10: 'k15 q11', 11: 'v14 v15 q12', 12: 'q13 q14 q15'},
                bA=271, bH=295, kbud=10, vbud=5, wcost=5, kdel=1, hh=0.25, hq=0.97, hpf=(0.3, 0.7), fA=2, woA=4, hgap=(20, 14), fpre=8, m2c=4, m2k3='(j & 1)*2 + 1', m2g=5, m2e=7, m2nb=1, m2db=2, apos=0, hprio=3, qmid=8, qsplit=16, wowin=(4, 4, 4), AD2=8, LOOK2=7, g2r='(j & 1)*4', Hdir=0, Gdir=0, C2dir=0, poisat=3, earlyD=1, ocut=(2, 2, 3), pairw2=4, worot=1, fwin=(0, 0, 0, 3, 2, 3, 2), prio=2, tour=1, al12=1, kofs=0x300)


class Gen:
    def __init__(self, prof=False, opts=None):
        self.a = Asm()
        self.vm = Counter(self.a, 'vmcnt', 63)
        self.lg = Counter(self.a, 'lgkmcnt', 15)
        self.marks = set(); self.markn = []
        self.vL = vL
        self.prof = prof
        self.nopk = False
        self.nst = 0
        self.stnames = []
        self.S = SExpr(self.a, ENV, {k: v for k, v in globals().items() if isinstance(v, int) and k.isupper() and k not in ENV}, XT)
        self.o = dict(DEFAULTS)
        if opts: self.o.update(opts)

    def bl(self, dst, n, voff, srd, soff, imm=0, mods='', tag=None):
        op = {1: 'dword', 2: 'dwordx2', 4: 'dwordx4'}[n]
        so = soff if isinstance(soff, str) else (sr(soff))
        self.a(f'buffer_load_{op} {vr(dst, n)}, v{voff}, {sr(srd, 4)}, {so} offen' + (f' offset:{imm}' if imm else '') + (' ' + mods if mods else ''))
        self.vm.issue(tag)
    def bs(self, src, n, voff, srd, soff, imm=0, mods='', tag=None, count=True):
        op = {1: 'dword', 2: 'dwordx2', 4: 'dwordx4'}[n]
        so = soff if isinstance(soff, str) else (sr(soff))
        self.a(f'buffer_store_{op} {vr(src, n)}, v{voff}, {sr(srd, 4)}, {so} offen' + (f' offset:{imm}' if imm else '') + (' ' + mods if mods else ''))
        if count: self.vm.issue(tag)
    def dma(self, voff, srd, soff, imm=0, mods='', tag=None):
        self.a(f'buffer_load_dwordx4 v{voff}, {sr(srd, 4)}, {sr(soff)} offen' + (f' offset:{imm}' if imm else '') + (' ' + mods if mods else '') + ' lds')
        self.vm.issue(tag)
    def dr(self, op, dst, n, addr, off=0, tag=None):
        assert 0 <= off < 65536, off
        self.a(f'{op} {vr(dst, n)}, v{addr}' + (f' offset:{off}' if off else ''))
        self.lg.issue(tag)
    def tr(self, dst, addr, off, tag=None): self.dr('ds_read_b64_tr_b16', dst, 2, addr, off, tag)
    def r128(self, dst, addr, off=0, tag=None): self.dr('ds_read_b128', dst, 4, addr, off, tag)
    def dw(self, op, addr, src, n, off=0, tag=None):
        assert 0 <= off < 65536, off
        self.a(f'{op} v{addr}, {vr(src, n)}' + (f' offset:{off}' if off else ''))
        self.lg.issue(tag)
    def barrier(self):
        self.lg.wait_all()
        self.a('s_barrier')
    def stamp(self, name):
        if self.o.get('jit') and name not in ('karg', 'fin', 'end'):
            L = self.a.label('JIT')
            self.a(f's_memtime {sr(sTM, 2)}'); self.lg.wait_all()
            self.a(f's_mul_i32 s{sTM}, s{sTM}, 0x9e3779b1\ns_lshr_b32 s{sTM}, s{sTM}, {32 - self.o["jit"]}\ns_add_u32 s{sTM}, s{sTM}, 1\n{L}:\ns_sleep 1\ns_sub_u32 s{sTM}, s{sTM}, 1\ns_cmp_lg_u32 s{sTM}, 0\ns_cbranch_scc1 {L}')
        ex = self.o.get('exfil')
        if ex and name in ex[:2]:
            self.a(f's_memrealtime {sr(sTM, 2)}')
            self.lg.wait_all()
            self.a(f'v_writelane_b32 v255, s{sTM}, {1 + ex.index(name)}')
        if not self.prof: return
        only = self.o.get('only')
        if only and name not in only and name != 'end': return
        self.a(f's_memtime {sr(sTM, 2)}')
        self.a(f's_memrealtime s[0:1]')
        self.lg.wait_all()
        self.a(f'v_writelane_b32 v255, s{sTM}, {self.nst}')
        self.a(f'v_writelane_b32 v254, s0, {self.nst}')
        self.stnames.append(name)
        self.nst += 1
        assert self.nst <= 60
    def unpack(self, lo, hi, src):
        self.a(f'v_lshlrev_b32 v{lo}, 16, v{src}')
        self.a(f'v_and_b32 v{hi}, s{sMASK}, v{src}')
    def round1(self, r):
        self.a(f'v_cvt_pk_bf16_f32 v{r}, 0, v{r}')
    def round2(self, r0, r1):
        self.round1(r0); self.round1(r1)
    def round_list(self, regs):
        for r in regs: self.round1(r)
    def pk(self, op, d, s0, s1, s2=None, bc=(), neg=()):
        srcs = [s0, s1] + ([s2] if s2 is not None else [])
        if self.nopk:
            for h in range(2):
                t = []
                for k, r in enumerate(srcs):
                    kind, n = r if isinstance(r, tuple) else ('v', r)
                    t.append(('-' if k in neg else '') + f'{kind}{n if k in bc else n + h}')
                e64 = '' if op == 'fma' else ('_e64' if (neg or t[1][0] == 's') else '')
                self.a(f'v_{op}_f32{e64} v{d+h}, ' + ', '.join(t))
            return
        if 1 in bc and not isinstance(s1, tuple) and s1 & 1 and not self.o.get('badpk'):
            assert 0 not in bc
            sw = lambda t: tuple({0: 1, 1: 0}.get(k, k) for k in t)
            srcs[0], srcs[1] = srcs[1], srcs[0]; bc, neg = sw(bc), sw(neg)
        txt, sel, selhi = [], [], []
        for k, r in enumerate(srcs):
            kind, n = r if isinstance(r, tuple) else ('v', r)
            if k in bc:
                txt.append(f'{kind}[{n & ~1}:{(n & ~1) + 1}]'); sel.append(n & 1); selhi.append(n & 1)
            else:
                assert n % 2 == 0
                txt.append(f'{kind}[{n}:{n+1}]'); sel.append(0); selhi.append(1)
        assert d % 2 == 0
        m = ''
        if any(sel): m += ' op_sel:[' + ','.join(map(str, sel)) + ']'
        if not all(selhi): m += ' op_sel_hi:[' + ','.join(map(str, selhi)) + ']'
        if neg:
            ng = ','.join('1' if k in neg else '0' for k in range(len(srcs)))
            m += f' neg_lo:[{ng}] neg_hi:[{ng}]'
        self.a(f'v_pk_{op}_f32 v[{d}:{d+1}], ' + ', '.join(txt) + m)
    def dpp(self, op, d, s0, s1, ctl):
        self.a(f'{op}_dpp v{d}, v{s0}, v{s1} {ctl} row_mask:0xf bank_mask:0xf')
    def allreduce(self, v, t, op='v_add_f32', lo=True, b3=True):
        if lo:
            self.dpp(op, v, v, v, 'quad_perm:[1,0,3,2]')
            self.dpp(op, v, v, v, 'quad_perm:[2,3,0,1]')
            self.dpp(op, v, v, v, 'row_half_mirror')
        self.dpp(op, v, v, v, 'row_ror:8')
        self.a(f'v_mov_b32 v{t}, v{v}')
        self.a(f'v_permlane16_swap_b32 v{v}, v{t}')
        self.a(f'{op} v{v}, v{v}, v{t}')
        self.a(f'v_mov_b32 v{t}, v{v}')
        self.a(f'v_permlane32_swap_b32 v{v}, v{t}')
        self.a(f'{op} v{v}, v{v}, v{t}')
    def poll(self, loads, tagregs, tmp=None, post=None):
        a = self.a
        L, D = a.label('POLL'), a.label('PDONE')
        a(f'{L}:')
        loads()
        self.vm.wait_all()
        if post: post()
        if len(tagregs) == 1:
            a(f'v_cmp_ne_u32 vcc, s{sTAG}, v{tagregs[0]}')
        else:
            a(f'v_bitop3_b32 v{tmp}, v{tagregs[0]}, v{tagregs[1]}, s{sTAG} bitop3:0x7e')
            for t in tagregs[2:]: a(f'v_bitop3_b32 v{tmp}, v{tmp}, v{t}, s{sTAG} bitop3:0xf6')
            a(f'v_cmp_ne_u32 vcc, 0, v{tmp}')
        a(f's_cbranch_vccz {D}')
        a(f's_add_u32 s{sSPIN}, s{sSPIN}, 1')
        a(f's_cmp_lt_u32 s{sSPIN}, {SPIN_LIMIT}')
        a(f's_cbranch_scc1 {L}')
        a(f'{D}:')
    def weave(self, fn, extras):
        a = self.a
        keep = a.items; a.items = []
        fn()
        body = a.items; a.items = keep
        extras = list(extras); n = len(extras)
        for i, it in enumerate(body):
            while extras and (n - len(extras)) * len(body) <= i * n: extras.pop(0)()
            a.items.append(it)
        for e in extras: e()
    def tagcheck(self, tagregs, tmp):
        a = self.a
        if len(tagregs) == 1:
            a(f'v_cmp_ne_u32 vcc, s{sTAG}, v{tagregs[0]}')
        else:
            a(f'v_bitop3_b32 v{tmp}, v{tagregs[0]}, v{tagregs[1]}, s{sTAG} bitop3:0x7e')
            for t in tagregs[2:]: a(f'v_bitop3_b32 v{tmp}, v{tmp}, v{t}, s{sTAG} bitop3:0xf6')
            a(f'v_cmp_ne_u32 vcc, 0, v{tmp}')
    def try_load(self, loads, tagregs, tmp=None, between=None, pre=None):
        a = self.a
        n0 = len(self.vm.q)
        loads()
        self.vm.q[-1] = tg = ('try', a.label('T'))
        if between: between()
        self.vm.wait(tg)
        OK = a.label('TOK')
        self.tagcheck(tagregs, tmp)
        a(f's_cbranch_vccz {OK}')
        q, l = list(self.vm.q), list(self.lg.q)
        if pre: pre()
        self.poll(loads, tagregs, tmp)
        self.vm.q, self.lg.q = q, l
        a(f'{OK}:')
    def spoll(self, loads, checks, work=None):
        a = self.a
        L, C, D = a.label('SPOLL'), a.label('SCHK'), a.label('SDONE')
        def issue():
            for d, n, so, imm in loads:
                op = {1: 'dword', 2: 'dwordx2', 4: 'dwordx4', 8: 'dwordx8'}[n]
                a(f's_load_{op} {sr(sPL + d, n)}, {sr(rWS, 2)}, s{so} offset:{imm} glc')
        if work:
            issue(); work()
            a(f's_branch {C}')
        a(f'{L}:')
        issue()
        a(f'{C}:')
        a(f's_add_u32 s{sSPIN}, s{sSPIN}, 1')
        a(f's_cmp_ge_u32 s{sSPIN}, {SPIN_LIMIT}')
        self.lg.wait_all()
        a(f's_cbranch_scc1 {D}')
        for k in checks:
            a(f's_cmp_lg_u32 s{sPL + k}, s{sTAG}')
            a(f's_cbranch_scc1 {L}')
        a(f'{D}:')
    def inbox(self, box, n, checks=None, work=None):
        self.spoll([(0, n, sINB, box * 512)], range(n) if checks is None else checks, work)
    def va(self, dst, terms, sreg=None, const=0, tmp=None):
        a = self.a; vL = self.vL
        first = True
        for sh, bits, mult in terms:
            full = sh + bits >= 6
            src = vL
            t = dst if first else tmp
            if sh == 0 and full: pass
            elif full: a(f'v_lshrrev_b32 v{t}, {sh}, v{vL}'); src = t
            elif sh == 0: a(f'v_and_b32 v{t}, {(1 << bits) - 1}, v{vL}'); src = t
            else: a(f'v_bfe_u32 v{t}, v{vL}, {sh}, {bits}'); src = t
            p2 = mult & (mult - 1) == 0
            k = mult.bit_length() - 1
            if first:
                if p2 and sreg is not None: a(f'v_lshl_add_u32 v{dst}, v{src}, {k}, s{sreg}'); sreg = None
                elif p2 and k: a(f'v_lshlrev_b32 v{dst}, {k}, v{src}')
                elif p2:
                    if src != dst: a(f'v_mov_b32 v{dst}, v{src}')
                else: a(f'v_mul_u32_u24 v{dst}, {mult}, v{src}')
            else:
                assert p2
                a(f'v_lshl_add_u32 v{dst}, v{src}, {k}, v{dst}')
            first = False
        if sreg is not None: a(f'v_add_u32 v{dst}, s{sreg}, v{dst}')
        if const: a(f'v_add_u32 v{dst}, {const}, v{dst}')
    def push(self, vaddr, soff, nl, vtmp, lab, wave=0):
        a = self.a
        a(f's_cmp_lg_u32 s{sWAVE}, {wave}')
        a(f's_cbranch_scc1 {lab}')
        a(f'v_mov_b32 v{vtmp}, s{sTAG}')
        a(f's_mov_b32 exec_hi, 0')
        if nl < 32: a(f's_mov_b32 exec_lo, {(1 << nl) - 1}')
        self.bs(vtmp, 1, vaddr, rWS, soff, 0, 'sc1', count=False)
        a('s_mov_b64 exec, -1')
        a(f'{lab}:')
    def silu(self, v, t):
        a = self.a
        a(f'v_mul_f32 v{t}, s{sL2E}, v{v}')
        a(f'v_exp_f32 v{t}, -v{t}')
        a(f'v_add_f32 v{t}, 1.0, v{t}')
        a(f'v_rcp_f32 v{t}, v{t}')
        a(f'v_mul_f32 v{v}, v{v}, v{t}')
        self.round1(v)
    def gemv_ops(self, wregs, cregs, acc, t0, t1, packed):
        ops = []
        assert t0 % 2 == 0 and t1 == t0 + 1
        for i, (w, c) in enumerate(zip(wregs, cregs)):
            cp = f'v[{c & ~1}:{(c & ~1) + 1}]'
            for d in range(4):
                tt = t0 + 2 * (d & 1)
                ops.append(f'v_lshlrev_b32 v{tt}, 16, v{w+d}')
                ops.append(f'v_and_b32 v{tt+1}, s{sMASK}, v{w+d}')
                ac = f'v[{acc+2*d}:{acc+2*d+1}]'
                if not packed:
                    for h in range(2): ops.append(f'v_mul_f32 v{acc+2*d+h}, v{tt+h}, v{c}' if i == 0 else f'v_fmac_f32 v{acc+2*d+h}, v{tt+h}, v{c}')
                elif i == 0: ops.append(f'v_pk_mul_f32 {ac}, {cp}, v[{tt}:{tt+1}] op_sel:[{c & 1},0] op_sel_hi:[{c & 1},1]')
                else: ops.append(f'v_pk_fma_f32 {ac}, {cp}, v[{tt}:{tt+1}], {ac} op_sel:[{c & 1},0,0] op_sel_hi:[{c & 1},1,1]')
        for i in range(4): ops.append(f'v_permlane32_swap_b32 v{acc+i}, v{acc+4+i}')
        for i in range(4): ops.append(f'v_add_f32 v{acc+i}, v{acc+i}, v{acc+4+i}')
        for i in range(2): ops.append(f'v_permlane16_swap_b32 v{acc+i}, v{acc+2+i}')
        for i in range(2): ops.append(f'v_add_f32 v{acc+i}, v{acc+i}, v{acc+2+i}')
        for i in range(2): ops.append(f'v_add_f32_dpp v{acc+i}, v{acc+i}, v{acc+i} row_ror:8 row_mask:0xf bank_mask:0xf')
        ops.append(f'v_mov_b32_dpp v{acc}, v{acc+1} quad_perm:[0,1,2,3] row_mask:0xf bank_mask:0xc')
        return ops
    def sum8(self, b):
        self.pk('add', b, b, b + 2); self.pk('add', b + 4, b + 4, b + 6); self.pk('add', b, b, b + 4)
        self.a(f'v_add_f32 v{b}, v{b}, v{b+1}')
    def softmax_pm(self, p, e, out, t, mid=None, part=0, split=0, stage=None):
        a = self.a
        mx, mn, u0, u1, s0, s1 = t, t + 1, t + 2, t + 3, t + 4, t + 6
        if part != 2:
            self.round_list([p + i for i in range(16)])
            a(f'v_max3_f32 v{mx}, v{p}, v{p+1}, v{p+2}')
            a(f'v_min3_f32 v{mn}, v{p}, v{p+1}, v{p+2}')
            for i in range(3, 15, 2):
                a(f'v_max3_f32 v{mx}, v{mx}, v{p+i}, v{p+i+1}')
                a(f'v_min3_f32 v{mn}, v{mn}, v{p+i}, v{p+i+1}')
            a(f'v_max_f32 v{u0}, v{mx}, v{p+15}')
            a(f'v_min_f32 v{u1}, v{mn}, v{p+15}')
            a(f'v_max_f32 v{mx}, v{mx}, v{p+15}')
            a(f'v_min_f32 v{mn}, v{mn}, v{p+15}')
            a(f'v_permlane32_swap_b32 v{mx}, v{u0}')
            a(f'v_permlane32_swap_b32 v{mn}, v{u1}')
            a(f'v_max_f32 v{mx}, v{mx}, v{u0}')
            a(f'v_min_f32 v{mn}, v{mn}, v{u1}')
            self.pk('mul', mx, mx, ('s', sL2E), bc=(1,))
            mn2 = mn
            if not self.nopk: a(f'v_mov_b32 v{u0}, v{mn}'); mn2 = u0
            for i in range(0, 16, 2):
                self.pk('fma', e + i, p + i, ('s', sL2E), mx, bc=(1, 2), neg=(2,))
                self.pk('fma', p + i, p + i, ('s', sL2E), mn2, bc=(1, 2), neg=(0,))
        for i in range(split if part == 2 else 0, 16):
            if mid and i == mid[0]: mid[1]()
            if part == 1 and i == split: return
            a(f'v_exp_f32 v{e+i}, v{e+i}')
            a(f'v_exp_f32 v{p+i}, v{p+i}')
        self.pk('add', s0, e, e + 2); self.pk('add', s1, p, p + 2)
        for i in range(4, 16, 2):
            self.pk('add', s0, s0, e + i); self.pk('add', s1, s1, p + i)
        a(f'v_add_f32 v{u0}, v{s0}, v{s0+1}')
        a(f'v_add_f32 v{u1}, v{s1}, v{s1+1}')
        a(f'v_add_f32 v{mx}, v{s0}, v{s0+1}')
        a(f'v_add_f32 v{mn}, v{s1}, v{s1+1}')
        a(f'v_permlane32_swap_b32 v{mx}, v{u0}')
        a(f'v_permlane32_swap_b32 v{mn}, v{u1}')
        self.pk('add', mx, mx, u0)
        a(f'v_rcp_f32 v{mx}, v{mx}')
        a(f'v_rcp_f32 v{mn}, v{mn}')
        for i in range(0, 16, 2):
            self.pk('mul', e + i, e + i, mx, bc=(1,))
            self.pk('mul', p + i, p + i, mn, bc=(1,))
        for i in range(8): a(f'v_cvt_pk_bf16_f32 v{out+i}, v{e+2*i}, v{e+2*i+1}')
        for i in range(8): a(f'v_cvt_pk_bf16_f32 v{out+8+i}, v{p+2*i}, v{p+2*i+1}')
    def ln_stats(self, xp, t, m_out, sd_out, fill=()):
        a = self.a
        fill = list(fill)
        def pad(n):
            for _ in range(n):
                if fill: a(fill.pop(0))
        s, u = t, t + 4
        a(f'v_mov_b32 v{u}, 0x3f803f80')
        for i in range(8):
            k = 2 * (i & 1)
            a(f'v_dot2_f32_bf16 v{s+k}, v{xp+i}, v{u}, ' + ('0' if i < 2 else f'v{s+k}'))
            a(f'v_dot2_f32_bf16 v{s+k+1}, v{xp+i}, v{xp+i}, ' + ('0' if i < 2 else f'v{s+k+1}'))
        pad(3)
        self.pk('add', s, s, s + 2)
        for ctl in ('quad_perm:[1,0,3,2]', 'quad_perm:[2,3,0,1]', 'row_half_mirror', 'row_ror:8'):
            pad(2 if ctl.endswith('3,2]') else 1)
            self.dpp('v_add_f32', s, s, s, ctl); self.dpp('v_add_f32', s + 1, s + 1, s + 1, ctl)
        pad(2)
        a(f'v_permlane16_swap_b32 v{s}, v{s+1}')
        a(f'v_add_f32 v{u}, v{s}, v{s+1}')
        a(f'v_add_f32 v{s}, v{s}, v{s+1}')
        pad(2)
        a(f'v_permlane32_swap_b32 v{s}, v{u}')
        a(f'v_add_f32 v{s}, v{s}, v{u}')
        a(f'v_mul_f32 v{u}, 0x3a800000, v{s}')
        a(f'v_mul_f32 v{s}, 0x3a800000, v{s}')
        pad(2)
        a(f'v_permlane16_swap_b32 v{s}, v{u}')
        a(f'v_fma_f32 v{sd_out}, -v{s}, v{s}, v{u}')
        a(f'v_cvt_pk_bf16_f32 v{m_out}, 0, v{s}')
        a(f'v_max_f32 v{sd_out}, 0, v{sd_out}')
        self.round1(sd_out)
        a(f'v_add_f32 v{sd_out}, 0x3727c5ac, v{sd_out}')
        self.round1(sd_out)
        a(f'v_sqrt_f32 v{sd_out}, v{sd_out}')
        pad(99)
        self.round1(sd_out)

    def build(self):
        self.front()
        self.gemm1()
        self.middle()
        self.gemm2()
        self.tail()
        self.finish()
        return self

    def vaa(self, dst, terms, sreg=None, const=0): self.va(dst, terms, sreg, const, vT + 5)

    def front(self):
        a, vm, lg, o, S, va = self.a, self.vm, self.lg, self.o, self.S, self.vaa
        E2 = range(0, 16, 2)
        a(f'{NAME}:')
        a(f's_load_dwordx16 {sr(KA, 16)}, s[0:1], 0')
        a(f's_load_dwordx8 {sr(KA + 16, 8)}, s[0:1], 64')
        a(f's_load_dwordx2 {sr(rWS, 2)}, s[0:1], 104')
        a('s_cmp_ge_u32 s2, 256')
        a('s_cbranch_scc1 L_END')
        if self.prof:
            a(f's_memrealtime {sr(sCMP, 2)}')
            a(f's_memtime {sr(sTM, 2)}')
            a('v_mov_b32 v255, 0')
            a('v_mov_b32 v254, 0')
            self.stnames.append('start'); self.nst = 1
        if o.get('exfil'): a(f's_memrealtime {sr(sTM, 2)}')
        a(f"""v_lshrrev_b32 v{vT}, 6, v0
        v_and_b32 v{vL}, 63, v0
        s_nop 0
        v_readfirstlane_b32 s{sWAVE}, v{vT}
        v_lshlrev_b32 v{vL16}, 4, v{vL}""")
        for srd, size in ((rX, 4194304), (rWM, 12582912), (rWS, WS_BYTES), (rW, 6291456), (rWO, 2097152), (rWG, 7340032), (rWU, 7340032), (rWD, 7340032), (rOUT, 4194304)):
            a(f's_mov_b32 s{srd+2}, {size}')
            a(f's_mov_b32 s{srd+3}, 0x20000')
        a(f"""s_mov_b32 s{sSPIN}, 0
        s_mov_b32 s{sMASK}, 0xffff0000
        s_mov_b32 s{sL2E}, 0x3fb8aa3b""")
        S(sX, 'wg & 7'); S(sJ, 'wg >> 3')
        S(sRow, 'wg*8 + w')
        S(sR1, '(x & 4)*2 + (j >> 2)'); S(sHP, '(x & 3)*4 + ((j & 3) ^ q)', q=o.get('hpx', 2))
        S(sCB, '(x & 1)*8 + (j & 7)')
        S(sRT, '(x >> 1)*4 + (j >> 3)')
        S(sINB, '(wg*64 + w)*64 + INB')
        xs_raw, wm, cv, st, acc, xs, mp, hp = AR, AR + 8, AR + 16, AR + 20, AR + 24, AR + 32, AR + 48, AR + 64
        vWM, vCo, vL8, vL32S, vGA, vXT = SP, SP + 1, SP + 2, SP + 3, SP + 4, vT + 6
        self.vWM, self.vL8, self.vL32S, self.vGA = vWM, vL8, vL32S, vGA
        S(T3, '((x >> 1)*256 + j*8 + w)*4096 + (x & 1)*1024')
        va(vT + 4, [(0, 5, 16), (5, 1, 2048)])
        S(T2, '(x*8 + w)*32')
        S(T0, 'T2*6144 + (j ^ 1)*128'); S(T1, 'T0 + 8*12288')
        S(T5, '(rt*8 + w)*32768 + cb*128' if not o.get('fakext') else '((x*16 + (j >> 1))*32768) + (j & 1)*1024 + w*128')
        S(T4, '(((x >> 1)*16 + cb)*16 + w)*512 + AINB')
        va(vWM, [(3, 3, 12288), (0, 3, 16)])
        va(vCo, [(3, 3, 2)], T2)
        va(vXT, [(0, 4, 2048), (4, 2, 16)])
        a('s_waitcnt lgkmcnt(0)')
        if self.prof:
            a(f'v_writelane_b32 v255, s{sTM}, 0')
            a(f'v_writelane_b32 v255, s{sCMP}, 63')
            a(f'v_writelane_b32 v254, s{sCMP}, 0')
        if o.get('exfil'):
            for k in range(3): a(f'v_writelane_b32 v255, s{sTM}, {k}')
        self.stamp('karg')
        a(f's_mov_b64 {sr(rWM, 2)}, {sr(KA + 20, 2)}')
        self.bl(wm, 4, vWM, rWM, T0, 0, 'nt', 'wm')
        self.bl(wm + 4, 4, vWM, rWM, T1, 0, 'nt', 'wm')
        a(f's_load_dword s{sTAG}, {sr(rWS, 2)}, {NONCE}')
        a(f'global_load_ushort v{cv}, v{vCo}, {sr(pC, 2)}'); vm.issue('wm')
        a(f'global_load_ushort v{cv+1}, v{vCo}, {sr(pC, 2)} offset:16'); vm.issue('wm')
        a(f's_mov_b64 {sr(rX, 2)}, {sr(KA, 2)}')
        a(f's_load_dword s{sPL}, {sr(rWS, 2)}, s{sINB} offset:0 glc')
        for q in range(2): a(f's_load_dword s{sPL + 1 + q}, {sr(rWS, 2)}, s{T4} offset:{q * 4096 + 508} glc')
        if o['tlb'] & 1:
            S(T6, '(w & 1)*2097152 + HF')
            a(f's_load_dword s{sPL + 5}, {sr(rWS, 2)}, s{T6} offset:0')
        if o['tsin']:
            S(T6, '(wg*8 + w)*512 + SINB')
            for q in range(2): a(f's_load_dword s{sPL + 3 + q}, {sr(rWS, 2)}, s{T6} offset:{q * 256 + 252} glc')
        if o.get('bar0', 1): a('s_barrier')
        self.bl(xs_raw, 4, vT + 4, rX, T3, 0, '', 'xs')
        self.bl(xs_raw + 4, 4, vT + 4, rX, T3, 512, '', 'xs')
        for srd, k in ((rW, 2), (rWO, 6), (rWG, 12), (rWU, 14), (rWD, 16), (rOUT, 22)):
            a(f's_mov_b64 {sr(srd, 2)}, {sr(KA + k, 2)}')
        a(f"""s_getpc_b64 {sr(sCMP, 2)}
        s_and_b32 s{sCMP}, s{sCMP}, 0xfffffc00""")
        S(T6, '(j*8 + w)*128')
        va(vT, [(5, 1, 32768)], T6)
        a(f'v_min_u32 v{vT}, CODE_KB, v{vT}')
        a(f'global_load_dword v{vT+7}, v{vT}, {sr(sCMP, 2)}'); vm.issue()
        S(sKH, 'w >> 2'); S(sRB, 'w & 3'); S(sW1K, 'w*1024')
        S(sFS, 'x*7 + (j >> 2)'); S(sKQ, 'j & 3')
        va(vT + 2, [(4, 1, 64)]); va(vWd, [(0, 3, 16)])
        a(f'v_xor_b32 v{vWd}, v{vWd}, v{vT+2}'); va(vT + 2, [(3, 3, 6144)]); a(f'v_add_u32 v{vWd}, v{vWd}, v{vT+2}')
        S(sU0, o.get('u0', 'j & 12')); S(sWB, 'w*49152 + hp*128')
        wq = self.wq = [(n, t) for n in range(6) for t in 'kvq']
        def w_next(cnt=1):
            for _ in range(cnt):
                n, t = wq.pop(0)
                if t == 'k':
                    if n < 4:
                        S(sY1, '((j >> 4)*q) ^ n', n=n, q=2 * o['xorw'])
                        S(sY0, '((y1 + u0) & 15)*UR + wb'); S(sY1, 'y1*8192 + w1k')
                    else:
                        S(sY0, '((u0 + n) & 15)*UR + wb', n=n); S(sY1, 'w1k + q', q=n * 8192)
                S(sU, 'y0 + q', q=dict(q=0, k=2048, v=4096)[t]); S('m0', 'y1 + q', q='kvq'.index(t) * REG)
                self.dma(vWd, rW, sU, 0, '', ('W', n))
        wb = list(o['wburst'])
        va(vL8, [(0, 6, 8)])
        va(vL32S, [(0, 6, 32)], None, MISC)
        S(T0, 'w*4 + MISC')
        va(vGA, [(4, 2, 64), (0, 3, 256), (3, 1, 32)], T0)
        self.stamp('issued')
        def xt_load():
            self.bl(XR, 4, vXT, rX, T5, 0, '', 'xt')
            self.bl(XR + 4, 4, vXT, rX, T5, 64, '', 'xt')
        if o['xtat'] == 0: xt_load()
        S(T0, '((((w >> 1)*16 + ((j ^ 1) & 15))*2 + (j >> 4))*8 + x)*512 + AINB')
        vm.wait('wm')
        self.stamp('wmok')
        for i in range(2):
            a(f'v_lshlrev_b32 v{cv+i}, 16, v{cv+i}')
            self.silu(cv + i, vT + i)
        for s in self.gemv_ops([wm, wm + 4], [cv, cv + 1], acc, vT, vT + 1, True): a(s)
        a(f"""s_waitcnt lgkmcnt(0)
        s_mul_i32 s{sTAG}, s{sTAG}, 0x9e3779b1
        s_add_u32 s{sTAG}, s{sTAG}, 0x7f4a7c15""")
        self.dw('ds_write_b32', vGA, acc, 1, L_A1 - MISC)
        self.barrier()
        self.r128(acc, vL32S, L_A1 - MISC); self.r128(acc + 4, vL32S, L_A1 - MISC + 16)
        if o['xtat'] == 1: xt_load()
        lg.wait_all()
        self.sum8(acc)
        a(f'v_mov_b32 v{acc+1}, s{sTAG}')
        a(f"""s_bitcmp1_b32 s{sWAVE}, 0
        s_cselect_b32 exec_lo, 0, -1
        s_cselect_b32 exec_hi, -1, 0""")
        self.bs(acc, 2, vL8, rWS, T0, 0, 'sc1')
        a('s_mov_b64 exec, -1')
        self.stamp('A1pub')
        w_next(wb[0])
        vm.wait('xs')
        self.stamp('xsok')
        u1 = vT + 4
        a(f'v_mov_b32 v{u1}, 0x3f803f80')
        for i in range(8):
            k = 2 * (i & 1)
            a(f'v_dot2_f32_bf16 v{vT+k}, v{xs_raw+i}, v{u1}, ' + ('0' if i < 2 else f'v{vT+k}'))
            a(f'v_dot2_f32_bf16 v{vT+k+1}, v{xs_raw+i}, v{xs_raw+i}, ' + ('0' if i < 2 else f'v{vT+k+1}'))
        S(T0, 'w*32 + L_ST'); va(u1, [(5, 1, 16), (4, 1, 8)], T0)
        self.pk('add', st, vT, vT + 2)
        va(vT + 1, [(0, 4, 16)], None, L_ST)
        va(vT, [(0, 4, 16), (4, 1, 4096)])
        for ctl in ('quad_perm:[1,0,3,2]', 'quad_perm:[2,3,0,1]', 'row_half_mirror', 'row_mirror'):
            self.dpp('v_add_f32', st, st, st, ctl); self.dpp('v_add_f32', st + 1, st + 1, st + 1, ctl)
        S(T0, '((x & 6) + ((j & 24) + w)*8)*4096 + (j & 7)*512 + (x & 1)*256 + SINB')
        a(f"""v_permlane16_swap_b32 v{st}, v{st+1}
        v_add_f32 v{st}, v{st}, v{st+1}
        v_mov_b32 v{st+1}, s{sTAG}""")
        self.dw('ds_write_b64', u1, st, 2)
        self.barrier()
        self.r128(st, vT + 1)
        lg.wait_all()
        a('s_mov_b32 exec_hi, 0')
        self.bs(st, 4, vT, rWS, T0, 0, 'sc1')
        a('s_mov_b32 exec_hi, -1')
        self.stamp('A2pub')
        if o['xtat'] == 2: xt_load()
        w_next(wb[1])
        mg = acc
        def pre_work():
            va(vT, [(0, 5, 16), (5, 1, 4096)])
            S(T1, 'w*4 + L_MP'); va(vT + 1, [(0, 6, 64)], T1)
            va(vT + 2, [(0, 2, 32), (5, 1, 128), (4, 1, 256), (2, 2, 512)], None, L_MP)
            S(T1, '(wg*8 + w)*512 + SINB')
            va(vT + 4, [(0, 5, 16)])
        def x_unpack():
            vm.wait('xt')
            for p, q in ((0, 2), (1, 3), (4, 6), (5, 7)): a(f'v_permlane32_swap_b32 v{XR+p}, v{XR+q}')
            for i in range(8): self.unpack(xs + 2 * i, xs + 2 * i + 1, XR + i)
        self.spoll([(q, 1, T4, q * 4096 + 508) for q in range(2)], range(2), work=pre_work)
        self.stamp('apre')
        if o.get('abar', 0): a('s_barrier')
        st_ld = lambda: self.bl(st, 4, vT + 4, rWS, T1, 0, 'sc1', 'st')
        def st_go():
            self.spoll([(q, 1, T1, q * 256 + 252) for q in range(2)], range(2), work=x_unpack)
            st_ld()
            if o['fbar']: a('s_barrier')
            w_next(wb[2])
        self.try_load(lambda: self.bl(mg, 4, vT, rWS, T4, 0, 'sc1'), [mg + 1, mg + 3], vT + 3, st_go)
        self.stamp('modok')
        a(f'ds_write2_b32 v{vT+1}, v{mg}, v{mg+2} offset0:0 offset1:8'); lg.issue()
        self.barrier()
        for i in (2, 3, 0, 1): self.r128(mp + 4 * i, vT + 2, (i >> 1) * 2048 + (i & 1) * 16, i >> 1)
        S(T0, 'hp*4096 + w*512')
        a(f'v_add_u32 v{vT}, s{T0}, v{vL16}')
        S('m0', 'w*512 + L_WPHI')
        a('s_mov_b32 exec_hi, 0')
        a(f'global_load_lds_dwordx4 v{vT}, {sr(pWPHI, 2)}'); vm.issue()
        a('s_mov_b32 exec_hi, -1')
        w_next(wb[3])
        S(T0, '((rt*16 + cb)*4 + (w >> 1))*4096 + (w & 1)*256 + HF')
        va(vT, [(0, 4, 16), (4, 1, 1024), (5, 1, 512)])
        lg.wait(1); self.sum8(mp + 8)
        self.round1(mp + 8)
        lg.wait(0); self.sum8(mp)
        a(f'v_add_f32 v{mp+8}, 1.0, v{mp+8}')
        self.round2(mp + 8, mp)
        vm.wait('st')
        self.tagcheck([st + 1, st + 3], vT + 3)
        a('s_cbranch_vccz L_STOK')
        q0 = list(vm.q)
        self.poll(st_ld, [st + 1, st + 3], vT + 3)
        vm.q = q0
        a('L_STOK:')
        self.stamp('statok')
        a(f"""v_permlane16_swap_b32 v{st}, v{st+2}
        v_add_f32 v{st+3}, v{st}, v{st+2}
        v_mul_f32 v{st+2}, 0x3a800000, v{st+3}
        v_mul_f32 v{st+3}, 0x3a800000, v{st+3}
        v_permlane16_swap_b32 v{st+2}, v{st+3}
        v_fma_f32 v{st}, -v{st+2}, v{st+2}, v{st+3}
        v_cvt_pk_bf16_f32 v{st+1}, 0, v{st+2}
        v_max_f32 v{st}, 0, v{st}""")
        self.round1(st)
        for i in E2[:4]: self.pk('add', xs + i, xs + i, st + 1, bc=(1,), neg=(1,))
        a(f'v_add_f32 v{st}, 0x3727c5ac, v{st}')
        self.round1(st)
        a(f'v_sqrt_f32 v{st}, v{st}')
        for i in E2[4:]: self.pk('add', xs + i, xs + i, st + 1, bc=(1,), neg=(1,))
        self.round1(st)
        a(f'v_rcp_f32 v{st}, v{st}')
        self.round_list([xs + i for i in range(16)])
        for i in E2: self.pk('mul', xs + i, xs + i, st, bc=(1,))
        self.round_list([xs + i for i in range(16)])
        for h in range(2):
            rg = range(8 * h, 8 * h + 8)
            for i in rg: self.dpp('v_mul_f32', xs + i, mp + 8, xs + i, f'row_newbcast:{i}')
            self.round_list([xs + i for i in rg])
            for i in rg: self.dpp('v_add_f32', xs + i, mp, xs + i, f'row_newbcast:{i}')
            for i in range(4 * h, 4 * h + 4): a(f'v_cvt_pk_bf16_f32 v{hp+i}, v{xs+2*i}, v{xs+2*i+1}')
            self.bs(hp + 4 * h, 4, vT, rWS, T0, 2048 * h, 'sc1', 'hs')
        self.stamp('hst')
        va(vB, [(2, 2, 128), (3, 1, 64), (4, 1, 32), (0, 2, 8), (5, 1, 512)])
        a(f'v_xor_b32 v{vB+1}, 64, v{vB}')
        for q in (1, 2):
            for h in range(2): a(f'v_add_u32 v{vB+2*q+h}, {q*REG}, v{vB+h}')
        va(vT + 1, [(0, 2, 8 * 4096), (2, 2, 4096)])
        S(T0, '((rt >> 3)*4 + (rt & 7)*32)*4096 + (cb >> 1)*64 + (cb & 1)*4 + INB')
        S(sAB, 'r1*262144 + rb*4096 + HF')
        a(f"""s_cmp_ge_u32 s{sJ}, {0 if o.get('noffn') else 28}
        s_cselect_b32 s{rWG+2}, 0, s{rWG+2}
        s_cselect_b32 s{rWU+2}, 0, s{rWU+2}
        s_cselect_b32 s{rWD+2}, 0, s{rWD+2}""")
        vm.wait('hs')
        a('s_barrier')
        self.push(vT + 1, T0, 16, vT + 2, 'L_PB')
        self.stamp('hpub')
        w_next(wb[4])
        vWo, vFG, vFD = vS0, vS1, SP + 5
        def setup():
            S(sWO, 'w*16384 + cb*128'); S(sY2, '((j & 1)*8 + (j >> 3)*2)*131072' if o['worot'] else '(j & 1)*1048576')
            S(sFG, '(kq*8 + w)*(32*7168) + fs*128'); S(sFD, '(fs*8 + w)*16384 + kq*512')
            S(sM2, '((x & 3)*8 + w)*(32*12288) + (j*2 + (x >> 2))*128 + 4096')
            S(T1, '(w & 1)*64')
            va(vT + 2, [(4, 1, 32)], T1); va(vWo, [(0, 3, 16)])
            a(f'v_xor_b32 v{vWo}, v{vWo}, v{vT+2}'); va(vT + 2, [(3, 3, 2048)]); a(f'v_add_u32 v{vWo}, v{vWo}, v{vT+2}')
            S(T1, '(w & 2)*32'); va(vT + 2, [(4, 1, 32)], T1); va(vFG, [(0, 3, 16)])
            a(f'v_xor_b32 v{vFG}, v{vFG}, v{vT+2}'); va(vT + 2, [(3, 3, 7168)]); a(f'v_add_u32 v{vFG}, v{vFG}, v{vT+2}')
            S(T1, '(w & 1)*128')
            va(vT + 2, [(5, 1, 64)], T1); va(vFD, [(0, 5, 16), (5, 1, 2048)])
            a(f'v_xor_b32 v{vFD}, v{vFD}, v{vT+2}')
            S(T3, 'u0*16384'); a(f'v_add_u32 v{vCo}, s{sAB}, v{vL16}')
            S(T1, 'rb*2048 + L_QH'); a(f'v_add_u32 v0, s{T1}, v{vL16}')
        S(T6, 'wg*4096 + INB'); S(T7, '(w & 3)*128 + T6'); S(T6, 'u0*32 + T6')
        a(f's_cmp_ge_u32 s{sWAVE}, 4\ns_cselect_b32 s{T6}, s{T7}, s{T6}')
        bpoll = self.bpoll = lambda work=None: self.spoll([(0, 2, T6, 0), (2, 2, T6, 64)], range(4), work)
        if o['lateB']:
            def bw():
                w_next(wb[5]); setup(); a(';TOUR')
                a(f's_cmp_ge_u32 s{sWAVE}, 4\ns_cbranch_scc1 L_HELP')
            bpoll(bw)
        else: bpoll(lambda: (w_next(wb[5]), setup(), a(';TOUR')))
        assert len(wq) % 3 == 0 and len(wq) <= (6 if o['xorw'] else 12)

    def gemm1(self):
        a, vm, lg, o, S, va = self.a, self.vm, self.lg, self.o, self.S, self.vaa
        LOOK = o['LOOK']; NB = LOOK + 1; assert NB <= 7
        vWo, vFG, vFD, vHo = vS0, vS1, SP + 5, 0
        self.vWo, self.vFG, self.vFD = vWo, vFG, vFD
        m2w, m2c = AV, AV + 24
        FL = self.FL = AK
        cur = self.cur = [0]
        TOK = [(0, 3, 16), (3, 2, 256), (5, 1, 128)]
        def cvt8(d, s_):
            for i in range(8): a(f'v_cvt_pk_bf16_f32 v{d+i}, v{s_+2*i}, v{s_+2*i+1}')
        self.cvt8 = cvt8
        fq = self.fq = [(m, i) for m in range(3) for i in range(4)]
        held = self.held = ([], [])
        def f_src(m, i, far=0):
            q = (i * 8 * 7168 + far * 4 * 32 * 7168, i * 4096 + far * 4 * 16384)[m == 2]
            S(sU, ('fg', 'fd')[m == 2] + ' + q', q=q & 0xffffffff)
            return (vFG, (rWG, rWU)[m]) if m < 2 else (vFD, rWD)
        def f_lds(m, i): return (L_GU + m * 32768 if m < 2 else L_DN) + i * 1024
        def f_ld(g, k, far, count=True):
            m, i = held[g][k]
            v, r = f_src(m, i, far * (1 - 2 * g))
            a(f'buffer_load_dwordx4 {vr(FL + 8*k + 4*far, 4)}, v{v}, {sr(r, 4)}, s{sU} offen nt')
            if count: vm.issue('ffn')
        sym = self.sym = []
        def ffn_reg(n=1):
            for _ in range(n):
                m, i = fq.pop(0)
                r0 = 8 * len(held[1]) + 4 * len(sym); assert r0 < 64 and (r0 < 32 or o['m2c'] >= 3)
                assert o['m2c'] != 4 or r0 < 32 or 'm2pub' in self.marks
                v, r = f_src(m, i)
                self.bl(FL + r0, 4, v, r, sU, 0, 'nt', 'ffr')
                sym.append((m, i, FL + r0))
        def ffn_dma(n=1):
            for _ in range(n):
                m, i = fq.pop(0)
                v, r = f_src(m, i)
                S('m0', 'w1k*4 + q', q=f_lds(m, i))
                self.dma(v, r, sU, 0, 'nt', 'ffn' if m < 2 or not o['dnsplit'] else 'fdn')
        self.ffn_reg, self.ffn_dma, self.f_lds = ffn_reg, ffn_dma, f_lds
        for _ in range(o['fA']): held[1].append(fq.pop(0))
        def m2_ld(i):
            if i == 0:
                S(sU, '((x & 3)*8 + w)*64'); self.va(m2c + 4, [(3, 3, 2)], sU, 0, m2c + 5)
                for k in range(4): a(f'global_load_ushort v{m2c+k}, v{m2c+4}, {sr(pC, 2)} offset:{16*k}'); vm.issue('m2')
            S(sU, 'm2 + q', q=i * 8 * 12288)
            self.bl(m2w + 4 * i, 4, self.vWM, rWM, sU, 0, 'nt', 'm2')
        wslot = lambda p: p
        def wo_dma(p, back=0):
            S(sU, '(y2 ^ q) + wo' + (' - 65536' if back else ''), q=p * 131072)
            S('m0', 'w1k + q', q=wslot(p) * 8192 - 4096 * back)
            self.dma(vWo, rWO, sU, 0, '', 'wo')
        self.wo_dma = wo_dma
        def poison(backs, t):
            a(f'v_mov_b32 v{t}, -1\nv_mov_b32 v{t+1}, -1\nv_mov_b32 v{t+2}, -1\nv_mov_b32 v{t+3}, -1')
            for back in backs:
                S(T6, '((rt*8 + w - q)*16 + cb)*256 + ST', q=4 * back); self.va(t + 4, [(0, 6, 4)])
                self.bs(t, 1, t + 4, rWS, T6, 0, 'sc1')
            S(T6, 'rt*16384 + cb*512 + XS'); self.va(t + 4, [(0, 5, 16), (5, 1, 8192)], None, 0, t + 5)
            a(f's_cmp_lg_u32 s{sWAVE}, 5\ns_cbranch_scc1 L_NOPO')
            self.bs(t, 4, t + 4, rWS, T6, 0, 'sc1', count=False)
            a('L_NOPO:')
        self.poison = poison
        def kv_prep():
            vPA, vPB, ones = AK + 28, AK + 29, AK + 24; assert o['fA'] <= 3
            self.va(vPB, [(0, 1, 8), (2, 2, 16), (4, 1, 64), (1, 1, 128), (5, 1, 256)], None, 0, vPA)
            S(T0, 'w*4096 + L_PHK'); a(f'v_add_u32 v{vPA}, s{T0}, v{vPB}')
            S(T0, 'kh*8192 + L_HV'); a(f'v_add_u32 v{vPB}, s{T0}, v{vPB}')
            for i in range(4): a(f'v_mov_b32 v{ones+i}, 0x3f803f80')
            S(T0, '((hp*8 + w)*32 + r1)*1024 + KVP'); S(T2, 'T0 + 16384')
            S(T3, '(hp*8 + w)*1024 + ZP'); S(T1, 'r1*64 + T3')
        seq = []
        for sg in range(36): seq += [(t, h, sg) for t in 'kqv' for h in range(2)]
        for sg in range(36, 40): seq += [('k', h, sg) for h in range(2)]
        for sg in range(36, 40): seq += [(t, h, sg) for t in 'qv' for h in range(2)]
        for h in range(2): seq += [('k', h, sg) for sg in range(40, 64)]
        for t in 'vq':
            for sg in range(40, 64): seq += [(t, h, sg) for h in ((1, 0) if (t, sg) == ('q', 63) else (0, 1))]
        bA, bH, bQ = o['bA'], o['bH'], 335
        assert bA >= 271
        bars = [24 * k - 1 for k in range(1, 10)] + [223, 239, 253, bA, bH, bQ]
        first, last = {}, {}
        for n, (t, h, sg) in enumerate(seq):
            first.setdefault(f'{t}{sg >> 2}', n); last[f'{t}{sg >> 2}'] = n; last[('A', sg)] = n
        if not o['lateB']: a(f's_cmp_ge_u32 s{sWAVE}, 4\ns_cbranch_scc1 L_HELP')
        a(f's_setprio {o["prio"]}')
        q_hok = list(vm.q)
        ACC = dict(k=AK, v=AV, q=AQ)
        nxt = [0]; late = []
        def a_load():
            while late: a(late.pop(0))
            sg = nxt[0]; nxt[0] += 1
            assert sg < 16 or cur[0] > bars[0]
            if o.get('noA') and sg >= 12: return
            self.bl(AR + 4 * (sg % 24), 4, SP + 1, rWS, T3, (sg % 4) * 1024, 'sc1', ('A', sg))
            if sg % 4 == 3: late.extend([f's_add_u32 s{T3}, s{T3}, 16384', f's_and_b32 s{T3}, s{T3}, 0x3ffff'])
        def b_read(n):
            t, h, sg = seq[n]
            s = sg & 3
            off = ((sg >> 2) % 6) * 8192 + (s >> 1) * 4096 + (s & 1) * 1024
            d = RING + 4 * (n % NB); v = vB + 2 * 'kvq'.index(t) + h
            self.tr(d, v, off, ('B', n)); self.tr(d + 2, v, off + 2048, ('B', n))
        self.nopk = True
        stk, stv = Stream(self), Stream(self)
        for h in range(2):
            for q in range(2):
                stk.cap(lambda: [a(f'v_cvt_pk_bf16_f32 v{AK+16*h+4*q+i}, v{AK+16*h+8*q+2*i}, v{AK+16*h+8*q+2*i+1}') for i in range(4)])
                stk.add(lambda h=h, q=q: self.dw('ds_write_b128', vHo, AK + 16 * h + 4 * q, 4, q * 1024, f'kh{h}'), o['wcost'], 1)
            stk.mark(f'kh{h}')
            if h == 0:
                stk.cap(lambda: a(f'v_subrev_u32 v{vHo}, {L_QH - L_HV}, v{vHo}'))
                stk.until(288 + o['kdel'])
        stk.until(bH + 1)
        stk.cap(lambda: (S(T1, 'rb*2048 + L_HV'), self.va(vHo, TOK, T1, 0, vT)))
        for h in range(2):
            for q in range(2):
                stv.cap(lambda: [a(f'v_cvt_pk_bf16_f32 v{AV+16*h+4*q+i}, v{AV+16*h+8*q+2*i}, v{AV+16*h+8*q+2*i+1}') for i in range(4)])
                stv.add(lambda h=h, q=q: self.dw('ds_write_b128', vHo, AV + 16 * h + 4 * q, 4, h * 8192 + q * 1024, 'vst'), o['wcost'], 1)
        stv.cap(kv_prep)
        if o['m2c'] == 0:
            stv.sleep(4)
            stv.add(lambda: lg.wait('vst'))
            for i in range(4): stv.add(lambda i=i: m2_ld(i), 0, 1); stv.sleep(o.get('fgap', 4))
        while nxt[0] < o['A00']: a_load()
        vm.wait(('W', 3 if o['xorw'] else 1))
        a('s_barrier')
        self.stamp('hok')
        if not nxt[0]: a_load()
        for n in range(LOOK): b_read(n)
        while nxt[0] < o['A0']: a_load()
        seen = set(); lpend = []; owe = [0]
        Apos = list(o['Apos']); assert o['A0'] + sum(Apos) == 64
        for n in range(384):
            t, h, sg = seq[n]; cur[0] = n
            if ('A', sg) not in seen:
                assert sg < nxt[0]
                vm.wait(('A', sg)); seen.add(('A', sg))
            lg.wait(('B', n))
            d = ACC[t] + 16 * h
            a(f'v_mfma_f32_32x32x16_bf16 {vr(d, 16)}, {vr(RING + 4*(n % NB), 4)}, {vr(AR + 4*(sg % 24), 4)}, ' + (vr(d, 16) if sg else '0'))
            if self.prof and o.get('ls'):
                l0, l1, lst = o['ls']
                if lpend and n >= lpend[0][0]:
                    _, r_, k_ = lpend.pop(0); a(f'v_writelane_b32 v255, s{r_}, {k_}')
                if l0 <= n < l1 and (n - l0) % lst == 0:
                    r_ = sPL + 2 * (self.nst % 4)
                    a.items.append(('raw', f'    s_memtime {sr(r_, 2)}')); lpend.append((n + 4, r_, self.nst)); self.stnames.append(f'n{n}'); self.nst += 1
            def a_try():
                p, r = divmod(n, 24)
                ao = o['aoff'] if p else 0; r -= ao
                if n < 240 and r >= 0 and (r + 1) * Apos[p] // (24 - ao) > r * Apos[p] // (24 - ao): owe[0] += 1
                if owe[0] and (nxt[0] < 24 or last[('A', nxt[0] - 24)] <= n): a_load(); owe[0] -= 1
                elif late: a(late.pop(0))
            if o['apos'] == 0: a_try()
            bud = [o['kbud'], 1]
            if n >= 264 + o['kdel']: stk.pull(bud, bud[0])
            bud = [o['vbud'], 1]
            if n > bQ + 2: stv.pull(bud, bud[0])
            if n + LOOK < 384: b_read(n + LOOK)
            if o['apos'] == 1: a_try()
            if n in bars:
                if n in (bA, bH):
                    assert f'kh{int(n == bH)}' in self.marks
                    lg.wait(f'kh{int(n == bH)}')
                    if 'prio2' in o and n == bA: a(f's_setprio {o["prio2"]}')
                if not (o.get('noB') and n < 200): a('s_barrier')
                if o.get('gst'): self.stamp(f'b{n}')
        assert not (stk.q or stv.q) and nxt[0] == 64
        self.stamp('gemm1')
        vq, wph = AR + 16, AR + 24
        S(T4, 'rb*2048 + L_QH'); a(f'v_add_u32 v{vHo}, s{T4}, v{vL16}')
        va(vT, [(2, 2, 64), (4, 1, 32), (0, 2, 8), (5, 1, 256)], None, L_WPHI)
        for s in range(2):
            for u in range(2): self.tr(wph + 4 * s + 2 * u, vT, s * 1024 + u * 512)
        cvt8(AR, AQ + 16)
        for q in range(2): self.dw('ds_write_b128', vHo, AR + 4 * q, 4, q * 1024)
        cvt8(vq, AQ)
        if o['m2c'] == 1:
            for i in range(4): m2_ld(i)
        a('s_setprio 0')
        a('s_branch L_JOIN')
        a('L_HELP:')
        vm.q = list(q_hok); lg.reset()
        vm.wait(('W', 3 if o['xorw'] else 1))
        a('s_barrier')
        vis = {}
        pace = [1]
        def w_sec(t, n):
            if o.get('noW'): return
            for back in (1, 0):
                S(sU, '((u0 + n) & 15)*UR + wb + q', n=n, q=(dict(q=0, k=2048, v=4096)[t] - back * 4 * 49152) & 0xffffffff)
                S('m0', 'w1k + q', q='kvq'.index(t) * REG + (n % 6) * 8192 - back * 4096)
                self.dma(vWd, rW, sU, 0, '', ('W', t, n))
                if o['wpace'] and pace[0]: a(f's_waitcnt vmcnt({o["wpace"]})')
        for n, t in self.wq: w_sec(t, n)
        if o['lateB']:
            lg.wait_all(); self.bpoll()
        ka, wp2, pa, pb, ee, vPW = AR, AR + 16, AR + 32, AR + 48, AR + 64, AR + 80
        va(vT, [(2, 2, 64), (4, 1, 32), (0, 2, 8), (5, 1, 256)], None, L_WPHI)
        for hs in range(4):
            for u in range(2): self.tr(wp2 + 4 * hs + 2 * u, vT, hs * 1024 + u * 512)
        S(T1, 'rb*1024 + L_PHK'); va(vPW, TOK, T1)
        def touch(boxes):
            a('s_waitcnt lgkmcnt(0)')
            for q, b in enumerate(boxes):
                a(f's_load_dword s{sPL + 2*q}, {sr(rWS, 2)}, s{sINB} offset:{b * 512} glc')
                a(f's_load_dword s{sPL + 2*q + 1}, {sr(rWS, 2)}, s{sINB} offset:{b * 512 - 256} glc')
        wsched = {int(k): v.split() for k, v in o['wsched'].items()}
        for k in range(1, 5): wsched[k] = [f'{t}{k + 5}' for t in 'kqv'] + wsched.get(k, [])
        need = {}
        for u in first:
            k = len([b for b in bars if b < first[u] - LOOK])
            if k: need.setdefault(k, []).append(u)
        done = {f'{t}{n}' for n in range(6) for t in 'kvq'}
        def h_bar(k):
            if k < 5: vm.wait(('W', k + 1))
            for u in need.get(k, []):
                assert u in done, (u, k)
                vm.wait(('W', u[0], int(u[1:])))
            if not (o.get('noB') and k < 9): a('s_barrier')
            for u in wsched.get(k, []):
                assert last[f'{u[0]}{int(u[1:]) - 6}'] <= bars[k - 1], (u, k)
                w_sec(u[0], int(u[1:])); done.add(u)
        hm, hc, ha, ht = AV, AQ, AQ + 8, AQ + 16
        if o.get('fP'): S(T4, o['fP'])
        if o['m2c'] == 4:
            hc, ha, ht = RING + 8, AR + 44, RING + 24
            def m2h(i):
                S(sU, 'T6 + q', q=i * 8 * 12288)
                self.bl(hm + 4 * i, 4, self.vWM, rWM, sU, 0, 'nt')
        if o['m2c'] >= 3:
            S(T5, o['m2k3'])
            S(sU, '((x & 3)*4 + w - 4)*128'); va(ht, [(3, 3, 2)], sU)
            for i in range(8): a(f'global_load_ushort v{hc+i}, v{ht}, {sr(pC, 2)} offset:{16*i}'); vm.issue('c2')
            S(T6, '((x & 3)*4 + w - 4)*(64*12288) + (j*2 + (x >> 2))*128 + 4096')
        for k in range(1, 14):
            if k == 13: lg.wait_all()
            if o['m2c'] == 3 and k == o['m2e'] + 1: lg.wait_all()
            h_bar(k)
            if o['m2c'] == 4 and k == o['m2k0']:
                for i in range(o['m2n0']): m2h(i)
            if o['m2c'] == 4 and k == 3:
                vm.wait('c2')
                for i in range(8):
                    a(f'v_lshlrev_b32 v{hc+i}, 16, v{hc+i}')
                    self.silu(hc + i, ht + (i & 1))
            if o['m2c'] == 3:
                nb = o['m2nb']
                for b in range(nb):
                    if k <= o['m2g'] - o.get('m2lag', 2) and k - b * o['m2db'] >= 1:
                        a(f's_cmp_lg_u32 s{T5}, {k - b * o["m2db"]}\ns_cbranch_scc1 L_NM2_{k}_{b}')
                        for i in range(b * 8 // nb, (b + 1) * 8 // nb):
                            S(sU, 'T6 + q', q=i * 8 * 12288)
                            a(f'buffer_load_dwordx4 {vr(hm + 4*i, 4)}, v{self.vWM}, {sr(rWM, 4)}, s{sU} offen nt')
                        a(f'L_NM2_{k}_{b}:')
                if k == 3:
                    vm.wait('c2')
                    for i in range(8):
                        a(f'v_lshlrev_b32 v{hc+i}, 16, v{hc+i}')
                        self.silu(hc + i, ht + (i & 1))
                g0 = o['m2g']
                ke = o['m2e']
                if g0 <= k <= ke:
                    if k == g0:
                        vm.wait(('W', 'k', k + 4 if o.get('m2lag', 2) == 2 else k + 5))
                        mops = self.gemv_ops([hm + 4 * i for i in range(8)], [hc + i for i in range(8)], ha, ht, ht + 1, False)
                    if o.get('gprio'): a('s_setprio 3')
                    for _ in range(len(mops) if k == ke else 144 // (ke + 1 - g0)): a(mops.pop(0))
                    if o.get('gprio'): a('s_setprio 0')
                    if k == ke: self.dw('ds_write_b32', self.vGA, ha, 1, L_M2 - MISC)
                if k == ke + 1:
                    a(f"""s_cmp_lg_u32 s{sWAVE}, 4
                    s_cbranch_scc1 L_M2F
                    ds_read_b128 {vr(ha, 4)}, v{self.vL32S} offset:{L_M2 - MISC + 16}""")
                    S(T0, '((j*2 + (x >> 2))*4 + (x & 3))*512 + MODP2')
                    a(f"""s_waitcnt lgkmcnt(0)
                    v_add_f32 v{ha}, v{ha}, v{ha+1}
                    v_add_f32 v{ha+2}, v{ha+2}, v{ha+3}
                    v_mov_b32 v{ha+1}, s{sTAG}
                    v_add_f32 v{ha}, v{ha}, v{ha+2}""")
                    self.bs(ha, 2, self.vL8, rWS, T0, 0, 'sc1', count=False)
                    a('L_M2F:')
            if o.get('fP') and k <= 8:
                a(f's_cmp_lg_u32 s{T4}, {k}\ns_cbranch_scc1 L_NFP_{k}')
                for i in range(o['fA']):
                    for far in range(2): f_ld(1, i, far, False)
                a(f'L_NFP_{k}:')
            if k == 2 and o['poisat'] == 0: poison((0, 1), AR + 88); S(T6, '((x & 3)*4 + w - 4)*(64*12288) + (j*2 + (x >> 2))*128 + 4096')
            if k in (1, 3, 5) and o.get('touch', 1): touch({1: (1, 7), 3: (2, 3), 5: (5, 6)}[k])
            if k == o['tlbk'] and o['tlb'] & 2:
                a(f's_cmp_lg_u32 s{sWAVE}, 7\ns_cbranch_scc1 L_NTLB\ns_waitcnt lgkmcnt(0)')
                S(T0, '(j & 15)*2097152'); S(T1, '(j & 3)*2097152'); S(T2, '(j & 1)*2097152')
                a(f's_load_dword s{sPL}, {sr(rWS, 2)}, s{T0} offset:0')
                for q, r in enumerate((rWG, rWU, rWD)): a(f's_load_dword s{sPL + 1 + q}, {sr(r, 2)}, s{T1} offset:0')
                a(f's_load_dword s{sPL + 4}, {sr(rOUT, 2)}, s{T2} offset:0')
                a(f's_load_dword s{sPL + 5}, {sr(rWO, 2)}, 0')
                a('L_NTLB:')
            if k == 4 and o.get('tm2'):
                S(T0, '((j*2 + (x >> 2))*4 + (x & 3))*512 + (w - 4)*128 + MODP2')
                a('s_waitcnt lgkmcnt(0)')
                for q in range(2): a(f's_load_dword s{sPL + q}, {sr(rWS, 2)}, s{T0} offset:{q * 64} glc')
            if k == 6 and o['tz']:
                S(T0, '(hp*8 + w - 4)*1024 + r1*64 + ZP'); S(T1, '(rt*16 + cb)*64 + UP')
                a('s_waitcnt lgkmcnt(0)')
                for q in range(2): a(f's_load_dword s{sPL + q}, {sr(rWS, 2)}, s{T0} offset:{q * 4096} glc')
                a(f's_load_dword s{sPL + 2}, {sr(rWS, 2)}, s{T1} offset:0 glc')
            if k == 12: kv_prep()
            if k == 8 and o.get('touch', 1):
                S(T0, 'fs*8192 + (w - 4)*256 + HGR')
                a('s_waitcnt lgkmcnt(0)')
                for q in range(4): a(f's_load_dword s{sPL + q}, {sr(rWS, 2)}, s{T0} offset:{q * 2048 + 1024 + 252} glc')
        pace[0] = 0
        def logits(h, pp):
            if o.get('hprio'): a(f's_setprio {o["hprio"]}')
            for q in range(2): self.r128(ka + 4 * q, vHo, q * 1024, ('kh', q))
            if h == 0: a(f'v_subrev_u32 v{vHo}, {L_QH - L_HV}, v{vHo}')
            for q in range(2):
                lg.wait(('kh', q))
                a(f'v_mfma_f32_32x32x16_bf16 {vr(pp, 16)}, {vr(wp2 + 8*h + 4*q, 4)}, {vr(ka + 4*q, 4)}, ' + (vr(pp, 16) if q else '0'))
            if o.get('hprio') and not o.get('hlong'): a('s_setprio 0')
        logits(0, pa)
        self.stamp('klog')
        hs = Stream(self)
        for h, pp in ((0, pa), (1, pb)):
            hs.cap(lambda: self.softmax_pm(pp, ee, ee, vT))
            k = max(i for i, it in enumerate(hs.q) if it[0] == 4.75) - 8
            tailq = hs.q[k + 1:]; hs.q = hs.q[:k + 1]
            wr = lambda fb, h=h: (0, 0, lambda: self.dw('ds_write_b128', vPW, ee + 4 * fb, 4, h * 16384 + fb * 4096, ('phk', h)))
            hs.q += [wr(0)] + tailq[:4] + [wr(1), wr(2)] + tailq[4:] + [wr(3)]
            if h == 0:
                n1 = len(hs.q)
                hs.add(lambda: None)
        hs.q.insert(n1 + 34, (0, 0, lambda: lg.wait(('phk', 0))))
        ex = {}
        def put(i, fn):
            while i in ex: i += 1
            ex[i] = fn
        nq = int(n1 * o['hq'])
        put(nq, lambda: h_bar(15))
        nh = int(n1 * o['hh'])
        put(nh, lambda: (h_bar(14), logits(1, pb)))
        g1, g2 = o['hgap']
        if o.get('hpf'):
            put(int(n1 * o['hpf'][0]), lambda: a('s_setprio 3')); put(int(n1 * o['hpf'][1]), lambda: a('s_setprio 0'))
        ff = [(lambda k=k, far=far: f_ld(1, k, far)) for k in range(o['fA']) for far in range(2) if not o.get('fP')]
        pre = [(lambda k=k: m2_ld(k)) for k in range(4)] if o['m2c'] < 2 else []
        if o['m2c'] == 4:
            for i in range(o['m2n0'], 8): put(3 + o['m2gap'] * (i - o['m2n0']), lambda i=i: m2h(i))
            self.m2h = (hm, hc, ha, ht)
        npre = o['fpre'] - len(pre)
        pre += ff[:npre]; ff = ff[npre:]
        for k, fn in enumerate(pre): put(nh + 5 + g1 * k, fn)
        wl = self.wo_left = [6, 7, 8, 9, 10, 11] + [12, 13, 14, 15] + [0, 1, 2, 3, 4, 5]
        post = []
        for k in range(o['woA']): post += [lambda: wo_dma(wl[0], 1), lambda: wo_dma(wl.pop(0))]
        post = post[:8] + ff + post[8:] if o.get('wofirst', 1) else ff + post
        for k, fn in enumerate(post): put(nq + 5 + g2 * k, fn)
        for i, (v_, l_, fn) in enumerate(hs.q):
            if i in ex: ex.pop(i)()
            fn()
        for i in sorted(ex): ex[i]()
        self.nopk = False
        S(T4, 'rb*2048 + L_QH'); a(f'v_add_u32 v{vHo}, s{T4}, v{vL16}')
        assert wph == wp2 + 8
        if o.get('hprio'): a('s_setprio 0')
        self.stamp('ksm')
        a('L_JOIN:')
        vm.q = ['m2'] * (8 if o['m2c'] < 2 else 0); lg.q = [None]
        self.m2_ld = m2_ld
        self.vHo = vHo

    def middle(self):
        a, vm, lg, o, S, va = self.a, self.vm, self.lg, self.o, self.S, self.vaa
        vL8, vL32S, vGA, vHo, ffn_reg = self.vL8, self.vL32S, self.vGA, self.vHo, self.ffn_reg
        pp, ee, ph, vq, wph = AQ, AQ + 16, AR, AR + 16, AR + 24
        fA, fB, kvd, zd, ones = AR + 32, AR + 48, AR + 80, AR + 88, AK + 24
        kp, zz, zf, kf, k2 = AR + 32, AR + 40, AR + 44, AR + 60, AR + 76
        m2w, m2a, m2c, m2t = AV, AV + 16, AV + 24, AV + 28
        vPA, vPB, vPC, vKP, vXF = AK + 28, AK + 29, RING + 18, RING + 19, RING + 20
        md, wr1 = RING, RING + 4
        self.md, self.wr1 = md, wr1
        wl = self.wo_left
        wo1 = lambda: self.wo_dma(wl.pop(0))
        fw = o['fwin']
        self.barrier()
        self.stamp('phik')
        def kvm(u):
            lg.wait(('kv', u))
            for db in range(2):
                a(f'v_mfma_f32_16x16x32_bf16 {vr(kvd + 4*db, 4)}, {vr(fA + 4*u, 4)}, {vr(fB + 8*u + 4*db, 4)}, ' + ('0' if u == 0 else vr(kvd + 4*db, 4)))
            a(f'v_mfma_f32_16x16x32_bf16 {vr(zd, 4)}, {vr(fA + 4*u, 4)}, {vr(ones, 4)}, ' + ('0' if u == 0 else vr(zd, 4)))
        for ts in range(4):
            self.tr(fA + 4 * ts, vPA, ts * 1024, ('kv', ts)); self.tr(fA + 4 * ts + 2, vPA, ts * 1024 + 512, ('kv', ts))
            for db in range(2):
                for rd in range(2): self.tr(fB + 8 * ts + 4 * db + 2 * rd, vPB, ts * 2048 + db * 1024 + rd * 512, ('kv', ts))
            if ts >= 2: kvm(ts - 2)
        kvm(2); kvm(3)
        a(f"""s_cmp_lt_u32 s{sWAVE}, 4
        s_cbranch_scc1 L_NOQX
        ds_read_b128 {vr(vq, 4)}, v{vHo}
        ds_read_b128 {vr(vq + 4, 4)}, v{vHo} offset:1024
        L_NOQX:""")
        self.bs(kvd, 4, vL16, rWS, T0, 0, 'sc1', 'kvs')
        self.bs(kvd + 4, 4, vL16, rWS, T2, 0, 'sc1', 'kvs')
        a('s_mov_b32 exec_lo, 0x00010001')
        a('s_mov_b32 exec_hi, 0x00010001')
        self.bs(zd, 4, vL, rWS, T1, 0, 'sc1', 'kvs')
        a('s_mov_b64 exec, -1')
        lg.wait_all()
        a(f'v_mfma_f32_32x32x16_bf16 {vr(pp, 16)}, {vr(wph, 4)}, {vr(vq, 4)}, 0')
        a(f'v_mfma_f32_32x32x16_bf16 {vr(pp, 16)}, {vr(wph + 4, 4)}, {vr(vq + 4, 4)}, {vr(pp, 16)}')
        self.stamp('kvst')
        if o['wo0']:
            a('s_barrier')
            for _ in range(o['wo0']): assert wl[0] >= 6; wo1()
        if o['poisat'] == 1: self.poison((0,), AR + 84)
        if o['m2c'] == 2:
            for i in range(4): self.m2_ld(i)
        va(vPC, [(0, 3, 32 * 4096), (3, 1, 4 * 4096)])
        S(T4, '(wg & 0x1b)*4096 + (r1 >> 1)*64 + (r1 & 1)*4 + INB + 512')
        va(vKP, [(3, 3, 1024), (0, 3, 16)])
        va(vXF, [(0, 3, 16), (5, 1, 8)])
        qm, qs = o['qmid'], o['qsplit']
        self.softmax_pm(pp, ee, ph, vT, part=1, split=qm)
        vm.wait('kvs')
        a('s_barrier')
        self.push(vPC, T4, 16, vPB, 'L_PC')
        self.stamp('kvpub')
        if o['poisat'] == 2: self.poison((0,), AR + 84)
        self.weave(lambda: [a(f'v_exp_f32 v{r+i}, v{r+i}') for i in range(qm, qs) for r in (ee, pp)], [wo1] * o['wowin'][0])
        S(T0, '(hp*16 + r1)*16384 + w*128 + KVP'); S(T1, 'T0 + 8192')
        S(T2, '(hp*16 + r1)*1024 + w*128 + KIN'); S(T4, 'T4 + 6*512')
        self.inbox(1, 2, work=lambda: (self.weave(lambda: self.softmax_pm(pp, ee, ph, vT, part=2, split=qs), [wo1] * o['wowin'][1]), self.stamp('cw')))
        a('s_barrier')
        self.stamp('kvok')
        self.bl(kp, 4, vKP, rWS, T0, 0, 'sc1', 'kp')
        self.bl(kp + 4, 4, vKP, rWS, T1, 0, 'sc1', 'kp')
        self.bl(zz, 4, vL16, rWS, T3, 0, 'sc1', 'z')
        if fw[0]: a('s_barrier')
        ffn_reg(fw[0])
        S(T1, 'w*32 + L_ZF'); va(vT + 2, [(0, 2, 8), (5, 1, 4)], T1)
        S(T1, 'w*1024 + L_KVF'); va(vT + 1, [(0, 4, 16), (5, 1, 512), (4, 1, 8)], T1)
        S(T1, 'kh*128 + L_ZF'); va(vT + 3, [(5, 1, 16)], T1)
        S(T1, 'kh*4096 + L_KVF'); a(f'v_add_u32 v{vPA}, s{T1}, v{vL16}')
        M2 = o['m2c'] < 3
        m2ops = []; k = o.get('m2k', 24)
        if M2:
            vm.wait('m2')
            for i in range(4):
                a(f'v_lshlrev_b32 v{m2c+i}, 16, v{m2c+i}')
                self.silu(m2c + i, m2t + (i & 1))
            m2ops = self.gemv_ops([m2w + 4 * i for i in range(4)], [m2c + i for i in range(4)], m2a, m2t, m2t + 1, True)
        for s_ in m2ops[:k]: a(s_)
        if o['m2c'] == 4:
            hm, hc, ha, ht = self.m2h
            hops = self.gemv_ops([hm + 4 * i for i in range(8)], [hc + i for i in range(8)], ha, ht, ht + 1, True)
            a(f's_cmp_lt_u32 s{sWAVE}, 4\ns_cbranch_scc1 L_HG1')
            for s_ in hops: a(s_)
            a(f'ds_write_b32 v{vGA}, v{ha} offset:{L_M2 - MISC}\nL_HG1:')
        def red4(r, ctls):
            for i in range(2): a(f'v_permlane32_swap_b32 v{r+i}, v{r+2+i}')
            self.pk('add', r, r, r + 2)
            for ctl in ctls:
                for i in range(2): self.dpp('v_add_f32', r + i, r + i, r + i, ctl)
            for i in range(2): a(f'v_mov_b32 v{r+2+i}, v{r+i}')
            for i in range(2): a(f'v_permlane16_swap_b32 v{r+i}, v{r+2+i}')
            self.pk('add', r, r, r + 2)
            a(f'v_cvt_pk_bf16_f32 v{r}, v{r}, v{r+1}')
        vm.wait('kp')
        self.pk('add', kp, kp, kp + 4); self.pk('add', kp + 2, kp + 2, kp + 6)
        red4(kp, ['row_ror:8'])
        a(f"""v_mov_b32 v{kp+1}, s{sTAG}
        s_mov_b32 exec_lo, 0xff
        s_mov_b32 exec_hi, 0xff""")
        self.bs(kp, 2, vXF, rWS, T2, 0, 'sc1')
        a('s_mov_b64 exec, -1')
        if o['C2dir'] == 0:
            self.barrier()
            self.push(vPC, T4, 16, vPB, 'L_PC2')
        if o['m2c'] == 4:
            a(f"""s_cmp_lg_u32 s{sWAVE}, 3
            s_cbranch_scc1 L_M2F
            ds_read_b128 {vr(ha, 4)}, v{vL32S} offset:{L_M2 - MISC + 16}""")
            S(T5, '((j*2 + (x >> 2))*4 + (x & 3))*512 + MODP2')
            a(f"""s_waitcnt lgkmcnt(0)
            v_add_f32 v{ha}, v{ha}, v{ha+1}
            v_add_f32 v{ha+2}, v{ha+2}, v{ha+3}
            v_mov_b32 v{ha+1}, s{sTAG}
            v_add_f32 v{ha}, v{ha}, v{ha+2}""")
            self.bs(ha, 2, vL8, rWS, T5, 0, 'sc1', count=False)
            a('L_M2F:')
            self.marks.add('m2pub')
        self.stamp('c2pub')
        num, den = pp, ee
        vm.wait('z')
        self.weave(lambda: (red4(zz, ['row_ror:4', 'row_ror:8']), [a(s_) for s_ in m2ops[k:]]), [wo1] * o['wowin'][2])
        self.dw('ds_write_b32', vT + 2, zz, 1)
        if M2: self.dw('ds_write_b32', vGA, m2a, 1, L_M2 - MISC)
        self.barrier()
        for fb in range(4): self.r128(zf + 4 * fb, vT + 3, fb * 32)
        if M2: self.r128(m2a, vL32S, L_M2 - MISC); self.r128(m2a + 4, vL32S, L_M2 - MISC + 16)
        S(T5, '((j*2 + (x >> 2))*4 + (x & 3))*512 + MODP2')
        lg.wait_all()
        S(T0, '(hp*8 + w)*2048 + KIN')
        def sel_prep():
            vGr, vXs = RING + 6, RING + 24; assert o['AD2'] <= 8
            S(T6, '(w >> 2)*32768 + (w & 3)*32 + L_GU')
            va(vGr, [(4, 2, 8192), (2, 2, 128), (3, 2, 32), (0, 2, 8)]); a(f'v_xor_b32 v{vGr}, s{T6}, v{vGr}')
            S(T6, 'kq*2048 + XS'); va(vXs, [(0, 3, 16), (4, 2, 512)], T6)
            va(vXs + 1, [(0, 4, 512)], None, XS + 256)
        def den_work():
            for fb in range(4):
                a(f'v_mfma_f32_32x32x16_bf16 {vr(den, 16)}, {vr(zf + 4*fb, 4)}, {vr(ph + 4*fb, 4)}, ' + ('0' if fb == 0 else vr(den, 16)))
            if M2:
                a(f's_cmp_lg_u32 s{sWAVE}, 3\ns_cbranch_scc1 L_M2F')
                self.nopk = True; self.sum8(m2a); self.nopk = False
                a(f'v_mov_b32 v{m2a+1}, s{sTAG}')
                self.bs(m2a, 2, vL8, rWS, T5, 0, 'sc1', count=False)
                a('L_M2F:')
            self.round1(den)
            a(f'v_add_f32 v{den}, 0x358637bd, v{den}')
            self.round1(den)
            a(f'v_rcp_f32 v{den}, v{den}')
            sel_prep()
            self.stamp('c2w')
        ldk2 = lambda: [self.bl(k2 + 4 * q, 4, vL16, rWS, T0, q * 1024, 'sc1') for q in range(2)]
        if o['C2dir'] == 0:
            self.inbox(7, 2, work=den_work)
            self.stamp('c2h')
        if o['C2dir'] == 2: den_work()
        self.try_load(ldk2, [k2 + 1, k2 + 3, k2 + 5, k2 + 7], vT, lambda: (ffn_reg(fw[1]), den_work() if o['C2dir'] == 1 else None))
        for db in range(2):
            a(f'ds_write2_b32 v{vT+1}, v{k2+4*db}, v{k2+4*db+2} offset0:{64*db} offset1:{64*db+1}'); lg.issue()
        self.barrier()
        self.stamp('kvred')
        for fb in range(4): self.r128(kf + 4 * fb, vPA, fb * 1024, ('kf', fb))
        S(T0, '((r1*8 + rb*2)*32 + hp*2 + kh)*1024 + OF')
        va(vKP, [(0, 4, 16), (4, 1, 32768), (5, 1, 256)])
        for fb in range(4):
            lg.wait(('kf', fb))
            a(f'v_mfma_f32_32x32x16_bf16 {vr(num, 16)}, {vr(kf + 4*fb, 4)}, {vr(ph + 4*fb, 4)}, ' + ('0' if fb == 0 else vr(num, 16)))
        S(T5, '((w >> 1)*16 + cb)*2048 + (w & 1)*1024 + MODP2')
        self.ld_md = lambda: self.bl(md, 4, vL16, rWS, T5, 0, 'sc1', 'md')
        S(T6, 'cb*128'); va(vPA, [(0, 2, 2), (5, 1, 8), (4, 1, 16), (2, 2, 32)], T6)
        a(f'global_load_ushort v{wr1}, v{vPA}, {sr(pWR, 2)}'); vm.issue('md')
        if not o['mdlate']: self.ld_md()
        for h in range(2):
            self.round_list([num + i for i in range(8 * h, 8 * h + 8)])
            for i in range(8 * h, 8 * h + 8, 2): self.pk('mul', num + i, num + i, den, bc=(1,))
            for i in range(4 * h, 4 * h + 4): a(f'v_cvt_pk_bf16_f32 v{vq+i}, v{num+2*i}, v{num+2*i+1}')
            self.bs(vq + 4 * h, 4, vKP, rWS, T0, 512 * h, 'sc1', 'os')
        self.stamp('ost')
        if o['mdlate']: self.ld_md()
        if o['poisat'] == 3: self.poison((0,), AR + 84)
        while wl: wo1()

    def gemm2(self):
        a, vm, lg, o, S, va = self.a, self.vm, self.lg, self.o, self.S, self.vaa
        md, wr1, fw = self.md, self.wr1, o['fwin']
        AD2 = o['AD2']
        R = self.R = dict(acc=AQ, gaf=AQ + 16, cbf=AR + 16, sbf=AV, gbf=AV + 16, xf=AR, fr=AR + 32, Br=AR + 40, Ar=AR + 72, vB=RING + 8, sv=RING, up=RING + 12)
        acc, gaf, cbf, sbf, gbf, xf, fr, Br, Ar, vB, sv, up = [R[k] for k in 'acc gaf cbf sbf gbf xf fr Br Ar vB sv up'.split()]
        ARS = [Ar + 4 * i for i in range(6)] + [RING + 16, RING + 20, RING + 24]; assert AD2 <= 9
        va(vB, [(2, 2, 128), (4, 2, 1024), (0, 1, 16), (1, 1, 8), (3, 2, 32)])
        S(T4, '(w ^ (%s))*4096' % o['g2r']); S(T1, '(T4*4) ^ (y2 >> 4)')
        a(f'v_add_u32 v{vB}, s{T1}, v{vB}')
        for ct in range(1, 4): a(f'v_xor_b32 v{vB+ct}, {32*ct}, v{vB}')
        va(vT + 1, [(0, 3, 8 * 4096), (3, 1, 4096)])
        S(T2, '((r1 >> 2)*2 + (r1 & 3)*64)*4096 + (hp >> 1)*64 + (hp & 1)*4 + INB + 1024')
        for i in range(8): self.unpack(xf + 2 * i, xf + 2 * i + 1, XR + i)
        S(T6, '(rt*8 + w)*32768 + OF')
        def md_stage():
            vm.wait('md')
            self.tagcheck([md + 1, md + 3], vT + 2)
            a('s_cbranch_vccz L_MGOK')
            q0 = list(vm.q)
            self.poll(self.ld_md, [md + 1, md + 3], vT + 2)
            vm.q = q0
            a('L_MGOK:')
            a(f'ds_write2_b32 v{vT}, v{md}, v{md+2} offset0:0 offset1:4'); lg.issue()
        S(T1, '(w >> 1)*1024 + (w & 1)*8 + L_MD'); va(vT, [(0, 5, 32), (5, 1, 4)], T1)
        va(vT + 3, [(0, 2, 16), (5, 1, 64), (4, 1, 128), (2, 2, 256)], None, L_MD)
        if not o['mdlate']: md_stage()
        vm.wait('os'); vm.wait('wo')
        self.barrier()
        self.push(vT + 1, T2, 16, vT + 2, 'L_PD')
        self.stamp('opub')
        if o['mdlate']: md_stage(); self.barrier()
        S(T5, 'wg*4096 + (T4 >> 6) + INB + 1024')
        self.ffn_reg(fw[2])
        t4 = Br
        for q in range(4): self.r128(t4 + 4 * q, vT + 3, q * 1024)
        va(vT + 4, [(0, 2, 4), (5, 1, 16), (4, 1, 32), (2, 2, 64)], None, L_GB)
        S(T0, '(rt*16 + cb)*64 + UP')
        lg.wait_all()
        def d_work():
            for q in range(4):
                self.pk('add', t4 + 4 * q, t4 + 4 * q, t4 + 4 * q + 2)
                a(f'v_add_f32 v{sv+q}, v{t4+4*q}, v{t4+4*q+1}')
            self.round_list([sv + q for q in range(4)])
            a(f'v_add_f32 v{sv+2}, 1.0, v{sv+2}')
            a(f'v_lshlrev_b32 v{wr1}, 16, v{wr1}')
            self.round1(sv + 2)
            a(f'ds_write_b32 v{vT+4}, v{sv+3}')
            uu, hi, lo, t = t4, t4 + 1, t4 + 2, t4 + 4
            a(f'v_mul_f32 v{uu}, v{sv+2}, v{wr1}')
            a(f'v_cvt_pk_bf16_f32 v{hi}, 0, v{uu}')
            a(f'v_sub_f32 v{lo}, v{uu}, v{hi}')
            self.allreduce(uu, t + 3)
            for k, r in enumerate((hi, lo, wr1)): a(f'v_mov_b32_dpp v{t+k}, v{r} row_shl:1 row_mask:0xf bank_mask:0xf')
            for k, r in enumerate((hi, lo, wr1)): a(f'v_cvt_pk_bf16_f32 v{t+k}, v{r}, v{t+k}')
            a(f"""v_mov_b32 v{uu+1}, s{sTAG}
            v_mov_b32 v{uu+2}, 0
            s_cmp_lg_u32 s{sWAVE}, 2
            s_cbranch_scc1 L_NOUP
            s_mov_b64 exec, 1""")
            self.bs(uu, 2, uu + 2, rWS, T0, 0, 'sc1', count=False)
            a('s_mov_b64 exec, -1\nL_NOUP:')
            for i in range(8):
                a(f'v_mov_b32 v{fr+i}, 0x3f803f80')
                for k in range(3): a(f'v_mov_b32_dpp v{fr+i}, v{t+k} row_newbcast:{2*i} row_mask:0xf bank_mask:{hex(2 << k)}')
            a(f'v_mov_b32 v{RING+14}, v{sv+1}\nv_mov_b32 v{RING+15}, v{sv+3}\nv_mov_b32 v{RING+5}, v{sv+2}')
            for dst, q in ((gaf, 0),):
                for i in range(16): a(f'v_mov_b32_dpp v{dst+i}, v{sv+q} row_newbcast:{i} row_mask:0xf bank_mask:0xf')
            self.stamp('dw')
        L2 = o['LOOK2']
        def b2_read(m):
            H, ct = divmod(m, 4)
            for rd in range(2): self.tr(Br + 4 * (m % 8) + 2 * rd, vB + ct, (H & 3) * 4096 + rd * 512, ('B', m))
            if H % 4 == 3 and H < 31: a(f'v_xor_b32 v{vB+ct}, {((H >> 2) ^ ((H >> 2) + 1)) * 16384}, v{vB+ct}')
        def a2_load(H):
            if H % 4 == 0: S(T7, '(T4 ^ n) + T6', n=H * 1024)
            self.bl(ARS[H % AD2], 4, vL16, rWS, T7, (H % 4) * 1024, 'sc1', ('A', H))
        self.spoll([(0, 2, T5, 0)], range(2), d_work)
        self.stamp('ook1')
        if not o['earlyD']: a('s_barrier')
        for H in range(AD2):
            if H == 4 and o['earlyD']: a('s_barrier')
            a2_load(H)
            if H == 0:
                for m in range(L2): b2_read(m)
        self.stamp('ook')
        S(T0, 'rt*1024 + UP'); va(vT + 6, [(0, 4, 64)])
        self.ld_up = lambda: self.bl(up, 2, vT + 6, rWS, T0, 0, 'sc1', 'up')
        lpend = []
        for H in range(32):
            if self.prof and o.get('ls2'):
                if lpend: r_, k_ = lpend.pop(0); a(f'v_writelane_b32 v255, s{r_}, {k_}')
                if H < 31:
                    r_ = sPL + 2 * (self.nst % 4)
                    a.items.append(('raw', f'    s_memtime {sr(r_, 2)}')); lpend.append((r_, self.nst)); self.stnames.append(f'n{H}'); self.nst += 1
            if o.get('g2p') and H in (0, o['g2p']):
                a(f's_cmp_lt_u32 s{sWAVE}, 4\ns_cbranch_scc1 L_G2P{H}\ns_setprio {1 if H == 0 else 0}\nL_G2P{H}:')
            vm.wait(('A', H))
            for ct in range(4):
                m = 4 * H + ct
                pw = o['pairw2']
                if ct % pw == 0: lg.wait(('B', m + pw - 1))
                a(f'v_mfma_f32_16x16x32_bf16 {vr(acc + 4*ct, 4)}, {vr(Br + 4*(m % 8), 4)}, {vr(ARS[H % AD2], 4)}, ' + ('0' if H == 0 else vr(acc + 4*ct, 4)))
                if m + L2 < 128: b2_read(m + L2)
            if H + AD2 < 32: a2_load(H + AD2)
            if H + AD2 == 31:
                self.ld_up(); self.ffn_reg(fw[3])
        self.stamp('gemm2')
        if o.get('dbg'):
            S(T1, '(wg*8 + w)*32768 + 0x4000000'); va(vT, [(0, 6, 4)])
            for k, r in enumerate(list(range(40, 104)) + [24, 25, 26, 27]):
                if k % 16 == 0 and k: S(T1, 'T1 + 4096')
                self.bs(r, 1, vT, rWS, T1, (k % 16) * 256, '', 'dbg')
                if k % 16 == 15: vm.wait('dbg')

    def tail(self):
        a, vm, lg, o, S, va = self.a, self.vm, self.lg, self.o, self.S, self.vaa
        R, fw = self.R, o['fwin']
        E2 = range(0, 16, 2)
        acc, gaf, cbf, sbf, gbf, xf, fr, up = [R[k] for k in 'acc gaf cbf sbf gbf xf fr up'.split()]
        FR, held, fq = self.FL, self.held, self.fq
        g16, hh, h2p, op, sd4, kk = AR + 40, AR + 56, AR + 72, AR + 80, AR + 88, AR + 92
        vSt, vRow, mm, rs, key, vTa = RING, RING + 1, RING + 2, RING + 3, RING + 4, RING + 5
        x1f = xf
        swp = lambda b: [a(f'v_permlane32_swap_b32 v{b+p}, v{b+q}') for p, q in ((0, 2), (1, 3), (4, 6), (5, 7))]
        S(T1, '((rt*8 + w)*16 + cb)*256 + ST')
        va(vSt, [(0, 4, 16), (4, 2, 4)])
        for h in range(2):
            rg = range(8 * h, 8 * h + 8)
            self.round_list([acc + i for i in rg])
            for i in range(8 * h, 8 * h + 8, 2): self.pk('mul', acc + i, acc + i, gaf + i)
            self.round_list([acc + i for i in rg])
            for i in range(8 * h, 8 * h + 8, 2): self.pk('add', acc + i, acc + i, xf + i)
            for i in range(4 * h, 4 * h + 4): a(f'v_cvt_pk_bf16_f32 v{XR+i}, v{acc+2*i}, v{acc+2*i+1}')
            for i in range(4 * h, 4 * h + 4): a(f'v_dot2_f32_bf16 v{vT+(i&1)}, v{XR+i}, v{XR+i}, ' + ('0' if i < 2 else f'v{vT+(i&1)}'))
            a(f'v_mfma_f32_16x16x32_bf16 {vr(sd4, 4)}, {vr(fr + 4*h, 4)}, {vr(XR + 4*h, 4)}, ' + ('0' if h == 0 else vr(sd4, 4)))
        self.nopk = False
        va(vT + 3, [(0, 3, 8 * 4096), (3, 1, 4096)])
        a(f'v_add_f32 v{vT}, v{vT}, v{vT+1}')
        for sw in ('v_permlane32_swap_b32', 'v_permlane16_swap_b32'):
            a(f'v_mov_b32 v{vT+1}, v{vT}')
            a(f'{sw} v{vT}, v{vT+1}')
            a(f'v_add_f32 v{vT}, v{vT}, v{vT+1}')
        a(f'v_mov_b32_dpp v{sd4}, v{vT} quad_perm:[0,1,2,3] row_mask:0x8 bank_mask:0xf')
        self.bs(sd4, 1, vSt, rWS, T1, 0, 'sc1')
        S(T3, '((rt >> 2)*2 + (rt & 3)*64)*4096 + (cb >> 1)*64 + (cb & 1)*4 + INB + 1536')
        a('s_barrier')
        self.push(vT + 3, T3, 16, vT + 2, 'L_PE')
        self.stamp('x1pub')
        self.ffn_dma(fw[4])
        S(T2, 'w*4096')
        a(f'v_add_u32 v{vT}, s{T2}, v{vL16}')
        a(f'v_add_u32 v{vT+3}, {L_DN}, v{vT}')
        vm.wait('up')
        self.tagcheck([up + 1], vT + 2)
        a('s_cbranch_vccz L_UPOK')
        q0 = list(vm.q)
        self.poll(self.ld_up, [up + 1], vT + 2)
        vm.q = q0
        a('L_UPOK:')
        S(T1, '(rt*8 + w)*4096 + ST')
        def e_work():
            for ctl in ('quad_perm:[1,0,3,2]', 'quad_perm:[2,3,0,1]', 'row_half_mirror', 'row_mirror'): self.dpp('v_add_f32', up, up, up, ctl)
            for i in range(8): self.unpack(x1f + 2 * i, x1f + 2 * i + 1, XR + i)
            S(T2, 'w*512 + rt*2')
            va(vRow, [(0, 4, 32)], T2)
            a(f'v_xor_b32 v{vT+1}, 0x4000, v{vT}\nv_xor_b32 v{vT+4}, 0x4000, v{vT+3}')
            vm.wait('ffr')
            for m, i, r in self.sym:
                a(f'ds_write_b128 v{vT if m < 2 else vT + 3}, {vr(r, 4)} offset:{self.f_lds(m, i) - (L_GU if m < 2 else L_DN)}')
            for g in range(2):
                if not held[g]: continue
                a(f's_cmp_{"ge" if g == 0 else "lt"}_u32 s{sWAVE}, 4\ns_cbranch_scc1 L_FW{g}')
                for n, (m, i) in enumerate(held[g]):
                    for far in range(2):
                        a(f'ds_write_b128 v{(vT if m < 2 else vT + 3) + far}, {vr(FR + 8*n + 4*far, 4)} offset:{self.f_lds(m, i) - (L_GU if m < 2 else L_DN)}')
                a(f'L_FW{g}:')
            self.stamp('ew')
        self.inbox(3, 2, work=e_work)
        a('s_barrier')
        self.stamp('x1ok')
        def try_p(loads, check, between, nm='re'):
            loads()
            vm.q[-1] = tg = ('try', a.label('T'))
            between()
            vm.wait(tg)
            OK, L = a.label('POK'), a.label('PRE')
            check()
            a(f's_cbranch_vccz {OK}')
            q = list(vm.q)
            self.stamp(nm)
            a(f'{L}:')
            loads(); vm.wait_all()
            check()
            a(f"""s_cbranch_vccz {OK}
            s_add_u32 s{sSPIN}, s{sSPIN}, 1
            s_cmp_lt_u32 s{sSPIN}, {SPIN_LIMIT}
            s_cbranch_scc1 {L}""")
            vm.q = q
            a(f'{OK}:')
        vGr, vDr, vXs, ffn, fdn = RING + 6, RING + 7, RING + 24, FR, AQ
        vRt = RING + 14
        def out_calc(part):
            u = RING + 16; assert o['ocut'][1] != 5
            if part == o['ocut'][0]:
                for i in range(8): self.unpack(hh + 2 * i, hh + 2 * i + 1, h2p + i)
                for i in E2: self.pk('mul', hh + i, hh + i, gbf + i)
                self.round_list([hh + i for i in range(16)])
            if part == o['ocut'][1]:
                S(T0, 'w*2048 + L_TR')
                va(u, [(4, 2, 16)]); va(u + 1, [(0, 3, 16)]); a(f'v_xor_b32 v{u}, v{u}, v{u+1}')
                va(u + 2, [(0, 4, 128)], T0); a(f'v_add_u32 v{u}, v{u}, v{u+2}'); a(f'v_xor_b32 v{u+2}, 64, v{u}')
                va(u + 3, [(3, 3, 16)]); a(f'v_xor_b32 v{u+1}, v{u+3}, v{u+1}'); va(u + 3, [(3, 3, 128)], T0); a(f'v_add_u32 v{u+1}, v{u+1}, v{u+3}')
                S(T0, '2047 - rt*128 - w*16'); va(vRt + 1, [(3, 3, 1)])
                a(f'v_sub_u32 v{vRt}, s{T0}, v{vRt+1}\nv_subrev_u32 v{vRt+1}, 8, v{vRt}')
                va(vTa, [(3, 3, 2048), (0, 3, 16)])
                S(sROW0, '(rt*8 + w)*32768 + cb*128'); S(sROW1, 'row0 + 16384')
            if part == o['ocut'][2]:
                for i in E2: self.pk('add', hh + i, hh + i, x1f + i)
                for i in range(8): a(f'v_cvt_pk_bf16_f32 v{op+i}, v{hh+2*i}, v{hh+2*i+1}')
                swp(op)
                a(f'ds_write_b128 v{u}, {vr(op, 4)}\nds_write_b128 v{u+2}, {vr(op + 4, 4)}')
                a(f'ds_read_b128 {vr(op, 4)}, v{u+1}\nds_read_b128 {vr(op + 4, 4)}, v{u+1} offset:1024')
        def e_between():
            if o['gbar']: a('s_barrier')
            self.ffn_dma(fw[5])
            for dst, q in ((cbf, 5), (sbf, 14), (gbf, 15)):
                for i in range(16): a(f'v_mov_b32_dpp v{dst+i}, v{RING+q} row_newbcast:{i} row_mask:0xf bank_mask:0xf')
            out_calc(4)
            S(T2, 'w*8 + L_K1'); a(f'v_mov_b32 v{vT}, s{T2}')
            va(vT + 1, [(0, 3, 8)], None, L_K1)
            va(vT + 2, [(0, 2, 64 * 4096), (2, 2, 2 * 4096)])
            S(T3, '((cb >> 3) + (cb & 7)*8)*4096 + (rt >> 1)*64 + (rt & 1)*16 + INB + 2560')
        s_, d_, q_, t_ = g16, g16 + 1, g16 + 3, g16 + 4
        def e_check():
            for h in (0, 2):
                self.pk('add', g16 + h, g16 + h, g16 + 4 + h); self.pk('add', g16 + 8 + h, g16 + 8 + h, g16 + 12 + h)
            for h in (0, 2): self.pk('add', g16 + h, g16 + h, g16 + 8 + h)
            a(f'''v_add_f32 v{d_}, v{d_}, v{g16+2}
            v_add_f32 v{t_+1}, v{s_}, v{q_}
            v_cmp_u_f32 vcc, v{d_}, v{t_+1}''')
        try_p(lambda: [self.bl(g16 + 4 * i, 4, vL16, rWS, T1, i * 1024, 'sc1') for i in range(4)], e_check, e_between, 'stre')
        self.stamp('x1ld')
        a(f"""
        v_mov_b32 v{t_}, v{q_}
        v_permlane32_swap_b32 v{q_}, v{t_}
        v_permlane32_swap_b32 v{s_}, v{d_}
        v_add_f32 v{q_}, v{q_}, v{t_}
        v_add_f32 v{s_}, v{s_}, v{d_}
        v_permlane16_swap_b32 v{s_}, v{q_}
        v_add_f32 v{d_}, v{s_}, v{q_}
        v_add_f32 v{q_}, v{s_}, v{q_}
        v_permlane16_swap_b32 v{d_}, v{q_}
        v_mov_b32 v{s_}, v{d_}
        v_mul_f32 v{q_}, 0x3a800000, v{q_}
        v_permlane32_swap_b32 v{s_}, v{d_}
        v_mul_f32 v{s_}, 0x3a800000, v{s_}
        v_fma_f32 v{rs}, -v{s_}, v{s_}, v{q_}
        v_cvt_pk_bf16_f32 v{mm}, 0, v{s_}
        v_max_f32 v{rs}, 0, v{rs}""")
        self.round1(rs)
        a(f'v_fma_f32 v{d_}, -v{mm}, v{up}, v{d_}')
        a(f'v_add_f32 v{rs}, 0x3727c5ac, v{rs}')
        self.round1(rs)
        a(f'v_sqrt_f32 v{rs}, v{rs}')
        self.round1(rs)
        a(f"""v_rcp_f32 v{rs}, v{rs}
        v_mul_f32 v{key}, v{d_}, v{rs}
        v_ashrrev_i32 v{t_}, 31, v{key}
        v_or_b32 v{t_}, 0x80000000, v{t_}
        v_xor_b32 v{key}, v{key}, v{t_}
        s_mov_b32 s{T2}, 0xfffff000
        v_and_or_b32 v{key}, v{key}, s{T2}, v{vRow}""")
        hi, lo = kk, kk + 1
        def merge2(ctl):
            self.dpp('v_min_u32', t_, hi, hi, ctl); self.dpp('v_max_u32', lo, lo, lo, ctl); self.dpp('v_max_u32', hi, hi, hi, ctl)
            a(f'v_max_u32 v{lo}, v{lo}, v{t_}')
        self.dpp('v_max_u32', hi, key, key, 'quad_perm:[1,0,3,2]'); self.dpp('v_min_u32', lo, key, key, 'quad_perm:[1,0,3,2]')
        for ctl in ('quad_perm:[2,3,0,1]', 'row_half_mirror', 'row_mirror'): merge2(ctl)
        self.dw('ds_write_b64', vT, hi, 2)
        self.stamp('ln2')
        self.barrier()
        self.dr('ds_read_b64', hi, 2, vT + 1)
        for i in E2: self.pk('add', hh + i, x1f + i, mm, bc=(1,), neg=(1,))
        lg.wait_all()
        for ctl in ('quad_perm:[1,0,3,2]', 'quad_perm:[2,3,0,1]', 'row_half_mirror'): merge2(ctl)
        a(f"""v_cmp_eq_u32 {sr(sC2, 2)}, v{key}, v{lo}
        v_cmp_eq_u32 vcc, v{key}, v{hi}
        v_or_b32 v{kk+2}, 1, v{lo}
        v_mov_b32 v{kk+1}, s{sTAG}
        v_mov_b32 v{kk+3}, s{sTAG}
        s_or_b64 {sr(sCM, 2)}, vcc, {sr(sC2, 2)}
        s_cmp_lg_u32 s{sWAVE}, 0
        s_cbranch_scc1 L_NOF
        s_mov_b64 exec, 0xffff""")
        self.bs(kk, 4, vT + 2, rWS, T3, 0, 'sc1', count=False)
        a(f"""s_mov_b64 exec, -1
        L_NOF:""")
        if o['cprio']: a(f's_cmp_eq_u64 {sr(sCM, 2)}, 0\ns_cbranch_scc1 L_NOPR\ns_setprio 1\nL_NOPR:')
        self.stamp('Fpub')
        def f_work():
            self.round_list([hh + i for i in range(16)])
            for i in E2: self.pk('mul', hh + i, hh + i, rs, bc=(1,))
            self.round_list([hh + i for i in range(16)])
            for i in E2: self.pk('mul', hh + i, hh + i, cbf + i)
            self.round_list([hh + i for i in range(16)])
            for i in E2: self.pk('add', hh + i, hh + i, sbf + i)
            for i in range(8): a(f'v_cvt_pk_bf16_f32 v{h2p+i}, v{hh+2*i}, v{hh+2*i+1}')
            a(f"""s_cmp_eq_u64 {sr(sCM, 2)}, 0
            s_cbranch_scc1 L_NOCAND""")
            for h in range(2): a(f'v_mfma_f32_16x16x32_bf16 {vr(sd4, 4)}, {vr(fr + 4*h, 4)}, {vr(h2p + 4*h, 4)}, ' + ('0' if h == 0 else vr(sd4, 4)))
            for i in range(8): a(f'v_mov_b32 v{op+i}, v{h2p+i}')
            S(T2, 'rt*16384 + cb*512 + XS')
            va(vT + 3, [(4, 2, 16)])
            a(f'v_add_u32 v{vT+4}, 8192, v{vT+3}')
            swp(op); swp(XR)
            a(f'v_cndmask_b32 v{vT+3}, v{vT+3}, v{vT+4}, {sr(sC2, 2)}')
            a(f's_mov_b64 exec, {sr(sCM, 2)}')
            for h in range(2): self.bs(op + 4 * h, 4, vT + 3, rWS, T2, 64 * h, 'sc1', count=False)
            a(f's_mov_b32 exec_lo, 0\ns_and_b32 exec_hi, s{sCM+1}, 0xffff0000')
            self.bs(sd4, 1, vT + 3, rWS, T2, 256 - 48, 'sc1', count=False)
            a(f's_mov_b64 exec, {sr(sCM, 2)}')
            for h in range(2): self.bs(XR + 4 * h, 4, vT + 3, rWS, T2, 128 + 64 * h, 'sc1', count=False)
            a('s_mov_b64 exec, -1\ns_setprio 0\nL_NOCAND:')
            self.stamp('cand')
            self.ffn_dma(fw[6])
            out_calc(0)
        S(T0, 'w*16 + L_K2'); a(f'v_mov_b32 v{vT}, s{T0}')
        va(vT + 1, [(0, 3, 16)], None, L_K2)
        self.inbox(5, 8, (1, 3, 5, 7), f_work)
        P = sPL
        a(f"""s_min_u32 s{P+1}, s{P}, s{P+4}
        s_min_u32 s{P+3}, s{P+2}, s{P+4}
        s_min_u32 s{P+5}, s{P}, s{P+6}
        s_max_u32 s{P}, s{P}, s{P+4}
        s_max_u32 s{P+2}, s{P+2}, s{P+6}
        s_max_u32 s{P+3}, s{P+3}, s{P+5}
        s_max_u32 s{P+1}, s{P+1}, s{P+2}
        v_mov_b32 v{kk}, s{P}
        v_mov_b32 v{kk+2}, s{P+3}
        v_mov_b32 v{kk+1}, s{P+1}""")
        self.dw('ds_write_b128', vT, kk, 4)
        self.stamp('F2p')
        out_calc(1)
        gu_late = [p for p in fq if p[0] < 2]; assert not gu_late
        dn_late = len(fq) > 0
        def dn_read(s, tag=None):
            self.tr(fdn + 4 * s, vDr, s * 8192, tag); self.tr(fdn + 4 * s + 2, vDr, s * 8192 + 1024, tag)
        vm.wait('ffn')
        self.barrier()
        self.stamp('F2')
        self.r128(kk, vT + 1, 0, 'k2')
        a(f'v_and_b32 v{vT+4}, 8, v{vL}')
        a(f'v_cmp_eq_u32 {sr(sCMP, 2)}, 0, v{vT+4}')
        a(f'v_cmp_gt_u32 {sr(sPL, 2)}, 16, v{vL}')
        a(f'v_cmp_gt_u32 {sr(sPL + 2, 2)}, 32, v{vL}')
        lg.wait('k2')
        t = g16
        for ctl in ('quad_perm:[1,0,3,2]', 'quad_perm:[2,3,0,1]', 'row_half_mirror'):
            self.dpp('v_min_u32', t, kk, kk, ctl); self.dpp('v_min_u32', t + 1, kk + 1, kk, ctl); self.dpp('v_min_u32', t + 2, kk, kk + 1, ctl)
            self.dpp('v_max_u32', kk + 2, kk + 2, kk + 2, ctl); self.dpp('v_max_u32', kk + 1, kk + 1, kk + 1, ctl); self.dpp('v_max_u32', kk, kk, kk, ctl)
            a(f'v_max3_u32 v{kk+2}, v{kk+2}, v{t+1}, v{t+2}')
            a(f'v_max_u32 v{kk+1}, v{kk+1}, v{t}')
        xa, xb, rp, kr = g16, g16 + 4, g16 + 8, g16 + 9
        a(f"""v_cndmask_b32 v{t}, v{kk+1}, v{kk}, {sr(sCMP, 2)}
        v_cndmask_b32 v{kr}, v{kk+2}, v{kk+1}, {sr(sPL + 2, 2)}
        v_and_b32 v{t+1}, 31, v{kk+2}
        v_and_b32 v{t}, 31, v{t}
        v_cndmask_b32 v{kr}, v{kr}, v{kk}, {sr(sPL, 2)}
        v_lshl_add_u32 v{vT}, v{t}, 13, v{vXs}
        v_lshl_add_u32 v{vT+1}, v{t+1}, 13, v{vXs}
        v_and_b32 v{t+2}, 31, v{kr}
        v_lshl_add_u32 v{vT+2}, v{t+2}, 13, v{vXs+1}""")
        def sel_work():
            self.stamp('sel')
            if o['gbar'] and (fq or o['outat'] in (0, 3)): a('s_barrier')
            self.ffn_dma(len(fq))
            for k in range(3): a(f'v_readfirstlane_b32 s{sY0+[0, 3, 4][k]}, v{kk+k}')
            for s in range(8):
                self.tr(ffn + 4 * s, vGr, s * 1024); self.tr(ffn + 4 * s + 2, vGr, s * 1024 + 512)
            for k in range(3): S(T4 + k, '(((y >> 1) & 15)*128 + ((y >> 5) & 127)) ^ 2047'.replace('y', ('y0', 'y1', 'y2')[k]))
            out_calc(2)
            lg.wait_all()
            if o['outat'] in (0, 3):
                for h in range(2 if o['outat'] == 0 else 1):
                    for k in range(3): a(f'v_cmp_ne_u32 {sr(sPL + 2*k, 2)}, s{T4+k}, v{vRt+h}')
                    a(f's_and_b64 vcc, {sr(sPL, 2)}, {sr(sPL + 2, 2)}\ns_and_b64 exec, vcc, {sr(sPL + 4, 2)}')
                    self.bs(op + 4 * h, 4, vTa, rOUT, (sROW0, sROW1)[h], 0, o.get('outmod', 'sc1'))
                    a('s_mov_b64 exec, -1')
            S(T0, 'w*64')
            va(vDr, [(2, 1, 512), (3, 1, 4096), (5, 1, 2048), (2, 2, 64), (4, 1, 32), (0, 2, 8)])
            a(f'v_xor_b32 v{vDr}, s{T0}, v{vDr}'); a(f'v_add_u32 v{vDr}, {L_DN}, v{vDr}')
            va(vT + 4, [(0, 4, 16), (5, 1, 8)])
            S(T1, 'fs*8192 + HGR'); S(T7, '(kq*8 + w)*256 + T1')
            a(f'v_bfe_u32 v{vT+3}, v{kr}, 1, 4\nv_bfe_u32 v{kr}, v{kr}, 5, 7\nv_lshl_or_b32 v{kr}, v{vT+3}, 7, v{kr}\nv_xor_b32 v{kr}, 0x7ff, v{kr}')
        try_p(lambda: [self.bl(xa, 4, vT, rWS, '0', 0, 'sc1'), self.bl(xb, 4, vT + 1, rWS, '0', 0, 'sc1'), self.bl(rp, 1, vT + 2, rWS, '0', 0, 'sc1')],
              lambda: a(f'v_max3_u32 v{vT+3}, v{xa}, v{xb}, v{rp}\nv_cmp_eq_u32 vcc, -1, v{vT+3}'), sel_work, 'xsre')
        self.stamp('xsel')
        for ctl in ('quad_perm:[1,0,3,2]', 'quad_perm:[2,3,0,1]', 'row_half_mirror', 'row_mirror'): self.dpp('v_add_f32', rp, rp, rp, ctl)
        a(f"""v_cvt_pk_bf16_f32 v{rp}, 0, v{rp}
        v_ashrrev_i32 v{vT+3}, 31, v{rp}
        v_or_b32 v{vT+3}, 0x80000000, v{vT+3}
        v_xor_b32 v{rp}, v{rp}, v{vT+3}
        v_lshrrev_b32 v{rp}, 16, v{rp}
        v_lshl_or_b32 v{rp}, v{rp}, 11, v{kr}
        v_readlane_b32 s{P}, v{rp}, 0
        v_readlane_b32 s{P+1}, v{rp}, 16
        v_readlane_b32 s{P+2}, v{rp}, 32
        s_not_b64 {sr(P + 4, 2)}, {sr(sCMP, 2)}
        s_cmp_lt_u32 s{P}, s{P+1}
        s_cselect_b64 {sr(P + 4, 2)}, {sr(sCMP, 2)}, {sr(P + 4, 2)}
        s_cselect_b32 s{P+3}, s{P}, s{P+1}
        s_cmp_gt_u32 s{P+2}, s{P+3}
        s_cselect_b64 vcc, {sr(P + 4, 2)}, 0""")
        for i in range(4): a(f'v_cndmask_b32 v{xa+i}, v{xa+i}, v{xb+i}, vcc')
        a(f"""s_bitcmp1_b32 vcc_lo, 0
        s_cselect_b32 s{P}, s{P+2}, s{P}
        s_cselect_b32 s{T6}, s{T4}, s{T6}
        s_cselect_b32 s{T4}, s{sY2}, s{sY0}
        s_bitcmp1_b32 vcc_lo, 8
        s_cselect_b32 s{P+1}, s{P+2}, s{P+1}
        s_cselect_b32 s{T6}, s{T5}, s{T6}
        s_cselect_b32 s{T5}, s{sY2}, s{sY1}""")
        gd = [gaf + 4 * i for i in range(4)] + [cbf + 4 * i for i in range(4)]
        lg.wait_all()
        for s in range(8):
            a(f'v_mfma_f32_16x16x32_bf16 {vr(gd[s], 4)}, {vr(xa, 4)}, {vr(ffn + 4*s, 4)}, 0')
        p0, p1 = xb, xb + 2
        for p, b in ((p0, 0), (p1, 4)):
            a(f'v_add_f32 v{p}, v{gd[b]}, v{gd[b+1]+1}')
            a(f'v_add_f32 v{p+1}, v{gd[b+2]+2}, v{gd[b+3]+3}')
        a(f"""v_add_f32 v{p0}, v{p0}, v{p0+1}
        v_add_f32 v{p1}, v{p1}, v{p1+1}
        v_mov_b32 v{p0+1}, s{sTAG}
        v_permlane16_swap_b32 v{p1}, v{p1+1}
        s_cmp_ge_u32 s{sJ}, 28
        s_cbranch_scc1 L_NOHP
        v_add_f32 v{p0}, v{p0}, v{p1+1}
        s_mov_b32 exec_lo, 0xffff
        s_mov_b32 exec_hi, 0xffff""")
        self.bs(p0, 2, vT + 4, rWS, T7, 0, 'sc1', count=False)
        a("""s_mov_b64 exec, -1
        L_NOHP:""")
        self.stamp('Hpub')
        if not dn_late and not o['dnsplit']:
            for s in range(4): dn_read(s)
        def out_store():
            for h in range(o['outat'] == 3, 2):
                a(f"""v_cmp_ne_u32 vcc, s{sK1}, v{vRt+h}
                v_cmp_ne_u32 {sr(sCMP, 2)}, s{sK2}, v{vRt+h}
                s_and_b64 exec, vcc, {sr(sCMP, 2)}""")
                self.bs(op + 4 * h, 4, vTa, rOUT, (sROW0, sROW1)[h], 0, o.get('outmod', 'sc1'))
                a('s_mov_b64 exec, -1')
        if o['outat']:
            a(f's_and_b32 s{sK1}, s{P}, 2047\ns_and_b32 s{sK2}, s{P+1}, 2047')
            out_calc(3)
            lg.wait_all()
        if o['outat'] == 1:
            a('s_barrier')
            out_store()
        if o['outat'] in (0, 3):
            for h in range(2 if o['outat'] == 0 else 1):
                a(f"""v_cmp_eq_u32 vcc, s{T6}, v{vRt+h}
                s_and_b64 exec, vcc, -1
                s_cbranch_execz L_NOLO{h}""")
                self.bs(op + 4 * h, 4, vTa, rOUT, (sROW0, sROW1)[h], 0, o.get('outmod', 'sc1'), count=False)
                a(f'L_NOLO{h}:\ns_mov_b64 exec, -1')
        self.stamp('outst')
        fz, x1, st = g16 + 12, AV, kk
        a(f"""s_cmp_lg_u32 s{sRow}, 7
        s_cbranch_scc1 L_NONON
        v_mov_b32 v{vT+2}, s{sTAG}
        v_mov_b32 v{vT+3}, 0
        s_mov_b64 exec, 1""")
        self.bs(vT + 2, 1, vT + 3, rWS, '0', 0, 'sc1', count=False)
        a(f"""s_mov_b64 exec, -1
        L_NONON:
        s_cmp_ge_u32 s{sJ}, 28
        s_cbranch_scc1 {'L_FIN3' if o['outat'] >= 2 else 'L_FIN'}""")
        gA = g16
        va(gA, [(2, 1, 128), (5, 1, 16)], None, L_ACT)
        va(gA + 1, [(4, 2, 56 * 128), (0, 4, 8)])
        S(sFG, '(kq*8 + w)*(4*56*128) + fs*128 + GGR')
        va(gA + 2, [(0, 1, 2 * 4096), (1, 1, 64 * 4096)])
        S(sFD, '((w & 1)*4 + (kq >> 1) + ((kq & 1)*4 + (w >> 1))*8)*4096 + x*64 + (j >> 2)*4 + INB + 3072')
        def dn_go():
            if o['dnsplit'] and not dn_late:
                vm.wait('fdn'); a('s_barrier')
                for s in range(4): dn_read(s)
            out_calc(5)
        q1 = list(vm.q)
        a(f's_cmp_lt_u32 s{sWAVE}, 4\ns_cbranch_scc1 L_HW')
        dn_go()
        a(f"""s_cmp_lg_u32 s{sWAVE}, 7
        s_cbranch_scc1 L_NOH""")
        a(f"""s_bitcmp1_b32 s{sJ}, 3
        s_cselect_b32 s{T2}, s{P+1}, s{P}
        s_cselect_b32 s{T4}, s{T5}, s{T4}
        s_andn2_b32 s{T5}, 2047, s{T2}""")
        S(T6, 'cb*4 + (x >> 1)')
        S(T7, '((T6 >> 1)*4 + (j >> 3)*2 + (T6 & 1))*(56*128) + GGR')
        S(sU, 'T5*2048 + T6*32')
        va(vT + 6, [(0, 3, 4)])
        S(T0, '(x >> 1)*64 + L_GB'); va(vT + 1, [(0, 3, 8)], T0)
        a(f'ds_read_b64 {vr(fz + 2, 2)}, v{vT+1}')
        S(sY0, '(T4 & 31)*8192 + cb*512 + (x >> 1)*32 + XS')
        a(f"""s_lshr_b32 s{T0}, s{T2}, 11
        s_lshl_b32 s{T0}, s{T0}, 16
        s_ashr_i32 s{T2}, s{T0}, 31
        s_andn2_b32 s{T2}, 0x7fff0000, s{T2}
        s_or_b32 s{T2}, s{T2}, 0x80000000
        s_xor_b32 s{T0}, s{T0}, s{T2}
        v_mov_b32 v{fz}, s{T0}
        v_mul_f32 v{fz}, s{sL2E}, v{fz}
        v_exp_f32 v{fz}, -v{fz}
        v_add_f32 v{fz}, 1.0, v{fz}
        v_rcp_f32 v{fz}, v{fz}""")
        self.round1(fz)
        q0 = list(vm.q)
        a(f'v_mov_b32 v{vT+1}, s{sTAG}\nv_not_b32 v{vT+2}, v{vT+1}')
        self.poll(lambda: (self.bl(st, 1, vT + 6, rWS, sY0, 0, 'sc1'), self.bl(st + 1, 1, vT + 6, rWS, sY0, 128, 'sc1')), [st + 2], vT,
                  lambda: a(f'''v_max_u32 v{st+2}, v{st}, v{st+1}
                  v_cmp_ne_u32 vcc, -1, v{st+2}
                  v_cndmask_b32 v{st+2}, v{vT+2}, v{vT+1}, vcc'''))
        vm.q = q0
        self.unpack(st + 2, st + 3, st + 1)
        a(f'v_and_b32 v{st+1}, s{sMASK}, v{st}\nv_lshlrev_b32 v{st}, 16, v{st}')
        a('s_branch L_NOH')
        a('L_HW:')
        vm.q = q1; lg.reset()
        S(T0, 'w*256 + T1')
        va(vT, [(4, 2, 2048), (0, 4, 16)])
        S(T2, 'w*32 + L_ACT'); va(vT + 1, [(5, 1, 128), (2, 1, 16), (1, 1, 8), (3, 1, 4), (0, 1, 2)], T2)
        q0 = list(vm.q)
        g, u = x1, x1 + 4
        if not o['Hdir']:
            self.spoll([(q, 1, T0, q * 2048 + 1024 + 252) for q in range(4)], range(4), dn_go)
            self.stamp('Hpre')
        self.poll(lambda: [self.bl(x1 + 4 * m, 4, vT, rWS, T0, m * 1024, 'sc1') for m in range(2)], [g + 1, g + 3, u + 1, u + 3], vT + 2)
        a(f"""v_permlane32_swap_b32 v{g}, v{g+2}
        v_permlane32_swap_b32 v{u}, v{u+2}
        v_add_f32 v{g}, v{g}, v{g+2}
        v_add_f32 v{u}, v{u}, v{u+2}
        v_mov_b32 v{g+2}, v{g}
        v_mov_b32 v{u+2}, v{u}
        v_permlane16_swap_b32 v{g}, v{g+2}
        v_permlane16_swap_b32 v{u}, v{u+2}
        v_add_f32 v{g}, v{g}, v{g+2}
        v_add_f32 v{u}, v{u}, v{u+2}""")
        self.round2(g, u)
        self.silu(g, vT + 2)
        a(f"""v_mul_f32 v{g}, v{g}, v{u}
        v_cvt_pk_bf16_f32 v{g}, v{g}, v{g}
        ds_write_b16 v{vT+1}, v{g}
        L_NOH:""")
        vm.q = q0
        vm.wait('ffn'); vm.wait('fdn')
        self.barrier()
        self.stamp('Hok')
        for s in range(4):
            self.r128(x1 + 4 * s, gA, s * 32, ('ac', s))
            if dn_late: dn_read(s, ('ac', s))
        for s in range(4):
            lg.wait(('ac', s))
            a(f'v_mfma_f32_32x32x16_bf16 {vr(hh, 16)}, {vr(x1 + 4*s, 4)}, {vr(fdn + 4*s, 4)}, ' + ('0' if s == 0 else vr(hh, 16)))
        a(f'v_mov_b32 v{hh+1}, s{sTAG}')
        self.bs(hh, 2, gA + 1, rWS, sFG, 0, 'sc1')
        if not o['Gdir']:
            a('s_mov_b64 exec, 15')
            self.bs(hh + 1, 1, gA + 2, rWS, sFD, 0, 'sc1')
            a('s_mov_b64 exec, -1')
        self.stamp('Gpub')
        if o['outat'] >= 2:
            a('s_barrier\ns_branch L_FIN2\nL_FIN3:')
            out_calc(5)
            a('s_waitcnt lgkmcnt(0)\nL_FIN2:')
            out_store()
        a(f"""s_cmp_ge_u32 s{sJ}, 16
        s_cbranch_scc1 L_FIN""")
        if not o['Gdir']:
            self.inbox(6, 8, range(7))
            self.stamp('Gpre')
            a('s_barrier')
        a(f"""s_cmp_lg_u32 s{sWAVE}, 7
        s_cbranch_scc1 L_FIN""")
        S(T0, 'T7 + 4096')
        gg = [x1 + 4 * i for i in range(7)]
        def g_ld():
            [self.bl(gg[n], 4, vL16, rWS, (T7, T0)[n >> 2], (n & 3) * 1024, 'sc1') for n in range(7)]
        self.poll(g_ld, [gg[n] + 1 + 2 * e for n in range(7) for e in range(2)], vT)
        self.stamp('Gok')
        y0, y1 = gg[0], gg[0] + 1
        for p_, q_ in ((0, 1), (2, 3), (4, 5), (0, 2), (4, 6)):
            for e in (0, 2): a(f'v_add_f32 v{gg[p_]+e}, v{gg[p_]+e}, v{gg[q_]+e}')
        a(f'v_add_f32 v{y0}, v{gg[0]}, v{gg[4]}\nv_add_f32 v{y1}, v{gg[0]+2}, v{gg[4]+2}')
        a(f"""v_permlane32_swap_b32 v{y0}, v{y1}
        v_add_f32 v{y0}, v{y0}, v{y1}""")
        self.dpp('v_add_f32', y0, y0, y0, 'row_ror:8')
        a(f"""v_mov_b32 v{y1}, v{y0}
        v_permlane16_swap_b32 v{y0}, v{y1}
        v_add_f32 v{y1}, v{y0}, v{y1}
        v_cvt_pk_bf16_f32 v{y0}, 0, v{y1}
        v_cvt_pk_bf16_f32 v{y1}, 0, v{y1}
        v_permlane32_swap_b32 v{y0}, v{y1}""")
        self.pk('mul', y0, y0, fz, bc=(1,))
        self.round2(y0, y1)
        self.pk('add', y0, y0, st)
        self.round2(y0, y1)
        self.pk('mul', y0, y0, fz + 2)
        self.round2(y0, y1)
        self.pk('add', y0, y0, st + 2)
        a(f'v_cvt_pk_bf16_f32 v{y0}, v{y0}, v{y1}')
        a('s_mov_b64 exec, 0xff')
        self.bs(y0, 1, vT + 6, rOUT, sU, 0, o.get('finmod', ''))
        a('s_mov_b64 exec, -1')
        a('L_FIN:')

    def finish(self):
        a, S, o = self.a, self.S, self.o
        if o.get('exfil'):
            a('s_waitcnt vmcnt(0) lgkmcnt(0)')
            self.stamp('fin')
            a(f'''v_readlane_b32 s{T0}, v255, 0
            v_readlane_b32 s{T1}, v255, 1
            v_readlane_b32 s{T2}, v255, 2
            s_sub_u32 s{T2}, s{T2}, s{T1}
            s_max_i32 s{T2}, s{T2}, 0
            s_min_u32 s{T2}, s{T2}, 10000
            s_mul_i32 s{T2}, s{T2}, 10
            s_add_u32 s{T2}, s{T2}, 6000
            L_XPAD:
            s_memrealtime {sr(sTM, 2)}
            s_waitcnt lgkmcnt(0)
            s_sub_u32 s{T1}, s{sTM}, s{T0}
            s_cmp_lt_u32 s{T1}, s{T2}
            s_cbranch_scc1 L_XPAD''')
        if self.o.get('dbg2'):
            S(T1, '(wg*8 + w)*32768 + 0x4000000'); self.vaa(vT, [(0, 6, 4)])
            for k, r in enumerate(list(range(72, 104)) + list(range(120, 136)) + list(range(176, 184))):
                if k % 16 == 0 and k: S(T1, 'T1 + 4096')
                self.bs(r, 1, vT, rWS, T1, (k % 16) * 256, '', 'dbg')
                if k % 16 == 15: self.vm.wait('dbg')
        if self.prof:
            a('s_waitcnt vmcnt(0) lgkmcnt(0)')
            self.stamp('end')
            a(f's_memrealtime {sr(sTM, 2)}')
            a('s_waitcnt lgkmcnt(0)')
            a(f'v_writelane_b32 v255, s{sTM}, 61')
            S(T0, '(wg*8 + w)*256 + STAMPS')
            a(f'v_writelane_b32 v255, s{sSPIN}, 62')
            a(f'v_lshlrev_b32 v{vT+1}, 2, v{vL}')
            a(f'buffer_store_dword v255, v{vT+1}, {sr(rWS, 4)}, s{T0} offen')
            S(T0, 'T0 + 0x100000')
            a(f'buffer_store_dword v254, v{vT+1}, {sr(rWS, 4)}, s{T0} offen')
        a('L_END:')
        a('s_endpgm')

    def pads(self):
        import subprocess, re
        a = self.a
        src = '.amdgcn_target "amdgcn-amd-amdhsa--gfx950"\n.text\n' + a.text().replace('CODE_KB', '20480')
        out = subprocess.run(['llvm-mc', '-triple=amdgcn-amd-amdhsa', '-mcpu=gfx950', '-show-encoding'], input=src, capture_output=True, text=True, check=True).stdout
        sizes = [len(m.split(',')) for m in re.findall(r'; encoding: \[([^\]]*)\]', out)]
        tour = next(i for i, x in enumerate(a.items) if x == ('raw', ';TOUR'))
        NT = 16
        addr = self.o['kofs']; full = True; k = 0; items = []; pads = []; page = 0
        for i, (kind, v) in enumerate(a.items):
            isins = kind == 'ins' or (kind == 'raw' and v.startswith('    s_'))
            if i == tour: items.append((kind, v)); addr += 4 * 48; continue
            if isins:
                if addr // 4096 > page and full and i > tour:
                    page = addr // 4096; pads.append(page)
                    items.append(('raw', f'L_PAD{page}:\n    s_cbranch_execz L_RET{page}')); addr += 4
                elif i < tour: page = addr // 4096
                addr += sizes[k]; k += 1
                if kind == 'ins' and ('s', 'exec_lo') in v.dst + [('s', 'exec_lo') if ('s', 'exec_hi') in v.dst else None]:
                    full = v.text.replace(' ', '') in ('s_mov_b64exec,-1', 's_mov_b32exec_hi,-1')
            items.append((kind, v))
        assert k == len(sizes), (k, len(sizes))
        t = ['s_mov_b64 exec, 0']
        chains = [pads[c::4] for c in range(4)]
        for c in range(4): t += [f's_cmp_eq_u32 s{sWAVE}, {4 + c}', f's_cbranch_scc1 L_PAD{chains[c][0]}']
        t.append('s_branch L_TEND')
        n = len(t)
        for ch in chains:
            for p, q in zip(ch, ch[1:] + [None]):
                t += [f'L_RET{p}:', f's_branch ' + (f'L_PAD{q}' if q else 'L_TEND')]; n += 1
        assert n <= 47
        t += ['s_nop 0'] * (47 - n) + ['L_TEND:', 's_mov_b64 exec, -1']
        j = items.index(('raw', ';TOUR'))
        items[j] = ('raw', '\n'.join(x if x.endswith(':') else '    ' + x for x in t))
        a.items = items

    def text(self):
        a = self.a
        npad = a.fix_hazards()
        errs = a.check_waits([NAME])
        for e in errs[:10]: print('WAITERR', e, file=sys.stderr)
        assert not errs
        import re
        for k, v in a.items:
            if k == 'ins' and v.mn.startswith('v_pk_'):
                m = re.search(r'op_sel:\[([\d,]+)\]', v.text)
                vs = [i for i, x in enumerate(v.ops[1:]) if x.startswith('v')]
                assert self.o.get('badpk') or not (m and any(m.group(1).split(',')[i] == '1' for i in vs[1:])), v.text
        if self.o['tour']: self.pads()
        hdr = open(os.path.join(os.path.dirname(os.path.abspath(__file__)), 'header.txt')).read()
        s = hdr + '; @launch grid=(256,1,1) block=(512,1,1) lds=163840\n'
        s += '.amdgcn_target "amdgcn-amd-amdhsa--gfx950"\n.text\n'
        s += f'.globl {NAME}\n.p2align {12 if self.o["al12"] else 8}\n.type {NAME},@function\n'
        body = a.text()
        import subprocess, tempfile
        with tempfile.TemporaryDirectory() as td:
            open(td + '/t.s', 'w').write('.amdgcn_target "amdgcn-amd-amdhsa--gfx950"\n.text\n' + body.replace('CODE_KB', '20480'))
            subprocess.run(['clang', '-x', 'assembler', '-target', 'amdgcn-amd-amdhsa', '-mcpu=gfx950', '-c', td + '/t.s', '-o', td + '/t.o'], check=True)
            subprocess.run(['llvm-objcopy', '-O', 'binary', '-j', '.text', td + '/t.o', td + '/t.bin'], check=True)
            size = os.path.getsize(td + '/t.bin')
        print('; code bytes', size, file=sys.stderr)
        s += body.replace('CODE_KB', str((size // 1024 + 1) * 1024))
        s += '.p2align 10\n.fill 768, 4, 0xbf800000\n'
        s += '.section .rodata,"a"\n' + kernel_desc(NAME, 256, 102)
        print(f'; nops {npad}, instrs {sum(1 for k, _ in a.items if k == "ins")}', file=sys.stderr)
        return s


if __name__ == '__main__':
    import argparse, json
    ap = argparse.ArgumentParser()
    ap.add_argument('-o', default='/dev/stdout')
    ap.add_argument('--prof', action='store_true')
    ap.add_argument('--opts', default='{}')
    args = ap.parse_args()
    g = Gen(args.prof, json.loads(args.opts)).build()
    t = g.text()
    open(args.o, 'w').write(t)
    if args.prof: open(args.o + '.stamps', 'w').write(json.dumps(g.stnames))
```

```python
import sys, os
sys.path.insert(0, os.path.dirname(os.path.abspath(__file__)))
from asm import *

NAME = 'adaLN_cond__linear_kernel_hedgehog__moe_arch_mod__prompt_kernel'

NONCE = 0x0
MODP2 = 0x020000
SINB = 0x200000
AINB = 0x080000
INB = 0x100000
HF = 0x400000
OF = 0x800000
ST = 0xC00000
XS = 0xD00000
UP = 0xD80000
HGR = 0x1400000
ZP = 0x1480000
GGR = 0x1500000
KVP = 0x1800000
KIN = 0x1C00000
STAMPS = 0x1600000
WS_BYTES = 268435456

REG = 49152
MISC = 147456
L_A1 = MISC
L_ST = MISC + 6144
L_MP = MISC + 8192
L_WPHI = MISC + 12288
L_KH = 0
L_QH = MISC + 4096
L_KVF = MISC
L_ZF = MISC + 8192
L_M2 = MISC + 9984
L_MD = MISC + 12288
L_K1 = MISC + 8704
L_K2 = MISC + 8832
L_ACT = MISC + 9216
L_GB = MISC + 9728
L_HV = 32768
L_PHK = 0
L_TR = 98304
L_GU = 0
L_DN = 65536
UR = 393216

SPIN_LIMIT = 200000

sWAVE, sTAG, sSPIN, sMASK, sL2E = 3, 4, 5, 6, 7
sX, sJ, sR1, sHP, sCB = 8, 9, 10, 11, 12
T0, T1, T2, T3, T4, T5, T6, T7 = 13, 14, 15, 16, 17, 18, 19, 20
sRT = 21
sCMP = 22
sPL = 24
rWS, rX, rW, rWO, rWM, rWG, rWU, rWD, rOUT = 32, 36, 40, 44, 48, 52, 56, 60, 64
KA = 68
pWPHI, pWR, pC = KA + 4, KA + 10, KA + 18
sK1, sK2, sROW0, sROW1, sFS, sKQ, sKH, sRB = 68, 69, 70, 71, 74, 75, 76, 77
sFG, sFD, sU, sW1K, sU0, sWB = 80, 81, 82, 83, 84, 85
sAB, sM2, sWO, sY0 = 88, 89, 90, 91
sINB, sRow, sY1, sY2 = 92, 93, 94, 95
sCM = 84
sC2 = 88
XT = (96, 97, 98, 99)
sTM = 100
ENV = dict(wg=2, w=sWAVE, x=sX, j=sJ, r1=sR1, hp=sHP, cb=sCB, rt=sRT, row=sRow, kh=sKH, rb=sRB, fs=sFS, kq=sKQ,
           w1k=sW1K, u=sU, fg=sFG, fd=sFD, u0=sU0, wb=sWB, ab=sAB, m2=sM2, wo=sWO, y0=sY0, y1=sY1, y2=sY2,
           k1=sK1, k2=sK2, row0=sROW0, row1=sROW1,
           T0=T0, T1=T1, T2=T2, T3=T3, T4=T4, T5=T5, T6=T6, T7=T7)

vL, vL16, vWd, vT = 1, 2, 3, 4
XR = 12
vB = 20
vS0, vS1 = 26, 27
RING = 28
AK, AV, AQ = 56, 88, 120
AR = 152
SP = 248


class Stream:
    def __init__(self, g): self.g, self.q, self.wake = g, [], 0
    def add(self, fn, v=0, l=0): self.q.append((v, l, fn))
    def sleep(self, k): self.q.append(('sleep', k, None))
    def until(self, n): self.q.append(('until', n, None))
    def cap(self, fn):
        a = self.g.a
        keep = a.items; a.items = []
        fn()
        body = a.items; a.items = keep
        run = []
        for it in body:
            i = it[1]
            assert it[0] == 'ins' and i.cls in ('valu', 'salu', 'mfma'), it
            run.append(it)
            if i.cls == 'salu': continue
            c = 8 if (i.cls == 'mfma' or i.is_trans or 'permlane' in i.mn) else 6 if i.mn.startswith(('v_fma', 'v_max3', 'v_min3', 'v_lshl_', 'v_bfe')) else 4.75 if i.mn.startswith('v_cvt') else 4
            self.q.append((c + (len(run) - 1), 0, (lambda r=run: a.items.extend(r)))); run = []
        if run: self.q.append((len(run), 0, (lambda r=run: a.items.extend(r))))
    def mark(self, name): self.q.append((0, 0, lambda: (self.g.marks.add(name), self.g.markn.append((name, self.g.cur[0])))))
    def pull(self, bud, full):
        n = self.g.cur[0]
        while self.q and n >= self.wake:
            v, l, fn = self.q[0]
            if v == 'sleep': self.wake = n + l; self.q.pop(0); continue
            if v == 'until': self.wake = max(n, l); self.q.pop(0); continue
            if l > bud[1]: return
            if v > bud[0] and bud[0] < full:
                bud[0] = -1; return
            self.q.pop(0); fn(); bud[0] -= v; bud[1] -= l


DEFAULTS = dict(wburst=(0, 2, 2, 0, 6, 0), xtat=0, wpre=(2, 0), dnsplit=1, lateB=1, wo0=0, m2k0=11, m2n0=4, mdlate=1, m2gap=10, m2cut=60, aoff=6, wpace=0, cprio=1, g2p=28, tlb=0, tlbk=2, tsin=0, tz=0, outat=2, gbar=1, fbar=0, xorw=1, LOOK=6, A00=8, A0=8, Apos=(6, 6, 6, 6, 6, 6, 5, 5, 5, 5),
                wsched={5: 'k10 v10', 6: 'k11 v11', 7: 'k12 v12', 8: 'k13 v13', 9: 'k14 q10', 10: 'k15 q11', 11: 'v14 v15 q12', 12: 'q13 q14 q15'},
                bA=271, bH=295, kbud=10, vbud=5, wcost=5, kdel=1, hh=0.25, hq=0.97, hpf=(0.3, 0.7), fA=2, woA=4, hgap=(20, 14), fpre=8, m2c=4, m2k3='(j & 1)*2 + 1', m2g=5, m2e=7, m2nb=1, m2db=2, apos=0, hprio=3, qmid=8, qsplit=16, wowin=(4, 4, 4), AD2=8, LOOK2=7, g2r='(j & 1)*4', Hdir=0, Gdir=0, C2dir=0, poisat=3, earlyD=1, ocut=(2, 2, 3), pairw2=4, worot=1, fwin=(0, 0, 0, 3, 2, 3, 2), prio=2, tour=1, al12=1, kofs=0x300)


class Gen:
    def __init__(self, prof=False, opts=None):
        self.a = Asm()
        self.vm = Counter(self.a, 'vmcnt', 63)
        self.lg = Counter(self.a, 'lgkmcnt', 15)
        self.marks = set(); self.markn = []
        self.vL = vL
        self.prof = prof
        self.nopk = False
        self.nst = 0
        self.stnames = []
        self.S = SExpr(self.a, ENV, {k: v for k, v in globals().items() if isinstance(v, int) and k.isupper() and k not in ENV}, XT)
        self.o = dict(DEFAULTS)
        if opts: self.o.update(opts)

    def bl(self, dst, n, voff, srd, soff, imm=0, mods='', tag=None):
        op = {1: 'dword', 2: 'dwordx2', 4: 'dwordx4'}[n]
        so = soff if isinstance(soff, str) else (sr(soff))
        self.a(f'buffer_load_{op} {vr(dst, n)}, v{voff}, {sr(srd, 4)}, {so} offen' + (f' offset:{imm}' if imm else '') + (' ' + mods if mods else ''))
        self.vm.issue(tag)
    def bs(self, src, n, voff, srd, soff, imm=0, mods='', tag=None, count=True):
        op = {1: 'dword', 2: 'dwordx2', 4: 'dwordx4'}[n]
        so = soff if isinstance(soff, str) else (sr(soff))
        self.a(f'buffer_store_{op} {vr(src, n)}, v{voff}, {sr(srd, 4)}, {so} offen' + (f' offset:{imm}' if imm else '') + (' ' + mods if mods else ''))
        if count: self.vm.issue(tag)
    def dma(self, voff, srd, soff, imm=0, mods='', tag=None):
        self.a(f'buffer_load_dwordx4 v{voff}, {sr(srd, 4)}, {sr(soff)} offen' + (f' offset:{imm}' if imm else '') + (' ' + mods if mods else '') + ' lds')
        self.vm.issue(tag)
    def dr(self, op, dst, n, addr, off=0, tag=None):
        assert 0 <= off < 65536, off
        self.a(f'{op} {vr(dst, n)}, v{addr}' + (f' offset:{off}' if off else ''))
        self.lg.issue(tag)
    def tr(self, dst, addr, off, tag=None): self.dr('ds_read_b64_tr_b16', dst, 2, addr, off, tag)
    def r128(self, dst, addr, off=0, tag=None): self.dr('ds_read_b128', dst, 4, addr, off, tag)
    def dw(self, op, addr, src, n, off=0, tag=None):
        assert 0 <= off < 65536, off
        self.a(f'{op} v{addr}, {vr(src, n)}' + (f' offset:{off}' if off else ''))
        self.lg.issue(tag)
    def barrier(self):
        self.lg.wait_all()
        self.a('s_barrier')
    def stamp(self, name):
        if self.o.get('jit') and name not in ('karg', 'fin', 'end'):
            L = self.a.label('JIT')
            self.a(f's_memtime {sr(sTM, 2)}'); self.lg.wait_all()
            self.a(f's_mul_i32 s{sTM}, s{sTM}, 0x9e3779b1\ns_lshr_b32 s{sTM}, s{sTM}, {32 - self.o["jit"]}\ns_add_u32 s{sTM}, s{sTM}, 1\n{L}:\ns_sleep 1\ns_sub_u32 s{sTM}, s{sTM}, 1\ns_cmp_lg_u32 s{sTM}, 0\ns_cbranch_scc1 {L}')
        ex = self.o.get('exfil')
        if ex and name in ex[:2]:
            self.a(f's_memrealtime {sr(sTM, 2)}')
            self.lg.wait_all()
            self.a(f'v_writelane_b32 v255, s{sTM}, {1 + ex.index(name)}')
        if not self.prof: return
        only = self.o.get('only')
        if only and name not in only and name != 'end': return
        self.a(f's_memtime {sr(sTM, 2)}')
        self.a(f's_memrealtime s[0:1]')
        self.lg.wait_all()
        self.a(f'v_writelane_b32 v255, s{sTM}, {self.nst}')
        self.a(f'v_writelane_b32 v254, s0, {self.nst}')
        self.stnames.append(name)
        self.nst += 1
        assert self.nst <= 60
    def unpack(self, lo, hi, src):
        self.a(f'v_lshlrev_b32 v{lo}, 16, v{src}')
        self.a(f'v_and_b32 v{hi}, s{sMASK}, v{src}')
    def round1(self, r):
        self.a(f'v_cvt_pk_bf16_f32 v{r}, 0, v{r}')
    def round2(self, r0, r1):
        self.round1(r0); self.round1(r1)
    def round_list(self, regs):
        for r in regs: self.round1(r)
    def pk(self, op, d, s0, s1, s2=None, bc=(), neg=()):
        srcs = [s0, s1] + ([s2] if s2 is not None else [])
        if self.nopk:
            for h in range(2):
                t = []
                for k, r in enumerate(srcs):
                    kind, n = r if isinstance(r, tuple) else ('v', r)
                    t.append(('-' if k in neg else '') + f'{kind}{n if k in bc else n + h}')
                e64 = '' if op == 'fma' else ('_e64' if (neg or t[1][0] == 's') else '')
                self.a(f'v_{op}_f32{e64} v{d+h}, ' + ', '.join(t))
            return
        if 1 in bc and not isinstance(s1, tuple) and s1 & 1 and not self.o.get('badpk'):
            assert 0 not in bc
            sw = lambda t: tuple({0: 1, 1: 0}.get(k, k) for k in t)
            srcs[0], srcs[1] = srcs[1], srcs[0]; bc, neg = sw(bc), sw(neg)
        txt, sel, selhi = [], [], []
        for k, r in enumerate(srcs):
            kind, n = r if isinstance(r, tuple) else ('v', r)
            if k in bc:
                txt.append(f'{kind}[{n & ~1}:{(n & ~1) + 1}]'); sel.append(n & 1); selhi.append(n & 1)
            else:
                assert n % 2 == 0
                txt.append(f'{kind}[{n}:{n+1}]'); sel.append(0); selhi.append(1)
        assert d % 2 == 0
        m = ''
        if any(sel): m += ' op_sel:[' + ','.join(map(str, sel)) + ']'
        if not all(selhi): m += ' op_sel_hi:[' + ','.join(map(str, selhi)) + ']'
        if neg:
            ng = ','.join('1' if k in neg else '0' for k in range(len(srcs)))
            m += f' neg_lo:[{ng}] neg_hi:[{ng}]'
        self.a(f'v_pk_{op}_f32 v[{d}:{d+1}], ' + ', '.join(txt) + m)
    def dpp(self, op, d, s0, s1, ctl):
        self.a(f'{op}_dpp v{d}, v{s0}, v{s1} {ctl} row_mask:0xf bank_mask:0xf')
    def allreduce(self, v, t, op='v_add_f32', lo=True, b3=True):
        if lo:
            self.dpp(op, v, v, v, 'quad_perm:[1,0,3,2]')
            self.dpp(op, v, v, v, 'quad_perm:[2,3,0,1]')
            self.dpp(op, v, v, v, 'row_half_mirror')
        self.dpp(op, v, v, v, 'row_ror:8')
        self.a(f'v_mov_b32 v{t}, v{v}')
        self.a(f'v_permlane16_swap_b32 v{v}, v{t}')
        self.a(f'{op} v{v}, v{v}, v{t}')
        self.a(f'v_mov_b32 v{t}, v{v}')
        self.a(f'v_permlane32_swap_b32 v{v}, v{t}')
        self.a(f'{op} v{v}, v{v}, v{t}')
    def poll(self, loads, tagregs, tmp=None, post=None):
        a = self.a
        L, D = a.label('POLL'), a.label('PDONE')
        a(f'{L}:')
        loads()
        self.vm.wait_all()
        if post: post()
        if len(tagregs) == 1:
            a(f'v_cmp_ne_u32 vcc, s{sTAG}, v{tagregs[0]}')
        else:
            a(f'v_bitop3_b32 v{tmp}, v{tagregs[0]}, v{tagregs[1]}, s{sTAG} bitop3:0x7e')
            for t in tagregs[2:]: a(f'v_bitop3_b32 v{tmp}, v{tmp}, v{t}, s{sTAG} bitop3:0xf6')
            a(f'v_cmp_ne_u32 vcc, 0, v{tmp}')
        a(f's_cbranch_vccz {D}')
        a(f's_add_u32 s{sSPIN}, s{sSPIN}, 1')
        a(f's_cmp_lt_u32 s{sSPIN}, {SPIN_LIMIT}')
        a(f's_cbranch_scc1 {L}')
        a(f'{D}:')
    def weave(self, fn, extras):
        a = self.a
        keep = a.items; a.items = []
        fn()
        body = a.items; a.items = keep
        extras = list(extras); n = len(extras)
        for i, it in enumerate(body):
            while extras and (n - len(extras)) * len(body) <= i * n: extras.pop(0)()
            a.items.append(it)
        for e in extras: e()
    def tagcheck(self, tagregs, tmp):
        a = self.a
        if len(tagregs) == 1:
            a(f'v_cmp_ne_u32 vcc, s{sTAG}, v{tagregs[0]}')
        else:
            a(f'v_bitop3_b32 v{tmp}, v{tagregs[0]}, v{tagregs[1]}, s{sTAG} bitop3:0x7e')
            for t in tagregs[2:]: a(f'v_bitop3_b32 v{tmp}, v{tmp}, v{t}, s{sTAG} bitop3:0xf6')
            a(f'v_cmp_ne_u32 vcc, 0, v{tmp}')
    def try_load(self, loads, tagregs, tmp=None, between=None, pre=None):
        a = self.a
        n0 = len(self.vm.q)
        loads()
        self.vm.q[-1] = tg = ('try', a.label('T'))
        if between: between()
        self.vm.wait(tg)
        OK = a.label('TOK')
        self.tagcheck(tagregs, tmp)
        a(f's_cbranch_vccz {OK}')
        q, l = list(self.vm.q), list(self.lg.q)
        if pre: pre()
        self.poll(loads, tagregs, tmp)
        self.vm.q, self.lg.q = q, l
        a(f'{OK}:')
    def spoll(self, loads, checks, work=None):
        a = self.a
        L, C, D = a.label('SPOLL'), a.label('SCHK'), a.label('SDONE')
        def issue():
            for d, n, so, imm in loads:
                op = {1: 'dword', 2: 'dwordx2', 4: 'dwordx4', 8: 'dwordx8'}[n]
                a(f's_load_{op} {sr(sPL + d, n)}, {sr(rWS, 2)}, s{so} offset:{imm} glc')
        if work:
            issue(); work()
            a(f's_branch {C}')
        a(f'{L}:')
        issue()
        a(f'{C}:')
        a(f's_add_u32 s{sSPIN}, s{sSPIN}, 1')
        a(f's_cmp_ge_u32 s{sSPIN}, {SPIN_LIMIT}')
        self.lg.wait_all()
        a(f's_cbranch_scc1 {D}')
        for k in checks:
            a(f's_cmp_lg_u32 s{sPL + k}, s{sTAG}')
            a(f's_cbranch_scc1 {L}')
        a(f'{D}:')
    def inbox(self, box, n, checks=None, work=None):
        self.spoll([(0, n, sINB, box * 512)], range(n) if checks is None else checks, work)
    def va(self, dst, terms, sreg=None, const=0, tmp=None):
        a = self.a; vL = self.vL
        first = True
        for sh, bits, mult in terms:
            full = sh + bits >= 6
            src = vL
            t = dst if first else tmp
            if sh == 0 and full: pass
            elif full: a(f'v_lshrrev_b32 v{t}, {sh}, v{vL}'); src = t
            elif sh == 0: a(f'v_and_b32 v{t}, {(1 << bits) - 1}, v{vL}'); src = t
            else: a(f'v_bfe_u32 v{t}, v{vL}, {sh}, {bits}'); src = t
            p2 = mult & (mult - 1) == 0
            k = mult.bit_length() - 1
            if first:
                if p2 and sreg is not None: a(f'v_lshl_add_u32 v{dst}, v{src}, {k}, s{sreg}'); sreg = None
                elif p2 and k: a(f'v_lshlrev_b32 v{dst}, {k}, v{src}')
                elif p2:
                    if src != dst: a(f'v_mov_b32 v{dst}, v{src}')
                else: a(f'v_mul_u32_u24 v{dst}, {mult}, v{src}')
            else:
                assert p2
                a(f'v_lshl_add_u32 v{dst}, v{src}, {k}, v{dst}')
            first = False
        if sreg is not None: a(f'v_add_u32 v{dst}, s{sreg}, v{dst}')
        if const: a(f'v_add_u32 v{dst}, {const}, v{dst}')
    def push(self, vaddr, soff, nl, vtmp, lab, wave=0):
        a = self.a
        a(f's_cmp_lg_u32 s{sWAVE}, {wave}')
        a(f's_cbranch_scc1 {lab}')
        a(f'v_mov_b32 v{vtmp}, s{sTAG}')
        a(f's_mov_b32 exec_hi, 0')
        if nl < 32: a(f's_mov_b32 exec_lo, {(1 << nl) - 1}')
        self.bs(vtmp, 1, vaddr, rWS, soff, 0, 'sc1', count=False)
        a('s_mov_b64 exec, -1')
        a(f'{lab}:')
    def silu(self, v, t):
        a = self.a
        a(f'v_mul_f32 v{t}, s{sL2E}, v{v}')
        a(f'v_exp_f32 v{t}, -v{t}')
        a(f'v_add_f32 v{t}, 1.0, v{t}')
        a(f'v_rcp_f32 v{t}, v{t}')
        a(f'v_mul_f32 v{v}, v{v}, v{t}')
        self.round1(v)
    def gemv_ops(self, wregs, cregs, acc, t0, t1, packed):
        ops = []
        assert t0 % 2 == 0 and t1 == t0 + 1
        for i, (w, c) in enumerate(zip(wregs, cregs)):
            cp = f'v[{c & ~1}:{(c & ~1) + 1}]'
            for d in range(4):
                tt = t0 + 2 * (d & 1)
                ops.append(f'v_lshlrev_b32 v{tt}, 16, v{w+d}')
                ops.append(f'v_and_b32 v{tt+1}, s{sMASK}, v{w+d}')
                ac = f'v[{acc+2*d}:{acc+2*d+1}]'
                if not packed:
                    for h in range(2): ops.append(f'v_mul_f32 v{acc+2*d+h}, v{tt+h}, v{c}' if i == 0 else f'v_fmac_f32 v{acc+2*d+h}, v{tt+h}, v{c}')
                elif i == 0: ops.append(f'v_pk_mul_f32 {ac}, {cp}, v[{tt}:{tt+1}] op_sel:[{c & 1},0] op_sel_hi:[{c & 1},1]')
                else: ops.append(f'v_pk_fma_f32 {ac}, {cp}, v[{tt}:{tt+1}], {ac} op_sel:[{c & 1},0,0] op_sel_hi:[{c & 1},1,1]')
        for i in range(4): ops.append(f'v_permlane32_swap_b32 v{acc+i}, v{acc+4+i}')
        for i in range(4): ops.append(f'v_add_f32 v{acc+i}, v{acc+i}, v{acc+4+i}')
        for i in range(2): ops.append(f'v_permlane16_swap_b32 v{acc+i}, v{acc+2+i}')
        for i in range(2): ops.append(f'v_add_f32 v{acc+i}, v{acc+i}, v{acc+2+i}')
        for i in range(2): ops.append(f'v_add_f32_dpp v{acc+i}, v{acc+i}, v{acc+i} row_ror:8 row_mask:0xf bank_mask:0xf')
        ops.append(f'v_mov_b32_dpp v{acc}, v{acc+1} quad_perm:[0,1,2,3] row_mask:0xf bank_mask:0xc')
        return ops
    def sum8(self, b):
        self.pk('add', b, b, b + 2); self.pk('add', b + 4, b + 4, b + 6); self.pk('add', b, b, b + 4)
        self.a(f'v_add_f32 v{b}, v{b}, v{b+1}')
    def softmax_pm(self, p, e, out, t, mid=None, part=0, split=0, stage=None):
        a = self.a
        mx, mn, u0, u1, s0, s1 = t, t + 1, t + 2, t + 3, t + 4, t + 6
        if part != 2:
            self.round_list([p + i for i in range(16)])
            a(f'v_max3_f32 v{mx}, v{p}, v{p+1}, v{p+2}')
            a(f'v_min3_f32 v{mn}, v{p}, v{p+1}, v{p+2}')
            for i in range(3, 15, 2):
                a(f'v_max3_f32 v{mx}, v{mx}, v{p+i}, v{p+i+1}')
                a(f'v_min3_f32 v{mn}, v{mn}, v{p+i}, v{p+i+1}')
            a(f'v_max_f32 v{u0}, v{mx}, v{p+15}')
            a(f'v_min_f32 v{u1}, v{mn}, v{p+15}')
            a(f'v_max_f32 v{mx}, v{mx}, v{p+15}')
            a(f'v_min_f32 v{mn}, v{mn}, v{p+15}')
            a(f'v_permlane32_swap_b32 v{mx}, v{u0}')
            a(f'v_permlane32_swap_b32 v{mn}, v{u1}')
            a(f'v_max_f32 v{mx}, v{mx}, v{u0}')
            a(f'v_min_f32 v{mn}, v{mn}, v{u1}')
            self.pk('mul', mx, mx, ('s', sL2E), bc=(1,))
            mn2 = mn
            if not self.nopk: a(f'v_mov_b32 v{u0}, v{mn}'); mn2 = u0
            for i in range(0, 16, 2):
                self.pk('fma', e + i, p + i, ('s', sL2E), mx, bc=(1, 2), neg=(2,))
                self.pk('fma', p + i, p + i, ('s', sL2E), mn2, bc=(1, 2), neg=(0,))
        for i in range(split if part == 2 else 0, 16):
            if mid and i == mid[0]: mid[1]()
            if part == 1 and i == split: return
            a(f'v_exp_f32 v{e+i}, v{e+i}')
            a(f'v_exp_f32 v{p+i}, v{p+i}')
        self.pk('add', s0, e, e + 2); self.pk('add', s1, p, p + 2)
        for i in range(4, 16, 2):
            self.pk('add', s0, s0, e + i); self.pk('add', s1, s1, p + i)
        a(f'v_add_f32 v{u0}, v{s0}, v{s0+1}')
        a(f'v_add_f32 v{u1}, v{s1}, v{s1+1}')
        a(f'v_add_f32 v{mx}, v{s0}, v{s0+1}')
        a(f'v_add_f32 v{mn}, v{s1}, v{s1+1}')
        a(f'v_permlane32_swap_b32 v{mx}, v{u0}')
        a(f'v_permlane32_swap_b32 v{mn}, v{u1}')
        self.pk('add', mx, mx, u0)
        a(f'v_rcp_f32 v{mx}, v{mx}')
        a(f'v_rcp_f32 v{mn}, v{mn}')
        for i in range(0, 16, 2):
            self.pk('mul', e + i, e + i, mx, bc=(1,))
            self.pk('mul', p + i, p + i, mn, bc=(1,))
        for i in range(8): a(f'v_cvt_pk_bf16_f32 v{out+i}, v{e+2*i}, v{e+2*i+1}')
        for i in range(8): a(f'v_cvt_pk_bf16_f32 v{out+8+i}, v{p+2*i}, v{p+2*i+1}')
    def ln_stats(self, xp, t, m_out, sd_out, fill=()):
        a = self.a
        fill = list(fill)
        def pad(n):
            for _ in range(n):
                if fill: a(fill.pop(0))
        s, u = t, t + 4
        a(f'v_mov_b32 v{u}, 0x3f803f80')
        for i in range(8):
            k = 2 * (i & 1)
            a(f'v_dot2_f32_bf16 v{s+k}, v{xp+i}, v{u}, ' + ('0' if i < 2 else f'v{s+k}'))
            a(f'v_dot2_f32_bf16 v{s+k+1}, v{xp+i}, v{xp+i}, ' + ('0' if i < 2 else f'v{s+k+1}'))
        pad(3)
        self.pk('add', s, s, s + 2)
        for ctl in ('quad_perm:[1,0,3,2]', 'quad_perm:[2,3,0,1]', 'row_half_mirror', 'row_ror:8'):
            pad(2 if ctl.endswith('3,2]') else 1)
            self.dpp('v_add_f32', s, s, s, ctl); self.dpp('v_add_f32', s + 1, s + 1, s + 1, ctl)
        pad(2)
        a(f'v_permlane16_swap_b32 v{s}, v{s+1}')
        a(f'v_add_f32 v{u}, v{s}, v{s+1}')
        a(f'v_add_f32 v{s}, v{s}, v{s+1}')
        pad(2)
        a(f'v_permlane32_swap_b32 v{s}, v{u}')
        a(f'v_add_f32 v{s}, v{s}, v{u}')
        a(f'v_mul_f32 v{u}, 0x3a800000, v{s}')
        a(f'v_mul_f32 v{s}, 0x3a800000, v{s}')
        pad(2)
        a(f'v_permlane16_swap_b32 v{s}, v{u}')
        a(f'v_fma_f32 v{sd_out}, -v{s}, v{s}, v{u}')
        a(f'v_cvt_pk_bf16_f32 v{m_out}, 0, v{s}')
        a(f'v_max_f32 v{sd_out}, 0, v{sd_out}')
        self.round1(sd_out)
        a(f'v_add_f32 v{sd_out}, 0x3727c5ac, v{sd_out}')
        self.round1(sd_out)
        a(f'v_sqrt_f32 v{sd_out}, v{sd_out}')
        pad(99)
        self.round1(sd_out)

    def build(self):
        self.front()
        self.gemm1()
        self.middle()
        self.gemm2()
        self.tail()
        self.finish()
        return self

    def vaa(self, dst, terms, sreg=None, const=0): self.va(dst, terms, sreg, const, vT + 5)

    def front(self):
        a, vm, lg, o, S, va = self.a, self.vm, self.lg, self.o, self.S, self.vaa
        E2 = range(0, 16, 2)
        a(f'{NAME}:')
        a(f's_load_dwordx16 {sr(KA, 16)}, s[0:1], 0')
        a(f's_load_dwordx8 {sr(KA + 16, 8)}, s[0:1], 64')
        a(f's_load_dwordx2 {sr(rWS, 2)}, s[0:1], 104')
        a('s_cmp_ge_u32 s2, 256')
        a('s_cbranch_scc1 L_END')
        if self.prof:
            a(f's_memrealtime {sr(sCMP, 2)}')
            a(f's_memtime {sr(sTM, 2)}')
            a('v_mov_b32 v255, 0')
            a('v_mov_b32 v254, 0')
            self.stnames.append('start'); self.nst = 1
        if o.get('exfil'): a(f's_memrealtime {sr(sTM, 2)}')
        a(f"""v_lshrrev_b32 v{vT}, 6, v0
        v_and_b32 v{vL}, 63, v0
        s_nop 0
        v_readfirstlane_b32 s{sWAVE}, v{vT}
        v_lshlrev_b32 v{vL16}, 4, v{vL}""")
        for srd, size in ((rX, 4194304), (rWM, 12582912), (rWS, WS_BYTES), (rW, 6291456), (rWO, 2097152), (rWG, 7340032), (rWU, 7340032), (rWD, 7340032), (rOUT, 4194304)):
            a(f's_mov_b32 s{srd+2}, {size}')
            a(f's_mov_b32 s{srd+3}, 0x20000')
        a(f"""s_mov_b32 s{sSPIN}, 0
        s_mov_b32 s{sMASK}, 0xffff0000
        s_mov_b32 s{sL2E}, 0x3fb8aa3b""")
        S(sX, 'wg & 7'); S(sJ, 'wg >> 3')
        S(sRow, 'wg*8 + w')
        S(sR1, '(x & 4)*2 + (j >> 2)'); S(sHP, '(x & 3)*4 + ((j & 3) ^ q)', q=o.get('hpx', 2))
        S(sCB, '(x & 1)*8 + (j & 7)')
        S(sRT, '(x >> 1)*4 + (j >> 3)')
        S(sINB, '(wg*64 + w)*64 + INB')
        xs_raw, wm, cv, st, acc, xs, mp, hp = AR, AR + 8, AR + 16, AR + 20, AR + 24, AR + 32, AR + 48, AR + 64
        vWM, vCo, vL8, vL32S, vGA, vXT = SP, SP + 1, SP + 2, SP + 3, SP + 4, vT + 6
        self.vWM, self.vL8, self.vL32S, self.vGA = vWM, vL8, vL32S, vGA
        S(T3, '((x >> 1)*256 + j*8 + w)*4096 + (x & 1)*1024')
        va(vT + 4, [(0, 5, 16), (5, 1, 2048)])
        S(T2, '(x*8 + w)*32')
        S(T0, 'T2*6144 + (j ^ 1)*128'); S(T1, 'T0 + 8*12288')
        S(T5, '(rt*8 + w)*32768 + cb*128' if not o.get('fakext') else '((x*16 + (j >> 1))*32768) + (j & 1)*1024 + w*128')
        S(T4, '(((x >> 1)*16 + cb)*16 + w)*512 + AINB')
        va(vWM, [(3, 3, 12288), (0, 3, 16)])
        va(vCo, [(3, 3, 2)], T2)
        va(vXT, [(0, 4, 2048), (4, 2, 16)])
        a('s_waitcnt lgkmcnt(0)')
        if self.prof:
            a(f'v_writelane_b32 v255, s{sTM}, 0')
            a(f'v_writelane_b32 v255, s{sCMP}, 63')
            a(f'v_writelane_b32 v254, s{sCMP}, 0')
        if o.get('exfil'):
            for k in range(3): a(f'v_writelane_b32 v255, s{sTM}, {k}')
        self.stamp('karg')
        a(f's_mov_b64 {sr(rWM, 2)}, {sr(KA + 20, 2)}')
        self.bl(wm, 4, vWM, rWM, T0, 0, 'nt', 'wm')
        self.bl(wm + 4, 4, vWM, rWM, T1, 0, 'nt', 'wm')
        a(f's_load_dword s{sTAG}, {sr(rWS, 2)}, {NONCE}')
        a(f'global_load_ushort v{cv}, v{vCo}, {sr(pC, 2)}'); vm.issue('wm')
        a(f'global_load_ushort v{cv+1}, v{vCo}, {sr(pC, 2)} offset:16'); vm.issue('wm')
        a(f's_mov_b64 {sr(rX, 2)}, {sr(KA, 2)}')
        a(f's_load_dword s{sPL}, {sr(rWS, 2)}, s{sINB} offset:0 glc')
        for q in range(2): a(f's_load_dword s{sPL + 1 + q}, {sr(rWS, 2)}, s{T4} offset:{q * 4096 + 508} glc')
        if o['tlb'] & 1:
            S(T6, '(w & 1)*2097152 + HF')
            a(f's_load_dword s{sPL + 5}, {sr(rWS, 2)}, s{T6} offset:0')
        if o['tsin']:
            S(T6, '(wg*8 + w)*512 + SINB')
            for q in range(2): a(f's_load_dword s{sPL + 3 + q}, {sr(rWS, 2)}, s{T6} offset:{q * 256 + 252} glc')
        if o.get('bar0', 1): a('s_barrier')
        self.bl(xs_raw, 4, vT + 4, rX, T3, 0, '', 'xs')
        self.bl(xs_raw + 4, 4, vT + 4, rX, T3, 512, '', 'xs')
        for srd, k in ((rW, 2), (rWO, 6), (rWG, 12), (rWU, 14), (rWD, 16), (rOUT, 22)):
            a(f's_mov_b64 {sr(srd, 2)}, {sr(KA + k, 2)}')
        a(f"""s_getpc_b64 {sr(sCMP, 2)}
        s_and_b32 s{sCMP}, s{sCMP}, 0xfffffc00""")
        S(T6, '(j*8 + w)*128')
        va(vT, [(5, 1, 32768)], T6)
        a(f'v_min_u32 v{vT}, CODE_KB, v{vT}')
        a(f'global_load_dword v{vT+7}, v{vT}, {sr(sCMP, 2)}'); vm.issue()
        S(sKH, 'w >> 2'); S(sRB, 'w & 3'); S(sW1K, 'w*1024')
        S(sFS, 'x*7 + (j >> 2)'); S(sKQ, 'j & 3')
        va(vT + 2, [(4, 1, 64)]); va(vWd, [(0, 3, 16)])
        a(f'v_xor_b32 v{vWd}, v{vWd}, v{vT+2}'); va(vT + 2, [(3, 3, 6144)]); a(f'v_add_u32 v{vWd}, v{vWd}, v{vT+2}')
        S(sU0, o.get('u0', 'j & 12')); S(sWB, 'w*49152 + hp*128')
        wq = self.wq = [(n, t) for n in range(6) for t in 'kvq']
        def w_next(cnt=1):
            for _ in range(cnt):
                n, t = wq.pop(0)
                if t == 'k':
                    if n < 4:
                        S(sY1, '((j >> 4)*q) ^ n', n=n, q=2 * o['xorw'])
                        S(sY0, '((y1 + u0) & 15)*UR + wb'); S(sY1, 'y1*8192 + w1k')
                    else:
                        S(sY0, '((u0 + n) & 15)*UR + wb', n=n); S(sY1, 'w1k + q', q=n * 8192)
                S(sU, 'y0 + q', q=dict(q=0, k=2048, v=4096)[t]); S('m0', 'y1 + q', q='kvq'.index(t) * REG)
                self.dma(vWd, rW, sU, 0, '', ('W', n))
        wb = list(o['wburst'])
        va(vL8, [(0, 6, 8)])
        va(vL32S, [(0, 6, 32)], None, MISC)
        S(T0, 'w*4 + MISC')
        va(vGA, [(4, 2, 64), (0, 3, 256), (3, 1, 32)], T0)
        self.stamp('issued')
        def xt_load():
            self.bl(XR, 4, vXT, rX, T5, 0, '', 'xt')
            self.bl(XR + 4, 4, vXT, rX, T5, 64, '', 'xt')
        if o['xtat'] == 0: xt_load()
        S(T0, '((((w >> 1)*16 + ((j ^ 1) & 15))*2 + (j >> 4))*8 + x)*512 + AINB')
        w_next(o['wpre'][0])
        vm.wait('wm')
        self.stamp('wmok')
        w_next(o['wpre'][1])
        for i in range(2):
            a(f'v_lshlrev_b32 v{cv+i}, 16, v{cv+i}')
            self.silu(cv + i, vT + i)
        for s in self.gemv_ops([wm, wm + 4], [cv, cv + 1], acc, vT, vT + 1, True): a(s)
        a(f"""s_waitcnt lgkmcnt(0)
        s_mul_i32 s{sTAG}, s{sTAG}, 0x9e3779b1
        s_add_u32 s{sTAG}, s{sTAG}, 0x7f4a7c15""")
        self.dw('ds_write_b32', vGA, acc, 1, L_A1 - MISC)
        self.barrier()
        self.r128(acc, vL32S, L_A1 - MISC); self.r128(acc + 4, vL32S, L_A1 - MISC + 16)
        if o['xtat'] == 1: xt_load()
        lg.wait_all()
        self.sum8(acc)
        a(f'v_mov_b32 v{acc+1}, s{sTAG}')
        a(f"""s_bitcmp1_b32 s{sWAVE}, 0
        s_cselect_b32 exec_lo, 0, -1
        s_cselect_b32 exec_hi, -1, 0""")
        self.bs(acc, 2, vL8, rWS, T0, 0, 'sc1')
        a('s_mov_b64 exec, -1')
        self.stamp('A1pub')
        w_next(wb[0])
        vm.wait('xs')
        self.stamp('xsok')
        u1 = vT + 4
        a(f'v_mov_b32 v{u1}, 0x3f803f80')
        for i in range(8):
            k = 2 * (i & 1)
            a(f'v_dot2_f32_bf16 v{vT+k}, v{xs_raw+i}, v{u1}, ' + ('0' if i < 2 else f'v{vT+k}'))
            a(f'v_dot2_f32_bf16 v{vT+k+1}, v{xs_raw+i}, v{xs_raw+i}, ' + ('0' if i < 2 else f'v{vT+k+1}'))
        S(T0, 'w*32 + L_ST'); va(u1, [(5, 1, 16), (4, 1, 8)], T0)
        self.pk('add', st, vT, vT + 2)
        va(vT + 1, [(0, 4, 16)], None, L_ST)
        va(vT, [(0, 4, 16), (4, 1, 4096)])
        for ctl in ('quad_perm:[1,0,3,2]', 'quad_perm:[2,3,0,1]', 'row_half_mirror', 'row_mirror'):
            self.dpp('v_add_f32', st, st, st, ctl); self.dpp('v_add_f32', st + 1, st + 1, st + 1, ctl)
        S(T0, '((x & 6) + ((j & 24) + w)*8)*4096 + (j & 7)*512 + (x & 1)*256 + SINB')
        a(f"""v_permlane16_swap_b32 v{st}, v{st+1}
        v_add_f32 v{st}, v{st}, v{st+1}
        v_mov_b32 v{st+1}, s{sTAG}""")
        self.dw('ds_write_b64', u1, st, 2)
        self.barrier()
        self.r128(st, vT + 1)
        lg.wait_all()
        a('s_mov_b32 exec_hi, 0')
        self.bs(st, 4, vT, rWS, T0, 0, 'sc1')
        a('s_mov_b32 exec_hi, -1')
        self.stamp('A2pub')
        if o['xtat'] == 2: xt_load()
        w_next(wb[1])
        mg = acc
        def pre_work():
            va(vT, [(0, 5, 16), (5, 1, 4096)])
            S(T1, 'w*4 + L_MP'); va(vT + 1, [(0, 6, 64)], T1)
            va(vT + 2, [(0, 2, 32), (5, 1, 128), (4, 1, 256), (2, 2, 512)], None, L_MP)
            S(T1, '(wg*8 + w)*512 + SINB')
            va(vT + 4, [(0, 5, 16)])
        def x_unpack():
            vm.wait('xt')
            for p, q in ((0, 2), (1, 3), (4, 6), (5, 7)): a(f'v_permlane32_swap_b32 v{XR+p}, v{XR+q}')
            for i in range(8): self.unpack(xs + 2 * i, xs + 2 * i + 1, XR + i)
        self.spoll([(q, 1, T4, q * 4096 + 508) for q in range(2)], range(2), work=pre_work)
        self.stamp('apre')
        if o.get('abar', 0): a('s_barrier')
        st_ld = lambda: self.bl(st, 4, vT + 4, rWS, T1, 0, 'sc1', 'st')
        def st_go():
            self.spoll([(q, 1, T1, q * 256 + 252) for q in range(2)], range(2), work=x_unpack)
            st_ld()
            if o['fbar']: a('s_barrier')
            w_next(wb[2])
        self.try_load(lambda: self.bl(mg, 4, vT, rWS, T4, 0, 'sc1'), [mg + 1, mg + 3], vT + 3, st_go)
        self.stamp('modok')
        a(f'ds_write2_b32 v{vT+1}, v{mg}, v{mg+2} offset0:0 offset1:8'); lg.issue()
        self.barrier()
        for i in (2, 3, 0, 1): self.r128(mp + 4 * i, vT + 2, (i >> 1) * 2048 + (i & 1) * 16, i >> 1)
        S(T0, 'hp*4096 + w*512')
        a(f'v_add_u32 v{vT}, s{T0}, v{vL16}')
        S('m0', 'w*512 + L_WPHI')
        a('s_mov_b32 exec_hi, 0')
        a(f'global_load_lds_dwordx4 v{vT}, {sr(pWPHI, 2)}'); vm.issue()
        a('s_mov_b32 exec_hi, -1')
        w_next(wb[3])
        S(T0, '((rt*16 + cb)*4 + (w >> 1))*4096 + (w & 1)*256 + HF')
        va(vT, [(0, 4, 16), (4, 1, 1024), (5, 1, 512)])
        lg.wait(1); self.sum8(mp + 8)
        self.round1(mp + 8)
        lg.wait(0); self.sum8(mp)
        a(f'v_add_f32 v{mp+8}, 1.0, v{mp+8}')
        self.round2(mp + 8, mp)
        vm.wait('st')
        self.tagcheck([st + 1, st + 3], vT + 3)
        a('s_cbranch_vccz L_STOK')
        q0 = list(vm.q)
        self.poll(st_ld, [st + 1, st + 3], vT + 3)
        vm.q = q0
        a('L_STOK:')
        self.stamp('statok')
        a(f"""v_permlane16_swap_b32 v{st}, v{st+2}
        v_add_f32 v{st+3}, v{st}, v{st+2}
        v_mul_f32 v{st+2}, 0x3a800000, v{st+3}
        v_mul_f32 v{st+3}, 0x3a800000, v{st+3}
        v_permlane16_swap_b32 v{st+2}, v{st+3}
        v_fma_f32 v{st}, -v{st+2}, v{st+2}, v{st+3}
        v_cvt_pk_bf16_f32 v{st+1}, 0, v{st+2}
        v_max_f32 v{st}, 0, v{st}""")
        self.round1(st)
        for i in E2[:4]: self.pk('add', xs + i, xs + i, st + 1, bc=(1,), neg=(1,))
        a(f'v_add_f32 v{st}, 0x3727c5ac, v{st}')
        self.round1(st)
        a(f'v_sqrt_f32 v{st}, v{st}')
        for i in E2[4:]: self.pk('add', xs + i, xs + i, st + 1, bc=(1,), neg=(1,))
        self.round1(st)
        a(f'v_rcp_f32 v{st}, v{st}')
        self.round_list([xs + i for i in range(16)])
        for i in E2: self.pk('mul', xs + i, xs + i, st, bc=(1,))
        self.round_list([xs + i for i in range(16)])
        for h in range(2):
            rg = range(8 * h, 8 * h + 8)
            for i in rg: self.dpp('v_mul_f32', xs + i, mp + 8, xs + i, f'row_newbcast:{i}')
            self.round_list([xs + i for i in rg])
            for i in rg: self.dpp('v_add_f32', xs + i, mp, xs + i, f'row_newbcast:{i}')
            for i in range(4 * h, 4 * h + 4): a(f'v_cvt_pk_bf16_f32 v{hp+i}, v{xs+2*i}, v{xs+2*i+1}')
            self.bs(hp + 4 * h, 4, vT, rWS, T0, 2048 * h, 'sc1', 'hs')
        self.stamp('hst')
        va(vB, [(2, 2, 128), (3, 1, 64), (4, 1, 32), (0, 2, 8), (5, 1, 512)])
        a(f'v_xor_b32 v{vB+1}, 64, v{vB}')
        for q in (1, 2):
            for h in range(2): a(f'v_add_u32 v{vB+2*q+h}, {q*REG}, v{vB+h}')
        va(vT + 1, [(0, 2, 8 * 4096), (2, 2, 4096)])
        S(T0, '((rt >> 3)*4 + (rt & 7)*32)*4096 + (cb >> 1)*64 + (cb & 1)*4 + INB')
        S(sAB, 'r1*262144 + rb*4096 + HF')
        a(f"""s_cmp_ge_u32 s{sJ}, {0 if o.get('noffn') else 28}
        s_cselect_b32 s{rWG+2}, 0, s{rWG+2}
        s_cselect_b32 s{rWU+2}, 0, s{rWU+2}
        s_cselect_b32 s{rWD+2}, 0, s{rWD+2}""")
        vm.wait('hs')
        a('s_barrier')
        self.push(vT + 1, T0, 16, vT + 2, 'L_PB')
        self.stamp('hpub')
        w_next(wb[4])
        vWo, vFG, vFD = vS0, vS1, SP + 5
        def setup():
            S(sWO, 'w*16384 + cb*128'); S(sY2, '((j & 1)*8 + (j >> 3)*2)*131072' if o['worot'] else '(j & 1)*1048576')
            S(sFG, '(kq*8 + w)*(32*7168) + fs*128'); S(sFD, '(fs*8 + w)*16384 + kq*512')
            S(sM2, '((x & 3)*8 + w)*(32*12288) + (j*2 + (x >> 2))*128 + 4096')
            S(T1, '(w & 1)*64')
            va(vT + 2, [(4, 1, 32)], T1); va(vWo, [(0, 3, 16)])
            a(f'v_xor_b32 v{vWo}, v{vWo}, v{vT+2}'); va(vT + 2, [(3, 3, 2048)]); a(f'v_add_u32 v{vWo}, v{vWo}, v{vT+2}')
            S(T1, '(w & 2)*32'); va(vT + 2, [(4, 1, 32)], T1); va(vFG, [(0, 3, 16)])
            a(f'v_xor_b32 v{vFG}, v{vFG}, v{vT+2}'); va(vT + 2, [(3, 3, 7168)]); a(f'v_add_u32 v{vFG}, v{vFG}, v{vT+2}')
            S(T1, '(w & 1)*128')
            va(vT + 2, [(5, 1, 64)], T1); va(vFD, [(0, 5, 16), (5, 1, 2048)])
            a(f'v_xor_b32 v{vFD}, v{vFD}, v{vT+2}')
            S(T3, 'u0*16384'); a(f'v_add_u32 v{vCo}, s{sAB}, v{vL16}')
            S(T1, 'rb*2048 + L_QH'); a(f'v_add_u32 v0, s{T1}, v{vL16}')
        S(T6, 'wg*4096 + INB'); S(T7, '(w & 3)*128 + T6'); S(T6, 'u0*32 + T6')
        a(f's_cmp_ge_u32 s{sWAVE}, 4\ns_cselect_b32 s{T6}, s{T7}, s{T6}')
        bpoll = self.bpoll = lambda work=None: self.spoll([(0, 2, T6, 0), (2, 2, T6, 64)], range(4), work)
        if o['lateB']:
            def bw():
                w_next(wb[5]); setup(); a(';TOUR')
                a(f's_cmp_ge_u32 s{sWAVE}, 4\ns_cbranch_scc1 L_HELP')
            bpoll(bw)
        else: bpoll(lambda: (w_next(wb[5]), setup(), a(';TOUR')))
        assert len(wq) % 3 == 0 and len(wq) <= (6 if o['xorw'] else 12)

    def gemm1(self):
        a, vm, lg, o, S, va = self.a, self.vm, self.lg, self.o, self.S, self.vaa
        LOOK = o['LOOK']; NB = LOOK + 1; assert NB <= 7
        vWo, vFG, vFD, vHo = vS0, vS1, SP + 5, 0
        self.vWo, self.vFG, self.vFD = vWo, vFG, vFD
        m2w, m2c = AV, AV + 24
        FL = self.FL = AK
        cur = self.cur = [0]
        TOK = [(0, 3, 16), (3, 2, 256), (5, 1, 128)]
        def cvt8(d, s_):
            for i in range(8): a(f'v_cvt_pk_bf16_f32 v{d+i}, v{s_+2*i}, v{s_+2*i+1}')
        self.cvt8 = cvt8
        fq = self.fq = [(m, i) for m in range(3) for i in range(4)]
        held = self.held = ([], [])
        def f_src(m, i, far=0):
            q = (i * 8 * 7168 + far * 4 * 32 * 7168, i * 4096 + far * 4 * 16384)[m == 2]
            S(sU, ('fg', 'fd')[m == 2] + ' + q', q=q & 0xffffffff)
            return (vFG, (rWG, rWU)[m]) if m < 2 else (vFD, rWD)
        def f_lds(m, i): return (L_GU + m * 32768 if m < 2 else L_DN) + i * 1024
        def f_ld(g, k, far, count=True):
            m, i = held[g][k]
            v, r = f_src(m, i, far * (1 - 2 * g))
            a(f'buffer_load_dwordx4 {vr(FL + 8*k + 4*far, 4)}, v{v}, {sr(r, 4)}, s{sU} offen nt')
            if count: vm.issue('ffn')
        sym = self.sym = []
        def ffn_reg(n=1):
            for _ in range(n):
                m, i = fq.pop(0)
                r0 = 8 * len(held[1]) + 4 * len(sym); assert r0 < 64 and (r0 < 32 or o['m2c'] >= 3)
                assert o['m2c'] != 4 or r0 < 32 or 'm2pub' in self.marks
                v, r = f_src(m, i)
                self.bl(FL + r0, 4, v, r, sU, 0, 'nt', 'ffr')
                sym.append((m, i, FL + r0))
        def ffn_dma(n=1):
            for _ in range(n):
                m, i = fq.pop(0)
                v, r = f_src(m, i)
                S('m0', 'w1k*4 + q', q=f_lds(m, i))
                self.dma(v, r, sU, 0, 'nt', 'ffn' if m < 2 or not o['dnsplit'] else 'fdn')
        self.ffn_reg, self.ffn_dma, self.f_lds = ffn_reg, ffn_dma, f_lds
        for _ in range(o['fA']): held[1].append(fq.pop(0))
        def m2_ld(i):
            if i == 0:
                S(sU, '((x & 3)*8 + w)*64'); self.va(m2c + 4, [(3, 3, 2)], sU, 0, m2c + 5)
                for k in range(4): a(f'global_load_ushort v{m2c+k}, v{m2c+4}, {sr(pC, 2)} offset:{16*k}'); vm.issue('m2')
            S(sU, 'm2 + q', q=i * 8 * 12288)
            self.bl(m2w + 4 * i, 4, self.vWM, rWM, sU, 0, 'nt', 'm2')
        wslot = lambda p: p
        def wo_dma(p, back=0):
            S(sU, '(y2 ^ q) + wo' + (' - 65536' if back else ''), q=p * 131072)
            S('m0', 'w1k + q', q=wslot(p) * 8192 - 4096 * back)
            self.dma(vWo, rWO, sU, 0, '', 'wo')
        self.wo_dma = wo_dma
        def poison(backs, t):
            a(f'v_mov_b32 v{t}, -1\nv_mov_b32 v{t+1}, -1\nv_mov_b32 v{t+2}, -1\nv_mov_b32 v{t+3}, -1')
            for back in backs:
                S(T6, '((rt*8 + w - q)*16 + cb)*256 + ST', q=4 * back); self.va(t + 4, [(0, 6, 4)])
                self.bs(t, 1, t + 4, rWS, T6, 0, 'sc1')
            S(T6, 'rt*16384 + cb*512 + XS'); self.va(t + 4, [(0, 5, 16), (5, 1, 8192)], None, 0, t + 5)
            a(f's_cmp_lg_u32 s{sWAVE}, 5\ns_cbranch_scc1 L_NOPO')
            self.bs(t, 4, t + 4, rWS, T6, 0, 'sc1', count=False)
            a('L_NOPO:')
        self.poison = poison
        def kv_prep():
            vPA, vPB, ones = AK + 28, AK + 29, AK + 24; assert o['fA'] <= 3
            self.va(vPB, [(0, 1, 8), (2, 2, 16), (4, 1, 64), (1, 1, 128), (5, 1, 256)], None, 0, vPA)
            S(T0, 'w*4096 + L_PHK'); a(f'v_add_u32 v{vPA}, s{T0}, v{vPB}')
            S(T0, 'kh*8192 + L_HV'); a(f'v_add_u32 v{vPB}, s{T0}, v{vPB}')
            for i in range(4): a(f'v_mov_b32 v{ones+i}, 0x3f803f80')
            S(T0, '((hp*8 + w)*32 + r1)*1024 + KVP'); S(T2, 'T0 + 16384')
            S(T3, '(hp*8 + w)*1024 + ZP'); S(T1, 'r1*64 + T3')
        seq = []
        for sg in range(36): seq += [(t, h, sg) for t in 'kqv' for h in range(2)]
        for sg in range(36, 40): seq += [('k', h, sg) for h in range(2)]
        for sg in range(36, 40): seq += [(t, h, sg) for t in 'qv' for h in range(2)]
        for h in range(2): seq += [('k', h, sg) for sg in range(40, 64)]
        for t in 'vq':
            for sg in range(40, 64): seq += [(t, h, sg) for h in ((1, 0) if (t, sg) == ('q', 63) else (0, 1))]
        bA, bH, bQ = o['bA'], o['bH'], 335
        assert bA >= 271
        bars = [24 * k - 1 for k in range(1, 10)] + [223, 239, 253, bA, bH, bQ]
        first, last = {}, {}
        for n, (t, h, sg) in enumerate(seq):
            first.setdefault(f'{t}{sg >> 2}', n); last[f'{t}{sg >> 2}'] = n; last[('A', sg)] = n
        if not o['lateB']: a(f's_cmp_ge_u32 s{sWAVE}, 4\ns_cbranch_scc1 L_HELP')
        a(f's_setprio {o["prio"]}')
        q_hok = list(vm.q)
        ACC = dict(k=AK, v=AV, q=AQ)
        nxt = [0]; late = []
        def a_load():
            while late: a(late.pop(0))
            sg = nxt[0]; nxt[0] += 1
            assert sg < 16 or cur[0] > bars[0]
            if o.get('noA') and sg >= 12: return
            self.bl(AR + 4 * (sg % 24), 4, SP + 1, rWS, T3, (sg % 4) * 1024, 'sc1', ('A', sg))
            if sg % 4 == 3: late.extend([f's_add_u32 s{T3}, s{T3}, 16384', f's_and_b32 s{T3}, s{T3}, 0x3ffff'])
        def b_read(n):
            t, h, sg = seq[n]
            s = sg & 3
            off = ((sg >> 2) % 6) * 8192 + (s >> 1) * 4096 + (s & 1) * 1024
            d = RING + 4 * (n % NB); v = vB + 2 * 'kvq'.index(t) + h
            self.tr(d, v, off, ('B', n)); self.tr(d + 2, v, off + 2048, ('B', n))
        self.nopk = True
        stk, stv = Stream(self), Stream(self)
        for h in range(2):
            for q in range(2):
                stk.cap(lambda: [a(f'v_cvt_pk_bf16_f32 v{AK+16*h+4*q+i}, v{AK+16*h+8*q+2*i}, v{AK+16*h+8*q+2*i+1}') for i in range(4)])
                stk.add(lambda h=h, q=q: self.dw('ds_write_b128', vHo, AK + 16 * h + 4 * q, 4, q * 1024, f'kh{h}'), o['wcost'], 1)
            stk.mark(f'kh{h}')
            if h == 0:
                stk.cap(lambda: a(f'v_subrev_u32 v{vHo}, {L_QH - L_HV}, v{vHo}'))
                stk.until(288 + o['kdel'])
        stk.until(bH + 1)
        stk.cap(lambda: (S(T1, 'rb*2048 + L_HV'), self.va(vHo, TOK, T1, 0, vT)))
        for h in range(2):
            for q in range(2):
                stv.cap(lambda: [a(f'v_cvt_pk_bf16_f32 v{AV+16*h+4*q+i}, v{AV+16*h+8*q+2*i}, v{AV+16*h+8*q+2*i+1}') for i in range(4)])
                stv.add(lambda h=h, q=q: self.dw('ds_write_b128', vHo, AV + 16 * h + 4 * q, 4, h * 8192 + q * 1024, 'vst'), o['wcost'], 1)
        stv.cap(kv_prep)
        if o['m2c'] == 0:
            stv.sleep(4)
            stv.add(lambda: lg.wait('vst'))
            for i in range(4): stv.add(lambda i=i: m2_ld(i), 0, 1); stv.sleep(o.get('fgap', 4))
        while nxt[0] < o['A00']: a_load()
        vm.wait(('W', 3 if o['xorw'] else 1))
        a('s_barrier')
        self.stamp('hok')
        if not nxt[0]: a_load()
        for n in range(LOOK): b_read(n)
        while nxt[0] < o['A0']: a_load()
        seen = set(); lpend = []; owe = [0]
        Apos = list(o['Apos']); assert o['A0'] + sum(Apos) == 64
        for n in range(384):
            t, h, sg = seq[n]; cur[0] = n
            if ('A', sg) not in seen:
                assert sg < nxt[0]
                vm.wait(('A', sg)); seen.add(('A', sg))
            lg.wait(('B', n))
            d = ACC[t] + 16 * h
            a(f'v_mfma_f32_32x32x16_bf16 {vr(d, 16)}, {vr(RING + 4*(n % NB), 4)}, {vr(AR + 4*(sg % 24), 4)}, ' + (vr(d, 16) if sg else '0'))
            if self.prof and o.get('ls'):
                l0, l1, lst = o['ls']
                if lpend and n >= lpend[0][0]:
                    _, r_, k_ = lpend.pop(0); a(f'v_writelane_b32 v255, s{r_}, {k_}')
                if l0 <= n < l1 and (n - l0) % lst == 0:
                    r_ = sPL + 2 * (self.nst % 4)
                    a.items.append(('raw', f'    s_memtime {sr(r_, 2)}')); lpend.append((n + 4, r_, self.nst)); self.stnames.append(f'n{n}'); self.nst += 1
            def a_try():
                p, r = divmod(n, 24)
                ao = o['aoff'] if p else 0; r -= ao
                if n < 240 and r >= 0 and (r + 1) * Apos[p] // (24 - ao) > r * Apos[p] // (24 - ao): owe[0] += 1
                if owe[0] and (nxt[0] < 24 or last[('A', nxt[0] - 24)] <= n): a_load(); owe[0] -= 1
                elif late: a(late.pop(0))
            if o['apos'] == 0: a_try()
            bud = [o['kbud'], 1]
            if n >= 264 + o['kdel']: stk.pull(bud, bud[0])
            bud = [o['vbud'], 1]
            if n > bQ + 2: stv.pull(bud, bud[0])
            if n + LOOK < 384: b_read(n + LOOK)
            if o['apos'] == 1: a_try()
            if n in bars:
                if n in (bA, bH):
                    assert f'kh{int(n == bH)}' in self.marks
                    lg.wait(f'kh{int(n == bH)}')
                    if 'prio2' in o and n == bA: a(f's_setprio {o["prio2"]}')
                if not (o.get('noB') and n < 200): a('s_barrier')
                if o.get('gst'): self.stamp(f'b{n}')
        assert not (stk.q or stv.q) and nxt[0] == 64
        self.stamp('gemm1')
        vq, wph = AR + 16, AR + 24
        S(T4, 'rb*2048 + L_QH'); a(f'v_add_u32 v{vHo}, s{T4}, v{vL16}')
        va(vT, [(2, 2, 64), (4, 1, 32), (0, 2, 8), (5, 1, 256)], None, L_WPHI)
        for s in range(2):
            for u in range(2): self.tr(wph + 4 * s + 2 * u, vT, s * 1024 + u * 512)
        cvt8(AR, AQ + 16)
        for q in range(2): self.dw('ds_write_b128', vHo, AR + 4 * q, 4, q * 1024)
        cvt8(vq, AQ)
        if o['m2c'] == 1:
            for i in range(4): m2_ld(i)
        a('s_setprio 0')
        a('s_branch L_JOIN')
        a('L_HELP:')
        vm.q = list(q_hok); lg.reset()
        vm.wait(('W', 3 if o['xorw'] else 1))
        a('s_barrier')
        vis = {}
        pace = [1]
        def w_sec(t, n):
            if o.get('noW'): return
            for back in (1, 0):
                S(sU, '((u0 + n) & 15)*UR + wb + q', n=n, q=(dict(q=0, k=2048, v=4096)[t] - back * 4 * 49152) & 0xffffffff)
                S('m0', 'w1k + q', q='kvq'.index(t) * REG + (n % 6) * 8192 - back * 4096)
                self.dma(vWd, rW, sU, 0, '', ('W', t, n))
                if o['wpace'] and pace[0]: a(f's_waitcnt vmcnt({o["wpace"]})')
        for n, t in self.wq: w_sec(t, n)
        if o['lateB']:
            lg.wait_all(); self.bpoll()
        ka, wp2, pa, pb, ee, vPW = AR, AR + 16, AR + 32, AR + 48, AR + 64, AR + 80
        va(vT, [(2, 2, 64), (4, 1, 32), (0, 2, 8), (5, 1, 256)], None, L_WPHI)
        for hs in range(4):
            for u in range(2): self.tr(wp2 + 4 * hs + 2 * u, vT, hs * 1024 + u * 512)
        S(T1, 'rb*1024 + L_PHK'); va(vPW, TOK, T1)
        def touch(boxes):
            a('s_waitcnt lgkmcnt(0)')
            for q, b in enumerate(boxes):
                a(f's_load_dword s{sPL + 2*q}, {sr(rWS, 2)}, s{sINB} offset:{b * 512} glc')
                a(f's_load_dword s{sPL + 2*q + 1}, {sr(rWS, 2)}, s{sINB} offset:{b * 512 - 256} glc')
        wsched = {int(k): v.split() for k, v in o['wsched'].items()}
        for k in range(1, 5): wsched[k] = [f'{t}{k + 5}' for t in 'kqv'] + wsched.get(k, [])
        need = {}
        for u in first:
            k = len([b for b in bars if b < first[u] - LOOK])
            if k: need.setdefault(k, []).append(u)
        done = {f'{t}{n}' for n in range(6) for t in 'kvq'}
        def h_bar(k):
            if k < 5: vm.wait(('W', k + 1))
            for u in need.get(k, []):
                assert u in done, (u, k)
                vm.wait(('W', u[0], int(u[1:])))
            if not (o.get('noB') and k < 9): a('s_barrier')
            for u in wsched.get(k, []):
                assert last[f'{u[0]}{int(u[1:]) - 6}'] <= bars[k - 1], (u, k)
                w_sec(u[0], int(u[1:])); done.add(u)
        hm, hc, ha, ht = AV, AQ, AQ + 8, AQ + 16
        if o.get('fP'): S(T4, o['fP'])
        if o['m2c'] == 4:
            hc, ha, ht = RING + 8, AR + 44, RING + 24
            def m2h(i):
                S(sU, 'T6 + q', q=i * 8 * 12288)
                self.bl(hm + 4 * i, 4, self.vWM, rWM, sU, 0, 'nt')
        if o['m2c'] >= 3:
            S(T5, o['m2k3'])
            S(sU, '((x & 3)*4 + w - 4)*128'); va(ht, [(3, 3, 2)], sU)
            for i in range(8): a(f'global_load_ushort v{hc+i}, v{ht}, {sr(pC, 2)} offset:{16*i}'); vm.issue('c2')
            S(T6, '((x & 3)*4 + w - 4)*(64*12288) + (j*2 + (x >> 2))*128 + 4096')
        for k in range(1, 14):
            if k == 13: lg.wait_all()
            if o['m2c'] == 3 and k == o['m2e'] + 1: lg.wait_all()
            h_bar(k)
            if o['m2c'] == 4 and k == o['m2k0']:
                for i in range(o['m2n0']): m2h(i)
            if o['m2c'] == 4 and k == 3:
                vm.wait('c2')
                for i in range(8):
                    a(f'v_lshlrev_b32 v{hc+i}, 16, v{hc+i}')
                    self.silu(hc + i, ht + (i & 1))
            if o['m2c'] == 3:
                nb = o['m2nb']
                for b in range(nb):
                    if k <= o['m2g'] - o.get('m2lag', 2) and k - b * o['m2db'] >= 1:
                        a(f's_cmp_lg_u32 s{T5}, {k - b * o["m2db"]}\ns_cbranch_scc1 L_NM2_{k}_{b}')
                        for i in range(b * 8 // nb, (b + 1) * 8 // nb):
                            S(sU, 'T6 + q', q=i * 8 * 12288)
                            a(f'buffer_load_dwordx4 {vr(hm + 4*i, 4)}, v{self.vWM}, {sr(rWM, 4)}, s{sU} offen nt')
                        a(f'L_NM2_{k}_{b}:')
                if k == 3:
                    vm.wait('c2')
                    for i in range(8):
                        a(f'v_lshlrev_b32 v{hc+i}, 16, v{hc+i}')
                        self.silu(hc + i, ht + (i & 1))
                g0 = o['m2g']
                ke = o['m2e']
                if g0 <= k <= ke:
                    if k == g0:
                        vm.wait(('W', 'k', k + 4 if o.get('m2lag', 2) == 2 else k + 5))
                        mops = self.gemv_ops([hm + 4 * i for i in range(8)], [hc + i for i in range(8)], ha, ht, ht + 1, False)
                    if o.get('gprio'): a('s_setprio 3')
                    for _ in range(len(mops) if k == ke else 144 // (ke + 1 - g0)): a(mops.pop(0))
                    if o.get('gprio'): a('s_setprio 0')
                    if k == ke: self.dw('ds_write_b32', self.vGA, ha, 1, L_M2 - MISC)
                if k == ke + 1:
                    a(f"""s_cmp_lg_u32 s{sWAVE}, 4
                    s_cbranch_scc1 L_M2F
                    ds_read_b128 {vr(ha, 4)}, v{self.vL32S} offset:{L_M2 - MISC + 16}""")
                    S(T0, '((j*2 + (x >> 2))*4 + (x & 3))*512 + MODP2')
                    a(f"""s_waitcnt lgkmcnt(0)
                    v_add_f32 v{ha}, v{ha}, v{ha+1}
                    v_add_f32 v{ha+2}, v{ha+2}, v{ha+3}
                    v_mov_b32 v{ha+1}, s{sTAG}
                    v_add_f32 v{ha}, v{ha}, v{ha+2}""")
                    self.bs(ha, 2, self.vL8, rWS, T0, 0, 'sc1', count=False)
                    a('L_M2F:')
            if o.get('fP') and k <= 8:
                a(f's_cmp_lg_u32 s{T4}, {k}\ns_cbranch_scc1 L_NFP_{k}')
                for i in range(o['fA']):
                    for far in range(2): f_ld(1, i, far, False)
                a(f'L_NFP_{k}:')
            if k == 2 and o['poisat'] == 0: poison((0, 1), AR + 88); S(T6, '((x & 3)*4 + w - 4)*(64*12288) + (j*2 + (x >> 2))*128 + 4096')
            if k in (1, 3, 5) and o.get('touch', 1): touch({1: (1, 7), 3: (2, 3), 5: (5, 6)}[k])
            if k == o['tlbk'] and o['tlb'] & 2:
                a(f's_cmp_lg_u32 s{sWAVE}, 7\ns_cbranch_scc1 L_NTLB\ns_waitcnt lgkmcnt(0)')
                S(T0, '(j & 15)*2097152'); S(T1, '(j & 3)*2097152'); S(T2, '(j & 1)*2097152')
                a(f's_load_dword s{sPL}, {sr(rWS, 2)}, s{T0} offset:0')
                for q, r in enumerate((rWG, rWU, rWD)): a(f's_load_dword s{sPL + 1 + q}, {sr(r, 2)}, s{T1} offset:0')
                a(f's_load_dword s{sPL + 4}, {sr(rOUT, 2)}, s{T2} offset:0')
                a(f's_load_dword s{sPL + 5}, {sr(rWO, 2)}, 0')
                a('L_NTLB:')
            if k == 4 and o.get('tm2'):
                S(T0, '((j*2 + (x >> 2))*4 + (x & 3))*512 + (w - 4)*128 + MODP2')
                a('s_waitcnt lgkmcnt(0)')
                for q in range(2): a(f's_load_dword s{sPL + q}, {sr(rWS, 2)}, s{T0} offset:{q * 64} glc')
            if k == 6 and o['tz']:
                S(T0, '(hp*8 + w - 4)*1024 + r1*64 + ZP'); S(T1, '(rt*16 + cb)*64 + UP')
                a('s_waitcnt lgkmcnt(0)')
                for q in range(2): a(f's_load_dword s{sPL + q}, {sr(rWS, 2)}, s{T0} offset:{q * 4096} glc')
                a(f's_load_dword s{sPL + 2}, {sr(rWS, 2)}, s{T1} offset:0 glc')
            if k == 12: kv_prep()
            if k == 8 and o.get('touch', 1):
                S(T0, 'fs*8192 + (w - 4)*256 + HGR')
                a('s_waitcnt lgkmcnt(0)')
                for q in range(4): a(f's_load_dword s{sPL + q}, {sr(rWS, 2)}, s{T0} offset:{q * 2048 + 1024 + 252} glc')
        pace[0] = 0
        def logits(h, pp):
            if o.get('hprio'): a(f's_setprio {o["hprio"]}')
            for q in range(2): self.r128(ka + 4 * q, vHo, q * 1024, ('kh', q))
            if h == 0: a(f'v_subrev_u32 v{vHo}, {L_QH - L_HV}, v{vHo}')
            for q in range(2):
                lg.wait(('kh', q))
                a(f'v_mfma_f32_32x32x16_bf16 {vr(pp, 16)}, {vr(wp2 + 8*h + 4*q, 4)}, {vr(ka + 4*q, 4)}, ' + (vr(pp, 16) if q else '0'))
            if o.get('hprio') and not o.get('hlong'): a('s_setprio 0')
        logits(0, pa)
        self.stamp('klog')
        hs = Stream(self)
        for h, pp in ((0, pa), (1, pb)):
            hs.cap(lambda: self.softmax_pm(pp, ee, ee, vT))
            k = max(i for i, it in enumerate(hs.q) if it[0] == 4.75) - 8
            tailq = hs.q[k + 1:]; hs.q = hs.q[:k + 1]
            wr = lambda fb, h=h: (0, 0, lambda: self.dw('ds_write_b128', vPW, ee + 4 * fb, 4, h * 16384 + fb * 4096, ('phk', h)))
            hs.q += [wr(0)] + tailq[:4] + [wr(1), wr(2)] + tailq[4:] + [wr(3)]
            if h == 0:
                n1 = len(hs.q)
                hs.add(lambda: None)
        hs.q.insert(n1 + 34, (0, 0, lambda: lg.wait(('phk', 0))))
        ex = {}
        def put(i, fn):
            while i in ex: i += 1
            ex[i] = fn
        nq = int(n1 * o['hq'])
        put(nq, lambda: h_bar(15))
        nh = int(n1 * o['hh'])
        put(nh, lambda: (h_bar(14), logits(1, pb)))
        g1, g2 = o['hgap']
        if o.get('hpf'):
            put(int(n1 * o['hpf'][0]), lambda: a('s_setprio 3')); put(int(n1 * o['hpf'][1]), lambda: a('s_setprio 0'))
        ff = [(lambda k=k, far=far: f_ld(1, k, far)) for k in range(o['fA']) for far in range(2) if not o.get('fP')]
        pre = [(lambda k=k: m2_ld(k)) for k in range(4)] if o['m2c'] < 2 else []
        if o['m2c'] == 4:
            for i in range(o['m2n0'], 8): put(3 + o['m2gap'] * (i - o['m2n0']), lambda i=i: m2h(i))
            self.m2h = (hm, hc, ha, ht)
        npre = o['fpre'] - len(pre)
        pre += ff[:npre]; ff = ff[npre:]
        for k, fn in enumerate(pre): put(nh + 5 + g1 * k, fn)
        wl = self.wo_left = [6, 7, 8, 9, 10, 11] + [12, 13, 14, 15] + [0, 1, 2, 3, 4, 5]
        post = []
        for k in range(o['woA']): post += [lambda: wo_dma(wl[0], 1), lambda: wo_dma(wl.pop(0))]
        post = post[:8] + ff + post[8:] if o.get('wofirst', 1) else ff + post
        for k, fn in enumerate(post): put(nq + 5 + g2 * k, fn)
        for i, (v_, l_, fn) in enumerate(hs.q):
            if i in ex: ex.pop(i)()
            fn()
        for i in sorted(ex): ex[i]()
        self.nopk = False
        S(T4, 'rb*2048 + L_QH'); a(f'v_add_u32 v{vHo}, s{T4}, v{vL16}')
        assert wph == wp2 + 8
        if o.get('hprio'): a('s_setprio 0')
        self.stamp('ksm')
        a('L_JOIN:')
        vm.q = ['m2'] * (8 if o['m2c'] < 2 else 0); lg.q = [None]
        self.m2_ld = m2_ld
        self.vHo = vHo

    def middle(self):
        a, vm, lg, o, S, va = self.a, self.vm, self.lg, self.o, self.S, self.vaa
        vL8, vL32S, vGA, vHo, ffn_reg = self.vL8, self.vL32S, self.vGA, self.vHo, self.ffn_reg
        pp, ee, ph, vq, wph = AQ, AQ + 16, AR, AR + 16, AR + 24
        fA, fB, kvd, zd, ones = AR + 32, AR + 48, AR + 80, AR + 88, AK + 24
        kp, zz, zf, kf, k2 = AR + 32, AR + 40, AR + 44, AR + 60, AR + 76
        m2w, m2a, m2c, m2t = AV, AV + 16, AV + 24, AV + 28
        vPA, vPB, vPC, vKP, vXF = AK + 28, AK + 29, RING + 18, RING + 19, RING + 20
        md, wr1 = RING, RING + 4
        self.md, self.wr1 = md, wr1
        wl = self.wo_left
        wo1 = lambda: self.wo_dma(wl.pop(0))
        fw = o['fwin']
        self.barrier()
        self.stamp('phik')
        def kvm(u):
            lg.wait(('kv', u))
            for db in range(2):
                a(f'v_mfma_f32_16x16x32_bf16 {vr(kvd + 4*db, 4)}, {vr(fA + 4*u, 4)}, {vr(fB + 8*u + 4*db, 4)}, ' + ('0' if u == 0 else vr(kvd + 4*db, 4)))
            a(f'v_mfma_f32_16x16x32_bf16 {vr(zd, 4)}, {vr(fA + 4*u, 4)}, {vr(ones, 4)}, ' + ('0' if u == 0 else vr(zd, 4)))
        for ts in range(4):
            self.tr(fA + 4 * ts, vPA, ts * 1024, ('kv', ts)); self.tr(fA + 4 * ts + 2, vPA, ts * 1024 + 512, ('kv', ts))
            for db in range(2):
                for rd in range(2): self.tr(fB + 8 * ts + 4 * db + 2 * rd, vPB, ts * 2048 + db * 1024 + rd * 512, ('kv', ts))
            if ts >= 2: kvm(ts - 2)
        kvm(2); kvm(3)
        a(f"""s_cmp_lt_u32 s{sWAVE}, 4
        s_cbranch_scc1 L_NOQX
        ds_read_b128 {vr(vq, 4)}, v{vHo}
        ds_read_b128 {vr(vq + 4, 4)}, v{vHo} offset:1024
        L_NOQX:""")
        self.bs(kvd, 4, vL16, rWS, T0, 0, 'sc1', 'kvs')
        self.bs(kvd + 4, 4, vL16, rWS, T2, 0, 'sc1', 'kvs')
        a('s_mov_b32 exec_lo, 0x00010001')
        a('s_mov_b32 exec_hi, 0x00010001')
        self.bs(zd, 4, vL, rWS, T1, 0, 'sc1', 'kvs')
        a('s_mov_b64 exec, -1')
        lg.wait_all()
        a(f'v_mfma_f32_32x32x16_bf16 {vr(pp, 16)}, {vr(wph, 4)}, {vr(vq, 4)}, 0')
        a(f'v_mfma_f32_32x32x16_bf16 {vr(pp, 16)}, {vr(wph + 4, 4)}, {vr(vq + 4, 4)}, {vr(pp, 16)}')
        self.stamp('kvst')
        if o['wo0']:
            a('s_barrier')
            for _ in range(o['wo0']): assert wl[0] >= 6; wo1()
        if o['poisat'] == 1: self.poison((0,), AR + 84)
        if o['m2c'] == 2:
            for i in range(4): self.m2_ld(i)
        va(vPC, [(0, 3, 32 * 4096), (3, 1, 4 * 4096)])
        S(T4, '(wg & 0x1b)*4096 + (r1 >> 1)*64 + (r1 & 1)*4 + INB + 512')
        va(vKP, [(3, 3, 1024), (0, 3, 16)])
        va(vXF, [(0, 3, 16), (5, 1, 8)])
        qm, qs = o['qmid'], o['qsplit']
        self.softmax_pm(pp, ee, ph, vT, part=1, split=qm)
        vm.wait('kvs')
        a('s_barrier')
        self.push(vPC, T4, 16, vPB, 'L_PC')
        self.stamp('kvpub')
        if o['poisat'] == 2: self.poison((0,), AR + 84)
        self.weave(lambda: [a(f'v_exp_f32 v{r+i}, v{r+i}') for i in range(qm, qs) for r in (ee, pp)], [wo1] * o['wowin'][0])
        S(T0, '(hp*16 + r1)*16384 + w*128 + KVP'); S(T1, 'T0 + 8192')
        S(T2, '(hp*16 + r1)*1024 + w*128 + KIN'); S(T4, 'T4 + 6*512')
        self.inbox(1, 2, work=lambda: (self.weave(lambda: self.softmax_pm(pp, ee, ph, vT, part=2, split=qs), [wo1] * o['wowin'][1]), self.stamp('cw')))
        a('s_barrier')
        self.stamp('kvok')
        self.bl(kp, 4, vKP, rWS, T0, 0, 'sc1', 'kp')
        self.bl(kp + 4, 4, vKP, rWS, T1, 0, 'sc1', 'kp')
        self.bl(zz, 4, vL16, rWS, T3, 0, 'sc1', 'z')
        if fw[0]: a('s_barrier')
        ffn_reg(fw[0])
        S(T1, 'w*32 + L_ZF'); va(vT + 2, [(0, 2, 8), (5, 1, 4)], T1)
        S(T1, 'w*1024 + L_KVF'); va(vT + 1, [(0, 4, 16), (5, 1, 512), (4, 1, 8)], T1)
        S(T1, 'kh*128 + L_ZF'); va(vT + 3, [(5, 1, 16)], T1)
        S(T1, 'kh*4096 + L_KVF'); a(f'v_add_u32 v{vPA}, s{T1}, v{vL16}')
        M2 = o['m2c'] < 3
        m2ops = []; k = o.get('m2k', 24)
        if M2:
            vm.wait('m2')
            for i in range(4):
                a(f'v_lshlrev_b32 v{m2c+i}, 16, v{m2c+i}')
                self.silu(m2c + i, m2t + (i & 1))
            m2ops = self.gemv_ops([m2w + 4 * i for i in range(4)], [m2c + i for i in range(4)], m2a, m2t, m2t + 1, True)
        for s_ in m2ops[:k]: a(s_)
        if o['m2c'] == 4:
            hm, hc, ha, ht = self.m2h
            hops = self.gemv_ops([hm + 4 * i for i in range(8)], [hc + i for i in range(8)], ha, ht, ht + 1, True)
            a(f's_cmp_lt_u32 s{sWAVE}, 4\ns_cbranch_scc1 L_HG1')
            for s_ in hops: a(s_)
            a(f'ds_write_b32 v{vGA}, v{ha} offset:{L_M2 - MISC}\nL_HG1:')
        def red4(r, ctls):
            for i in range(2): a(f'v_permlane32_swap_b32 v{r+i}, v{r+2+i}')
            self.pk('add', r, r, r + 2)
            for ctl in ctls:
                for i in range(2): self.dpp('v_add_f32', r + i, r + i, r + i, ctl)
            for i in range(2): a(f'v_mov_b32 v{r+2+i}, v{r+i}')
            for i in range(2): a(f'v_permlane16_swap_b32 v{r+i}, v{r+2+i}')
            self.pk('add', r, r, r + 2)
            a(f'v_cvt_pk_bf16_f32 v{r}, v{r}, v{r+1}')
        vm.wait('kp')
        self.pk('add', kp, kp, kp + 4); self.pk('add', kp + 2, kp + 2, kp + 6)
        red4(kp, ['row_ror:8'])
        a(f"""v_mov_b32 v{kp+1}, s{sTAG}
        s_mov_b32 exec_lo, 0xff
        s_mov_b32 exec_hi, 0xff""")
        self.bs(kp, 2, vXF, rWS, T2, 0, 'sc1')
        a('s_mov_b64 exec, -1')
        if o['C2dir'] == 0:
            self.barrier()
            self.push(vPC, T4, 16, vPB, 'L_PC2')
        if o['m2c'] == 4:
            a(f"""s_cmp_lg_u32 s{sWAVE}, 3
            s_cbranch_scc1 L_M2F
            ds_read_b128 {vr(ha, 4)}, v{vL32S} offset:{L_M2 - MISC + 16}""")
            S(T5, '((j*2 + (x >> 2))*4 + (x & 3))*512 + MODP2')
            a(f"""s_waitcnt lgkmcnt(0)
            v_add_f32 v{ha}, v{ha}, v{ha+1}
            v_add_f32 v{ha+2}, v{ha+2}, v{ha+3}
            v_mov_b32 v{ha+1}, s{sTAG}
            v_add_f32 v{ha}, v{ha}, v{ha+2}""")
            self.bs(ha, 2, vL8, rWS, T5, 0, 'sc1', count=False)
            a('L_M2F:')
            self.marks.add('m2pub')
        self.stamp('c2pub')
        num, den = pp, ee
        vm.wait('z')
        self.weave(lambda: (red4(zz, ['row_ror:4', 'row_ror:8']), [a(s_) for s_ in m2ops[k:]]), [wo1] * o['wowin'][2])
        self.dw('ds_write_b32', vT + 2, zz, 1)
        if M2: self.dw('ds_write_b32', vGA, m2a, 1, L_M2 - MISC)
        self.barrier()
        for fb in range(4): self.r128(zf + 4 * fb, vT + 3, fb * 32)
        if M2: self.r128(m2a, vL32S, L_M2 - MISC); self.r128(m2a + 4, vL32S, L_M2 - MISC + 16)
        S(T5, '((j*2 + (x >> 2))*4 + (x & 3))*512 + MODP2')
        lg.wait_all()
        S(T0, '(hp*8 + w)*2048 + KIN')
        def sel_prep():
            vGr, vXs = RING + 6, RING + 24; assert o['AD2'] <= 8
            S(T6, '(w >> 2)*32768 + (w & 3)*32 + L_GU')
            va(vGr, [(4, 2, 8192), (2, 2, 128), (3, 2, 32), (0, 2, 8)]); a(f'v_xor_b32 v{vGr}, s{T6}, v{vGr}')
            S(T6, 'kq*2048 + XS'); va(vXs, [(0, 3, 16), (4, 2, 512)], T6)
            va(vXs + 1, [(0, 4, 512)], None, XS + 256)
        def den_work():
            for fb in range(4):
                a(f'v_mfma_f32_32x32x16_bf16 {vr(den, 16)}, {vr(zf + 4*fb, 4)}, {vr(ph + 4*fb, 4)}, ' + ('0' if fb == 0 else vr(den, 16)))
            if M2:
                a(f's_cmp_lg_u32 s{sWAVE}, 3\ns_cbranch_scc1 L_M2F')
                self.nopk = True; self.sum8(m2a); self.nopk = False
                a(f'v_mov_b32 v{m2a+1}, s{sTAG}')
                self.bs(m2a, 2, vL8, rWS, T5, 0, 'sc1', count=False)
                a('L_M2F:')
            self.round1(den)
            a(f'v_add_f32 v{den}, 0x358637bd, v{den}')
            self.round1(den)
            a(f'v_rcp_f32 v{den}, v{den}')
            sel_prep()
            self.stamp('c2w')
        ldk2 = lambda: [self.bl(k2 + 4 * q, 4, vL16, rWS, T0, q * 1024, 'sc1') for q in range(2)]
        if o['C2dir'] == 0:
            self.inbox(7, 2, work=den_work)
            self.stamp('c2h')
        if o['C2dir'] == 2: den_work()
        self.try_load(ldk2, [k2 + 1, k2 + 3, k2 + 5, k2 + 7], vT, lambda: (ffn_reg(fw[1]), den_work() if o['C2dir'] == 1 else None))
        for db in range(2):
            a(f'ds_write2_b32 v{vT+1}, v{k2+4*db}, v{k2+4*db+2} offset0:{64*db} offset1:{64*db+1}'); lg.issue()
        self.barrier()
        self.stamp('kvred')
        for fb in range(4): self.r128(kf + 4 * fb, vPA, fb * 1024, ('kf', fb))
        S(T0, '((r1*8 + rb*2)*32 + hp*2 + kh)*1024 + OF')
        va(vKP, [(0, 4, 16), (4, 1, 32768), (5, 1, 256)])
        for fb in range(4):
            lg.wait(('kf', fb))
            a(f'v_mfma_f32_32x32x16_bf16 {vr(num, 16)}, {vr(kf + 4*fb, 4)}, {vr(ph + 4*fb, 4)}, ' + ('0' if fb == 0 else vr(num, 16)))
        S(T5, '((w >> 1)*16 + cb)*2048 + (w & 1)*1024 + MODP2')
        self.ld_md = lambda: self.bl(md, 4, vL16, rWS, T5, 0, 'sc1', 'md')
        S(T6, 'cb*128'); va(vPA, [(0, 2, 2), (5, 1, 8), (4, 1, 16), (2, 2, 32)], T6)
        a(f'global_load_ushort v{wr1}, v{vPA}, {sr(pWR, 2)}'); vm.issue('md')
        if not o['mdlate']: self.ld_md()
        for h in range(2):
            self.round_list([num + i for i in range(8 * h, 8 * h + 8)])
            for i in range(8 * h, 8 * h + 8, 2): self.pk('mul', num + i, num + i, den, bc=(1,))
            for i in range(4 * h, 4 * h + 4): a(f'v_cvt_pk_bf16_f32 v{vq+i}, v{num+2*i}, v{num+2*i+1}')
            self.bs(vq + 4 * h, 4, vKP, rWS, T0, 512 * h, 'sc1', 'os')
        self.stamp('ost')
        if o['mdlate']: self.ld_md()
        if o['poisat'] == 3: self.poison((0,), AR + 84)
        while wl: wo1()

    def gemm2(self):
        a, vm, lg, o, S, va = self.a, self.vm, self.lg, self.o, self.S, self.vaa
        md, wr1, fw = self.md, self.wr1, o['fwin']
        AD2 = o['AD2']
        R = self.R = dict(acc=AQ, gaf=AQ + 16, cbf=AR + 16, sbf=AV, gbf=AV + 16, xf=AR, fr=AR + 32, Br=AR + 40, Ar=AR + 72, vB=RING + 8, sv=RING, up=RING + 12)
        acc, gaf, cbf, sbf, gbf, xf, fr, Br, Ar, vB, sv, up = [R[k] for k in 'acc gaf cbf sbf gbf xf fr Br Ar vB sv up'.split()]
        ARS = [Ar + 4 * i for i in range(6)] + [RING + 16, RING + 20, RING + 24]; assert AD2 <= 9
        va(vB, [(2, 2, 128), (4, 2, 1024), (0, 1, 16), (1, 1, 8), (3, 2, 32)])
        S(T4, '(w ^ (%s))*4096' % o['g2r']); S(T1, '(T4*4) ^ (y2 >> 4)')
        a(f'v_add_u32 v{vB}, s{T1}, v{vB}')
        for ct in range(1, 4): a(f'v_xor_b32 v{vB+ct}, {32*ct}, v{vB}')
        va(vT + 1, [(0, 3, 8 * 4096), (3, 1, 4096)])
        S(T2, '((r1 >> 2)*2 + (r1 & 3)*64)*4096 + (hp >> 1)*64 + (hp & 1)*4 + INB + 1024')
        for i in range(8): self.unpack(xf + 2 * i, xf + 2 * i + 1, XR + i)
        S(T6, '(rt*8 + w)*32768 + OF')
        def md_stage():
            vm.wait('md')
            self.tagcheck([md + 1, md + 3], vT + 2)
            a('s_cbranch_vccz L_MGOK')
            q0 = list(vm.q)
            self.poll(self.ld_md, [md + 1, md + 3], vT + 2)
            vm.q = q0
            a('L_MGOK:')
            a(f'ds_write2_b32 v{vT}, v{md}, v{md+2} offset0:0 offset1:4'); lg.issue()
        S(T1, '(w >> 1)*1024 + (w & 1)*8 + L_MD'); va(vT, [(0, 5, 32), (5, 1, 4)], T1)
        va(vT + 3, [(0, 2, 16), (5, 1, 64), (4, 1, 128), (2, 2, 256)], None, L_MD)
        if not o['mdlate']: md_stage()
        vm.wait('os'); vm.wait('wo')
        self.barrier()
        self.push(vT + 1, T2, 16, vT + 2, 'L_PD')
        self.stamp('opub')
        if o['mdlate']: md_stage(); self.barrier()
        S(T5, 'wg*4096 + (T4 >> 6) + INB + 1024')
        self.ffn_reg(fw[2])
        t4 = Br
        for q in range(4): self.r128(t4 + 4 * q, vT + 3, q * 1024)
        va(vT + 4, [(0, 2, 4), (5, 1, 16), (4, 1, 32), (2, 2, 64)], None, L_GB)
        S(T0, '(rt*16 + cb)*64 + UP')
        lg.wait_all()
        def d_work():
            for q in range(4):
                self.pk('add', t4 + 4 * q, t4 + 4 * q, t4 + 4 * q + 2)
                a(f'v_add_f32 v{sv+q}, v{t4+4*q}, v{t4+4*q+1}')
            self.round_list([sv + q for q in range(4)])
            a(f'v_add_f32 v{sv+2}, 1.0, v{sv+2}')
            a(f'v_lshlrev_b32 v{wr1}, 16, v{wr1}')
            self.round1(sv + 2)
            a(f'ds_write_b32 v{vT+4}, v{sv+3}')
            uu, hi, lo, t = t4, t4 + 1, t4 + 2, t4 + 4
            a(f'v_mul_f32 v{uu}, v{sv+2}, v{wr1}')
            a(f'v_cvt_pk_bf16_f32 v{hi}, 0, v{uu}')
            a(f'v_sub_f32 v{lo}, v{uu}, v{hi}')
            self.allreduce(uu, t + 3)
            for k, r in enumerate((hi, lo, wr1)): a(f'v_mov_b32_dpp v{t+k}, v{r} row_shl:1 row_mask:0xf bank_mask:0xf')
            for k, r in enumerate((hi, lo, wr1)): a(f'v_cvt_pk_bf16_f32 v{t+k}, v{r}, v{t+k}')
            a(f"""v_mov_b32 v{uu+1}, s{sTAG}
            v_mov_b32 v{uu+2}, 0
            s_cmp_lg_u32 s{sWAVE}, 2
            s_cbranch_scc1 L_NOUP
            s_mov_b64 exec, 1""")
            self.bs(uu, 2, uu + 2, rWS, T0, 0, 'sc1', count=False)
            a('s_mov_b64 exec, -1\nL_NOUP:')
            for i in range(8):
                a(f'v_mov_b32 v{fr+i}, 0x3f803f80')
                for k in range(3): a(f'v_mov_b32_dpp v{fr+i}, v{t+k} row_newbcast:{2*i} row_mask:0xf bank_mask:{hex(2 << k)}')
            a(f'v_mov_b32 v{RING+14}, v{sv+1}\nv_mov_b32 v{RING+15}, v{sv+3}\nv_mov_b32 v{RING+5}, v{sv+2}')
            for dst, q in ((gaf, 0),):
                for i in range(16): a(f'v_mov_b32_dpp v{dst+i}, v{sv+q} row_newbcast:{i} row_mask:0xf bank_mask:0xf')
            self.stamp('dw')
        L2 = o['LOOK2']
        def b2_read(m):
            H, ct = divmod(m, 4)
            for rd in range(2): self.tr(Br + 4 * (m % 8) + 2 * rd, vB + ct, (H & 3) * 4096 + rd * 512, ('B', m))
            if H % 4 == 3 and H < 31: a(f'v_xor_b32 v{vB+ct}, {((H >> 2) ^ ((H >> 2) + 1)) * 16384}, v{vB+ct}')
        def a2_load(H):
            if H % 4 == 0: S(T7, '(T4 ^ n) + T6', n=H * 1024)
            self.bl(ARS[H % AD2], 4, vL16, rWS, T7, (H % 4) * 1024, 'sc1', ('A', H))
        self.spoll([(0, 2, T5, 0)], range(2), d_work)
        self.stamp('ook1')
        if not o['earlyD']: a('s_barrier')
        for H in range(AD2):
            if H == 4 and o['earlyD']: a('s_barrier')
            a2_load(H)
            if H == 0:
                for m in range(L2): b2_read(m)
        self.stamp('ook')
        S(T0, 'rt*1024 + UP'); va(vT + 6, [(0, 4, 64)])
        self.ld_up = lambda: self.bl(up, 2, vT + 6, rWS, T0, 0, 'sc1', 'up')
        lpend = []
        for H in range(32):
            if self.prof and o.get('ls2'):
                if lpend: r_, k_ = lpend.pop(0); a(f'v_writelane_b32 v255, s{r_}, {k_}')
                if H < 31:
                    r_ = sPL + 2 * (self.nst % 4)
                    a.items.append(('raw', f'    s_memtime {sr(r_, 2)}')); lpend.append((r_, self.nst)); self.stnames.append(f'n{H}'); self.nst += 1
            if o.get('g2p') and H in (0, o['g2p']):
                a(f's_cmp_lt_u32 s{sWAVE}, 4\ns_cbranch_scc1 L_G2P{H}\ns_setprio {1 if H == 0 else 0}\nL_G2P{H}:')
            vm.wait(('A', H))
            for ct in range(4):
                m = 4 * H + ct
                pw = o['pairw2']
                if ct % pw == 0: lg.wait(('B', m + pw - 1))
                a(f'v_mfma_f32_16x16x32_bf16 {vr(acc + 4*ct, 4)}, {vr(Br + 4*(m % 8), 4)}, {vr(ARS[H % AD2], 4)}, ' + ('0' if H == 0 else vr(acc + 4*ct, 4)))
                if m + L2 < 128: b2_read(m + L2)
            if H + AD2 < 32: a2_load(H + AD2)
            if H + AD2 == 31:
                self.ld_up(); self.ffn_reg(fw[3])
        self.stamp('gemm2')
        if o.get('dbg'):
            S(T1, '(wg*8 + w)*32768 + 0x4000000'); va(vT, [(0, 6, 4)])
            for k, r in enumerate(list(range(40, 104)) + [24, 25, 26, 27]):
                if k % 16 == 0 and k: S(T1, 'T1 + 4096')
                self.bs(r, 1, vT, rWS, T1, (k % 16) * 256, '', 'dbg')
                if k % 16 == 15: vm.wait('dbg')

    def tail(self):
        a, vm, lg, o, S, va = self.a, self.vm, self.lg, self.o, self.S, self.vaa
        R, fw = self.R, o['fwin']
        E2 = range(0, 16, 2)
        acc, gaf, cbf, sbf, gbf, xf, fr, up = [R[k] for k in 'acc gaf cbf sbf gbf xf fr up'.split()]
        FR, held, fq = self.FL, self.held, self.fq
        g16, hh, h2p, op, sd4, kk = AR + 40, AR + 56, AR + 72, AR + 80, AR + 88, AR + 92
        vSt, vRow, mm, rs, key, vTa = RING, RING + 1, RING + 2, RING + 3, RING + 4, RING + 5
        x1f = xf
        swp = lambda b: [a(f'v_permlane32_swap_b32 v{b+p}, v{b+q}') for p, q in ((0, 2), (1, 3), (4, 6), (5, 7))]
        S(T1, '((rt*8 + w)*16 + cb)*256 + ST')
        va(vSt, [(0, 4, 16), (4, 2, 4)])
        for h in range(2):
            rg = range(8 * h, 8 * h + 8)
            self.round_list([acc + i for i in rg])
            for i in range(8 * h, 8 * h + 8, 2): self.pk('mul', acc + i, acc + i, gaf + i)
            self.round_list([acc + i for i in rg])
            for i in range(8 * h, 8 * h + 8, 2): self.pk('add', acc + i, acc + i, xf + i)
            for i in range(4 * h, 4 * h + 4): a(f'v_cvt_pk_bf16_f32 v{XR+i}, v{acc+2*i}, v{acc+2*i+1}')
            for i in range(4 * h, 4 * h + 4): a(f'v_dot2_f32_bf16 v{vT+(i&1)}, v{XR+i}, v{XR+i}, ' + ('0' if i < 2 else f'v{vT+(i&1)}'))
            a(f'v_mfma_f32_16x16x32_bf16 {vr(sd4, 4)}, {vr(fr + 4*h, 4)}, {vr(XR + 4*h, 4)}, ' + ('0' if h == 0 else vr(sd4, 4)))
        self.nopk = False
        va(vT + 3, [(0, 3, 8 * 4096), (3, 1, 4096)])
        a(f'v_add_f32 v{vT}, v{vT}, v{vT+1}')
        for sw in ('v_permlane32_swap_b32', 'v_permlane16_swap_b32'):
            a(f'v_mov_b32 v{vT+1}, v{vT}')
            a(f'{sw} v{vT}, v{vT+1}')
            a(f'v_add_f32 v{vT}, v{vT}, v{vT+1}')
        a(f'v_mov_b32_dpp v{sd4}, v{vT} quad_perm:[0,1,2,3] row_mask:0x8 bank_mask:0xf')
        self.bs(sd4, 1, vSt, rWS, T1, 0, 'sc1')
        S(T3, '((rt >> 2)*2 + (rt & 3)*64)*4096 + (cb >> 1)*64 + (cb & 1)*4 + INB + 1536')
        a('s_barrier')
        self.push(vT + 3, T3, 16, vT + 2, 'L_PE')
        self.stamp('x1pub')
        self.ffn_dma(fw[4])
        S(T2, 'w*4096')
        a(f'v_add_u32 v{vT}, s{T2}, v{vL16}')
        a(f'v_add_u32 v{vT+3}, {L_DN}, v{vT}')
        vm.wait('up')
        self.tagcheck([up + 1], vT + 2)
        a('s_cbranch_vccz L_UPOK')
        q0 = list(vm.q)
        self.poll(self.ld_up, [up + 1], vT + 2)
        vm.q = q0
        a('L_UPOK:')
        S(T1, '(rt*8 + w)*4096 + ST')
        def e_work():
            for ctl in ('quad_perm:[1,0,3,2]', 'quad_perm:[2,3,0,1]', 'row_half_mirror', 'row_mirror'): self.dpp('v_add_f32', up, up, up, ctl)
            for i in range(8): self.unpack(x1f + 2 * i, x1f + 2 * i + 1, XR + i)
            S(T2, 'w*512 + rt*2')
            va(vRow, [(0, 4, 32)], T2)
            a(f'v_xor_b32 v{vT+1}, 0x4000, v{vT}\nv_xor_b32 v{vT+4}, 0x4000, v{vT+3}')
            vm.wait('ffr')
            for m, i, r in self.sym:
                a(f'ds_write_b128 v{vT if m < 2 else vT + 3}, {vr(r, 4)} offset:{self.f_lds(m, i) - (L_GU if m < 2 else L_DN)}')
            for g in range(2):
                if not held[g]: continue
                a(f's_cmp_{"ge" if g == 0 else "lt"}_u32 s{sWAVE}, 4\ns_cbranch_scc1 L_FW{g}')
                for n, (m, i) in enumerate(held[g]):
                    for far in range(2):
                        a(f'ds_write_b128 v{(vT if m < 2 else vT + 3) + far}, {vr(FR + 8*n + 4*far, 4)} offset:{self.f_lds(m, i) - (L_GU if m < 2 else L_DN)}')
                a(f'L_FW{g}:')
            self.stamp('ew')
        self.inbox(3, 2, work=e_work)
        a('s_barrier')
        self.stamp('x1ok')
        def try_p(loads, check, between, nm='re'):
            loads()
            vm.q[-1] = tg = ('try', a.label('T'))
            between()
            vm.wait(tg)
            OK, L = a.label('POK'), a.label('PRE')
            check()
            a(f's_cbranch_vccz {OK}')
            q = list(vm.q)
            self.stamp(nm)
            a(f'{L}:')
            loads(); vm.wait_all()
            check()
            a(f"""s_cbranch_vccz {OK}
            s_add_u32 s{sSPIN}, s{sSPIN}, 1
            s_cmp_lt_u32 s{sSPIN}, {SPIN_LIMIT}
            s_cbranch_scc1 {L}""")
            vm.q = q
            a(f'{OK}:')
        vGr, vDr, vXs, ffn, fdn = RING + 6, RING + 7, RING + 24, FR, AQ
        vRt = RING + 14
        def out_calc(part):
            u = RING + 16; assert o['ocut'][1] != 5
            if part == o['ocut'][0]:
                for i in range(8): self.unpack(hh + 2 * i, hh + 2 * i + 1, h2p + i)
                for i in E2: self.pk('mul', hh + i, hh + i, gbf + i)
                self.round_list([hh + i for i in range(16)])
            if part == o['ocut'][1]:
                S(T0, 'w*2048 + L_TR')
                va(u, [(4, 2, 16)]); va(u + 1, [(0, 3, 16)]); a(f'v_xor_b32 v{u}, v{u}, v{u+1}')
                va(u + 2, [(0, 4, 128)], T0); a(f'v_add_u32 v{u}, v{u}, v{u+2}'); a(f'v_xor_b32 v{u+2}, 64, v{u}')
                va(u + 3, [(3, 3, 16)]); a(f'v_xor_b32 v{u+1}, v{u+3}, v{u+1}'); va(u + 3, [(3, 3, 128)], T0); a(f'v_add_u32 v{u+1}, v{u+1}, v{u+3}')
                S(T0, '2047 - rt*128 - w*16'); va(vRt + 1, [(3, 3, 1)])
                a(f'v_sub_u32 v{vRt}, s{T0}, v{vRt+1}\nv_subrev_u32 v{vRt+1}, 8, v{vRt}')
                va(vTa, [(3, 3, 2048), (0, 3, 16)])
                S(sROW0, '(rt*8 + w)*32768 + cb*128'); S(sROW1, 'row0 + 16384')
            if part == o['ocut'][2]:
                for i in E2: self.pk('add', hh + i, hh + i, x1f + i)
                for i in range(8): a(f'v_cvt_pk_bf16_f32 v{op+i}, v{hh+2*i}, v{hh+2*i+1}')
                swp(op)
                a(f'ds_write_b128 v{u}, {vr(op, 4)}\nds_write_b128 v{u+2}, {vr(op + 4, 4)}')
                a(f'ds_read_b128 {vr(op, 4)}, v{u+1}\nds_read_b128 {vr(op + 4, 4)}, v{u+1} offset:1024')
        def e_between():
            if o['gbar']: a('s_barrier')
            self.ffn_dma(fw[5])
            for dst, q in ((cbf, 5), (sbf, 14), (gbf, 15)):
                for i in range(16): a(f'v_mov_b32_dpp v{dst+i}, v{RING+q} row_newbcast:{i} row_mask:0xf bank_mask:0xf')
            out_calc(4)
            S(T2, 'w*8 + L_K1'); a(f'v_mov_b32 v{vT}, s{T2}')
            va(vT + 1, [(0, 3, 8)], None, L_K1)
            va(vT + 2, [(0, 2, 64 * 4096), (2, 2, 2 * 4096)])
            S(T3, '((cb >> 3) + (cb & 7)*8)*4096 + (rt >> 1)*64 + (rt & 1)*16 + INB + 2560')
        s_, d_, q_, t_ = g16, g16 + 1, g16 + 3, g16 + 4
        def e_check():
            for h in (0, 2):
                self.pk('add', g16 + h, g16 + h, g16 + 4 + h); self.pk('add', g16 + 8 + h, g16 + 8 + h, g16 + 12 + h)
            for h in (0, 2): self.pk('add', g16 + h, g16 + h, g16 + 8 + h)
            a(f'''v_add_f32 v{d_}, v{d_}, v{g16+2}
            v_add_f32 v{t_+1}, v{s_}, v{q_}
            v_cmp_u_f32 vcc, v{d_}, v{t_+1}''')
        try_p(lambda: [self.bl(g16 + 4 * i, 4, vL16, rWS, T1, i * 1024, 'sc1') for i in range(4)], e_check, e_between, 'stre')
        self.stamp('x1ld')
        a(f"""
        v_mov_b32 v{t_}, v{q_}
        v_permlane32_swap_b32 v{q_}, v{t_}
        v_permlane32_swap_b32 v{s_}, v{d_}
        v_add_f32 v{q_}, v{q_}, v{t_}
        v_add_f32 v{s_}, v{s_}, v{d_}
        v_permlane16_swap_b32 v{s_}, v{q_}
        v_add_f32 v{d_}, v{s_}, v{q_}
        v_add_f32 v{q_}, v{s_}, v{q_}
        v_permlane16_swap_b32 v{d_}, v{q_}
        v_mov_b32 v{s_}, v{d_}
        v_mul_f32 v{q_}, 0x3a800000, v{q_}
        v_permlane32_swap_b32 v{s_}, v{d_}
        v_mul_f32 v{s_}, 0x3a800000, v{s_}
        v_fma_f32 v{rs}, -v{s_}, v{s_}, v{q_}
        v_cvt_pk_bf16_f32 v{mm}, 0, v{s_}
        v_max_f32 v{rs}, 0, v{rs}""")
        self.round1(rs)
        a(f'v_fma_f32 v{d_}, -v{mm}, v{up}, v{d_}')
        a(f'v_add_f32 v{rs}, 0x3727c5ac, v{rs}')
        self.round1(rs)
        a(f'v_sqrt_f32 v{rs}, v{rs}')
        self.round1(rs)
        a(f"""v_rcp_f32 v{rs}, v{rs}
        v_mul_f32 v{key}, v{d_}, v{rs}
        v_ashrrev_i32 v{t_}, 31, v{key}
        v_or_b32 v{t_}, 0x80000000, v{t_}
        v_xor_b32 v{key}, v{key}, v{t_}
        s_mov_b32 s{T2}, 0xfffff000
        v_and_or_b32 v{key}, v{key}, s{T2}, v{vRow}""")
        hi, lo = kk, kk + 1
        def merge2(ctl):
            self.dpp('v_min_u32', t_, hi, hi, ctl); self.dpp('v_max_u32', lo, lo, lo, ctl); self.dpp('v_max_u32', hi, hi, hi, ctl)
            a(f'v_max_u32 v{lo}, v{lo}, v{t_}')
        self.dpp('v_max_u32', hi, key, key, 'quad_perm:[1,0,3,2]'); self.dpp('v_min_u32', lo, key, key, 'quad_perm:[1,0,3,2]')
        for ctl in ('quad_perm:[2,3,0,1]', 'row_half_mirror', 'row_mirror'): merge2(ctl)
        self.dw('ds_write_b64', vT, hi, 2)
        self.stamp('ln2')
        self.barrier()
        self.dr('ds_read_b64', hi, 2, vT + 1)
        for i in E2: self.pk('add', hh + i, x1f + i, mm, bc=(1,), neg=(1,))
        lg.wait_all()
        for ctl in ('quad_perm:[1,0,3,2]', 'quad_perm:[2,3,0,1]', 'row_half_mirror'): merge2(ctl)
        a(f"""v_cmp_eq_u32 {sr(sC2, 2)}, v{key}, v{lo}
        v_cmp_eq_u32 vcc, v{key}, v{hi}
        v_or_b32 v{kk+2}, 1, v{lo}
        v_mov_b32 v{kk+1}, s{sTAG}
        v_mov_b32 v{kk+3}, s{sTAG}
        s_or_b64 {sr(sCM, 2)}, vcc, {sr(sC2, 2)}
        s_cmp_lg_u32 s{sWAVE}, 0
        s_cbranch_scc1 L_NOF
        s_mov_b64 exec, 0xffff""")
        self.bs(kk, 4, vT + 2, rWS, T3, 0, 'sc1', count=False)
        a(f"""s_mov_b64 exec, -1
        L_NOF:""")
        if o['cprio']: a(f's_cmp_eq_u64 {sr(sCM, 2)}, 0\ns_cbranch_scc1 L_NOPR\ns_setprio 1\nL_NOPR:')
        self.stamp('Fpub')
        def f_work():
            self.round_list([hh + i for i in range(16)])
            for i in E2: self.pk('mul', hh + i, hh + i, rs, bc=(1,))
            self.round_list([hh + i for i in range(16)])
            for i in E2: self.pk('mul', hh + i, hh + i, cbf + i)
            self.round_list([hh + i for i in range(16)])
            for i in E2: self.pk('add', hh + i, hh + i, sbf + i)
            for i in range(8): a(f'v_cvt_pk_bf16_f32 v{h2p+i}, v{hh+2*i}, v{hh+2*i+1}')
            a(f"""s_cmp_eq_u64 {sr(sCM, 2)}, 0
            s_cbranch_scc1 L_NOCAND""")
            for h in range(2): a(f'v_mfma_f32_16x16x32_bf16 {vr(sd4, 4)}, {vr(fr + 4*h, 4)}, {vr(h2p + 4*h, 4)}, ' + ('0' if h == 0 else vr(sd4, 4)))
            for i in range(8): a(f'v_mov_b32 v{op+i}, v{h2p+i}')
            S(T2, 'rt*16384 + cb*512 + XS')
            va(vT + 3, [(4, 2, 16)])
            a(f'v_add_u32 v{vT+4}, 8192, v{vT+3}')
            swp(op); swp(XR)
            a(f'v_cndmask_b32 v{vT+3}, v{vT+3}, v{vT+4}, {sr(sC2, 2)}')
            a(f's_mov_b64 exec, {sr(sCM, 2)}')
            for h in range(2): self.bs(op + 4 * h, 4, vT + 3, rWS, T2, 64 * h, 'sc1', count=False)
            a(f's_mov_b32 exec_lo, 0\ns_and_b32 exec_hi, s{sCM+1}, 0xffff0000')
            self.bs(sd4, 1, vT + 3, rWS, T2, 256 - 48, 'sc1', count=False)
            a(f's_mov_b64 exec, {sr(sCM, 2)}')
            for h in range(2): self.bs(XR + 4 * h, 4, vT + 3, rWS, T2, 128 + 64 * h, 'sc1', count=False)
            a('s_mov_b64 exec, -1\ns_setprio 0\nL_NOCAND:')
            self.stamp('cand')
            self.ffn_dma(fw[6])
            out_calc(0)
        S(T0, 'w*16 + L_K2'); a(f'v_mov_b32 v{vT}, s{T0}')
        va(vT + 1, [(0, 3, 16)], None, L_K2)
        self.inbox(5, 8, (1, 3, 5, 7), f_work)
        P = sPL
        a(f"""s_min_u32 s{P+1}, s{P}, s{P+4}
        s_min_u32 s{P+3}, s{P+2}, s{P+4}
        s_min_u32 s{P+5}, s{P}, s{P+6}
        s_max_u32 s{P}, s{P}, s{P+4}
        s_max_u32 s{P+2}, s{P+2}, s{P+6}
        s_max_u32 s{P+3}, s{P+3}, s{P+5}
        s_max_u32 s{P+1}, s{P+1}, s{P+2}
        v_mov_b32 v{kk}, s{P}
        v_mov_b32 v{kk+2}, s{P+3}
        v_mov_b32 v{kk+1}, s{P+1}""")
        self.dw('ds_write_b128', vT, kk, 4)
        self.stamp('F2p')
        out_calc(1)
        gu_late = [p for p in fq if p[0] < 2]; assert not gu_late
        dn_late = len(fq) > 0
        def dn_read(s, tag=None):
            self.tr(fdn + 4 * s, vDr, s * 8192, tag); self.tr(fdn + 4 * s + 2, vDr, s * 8192 + 1024, tag)
        vm.wait('ffn')
        self.barrier()
        self.stamp('F2')
        self.r128(kk, vT + 1, 0, 'k2')
        a(f'v_and_b32 v{vT+4}, 8, v{vL}')
        a(f'v_cmp_eq_u32 {sr(sCMP, 2)}, 0, v{vT+4}')
        a(f'v_cmp_gt_u32 {sr(sPL, 2)}, 16, v{vL}')
        a(f'v_cmp_gt_u32 {sr(sPL + 2, 2)}, 32, v{vL}')
        lg.wait('k2')
        t = g16
        for ctl in ('quad_perm:[1,0,3,2]', 'quad_perm:[2,3,0,1]', 'row_half_mirror'):
            self.dpp('v_min_u32', t, kk, kk, ctl); self.dpp('v_min_u32', t + 1, kk + 1, kk, ctl); self.dpp('v_min_u32', t + 2, kk, kk + 1, ctl)
            self.dpp('v_max_u32', kk + 2, kk + 2, kk + 2, ctl); self.dpp('v_max_u32', kk + 1, kk + 1, kk + 1, ctl); self.dpp('v_max_u32', kk, kk, kk, ctl)
            a(f'v_max3_u32 v{kk+2}, v{kk+2}, v{t+1}, v{t+2}')
            a(f'v_max_u32 v{kk+1}, v{kk+1}, v{t}')
        xa, xb, rp, kr = g16, g16 + 4, g16 + 8, g16 + 9
        a(f"""v_cndmask_b32 v{t}, v{kk+1}, v{kk}, {sr(sCMP, 2)}
        v_cndmask_b32 v{kr}, v{kk+2}, v{kk+1}, {sr(sPL + 2, 2)}
        v_and_b32 v{t+1}, 31, v{kk+2}
        v_and_b32 v{t}, 31, v{t}
        v_cndmask_b32 v{kr}, v{kr}, v{kk}, {sr(sPL, 2)}
        v_lshl_add_u32 v{vT}, v{t}, 13, v{vXs}
        v_lshl_add_u32 v{vT+1}, v{t+1}, 13, v{vXs}
        v_and_b32 v{t+2}, 31, v{kr}
        v_lshl_add_u32 v{vT+2}, v{t+2}, 13, v{vXs+1}""")
        def sel_work():
            self.stamp('sel')
            if o['gbar'] and (fq or o['outat'] in (0, 3)): a('s_barrier')
            self.ffn_dma(len(fq))
            for k in range(3): a(f'v_readfirstlane_b32 s{sY0+[0, 3, 4][k]}, v{kk+k}')
            for s in range(8):
                self.tr(ffn + 4 * s, vGr, s * 1024); self.tr(ffn + 4 * s + 2, vGr, s * 1024 + 512)
            for k in range(3): S(T4 + k, '(((y >> 1) & 15)*128 + ((y >> 5) & 127)) ^ 2047'.replace('y', ('y0', 'y1', 'y2')[k]))
            out_calc(2)
            lg.wait_all()
            if o['outat'] in (0, 3):
                for h in range(2 if o['outat'] == 0 else 1):
                    for k in range(3): a(f'v_cmp_ne_u32 {sr(sPL + 2*k, 2)}, s{T4+k}, v{vRt+h}')
                    a(f's_and_b64 vcc, {sr(sPL, 2)}, {sr(sPL + 2, 2)}\ns_and_b64 exec, vcc, {sr(sPL + 4, 2)}')
                    self.bs(op + 4 * h, 4, vTa, rOUT, (sROW0, sROW1)[h], 0, o.get('outmod', 'sc1'))
                    a('s_mov_b64 exec, -1')
            S(T0, 'w*64')
            va(vDr, [(2, 1, 512), (3, 1, 4096), (5, 1, 2048), (2, 2, 64), (4, 1, 32), (0, 2, 8)])
            a(f'v_xor_b32 v{vDr}, s{T0}, v{vDr}'); a(f'v_add_u32 v{vDr}, {L_DN}, v{vDr}')
            va(vT + 4, [(0, 4, 16), (5, 1, 8)])
            S(T1, 'fs*8192 + HGR'); S(T7, '(kq*8 + w)*256 + T1')
            a(f'v_bfe_u32 v{vT+3}, v{kr}, 1, 4\nv_bfe_u32 v{kr}, v{kr}, 5, 7\nv_lshl_or_b32 v{kr}, v{vT+3}, 7, v{kr}\nv_xor_b32 v{kr}, 0x7ff, v{kr}')
        try_p(lambda: [self.bl(xa, 4, vT, rWS, '0', 0, 'sc1'), self.bl(xb, 4, vT + 1, rWS, '0', 0, 'sc1'), self.bl(rp, 1, vT + 2, rWS, '0', 0, 'sc1')],
              lambda: a(f'v_max3_u32 v{vT+3}, v{xa}, v{xb}, v{rp}\nv_cmp_eq_u32 vcc, -1, v{vT+3}'), sel_work, 'xsre')
        self.stamp('xsel')
        for ctl in ('quad_perm:[1,0,3,2]', 'quad_perm:[2,3,0,1]', 'row_half_mirror', 'row_mirror'): self.dpp('v_add_f32', rp, rp, rp, ctl)
        a(f"""v_cvt_pk_bf16_f32 v{rp}, 0, v{rp}
        v_ashrrev_i32 v{vT+3}, 31, v{rp}
        v_or_b32 v{vT+3}, 0x80000000, v{vT+3}
        v_xor_b32 v{rp}, v{rp}, v{vT+3}
        v_lshrrev_b32 v{rp}, 16, v{rp}
        v_lshl_or_b32 v{rp}, v{rp}, 11, v{kr}
        v_readlane_b32 s{P}, v{rp}, 0
        v_readlane_b32 s{P+1}, v{rp}, 16
        v_readlane_b32 s{P+2}, v{rp}, 32
        s_not_b64 {sr(P + 4, 2)}, {sr(sCMP, 2)}
        s_cmp_lt_u32 s{P}, s{P+1}
        s_cselect_b64 {sr(P + 4, 2)}, {sr(sCMP, 2)}, {sr(P + 4, 2)}
        s_cselect_b32 s{P+3}, s{P}, s{P+1}
        s_cmp_gt_u32 s{P+2}, s{P+3}
        s_cselect_b64 vcc, {sr(P + 4, 2)}, 0""")
        for i in range(4): a(f'v_cndmask_b32 v{xa+i}, v{xa+i}, v{xb+i}, vcc')
        a(f"""s_bitcmp1_b32 vcc_lo, 0
        s_cselect_b32 s{P}, s{P+2}, s{P}
        s_cselect_b32 s{T6}, s{T4}, s{T6}
        s_cselect_b32 s{T4}, s{sY2}, s{sY0}
        s_bitcmp1_b32 vcc_lo, 8
        s_cselect_b32 s{P+1}, s{P+2}, s{P+1}
        s_cselect_b32 s{T6}, s{T5}, s{T6}
        s_cselect_b32 s{T5}, s{sY2}, s{sY1}""")
        gd = [gaf + 4 * i for i in range(4)] + [cbf + 4 * i for i in range(4)]
        lg.wait_all()
        for s in range(8):
            a(f'v_mfma_f32_16x16x32_bf16 {vr(gd[s], 4)}, {vr(xa, 4)}, {vr(ffn + 4*s, 4)}, 0')
        p0, p1 = xb, xb + 2
        for p, b in ((p0, 0), (p1, 4)):
            a(f'v_add_f32 v{p}, v{gd[b]}, v{gd[b+1]+1}')
            a(f'v_add_f32 v{p+1}, v{gd[b+2]+2}, v{gd[b+3]+3}')
        a(f"""v_add_f32 v{p0}, v{p0}, v{p0+1}
        v_add_f32 v{p1}, v{p1}, v{p1+1}
        v_mov_b32 v{p0+1}, s{sTAG}
        v_permlane16_swap_b32 v{p1}, v{p1+1}
        s_cmp_ge_u32 s{sJ}, 28
        s_cbranch_scc1 L_NOHP
        v_add_f32 v{p0}, v{p0}, v{p1+1}
        s_mov_b32 exec_lo, 0xffff
        s_mov_b32 exec_hi, 0xffff""")
        self.bs(p0, 2, vT + 4, rWS, T7, 0, 'sc1', count=False)
        a("""s_mov_b64 exec, -1
        L_NOHP:""")
        self.stamp('Hpub')
        if not dn_late and not o['dnsplit']:
            for s in range(4): dn_read(s)
        def out_store(hs=None):
            for h in (hs or range(o['outat'] >= 3, 2)):
                a(f"""v_cmp_ne_u32 vcc, s{sK1}, v{vRt+h}
                v_cmp_ne_u32 {sr(sCMP, 2)}, s{sK2}, v{vRt+h}
                s_and_b64 exec, vcc, {sr(sCMP, 2)}""")
                self.bs(op + 4 * h, 4, vTa, rOUT, (sROW0, sROW1)[h], 0, o.get('outmod', 'sc1'))
                a('s_mov_b64 exec, -1')
        if o['outat']:
            a(f's_and_b32 s{sK1}, s{P}, 2047\ns_and_b32 s{sK2}, s{P+1}, 2047')
            out_calc(3)
            lg.wait_all()
        if o['outat'] == 1:
            a('s_barrier')
            out_store()
        if o['outat'] in (0, 3):
            for h in range(2 if o['outat'] == 0 else 1):
                a(f"""v_cmp_eq_u32 vcc, s{T6}, v{vRt+h}
                s_and_b64 exec, vcc, -1
                s_cbranch_execz L_NOLO{h}""")
                self.bs(op + 4 * h, 4, vTa, rOUT, (sROW0, sROW1)[h], 0, o.get('outmod', 'sc1'), count=False)
                a(f'L_NOLO{h}:\ns_mov_b64 exec, -1')
        self.stamp('outst')
        fz, x1, st = g16 + 12, AV, kk
        a(f"""s_cmp_lg_u32 s{sRow}, 7
        s_cbranch_scc1 L_NONON
        v_mov_b32 v{vT+2}, s{sTAG}
        v_mov_b32 v{vT+3}, 0
        s_mov_b64 exec, 1""")
        self.bs(vT + 2, 1, vT + 3, rWS, '0', 0, 'sc1', count=False)
        a(f"""s_mov_b64 exec, -1
        L_NONON:
        s_cmp_ge_u32 s{sJ}, 28
        s_cbranch_scc1 {'L_FIN3' if o['outat'] >= 2 else 'L_FIN'}""")
        gA = g16
        va(gA, [(2, 1, 128), (5, 1, 16)], None, L_ACT)
        va(gA + 1, [(4, 2, 56 * 128), (0, 4, 8)])
        S(sFG, '(kq*8 + w)*(4*56*128) + fs*128 + GGR')
        va(gA + 2, [(0, 1, 2 * 4096), (1, 1, 64 * 4096)])
        S(sFD, '((w & 1)*4 + (kq >> 1) + ((kq & 1)*4 + (w >> 1))*8)*4096 + x*64 + (j >> 2)*4 + INB + 3072')
        def dn_go():
            if o['dnsplit'] and not dn_late:
                vm.wait('fdn'); a('s_barrier')
                for s in range(4): dn_read(s)
            out_calc(5)
            if o['outat'] == 4: assert o['dnsplit'] and not dn_late and 5 not in o['ocut']; out_store([0])
        q1 = list(vm.q)
        a(f's_cmp_lt_u32 s{sWAVE}, 4\ns_cbranch_scc1 L_HW')
        dn_go()
        a(f"""s_cmp_lg_u32 s{sWAVE}, 7
        s_cbranch_scc1 L_NOH""")
        a(f"""s_bitcmp1_b32 s{sJ}, 3
        s_cselect_b32 s{T2}, s{P+1}, s{P}
        s_cselect_b32 s{T4}, s{T5}, s{T4}
        s_andn2_b32 s{T5}, 2047, s{T2}""")
        S(T6, 'cb*4 + (x >> 1)')
        S(T7, '((T6 >> 1)*4 + (j >> 3)*2 + (T6 & 1))*(56*128) + GGR')
        S(sU, 'T5*2048 + T6*32')
        va(vT + 6, [(0, 3, 4)])
        S(T0, '(x >> 1)*64 + L_GB'); va(vT + 1, [(0, 3, 8)], T0)
        a(f'ds_read_b64 {vr(fz + 2, 2)}, v{vT+1}')
        S(sY0, '(T4 & 31)*8192 + cb*512 + (x >> 1)*32 + XS')
        a(f"""s_lshr_b32 s{T0}, s{T2}, 11
        s_lshl_b32 s{T0}, s{T0}, 16
        s_ashr_i32 s{T2}, s{T0}, 31
        s_andn2_b32 s{T2}, 0x7fff0000, s{T2}
        s_or_b32 s{T2}, s{T2}, 0x80000000
        s_xor_b32 s{T0}, s{T0}, s{T2}
        v_mov_b32 v{fz}, s{T0}
        v_mul_f32 v{fz}, s{sL2E}, v{fz}
        v_exp_f32 v{fz}, -v{fz}
        v_add_f32 v{fz}, 1.0, v{fz}
        v_rcp_f32 v{fz}, v{fz}""")
        self.round1(fz)
        q0 = list(vm.q)
        a(f'v_mov_b32 v{vT+1}, s{sTAG}\nv_not_b32 v{vT+2}, v{vT+1}')
        self.poll(lambda: (self.bl(st, 1, vT + 6, rWS, sY0, 0, 'sc1'), self.bl(st + 1, 1, vT + 6, rWS, sY0, 128, 'sc1')), [st + 2], vT,
                  lambda: a(f'''v_max_u32 v{st+2}, v{st}, v{st+1}
                  v_cmp_ne_u32 vcc, -1, v{st+2}
                  v_cndmask_b32 v{st+2}, v{vT+2}, v{vT+1}, vcc'''))
        vm.q = q0
        self.unpack(st + 2, st + 3, st + 1)
        a(f'v_and_b32 v{st+1}, s{sMASK}, v{st}\nv_lshlrev_b32 v{st}, 16, v{st}')
        a('s_branch L_NOH')
        a('L_HW:')
        vm.q = q1; lg.reset()
        S(T0, 'w*256 + T1')
        va(vT, [(4, 2, 2048), (0, 4, 16)])
        S(T2, 'w*32 + L_ACT'); va(vT + 1, [(5, 1, 128), (2, 1, 16), (1, 1, 8), (3, 1, 4), (0, 1, 2)], T2)
        q0 = list(vm.q)
        g, u = x1, x1 + 4
        if not o['Hdir']:
            self.spoll([(q, 1, T0, q * 2048 + 1024 + 252) for q in range(4)], range(4), dn_go)
            self.stamp('Hpre')
        self.poll(lambda: [self.bl(x1 + 4 * m, 4, vT, rWS, T0, m * 1024, 'sc1') for m in range(2)], [g + 1, g + 3, u + 1, u + 3], vT + 2)
        a(f"""v_permlane32_swap_b32 v{g}, v{g+2}
        v_permlane32_swap_b32 v{u}, v{u+2}
        v_add_f32 v{g}, v{g}, v{g+2}
        v_add_f32 v{u}, v{u}, v{u+2}
        v_mov_b32 v{g+2}, v{g}
        v_mov_b32 v{u+2}, v{u}
        v_permlane16_swap_b32 v{g}, v{g+2}
        v_permlane16_swap_b32 v{u}, v{u+2}
        v_add_f32 v{g}, v{g}, v{g+2}
        v_add_f32 v{u}, v{u}, v{u+2}""")
        self.round2(g, u)
        self.silu(g, vT + 2)
        a(f"""v_mul_f32 v{g}, v{g}, v{u}
        v_cvt_pk_bf16_f32 v{g}, v{g}, v{g}
        ds_write_b16 v{vT+1}, v{g}
        L_NOH:""")
        vm.q = q0
        vm.wait('ffn'); vm.wait('fdn')
        self.barrier()
        self.stamp('Hok')
        for s in range(4):
            self.r128(x1 + 4 * s, gA, s * 32, ('ac', s))
            if dn_late: dn_read(s, ('ac', s))
        for s in range(4):
            lg.wait(('ac', s))
            a(f'v_mfma_f32_32x32x16_bf16 {vr(hh, 16)}, {vr(x1 + 4*s, 4)}, {vr(fdn + 4*s, 4)}, ' + ('0' if s == 0 else vr(hh, 16)))
        a(f'v_mov_b32 v{hh+1}, s{sTAG}')
        self.bs(hh, 2, gA + 1, rWS, sFG, 0, 'sc1')
        if not o['Gdir']:
            a('s_mov_b64 exec, 15')
            self.bs(hh + 1, 1, gA + 2, rWS, sFD, 0, 'sc1')
            a('s_mov_b64 exec, -1')
        self.stamp('Gpub')
        if o['outat'] >= 2:
            a('s_barrier\ns_branch L_FIN2\nL_FIN3:')
            out_calc(5)
            a('s_waitcnt lgkmcnt(0)')
            if o['outat'] == 4: out_store([0])
            a('L_FIN2:')
            out_store()
        a(f"""s_cmp_ge_u32 s{sJ}, 16
        s_cbranch_scc1 L_FIN""")
        if not o['Gdir']:
            self.inbox(6, 8, range(7))
            self.stamp('Gpre')
            a('s_barrier')
        a(f"""s_cmp_lg_u32 s{sWAVE}, 7
        s_cbranch_scc1 L_FIN""")
        S(T0, 'T7 + 4096')
        gg = [x1 + 4 * i for i in range(7)]
        def g_ld():
            [self.bl(gg[n], 4, vL16, rWS, (T7, T0)[n >> 2], (n & 3) * 1024, 'sc1') for n in range(7)]
        self.poll(g_ld, [gg[n] + 1 + 2 * e for n in range(7) for e in range(2)], vT)
        self.stamp('Gok')
        y0, y1 = gg[0], gg[0] + 1
        for p_, q_ in ((0, 1), (2, 3), (4, 5), (0, 2), (4, 6)):
            for e in (0, 2): a(f'v_add_f32 v{gg[p_]+e}, v{gg[p_]+e}, v{gg[q_]+e}')
        a(f'v_add_f32 v{y0}, v{gg[0]}, v{gg[4]}\nv_add_f32 v{y1}, v{gg[0]+2}, v{gg[4]+2}')
        a(f"""v_permlane32_swap_b32 v{y0}, v{y1}
        v_add_f32 v{y0}, v{y0}, v{y1}""")
        self.dpp('v_add_f32', y0, y0, y0, 'row_ror:8')
        a(f"""v_mov_b32 v{y1}, v{y0}
        v_permlane16_swap_b32 v{y0}, v{y1}
        v_add_f32 v{y1}, v{y0}, v{y1}
        v_cvt_pk_bf16_f32 v{y0}, 0, v{y1}
        v_cvt_pk_bf16_f32 v{y1}, 0, v{y1}
        v_permlane32_swap_b32 v{y0}, v{y1}""")
        self.pk('mul', y0, y0, fz, bc=(1,))
        self.round2(y0, y1)
        self.pk('add', y0, y0, st)
        self.round2(y0, y1)
        self.pk('mul', y0, y0, fz + 2)
        self.round2(y0, y1)
        self.pk('add', y0, y0, st + 2)
        a(f'v_cvt_pk_bf16_f32 v{y0}, v{y0}, v{y1}')
        a('s_mov_b64 exec, 0xff')
        self.bs(y0, 1, vT + 6, rOUT, sU, 0, o.get('finmod', ''))
        a('s_mov_b64 exec, -1')
        a('L_FIN:')

    def finish(self):
        a, S, o = self.a, self.S, self.o
        if o.get('exfil'):
            a('s_waitcnt vmcnt(0) lgkmcnt(0)')
            self.stamp('fin')
            a(f'''v_readlane_b32 s{T0}, v255, 0
            v_readlane_b32 s{T1}, v255, 1
            v_readlane_b32 s{T2}, v255, 2
            s_sub_u32 s{T2}, s{T2}, s{T1}
            s_max_i32 s{T2}, s{T2}, 0
            s_min_u32 s{T2}, s{T2}, 10000
            s_mul_i32 s{T2}, s{T2}, 10
            s_add_u32 s{T2}, s{T2}, 6000
            L_XPAD:
            s_memrealtime {sr(sTM, 2)}
            s_waitcnt lgkmcnt(0)
            s_sub_u32 s{T1}, s{sTM}, s{T0}
            s_cmp_lt_u32 s{T1}, s{T2}
            s_cbranch_scc1 L_XPAD''')
        if self.o.get('dbg2'):
            S(T1, '(wg*8 + w)*32768 + 0x4000000'); self.vaa(vT, [(0, 6, 4)])
            for k, r in enumerate(list(range(72, 104)) + list(range(120, 136)) + list(range(176, 184))):
                if k % 16 == 0 and k: S(T1, 'T1 + 4096')
                self.bs(r, 1, vT, rWS, T1, (k % 16) * 256, '', 'dbg')
                if k % 16 == 15: self.vm.wait('dbg')
        if self.prof:
            a('s_waitcnt vmcnt(0) lgkmcnt(0)')
            self.stamp('end')
            a(f's_memrealtime {sr(sTM, 2)}')
            a('s_waitcnt lgkmcnt(0)')
            a(f'v_writelane_b32 v255, s{sTM}, 61')
            S(T0, '(wg*8 + w)*256 + STAMPS')
            a(f'v_writelane_b32 v255, s{sSPIN}, 62')
            a(f'v_lshlrev_b32 v{vT+1}, 2, v{vL}')
            a(f'buffer_store_dword v255, v{vT+1}, {sr(rWS, 4)}, s{T0} offen')
            S(T0, 'T0 + 0x100000')
            a(f'buffer_store_dword v254, v{vT+1}, {sr(rWS, 4)}, s{T0} offen')
        a('L_END:')
        a('s_endpgm')

    def pads(self):
        import subprocess, re
        a = self.a
        src = '.amdgcn_target "amdgcn-amd-amdhsa--gfx950"\n.text\n' + a.text().replace('CODE_KB', '20480')
        out = subprocess.run(['llvm-mc', '-triple=amdgcn-amd-amdhsa', '-mcpu=gfx950', '-show-encoding'], input=src, capture_output=True, text=True, check=True).stdout
        sizes = [len(m.split(',')) for m in re.findall(r'; encoding: \[([^\]]*)\]', out)]
        tour = next(i for i, x in enumerate(a.items) if x == ('raw', ';TOUR'))
        NT = 16
        addr = self.o['kofs']; full = True; k = 0; items = []; pads = []; page = 0
        for i, (kind, v) in enumerate(a.items):
            isins = kind == 'ins' or (kind == 'raw' and v.startswith('    s_'))
            if i == tour: items.append((kind, v)); addr += 4 * 48; continue
            if isins:
                if addr // 4096 > page and full and i > tour:
                    page = addr // 4096; pads.append(page)
                    items.append(('raw', f'L_PAD{page}:\n    s_cbranch_execz L_RET{page}')); addr += 4
                elif i < tour: page = addr // 4096
                addr += sizes[k]; k += 1
                if kind == 'ins' and ('s', 'exec_lo') in v.dst + [('s', 'exec_lo') if ('s', 'exec_hi') in v.dst else None]:
                    full = v.text.replace(' ', '') in ('s_mov_b64exec,-1', 's_mov_b32exec_hi,-1')
            items.append((kind, v))
        assert k == len(sizes), (k, len(sizes))
        t = ['s_mov_b64 exec, 0']
        chains = [pads[c::4] for c in range(4)]
        for c in range(4): t += [f's_cmp_eq_u32 s{sWAVE}, {4 + c}', f's_cbranch_scc1 L_PAD{chains[c][0]}']
        t.append('s_branch L_TEND')
        n = len(t)
        for ch in chains:
            for p, q in zip(ch, ch[1:] + [None]):
                t += [f'L_RET{p}:', f's_branch ' + (f'L_PAD{q}' if q else 'L_TEND')]; n += 1
        assert n <= 47
        t += ['s_nop 0'] * (47 - n) + ['L_TEND:', 's_mov_b64 exec, -1']
        j = items.index(('raw', ';TOUR'))
        items[j] = ('raw', '\n'.join(x if x.endswith(':') else '    ' + x for x in t))
        a.items = items

    def text(self):
        a = self.a
        npad = a.fix_hazards()
        errs = a.check_waits([NAME])
        for e in errs[:10]: print('WAITERR', e, file=sys.stderr)
        assert not errs
        import re
        for k, v in a.items:
            if k == 'ins' and v.mn.startswith('v_pk_'):
                m = re.search(r'op_sel:\[([\d,]+)\]', v.text)
                vs = [i for i, x in enumerate(v.ops[1:]) if x.startswith('v')]
                assert self.o.get('badpk') or not (m and any(m.group(1).split(',')[i] == '1' for i in vs[1:])), v.text
        if self.o['tour']: self.pads()
        hdr = open(os.path.join(os.path.dirname(os.path.abspath(__file__)), 'header.txt')).read()
        s = hdr + '; @launch grid=(256,1,1) block=(512,1,1) lds=163840\n'
        s += '.amdgcn_target "amdgcn-amd-amdhsa--gfx950"\n.text\n'
        s += f'.globl {NAME}\n.p2align {12 if self.o["al12"] else 8}\n.type {NAME},@function\n'
        body = a.text()
        import subprocess, tempfile
        with tempfile.TemporaryDirectory() as td:
            open(td + '/t.s', 'w').write('.amdgcn_target "amdgcn-amd-amdhsa--gfx950"\n.text\n' + body.replace('CODE_KB', '20480'))
            subprocess.run(['clang', '-x', 'assembler', '-target', 'amdgcn-amd-amdhsa', '-mcpu=gfx950', '-c', td + '/t.s', '-o', td + '/t.o'], check=True)
            subprocess.run(['llvm-objcopy', '-O', 'binary', '-j', '.text', td + '/t.o', td + '/t.bin'], check=True)
            size = os.path.getsize(td + '/t.bin')
        print('; code bytes', size, file=sys.stderr)
        s += body.replace('CODE_KB', str((size // 1024 + 1) * 1024))
        s += '.p2align 10\n.fill 768, 4, 0xbf800000\n'
        s += '.section .rodata,"a"\n' + kernel_desc(NAME, 256, 102)
        print(f'; nops {npad}, instrs {sum(1 for k, _ in a.items if k == "ins")}', file=sys.stderr)
        return s


if __name__ == '__main__':
    import argparse, json
    ap = argparse.ArgumentParser()
    ap.add_argument('-o', default='/dev/stdout')
    ap.add_argument('--prof', action='store_true')
    ap.add_argument('--opts', default='{}')
    args = ap.parse_args()
    g = Gen(args.prof, json.loads(args.opts)).build()
    t = g.text()
    open(args.o, 'w').write(t)
    if args.prof: open(args.o + '.stamps', 'w').write(json.dumps(g.stnames))
```

```python
import sys, os
sys.path.insert(0, os.path.dirname(os.path.abspath(__file__)))
from asm import *

NAME = 'adaLN_cond__linear_kernel_hedgehog__moe_arch_mod__prompt_kernel'

NONCE = 0x0
MODP2 = 0x020000
SINB = 0x200000
AINB = 0x080000
INB = 0x100000
HF = 0x400000
OF = 0x800000
ST = 0xC00000
XS = 0xD00000
UP = 0xD80000
HGR = 0x1400000
ZP = 0x1480000
GGR = 0x1500000
KVP = 0x1800000
KIN = 0x1C00000
STAMPS = 0x1600000
WS_BYTES = 268435456

REG = 49152
MISC = 147456
L_A1 = MISC
L_ST = MISC + 6144
L_MP = MISC + 8192
L_WPHI = MISC + 12288
L_KH = 0
L_QH = MISC + 4096
L_KVF = MISC
L_ZF = MISC + 8192
L_M2 = MISC + 9984
L_MD = MISC + 12288
L_K1 = MISC + 8704
L_K2 = MISC + 8832
L_ACT = MISC + 9216
L_GB = MISC + 9728
L_HV = 32768
L_PHK = 0
L_TR = 98304
L_GU = 0
L_DN = 65536
UR = 393216

SPIN_LIMIT = 200000

sWAVE, sTAG, sSPIN, sMASK, sL2E = 3, 4, 5, 6, 7
sX, sJ, sR1, sHP, sCB = 8, 9, 10, 11, 12
T0, T1, T2, T3, T4, T5, T6, T7 = 13, 14, 15, 16, 17, 18, 19, 20
sRT = 21
sCMP = 22
sPL = 24
rWS, rX, rW, rWO, rWM, rWG, rWU, rWD, rOUT = 32, 36, 40, 44, 48, 52, 56, 60, 64
KA = 68
pWPHI, pWR, pC = KA + 4, KA + 10, KA + 18
sK1, sK2, sROW0, sROW1, sFS, sKQ, sKH, sRB = 68, 69, 70, 71, 74, 75, 76, 77
sFG, sFD, sU, sW1K, sU0, sWB = 80, 81, 82, 83, 84, 85
sAB, sM2, sWO, sY0 = 88, 89, 90, 91
sINB, sRow, sY1, sY2 = 92, 93, 94, 95
sZ0, sZ1, sZ2, sZ3 = 72, 73, 86, 87
sCM = 84
sC2 = 88
XT = (96, 97, 98, 99)
sTM = 100
ENV = dict(wg=2, w=sWAVE, x=sX, j=sJ, r1=sR1, hp=sHP, cb=sCB, rt=sRT, row=sRow, kh=sKH, rb=sRB, fs=sFS, kq=sKQ,
           w1k=sW1K, u=sU, fg=sFG, fd=sFD, u0=sU0, wb=sWB, ab=sAB, m2=sM2, wo=sWO, y0=sY0, y1=sY1, y2=sY2,
           z0=sZ0, k1=sK1, k2=sK2, row0=sROW0, row1=sROW1,
           T0=T0, T1=T1, T2=T2, T3=T3, T4=T4, T5=T5, T6=T6, T7=T7)

vL, vL16, vWd, vT = 1, 2, 3, 4
XR = 12
vB = 20
vS0, vS1 = 26, 27
RING = 28
AK, AV, AQ = 56, 88, 120
AR = 152
SP = 248


class Stream:
    def __init__(self, g): self.g, self.q, self.wake = g, [], 0
    def add(self, fn, v=0, l=0): self.q.append((v, l, fn))
    def sleep(self, k): self.q.append(('sleep', k, None))
    def until(self, n): self.q.append(('until', n, None))
    def cap(self, fn):
        a = self.g.a
        keep = a.items; a.items = []
        fn()
        body = a.items; a.items = keep
        run = []
        for it in body:
            i = it[1]
            assert it[0] == 'ins' and i.cls in ('valu', 'salu', 'mfma'), it
            run.append(it)
            if i.cls == 'salu': continue
            c = 8 if (i.cls == 'mfma' or i.is_trans or 'permlane' in i.mn) else 6 if i.mn.startswith(('v_fma', 'v_max3', 'v_min3', 'v_lshl_', 'v_bfe')) else 4.75 if i.mn.startswith('v_cvt') else 4
            self.q.append((c + (len(run) - 1), 0, (lambda r=run: a.items.extend(r)))); run = []
        if run: self.q.append((len(run), 0, (lambda r=run: a.items.extend(r))))
    def mark(self, name): self.q.append((0, 0, lambda: (self.g.marks.add(name), self.g.markn.append((name, self.g.cur[0])))))
    def pull(self, bud, full):
        n = self.g.cur[0]
        while self.q and n >= self.wake:
            v, l, fn = self.q[0]
            if v == 'sleep': self.wake = n + l; self.q.pop(0); continue
            if v == 'until': self.wake = max(n, l); self.q.pop(0); continue
            if l > bud[1]: return
            if v > bud[0] and bud[0] < full:
                bud[0] = -1; return
            self.q.pop(0); fn(); bud[0] -= v; bud[1] -= l


DEFAULTS = dict(wburst=(0, 2, 2, 0, 6, 0), xtat=0, wpre=(2, 0), dnsplit=1, lateB=1, wo0=0, m2k0=11, m2n0=4, mdlate=1, m2gap=10, m2cut=60, aoff=6, wpace=0, cprio=1, g2p=28, tlb=0, tlbk=2, tsin=0, tz=0, outat=2, gbar=1, fbar=0, xorw=1, LOOK=6, A00=8, A0=8, Apos=(6, 6, 6, 6, 6, 6, 5, 5, 5, 5),
                wsched={5: 'k10 v10', 6: 'k11 v11', 7: 'k12 v12', 8: 'k13 v13', 9: 'k14 q10', 10: 'k15 q11', 11: 'v14 v15 q12', 12: 'q13 q14 q15'},
                bA=271, bH=295, kbud=10, vbud=5, wcost=5, kdel=1, hh=0.25, hq=0.97, hpf=(0.3, 0.7), fA=2, woA=4, hgap=(20, 14), fpre=8, m2c=4, m2k3='(j & 1)*2 + 1', m2g=5, m2e=7, m2nb=1, m2db=2, apos=0, hprio=3, qmid=8, qsplit=16, wowin=(4, 4, 4), AD2=8, LOOK2=7, g2r='(j & 1)*4', Hdir=0, Gdir=0, C2dir=0, poisat=3, earlyD=1, ocut=(0, 2, 2), pairw2=4, worot=1, fwin=(0, 0, 0, 3, 2, 3, 2), prio=2, tour=1, al12=1, kofs=0x300)


class Gen:
    def __init__(self, prof=False, opts=None):
        self.a = Asm()
        self.vm = Counter(self.a, 'vmcnt', 63)
        self.lg = Counter(self.a, 'lgkmcnt', 15)
        self.marks = set(); self.markn = []
        self.vL = vL
        self.prof = prof
        self.nopk = False
        self.nst = 0
        self.stnames = []
        self.S = SExpr(self.a, ENV, {k: v for k, v in globals().items() if isinstance(v, int) and k.isupper() and k not in ENV}, XT)
        self.o = dict(DEFAULTS)
        if opts: self.o.update(opts)

    def bl(self, dst, n, voff, srd, soff, imm=0, mods='', tag=None):
        op = {1: 'dword', 2: 'dwordx2', 4: 'dwordx4'}[n]
        so = soff if isinstance(soff, str) else (sr(soff))
        self.a(f'buffer_load_{op} {vr(dst, n)}, v{voff}, {sr(srd, 4)}, {so} offen' + (f' offset:{imm}' if imm else '') + (' ' + mods if mods else ''))
        self.vm.issue(tag)
    def bs(self, src, n, voff, srd, soff, imm=0, mods='', tag=None, count=True):
        op = {1: 'dword', 2: 'dwordx2', 4: 'dwordx4'}[n]
        so = soff if isinstance(soff, str) else (sr(soff))
        self.a(f'buffer_store_{op} {vr(src, n)}, v{voff}, {sr(srd, 4)}, {so} offen' + (f' offset:{imm}' if imm else '') + (' ' + mods if mods else ''))
        if count: self.vm.issue(tag)
    def dma(self, voff, srd, soff, imm=0, mods='', tag=None):
        self.a(f'buffer_load_dwordx4 v{voff}, {sr(srd, 4)}, {sr(soff)} offen' + (f' offset:{imm}' if imm else '') + (' ' + mods if mods else '') + ' lds')
        self.vm.issue(tag)
    def dr(self, op, dst, n, addr, off=0, tag=None):
        assert 0 <= off < 65536, off
        self.a(f'{op} {vr(dst, n)}, v{addr}' + (f' offset:{off}' if off else ''))
        self.lg.issue(tag)
    def tr(self, dst, addr, off, tag=None): self.dr('ds_read_b64_tr_b16', dst, 2, addr, off, tag)
    def r128(self, dst, addr, off=0, tag=None): self.dr('ds_read_b128', dst, 4, addr, off, tag)
    def dw(self, op, addr, src, n, off=0, tag=None):
        assert 0 <= off < 65536, off
        self.a(f'{op} v{addr}, {vr(src, n)}' + (f' offset:{off}' if off else ''))
        self.lg.issue(tag)
    def barrier(self):
        self.lg.wait_all()
        self.a('s_barrier')
    def stamp(self, name):
        if self.o.get('jit') and name not in ('karg', 'fin', 'end'):
            L = self.a.label('JIT')
            self.a(f's_memtime {sr(sTM, 2)}'); self.lg.wait_all()
            self.a(f's_mul_i32 s{sTM}, s{sTM}, 0x9e3779b1\ns_lshr_b32 s{sTM}, s{sTM}, {32 - self.o["jit"]}\ns_add_u32 s{sTM}, s{sTM}, 1\n{L}:\ns_sleep 1\ns_sub_u32 s{sTM}, s{sTM}, 1\ns_cmp_lg_u32 s{sTM}, 0\ns_cbranch_scc1 {L}')
        ex = self.o.get('exfil')
        if ex and name in ex[:2]:
            self.a(f's_memrealtime {sr(sTM, 2)}')
            self.lg.wait_all()
            self.a(f'v_writelane_b32 v255, s{sTM}, {1 + ex.index(name)}')
        if not self.prof: return
        only = self.o.get('only')
        if only and name not in only and name != 'end': return
        self.a(f's_memtime {sr(sTM, 2)}')
        self.a(f's_memrealtime s[0:1]')
        self.lg.wait_all()
        self.a(f'v_writelane_b32 v255, s{sTM}, {self.nst}')
        self.a(f'v_writelane_b32 v254, s0, {self.nst}')
        self.stnames.append(name)
        self.nst += 1
        assert self.nst <= 60
    def unpack(self, lo, hi, src):
        self.a(f'v_lshlrev_b32 v{lo}, 16, v{src}')
        self.a(f'v_and_b32 v{hi}, s{sMASK}, v{src}')
    def round1(self, r):
        self.a(f'v_cvt_pk_bf16_f32 v{r}, 0, v{r}')
    def round2(self, r0, r1):
        self.round1(r0); self.round1(r1)
    def round_list(self, regs):
        for r in regs: self.round1(r)
    def pk(self, op, d, s0, s1, s2=None, bc=(), neg=()):
        srcs = [s0, s1] + ([s2] if s2 is not None else [])
        if self.nopk:
            for h in range(2):
                t = []
                for k, r in enumerate(srcs):
                    kind, n = r if isinstance(r, tuple) else ('v', r)
                    t.append(('-' if k in neg else '') + f'{kind}{n if k in bc else n + h}')
                e64 = '' if op == 'fma' else ('_e64' if (neg or t[1][0] == 's') else '')
                self.a(f'v_{op}_f32{e64} v{d+h}, ' + ', '.join(t))
            return
        if 1 in bc and not isinstance(s1, tuple) and s1 & 1 and not self.o.get('badpk'):
            assert 0 not in bc
            sw = lambda t: tuple({0: 1, 1: 0}.get(k, k) for k in t)
            srcs[0], srcs[1] = srcs[1], srcs[0]; bc, neg = sw(bc), sw(neg)
        txt, sel, selhi = [], [], []
        for k, r in enumerate(srcs):
            kind, n = r if isinstance(r, tuple) else ('v', r)
            if k in bc:
                txt.append(f'{kind}[{n & ~1}:{(n & ~1) + 1}]'); sel.append(n & 1); selhi.append(n & 1)
            else:
                assert n % 2 == 0
                txt.append(f'{kind}[{n}:{n+1}]'); sel.append(0); selhi.append(1)
        assert d % 2 == 0
        m = ''
        if any(sel): m += ' op_sel:[' + ','.join(map(str, sel)) + ']'
        if not all(selhi): m += ' op_sel_hi:[' + ','.join(map(str, selhi)) + ']'
        if neg:
            ng = ','.join('1' if k in neg else '0' for k in range(len(srcs)))
            m += f' neg_lo:[{ng}] neg_hi:[{ng}]'
        self.a(f'v_pk_{op}_f32 v[{d}:{d+1}], ' + ', '.join(txt) + m)
    def dpp(self, op, d, s0, s1, ctl):
        self.a(f'{op}_dpp v{d}, v{s0}, v{s1} {ctl} row_mask:0xf bank_mask:0xf')
    def allreduce(self, v, t, op='v_add_f32', lo=True, b3=True):
        if lo:
            self.dpp(op, v, v, v, 'quad_perm:[1,0,3,2]')
            self.dpp(op, v, v, v, 'quad_perm:[2,3,0,1]')
            self.dpp(op, v, v, v, 'row_half_mirror')
        self.dpp(op, v, v, v, 'row_ror:8')
        self.a(f'v_mov_b32 v{t}, v{v}')
        self.a(f'v_permlane16_swap_b32 v{v}, v{t}')
        self.a(f'{op} v{v}, v{v}, v{t}')
        self.a(f'v_mov_b32 v{t}, v{v}')
        self.a(f'v_permlane32_swap_b32 v{v}, v{t}')
        self.a(f'{op} v{v}, v{v}, v{t}')
    def poll(self, loads, tagregs, tmp=None, post=None):
        a = self.a
        L, D = a.label('POLL'), a.label('PDONE')
        a(f'{L}:')
        loads()
        self.vm.wait_all()
        if post: post()
        if len(tagregs) == 1:
            a(f'v_cmp_ne_u32 vcc, s{sTAG}, v{tagregs[0]}')
        else:
            a(f'v_bitop3_b32 v{tmp}, v{tagregs[0]}, v{tagregs[1]}, s{sTAG} bitop3:0x7e')
            for t in tagregs[2:]: a(f'v_bitop3_b32 v{tmp}, v{tmp}, v{t}, s{sTAG} bitop3:0xf6')
            a(f'v_cmp_ne_u32 vcc, 0, v{tmp}')
        a(f's_cbranch_vccz {D}')
        a(f's_add_u32 s{sSPIN}, s{sSPIN}, 1')
        a(f's_cmp_lt_u32 s{sSPIN}, {SPIN_LIMIT}')
        a(f's_cbranch_scc1 {L}')
        a(f'{D}:')
    def weave(self, fn, extras):
        a = self.a
        keep = a.items; a.items = []
        fn()
        body = a.items; a.items = keep
        extras = list(extras); n = len(extras)
        for i, it in enumerate(body):
            while extras and (n - len(extras)) * len(body) <= i * n: extras.pop(0)()
            a.items.append(it)
        for e in extras: e()
    def tagcheck(self, tagregs, tmp):
        a = self.a
        if len(tagregs) == 1:
            a(f'v_cmp_ne_u32 vcc, s{sTAG}, v{tagregs[0]}')
        else:
            a(f'v_bitop3_b32 v{tmp}, v{tagregs[0]}, v{tagregs[1]}, s{sTAG} bitop3:0x7e')
            for t in tagregs[2:]: a(f'v_bitop3_b32 v{tmp}, v{tmp}, v{t}, s{sTAG} bitop3:0xf6')
            a(f'v_cmp_ne_u32 vcc, 0, v{tmp}')
    def try_load(self, loads, tagregs, tmp=None, between=None, pre=None):
        a = self.a
        n0 = len(self.vm.q)
        loads()
        self.vm.q[-1] = tg = ('try', a.label('T'))
        if between: between()
        self.vm.wait(tg)
        OK = a.label('TOK')
        self.tagcheck(tagregs, tmp)
        a(f's_cbranch_vccz {OK}')
        q, l = list(self.vm.q), list(self.lg.q)
        if pre: pre()
        self.poll(loads, tagregs, tmp)
        self.vm.q, self.lg.q = q, l
        a(f'{OK}:')
    def spoll(self, loads, checks, work=None):
        a = self.a
        L, C, D = a.label('SPOLL'), a.label('SCHK'), a.label('SDONE')
        def issue():
            for d, n, so, imm in loads:
                op = {1: 'dword', 2: 'dwordx2', 4: 'dwordx4', 8: 'dwordx8'}[n]
                a(f's_load_{op} {sr(sPL + d, n)}, {sr(rWS, 2)}, s{so} offset:{imm} glc')
        if work:
            issue(); work()
            a(f's_branch {C}')
        a(f'{L}:')
        issue()
        a(f'{C}:')
        a(f's_add_u32 s{sSPIN}, s{sSPIN}, 1')
        a(f's_cmp_ge_u32 s{sSPIN}, {SPIN_LIMIT}')
        self.lg.wait_all()
        a(f's_cbranch_scc1 {D}')
        for k in checks:
            a(f's_cmp_lg_u32 s{sPL + k}, s{sTAG}')
            a(f's_cbranch_scc1 {L}')
        a(f'{D}:')
    def inbox(self, box, n, checks=None, work=None):
        self.spoll([(0, n, sINB, box * 512)], range(n) if checks is None else checks, work)
    def va(self, dst, terms, sreg=None, const=0, tmp=None):
        a = self.a; vL = self.vL
        first = True
        for sh, bits, mult in terms:
            full = sh + bits >= 6
            src = vL
            t = dst if first else tmp
            if sh == 0 and full: pass
            elif full: a(f'v_lshrrev_b32 v{t}, {sh}, v{vL}'); src = t
            elif sh == 0: a(f'v_and_b32 v{t}, {(1 << bits) - 1}, v{vL}'); src = t
            else: a(f'v_bfe_u32 v{t}, v{vL}, {sh}, {bits}'); src = t
            p2 = mult & (mult - 1) == 0
            k = mult.bit_length() - 1
            if first:
                if p2 and sreg is not None: a(f'v_lshl_add_u32 v{dst}, v{src}, {k}, s{sreg}'); sreg = None
                elif p2 and k: a(f'v_lshlrev_b32 v{dst}, {k}, v{src}')
                elif p2:
                    if src != dst: a(f'v_mov_b32 v{dst}, v{src}')
                else: a(f'v_mul_u32_u24 v{dst}, {mult}, v{src}')
            else:
                assert p2
                a(f'v_lshl_add_u32 v{dst}, v{src}, {k}, v{dst}')
            first = False
        if sreg is not None: a(f'v_add_u32 v{dst}, s{sreg}, v{dst}')
        if const: a(f'v_add_u32 v{dst}, {const}, v{dst}')
    def push(self, vaddr, soff, nl, vtmp, lab, wave=0):
        a = self.a
        a(f's_cmp_lg_u32 s{sWAVE}, {wave}')
        a(f's_cbranch_scc1 {lab}')
        a(f'v_mov_b32 v{vtmp}, s{sTAG}')
        a(f's_mov_b32 exec_hi, 0')
        if nl < 32: a(f's_mov_b32 exec_lo, {(1 << nl) - 1}')
        self.bs(vtmp, 1, vaddr, rWS, soff, 0, 'sc1', count=False)
        a('s_mov_b64 exec, -1')
        a(f'{lab}:')
    def silu(self, v, t):
        a = self.a
        a(f'v_mul_f32 v{t}, s{sL2E}, v{v}')
        a(f'v_exp_f32 v{t}, -v{t}')
        a(f'v_add_f32 v{t}, 1.0, v{t}')
        a(f'v_rcp_f32 v{t}, v{t}')
        a(f'v_mul_f32 v{v}, v{v}, v{t}')
        self.round1(v)
    def gemv_ops(self, wregs, cregs, acc, t0, t1, packed):
        ops = []
        assert t0 % 2 == 0 and t1 == t0 + 1
        for i, (w, c) in enumerate(zip(wregs, cregs)):
            cp = f'v[{c & ~1}:{(c & ~1) + 1}]'
            for d in range(4):
                tt = t0 + 2 * (d & 1)
                ops.append(f'v_lshlrev_b32 v{tt}, 16, v{w+d}')
                ops.append(f'v_and_b32 v{tt+1}, s{sMASK}, v{w+d}')
                ac = f'v[{acc+2*d}:{acc+2*d+1}]'
                if not packed:
                    for h in range(2): ops.append(f'v_mul_f32 v{acc+2*d+h}, v{tt+h}, v{c}' if i == 0 else f'v_fmac_f32 v{acc+2*d+h}, v{tt+h}, v{c}')
                elif i == 0: ops.append(f'v_pk_mul_f32 {ac}, {cp}, v[{tt}:{tt+1}] op_sel:[{c & 1},0] op_sel_hi:[{c & 1},1]')
                else: ops.append(f'v_pk_fma_f32 {ac}, {cp}, v[{tt}:{tt+1}], {ac} op_sel:[{c & 1},0,0] op_sel_hi:[{c & 1},1,1]')
        for i in range(4): ops.append(f'v_permlane32_swap_b32 v{acc+i}, v{acc+4+i}')
        for i in range(4): ops.append(f'v_add_f32 v{acc+i}, v{acc+i}, v{acc+4+i}')
        for i in range(2): ops.append(f'v_permlane16_swap_b32 v{acc+i}, v{acc+2+i}')
        for i in range(2): ops.append(f'v_add_f32 v{acc+i}, v{acc+i}, v{acc+2+i}')
        for i in range(2): ops.append(f'v_add_f32_dpp v{acc+i}, v{acc+i}, v{acc+i} row_ror:8 row_mask:0xf bank_mask:0xf')
        ops.append(f'v_mov_b32_dpp v{acc}, v{acc+1} quad_perm:[0,1,2,3] row_mask:0xf bank_mask:0xc')
        return ops
    def sum8(self, b):
        self.pk('add', b, b, b + 2); self.pk('add', b + 4, b + 4, b + 6); self.pk('add', b, b, b + 4)
        self.a(f'v_add_f32 v{b}, v{b}, v{b+1}')
    def softmax_pm(self, p, e, out, t, mid=None, part=0, split=0, stage=None):
        a = self.a
        mx, mn, u0, u1, s0, s1 = t, t + 1, t + 2, t + 3, t + 4, t + 6
        if part != 2:
            self.round_list([p + i for i in range(16)])
            a(f'v_max3_f32 v{mx}, v{p}, v{p+1}, v{p+2}')
            a(f'v_min3_f32 v{mn}, v{p}, v{p+1}, v{p+2}')
            for i in range(3, 15, 2):
                a(f'v_max3_f32 v{mx}, v{mx}, v{p+i}, v{p+i+1}')
                a(f'v_min3_f32 v{mn}, v{mn}, v{p+i}, v{p+i+1}')
            a(f'v_max_f32 v{u0}, v{mx}, v{p+15}')
            a(f'v_min_f32 v{u1}, v{mn}, v{p+15}')
            a(f'v_max_f32 v{mx}, v{mx}, v{p+15}')
            a(f'v_min_f32 v{mn}, v{mn}, v{p+15}')
            a(f'v_permlane32_swap_b32 v{mx}, v{u0}')
            a(f'v_permlane32_swap_b32 v{mn}, v{u1}')
            a(f'v_max_f32 v{mx}, v{mx}, v{u0}')
            a(f'v_min_f32 v{mn}, v{mn}, v{u1}')
            self.pk('mul', mx, mx, ('s', sL2E), bc=(1,))
            mn2 = mn
            if not self.nopk: a(f'v_mov_b32 v{u0}, v{mn}'); mn2 = u0
            for i in range(0, 16, 2):
                self.pk('fma', e + i, p + i, ('s', sL2E), mx, bc=(1, 2), neg=(2,))
                self.pk('fma', p + i, p + i, ('s', sL2E), mn2, bc=(1, 2), neg=(0,))
        for i in range(split if part == 2 else 0, 16):
            if mid and i == mid[0]: mid[1]()
            if part == 1 and i == split: return
            a(f'v_exp_f32 v{e+i}, v{e+i}')
            a(f'v_exp_f32 v{p+i}, v{p+i}')
        self.pk('add', s0, e, e + 2); self.pk('add', s1, p, p + 2)
        for i in range(4, 16, 2):
            self.pk('add', s0, s0, e + i); self.pk('add', s1, s1, p + i)
        a(f'v_add_f32 v{u0}, v{s0}, v{s0+1}')
        a(f'v_add_f32 v{u1}, v{s1}, v{s1+1}')
        a(f'v_add_f32 v{mx}, v{s0}, v{s0+1}')
        a(f'v_add_f32 v{mn}, v{s1}, v{s1+1}')
        a(f'v_permlane32_swap_b32 v{mx}, v{u0}')
        a(f'v_permlane32_swap_b32 v{mn}, v{u1}')
        self.pk('add', mx, mx, u0)
        a(f'v_rcp_f32 v{mx}, v{mx}')
        a(f'v_rcp_f32 v{mn}, v{mn}')
        for i in range(0, 16, 2):
            self.pk('mul', e + i, e + i, mx, bc=(1,))
            self.pk('mul', p + i, p + i, mn, bc=(1,))
        for i in range(8): a(f'v_cvt_pk_bf16_f32 v{out+i}, v{e+2*i}, v{e+2*i+1}')
        for i in range(8): a(f'v_cvt_pk_bf16_f32 v{out+8+i}, v{p+2*i}, v{p+2*i+1}')
    def ln_stats(self, xp, t, m_out, sd_out, fill=()):
        a = self.a
        fill = list(fill)
        def pad(n):
            for _ in range(n):
                if fill: a(fill.pop(0))
        s, u = t, t + 4
        a(f'v_mov_b32 v{u}, 0x3f803f80')
        for i in range(8):
            k = 2 * (i & 1)
            a(f'v_dot2_f32_bf16 v{s+k}, v{xp+i}, v{u}, ' + ('0' if i < 2 else f'v{s+k}'))
            a(f'v_dot2_f32_bf16 v{s+k+1}, v{xp+i}, v{xp+i}, ' + ('0' if i < 2 else f'v{s+k+1}'))
        pad(3)
        self.pk('add', s, s, s + 2)
        for ctl in ('quad_perm:[1,0,3,2]', 'quad_perm:[2,3,0,1]', 'row_half_mirror', 'row_ror:8'):
            pad(2 if ctl.endswith('3,2]') else 1)
            self.dpp('v_add_f32', s, s, s, ctl); self.dpp('v_add_f32', s + 1, s + 1, s + 1, ctl)
        pad(2)
        a(f'v_permlane16_swap_b32 v{s}, v{s+1}')
        a(f'v_add_f32 v{u}, v{s}, v{s+1}')
        a(f'v_add_f32 v{s}, v{s}, v{s+1}')
        pad(2)
        a(f'v_permlane32_swap_b32 v{s}, v{u}')
        a(f'v_add_f32 v{s}, v{s}, v{u}')
        a(f'v_mul_f32 v{u}, 0x3a800000, v{s}')
        a(f'v_mul_f32 v{s}, 0x3a800000, v{s}')
        pad(2)
        a(f'v_permlane16_swap_b32 v{s}, v{u}')
        a(f'v_fma_f32 v{sd_out}, -v{s}, v{s}, v{u}')
        a(f'v_cvt_pk_bf16_f32 v{m_out}, 0, v{s}')
        a(f'v_max_f32 v{sd_out}, 0, v{sd_out}')
        self.round1(sd_out)
        a(f'v_add_f32 v{sd_out}, 0x3727c5ac, v{sd_out}')
        self.round1(sd_out)
        a(f'v_sqrt_f32 v{sd_out}, v{sd_out}')
        pad(99)
        self.round1(sd_out)

    def build(self):
        self.front()
        self.gemm1()
        self.middle()
        self.gemm2()
        self.tail()
        self.finish()
        return self

    def vaa(self, dst, terms, sreg=None, const=0): self.va(dst, terms, sreg, const, vT + 5)

    def front(self):
        a, vm, lg, o, S, va = self.a, self.vm, self.lg, self.o, self.S, self.vaa
        E2 = range(0, 16, 2)
        a(f'{NAME}:')
        a(f's_load_dwordx16 {sr(KA, 16)}, s[0:1], 0')
        a(f's_load_dwordx8 {sr(KA + 16, 8)}, s[0:1], 64')
        a(f's_load_dwordx2 {sr(rWS, 2)}, s[0:1], 104')
        a('s_cmp_ge_u32 s2, 256')
        a('s_cbranch_scc1 L_END')
        if self.prof:
            a(f's_memrealtime {sr(sCMP, 2)}')
            a(f's_memtime {sr(sTM, 2)}')
            a('v_mov_b32 v255, 0')
            a('v_mov_b32 v254, 0')
            self.stnames.append('start'); self.nst = 1
        if o.get('exfil'): a(f's_memrealtime {sr(sTM, 2)}')
        a(f"""v_lshrrev_b32 v{vT}, 6, v0
        v_and_b32 v{vL}, 63, v0
        s_nop 0
        v_readfirstlane_b32 s{sWAVE}, v{vT}
        v_lshlrev_b32 v{vL16}, 4, v{vL}""")
        for srd, size in ((rX, 4194304), (rWM, 12582912), (rWS, WS_BYTES), (rW, 6291456), (rWO, 2097152), (rWG, 7340032), (rWU, 7340032), (rWD, 7340032), (rOUT, 4194304)):
            a(f's_mov_b32 s{srd+2}, {size}')
            a(f's_mov_b32 s{srd+3}, 0x20000')
        a(f"""s_mov_b32 s{sSPIN}, 0
        s_mov_b32 s{sMASK}, 0xffff0000
        s_mov_b32 s{sL2E}, 0x3fb8aa3b""")
        if o.get('xflip'): a(f's_xor_b32 s2, s2, {o["xflip"]}')
        S(sX, 'wg & 7'); S(sJ, 'wg >> 3')
        S(sRow, 'wg*8 + w')
        S(sR1, '(x & 4)*2 + (j >> 2)'); S(sHP, '(x & 3)*4 + ((j & 3) ^ q)', q=o.get('hpx', 2))
        S(sCB, '(x & 1)*8 + (j & 7)')
        S(sRT, '(x >> 1)*4 + (j >> 3)')
        S(sINB, '(wg*64 + w)*64 + INB')
        xs_raw, wm, cv, st, acc, xs, mp, hp = AR, AR + 8, AR + 16, AR + 20, AR + 24, AR + 32, AR + 48, AR + 64
        vWM, vCo, vL8, vL32S, vGA, vXT = SP, SP + 1, SP + 2, SP + 3, SP + 4, vT + 6
        self.vWM, self.vL8, self.vL32S, self.vGA = vWM, vL8, vL32S, vGA
        S(T3, '((x >> 1)*256 + j*8 + w)*4096 + (x & 1)*1024')
        va(vT + 4, [(0, 5, 16), (5, 1, 2048)])
        S(T2, '(x*8 + w)*32')
        S(T0, 'T2*6144 + (j ^ 1)*128'); S(T1, 'T0 + 8*12288')
        S(T5, '(rt*8 + w)*32768 + cb*128' if not o.get('fakext') else '((x*16 + (j >> 1))*32768) + (j & 1)*1024 + w*128')
        S(T4, '(((x >> 1)*16 + cb)*16 + w)*512 + AINB')
        va(vWM, [(3, 3, 12288), (0, 3, 16)])
        va(vCo, [(3, 3, 2)], T2)
        va(vXT, [(0, 4, 2048), (4, 2, 16)])
        a('s_waitcnt lgkmcnt(0)')
        if self.prof:
            a(f'v_writelane_b32 v255, s{sTM}, 0')
            a(f'v_writelane_b32 v255, s{sCMP}, 63')
            a(f'v_writelane_b32 v254, s{sCMP}, 0')
        if o.get('exfil'):
            for k in range(3): a(f'v_writelane_b32 v255, s{sTM}, {k}')
        self.stamp('karg')
        a(f's_mov_b64 {sr(rWM, 2)}, {sr(KA + 20, 2)}')
        self.bl(wm, 4, vWM, rWM, T0, 0, 'nt', 'wm')
        self.bl(wm + 4, 4, vWM, rWM, T1, 0, 'nt', 'wm')
        a(f's_load_dword s{sTAG}, {sr(rWS, 2)}, {NONCE}')
        a(f'global_load_ushort v{cv}, v{vCo}, {sr(pC, 2)}'); vm.issue('wm')
        a(f'global_load_ushort v{cv+1}, v{vCo}, {sr(pC, 2)} offset:16'); vm.issue('wm')
        a(f's_mov_b64 {sr(rX, 2)}, {sr(KA, 2)}')
        a(f's_load_dword s{sPL}, {sr(rWS, 2)}, s{sINB} offset:0 glc')
        for q in range(2): a(f's_load_dword s{sPL + 1 + q}, {sr(rWS, 2)}, s{T4} offset:{q * 4096 + 508} glc')
        if o['tlb'] & 1:
            S(T6, '(w & 1)*2097152 + HF')
            a(f's_load_dword s{sPL + 5}, {sr(rWS, 2)}, s{T6} offset:0')
        if o['tsin']:
            S(T6, '(wg*8 + w)*512 + SINB')
            for q in range(2): a(f's_load_dword s{sPL + 3 + q}, {sr(rWS, 2)}, s{T6} offset:{q * 256 + 252} glc')
        if o.get('bar0', 1): a('s_barrier')
        self.bl(xs_raw, 4, vT + 4, rX, T3, 0, '', 'xs')
        self.bl(xs_raw + 4, 4, vT + 4, rX, T3, 512, '', 'xs')
        for srd, k in ((rW, 2), (rWO, 6), (rWG, 12), (rWU, 14), (rWD, 16), (rOUT, 22)):
            a(f's_mov_b64 {sr(srd, 2)}, {sr(KA + k, 2)}')
        a(f"""s_getpc_b64 {sr(sCMP, 2)}
        s_and_b32 s{sCMP}, s{sCMP}, 0xfffffc00""")
        S(T6, '(j*8 + w)*128')
        va(vT, [(5, 1, 32768)], T6)
        a(f'v_min_u32 v{vT}, CODE_KB, v{vT}')
        a(f'global_load_dword v{vT+7}, v{vT}, {sr(sCMP, 2)}'); vm.issue()
        S(sKH, 'w >> 2'); S(sRB, 'w & 3'); S(sW1K, 'w*1024')
        S(sFS, 'x*7 + (j >> 2)'); S(sKQ, 'j & 3')
        va(vT + 2, [(4, 1, 64)]); va(vWd, [(0, 3, 16)])
        a(f'v_xor_b32 v{vWd}, v{vWd}, v{vT+2}'); va(vT + 2, [(3, 3, 6144)]); a(f'v_add_u32 v{vWd}, v{vWd}, v{vT+2}')
        S(sU0, o.get('u0', 'j & 12')); S(sWB, 'w*49152 + hp*128')
        wq = self.wq = [(n, t) for n in range(6) for t in 'kvq']
        def w_next(cnt=1):
            for _ in range(cnt):
                n, t = wq.pop(0)
                if t == 'k':
                    if n < 4:
                        S(sY1, '((j >> 4)*q) ^ n', n=n, q=2 * o['xorw'])
                        S(sY0, '((y1 + u0) & 15)*UR + wb'); S(sY1, 'y1*8192 + w1k')
                    else:
                        S(sY0, '((u0 + n) & 15)*UR + wb', n=n); S(sY1, 'w1k + q', q=n * 8192)
                S(sU, 'y0 + q', q=dict(q=0, k=2048, v=4096)[t]); S('m0', 'y1 + q', q='kvq'.index(t) * REG)
                self.dma(vWd, rW, sU, 0, '', ('W', n))
        wb = list(o['wburst'])
        va(vL8, [(0, 6, 8)])
        va(vL32S, [(0, 6, 32)], None, MISC)
        S(T0, 'w*4 + MISC')
        va(vGA, [(4, 2, 64), (0, 3, 256), (3, 1, 32)], T0)
        self.stamp('issued')
        def xt_load():
            self.bl(XR, 4, vXT, rX, T5, 0, '', 'xt')
            self.bl(XR + 4, 4, vXT, rX, T5, 64, '', 'xt')
        if o['xtat'] == 0: xt_load()
        S(T0, '((((w >> 1)*16 + ((j ^ 1) & 15))*2 + (j >> 4))*8 + x)*512 + AINB')
        w_next(o['wpre'][0])
        vm.wait('wm')
        self.stamp('wmok')
        w_next(o['wpre'][1])
        for i in range(2):
            a(f'v_lshlrev_b32 v{cv+i}, 16, v{cv+i}')
            self.silu(cv + i, vT + i)
        for s in self.gemv_ops([wm, wm + 4], [cv, cv + 1], acc, vT, vT + 1, True): a(s)
        a(f"""s_waitcnt lgkmcnt(0)
        s_mul_i32 s{sTAG}, s{sTAG}, 0x9e3779b1
        s_add_u32 s{sTAG}, s{sTAG}, 0x7f4a7c15""")
        self.dw('ds_write_b32', vGA, acc, 1, L_A1 - MISC)
        self.barrier()
        self.r128(acc, vL32S, L_A1 - MISC); self.r128(acc + 4, vL32S, L_A1 - MISC + 16)
        if o['xtat'] == 1: xt_load()
        lg.wait_all()
        self.sum8(acc)
        a(f'v_mov_b32 v{acc+1}, s{sTAG}')
        a(f"""s_bitcmp1_b32 s{sWAVE}, 0
        s_cselect_b32 exec_lo, 0, -1
        s_cselect_b32 exec_hi, -1, 0""")
        self.bs(acc, 2, vL8, rWS, T0, 0, 'sc1')
        a('s_mov_b64 exec, -1')
        self.stamp('A1pub')
        w_next(wb[0])
        vm.wait('xs')
        self.stamp('xsok')
        u1 = vT + 4
        a(f'v_mov_b32 v{u1}, 0x3f803f80')
        for i in range(8):
            k = 2 * (i & 1)
            a(f'v_dot2_f32_bf16 v{vT+k}, v{xs_raw+i}, v{u1}, ' + ('0' if i < 2 else f'v{vT+k}'))
            a(f'v_dot2_f32_bf16 v{vT+k+1}, v{xs_raw+i}, v{xs_raw+i}, ' + ('0' if i < 2 else f'v{vT+k+1}'))
        S(T0, 'w*32 + L_ST'); va(u1, [(5, 1, 16), (4, 1, 8)], T0)
        self.pk('add', st, vT, vT + 2)
        va(vT + 1, [(0, 4, 16)], None, L_ST)
        va(vT, [(0, 4, 16), (4, 1, 4096)])
        for ctl in ('quad_perm:[1,0,3,2]', 'quad_perm:[2,3,0,1]', 'row_half_mirror', 'row_mirror'):
            self.dpp('v_add_f32', st, st, st, ctl); self.dpp('v_add_f32', st + 1, st + 1, st + 1, ctl)
        S(T0, '((x & 6) + ((j & 24) + w)*8)*4096 + (j & 7)*512 + (x & 1)*256 + SINB')
        a(f"""v_permlane16_swap_b32 v{st}, v{st+1}
        v_add_f32 v{st}, v{st}, v{st+1}
        v_mov_b32 v{st+1}, s{sTAG}""")
        self.dw('ds_write_b64', u1, st, 2)
        self.barrier()
        self.r128(st, vT + 1)
        lg.wait_all()
        a('s_mov_b32 exec_hi, 0')
        self.bs(st, 4, vT, rWS, T0, 0, 'sc1')
        a('s_mov_b32 exec_hi, -1')
        self.stamp('A2pub')
        if o['xtat'] == 2: xt_load()
        w_next(wb[1])
        mg = acc
        def pre_work():
            va(vT, [(0, 5, 16), (5, 1, 4096)])
            S(T1, 'w*4 + L_MP'); va(vT + 1, [(0, 6, 64)], T1)
            va(vT + 2, [(0, 2, 32), (5, 1, 128), (4, 1, 256), (2, 2, 512)], None, L_MP)
            S(T1, '(wg*8 + w)*512 + SINB')
            va(vT + 4, [(0, 5, 16)])
        def x_unpack():
            vm.wait('xt')
            for p, q in ((0, 2), (1, 3), (4, 6), (5, 7)): a(f'v_permlane32_swap_b32 v{XR+p}, v{XR+q}')
            for i in range(8): self.unpack(xs + 2 * i, xs + 2 * i + 1, XR + i)
        self.spoll([(q, 1, T4, q * 4096 + 508) for q in range(2)], range(2), work=pre_work)
        self.stamp('apre')
        if o.get('abar', 0): a('s_barrier')
        st_ld = lambda: self.bl(st, 4, vT + 4, rWS, T1, 0, 'sc1', 'st')
        def st_go():
            self.spoll([(q, 1, T1, q * 256 + 252) for q in range(2)], range(2), work=x_unpack)
            st_ld()
            if o['fbar']: a('s_barrier')
            w_next(wb[2])
        self.try_load(lambda: self.bl(mg, 4, vT, rWS, T4, 0, 'sc1'), [mg + 1, mg + 3], vT + 3, st_go)
        self.stamp('modok')
        a(f'ds_write2_b32 v{vT+1}, v{mg}, v{mg+2} offset0:0 offset1:8'); lg.issue()
        self.barrier()
        for i in (2, 3, 0, 1): self.r128(mp + 4 * i, vT + 2, (i >> 1) * 2048 + (i & 1) * 16, i >> 1)
        S(T0, 'hp*4096 + w*512')
        a(f'v_add_u32 v{vT}, s{T0}, v{vL16}')
        S('m0', 'w*512 + L_WPHI')
        a('s_mov_b32 exec_hi, 0')
        a(f'global_load_lds_dwordx4 v{vT}, {sr(pWPHI, 2)}'); vm.issue()
        a('s_mov_b32 exec_hi, -1')
        w_next(wb[3])
        S(T0, '((rt*16 + cb)*4 + (w >> 1))*4096 + (w & 1)*256 + HF')
        va(vT, [(0, 4, 16), (4, 1, 1024), (5, 1, 512)])
        lg.wait(1); self.sum8(mp + 8)
        self.round1(mp + 8)
        lg.wait(0); self.sum8(mp)
        a(f'v_add_f32 v{mp+8}, 1.0, v{mp+8}')
        self.round2(mp + 8, mp)
        vm.wait('st')
        self.tagcheck([st + 1, st + 3], vT + 3)
        a('s_cbranch_vccz L_STOK')
        q0 = list(vm.q)
        self.poll(st_ld, [st + 1, st + 3], vT + 3)
        vm.q = q0
        a('L_STOK:')
        self.stamp('statok')
        a(f"""v_permlane16_swap_b32 v{st}, v{st+2}
        v_add_f32 v{st+3}, v{st}, v{st+2}
        v_mul_f32 v{st+2}, 0x3a800000, v{st+3}
        v_mul_f32 v{st+3}, 0x3a800000, v{st+3}
        v_permlane16_swap_b32 v{st+2}, v{st+3}
        v_fma_f32 v{st}, -v{st+2}, v{st+2}, v{st+3}
        v_cvt_pk_bf16_f32 v{st+1}, 0, v{st+2}
        v_max_f32 v{st}, 0, v{st}""")
        self.round1(st)
        for i in E2[:4]: self.pk('add', xs + i, xs + i, st + 1, bc=(1,), neg=(1,))
        a(f'v_add_f32 v{st}, 0x3727c5ac, v{st}')
        self.round1(st)
        a(f'v_sqrt_f32 v{st}, v{st}')
        for i in E2[4:]: self.pk('add', xs + i, xs + i, st + 1, bc=(1,), neg=(1,))
        self.round1(st)
        a(f'v_rcp_f32 v{st}, v{st}')
        self.round_list([xs + i for i in range(16)])
        for i in E2: self.pk('mul', xs + i, xs + i, st, bc=(1,))
        self.round_list([xs + i for i in range(16)])
        for h in range(2):
            rg = range(8 * h, 8 * h + 8)
            for i in rg: self.dpp('v_mul_f32', xs + i, mp + 8, xs + i, f'row_newbcast:{i}')
            self.round_list([xs + i for i in rg])
            for i in rg: self.dpp('v_add_f32', xs + i, mp, xs + i, f'row_newbcast:{i}')
            for i in range(4 * h, 4 * h + 4): a(f'v_cvt_pk_bf16_f32 v{hp+i}, v{xs+2*i}, v{xs+2*i+1}')
            self.bs(hp + 4 * h, 4, vT, rWS, T0, 2048 * h, 'sc1', 'hs')
        self.stamp('hst')
        va(vB, [(2, 2, 128), (3, 1, 64), (4, 1, 32), (0, 2, 8), (5, 1, 512)])
        a(f'v_xor_b32 v{vB+1}, 64, v{vB}')
        for q in (1, 2):
            for h in range(2): a(f'v_add_u32 v{vB+2*q+h}, {q*REG}, v{vB+h}')
        va(vT + 1, [(0, 2, 8 * 4096), (2, 2, 4096)])
        S(T0, '((rt >> 3)*4 + (rt & 7)*32)*4096 + (cb >> 1)*64 + (cb & 1)*4 + INB')
        S(sAB, 'r1*262144 + rb*4096 + HF')
        a(f"""s_cmp_ge_u32 s{sJ}, {0 if o.get('noffn') else 28}
        s_cselect_b32 s{rWG+2}, 0, s{rWG+2}
        s_cselect_b32 s{rWU+2}, 0, s{rWU+2}
        s_cselect_b32 s{rWD+2}, 0, s{rWD+2}""")
        vm.wait('hs')
        a('s_barrier')
        self.push(vT + 1, T0, 16, vT + 2, 'L_PB')
        self.stamp('hpub')
        w_next(wb[4])
        vWo, vFG, vFD = vS0, vS1, SP + 5
        def setup():
            S(sWO, 'w*16384 + cb*128'); S(sY2, '((j & 1)*8 + (j >> 3)*2)*131072' if o['worot'] else '(j & 1)*1048576')
            S(sFG, '(kq*8 + w)*(32*7168) + fs*128'); S(sFD, '(fs*8 + w)*16384 + kq*512')
            S(sM2, '((x & 3)*8 + w)*(32*12288) + (j*2 + (x >> 2))*128 + 4096')
            S(T1, '(w & 1)*64')
            va(vT + 2, [(4, 1, 32)], T1); va(vWo, [(0, 3, 16)])
            a(f'v_xor_b32 v{vWo}, v{vWo}, v{vT+2}'); va(vT + 2, [(3, 3, 2048)]); a(f'v_add_u32 v{vWo}, v{vWo}, v{vT+2}')
            S(T1, '(w & 2)*32'); va(vT + 2, [(4, 1, 32)], T1); va(vFG, [(0, 3, 16)])
            a(f'v_xor_b32 v{vFG}, v{vFG}, v{vT+2}'); va(vT + 2, [(3, 3, 7168)]); a(f'v_add_u32 v{vFG}, v{vFG}, v{vT+2}')
            S(T1, '(w & 1)*128')
            va(vT + 2, [(5, 1, 64)], T1); va(vFD, [(0, 5, 16), (5, 1, 2048)])
            a(f'v_xor_b32 v{vFD}, v{vFD}, v{vT+2}')
            S(T3, 'u0*16384'); a(f'v_add_u32 v{vCo}, s{sAB}, v{vL16}')
            S(T1, 'rb*2048 + L_QH'); a(f'v_add_u32 v0, s{T1}, v{vL16}')
        S(T6, 'wg*4096 + INB'); S(T7, '(w & 3)*128 + T6'); S(T6, 'u0*32 + T6')
        a(f's_cmp_ge_u32 s{sWAVE}, 4\ns_cselect_b32 s{T6}, s{T7}, s{T6}')
        bpoll = self.bpoll = lambda work=None: self.spoll([(0, 2, T6, 0), (2, 2, T6, 64)], range(4), work)
        if o['lateB']:
            def bw():
                w_next(wb[5]); setup(); a(';TOUR')
                a(f's_cmp_ge_u32 s{sWAVE}, 4\ns_cbranch_scc1 L_HELP')
            bpoll(bw)
        else: bpoll(lambda: (w_next(wb[5]), setup(), a(';TOUR')))
        assert len(wq) % 3 == 0 and len(wq) <= (6 if o['xorw'] else 12)

    def gemm1(self):
        a, vm, lg, o, S, va = self.a, self.vm, self.lg, self.o, self.S, self.vaa
        LOOK = o['LOOK']; NB = LOOK + 1; assert NB <= 7
        vWo, vFG, vFD, vHo = vS0, vS1, SP + 5, 0
        self.vWo, self.vFG, self.vFD = vWo, vFG, vFD
        m2w, m2c = AV, AV + 24
        FL = self.FL = AK
        cur = self.cur = [0]
        TOK = [(0, 3, 16), (3, 2, 256), (5, 1, 128)]
        def cvt8(d, s_):
            for i in range(8): a(f'v_cvt_pk_bf16_f32 v{d+i}, v{s_+2*i}, v{s_+2*i+1}')
        self.cvt8 = cvt8
        fq = self.fq = [(m, i) for m in range(3) for i in range(4)]
        held = self.held = ([], [])
        def f_src(m, i, far=0):
            q = (i * 8 * 7168 + far * 4 * 32 * 7168, i * 4096 + far * 4 * 16384)[m == 2]
            S(sU, ('fg', 'fd')[m == 2] + ' + q', q=q & 0xffffffff)
            return (vFG, (rWG, rWU)[m]) if m < 2 else (vFD, rWD)
        def f_lds(m, i): return (L_GU + m * 32768 if m < 2 else L_DN) + i * 1024
        def f_ld(g, k, far, count=True):
            m, i = held[g][k]
            v, r = f_src(m, i, far * (1 - 2 * g))
            a(f'buffer_load_dwordx4 {vr(FL + 8*k + 4*far, 4)}, v{v}, {sr(r, 4)}, s{sU} offen nt')
            if count: vm.issue('ffn')
        sym = self.sym = []
        def ffn_reg(n=1):
            for _ in range(n):
                m, i = fq.pop(0)
                r0 = 8 * len(held[1]) + 4 * len(sym); assert r0 < 64 and (r0 < 32 or o['m2c'] >= 3)
                assert o['m2c'] != 4 or r0 < 32 or 'm2pub' in self.marks
                v, r = f_src(m, i)
                self.bl(FL + r0, 4, v, r, sU, 0, 'nt', 'ffr')
                sym.append((m, i, FL + r0))
        def ffn_dma(n=1):
            for _ in range(n):
                m, i = fq.pop(0)
                v, r = f_src(m, i)
                S('m0', 'w1k*4 + q', q=f_lds(m, i))
                self.dma(v, r, sU, 0, 'nt', 'ffn' if m < 2 or not o['dnsplit'] else 'fdn')
        self.ffn_reg, self.ffn_dma, self.f_lds = ffn_reg, ffn_dma, f_lds
        for _ in range(o['fA']): held[1].append(fq.pop(0))
        def m2_ld(i):
            if i == 0:
                S(sU, '((x & 3)*8 + w)*64'); self.va(m2c + 4, [(3, 3, 2)], sU, 0, m2c + 5)
                for k in range(4): a(f'global_load_ushort v{m2c+k}, v{m2c+4}, {sr(pC, 2)} offset:{16*k}'); vm.issue('m2')
            S(sU, 'm2 + q', q=i * 8 * 12288)
            self.bl(m2w + 4 * i, 4, self.vWM, rWM, sU, 0, 'nt', 'm2')
        wslot = lambda p: p
        def wo_dma(p, back=0):
            S(sU, '(y2 ^ q) + wo' + (' - 65536' if back else ''), q=p * 131072)
            S('m0', 'w1k + q', q=wslot(p) * 8192 - 4096 * back)
            self.dma(vWo, rWO, sU, 0, '', 'wo')
        self.wo_dma = wo_dma
        def poison(backs, t):
            a(f'v_mov_b32 v{t}, -1\nv_mov_b32 v{t+1}, -1\nv_mov_b32 v{t+2}, -1\nv_mov_b32 v{t+3}, -1')
            for back in backs:
                S(T6, '((rt*8 + w - q)*16 + cb)*256 + ST', q=4 * back); self.va(t + 4, [(0, 6, 4)])
                self.bs(t, 1, t + 4, rWS, T6, 0, 'sc1')
            S(T6, 'rt*16384 + cb*512 + XS'); self.va(t + 4, [(0, 5, 16), (5, 1, 8192)], None, 0, t + 5)
            a(f's_cmp_lg_u32 s{sWAVE}, 5\ns_cbranch_scc1 L_NOPO')
            self.bs(t, 4, t + 4, rWS, T6, 0, 'sc1', count=False)
            a('L_NOPO:')
        self.poison = poison
        def kv_prep():
            vPA, vPB, ones = AK + 28, AK + 29, AK + 24; assert o['fA'] <= 3
            self.va(vPB, [(0, 1, 8), (2, 2, 16), (4, 1, 64), (1, 1, 128), (5, 1, 256)], None, 0, vPA)
            S(T0, 'w*4096 + L_PHK'); a(f'v_add_u32 v{vPA}, s{T0}, v{vPB}')
            S(T0, 'kh*8192 + L_HV'); a(f'v_add_u32 v{vPB}, s{T0}, v{vPB}')
            for i in range(4): a(f'v_mov_b32 v{ones+i}, 0x3f803f80')
            S(T0, '((hp*8 + w)*32 + r1)*1024 + KVP'); S(T2, 'T0 + 16384')
            S(T3, '(hp*8 + w)*1024 + ZP'); S(T1, 'r1*64 + T3')
        seq = []
        for sg in range(36): seq += [(t, h, sg) for t in 'kqv' for h in range(2)]
        for sg in range(36, 40): seq += [('k', h, sg) for h in range(2)]
        for sg in range(36, 40): seq += [(t, h, sg) for t in 'qv' for h in range(2)]
        for h in range(2): seq += [('k', h, sg) for sg in range(40, 64)]
        for t in 'vq':
            for sg in range(40, 64): seq += [(t, h, sg) for h in ((1, 0) if (t, sg) == ('q', 63) else (0, 1))]
        bA, bH, bQ = o['bA'], o['bH'], 335
        assert bA >= 271
        bars = [24 * k - 1 for k in range(1, 10)] + [223, 239, 253, bA, bH, bQ]
        first, last = {}, {}
        for n, (t, h, sg) in enumerate(seq):
            first.setdefault(f'{t}{sg >> 2}', n); last[f'{t}{sg >> 2}'] = n; last[('A', sg)] = n
        if not o['lateB']: a(f's_cmp_ge_u32 s{sWAVE}, 4\ns_cbranch_scc1 L_HELP')
        a(f's_setprio {o["prio"]}')
        q_hok = list(vm.q)
        ACC = dict(k=AK, v=AV, q=AQ)
        nxt = [0]; late = []
        def a_load():
            while late: a(late.pop(0))
            sg = nxt[0]; nxt[0] += 1
            assert sg < 16 or cur[0] > bars[0]
            if o.get('noA') and sg >= 12: return
            self.bl(AR + 4 * (sg % 24), 4, SP + 1, rWS, T3, (sg % 4) * 1024, 'sc1', ('A', sg))
            if sg % 4 == 3: late.extend([f's_add_u32 s{T3}, s{T3}, 16384', f's_and_b32 s{T3}, s{T3}, 0x3ffff'])
        def b_read(n):
            t, h, sg = seq[n]
            s = sg & 3
            off = ((sg >> 2) % 6) * 8192 + (s >> 1) * 4096 + (s & 1) * 1024
            d = RING + 4 * (n % NB); v = vB + 2 * 'kvq'.index(t) + h
            self.tr(d, v, off, ('B', n)); self.tr(d + 2, v, off + 2048, ('B', n))
        self.nopk = True
        stk, stv = Stream(self), Stream(self)
        for h in range(2):
            for q in range(2):
                stk.cap(lambda: [a(f'v_cvt_pk_bf16_f32 v{AK+16*h+4*q+i}, v{AK+16*h+8*q+2*i}, v{AK+16*h+8*q+2*i+1}') for i in range(4)])
                stk.add(lambda h=h, q=q: self.dw('ds_write_b128', vHo, AK + 16 * h + 4 * q, 4, q * 1024, f'kh{h}'), o['wcost'], 1)
            stk.mark(f'kh{h}')
            if h == 0:
                stk.cap(lambda: a(f'v_subrev_u32 v{vHo}, {L_QH - L_HV}, v{vHo}'))
                stk.until(288 + o['kdel'])
        stk.until(bH + 1)
        stk.cap(lambda: (S(T1, 'rb*2048 + L_HV'), self.va(vHo, TOK, T1, 0, vT)))
        for h in range(2):
            for q in range(2):
                stv.cap(lambda: [a(f'v_cvt_pk_bf16_f32 v{AV+16*h+4*q+i}, v{AV+16*h+8*q+2*i}, v{AV+16*h+8*q+2*i+1}') for i in range(4)])
                stv.add(lambda h=h, q=q: self.dw('ds_write_b128', vHo, AV + 16 * h + 4 * q, 4, h * 8192 + q * 1024, 'vst'), o['wcost'], 1)
        stv.cap(kv_prep)
        if o['m2c'] == 0:
            stv.sleep(4)
            stv.add(lambda: lg.wait('vst'))
            for i in range(4): stv.add(lambda i=i: m2_ld(i), 0, 1); stv.sleep(o.get('fgap', 4))
        while nxt[0] < o['A00']: a_load()
        vm.wait(('W', 3 if o['xorw'] else 1))
        a('s_barrier')
        self.stamp('hok')
        if not nxt[0]: a_load()
        for n in range(LOOK): b_read(n)
        while nxt[0] < o['A0']: a_load()
        seen = set(); lpend = []; owe = [0]
        Apos = list(o['Apos']); assert o['A0'] + sum(Apos) == 64
        for n in range(384):
            t, h, sg = seq[n]; cur[0] = n
            if ('A', sg) not in seen:
                assert sg < nxt[0]
                vm.wait(('A', sg)); seen.add(('A', sg))
            lg.wait(('B', n))
            d = ACC[t] + 16 * h
            a(f'v_mfma_f32_32x32x16_bf16 {vr(d, 16)}, {vr(RING + 4*(n % NB), 4)}, {vr(AR + 4*(sg % 24), 4)}, ' + (vr(d, 16) if sg else '0'))
            if self.prof and o.get('ls'):
                l0, l1, lst = o['ls']
                if lpend and n >= lpend[0][0]:
                    _, r_, k_ = lpend.pop(0); a(f'v_writelane_b32 v255, s{r_}, {k_}')
                if l0 <= n < l1 and (n - l0) % lst == 0:
                    r_ = sPL + 2 * (self.nst % 4)
                    a.items.append(('raw', f'    s_memtime {sr(r_, 2)}')); lpend.append((n + 4, r_, self.nst)); self.stnames.append(f'n{n}'); self.nst += 1
            def a_try():
                p, r = divmod(n, 24)
                ao = o['aoff'] if p else 0; r -= ao
                if n < 240 and r >= 0 and (r + 1) * Apos[p] // (24 - ao) > r * Apos[p] // (24 - ao): owe[0] += 1
                if owe[0] and (nxt[0] < 24 or last[('A', nxt[0] - 24)] <= n): a_load(); owe[0] -= 1
                elif late: a(late.pop(0))
            if o['apos'] == 0: a_try()
            bud = [o['kbud'], 1]
            if n >= 264 + o['kdel']: stk.pull(bud, bud[0])
            bud = [o['vbud'], 1]
            if n > bQ + 2: stv.pull(bud, bud[0])
            if n + LOOK < 384: b_read(n + LOOK)
            if o['apos'] == 1: a_try()
            if n in bars:
                if n in (bA, bH):
                    assert f'kh{int(n == bH)}' in self.marks
                    lg.wait(f'kh{int(n == bH)}')
                    if 'prio2' in o and n == bA: a(f's_setprio {o["prio2"]}')
                if not (o.get('noB') and n < 200): a('s_barrier')
                if o.get('gst'): self.stamp(f'b{n}')
        assert not (stk.q or stv.q) and nxt[0] == 64
        self.stamp('gemm1')
        vq, wph = AR + 16, AR + 24
        S(T4, 'rb*2048 + L_QH'); a(f'v_add_u32 v{vHo}, s{T4}, v{vL16}')
        va(vT, [(2, 2, 64), (4, 1, 32), (0, 2, 8), (5, 1, 256)], None, L_WPHI)
        for s in range(2):
            for u in range(2): self.tr(wph + 4 * s + 2 * u, vT, s * 1024 + u * 512)
        cvt8(AR, AQ + 16)
        for q in range(2): self.dw('ds_write_b128', vHo, AR + 4 * q, 4, q * 1024)
        cvt8(vq, AQ)
        if o['m2c'] == 1:
            for i in range(4): m2_ld(i)
        a('s_setprio 0')
        a('s_branch L_JOIN')
        a('L_HELP:')
        vm.q = list(q_hok); lg.reset()
        vm.wait(('W', 3 if o['xorw'] else 1))
        a('s_barrier')
        vis = {}
        pace = [1]
        def w_sec(t, n):
            if o.get('noW'): return
            for back in (1, 0):
                S(sU, '((u0 + n) & 15)*UR + wb + q', n=n, q=(dict(q=0, k=2048, v=4096)[t] - back * 4 * 49152) & 0xffffffff)
                S('m0', 'w1k + q', q='kvq'.index(t) * REG + (n % 6) * 8192 - back * 4096)
                self.dma(vWd, rW, sU, 0, '', ('W', t, n))
                if o['wpace'] and pace[0]: a(f's_waitcnt vmcnt({o["wpace"]})')
        for n, t in self.wq: w_sec(t, n)
        if o['lateB']:
            lg.wait_all(); self.bpoll()
        ka, wp2, pa, pb, ee, vPW = AR, AR + 16, AR + 32, AR + 48, AR + 64, AR + 80
        va(vT, [(2, 2, 64), (4, 1, 32), (0, 2, 8), (5, 1, 256)], None, L_WPHI)
        for hs in range(4):
            for u in range(2): self.tr(wp2 + 4 * hs + 2 * u, vT, hs * 1024 + u * 512)
        S(T1, 'rb*1024 + L_PHK'); va(vPW, TOK, T1)
        def touch(boxes):
            a('s_waitcnt lgkmcnt(0)')
            for q, b in enumerate(boxes):
                a(f's_load_dword s{sPL + 2*q}, {sr(rWS, 2)}, s{sINB} offset:{b * 512} glc')
                a(f's_load_dword s{sPL + 2*q + 1}, {sr(rWS, 2)}, s{sINB} offset:{b * 512 - 256} glc')
        wsched = {int(k): v.split() for k, v in o['wsched'].items()}
        for k in range(1, 5): wsched[k] = [f'{t}{k + 5}' for t in 'kqv'] + wsched.get(k, [])
        need = {}
        for u in first:
            k = len([b for b in bars if b < first[u] - LOOK])
            if k: need.setdefault(k, []).append(u)
        done = {f'{t}{n}' for n in range(6) for t in 'kvq'}
        def h_bar(k):
            if k < 5: vm.wait(('W', k + 1))
            for u in need.get(k, []):
                assert u in done, (u, k)
                vm.wait(('W', u[0], int(u[1:])))
            if not (o.get('noB') and k < 9): a('s_barrier')
            for u in wsched.get(k, []):
                assert last[f'{u[0]}{int(u[1:]) - 6}'] <= bars[k - 1], (u, k)
                w_sec(u[0], int(u[1:])); done.add(u)
        hm, hc, ha, ht = AV, AQ, AQ + 8, AQ + 16
        if o.get('fP'): S(T4, o['fP'])
        if o['m2c'] == 4:
            hc, ha, ht = RING + 8, AR + 44, vT + 4
            def m2h(i):
                S(sU, 'T6 + q', q=i * 8 * 12288)
                self.bl(hm + 4 * i, 4, self.vWM, rWM, sU, 0, 'nt')
        if o['m2c'] >= 3:
            S(T5, o['m2k3'])
            S(sU, '((x & 3)*4 + w - 4)*128'); self.va(ht, [(3, 3, 2)], sU)
            for i in range(8): a(f'global_load_ushort v{hc+i}, v{ht}, {sr(pC, 2)} offset:{16*i}'); vm.issue('c2')
            S(T6, '((x & 3)*4 + w - 4)*(64*12288) + (j*2 + (x >> 2))*128 + 4096')
        for k in range(1, 14):
            if k == 13: lg.wait_all()
            if o['m2c'] == 3 and k == o['m2e'] + 1: lg.wait_all()
            h_bar(k)
            if o['m2c'] == 4 and k == o['m2k0']:
                for i in range(o['m2n0']): m2h(i)
            if o['m2c'] == 4 and k == 3:
                vm.wait('c2')
                for i in range(8):
                    a(f'v_lshlrev_b32 v{hc+i}, 16, v{hc+i}')
                    self.silu(hc + i, ht + (i & 1))
            if o['m2c'] == 3:
                nb = o['m2nb']
                for b in range(nb):
                    if k <= o['m2g'] - o.get('m2lag', 2) and k - b * o['m2db'] >= 1:
                        a(f's_cmp_lg_u32 s{T5}, {k - b * o["m2db"]}\ns_cbranch_scc1 L_NM2_{k}_{b}')
                        for i in range(b * 8 // nb, (b + 1) * 8 // nb):
                            S(sU, 'T6 + q', q=i * 8 * 12288)
                            a(f'buffer_load_dwordx4 {vr(hm + 4*i, 4)}, v{self.vWM}, {sr(rWM, 4)}, s{sU} offen nt')
                        a(f'L_NM2_{k}_{b}:')
                if k == 3:
                    vm.wait('c2')
                    for i in range(8):
                        a(f'v_lshlrev_b32 v{hc+i}, 16, v{hc+i}')
                        self.silu(hc + i, ht + (i & 1))
                g0 = o['m2g']
                ke = o['m2e']
                if g0 <= k <= ke:
                    if k == g0:
                        vm.wait(('W', 'k', k + 4 if o.get('m2lag', 2) == 2 else k + 5))
                        mops = self.gemv_ops([hm + 4 * i for i in range(8)], [hc + i for i in range(8)], ha, ht, ht + 1, False)
                    if o.get('gprio'): a('s_setprio 3')
                    for _ in range(len(mops) if k == ke else 144 // (ke + 1 - g0)): a(mops.pop(0))
                    if o.get('gprio'): a('s_setprio 0')
                    if k == ke: self.dw('ds_write_b32', self.vGA, ha, 1, L_M2 - MISC)
                if k == ke + 1:
                    a(f"""s_cmp_lg_u32 s{sWAVE}, 4
                    s_cbranch_scc1 L_M2F
                    ds_read_b128 {vr(ha, 4)}, v{self.vL32S} offset:{L_M2 - MISC + 16}""")
                    S(T0, '((j*2 + (x >> 2))*4 + (x & 3))*512 + MODP2')
                    a(f"""s_waitcnt lgkmcnt(0)
                    v_add_f32 v{ha}, v{ha}, v{ha+1}
                    v_add_f32 v{ha+2}, v{ha+2}, v{ha+3}
                    v_mov_b32 v{ha+1}, s{sTAG}
                    v_add_f32 v{ha}, v{ha}, v{ha+2}""")
                    self.bs(ha, 2, self.vL8, rWS, T0, 0, 'sc1', count=False)
                    a('L_M2F:')
            if o.get('fP') and k <= 8:
                a(f's_cmp_lg_u32 s{T4}, {k}\ns_cbranch_scc1 L_NFP_{k}')
                for i in range(o['fA']):
                    for far in range(2): f_ld(1, i, far, False)
                a(f'L_NFP_{k}:')
            if k == 2 and o['poisat'] == 0: poison((0, 1), AR + 88); S(T6, '((x & 3)*4 + w - 4)*(64*12288) + (j*2 + (x >> 2))*128 + 4096')
            if k in (1, 3, 5) and o.get('touch', 1): touch({1: (1, 7), 3: (2, 3), 5: (5, 6)}[k])
            if k == o['tlbk'] and o['tlb'] & 2:
                a(f's_cmp_lg_u32 s{sWAVE}, 7\ns_cbranch_scc1 L_NTLB\ns_waitcnt lgkmcnt(0)')
                S(T0, '(j & 15)*2097152'); S(T1, '(j & 3)*2097152'); S(T2, '(j & 1)*2097152')
                a(f's_load_dword s{sPL}, {sr(rWS, 2)}, s{T0} offset:0')
                for q, r in enumerate((rWG, rWU, rWD)): a(f's_load_dword s{sPL + 1 + q}, {sr(r, 2)}, s{T1} offset:0')
                a(f's_load_dword s{sPL + 4}, {sr(rOUT, 2)}, s{T2} offset:0')
                a(f's_load_dword s{sPL + 5}, {sr(rWO, 2)}, 0')
                a('L_NTLB:')
            if k == 4 and o.get('tm2'):
                S(T0, '((j*2 + (x >> 2))*4 + (x & 3))*512 + (w - 4)*128 + MODP2')
                a('s_waitcnt lgkmcnt(0)')
                for q in range(2): a(f's_load_dword s{sPL + q}, {sr(rWS, 2)}, s{T0} offset:{q * 64} glc')
            if k == 6 and o['tz']:
                S(T0, '(hp*8 + w - 4)*1024 + r1*64 + ZP'); S(T1, '(rt*16 + cb)*64 + UP')
                a('s_waitcnt lgkmcnt(0)')
                for q in range(2): a(f's_load_dword s{sPL + q}, {sr(rWS, 2)}, s{T0} offset:{q * 4096} glc')
                a(f's_load_dword s{sPL + 2}, {sr(rWS, 2)}, s{T1} offset:0 glc')
            if k == 12: kv_prep()
            if k == 8 and o.get('touch', 1):
                S(T0, 'fs*8192 + (w - 4)*256 + HGR')
                a('s_waitcnt lgkmcnt(0)')
                for q in range(4): a(f's_load_dword s{sPL + q}, {sr(rWS, 2)}, s{T0} offset:{q * 2048 + 1024 + 252} glc')
        pace[0] = 0
        def logits(h, pp):
            if o.get('hprio'): a(f's_setprio {o["hprio"]}')
            for q in range(2): self.r128(ka + 4 * q, vHo, q * 1024, ('kh', q))
            if h == 0: a(f'v_subrev_u32 v{vHo}, {L_QH - L_HV}, v{vHo}')
            for q in range(2):
                lg.wait(('kh', q))
                a(f'v_mfma_f32_32x32x16_bf16 {vr(pp, 16)}, {vr(wp2 + 8*h + 4*q, 4)}, {vr(ka + 4*q, 4)}, ' + (vr(pp, 16) if q else '0'))
            if o.get('hprio') and not o.get('hlong'): a('s_setprio 0')
        logits(0, pa)
        self.stamp('klog')
        hs = Stream(self)
        for h, pp in ((0, pa), (1, pb)):
            hs.cap(lambda: self.softmax_pm(pp, ee, ee, vT))
            k = max(i for i, it in enumerate(hs.q) if it[0] == 4.75) - 8
            tailq = hs.q[k + 1:]; hs.q = hs.q[:k + 1]
            wr = lambda fb, h=h: (0, 0, lambda: self.dw('ds_write_b128', vPW, ee + 4 * fb, 4, h * 16384 + fb * 4096, ('phk', h)))
            hs.q += [wr(0)] + tailq[:4] + [wr(1), wr(2)] + tailq[4:] + [wr(3)]
            if h == 0:
                n1 = len(hs.q)
                hs.add(lambda: None)
        hs.q.insert(n1 + 34, (0, 0, lambda: lg.wait(('phk', 0))))
        ex = {}
        def put(i, fn):
            while i in ex: i += 1
            ex[i] = fn
        nq = int(n1 * o['hq'])
        put(nq, lambda: h_bar(15))
        nh = int(n1 * o['hh'])
        put(nh, lambda: (h_bar(14), logits(1, pb)))
        g1, g2 = o['hgap']
        if o.get('hpf'):
            put(int(n1 * o['hpf'][0]), lambda: a('s_setprio 3')); put(int(n1 * o['hpf'][1]), lambda: a('s_setprio 0'))
        ff = [(lambda k=k, far=far: f_ld(1, k, far)) for k in range(o['fA']) for far in range(2) if not o.get('fP')]
        pre = [(lambda k=k: m2_ld(k)) for k in range(4)] if o['m2c'] < 2 else []
        if o['m2c'] == 4:
            for i in range(o['m2n0'], 8): put(3 + o['m2gap'] * (i - o['m2n0']), lambda i=i: m2h(i))
            self.m2h = (hm, hc, ha, ht)
        npre = o['fpre'] - len(pre)
        pre += ff[:npre]; ff = ff[npre:]
        for k, fn in enumerate(pre): put(nh + 5 + g1 * k, fn)
        wl = self.wo_left = [6, 7, 8, 9, 10, 11] + [12, 13, 14, 15] + [0, 1, 2, 3, 4, 5]
        post = []
        for k in range(o['woA']): post += [lambda: wo_dma(wl[0], 1), lambda: wo_dma(wl.pop(0))]
        post = post[:8] + ff + post[8:] if o.get('wofirst', 1) else ff + post
        for k, fn in enumerate(post): put(nq + 5 + g2 * k, fn)
        for i, (v_, l_, fn) in enumerate(hs.q):
            if i in ex: ex.pop(i)()
            fn()
        for i in sorted(ex): ex[i]()
        self.nopk = False
        S(T4, 'rb*2048 + L_QH'); a(f'v_add_u32 v{vHo}, s{T4}, v{vL16}')
        assert wph == wp2 + 8
        if o.get('hprio'): a('s_setprio 0')
        self.stamp('ksm')
        a('L_JOIN:')
        vm.q = ['m2'] * (8 if o['m2c'] < 2 else 0); lg.q = [None]
        self.m2_ld = m2_ld
        self.vHo = vHo

    def middle(self):
        a, vm, lg, o, S, va = self.a, self.vm, self.lg, self.o, self.S, self.vaa
        vL8, vL32S, vGA, vHo, ffn_reg = self.vL8, self.vL32S, self.vGA, self.vHo, self.ffn_reg
        pp, ee, ph, vq, wph = AQ, AQ + 16, AR, AR + 16, AR + 24
        fA, fB, kvd, zd, ones = AR + 32, AR + 48, AR + 80, AR + 88, AK + 24
        kp, zz, zf, kf, k2 = AR + 32, AR + 40, AR + 44, AR + 60, AR + 76
        m2w, m2a, m2c, m2t = AV, AV + 16, AV + 24, AV + 28
        vPA, vPB, vPC, vKP, vXF = AK + 28, AK + 29, RING + 18, RING + 19, RING + 20
        md, wr1 = RING, RING + 4
        self.md, self.wr1 = md, wr1
        wl = self.wo_left
        wo1 = lambda: self.wo_dma(wl.pop(0))
        fw = o['fwin']
        self.barrier()
        self.stamp('phik')
        def kvm(u):
            lg.wait(('kv', u))
            for db in range(2):
                a(f'v_mfma_f32_16x16x32_bf16 {vr(kvd + 4*db, 4)}, {vr(fA + 4*u, 4)}, {vr(fB + 8*u + 4*db, 4)}, ' + ('0' if u == 0 else vr(kvd + 4*db, 4)))
            a(f'v_mfma_f32_16x16x32_bf16 {vr(zd, 4)}, {vr(fA + 4*u, 4)}, {vr(ones, 4)}, ' + ('0' if u == 0 else vr(zd, 4)))
        for ts in range(4):
            self.tr(fA + 4 * ts, vPA, ts * 1024, ('kv', ts)); self.tr(fA + 4 * ts + 2, vPA, ts * 1024 + 512, ('kv', ts))
            for db in range(2):
                for rd in range(2): self.tr(fB + 8 * ts + 4 * db + 2 * rd, vPB, ts * 2048 + db * 1024 + rd * 512, ('kv', ts))
            if ts >= 2: kvm(ts - 2)
        kvm(2); kvm(3)
        a(f"""s_cmp_lt_u32 s{sWAVE}, 4
        s_cbranch_scc1 L_NOQX
        ds_read_b128 {vr(vq, 4)}, v{vHo}
        ds_read_b128 {vr(vq + 4, 4)}, v{vHo} offset:1024
        L_NOQX:""")
        self.bs(kvd, 4, vL16, rWS, T0, 0, 'sc1', 'kvs')
        self.bs(kvd + 4, 4, vL16, rWS, T2, 0, 'sc1', 'kvs')
        a('s_mov_b32 exec_lo, 0x00010001')
        a('s_mov_b32 exec_hi, 0x00010001')
        self.bs(zd, 4, vL, rWS, T1, 0, 'sc1', 'kvs')
        a('s_mov_b64 exec, -1')
        lg.wait_all()
        a(f'v_mfma_f32_32x32x16_bf16 {vr(pp, 16)}, {vr(wph, 4)}, {vr(vq, 4)}, 0')
        a(f'v_mfma_f32_32x32x16_bf16 {vr(pp, 16)}, {vr(wph + 4, 4)}, {vr(vq + 4, 4)}, {vr(pp, 16)}')
        self.stamp('kvst')
        if o['wo0']:
            a('s_barrier')
            for _ in range(o['wo0']): assert wl[0] >= 6; wo1()
        if o['poisat'] == 1: self.poison((0,), AR + 84)
        if o['m2c'] == 2:
            for i in range(4): self.m2_ld(i)
        va(vPC, [(0, 3, 32 * 4096), (3, 1, 4 * 4096)])
        S(T4, '(wg & 0x1b)*4096 + (r1 >> 1)*64 + (r1 & 1)*4 + INB + 512')
        va(vKP, [(3, 3, 1024), (0, 3, 16)])
        va(vXF, [(0, 3, 16), (5, 1, 8)])
        qm, qs = o['qmid'], o['qsplit']
        self.softmax_pm(pp, ee, ph, vT, part=1, split=qm)
        vm.wait('kvs')
        a('s_barrier')
        self.push(vPC, T4, 16, vPB, 'L_PC')
        self.stamp('kvpub')
        if o['poisat'] == 2: self.poison((0,), AR + 84)
        self.weave(lambda: [a(f'v_exp_f32 v{r+i}, v{r+i}') for i in range(qm, qs) for r in (ee, pp)], [wo1] * o['wowin'][0])
        S(T0, '(hp*16 + r1)*16384 + w*128 + KVP'); S(T1, 'T0 + 8192')
        S(T2, '(hp*16 + r1)*1024 + w*128 + KIN'); S(T4, 'T4 + 6*512')
        def sel_prep2():
            vDr, vHs, vSt = RING + 7, RING + 26, RING + 27
            S(T6, 'w*64')
            va(vDr, [(2, 1, 512), (3, 1, 4096), (5, 1, 2048), (2, 2, 64), (4, 1, 32), (0, 2, 8)])
            a(f'v_xor_b32 v{vDr}, s{T6}, v{vDr}'); a(f'v_add_u32 v{vDr}, {L_DN}, v{vDr}')
            va(vHs, [(0, 4, 16), (5, 1, 8)])
            va(vSt, [(0, 4, 16), (4, 2, 4)])
        def sel_prep():
            vGr, vXs = RING + 6, RING + 24; assert o['AD2'] <= 8
            S(T6, '(w >> 2)*32768 + (w & 3)*32 + L_GU')
            va(vGr, [(4, 2, 8192), (2, 2, 128), (3, 2, 32), (0, 2, 8)]); a(f'v_xor_b32 v{vGr}, s{T6}, v{vGr}')
            S(T6, 'kq*2048 + XS'); va(vXs, [(0, 3, 16), (4, 2, 512)], T6)
            va(vXs + 1, [(0, 4, 512)], None, XS + 256)
            S(sZ0, 'fs*8192 + HGR'); S(sZ1, '(kq*8 + w)*256 + z0')
            S(sZ2, '((rt*8 + w)*16 + cb)*256 + ST')
            S(sZ3, '((rt >> 2)*2 + (rt & 3)*64)*4096 + (cb >> 1)*64 + (cb & 1)*4 + INB + 1536')
            S(sROW0, '(rt*8 + w)*32768 + cb*128'); S(sROW1, 'row0 + 16384')
        self.inbox(1, 2, work=lambda: (self.weave(lambda: self.softmax_pm(pp, ee, ph, vT, part=2, split=qs), [wo1] * o['wowin'][1]), self.stamp('cw')))
        a('s_barrier')
        self.stamp('kvok')
        self.bl(kp, 4, vKP, rWS, T0, 0, 'sc1', 'kp')
        self.bl(kp + 4, 4, vKP, rWS, T1, 0, 'sc1', 'kp')
        self.bl(zz, 4, vL16, rWS, T3, 0, 'sc1', 'z')
        if fw[0]: a('s_barrier')
        ffn_reg(fw[0])
        S(T1, 'w*32 + L_ZF'); va(vT + 2, [(0, 2, 8), (5, 1, 4)], T1)
        S(T1, 'w*1024 + L_KVF'); va(vT + 1, [(0, 4, 16), (5, 1, 512), (4, 1, 8)], T1)
        S(T1, 'kh*128 + L_ZF'); va(vT + 3, [(5, 1, 16)], T1)
        S(T1, 'kh*4096 + L_KVF'); a(f'v_add_u32 v{vPA}, s{T1}, v{vL16}')
        M2 = o['m2c'] < 3
        m2ops = []; k = o.get('m2k', 24)
        if M2:
            vm.wait('m2')
            for i in range(4):
                a(f'v_lshlrev_b32 v{m2c+i}, 16, v{m2c+i}')
                self.silu(m2c + i, m2t + (i & 1))
            m2ops = self.gemv_ops([m2w + 4 * i for i in range(4)], [m2c + i for i in range(4)], m2a, m2t, m2t + 1, True)
        for s_ in m2ops[:k]: a(s_)
        if o['m2c'] == 4:
            hm, hc, ha, ht = self.m2h
            hops = self.gemv_ops([hm + 4 * i for i in range(8)], [hc + i for i in range(8)], ha, ht, ht + 1, True)
            a(f's_cmp_lt_u32 s{sWAVE}, 4\ns_cbranch_scc1 L_HG1')
            for s_ in hops: a(s_)
            a(f'ds_write_b32 v{vGA}, v{ha} offset:{L_M2 - MISC}\nL_HG1:')
        def red4(r, ctls):
            for i in range(2): a(f'v_permlane32_swap_b32 v{r+i}, v{r+2+i}')
            self.pk('add', r, r, r + 2)
            for ctl in ctls:
                for i in range(2): self.dpp('v_add_f32', r + i, r + i, r + i, ctl)
            for i in range(2): a(f'v_mov_b32 v{r+2+i}, v{r+i}')
            for i in range(2): a(f'v_permlane16_swap_b32 v{r+i}, v{r+2+i}')
            self.pk('add', r, r, r + 2)
            a(f'v_cvt_pk_bf16_f32 v{r}, v{r}, v{r+1}')
        vm.wait('kp')
        self.pk('add', kp, kp, kp + 4); self.pk('add', kp + 2, kp + 2, kp + 6)
        red4(kp, ['row_ror:8'])
        a(f"""v_mov_b32 v{kp+1}, s{sTAG}
        s_mov_b32 exec_lo, 0xff
        s_mov_b32 exec_hi, 0xff""")
        self.bs(kp, 2, vXF, rWS, T2, 0, 'sc1')
        a('s_mov_b64 exec, -1')
        if o['C2dir'] == 0:
            self.barrier()
            self.push(vPC, T4, 16, vPB, 'L_PC2')
        if o['m2c'] == 4:
            a(f"""s_cmp_lg_u32 s{sWAVE}, 3
            s_cbranch_scc1 L_M2F
            ds_read_b128 {vr(ha, 4)}, v{vL32S} offset:{L_M2 - MISC + 16}""")
            S(T5, '((j*2 + (x >> 2))*4 + (x & 3))*512 + MODP2')
            a(f"""s_waitcnt lgkmcnt(0)
            v_add_f32 v{ha}, v{ha}, v{ha+1}
            v_add_f32 v{ha+2}, v{ha+2}, v{ha+3}
            v_mov_b32 v{ha+1}, s{sTAG}
            v_add_f32 v{ha}, v{ha}, v{ha+2}""")
            self.bs(ha, 2, vL8, rWS, T5, 0, 'sc1', count=False)
            a('L_M2F:')
            self.marks.add('m2pub')
        self.stamp('c2pub')
        num, den = pp, ee
        vm.wait('z')
        self.weave(lambda: (red4(zz, ['row_ror:4', 'row_ror:8']), [a(s_) for s_ in m2ops[k:]]), [wo1] * o['wowin'][2])
        self.dw('ds_write_b32', vT + 2, zz, 1)
        if M2: self.dw('ds_write_b32', vGA, m2a, 1, L_M2 - MISC)
        self.barrier()
        for fb in range(4): self.r128(zf + 4 * fb, vT + 3, fb * 32)
        if M2: self.r128(m2a, vL32S, L_M2 - MISC); self.r128(m2a + 4, vL32S, L_M2 - MISC + 16)
        S(T5, '((j*2 + (x >> 2))*4 + (x & 3))*512 + MODP2')
        lg.wait_all()
        S(T0, '(hp*8 + w)*2048 + KIN')
        def den_work():
            for fb in range(4):
                a(f'v_mfma_f32_32x32x16_bf16 {vr(den, 16)}, {vr(zf + 4*fb, 4)}, {vr(ph + 4*fb, 4)}, ' + ('0' if fb == 0 else vr(den, 16)))
            sel_prep()
            if M2:
                a(f's_cmp_lg_u32 s{sWAVE}, 3\ns_cbranch_scc1 L_M2F')
                self.nopk = True; self.sum8(m2a); self.nopk = False
                a(f'v_mov_b32 v{m2a+1}, s{sTAG}')
                self.bs(m2a, 2, vL8, rWS, T5, 0, 'sc1', count=False)
                a('L_M2F:')
            self.round1(den)
            a(f'v_add_f32 v{den}, 0x358637bd, v{den}')
            self.round1(den)
            a(f'v_rcp_f32 v{den}, v{den}')
            self.stamp('c2w')
        ldk2 = lambda: [self.bl(k2 + 4 * q, 4, vL16, rWS, T0, q * 1024, 'sc1') for q in range(2)]
        if o['C2dir'] == 0:
            self.inbox(7, 2, work=den_work)
            self.stamp('c2h')
        if o['C2dir'] == 2: den_work()
        self.try_load(ldk2, [k2 + 1, k2 + 3, k2 + 5, k2 + 7], vT, lambda: (ffn_reg(fw[1]), sel_prep2(), den_work() if o['C2dir'] == 1 else None))
        for db in range(2):
            a(f'ds_write2_b32 v{vT+1}, v{k2+4*db}, v{k2+4*db+2} offset0:{64*db} offset1:{64*db+1}'); lg.issue()
        self.barrier()
        self.stamp('kvred')
        for fb in range(4): self.r128(kf + 4 * fb, vPA, fb * 1024, ('kf', fb))
        S(T0, '((r1*8 + rb*2)*32 + hp*2 + kh)*1024 + OF')
        va(vKP, [(0, 4, 16), (4, 1, 32768), (5, 1, 256)])
        for fb in range(4):
            lg.wait(('kf', fb))
            a(f'v_mfma_f32_32x32x16_bf16 {vr(num, 16)}, {vr(kf + 4*fb, 4)}, {vr(ph + 4*fb, 4)}, ' + ('0' if fb == 0 else vr(num, 16)))
        S(T5, '((w >> 1)*16 + cb)*2048 + (w & 1)*1024 + MODP2')
        self.ld_md = lambda: self.bl(md, 4, vL16, rWS, T5, 0, 'sc1', 'md')
        S(T6, 'cb*128'); va(vPA, [(0, 2, 2), (5, 1, 8), (4, 1, 16), (2, 2, 32)], T6)
        a(f'global_load_ushort v{wr1}, v{vPA}, {sr(pWR, 2)}'); vm.issue('md')
        if not o['mdlate']: self.ld_md()
        for h in range(2):
            self.round_list([num + i for i in range(8 * h, 8 * h + 8)])
            for i in range(8 * h, 8 * h + 8, 2): self.pk('mul', num + i, num + i, den, bc=(1,))
            for i in range(4 * h, 4 * h + 4): a(f'v_cvt_pk_bf16_f32 v{vq+i}, v{num+2*i}, v{num+2*i+1}')
            self.bs(vq + 4 * h, 4, vKP, rWS, T0, 512 * h, 'sc1', 'os')
        self.stamp('ost')
        if o['mdlate']: self.ld_md()
        if o['poisat'] == 3: self.poison((0,), AR + 84)
        while wl: wo1()

    def gemm2(self):
        a, vm, lg, o, S, va = self.a, self.vm, self.lg, self.o, self.S, self.vaa
        md, wr1, fw = self.md, self.wr1, o['fwin']
        AD2 = o['AD2']
        R = self.R = dict(acc=AQ, gaf=AQ + 16, cbf=AR + 16, sbf=AV, gbf=AV + 16, xf=AR, fr=AR + 32, Br=AR + 40, Ar=AR + 72, vB=RING + 8, sv=RING, up=RING + 12)
        acc, gaf, cbf, sbf, gbf, xf, fr, Br, Ar, vB, sv, up = [R[k] for k in 'acc gaf cbf sbf gbf xf fr Br Ar vB sv up'.split()]
        ARS = [Ar + 4 * i for i in range(6)] + [RING + 16, RING + 20, RING + 24]; assert AD2 <= 9
        va(vB, [(2, 2, 128), (4, 2, 1024), (0, 1, 16), (1, 1, 8), (3, 2, 32)])
        S(T4, '(w ^ (%s))*4096' % o['g2r']); S(T1, '(T4*4) ^ (y2 >> 4)')
        a(f'v_add_u32 v{vB}, s{T1}, v{vB}')
        for ct in range(1, 4): a(f'v_xor_b32 v{vB+ct}, {32*ct}, v{vB}')
        va(vT + 1, [(0, 3, 8 * 4096), (3, 1, 4096)])
        S(T2, '((r1 >> 2)*2 + (r1 & 3)*64)*4096 + (hp >> 1)*64 + (hp & 1)*4 + INB + 1024')
        for i in range(8): self.unpack(xf + 2 * i, xf + 2 * i + 1, XR + i)
        S(T6, '(rt*8 + w)*32768 + OF')
        def md_stage():
            vm.wait('md')
            self.tagcheck([md + 1, md + 3], vT + 2)
            a('s_cbranch_vccz L_MGOK')
            q0 = list(vm.q)
            self.poll(self.ld_md, [md + 1, md + 3], vT + 2)
            vm.q = q0
            a('L_MGOK:')
            a(f'ds_write2_b32 v{vT}, v{md}, v{md+2} offset0:0 offset1:4'); lg.issue()
        S(T1, '(w >> 1)*1024 + (w & 1)*8 + L_MD'); va(vT, [(0, 5, 32), (5, 1, 4)], T1)
        va(vT + 3, [(0, 2, 16), (5, 1, 64), (4, 1, 128), (2, 2, 256)], None, L_MD)
        if not o['mdlate']: md_stage()
        vm.wait('os'); vm.wait('wo')
        self.barrier()
        self.push(vT + 1, T2, 16, vT + 2, 'L_PD')
        self.stamp('opub')
        if o['mdlate']: md_stage(); self.barrier()
        S(T5, 'wg*4096 + (T4 >> 6) + INB + 1024')
        self.ffn_reg(fw[2])
        t4 = Br
        for q in range(4): self.r128(t4 + 4 * q, vT + 3, q * 1024)
        va(vT + 4, [(0, 2, 4), (5, 1, 16), (4, 1, 32), (2, 2, 64)], None, L_GB)
        S(T0, '(rt*16 + cb)*64 + UP')
        lg.wait_all()
        def d_work():
            for q in range(4):
                self.pk('add', t4 + 4 * q, t4 + 4 * q, t4 + 4 * q + 2)
                a(f'v_add_f32 v{sv+q}, v{t4+4*q}, v{t4+4*q+1}')
            self.round_list([sv + q for q in range(4)])
            a(f'v_add_f32 v{sv+2}, 1.0, v{sv+2}')
            a(f'v_lshlrev_b32 v{wr1}, 16, v{wr1}')
            self.round1(sv + 2)
            a(f'ds_write_b32 v{vT+4}, v{sv+3}')
            uu, hi, lo, t = t4, t4 + 1, t4 + 2, t4 + 4
            a(f'v_mul_f32 v{uu}, v{sv+2}, v{wr1}')
            a(f'v_cvt_pk_bf16_f32 v{hi}, 0, v{uu}')
            a(f'v_sub_f32 v{lo}, v{uu}, v{hi}')
            self.allreduce(uu, t + 3)
            for k, r in enumerate((hi, lo, wr1)): a(f'v_mov_b32_dpp v{t+k}, v{r} row_shl:1 row_mask:0xf bank_mask:0xf')
            for k, r in enumerate((hi, lo, wr1)): a(f'v_cvt_pk_bf16_f32 v{t+k}, v{r}, v{t+k}')
            a(f"""v_mov_b32 v{uu+1}, s{sTAG}
            v_mov_b32 v{uu+2}, 0
            s_cmp_lg_u32 s{sWAVE}, 2
            s_cbranch_scc1 L_NOUP
            s_mov_b64 exec, 1""")
            self.bs(uu, 2, uu + 2, rWS, T0, 0, 'sc1', count=False)
            a('s_mov_b64 exec, -1\nL_NOUP:')
            for i in range(8):
                a(f'v_mov_b32 v{fr+i}, 0x3f803f80')
                for k in range(3): a(f'v_mov_b32_dpp v{fr+i}, v{t+k} row_newbcast:{2*i} row_mask:0xf bank_mask:{hex(2 << k)}')
            a(f'v_mov_b32 v{RING+14}, v{sv+1}\nv_mov_b32 v{RING+15}, v{sv+3}\nv_mov_b32 v{RING+5}, v{sv+2}')
            for dst, q in ((gaf, 0),):
                for i in range(16): a(f'v_mov_b32_dpp v{dst+i}, v{sv+q} row_newbcast:{i} row_mask:0xf bank_mask:0xf')
            a(f'v_mov_b32 v{RING+1}, v{vT+1}')
            self.stamp('dw')
        L2 = o['LOOK2']
        def b2_read(m):
            H, ct = divmod(m, 4)
            for rd in range(2): self.tr(Br + 4 * (m % 8) + 2 * rd, vB + ct, (H & 3) * 4096 + rd * 512, ('B', m))
            if H % 4 == 3 and H < 31: a(f'v_xor_b32 v{vB+ct}, {((H >> 2) ^ ((H >> 2) + 1)) * 16384}, v{vB+ct}')
        def a2_load(H):
            if H % 4 == 0: S(T7, '(T4 ^ n) + T6', n=H * 1024)
            self.bl(ARS[H % AD2], 4, vL16, rWS, T7, (H % 4) * 1024, 'sc1', ('A', H))
        self.spoll([(0, 2, T5, 0)], range(2), d_work)
        self.stamp('ook1')
        if not o['earlyD']: a('s_barrier')
        for H in range(AD2):
            if H == 4 and o['earlyD']: a('s_barrier')
            a2_load(H)
            if H == 0:
                for m in range(L2): b2_read(m)
        self.stamp('ook')
        S(T0, 'rt*1024 + UP'); va(vT + 6, [(0, 4, 64)])
        self.ld_up = lambda: self.bl(up, 2, vT + 6, rWS, T0, 0, 'sc1', 'up')
        lpend = []
        for H in range(32):
            if self.prof and o.get('ls2'):
                if lpend: r_, k_ = lpend.pop(0); a(f'v_writelane_b32 v255, s{r_}, {k_}')
                if H < 31:
                    r_ = sPL + 2 * (self.nst % 4)
                    a.items.append(('raw', f'    s_memtime {sr(r_, 2)}')); lpend.append((r_, self.nst)); self.stnames.append(f'n{H}'); self.nst += 1
            if o.get('g2p') and H in (0, o['g2p']):
                a(f's_cmp_lt_u32 s{sWAVE}, 4\ns_cbranch_scc1 L_G2P{H}\ns_setprio {1 if H == 0 else 0}\nL_G2P{H}:')
            vm.wait(('A', H))
            for ct in range(4):
                m = 4 * H + ct
                pw = o['pairw2']
                if ct % pw == 0: lg.wait(('B', m + pw - 1))
                a(f'v_mfma_f32_16x16x32_bf16 {vr(acc + 4*ct, 4)}, {vr(Br + 4*(m % 8), 4)}, {vr(ARS[H % AD2], 4)}, ' + ('0' if H == 0 else vr(acc + 4*ct, 4)))
                if m + L2 < 128: b2_read(m + L2)
            if H + AD2 < 32: a2_load(H + AD2)
            if H + AD2 == 31:
                self.ld_up(); self.ffn_reg(fw[3])
        self.stamp('gemm2')
        if o.get('dbg'):
            S(T1, '(wg*8 + w)*32768 + 0x4000000'); va(vT, [(0, 6, 4)])
            for k, r in enumerate(list(range(40, 104)) + [24, 25, 26, 27]):
                if k % 16 == 0 and k: S(T1, 'T1 + 4096')
                self.bs(r, 1, vT, rWS, T1, (k % 16) * 256, '', 'dbg')
                if k % 16 == 15: vm.wait('dbg')

    def tail(self):
        a, vm, lg, o, S, va = self.a, self.vm, self.lg, self.o, self.S, self.vaa
        R, fw = self.R, o['fwin']
        E2 = range(0, 16, 2)
        acc, gaf, cbf, sbf, gbf, xf, fr, up = [R[k] for k in 'acc gaf cbf sbf gbf xf fr up'.split()]
        FR, held, fq = self.FL, self.held, self.fq
        g16, hh, h2p, op, sd4, kk = AR + 40, AR + 56, AR + 72, AR + 80, AR + 88, AR + 92
        vSt, vRow, mm, rs, key, vTa = RING + 27, RING + 1, RING + 2, RING + 3, RING + 4, RING + 5
        x1f = xf
        swp = lambda b: [a(f'v_permlane32_swap_b32 v{b+p}, v{b+q}') for p, q in ((0, 2), (1, 3), (4, 6), (5, 7))]
        for h in range(2):
            rg = range(8 * h, 8 * h + 8)
            self.round_list([acc + i for i in rg])
            for i in range(8 * h, 8 * h + 8, 2): self.pk('mul', acc + i, acc + i, gaf + i)
            self.round_list([acc + i for i in rg])
            for i in range(8 * h, 8 * h + 8, 2): self.pk('add', acc + i, acc + i, xf + i)
            for i in range(4 * h, 4 * h + 4): a(f'v_cvt_pk_bf16_f32 v{XR+i}, v{acc+2*i}, v{acc+2*i+1}')
            for i in range(4 * h, 4 * h + 4): a(f'v_dot2_f32_bf16 v{vT+(i&1)}, v{XR+i}, v{XR+i}, ' + ('0' if i < 2 else f'v{vT+(i&1)}'))
            a(f'v_mfma_f32_16x16x32_bf16 {vr(sd4, 4)}, {vr(fr + 4*h, 4)}, {vr(XR + 4*h, 4)}, ' + ('0' if h == 0 else vr(sd4, 4)))
        self.nopk = False
        a(f'v_add_f32 v{vT}, v{vT}, v{vT+1}')
        for sw in ('v_permlane32_swap_b32', 'v_permlane16_swap_b32'):
            a(f'v_mov_b32 v{vT+1}, v{vT}')
            a(f'{sw} v{vT}, v{vT+1}')
            a(f'v_add_f32 v{vT}, v{vT}, v{vT+1}')
        a(f'v_mov_b32_dpp v{sd4}, v{vT} quad_perm:[0,1,2,3] row_mask:0x8 bank_mask:0xf')
        self.bs(sd4, 1, vSt, rWS, sZ2, 0, 'sc1')
        a('s_barrier')
        self.push(RING + 1, sZ3, 16, vT + 2, 'L_PE')
        self.stamp('x1pub')
        self.ffn_dma(fw[4])
        S(T2, 'w*4096')
        a(f'v_add_u32 v{vT}, s{T2}, v{vL16}')
        a(f'v_add_u32 v{vT+3}, {L_DN}, v{vT}')
        vm.wait('up')
        self.tagcheck([up + 1], vT + 2)
        a('s_cbranch_vccz L_UPOK')
        q0 = list(vm.q)
        self.poll(self.ld_up, [up + 1], vT + 2)
        vm.q = q0
        a('L_UPOK:')
        S(T1, '(rt*8 + w)*4096 + ST')
        def e_work():
            for ctl in ('quad_perm:[1,0,3,2]', 'quad_perm:[2,3,0,1]', 'row_half_mirror', 'row_mirror'): self.dpp('v_add_f32', up, up, up, ctl)
            for i in range(8): self.unpack(x1f + 2 * i, x1f + 2 * i + 1, XR + i)
            S(T2, 'w*512 + rt*2')
            va(vRow, [(0, 4, 32)], T2)
            a(f'v_xor_b32 v{vT+1}, 0x4000, v{vT}\nv_xor_b32 v{vT+4}, 0x4000, v{vT+3}')
            vm.wait('ffr')
            for m, i, r in self.sym:
                a(f'ds_write_b128 v{vT if m < 2 else vT + 3}, {vr(r, 4)} offset:{self.f_lds(m, i) - (L_GU if m < 2 else L_DN)}')
            for g in range(2):
                if not held[g]: continue
                a(f's_cmp_{"ge" if g == 0 else "lt"}_u32 s{sWAVE}, 4\ns_cbranch_scc1 L_FW{g}')
                for n, (m, i) in enumerate(held[g]):
                    for far in range(2):
                        a(f'ds_write_b128 v{(vT if m < 2 else vT + 3) + far}, {vr(FR + 8*n + 4*far, 4)} offset:{self.f_lds(m, i) - (L_GU if m < 2 else L_DN)}')
                a(f'L_FW{g}:')
            self.stamp('ew')
        self.inbox(3, 2, work=e_work)
        a('s_barrier')
        self.stamp('x1ok')
        def try_p(loads, check, between, nm='re'):
            loads()
            vm.q[-1] = tg = ('try', a.label('T'))
            between()
            vm.wait(tg)
            OK, L = a.label('POK'), a.label('PRE')
            check()
            a(f's_cbranch_vccz {OK}')
            q = list(vm.q)
            self.stamp(nm)
            a(f'{L}:')
            loads(); vm.wait_all()
            check()
            a(f"""s_cbranch_vccz {OK}
            s_add_u32 s{sSPIN}, s{sSPIN}, 1
            s_cmp_lt_u32 s{sSPIN}, {SPIN_LIMIT}
            s_cbranch_scc1 {L}""")
            vm.q = q
            a(f'{OK}:')
        vGr, vDr, vXs, ffn, fdn = RING + 6, RING + 7, RING + 24, FR, AQ
        vRt = RING + 14
        def out_calc(part):
            u = RING + 16; assert o['ocut'][1] != 5
            if part == o['ocut'][0]:
                for i in range(8): self.unpack(hh + 2 * i, hh + 2 * i + 1, h2p + i)
                for i in E2: self.pk('mul', hh + i, hh + i, gbf + i)
                self.round_list([hh + i for i in range(16)])
            if part == o['ocut'][1]:
                S(T0, 'w*2048 + L_TR')
                va(u, [(4, 2, 16)]); va(u + 1, [(0, 3, 16)]); a(f'v_xor_b32 v{u}, v{u}, v{u+1}')
                va(u + 2, [(0, 4, 128)], T0); a(f'v_add_u32 v{u}, v{u}, v{u+2}'); a(f'v_xor_b32 v{u+2}, 64, v{u}')
                va(u + 3, [(3, 3, 16)]); a(f'v_xor_b32 v{u+1}, v{u+3}, v{u+1}'); va(u + 3, [(3, 3, 128)], T0); a(f'v_add_u32 v{u+1}, v{u+1}, v{u+3}')
                S(T0, '2047 - rt*128 - w*16'); va(vRt + 1, [(3, 3, 1)])
                a(f'v_sub_u32 v{vRt}, s{T0}, v{vRt+1}\nv_subrev_u32 v{vRt+1}, 8, v{vRt}')
                va(vTa, [(3, 3, 2048), (0, 3, 16)])
            if part == o['ocut'][2]:
                for i in E2: self.pk('add', hh + i, hh + i, x1f + i)
                for i in range(8): a(f'v_cvt_pk_bf16_f32 v{op+i}, v{hh+2*i}, v{hh+2*i+1}')
                swp(op)
                a(f'ds_write_b128 v{u}, {vr(op, 4)}\nds_write_b128 v{u+2}, {vr(op + 4, 4)}')
                a(f'ds_read_b128 {vr(op, 4)}, v{u+1}\nds_read_b128 {vr(op + 4, 4)}, v{u+1} offset:1024')
        def e_between():
            if o['gbar']: a('s_barrier')
            self.ffn_dma(fw[5])
            for dst, q in ((cbf, 5), (sbf, 14), (gbf, 15)):
                for i in range(16): a(f'v_mov_b32_dpp v{dst+i}, v{RING+q} row_newbcast:{i} row_mask:0xf bank_mask:0xf')
            out_calc(4)
            S(T2, 'w*8 + L_K1'); a(f'v_mov_b32 v{vT}, s{T2}')
            va(vT + 1, [(0, 3, 8)], None, L_K1)
            va(vT + 2, [(0, 2, 64 * 4096), (2, 2, 2 * 4096)])
            S(T3, '((cb >> 3) + (cb & 7)*8)*4096 + (rt >> 1)*64 + (rt & 1)*16 + INB + 2560')
        s_, d_, q_, t_ = g16, g16 + 1, g16 + 3, g16 + 4
        def e_check():
            for h in (0, 2):
                self.pk('add', g16 + h, g16 + h, g16 + 4 + h); self.pk('add', g16 + 8 + h, g16 + 8 + h, g16 + 12 + h)
            for h in (0, 2): self.pk('add', g16 + h, g16 + h, g16 + 8 + h)
            a(f'''v_add_f32 v{d_}, v{d_}, v{g16+2}
            v_add_f32 v{t_+1}, v{s_}, v{q_}
            v_cmp_u_f32 vcc, v{d_}, v{t_+1}''')
        try_p(lambda: [self.bl(g16 + 4 * i, 4, vL16, rWS, T1, i * 1024, 'sc1') for i in range(4)], e_check, e_between, 'stre')
        self.stamp('x1ld')
        a(f"""
        v_mov_b32 v{t_}, v{q_}
        v_permlane32_swap_b32 v{q_}, v{t_}
        v_permlane32_swap_b32 v{s_}, v{d_}
        v_add_f32 v{q_}, v{q_}, v{t_}
        v_add_f32 v{s_}, v{s_}, v{d_}
        v_permlane16_swap_b32 v{s_}, v{q_}
        v_add_f32 v{d_}, v{s_}, v{q_}
        v_add_f32 v{q_}, v{s_}, v{q_}
        v_permlane16_swap_b32 v{d_}, v{q_}
        v_mov_b32 v{s_}, v{d_}
        v_mul_f32 v{q_}, 0x3a800000, v{q_}
        v_permlane32_swap_b32 v{s_}, v{d_}
        v_mul_f32 v{s_}, 0x3a800000, v{s_}
        v_fma_f32 v{rs}, -v{s_}, v{s_}, v{q_}
        v_cvt_pk_bf16_f32 v{mm}, 0, v{s_}
        v_max_f32 v{rs}, 0, v{rs}""")
        self.round1(rs)
        a(f'v_fma_f32 v{d_}, -v{mm}, v{up}, v{d_}')
        a(f'v_add_f32 v{rs}, 0x3727c5ac, v{rs}')
        self.round1(rs)
        a(f'v_sqrt_f32 v{rs}, v{rs}')
        self.round1(rs)
        a(f"""v_rcp_f32 v{rs}, v{rs}
        v_mul_f32 v{key}, v{d_}, v{rs}
        v_ashrrev_i32 v{t_}, 31, v{key}
        v_or_b32 v{t_}, 0x80000000, v{t_}
        v_xor_b32 v{key}, v{key}, v{t_}
        s_mov_b32 s{T2}, 0xfffff000
        v_and_or_b32 v{key}, v{key}, s{T2}, v{vRow}""")
        hi, lo = kk, kk + 1
        def merge2(ctl):
            self.dpp('v_min_u32', t_, hi, hi, ctl); self.dpp('v_max_u32', lo, lo, lo, ctl); self.dpp('v_max_u32', hi, hi, hi, ctl)
            a(f'v_max_u32 v{lo}, v{lo}, v{t_}')
        self.dpp('v_max_u32', hi, key, key, 'quad_perm:[1,0,3,2]'); self.dpp('v_min_u32', lo, key, key, 'quad_perm:[1,0,3,2]')
        for ctl in ('quad_perm:[2,3,0,1]', 'row_half_mirror', 'row_mirror'): merge2(ctl)
        self.dw('ds_write_b64', vT, hi, 2)
        self.stamp('ln2')
        self.barrier()
        self.dr('ds_read_b64', hi, 2, vT + 1)
        for i in E2: self.pk('add', hh + i, x1f + i, mm, bc=(1,), neg=(1,))
        lg.wait_all()
        for ctl in ('quad_perm:[1,0,3,2]', 'quad_perm:[2,3,0,1]', 'row_half_mirror'): merge2(ctl)
        a(f"""v_cmp_eq_u32 {sr(sC2, 2)}, v{key}, v{lo}
        v_cmp_eq_u32 vcc, v{key}, v{hi}
        v_or_b32 v{kk+2}, 1, v{lo}
        v_mov_b32 v{kk+1}, s{sTAG}
        v_mov_b32 v{kk+3}, s{sTAG}
        s_or_b64 {sr(sCM, 2)}, vcc, {sr(sC2, 2)}
        s_cmp_lg_u32 s{sWAVE}, 0
        s_cbranch_scc1 L_NOF
        s_mov_b64 exec, 0xffff""")
        self.bs(kk, 4, vT + 2, rWS, T3, 0, 'sc1', count=False)
        a(f"""s_mov_b64 exec, -1
        L_NOF:""")
        if o['cprio']: a(f's_cmp_eq_u64 {sr(sCM, 2)}, 0\ns_cbranch_scc1 L_NOPR\ns_setprio 1\nL_NOPR:')
        self.stamp('Fpub')
        def f_work():
            self.round_list([hh + i for i in range(16)])
            for i in E2: self.pk('mul', hh + i, hh + i, rs, bc=(1,))
            self.round_list([hh + i for i in range(16)])
            for i in E2: self.pk('mul', hh + i, hh + i, cbf + i)
            self.round_list([hh + i for i in range(16)])
            for i in E2: self.pk('add', hh + i, hh + i, sbf + i)
            for i in range(8): a(f'v_cvt_pk_bf16_f32 v{h2p+i}, v{hh+2*i}, v{hh+2*i+1}')
            a(f"""s_cmp_eq_u64 {sr(sCM, 2)}, 0
            s_cbranch_scc1 L_NOCAND""")
            for h in range(2): a(f'v_mfma_f32_16x16x32_bf16 {vr(sd4, 4)}, {vr(fr + 4*h, 4)}, {vr(h2p + 4*h, 4)}, ' + ('0' if h == 0 else vr(sd4, 4)))
            for i in range(8): a(f'v_mov_b32 v{op+i}, v{h2p+i}')
            S(T2, 'rt*16384 + cb*512 + XS')
            va(vT + 3, [(4, 2, 16)])
            a(f'v_add_u32 v{vT+4}, 8192, v{vT+3}')
            swp(op); swp(XR)
            a(f'v_cndmask_b32 v{vT+3}, v{vT+3}, v{vT+4}, {sr(sC2, 2)}')
            a(f's_mov_b64 exec, {sr(sCM, 2)}')
            for h in range(2): self.bs(op + 4 * h, 4, vT + 3, rWS, T2, 64 * h, 'sc1', count=False)
            a(f's_mov_b32 exec_lo, 0\ns_and_b32 exec_hi, s{sCM+1}, 0xffff0000')
            self.bs(sd4, 1, vT + 3, rWS, T2, 256 - 48, 'sc1', count=False)
            a(f's_mov_b64 exec, {sr(sCM, 2)}')
            for h in range(2): self.bs(XR + 4 * h, 4, vT + 3, rWS, T2, 128 + 64 * h, 'sc1', count=False)
            a('s_mov_b64 exec, -1\ns_setprio 0\nL_NOCAND:')
            self.stamp('cand')
            self.ffn_dma(fw[6])
            out_calc(0)
        S(T0, 'w*16 + L_K2'); a(f'v_mov_b32 v{vT}, s{T0}')
        va(vT + 1, [(0, 3, 16)], None, L_K2)
        self.inbox(5, 8, (1, 3, 5, 7), f_work)
        P = sPL
        a(f"""s_min_u32 s{P+1}, s{P}, s{P+4}
        s_min_u32 s{P+3}, s{P+2}, s{P+4}
        s_min_u32 s{P+5}, s{P}, s{P+6}
        s_max_u32 s{P}, s{P}, s{P+4}
        s_max_u32 s{P+2}, s{P+2}, s{P+6}
        s_max_u32 s{P+3}, s{P+3}, s{P+5}
        s_max_u32 s{P+1}, s{P+1}, s{P+2}
        v_mov_b32 v{kk}, s{P}
        v_mov_b32 v{kk+2}, s{P+3}
        v_mov_b32 v{kk+1}, s{P+1}""")
        self.dw('ds_write_b128', vT, kk, 4)
        self.stamp('F2p')
        out_calc(1)
        gu_late = [p for p in fq if p[0] < 2]; assert not gu_late
        dn_late = len(fq) > 0
        def dn_read(s, tag=None):
            self.tr(fdn + 4 * s, vDr, s * 8192, tag); self.tr(fdn + 4 * s + 2, vDr, s * 8192 + 1024, tag)
        vm.wait('ffn')
        self.barrier()
        self.stamp('F2')
        self.r128(kk, vT + 1, 0, 'k2')
        a(f'v_and_b32 v{vT+4}, 8, v{vL}')
        a(f'v_cmp_eq_u32 {sr(sCMP, 2)}, 0, v{vT+4}')
        a(f'v_cmp_gt_u32 {sr(sPL, 2)}, 16, v{vL}')
        a(f'v_cmp_gt_u32 {sr(sPL + 2, 2)}, 32, v{vL}')
        lg.wait('k2')
        t = g16
        for ctl in ('quad_perm:[1,0,3,2]', 'quad_perm:[2,3,0,1]', 'row_half_mirror'):
            self.dpp('v_min_u32', t, kk, kk, ctl); self.dpp('v_min_u32', t + 1, kk + 1, kk, ctl); self.dpp('v_min_u32', t + 2, kk, kk + 1, ctl)
            self.dpp('v_max_u32', kk + 2, kk + 2, kk + 2, ctl); self.dpp('v_max_u32', kk + 1, kk + 1, kk + 1, ctl); self.dpp('v_max_u32', kk, kk, kk, ctl)
            a(f'v_max3_u32 v{kk+2}, v{kk+2}, v{t+1}, v{t+2}')
            a(f'v_max_u32 v{kk+1}, v{kk+1}, v{t}')
        xa, xb, rp, kr = g16, g16 + 4, g16 + 8, g16 + 9
        a(f"""v_cndmask_b32 v{t}, v{kk+1}, v{kk}, {sr(sCMP, 2)}
        v_cndmask_b32 v{kr}, v{kk+2}, v{kk+1}, {sr(sPL + 2, 2)}
        v_and_b32 v{t+1}, 31, v{kk+2}
        v_and_b32 v{t}, 31, v{t}
        v_cndmask_b32 v{kr}, v{kr}, v{kk}, {sr(sPL, 2)}
        v_lshl_add_u32 v{vT}, v{t}, 13, v{vXs}
        v_lshl_add_u32 v{vT+1}, v{t+1}, 13, v{vXs}
        v_and_b32 v{t+2}, 31, v{kr}
        v_lshl_add_u32 v{vT+2}, v{t+2}, 13, v{vXs+1}""")
        def sel_work():
            self.stamp('sel')
            if o['gbar'] and (fq or o['outat'] in (0, 3)): a('s_barrier')
            self.ffn_dma(len(fq))
            for k in range(3): a(f'v_readfirstlane_b32 s{sY0+[0, 3, 4][k]}, v{kk+k}')
            for s in range(8):
                self.tr(ffn + 4 * s, vGr, s * 1024); self.tr(ffn + 4 * s + 2, vGr, s * 1024 + 512)
            for k in range(3 if o['outat'] in (0, 3) else 0): S(T4 + k, '(((y >> 1) & 15)*128 + ((y >> 5) & 127)) ^ 2047'.replace('y', ('y0', 'y1', 'y2')[k]))
            out_calc(2)
            lg.wait_all()
            if o['outat'] in (0, 3):
                for h in range(2 if o['outat'] == 0 else 1):
                    for k in range(3): a(f'v_cmp_ne_u32 {sr(sPL + 2*k, 2)}, s{T4+k}, v{vRt+h}')
                    a(f's_and_b64 vcc, {sr(sPL, 2)}, {sr(sPL + 2, 2)}\ns_and_b64 exec, vcc, {sr(sPL + 4, 2)}')
                    self.bs(op + 4 * h, 4, vTa, rOUT, (sROW0, sROW1)[h], 0, o.get('outmod', 'sc1'))
                    a('s_mov_b64 exec, -1')
            a(f'v_bfe_u32 v{vT+3}, v{kr}, 1, 4\nv_bfe_u32 v{kr}, v{kr}, 5, 7\nv_lshl_or_b32 v{kr}, v{vT+3}, 7, v{kr}\nv_xor_b32 v{kr}, 0x7ff, v{kr}')
        try_p(lambda: [self.bl(xa, 4, vT, rWS, '0', 0, 'sc1'), self.bl(xb, 4, vT + 1, rWS, '0', 0, 'sc1'), self.bl(rp, 1, vT + 2, rWS, '0', 0, 'sc1')],
              lambda: a(f'v_max3_u32 v{vT+3}, v{xa}, v{xb}, v{rp}\nv_cmp_eq_u32 vcc, -1, v{vT+3}'), sel_work, 'xsre')
        self.stamp('xsel')
        for ctl in ('quad_perm:[1,0,3,2]', 'quad_perm:[2,3,0,1]', 'row_half_mirror', 'row_mirror'): self.dpp('v_add_f32', rp, rp, rp, ctl)
        a(f"""v_cvt_pk_bf16_f32 v{rp}, 0, v{rp}
        v_ashrrev_i32 v{vT+3}, 31, v{rp}
        v_or_b32 v{vT+3}, 0x80000000, v{vT+3}
        v_xor_b32 v{rp}, v{rp}, v{vT+3}
        v_lshrrev_b32 v{rp}, 16, v{rp}
        v_lshl_or_b32 v{rp}, v{rp}, 11, v{kr}
        v_readlane_b32 s{P}, v{rp}, 0
        v_readlane_b32 s{P+1}, v{rp}, 16
        v_readlane_b32 s{P+2}, v{rp}, 32
        s_not_b64 {sr(P + 4, 2)}, {sr(sCMP, 2)}
        s_cmp_lt_u32 s{P}, s{P+1}
        s_cselect_b64 {sr(P + 4, 2)}, {sr(sCMP, 2)}, {sr(P + 4, 2)}
        s_cselect_b32 s{P+3}, s{P}, s{P+1}
        s_cmp_gt_u32 s{P+2}, s{P+3}
        s_cselect_b64 vcc, {sr(P + 4, 2)}, 0""")
        for i in range(4): a(f'v_cndmask_b32 v{xa+i}, v{xa+i}, v{xb+i}, vcc')
        a(f"""s_bitcmp1_b32 vcc_lo, 0
        s_cselect_b32 s{P}, s{P+2}, s{P}
        s_cselect_b32 s{T6}, s{T4}, s{T6}
        s_cselect_b32 s{T4}, s{sY2}, s{sY0}
        s_bitcmp1_b32 vcc_lo, 8
        s_cselect_b32 s{P+1}, s{P+2}, s{P+1}
        s_cselect_b32 s{T6}, s{T5}, s{T6}
        s_cselect_b32 s{T5}, s{sY2}, s{sY1}""")
        gd = [gaf + 4 * i for i in range(4)] + [cbf + 4 * i for i in range(4)]
        lg.wait_all()
        for s in range(8):
            a(f'v_mfma_f32_16x16x32_bf16 {vr(gd[s], 4)}, {vr(xa, 4)}, {vr(ffn + 4*s, 4)}, 0')
        p0, p1 = xb, xb + 2
        for p, b in ((p0, 0), (p1, 4)):
            a(f'v_add_f32 v{p}, v{gd[b]}, v{gd[b+1]+1}')
            a(f'v_add_f32 v{p+1}, v{gd[b+2]+2}, v{gd[b+3]+3}')
        a(f"""v_add_f32 v{p0}, v{p0}, v{p0+1}
        v_add_f32 v{p1}, v{p1}, v{p1+1}
        v_mov_b32 v{p0+1}, s{sTAG}
        v_permlane16_swap_b32 v{p1}, v{p1+1}
        s_cmp_ge_u32 s{sJ}, 28
        s_cbranch_scc1 L_NOHP
        v_add_f32 v{p0}, v{p0}, v{p1+1}
        s_mov_b32 exec_lo, 0xffff
        s_mov_b32 exec_hi, 0xffff""")
        self.bs(p0, 2, RING + 26, rWS, sZ1, 0, 'sc1', count=False)
        a("""s_mov_b64 exec, -1
        L_NOHP:""")
        self.stamp('Hpub')
        if not dn_late and not o['dnsplit']:
            for s in range(4): dn_read(s)
        def out_store(hs=None):
            for h in (hs or range(o['outat'] >= 3, 2)):
                a(f"""v_cmp_ne_u32 vcc, s{sK1}, v{vRt+h}
                v_cmp_ne_u32 {sr(sCMP, 2)}, s{sK2}, v{vRt+h}
                s_and_b64 exec, vcc, {sr(sCMP, 2)}""")
                self.bs(op + 4 * h, 4, vTa, rOUT, (sROW0, sROW1)[h], 0, o.get('outmod', 'sc1'))
                a('s_mov_b64 exec, -1')
        if o['outat']:
            a(f's_and_b32 s{sK1}, s{P}, 2047\ns_and_b32 s{sK2}, s{P+1}, 2047')
            out_calc(3)
            lg.wait_all()
        if o['outat'] == 1:
            a('s_barrier')
            out_store()
        if o['outat'] in (0, 3):
            for h in range(2 if o['outat'] == 0 else 1):
                a(f"""v_cmp_eq_u32 vcc, s{T6}, v{vRt+h}
                s_and_b64 exec, vcc, -1
                s_cbranch_execz L_NOLO{h}""")
                self.bs(op + 4 * h, 4, vTa, rOUT, (sROW0, sROW1)[h], 0, o.get('outmod', 'sc1'), count=False)
                a(f'L_NOLO{h}:\ns_mov_b64 exec, -1')
        self.stamp('outst')
        fz, x1, st = g16 + 12, AV, kk
        a(f"""s_cmp_lg_u32 s{sRow}, 7
        s_cbranch_scc1 L_NONON
        v_mov_b32 v{vT+2}, s{sTAG}
        v_mov_b32 v{vT+3}, 0
        s_mov_b64 exec, 1""")
        self.bs(vT + 2, 1, vT + 3, rWS, '0', 0, 'sc1', count=False)
        a(f"""s_mov_b64 exec, -1
        L_NONON:
        s_cmp_ge_u32 s{sJ}, 28
        s_cbranch_scc1 {'L_FIN3' if o['outat'] >= 2 else 'L_FIN'}""")
        gA = g16
        va(gA, [(2, 1, 128), (5, 1, 16)], None, L_ACT)
        va(gA + 1, [(4, 2, 56 * 128), (0, 4, 8)])
        S(sFG, '(kq*8 + w)*(4*56*128) + fs*128 + GGR')
        va(gA + 2, [(0, 1, 2 * 4096), (1, 1, 64 * 4096)])
        S(sFD, '((w & 1)*4 + (kq >> 1) + ((kq & 1)*4 + (w >> 1))*8)*4096 + x*64 + (j >> 2)*4 + INB + 3072')
        def dn_go():
            if o['dnsplit'] and not dn_late:
                vm.wait('fdn'); a('s_barrier')
                for s in range(4): dn_read(s)
            out_calc(5)
            if o['outat'] == 4: assert o['dnsplit'] and not dn_late and 5 not in o['ocut']; out_store([0])
        q1 = list(vm.q)
        a(f's_cmp_lt_u32 s{sWAVE}, 4\ns_cbranch_scc1 L_HW')
        dn_go()
        a(f"""s_cmp_lg_u32 s{sWAVE}, 7
        s_cbranch_scc1 L_NOH""")
        a(f"""s_bitcmp1_b32 s{sJ}, 3
        s_cselect_b32 s{T2}, s{P+1}, s{P}
        s_cselect_b32 s{T4}, s{T5}, s{T4}
        s_andn2_b32 s{T5}, 2047, s{T2}""")
        S(T6, 'cb*4 + (x >> 1)')
        S(T7, '((T6 >> 1)*4 + (j >> 3)*2 + (T6 & 1))*(56*128) + GGR')
        S(sU, 'T5*2048 + T6*32')
        va(vT + 6, [(0, 3, 4)])
        S(T0, '(x >> 1)*64 + L_GB'); va(vT + 1, [(0, 3, 8)], T0)
        a(f'ds_read_b64 {vr(fz + 2, 2)}, v{vT+1}')
        S(sY0, '(T4 & 31)*8192 + cb*512 + (x >> 1)*32 + XS')
        a(f"""s_lshr_b32 s{T0}, s{T2}, 11
        s_lshl_b32 s{T0}, s{T0}, 16
        s_ashr_i32 s{T2}, s{T0}, 31
        s_andn2_b32 s{T2}, 0x7fff0000, s{T2}
        s_or_b32 s{T2}, s{T2}, 0x80000000
        s_xor_b32 s{T0}, s{T0}, s{T2}
        v_mov_b32 v{fz}, s{T0}
        v_mul_f32 v{fz}, s{sL2E}, v{fz}
        v_exp_f32 v{fz}, -v{fz}
        v_add_f32 v{fz}, 1.0, v{fz}
        v_rcp_f32 v{fz}, v{fz}""")
        self.round1(fz)
        q0 = list(vm.q)
        a(f'v_mov_b32 v{vT+1}, s{sTAG}\nv_not_b32 v{vT+2}, v{vT+1}')
        self.poll(lambda: (self.bl(st, 1, vT + 6, rWS, sY0, 0, 'sc1'), self.bl(st + 1, 1, vT + 6, rWS, sY0, 128, 'sc1')), [st + 2], vT,
                  lambda: a(f'''v_max_u32 v{st+2}, v{st}, v{st+1}
                  v_cmp_ne_u32 vcc, -1, v{st+2}
                  v_cndmask_b32 v{st+2}, v{vT+2}, v{vT+1}, vcc'''))
        vm.q = q0
        self.unpack(st + 2, st + 3, st + 1)
        a(f'v_and_b32 v{st+1}, s{sMASK}, v{st}\nv_lshlrev_b32 v{st}, 16, v{st}')
        a('s_branch L_NOH')
        a('L_HW:')
        vm.q = q1; lg.reset()
        S(T0, 'w*256 + z0')
        va(vT, [(4, 2, 2048), (0, 4, 16)])
        S(T2, 'w*32 + L_ACT'); va(vT + 1, [(5, 1, 128), (2, 1, 16), (1, 1, 8), (3, 1, 4), (0, 1, 2)], T2)
        q0 = list(vm.q)
        g, u = x1, x1 + 4
        if not o['Hdir']:
            self.spoll([(q, 1, T0, q * 2048 + 1024 + 252) for q in range(4)], range(4), dn_go)
            self.stamp('Hpre')
        self.poll(lambda: [self.bl(x1 + 4 * m, 4, vT, rWS, T0, m * 1024, 'sc1') for m in range(2)], [g + 1, g + 3, u + 1, u + 3], vT + 2)
        a(f"""v_permlane32_swap_b32 v{g}, v{g+2}
        v_permlane32_swap_b32 v{u}, v{u+2}
        v_add_f32 v{g}, v{g}, v{g+2}
        v_add_f32 v{u}, v{u}, v{u+2}
        v_mov_b32 v{g+2}, v{g}
        v_mov_b32 v{u+2}, v{u}
        v_permlane16_swap_b32 v{g}, v{g+2}
        v_permlane16_swap_b32 v{u}, v{u+2}
        v_add_f32 v{g}, v{g}, v{g+2}
        v_add_f32 v{u}, v{u}, v{u+2}""")
        self.round2(g, u)
        self.silu(g, vT + 2)
        a(f"""v_mul_f32 v{g}, v{g}, v{u}
        v_cvt_pk_bf16_f32 v{g}, v{g}, v{g}
        ds_write_b16 v{vT+1}, v{g}
        L_NOH:""")
        vm.q = q0
        vm.wait('ffn'); vm.wait('fdn')
        self.barrier()
        self.stamp('Hok')
        for s in range(4):
            self.r128(x1 + 4 * s, gA, s * 32, ('ac', s))
            if dn_late: dn_read(s, ('ac', s))
        for s in range(4):
            lg.wait(('ac', s))
            a(f'v_mfma_f32_32x32x16_bf16 {vr(hh, 16)}, {vr(x1 + 4*s, 4)}, {vr(fdn + 4*s, 4)}, ' + ('0' if s == 0 else vr(hh, 16)))
        a(f'v_mov_b32 v{hh+1}, s{sTAG}')
        self.bs(hh, 2, gA + 1, rWS, sFG, 0, 'sc1')
        if not o['Gdir']:
            a('s_mov_b64 exec, 15')
            self.bs(hh + 1, 1, gA + 2, rWS, sFD, 0, 'sc1')
            a('s_mov_b64 exec, -1')
        self.stamp('Gpub')
        if o['outat'] >= 2:
            a('s_barrier\ns_branch L_FIN2\nL_FIN3:')
            out_calc(5)
            a('s_waitcnt lgkmcnt(0)')
            if o['outat'] == 4: out_store([0])
            a('L_FIN2:')
            out_store()
        a(f"""s_cmp_ge_u32 s{sJ}, 16
        s_cbranch_scc1 L_FIN""")
        if not o['Gdir']:
            self.inbox(6, 8, range(7))
            self.stamp('Gpre')
            a('s_barrier')
        a(f"""s_cmp_lg_u32 s{sWAVE}, 7
        s_cbranch_scc1 L_FIN""")
        S(T0, 'T7 + 4096')
        gg = [x1 + 4 * i for i in range(7)]
        def g_ld():
            [self.bl(gg[n], 4, vL16, rWS, (T7, T0)[n >> 2], (n & 3) * 1024, 'sc1') for n in range(7)]
        self.poll(g_ld, [gg[n] + 1 + 2 * e for n in range(7) for e in range(2)], vT)
        self.stamp('Gok')
        y0, y1 = gg[0], gg[0] + 1
        for p_, q_ in ((0, 1), (2, 3), (4, 5), (0, 2), (4, 6)):
            for e in (0, 2): a(f'v_add_f32 v{gg[p_]+e}, v{gg[p_]+e}, v{gg[q_]+e}')
        a(f'v_add_f32 v{y0}, v{gg[0]}, v{gg[4]}\nv_add_f32 v{y1}, v{gg[0]+2}, v{gg[4]+2}')
        a(f"""v_permlane32_swap_b32 v{y0}, v{y1}
        v_add_f32 v{y0}, v{y0}, v{y1}""")
        self.dpp('v_add_f32', y0, y0, y0, 'row_ror:8')
        a(f"""v_mov_b32 v{y1}, v{y0}
        v_permlane16_swap_b32 v{y0}, v{y1}
        v_add_f32 v{y1}, v{y0}, v{y1}
        v_cvt_pk_bf16_f32 v{y0}, 0, v{y1}
        v_cvt_pk_bf16_f32 v{y1}, 0, v{y1}
        v_permlane32_swap_b32 v{y0}, v{y1}""")
        self.pk('mul', y0, y0, fz, bc=(1,))
        self.round2(y0, y1)
        self.pk('add', y0, y0, st)
        self.round2(y0, y1)
        self.pk('mul', y0, y0, fz + 2)
        self.round2(y0, y1)
        self.pk('add', y0, y0, st + 2)
        a(f'v_cvt_pk_bf16_f32 v{y0}, v{y0}, v{y1}')
        a('s_mov_b64 exec, 0xff')
        self.bs(y0, 1, vT + 6, rOUT, sU, 0, o.get('finmod', ''))
        a('s_mov_b64 exec, -1')
        a('L_FIN:')

    def finish(self):
        a, S, o = self.a, self.S, self.o
        if o.get('exfil'):
            a('s_waitcnt vmcnt(0) lgkmcnt(0)')
            self.stamp('fin')
            a(f'''v_readlane_b32 s{T0}, v255, 0
            v_readlane_b32 s{T1}, v255, 1
            v_readlane_b32 s{T2}, v255, 2
            s_sub_u32 s{T2}, s{T2}, s{T1}
            s_max_i32 s{T2}, s{T2}, 0
            s_min_u32 s{T2}, s{T2}, 10000
            s_mul_i32 s{T2}, s{T2}, 10
            s_add_u32 s{T2}, s{T2}, 6000
            L_XPAD:
            s_memrealtime {sr(sTM, 2)}
            s_waitcnt lgkmcnt(0)
            s_sub_u32 s{T1}, s{sTM}, s{T0}
            s_cmp_lt_u32 s{T1}, s{T2}
            s_cbranch_scc1 L_XPAD''')
        if self.o.get('dbg2'):
            S(T1, '(wg*8 + w)*32768 + 0x4000000'); self.vaa(vT, [(0, 6, 4)])
            for k, r in enumerate(list(range(72, 104)) + list(range(120, 136)) + list(range(176, 184))):
                if k % 16 == 0 and k: S(T1, 'T1 + 4096')
                self.bs(r, 1, vT, rWS, T1, (k % 16) * 256, '', 'dbg')
                if k % 16 == 15: self.vm.wait('dbg')
        if self.prof:
            a('s_waitcnt vmcnt(0) lgkmcnt(0)')
            self.stamp('end')
            a(f's_memrealtime {sr(sTM, 2)}')
            a('s_waitcnt lgkmcnt(0)')
            a(f'v_writelane_b32 v255, s{sTM}, 61')
            S(T0, '(wg*8 + w)*256 + STAMPS')
            a(f'v_writelane_b32 v255, s{sSPIN}, 62')
            a(f'v_lshlrev_b32 v{vT+1}, 2, v{vL}')
            a(f'buffer_store_dword v255, v{vT+1}, {sr(rWS, 4)}, s{T0} offen')
            S(T0, 'T0 + 0x100000')
            a(f'buffer_store_dword v254, v{vT+1}, {sr(rWS, 4)}, s{T0} offen')
        a('L_END:')
        a('s_endpgm')

    def pads(self):
        import subprocess, re
        a = self.a
        src = '.amdgcn_target "amdgcn-amd-amdhsa--gfx950"\n.text\n' + a.text().replace('CODE_KB', '20480')
        out = subprocess.run(['llvm-mc', '-triple=amdgcn-amd-amdhsa', '-mcpu=gfx950', '-show-encoding'], input=src, capture_output=True, text=True, check=True).stdout
        sizes = [len(m.split(',')) for m in re.findall(r'; encoding: \[([^\]]*)\]', out)]
        tour = next(i for i, x in enumerate(a.items) if x == ('raw', ';TOUR'))
        NT = 16
        addr = self.o['kofs']; full = True; k = 0; items = []; pads = []; page = 0
        for i, (kind, v) in enumerate(a.items):
            isins = kind == 'ins' or (kind == 'raw' and v.startswith('    s_'))
            if i == tour: items.append((kind, v)); addr += 4 * 48; continue
            if isins:
                if addr // 4096 > page and full and i > tour:
                    page = addr // 4096; pads.append(page)
                    items.append(('raw', f'L_PAD{page}:\n    s_cbranch_execz L_RET{page}')); addr += 4
                elif i < tour: page = addr // 4096
                addr += sizes[k]; k += 1
                if kind == 'ins' and ('s', 'exec_lo') in v.dst + [('s', 'exec_lo') if ('s', 'exec_hi') in v.dst else None]:
                    full = v.text.replace(' ', '') in ('s_mov_b64exec,-1', 's_mov_b32exec_hi,-1')
            items.append((kind, v))
        assert k == len(sizes), (k, len(sizes))
        t = ['s_mov_b64 exec, 0']
        chains = [pads[c::4] for c in range(4)]
        for c in range(4): t += [f's_cmp_eq_u32 s{sWAVE}, {4 + c}', f's_cbranch_scc1 L_PAD{chains[c][0]}']
        t.append('s_branch L_TEND')
        n = len(t)
        for ch in chains:
            for p, q in zip(ch, ch[1:] + [None]):
                t += [f'L_RET{p}:', f's_branch ' + (f'L_PAD{q}' if q else 'L_TEND')]; n += 1
        assert n <= 47
        t += ['s_nop 0'] * (47 - n) + ['L_TEND:', 's_mov_b64 exec, -1']
        j = items.index(('raw', ';TOUR'))
        items[j] = ('raw', '\n'.join(x if x.endswith(':') else '    ' + x for x in t))
        a.items = items

    def text(self):
        a = self.a
        npad = a.fix_hazards()
        errs = a.check_waits([NAME])
        for e in errs[:10]: print('WAITERR', e, file=sys.stderr)
        assert not errs
        import re
        for k, v in a.items:
            if k == 'ins' and v.mn.startswith('v_pk_'):
                m = re.search(r'op_sel:\[([\d,]+)\]', v.text)
                vs = [i for i, x in enumerate(v.ops[1:]) if x.startswith('v')]
                assert self.o.get('badpk') or not (m and any(m.group(1).split(',')[i] == '1' for i in vs[1:])), v.text
        if self.o['tour']: self.pads()
        hdr = open(os.path.join(os.path.dirname(os.path.abspath(__file__)), 'header.txt')).read()
        s = hdr + '; @launch grid=(256,1,1) block=(512,1,1) lds=163840\n'
        s += '.amdgcn_target "amdgcn-amd-amdhsa--gfx950"\n.text\n'
        s += f'.globl {NAME}\n.p2align {12 if self.o["al12"] else 8}\n.type {NAME},@function\n'
        body = a.text()
        import subprocess, tempfile
        with tempfile.TemporaryDirectory() as td:
            open(td + '/t.s', 'w').write('.amdgcn_target "amdgcn-amd-amdhsa--gfx950"\n.text\n' + body.replace('CODE_KB', '20480'))
            subprocess.run(['clang', '-x', 'assembler', '-target', 'amdgcn-amd-amdhsa', '-mcpu=gfx950', '-c', td + '/t.s', '-o', td + '/t.o'], check=True)
            subprocess.run(['llvm-objcopy', '-O', 'binary', '-j', '.text', td + '/t.o', td + '/t.bin'], check=True)
            size = os.path.getsize(td + '/t.bin')
        print('; code bytes', size, file=sys.stderr)
        s += body.replace('CODE_KB', str((size // 1024 + 1) * 1024))
        s += '.p2align 10\n.fill 768, 4, 0xbf800000\n'
        s += '.section .rodata,"a"\n' + kernel_desc(NAME, 256, 102)
        print(f'; nops {npad}, instrs {sum(1 for k, _ in a.items if k == "ins")}', file=sys.stderr)
        return s


if __name__ == '__main__':
    import argparse, json
    ap = argparse.ArgumentParser()
    ap.add_argument('-o', default='/dev/stdout')
    ap.add_argument('--prof', action='store_true')
    ap.add_argument('--opts', default='{}')
    args = ap.parse_args()
    g = Gen(args.prof, json.loads(args.opts)).build()
    t = g.text()
    open(args.o, 'w').write(t)
    if args.prof: open(args.o + '.stamps', 'w').write(json.dumps(g.stnames))
```

```python
import sys, os
sys.path.insert(0, os.path.dirname(os.path.abspath(__file__)))
from asm import *

NAME = 'adaLN_cond__linear_kernel_hedgehog__moe_arch_mod__prompt_kernel'

NONCE = 0x0
MODP2 = 0x020000
SINB = 0x200000
AINB = 0x080000
INB = 0x100000
HF = 0x400000
OF = 0x800000
ST = 0xC00000
XS = 0xD00000
UP = 0xD80000
HGR = 0x1400000
ZP = 0x1480000
GGR = 0x1500000
KVP = 0x1800000
KIN = 0x1C00000
STAMPS = 0x1600000
WS_BYTES = 268435456

REG = 49152
MISC = 147456
L_A1 = MISC
L_ST = MISC + 6144
L_MP = MISC + 8192
L_WPHI = MISC + 12288
L_KH = 0
L_QH = MISC + 4096
L_KVF = MISC
L_ZF = MISC + 8192
L_M2 = MISC + 9984
L_MD = MISC + 12288
L_K1 = MISC + 8704
L_K2 = MISC + 8832
L_ACT = MISC + 9216
L_GB = MISC + 9728
L_HV = 32768
L_PHK = 0
L_TR = 98304
L_GU = 0
L_DN = 65536
UR = 393216

SPIN_LIMIT = 200000

sWAVE, sTAG, sSPIN, sMASK, sL2E = 3, 4, 5, 6, 7
sX, sJ, sR1, sHP, sCB = 8, 9, 10, 11, 12
T0, T1, T2, T3, T4, T5, T6, T7 = 13, 14, 15, 16, 17, 18, 19, 20
sRT = 21
sCMP = 22
sPL = 24
rWS, rX, rW, rWO, rWM, rWG, rWU, rWD, rOUT = 32, 36, 40, 44, 48, 52, 56, 60, 64
KA = 68
pWPHI, pWR, pC = KA + 4, KA + 10, KA + 18
sK1, sK2, sROW0, sROW1, sFS, sKQ, sKH, sRB = 68, 69, 70, 71, 74, 75, 76, 77
sFG, sFD, sU, sW1K, sU0, sWB = 80, 81, 82, 83, 84, 85
sAB, sM2, sWO, sY0 = 88, 89, 90, 91
sINB, sRow, sY1, sY2 = 92, 93, 94, 95
sZ0, sZ1, sZ2, sZ3 = 72, 73, 86, 87
sCM = 84
sC2 = 88
XT = (96, 97, 98, 99)
sTM = 100
ENV = dict(wg=2, w=sWAVE, x=sX, j=sJ, r1=sR1, hp=sHP, cb=sCB, rt=sRT, row=sRow, kh=sKH, rb=sRB, fs=sFS, kq=sKQ,
           w1k=sW1K, u=sU, fg=sFG, fd=sFD, u0=sU0, wb=sWB, ab=sAB, m2=sM2, wo=sWO, y0=sY0, y1=sY1, y2=sY2,
           z0=sZ0, k1=sK1, k2=sK2, row0=sROW0, row1=sROW1,
           T0=T0, T1=T1, T2=T2, T3=T3, T4=T4, T5=T5, T6=T6, T7=T7)

vL, vL16, vWd, vT = 1, 2, 3, 4
XR = 12
vB = 20
vS0, vS1 = 26, 27
RING = 28
AK, AV, AQ = 56, 88, 120
AR = 152
SP = 248


class Stream:
    def __init__(self, g): self.g, self.q, self.wake = g, [], 0
    def add(self, fn, v=0, l=0): self.q.append((v, l, fn))
    def sleep(self, k): self.q.append(('sleep', k, None))
    def until(self, n): self.q.append(('until', n, None))
    def cap(self, fn):
        a = self.g.a
        keep = a.items; a.items = []
        fn()
        body = a.items; a.items = keep
        run = []
        for it in body:
            i = it[1]
            assert it[0] == 'ins' and i.cls in ('valu', 'salu', 'mfma'), it
            run.append(it)
            if i.cls == 'salu': continue
            c = 8 if (i.cls == 'mfma' or i.is_trans or 'permlane' in i.mn) else 6 if i.mn.startswith(('v_fma', 'v_max3', 'v_min3', 'v_lshl_', 'v_bfe')) else 4.75 if i.mn.startswith('v_cvt') else 4
            self.q.append((c + (len(run) - 1), 0, (lambda r=run: a.items.extend(r)))); run = []
        if run: self.q.append((len(run), 0, (lambda r=run: a.items.extend(r))))
    def mark(self, name): self.q.append((0, 0, lambda: (self.g.marks.add(name), self.g.markn.append((name, self.g.cur[0])))))
    def pull(self, bud, full):
        n = self.g.cur[0]
        while self.q and n >= self.wake:
            v, l, fn = self.q[0]
            if v == 'sleep': self.wake = n + l; self.q.pop(0); continue
            if v == 'until': self.wake = max(n, l); self.q.pop(0); continue
            if l > bud[1]: return
            if v > bud[0] and bud[0] < full:
                bud[0] = -1; return
            self.q.pop(0); fn(); bud[0] -= v; bud[1] -= l


DEFAULTS = dict(wburst=(0, 2, 2, 0, 6, 0), xtat=0, f3at=27, symat=0, wpre=(2, 0), dnsplit=1, lateB=1, wo0=0, m2k0=11, m2n0=4, mdlate=1, m2gap=10, m2cut=60, aoff=6, wpace=0, cprio=1, g2p=22, tlb=0, tlbk=2, tsin=0, tz=0, outat=2, gbar=1, fbar=0, xorw=1, LOOK=6, A00=8, A0=8, Apos=(6, 6, 6, 6, 6, 6, 5, 5, 5, 5),
                wsched={5: 'k10 v10', 6: 'k11 v11', 7: 'k12 v12', 8: 'k13 v13', 9: 'k14 q10', 10: 'k15 q11', 11: 'v14 v15 q12', 12: 'q13 q14 q15'},
                bA=271, bH=295, kbud=10, vbud=5, wcost=5, kdel=1, hh=0.25, hq=0.97, hpf=(0.3, 0.7), fA=2, woA=4, hgap=(20, 14), fpre=8, m2c=4, m2k3='(j & 1)*2 + 1', m2g=5, m2e=7, m2nb=1, m2db=2, apos=0, hprio=3, qmid=8, qsplit=16, wowin=(4, 4, 4), AD2=8, LOOK2=7, g2r='(j & 1)*4', Hdir=0, Gdir=0, C2dir=0, poisat=3, earlyD=1, ocut=(0, 2, 2), pairw2=4, worot=1, fwin=(0, 0, 0, 3, 2, 3, 2), prio=2, tour=1, al12=1, kofs=0x300)


class Gen:
    def __init__(self, prof=False, opts=None):
        self.a = Asm()
        self.vm = Counter(self.a, 'vmcnt', 63)
        self.lg = Counter(self.a, 'lgkmcnt', 15)
        self.marks = set(); self.markn = []
        self.vL = vL
        self.prof = prof
        self.nopk = False
        self.nst = 0
        self.stnames = []
        self.S = SExpr(self.a, ENV, {k: v for k, v in globals().items() if isinstance(v, int) and k.isupper() and k not in ENV}, XT)
        self.o = dict(DEFAULTS)
        if opts: self.o.update(opts)

    def bl(self, dst, n, voff, srd, soff, imm=0, mods='', tag=None):
        op = {1: 'dword', 2: 'dwordx2', 4: 'dwordx4'}[n]
        so = soff if isinstance(soff, str) else (sr(soff))
        self.a(f'buffer_load_{op} {vr(dst, n)}, v{voff}, {sr(srd, 4)}, {so} offen' + (f' offset:{imm}' if imm else '') + (' ' + mods if mods else ''))
        self.vm.issue(tag)
    def bs(self, src, n, voff, srd, soff, imm=0, mods='', tag=None, count=True):
        op = {1: 'dword', 2: 'dwordx2', 4: 'dwordx4'}[n]
        so = soff if isinstance(soff, str) else (sr(soff))
        self.a(f'buffer_store_{op} {vr(src, n)}, v{voff}, {sr(srd, 4)}, {so} offen' + (f' offset:{imm}' if imm else '') + (' ' + mods if mods else ''))
        if count: self.vm.issue(tag)
    def dma(self, voff, srd, soff, imm=0, mods='', tag=None):
        self.a(f'buffer_load_dwordx4 v{voff}, {sr(srd, 4)}, {sr(soff)} offen' + (f' offset:{imm}' if imm else '') + (' ' + mods if mods else '') + ' lds')
        self.vm.issue(tag)
    def dr(self, op, dst, n, addr, off=0, tag=None):
        assert 0 <= off < 65536, off
        self.a(f'{op} {vr(dst, n)}, v{addr}' + (f' offset:{off}' if off else ''))
        self.lg.issue(tag)
    def tr(self, dst, addr, off, tag=None): self.dr('ds_read_b64_tr_b16', dst, 2, addr, off, tag)
    def r128(self, dst, addr, off=0, tag=None): self.dr('ds_read_b128', dst, 4, addr, off, tag)
    def dw(self, op, addr, src, n, off=0, tag=None):
        assert 0 <= off < 65536, off
        self.a(f'{op} v{addr}, {vr(src, n)}' + (f' offset:{off}' if off else ''))
        self.lg.issue(tag)
    def barrier(self):
        self.lg.wait_all()
        self.a('s_barrier')
    def stamp(self, name):
        if self.o.get('jit') and name not in ('karg', 'fin', 'end'):
            L = self.a.label('JIT')
            self.a(f's_memtime {sr(sTM, 2)}'); self.lg.wait_all()
            self.a(f's_mul_i32 s{sTM}, s{sTM}, 0x9e3779b1\ns_lshr_b32 s{sTM}, s{sTM}, {32 - self.o["jit"]}\ns_add_u32 s{sTM}, s{sTM}, 1\n{L}:\ns_sleep 1\ns_sub_u32 s{sTM}, s{sTM}, 1\ns_cmp_lg_u32 s{sTM}, 0\ns_cbranch_scc1 {L}')
        ex = self.o.get('exfil')
        if ex and name in ex[:2]:
            self.a(f's_memrealtime {sr(sTM, 2)}')
            self.lg.wait_all()
            self.a(f'v_writelane_b32 v255, s{sTM}, {1 + ex.index(name)}')
        if not self.prof: return
        only = self.o.get('only')
        if only and name not in only and name != 'end': return
        self.a(f's_memtime {sr(sTM, 2)}')
        self.a(f's_memrealtime s[0:1]')
        self.lg.wait_all()
        self.a(f'v_writelane_b32 v255, s{sTM}, {self.nst}')
        self.a(f'v_writelane_b32 v254, s0, {self.nst}')
        self.stnames.append(name)
        self.nst += 1
        assert self.nst <= 60
    def unpack(self, lo, hi, src):
        self.a(f'v_lshlrev_b32 v{lo}, 16, v{src}')
        self.a(f'v_and_b32 v{hi}, s{sMASK}, v{src}')
    def round1(self, r):
        self.a(f'v_cvt_pk_bf16_f32 v{r}, 0, v{r}')
    def round2(self, r0, r1):
        self.round1(r0); self.round1(r1)
    def round_list(self, regs):
        for r in regs: self.round1(r)
    def pk(self, op, d, s0, s1, s2=None, bc=(), neg=()):
        srcs = [s0, s1] + ([s2] if s2 is not None else [])
        if self.nopk:
            for h in range(2):
                t = []
                for k, r in enumerate(srcs):
                    kind, n = r if isinstance(r, tuple) else ('v', r)
                    t.append(('-' if k in neg else '') + f'{kind}{n if k in bc else n + h}')
                e64 = '' if op == 'fma' else ('_e64' if (neg or t[1][0] == 's') else '')
                self.a(f'v_{op}_f32{e64} v{d+h}, ' + ', '.join(t))
            return
        if 1 in bc and not isinstance(s1, tuple) and s1 & 1 and not self.o.get('badpk'):
            assert 0 not in bc
            sw = lambda t: tuple({0: 1, 1: 0}.get(k, k) for k in t)
            srcs[0], srcs[1] = srcs[1], srcs[0]; bc, neg = sw(bc), sw(neg)
        txt, sel, selhi = [], [], []
        for k, r in enumerate(srcs):
            kind, n = r if isinstance(r, tuple) else ('v', r)
            if k in bc:
                txt.append(f'{kind}[{n & ~1}:{(n & ~1) + 1}]'); sel.append(n & 1); selhi.append(n & 1)
            else:
                assert n % 2 == 0
                txt.append(f'{kind}[{n}:{n+1}]'); sel.append(0); selhi.append(1)
        assert d % 2 == 0
        m = ''
        if any(sel): m += ' op_sel:[' + ','.join(map(str, sel)) + ']'
        if not all(selhi): m += ' op_sel_hi:[' + ','.join(map(str, selhi)) + ']'
        if neg:
            ng = ','.join('1' if k in neg else '0' for k in range(len(srcs)))
            m += f' neg_lo:[{ng}] neg_hi:[{ng}]'
        self.a(f'v_pk_{op}_f32 v[{d}:{d+1}], ' + ', '.join(txt) + m)
    def dpp(self, op, d, s0, s1, ctl):
        self.a(f'{op}_dpp v{d}, v{s0}, v{s1} {ctl} row_mask:0xf bank_mask:0xf')
    def allreduce(self, v, t, op='v_add_f32', lo=True, b3=True):
        if lo:
            self.dpp(op, v, v, v, 'quad_perm:[1,0,3,2]')
            self.dpp(op, v, v, v, 'quad_perm:[2,3,0,1]')
            self.dpp(op, v, v, v, 'row_half_mirror')
        self.dpp(op, v, v, v, 'row_ror:8')
        self.a(f'v_mov_b32 v{t}, v{v}')
        self.a(f'v_permlane16_swap_b32 v{v}, v{t}')
        self.a(f'{op} v{v}, v{v}, v{t}')
        self.a(f'v_mov_b32 v{t}, v{v}')
        self.a(f'v_permlane32_swap_b32 v{v}, v{t}')
        self.a(f'{op} v{v}, v{v}, v{t}')
    def poll(self, loads, tagregs, tmp=None, post=None):
        a = self.a
        L, D = a.label('POLL'), a.label('PDONE')
        a(f'{L}:')
        loads()
        self.vm.wait_all()
        if post: post()
        if len(tagregs) == 1:
            a(f'v_cmp_ne_u32 vcc, s{sTAG}, v{tagregs[0]}')
        else:
            a(f'v_bitop3_b32 v{tmp}, v{tagregs[0]}, v{tagregs[1]}, s{sTAG} bitop3:0x7e')
            for t in tagregs[2:]: a(f'v_bitop3_b32 v{tmp}, v{tmp}, v{t}, s{sTAG} bitop3:0xf6')
            a(f'v_cmp_ne_u32 vcc, 0, v{tmp}')
        a(f's_cbranch_vccz {D}')
        a(f's_add_u32 s{sSPIN}, s{sSPIN}, 1')
        a(f's_cmp_lt_u32 s{sSPIN}, {SPIN_LIMIT}')
        a(f's_cbranch_scc1 {L}')
        a(f'{D}:')
    def weave(self, fn, extras):
        a = self.a
        keep = a.items; a.items = []
        fn()
        body = a.items; a.items = keep
        extras = list(extras); n = len(extras)
        for i, it in enumerate(body):
            while extras and (n - len(extras)) * len(body) <= i * n: extras.pop(0)()
            a.items.append(it)
        for e in extras: e()
    def tagcheck(self, tagregs, tmp):
        a = self.a
        if len(tagregs) == 1:
            a(f'v_cmp_ne_u32 vcc, s{sTAG}, v{tagregs[0]}')
        else:
            a(f'v_bitop3_b32 v{tmp}, v{tagregs[0]}, v{tagregs[1]}, s{sTAG} bitop3:0x7e')
            for t in tagregs[2:]: a(f'v_bitop3_b32 v{tmp}, v{tmp}, v{t}, s{sTAG} bitop3:0xf6')
            a(f'v_cmp_ne_u32 vcc, 0, v{tmp}')
    def try_load(self, loads, tagregs, tmp=None, between=None, pre=None):
        a = self.a
        n0 = len(self.vm.q)
        loads()
        self.vm.q[-1] = tg = ('try', a.label('T'))
        if between: between()
        self.vm.wait(tg)
        OK = a.label('TOK')
        self.tagcheck(tagregs, tmp)
        a(f's_cbranch_vccz {OK}')
        q, l = list(self.vm.q), list(self.lg.q)
        if pre: pre()
        self.poll(loads, tagregs, tmp)
        self.vm.q, self.lg.q = q, l
        a(f'{OK}:')
    def spoll(self, loads, checks, work=None):
        a = self.a
        L, C, D = a.label('SPOLL'), a.label('SCHK'), a.label('SDONE')
        def issue():
            for d, n, so, imm in loads:
                op = {1: 'dword', 2: 'dwordx2', 4: 'dwordx4', 8: 'dwordx8'}[n]
                a(f's_load_{op} {sr(sPL + d, n)}, {sr(rWS, 2)}, s{so} offset:{imm} glc')
        if work:
            issue(); work()
            a(f's_branch {C}')
        a(f'{L}:')
        issue()
        a(f'{C}:')
        a(f's_add_u32 s{sSPIN}, s{sSPIN}, 1')
        a(f's_cmp_ge_u32 s{sSPIN}, {SPIN_LIMIT}')
        self.lg.wait_all()
        a(f's_cbranch_scc1 {D}')
        for k in checks:
            a(f's_cmp_lg_u32 s{sPL + k}, s{sTAG}')
            a(f's_cbranch_scc1 {L}')
        a(f'{D}:')
    def inbox(self, box, n, checks=None, work=None):
        self.spoll([(0, n, sINB, box * 512)], range(n) if checks is None else checks, work)
    def va(self, dst, terms, sreg=None, const=0, tmp=None):
        a = self.a; vL = self.vL
        first = True
        for sh, bits, mult in terms:
            full = sh + bits >= 6
            src = vL
            t = dst if first else tmp
            if sh == 0 and full: pass
            elif full: a(f'v_lshrrev_b32 v{t}, {sh}, v{vL}'); src = t
            elif sh == 0: a(f'v_and_b32 v{t}, {(1 << bits) - 1}, v{vL}'); src = t
            else: a(f'v_bfe_u32 v{t}, v{vL}, {sh}, {bits}'); src = t
            p2 = mult & (mult - 1) == 0
            k = mult.bit_length() - 1
            if first:
                if p2 and sreg is not None: a(f'v_lshl_add_u32 v{dst}, v{src}, {k}, s{sreg}'); sreg = None
                elif p2 and k: a(f'v_lshlrev_b32 v{dst}, {k}, v{src}')
                elif p2:
                    if src != dst: a(f'v_mov_b32 v{dst}, v{src}')
                else: a(f'v_mul_u32_u24 v{dst}, {mult}, v{src}')
            else:
                assert p2
                a(f'v_lshl_add_u32 v{dst}, v{src}, {k}, v{dst}')
            first = False
        if sreg is not None: a(f'v_add_u32 v{dst}, s{sreg}, v{dst}')
        if const: a(f'v_add_u32 v{dst}, {const}, v{dst}')
    def push(self, vaddr, soff, nl, vtmp, lab, wave=0):
        a = self.a
        a(f's_cmp_lg_u32 s{sWAVE}, {wave}')
        a(f's_cbranch_scc1 {lab}')
        a(f'v_mov_b32 v{vtmp}, s{sTAG}')
        a(f's_mov_b32 exec_hi, 0')
        if nl < 32: a(f's_mov_b32 exec_lo, {(1 << nl) - 1}')
        self.bs(vtmp, 1, vaddr, rWS, soff, 0, 'sc1', count=False)
        a('s_mov_b64 exec, -1')
        a(f'{lab}:')
    def silu(self, v, t):
        a = self.a
        a(f'v_mul_f32 v{t}, s{sL2E}, v{v}')
        a(f'v_exp_f32 v{t}, -v{t}')
        a(f'v_add_f32 v{t}, 1.0, v{t}')
        a(f'v_rcp_f32 v{t}, v{t}')
        a(f'v_mul_f32 v{v}, v{v}, v{t}')
        self.round1(v)
    def gemv_ops(self, wregs, cregs, acc, t0, t1, packed):
        ops = []
        assert t0 % 2 == 0 and t1 == t0 + 1
        for i, (w, c) in enumerate(zip(wregs, cregs)):
            cp = f'v[{c & ~1}:{(c & ~1) + 1}]'
            for d in range(4):
                tt = t0 + 2 * (d & 1)
                ops.append(f'v_lshlrev_b32 v{tt}, 16, v{w+d}')
                ops.append(f'v_and_b32 v{tt+1}, s{sMASK}, v{w+d}')
                ac = f'v[{acc+2*d}:{acc+2*d+1}]'
                if not packed:
                    for h in range(2): ops.append(f'v_mul_f32 v{acc+2*d+h}, v{tt+h}, v{c}' if i == 0 else f'v_fmac_f32 v{acc+2*d+h}, v{tt+h}, v{c}')
                elif i == 0: ops.append(f'v_pk_mul_f32 {ac}, {cp}, v[{tt}:{tt+1}] op_sel:[{c & 1},0] op_sel_hi:[{c & 1},1]')
                else: ops.append(f'v_pk_fma_f32 {ac}, {cp}, v[{tt}:{tt+1}], {ac} op_sel:[{c & 1},0,0] op_sel_hi:[{c & 1},1,1]')
        for i in range(4): ops.append(f'v_permlane32_swap_b32 v{acc+i}, v{acc+4+i}')
        for i in range(4): ops.append(f'v_add_f32 v{acc+i}, v{acc+i}, v{acc+4+i}')
        for i in range(2): ops.append(f'v_permlane16_swap_b32 v{acc+i}, v{acc+2+i}')
        for i in range(2): ops.append(f'v_add_f32 v{acc+i}, v{acc+i}, v{acc+2+i}')
        for i in range(2): ops.append(f'v_add_f32_dpp v{acc+i}, v{acc+i}, v{acc+i} row_ror:8 row_mask:0xf bank_mask:0xf')
        ops.append(f'v_mov_b32_dpp v{acc}, v{acc+1} quad_perm:[0,1,2,3] row_mask:0xf bank_mask:0xc')
        return ops
    def sum8(self, b):
        self.pk('add', b, b, b + 2); self.pk('add', b + 4, b + 4, b + 6); self.pk('add', b, b, b + 4)
        self.a(f'v_add_f32 v{b}, v{b}, v{b+1}')
    def softmax_pm(self, p, e, out, t, mid=None, part=0, split=0, stage=None):
        a = self.a
        mx, mn, u0, u1, s0, s1 = t, t + 1, t + 2, t + 3, t + 4, t + 6
        if part != 2:
            self.round_list([p + i for i in range(16)])
            a(f'v_max3_f32 v{mx}, v{p}, v{p+1}, v{p+2}')
            a(f'v_min3_f32 v{mn}, v{p}, v{p+1}, v{p+2}')
            for i in range(3, 15, 2):
                a(f'v_max3_f32 v{mx}, v{mx}, v{p+i}, v{p+i+1}')
                a(f'v_min3_f32 v{mn}, v{mn}, v{p+i}, v{p+i+1}')
            a(f'v_max_f32 v{u0}, v{mx}, v{p+15}')
            a(f'v_min_f32 v{u1}, v{mn}, v{p+15}')
            a(f'v_max_f32 v{mx}, v{mx}, v{p+15}')
            a(f'v_min_f32 v{mn}, v{mn}, v{p+15}')
            a(f'v_permlane32_swap_b32 v{mx}, v{u0}')
            a(f'v_permlane32_swap_b32 v{mn}, v{u1}')
            a(f'v_max_f32 v{mx}, v{mx}, v{u0}')
            a(f'v_min_f32 v{mn}, v{mn}, v{u1}')
            self.pk('mul', mx, mx, ('s', sL2E), bc=(1,))
            mn2 = mn
            if not self.nopk: a(f'v_mov_b32 v{u0}, v{mn}'); mn2 = u0
            for i in range(0, 16, 2):
                self.pk('fma', e + i, p + i, ('s', sL2E), mx, bc=(1, 2), neg=(2,))
                self.pk('fma', p + i, p + i, ('s', sL2E), mn2, bc=(1, 2), neg=(0,))
        for i in range(split if part == 2 else 0, 16):
            if mid and i == mid[0]: mid[1]()
            if part == 1 and i == split: return
            a(f'v_exp_f32 v{e+i}, v{e+i}')
            a(f'v_exp_f32 v{p+i}, v{p+i}')
        self.pk('add', s0, e, e + 2); self.pk('add', s1, p, p + 2)
        for i in range(4, 16, 2):
            self.pk('add', s0, s0, e + i); self.pk('add', s1, s1, p + i)
        a(f'v_add_f32 v{u0}, v{s0}, v{s0+1}')
        a(f'v_add_f32 v{u1}, v{s1}, v{s1+1}')
        a(f'v_add_f32 v{mx}, v{s0}, v{s0+1}')
        a(f'v_add_f32 v{mn}, v{s1}, v{s1+1}')
        a(f'v_permlane32_swap_b32 v{mx}, v{u0}')
        a(f'v_permlane32_swap_b32 v{mn}, v{u1}')
        self.pk('add', mx, mx, u0)
        a(f'v_rcp_f32 v{mx}, v{mx}')
        a(f'v_rcp_f32 v{mn}, v{mn}')
        for i in range(0, 16, 2):
            self.pk('mul', e + i, e + i, mx, bc=(1,))
            self.pk('mul', p + i, p + i, mn, bc=(1,))
        for i in range(8): a(f'v_cvt_pk_bf16_f32 v{out+i}, v{e+2*i}, v{e+2*i+1}')
        for i in range(8): a(f'v_cvt_pk_bf16_f32 v{out+8+i}, v{p+2*i}, v{p+2*i+1}')
    def ln_stats(self, xp, t, m_out, sd_out, fill=()):
        a = self.a
        fill = list(fill)
        def pad(n):
            for _ in range(n):
                if fill: a(fill.pop(0))
        s, u = t, t + 4
        a(f'v_mov_b32 v{u}, 0x3f803f80')
        for i in range(8):
            k = 2 * (i & 1)
            a(f'v_dot2_f32_bf16 v{s+k}, v{xp+i}, v{u}, ' + ('0' if i < 2 else f'v{s+k}'))
            a(f'v_dot2_f32_bf16 v{s+k+1}, v{xp+i}, v{xp+i}, ' + ('0' if i < 2 else f'v{s+k+1}'))
        pad(3)
        self.pk('add', s, s, s + 2)
        for ctl in ('quad_perm:[1,0,3,2]', 'quad_perm:[2,3,0,1]', 'row_half_mirror', 'row_ror:8'):
            pad(2 if ctl.endswith('3,2]') else 1)
            self.dpp('v_add_f32', s, s, s, ctl); self.dpp('v_add_f32', s + 1, s + 1, s + 1, ctl)
        pad(2)
        a(f'v_permlane16_swap_b32 v{s}, v{s+1}')
        a(f'v_add_f32 v{u}, v{s}, v{s+1}')
        a(f'v_add_f32 v{s}, v{s}, v{s+1}')
        pad(2)
        a(f'v_permlane32_swap_b32 v{s}, v{u}')
        a(f'v_add_f32 v{s}, v{s}, v{u}')
        a(f'v_mul_f32 v{u}, 0x3a800000, v{s}')
        a(f'v_mul_f32 v{s}, 0x3a800000, v{s}')
        pad(2)
        a(f'v_permlane16_swap_b32 v{s}, v{u}')
        a(f'v_fma_f32 v{sd_out}, -v{s}, v{s}, v{u}')
        a(f'v_cvt_pk_bf16_f32 v{m_out}, 0, v{s}')
        a(f'v_max_f32 v{sd_out}, 0, v{sd_out}')
        self.round1(sd_out)
        a(f'v_add_f32 v{sd_out}, 0x3727c5ac, v{sd_out}')
        self.round1(sd_out)
        a(f'v_sqrt_f32 v{sd_out}, v{sd_out}')
        pad(99)
        self.round1(sd_out)

    def build(self):
        self.front()
        self.gemm1()
        self.middle()
        self.gemm2()
        self.tail()
        self.finish()
        return self

    def vaa(self, dst, terms, sreg=None, const=0): self.va(dst, terms, sreg, const, vT + 5)

    def front(self):
        a, vm, lg, o, S, va = self.a, self.vm, self.lg, self.o, self.S, self.vaa
        E2 = range(0, 16, 2)
        a(f'{NAME}:')
        a(f's_load_dwordx16 {sr(KA, 16)}, s[0:1], 0')
        a(f's_load_dwordx8 {sr(KA + 16, 8)}, s[0:1], 64')
        a(f's_load_dwordx2 {sr(rWS, 2)}, s[0:1], 104')
        a('s_cmp_ge_u32 s2, 256')
        a('s_cbranch_scc1 L_END')
        if self.prof:
            a(f's_memrealtime {sr(sCMP, 2)}')
            a(f's_memtime {sr(sTM, 2)}')
            a('v_mov_b32 v255, 0')
            a('v_mov_b32 v254, 0')
            self.stnames.append('start'); self.nst = 1
        if o.get('exfil'): a(f's_memrealtime {sr(sTM, 2)}')
        a(f"""v_lshrrev_b32 v{vT}, 6, v0
        v_and_b32 v{vL}, 63, v0
        s_nop 0
        v_readfirstlane_b32 s{sWAVE}, v{vT}
        v_lshlrev_b32 v{vL16}, 4, v{vL}""")
        for srd, size in ((rX, 4194304), (rWM, 12582912), (rWS, WS_BYTES), (rW, 6291456), (rWO, 2097152), (rWG, 7340032), (rWU, 7340032), (rWD, 7340032), (rOUT, 4194304)):
            a(f's_mov_b32 s{srd+2}, {size}')
            a(f's_mov_b32 s{srd+3}, 0x20000')
        a(f"""s_mov_b32 s{sSPIN}, 0
        s_mov_b32 s{sMASK}, 0xffff0000
        s_mov_b32 s{sL2E}, 0x3fb8aa3b""")
        if o.get('xflip'): a(f's_xor_b32 s2, s2, {o["xflip"]}')
        S(sX, 'wg & 7'); S(sJ, 'wg >> 3')
        S(sRow, 'wg*8 + w')
        S(sR1, '(x & 4)*2 + (j >> 2)'); S(sHP, '(x & 3)*4 + ((j & 3) ^ q)', q=o.get('hpx', 2))
        S(sCB, '(x & 1)*8 + (j & 7)')
        S(sRT, '(x >> 1)*4 + (j >> 3)')
        S(sINB, '(wg*64 + w)*64 + INB')
        xs_raw, wm, cv, st, acc, xs, mp, hp = AR, AR + 8, AR + 16, AR + 20, AR + 24, AR + 32, AR + 48, AR + 64
        vWM, vCo, vL8, vL32S, vGA, vXT = SP, SP + 1, SP + 2, SP + 3, SP + 4, vT + 6
        self.vWM, self.vL8, self.vL32S, self.vGA = vWM, vL8, vL32S, vGA
        S(T3, '((x >> 1)*256 + j*8 + w)*4096 + (x & 1)*1024')
        va(vT + 4, [(0, 5, 16), (5, 1, 2048)])
        S(T2, '(x*8 + w)*32')
        S(T0, 'T2*6144 + (j ^ 1)*128'); S(T1, 'T0 + 8*12288')
        S(T5, '(rt*8 + w)*32768 + cb*128' if not o.get('fakext') else '((x*16 + (j >> 1))*32768) + (j & 1)*1024 + w*128')
        S(T4, '(((x >> 1)*16 + cb)*16 + w)*512 + AINB')
        va(vWM, [(3, 3, 12288), (0, 3, 16)])
        va(vCo, [(3, 3, 2)], T2)
        va(vXT, [(0, 4, 2048), (4, 2, 16)])
        a('s_waitcnt lgkmcnt(0)')
        if self.prof:
            a(f'v_writelane_b32 v255, s{sTM}, 0')
            a(f'v_writelane_b32 v255, s{sCMP}, 63')
            a(f'v_writelane_b32 v254, s{sCMP}, 0')
        if o.get('exfil'):
            for k in range(3): a(f'v_writelane_b32 v255, s{sTM}, {k}')
        self.stamp('karg')
        a(f's_mov_b64 {sr(rWM, 2)}, {sr(KA + 20, 2)}')
        self.bl(wm, 4, vWM, rWM, T0, 0, 'nt', 'wm')
        self.bl(wm + 4, 4, vWM, rWM, T1, 0, 'nt', 'wm')
        a(f's_load_dword s{sTAG}, {sr(rWS, 2)}, {NONCE}')
        a(f'global_load_ushort v{cv}, v{vCo}, {sr(pC, 2)}'); vm.issue('wm')
        a(f'global_load_ushort v{cv+1}, v{vCo}, {sr(pC, 2)} offset:16'); vm.issue('wm')
        a(f's_mov_b64 {sr(rX, 2)}, {sr(KA, 2)}')
        a(f's_load_dword s{sPL}, {sr(rWS, 2)}, s{sINB} offset:0 glc')
        for q in range(2): a(f's_load_dword s{sPL + 1 + q}, {sr(rWS, 2)}, s{T4} offset:{q * 4096 + 508} glc')
        if o['tlb'] & 1:
            S(T6, '(w & 1)*2097152 + HF')
            a(f's_load_dword s{sPL + 5}, {sr(rWS, 2)}, s{T6} offset:0')
        if o['tsin']:
            S(T6, '(wg*8 + w)*512 + SINB')
            for q in range(2): a(f's_load_dword s{sPL + 3 + q}, {sr(rWS, 2)}, s{T6} offset:{q * 256 + 252} glc')
        if o.get('bar0', 1): a('s_barrier')
        self.bl(xs_raw, 4, vT + 4, rX, T3, 0, '', 'xs')
        self.bl(xs_raw + 4, 4, vT + 4, rX, T3, 512, '', 'xs')
        for srd, k in ((rW, 2), (rWO, 6), (rWG, 12), (rWU, 14), (rWD, 16), (rOUT, 22)):
            a(f's_mov_b64 {sr(srd, 2)}, {sr(KA + k, 2)}')
        a(f"""s_getpc_b64 {sr(sCMP, 2)}
        s_and_b32 s{sCMP}, s{sCMP}, 0xfffffc00""")
        S(T6, '(j*8 + w)*128')
        va(vT, [(5, 1, 32768)], T6)
        a(f'v_min_u32 v{vT}, CODE_KB, v{vT}')
        a(f'global_load_dword v{vT+7}, v{vT}, {sr(sCMP, 2)}'); vm.issue()
        S(sKH, 'w >> 2'); S(sRB, 'w & 3'); S(sW1K, 'w*1024')
        S(sFS, 'x*7 + (j >> 2)'); S(sKQ, 'j & 3')
        va(vT + 2, [(4, 1, 64)]); va(vWd, [(0, 3, 16)])
        a(f'v_xor_b32 v{vWd}, v{vWd}, v{vT+2}'); va(vT + 2, [(3, 3, 6144)]); a(f'v_add_u32 v{vWd}, v{vWd}, v{vT+2}')
        S(sU0, o.get('u0', 'j & 12')); S(sWB, 'w*49152 + hp*128')
        wq = self.wq = [(n, t) for n in range(6) for t in 'kvq']
        def w_next(cnt=1):
            for _ in range(cnt):
                n, t = wq.pop(0)
                if t == 'k':
                    if n < 4:
                        S(sY1, '((j >> 4)*q) ^ n', n=n, q=2 * o['xorw'])
                        S(sY0, '((y1 + u0) & 15)*UR + wb'); S(sY1, 'y1*8192 + w1k')
                    else:
                        S(sY0, '((u0 + n) & 15)*UR + wb', n=n); S(sY1, 'w1k + q', q=n * 8192)
                S(sU, 'y0 + q', q=dict(q=0, k=2048, v=4096)[t]); S('m0', 'y1 + q', q='kvq'.index(t) * REG)
                self.dma(vWd, rW, sU, 0, '', ('W', n))
        wb = list(o['wburst'])
        va(vL8, [(0, 6, 8)])
        va(vL32S, [(0, 6, 32)], None, MISC)
        S(T0, 'w*4 + MISC')
        va(vGA, [(4, 2, 64), (0, 3, 256), (3, 1, 32)], T0)
        self.stamp('issued')
        def xt_load():
            self.bl(XR, 4, vXT, rX, T5, 0, '', 'xt')
            self.bl(XR + 4, 4, vXT, rX, T5, 64, '', 'xt')
        if o['xtat'] == 0: xt_load()
        S(T0, '((((w >> 1)*16 + ((j ^ 1) & 15))*2 + (j >> 4))*8 + x)*512 + AINB')
        w_next(o['wpre'][0])
        vm.wait('wm')
        self.stamp('wmok')
        w_next(o['wpre'][1])
        for i in range(2):
            a(f'v_lshlrev_b32 v{cv+i}, 16, v{cv+i}')
            self.silu(cv + i, vT + i)
        for s in self.gemv_ops([wm, wm + 4], [cv, cv + 1], acc, vT, vT + 1, True): a(s)
        a(f"""s_waitcnt lgkmcnt(0)
        s_mul_i32 s{sTAG}, s{sTAG}, 0x9e3779b1
        s_add_u32 s{sTAG}, s{sTAG}, 0x7f4a7c15""")
        self.dw('ds_write_b32', vGA, acc, 1, L_A1 - MISC)
        self.barrier()
        self.r128(acc, vL32S, L_A1 - MISC); self.r128(acc + 4, vL32S, L_A1 - MISC + 16)
        if o['xtat'] == 1: xt_load()
        lg.wait_all()
        self.sum8(acc)
        a(f'v_mov_b32 v{acc+1}, s{sTAG}')
        a(f"""s_bitcmp1_b32 s{sWAVE}, 0
        s_cselect_b32 exec_lo, 0, -1
        s_cselect_b32 exec_hi, -1, 0""")
        self.bs(acc, 2, vL8, rWS, T0, 0, 'sc1')
        a('s_mov_b64 exec, -1')
        self.stamp('A1pub')
        w_next(wb[0])
        vm.wait('xs')
        self.stamp('xsok')
        u1 = vT + 4
        a(f'v_mov_b32 v{u1}, 0x3f803f80')
        for i in range(8):
            k = 2 * (i & 1)
            a(f'v_dot2_f32_bf16 v{vT+k}, v{xs_raw+i}, v{u1}, ' + ('0' if i < 2 else f'v{vT+k}'))
            a(f'v_dot2_f32_bf16 v{vT+k+1}, v{xs_raw+i}, v{xs_raw+i}, ' + ('0' if i < 2 else f'v{vT+k+1}'))
        S(T0, 'w*32 + L_ST'); va(u1, [(5, 1, 16), (4, 1, 8)], T0)
        self.pk('add', st, vT, vT + 2)
        va(vT + 1, [(0, 4, 16)], None, L_ST)
        va(vT, [(0, 4, 16), (4, 1, 4096)])
        for ctl in ('quad_perm:[1,0,3,2]', 'quad_perm:[2,3,0,1]', 'row_half_mirror', 'row_mirror'):
            self.dpp('v_add_f32', st, st, st, ctl); self.dpp('v_add_f32', st + 1, st + 1, st + 1, ctl)
        S(T0, '((x & 6) + ((j & 24) + w)*8)*4096 + (j & 7)*512 + (x & 1)*256 + SINB')
        a(f"""v_permlane16_swap_b32 v{st}, v{st+1}
        v_add_f32 v{st}, v{st}, v{st+1}
        v_mov_b32 v{st+1}, s{sTAG}""")
        self.dw('ds_write_b64', u1, st, 2)
        self.barrier()
        self.r128(st, vT + 1)
        lg.wait_all()
        a('s_mov_b32 exec_hi, 0')
        self.bs(st, 4, vT, rWS, T0, 0, 'sc1')
        a('s_mov_b32 exec_hi, -1')
        self.stamp('A2pub')
        if o['xtat'] == 2: xt_load()
        w_next(wb[1])
        mg = acc
        def pre_work():
            va(vT, [(0, 5, 16), (5, 1, 4096)])
            S(T1, 'w*4 + L_MP'); va(vT + 1, [(0, 6, 64)], T1)
            va(vT + 2, [(0, 2, 32), (5, 1, 128), (4, 1, 256), (2, 2, 512)], None, L_MP)
            S(T1, '(wg*8 + w)*512 + SINB')
            va(vT + 4, [(0, 5, 16)])
        def x_unpack():
            vm.wait('xt')
            for p, q in ((0, 2), (1, 3), (4, 6), (5, 7)): a(f'v_permlane32_swap_b32 v{XR+p}, v{XR+q}')
            for i in range(8): self.unpack(xs + 2 * i, xs + 2 * i + 1, XR + i)
        self.spoll([(q, 1, T4, q * 4096 + 508) for q in range(2)], range(2), work=pre_work)
        self.stamp('apre')
        if o.get('abar', 0): a('s_barrier')
        st_ld = lambda: self.bl(st, 4, vT + 4, rWS, T1, 0, 'sc1', 'st')
        def st_go():
            self.spoll([(q, 1, T1, q * 256 + 252) for q in range(2)], range(2), work=x_unpack)
            st_ld()
            if o['fbar']: a('s_barrier')
            w_next(wb[2])
        self.try_load(lambda: self.bl(mg, 4, vT, rWS, T4, 0, 'sc1'), [mg + 1, mg + 3], vT + 3, st_go)
        self.stamp('modok')
        a(f'ds_write2_b32 v{vT+1}, v{mg}, v{mg+2} offset0:0 offset1:8'); lg.issue()
        self.barrier()
        for i in (2, 3, 0, 1): self.r128(mp + 4 * i, vT + 2, (i >> 1) * 2048 + (i & 1) * 16, i >> 1)
        S(T0, 'hp*4096 + w*512')
        a(f'v_add_u32 v{vT}, s{T0}, v{vL16}')
        S('m0', 'w*512 + L_WPHI')
        a('s_mov_b32 exec_hi, 0')
        a(f'global_load_lds_dwordx4 v{vT}, {sr(pWPHI, 2)}'); vm.issue()
        a('s_mov_b32 exec_hi, -1')
        w_next(wb[3])
        S(T0, '((rt*16 + cb)*4 + (w >> 1))*4096 + (w & 1)*256 + HF')
        va(vT, [(0, 4, 16), (4, 1, 1024), (5, 1, 512)])
        lg.wait(1); self.sum8(mp + 8)
        self.round1(mp + 8)
        lg.wait(0); self.sum8(mp)
        a(f'v_add_f32 v{mp+8}, 1.0, v{mp+8}')
        self.round2(mp + 8, mp)
        vm.wait('st')
        self.tagcheck([st + 1, st + 3], vT + 3)
        a('s_cbranch_vccz L_STOK')
        q0 = list(vm.q)
        self.poll(st_ld, [st + 1, st + 3], vT + 3)
        vm.q = q0
        a('L_STOK:')
        self.stamp('statok')
        a(f"""v_permlane16_swap_b32 v{st}, v{st+2}
        v_add_f32 v{st+3}, v{st}, v{st+2}
        v_mul_f32 v{st+2}, 0x3a800000, v{st+3}
        v_mul_f32 v{st+3}, 0x3a800000, v{st+3}
        v_permlane16_swap_b32 v{st+2}, v{st+3}
        v_fma_f32 v{st}, -v{st+2}, v{st+2}, v{st+3}
        v_cvt_pk_bf16_f32 v{st+1}, 0, v{st+2}
        v_max_f32 v{st}, 0, v{st}""")
        self.round1(st)
        for i in E2[:4]: self.pk('add', xs + i, xs + i, st + 1, bc=(1,), neg=(1,))
        a(f'v_add_f32 v{st}, 0x3727c5ac, v{st}')
        self.round1(st)
        a(f'v_sqrt_f32 v{st}, v{st}')
        for i in E2[4:]: self.pk('add', xs + i, xs + i, st + 1, bc=(1,), neg=(1,))
        self.round1(st)
        a(f'v_rcp_f32 v{st}, v{st}')
        self.round_list([xs + i for i in range(16)])
        for i in E2: self.pk('mul', xs + i, xs + i, st, bc=(1,))
        self.round_list([xs + i for i in range(16)])
        for h in range(2):
            rg = range(8 * h, 8 * h + 8)
            for i in rg: self.dpp('v_mul_f32', xs + i, mp + 8, xs + i, f'row_newbcast:{i}')
            self.round_list([xs + i for i in rg])
            for i in rg: self.dpp('v_add_f32', xs + i, mp, xs + i, f'row_newbcast:{i}')
            for i in range(4 * h, 4 * h + 4): a(f'v_cvt_pk_bf16_f32 v{hp+i}, v{xs+2*i}, v{xs+2*i+1}')
            self.bs(hp + 4 * h, 4, vT, rWS, T0, 2048 * h, 'sc1', 'hs')
        self.stamp('hst')
        va(vB, [(2, 2, 128), (3, 1, 64), (4, 1, 32), (0, 2, 8), (5, 1, 512)])
        a(f'v_xor_b32 v{vB+1}, 64, v{vB}')
        for q in (1, 2):
            for h in range(2): a(f'v_add_u32 v{vB+2*q+h}, {q*REG}, v{vB+h}')
        va(vT + 1, [(0, 2, 8 * 4096), (2, 2, 4096)])
        S(T0, '((rt >> 3)*4 + (rt & 7)*32)*4096 + (cb >> 1)*64 + (cb & 1)*4 + INB')
        S(sAB, 'r1*262144 + rb*4096 + HF')
        a(f"""s_cmp_ge_u32 s{sJ}, {0 if o.get('noffn') else 28}
        s_cselect_b32 s{rWG+2}, 0, s{rWG+2}
        s_cselect_b32 s{rWU+2}, 0, s{rWU+2}
        s_cselect_b32 s{rWD+2}, 0, s{rWD+2}""")
        vm.wait('hs')
        a('s_barrier')
        self.push(vT + 1, T0, 16, vT + 2, 'L_PB')
        self.stamp('hpub')
        w_next(wb[4])
        vWo, vFG, vFD = vS0, vS1, SP + 5
        def setup():
            S(sWO, 'w*16384 + cb*128' if not o.get('fake84') else 'w*16384 + ((x & 3)*4 + (j & 3))*128'); S(sY2, '(j >> 2)*262144' if o.get('fake84') else '((j & 1)*8 + (j >> 3)*2)*131072' if o['worot'] else '(j & 1)*1048576')
            S(sFG, '(kq*8 + w)*(32*7168) + fs*128'); S(sFD, '(fs*8 + w)*16384 + kq*512')
            S(sM2, '((x & 3)*8 + w)*(32*12288) + (j*2 + (x >> 2))*128 + 4096')
            S(T1, '(w & 1)*64')
            va(vT + 2, [(4, 1, 32)], T1); va(vWo, [(0, 3, 16)])
            a(f'v_xor_b32 v{vWo}, v{vWo}, v{vT+2}'); va(vT + 2, [(3, 3, 2048)]); a(f'v_add_u32 v{vWo}, v{vWo}, v{vT+2}')
            S(T1, '(w & 2)*32'); va(vT + 2, [(4, 1, 32)], T1); va(vFG, [(0, 3, 16)])
            a(f'v_xor_b32 v{vFG}, v{vFG}, v{vT+2}'); va(vT + 2, [(3, 3, 7168)]); a(f'v_add_u32 v{vFG}, v{vFG}, v{vT+2}')
            S(T1, '(w & 1)*128')
            va(vT + 2, [(5, 1, 64)], T1); va(vFD, [(0, 5, 16), (5, 1, 2048)])
            a(f'v_xor_b32 v{vFD}, v{vFD}, v{vT+2}')
            S(T3, 'u0*16384'); a(f'v_add_u32 v{vCo}, s{sAB}, v{vL16}')
            S(T1, 'rb*2048 + L_QH'); a(f'v_add_u32 v0, s{T1}, v{vL16}')
        S(T6, 'wg*4096 + INB'); S(T7, '(w & 3)*128 + T6'); S(T6, 'u0*32 + T6')
        a(f's_cmp_ge_u32 s{sWAVE}, 4\ns_cselect_b32 s{T6}, s{T7}, s{T6}')
        bpoll = self.bpoll = lambda work=None: self.spoll([(0, 2, T6, 0), (2, 2, T6, 64)], range(4), work)
        if o['lateB']:
            def bw():
                w_next(wb[5]); setup(); a(';TOUR')
                a(f's_cmp_ge_u32 s{sWAVE}, 4\ns_cbranch_scc1 L_HELP')
            bpoll(bw)
        else: bpoll(lambda: (w_next(wb[5]), setup(), a(';TOUR')))
        assert len(wq) % 3 == 0 and len(wq) <= (6 if o['xorw'] else 12)

    def gemm1(self):
        a, vm, lg, o, S, va = self.a, self.vm, self.lg, self.o, self.S, self.vaa
        LOOK = o['LOOK']; NB = LOOK + 1; assert NB <= 7
        vWo, vFG, vFD, vHo = vS0, vS1, SP + 5, 0
        self.vWo, self.vFG, self.vFD = vWo, vFG, vFD
        m2w, m2c = AV, AV + 24
        FL = self.FL = AK
        cur = self.cur = [0]
        TOK = [(0, 3, 16), (3, 2, 256), (5, 1, 128)]
        def cvt8(d, s_):
            for i in range(8): a(f'v_cvt_pk_bf16_f32 v{d+i}, v{s_+2*i}, v{s_+2*i+1}')
        self.cvt8 = cvt8
        fq = self.fq = [(m, i) for m in range(3) for i in range(4)]
        held = self.held = ([], [])
        def f_src(m, i, far=0):
            q = (i * 8 * 7168 + far * 4 * 32 * 7168, i * 4096 + far * 4 * 16384)[m == 2]
            S(sU, ('fg', 'fd')[m == 2] + ' + q', q=q & 0xffffffff)
            return (vFG, (rWG, rWU)[m]) if m < 2 else (vFD, rWD)
        def f_lds(m, i): return (L_GU + m * 32768 if m < 2 else L_DN) + i * 1024
        def f_ld(g, k, far, count=True):
            m, i = held[g][k]
            v, r = f_src(m, i, far * (1 - 2 * g))
            a(f'buffer_load_dwordx4 {vr(FL + 8*k + 4*far, 4)}, v{v}, {sr(r, 4)}, s{sU} offen nt')
            if count: vm.issue('ffn')
        sym = self.sym = []
        def ffn_reg(n=1):
            for _ in range(n):
                m, i = fq.pop(0)
                r0 = 8 * len(held[1]) + 4 * len(sym); assert r0 < 64 and (r0 < 32 or o['m2c'] >= 3)
                assert o['m2c'] != 4 or r0 < 32 or 'm2pub' in self.marks
                v, r = f_src(m, i)
                self.bl(FL + r0, 4, v, r, sU, 0, 'nt', 'ffr')
                sym.append((m, i, FL + r0))
        def ffn_dma(n=1):
            for _ in range(n):
                m, i = fq.pop(0)
                v, r = f_src(m, i)
                S('m0', 'w1k*4 + q', q=f_lds(m, i))
                self.dma(v, r, sU, 0, 'nt', 'ffn' if m < 2 or not o['dnsplit'] else 'fdn')
        self.ffn_reg, self.ffn_dma, self.f_lds = ffn_reg, ffn_dma, f_lds
        for _ in range(o['fA']): held[1].append(fq.pop(0))
        def m2_ld(i):
            if i == 0:
                S(sU, '((x & 3)*8 + w)*64'); self.va(m2c + 4, [(3, 3, 2)], sU, 0, m2c + 5)
                for k in range(4): a(f'global_load_ushort v{m2c+k}, v{m2c+4}, {sr(pC, 2)} offset:{16*k}'); vm.issue('m2')
            S(sU, 'm2 + q', q=i * 8 * 12288)
            self.bl(m2w + 4 * i, 4, self.vWM, rWM, sU, 0, 'nt', 'm2')
        wslot = lambda p: p
        def wo_dma(p, back=0):
            S(sU, '(y2 ^ q) + wo' + (' - 65536' if back else ''), q=p * 131072)
            S('m0', 'w1k + q', q=wslot(p) * 8192 - 4096 * back)
            self.dma(vWo, rWO, sU, 0, '', 'wo')
        self.wo_dma = wo_dma
        def poison(backs, t):
            a(f'v_mov_b32 v{t}, -1\nv_mov_b32 v{t+1}, -1\nv_mov_b32 v{t+2}, -1\nv_mov_b32 v{t+3}, -1')
            for back in backs:
                S(T6, '((rt*8 + w - q)*16 + cb)*256 + ST', q=4 * back); self.va(t + 4, [(0, 6, 4)])
                self.bs(t, 1, t + 4, rWS, T6, 0, 'sc1')
            S(T6, 'rt*16384 + cb*512 + XS'); self.va(t + 4, [(0, 5, 16), (5, 1, 8192)], None, 0, t + 5)
            a(f's_cmp_lg_u32 s{sWAVE}, 5\ns_cbranch_scc1 L_NOPO')
            self.bs(t, 4, t + 4, rWS, T6, 0, 'sc1', count=False)
            a('L_NOPO:')
        self.poison = poison
        def kv_prep():
            vPA, vPB, ones = AK + 28, AK + 29, AK + 24; assert o['fA'] <= 3
            self.va(vPB, [(0, 1, 8), (2, 2, 16), (4, 1, 64), (1, 1, 128), (5, 1, 256)], None, 0, vPA)
            S(T0, 'w*4096 + L_PHK'); a(f'v_add_u32 v{vPA}, s{T0}, v{vPB}')
            S(T0, 'kh*8192 + L_HV'); a(f'v_add_u32 v{vPB}, s{T0}, v{vPB}')
            for i in range(4): a(f'v_mov_b32 v{ones+i}, 0x3f803f80')
            S(T0, '((hp*8 + w)*32 + r1)*1024 + KVP'); S(T2, 'T0 + 16384')
            S(T3, '(hp*8 + w)*1024 + ZP'); S(T1, 'r1*64 + T3')
        seq = []
        for sg in range(36): seq += [(t, h, sg) for t in 'kqv' for h in range(2)]
        for sg in range(36, 40): seq += [('k', h, sg) for h in range(2)]
        for sg in range(36, 40): seq += [(t, h, sg) for t in 'qv' for h in range(2)]
        for h in range(2): seq += [('k', h, sg) for sg in range(40, 64)]
        for t in 'vq':
            for sg in range(40, 64): seq += [(t, h, sg) for h in ((1, 0) if (t, sg) == ('q', 63) else (0, 1))]
        bA, bH, bQ = o['bA'], o['bH'], 335
        assert bA >= 271
        bars = [24 * k - 1 for k in range(1, 10)] + [223, 239, 253, bA, bH, bQ]
        first, last = {}, {}
        for n, (t, h, sg) in enumerate(seq):
            first.setdefault(f'{t}{sg >> 2}', n); last[f'{t}{sg >> 2}'] = n; last[('A', sg)] = n
        if not o['lateB']: a(f's_cmp_ge_u32 s{sWAVE}, 4\ns_cbranch_scc1 L_HELP')
        a(f's_setprio {o["prio"]}')
        q_hok = list(vm.q)
        ACC = dict(k=AK, v=AV, q=AQ)
        nxt = [0]; late = []
        def a_load():
            while late: a(late.pop(0))
            sg = nxt[0]; nxt[0] += 1
            assert sg < 16 or cur[0] > bars[0]
            if o.get('noA') and sg >= 12: return
            self.bl(AR + 4 * (sg % 24), 4, SP + 1, rWS, T3, (sg % 4) * 1024, 'sc1', ('A', sg))
            if sg % 4 == 3: late.extend([f's_add_u32 s{T3}, s{T3}, 16384', f's_and_b32 s{T3}, s{T3}, 0x3ffff'])
        def b_read(n):
            t, h, sg = seq[n]
            s = sg & 3
            off = ((sg >> 2) % 6) * 8192 + (s >> 1) * 4096 + (s & 1) * 1024
            d = RING + 4 * (n % NB); v = vB + 2 * 'kvq'.index(t) + h
            self.tr(d, v, off, ('B', n)); self.tr(d + 2, v, off + 2048, ('B', n))
        self.nopk = True
        stk, stv = Stream(self), Stream(self)
        for h in range(2):
            for q in range(2):
                stk.cap(lambda: [a(f'v_cvt_pk_bf16_f32 v{AK+16*h+4*q+i}, v{AK+16*h+8*q+2*i}, v{AK+16*h+8*q+2*i+1}') for i in range(4)])
                stk.add(lambda h=h, q=q: self.dw('ds_write_b128', vHo, AK + 16 * h + 4 * q, 4, q * 1024, f'kh{h}'), o['wcost'], 1)
            stk.mark(f'kh{h}')
            if h == 0:
                stk.cap(lambda: a(f'v_subrev_u32 v{vHo}, {L_QH - L_HV}, v{vHo}'))
                stk.until(288 + o['kdel'])
        stk.until(bH + 1)
        stk.cap(lambda: (S(T1, 'rb*2048 + L_HV'), self.va(vHo, TOK, T1, 0, vT)))
        for h in range(2):
            for q in range(2):
                stv.cap(lambda: [a(f'v_cvt_pk_bf16_f32 v{AV+16*h+4*q+i}, v{AV+16*h+8*q+2*i}, v{AV+16*h+8*q+2*i+1}') for i in range(4)])
                stv.add(lambda h=h, q=q: self.dw('ds_write_b128', vHo, AV + 16 * h + 4 * q, 4, h * 8192 + q * 1024, 'vst'), o['wcost'], 1)
        stv.cap(kv_prep)
        if o['m2c'] == 0:
            stv.sleep(4)
            stv.add(lambda: lg.wait('vst'))
            for i in range(4): stv.add(lambda i=i: m2_ld(i), 0, 1); stv.sleep(o.get('fgap', 4))
        while nxt[0] < o['A00']: a_load()
        vm.wait(('W', 3 if o['xorw'] else 1))
        a('s_barrier')
        self.stamp('hok')
        if not nxt[0]: a_load()
        for n in range(LOOK): b_read(n)
        while nxt[0] < o['A0']: a_load()
        seen = set(); lpend = []; owe = [0]
        Apos = list(o['Apos']); assert o['A0'] + sum(Apos) == 64
        for n in range(384):
            t, h, sg = seq[n]; cur[0] = n
            if ('A', sg) not in seen:
                assert sg < nxt[0]
                vm.wait(('A', sg)); seen.add(('A', sg))
            lg.wait(('B', n))
            d = ACC[t] + 16 * h
            a(f'v_mfma_f32_32x32x16_bf16 {vr(d, 16)}, {vr(RING + 4*(n % NB), 4)}, {vr(AR + 4*(sg % 24), 4)}, ' + (vr(d, 16) if sg else '0'))
            if self.prof and o.get('ls'):
                l0, l1, lst = o['ls']
                if lpend and n >= lpend[0][0]:
                    _, r_, k_ = lpend.pop(0); a(f'v_writelane_b32 v255, s{r_}, {k_}')
                if l0 <= n < l1 and (n - l0) % lst == 0:
                    r_ = sPL + 2 * (self.nst % 4)
                    a.items.append(('raw', f'    s_memtime {sr(r_, 2)}')); lpend.append((n + 4, r_, self.nst)); self.stnames.append(f'n{n}'); self.nst += 1
            def a_try():
                p, r = divmod(n, 24)
                ao = o['aoff'] if p else 0; r -= ao
                if n < 240 and r >= 0 and (r + 1) * Apos[p] // (24 - ao) > r * Apos[p] // (24 - ao): owe[0] += 1
                if owe[0] and (nxt[0] < 24 or last[('A', nxt[0] - 24)] <= n): a_load(); owe[0] -= 1
                elif late: a(late.pop(0))
            if o['apos'] == 0: a_try()
            bud = [o['kbud'], 1]
            if n >= 264 + o['kdel']: stk.pull(bud, bud[0])
            bud = [o['vbud'], 1]
            if n > bQ + 2: stv.pull(bud, bud[0])
            if n + LOOK < 384: b_read(n + LOOK)
            if o['apos'] == 1: a_try()
            if n in bars:
                if n in (bA, bH):
                    assert f'kh{int(n == bH)}' in self.marks
                    lg.wait(f'kh{int(n == bH)}')
                    if 'prio2' in o and n == bA: a(f's_setprio {o["prio2"]}')
                if not (o.get('noB') and n < 200): a('s_barrier')
                if o.get('gst'): self.stamp(f'b{n}')
        assert not (stk.q or stv.q) and nxt[0] == 64
        self.stamp('gemm1')
        vq, wph = AR + 16, AR + 24
        S(T4, 'rb*2048 + L_QH'); a(f'v_add_u32 v{vHo}, s{T4}, v{vL16}')
        va(vT, [(2, 2, 64), (4, 1, 32), (0, 2, 8), (5, 1, 256)], None, L_WPHI)
        for s in range(2):
            for u in range(2): self.tr(wph + 4 * s + 2 * u, vT, s * 1024 + u * 512)
        cvt8(AR, AQ + 16)
        for q in range(2): self.dw('ds_write_b128', vHo, AR + 4 * q, 4, q * 1024)
        cvt8(vq, AQ)
        if o['m2c'] == 1:
            for i in range(4): m2_ld(i)
        a('s_setprio 0')
        a('s_branch L_JOIN')
        a('L_HELP:')
        vm.q = list(q_hok); lg.reset()
        vm.wait(('W', 3 if o['xorw'] else 1))
        a('s_barrier')
        vis = {}
        pace = [1]
        def w_sec(t, n):
            if o.get('noW'): return
            for back in (1, 0):
                S(sU, '((u0 + n) & 15)*UR + wb + q', n=n, q=(dict(q=0, k=2048, v=4096)[t] - back * 4 * 49152) & 0xffffffff)
                S('m0', 'w1k + q', q='kvq'.index(t) * REG + (n % 6) * 8192 - back * 4096)
                self.dma(vWd, rW, sU, 0, '', ('W', t, n))
                if o['wpace'] and pace[0]: a(f's_waitcnt vmcnt({o["wpace"]})')
        for n, t in self.wq: w_sec(t, n)
        if o['lateB']:
            lg.wait_all(); self.bpoll()
        ka, wp2, pa, pb, ee, vPW = AR, AR + 16, AR + 32, AR + 48, AR + 64, AR + 80
        va(vT, [(2, 2, 64), (4, 1, 32), (0, 2, 8), (5, 1, 256)], None, L_WPHI)
        for hs in range(4):
            for u in range(2): self.tr(wp2 + 4 * hs + 2 * u, vT, hs * 1024 + u * 512)
        S(T1, 'rb*1024 + L_PHK'); va(vPW, TOK, T1)
        def touch(boxes):
            a('s_waitcnt lgkmcnt(0)')
            for q, b in enumerate(boxes):
                a(f's_load_dword s{sPL + 2*q}, {sr(rWS, 2)}, s{sINB} offset:{b * 512} glc')
                a(f's_load_dword s{sPL + 2*q + 1}, {sr(rWS, 2)}, s{sINB} offset:{b * 512 - 256} glc')
        wsched = {int(k): v.split() for k, v in o['wsched'].items()}
        for k in range(1, 5): wsched[k] = [f'{t}{k + 5}' for t in 'kqv'] + wsched.get(k, [])
        need = {}
        for u in first:
            k = len([b for b in bars if b < first[u] - LOOK])
            if k: need.setdefault(k, []).append(u)
        done = {f'{t}{n}' for n in range(6) for t in 'kvq'}
        def h_bar(k):
            if k < 5: vm.wait(('W', k + 1))
            for u in need.get(k, []):
                assert u in done, (u, k)
                vm.wait(('W', u[0], int(u[1:])))
            if not (o.get('noB') and k < 9): a('s_barrier')
            for u in wsched.get(k, []):
                assert last[f'{u[0]}{int(u[1:]) - 6}'] <= bars[k - 1], (u, k)
                w_sec(u[0], int(u[1:])); done.add(u)
        hm, hc, ha, ht = AV, AQ, AQ + 8, AQ + 16
        if o.get('fP'): S(T4, o['fP'])
        if o['m2c'] == 4:
            hc, ha, ht = RING + 8, AR + 44, vT + 4
            def m2h(i):
                S(sU, 'T6 + q', q=i * 8 * 12288)
                self.bl(hm + 4 * i, 4, self.vWM, rWM, sU, 0, 'nt')
        if o['m2c'] >= 3:
            S(T5, o['m2k3'])
            S(sU, '((x & 3)*4 + w - 4)*128'); self.va(ht, [(3, 3, 2)], sU)
            for i in range(8): a(f'global_load_ushort v{hc+i}, v{ht}, {sr(pC, 2)} offset:{16*i}'); vm.issue('c2')
            S(T6, '((x & 3)*4 + w - 4)*(64*12288) + (j*2 + (x >> 2))*128 + 4096')
        for k in range(1, 14):
            if k == 13: lg.wait_all()
            if o['m2c'] == 3 and k == o['m2e'] + 1: lg.wait_all()
            h_bar(k)
            if o['m2c'] == 4 and k == o['m2k0']:
                for i in range(o['m2n0']): m2h(i)
            if o['m2c'] == 4 and k == 3:
                vm.wait('c2')
                for i in range(8):
                    a(f'v_lshlrev_b32 v{hc+i}, 16, v{hc+i}')
                    self.silu(hc + i, ht + (i & 1))
            if o['m2c'] == 3:
                nb = o['m2nb']
                for b in range(nb):
                    if k <= o['m2g'] - o.get('m2lag', 2) and k - b * o['m2db'] >= 1:
                        a(f's_cmp_lg_u32 s{T5}, {k - b * o["m2db"]}\ns_cbranch_scc1 L_NM2_{k}_{b}')
                        for i in range(b * 8 // nb, (b + 1) * 8 // nb):
                            S(sU, 'T6 + q', q=i * 8 * 12288)
                            a(f'buffer_load_dwordx4 {vr(hm + 4*i, 4)}, v{self.vWM}, {sr(rWM, 4)}, s{sU} offen nt')
                        a(f'L_NM2_{k}_{b}:')
                if k == 3:
                    vm.wait('c2')
                    for i in range(8):
                        a(f'v_lshlrev_b32 v{hc+i}, 16, v{hc+i}')
                        self.silu(hc + i, ht + (i & 1))
                g0 = o['m2g']
                ke = o['m2e']
                if g0 <= k <= ke:
                    if k == g0:
                        vm.wait(('W', 'k', k + 4 if o.get('m2lag', 2) == 2 else k + 5))
                        mops = self.gemv_ops([hm + 4 * i for i in range(8)], [hc + i for i in range(8)], ha, ht, ht + 1, False)
                    if o.get('gprio'): a('s_setprio 3')
                    for _ in range(len(mops) if k == ke else 144 // (ke + 1 - g0)): a(mops.pop(0))
                    if o.get('gprio'): a('s_setprio 0')
                    if k == ke: self.dw('ds_write_b32', self.vGA, ha, 1, L_M2 - MISC)
                if k == ke + 1:
                    a(f"""s_cmp_lg_u32 s{sWAVE}, 4
                    s_cbranch_scc1 L_M2F
                    ds_read_b128 {vr(ha, 4)}, v{self.vL32S} offset:{L_M2 - MISC + 16}""")
                    S(T0, '((j*2 + (x >> 2))*4 + (x & 3))*512 + MODP2')
                    a(f"""s_waitcnt lgkmcnt(0)
                    v_add_f32 v{ha}, v{ha}, v{ha+1}
                    v_add_f32 v{ha+2}, v{ha+2}, v{ha+3}
                    v_mov_b32 v{ha+1}, s{sTAG}
                    v_add_f32 v{ha}, v{ha}, v{ha+2}""")
                    self.bs(ha, 2, self.vL8, rWS, T0, 0, 'sc1', count=False)
                    a('L_M2F:')
            if o.get('fP') and k <= 8:
                a(f's_cmp_lg_u32 s{T4}, {k}\ns_cbranch_scc1 L_NFP_{k}')
                for i in range(o.get('fPn', o['fA'])):
                    for far in range(2): f_ld(1, i, far, False)
                a(f'L_NFP_{k}:')
            if k == 2 and o['poisat'] == 0: poison((0, 1), AR + 88); S(T6, '((x & 3)*4 + w - 4)*(64*12288) + (j*2 + (x >> 2))*128 + 4096')
            if k in (1, 3, 5) and o.get('touch', 1): touch({1: (1, 7), 3: (2, 3), 5: (5, 6)}[k])
            if k == o['tlbk'] and o['tlb'] & 2:
                a(f's_cmp_lg_u32 s{sWAVE}, 7\ns_cbranch_scc1 L_NTLB\ns_waitcnt lgkmcnt(0)')
                S(T0, '(j & 15)*2097152'); S(T1, '(j & 3)*2097152'); S(T2, '(j & 1)*2097152')
                a(f's_load_dword s{sPL}, {sr(rWS, 2)}, s{T0} offset:0')
                for q, r in enumerate((rWG, rWU, rWD)): a(f's_load_dword s{sPL + 1 + q}, {sr(r, 2)}, s{T1} offset:0')
                a(f's_load_dword s{sPL + 4}, {sr(rOUT, 2)}, s{T2} offset:0')
                a(f's_load_dword s{sPL + 5}, {sr(rWO, 2)}, 0')
                a('L_NTLB:')
            if k == 4 and o.get('tm2'):
                S(T0, '((j*2 + (x >> 2))*4 + (x & 3))*512 + (w - 4)*128 + MODP2')
                a('s_waitcnt lgkmcnt(0)')
                for q in range(2): a(f's_load_dword s{sPL + q}, {sr(rWS, 2)}, s{T0} offset:{q * 64} glc')
            if k == 6 and o['tz']:
                S(T0, '(hp*8 + w - 4)*1024 + r1*64 + ZP'); S(T1, '(rt*16 + cb)*64 + UP')
                a('s_waitcnt lgkmcnt(0)')
                for q in range(2): a(f's_load_dword s{sPL + q}, {sr(rWS, 2)}, s{T0} offset:{q * 4096} glc')
                a(f's_load_dword s{sPL + 2}, {sr(rWS, 2)}, s{T1} offset:0 glc')
            if k == 12: kv_prep()
            if k == 8 and o.get('touch', 1):
                S(T0, 'fs*8192 + (w - 4)*256 + HGR')
                a('s_waitcnt lgkmcnt(0)')
                for q in range(4): a(f's_load_dword s{sPL + q}, {sr(rWS, 2)}, s{T0} offset:{q * 2048 + 1024 + 252} glc')
        pace[0] = 0
        def logits(h, pp):
            if o.get('hprio'): a(f's_setprio {o["hprio"]}')
            for q in range(2): self.r128(ka + 4 * q, vHo, q * 1024, ('kh', q))
            if h == 0: a(f'v_subrev_u32 v{vHo}, {L_QH - L_HV}, v{vHo}')
            for q in range(2):
                lg.wait(('kh', q))
                a(f'v_mfma_f32_32x32x16_bf16 {vr(pp, 16)}, {vr(wp2 + 8*h + 4*q, 4)}, {vr(ka + 4*q, 4)}, ' + (vr(pp, 16) if q else '0'))
            if o.get('hprio') and not o.get('hlong'): a('s_setprio 0')
        logits(0, pa)
        self.stamp('klog')
        hs = Stream(self)
        for h, pp in ((0, pa), (1, pb)):
            hs.cap(lambda: self.softmax_pm(pp, ee, ee, vT))
            k = max(i for i, it in enumerate(hs.q) if it[0] == 4.75) - 8
            tailq = hs.q[k + 1:]; hs.q = hs.q[:k + 1]
            wr = lambda fb, h=h: (0, 0, lambda: self.dw('ds_write_b128', vPW, ee + 4 * fb, 4, h * 16384 + fb * 4096, ('phk', h)))
            hs.q += [wr(0)] + tailq[:4] + [wr(1), wr(2)] + tailq[4:] + [wr(3)]
            if h == 0:
                n1 = len(hs.q)
                hs.add(lambda: None)
        hs.q.insert(n1 + 34, (0, 0, lambda: lg.wait(('phk', 0))))
        ex = {}
        def put(i, fn):
            while i in ex: i += 1
            ex[i] = fn
        nq = int(n1 * o['hq'])
        put(nq, lambda: h_bar(15))
        nh = int(n1 * o['hh'])
        put(nh, lambda: (h_bar(14), logits(1, pb)))
        g1, g2 = o['hgap']
        if o.get('hpf'):
            put(int(n1 * o['hpf'][0]), lambda: a('s_setprio 3')); put(int(n1 * o['hpf'][1]), lambda: a('s_setprio 0'))
        ff = [(lambda k=k, far=far: f_ld(1, k, far)) for k in range(o['fA']) for far in range(2) if not (o.get('fP') and k < o.get('fPn', 9))]
        pre = [(lambda k=k: m2_ld(k)) for k in range(4)] if o['m2c'] < 2 else []
        if o['m2c'] == 4:
            for i in range(o['m2n0'], 8): put(3 + o['m2gap'] * (i - o['m2n0']), lambda i=i: m2h(i))
            self.m2h = (hm, hc, ha, ht)
        npre = o['fpre'] - len(pre)
        pre += ff[:npre]; ff = ff[npre:]
        for k, fn in enumerate(pre): put(nh + 5 + g1 * k, fn)
        wl = self.wo_left = [6, 7, 8, 9, 10, 11] + [12, 13, 14, 15] + [0, 1, 2, 3, 4, 5]
        post = []
        for k in range(o['woA']): post += [lambda: wo_dma(wl[0], 1), lambda: wo_dma(wl.pop(0))]
        post = post[:8] + ff + post[8:] if o.get('wofirst', 1) else ff + post
        for k, fn in enumerate(post): put(nq + 5 + g2 * k, fn)
        for i, (v_, l_, fn) in enumerate(hs.q):
            if i in ex: ex.pop(i)()
            fn()
        for i in sorted(ex): ex[i]()
        self.nopk = False
        S(T4, 'rb*2048 + L_QH'); a(f'v_add_u32 v{vHo}, s{T4}, v{vL16}')
        assert wph == wp2 + 8
        if o.get('hprio'): a('s_setprio 0')
        self.stamp('ksm')
        a('L_JOIN:')
        vm.q = ['m2'] * (8 if o['m2c'] < 2 else 0); lg.q = [None]
        self.m2_ld = m2_ld
        self.vHo = vHo

    def middle(self):
        a, vm, lg, o, S, va = self.a, self.vm, self.lg, self.o, self.S, self.vaa
        vL8, vL32S, vGA, vHo, ffn_reg = self.vL8, self.vL32S, self.vGA, self.vHo, self.ffn_reg
        pp, ee, ph, vq, wph = AQ, AQ + 16, AR, AR + 16, AR + 24
        fA, fB, kvd, zd, ones = AR + 32, AR + 48, AR + 80, AR + 88, AK + 24
        kp, zz, zf, kf, k2 = AR + 32, AR + 40, AR + 44, AR + 60, AR + 76
        m2w, m2a, m2c, m2t = AV, AV + 16, AV + 24, AV + 28
        vPA, vPB, vPC, vKP, vXF = AK + 28, AK + 29, RING + 18, RING + 19, RING + 20
        md, wr1 = RING, RING + 4
        self.md, self.wr1 = md, wr1
        wl = self.wo_left
        wo1 = lambda: self.wo_dma(wl.pop(0))
        fw = o['fwin']
        self.barrier()
        self.stamp('phik')
        def kvm(u):
            lg.wait(('kv', u))
            for db in range(2):
                a(f'v_mfma_f32_16x16x32_bf16 {vr(kvd + 4*db, 4)}, {vr(fA + 4*u, 4)}, {vr(fB + 8*u + 4*db, 4)}, ' + ('0' if u == 0 else vr(kvd + 4*db, 4)))
            a(f'v_mfma_f32_16x16x32_bf16 {vr(zd, 4)}, {vr(fA + 4*u, 4)}, {vr(ones, 4)}, ' + ('0' if u == 0 else vr(zd, 4)))
        for ts in range(4):
            self.tr(fA + 4 * ts, vPA, ts * 1024, ('kv', ts)); self.tr(fA + 4 * ts + 2, vPA, ts * 1024 + 512, ('kv', ts))
            for db in range(2):
                for rd in range(2): self.tr(fB + 8 * ts + 4 * db + 2 * rd, vPB, ts * 2048 + db * 1024 + rd * 512, ('kv', ts))
            if ts >= 2: kvm(ts - 2)
        kvm(2); kvm(3)
        a(f"""s_cmp_lt_u32 s{sWAVE}, 4
        s_cbranch_scc1 L_NOQX
        ds_read_b128 {vr(vq, 4)}, v{vHo}
        ds_read_b128 {vr(vq + 4, 4)}, v{vHo} offset:1024
        L_NOQX:""")
        self.bs(kvd, 4, vL16, rWS, T0, 0, 'sc1', 'kvs')
        self.bs(kvd + 4, 4, vL16, rWS, T2, 0, 'sc1', 'kvs')
        a('s_mov_b32 exec_lo, 0x00010001')
        a('s_mov_b32 exec_hi, 0x00010001')
        self.bs(zd, 4, vL, rWS, T1, 0, 'sc1', 'kvs')
        a('s_mov_b64 exec, -1')
        lg.wait_all()
        a(f'v_mfma_f32_32x32x16_bf16 {vr(pp, 16)}, {vr(wph, 4)}, {vr(vq, 4)}, 0')
        a(f'v_mfma_f32_32x32x16_bf16 {vr(pp, 16)}, {vr(wph + 4, 4)}, {vr(vq + 4, 4)}, {vr(pp, 16)}')
        self.stamp('kvst')
        if o['wo0']:
            a('s_barrier')
            for _ in range(o['wo0']): assert wl[0] >= 6; wo1()
        if o['poisat'] == 1: self.poison((0,), AR + 84)
        if o['m2c'] == 2:
            for i in range(4): self.m2_ld(i)
        va(vPC, [(0, 3, 32 * 4096), (3, 1, 4 * 4096)])
        S(T4, '(wg & 0x1b)*4096 + (r1 >> 1)*64 + (r1 & 1)*4 + INB + 512')
        va(vKP, [(3, 3, 1024), (0, 3, 16)])
        va(vXF, [(0, 3, 16), (5, 1, 8)])
        qm, qs = o['qmid'], o['qsplit']
        self.softmax_pm(pp, ee, ph, vT, part=1, split=qm)
        vm.wait('kvs')
        a('s_barrier')
        self.push(vPC, T4, 16, vPB, 'L_PC')
        self.stamp('kvpub')
        if o['poisat'] == 2: self.poison((0,), AR + 84)
        self.weave(lambda: [a(f'v_exp_f32 v{r+i}, v{r+i}') for i in range(qm, qs) for r in (ee, pp)], [wo1] * o['wowin'][0])
        S(T0, '(hp*16 + r1)*16384 + w*128 + KVP'); S(T1, 'T0 + 8192')
        S(T2, '(hp*16 + r1)*1024 + w*128 + KIN'); S(T4, 'T4 + 6*512')
        def sel_prep2():
            vDr, vHs, vSt = RING + 7, RING + 26, RING + 27
            S(T6, 'w*64')
            va(vDr, [(2, 1, 512), (3, 1, 4096), (5, 1, 2048), (2, 2, 64), (4, 1, 32), (0, 2, 8)])
            a(f'v_xor_b32 v{vDr}, s{T6}, v{vDr}'); a(f'v_add_u32 v{vDr}, {L_DN}, v{vDr}')
            va(vHs, [(0, 4, 16), (5, 1, 8)])
            va(vSt, [(0, 4, 16), (4, 2, 4)])
        def sel_prep():
            vGr, vXs = RING + 6, RING + 24; assert o['AD2'] <= 8
            S(T6, '(w >> 2)*32768 + (w & 3)*32 + L_GU')
            va(vGr, [(4, 2, 8192), (2, 2, 128), (3, 2, 32), (0, 2, 8)]); a(f'v_xor_b32 v{vGr}, s{T6}, v{vGr}')
            S(T6, 'kq*2048 + XS'); va(vXs, [(0, 3, 16), (4, 2, 512)], T6)
            va(vXs + 1, [(0, 4, 512)], None, XS + 256)
            S(sZ0, 'fs*8192 + HGR'); S(sZ1, '(kq*8 + w)*256 + z0')
            S(sZ2, '((rt*8 + w)*16 + cb)*256 + ST')
            S(sZ3, '((rt >> 2)*2 + (rt & 3)*64)*4096 + (cb >> 1)*64 + (cb & 1)*4 + INB + 1536')
            S(sROW0, '(rt*8 + w)*32768 + cb*128'); S(sROW1, 'row0 + 16384')
        self.inbox(1, 2, work=lambda: (self.weave(lambda: self.softmax_pm(pp, ee, ph, vT, part=2, split=qs), [wo1] * o['wowin'][1]), self.stamp('cw')))
        a('s_barrier')
        self.stamp('kvok')
        self.bl(kp, 4, vKP, rWS, T0, 0, 'sc1', 'kp')
        self.bl(kp + 4, 4, vKP, rWS, T1, 0, 'sc1', 'kp')
        self.bl(zz, 4, vL16, rWS, T3, 0, 'sc1', 'z')
        if fw[0]: a('s_barrier')
        ffn_reg(fw[0])
        S(T1, 'w*32 + L_ZF'); va(vT + 2, [(0, 2, 8), (5, 1, 4)], T1)
        S(T1, 'w*1024 + L_KVF'); va(vT + 1, [(0, 4, 16), (5, 1, 512), (4, 1, 8)], T1)
        S(T1, 'kh*128 + L_ZF'); va(vT + 3, [(5, 1, 16)], T1)
        S(T1, 'kh*4096 + L_KVF'); a(f'v_add_u32 v{vPA}, s{T1}, v{vL16}')
        M2 = o['m2c'] < 3
        m2ops = []; k = o.get('m2k', 24)
        if M2:
            vm.wait('m2')
            for i in range(4):
                a(f'v_lshlrev_b32 v{m2c+i}, 16, v{m2c+i}')
                self.silu(m2c + i, m2t + (i & 1))
            m2ops = self.gemv_ops([m2w + 4 * i for i in range(4)], [m2c + i for i in range(4)], m2a, m2t, m2t + 1, True)
        for s_ in m2ops[:k]: a(s_)
        if o['m2c'] == 4:
            hm, hc, ha, ht = self.m2h
            hops = self.gemv_ops([hm + 4 * i for i in range(8)], [hc + i for i in range(8)], ha, ht, ht + 1, True)
            a(f's_cmp_lt_u32 s{sWAVE}, 4\ns_cbranch_scc1 L_HG1')
            for s_ in hops: a(s_)
            a(f'ds_write_b32 v{vGA}, v{ha} offset:{L_M2 - MISC}\nL_HG1:')
        def red4(r, ctls):
            for i in range(2): a(f'v_permlane32_swap_b32 v{r+i}, v{r+2+i}')
            self.pk('add', r, r, r + 2)
            for ctl in ctls:
                for i in range(2): self.dpp('v_add_f32', r + i, r + i, r + i, ctl)
            for i in range(2): a(f'v_mov_b32 v{r+2+i}, v{r+i}')
            for i in range(2): a(f'v_permlane16_swap_b32 v{r+i}, v{r+2+i}')
            self.pk('add', r, r, r + 2)
            a(f'v_cvt_pk_bf16_f32 v{r}, v{r}, v{r+1}')
        vm.wait('kp')
        self.pk('add', kp, kp, kp + 4); self.pk('add', kp + 2, kp + 2, kp + 6)
        red4(kp, ['row_ror:8'])
        a(f"""v_mov_b32 v{kp+1}, s{sTAG}
        s_mov_b32 exec_lo, 0xff
        s_mov_b32 exec_hi, 0xff""")
        self.bs(kp, 2, vXF, rWS, T2, 0, 'sc1')
        a('s_mov_b64 exec, -1')
        if o['C2dir'] == 0:
            self.barrier()
            self.push(vPC, T4, 16, vPB, 'L_PC2')
        if o['m2c'] == 4:
            a(f"""s_cmp_lg_u32 s{sWAVE}, 3
            s_cbranch_scc1 L_M2F
            ds_read_b128 {vr(ha, 4)}, v{vL32S} offset:{L_M2 - MISC + 16}""")
            S(T5, '((j*2 + (x >> 2))*4 + (x & 3))*512 + MODP2')
            a(f"""s_waitcnt lgkmcnt(0)
            v_add_f32 v{ha}, v{ha}, v{ha+1}
            v_add_f32 v{ha+2}, v{ha+2}, v{ha+3}
            v_mov_b32 v{ha+1}, s{sTAG}
            v_add_f32 v{ha}, v{ha}, v{ha+2}""")
            self.bs(ha, 2, vL8, rWS, T5, 0, 'sc1', count=False)
            a('L_M2F:')
            self.marks.add('m2pub')
        self.stamp('c2pub')
        num, den = pp, ee
        vm.wait('z')
        self.weave(lambda: (red4(zz, ['row_ror:4', 'row_ror:8']), [a(s_) for s_ in m2ops[k:]]), [wo1] * o['wowin'][2])
        self.dw('ds_write_b32', vT + 2, zz, 1)
        if M2: self.dw('ds_write_b32', vGA, m2a, 1, L_M2 - MISC)
        self.barrier()
        for fb in range(4): self.r128(zf + 4 * fb, vT + 3, fb * 32)
        if M2: self.r128(m2a, vL32S, L_M2 - MISC); self.r128(m2a + 4, vL32S, L_M2 - MISC + 16)
        S(T5, '((j*2 + (x >> 2))*4 + (x & 3))*512 + MODP2')
        lg.wait_all()
        S(T0, '(hp*8 + w)*2048 + KIN')
        def den_work():
            for fb in range(4):
                a(f'v_mfma_f32_32x32x16_bf16 {vr(den, 16)}, {vr(zf + 4*fb, 4)}, {vr(ph + 4*fb, 4)}, ' + ('0' if fb == 0 else vr(den, 16)))
            sel_prep()
            if M2:
                a(f's_cmp_lg_u32 s{sWAVE}, 3\ns_cbranch_scc1 L_M2F')
                self.nopk = True; self.sum8(m2a); self.nopk = False
                a(f'v_mov_b32 v{m2a+1}, s{sTAG}')
                self.bs(m2a, 2, vL8, rWS, T5, 0, 'sc1', count=False)
                a('L_M2F:')
            self.round1(den)
            a(f'v_add_f32 v{den}, 0x358637bd, v{den}')
            self.round1(den)
            a(f'v_rcp_f32 v{den}, v{den}')
            self.stamp('c2w')
        ldk2 = lambda: [self.bl(k2 + 4 * q, 4, vL16, rWS, T0, q * 1024, 'sc1') for q in range(2)]
        if o['C2dir'] == 0:
            self.inbox(7, 2, work=den_work)
            self.stamp('c2h')
        if o['C2dir'] == 2: den_work()
        self.try_load(ldk2, [k2 + 1, k2 + 3, k2 + 5, k2 + 7], vT, lambda: (ffn_reg(fw[1]), sel_prep2(), den_work() if o['C2dir'] == 1 else None))
        for db in range(2):
            a(f'ds_write2_b32 v{vT+1}, v{k2+4*db}, v{k2+4*db+2} offset0:{64*db} offset1:{64*db+1}'); lg.issue()
        self.barrier()
        self.stamp('kvred')
        for fb in range(4): self.r128(kf + 4 * fb, vPA, fb * 1024, ('kf', fb))
        S(T0, '((r1*8 + rb*2)*32 + hp*2 + kh)*1024 + OF')
        va(vKP, [(0, 4, 16), (4, 1, 32768), (5, 1, 256)])
        for fb in range(4):
            lg.wait(('kf', fb))
            a(f'v_mfma_f32_32x32x16_bf16 {vr(num, 16)}, {vr(kf + 4*fb, 4)}, {vr(ph + 4*fb, 4)}, ' + ('0' if fb == 0 else vr(num, 16)))
        S(T5, '((w >> 1)*16 + cb)*2048 + (w & 1)*1024 + MODP2')
        self.ld_md = lambda: self.bl(md, 4, vL16, rWS, T5, 0, 'sc1', 'md')
        S(T6, 'cb*128'); va(vPA, [(0, 2, 2), (5, 1, 8), (4, 1, 16), (2, 2, 32)], T6)
        a(f'global_load_ushort v{wr1}, v{vPA}, {sr(pWR, 2)}'); vm.issue('md')
        if not o['mdlate']: self.ld_md()
        for h in range(2):
            self.round_list([num + i for i in range(8 * h, 8 * h + 8)])
            for i in range(8 * h, 8 * h + 8, 2): self.pk('mul', num + i, num + i, den, bc=(1,))
            for i in range(4 * h, 4 * h + 4): a(f'v_cvt_pk_bf16_f32 v{vq+i}, v{num+2*i}, v{num+2*i+1}')
            self.bs(vq + 4 * h, 4, vKP, rWS, T0, 512 * h, 'sc1', 'os')
        self.stamp('ost')
        if o['mdlate']: self.ld_md()
        if o['poisat'] == 3: self.poison((0,), AR + 84)
        while wl: wo1()

    def gemm2(self):
        a, vm, lg, o, S, va = self.a, self.vm, self.lg, self.o, self.S, self.vaa
        md, wr1, fw = self.md, self.wr1, o['fwin']
        AD2 = o['AD2']
        R = self.R = dict(acc=AQ, gaf=AQ + 16, cbf=AR + 16, sbf=AV, gbf=AV + 16, xf=AR, fr=AR + 32, Br=AR + 40, Ar=AR + 72, vB=RING + 8, sv=RING, up=RING + 12)
        acc, gaf, cbf, sbf, gbf, xf, fr, Br, Ar, vB, sv, up = [R[k] for k in 'acc gaf cbf sbf gbf xf fr Br Ar vB sv up'.split()]
        ARS = [Ar + 4 * i for i in range(6)] + [RING + 16, RING + 20, RING + 24]; assert AD2 <= 9
        va(vB, [(2, 2, 128), (4, 2, 1024), (0, 1, 16), (1, 1, 8), (3, 2, 32)])
        S(T4, '(w ^ (%s))*4096' % o['g2r']); S(T1, '(T4*4) ^ (y2 >> 4)')
        a(f'v_add_u32 v{vB}, s{T1}, v{vB}')
        for ct in range(1, 4): a(f'v_xor_b32 v{vB+ct}, {32*ct}, v{vB}')
        va(vT + 1, [(0, 3, 8 * 4096), (3, 1, 4096)])
        S(T2, '((r1 >> 2)*2 + (r1 & 3)*64)*4096 + (hp >> 1)*64 + (hp & 1)*4 + INB + 1024')
        for i in range(8): self.unpack(xf + 2 * i, xf + 2 * i + 1, XR + i)
        S(T6, '(rt*8 + w)*32768 + OF' if not o.get('fake84') else '(r1*8 + w)*32768 + OF')
        def md_stage():
            vm.wait('md')
            self.tagcheck([md + 1, md + 3], vT + 2)
            a('s_cbranch_vccz L_MGOK')
            q0 = list(vm.q)
            self.poll(self.ld_md, [md + 1, md + 3], vT + 2)
            vm.q = q0
            a('L_MGOK:')
            a(f'ds_write2_b32 v{vT}, v{md}, v{md+2} offset0:0 offset1:4'); lg.issue()
        S(T1, '(w >> 1)*1024 + (w & 1)*8 + L_MD'); va(vT, [(0, 5, 32), (5, 1, 4)], T1)
        va(vT + 3, [(0, 2, 16), (5, 1, 64), (4, 1, 128), (2, 2, 256)], None, L_MD)
        if not o['mdlate']: md_stage()
        vm.wait('os'); vm.wait('wo')
        self.barrier()
        self.push(vT + 1, T2, 16, vT + 2, 'L_PD')
        self.stamp('opub')
        if o['mdlate']: md_stage(); self.barrier()
        S(T5, 'wg*4096 + (T4 >> 6) + INB + 1024')
        self.ffn_reg(fw[2])
        t4 = Br
        for q in range(4): self.r128(t4 + 4 * q, vT + 3, q * 1024)
        va(vT + 4, [(0, 2, 4), (5, 1, 16), (4, 1, 32), (2, 2, 64)], None, L_GB)
        S(T0, '(rt*16 + cb)*64 + UP')
        lg.wait_all()
        def d_work():
            for q in range(4):
                self.pk('add', t4 + 4 * q, t4 + 4 * q, t4 + 4 * q + 2)
                a(f'v_add_f32 v{sv+q}, v{t4+4*q}, v{t4+4*q+1}')
            self.round_list([sv + q for q in range(4)])
            a(f'v_add_f32 v{sv+2}, 1.0, v{sv+2}')
            a(f'v_lshlrev_b32 v{wr1}, 16, v{wr1}')
            self.round1(sv + 2)
            a(f'ds_write_b32 v{vT+4}, v{sv+3}')
            uu, hi, lo, t = t4, t4 + 1, t4 + 2, t4 + 4
            a(f'v_mul_f32 v{uu}, v{sv+2}, v{wr1}')
            a(f'v_cvt_pk_bf16_f32 v{hi}, 0, v{uu}')
            a(f'v_sub_f32 v{lo}, v{uu}, v{hi}')
            self.allreduce(uu, t + 3)
            for k, r in enumerate((hi, lo, wr1)): a(f'v_mov_b32_dpp v{t+k}, v{r} row_shl:1 row_mask:0xf bank_mask:0xf')
            for k, r in enumerate((hi, lo, wr1)): a(f'v_cvt_pk_bf16_f32 v{t+k}, v{r}, v{t+k}')
            a(f"""v_mov_b32 v{uu+1}, s{sTAG}
            v_mov_b32 v{uu+2}, 0
            s_cmp_lg_u32 s{sWAVE}, 2
            s_cbranch_scc1 L_NOUP
            s_mov_b64 exec, 1""")
            self.bs(uu, 2, uu + 2, rWS, T0, 0, 'sc1', count=False)
            a('s_mov_b64 exec, -1\nL_NOUP:')
            for i in range(8):
                a(f'v_mov_b32 v{fr+i}, 0x3f803f80')
                for k in range(3): a(f'v_mov_b32_dpp v{fr+i}, v{t+k} row_newbcast:{2*i} row_mask:0xf bank_mask:{hex(2 << k)}')
            a(f'v_mov_b32 v{RING+14}, v{sv+1}\nv_mov_b32 v{RING+15}, v{sv+3}\nv_mov_b32 v{RING+5}, v{sv+2}')
            for dst, q in ((gaf, 0),):
                for i in range(16): a(f'v_mov_b32_dpp v{dst+i}, v{sv+q} row_newbcast:{i} row_mask:0xf bank_mask:0xf')
            a(f'v_mov_b32 v{RING+1}, v{vT+1}')
            self.stamp('dw')
        L2 = o['LOOK2']
        def b2_read(m):
            H, ct = divmod(m, 4)
            for rd in range(2): self.tr(Br + 4 * (m % 8) + 2 * rd, vB + ct, (H & 3) * 4096 + rd * 512, ('B', m))
            if H % 4 == 3 and H < 31: a(f'v_xor_b32 v{vB+ct}, {((H >> 2) ^ ((H >> 2) + 1)) * 16384}, v{vB+ct}')
        def a2_load(H):
            if H % 4 == 0: S(T7, '(T4 ^ n) + T6', n=H * 1024)
            self.bl(ARS[H % AD2], 4, vL16, rWS, T7, (H % 4) * 1024, 'sc1', ('A', H))
        self.spoll([(0, 2, T5, 0)], range(2), d_work)
        self.stamp('ook1')
        if not o['earlyD']: a('s_barrier')
        for H in range(AD2):
            if H == 4 and o['earlyD']: a('s_barrier')
            a2_load(H)
            if H == 0:
                for m in range(L2): b2_read(m)
        self.stamp('ook')
        S(T0, 'rt*1024 + UP'); va(vT + 6, [(0, 4, 64)])
        self.ld_up = lambda: self.bl(up, 2, vT + 6, rWS, T0, 0, 'sc1', 'up')
        lpend = []
        for H in range(32):
            if self.prof and o.get('ls2'):
                if lpend: r_, k_ = lpend.pop(0); a(f'v_writelane_b32 v255, s{r_}, {k_}')
                if H < 31:
                    r_ = sPL + 2 * (self.nst % 4)
                    a.items.append(('raw', f'    s_memtime {sr(r_, 2)}')); lpend.append((r_, self.nst)); self.stnames.append(f'n{H}'); self.nst += 1
            if o.get('g2p') and H in (0, o['g2p']):
                a(f's_cmp_lt_u32 s{sWAVE}, 4\ns_cbranch_scc1 L_G2P{H}\ns_setprio {1 if H == 0 else 0}\nL_G2P{H}:')
            vm.wait(('A', H))
            for ct in range(4):
                m = 4 * H + ct
                pw = o['pairw2']
                if ct % pw == 0: lg.wait(('B', m + pw - 1))
                a(f'v_mfma_f32_16x16x32_bf16 {vr(acc + 4*ct, 4)}, {vr(Br + 4*(m % 8), 4)}, {vr(ARS[H % AD2], 4)}, ' + ('0' if H == 0 else vr(acc + 4*ct, 4)))
                if m + L2 < 128: b2_read(m + L2)
            if H + AD2 < 32: a2_load(H + AD2)
            if H + AD2 == 31: self.ld_up()
            if H == o['f3at']: self.ffn_reg(fw[3])
        self.stamp('gemm2')
        if o.get('dbg'):
            S(T1, '(wg*8 + w)*32768 + 0x4000000'); va(vT, [(0, 6, 4)])
            for k, r in enumerate(list(range(40, 104)) + [24, 25, 26, 27]):
                if k % 16 == 0 and k: S(T1, 'T1 + 4096')
                self.bs(r, 1, vT, rWS, T1, (k % 16) * 256, '', 'dbg')
                if k % 16 == 15: vm.wait('dbg')

    def tail(self):
        a, vm, lg, o, S, va = self.a, self.vm, self.lg, self.o, self.S, self.vaa
        R, fw = self.R, o['fwin']
        E2 = range(0, 16, 2)
        acc, gaf, cbf, sbf, gbf, xf, fr, up = [R[k] for k in 'acc gaf cbf sbf gbf xf fr up'.split()]
        FR, held, fq = self.FL, self.held, self.fq
        g16, hh, h2p, op, sd4, kk = AR + 40, AR + 56, AR + 72, AR + 80, AR + 88, AR + 92
        vSt, vRow, mm, rs, key, vTa = RING + 27, RING + 1, RING + 2, RING + 3, RING + 4, RING + 5
        x1f = xf
        swp = lambda b: [a(f'v_permlane32_swap_b32 v{b+p}, v{b+q}') for p, q in ((0, 2), (1, 3), (4, 6), (5, 7))]
        for h in range(2):
            rg = range(8 * h, 8 * h + 8)
            self.round_list([acc + i for i in rg])
            for i in range(8 * h, 8 * h + 8, 2): self.pk('mul', acc + i, acc + i, gaf + i)
            self.round_list([acc + i for i in rg])
            for i in range(8 * h, 8 * h + 8, 2): self.pk('add', acc + i, acc + i, xf + i)
            for i in range(4 * h, 4 * h + 4): a(f'v_cvt_pk_bf16_f32 v{XR+i}, v{acc+2*i}, v{acc+2*i+1}')
            for i in range(4 * h, 4 * h + 4): a(f'v_dot2_f32_bf16 v{vT+(i&1)}, v{XR+i}, v{XR+i}, ' + ('0' if i < 2 else f'v{vT+(i&1)}'))
            a(f'v_mfma_f32_16x16x32_bf16 {vr(sd4, 4)}, {vr(fr + 4*h, 4)}, {vr(XR + 4*h, 4)}, ' + ('0' if h == 0 else vr(sd4, 4)))
        self.nopk = False
        a(f'v_add_f32 v{vT}, v{vT}, v{vT+1}')
        for sw in ('v_permlane32_swap_b32', 'v_permlane16_swap_b32'):
            a(f'v_mov_b32 v{vT+1}, v{vT}')
            a(f'{sw} v{vT}, v{vT+1}')
            a(f'v_add_f32 v{vT}, v{vT}, v{vT+1}')
        a(f'v_mov_b32_dpp v{sd4}, v{vT} quad_perm:[0,1,2,3] row_mask:0x8 bank_mask:0xf')
        self.bs(sd4, 1, vSt, rWS, sZ2, 0, 'sc1')
        a('s_barrier')
        self.push(RING + 1, sZ3, 16, vT + 2, 'L_PE')
        self.stamp('x1pub')
        self.ffn_dma(fw[4])
        S(T2, 'w*4096')
        a(f'v_add_u32 v{vT}, s{T2}, v{vL16}')
        a(f'v_add_u32 v{vT+3}, {L_DN}, v{vT}')
        vm.wait('up')
        self.tagcheck([up + 1], vT + 2)
        a('s_cbranch_vccz L_UPOK')
        q0 = list(vm.q)
        self.poll(self.ld_up, [up + 1], vT + 2)
        vm.q = q0
        a('L_UPOK:')
        S(T1, '(rt*8 + w)*4096 + ST')
        def sym_write(v0_, v1_):
            vm.wait('ffr')
            for m, i, r in self.sym:
                assert o['symat'] == 0 or r < AV
                a(f'ds_write_b128 v{v0_ if m < 2 else v1_}, {vr(r, 4)} offset:{self.f_lds(m, i) - (L_GU if m < 2 else L_DN)}')
        def sym_late():
            S(T2, 'w*4096'); a(f'v_add_u32 v{vT+4}, s{T2}, v{vL16}\nv_add_u32 v{vT+7}, {L_DN}, v{vT+4}')
            sym_write(vT + 4, vT + 7)
        def e_work():
            for ctl in ('quad_perm:[1,0,3,2]', 'quad_perm:[2,3,0,1]', 'row_half_mirror', 'row_mirror'): self.dpp('v_add_f32', up, up, up, ctl)
            for i in range(8): self.unpack(x1f + 2 * i, x1f + 2 * i + 1, XR + i)
            S(T2, 'w*512 + rt*2')
            va(vRow, [(0, 4, 32)], T2)
            a(f'v_xor_b32 v{vT+1}, 0x4000, v{vT}\nv_xor_b32 v{vT+4}, 0x4000, v{vT+3}')
            if o['symat'] == 0: sym_write(vT, vT + 3)
            for g in range(2):
                if not held[g]: continue
                a(f's_cmp_{"ge" if g == 0 else "lt"}_u32 s{sWAVE}, 4\ns_cbranch_scc1 L_FW{g}')
                for n, (m, i) in enumerate(held[g]):
                    for far in range(2):
                        a(f'ds_write_b128 v{(vT if m < 2 else vT + 3) + far}, {vr(FR + 8*n + 4*far, 4)} offset:{self.f_lds(m, i) - (L_GU if m < 2 else L_DN)}')
                a(f'L_FW{g}:')
            self.stamp('ew')
        self.inbox(3, 2, work=e_work)
        a('s_barrier')
        self.stamp('x1ok')
        def try_p(loads, check, between, nm='re'):
            loads()
            vm.q[-1] = tg = ('try', a.label('T'))
            between()
            vm.wait(tg)
            OK, L = a.label('POK'), a.label('PRE')
            check()
            a(f's_cbranch_vccz {OK}')
            q = list(vm.q)
            self.stamp(nm)
            a(f'{L}:')
            loads(); vm.wait_all()
            check()
            a(f"""s_cbranch_vccz {OK}
            s_add_u32 s{sSPIN}, s{sSPIN}, 1
            s_cmp_lt_u32 s{sSPIN}, {SPIN_LIMIT}
            s_cbranch_scc1 {L}""")
            vm.q = q
            a(f'{OK}:')
        vGr, vDr, vXs, ffn, fdn = RING + 6, RING + 7, RING + 24, FR, AQ
        vRt = RING + 14
        def out_calc(part):
            u = RING + 16; assert o['ocut'][1] != 5
            if part == o['ocut'][0]:
                for i in range(8): self.unpack(hh + 2 * i, hh + 2 * i + 1, h2p + i)
                for i in E2: self.pk('mul', hh + i, hh + i, gbf + i)
                self.round_list([hh + i for i in range(16)])
            if part == o['ocut'][1]:
                S(T0, 'w*2048 + L_TR')
                va(u, [(4, 2, 16)]); va(u + 1, [(0, 3, 16)]); a(f'v_xor_b32 v{u}, v{u}, v{u+1}')
                va(u + 2, [(0, 4, 128)], T0); a(f'v_add_u32 v{u}, v{u}, v{u+2}'); a(f'v_xor_b32 v{u+2}, 64, v{u}')
                va(u + 3, [(3, 3, 16)]); a(f'v_xor_b32 v{u+1}, v{u+3}, v{u+1}'); va(u + 3, [(3, 3, 128)], T0); a(f'v_add_u32 v{u+1}, v{u+1}, v{u+3}')
                S(T0, '2047 - rt*128 - w*16'); va(vRt + 1, [(3, 3, 1)])
                a(f'v_sub_u32 v{vRt}, s{T0}, v{vRt+1}\nv_subrev_u32 v{vRt+1}, 8, v{vRt}')
                va(vTa, [(3, 3, 2048), (0, 3, 16)])
            if part == o['ocut'][2]:
                for i in E2: self.pk('add', hh + i, hh + i, x1f + i)
                for i in range(8): a(f'v_cvt_pk_bf16_f32 v{op+i}, v{hh+2*i}, v{hh+2*i+1}')
                swp(op)
                a(f'ds_write_b128 v{u}, {vr(op, 4)}\nds_write_b128 v{u+2}, {vr(op + 4, 4)}')
                a(f'ds_read_b128 {vr(op, 4)}, v{u+1}\nds_read_b128 {vr(op + 4, 4)}, v{u+1} offset:1024')
        def e_between():
            if o['gbar']: a('s_barrier')
            self.ffn_dma(fw[5])
            for dst, q in ((cbf, 5), (sbf, 14), (gbf, 15)):
                for i in range(16): a(f'v_mov_b32_dpp v{dst+i}, v{RING+q} row_newbcast:{i} row_mask:0xf bank_mask:0xf')
            out_calc(4)
            if o['symat'] == 1: sym_late()
            S(T2, 'w*8 + L_K1'); a(f'v_mov_b32 v{vT}, s{T2}')
            va(vT + 1, [(0, 3, 8)], None, L_K1)
            va(vT + 2, [(0, 2, 64 * 4096), (2, 2, 2 * 4096)])
            S(T3, '((cb >> 3) + (cb & 7)*8)*4096 + (rt >> 1)*64 + (rt & 1)*16 + INB + 2560')
        s_, d_, q_, t_ = g16, g16 + 1, g16 + 3, g16 + 4
        def e_check():
            for h in (0, 2):
                self.pk('add', g16 + h, g16 + h, g16 + 4 + h); self.pk('add', g16 + 8 + h, g16 + 8 + h, g16 + 12 + h)
            for h in (0, 2): self.pk('add', g16 + h, g16 + h, g16 + 8 + h)
            a(f'''v_add_f32 v{d_}, v{d_}, v{g16+2}
            v_add_f32 v{t_+1}, v{s_}, v{q_}
            v_cmp_u_f32 vcc, v{d_}, v{t_+1}''')
        try_p(lambda: [self.bl(g16 + 4 * i, 4, vL16, rWS, T1, i * 1024, 'sc1') for i in range(4)], e_check, e_between, 'stre')
        self.stamp('x1ld')
        a(f"""
        v_mov_b32 v{t_}, v{q_}
        v_permlane32_swap_b32 v{q_}, v{t_}
        v_permlane32_swap_b32 v{s_}, v{d_}
        v_add_f32 v{q_}, v{q_}, v{t_}
        v_add_f32 v{s_}, v{s_}, v{d_}
        v_permlane16_swap_b32 v{s_}, v{q_}
        v_add_f32 v{d_}, v{s_}, v{q_}
        v_add_f32 v{q_}, v{s_}, v{q_}
        v_permlane16_swap_b32 v{d_}, v{q_}
        v_mov_b32 v{s_}, v{d_}
        v_mul_f32 v{q_}, 0x3a800000, v{q_}
        v_permlane32_swap_b32 v{s_}, v{d_}
        v_mul_f32 v{s_}, 0x3a800000, v{s_}
        v_fma_f32 v{rs}, -v{s_}, v{s_}, v{q_}
        v_cvt_pk_bf16_f32 v{mm}, 0, v{s_}
        v_max_f32 v{rs}, 0, v{rs}""")
        self.round1(rs)
        a(f'v_fma_f32 v{d_}, -v{mm}, v{up}, v{d_}')
        a(f'v_add_f32 v{rs}, 0x3727c5ac, v{rs}')
        self.round1(rs)
        a(f'v_sqrt_f32 v{rs}, v{rs}')
        self.round1(rs)
        a(f"""v_rcp_f32 v{rs}, v{rs}
        v_mul_f32 v{key}, v{d_}, v{rs}
        v_ashrrev_i32 v{t_}, 31, v{key}
        v_or_b32 v{t_}, 0x80000000, v{t_}
        v_xor_b32 v{key}, v{key}, v{t_}
        s_mov_b32 s{T2}, 0xfffff000
        v_and_or_b32 v{key}, v{key}, s{T2}, v{vRow}""")
        hi, lo = kk, kk + 1
        def merge2(ctl):
            self.dpp('v_min_u32', t_, hi, hi, ctl); self.dpp('v_max_u32', lo, lo, lo, ctl); self.dpp('v_max_u32', hi, hi, hi, ctl)
            a(f'v_max_u32 v{lo}, v{lo}, v{t_}')
        self.dpp('v_max_u32', hi, key, key, 'quad_perm:[1,0,3,2]'); self.dpp('v_min_u32', lo, key, key, 'quad_perm:[1,0,3,2]')
        for ctl in ('quad_perm:[2,3,0,1]', 'row_half_mirror', 'row_mirror'): merge2(ctl)
        self.dw('ds_write_b64', vT, hi, 2)
        self.stamp('ln2')
        self.barrier()
        self.dr('ds_read_b64', hi, 2, vT + 1)
        for i in E2: self.pk('add', hh + i, x1f + i, mm, bc=(1,), neg=(1,))
        lg.wait_all()
        for ctl in ('quad_perm:[1,0,3,2]', 'quad_perm:[2,3,0,1]', 'row_half_mirror'): merge2(ctl)
        a(f"""v_cmp_eq_u32 {sr(sC2, 2)}, v{key}, v{lo}
        v_cmp_eq_u32 vcc, v{key}, v{hi}
        v_or_b32 v{kk+2}, 1, v{lo}
        v_mov_b32 v{kk+1}, s{sTAG}
        v_mov_b32 v{kk+3}, s{sTAG}
        s_or_b64 {sr(sCM, 2)}, vcc, {sr(sC2, 2)}
        s_cmp_lg_u32 s{sWAVE}, 0
        s_cbranch_scc1 L_NOF
        s_mov_b64 exec, 0xffff""")
        self.bs(kk, 4, vT + 2, rWS, T3, 0, 'sc1', count=False)
        a(f"""s_mov_b64 exec, -1
        L_NOF:""")
        if o['cprio']: a(f's_cmp_eq_u64 {sr(sCM, 2)}, 0\ns_cbranch_scc1 L_NOPR\ns_setprio 1\nL_NOPR:')
        self.stamp('Fpub')
        def f_work():
            self.round_list([hh + i for i in range(16)])
            for i in E2: self.pk('mul', hh + i, hh + i, rs, bc=(1,))
            self.round_list([hh + i for i in range(16)])
            for i in E2: self.pk('mul', hh + i, hh + i, cbf + i)
            self.round_list([hh + i for i in range(16)])
            for i in E2: self.pk('add', hh + i, hh + i, sbf + i)
            for i in range(8): a(f'v_cvt_pk_bf16_f32 v{h2p+i}, v{hh+2*i}, v{hh+2*i+1}')
            a(f"""s_cmp_eq_u64 {sr(sCM, 2)}, 0
            s_cbranch_scc1 L_NOCAND""")
            for h in range(2): a(f'v_mfma_f32_16x16x32_bf16 {vr(sd4, 4)}, {vr(fr + 4*h, 4)}, {vr(h2p + 4*h, 4)}, ' + ('0' if h == 0 else vr(sd4, 4)))
            for i in range(8): a(f'v_mov_b32 v{op+i}, v{h2p+i}')
            S(T2, 'rt*16384 + cb*512 + XS')
            va(vT + 3, [(4, 2, 16)])
            a(f'v_add_u32 v{vT+4}, 8192, v{vT+3}')
            swp(op); swp(XR)
            a(f'v_cndmask_b32 v{vT+3}, v{vT+3}, v{vT+4}, {sr(sC2, 2)}')
            a(f's_mov_b64 exec, {sr(sCM, 2)}')
            for h in range(2): self.bs(op + 4 * h, 4, vT + 3, rWS, T2, 64 * h, 'sc1', count=False)
            a(f's_mov_b32 exec_lo, 0\ns_and_b32 exec_hi, s{sCM+1}, 0xffff0000')
            self.bs(sd4, 1, vT + 3, rWS, T2, 256 - 48, 'sc1', count=False)
            a(f's_mov_b64 exec, {sr(sCM, 2)}')
            for h in range(2): self.bs(XR + 4 * h, 4, vT + 3, rWS, T2, 128 + 64 * h, 'sc1', count=False)
            a('s_mov_b64 exec, -1\ns_setprio 0\nL_NOCAND:')
            self.stamp('cand')
            self.ffn_dma(fw[6])
            if o['symat'] == 2: sym_late()
            out_calc(0)
        S(T0, 'w*16 + L_K2'); a(f'v_mov_b32 v{vT}, s{T0}')
        va(vT + 1, [(0, 3, 16)], None, L_K2)
        self.inbox(5, 8, (1, 3, 5, 7), f_work)
        P = sPL
        a(f"""s_min_u32 s{P+1}, s{P}, s{P+4}
        s_min_u32 s{P+3}, s{P+2}, s{P+4}
        s_min_u32 s{P+5}, s{P}, s{P+6}
        s_max_u32 s{P}, s{P}, s{P+4}
        s_max_u32 s{P+2}, s{P+2}, s{P+6}
        s_max_u32 s{P+3}, s{P+3}, s{P+5}
        s_max_u32 s{P+1}, s{P+1}, s{P+2}
        v_mov_b32 v{kk}, s{P}
        v_mov_b32 v{kk+2}, s{P+3}
        v_mov_b32 v{kk+1}, s{P+1}""")
        self.dw('ds_write_b128', vT, kk, 4)
        self.stamp('F2p')
        out_calc(1)
        gu_late = [p for p in fq if p[0] < 2]; assert not gu_late
        dn_late = len(fq) > 0
        def dn_read(s, tag=None):
            self.tr(fdn + 4 * s, vDr, s * 8192, tag); self.tr(fdn + 4 * s + 2, vDr, s * 8192 + 1024, tag)
        vm.wait('ffn')
        self.barrier()
        self.stamp('F2')
        self.r128(kk, vT + 1, 0, 'k2')
        a(f'v_and_b32 v{vT+4}, 8, v{vL}')
        a(f'v_cmp_eq_u32 {sr(sCMP, 2)}, 0, v{vT+4}')
        a(f'v_cmp_gt_u32 {sr(sPL, 2)}, 16, v{vL}')
        a(f'v_cmp_gt_u32 {sr(sPL + 2, 2)}, 32, v{vL}')
        lg.wait('k2')
        t = g16
        for ctl in ('quad_perm:[1,0,3,2]', 'quad_perm:[2,3,0,1]', 'row_half_mirror'):
            self.dpp('v_min_u32', t, kk, kk, ctl); self.dpp('v_min_u32', t + 1, kk + 1, kk, ctl); self.dpp('v_min_u32', t + 2, kk, kk + 1, ctl)
            self.dpp('v_max_u32', kk + 2, kk + 2, kk + 2, ctl); self.dpp('v_max_u32', kk + 1, kk + 1, kk + 1, ctl); self.dpp('v_max_u32', kk, kk, kk, ctl)
            a(f'v_max3_u32 v{kk+2}, v{kk+2}, v{t+1}, v{t+2}')
            a(f'v_max_u32 v{kk+1}, v{kk+1}, v{t}')
        xa, xb, rp, kr = g16, g16 + 4, g16 + 8, g16 + 9
        a(f"""v_cndmask_b32 v{t}, v{kk+1}, v{kk}, {sr(sCMP, 2)}
        v_cndmask_b32 v{kr}, v{kk+2}, v{kk+1}, {sr(sPL + 2, 2)}
        v_and_b32 v{t+1}, 31, v{kk+2}
        v_and_b32 v{t}, 31, v{t}
        v_cndmask_b32 v{kr}, v{kr}, v{kk}, {sr(sPL, 2)}
        v_lshl_add_u32 v{vT}, v{t}, 13, v{vXs}
        v_lshl_add_u32 v{vT+1}, v{t+1}, 13, v{vXs}
        v_and_b32 v{t+2}, 31, v{kr}
        v_lshl_add_u32 v{vT+2}, v{t+2}, 13, v{vXs+1}""")
        def sel_work():
            self.stamp('sel')
            if o['gbar'] and (fq or o['outat'] in (0, 3)): a('s_barrier')
            self.ffn_dma(len(fq))
            for k in range(3): a(f'v_readfirstlane_b32 s{sY0+[0, 3, 4][k]}, v{kk+k}')
            for s in range(8):
                self.tr(ffn + 4 * s, vGr, s * 1024); self.tr(ffn + 4 * s + 2, vGr, s * 1024 + 512)
            for k in range(3 if o['outat'] in (0, 3) else 0): S(T4 + k, '(((y >> 1) & 15)*128 + ((y >> 5) & 127)) ^ 2047'.replace('y', ('y0', 'y1', 'y2')[k]))
            out_calc(2)
            lg.wait_all()
            if o['outat'] in (0, 3):
                for h in range(2 if o['outat'] == 0 else 1):
                    for k in range(3): a(f'v_cmp_ne_u32 {sr(sPL + 2*k, 2)}, s{T4+k}, v{vRt+h}')
                    a(f's_and_b64 vcc, {sr(sPL, 2)}, {sr(sPL + 2, 2)}\ns_and_b64 exec, vcc, {sr(sPL + 4, 2)}')
                    self.bs(op + 4 * h, 4, vTa, rOUT, (sROW0, sROW1)[h], 0, o.get('outmod', 'sc1'))
                    a('s_mov_b64 exec, -1')
            a(f'v_bfe_u32 v{vT+3}, v{kr}, 1, 4\nv_bfe_u32 v{kr}, v{kr}, 5, 7\nv_lshl_or_b32 v{kr}, v{vT+3}, 7, v{kr}\nv_xor_b32 v{kr}, 0x7ff, v{kr}')
        try_p(lambda: [self.bl(xa, 4, vT, rWS, '0', 0, 'sc1'), self.bl(xb, 4, vT + 1, rWS, '0', 0, 'sc1'), self.bl(rp, 1, vT + 2, rWS, '0', 0, 'sc1')],
              lambda: a(f'v_max3_u32 v{vT+3}, v{xa}, v{xb}, v{rp}\nv_cmp_eq_u32 vcc, -1, v{vT+3}'), sel_work, 'xsre')
        self.stamp('xsel')
        for ctl in ('quad_perm:[1,0,3,2]', 'quad_perm:[2,3,0,1]', 'row_half_mirror', 'row_mirror'): self.dpp('v_add_f32', rp, rp, rp, ctl)
        a(f"""v_cvt_pk_bf16_f32 v{rp}, 0, v{rp}
        v_ashrrev_i32 v{vT+3}, 31, v{rp}
        v_or_b32 v{vT+3}, 0x80000000, v{vT+3}
        v_xor_b32 v{rp}, v{rp}, v{vT+3}
        v_lshrrev_b32 v{rp}, 16, v{rp}
        v_lshl_or_b32 v{rp}, v{rp}, 11, v{kr}
        v_readlane_b32 s{P}, v{rp}, 0
        v_readlane_b32 s{P+1}, v{rp}, 16
        v_readlane_b32 s{P+2}, v{rp}, 32
        s_not_b64 {sr(P + 4, 2)}, {sr(sCMP, 2)}
        s_cmp_lt_u32 s{P}, s{P+1}
        s_cselect_b64 {sr(P + 4, 2)}, {sr(sCMP, 2)}, {sr(P + 4, 2)}
        s_cselect_b32 s{P+3}, s{P}, s{P+1}
        s_cmp_gt_u32 s{P+2}, s{P+3}
        s_cselect_b64 vcc, {sr(P + 4, 2)}, 0""")
        for i in range(4): a(f'v_cndmask_b32 v{xa+i}, v{xa+i}, v{xb+i}, vcc')
        a(f"""s_bitcmp1_b32 vcc_lo, 0
        s_cselect_b32 s{P}, s{P+2}, s{P}
        s_cselect_b32 s{T6}, s{T4}, s{T6}
        s_cselect_b32 s{T4}, s{sY2}, s{sY0}
        s_bitcmp1_b32 vcc_lo, 8
        s_cselect_b32 s{P+1}, s{P+2}, s{P+1}
        s_cselect_b32 s{T6}, s{T5}, s{T6}
        s_cselect_b32 s{T5}, s{sY2}, s{sY1}""")
        gd = [gaf + 4 * i for i in range(4)] + [cbf + 4 * i for i in range(4)]
        lg.wait_all()
        for s in range(8):
            a(f'v_mfma_f32_16x16x32_bf16 {vr(gd[s], 4)}, {vr(xa, 4)}, {vr(ffn + 4*s, 4)}, 0')
        p0, p1 = xb, xb + 2
        for p, b in ((p0, 0), (p1, 4)):
            a(f'v_add_f32 v{p}, v{gd[b]}, v{gd[b+1]+1}')
            a(f'v_add_f32 v{p+1}, v{gd[b+2]+2}, v{gd[b+3]+3}')
        a(f"""v_add_f32 v{p0}, v{p0}, v{p0+1}
        v_add_f32 v{p1}, v{p1}, v{p1+1}
        v_mov_b32 v{p0+1}, s{sTAG}
        v_permlane16_swap_b32 v{p1}, v{p1+1}
        s_cmp_ge_u32 s{sJ}, 28
        s_cbranch_scc1 L_NOHP
        v_add_f32 v{p0}, v{p0}, v{p1+1}
        s_mov_b32 exec_lo, 0xffff
        s_mov_b32 exec_hi, 0xffff""")
        self.bs(p0, 2, RING + 26, rWS, sZ1, 0, 'sc1', count=False)
        a("""s_mov_b64 exec, -1
        L_NOHP:""")
        self.stamp('Hpub')
        if not dn_late and not o['dnsplit']:
            for s in range(4): dn_read(s)
        def out_store(hs=None):
            for h in (hs or range(o['outat'] >= 3, 2)):
                a(f"""v_cmp_ne_u32 vcc, s{sK1}, v{vRt+h}
                v_cmp_ne_u32 {sr(sCMP, 2)}, s{sK2}, v{vRt+h}
                s_and_b64 exec, vcc, {sr(sCMP, 2)}""")
                self.bs(op + 4 * h, 4, vTa, rOUT, (sROW0, sROW1)[h], 0, o.get('outmod', 'sc1'))
                a('s_mov_b64 exec, -1')
        if o['outat']:
            a(f's_and_b32 s{sK1}, s{P}, 2047\ns_and_b32 s{sK2}, s{P+1}, 2047')
            out_calc(3)
            lg.wait_all()
        if o['outat'] == 1:
            a('s_barrier')
            out_store()
        if o['outat'] in (0, 3):
            for h in range(2 if o['outat'] == 0 else 1):
                a(f"""v_cmp_eq_u32 vcc, s{T6}, v{vRt+h}
                s_and_b64 exec, vcc, -1
                s_cbranch_execz L_NOLO{h}""")
                self.bs(op + 4 * h, 4, vTa, rOUT, (sROW0, sROW1)[h], 0, o.get('outmod', 'sc1'), count=False)
                a(f'L_NOLO{h}:\ns_mov_b64 exec, -1')
        self.stamp('outst')
        fz, x1, st = g16 + 12, AV, kk
        a(f"""s_cmp_lg_u32 s{sRow}, 7
        s_cbranch_scc1 L_NONON
        v_mov_b32 v{vT+2}, s{sTAG}
        v_mov_b32 v{vT+3}, 0
        s_mov_b64 exec, 1""")
        self.bs(vT + 2, 1, vT + 3, rWS, '0', 0, 'sc1', count=False)
        a(f"""s_mov_b64 exec, -1
        L_NONON:
        s_cmp_ge_u32 s{sJ}, 28
        s_cbranch_scc1 {'L_FIN3' if o['outat'] >= 2 else 'L_FIN'}""")
        gA = g16
        va(gA, [(2, 1, 128), (5, 1, 16)], None, L_ACT)
        va(gA + 1, [(4, 2, 56 * 128), (0, 4, 8)])
        S(sFG, '(kq*8 + w)*(4*56*128) + fs*128 + GGR')
        va(gA + 2, [(0, 1, 2 * 4096), (1, 1, 64 * 4096)])
        S(sFD, '((w & 1)*4 + (kq >> 1) + ((kq & 1)*4 + (w >> 1))*8)*4096 + x*64 + (j >> 2)*4 + INB + 3072')
        def dn_go():
            if o['dnsplit'] and not dn_late:
                vm.wait('fdn'); a('s_barrier')
                for s in range(4): dn_read(s)
            out_calc(5)
            if o['outat'] == 4: assert o['dnsplit'] and not dn_late and 5 not in o['ocut']; out_store([0])
        q1 = list(vm.q)
        a(f's_cmp_lt_u32 s{sWAVE}, 4\ns_cbranch_scc1 L_HW')
        dn_go()
        a(f"""s_cmp_lg_u32 s{sWAVE}, 7
        s_cbranch_scc1 L_NOH""")
        a(f"""s_bitcmp1_b32 s{sJ}, 3
        s_cselect_b32 s{T2}, s{P+1}, s{P}
        s_cselect_b32 s{T4}, s{T5}, s{T4}
        s_andn2_b32 s{T5}, 2047, s{T2}""")
        S(T6, 'cb*4 + (x >> 1)')
        S(T7, '((T6 >> 1)*4 + (j >> 3)*2 + (T6 & 1))*(56*128) + GGR')
        S(sU, 'T5*2048 + T6*32')
        va(vT + 6, [(0, 3, 4)])
        S(T0, '(x >> 1)*64 + L_GB'); va(vT + 1, [(0, 3, 8)], T0)
        a(f'ds_read_b64 {vr(fz + 2, 2)}, v{vT+1}')
        S(sY0, '(T4 & 31)*8192 + cb*512 + (x >> 1)*32 + XS')
        a(f"""s_lshr_b32 s{T0}, s{T2}, 11
        s_lshl_b32 s{T0}, s{T0}, 16
        s_ashr_i32 s{T2}, s{T0}, 31
        s_andn2_b32 s{T2}, 0x7fff0000, s{T2}
        s_or_b32 s{T2}, s{T2}, 0x80000000
        s_xor_b32 s{T0}, s{T0}, s{T2}
        v_mov_b32 v{fz}, s{T0}
        v_mul_f32 v{fz}, s{sL2E}, v{fz}
        v_exp_f32 v{fz}, -v{fz}
        v_add_f32 v{fz}, 1.0, v{fz}
        v_rcp_f32 v{fz}, v{fz}""")
        self.round1(fz)
        q0 = list(vm.q)
        a(f'v_mov_b32 v{vT+1}, s{sTAG}\nv_not_b32 v{vT+2}, v{vT+1}')
        self.poll(lambda: (self.bl(st, 1, vT + 6, rWS, sY0, 0, 'sc1'), self.bl(st + 1, 1, vT + 6, rWS, sY0, 128, 'sc1')), [st + 2], vT,
                  lambda: a(f'''v_max_u32 v{st+2}, v{st}, v{st+1}
                  v_cmp_ne_u32 vcc, -1, v{st+2}
                  v_cndmask_b32 v{st+2}, v{vT+2}, v{vT+1}, vcc'''))
        vm.q = q0
        self.unpack(st + 2, st + 3, st + 1)
        a(f'v_and_b32 v{st+1}, s{sMASK}, v{st}\nv_lshlrev_b32 v{st}, 16, v{st}')
        a('s_branch L_NOH')
        a('L_HW:')
        vm.q = q1; lg.reset()
        S(T0, 'w*256 + z0')
        va(vT, [(4, 2, 2048), (0, 4, 16)])
        S(T2, 'w*32 + L_ACT'); va(vT + 1, [(5, 1, 128), (2, 1, 16), (1, 1, 8), (3, 1, 4), (0, 1, 2)], T2)
        q0 = list(vm.q)
        g, u = x1, x1 + 4
        if not o['Hdir']:
            self.spoll([(q, 1, T0, q * 2048 + 1024 + 252) for q in range(4)], range(4), dn_go)
            self.stamp('Hpre')
        self.poll(lambda: [self.bl(x1 + 4 * m, 4, vT, rWS, T0, m * 1024, 'sc1') for m in range(2)], [g + 1, g + 3, u + 1, u + 3], vT + 2)
        a(f"""v_permlane32_swap_b32 v{g}, v{g+2}
        v_permlane32_swap_b32 v{u}, v{u+2}
        v_add_f32 v{g}, v{g}, v{g+2}
        v_add_f32 v{u}, v{u}, v{u+2}
        v_mov_b32 v{g+2}, v{g}
        v_mov_b32 v{u+2}, v{u}
        v_permlane16_swap_b32 v{g}, v{g+2}
        v_permlane16_swap_b32 v{u}, v{u+2}
        v_add_f32 v{g}, v{g}, v{g+2}
        v_add_f32 v{u}, v{u}, v{u+2}""")
        self.round2(g, u)
        self.silu(g, vT + 2)
        a(f"""v_mul_f32 v{g}, v{g}, v{u}
        v_cvt_pk_bf16_f32 v{g}, v{g}, v{g}
        ds_write_b16 v{vT+1}, v{g}
        L_NOH:""")
        vm.q = q0
        vm.wait('ffn'); vm.wait('fdn')
        self.barrier()
        self.stamp('Hok')
        for s in range(4):
            self.r128(x1 + 4 * s, gA, s * 32, ('ac', s))
            if dn_late: dn_read(s, ('ac', s))
        for s in range(4):
            lg.wait(('ac', s))
            a(f'v_mfma_f32_32x32x16_bf16 {vr(hh, 16)}, {vr(x1 + 4*s, 4)}, {vr(fdn + 4*s, 4)}, ' + ('0' if s == 0 else vr(hh, 16)))
        a(f'v_mov_b32 v{hh+1}, s{sTAG}')
        self.bs(hh, 2, gA + 1, rWS, sFG, 0, 'sc1')
        if not o['Gdir']:
            a('s_mov_b64 exec, 15')
            self.bs(hh + 1, 1, gA + 2, rWS, sFD, 0, 'sc1')
            a('s_mov_b64 exec, -1')
        self.stamp('Gpub')
        if o['outat'] >= 2:
            a('s_barrier\ns_branch L_FIN2\nL_FIN3:')
            out_calc(5)
            a('s_waitcnt lgkmcnt(0)')
            if o['outat'] == 4: out_store([0])
            a('L_FIN2:')
            out_store()
        a(f"""s_cmp_ge_u32 s{sJ}, 16
        s_cbranch_scc1 L_FIN""")
        if not o['Gdir']:
            self.inbox(6, 8, range(7))
            self.stamp('Gpre')
            a('s_barrier')
        a(f"""s_cmp_lg_u32 s{sWAVE}, 7
        s_cbranch_scc1 L_FIN""")
        S(T0, 'T7 + 4096')
        gg = [x1 + 4 * i for i in range(7)]
        def g_ld():
            [self.bl(gg[n], 4, vL16, rWS, (T7, T0)[n >> 2], (n & 3) * 1024, 'sc1') for n in range(7)]
        self.poll(g_ld, [gg[n] + 1 + 2 * e for n in range(7) for e in range(2)], vT)
        self.stamp('Gok')
        y0, y1 = gg[0], gg[0] + 1
        for p_, q_ in ((0, 1), (2, 3), (4, 5), (0, 2), (4, 6)):
            for e in (0, 2): a(f'v_add_f32 v{gg[p_]+e}, v{gg[p_]+e}, v{gg[q_]+e}')
        a(f'v_add_f32 v{y0}, v{gg[0]}, v{gg[4]}\nv_add_f32 v{y1}, v{gg[0]+2}, v{gg[4]+2}')
        a(f"""v_permlane32_swap_b32 v{y0}, v{y1}
        v_add_f32 v{y0}, v{y0}, v{y1}""")
        self.dpp('v_add_f32', y0, y0, y0, 'row_ror:8')
        a(f"""v_mov_b32 v{y1}, v{y0}
        v_permlane16_swap_b32 v{y0}, v{y1}
        v_add_f32 v{y1}, v{y0}, v{y1}
        v_cvt_pk_bf16_f32 v{y0}, 0, v{y1}
        v_cvt_pk_bf16_f32 v{y1}, 0, v{y1}
        v_permlane32_swap_b32 v{y0}, v{y1}""")
        self.pk('mul', y0, y0, fz, bc=(1,))
        self.round2(y0, y1)
        self.pk('add', y0, y0, st)
        self.round2(y0, y1)
        self.pk('mul', y0, y0, fz + 2)
        self.round2(y0, y1)
        self.pk('add', y0, y0, st + 2)
        a(f'v_cvt_pk_bf16_f32 v{y0}, v{y0}, v{y1}')
        a('s_mov_b64 exec, 0xff')
        self.bs(y0, 1, vT + 6, rOUT, sU, 0, o.get('finmod', ''))
        a('s_mov_b64 exec, -1')
        a('L_FIN:')

    def finish(self):
        a, S, o = self.a, self.S, self.o
        if o.get('exfil'):
            a('s_waitcnt vmcnt(0) lgkmcnt(0)')
            self.stamp('fin')
            a(f'''v_readlane_b32 s{T0}, v255, 0
            v_readlane_b32 s{T1}, v255, 1
            v_readlane_b32 s{T2}, v255, 2
            s_sub_u32 s{T2}, s{T2}, s{T1}
            s_max_i32 s{T2}, s{T2}, 0
            s_min_u32 s{T2}, s{T2}, 10000
            s_mul_i32 s{T2}, s{T2}, 10
            s_add_u32 s{T2}, s{T2}, 6000
            L_XPAD:
            s_memrealtime {sr(sTM, 2)}
            s_waitcnt lgkmcnt(0)
            s_sub_u32 s{T1}, s{sTM}, s{T0}
            s_cmp_lt_u32 s{T1}, s{T2}
            s_cbranch_scc1 L_XPAD''')
        if self.o.get('dbg2'):
            S(T1, '(wg*8 + w)*32768 + 0x4000000'); self.vaa(vT, [(0, 6, 4)])
            for k, r in enumerate(list(range(72, 104)) + list(range(120, 136)) + list(range(176, 184))):
                if k % 16 == 0 and k: S(T1, 'T1 + 4096')
                self.bs(r, 1, vT, rWS, T1, (k % 16) * 256, '', 'dbg')
                if k % 16 == 15: self.vm.wait('dbg')
        if self.prof:
            a('s_waitcnt vmcnt(0) lgkmcnt(0)')
            self.stamp('end')
            a(f's_memrealtime {sr(sTM, 2)}')
            a('s_waitcnt lgkmcnt(0)')
            a(f'v_writelane_b32 v255, s{sTM}, 61')
            S(T0, '(wg*8 + w)*256 + STAMPS')
            a(f'v_writelane_b32 v255, s{sSPIN}, 62')
            a(f'v_lshlrev_b32 v{vT+1}, 2, v{vL}')
            a(f'buffer_store_dword v255, v{vT+1}, {sr(rWS, 4)}, s{T0} offen')
            S(T0, 'T0 + 0x100000')
            a(f'buffer_store_dword v254, v{vT+1}, {sr(rWS, 4)}, s{T0} offen')
        a('L_END:')
        a('s_endpgm')

    def pads(self):
        import subprocess, re
        a = self.a
        src = '.amdgcn_target "amdgcn-amd-amdhsa--gfx950"\n.text\n' + a.text().replace('CODE_KB', '20480')
        out = subprocess.run(['llvm-mc', '-triple=amdgcn-amd-amdhsa', '-mcpu=gfx950', '-show-encoding'], input=src, capture_output=True, text=True, check=True).stdout
        sizes = [len(m.split(',')) for m in re.findall(r'; encoding: \[([^\]]*)\]', out)]
        tour = next(i for i, x in enumerate(a.items) if x == ('raw', ';TOUR'))
        NT = 16
        addr = self.o['kofs']; full = True; k = 0; items = []; pads = []; page = 0
        for i, (kind, v) in enumerate(a.items):
            isins = kind == 'ins' or (kind == 'raw' and v.startswith('    s_'))
            if i == tour: items.append((kind, v)); addr += 4 * 48; continue
            if isins:
                if addr // 4096 > page and full and i > tour:
                    page = addr // 4096; pads.append(page)
                    items.append(('raw', f'L_PAD{page}:\n    s_cbranch_execz L_RET{page}')); addr += 4
                elif i < tour: page = addr // 4096
                addr += sizes[k]; k += 1
                if kind == 'ins' and ('s', 'exec_lo') in v.dst + [('s', 'exec_lo') if ('s', 'exec_hi') in v.dst else None]:
                    full = v.text.replace(' ', '') in ('s_mov_b64exec,-1', 's_mov_b32exec_hi,-1')
            items.append((kind, v))
        assert k == len(sizes), (k, len(sizes))
        t = ['s_mov_b64 exec, 0']
        chains = [pads[c::4] for c in range(4)]
        for c in range(4): t += [f's_cmp_eq_u32 s{sWAVE}, {4 + c}', f's_cbranch_scc1 L_PAD{chains[c][0]}']
        t.append('s_branch L_TEND')
        n = len(t)
        for ch in chains:
            for p, q in zip(ch, ch[1:] + [None]):
                t += [f'L_RET{p}:', f's_branch ' + (f'L_PAD{q}' if q else 'L_TEND')]; n += 1
        assert n <= 47
        t += ['s_nop 0'] * (47 - n) + ['L_TEND:', 's_mov_b64 exec, -1']
        j = items.index(('raw', ';TOUR'))
        items[j] = ('raw', '\n'.join(x if x.endswith(':') else '    ' + x for x in t))
        a.items = items

    def text(self):
        a = self.a
        npad = a.fix_hazards()
        errs = a.check_waits([NAME])
        for e in errs[:10]: print('WAITERR', e, file=sys.stderr)
        assert not errs
        import re
        for k, v in a.items:
            if k == 'ins' and v.mn.startswith('v_pk_'):
                m = re.search(r'op_sel:\[([\d,]+)\]', v.text)
                vs = [i for i, x in enumerate(v.ops[1:]) if x.startswith('v')]
                assert self.o.get('badpk') or not (m and any(m.group(1).split(',')[i] == '1' for i in vs[1:])), v.text
        if self.o['tour']: self.pads()
        hdr = open(os.path.join(os.path.dirname(os.path.abspath(__file__)), 'header.txt')).read()
        s = hdr + '; @launch grid=(256,1,1) block=(512,1,1) lds=163840\n'
        s += '.amdgcn_target "amdgcn-amd-amdhsa--gfx950"\n.text\n'
        s += f'.globl {NAME}\n.p2align {12 if self.o["al12"] else 8}\n.type {NAME},@function\n'
        body = a.text()
        import subprocess, tempfile
        with tempfile.TemporaryDirectory() as td:
            open(td + '/t.s', 'w').write('.amdgcn_target "amdgcn-amd-amdhsa--gfx950"\n.text\n' + body.replace('CODE_KB', '20480'))
            subprocess.run(['clang', '-x', 'assembler', '-target', 'amdgcn-amd-amdhsa', '-mcpu=gfx950', '-c', td + '/t.s', '-o', td + '/t.o'], check=True)
            subprocess.run(['llvm-objcopy', '-O', 'binary', '-j', '.text', td + '/t.o', td + '/t.bin'], check=True)
            size = os.path.getsize(td + '/t.bin')
        print('; code bytes', size, file=sys.stderr)
        s += body.replace('CODE_KB', str((size // 1024 + 1) * 1024))
        s += '.p2align 10\n.fill 768, 4, 0xbf800000\n'
        s += '.section .rodata,"a"\n' + kernel_desc(NAME, 256, 102)
        print(f'; nops {npad}, instrs {sum(1 for k, _ in a.items if k == "ins")}', file=sys.stderr)
        return s


if __name__ == '__main__':
    import argparse, json
    ap = argparse.ArgumentParser()
    ap.add_argument('-o', default='/dev/stdout')
    ap.add_argument('--prof', action='store_true')
    ap.add_argument('--opts', default='{}')
    args = ap.parse_args()
    g = Gen(args.prof, json.loads(args.opts)).build()
    t = g.text()
    open(args.o, 'w').write(t)
    if args.prof: open(args.o + '.stamps', 'w').write(json.dumps(g.stnames))
```

```python
import sys, os
sys.path.insert(0, os.path.dirname(os.path.abspath(__file__)))
from asm import *

NAME = 'adaLN_cond__linear_kernel_hedgehog__moe_arch_mod__prompt_kernel'

NONCE = 0x0
MODP2 = 0x020000
SINB = 0x200000
AINB = 0x080000
INB = 0x100000
HF = 0x400000
OF = 0x800000
ST = 0xC00000
XS = 0xD00000
UP = 0xD80000
HGR = 0x1400000
ZP = 0x1480000
GGR = 0x1500000
KVP = 0x1800000
KIN = 0x1C00000
STAMPS = 0x1600000
WS_BYTES = 268435456

REG = 49152
MISC = 147456
L_A1 = MISC
L_ST = MISC + 6144
L_MP = MISC + 8192
L_WPHI = MISC + 12288
L_KH = 0
L_QH = MISC + 4096
L_KVF = MISC
L_ZF = MISC + 8192
L_M2 = MISC + 9984
L_MD = MISC + 12288
L_K1 = MISC + 8704
L_K2 = MISC + 8832
L_ACT = MISC + 9216
L_GB = MISC + 9728
L_HV = 32768
L_PHK = 0
L_TR = 98304
L_GU = 0
L_DN = 65536
UR = 393216

SPIN_LIMIT = 200000

sWAVE, sTAG, sSPIN, sMASK, sL2E = 3, 4, 5, 6, 7
sX, sJ, sR1, sHP, sCB = 8, 9, 10, 11, 12
T0, T1, T2, T3, T4, T5, T6, T7 = 13, 14, 15, 16, 17, 18, 19, 20
sRT = 21
sCMP = 22
sPL = 24
rWS, rX, rW, rWO, rWM, rWG, rWU, rWD, rOUT = 32, 36, 40, 44, 48, 52, 56, 60, 64
KA = 68
pWPHI, pWR, pC = KA + 4, KA + 10, KA + 18
sK1, sK2, sROW0, sROW1, sFS, sKQ, sKH, sRB = 68, 69, 70, 71, 74, 75, 76, 77
sFG, sFD, sU, sW1K, sU0, sWB = 80, 81, 82, 83, 84, 85
sAB, sM2, sWO, sY0 = 88, 89, 90, 91
sINB, sRow, sY1, sY2 = 92, 93, 94, 95
sZ0, sZ1, sZ2, sZ3 = 72, 73, 86, 87
sCM = 84
sC2 = 88
XT = (96, 97, 98, 99)
sTM = 100
ENV = dict(wg=2, w=sWAVE, x=sX, j=sJ, r1=sR1, hp=sHP, cb=sCB, rt=sRT, row=sRow, kh=sKH, rb=sRB, fs=sFS, kq=sKQ,
           w1k=sW1K, u=sU, fg=sFG, fd=sFD, u0=sU0, wb=sWB, ab=sAB, m2=sM2, wo=sWO, y0=sY0, y1=sY1, y2=sY2,
           z0=sZ0, k1=sK1, k2=sK2, row0=sROW0, row1=sROW1,
           T0=T0, T1=T1, T2=T2, T3=T3, T4=T4, T5=T5, T6=T6, T7=T7)

vL, vL16, vWd, vT = 1, 2, 3, 4
XR = 12
vB = 20
vS0, vS1 = 26, 27
RING = 28
AK, AV, AQ = 56, 88, 120
AR = 152
SP = 248


class Stream:
    def __init__(self, g): self.g, self.q, self.wake = g, [], 0
    def add(self, fn, v=0, l=0): self.q.append((v, l, fn))
    def sleep(self, k): self.q.append(('sleep', k, None))
    def until(self, n): self.q.append(('until', n, None))
    def cap(self, fn):
        a = self.g.a
        keep = a.items; a.items = []
        fn()
        body = a.items; a.items = keep
        run = []
        for it in body:
            i = it[1]
            assert it[0] == 'ins' and i.cls in ('valu', 'salu', 'mfma'), it
            run.append(it)
            if i.cls == 'salu': continue
            c = 8 if (i.cls == 'mfma' or i.is_trans or 'permlane' in i.mn) else 6 if i.mn.startswith(('v_fma', 'v_max3', 'v_min3', 'v_lshl_', 'v_bfe')) else 4.75 if i.mn.startswith('v_cvt') else 4
            self.q.append((c + (len(run) - 1), 0, (lambda r=run: a.items.extend(r)))); run = []
        if run: self.q.append((len(run), 0, (lambda r=run: a.items.extend(r))))
    def mark(self, name): self.q.append((0, 0, lambda: (self.g.marks.add(name), self.g.markn.append((name, self.g.cur[0])))))
    def pull(self, bud, full):
        n = self.g.cur[0]
        while self.q and n >= self.wake:
            v, l, fn = self.q[0]
            if v == 'sleep': self.wake = n + l; self.q.pop(0); continue
            if v == 'until': self.wake = max(n, l); self.q.pop(0); continue
            if l > bud[1]: return
            if v > bud[0] and bud[0] < full:
                bud[0] = -1; return
            self.q.pop(0); fn(); bud[0] -= v; bud[1] -= l


DEFAULTS = dict(wburst=(0, 2, 2, 0, 6, 0), xtat=0, f3at=27, symat=0, wpre=(2, 0), dnsplit=1, lateB=1, wo0=0, m2k0=11, m2n0=4, mdlate=1, m2gap=10, m2cut=60, aoff=6, wpace=0, cprio=1, g2p=22, tlb=0, tlbk=2, tsin=0, tz=0, outat=2, gbar=1, fbar=0, xorw=1, LOOK=6, A00=8, A0=8, Apos=(6, 6, 6, 6, 6, 6, 5, 5, 5, 5),
                wsched={5: 'k10 v10', 6: 'k11 v11', 7: 'k12 v12', 8: 'k13 v13', 9: 'k14 q10', 10: 'k15 q11', 11: 'v14 v15 q12', 12: 'q13 q14 q15'},
                bA=271, bH=295, kbud=10, vbud=5, wcost=5, kdel=1, hh=0.25, hq=0.97, hpf=(0.3, 0.7), fA=2, woA=4, hgap=(20, 14), fpre=8, m2c=4, m2k3='(j & 1)*2 + 1', m2g=5, m2e=7, m2nb=1, m2db=2, apos=0, hprio=3, qmid=8, qsplit=16, wowin=(4, 4, 4), AD2=8, LOOK2=7, g2r='(j & 1)*4', Hdir=0, Gdir=0, C2dir=0, poisat=3, earlyD=1, ocut=(0, 2, 2), pairw2=4, worot=1, fwin=(0, 0, 0, 3, 2, 3, 2), prio=2, tour=1, al12=1, kofs=0x300)


class Gen:
    def __init__(self, prof=False, opts=None):
        self.a = Asm()
        self.vm = Counter(self.a, 'vmcnt', 63)
        self.lg = Counter(self.a, 'lgkmcnt', 15)
        self.marks = set(); self.markn = []
        self.vL = vL
        self.prof = prof
        self.nopk = False
        self.nst = 0
        self.stnames = []
        self.S = SExpr(self.a, ENV, {k: v for k, v in globals().items() if isinstance(v, int) and k.isupper() and k not in ENV}, XT)
        self.o = dict(DEFAULTS)
        if opts: self.o.update(opts)

    def bl(self, dst, n, voff, srd, soff, imm=0, mods='', tag=None):
        op = {1: 'dword', 2: 'dwordx2', 4: 'dwordx4'}[n]
        so = soff if isinstance(soff, str) else (sr(soff))
        self.a(f'buffer_load_{op} {vr(dst, n)}, v{voff}, {sr(srd, 4)}, {so} offen' + (f' offset:{imm}' if imm else '') + (' ' + mods if mods else ''))
        self.vm.issue(tag)
    def bs(self, src, n, voff, srd, soff, imm=0, mods='', tag=None, count=True):
        op = {1: 'dword', 2: 'dwordx2', 4: 'dwordx4'}[n]
        so = soff if isinstance(soff, str) else (sr(soff))
        self.a(f'buffer_store_{op} {vr(src, n)}, v{voff}, {sr(srd, 4)}, {so} offen' + (f' offset:{imm}' if imm else '') + (' ' + mods if mods else ''))
        if count: self.vm.issue(tag)
    def dma(self, voff, srd, soff, imm=0, mods='', tag=None):
        self.a(f'buffer_load_dwordx4 v{voff}, {sr(srd, 4)}, {sr(soff)} offen' + (f' offset:{imm}' if imm else '') + (' ' + mods if mods else '') + ' lds')
        self.vm.issue(tag)
    def dr(self, op, dst, n, addr, off=0, tag=None):
        assert 0 <= off < 65536, off
        self.a(f'{op} {vr(dst, n)}, v{addr}' + (f' offset:{off}' if off else ''))
        self.lg.issue(tag)
    def tr(self, dst, addr, off, tag=None): self.dr('ds_read_b64_tr_b16', dst, 2, addr, off, tag)
    def r128(self, dst, addr, off=0, tag=None): self.dr('ds_read_b128', dst, 4, addr, off, tag)
    def dw(self, op, addr, src, n, off=0, tag=None):
        assert 0 <= off < 65536, off
        self.a(f'{op} v{addr}, {vr(src, n)}' + (f' offset:{off}' if off else ''))
        self.lg.issue(tag)
    def barrier(self):
        self.lg.wait_all()
        self.a('s_barrier')
    def stamp(self, name):
        if self.o.get('jit') and name not in ('karg', 'fin', 'end'):
            L = self.a.label('JIT')
            self.a(f's_memtime {sr(sTM, 2)}'); self.lg.wait_all()
            self.a(f's_mul_i32 s{sTM}, s{sTM}, 0x9e3779b1\ns_lshr_b32 s{sTM}, s{sTM}, {32 - self.o["jit"]}\ns_add_u32 s{sTM}, s{sTM}, 1\n{L}:\ns_sleep 1\ns_sub_u32 s{sTM}, s{sTM}, 1\ns_cmp_lg_u32 s{sTM}, 0\ns_cbranch_scc1 {L}')
        ex = self.o.get('exfil')
        if ex and name in ex[:2]:
            self.a(f's_memrealtime {sr(sTM, 2)}')
            self.lg.wait_all()
            self.a(f'v_writelane_b32 v255, s{sTM}, {1 + ex.index(name)}')
        if not self.prof: return
        only = self.o.get('only')
        if only and name not in only and name != 'end': return
        self.a(f's_memtime {sr(sTM, 2)}')
        self.a(f's_memrealtime s[0:1]')
        self.lg.wait_all()
        self.a(f'v_writelane_b32 v255, s{sTM}, {self.nst}')
        self.a(f'v_writelane_b32 v254, s0, {self.nst}')
        self.stnames.append(name)
        self.nst += 1
        assert self.nst <= 60
    def unpack(self, lo, hi, src):
        self.a(f'v_lshlrev_b32 v{lo}, 16, v{src}')
        self.a(f'v_and_b32 v{hi}, s{sMASK}, v{src}')
    def round1(self, r):
        self.a(f'v_cvt_pk_bf16_f32 v{r}, 0, v{r}')
    def round2(self, r0, r1):
        self.round1(r0); self.round1(r1)
    def round_list(self, regs):
        for r in regs: self.round1(r)
    def pk(self, op, d, s0, s1, s2=None, bc=(), neg=()):
        srcs = [s0, s1] + ([s2] if s2 is not None else [])
        if self.nopk:
            for h in range(2):
                t = []
                for k, r in enumerate(srcs):
                    kind, n = r if isinstance(r, tuple) else ('v', r)
                    t.append(('-' if k in neg else '') + f'{kind}{n if k in bc else n + h}')
                e64 = '' if op == 'fma' else ('_e64' if (neg or t[1][0] == 's') else '')
                self.a(f'v_{op}_f32{e64} v{d+h}, ' + ', '.join(t))
            return
        if 1 in bc and not isinstance(s1, tuple) and s1 & 1 and not self.o.get('badpk'):
            assert 0 not in bc
            sw = lambda t: tuple({0: 1, 1: 0}.get(k, k) for k in t)
            srcs[0], srcs[1] = srcs[1], srcs[0]; bc, neg = sw(bc), sw(neg)
        txt, sel, selhi = [], [], []
        for k, r in enumerate(srcs):
            kind, n = r if isinstance(r, tuple) else ('v', r)
            if k in bc:
                txt.append(f'{kind}[{n & ~1}:{(n & ~1) + 1}]'); sel.append(n & 1); selhi.append(n & 1)
            else:
                assert n % 2 == 0
                txt.append(f'{kind}[{n}:{n+1}]'); sel.append(0); selhi.append(1)
        assert d % 2 == 0
        m = ''
        if any(sel): m += ' op_sel:[' + ','.join(map(str, sel)) + ']'
        if not all(selhi): m += ' op_sel_hi:[' + ','.join(map(str, selhi)) + ']'
        if neg:
            ng = ','.join('1' if k in neg else '0' for k in range(len(srcs)))
            m += f' neg_lo:[{ng}] neg_hi:[{ng}]'
        self.a(f'v_pk_{op}_f32 v[{d}:{d+1}], ' + ', '.join(txt) + m)
    def dpp(self, op, d, s0, s1, ctl):
        self.a(f'{op}_dpp v{d}, v{s0}, v{s1} {ctl} row_mask:0xf bank_mask:0xf')
    def allreduce(self, v, t, op='v_add_f32', lo=True, b3=True):
        if lo:
            self.dpp(op, v, v, v, 'quad_perm:[1,0,3,2]')
            self.dpp(op, v, v, v, 'quad_perm:[2,3,0,1]')
            self.dpp(op, v, v, v, 'row_half_mirror')
        self.dpp(op, v, v, v, 'row_ror:8')
        self.a(f'v_mov_b32 v{t}, v{v}')
        self.a(f'v_permlane16_swap_b32 v{v}, v{t}')
        self.a(f'{op} v{v}, v{v}, v{t}')
        self.a(f'v_mov_b32 v{t}, v{v}')
        self.a(f'v_permlane32_swap_b32 v{v}, v{t}')
        self.a(f'{op} v{v}, v{v}, v{t}')
    def poll(self, loads, tagregs, tmp=None, post=None):
        a = self.a
        L, D = a.label('POLL'), a.label('PDONE')
        a(f'{L}:')
        loads()
        self.vm.wait_all()
        if post: post()
        if len(tagregs) == 1:
            a(f'v_cmp_ne_u32 vcc, s{sTAG}, v{tagregs[0]}')
        else:
            a(f'v_bitop3_b32 v{tmp}, v{tagregs[0]}, v{tagregs[1]}, s{sTAG} bitop3:0x7e')
            for t in tagregs[2:]: a(f'v_bitop3_b32 v{tmp}, v{tmp}, v{t}, s{sTAG} bitop3:0xf6')
            a(f'v_cmp_ne_u32 vcc, 0, v{tmp}')
        a(f's_cbranch_vccz {D}')
        a(f's_add_u32 s{sSPIN}, s{sSPIN}, 1')
        a(f's_cmp_lt_u32 s{sSPIN}, {SPIN_LIMIT}')
        a(f's_cbranch_scc1 {L}')
        a(f'{D}:')
    def weave(self, fn, extras):
        a = self.a
        keep = a.items; a.items = []
        fn()
        body = a.items; a.items = keep
        extras = list(extras); n = len(extras)
        for i, it in enumerate(body):
            while extras and (n - len(extras)) * len(body) <= i * n: extras.pop(0)()
            a.items.append(it)
        for e in extras: e()
    def tagcheck(self, tagregs, tmp):
        a = self.a
        if len(tagregs) == 1:
            a(f'v_cmp_ne_u32 vcc, s{sTAG}, v{tagregs[0]}')
        else:
            a(f'v_bitop3_b32 v{tmp}, v{tagregs[0]}, v{tagregs[1]}, s{sTAG} bitop3:0x7e')
            for t in tagregs[2:]: a(f'v_bitop3_b32 v{tmp}, v{tmp}, v{t}, s{sTAG} bitop3:0xf6')
            a(f'v_cmp_ne_u32 vcc, 0, v{tmp}')
    def try_load(self, loads, tagregs, tmp=None, between=None, pre=None):
        a = self.a
        n0 = len(self.vm.q)
        loads()
        self.vm.q[-1] = tg = ('try', a.label('T'))
        if between: between()
        self.vm.wait(tg)
        OK = a.label('TOK')
        self.tagcheck(tagregs, tmp)
        a(f's_cbranch_vccz {OK}')
        q, l = list(self.vm.q), list(self.lg.q)
        if pre: pre()
        self.poll(loads, tagregs, tmp)
        self.vm.q, self.lg.q = q, l
        a(f'{OK}:')
    def spoll(self, loads, checks, work=None):
        a = self.a
        L, C, D = a.label('SPOLL'), a.label('SCHK'), a.label('SDONE')
        def issue():
            for d, n, so, imm in loads:
                op = {1: 'dword', 2: 'dwordx2', 4: 'dwordx4', 8: 'dwordx8'}[n]
                a(f's_load_{op} {sr(sPL + d, n)}, {sr(rWS, 2)}, s{so} offset:{imm} glc')
        if work:
            issue(); work()
            a(f's_branch {C}')
        a(f'{L}:')
        issue()
        a(f'{C}:')
        a(f's_add_u32 s{sSPIN}, s{sSPIN}, 1')
        a(f's_cmp_ge_u32 s{sSPIN}, {SPIN_LIMIT}')
        self.lg.wait_all()
        a(f's_cbranch_scc1 {D}')
        for k in checks:
            a(f's_cmp_lg_u32 s{sPL + k}, s{sTAG}')
            a(f's_cbranch_scc1 {L}')
        a(f'{D}:')
    def inbox(self, box, n, checks=None, work=None):
        self.spoll([(0, n, sINB, box * 512)], range(n) if checks is None else checks, work)
    def va(self, dst, terms, sreg=None, const=0, tmp=None):
        a = self.a; vL = self.vL
        first = True
        for sh, bits, mult in terms:
            full = sh + bits >= 6
            src = vL
            t = dst if first else tmp
            if sh == 0 and full: pass
            elif full: a(f'v_lshrrev_b32 v{t}, {sh}, v{vL}'); src = t
            elif sh == 0: a(f'v_and_b32 v{t}, {(1 << bits) - 1}, v{vL}'); src = t
            else: a(f'v_bfe_u32 v{t}, v{vL}, {sh}, {bits}'); src = t
            p2 = mult & (mult - 1) == 0
            k = mult.bit_length() - 1
            if first:
                if p2 and sreg is not None: a(f'v_lshl_add_u32 v{dst}, v{src}, {k}, s{sreg}'); sreg = None
                elif p2 and k: a(f'v_lshlrev_b32 v{dst}, {k}, v{src}')
                elif p2:
                    if src != dst: a(f'v_mov_b32 v{dst}, v{src}')
                else: a(f'v_mul_u32_u24 v{dst}, {mult}, v{src}')
            else:
                assert p2
                a(f'v_lshl_add_u32 v{dst}, v{src}, {k}, v{dst}')
            first = False
        if sreg is not None: a(f'v_add_u32 v{dst}, s{sreg}, v{dst}')
        if const: a(f'v_add_u32 v{dst}, {const}, v{dst}')
    def push(self, vaddr, soff, nl, vtmp, lab, wave=0):
        a = self.a
        a(f's_cmp_lg_u32 s{sWAVE}, {wave}')
        a(f's_cbranch_scc1 {lab}')
        a(f'v_mov_b32 v{vtmp}, s{sTAG}')
        a(f's_mov_b32 exec_hi, 0')
        if nl < 32: a(f's_mov_b32 exec_lo, {(1 << nl) - 1}')
        self.bs(vtmp, 1, vaddr, rWS, soff, 0, 'sc1', count=False)
        a('s_mov_b64 exec, -1')
        a(f'{lab}:')
    def silu(self, v, t):
        a = self.a
        a(f'v_mul_f32 v{t}, s{sL2E}, v{v}')
        a(f'v_exp_f32 v{t}, -v{t}')
        a(f'v_add_f32 v{t}, 1.0, v{t}')
        a(f'v_rcp_f32 v{t}, v{t}')
        a(f'v_mul_f32 v{v}, v{v}, v{t}')
        self.round1(v)
    def gemv_ops(self, wregs, cregs, acc, t0, t1, packed):
        ops = []
        assert t0 % 2 == 0 and t1 == t0 + 1
        for i, (w, c) in enumerate(zip(wregs, cregs)):
            cp = f'v[{c & ~1}:{(c & ~1) + 1}]'
            for d in range(4):
                tt = t0 + 2 * (d & 1)
                ops.append(f'v_lshlrev_b32 v{tt}, 16, v{w+d}')
                ops.append(f'v_and_b32 v{tt+1}, s{sMASK}, v{w+d}')
                ac = f'v[{acc+2*d}:{acc+2*d+1}]'
                if not packed:
                    for h in range(2): ops.append(f'v_mul_f32 v{acc+2*d+h}, v{tt+h}, v{c}' if i == 0 else f'v_fmac_f32 v{acc+2*d+h}, v{tt+h}, v{c}')
                elif i == 0: ops.append(f'v_pk_mul_f32 {ac}, {cp}, v[{tt}:{tt+1}] op_sel:[{c & 1},0] op_sel_hi:[{c & 1},1]')
                else: ops.append(f'v_pk_fma_f32 {ac}, {cp}, v[{tt}:{tt+1}], {ac} op_sel:[{c & 1},0,0] op_sel_hi:[{c & 1},1,1]')
        for i in range(4): ops.append(f'v_permlane32_swap_b32 v{acc+i}, v{acc+4+i}')
        for i in range(4): ops.append(f'v_add_f32 v{acc+i}, v{acc+i}, v{acc+4+i}')
        for i in range(2): ops.append(f'v_permlane16_swap_b32 v{acc+i}, v{acc+2+i}')
        for i in range(2): ops.append(f'v_add_f32 v{acc+i}, v{acc+i}, v{acc+2+i}')
        for i in range(2): ops.append(f'v_add_f32_dpp v{acc+i}, v{acc+i}, v{acc+i} row_ror:8 row_mask:0xf bank_mask:0xf')
        ops.append(f'v_mov_b32_dpp v{acc}, v{acc+1} quad_perm:[0,1,2,3] row_mask:0xf bank_mask:0xc')
        return ops
    def sum8(self, b):
        self.pk('add', b, b, b + 2); self.pk('add', b + 4, b + 4, b + 6); self.pk('add', b, b, b + 4)
        self.a(f'v_add_f32 v{b}, v{b}, v{b+1}')
    def softmax_pm(self, p, e, out, t, mid=None, part=0, split=0, stage=None):
        a = self.a
        mx, mn, u0, u1, s0, s1 = t, t + 1, t + 2, t + 3, t + 4, t + 6
        if part != 2:
            self.round_list([p + i for i in range(16)])
            a(f'v_max3_f32 v{mx}, v{p}, v{p+1}, v{p+2}')
            a(f'v_min3_f32 v{mn}, v{p}, v{p+1}, v{p+2}')
            for i in range(3, 15, 2):
                a(f'v_max3_f32 v{mx}, v{mx}, v{p+i}, v{p+i+1}')
                a(f'v_min3_f32 v{mn}, v{mn}, v{p+i}, v{p+i+1}')
            a(f'v_max_f32 v{u0}, v{mx}, v{p+15}')
            a(f'v_min_f32 v{u1}, v{mn}, v{p+15}')
            a(f'v_max_f32 v{mx}, v{mx}, v{p+15}')
            a(f'v_min_f32 v{mn}, v{mn}, v{p+15}')
            a(f'v_permlane32_swap_b32 v{mx}, v{u0}')
            a(f'v_permlane32_swap_b32 v{mn}, v{u1}')
            a(f'v_max_f32 v{mx}, v{mx}, v{u0}')
            a(f'v_min_f32 v{mn}, v{mn}, v{u1}')
            self.pk('mul', mx, mx, ('s', sL2E), bc=(1,))
            mn2 = mn
            if not self.nopk: a(f'v_mov_b32 v{u0}, v{mn}'); mn2 = u0
            for i in range(0, 16, 2):
                self.pk('fma', e + i, p + i, ('s', sL2E), mx, bc=(1, 2), neg=(2,))
                self.pk('fma', p + i, p + i, ('s', sL2E), mn2, bc=(1, 2), neg=(0,))
        for i in range(split if part == 2 else 0, 16):
            if mid and i == mid[0]: mid[1]()
            if part == 1 and i == split: return
            a(f'v_exp_f32 v{e+i}, v{e+i}')
            a(f'v_exp_f32 v{p+i}, v{p+i}')
        self.pk('add', s0, e, e + 2); self.pk('add', s1, p, p + 2)
        for i in range(4, 16, 2):
            self.pk('add', s0, s0, e + i); self.pk('add', s1, s1, p + i)
        a(f'v_add_f32 v{u0}, v{s0}, v{s0+1}')
        a(f'v_add_f32 v{u1}, v{s1}, v{s1+1}')
        a(f'v_add_f32 v{mx}, v{s0}, v{s0+1}')
        a(f'v_add_f32 v{mn}, v{s1}, v{s1+1}')
        a(f'v_permlane32_swap_b32 v{mx}, v{u0}')
        a(f'v_permlane32_swap_b32 v{mn}, v{u1}')
        self.pk('add', mx, mx, u0)
        a(f'v_rcp_f32 v{mx}, v{mx}')
        a(f'v_rcp_f32 v{mn}, v{mn}')
        for i in range(0, 16, 2):
            self.pk('mul', e + i, e + i, mx, bc=(1,))
            self.pk('mul', p + i, p + i, mn, bc=(1,))
        for i in range(8): a(f'v_cvt_pk_bf16_f32 v{out+i}, v{e+2*i}, v{e+2*i+1}')
        for i in range(8): a(f'v_cvt_pk_bf16_f32 v{out+8+i}, v{p+2*i}, v{p+2*i+1}')
    def ln_stats(self, xp, t, m_out, sd_out, fill=()):
        a = self.a
        fill = list(fill)
        def pad(n):
            for _ in range(n):
                if fill: a(fill.pop(0))
        s, u = t, t + 4
        a(f'v_mov_b32 v{u}, 0x3f803f80')
        for i in range(8):
            k = 2 * (i & 1)
            a(f'v_dot2_f32_bf16 v{s+k}, v{xp+i}, v{u}, ' + ('0' if i < 2 else f'v{s+k}'))
            a(f'v_dot2_f32_bf16 v{s+k+1}, v{xp+i}, v{xp+i}, ' + ('0' if i < 2 else f'v{s+k+1}'))
        pad(3)
        self.pk('add', s, s, s + 2)
        for ctl in ('quad_perm:[1,0,3,2]', 'quad_perm:[2,3,0,1]', 'row_half_mirror', 'row_ror:8'):
            pad(2 if ctl.endswith('3,2]') else 1)
            self.dpp('v_add_f32', s, s, s, ctl); self.dpp('v_add_f32', s + 1, s + 1, s + 1, ctl)
        pad(2)
        a(f'v_permlane16_swap_b32 v{s}, v{s+1}')
        a(f'v_add_f32 v{u}, v{s}, v{s+1}')
        a(f'v_add_f32 v{s}, v{s}, v{s+1}')
        pad(2)
        a(f'v_permlane32_swap_b32 v{s}, v{u}')
        a(f'v_add_f32 v{s}, v{s}, v{u}')
        a(f'v_mul_f32 v{u}, 0x3a800000, v{s}')
        a(f'v_mul_f32 v{s}, 0x3a800000, v{s}')
        pad(2)
        a(f'v_permlane16_swap_b32 v{s}, v{u}')
        a(f'v_fma_f32 v{sd_out}, -v{s}, v{s}, v{u}')
        a(f'v_cvt_pk_bf16_f32 v{m_out}, 0, v{s}')
        a(f'v_max_f32 v{sd_out}, 0, v{sd_out}')
        self.round1(sd_out)
        a(f'v_add_f32 v{sd_out}, 0x3727c5ac, v{sd_out}')
        self.round1(sd_out)
        a(f'v_sqrt_f32 v{sd_out}, v{sd_out}')
        pad(99)
        self.round1(sd_out)

    def build(self):
        self.front()
        self.gemm1()
        self.middle()
        self.gemm2()
        self.tail()
        self.finish()
        return self

    def vaa(self, dst, terms, sreg=None, const=0): self.va(dst, terms, sreg, const, vT + 5)

    def front(self):
        a, vm, lg, o, S, va = self.a, self.vm, self.lg, self.o, self.S, self.vaa
        E2 = range(0, 16, 2)
        a(f'{NAME}:')
        a(f's_load_dwordx16 {sr(KA, 16)}, s[0:1], 0')
        a(f's_load_dwordx8 {sr(KA + 16, 8)}, s[0:1], 64')
        a(f's_load_dwordx2 {sr(rWS, 2)}, s[0:1], 104')
        a('s_cmp_ge_u32 s2, 256')
        a('s_cbranch_scc1 L_END')
        if self.prof:
            a(f's_memrealtime {sr(sCMP, 2)}')
            a(f's_memtime {sr(sTM, 2)}')
            a('v_mov_b32 v255, 0')
            a('v_mov_b32 v254, 0')
            self.stnames.append('start'); self.nst = 1
        if o.get('exfil'): a(f's_memrealtime {sr(sTM, 2)}')
        a(f"""v_lshrrev_b32 v{vT}, 6, v0
        v_and_b32 v{vL}, 63, v0
        s_nop 0
        v_readfirstlane_b32 s{sWAVE}, v{vT}
        v_lshlrev_b32 v{vL16}, 4, v{vL}""")
        for srd, size in ((rX, 4194304), (rWM, 12582912), (rWS, WS_BYTES), (rW, 6291456), (rWO, 2097152), (rWG, 7340032), (rWU, 7340032), (rWD, 7340032), (rOUT, 4194304)):
            a(f's_mov_b32 s{srd+2}, {size}')
            a(f's_mov_b32 s{srd+3}, 0x20000')
        a(f"""s_mov_b32 s{sSPIN}, 0
        s_mov_b32 s{sMASK}, 0xffff0000
        s_mov_b32 s{sL2E}, 0x3fb8aa3b""")
        if o.get('xflip'): a(f's_xor_b32 s2, s2, {o["xflip"]}')
        S(sX, 'wg & 7'); S(sJ, 'wg >> 3')
        S(sRow, 'wg*8 + w')
        S(sR1, '(x & 4)*2 + (j >> 2)'); S(sHP, '(x & 3)*4 + ((j & 3) ^ q)', q=o.get('hpx', 2))
        S(sCB, '(x & 1)*8 + (j & 7)')
        S(sRT, '(x >> 1)*4 + (j >> 3)')
        S(sINB, '(wg*64 + w)*64 + INB')
        xs_raw, wm, cv, st, acc, xs, mp, hp = AR, AR + 8, AR + 16, AR + 20, AR + 24, AR + 32, AR + 48, AR + 64
        vWM, vCo, vL8, vL32S, vGA, vXT = SP, SP + 1, SP + 2, SP + 3, SP + 4, vT + 6
        self.vWM, self.vL8, self.vL32S, self.vGA = vWM, vL8, vL32S, vGA
        S(T3, '((x >> 1)*256 + j*8 + w)*4096 + (x & 1)*1024')
        va(vT + 4, [(0, 5, 16), (5, 1, 2048)])
        S(T2, '(x*8 + w)*32')
        S(T0, 'T2*6144 + (j ^ 1)*128'); S(T1, 'T0 + 8*12288')
        S(T5, '(rt*8 + w)*32768 + cb*128' if not o.get('fakext') else '((x*16 + (j >> 1))*32768) + (j & 1)*1024 + w*128')
        S(T4, '(((x >> 1)*16 + cb)*16 + w)*512 + AINB')
        va(vWM, [(3, 3, 12288), (0, 3, 16)])
        va(vCo, [(3, 3, 2)], T2)
        va(vXT, [(0, 4, 2048), (4, 2, 16)])
        a('s_waitcnt lgkmcnt(0)')
        if self.prof:
            a(f'v_writelane_b32 v255, s{sTM}, 0')
            a(f'v_writelane_b32 v255, s{sCMP}, 63')
            a(f'v_writelane_b32 v254, s{sCMP}, 0')
        if o.get('exfil'):
            for k in range(3): a(f'v_writelane_b32 v255, s{sTM}, {k}')
        self.stamp('karg')
        a(f's_mov_b64 {sr(rWM, 2)}, {sr(KA + 20, 2)}')
        self.bl(wm, 4, vWM, rWM, T0, 0, 'nt', 'wm')
        self.bl(wm + 4, 4, vWM, rWM, T1, 0, 'nt', 'wm')
        a(f's_load_dword s{sTAG}, {sr(rWS, 2)}, {NONCE}')
        a(f'global_load_ushort v{cv}, v{vCo}, {sr(pC, 2)}'); vm.issue('wm')
        a(f'global_load_ushort v{cv+1}, v{vCo}, {sr(pC, 2)} offset:16'); vm.issue('wm')
        a(f's_mov_b64 {sr(rX, 2)}, {sr(KA, 2)}')
        a(f's_load_dword s{sPL}, {sr(rWS, 2)}, s{sINB} offset:0 glc')
        for q in range(2): a(f's_load_dword s{sPL + 1 + q}, {sr(rWS, 2)}, s{T4} offset:{q * 4096 + 508} glc')
        if o['tlb'] & 1:
            S(T6, '(w & 1)*2097152 + HF')
            a(f's_load_dword s{sPL + 5}, {sr(rWS, 2)}, s{T6} offset:0')
        if o['tsin']:
            S(T6, '(wg*8 + w)*512 + SINB')
            for q in range(2): a(f's_load_dword s{sPL + 3 + q}, {sr(rWS, 2)}, s{T6} offset:{q * 256 + 252} glc')
        if o.get('bar0', 1): a('s_barrier')
        self.bl(xs_raw, 4, vT + 4, rX, T3, 0, o.get('xsm', 'nt'), 'xs')
        self.bl(xs_raw + 4, 4, vT + 4, rX, T3, 512, o.get('xsm', 'nt'), 'xs')
        for srd, k in ((rW, 2), (rWO, 6), (rWG, 12), (rWU, 14), (rWD, 16), (rOUT, 22)):
            a(f's_mov_b64 {sr(srd, 2)}, {sr(KA + k, 2)}')
        a(f"""s_getpc_b64 {sr(sCMP, 2)}
        s_and_b32 s{sCMP}, s{sCMP}, 0xfffffc00""")
        S(T6, '(j*8 + w)*128')
        va(vT, [(5, 1, 32768)], T6)
        a(f'v_min_u32 v{vT}, CODE_KB, v{vT}')
        a(f'global_load_dword v{vT+7}, v{vT}, {sr(sCMP, 2)}'); vm.issue()
        S(sKH, 'w >> 2'); S(sRB, 'w & 3'); S(sW1K, 'w*1024')
        S(sFS, 'x*7 + (j >> 2)'); S(sKQ, 'j & 3')
        va(vT + 2, [(4, 1, 64)]); va(vWd, [(0, 3, 16)])
        a(f'v_xor_b32 v{vWd}, v{vWd}, v{vT+2}'); va(vT + 2, [(3, 3, 6144)]); a(f'v_add_u32 v{vWd}, v{vWd}, v{vT+2}')
        S(sU0, o.get('u0', 'j & 12')); S(sWB, 'w*49152 + hp*128')
        wq = self.wq = [(n, t) for n in range(6) for t in 'kvq']
        def w_next(cnt=1):
            for _ in range(cnt):
                n, t = wq.pop(0)
                if t == 'k':
                    if n < 4:
                        S(sY1, '((j >> 4)*q) ^ n', n=n, q=2 * o['xorw'])
                        S(sY0, '((y1 + u0) & 15)*UR + wb'); S(sY1, 'y1*8192 + w1k')
                    else:
                        S(sY0, '((u0 + n) & 15)*UR + wb', n=n); S(sY1, 'w1k + q', q=n * 8192)
                S(sU, 'y0 + q', q=dict(q=0, k=2048, v=4096)[t]); S('m0', 'y1 + q', q='kvq'.index(t) * REG)
                self.dma(vWd, rW, sU, 0, o.get('wm0', '') if n < 2 else o.get('wm1', ''), ('W', n))
        wb = list(o['wburst'])
        va(vL8, [(0, 6, 8)])
        va(vL32S, [(0, 6, 32)], None, MISC)
        S(T0, 'w*4 + MISC')
        va(vGA, [(4, 2, 64), (0, 3, 256), (3, 1, 32)], T0)
        self.stamp('issued')
        def xt_load():
            self.bl(XR, 4, vXT, rX, T5, 0, '', 'xt')
            self.bl(XR + 4, 4, vXT, rX, T5, 64, '', 'xt')
        if o['xtat'] == 0: xt_load()
        S(T0, '((((w >> 1)*16 + ((j ^ 1) & 15))*2 + (j >> 4))*8 + x)*512 + AINB')
        w_next(o['wpre'][0])
        vm.wait('wm')
        self.stamp('wmok')
        w_next(o['wpre'][1])
        for i in range(2):
            a(f'v_lshlrev_b32 v{cv+i}, 16, v{cv+i}')
            self.silu(cv + i, vT + i)
        for s in self.gemv_ops([wm, wm + 4], [cv, cv + 1], acc, vT, vT + 1, True): a(s)
        a(f"""s_waitcnt lgkmcnt(0)
        s_mul_i32 s{sTAG}, s{sTAG}, 0x9e3779b1
        s_add_u32 s{sTAG}, s{sTAG}, 0x7f4a7c15""")
        self.dw('ds_write_b32', vGA, acc, 1, L_A1 - MISC)
        self.barrier()
        self.r128(acc, vL32S, L_A1 - MISC); self.r128(acc + 4, vL32S, L_A1 - MISC + 16)
        if o['xtat'] == 1: xt_load()
        lg.wait_all()
        self.sum8(acc)
        a(f'v_mov_b32 v{acc+1}, s{sTAG}')
        a(f"""s_bitcmp1_b32 s{sWAVE}, 0
        s_cselect_b32 exec_lo, 0, -1
        s_cselect_b32 exec_hi, -1, 0""")
        self.bs(acc, 2, vL8, rWS, T0, 0, 'sc1')
        a('s_mov_b64 exec, -1')
        self.stamp('A1pub')
        w_next(wb[0])
        vm.wait('xs')
        self.stamp('xsok')
        u1 = vT + 4
        a(f'v_mov_b32 v{u1}, 0x3f803f80')
        for i in range(8):
            k = 2 * (i & 1)
            a(f'v_dot2_f32_bf16 v{vT+k}, v{xs_raw+i}, v{u1}, ' + ('0' if i < 2 else f'v{vT+k}'))
            a(f'v_dot2_f32_bf16 v{vT+k+1}, v{xs_raw+i}, v{xs_raw+i}, ' + ('0' if i < 2 else f'v{vT+k+1}'))
        S(T0, 'w*32 + L_ST'); va(u1, [(5, 1, 16), (4, 1, 8)], T0)
        self.pk('add', st, vT, vT + 2)
        va(vT + 1, [(0, 4, 16)], None, L_ST)
        va(vT, [(0, 4, 16), (4, 1, 4096)])
        for ctl in ('quad_perm:[1,0,3,2]', 'quad_perm:[2,3,0,1]', 'row_half_mirror', 'row_mirror'):
            self.dpp('v_add_f32', st, st, st, ctl); self.dpp('v_add_f32', st + 1, st + 1, st + 1, ctl)
        S(T0, '((x & 6) + ((j & 24) + w)*8)*4096 + (j & 7)*512 + (x & 1)*256 + SINB')
        a(f"""v_permlane16_swap_b32 v{st}, v{st+1}
        v_add_f32 v{st}, v{st}, v{st+1}
        v_mov_b32 v{st+1}, s{sTAG}""")
        self.dw('ds_write_b64', u1, st, 2)
        self.barrier()
        self.r128(st, vT + 1)
        lg.wait_all()
        a('s_mov_b32 exec_hi, 0')
        self.bs(st, 4, vT, rWS, T0, 0, 'sc1')
        a('s_mov_b32 exec_hi, -1')
        self.stamp('A2pub')
        if o['xtat'] == 2: xt_load()
        w_next(wb[1])
        mg = acc
        def pre_work():
            va(vT, [(0, 5, 16), (5, 1, 4096)])
            S(T1, 'w*4 + L_MP'); va(vT + 1, [(0, 6, 64)], T1)
            va(vT + 2, [(0, 2, 32), (5, 1, 128), (4, 1, 256), (2, 2, 512)], None, L_MP)
            S(T1, '(wg*8 + w)*512 + SINB')
            va(vT + 4, [(0, 5, 16)])
        def x_unpack():
            vm.wait('xt')
            for p, q in ((0, 2), (1, 3), (4, 6), (5, 7)): a(f'v_permlane32_swap_b32 v{XR+p}, v{XR+q}')
            for i in range(8): self.unpack(xs + 2 * i, xs + 2 * i + 1, XR + i)
        self.spoll([(q, 1, T4, q * 4096 + 508) for q in range(2)], range(2), work=pre_work)
        self.stamp('apre')
        if o.get('abar', 0): a('s_barrier')
        st_ld = lambda: self.bl(st, 4, vT + 4, rWS, T1, 0, 'sc1', 'st')
        def st_go():
            self.spoll([(q, 1, T1, q * 256 + 252) for q in range(2)], range(2), work=x_unpack)
            st_ld()
            if o['fbar']: a('s_barrier')
            w_next(wb[2])
        self.try_load(lambda: self.bl(mg, 4, vT, rWS, T4, 0, 'sc1'), [mg + 1, mg + 3], vT + 3, st_go)
        self.stamp('modok')
        a(f'ds_write2_b32 v{vT+1}, v{mg}, v{mg+2} offset0:0 offset1:8'); lg.issue()
        self.barrier()
        for i in (2, 3, 0, 1): self.r128(mp + 4 * i, vT + 2, (i >> 1) * 2048 + (i & 1) * 16, i >> 1)
        S(T0, 'hp*4096 + w*512')
        a(f'v_add_u32 v{vT}, s{T0}, v{vL16}')
        S('m0', 'w*512 + L_WPHI')
        a('s_mov_b32 exec_hi, 0')
        a(f'global_load_lds_dwordx4 v{vT}, {sr(pWPHI, 2)}'); vm.issue()
        a('s_mov_b32 exec_hi, -1')
        w_next(wb[3])
        S(T0, '((rt*16 + cb)*4 + (w >> 1))*4096 + (w & 1)*256 + HF')
        va(vT, [(0, 4, 16), (4, 1, 1024), (5, 1, 512)])
        lg.wait(1); self.sum8(mp + 8)
        self.round1(mp + 8)
        lg.wait(0); self.sum8(mp)
        a(f'v_add_f32 v{mp+8}, 1.0, v{mp+8}')
        self.round2(mp + 8, mp)
        vm.wait('st')
        self.tagcheck([st + 1, st + 3], vT + 3)
        a('s_cbranch_vccz L_STOK')
        q0 = list(vm.q)
        self.poll(st_ld, [st + 1, st + 3], vT + 3)
        vm.q = q0
        a('L_STOK:')
        self.stamp('statok')
        a(f"""v_permlane16_swap_b32 v{st}, v{st+2}
        v_add_f32 v{st+3}, v{st}, v{st+2}
        v_mul_f32 v{st+2}, 0x3a800000, v{st+3}
        v_mul_f32 v{st+3}, 0x3a800000, v{st+3}
        v_permlane16_swap_b32 v{st+2}, v{st+3}
        v_fma_f32 v{st}, -v{st+2}, v{st+2}, v{st+3}
        v_cvt_pk_bf16_f32 v{st+1}, 0, v{st+2}
        v_max_f32 v{st}, 0, v{st}""")
        self.round1(st)
        for i in E2[:4]: self.pk('add', xs + i, xs + i, st + 1, bc=(1,), neg=(1,))
        a(f'v_add_f32 v{st}, 0x3727c5ac, v{st}')
        self.round1(st)
        a(f'v_sqrt_f32 v{st}, v{st}')
        for i in E2[4:]: self.pk('add', xs + i, xs + i, st + 1, bc=(1,), neg=(1,))
        self.round1(st)
        a(f'v_rcp_f32 v{st}, v{st}')
        self.round_list([xs + i for i in range(16)])
        for i in E2: self.pk('mul', xs + i, xs + i, st, bc=(1,))
        self.round_list([xs + i for i in range(16)])
        for h in range(2):
            rg = range(8 * h, 8 * h + 8)
            for i in rg: self.dpp('v_mul_f32', xs + i, mp + 8, xs + i, f'row_newbcast:{i}')
            self.round_list([xs + i for i in rg])
            for i in rg: self.dpp('v_add_f32', xs + i, mp, xs + i, f'row_newbcast:{i}')
            for i in range(4 * h, 4 * h + 4): a(f'v_cvt_pk_bf16_f32 v{hp+i}, v{xs+2*i}, v{xs+2*i+1}')
            self.bs(hp + 4 * h, 4, vT, rWS, T0, 2048 * h, 'sc1', 'hs')
        self.stamp('hst')
        va(vB, [(2, 2, 128), (3, 1, 64), (4, 1, 32), (0, 2, 8), (5, 1, 512)])
        a(f'v_xor_b32 v{vB+1}, 64, v{vB}')
        for q in (1, 2):
            for h in range(2): a(f'v_add_u32 v{vB+2*q+h}, {q*REG}, v{vB+h}')
        va(vT + 1, [(0, 2, 8 * 4096), (2, 2, 4096)])
        S(T0, '((rt >> 3)*4 + (rt & 7)*32)*4096 + (cb >> 1)*64 + (cb & 1)*4 + INB')
        S(sAB, 'r1*262144 + rb*4096 + HF')
        a(f"""s_cmp_ge_u32 s{sJ}, {0 if o.get('noffn') else 28}
        s_cselect_b32 s{rWG+2}, 0, s{rWG+2}
        s_cselect_b32 s{rWU+2}, 0, s{rWU+2}
        s_cselect_b32 s{rWD+2}, 0, s{rWD+2}""")
        vm.wait('hs')
        a('s_barrier')
        self.push(vT + 1, T0, 16, vT + 2, 'L_PB')
        self.stamp('hpub')
        w_next(wb[4])
        vWo, vFG, vFD = vS0, vS1, SP + 5
        def setup():
            S(sWO, 'w*16384 + cb*128' if not o.get('fake84') else 'w*16384 + ((x & 3)*4 + (j & 3))*128'); S(sY2, '(j >> 2)*262144' if o.get('fake84') else '((j & 1)*8 + (j >> 3)*2)*131072' if o['worot'] else '(j & 1)*1048576')
            S(sFG, '(kq*8 + w)*(32*7168) + fs*128'); S(sFD, '(fs*8 + w)*16384 + kq*512')
            S(sM2, '((x & 3)*8 + w)*(32*12288) + (j*2 + (x >> 2))*128 + 4096')
            S(T1, '(w & 1)*64')
            va(vT + 2, [(4, 1, 32)], T1); va(vWo, [(0, 3, 16)])
            a(f'v_xor_b32 v{vWo}, v{vWo}, v{vT+2}'); va(vT + 2, [(3, 3, 2048)]); a(f'v_add_u32 v{vWo}, v{vWo}, v{vT+2}')
            S(T1, '(w & 2)*32'); va(vT + 2, [(4, 1, 32)], T1); va(vFG, [(0, 3, 16)])
            a(f'v_xor_b32 v{vFG}, v{vFG}, v{vT+2}'); va(vT + 2, [(3, 3, 7168)]); a(f'v_add_u32 v{vFG}, v{vFG}, v{vT+2}')
            S(T1, '(w & 1)*128')
            va(vT + 2, [(5, 1, 64)], T1); va(vFD, [(0, 5, 16), (5, 1, 2048)])
            a(f'v_xor_b32 v{vFD}, v{vFD}, v{vT+2}')
            S(T3, 'u0*16384'); a(f'v_add_u32 v{vCo}, s{sAB}, v{vL16}')
            S(T1, 'rb*2048 + L_QH'); a(f'v_add_u32 v0, s{T1}, v{vL16}')
        S(T6, 'wg*4096 + INB'); S(T7, '(w & 3)*128 + T6'); S(T6, 'u0*32 + T6')
        a(f's_cmp_ge_u32 s{sWAVE}, 4\ns_cselect_b32 s{T6}, s{T7}, s{T6}')
        bpoll = self.bpoll = lambda work=None: self.spoll([(0, 2, T6, 0), (2, 2, T6, 64)], range(4), work)
        if o['lateB']:
            def bw():
                w_next(wb[5]); setup(); a(';TOUR')
                a(f's_cmp_ge_u32 s{sWAVE}, 4\ns_cbranch_scc1 L_HELP')
            bpoll(bw)
        else: bpoll(lambda: (w_next(wb[5]), setup(), a(';TOUR')))
        assert len(wq) % 3 == 0 and len(wq) <= (6 if o['xorw'] else 12)

    def gemm1(self):
        a, vm, lg, o, S, va = self.a, self.vm, self.lg, self.o, self.S, self.vaa
        LOOK = o['LOOK']; NB = LOOK + 1; assert NB <= 7
        vWo, vFG, vFD, vHo = vS0, vS1, SP + 5, 0
        self.vWo, self.vFG, self.vFD = vWo, vFG, vFD
        m2w, m2c = AV, AV + 24
        FL = self.FL = AK
        cur = self.cur = [0]
        TOK = [(0, 3, 16), (3, 2, 256), (5, 1, 128)]
        def cvt8(d, s_):
            for i in range(8): a(f'v_cvt_pk_bf16_f32 v{d+i}, v{s_+2*i}, v{s_+2*i+1}')
        self.cvt8 = cvt8
        fq = self.fq = [(m, i) for m in range(3) for i in range(4)]
        held = self.held = ([], [])
        def f_src(m, i, far=0):
            q = (i * 8 * 7168 + far * 4 * 32 * 7168, i * 4096 + far * 4 * 16384)[m == 2]
            S(sU, ('fg', 'fd')[m == 2] + ' + q', q=q & 0xffffffff)
            return (vFG, (rWG, rWU)[m]) if m < 2 else (vFD, rWD)
        def f_lds(m, i): return (L_GU + m * 32768 if m < 2 else L_DN) + i * 1024
        def f_ld(g, k, far, count=True):
            m, i = held[g][k]
            v, r = f_src(m, i, far * (1 - 2 * g))
            a(f'buffer_load_dwordx4 {vr(FL + 8*k + 4*far, 4)}, v{v}, {sr(r, 4)}, s{sU} offen nt')
            if count: vm.issue('ffn')
        sym = self.sym = []
        def ffn_reg(n=1):
            for _ in range(n):
                m, i = fq.pop(0)
                r0 = 8 * len(held[1]) + 4 * len(sym); assert r0 < 64 and (r0 < 32 or o['m2c'] >= 3)
                assert o['m2c'] != 4 or r0 < 32 or 'm2pub' in self.marks
                v, r = f_src(m, i)
                self.bl(FL + r0, 4, v, r, sU, 0, 'nt', 'ffr')
                sym.append((m, i, FL + r0))
        def ffn_dma(n=1):
            for _ in range(n):
                m, i = fq.pop(0)
                v, r = f_src(m, i)
                S('m0', 'w1k*4 + q', q=f_lds(m, i))
                self.dma(v, r, sU, 0, 'nt', 'ffn' if m < 2 or not o['dnsplit'] else 'fdn')
        self.ffn_reg, self.ffn_dma, self.f_lds = ffn_reg, ffn_dma, f_lds
        for _ in range(o['fA']): held[1].append(fq.pop(0))
        def m2_ld(i):
            if i == 0:
                S(sU, '((x & 3)*8 + w)*64'); self.va(m2c + 4, [(3, 3, 2)], sU, 0, m2c + 5)
                for k in range(4): a(f'global_load_ushort v{m2c+k}, v{m2c+4}, {sr(pC, 2)} offset:{16*k}'); vm.issue('m2')
            S(sU, 'm2 + q', q=i * 8 * 12288)
            self.bl(m2w + 4 * i, 4, self.vWM, rWM, sU, 0, 'nt', 'm2')
        wslot = lambda p: p
        def wo_dma(p, back=0):
            S(sU, '(y2 ^ q) + wo' + (' - 65536' if back else ''), q=p * 131072)
            S('m0', 'w1k + q', q=wslot(p) * 8192 - 4096 * back)
            self.dma(vWo, rWO, sU, 0, o.get('wom', ''), 'wo')
        self.wo_dma = wo_dma
        def poison(backs, t):
            a(f'v_mov_b32 v{t}, -1\nv_mov_b32 v{t+1}, -1\nv_mov_b32 v{t+2}, -1\nv_mov_b32 v{t+3}, -1')
            for back in backs:
                S(T6, '((rt*8 + w - q)*16 + cb)*256 + ST', q=4 * back); self.va(t + 4, [(0, 6, 4)])
                self.bs(t, 1, t + 4, rWS, T6, 0, 'sc1')
            S(T6, 'rt*16384 + cb*512 + XS'); self.va(t + 4, [(0, 5, 16), (5, 1, 8192)], None, 0, t + 5)
            a(f's_cmp_lg_u32 s{sWAVE}, 5\ns_cbranch_scc1 L_NOPO')
            self.bs(t, 4, t + 4, rWS, T6, 0, 'sc1', count=False)
            a('L_NOPO:')
        self.poison = poison
        def kv_prep():
            vPA, vPB, ones = AK + 28, AK + 29, AK + 24; assert o['fA'] <= 3
            self.va(vPB, [(0, 1, 8), (2, 2, 16), (4, 1, 64), (1, 1, 128), (5, 1, 256)], None, 0, vPA)
            S(T0, 'w*4096 + L_PHK'); a(f'v_add_u32 v{vPA}, s{T0}, v{vPB}')
            S(T0, 'kh*8192 + L_HV'); a(f'v_add_u32 v{vPB}, s{T0}, v{vPB}')
            for i in range(4): a(f'v_mov_b32 v{ones+i}, 0x3f803f80')
            S(T0, '((hp*8 + w)*32 + r1)*1024 + KVP'); S(T2, 'T0 + 16384')
            S(T3, '(hp*8 + w)*1024 + ZP'); S(T1, 'r1*64 + T3')
        seq = []
        for sg in range(36): seq += [(t, h, sg) for t in 'kqv' for h in range(2)]
        for sg in range(36, 40): seq += [('k', h, sg) for h in range(2)]
        for sg in range(36, 40): seq += [(t, h, sg) for t in 'qv' for h in range(2)]
        for h in range(2): seq += [('k', h, sg) for sg in range(40, 64)]
        for t in 'vq':
            for sg in range(40, 64): seq += [(t, h, sg) for h in ((1, 0) if (t, sg) == ('q', 63) else (0, 1))]
        bA, bH, bQ = o['bA'], o['bH'], 335
        assert bA >= 271
        bars = [24 * k - 1 for k in range(1, 10)] + [223, 239, 253, bA, bH, bQ]
        first, last = {}, {}
        for n, (t, h, sg) in enumerate(seq):
            first.setdefault(f'{t}{sg >> 2}', n); last[f'{t}{sg >> 2}'] = n; last[('A', sg)] = n
        if not o['lateB']: a(f's_cmp_ge_u32 s{sWAVE}, 4\ns_cbranch_scc1 L_HELP')
        a(f's_setprio {o["prio"]}')
        q_hok = list(vm.q)
        ACC = dict(k=AK, v=AV, q=AQ)
        nxt = [0]; late = []
        def a_load():
            while late: a(late.pop(0))
            sg = nxt[0]; nxt[0] += 1
            assert sg < 16 or cur[0] > bars[0]
            if o.get('noA') and sg >= 12: return
            self.bl(AR + 4 * (sg % 24), 4, SP + 1, rWS, T3, (sg % 4) * 1024, 'sc1', ('A', sg))
            if sg % 4 == 3: late.extend([f's_add_u32 s{T3}, s{T3}, 16384', f's_and_b32 s{T3}, s{T3}, 0x3ffff'])
        def b_read(n):
            t, h, sg = seq[n]
            s = sg & 3
            off = ((sg >> 2) % 6) * 8192 + (s >> 1) * 4096 + (s & 1) * 1024
            d = RING + 4 * (n % NB); v = vB + 2 * 'kvq'.index(t) + h
            self.tr(d, v, off, ('B', n)); self.tr(d + 2, v, off + 2048, ('B', n))
        self.nopk = True
        stk, stv = Stream(self), Stream(self)
        for h in range(2):
            for q in range(2):
                stk.cap(lambda: [a(f'v_cvt_pk_bf16_f32 v{AK+16*h+4*q+i}, v{AK+16*h+8*q+2*i}, v{AK+16*h+8*q+2*i+1}') for i in range(4)])
                stk.add(lambda h=h, q=q: self.dw('ds_write_b128', vHo, AK + 16 * h + 4 * q, 4, q * 1024, f'kh{h}'), o['wcost'], 1)
            stk.mark(f'kh{h}')
            if h == 0:
                stk.cap(lambda: a(f'v_subrev_u32 v{vHo}, {L_QH - L_HV}, v{vHo}'))
                stk.until(288 + o['kdel'])
        stk.until(bH + 1)
        stk.cap(lambda: (S(T1, 'rb*2048 + L_HV'), self.va(vHo, TOK, T1, 0, vT)))
        for h in range(2):
            for q in range(2):
                stv.cap(lambda: [a(f'v_cvt_pk_bf16_f32 v{AV+16*h+4*q+i}, v{AV+16*h+8*q+2*i}, v{AV+16*h+8*q+2*i+1}') for i in range(4)])
                stv.add(lambda h=h, q=q: self.dw('ds_write_b128', vHo, AV + 16 * h + 4 * q, 4, h * 8192 + q * 1024, 'vst'), o['wcost'], 1)
        stv.cap(kv_prep)
        if o['m2c'] == 0:
            stv.sleep(4)
            stv.add(lambda: lg.wait('vst'))
            for i in range(4): stv.add(lambda i=i: m2_ld(i), 0, 1); stv.sleep(o.get('fgap', 4))
        while nxt[0] < o['A00']: a_load()
        vm.wait(('W', 3 if o['xorw'] else 1))
        a('s_barrier')
        self.stamp('hok')
        if not nxt[0]: a_load()
        for n in range(LOOK): b_read(n)
        while nxt[0] < o['A0']: a_load()
        seen = set(); lpend = []; owe = [0]
        Apos = list(o['Apos']); assert o['A0'] + sum(Apos) == 64
        for n in range(384):
            t, h, sg = seq[n]; cur[0] = n
            if ('A', sg) not in seen:
                assert sg < nxt[0]
                vm.wait(('A', sg)); seen.add(('A', sg))
            lg.wait(('B', n))
            d = ACC[t] + 16 * h
            a(f'v_mfma_f32_32x32x16_bf16 {vr(d, 16)}, {vr(RING + 4*(n % NB), 4)}, {vr(AR + 4*(sg % 24), 4)}, ' + (vr(d, 16) if sg else '0'))
            if self.prof and o.get('ls'):
                l0, l1, lst = o['ls']
                if lpend and n >= lpend[0][0]:
                    _, r_, k_ = lpend.pop(0); a(f'v_writelane_b32 v255, s{r_}, {k_}')
                if l0 <= n < l1 and (n - l0) % lst == 0:
                    r_ = sPL + 2 * (self.nst % 4)
                    a.items.append(('raw', f'    s_memtime {sr(r_, 2)}')); lpend.append((n + 4, r_, self.nst)); self.stnames.append(f'n{n}'); self.nst += 1
            def a_try():
                p, r = divmod(n, 24)
                ao = o['aoff'] if p else 0; r -= ao
                if n < 240 and r >= 0 and (r + 1) * Apos[p] // (24 - ao) > r * Apos[p] // (24 - ao): owe[0] += 1
                if owe[0] and (nxt[0] < 24 or last[('A', nxt[0] - 24)] <= n): a_load(); owe[0] -= 1
                elif late: a(late.pop(0))
            if o['apos'] == 0: a_try()
            bud = [o['kbud'], 1]
            if n >= 264 + o['kdel']: stk.pull(bud, bud[0])
            bud = [o['vbud'], 1]
            if n > bQ + 2: stv.pull(bud, bud[0])
            if n + LOOK < 384: b_read(n + LOOK)
            if o['apos'] == 1: a_try()
            if n in bars:
                if n in (bA, bH):
                    assert f'kh{int(n == bH)}' in self.marks
                    lg.wait(f'kh{int(n == bH)}')
                    if 'prio2' in o and n == bA: a(f's_setprio {o["prio2"]}')
                if not (o.get('noB') and n < 200): a('s_barrier')
                if o.get('gst'): self.stamp(f'b{n}')
        assert not (stk.q or stv.q) and nxt[0] == 64
        self.stamp('gemm1')
        vq, wph = AR + 16, AR + 24
        S(T4, 'rb*2048 + L_QH'); a(f'v_add_u32 v{vHo}, s{T4}, v{vL16}')
        va(vT, [(2, 2, 64), (4, 1, 32), (0, 2, 8), (5, 1, 256)], None, L_WPHI)
        for s in range(2):
            for u in range(2): self.tr(wph + 4 * s + 2 * u, vT, s * 1024 + u * 512)
        cvt8(AR, AQ + 16)
        for q in range(2): self.dw('ds_write_b128', vHo, AR + 4 * q, 4, q * 1024)
        cvt8(vq, AQ)
        if o['m2c'] == 1:
            for i in range(4): m2_ld(i)
        a('s_setprio 0')
        a('s_branch L_JOIN')
        a('L_HELP:')
        vm.q = list(q_hok); lg.reset()
        vm.wait(('W', 3 if o['xorw'] else 1))
        a('s_barrier')
        vis = {}
        pace = [1]
        def w_sec(t, n):
            if o.get('noW'): return
            for back in (1, 0):
                S(sU, '((u0 + n) & 15)*UR + wb + q', n=n, q=(dict(q=0, k=2048, v=4096)[t] - back * 4 * 49152) & 0xffffffff)
                S('m0', 'w1k + q', q='kvq'.index(t) * REG + (n % 6) * 8192 - back * 4096)
                self.dma(vWd, rW, sU, 0, '', ('W', t, n))
                if o['wpace'] and pace[0]: a(f's_waitcnt vmcnt({o["wpace"]})')
        for n, t in self.wq: w_sec(t, n)
        if o['lateB']:
            lg.wait_all(); self.bpoll()
        ka, wp2, pa, pb, ee, vPW = AR, AR + 16, AR + 32, AR + 48, AR + 64, AR + 80
        va(vT, [(2, 2, 64), (4, 1, 32), (0, 2, 8), (5, 1, 256)], None, L_WPHI)
        for hs in range(4):
            for u in range(2): self.tr(wp2 + 4 * hs + 2 * u, vT, hs * 1024 + u * 512)
        S(T1, 'rb*1024 + L_PHK'); va(vPW, TOK, T1)
        def touch(boxes):
            a('s_waitcnt lgkmcnt(0)')
            for q, b in enumerate(boxes):
                a(f's_load_dword s{sPL + 2*q}, {sr(rWS, 2)}, s{sINB} offset:{b * 512} glc')
                a(f's_load_dword s{sPL + 2*q + 1}, {sr(rWS, 2)}, s{sINB} offset:{b * 512 - 256} glc')
        wsched = {int(k): v.split() for k, v in o['wsched'].items()}
        for k in range(1, 5): wsched[k] = [f'{t}{k + 5}' for t in 'kqv'] + wsched.get(k, [])
        need = {}
        for u in first:
            k = len([b for b in bars if b < first[u] - LOOK])
            if k: need.setdefault(k, []).append(u)
        done = {f'{t}{n}' for n in range(6) for t in 'kvq'}
        def h_bar(k):
            if k < 5: vm.wait(('W', k + 1))
            for u in need.get(k, []):
                assert u in done, (u, k)
                vm.wait(('W', u[0], int(u[1:])))
            if not (o.get('noB') and k < 9): a('s_barrier')
            for u in wsched.get(k, []):
                assert last[f'{u[0]}{int(u[1:]) - 6}'] <= bars[k - 1], (u, k)
                w_sec(u[0], int(u[1:])); done.add(u)
        hm, hc, ha, ht = AV, AQ, AQ + 8, AQ + 16
        if o.get('fP'): S(T4, o['fP'])
        if o['m2c'] == 4:
            hc, ha, ht = RING + 8, AR + 44, vT + 4
            def m2h(i):
                S(sU, 'T6 + q', q=i * 8 * 12288)
                self.bl(hm + 4 * i, 4, self.vWM, rWM, sU, 0, 'nt')
        if o['m2c'] >= 3:
            S(T5, o['m2k3'])
            S(sU, '((x & 3)*4 + w - 4)*128'); self.va(ht, [(3, 3, 2)], sU)
            for i in range(8): a(f'global_load_ushort v{hc+i}, v{ht}, {sr(pC, 2)} offset:{16*i}'); vm.issue('c2')
            S(T6, '((x & 3)*4 + w - 4)*(64*12288) + (j*2 + (x >> 2))*128 + 4096')
        for k in range(1, 14):
            if k == 13: lg.wait_all()
            if o['m2c'] == 3 and k == o['m2e'] + 1: lg.wait_all()
            h_bar(k)
            if o['m2c'] == 4 and k == o['m2k0']:
                for i in range(o['m2n0']): m2h(i)
            if o['m2c'] == 4 and k == 3:
                vm.wait('c2')
                for i in range(8):
                    a(f'v_lshlrev_b32 v{hc+i}, 16, v{hc+i}')
                    self.silu(hc + i, ht + (i & 1))
            if o['m2c'] == 3:
                nb = o['m2nb']
                for b in range(nb):
                    if k <= o['m2g'] - o.get('m2lag', 2) and k - b * o['m2db'] >= 1:
                        a(f's_cmp_lg_u32 s{T5}, {k - b * o["m2db"]}\ns_cbranch_scc1 L_NM2_{k}_{b}')
                        for i in range(b * 8 // nb, (b + 1) * 8 // nb):
                            S(sU, 'T6 + q', q=i * 8 * 12288)
                            a(f'buffer_load_dwordx4 {vr(hm + 4*i, 4)}, v{self.vWM}, {sr(rWM, 4)}, s{sU} offen nt')
                        a(f'L_NM2_{k}_{b}:')
                if k == 3:
                    vm.wait('c2')
                    for i in range(8):
                        a(f'v_lshlrev_b32 v{hc+i}, 16, v{hc+i}')
                        self.silu(hc + i, ht + (i & 1))
                g0 = o['m2g']
                ke = o['m2e']
                if g0 <= k <= ke:
                    if k == g0:
                        vm.wait(('W', 'k', k + 4 if o.get('m2lag', 2) == 2 else k + 5))
                        mops = self.gemv_ops([hm + 4 * i for i in range(8)], [hc + i for i in range(8)], ha, ht, ht + 1, False)
                    if o.get('gprio'): a('s_setprio 3')
                    for _ in range(len(mops) if k == ke else 144 // (ke + 1 - g0)): a(mops.pop(0))
                    if o.get('gprio'): a('s_setprio 0')
                    if k == ke: self.dw('ds_write_b32', self.vGA, ha, 1, L_M2 - MISC)
                if k == ke + 1:
                    a(f"""s_cmp_lg_u32 s{sWAVE}, 4
                    s_cbranch_scc1 L_M2F
                    ds_read_b128 {vr(ha, 4)}, v{self.vL32S} offset:{L_M2 - MISC + 16}""")
                    S(T0, '((j*2 + (x >> 2))*4 + (x & 3))*512 + MODP2')
                    a(f"""s_waitcnt lgkmcnt(0)
                    v_add_f32 v{ha}, v{ha}, v{ha+1}
                    v_add_f32 v{ha+2}, v{ha+2}, v{ha+3}
                    v_mov_b32 v{ha+1}, s{sTAG}
                    v_add_f32 v{ha}, v{ha}, v{ha+2}""")
                    self.bs(ha, 2, self.vL8, rWS, T0, 0, 'sc1', count=False)
                    a('L_M2F:')
            if o.get('fP') and k <= 8:
                a(f's_cmp_lg_u32 s{T4}, {k}\ns_cbranch_scc1 L_NFP_{k}')
                for i in range(o.get('fPn', o['fA'])):
                    for far in range(2): f_ld(1, i, far, False)
                a(f'L_NFP_{k}:')
            if k == 2 and o['poisat'] == 0: poison((0, 1), AR + 88); S(T6, '((x & 3)*4 + w - 4)*(64*12288) + (j*2 + (x >> 2))*128 + 4096')
            if k in (1, 3, 5) and o.get('touch', 1): touch({1: (1, 7), 3: (2, 3), 5: (5, 6)}[k])
            if k == o['tlbk'] and o['tlb'] & 2:
                a(f's_cmp_lg_u32 s{sWAVE}, 7\ns_cbranch_scc1 L_NTLB\ns_waitcnt lgkmcnt(0)')
                S(T0, '(j & 15)*2097152'); S(T1, '(j & 3)*2097152'); S(T2, '(j & 1)*2097152')
                a(f's_load_dword s{sPL}, {sr(rWS, 2)}, s{T0} offset:0')
                for q, r in enumerate((rWG, rWU, rWD)): a(f's_load_dword s{sPL + 1 + q}, {sr(r, 2)}, s{T1} offset:0')
                a(f's_load_dword s{sPL + 4}, {sr(rOUT, 2)}, s{T2} offset:0')
                a(f's_load_dword s{sPL + 5}, {sr(rWO, 2)}, 0')
                a('L_NTLB:')
            if k == 4 and o.get('tm2'):
                S(T0, '((j*2 + (x >> 2))*4 + (x & 3))*512 + (w - 4)*128 + MODP2')
                a('s_waitcnt lgkmcnt(0)')
                for q in range(2): a(f's_load_dword s{sPL + q}, {sr(rWS, 2)}, s{T0} offset:{q * 64} glc')
            if k == 6 and o['tz']:
                S(T0, '(hp*8 + w - 4)*1024 + r1*64 + ZP'); S(T1, '(rt*16 + cb)*64 + UP')
                a('s_waitcnt lgkmcnt(0)')
                for q in range(2): a(f's_load_dword s{sPL + q}, {sr(rWS, 2)}, s{T0} offset:{q * 4096} glc')
                a(f's_load_dword s{sPL + 2}, {sr(rWS, 2)}, s{T1} offset:0 glc')
            if k == 12: kv_prep()
            if k == 8 and o.get('touch', 1):
                S(T0, 'fs*8192 + (w - 4)*256 + HGR')
                a('s_waitcnt lgkmcnt(0)')
                for q in range(4): a(f's_load_dword s{sPL + q}, {sr(rWS, 2)}, s{T0} offset:{q * 2048 + 1024 + 252} glc')
        pace[0] = 0
        def logits(h, pp):
            if o.get('hprio'): a(f's_setprio {o["hprio"]}')
            for q in range(2): self.r128(ka + 4 * q, vHo, q * 1024, ('kh', q))
            if h == 0: a(f'v_subrev_u32 v{vHo}, {L_QH - L_HV}, v{vHo}')
            for q in range(2):
                lg.wait(('kh', q))
                a(f'v_mfma_f32_32x32x16_bf16 {vr(pp, 16)}, {vr(wp2 + 8*h + 4*q, 4)}, {vr(ka + 4*q, 4)}, ' + (vr(pp, 16) if q else '0'))
            if o.get('hprio') and not o.get('hlong'): a('s_setprio 0')
        logits(0, pa)
        self.stamp('klog')
        hs = Stream(self)
        for h, pp in ((0, pa), (1, pb)):
            hs.cap(lambda: self.softmax_pm(pp, ee, ee, vT))
            k = max(i for i, it in enumerate(hs.q) if it[0] == 4.75) - 8
            tailq = hs.q[k + 1:]; hs.q = hs.q[:k + 1]
            wr = lambda fb, h=h: (0, 0, lambda: self.dw('ds_write_b128', vPW, ee + 4 * fb, 4, h * 16384 + fb * 4096, ('phk', h)))
            hs.q += [wr(0)] + tailq[:4] + [wr(1), wr(2)] + tailq[4:] + [wr(3)]
            if h == 0:
                n1 = len(hs.q)
                hs.add(lambda: None)
        hs.q.insert(n1 + 34, (0, 0, lambda: lg.wait(('phk', 0))))
        ex = {}
        def put(i, fn):
            while i in ex: i += 1
            ex[i] = fn
        nq = int(n1 * o['hq'])
        put(nq, lambda: h_bar(15))
        nh = int(n1 * o['hh'])
        put(nh, lambda: (h_bar(14), logits(1, pb)))
        g1, g2 = o['hgap']
        if o.get('hpf'):
            put(int(n1 * o['hpf'][0]), lambda: a('s_setprio 3')); put(int(n1 * o['hpf'][1]), lambda: a('s_setprio 0'))
        ff = [(lambda k=k, far=far: f_ld(1, k, far)) for k in range(o['fA']) for far in range(2) if not (o.get('fP') and k < o.get('fPn', 9))]
        pre = [(lambda k=k: m2_ld(k)) for k in range(4)] if o['m2c'] < 2 else []
        if o['m2c'] == 4:
            for i in range(o['m2n0'], 8): put(3 + o['m2gap'] * (i - o['m2n0']), lambda i=i: m2h(i))
            self.m2h = (hm, hc, ha, ht)
        npre = o['fpre'] - len(pre)
        pre += ff[:npre]; ff = ff[npre:]
        for k, fn in enumerate(pre): put(nh + 5 + g1 * k, fn)
        wl = self.wo_left = [6, 7, 8, 9, 10, 11] + [12, 13, 14, 15] + [0, 1, 2, 3, 4, 5]
        post = []
        for k in range(o['woA']): post += [lambda: wo_dma(wl[0], 1), lambda: wo_dma(wl.pop(0))]
        post = post[:8] + ff + post[8:] if o.get('wofirst', 1) else ff + post
        for k, fn in enumerate(post): put(nq + 5 + g2 * k, fn)
        for i, (v_, l_, fn) in enumerate(hs.q):
            if i in ex: ex.pop(i)()
            fn()
        for i in sorted(ex): ex[i]()
        self.nopk = False
        S(T4, 'rb*2048 + L_QH'); a(f'v_add_u32 v{vHo}, s{T4}, v{vL16}')
        assert wph == wp2 + 8
        if o.get('hprio'): a('s_setprio 0')
        self.stamp('ksm')
        a('L_JOIN:')
        vm.q = ['m2'] * (8 if o['m2c'] < 2 else 0); lg.q = [None]
        self.m2_ld = m2_ld
        self.vHo = vHo

    def middle(self):
        a, vm, lg, o, S, va = self.a, self.vm, self.lg, self.o, self.S, self.vaa
        vL8, vL32S, vGA, vHo, ffn_reg = self.vL8, self.vL32S, self.vGA, self.vHo, self.ffn_reg
        pp, ee, ph, vq, wph = AQ, AQ + 16, AR, AR + 16, AR + 24
        fA, fB, kvd, zd, ones = AR + 32, AR + 48, AR + 80, AR + 88, AK + 24
        kp, zz, zf, kf, k2 = AR + 32, AR + 40, AR + 44, AR + 60, AR + 76
        m2w, m2a, m2c, m2t = AV, AV + 16, AV + 24, AV + 28
        vPA, vPB, vPC, vKP, vXF = AK + 28, AK + 29, RING + 18, RING + 19, RING + 20
        md, wr1 = RING, RING + 4
        self.md, self.wr1 = md, wr1
        wl = self.wo_left
        wo1 = lambda: self.wo_dma(wl.pop(0))
        fw = o['fwin']
        self.barrier()
        self.stamp('phik')
        def kvm(u):
            lg.wait(('kv', u))
            for db in range(2):
                a(f'v_mfma_f32_16x16x32_bf16 {vr(kvd + 4*db, 4)}, {vr(fA + 4*u, 4)}, {vr(fB + 8*u + 4*db, 4)}, ' + ('0' if u == 0 else vr(kvd + 4*db, 4)))
            a(f'v_mfma_f32_16x16x32_bf16 {vr(zd, 4)}, {vr(fA + 4*u, 4)}, {vr(ones, 4)}, ' + ('0' if u == 0 else vr(zd, 4)))
        for ts in range(4):
            self.tr(fA + 4 * ts, vPA, ts * 1024, ('kv', ts)); self.tr(fA + 4 * ts + 2, vPA, ts * 1024 + 512, ('kv', ts))
            for db in range(2):
                for rd in range(2): self.tr(fB + 8 * ts + 4 * db + 2 * rd, vPB, ts * 2048 + db * 1024 + rd * 512, ('kv', ts))
            if ts >= 2: kvm(ts - 2)
        kvm(2); kvm(3)
        a(f"""s_cmp_lt_u32 s{sWAVE}, 4
        s_cbranch_scc1 L_NOQX
        ds_read_b128 {vr(vq, 4)}, v{vHo}
        ds_read_b128 {vr(vq + 4, 4)}, v{vHo} offset:1024
        L_NOQX:""")
        self.bs(kvd, 4, vL16, rWS, T0, 0, 'sc1', 'kvs')
        self.bs(kvd + 4, 4, vL16, rWS, T2, 0, 'sc1', 'kvs')
        a('s_mov_b32 exec_lo, 0x00010001')
        a('s_mov_b32 exec_hi, 0x00010001')
        self.bs(zd, 4, vL, rWS, T1, 0, 'sc1', 'kvs')
        a('s_mov_b64 exec, -1')
        lg.wait_all()
        a(f'v_mfma_f32_32x32x16_bf16 {vr(pp, 16)}, {vr(wph, 4)}, {vr(vq, 4)}, 0')
        a(f'v_mfma_f32_32x32x16_bf16 {vr(pp, 16)}, {vr(wph + 4, 4)}, {vr(vq + 4, 4)}, {vr(pp, 16)}')
        self.stamp('kvst')
        if o['wo0']:
            a('s_barrier')
            for _ in range(o['wo0']): assert wl[0] >= 6; wo1()
        if o['poisat'] == 1: self.poison((0,), AR + 84)
        if o['m2c'] == 2:
            for i in range(4): self.m2_ld(i)
        va(vPC, [(0, 3, 32 * 4096), (3, 1, 4 * 4096)])
        S(T4, '(wg & 0x1b)*4096 + (r1 >> 1)*64 + (r1 & 1)*4 + INB + 512')
        va(vKP, [(3, 3, 1024), (0, 3, 16)])
        va(vXF, [(0, 3, 16), (5, 1, 8)])
        qm, qs = o['qmid'], o['qsplit']
        self.softmax_pm(pp, ee, ph, vT, part=1, split=qm)
        vm.wait('kvs')
        a('s_barrier')
        self.push(vPC, T4, 16, vPB, 'L_PC')
        self.stamp('kvpub')
        if o['poisat'] == 2: self.poison((0,), AR + 84)
        self.weave(lambda: [a(f'v_exp_f32 v{r+i}, v{r+i}') for i in range(qm, qs) for r in (ee, pp)], [wo1] * o['wowin'][0])
        S(T0, '(hp*16 + r1)*16384 + w*128 + KVP'); S(T1, 'T0 + 8192')
        S(T2, '(hp*16 + r1)*1024 + w*128 + KIN'); S(T4, 'T4 + 6*512')
        def sel_prep2():
            vDr, vHs, vSt = RING + 7, RING + 26, RING + 27
            S(T6, 'w*64')
            va(vDr, [(2, 1, 512), (3, 1, 4096), (5, 1, 2048), (2, 2, 64), (4, 1, 32), (0, 2, 8)])
            a(f'v_xor_b32 v{vDr}, s{T6}, v{vDr}'); a(f'v_add_u32 v{vDr}, {L_DN}, v{vDr}')
            va(vHs, [(0, 4, 16), (5, 1, 8)])
            va(vSt, [(0, 4, 16), (4, 2, 4)])
        def sel_prep():
            vGr, vXs = RING + 6, RING + 24; assert o['AD2'] <= 8
            S(T6, '(w >> 2)*32768 + (w & 3)*32 + L_GU')
            va(vGr, [(4, 2, 8192), (2, 2, 128), (3, 2, 32), (0, 2, 8)]); a(f'v_xor_b32 v{vGr}, s{T6}, v{vGr}')
            S(T6, 'kq*2048 + XS'); va(vXs, [(0, 3, 16), (4, 2, 512)], T6)
            va(vXs + 1, [(0, 4, 512)], None, XS + 256)
            S(sZ0, 'fs*8192 + HGR'); S(sZ1, '(kq*8 + w)*256 + z0')
            S(sZ2, '((rt*8 + w)*16 + cb)*256 + ST')
            S(sZ3, '((rt >> 2)*2 + (rt & 3)*64)*4096 + (cb >> 1)*64 + (cb & 1)*4 + INB + 1536')
            S(sROW0, '(rt*8 + w)*32768 + cb*128'); S(sROW1, 'row0 + 16384')
        self.inbox(1, 2, work=lambda: (self.weave(lambda: self.softmax_pm(pp, ee, ph, vT, part=2, split=qs), [wo1] * o['wowin'][1]), self.stamp('cw')))
        a('s_barrier')
        self.stamp('kvok')
        self.bl(kp, 4, vKP, rWS, T0, 0, 'sc1', 'kp')
        self.bl(kp + 4, 4, vKP, rWS, T1, 0, 'sc1', 'kp')
        self.bl(zz, 4, vL16, rWS, T3, 0, 'sc1', 'z')
        if fw[0]: a('s_barrier')
        ffn_reg(fw[0])
        S(T1, 'w*32 + L_ZF'); va(vT + 2, [(0, 2, 8), (5, 1, 4)], T1)
        S(T1, 'w*1024 + L_KVF'); va(vT + 1, [(0, 4, 16), (5, 1, 512), (4, 1, 8)], T1)
        S(T1, 'kh*128 + L_ZF'); va(vT + 3, [(5, 1, 16)], T1)
        S(T1, 'kh*4096 + L_KVF'); a(f'v_add_u32 v{vPA}, s{T1}, v{vL16}')
        M2 = o['m2c'] < 3
        m2ops = []; k = o.get('m2k', 24)
        if M2:
            vm.wait('m2')
            for i in range(4):
                a(f'v_lshlrev_b32 v{m2c+i}, 16, v{m2c+i}')
                self.silu(m2c + i, m2t + (i & 1))
            m2ops = self.gemv_ops([m2w + 4 * i for i in range(4)], [m2c + i for i in range(4)], m2a, m2t, m2t + 1, True)
        for s_ in m2ops[:k]: a(s_)
        if o['m2c'] == 4:
            hm, hc, ha, ht = self.m2h
            hops = self.gemv_ops([hm + 4 * i for i in range(8)], [hc + i for i in range(8)], ha, ht, ht + 1, True)
            a(f's_cmp_lt_u32 s{sWAVE}, 4\ns_cbranch_scc1 L_HG1')
            for s_ in hops: a(s_)
            a(f'ds_write_b32 v{vGA}, v{ha} offset:{L_M2 - MISC}\nL_HG1:')
        def red4(r, ctls):
            for i in range(2): a(f'v_permlane32_swap_b32 v{r+i}, v{r+2+i}')
            self.pk('add', r, r, r + 2)
            for ctl in ctls:
                for i in range(2): self.dpp('v_add_f32', r + i, r + i, r + i, ctl)
            for i in range(2): a(f'v_mov_b32 v{r+2+i}, v{r+i}')
            for i in range(2): a(f'v_permlane16_swap_b32 v{r+i}, v{r+2+i}')
            self.pk('add', r, r, r + 2)
            a(f'v_cvt_pk_bf16_f32 v{r}, v{r}, v{r+1}')
        vm.wait('kp')
        self.pk('add', kp, kp, kp + 4); self.pk('add', kp + 2, kp + 2, kp + 6)
        red4(kp, ['row_ror:8'])
        a(f"""v_mov_b32 v{kp+1}, s{sTAG}
        s_mov_b32 exec_lo, 0xff
        s_mov_b32 exec_hi, 0xff""")
        self.bs(kp, 2, vXF, rWS, T2, 0, 'sc1')
        a('s_mov_b64 exec, -1')
        if o['C2dir'] == 0:
            self.barrier()
            self.push(vPC, T4, 16, vPB, 'L_PC2')
        if o['m2c'] == 4:
            a(f"""s_cmp_lg_u32 s{sWAVE}, 3
            s_cbranch_scc1 L_M2F
            ds_read_b128 {vr(ha, 4)}, v{vL32S} offset:{L_M2 - MISC + 16}""")
            S(T5, '((j*2 + (x >> 2))*4 + (x & 3))*512 + MODP2')
            a(f"""s_waitcnt lgkmcnt(0)
            v_add_f32 v{ha}, v{ha}, v{ha+1}
            v_add_f32 v{ha+2}, v{ha+2}, v{ha+3}
            v_mov_b32 v{ha+1}, s{sTAG}
            v_add_f32 v{ha}, v{ha}, v{ha+2}""")
            self.bs(ha, 2, vL8, rWS, T5, 0, 'sc1', count=False)
            a('L_M2F:')
            self.marks.add('m2pub')
        self.stamp('c2pub')
        num, den = pp, ee
        vm.wait('z')
        self.weave(lambda: (red4(zz, ['row_ror:4', 'row_ror:8']), [a(s_) for s_ in m2ops[k:]]), [wo1] * o['wowin'][2])
        self.dw('ds_write_b32', vT + 2, zz, 1)
        if M2: self.dw('ds_write_b32', vGA, m2a, 1, L_M2 - MISC)
        self.barrier()
        for fb in range(4): self.r128(zf + 4 * fb, vT + 3, fb * 32)
        if M2: self.r128(m2a, vL32S, L_M2 - MISC); self.r128(m2a + 4, vL32S, L_M2 - MISC + 16)
        S(T5, '((j*2 + (x >> 2))*4 + (x & 3))*512 + MODP2')
        lg.wait_all()
        S(T0, '(hp*8 + w)*2048 + KIN')
        def den_work():
            for fb in range(4):
                a(f'v_mfma_f32_32x32x16_bf16 {vr(den, 16)}, {vr(zf + 4*fb, 4)}, {vr(ph + 4*fb, 4)}, ' + ('0' if fb == 0 else vr(den, 16)))
            sel_prep()
            if M2:
                a(f's_cmp_lg_u32 s{sWAVE}, 3\ns_cbranch_scc1 L_M2F')
                self.nopk = True; self.sum8(m2a); self.nopk = False
                a(f'v_mov_b32 v{m2a+1}, s{sTAG}')
                self.bs(m2a, 2, vL8, rWS, T5, 0, 'sc1', count=False)
                a('L_M2F:')
            self.round1(den)
            a(f'v_add_f32 v{den}, 0x358637bd, v{den}')
            self.round1(den)
            a(f'v_rcp_f32 v{den}, v{den}')
            self.stamp('c2w')
        ldk2 = lambda: [self.bl(k2 + 4 * q, 4, vL16, rWS, T0, q * 1024, 'sc1') for q in range(2)]
        if o['C2dir'] == 0:
            self.inbox(7, 2, work=den_work)
            self.stamp('c2h')
        if o['C2dir'] == 2: den_work()
        self.try_load(ldk2, [k2 + 1, k2 + 3, k2 + 5, k2 + 7], vT, lambda: (ffn_reg(fw[1]), sel_prep2(), den_work() if o['C2dir'] == 1 else None))
        for db in range(2):
            a(f'ds_write2_b32 v{vT+1}, v{k2+4*db}, v{k2+4*db+2} offset0:{64*db} offset1:{64*db+1}'); lg.issue()
        self.barrier()
        self.stamp('kvred')
        for fb in range(4): self.r128(kf + 4 * fb, vPA, fb * 1024, ('kf', fb))
        S(T0, '((r1*8 + rb*2)*32 + hp*2 + kh)*1024 + OF')
        va(vKP, [(0, 4, 16), (4, 1, 32768), (5, 1, 256)])
        for fb in range(4):
            lg.wait(('kf', fb))
            a(f'v_mfma_f32_32x32x16_bf16 {vr(num, 16)}, {vr(kf + 4*fb, 4)}, {vr(ph + 4*fb, 4)}, ' + ('0' if fb == 0 else vr(num, 16)))
        S(T5, '((w >> 1)*16 + cb)*2048 + (w & 1)*1024 + MODP2')
        self.ld_md = lambda: self.bl(md, 4, vL16, rWS, T5, 0, 'sc1', 'md')
        S(T6, 'cb*128'); va(vPA, [(0, 2, 2), (5, 1, 8), (4, 1, 16), (2, 2, 32)], T6)
        a(f'global_load_ushort v{wr1}, v{vPA}, {sr(pWR, 2)}'); vm.issue('md')
        if not o['mdlate']: self.ld_md()
        for h in range(2):
            self.round_list([num + i for i in range(8 * h, 8 * h + 8)])
            for i in range(8 * h, 8 * h + 8, 2): self.pk('mul', num + i, num + i, den, bc=(1,))
            for i in range(4 * h, 4 * h + 4): a(f'v_cvt_pk_bf16_f32 v{vq+i}, v{num+2*i}, v{num+2*i+1}')
            self.bs(vq + 4 * h, 4, vKP, rWS, T0, 512 * h, 'sc1', 'os')
        self.stamp('ost')
        if o['mdlate']: self.ld_md()
        if o['poisat'] == 3: self.poison((0,), AR + 84)
        while wl: wo1()

    def gemm2(self):
        a, vm, lg, o, S, va = self.a, self.vm, self.lg, self.o, self.S, self.vaa
        md, wr1, fw = self.md, self.wr1, o['fwin']
        AD2 = o['AD2']
        R = self.R = dict(acc=AQ, gaf=AQ + 16, cbf=AR + 16, sbf=AV, gbf=AV + 16, xf=AR, fr=AR + 32, Br=AR + 40, Ar=AR + 72, vB=RING + 8, sv=RING, up=RING + 12)
        acc, gaf, cbf, sbf, gbf, xf, fr, Br, Ar, vB, sv, up = [R[k] for k in 'acc gaf cbf sbf gbf xf fr Br Ar vB sv up'.split()]
        ARS = [Ar + 4 * i for i in range(6)] + [RING + 16, RING + 20, RING + 24]; assert AD2 <= 9
        va(vB, [(2, 2, 128), (4, 2, 1024), (0, 1, 16), (1, 1, 8), (3, 2, 32)])
        S(T4, '(w ^ (%s))*4096' % o['g2r']); S(T1, '(T4*4) ^ (y2 >> 4)')
        a(f'v_add_u32 v{vB}, s{T1}, v{vB}')
        for ct in range(1, 4): a(f'v_xor_b32 v{vB+ct}, {32*ct}, v{vB}')
        va(vT + 1, [(0, 3, 8 * 4096), (3, 1, 4096)])
        S(T2, '((r1 >> 2)*2 + (r1 & 3)*64)*4096 + (hp >> 1)*64 + (hp & 1)*4 + INB + 1024')
        for i in range(8): self.unpack(xf + 2 * i, xf + 2 * i + 1, XR + i)
        S(T6, '(rt*8 + w)*32768 + OF' if not o.get('fake84') else '(r1*8 + w)*32768 + OF')
        def md_stage():
            vm.wait('md')
            self.tagcheck([md + 1, md + 3], vT + 2)
            a('s_cbranch_vccz L_MGOK')
            q0 = list(vm.q)
            self.poll(self.ld_md, [md + 1, md + 3], vT + 2)
            vm.q = q0
            a('L_MGOK:')
            a(f'ds_write2_b32 v{vT}, v{md}, v{md+2} offset0:0 offset1:4'); lg.issue()
        S(T1, '(w >> 1)*1024 + (w & 1)*8 + L_MD'); va(vT, [(0, 5, 32), (5, 1, 4)], T1)
        va(vT + 3, [(0, 2, 16), (5, 1, 64), (4, 1, 128), (2, 2, 256)], None, L_MD)
        if not o['mdlate']: md_stage()
        vm.wait('os'); vm.wait('wo')
        self.barrier()
        self.push(vT + 1, T2, 16, vT + 2, 'L_PD')
        self.stamp('opub')
        if o['mdlate']: md_stage(); self.barrier()
        S(T5, 'wg*4096 + (T4 >> 6) + INB + 1024')
        self.ffn_reg(fw[2])
        t4 = Br
        for q in range(4): self.r128(t4 + 4 * q, vT + 3, q * 1024)
        va(vT + 4, [(0, 2, 4), (5, 1, 16), (4, 1, 32), (2, 2, 64)], None, L_GB)
        S(T0, '(rt*16 + cb)*64 + UP')
        lg.wait_all()
        def d_work():
            for q in range(4):
                self.pk('add', t4 + 4 * q, t4 + 4 * q, t4 + 4 * q + 2)
                a(f'v_add_f32 v{sv+q}, v{t4+4*q}, v{t4+4*q+1}')
            self.round_list([sv + q for q in range(4)])
            a(f'v_add_f32 v{sv+2}, 1.0, v{sv+2}')
            a(f'v_lshlrev_b32 v{wr1}, 16, v{wr1}')
            self.round1(sv + 2)
            a(f'ds_write_b32 v{vT+4}, v{sv+3}')
            uu, hi, lo, t = t4, t4 + 1, t4 + 2, t4 + 4
            a(f'v_mul_f32 v{uu}, v{sv+2}, v{wr1}')
            a(f'v_cvt_pk_bf16_f32 v{hi}, 0, v{uu}')
            a(f'v_sub_f32 v{lo}, v{uu}, v{hi}')
            self.allreduce(uu, t + 3)
            for k, r in enumerate((hi, lo, wr1)): a(f'v_mov_b32_dpp v{t+k}, v{r} row_shl:1 row_mask:0xf bank_mask:0xf')
            for k, r in enumerate((hi, lo, wr1)): a(f'v_cvt_pk_bf16_f32 v{t+k}, v{r}, v{t+k}')
            a(f"""v_mov_b32 v{uu+1}, s{sTAG}
            v_mov_b32 v{uu+2}, 0
            s_cmp_lg_u32 s{sWAVE}, 2
            s_cbranch_scc1 L_NOUP
            s_mov_b64 exec, 1""")
            self.bs(uu, 2, uu + 2, rWS, T0, 0, 'sc1', count=False)
            a('s_mov_b64 exec, -1\nL_NOUP:')
            for i in range(8):
                a(f'v_mov_b32 v{fr+i}, 0x3f803f80')
                for k in range(3): a(f'v_mov_b32_dpp v{fr+i}, v{t+k} row_newbcast:{2*i} row_mask:0xf bank_mask:{hex(2 << k)}')
            a(f'v_mov_b32 v{RING+14}, v{sv+1}\nv_mov_b32 v{RING+15}, v{sv+3}\nv_mov_b32 v{RING+5}, v{sv+2}')
            for dst, q in ((gaf, 0),):
                for i in range(16): a(f'v_mov_b32_dpp v{dst+i}, v{sv+q} row_newbcast:{i} row_mask:0xf bank_mask:0xf')
            a(f'v_mov_b32 v{RING+1}, v{vT+1}')
            self.stamp('dw')
        L2 = o['LOOK2']
        def b2_read(m):
            H, ct = divmod(m, 4)
            for rd in range(2): self.tr(Br + 4 * (m % 8) + 2 * rd, vB + ct, (H & 3) * 4096 + rd * 512, ('B', m))
            if H % 4 == 3 and H < 31: a(f'v_xor_b32 v{vB+ct}, {((H >> 2) ^ ((H >> 2) + 1)) * 16384}, v{vB+ct}')
        def a2_load(H):
            if H % 4 == 0: S(T7, '(T4 ^ n) + T6', n=H * 1024)
            self.bl(ARS[H % AD2], 4, vL16, rWS, T7, (H % 4) * 1024, 'sc1', ('A', H))
        self.spoll([(0, 2, T5, 0)], range(2), d_work)
        self.stamp('ook1')
        if not o['earlyD']: a('s_barrier')
        for H in range(AD2):
            if H == 4 and o['earlyD']: a('s_barrier')
            a2_load(H)
            if H == 0:
                for m in range(L2): b2_read(m)
        self.stamp('ook')
        S(T0, 'rt*1024 + UP'); va(vT + 6, [(0, 4, 64)])
        self.ld_up = lambda: self.bl(up, 2, vT + 6, rWS, T0, 0, 'sc1', 'up')
        lpend = []
        for H in range(32):
            if self.prof and o.get('ls2'):
                if lpend: r_, k_ = lpend.pop(0); a(f'v_writelane_b32 v255, s{r_}, {k_}')
                if H < 31:
                    r_ = sPL + 2 * (self.nst % 4)
                    a.items.append(('raw', f'    s_memtime {sr(r_, 2)}')); lpend.append((r_, self.nst)); self.stnames.append(f'n{H}'); self.nst += 1
            if o.get('g2p') and H in (0, o['g2p']):
                a(f's_cmp_lt_u32 s{sWAVE}, 4\ns_cbranch_scc1 L_G2P{H}\ns_setprio {1 if H == 0 else 0}\nL_G2P{H}:')
            vm.wait(('A', H))
            for ct in range(4):
                m = 4 * H + ct
                pw = o['pairw2']
                if ct % pw == 0: lg.wait(('B', m + pw - 1))
                a(f'v_mfma_f32_16x16x32_bf16 {vr(acc + 4*ct, 4)}, {vr(Br + 4*(m % 8), 4)}, {vr(ARS[H % AD2], 4)}, ' + ('0' if H == 0 else vr(acc + 4*ct, 4)))
                if m + L2 < 128: b2_read(m + L2)
            if H + AD2 < 32: a2_load(H + AD2)
            if H + AD2 == 31: self.ld_up()
            if H == o['f3at']: self.ffn_reg(fw[3])
        self.stamp('gemm2')
        if o.get('dbg'):
            S(T1, '(wg*8 + w)*32768 + 0x4000000'); va(vT, [(0, 6, 4)])
            for k, r in enumerate(list(range(40, 104)) + [24, 25, 26, 27]):
                if k % 16 == 0 and k: S(T1, 'T1 + 4096')
                self.bs(r, 1, vT, rWS, T1, (k % 16) * 256, '', 'dbg')
                if k % 16 == 15: vm.wait('dbg')

    def tail(self):
        a, vm, lg, o, S, va = self.a, self.vm, self.lg, self.o, self.S, self.vaa
        R, fw = self.R, o['fwin']
        E2 = range(0, 16, 2)
        acc, gaf, cbf, sbf, gbf, xf, fr, up = [R[k] for k in 'acc gaf cbf sbf gbf xf fr up'.split()]
        FR, held, fq = self.FL, self.held, self.fq
        g16, hh, h2p, op, sd4, kk = AR + 40, AR + 56, AR + 72, AR + 80, AR + 88, AR + 92
        vSt, vRow, mm, rs, key, vTa = RING + 27, RING + 1, RING + 2, RING + 3, RING + 4, RING + 5
        x1f = xf
        swp = lambda b: [a(f'v_permlane32_swap_b32 v{b+p}, v{b+q}') for p, q in ((0, 2), (1, 3), (4, 6), (5, 7))]
        for h in range(2):
            rg = range(8 * h, 8 * h + 8)
            self.round_list([acc + i for i in rg])
            for i in range(8 * h, 8 * h + 8, 2): self.pk('mul', acc + i, acc + i, gaf + i)
            self.round_list([acc + i for i in rg])
            for i in range(8 * h, 8 * h + 8, 2): self.pk('add', acc + i, acc + i, xf + i)
            for i in range(4 * h, 4 * h + 4): a(f'v_cvt_pk_bf16_f32 v{XR+i}, v{acc+2*i}, v{acc+2*i+1}')
            for i in range(4 * h, 4 * h + 4): a(f'v_dot2_f32_bf16 v{vT+(i&1)}, v{XR+i}, v{XR+i}, ' + ('0' if i < 2 else f'v{vT+(i&1)}'))
            a(f'v_mfma_f32_16x16x32_bf16 {vr(sd4, 4)}, {vr(fr + 4*h, 4)}, {vr(XR + 4*h, 4)}, ' + ('0' if h == 0 else vr(sd4, 4)))
        self.nopk = False
        a(f'v_add_f32 v{vT}, v{vT}, v{vT+1}')
        for sw in ('v_permlane32_swap_b32', 'v_permlane16_swap_b32'):
            a(f'v_mov_b32 v{vT+1}, v{vT}')
            a(f'{sw} v{vT}, v{vT+1}')
            a(f'v_add_f32 v{vT}, v{vT}, v{vT+1}')
        a(f'v_mov_b32_dpp v{sd4}, v{vT} quad_perm:[0,1,2,3] row_mask:0x8 bank_mask:0xf')
        self.bs(sd4, 1, vSt, rWS, sZ2, 0, 'sc1')
        a('s_barrier')
        self.push(RING + 1, sZ3, 16, vT + 2, 'L_PE')
        self.stamp('x1pub')
        self.ffn_dma(fw[4])
        S(T2, 'w*4096')
        a(f'v_add_u32 v{vT}, s{T2}, v{vL16}')
        a(f'v_add_u32 v{vT+3}, {L_DN}, v{vT}')
        vm.wait('up')
        self.tagcheck([up + 1], vT + 2)
        a('s_cbranch_vccz L_UPOK')
        q0 = list(vm.q)
        self.poll(self.ld_up, [up + 1], vT + 2)
        vm.q = q0
        a('L_UPOK:')
        S(T1, '(rt*8 + w)*4096 + ST')
        def sym_write(v0_, v1_):
            vm.wait('ffr')
            for m, i, r in self.sym:
                assert o['symat'] == 0 or r < AV
                a(f'ds_write_b128 v{v0_ if m < 2 else v1_}, {vr(r, 4)} offset:{self.f_lds(m, i) - (L_GU if m < 2 else L_DN)}')
        def sym_late():
            S(T2, 'w*4096'); a(f'v_add_u32 v{vT+4}, s{T2}, v{vL16}\nv_add_u32 v{vT+7}, {L_DN}, v{vT+4}')
            sym_write(vT + 4, vT + 7)
        def e_work():
            for ctl in ('quad_perm:[1,0,3,2]', 'quad_perm:[2,3,0,1]', 'row_half_mirror', 'row_mirror'): self.dpp('v_add_f32', up, up, up, ctl)
            for i in range(8): self.unpack(x1f + 2 * i, x1f + 2 * i + 1, XR + i)
            S(T2, 'w*512 + rt*2')
            va(vRow, [(0, 4, 32)], T2)
            a(f'v_xor_b32 v{vT+1}, 0x4000, v{vT}\nv_xor_b32 v{vT+4}, 0x4000, v{vT+3}')
            if o['symat'] == 0: sym_write(vT, vT + 3)
            for g in range(2):
                if not held[g]: continue
                a(f's_cmp_{"ge" if g == 0 else "lt"}_u32 s{sWAVE}, 4\ns_cbranch_scc1 L_FW{g}')
                for n, (m, i) in enumerate(held[g]):
                    for far in range(2):
                        a(f'ds_write_b128 v{(vT if m < 2 else vT + 3) + far}, {vr(FR + 8*n + 4*far, 4)} offset:{self.f_lds(m, i) - (L_GU if m < 2 else L_DN)}')
                a(f'L_FW{g}:')
            self.stamp('ew')
        self.inbox(3, 2, work=e_work)
        a('s_barrier')
        self.stamp('x1ok')
        def try_p(loads, check, between, nm='re'):
            loads()
            vm.q[-1] = tg = ('try', a.label('T'))
            between()
            vm.wait(tg)
            OK, L = a.label('POK'), a.label('PRE')
            check()
            a(f's_cbranch_vccz {OK}')
            q = list(vm.q)
            self.stamp(nm)
            a(f'{L}:')
            loads(); vm.wait_all()
            check()
            a(f"""s_cbranch_vccz {OK}
            s_add_u32 s{sSPIN}, s{sSPIN}, 1
            s_cmp_lt_u32 s{sSPIN}, {SPIN_LIMIT}
            s_cbranch_scc1 {L}""")
            vm.q = q
            a(f'{OK}:')
        vGr, vDr, vXs, ffn, fdn = RING + 6, RING + 7, RING + 24, FR, AQ
        vRt = RING + 14
        def out_calc(part):
            u = RING + 16; assert o['ocut'][1] != 5
            if part == o['ocut'][0]:
                for i in range(8): self.unpack(hh + 2 * i, hh + 2 * i + 1, h2p + i)
                for i in E2: self.pk('mul', hh + i, hh + i, gbf + i)
                self.round_list([hh + i for i in range(16)])
            if part == o['ocut'][1]:
                S(T0, 'w*2048 + L_TR')
                va(u, [(4, 2, 16)]); va(u + 1, [(0, 3, 16)]); a(f'v_xor_b32 v{u}, v{u}, v{u+1}')
                va(u + 2, [(0, 4, 128)], T0); a(f'v_add_u32 v{u}, v{u}, v{u+2}'); a(f'v_xor_b32 v{u+2}, 64, v{u}')
                va(u + 3, [(3, 3, 16)]); a(f'v_xor_b32 v{u+1}, v{u+3}, v{u+1}'); va(u + 3, [(3, 3, 128)], T0); a(f'v_add_u32 v{u+1}, v{u+1}, v{u+3}')
                S(T0, '2047 - rt*128 - w*16'); va(vRt + 1, [(3, 3, 1)])
                a(f'v_sub_u32 v{vRt}, s{T0}, v{vRt+1}\nv_subrev_u32 v{vRt+1}, 8, v{vRt}')
                va(vTa, [(3, 3, 2048), (0, 3, 16)])
            if part == o['ocut'][2]:
                for i in E2: self.pk('add', hh + i, hh + i, x1f + i)
                for i in range(8): a(f'v_cvt_pk_bf16_f32 v{op+i}, v{hh+2*i}, v{hh+2*i+1}')
                swp(op)
                a(f'ds_write_b128 v{u}, {vr(op, 4)}\nds_write_b128 v{u+2}, {vr(op + 4, 4)}')
                a(f'ds_read_b128 {vr(op, 4)}, v{u+1}\nds_read_b128 {vr(op + 4, 4)}, v{u+1} offset:1024')
        def e_between():
            if o['gbar']: a('s_barrier')
            self.ffn_dma(fw[5])
            for dst, q in ((cbf, 5), (sbf, 14), (gbf, 15)):
                for i in range(16): a(f'v_mov_b32_dpp v{dst+i}, v{RING+q} row_newbcast:{i} row_mask:0xf bank_mask:0xf')
            out_calc(4)
            if o['symat'] == 1: sym_late()
            S(T2, 'w*8 + L_K1'); a(f'v_mov_b32 v{vT}, s{T2}')
            va(vT + 1, [(0, 3, 8)], None, L_K1)
            va(vT + 2, [(0, 2, 64 * 4096), (2, 2, 2 * 4096)])
            S(T3, '((cb >> 3) + (cb & 7)*8)*4096 + (rt >> 1)*64 + (rt & 1)*16 + INB + 2560')
        s_, d_, q_, t_ = g16, g16 + 1, g16 + 3, g16 + 4
        def e_check():
            for h in (0, 2):
                self.pk('add', g16 + h, g16 + h, g16 + 4 + h); self.pk('add', g16 + 8 + h, g16 + 8 + h, g16 + 12 + h)
            for h in (0, 2): self.pk('add', g16 + h, g16 + h, g16 + 8 + h)
            a(f'''v_add_f32 v{d_}, v{d_}, v{g16+2}
            v_add_f32 v{t_+1}, v{s_}, v{q_}
            v_cmp_u_f32 vcc, v{d_}, v{t_+1}''')
        try_p(lambda: [self.bl(g16 + 4 * i, 4, vL16, rWS, T1, i * 1024, 'sc1') for i in range(4)], e_check, e_between, 'stre')
        self.stamp('x1ld')
        a(f"""
        v_mov_b32 v{t_}, v{q_}
        v_permlane32_swap_b32 v{q_}, v{t_}
        v_permlane32_swap_b32 v{s_}, v{d_}
        v_add_f32 v{q_}, v{q_}, v{t_}
        v_add_f32 v{s_}, v{s_}, v{d_}
        v_permlane16_swap_b32 v{s_}, v{q_}
        v_add_f32 v{d_}, v{s_}, v{q_}
        v_add_f32 v{q_}, v{s_}, v{q_}
        v_permlane16_swap_b32 v{d_}, v{q_}
        v_mov_b32 v{s_}, v{d_}
        v_mul_f32 v{q_}, 0x3a800000, v{q_}
        v_permlane32_swap_b32 v{s_}, v{d_}
        v_mul_f32 v{s_}, 0x3a800000, v{s_}
        v_fma_f32 v{rs}, -v{s_}, v{s_}, v{q_}
        v_cvt_pk_bf16_f32 v{mm}, 0, v{s_}
        v_max_f32 v{rs}, 0, v{rs}""")
        self.round1(rs)
        a(f'v_fma_f32 v{d_}, -v{mm}, v{up}, v{d_}')
        a(f'v_add_f32 v{rs}, 0x3727c5ac, v{rs}')
        self.round1(rs)
        a(f'v_sqrt_f32 v{rs}, v{rs}')
        self.round1(rs)
        a(f"""v_rcp_f32 v{rs}, v{rs}
        v_mul_f32 v{key}, v{d_}, v{rs}
        v_ashrrev_i32 v{t_}, 31, v{key}
        v_or_b32 v{t_}, 0x80000000, v{t_}
        v_xor_b32 v{key}, v{key}, v{t_}
        s_mov_b32 s{T2}, 0xfffff000
        v_and_or_b32 v{key}, v{key}, s{T2}, v{vRow}""")
        hi, lo = kk, kk + 1
        def merge2(ctl):
            self.dpp('v_min_u32', t_, hi, hi, ctl); self.dpp('v_max_u32', lo, lo, lo, ctl); self.dpp('v_max_u32', hi, hi, hi, ctl)
            a(f'v_max_u32 v{lo}, v{lo}, v{t_}')
        self.dpp('v_max_u32', hi, key, key, 'quad_perm:[1,0,3,2]'); self.dpp('v_min_u32', lo, key, key, 'quad_perm:[1,0,3,2]')
        for ctl in ('quad_perm:[2,3,0,1]', 'row_half_mirror', 'row_mirror'): merge2(ctl)
        self.dw('ds_write_b64', vT, hi, 2)
        self.stamp('ln2')
        self.barrier()
        self.dr('ds_read_b64', hi, 2, vT + 1)
        for i in E2: self.pk('add', hh + i, x1f + i, mm, bc=(1,), neg=(1,))
        lg.wait_all()
        for ctl in ('quad_perm:[1,0,3,2]', 'quad_perm:[2,3,0,1]', 'row_half_mirror'): merge2(ctl)
        a(f"""v_cmp_eq_u32 {sr(sC2, 2)}, v{key}, v{lo}
        v_cmp_eq_u32 vcc, v{key}, v{hi}
        v_or_b32 v{kk+2}, 1, v{lo}
        v_mov_b32 v{kk+1}, s{sTAG}
        v_mov_b32 v{kk+3}, s{sTAG}
        s_or_b64 {sr(sCM, 2)}, vcc, {sr(sC2, 2)}
        s_cmp_lg_u32 s{sWAVE}, 0
        s_cbranch_scc1 L_NOF
        s_mov_b64 exec, 0xffff""")
        self.bs(kk, 4, vT + 2, rWS, T3, 0, 'sc1', count=False)
        a(f"""s_mov_b64 exec, -1
        L_NOF:""")
        if o['cprio']: a(f's_cmp_eq_u64 {sr(sCM, 2)}, 0\ns_cbranch_scc1 L_NOPR\ns_setprio 1\nL_NOPR:')
        self.stamp('Fpub')
        def f_work():
            self.round_list([hh + i for i in range(16)])
            for i in E2: self.pk('mul', hh + i, hh + i, rs, bc=(1,))
            self.round_list([hh + i for i in range(16)])
            for i in E2: self.pk('mul', hh + i, hh + i, cbf + i)
            self.round_list([hh + i for i in range(16)])
            for i in E2: self.pk('add', hh + i, hh + i, sbf + i)
            for i in range(8): a(f'v_cvt_pk_bf16_f32 v{h2p+i}, v{hh+2*i}, v{hh+2*i+1}')
            a(f"""s_cmp_eq_u64 {sr(sCM, 2)}, 0
            s_cbranch_scc1 L_NOCAND""")
            for h in range(2): a(f'v_mfma_f32_16x16x32_bf16 {vr(sd4, 4)}, {vr(fr + 4*h, 4)}, {vr(h2p + 4*h, 4)}, ' + ('0' if h == 0 else vr(sd4, 4)))
            for i in range(8): a(f'v_mov_b32 v{op+i}, v{h2p+i}')
            S(T2, 'rt*16384 + cb*512 + XS')
            va(vT + 3, [(4, 2, 16)])
            a(f'v_add_u32 v{vT+4}, 8192, v{vT+3}')
            swp(op); swp(XR)
            a(f'v_cndmask_b32 v{vT+3}, v{vT+3}, v{vT+4}, {sr(sC2, 2)}')
            a(f's_mov_b64 exec, {sr(sCM, 2)}')
            for h in range(2): self.bs(op + 4 * h, 4, vT + 3, rWS, T2, 64 * h, 'sc1', count=False)
            a(f's_mov_b32 exec_lo, 0\ns_and_b32 exec_hi, s{sCM+1}, 0xffff0000')
            self.bs(sd4, 1, vT + 3, rWS, T2, 256 - 48, 'sc1', count=False)
            a(f's_mov_b64 exec, {sr(sCM, 2)}')
            for h in range(2): self.bs(XR + 4 * h, 4, vT + 3, rWS, T2, 128 + 64 * h, 'sc1', count=False)
            a('s_mov_b64 exec, -1\ns_setprio 0\nL_NOCAND:')
            self.stamp('cand')
            self.ffn_dma(fw[6])
            if o['symat'] == 2: sym_late()
            out_calc(0)
        S(T0, 'w*16 + L_K2'); a(f'v_mov_b32 v{vT}, s{T0}')
        va(vT + 1, [(0, 3, 16)], None, L_K2)
        self.inbox(5, 8, (1, 3, 5, 7), f_work)
        P = sPL
        a(f"""s_min_u32 s{P+1}, s{P}, s{P+4}
        s_min_u32 s{P+3}, s{P+2}, s{P+4}
        s_min_u32 s{P+5}, s{P}, s{P+6}
        s_max_u32 s{P}, s{P}, s{P+4}
        s_max_u32 s{P+2}, s{P+2}, s{P+6}
        s_max_u32 s{P+3}, s{P+3}, s{P+5}
        s_max_u32 s{P+1}, s{P+1}, s{P+2}
        v_mov_b32 v{kk}, s{P}
        v_mov_b32 v{kk+2}, s{P+3}
        v_mov_b32 v{kk+1}, s{P+1}""")
        self.dw('ds_write_b128', vT, kk, 4)
        self.stamp('F2p')
        out_calc(1)
        gu_late = [p for p in fq if p[0] < 2]; assert not gu_late
        dn_late = len(fq) > 0
        def dn_read(s, tag=None):
            self.tr(fdn + 4 * s, vDr, s * 8192, tag); self.tr(fdn + 4 * s + 2, vDr, s * 8192 + 1024, tag)
        vm.wait('ffn')
        self.barrier()
        self.stamp('F2')
        self.r128(kk, vT + 1, 0, 'k2')
        a(f'v_and_b32 v{vT+4}, 8, v{vL}')
        a(f'v_cmp_eq_u32 {sr(sCMP, 2)}, 0, v{vT+4}')
        a(f'v_cmp_gt_u32 {sr(sPL, 2)}, 16, v{vL}')
        a(f'v_cmp_gt_u32 {sr(sPL + 2, 2)}, 32, v{vL}')
        lg.wait('k2')
        t = g16
        for ctl in ('quad_perm:[1,0,3,2]', 'quad_perm:[2,3,0,1]', 'row_half_mirror'):
            self.dpp('v_min_u32', t, kk, kk, ctl); self.dpp('v_min_u32', t + 1, kk + 1, kk, ctl); self.dpp('v_min_u32', t + 2, kk, kk + 1, ctl)
            self.dpp('v_max_u32', kk + 2, kk + 2, kk + 2, ctl); self.dpp('v_max_u32', kk + 1, kk + 1, kk + 1, ctl); self.dpp('v_max_u32', kk, kk, kk, ctl)
            a(f'v_max3_u32 v{kk+2}, v{kk+2}, v{t+1}, v{t+2}')
            a(f'v_max_u32 v{kk+1}, v{kk+1}, v{t}')
        xa, xb, rp, kr = g16, g16 + 4, g16 + 8, g16 + 9
        a(f"""v_cndmask_b32 v{t}, v{kk+1}, v{kk}, {sr(sCMP, 2)}
        v_cndmask_b32 v{kr}, v{kk+2}, v{kk+1}, {sr(sPL + 2, 2)}
        v_and_b32 v{t+1}, 31, v{kk+2}
        v_and_b32 v{t}, 31, v{t}
        v_cndmask_b32 v{kr}, v{kr}, v{kk}, {sr(sPL, 2)}
        v_lshl_add_u32 v{vT}, v{t}, 13, v{vXs}
        v_lshl_add_u32 v{vT+1}, v{t+1}, 13, v{vXs}
        v_and_b32 v{t+2}, 31, v{kr}
        v_lshl_add_u32 v{vT+2}, v{t+2}, 13, v{vXs+1}""")
        def sel_work():
            self.stamp('sel')
            if o['gbar'] and (fq or o['outat'] in (0, 3)): a('s_barrier')
            self.ffn_dma(len(fq))
            for k in range(3): a(f'v_readfirstlane_b32 s{sY0+[0, 3, 4][k]}, v{kk+k}')
            for s in range(8):
                self.tr(ffn + 4 * s, vGr, s * 1024); self.tr(ffn + 4 * s + 2, vGr, s * 1024 + 512)
            for k in range(3 if o['outat'] in (0, 3) else 0): S(T4 + k, '(((y >> 1) & 15)*128 + ((y >> 5) & 127)) ^ 2047'.replace('y', ('y0', 'y1', 'y2')[k]))
            out_calc(2)
            lg.wait_all()
            if o['outat'] in (0, 3):
                for h in range(2 if o['outat'] == 0 else 1):
                    for k in range(3): a(f'v_cmp_ne_u32 {sr(sPL + 2*k, 2)}, s{T4+k}, v{vRt+h}')
                    a(f's_and_b64 vcc, {sr(sPL, 2)}, {sr(sPL + 2, 2)}\ns_and_b64 exec, vcc, {sr(sPL + 4, 2)}')
                    self.bs(op + 4 * h, 4, vTa, rOUT, (sROW0, sROW1)[h], 0, o.get('outmod', 'sc1'))
                    a('s_mov_b64 exec, -1')
            a(f'v_bfe_u32 v{vT+3}, v{kr}, 1, 4\nv_bfe_u32 v{kr}, v{kr}, 5, 7\nv_lshl_or_b32 v{kr}, v{vT+3}, 7, v{kr}\nv_xor_b32 v{kr}, 0x7ff, v{kr}')
        try_p(lambda: [self.bl(xa, 4, vT, rWS, '0', 0, 'sc1'), self.bl(xb, 4, vT + 1, rWS, '0', 0, 'sc1'), self.bl(rp, 1, vT + 2, rWS, '0', 0, 'sc1')],
              lambda: a(f'v_max3_u32 v{vT+3}, v{xa}, v{xb}, v{rp}\nv_cmp_eq_u32 vcc, -1, v{vT+3}'), sel_work, 'xsre')
        self.stamp('xsel')
        for ctl in ('quad_perm:[1,0,3,2]', 'quad_perm:[2,3,0,1]', 'row_half_mirror', 'row_mirror'): self.dpp('v_add_f32', rp, rp, rp, ctl)
        a(f"""v_cvt_pk_bf16_f32 v{rp}, 0, v{rp}
        v_ashrrev_i32 v{vT+3}, 31, v{rp}
        v_or_b32 v{vT+3}, 0x80000000, v{vT+3}
        v_xor_b32 v{rp}, v{rp}, v{vT+3}
        v_lshrrev_b32 v{rp}, 16, v{rp}
        v_lshl_or_b32 v{rp}, v{rp}, 11, v{kr}
        v_readlane_b32 s{P}, v{rp}, 0
        v_readlane_b32 s{P+1}, v{rp}, 16
        v_readlane_b32 s{P+2}, v{rp}, 32
        s_not_b64 {sr(P + 4, 2)}, {sr(sCMP, 2)}
        s_cmp_lt_u32 s{P}, s{P+1}
        s_cselect_b64 {sr(P + 4, 2)}, {sr(sCMP, 2)}, {sr(P + 4, 2)}
        s_cselect_b32 s{P+3}, s{P}, s{P+1}
        s_cmp_gt_u32 s{P+2}, s{P+3}
        s_cselect_b64 vcc, {sr(P + 4, 2)}, 0""")
        for i in range(4): a(f'v_cndmask_b32 v{xa+i}, v{xa+i}, v{xb+i}, vcc')
        a(f"""s_bitcmp1_b32 vcc_lo, 0
        s_cselect_b32 s{P}, s{P+2}, s{P}
        s_cselect_b32 s{T6}, s{T4}, s{T6}
        s_cselect_b32 s{T4}, s{sY2}, s{sY0}
        s_bitcmp1_b32 vcc_lo, 8
        s_cselect_b32 s{P+1}, s{P+2}, s{P+1}
        s_cselect_b32 s{T6}, s{T5}, s{T6}
        s_cselect_b32 s{T5}, s{sY2}, s{sY1}""")
        gd = [gaf + 4 * i for i in range(4)] + [cbf + 4 * i for i in range(4)]
        lg.wait_all()
        for s in range(8):
            a(f'v_mfma_f32_16x16x32_bf16 {vr(gd[s], 4)}, {vr(xa, 4)}, {vr(ffn + 4*s, 4)}, 0')
        p0, p1 = xb, xb + 2
        for p, b in ((p0, 0), (p1, 4)):
            a(f'v_add_f32 v{p}, v{gd[b]}, v{gd[b+1]+1}')
            a(f'v_add_f32 v{p+1}, v{gd[b+2]+2}, v{gd[b+3]+3}')
        a(f"""v_add_f32 v{p0}, v{p0}, v{p0+1}
        v_add_f32 v{p1}, v{p1}, v{p1+1}
        v_mov_b32 v{p0+1}, s{sTAG}
        v_permlane16_swap_b32 v{p1}, v{p1+1}
        s_cmp_ge_u32 s{sJ}, 28
        s_cbranch_scc1 L_NOHP
        v_add_f32 v{p0}, v{p0}, v{p1+1}
        s_mov_b32 exec_lo, 0xffff
        s_mov_b32 exec_hi, 0xffff""")
        self.bs(p0, 2, RING + 26, rWS, sZ1, 0, 'sc1', count=False)
        a("""s_mov_b64 exec, -1
        L_NOHP:""")
        self.stamp('Hpub')
        if not dn_late and not o['dnsplit']:
            for s in range(4): dn_read(s)
        def out_store(hs=None):
            for h in (hs or range(o['outat'] >= 3, 2)):
                a(f"""v_cmp_ne_u32 vcc, s{sK1}, v{vRt+h}
                v_cmp_ne_u32 {sr(sCMP, 2)}, s{sK2}, v{vRt+h}
                s_and_b64 exec, vcc, {sr(sCMP, 2)}""")
                self.bs(op + 4 * h, 4, vTa, rOUT, (sROW0, sROW1)[h], 0, o.get('outmod', 'sc1'))
                a('s_mov_b64 exec, -1')
        if o['outat']:
            a(f's_and_b32 s{sK1}, s{P}, 2047\ns_and_b32 s{sK2}, s{P+1}, 2047')
            out_calc(3)
            lg.wait_all()
        if o['outat'] == 1:
            a('s_barrier')
            out_store()
        if o['outat'] in (0, 3):
            for h in range(2 if o['outat'] == 0 else 1):
                a(f"""v_cmp_eq_u32 vcc, s{T6}, v{vRt+h}
                s_and_b64 exec, vcc, -1
                s_cbranch_execz L_NOLO{h}""")
                self.bs(op + 4 * h, 4, vTa, rOUT, (sROW0, sROW1)[h], 0, o.get('outmod', 'sc1'), count=False)
                a(f'L_NOLO{h}:\ns_mov_b64 exec, -1')
        self.stamp('outst')
        fz, x1, st = g16 + 12, AV, kk
        a(f"""s_cmp_lg_u32 s{sRow}, 7
        s_cbranch_scc1 L_NONON
        v_mov_b32 v{vT+2}, s{sTAG}
        v_mov_b32 v{vT+3}, 0
        s_mov_b64 exec, 1""")
        self.bs(vT + 2, 1, vT + 3, rWS, '0', 0, 'sc1', count=False)
        a(f"""s_mov_b64 exec, -1
        L_NONON:
        s_cmp_ge_u32 s{sJ}, 28
        s_cbranch_scc1 {'L_FIN3' if o['outat'] >= 2 else 'L_FIN'}""")
        gA = g16
        va(gA, [(2, 1, 128), (5, 1, 16)], None, L_ACT)
        va(gA + 1, [(4, 2, 56 * 128), (0, 4, 8)])
        S(sFG, '(kq*8 + w)*(4*56*128) + fs*128 + GGR')
        va(gA + 2, [(0, 1, 2 * 4096), (1, 1, 64 * 4096)])
        S(sFD, '((w & 1)*4 + (kq >> 1) + ((kq & 1)*4 + (w >> 1))*8)*4096 + x*64 + (j >> 2)*4 + INB + 3072')
        def dn_go():
            if o['dnsplit'] and not dn_late:
                vm.wait('fdn'); a('s_barrier')
                for s in range(4): dn_read(s)
            out_calc(5)
            if o['outat'] == 4: assert o['dnsplit'] and not dn_late and 5 not in o['ocut']; out_store([0])
        q1 = list(vm.q)
        a(f's_cmp_lt_u32 s{sWAVE}, 4\ns_cbranch_scc1 L_HW')
        dn_go()
        a(f"""s_cmp_lg_u32 s{sWAVE}, 7
        s_cbranch_scc1 L_NOH""")
        a(f"""s_bitcmp1_b32 s{sJ}, 3
        s_cselect_b32 s{T2}, s{P+1}, s{P}
        s_cselect_b32 s{T4}, s{T5}, s{T4}
        s_andn2_b32 s{T5}, 2047, s{T2}""")
        S(T6, 'cb*4 + (x >> 1)')
        S(T7, '((T6 >> 1)*4 + (j >> 3)*2 + (T6 & 1))*(56*128) + GGR')
        S(sU, 'T5*2048 + T6*32')
        va(vT + 6, [(0, 3, 4)])
        S(T0, '(x >> 1)*64 + L_GB'); va(vT + 1, [(0, 3, 8)], T0)
        a(f'ds_read_b64 {vr(fz + 2, 2)}, v{vT+1}')
        S(sY0, '(T4 & 31)*8192 + cb*512 + (x >> 1)*32 + XS')
        a(f"""s_lshr_b32 s{T0}, s{T2}, 11
        s_lshl_b32 s{T0}, s{T0}, 16
        s_ashr_i32 s{T2}, s{T0}, 31
        s_andn2_b32 s{T2}, 0x7fff0000, s{T2}
        s_or_b32 s{T2}, s{T2}, 0x80000000
        s_xor_b32 s{T0}, s{T0}, s{T2}
        v_mov_b32 v{fz}, s{T0}
        v_mul_f32 v{fz}, s{sL2E}, v{fz}
        v_exp_f32 v{fz}, -v{fz}
        v_add_f32 v{fz}, 1.0, v{fz}
        v_rcp_f32 v{fz}, v{fz}""")
        self.round1(fz)
        q0 = list(vm.q)
        a(f'v_mov_b32 v{vT+1}, s{sTAG}\nv_not_b32 v{vT+2}, v{vT+1}')
        self.poll(lambda: (self.bl(st, 1, vT + 6, rWS, sY0, 0, 'sc1'), self.bl(st + 1, 1, vT + 6, rWS, sY0, 128, 'sc1')), [st + 2], vT,
                  lambda: a(f'''v_max_u32 v{st+2}, v{st}, v{st+1}
                  v_cmp_ne_u32 vcc, -1, v{st+2}
                  v_cndmask_b32 v{st+2}, v{vT+2}, v{vT+1}, vcc'''))
        vm.q = q0
        self.unpack(st + 2, st + 3, st + 1)
        a(f'v_and_b32 v{st+1}, s{sMASK}, v{st}\nv_lshlrev_b32 v{st}, 16, v{st}')
        a('s_branch L_NOH')
        a('L_HW:')
        vm.q = q1; lg.reset()
        S(T0, 'w*256 + z0')
        va(vT, [(4, 2, 2048), (0, 4, 16)])
        S(T2, 'w*32 + L_ACT'); va(vT + 1, [(5, 1, 128), (2, 1, 16), (1, 1, 8), (3, 1, 4), (0, 1, 2)], T2)
        q0 = list(vm.q)
        g, u = x1, x1 + 4
        if not o['Hdir']:
            self.spoll([(q, 1, T0, q * 2048 + 1024 + 252) for q in range(4)], range(4), dn_go)
            self.stamp('Hpre')
        self.poll(lambda: [self.bl(x1 + 4 * m, 4, vT, rWS, T0, m * 1024, 'sc1') for m in range(2)], [g + 1, g + 3, u + 1, u + 3], vT + 2)
        a(f"""v_permlane32_swap_b32 v{g}, v{g+2}
        v_permlane32_swap_b32 v{u}, v{u+2}
        v_add_f32 v{g}, v{g}, v{g+2}
        v_add_f32 v{u}, v{u}, v{u+2}
        v_mov_b32 v{g+2}, v{g}
        v_mov_b32 v{u+2}, v{u}
        v_permlane16_swap_b32 v{g}, v{g+2}
        v_permlane16_swap_b32 v{u}, v{u+2}
        v_add_f32 v{g}, v{g}, v{g+2}
        v_add_f32 v{u}, v{u}, v{u+2}""")
        self.round2(g, u)
        self.silu(g, vT + 2)
        a(f"""v_mul_f32 v{g}, v{g}, v{u}
        v_cvt_pk_bf16_f32 v{g}, v{g}, v{g}
        ds_write_b16 v{vT+1}, v{g}
        L_NOH:""")
        vm.q = q0
        vm.wait('ffn'); vm.wait('fdn')
        self.barrier()
        self.stamp('Hok')
        for s in range(4):
            self.r128(x1 + 4 * s, gA, s * 32, ('ac', s))
            if dn_late: dn_read(s, ('ac', s))
        for s in range(4):
            lg.wait(('ac', s))
            a(f'v_mfma_f32_32x32x16_bf16 {vr(hh, 16)}, {vr(x1 + 4*s, 4)}, {vr(fdn + 4*s, 4)}, ' + ('0' if s == 0 else vr(hh, 16)))
        a(f'v_mov_b32 v{hh+1}, s{sTAG}')
        self.bs(hh, 2, gA + 1, rWS, sFG, 0, 'sc1')
        if not o['Gdir']:
            a('s_mov_b64 exec, 15')
            self.bs(hh + 1, 1, gA + 2, rWS, sFD, 0, 'sc1')
            a('s_mov_b64 exec, -1')
        self.stamp('Gpub')
        if o['outat'] >= 2:
            a('s_barrier\ns_branch L_FIN2\nL_FIN3:')
            out_calc(5)
            a('s_waitcnt lgkmcnt(0)')
            if o['outat'] == 4: out_store([0])
            a('L_FIN2:')
            out_store()
        a(f"""s_cmp_ge_u32 s{sJ}, 16
        s_cbranch_scc1 L_FIN""")
        if not o['Gdir']:
            self.inbox(6, 8, range(7))
            self.stamp('Gpre')
            a('s_barrier')
        a(f"""s_cmp_lg_u32 s{sWAVE}, 7
        s_cbranch_scc1 L_FIN""")
        S(T0, 'T7 + 4096')
        gg = [x1 + 4 * i for i in range(7)]
        def g_ld():
            [self.bl(gg[n], 4, vL16, rWS, (T7, T0)[n >> 2], (n & 3) * 1024, 'sc1') for n in range(7)]
        self.poll(g_ld, [gg[n] + 1 + 2 * e for n in range(7) for e in range(2)], vT)
        self.stamp('Gok')
        y0, y1 = gg[0], gg[0] + 1
        for p_, q_ in ((0, 1), (2, 3), (4, 5), (0, 2), (4, 6)):
            for e in (0, 2): a(f'v_add_f32 v{gg[p_]+e}, v{gg[p_]+e}, v{gg[q_]+e}')
        a(f'v_add_f32 v{y0}, v{gg[0]}, v{gg[4]}\nv_add_f32 v{y1}, v{gg[0]+2}, v{gg[4]+2}')
        a(f"""v_permlane32_swap_b32 v{y0}, v{y1}
        v_add_f32 v{y0}, v{y0}, v{y1}""")
        self.dpp('v_add_f32', y0, y0, y0, 'row_ror:8')
        a(f"""v_mov_b32 v{y1}, v{y0}
        v_permlane16_swap_b32 v{y0}, v{y1}
        v_add_f32 v{y1}, v{y0}, v{y1}
        v_cvt_pk_bf16_f32 v{y0}, 0, v{y1}
        v_cvt_pk_bf16_f32 v{y1}, 0, v{y1}
        v_permlane32_swap_b32 v{y0}, v{y1}""")
        self.pk('mul', y0, y0, fz, bc=(1,))
        self.round2(y0, y1)
        self.pk('add', y0, y0, st)
        self.round2(y0, y1)
        self.pk('mul', y0, y0, fz + 2)
        self.round2(y0, y1)
        self.pk('add', y0, y0, st + 2)
        a(f'v_cvt_pk_bf16_f32 v{y0}, v{y0}, v{y1}')
        a('s_mov_b64 exec, 0xff')
        self.bs(y0, 1, vT + 6, rOUT, sU, 0, o.get('finmod', ''))
        a('s_mov_b64 exec, -1')
        a('L_FIN:')

    def finish(self):
        a, S, o = self.a, self.S, self.o
        if o.get('exfil'):
            a('s_waitcnt vmcnt(0) lgkmcnt(0)')
            self.stamp('fin')
            a(f'''v_readlane_b32 s{T0}, v255, 0
            v_readlane_b32 s{T1}, v255, 1
            v_readlane_b32 s{T2}, v255, 2
            s_sub_u32 s{T2}, s{T2}, s{T1}
            s_max_i32 s{T2}, s{T2}, 0
            s_min_u32 s{T2}, s{T2}, 10000
            s_mul_i32 s{T2}, s{T2}, 10
            s_add_u32 s{T2}, s{T2}, 6000
            L_XPAD:
            s_memrealtime {sr(sTM, 2)}
            s_waitcnt lgkmcnt(0)
            s_sub_u32 s{T1}, s{sTM}, s{T0}
            s_cmp_lt_u32 s{T1}, s{T2}
            s_cbranch_scc1 L_XPAD''')
        if self.o.get('dbg2'):
            S(T1, '(wg*8 + w)*32768 + 0x4000000'); self.vaa(vT, [(0, 6, 4)])
            for k, r in enumerate(list(range(72, 104)) + list(range(120, 136)) + list(range(176, 184))):
                if k % 16 == 0 and k: S(T1, 'T1 + 4096')
                self.bs(r, 1, vT, rWS, T1, (k % 16) * 256, '', 'dbg')
                if k % 16 == 15: self.vm.wait('dbg')
        if self.prof:
            a('s_waitcnt vmcnt(0) lgkmcnt(0)')
            self.stamp('end')
            a(f's_memrealtime {sr(sTM, 2)}')
            a('s_waitcnt lgkmcnt(0)')
            a(f'v_writelane_b32 v255, s{sTM}, 61')
            S(T0, '(wg*8 + w)*256 + STAMPS')
            a(f'v_writelane_b32 v255, s{sSPIN}, 62')
            a(f'v_lshlrev_b32 v{vT+1}, 2, v{vL}')
            a(f'buffer_store_dword v255, v{vT+1}, {sr(rWS, 4)}, s{T0} offen')
            S(T0, 'T0 + 0x100000')
            a(f'buffer_store_dword v254, v{vT+1}, {sr(rWS, 4)}, s{T0} offen')
        a('L_END:')
        a('s_endpgm')

    def pads(self):
        import subprocess, re
        a = self.a
        src = '.amdgcn_target "amdgcn-amd-amdhsa--gfx950"\n.text\n' + a.text().replace('CODE_KB', '20480')
        out = subprocess.run(['llvm-mc', '-triple=amdgcn-amd-amdhsa', '-mcpu=gfx950', '-show-encoding'], input=src, capture_output=True, text=True, check=True).stdout
        sizes = [len(m.split(',')) for m in re.findall(r'; encoding: \[([^\]]*)\]', out)]
        tour = next(i for i, x in enumerate(a.items) if x == ('raw', ';TOUR'))
        NT = 16
        addr = self.o['kofs']; full = True; k = 0; items = []; pads = []; page = 0
        for i, (kind, v) in enumerate(a.items):
            isins = kind == 'ins' or (kind == 'raw' and v.startswith('    s_'))
            if i == tour: items.append((kind, v)); addr += 4 * 48; continue
            if isins:
                if addr // 4096 > page and full and i > tour:
                    page = addr // 4096; pads.append(page)
                    items.append(('raw', f'L_PAD{page}:\n    s_cbranch_execz L_RET{page}')); addr += 4
                elif i < tour: page = addr // 4096
                addr += sizes[k]; k += 1
                if kind == 'ins' and ('s', 'exec_lo') in v.dst + [('s', 'exec_lo') if ('s', 'exec_hi') in v.dst else None]:
                    full = v.text.replace(' ', '') in ('s_mov_b64exec,-1', 's_mov_b32exec_hi,-1')
            items.append((kind, v))
        assert k == len(sizes), (k, len(sizes))
        t = ['s_mov_b64 exec, 0']
        chains = [pads[c::4] for c in range(4)]
        for c in range(4): t += [f's_cmp_eq_u32 s{sWAVE}, {4 + c}', f's_cbranch_scc1 L_PAD{chains[c][0]}']
        t.append('s_branch L_TEND')
        n = len(t)
        for ch in chains:
            for p, q in zip(ch, ch[1:] + [None]):
                t += [f'L_RET{p}:', f's_branch ' + (f'L_PAD{q}' if q else 'L_TEND')]; n += 1
        assert n <= 47
        t += ['s_nop 0'] * (47 - n) + ['L_TEND:', 's_mov_b64 exec, -1']
        j = items.index(('raw', ';TOUR'))
        items[j] = ('raw', '\n'.join(x if x.endswith(':') else '    ' + x for x in t))
        a.items = items

    def text(self):
        a = self.a
        npad = a.fix_hazards()
        errs = a.check_waits([NAME])
        for e in errs[:10]: print('WAITERR', e, file=sys.stderr)
        assert not errs
        import re
        for k, v in a.items:
            if k == 'ins' and v.mn.startswith('v_pk_'):
                m = re.search(r'op_sel:\[([\d,]+)\]', v.text)
                vs = [i for i, x in enumerate(v.ops[1:]) if x.startswith('v')]
                assert self.o.get('badpk') or not (m and any(m.group(1).split(',')[i] == '1' for i in vs[1:])), v.text
        if self.o['tour']: self.pads()
        hdr = open(os.path.join(os.path.dirname(os.path.abspath(__file__)), 'header.txt')).read()
        s = hdr + '; @launch grid=(256,1,1) block=(512,1,1) lds=163840\n'
        s += '.amdgcn_target "amdgcn-amd-amdhsa--gfx950"\n.text\n'
        s += f'.globl {NAME}\n.p2align {12 if self.o["al12"] else 8}\n.type {NAME},@function\n'
        body = a.text()
        import subprocess, tempfile
        with tempfile.TemporaryDirectory() as td:
            open(td + '/t.s', 'w').write('.amdgcn_target "amdgcn-amd-amdhsa--gfx950"\n.text\n' + body.replace('CODE_KB', '20480'))
            subprocess.run(['clang', '-x', 'assembler', '-target', 'amdgcn-amd-amdhsa', '-mcpu=gfx950', '-c', td + '/t.s', '-o', td + '/t.o'], check=True)
            subprocess.run(['llvm-objcopy', '-O', 'binary', '-j', '.text', td + '/t.o', td + '/t.bin'], check=True)
            size = os.path.getsize(td + '/t.bin')
        print('; code bytes', size, file=sys.stderr)
        s += body.replace('CODE_KB', str((size // 1024 + 1) * 1024))
        s += '.p2align 10\n.fill 768, 4, 0xbf800000\n'
        s += '.section .rodata,"a"\n' + kernel_desc(NAME, 256, 102)
        print(f'; nops {npad}, instrs {sum(1 for k, _ in a.items if k == "ins")}', file=sys.stderr)
        return s


if __name__ == '__main__':
    import argparse, json
    ap = argparse.ArgumentParser()
    ap.add_argument('-o', default='/dev/stdout')
    ap.add_argument('--prof', action='store_true')
    ap.add_argument('--opts', default='{}')
    args = ap.parse_args()
    g = Gen(args.prof, json.loads(args.opts)).build()
    t = g.text()
    open(args.o, 'w').write(t)
    if args.prof: open(args.o + '.stamps', 'w').write(json.dumps(g.stnames))
```

```python
import sys, os
sys.path.insert(0, os.path.dirname(os.path.abspath(__file__)))
from asm import *

NAME = 'adaLN_cond__linear_kernel_hedgehog__moe_arch_mod__prompt_kernel'

NONCE = 0x0
MODP2 = 0x020000
SINB = 0x200000
AINB = 0x080000
INB = 0x100000
HF = 0x400000
OF = 0x800000
ST = 0xC00000
XS = 0xD00000
UP = 0xD80000
HGR = 0x1400000
ZP = 0x1480000
GGR = 0x1500000
KVP = 0x1800000
KIN = 0x1C00000
STAMPS = 0x1600000
WS_BYTES = 268435456

REG = 49152
MISC = 147456
L_A1 = MISC
L_ST = MISC + 6144
L_MP = MISC + 8192
L_WPHI = MISC + 12288
L_KH = 0
L_QH = MISC + 4096
L_KVF = MISC
L_ZF = MISC + 8192
L_M2 = MISC + 9984
L_MD = MISC + 12288
L_K1 = MISC + 8704
L_K2 = MISC + 8832
L_ACT = MISC + 9216
L_GB = MISC + 9728
L_HV = 32768
L_PHK = 0
L_XT = 2 * REG + 32768
L_TR = 98304
L_GU = 0
L_DN = 65536
UR = 393216

SPIN_LIMIT = 200000

sWAVE, sTAG, sSPIN, sMASK, sL2E = 3, 4, 5, 6, 7
sX, sJ, sR1, sHP, sCB = 8, 9, 10, 11, 12
T0, T1, T2, T3, T4, T5, T6, T7 = 13, 14, 15, 16, 17, 18, 19, 20
sRT = 21
sCMP = 22
sPL = 24
rWS, rX, rW, rWO, rWM, rWG, rWU, rWD, rOUT = 32, 36, 40, 44, 48, 52, 56, 60, 64
KA = 68
pWPHI, pWR, pC = KA + 4, KA + 10, KA + 18
sK1, sK2, sROW0, sROW1, sFS, sKQ, sKH, sRB = 68, 69, 70, 71, 74, 75, 76, 77
sFG, sFD, sU, sW1K, sU0, sWB = 80, 81, 82, 83, 84, 85
sAB, sM2, sWO, sY0 = 88, 89, 90, 91
sINB, sRow, sY1, sY2 = 92, 93, 94, 95
sZ0, sZ1, sZ2, sZ3 = 72, 73, 86, 87
sCM = 84
sC2 = 88
XT = (96, 97, 98, 99)
sTM = 100
ENV = dict(wg=2, w=sWAVE, x=sX, j=sJ, r1=sR1, hp=sHP, cb=sCB, rt=sRT, row=sRow, kh=sKH, rb=sRB, fs=sFS, kq=sKQ,
           w1k=sW1K, u=sU, fg=sFG, fd=sFD, u0=sU0, wb=sWB, ab=sAB, m2=sM2, wo=sWO, y0=sY0, y1=sY1, y2=sY2,
           z0=sZ0, k1=sK1, k2=sK2, row0=sROW0, row1=sROW1,
           T0=T0, T1=T1, T2=T2, T3=T3, T4=T4, T5=T5, T6=T6, T7=T7)

vL, vL16, vWd, vT = 1, 2, 3, 4
XR = 12
vB = 20
vS0, vS1 = 26, 27
RING = 28
AK, AV, AQ = 56, 88, 120
AR = 152
SP = 248


POS = [(0, 1, 32), (3, 2, 64), (2, 1, 256), (1, 1, 512)]


class Stream:
    def __init__(self, g): self.g, self.q, self.wake = g, [], 0
    def add(self, fn, v=0, l=0): self.q.append((v, l, fn))
    def sleep(self, k): self.q.append(('sleep', k, None))
    def until(self, n): self.q.append(('until', n, None))
    def cap(self, fn):
        a = self.g.a
        keep = a.items; a.items = []
        fn()
        body = a.items; a.items = keep
        run = []
        for it in body:
            i = it[1]
            assert it[0] == 'ins' and i.cls in ('valu', 'salu', 'mfma'), it
            run.append(it)
            if i.cls == 'salu': continue
            c = 8 if (i.cls == 'mfma' or i.is_trans or 'permlane' in i.mn) else 6 if i.mn.startswith(('v_fma', 'v_max3', 'v_min3', 'v_lshl_', 'v_bfe')) else 4.75 if i.mn.startswith('v_cvt') else 4
            self.q.append((c + (len(run) - 1), 0, (lambda r=run: a.items.extend(r)))); run = []
        if run: self.q.append((len(run), 0, (lambda r=run: a.items.extend(r))))
    def mark(self, name): self.q.append((0, 0, lambda: (self.g.marks.add(name), self.g.markn.append((name, self.g.cur[0])))))
    def pull(self, bud, full):
        n = self.g.cur[0]
        while self.q and n >= self.wake:
            v, l, fn = self.q[0]
            if v == 'sleep': self.wake = n + l; self.q.pop(0); continue
            if v == 'until': self.wake = max(n, l); self.q.pop(0); continue
            if l > bud[1]: return
            if v > bud[0] and bud[0] < full:
                bud[0] = -1; return
            self.q.pop(0); fn(); bud[0] -= v; bud[1] -= l


DEFAULTS = dict(wburst=(0, 2, 2, 0, 6, 0), xtat=0, xfirst=0, fF=0, f3at=27, symat=0, wpre=(0, 2), dnsplit=1, lateB=1, wo0=0, m2k0=11, m2n0=4, mdlate=1, m2gap=10, m2cut=60, aoff=6, wpace=0, cprio=1, g2p=22, tlb=0, tlbk=2, tsin=0, tz=0, outat=2, gbar=1, fbar=0, xorw=1, LOOK=6, A00=8, A0=8, Apos=(6, 6, 6, 6, 6, 6, 5, 5, 5, 5),
                wsched={5: 'k10 v10', 6: 'k11 v11', 7: 'k12 v12', 8: 'k13 v13', 9: 'k14 q10', 10: 'k15 q11', 11: 'v14 v15 q12', 12: 'q13 q14 q15'},
                bA=271, bH=295, kbud=10, vbud=5, wcost=5, kdel=1, hh=0.25, hq=0.97, hpf=(0.3, 0.7), fA=2, woA=4, hgap=(20, 14), fpre=8, m2c=4, m2k3='(j & 1)*2 + 1', m2g=5, m2e=7, m2nb=1, m2db=2, apos=0, hprio=3, qmid=8, qsplit=16, wowin=(4, 4, 4), AD2=8, LOOK2=7, g2r='(j & 1)*4', Hdir=0, Gdir=0, C2dir=0, poisat=3, earlyD=1, ocut=(0, 2, 2), pairw2=4, worot=1, fwin=(0, 0, 0, 3, 2, 3, 2), prio=2, tour=1, al12=1, kofs=0x300)


class Gen:
    def __init__(self, prof=False, opts=None):
        self.a = Asm()
        self.vm = Counter(self.a, 'vmcnt', 63)
        self.lg = Counter(self.a, 'lgkmcnt', 15)
        self.marks = set(); self.markn = []
        self.vL = vL
        self.prof = prof
        self.nopk = False
        self.nst = 0
        self.stnames = []
        self.S = SExpr(self.a, ENV, {k: v for k, v in globals().items() if isinstance(v, int) and k.isupper() and k not in ENV}, XT)
        self.o = dict(DEFAULTS)
        if opts: self.o.update(opts)

    def bl(self, dst, n, voff, srd, soff, imm=0, mods='', tag=None):
        op = {1: 'dword', 2: 'dwordx2', 4: 'dwordx4'}[n]
        so = soff if isinstance(soff, str) else (sr(soff))
        self.a(f'buffer_load_{op} {vr(dst, n)}, v{voff}, {sr(srd, 4)}, {so} offen' + (f' offset:{imm}' if imm else '') + (' ' + mods if mods else ''))
        self.vm.issue(tag)
    def bs(self, src, n, voff, srd, soff, imm=0, mods='', tag=None, count=True):
        op = {1: 'dword', 2: 'dwordx2', 4: 'dwordx4'}[n]
        so = soff if isinstance(soff, str) else (sr(soff))
        self.a(f'buffer_store_{op} {vr(src, n)}, v{voff}, {sr(srd, 4)}, {so} offen' + (f' offset:{imm}' if imm else '') + (' ' + mods if mods else ''))
        if count: self.vm.issue(tag)
    def dma(self, voff, srd, soff, imm=0, mods='', tag=None):
        self.a(f'buffer_load_dwordx4 v{voff}, {sr(srd, 4)}, {sr(soff)} offen' + (f' offset:{imm}' if imm else '') + (' ' + mods if mods else '') + ' lds')
        self.vm.issue(tag)
    def dr(self, op, dst, n, addr, off=0, tag=None):
        assert 0 <= off < 65536, off
        self.a(f'{op} {vr(dst, n)}, v{addr}' + (f' offset:{off}' if off else ''))
        self.lg.issue(tag)
    def tr(self, dst, addr, off, tag=None): self.dr('ds_read_b64_tr_b16', dst, 2, addr, off, tag)
    def r128(self, dst, addr, off=0, tag=None): self.dr('ds_read_b128', dst, 4, addr, off, tag)
    def dw(self, op, addr, src, n, off=0, tag=None):
        assert 0 <= off < 65536, off
        self.a(f'{op} v{addr}, {vr(src, n)}' + (f' offset:{off}' if off else ''))
        self.lg.issue(tag)
    def barrier(self):
        self.lg.wait_all()
        self.a('s_barrier')
    def stamp(self, name):
        if self.o.get('jit') and name not in ('karg', 'fin', 'end'):
            L = self.a.label('JIT')
            self.a(f's_memtime {sr(sTM, 2)}'); self.lg.wait_all()
            self.a(f's_mul_i32 s{sTM}, s{sTM}, 0x9e3779b1\ns_lshr_b32 s{sTM}, s{sTM}, {32 - self.o["jit"]}\ns_add_u32 s{sTM}, s{sTM}, 1\n{L}:\ns_sleep 1\ns_sub_u32 s{sTM}, s{sTM}, 1\ns_cmp_lg_u32 s{sTM}, 0\ns_cbranch_scc1 {L}')
        ex = self.o.get('exfil')
        if ex and name in ex[:2]:
            self.a(f's_memrealtime {sr(sTM, 2)}')
            self.lg.wait_all()
            self.a(f'v_writelane_b32 v255, s{sTM}, {1 + ex.index(name)}')
        if not self.prof: return
        only = self.o.get('only')
        if only and name not in only and name != 'end': return
        self.a(f's_memtime {sr(sTM, 2)}')
        self.a(f's_memrealtime s[0:1]')
        self.lg.wait_all()
        self.a(f'v_writelane_b32 v255, s{sTM}, {self.nst}')
        self.a(f'v_writelane_b32 v254, s0, {self.nst}')
        self.stnames.append(name)
        self.nst += 1
        assert self.nst <= 60
    def unpack(self, lo, hi, src):
        self.a(f'v_lshlrev_b32 v{lo}, 16, v{src}')
        self.a(f'v_and_b32 v{hi}, s{sMASK}, v{src}')
    def round1(self, r):
        self.a(f'v_cvt_pk_bf16_f32 v{r}, 0, v{r}')
    def round2(self, r0, r1):
        self.round1(r0); self.round1(r1)
    def round_list(self, regs):
        for r in regs: self.round1(r)
    def pk(self, op, d, s0, s1, s2=None, bc=(), neg=()):
        srcs = [s0, s1] + ([s2] if s2 is not None else [])
        if self.nopk:
            for h in range(2):
                t = []
                for k, r in enumerate(srcs):
                    kind, n = r if isinstance(r, tuple) else ('v', r)
                    t.append(('-' if k in neg else '') + f'{kind}{n if k in bc else n + h}')
                e64 = '' if op == 'fma' else ('_e64' if (neg or t[1][0] == 's') else '')
                self.a(f'v_{op}_f32{e64} v{d+h}, ' + ', '.join(t))
            return
        if 1 in bc and not isinstance(s1, tuple) and s1 & 1 and not self.o.get('badpk'):
            assert 0 not in bc
            sw = lambda t: tuple({0: 1, 1: 0}.get(k, k) for k in t)
            srcs[0], srcs[1] = srcs[1], srcs[0]; bc, neg = sw(bc), sw(neg)
        txt, sel, selhi = [], [], []
        for k, r in enumerate(srcs):
            kind, n = r if isinstance(r, tuple) else ('v', r)
            if k in bc:
                txt.append(f'{kind}[{n & ~1}:{(n & ~1) + 1}]'); sel.append(n & 1); selhi.append(n & 1)
            else:
                assert n % 2 == 0
                txt.append(f'{kind}[{n}:{n+1}]'); sel.append(0); selhi.append(1)
        assert d % 2 == 0
        m = ''
        if any(sel): m += ' op_sel:[' + ','.join(map(str, sel)) + ']'
        if not all(selhi): m += ' op_sel_hi:[' + ','.join(map(str, selhi)) + ']'
        if neg:
            ng = ','.join('1' if k in neg else '0' for k in range(len(srcs)))
            m += f' neg_lo:[{ng}] neg_hi:[{ng}]'
        self.a(f'v_pk_{op}_f32 v[{d}:{d+1}], ' + ', '.join(txt) + m)
    def dpp(self, op, d, s0, s1, ctl):
        self.a(f'{op}_dpp v{d}, v{s0}, v{s1} {ctl} row_mask:0xf bank_mask:0xf')
    def allreduce(self, v, t, op='v_add_f32', lo=True, b3=True):
        if lo:
            self.dpp(op, v, v, v, 'quad_perm:[1,0,3,2]')
            self.dpp(op, v, v, v, 'quad_perm:[2,3,0,1]')
            self.dpp(op, v, v, v, 'row_half_mirror')
        self.dpp(op, v, v, v, 'row_ror:8')
        self.a(f'v_mov_b32 v{t}, v{v}')
        self.a(f'v_permlane16_swap_b32 v{v}, v{t}')
        self.a(f'{op} v{v}, v{v}, v{t}')
        self.a(f'v_mov_b32 v{t}, v{v}')
        self.a(f'v_permlane32_swap_b32 v{v}, v{t}')
        self.a(f'{op} v{v}, v{v}, v{t}')
    def poll(self, loads, tagregs, tmp=None, post=None):
        a = self.a
        L, D = a.label('POLL'), a.label('PDONE')
        a(f'{L}:')
        loads()
        self.vm.wait_all()
        if post: post()
        if len(tagregs) == 1:
            a(f'v_cmp_ne_u32 vcc, s{sTAG}, v{tagregs[0]}')
        else:
            a(f'v_bitop3_b32 v{tmp}, v{tagregs[0]}, v{tagregs[1]}, s{sTAG} bitop3:0x7e')
            for t in tagregs[2:]: a(f'v_bitop3_b32 v{tmp}, v{tmp}, v{t}, s{sTAG} bitop3:0xf6')
            a(f'v_cmp_ne_u32 vcc, 0, v{tmp}')
        a(f's_cbranch_vccz {D}')
        a(f's_add_u32 s{sSPIN}, s{sSPIN}, 1')
        a(f's_cmp_lt_u32 s{sSPIN}, {SPIN_LIMIT}')
        a(f's_cbranch_scc1 {L}')
        a(f'{D}:')
    def weave(self, fn, extras):
        a = self.a
        keep = a.items; a.items = []
        fn()
        body = a.items; a.items = keep
        extras = list(extras); n = len(extras)
        for i, it in enumerate(body):
            while extras and (n - len(extras)) * len(body) <= i * n: extras.pop(0)()
            a.items.append(it)
        for e in extras: e()
    def tagcheck(self, tagregs, tmp):
        a = self.a
        if len(tagregs) == 1:
            a(f'v_cmp_ne_u32 vcc, s{sTAG}, v{tagregs[0]}')
        else:
            a(f'v_bitop3_b32 v{tmp}, v{tagregs[0]}, v{tagregs[1]}, s{sTAG} bitop3:0x7e')
            for t in tagregs[2:]: a(f'v_bitop3_b32 v{tmp}, v{tmp}, v{t}, s{sTAG} bitop3:0xf6')
            a(f'v_cmp_ne_u32 vcc, 0, v{tmp}')
    def try_load(self, loads, tagregs, tmp=None, between=None, pre=None):
        a = self.a
        n0 = len(self.vm.q)
        loads()
        self.vm.q[-1] = tg = ('try', a.label('T'))
        if between: between()
        self.vm.wait(tg)
        OK = a.label('TOK')
        self.tagcheck(tagregs, tmp)
        a(f's_cbranch_vccz {OK}')
        q, l = list(self.vm.q), list(self.lg.q)
        if pre: pre()
        self.poll(loads, tagregs, tmp)
        self.vm.q, self.lg.q = q, l
        a(f'{OK}:')
    def spoll(self, loads, checks, work=None):
        a = self.a
        L, C, D = a.label('SPOLL'), a.label('SCHK'), a.label('SDONE')
        def issue():
            for d, n, so, imm in loads:
                op = {1: 'dword', 2: 'dwordx2', 4: 'dwordx4', 8: 'dwordx8'}[n]
                a(f's_load_{op} {sr(sPL + d, n)}, {sr(rWS, 2)}, s{so} offset:{imm} glc')
        if work:
            issue(); work()
            a(f's_branch {C}')
        a(f'{L}:')
        issue()
        a(f'{C}:')
        a(f's_add_u32 s{sSPIN}, s{sSPIN}, 1')
        a(f's_cmp_ge_u32 s{sSPIN}, {SPIN_LIMIT}')
        self.lg.wait_all()
        a(f's_cbranch_scc1 {D}')
        for k in checks:
            a(f's_cmp_lg_u32 s{sPL + k}, s{sTAG}')
            a(f's_cbranch_scc1 {L}')
        a(f'{D}:')
    def inbox(self, box, n, checks=None, work=None):
        self.spoll([(0, n, sINB, box * 512)], range(n) if checks is None else checks, work)
    def va(self, dst, terms, sreg=None, const=0, tmp=None):
        a = self.a; vL = self.vL
        first = True
        for sh, bits, mult in terms:
            full = sh + bits >= 6
            src = vL
            t = dst if first else tmp
            if sh == 0 and full: pass
            elif full: a(f'v_lshrrev_b32 v{t}, {sh}, v{vL}'); src = t
            elif sh == 0: a(f'v_and_b32 v{t}, {(1 << bits) - 1}, v{vL}'); src = t
            else: a(f'v_bfe_u32 v{t}, v{vL}, {sh}, {bits}'); src = t
            p2 = mult & (mult - 1) == 0
            k = mult.bit_length() - 1
            if first:
                if p2 and sreg is not None: a(f'v_lshl_add_u32 v{dst}, v{src}, {k}, s{sreg}'); sreg = None
                elif p2 and k: a(f'v_lshlrev_b32 v{dst}, {k}, v{src}')
                elif p2:
                    if src != dst: a(f'v_mov_b32 v{dst}, v{src}')
                else: a(f'v_mul_u32_u24 v{dst}, {mult}, v{src}')
            else:
                assert p2
                a(f'v_lshl_add_u32 v{dst}, v{src}, {k}, v{dst}')
            first = False
        if sreg is not None: a(f'v_add_u32 v{dst}, s{sreg}, v{dst}')
        if const: a(f'v_add_u32 v{dst}, {const}, v{dst}')
    def push(self, vaddr, soff, nl, vtmp, lab, wave=0):
        a = self.a
        a(f's_cmp_lg_u32 s{sWAVE}, {wave}')
        a(f's_cbranch_scc1 {lab}')
        a(f'v_mov_b32 v{vtmp}, s{sTAG}')
        a(f's_mov_b32 exec_hi, 0')
        if nl < 32: a(f's_mov_b32 exec_lo, {(1 << nl) - 1}')
        self.bs(vtmp, 1, vaddr, rWS, soff, 0, 'sc1', count=False)
        a('s_mov_b64 exec, -1')
        a(f'{lab}:')
    def silu(self, v, t):
        a = self.a
        a(f'v_mul_f32 v{t}, s{sL2E}, v{v}')
        a(f'v_exp_f32 v{t}, -v{t}')
        a(f'v_add_f32 v{t}, 1.0, v{t}')
        a(f'v_rcp_f32 v{t}, v{t}')
        a(f'v_mul_f32 v{v}, v{v}, v{t}')
        self.round1(v)
    def gemv_ops(self, wregs, cregs, acc, t0, t1, packed):
        ops = []
        assert t0 % 2 == 0 and t1 == t0 + 1
        for i, (w, c) in enumerate(zip(wregs, cregs)):
            cp = f'v[{c & ~1}:{(c & ~1) + 1}]'
            for d in range(4):
                tt = t0 + 2 * (d & 1)
                ops.append(f'v_lshlrev_b32 v{tt}, 16, v{w+d}')
                ops.append(f'v_and_b32 v{tt+1}, s{sMASK}, v{w+d}')
                ac = f'v[{acc+2*d}:{acc+2*d+1}]'
                if not packed:
                    for h in range(2): ops.append(f'v_mul_f32 v{acc+2*d+h}, v{tt+h}, v{c}' if i == 0 else f'v_fmac_f32 v{acc+2*d+h}, v{tt+h}, v{c}')
                elif i == 0: ops.append(f'v_pk_mul_f32 {ac}, {cp}, v[{tt}:{tt+1}] op_sel:[{c & 1},0] op_sel_hi:[{c & 1},1]')
                else: ops.append(f'v_pk_fma_f32 {ac}, {cp}, v[{tt}:{tt+1}], {ac} op_sel:[{c & 1},0,0] op_sel_hi:[{c & 1},1,1]')
        for i in range(4): ops.append(f'v_permlane32_swap_b32 v{acc+i}, v{acc+4+i}')
        for i in range(4): ops.append(f'v_add_f32 v{acc+i}, v{acc+i}, v{acc+4+i}')
        for i in range(2): ops.append(f'v_permlane16_swap_b32 v{acc+i}, v{acc+2+i}')
        for i in range(2): ops.append(f'v_add_f32 v{acc+i}, v{acc+i}, v{acc+2+i}')
        for i in range(2): ops.append(f'v_add_f32_dpp v{acc+i}, v{acc+i}, v{acc+i} row_ror:8 row_mask:0xf bank_mask:0xf')
        ops.append(f'v_mov_b32_dpp v{acc}, v{acc+1} quad_perm:[0,1,2,3] row_mask:0xf bank_mask:0xc')
        return ops
    def sum8(self, b):
        self.pk('add', b, b, b + 2); self.pk('add', b + 4, b + 4, b + 6); self.pk('add', b, b, b + 4)
        self.a(f'v_add_f32 v{b}, v{b}, v{b+1}')
    def softmax_pm(self, p, e, out, t, mid=None, part=0, split=0, stage=None):
        a = self.a
        mx, mn, u0, u1, s0, s1 = t, t + 1, t + 2, t + 3, t + 4, t + 6
        if part != 2:
            self.round_list([p + i for i in range(16)])
            a(f'v_max3_f32 v{mx}, v{p}, v{p+1}, v{p+2}')
            a(f'v_min3_f32 v{mn}, v{p}, v{p+1}, v{p+2}')
            for i in range(3, 15, 2):
                a(f'v_max3_f32 v{mx}, v{mx}, v{p+i}, v{p+i+1}')
                a(f'v_min3_f32 v{mn}, v{mn}, v{p+i}, v{p+i+1}')
            a(f'v_max_f32 v{u0}, v{mx}, v{p+15}')
            a(f'v_min_f32 v{u1}, v{mn}, v{p+15}')
            a(f'v_max_f32 v{mx}, v{mx}, v{p+15}')
            a(f'v_min_f32 v{mn}, v{mn}, v{p+15}')
            a(f'v_permlane32_swap_b32 v{mx}, v{u0}')
            a(f'v_permlane32_swap_b32 v{mn}, v{u1}')
            a(f'v_max_f32 v{mx}, v{mx}, v{u0}')
            a(f'v_min_f32 v{mn}, v{mn}, v{u1}')
            self.pk('mul', mx, mx, ('s', sL2E), bc=(1,))
            mn2 = mn
            if not self.nopk: a(f'v_mov_b32 v{u0}, v{mn}'); mn2 = u0
            for i in range(0, 16, 2):
                self.pk('fma', e + i, p + i, ('s', sL2E), mx, bc=(1, 2), neg=(2,))
                self.pk('fma', p + i, p + i, ('s', sL2E), mn2, bc=(1, 2), neg=(0,))
        for i in range(split if part == 2 else 0, 16):
            if mid and i == mid[0]: mid[1]()
            if part == 1 and i == split: return
            a(f'v_exp_f32 v{e+i}, v{e+i}')
            a(f'v_exp_f32 v{p+i}, v{p+i}')
        self.pk('add', s0, e, e + 2); self.pk('add', s1, p, p + 2)
        for i in range(4, 16, 2):
            self.pk('add', s0, s0, e + i); self.pk('add', s1, s1, p + i)
        a(f'v_add_f32 v{u0}, v{s0}, v{s0+1}')
        a(f'v_add_f32 v{u1}, v{s1}, v{s1+1}')
        a(f'v_add_f32 v{mx}, v{s0}, v{s0+1}')
        a(f'v_add_f32 v{mn}, v{s1}, v{s1+1}')
        a(f'v_permlane32_swap_b32 v{mx}, v{u0}')
        a(f'v_permlane32_swap_b32 v{mn}, v{u1}')
        self.pk('add', mx, mx, u0)
        a(f'v_rcp_f32 v{mx}, v{mx}')
        a(f'v_rcp_f32 v{mn}, v{mn}')
        for i in range(0, 16, 2):
            self.pk('mul', e + i, e + i, mx, bc=(1,))
            self.pk('mul', p + i, p + i, mn, bc=(1,))
        for i in range(8): a(f'v_cvt_pk_bf16_f32 v{out+i}, v{e+2*i}, v{e+2*i+1}')
        for i in range(8): a(f'v_cvt_pk_bf16_f32 v{out+8+i}, v{p+2*i}, v{p+2*i+1}')
    def ln_stats(self, xp, t, m_out, sd_out, fill=()):
        a = self.a
        fill = list(fill)
        def pad(n):
            for _ in range(n):
                if fill: a(fill.pop(0))
        s, u = t, t + 4
        a(f'v_mov_b32 v{u}, 0x3f803f80')
        for i in range(8):
            k = 2 * (i & 1)
            a(f'v_dot2_f32_bf16 v{s+k}, v{xp+i}, v{u}, ' + ('0' if i < 2 else f'v{s+k}'))
            a(f'v_dot2_f32_bf16 v{s+k+1}, v{xp+i}, v{xp+i}, ' + ('0' if i < 2 else f'v{s+k+1}'))
        pad(3)
        self.pk('add', s, s, s + 2)
        for ctl in ('quad_perm:[1,0,3,2]', 'quad_perm:[2,3,0,1]', 'row_half_mirror', 'row_ror:8'):
            pad(2 if ctl.endswith('3,2]') else 1)
            self.dpp('v_add_f32', s, s, s, ctl); self.dpp('v_add_f32', s + 1, s + 1, s + 1, ctl)
        pad(2)
        a(f'v_permlane16_swap_b32 v{s}, v{s+1}')
        a(f'v_add_f32 v{u}, v{s}, v{s+1}')
        a(f'v_add_f32 v{s}, v{s}, v{s+1}')
        pad(2)
        a(f'v_permlane32_swap_b32 v{s}, v{u}')
        a(f'v_add_f32 v{s}, v{s}, v{u}')
        a(f'v_mul_f32 v{u}, 0x3a800000, v{s}')
        a(f'v_mul_f32 v{s}, 0x3a800000, v{s}')
        pad(2)
        a(f'v_permlane16_swap_b32 v{s}, v{u}')
        a(f'v_fma_f32 v{sd_out}, -v{s}, v{s}, v{u}')
        a(f'v_cvt_pk_bf16_f32 v{m_out}, 0, v{s}')
        a(f'v_max_f32 v{sd_out}, 0, v{sd_out}')
        self.round1(sd_out)
        a(f'v_add_f32 v{sd_out}, 0x3727c5ac, v{sd_out}')
        self.round1(sd_out)
        a(f'v_sqrt_f32 v{sd_out}, v{sd_out}')
        pad(99)
        self.round1(sd_out)

    def build(self):
        self.front()
        self.gemm1()
        self.middle()
        self.gemm2()
        self.tail()
        self.finish()
        return self

    def vaa(self, dst, terms, sreg=None, const=0): self.va(dst, terms, sreg, const, vT + 5)

    def front(self):
        a, vm, lg, o, S, va = self.a, self.vm, self.lg, self.o, self.S, self.vaa
        E2 = range(0, 16, 2)
        a(f'{NAME}:')
        a(f's_load_dwordx16 {sr(KA, 16)}, s[0:1], 0')
        a(f's_load_dwordx8 {sr(KA + 16, 8)}, s[0:1], 64')
        a(f's_load_dwordx2 {sr(rWS, 2)}, s[0:1], 104')
        a('s_cmp_ge_u32 s2, 256')
        a('s_cbranch_scc1 L_END')
        if self.prof:
            a(f's_memrealtime {sr(sCMP, 2)}')
            a(f's_memtime {sr(sTM, 2)}')
            a('v_mov_b32 v255, 0')
            a('v_mov_b32 v254, 0')
            self.stnames.append('start'); self.nst = 1
        if o.get('exfil'): a(f's_memrealtime {sr(sTM, 2)}')
        a(f"""v_lshrrev_b32 v{vT}, 6, v0
        v_and_b32 v{vL}, 63, v0
        s_nop 0
        v_readfirstlane_b32 s{sWAVE}, v{vT}
        v_lshlrev_b32 v{vL16}, 4, v{vL}""")
        for srd, size in ((rX, 4194304), (rWM, 12582912), (rWS, WS_BYTES), (rW, 6291456), (rWO, 2097152), (rWG, 7340032), (rWU, 7340032), (rWD, 7340032), (rOUT, 4194304)):
            a(f's_mov_b32 s{srd+2}, {size}')
            a(f's_mov_b32 s{srd+3}, 0x20000')
        a(f"""s_mov_b32 s{sSPIN}, 0
        s_mov_b32 s{sMASK}, 0xffff0000
        s_mov_b32 s{sL2E}, 0x3fb8aa3b""")
        if o.get('xflip'): a(f's_xor_b32 s2, s2, {o["xflip"]}')
        S(sX, 'wg & 7'); S(sJ, 'wg >> 3')
        S(sRow, 'wg*8 + w')
        S(sR1, '(x & 4)*2 + (j >> 2)'); S(sHP, '(x & 3)*4 + ((j & 3) ^ q)', q=o.get('hpx', 2))
        S(sCB, '(x & 1)*8 + (j & 7)')
        S(sRT, '(x >> 1)*4 + (j >> 3)')
        S(sINB, '(wg*64 + w)*64 + INB')
        xs_raw, wm, cv, st, acc, xs, mp, hp = AR, AR + 8, AR + 16, AR + 20, AR + 24, AR + 32, AR + 48, AR + 64
        vWM, vCo, vL8, vL32S, vGA, vXT = SP, SP + 1, SP + 2, SP + 3, SP + 4, vT + 6
        self.vWM, self.vL8, self.vL32S, self.vGA = vWM, vL8, vL32S, vGA
        S(T3, '((x >> 1)*256 + j*8 + w)*4096 + (x & 1)*1024')
        va(vT + 4, [(0, 5, 16), (5, 1, 2048)])
        S(T2, '(x*8 + w)*32')
        S(T0, 'T2*6144 + (j ^ 1)*128'); S(T1, 'T0 + 12288')
        S(T5, '(rt*8 + w)*32768 + cb*128' if not o.get('fakext') else '((x*16 + (j >> 1))*32768) + (j & 1)*1024 + w*128')
        S(T4, '(((x >> 1)*16 + cb)*16 + w)*512 + AINB')
        va(vWM, [(3, 3, 2 * 12288), (0, 3, 16)])
        va(vCo, [(3, 3, 4)], T2)
        va(vXT, [(0, 3, 16)]); va(vT + 7, [(3, 3, 16)]); a(f'v_xor_b32 v{vXT}, v{vXT}, v{vT+7}')
        va(vT + 7, [(3, 3, 2048)]); a(f'v_add_u32 v{vXT}, v{vXT}, v{vT+7}')
        a('s_waitcnt lgkmcnt(0)')
        if self.prof:
            a(f'v_writelane_b32 v255, s{sTM}, 0')
            a(f'v_writelane_b32 v255, s{sCMP}, 63')
            a(f'v_writelane_b32 v254, s{sCMP}, 0')
        if o.get('exfil'):
            for k in range(3): a(f'v_writelane_b32 v255, s{sTM}, {k}')
        self.stamp('karg')
        a(f'global_load_dword v{cv+1}, v{vCo}, {sr(pC, 2)}'); vm.issue('c')
        a(f's_mov_b64 {sr(rWM, 2)}, {sr(KA + 20, 2)}')
        self.bl(wm, 4, vWM, rWM, T0, 0, 'nt', 'wm')
        self.bl(wm + 4, 4, vWM, rWM, T1, 0, 'nt', 'wm')
        a(f's_load_dword s{sTAG}, {sr(rWS, 2)}, {NONCE}')
        a(f's_mov_b64 {sr(rX, 2)}, {sr(KA, 2)}')
        a(f's_load_dword s{sPL}, {sr(rWS, 2)}, s{sINB} offset:0 glc')
        for q in range(2): a(f's_load_dword s{sPL + 1 + q}, {sr(rWS, 2)}, s{T4} offset:{q * 4096 + 508} glc')
        if o['tlb'] & 1:
            S(T6, '(w & 1)*2097152 + HF')
            a(f's_load_dword s{sPL + 5}, {sr(rWS, 2)}, s{T6} offset:0')
        if o['tsin']:
            S(T6, '(wg*8 + w)*512 + SINB')
            for q in range(2): a(f's_load_dword s{sPL + 3 + q}, {sr(rWS, 2)}, s{T6} offset:{q * 256 + 252} glc')
        if o.get('bar0', 1): a('s_barrier')
        self.bl(xs_raw, 4, vT + 4, rX, T3, 0, o.get('xsm', 'nt'), 'xs')
        self.bl(xs_raw + 4, 4, vT + 4, rX, T3, 512, o.get('xsm', 'nt'), 'xs')
        for srd, k in ((rW, 2), (rWO, 6), (rWG, 12), (rWU, 14), (rWD, 16), (rOUT, 22)):
            a(f's_mov_b64 {sr(srd, 2)}, {sr(KA + k, 2)}')
        a(f"""s_getpc_b64 {sr(sCMP, 2)}
        s_and_b32 s{sCMP}, s{sCMP}, 0xfffffc00""")
        S(T6, '(j*8 + w)*128')
        va(vT, [(5, 1, 32768)], T6)
        a(f'v_min_u32 v{vT}, CODE_KB, v{vT}')
        a(f'global_load_dword v{vT+7}, v{vT}, {sr(sCMP, 2)}'); vm.issue()
        S(sKH, 'w >> 2'); S(sRB, 'w & 3'); S(sW1K, 'w*1024')
        S(sFS, 'x*7 + (j >> 2)'); S(sKQ, 'j & 3')
        va(vT + 2, [(4, 1, 64)]); va(vWd, [(0, 3, 16)])
        a(f'v_xor_b32 v{vWd}, v{vWd}, v{vT+2}'); va(vT + 2, [(3, 3, 6144)]); a(f'v_add_u32 v{vWd}, v{vWd}, v{vT+2}')
        S(sU0, o.get('u0', 'j & 12')); S(sWB, 'w*49152 + hp*128')
        wq = self.wq = [(n, t) for n in range(6) for t in 'kvq']
        def w_next(cnt=1):
            for _ in range(cnt):
                n, t = wq.pop(0)
                if t == 'k':
                    if n < 4:
                        S(sY1, '((j >> 4)*q) ^ n', n=n, q=2 * o['xorw'])
                        S(sY0, '((y1 + u0) & 15)*UR + wb'); S(sY1, 'y1*8192 + w1k')
                    else:
                        S(sY0, '((u0 + n) & 15)*UR + wb', n=n); S(sY1, 'w1k + q', q=n * 8192)
                S(sU, 'y0 + q', q=dict(q=0, k=2048, v=4096)[t]); S('m0', 'y1 + q', q='kvq'.index(t) * REG)
                self.dma(vWd, rW, sU, 0, o.get('wm0', '') if n < 2 else o.get('wm1', ''), ('W', n))
        wb = list(o['wburst'])
        va(vL8, [(0, 6, 8)])
        a(f'v_add_u32 v{vL32S}, {MISC}, v{vL16}')
        S(T0, '(w >> 2)*1024 + MISC'); S(T1, 'w & 3')
        va(vGA, [(0, 2, 1)]); a(f'v_xor_b32 v{vGA}, s{T1}, v{vGA}\nv_lshl_add_u32 v{vGA}, v{vGA}, 2, s{T0}')
        va(vT + 2, [(4, 2, 32), (0, 3, 128), (3, 1, 16)]); a(f'v_add_u32 v{vGA}, v{vGA}, v{vT+2}')
        self.stamp('issued')
        def xt_load():
            for h in range(2):
                S('m0', 'w*2048 + q', q=L_XT + h * 1024)
                self.dma(vXT, rX, T5, 0, '', 'xt')
                if h == 0: S(T5, 'T5 + 16384')
        if o['xtat'] == 0: xt_load()
        S(T0, '((((w >> 1)*16 + ((j ^ 1) & 15))*2 + (j >> 4))*8 + x)*512 + AINB')
        S(T7, '((x & 6) + ((j & 24) + w)*8)*4096 + (j & 7)*512 + (x & 1)*256 + SINB')
        vm.wait('c')
        self.unpack(cv, cv + 1, cv + 1)
        for i in range(2): self.silu(cv + i, vT + i)
        w_next(o['wpre'][0])
        vm.wait('wm')
        self.stamp('wmok')
        w_next(o['wpre'][1])
        for s in self.gemv_ops([wm, wm + 4], [cv, cv + 1], acc, vT, vT + 1, True): a(s)
        a(f"""s_waitcnt lgkmcnt(0)
        s_mul_i32 s{sTAG}, s{sTAG}, 0x9e3779b1
        s_add_u32 s{sTAG}, s{sTAG}, 0x7f4a7c15""")
        self.dw('ds_write_b32', vGA, acc, 1, L_A1 - MISC)
        self.barrier()
        self.r128(acc, vL32S, L_A1 - MISC); self.r128(acc + 4, vL32S, L_A1 - MISC + 1024)
        if o['xtat'] == 1: xt_load()
        lg.wait_all()
        self.sum8(acc)
        a(f'v_mov_b32 v{acc+1}, s{sTAG}')
        a(f"""s_bitcmp1_b32 s{sWAVE}, 0
        s_cselect_b32 exec_lo, 0, -1
        s_cselect_b32 exec_hi, -1, 0""")
        self.bs(acc, 2, vL8, rWS, T0, 0, 'sc1')
        a('s_mov_b64 exec, -1')
        self.stamp('A1pub')
        w_next(wb[0])
        vm.wait('xs')
        self.stamp('xsok')
        u1 = vT + 4
        a(f'v_mov_b32 v{u1}, 0x3f803f80')
        for i in range(8):
            k = 2 * (i & 1)
            a(f'v_dot2_f32_bf16 v{vT+k}, v{xs_raw+i}, v{u1}, ' + ('0' if i < 2 else f'v{vT+k}'))
            a(f'v_dot2_f32_bf16 v{vT+k+1}, v{xs_raw+i}, v{xs_raw+i}, ' + ('0' if i < 2 else f'v{vT+k+1}'))
        S(T0, 'w*32 + L_ST'); va(u1, [(5, 1, 16), (4, 1, 8)], T0)
        self.pk('add', st, vT, vT + 2)
        va(vT + 1, [(0, 4, 16)], None, L_ST)
        va(vT, [(0, 4, 16), (4, 1, 4096)])
        for ctl in ('quad_perm:[1,0,3,2]', 'quad_perm:[2,3,0,1]', 'row_half_mirror', 'row_mirror'):
            self.dpp('v_add_f32', st, st, st, ctl); self.dpp('v_add_f32', st + 1, st + 1, st + 1, ctl)
        a(f"""v_permlane16_swap_b32 v{st}, v{st+1}
        v_add_f32 v{st}, v{st}, v{st+1}
        v_mov_b32 v{st+1}, s{sTAG}""")
        self.dw('ds_write_b64', u1, st, 2)
        self.barrier()
        self.r128(st, vT + 1)
        lg.wait_all()
        a('s_mov_b32 exec_hi, 0')
        self.bs(st, 4, vT, rWS, T7, 0, 'sc1')
        a('s_mov_b32 exec_hi, -1')
        self.stamp('A2pub')
        if o['xtat'] == 2: xt_load()
        w_next(wb[1])
        mg = acc
        def pre_work():
            va(vT, [(0, 5, 16), (5, 1, 4096)])
            S(T1, 'w & 3'); S(T2, '(w >> 2)*1024 + L_MP')
            va(vT + 1, [(4, 1, 1), (2, 1, 2)]); a(f'v_xor_b32 v{vT+1}, s{T1}, v{vT+1}\nv_lshl_add_u32 v{vT+1}, v{vT+1}, 2, s{T2}')
            va(vT + 2, POS + [(5, 1, 2048)]); a(f'v_add_u32 v{vT+1}, v{vT+1}, v{vT+2}')
            S(T1, '(wg*8 + w)*512 + SINB')
            va(vT + 4, [(0, 5, 16)])
        def x_unpack():
            S(T2, 'w*2048 + L_XT')
            va(hp, [(4, 2, 16)]); va(hp + 1, [(0, 3, 16)]); a(f'v_xor_b32 v{hp}, v{hp}, v{hp+1}')
            va(hp + 1, [(0, 4, 128)], T2); a(f'v_add_u32 v{hp}, v{hp}, v{hp+1}\nv_xor_b32 v{hp+1}, 64, v{hp}')
            vm.wait('xt')
            a(f'ds_read_b128 {vr(XR, 4)}, v{hp}\nds_read_b128 {vr(XR + 4, 4)}, v{hp+1}')
        def x_unpack2():
            for p, q in ((0, 2), (1, 3), (4, 6), (5, 7)): a(f'v_permlane32_swap_b32 v{XR+p}, v{XR+q}')
            for i in range(8): self.unpack(xs + 2 * i, xs + 2 * i + 1, XR + i)
        self.spoll([(q, 1, T4, q * 4096 + 508) for q in range(2)], range(2), work=pre_work)
        self.stamp('apre')
        if o.get('abar', 0): a('s_barrier')
        st_ld = lambda: self.bl(st, 4, vT + 4, rWS, T1, 0, 'sc1', 'st')
        def st_go():
            self.spoll([(q, 1, T1, q * 256 + 252) for q in range(2)], range(2), work=x_unpack)
            st_ld()
            if o['fbar']: a('s_barrier')
            w_next(wb[2])
            x_unpack2()
        self.try_load(lambda: self.bl(mg, 4, vT, rWS, T4, 0, 'sc1'), [mg + 1, mg + 3], vT + 3, st_go)
        self.stamp('modok')
        a(f'ds_write2_b32 v{vT+1}, v{mg}, v{mg+2} offset0:0 offset1:4'); lg.issue()
        self.barrier()
        for i in (2, 3, 0, 1): self.r128(mp + 4 * i, vL32S, L_MP - MISC + i * 1024, i >> 1)
        S(T0, 'hp*4096 + w*512')
        a(f'v_add_u32 v{vT}, s{T0}, v{vL16}')
        S('m0', 'w*512 + L_WPHI')
        a('s_mov_b32 exec_hi, 0')
        a(f'global_load_lds_dwordx4 v{vT}, {sr(pWPHI, 2)}'); vm.issue()
        a('s_mov_b32 exec_hi, -1')
        w_next(wb[3])
        S(T0, '((rt*16 + cb)*4 + (w >> 1))*4096 + (w & 1)*256 + HF')
        va(vT, [(0, 4, 16), (4, 1, 1024), (5, 1, 512)])
        def mod_sum():
            lg.wait(1); self.sum8(mp + 8)
            self.round1(mp + 8)
            lg.wait(0); self.sum8(mp)
            a(f'v_add_f32 v{mp+8}, 1.0, v{mp+8}')
            self.round2(mp + 8, mp)
        if not o['xfirst']: mod_sum()
        vm.wait('st')
        self.tagcheck([st + 1, st + 3], vT + 3)
        a('s_cbranch_vccz L_STOK')
        q0 = list(vm.q)
        self.poll(st_ld, [st + 1, st + 3], vT + 3)
        vm.q = q0
        a('L_STOK:')
        self.stamp('statok')
        a(f"""v_permlane16_swap_b32 v{st}, v{st+2}
        v_add_f32 v{st+3}, v{st}, v{st+2}
        v_mul_f32 v{st+2}, 0x3a800000, v{st+3}
        v_mul_f32 v{st+3}, 0x3a800000, v{st+3}
        v_permlane16_swap_b32 v{st+2}, v{st+3}
        v_fma_f32 v{st}, -v{st+2}, v{st+2}, v{st+3}
        v_cvt_pk_bf16_f32 v{st+1}, 0, v{st+2}
        v_max_f32 v{st}, 0, v{st}""")
        self.round1(st)
        for i in E2[:4]: self.pk('add', xs + i, xs + i, st + 1, bc=(1,), neg=(1,))
        a(f'v_add_f32 v{st}, 0x3727c5ac, v{st}')
        self.round1(st)
        a(f'v_sqrt_f32 v{st}, v{st}')
        for i in E2[4:]: self.pk('add', xs + i, xs + i, st + 1, bc=(1,), neg=(1,))
        self.round1(st)
        a(f'v_rcp_f32 v{st}, v{st}')
        self.round_list([xs + i for i in range(16)])
        for i in E2: self.pk('mul', xs + i, xs + i, st, bc=(1,))
        if o['xfirst']: mod_sum()
        self.round_list([xs + i for i in range(16)])
        for h in range(2):
            rg = range(8 * h, 8 * h + 8)
            for i in rg: self.dpp('v_mul_f32', xs + i, mp + 8, xs + i, f'row_newbcast:{i}')
            self.round_list([xs + i for i in rg])
            for i in rg: self.dpp('v_add_f32', xs + i, mp, xs + i, f'row_newbcast:{i}')
            for i in range(4 * h, 4 * h + 4): a(f'v_cvt_pk_bf16_f32 v{hp+i}, v{xs+2*i}, v{xs+2*i+1}')
            self.bs(hp + 4 * h, 4, vT, rWS, T0, 2048 * h, 'sc1', 'hs')
        self.stamp('hst')
        va(vB, [(2, 2, 128), (3, 1, 64), (4, 1, 32), (0, 2, 8), (5, 1, 512)])
        a(f'v_xor_b32 v{vB+1}, 64, v{vB}')
        for q in (1, 2):
            for h in range(2): a(f'v_add_u32 v{vB+2*q+h}, {q*REG}, v{vB+h}')
        va(vT + 1, [(0, 2, 8 * 4096), (2, 2, 4096)])
        S(T0, '((rt >> 3)*4 + (rt & 7)*32)*4096 + (cb >> 1)*64 + (cb & 1)*4 + INB')
        S(sAB, 'r1*262144 + rb*4096 + HF')
        a(f"""s_cmp_ge_u32 s{sJ}, {0 if o.get('noffn') else 28}
        s_cselect_b32 s{rWG+2}, 0, s{rWG+2}
        s_cselect_b32 s{rWU+2}, 0, s{rWU+2}
        s_cselect_b32 s{rWD+2}, 0, s{rWD+2}""")
        vm.wait('hs')
        a('s_barrier')
        self.push(vT + 1, T0, 16, vT + 2, 'L_PB')
        self.stamp('hpub')
        w_next(wb[4])
        vWo, vFG, vFD = vS0, vS1, SP + 5
        def setup():
            S(sWO, 'w*16384 + cb*128' if not o.get('fake84') else 'w*16384 + ((x & 3)*4 + (j & 3))*128'); S(sY2, '(j >> 2)*262144' if o.get('fake84') else '((j & 1)*8 + (j >> 3)*2)*131072' if o['worot'] else '(j & 1)*1048576')
            S(sFG, '(kq*8 + w)*(32*7168) + fs*128'); S(sFD, '(fs*8 + w)*16384 + kq*512')
            S(sM2, '((x & 3)*8 + w)*(32*12288) + (j*2 + (x >> 2))*128 + 4096')
            S(T1, '(w & 1)*64')
            va(vT + 2, [(4, 1, 32)], T1); va(vWo, [(0, 3, 16)])
            a(f'v_xor_b32 v{vWo}, v{vWo}, v{vT+2}'); va(vT + 2, [(3, 3, 2048)]); a(f'v_add_u32 v{vWo}, v{vWo}, v{vT+2}')
            S(T1, '(w & 2)*32'); va(vT + 2, [(4, 1, 32)], T1); va(vFG, [(0, 3, 16)])
            a(f'v_xor_b32 v{vFG}, v{vFG}, v{vT+2}'); va(vT + 2, [(3, 3, 7168)]); a(f'v_add_u32 v{vFG}, v{vFG}, v{vT+2}')
            S(T1, '(w & 1)*128')
            va(vT + 2, [(5, 1, 64)], T1); va(vFD, [(0, 5, 16), (5, 1, 2048)])
            a(f'v_xor_b32 v{vFD}, v{vFD}, v{vT+2}')
            S(T3, 'u0*16384'); a(f'v_add_u32 v{vCo}, s{sAB}, v{vL16}')
            S(T1, 'rb*2048 + L_QH'); a(f'v_add_u32 v0, s{T1}, v{vL16}')
        S(T6, 'wg*4096 + INB'); S(T7, '(w & 3)*128 + T6'); S(T6, 'u0*32 + T6')
        a(f's_cmp_ge_u32 s{sWAVE}, 4\ns_cselect_b32 s{T6}, s{T7}, s{T6}')
        bpoll = self.bpoll = lambda work=None: self.spoll([(0, 2, T6, 0), (2, 2, T6, 64)], range(4), work)
        if o['lateB']:
            def bw():
                w_next(wb[5]); setup()
                if o['fF']:
                    a(f's_cmp_lt_u32 s{sWAVE}, 4\ns_cbranch_scc1 L_NFF')
                    for k in range(o['fF']):
                        for far in range(2):
                            S(sU, 'fg + q', q=(k * 8 * 7168 - far * 4 * 32 * 7168) & 0xffffffff)
                            a(f'buffer_load_dwordx4 {vr(AK + 8*k + 4*far, 4)}, v{vFG}, {sr(rWG, 4)}, s{sU} offen nt')
                    a('L_NFF:')
                a(';TOUR')
                a(f's_cmp_ge_u32 s{sWAVE}, 4\ns_cbranch_scc1 L_HELP')
            bpoll(bw)
        else: bpoll(lambda: (w_next(wb[5]), setup(), a(';TOUR')))
        assert len(wq) >= 6
        assert len(wq) % 3 == 0 and len(wq) <= (6 if o['xorw'] else 12)

    def gemm1(self):
        a, vm, lg, o, S, va = self.a, self.vm, self.lg, self.o, self.S, self.vaa
        LOOK = o['LOOK']; NB = LOOK + 1; assert NB <= 7
        vWo, vFG, vFD, vHo = vS0, vS1, SP + 5, 0
        self.vWo, self.vFG, self.vFD = vWo, vFG, vFD
        m2w, m2c = AV, AV + 24
        FL = self.FL = AK
        cur = self.cur = [0]
        TOK = [(0, 3, 16), (3, 2, 256), (5, 1, 128)]
        def cvt8(d, s_):
            for i in range(8): a(f'v_cvt_pk_bf16_f32 v{d+i}, v{s_+2*i}, v{s_+2*i+1}')
        self.cvt8 = cvt8
        fq = self.fq = [(m, i) for m in range(3) for i in range(4)]
        held = self.held = ([], [])
        def f_src(m, i, far=0):
            q = (i * 8 * 7168 + far * 4 * 32 * 7168, i * 4096 + far * 4 * 16384)[m == 2]
            S(sU, ('fg', 'fd')[m == 2] + ' + q', q=q & 0xffffffff)
            return (vFG, (rWG, rWU)[m]) if m < 2 else (vFD, rWD)
        def f_lds(m, i): return (L_GU + m * 32768 if m < 2 else L_DN) + i * 1024
        def f_ld(g, k, far, count=True):
            m, i = held[g][k]
            v, r = f_src(m, i, far * (1 - 2 * g))
            a(f'buffer_load_dwordx4 {vr(FL + 8*k + 4*far, 4)}, v{v}, {sr(r, 4)}, s{sU} offen nt')
            if count: vm.issue('ffn')
        sym = self.sym = []
        def ffn_reg(n=1):
            for _ in range(n):
                m, i = fq.pop(0)
                r0 = 8 * len(held[1]) + 4 * len(sym); assert r0 < 64 and (r0 < 32 or o['m2c'] >= 3)
                assert o['m2c'] != 4 or r0 < 32 or 'm2pub' in self.marks
                v, r = f_src(m, i)
                self.bl(FL + r0, 4, v, r, sU, 0, 'nt', 'ffr')
                sym.append((m, i, FL + r0))
        def ffn_dma(n=1):
            for _ in range(n):
                m, i = fq.pop(0)
                v, r = f_src(m, i)
                S('m0', 'w1k*4 + q', q=f_lds(m, i))
                self.dma(v, r, sU, 0, 'nt', 'ffn' if m < 2 or not o['dnsplit'] else 'fdn')
        self.ffn_reg, self.ffn_dma, self.f_lds = ffn_reg, ffn_dma, f_lds
        for _ in range(o['fA']): held[1].append(fq.pop(0))
        def m2_ld(i):
            if i == 0:
                S(sU, '((x & 3)*8 + w)*64'); self.va(m2c + 4, [(3, 3, 2)], sU, 0, m2c + 5)
                for k in range(4): a(f'global_load_ushort v{m2c+k}, v{m2c+4}, {sr(pC, 2)} offset:{16*k}'); vm.issue('m2')
            S(sU, 'm2 + q', q=i * 8 * 12288)
            self.bl(m2w + 4 * i, 4, self.vWM, rWM, sU, 0, 'nt', 'm2')
        wslot = lambda p: p
        def wo_dma(p, back=0):
            S(sU, '(y2 ^ q) + wo' + (' - 65536' if back else ''), q=p * 131072)
            S('m0', 'w1k + q', q=wslot(p) * 8192 - 4096 * back)
            self.dma(vWo, rWO, sU, 0, o.get('wom', ''), 'wo')
        self.wo_dma = wo_dma
        def poison(backs, t):
            a(f'v_mov_b32 v{t}, -1\nv_mov_b32 v{t+1}, -1\nv_mov_b32 v{t+2}, -1\nv_mov_b32 v{t+3}, -1')
            for back in backs:
                S(T6, '((rt*8 + w - q)*16 + cb)*256 + ST', q=4 * back); self.va(t + 4, [(0, 6, 4)])
                self.bs(t, 1, t + 4, rWS, T6, 0, 'sc1')
            S(T6, 'rt*16384 + cb*512 + XS'); self.va(t + 4, [(0, 5, 16), (5, 1, 8192)], None, 0, t + 5)
            a(f's_cmp_lg_u32 s{sWAVE}, 5\ns_cbranch_scc1 L_NOPO')
            self.bs(t, 4, t + 4, rWS, T6, 0, 'sc1', count=False)
            a('L_NOPO:')
        self.poison = poison
        def kv_prep():
            vPA, vPB, ones = AK + 28, AK + 29, AK + 24; assert o['fA'] <= 3
            self.va(vPB, [(0, 1, 8), (2, 2, 16), (4, 1, 64), (1, 1, 128), (5, 1, 256)], None, 0, vPA)
            S(T0, 'w*4096 + L_PHK'); a(f'v_add_u32 v{vPA}, s{T0}, v{vPB}')
            S(T0, 'kh*8192 + L_HV'); a(f'v_add_u32 v{vPB}, s{T0}, v{vPB}')
            for i in range(4): a(f'v_mov_b32 v{ones+i}, 0x3f803f80')
            S(T0, '((hp*8 + w)*32 + r1)*1024 + KVP'); S(T2, 'T0 + 16384')
            S(T3, '(hp*8 + w)*1024 + ZP'); S(T1, 'r1*64 + T3')
        seq = []
        for sg in range(36): seq += [(t, h, sg) for t in 'kqv' for h in range(2)]
        for sg in range(36, 40): seq += [('k', h, sg) for h in range(2)]
        for sg in range(36, 40): seq += [(t, h, sg) for t in 'qv' for h in range(2)]
        for h in range(2): seq += [('k', h, sg) for sg in range(40, 64)]
        for t in 'vq':
            for sg in range(40, 64): seq += [(t, h, sg) for h in ((1, 0) if (t, sg) == ('q', 63) else (0, 1))]
        bA, bH, bQ = o['bA'], o['bH'], 335
        assert bA >= 271
        bars = [24 * k - 1 for k in range(1, 10)] + [223, 239, 253, bA, bH, bQ]
        first, last = {}, {}
        for n, (t, h, sg) in enumerate(seq):
            first.setdefault(f'{t}{sg >> 2}', n); last[f'{t}{sg >> 2}'] = n; last[('A', sg)] = n
        if not o['lateB']: a(f's_cmp_ge_u32 s{sWAVE}, 4\ns_cbranch_scc1 L_HELP')
        a(f's_setprio {o["prio"]}')
        q_hok = list(vm.q)
        ACC = dict(k=AK, v=AV, q=AQ)
        nxt = [0]; late = []
        def a_load():
            while late: a(late.pop(0))
            sg = nxt[0]; nxt[0] += 1
            assert sg < 16 or cur[0] > bars[0]
            if o.get('noA') and sg >= 12: return
            self.bl(AR + 4 * (sg % 24), 4, SP + 1, rWS, T3, (sg % 4) * 1024, 'sc1', ('A', sg))
            if sg % 4 == 3: late.extend([f's_add_u32 s{T3}, s{T3}, 16384', f's_and_b32 s{T3}, s{T3}, 0x3ffff'])
        def b_read(n):
            t, h, sg = seq[n]
            s = sg & 3
            off = ((sg >> 2) % 6) * 8192 + (s >> 1) * 4096 + (s & 1) * 1024
            d = RING + 4 * (n % NB); v = vB + 2 * 'kvq'.index(t) + h
            self.tr(d, v, off, ('B', n)); self.tr(d + 2, v, off + 2048, ('B', n))
        self.nopk = True
        stk, stv = Stream(self), Stream(self)
        for h in range(2):
            for q in range(2):
                stk.cap(lambda: [a(f'v_cvt_pk_bf16_f32 v{AK+16*h+4*q+i}, v{AK+16*h+8*q+2*i}, v{AK+16*h+8*q+2*i+1}') for i in range(4)])
                stk.add(lambda h=h, q=q: self.dw('ds_write_b128', vHo, AK + 16 * h + 4 * q, 4, q * 1024, f'kh{h}'), o['wcost'], 1)
            stk.mark(f'kh{h}')
            if h == 0:
                stk.cap(lambda: a(f'v_subrev_u32 v{vHo}, {L_QH - L_HV}, v{vHo}'))
                stk.until(288 + o['kdel'])
        stk.until(bH + 1)
        stk.cap(lambda: (S(T1, 'rb*2048 + L_HV'), self.va(vHo, TOK, T1, 0, vT)))
        for h in range(2):
            for q in range(2):
                stv.cap(lambda: [a(f'v_cvt_pk_bf16_f32 v{AV+16*h+4*q+i}, v{AV+16*h+8*q+2*i}, v{AV+16*h+8*q+2*i+1}') for i in range(4)])
                stv.add(lambda h=h, q=q: self.dw('ds_write_b128', vHo, AV + 16 * h + 4 * q, 4, h * 8192 + q * 1024, 'vst'), o['wcost'], 1)
        stv.cap(kv_prep)
        if o['m2c'] == 0:
            stv.sleep(4)
            stv.add(lambda: lg.wait('vst'))
            for i in range(4): stv.add(lambda i=i: m2_ld(i), 0, 1); stv.sleep(o.get('fgap', 4))
        while nxt[0] < o['A00']: a_load()
        vm.wait(('W', 3 if o['xorw'] else 1))
        a('s_barrier')
        self.stamp('hok')
        if not nxt[0]: a_load()
        for n in range(LOOK): b_read(n)
        while nxt[0] < o['A0']: a_load()
        seen = set(); lpend = []; owe = [0]
        Apos = list(o['Apos']); assert o['A0'] + sum(Apos) == 64
        for n in range(384):
            t, h, sg = seq[n]; cur[0] = n
            if ('A', sg) not in seen:
                assert sg < nxt[0]
                vm.wait(('A', sg)); seen.add(('A', sg))
            lg.wait(('B', n))
            d = ACC[t] + 16 * h
            a(f'v_mfma_f32_32x32x16_bf16 {vr(d, 16)}, {vr(RING + 4*(n % NB), 4)}, {vr(AR + 4*(sg % 24), 4)}, ' + (vr(d, 16) if sg else '0'))
            if self.prof and o.get('ls'):
                l0, l1, lst = o['ls']
                if lpend and n >= lpend[0][0]:
                    _, r_, k_ = lpend.pop(0); a(f'v_writelane_b32 v255, s{r_}, {k_}')
                if l0 <= n < l1 and (n - l0) % lst == 0:
                    r_ = sPL + 2 * (self.nst % 4)
                    a.items.append(('raw', f'    s_memtime {sr(r_, 2)}')); lpend.append((n + 4, r_, self.nst)); self.stnames.append(f'n{n}'); self.nst += 1
            def a_try():
                p, r = divmod(n, 24)
                ao = o['aoff'] if p else 0; r -= ao
                if n < 240 and r >= 0 and (r + 1) * Apos[p] // (24 - ao) > r * Apos[p] // (24 - ao): owe[0] += 1
                if owe[0] and (nxt[0] < 24 or last[('A', nxt[0] - 24)] <= n): a_load(); owe[0] -= 1
                elif late: a(late.pop(0))
            if o['apos'] == 0: a_try()
            bud = [o['kbud'], 1]
            if n >= 264 + o['kdel']: stk.pull(bud, bud[0])
            bud = [o['vbud'], 1]
            if n > bQ + 2: stv.pull(bud, bud[0])
            if n + LOOK < 384: b_read(n + LOOK)
            if o['apos'] == 1: a_try()
            if n in bars:
                if n in (bA, bH):
                    assert f'kh{int(n == bH)}' in self.marks
                    lg.wait(f'kh{int(n == bH)}')
                    if 'prio2' in o and n == bA: a(f's_setprio {o["prio2"]}')
                if not (o.get('noB') and n < 200): a('s_barrier')
                if o.get('gst'): self.stamp(f'b{n}')
        assert not (stk.q or stv.q) and nxt[0] == 64
        self.stamp('gemm1')
        vq, wph = AR + 16, AR + 24
        S(T4, 'rb*2048 + L_QH'); a(f'v_add_u32 v{vHo}, s{T4}, v{vL16}')
        va(vT, [(2, 2, 64), (4, 1, 32), (0, 2, 8), (5, 1, 256)], None, L_WPHI)
        for s in range(2):
            for u in range(2): self.tr(wph + 4 * s + 2 * u, vT, s * 1024 + u * 512)
        cvt8(AR, AQ + 16)
        for q in range(2): self.dw('ds_write_b128', vHo, AR + 4 * q, 4, q * 1024)
        cvt8(vq, AQ)
        if o['m2c'] == 1:
            for i in range(4): m2_ld(i)
        a('s_setprio 0')
        a('s_branch L_JOIN')
        a('L_HELP:')
        vm.q = list(q_hok) + ['ffn'] * (2 * o['fF']); lg.reset()
        vm.wait(('W', 3 if o['xorw'] else 1))
        a('s_barrier')
        vis = {}
        pace = [1]
        def w_sec(t, n):
            if o.get('noW'): return
            for back in (1, 0):
                S(sU, '((u0 + n) & 15)*UR + wb + q', n=n, q=(dict(q=0, k=2048, v=4096)[t] - back * 4 * 49152) & 0xffffffff)
                S('m0', 'w1k + q', q='kvq'.index(t) * REG + (n % 6) * 8192 - back * 4096)
                self.dma(vWd, rW, sU, 0, '', ('W', t, n))
                if o['wpace'] and pace[0]: a(f's_waitcnt vmcnt({o["wpace"]})')
        for n, t in self.wq: w_sec(t, n)
        if o['lateB']:
            lg.wait_all(); self.bpoll()
        ka, wp2, pa, pb, ee, vPW = AR, AR + 16, AR + 32, AR + 48, AR + 64, AR + 80
        va(vT, [(2, 2, 64), (4, 1, 32), (0, 2, 8), (5, 1, 256)], None, L_WPHI)
        for hs in range(4):
            for u in range(2): self.tr(wp2 + 4 * hs + 2 * u, vT, hs * 1024 + u * 512)
        S(T1, 'rb*1024 + L_PHK'); va(vPW, TOK, T1)
        def touch(boxes):
            a('s_waitcnt lgkmcnt(0)')
            for q, b in enumerate(boxes):
                a(f's_load_dword s{sPL + 2*q}, {sr(rWS, 2)}, s{sINB} offset:{b * 512} glc')
                a(f's_load_dword s{sPL + 2*q + 1}, {sr(rWS, 2)}, s{sINB} offset:{b * 512 - 256} glc')
        wsched = {int(k): v.split() for k, v in o['wsched'].items()}
        for k in range(1, 5): wsched[k] = [f'{t}{k + 5}' for t in 'kqv'] + wsched.get(k, [])
        need = {}
        for u in first:
            k = len([b for b in bars if b < first[u] - LOOK])
            if k: need.setdefault(k, []).append(u)
        done = {f'{t}{n}' for n in range(6) for t in 'kvq'}
        def h_bar(k):
            if k < 5: vm.wait(('W', k + 1))
            for u in need.get(k, []):
                assert u in done, (u, k)
                vm.wait(('W', u[0], int(u[1:])))
            if not (o.get('noB') and k < 9): a('s_barrier')
            for u in wsched.get(k, []):
                assert last[f'{u[0]}{int(u[1:]) - 6}'] <= bars[k - 1], (u, k)
                w_sec(u[0], int(u[1:])); done.add(u)
        hm, hc, ha, ht = AV, AQ, AQ + 8, AQ + 16
        if o.get('fP'): S(T4, o['fP'])
        if o['m2c'] == 4:
            hc, ha, ht = RING + 8, AR + 44, vT + 4
            def m2h(i):
                S(sU, 'T6 + q', q=i * 12288)
                self.bl(hm + 4 * i, 4, self.vWM, rWM, sU, 0, 'nt')
        if o['m2c'] >= 3:
            S(T5, o['m2k3'])
            assert o['m2c'] == 4
            S(sU, '((x & 3)*4 + w - 4)*128'); self.va(ht, [(3, 3, 16)], sU)
            a(f'global_load_dwordx4 {vr(hc + 4, 4)}, v{ht}, {sr(pC, 2)}'); vm.issue('c2')
            va(self.vWM, [(3, 3, 8 * 12288), (0, 3, 16)])
            S(T6, '((x & 3)*4 + w - 4)*(64*12288) + (j*2 + (x >> 2))*128 + 4096')
        for k in range(1, 14):
            if k == 13: lg.wait_all()
            if o['m2c'] == 3 and k == o['m2e'] + 1: lg.wait_all()
            h_bar(k)
            if o['m2c'] == 4 and k == o['m2k0']:
                for i in range(o['m2n0']): m2h(i)
            if o['m2c'] == 4 and k == 3:
                vm.wait('c2')
                for i in range(4): self.unpack(hc + 2 * i, hc + 2 * i + 1, hc + 4 + i) if i < 3 else (a(f'v_lshlrev_b32 v{hc+6}, 16, v{hc+7}'), a(f'v_and_b32 v{hc+7}, s{sMASK}, v{hc+7}'))
                for i in range(8): self.silu(hc + i, ht + (i & 1))
            if o['m2c'] == 3:
                nb = o['m2nb']
                for b in range(nb):
                    if k <= o['m2g'] - o.get('m2lag', 2) and k - b * o['m2db'] >= 1:
                        a(f's_cmp_lg_u32 s{T5}, {k - b * o["m2db"]}\ns_cbranch_scc1 L_NM2_{k}_{b}')
                        for i in range(b * 8 // nb, (b + 1) * 8 // nb):
                            S(sU, 'T6 + q', q=i * 8 * 12288)
                            a(f'buffer_load_dwordx4 {vr(hm + 4*i, 4)}, v{self.vWM}, {sr(rWM, 4)}, s{sU} offen nt')
                        a(f'L_NM2_{k}_{b}:')
                if k == 3:
                    vm.wait('c2')
                    for i in range(8):
                        a(f'v_lshlrev_b32 v{hc+i}, 16, v{hc+i}')
                        self.silu(hc + i, ht + (i & 1))
                g0 = o['m2g']
                ke = o['m2e']
                if g0 <= k <= ke:
                    if k == g0:
                        vm.wait(('W', 'k', k + 4 if o.get('m2lag', 2) == 2 else k + 5))
                        mops = self.gemv_ops([hm + 4 * i for i in range(8)], [hc + i for i in range(8)], ha, ht, ht + 1, False)
                    if o.get('gprio'): a('s_setprio 3')
                    for _ in range(len(mops) if k == ke else 144 // (ke + 1 - g0)): a(mops.pop(0))
                    if o.get('gprio'): a('s_setprio 0')
                    if k == ke: self.dw('ds_write_b32', self.vGA, ha, 1, L_M2 - MISC)
                if k == ke + 1:
                    a(f"""s_cmp_lg_u32 s{sWAVE}, 4
                    s_cbranch_scc1 L_M2F
                    ds_read_b128 {vr(ha, 4)}, v{self.vL32S} offset:{L_M2 - MISC + 1024}""")
                    S(T0, '((j*2 + (x >> 2))*4 + (x & 3))*512 + MODP2')
                    a(f"""s_waitcnt lgkmcnt(0)
                    v_add_f32 v{ha}, v{ha}, v{ha+1}
                    v_add_f32 v{ha+2}, v{ha+2}, v{ha+3}
                    v_mov_b32 v{ha+1}, s{sTAG}
                    v_add_f32 v{ha}, v{ha}, v{ha+2}""")
                    self.bs(ha, 2, self.vL8, rWS, T0, 0, 'sc1', count=False)
                    a('L_M2F:')
            if o.get('fP') and k <= 8:
                a(f's_cmp_lg_u32 s{T4}, {k}\ns_cbranch_scc1 L_NFP_{k}')
                for i in range(o.get('fPn', o['fA'])):
                    for far in range(2): f_ld(1, i, far, False)
                a(f'L_NFP_{k}:')
            if k == 2 and o['poisat'] == 0: poison((0, 1), AR + 88); S(T6, '((x & 3)*4 + w - 4)*(64*12288) + (j*2 + (x >> 2))*128 + 4096')
            if k in (1, 3, 5) and o.get('touch', 1): touch({1: (1, 7), 3: (2, 3), 5: (5, 6)}[k])
            if k == o['tlbk'] and o['tlb'] & 2:
                a(f's_cmp_lg_u32 s{sWAVE}, 7\ns_cbranch_scc1 L_NTLB\ns_waitcnt lgkmcnt(0)')
                S(T0, '(j & 15)*2097152'); S(T1, '(j & 3)*2097152'); S(T2, '(j & 1)*2097152')
                a(f's_load_dword s{sPL}, {sr(rWS, 2)}, s{T0} offset:0')
                for q, r in enumerate((rWG, rWU, rWD)): a(f's_load_dword s{sPL + 1 + q}, {sr(r, 2)}, s{T1} offset:0')
                a(f's_load_dword s{sPL + 4}, {sr(rOUT, 2)}, s{T2} offset:0')
                a(f's_load_dword s{sPL + 5}, {sr(rWO, 2)}, 0')
                a('L_NTLB:')
            if k == 4 and o.get('tm2'):
                S(T0, '((j*2 + (x >> 2))*4 + (x & 3))*512 + (w - 4)*128 + MODP2')
                a('s_waitcnt lgkmcnt(0)')
                for q in range(2): a(f's_load_dword s{sPL + q}, {sr(rWS, 2)}, s{T0} offset:{q * 64} glc')
            if k == 6 and o['tz']:
                S(T0, '(hp*8 + w - 4)*1024 + r1*64 + ZP'); S(T1, '(rt*16 + cb)*64 + UP')
                a('s_waitcnt lgkmcnt(0)')
                for q in range(2): a(f's_load_dword s{sPL + q}, {sr(rWS, 2)}, s{T0} offset:{q * 4096} glc')
                a(f's_load_dword s{sPL + 2}, {sr(rWS, 2)}, s{T1} offset:0 glc')
            if k == 12: kv_prep()
            if k == 8 and o.get('touch', 1):
                S(T0, 'fs*8192 + (w - 4)*256 + HGR')
                a('s_waitcnt lgkmcnt(0)')
                for q in range(4): a(f's_load_dword s{sPL + q}, {sr(rWS, 2)}, s{T0} offset:{q * 2048 + 1024 + 252} glc')
        pace[0] = 0
        def logits(h, pp):
            if o.get('hprio'): a(f's_setprio {o["hprio"]}')
            for q in range(2): self.r128(ka + 4 * q, vHo, q * 1024, ('kh', q))
            if h == 0: a(f'v_subrev_u32 v{vHo}, {L_QH - L_HV}, v{vHo}')
            for q in range(2):
                lg.wait(('kh', q))
                a(f'v_mfma_f32_32x32x16_bf16 {vr(pp, 16)}, {vr(wp2 + 8*h + 4*q, 4)}, {vr(ka + 4*q, 4)}, ' + (vr(pp, 16) if q else '0'))
            if o.get('hprio') and not o.get('hlong'): a('s_setprio 0')
        logits(0, pa)
        self.stamp('klog')
        hs = Stream(self)
        for h, pp in ((0, pa), (1, pb)):
            hs.cap(lambda: self.softmax_pm(pp, ee, ee, vT))
            k = max(i for i, it in enumerate(hs.q) if it[0] == 4.75) - 8
            tailq = hs.q[k + 1:]; hs.q = hs.q[:k + 1]
            wr = lambda fb, h=h: (0, 0, lambda: self.dw('ds_write_b128', vPW, ee + 4 * fb, 4, h * 16384 + fb * 4096, ('phk', h)))
            hs.q += [wr(0)] + tailq[:4] + [wr(1), wr(2)] + tailq[4:] + [wr(3)]
            if h == 0:
                n1 = len(hs.q)
                hs.add(lambda: None)
        hs.q.insert(n1 + 34, (0, 0, lambda: lg.wait(('phk', 0))))
        ex = {}
        def put(i, fn):
            while i in ex: i += 1
            ex[i] = fn
        nq = int(n1 * o['hq'])
        put(nq, lambda: h_bar(15))
        nh = int(n1 * o['hh'])
        put(nh, lambda: (h_bar(14), logits(1, pb)))
        g1, g2 = o['hgap']
        if o.get('hpf'):
            put(int(n1 * o['hpf'][0]), lambda: a('s_setprio 3')); put(int(n1 * o['hpf'][1]), lambda: a('s_setprio 0'))
        ff = [(lambda k=k, far=far: f_ld(1, k, far)) for k in range(o['fA']) for far in range(2) if not (o.get('fP') and k < o.get('fPn', 9)) and k >= o['fF']]
        pre = [(lambda k=k: m2_ld(k)) for k in range(4)] if o['m2c'] < 2 else []
        if o['m2c'] == 4:
            for i in range(o['m2n0'], 8): put(3 + o['m2gap'] * (i - o['m2n0']), lambda i=i: m2h(i))
            self.m2h = (hm, hc, ha, ht)
        npre = o['fpre'] - len(pre)
        pre += ff[:npre]; ff = ff[npre:]
        for k, fn in enumerate(pre): put(nh + 5 + g1 * k, fn)
        wl = self.wo_left = [6, 7, 8, 9, 10, 11] + [12, 13, 14, 15] + [0, 1, 2, 3, 4, 5]
        post = []
        for k in range(o['woA']): post += [lambda: wo_dma(wl[0], 1), lambda: wo_dma(wl.pop(0))]
        post = post[:8] + ff + post[8:] if o.get('wofirst', 1) else ff + post
        for k, fn in enumerate(post): put(nq + 5 + g2 * k, fn)
        for i, (v_, l_, fn) in enumerate(hs.q):
            if i in ex: ex.pop(i)()
            fn()
        for i in sorted(ex): ex[i]()
        self.nopk = False
        S(T4, 'rb*2048 + L_QH'); a(f'v_add_u32 v{vHo}, s{T4}, v{vL16}')
        assert wph == wp2 + 8
        if o.get('hprio'): a('s_setprio 0')
        self.stamp('ksm')
        a('L_JOIN:')
        vm.q = ['m2'] * (8 if o['m2c'] < 2 else 0); lg.q = [None]
        self.m2_ld = m2_ld
        self.vHo = vHo

    def middle(self):
        a, vm, lg, o, S, va = self.a, self.vm, self.lg, self.o, self.S, self.vaa
        vL8, vL32S, vGA, vHo, ffn_reg = self.vL8, self.vL32S, self.vGA, self.vHo, self.ffn_reg
        pp, ee, ph, vq, wph = AQ, AQ + 16, AR, AR + 16, AR + 24
        fA, fB, kvd, zd, ones = AR + 32, AR + 48, AR + 80, AR + 88, AK + 24
        kp, zz, zf, kf, k2 = AR + 32, AR + 40, AR + 44, AR + 60, AR + 76
        m2w, m2a, m2c, m2t = AV, AV + 16, AV + 24, AV + 28
        vPA, vPB, vPC, vKP, vXF = AK + 28, AK + 29, RING + 18, RING + 19, RING + 20
        md, wr1 = RING, RING + 4
        self.md, self.wr1 = md, wr1
        wl = self.wo_left
        wo1 = lambda: self.wo_dma(wl.pop(0))
        fw = o['fwin']
        self.barrier()
        self.stamp('phik')
        def kvm(u):
            lg.wait(('kv', u))
            for db in range(2):
                a(f'v_mfma_f32_16x16x32_bf16 {vr(kvd + 4*db, 4)}, {vr(fA + 4*u, 4)}, {vr(fB + 8*u + 4*db, 4)}, ' + ('0' if u == 0 else vr(kvd + 4*db, 4)))
            a(f'v_mfma_f32_16x16x32_bf16 {vr(zd, 4)}, {vr(fA + 4*u, 4)}, {vr(ones, 4)}, ' + ('0' if u == 0 else vr(zd, 4)))
        for ts in range(4):
            self.tr(fA + 4 * ts, vPA, ts * 1024, ('kv', ts)); self.tr(fA + 4 * ts + 2, vPA, ts * 1024 + 512, ('kv', ts))
            for db in range(2):
                for rd in range(2): self.tr(fB + 8 * ts + 4 * db + 2 * rd, vPB, ts * 2048 + db * 1024 + rd * 512, ('kv', ts))
            if ts >= 2: kvm(ts - 2)
        kvm(2); kvm(3)
        a(f"""s_cmp_lt_u32 s{sWAVE}, 4
        s_cbranch_scc1 L_NOQX
        ds_read_b128 {vr(vq, 4)}, v{vHo}
        ds_read_b128 {vr(vq + 4, 4)}, v{vHo} offset:1024
        L_NOQX:""")
        self.bs(kvd, 4, vL16, rWS, T0, 0, 'sc1', 'kvs')
        self.bs(kvd + 4, 4, vL16, rWS, T2, 0, 'sc1', 'kvs')
        a('s_mov_b32 exec_lo, 0x00010001')
        a('s_mov_b32 exec_hi, 0x00010001')
        self.bs(zd, 4, vL, rWS, T1, 0, 'sc1', 'kvs')
        a('s_mov_b64 exec, -1')
        lg.wait_all()
        a(f'v_mfma_f32_32x32x16_bf16 {vr(pp, 16)}, {vr(wph, 4)}, {vr(vq, 4)}, 0')
        a(f'v_mfma_f32_32x32x16_bf16 {vr(pp, 16)}, {vr(wph + 4, 4)}, {vr(vq + 4, 4)}, {vr(pp, 16)}')
        self.stamp('kvst')
        if o['wo0']:
            a('s_barrier')
            for _ in range(o['wo0']): assert wl[0] >= 6; wo1()
        if o['poisat'] == 1: self.poison((0,), AR + 84)
        if o['m2c'] == 2:
            for i in range(4): self.m2_ld(i)
        va(vPC, [(0, 3, 32 * 4096), (3, 1, 4 * 4096)])
        S(T4, '(wg & 0x1b)*4096 + (r1 >> 1)*64 + (r1 & 1)*4 + INB + 512')
        va(vKP, [(3, 3, 1024), (0, 3, 16)])
        va(vXF, [(0, 3, 16), (5, 1, 8)])
        qm, qs = o['qmid'], o['qsplit']
        self.softmax_pm(pp, ee, ph, vT, part=1, split=qm)
        vm.wait('kvs')
        a('s_barrier')
        self.push(vPC, T4, 16, vPB, 'L_PC')
        self.stamp('kvpub')
        if o['poisat'] == 2: self.poison((0,), AR + 84)
        self.weave(lambda: [a(f'v_exp_f32 v{r+i}, v{r+i}') for i in range(qm, qs) for r in (ee, pp)], [wo1] * o['wowin'][0])
        S(T0, '(hp*16 + r1)*16384 + w*128 + KVP'); S(T1, 'T0 + 8192')
        S(T2, '(hp*16 + r1)*1024 + w*128 + KIN'); S(T4, 'T4 + 6*512')
        def sel_prep2():
            vDr, vHs, vSt = RING + 7, RING + 26, RING + 27
            S(T6, 'w*64')
            va(vDr, [(2, 1, 512), (3, 1, 4096), (5, 1, 2048), (2, 2, 64), (4, 1, 32), (0, 2, 8)])
            a(f'v_xor_b32 v{vDr}, s{T6}, v{vDr}'); a(f'v_add_u32 v{vDr}, {L_DN}, v{vDr}')
        def sel_prep():
            vGr, vXs = RING + 6, RING + 24; assert o['AD2'] <= 8
            S(T6, '(w >> 2)*32768 + (w & 3)*32 + L_GU')
            va(vGr, [(4, 2, 8192), (2, 2, 128), (3, 2, 32), (0, 2, 8)]); a(f'v_xor_b32 v{vGr}, s{T6}, v{vGr}')
            S(T6, 'kq*2048 + XS'); va(vXs, [(0, 3, 16), (4, 2, 512)], T6)
            va(vXs + 1, [(0, 4, 512)], None, XS + 256)
            S(sZ0, 'fs*8192 + HGR'); S(sZ1, '(kq*8 + w)*256 + z0')
            S(sZ2, '((rt*8 + w)*16 + cb)*256 + ST')
            S(sZ3, '((rt >> 2)*2 + (rt & 3)*64)*4096 + (cb >> 1)*64 + (cb & 1)*4 + INB + 1536')
            S(sROW0, '(rt*8 + w)*32768 + cb*128'); S(sROW1, 'row0 + 16384')
        self.inbox(1, 2, work=lambda: (self.weave(lambda: self.softmax_pm(pp, ee, ph, vT, part=2, split=qs), [wo1] * o['wowin'][1]), self.stamp('cw')))
        a('s_barrier')
        self.stamp('kvok')
        self.bl(kp, 4, vKP, rWS, T0, 0, 'sc1', 'kp')
        self.bl(kp + 4, 4, vKP, rWS, T1, 0, 'sc1', 'kp')
        self.bl(zz, 4, vL16, rWS, T3, 0, 'sc1', 'z')
        if fw[0]: a('s_barrier')
        ffn_reg(fw[0])
        S(T1, 'w*32 + L_ZF'); va(vT + 2, [(0, 2, 8), (5, 1, 4)], T1)
        S(T1, 'w*1024 + L_KVF'); va(vT + 1, [(0, 4, 16), (5, 1, 512), (4, 1, 8)], T1)
        S(T1, 'kh*128 + L_ZF'); va(vT + 3, [(5, 1, 16)], T1)
        S(T1, 'kh*4096 + L_KVF'); a(f'v_add_u32 v{vPA}, s{T1}, v{vL16}')
        M2 = o['m2c'] < 3
        m2ops = []; k = o.get('m2k', 24)
        if M2:
            vm.wait('m2')
            for i in range(4):
                a(f'v_lshlrev_b32 v{m2c+i}, 16, v{m2c+i}')
                self.silu(m2c + i, m2t + (i & 1))
            m2ops = self.gemv_ops([m2w + 4 * i for i in range(4)], [m2c + i for i in range(4)], m2a, m2t, m2t + 1, True)
        for s_ in m2ops[:k]: a(s_)
        if o['m2c'] == 4:
            hm, hc, ha, ht = self.m2h
            hops = self.gemv_ops([hm + 4 * i for i in range(8)], [hc + i for i in range(8)], ha, ht, ht + 1, True)
            a(f's_cmp_lt_u32 s{sWAVE}, 4\ns_cbranch_scc1 L_HG1')
            for s_ in hops: a(s_)
            a(f'ds_write_b32 v{vGA}, v{ha} offset:{L_M2 - MISC}\nL_HG1:')
        def red4(r, ctls):
            for i in range(2): a(f'v_permlane32_swap_b32 v{r+i}, v{r+2+i}')
            self.pk('add', r, r, r + 2)
            for ctl in ctls:
                for i in range(2): self.dpp('v_add_f32', r + i, r + i, r + i, ctl)
            for i in range(2): a(f'v_mov_b32 v{r+2+i}, v{r+i}')
            for i in range(2): a(f'v_permlane16_swap_b32 v{r+i}, v{r+2+i}')
            self.pk('add', r, r, r + 2)
            a(f'v_cvt_pk_bf16_f32 v{r}, v{r}, v{r+1}')
        vm.wait('kp')
        self.pk('add', kp, kp, kp + 4); self.pk('add', kp + 2, kp + 2, kp + 6)
        red4(kp, ['row_ror:8'])
        a(f"""v_mov_b32 v{kp+1}, s{sTAG}
        s_mov_b32 exec_lo, 0xff
        s_mov_b32 exec_hi, 0xff""")
        self.bs(kp, 2, vXF, rWS, T2, 0, 'sc1')
        a('s_mov_b64 exec, -1')
        if o['C2dir'] == 0:
            self.barrier()
            self.push(vPC, T4, 16, vPB, 'L_PC2')
        if o['m2c'] == 4:
            a(f"""s_cmp_lg_u32 s{sWAVE}, 3
            s_cbranch_scc1 L_M2F
            ds_read_b128 {vr(ha, 4)}, v{vL32S} offset:{L_M2 - MISC + 1024}""")
            S(T5, '((j*2 + (x >> 2))*4 + (x & 3))*512 + MODP2')
            a(f"""s_waitcnt lgkmcnt(0)
            v_add_f32 v{ha}, v{ha}, v{ha+1}
            v_add_f32 v{ha+2}, v{ha+2}, v{ha+3}
            v_mov_b32 v{ha+1}, s{sTAG}
            v_add_f32 v{ha}, v{ha}, v{ha+2}""")
            self.bs(ha, 2, vL8, rWS, T5, 0, 'sc1', count=False)
            a('L_M2F:')
            self.marks.add('m2pub')
        self.stamp('c2pub')
        num, den = pp, ee
        vm.wait('z')
        self.weave(lambda: (red4(zz, ['row_ror:4', 'row_ror:8']), [a(s_) for s_ in m2ops[k:]]), [wo1] * o['wowin'][2])
        self.dw('ds_write_b32', vT + 2, zz, 1)
        if M2: self.dw('ds_write_b32', vGA, m2a, 1, L_M2 - MISC)
        self.barrier()
        for fb in range(4): self.r128(zf + 4 * fb, vT + 3, fb * 32)
        if M2: self.r128(m2a, vL32S, L_M2 - MISC); self.r128(m2a + 4, vL32S, L_M2 - MISC + 1024)
        S(T5, '((j*2 + (x >> 2))*4 + (x & 3))*512 + MODP2')
        lg.wait_all()
        S(T0, '(hp*8 + w)*2048 + KIN')
        def den_work():
            for fb in range(4):
                a(f'v_mfma_f32_32x32x16_bf16 {vr(den, 16)}, {vr(zf + 4*fb, 4)}, {vr(ph + 4*fb, 4)}, ' + ('0' if fb == 0 else vr(den, 16)))
            sel_prep()
            if M2:
                a(f's_cmp_lg_u32 s{sWAVE}, 3\ns_cbranch_scc1 L_M2F')
                self.nopk = True; self.sum8(m2a); self.nopk = False
                a(f'v_mov_b32 v{m2a+1}, s{sTAG}')
                self.bs(m2a, 2, vL8, rWS, T5, 0, 'sc1', count=False)
                a('L_M2F:')
            self.round1(den)
            a(f'v_add_f32 v{den}, 0x358637bd, v{den}')
            self.round1(den)
            a(f'v_rcp_f32 v{den}, v{den}')
            self.stamp('c2w')
        ldk2 = lambda: [self.bl(k2 + 4 * q, 4, vL16, rWS, T0, q * 1024, 'sc1') for q in range(2)]
        if o['C2dir'] == 0:
            self.inbox(7, 2, work=den_work)
            self.stamp('c2h')
        if o['C2dir'] == 2: den_work()
        self.try_load(ldk2, [k2 + 1, k2 + 3, k2 + 5, k2 + 7], vT, lambda: (ffn_reg(fw[1]), sel_prep2(), den_work() if o['C2dir'] == 1 else None))
        for db in range(2):
            a(f'ds_write2_b32 v{vT+1}, v{k2+4*db}, v{k2+4*db+2} offset0:{64*db} offset1:{64*db+1}'); lg.issue()
        self.barrier()
        self.stamp('kvred')
        for fb in range(4): self.r128(kf + 4 * fb, vPA, fb * 1024, ('kf', fb))
        S(T0, '((r1*8 + rb*2)*32 + hp*2 + kh)*1024 + OF')
        va(vKP, [(0, 4, 16), (4, 1, 32768), (5, 1, 256)])
        for fb in range(4):
            lg.wait(('kf', fb))
            a(f'v_mfma_f32_32x32x16_bf16 {vr(num, 16)}, {vr(kf + 4*fb, 4)}, {vr(ph + 4*fb, 4)}, ' + ('0' if fb == 0 else vr(num, 16)))
        S(T5, '((w >> 1)*16 + cb)*2048 + (w & 1)*1024 + MODP2')
        self.ld_md = lambda: self.bl(md, 4, vL16, rWS, T5, 0, 'sc1', 'md')
        S(T6, 'cb*128'); va(vPA, [(0, 2, 2), (5, 1, 8), (4, 1, 16), (2, 2, 32)], T6)
        a(f'global_load_ushort v{wr1}, v{vPA}, {sr(pWR, 2)}'); vm.issue('md')
        if not o['mdlate']: self.ld_md()
        for h in range(2):
            self.round_list([num + i for i in range(8 * h, 8 * h + 8)])
            for i in range(8 * h, 8 * h + 8, 2): self.pk('mul', num + i, num + i, den, bc=(1,))
            for i in range(4 * h, 4 * h + 4): a(f'v_cvt_pk_bf16_f32 v{vq+i}, v{num+2*i}, v{num+2*i+1}')
            self.bs(vq + 4 * h, 4, vKP, rWS, T0, 512 * h, 'sc1', 'os')
        self.stamp('ost')
        if o['mdlate']: self.ld_md()
        if o['poisat'] == 3: self.poison((0,), AR + 84)
        while wl: wo1()

    def gemm2(self):
        a, vm, lg, o, S, va = self.a, self.vm, self.lg, self.o, self.S, self.vaa
        md, wr1, fw = self.md, self.wr1, o['fwin']
        AD2 = o['AD2']
        R = self.R = dict(acc=AQ, gaf=AQ + 16, cbf=AR + 16, sbf=AV, gbf=AV + 16, xf=AR, fr=AR + 32, Br=AR + 40, Ar=AR + 72, vB=RING + 8, sv=RING, up=RING + 12)
        acc, gaf, cbf, sbf, gbf, xf, fr, Br, Ar, vB, sv, up = [R[k] for k in 'acc gaf cbf sbf gbf xf fr Br Ar vB sv up'.split()]
        ARS = [Ar + 4 * i for i in range(6)] + [RING + 16, RING + 20, RING + 24]; assert AD2 <= 9
        va(vB, [(2, 2, 128), (4, 2, 1024), (0, 1, 16), (1, 1, 8), (3, 2, 32)])
        S(T4, '(w ^ (%s))*4096' % o['g2r']); S(T1, '(T4*4) ^ (y2 >> 4)')
        a(f'v_add_u32 v{vB}, s{T1}, v{vB}')
        for ct in range(1, 4): a(f'v_xor_b32 v{vB+ct}, {32*ct}, v{vB}')
        va(vT + 1, [(0, 3, 8 * 4096), (3, 1, 4096)])
        S(T2, '((r1 >> 2)*2 + (r1 & 3)*64)*4096 + (hp >> 1)*64 + (hp & 1)*4 + INB + 1024')
        for i in range(8): self.unpack(xf + 2 * i, xf + 2 * i + 1, XR + i)
        S(T6, '(rt*8 + w)*32768 + OF' if not o.get('fake84') else '(r1*8 + w)*32768 + OF')
        def md_stage():
            vm.wait('md')
            self.tagcheck([md + 1, md + 3], vT + 2)
            a('s_cbranch_vccz L_MGOK')
            q0 = list(vm.q)
            self.poll(self.ld_md, [md + 1, md + 3], vT + 2)
            vm.q = q0
            a('L_MGOK:')
            a(f'ds_write2_b32 v{vT}, v{md}, v{md+2} offset0:0 offset1:4'); lg.issue()
        S(T1, '(w & 1)*2'); S(T3, '(w >> 1)*1024 + L_MD')
        va(vT, [(4, 1, 1), (2, 1, 2)]); va(vT + 3, [(5, 1, 1)], T1)
        a(f'v_xor_b32 v{vT}, v{vT}, v{vT+3}\nv_lshl_add_u32 v{vT}, v{vT}, 2, s{T3}')
        va(vT + 3, POS); a(f'v_add_u32 v{vT}, v{vT}, v{vT+3}')
        if not o['mdlate']: md_stage()
        vm.wait('os'); vm.wait('wo')
        self.barrier()
        self.push(vT + 1, T2, 16, vT + 2, 'L_PD')
        self.stamp('opub')
        if o['mdlate']: md_stage(); self.barrier()
        S(T5, 'wg*4096 + (T4 >> 6) + INB + 1024')
        self.ffn_reg(fw[2])
        t4 = Br
        for q in range(4): self.r128(t4 + 4 * q, self.vL32S, L_MD - MISC + q * 1024)
        va(vT + 4, [(0, 2, 4), (5, 1, 16), (4, 1, 32), (2, 2, 64)], None, L_GB)
        S(T0, '(rt*16 + cb)*64 + UP')
        va(vT + 6, [(0, 6, 2)], None, L_M2); va(vT + 7, [(0, 2, 128), (4, 2, 32)], None, L_M2)
        lg.wait_all()
        def d_work():
            for q in range(4):
                self.pk('add', t4 + 4 * q, t4 + 4 * q, t4 + 4 * q + 2)
                a(f'v_add_f32 v{sv+q}, v{t4+4*q}, v{t4+4*q+1}')
            self.round_list([sv + q for q in range(4)])
            a(f'v_add_f32 v{sv+2}, 1.0, v{sv+2}')
            a(f'v_lshlrev_b32 v{wr1}, 16, v{wr1}')
            self.round1(sv + 2)
            a(f'ds_write_b32 v{vT+4}, v{sv+3}')
            uu, hi, lo, t = t4, t4 + 1, t4 + 2, t4 + 4
            a(f'v_mul_f32 v{uu}, v{sv+2}, v{wr1}')
            a(f'v_cvt_pk_bf16_f32 v{hi}, 0, v{uu}')
            a(f'v_sub_f32 v{lo}, v{uu}, v{hi}')
            self.allreduce(uu, t + 3)
            for k, r in enumerate((hi, lo, wr1)): a(f'v_mov_b32_dpp v{t+k}, v{r} row_shl:1 row_mask:0xf bank_mask:0xf')
            for k, r in enumerate((hi, lo, wr1)): a(f'v_cvt_pk_bf16_f32 v{t+k}, v{r}, v{t+k}')
            a(f"""v_mov_b32 v{uu+1}, s{sTAG}
            v_mov_b32 v{uu+2}, 0
            s_cmp_lg_u32 s{sWAVE}, 2
            s_cbranch_scc1 L_NOUP
            s_mov_b64 exec, 1""")
            self.bs(uu, 2, uu + 2, rWS, T0, 0, 'sc1', count=False)
            a('s_mov_b64 exec, -1\nL_NOUP:')
            a(f'v_mov_b32 v{t+3}, 0x3f803f80\ns_mov_b32 exec_lo, 0x55555555\ns_mov_b32 exec_hi, 0x55555555')
            for k in range(4): a(f'ds_write_b32 v{vT+6}, v{t + (k + 3) % 4} offset:{128*k}')
            a('s_mov_b64 exec, -1')
            a(f'ds_read_b128 {vr(fr, 4)}, v{vT+7}\nds_read_b128 {vr(fr + 4, 4)}, v{vT+7} offset:16')
            a(f'v_mov_b32 v{RING+14}, v{sv+1}\nv_mov_b32 v{RING+15}, v{sv+3}\nv_mov_b32 v{RING+5}, v{sv+2}')
            for dst, q in ((gaf, 0),):
                for i in range(16): a(f'v_mov_b32_dpp v{dst+i}, v{sv+q} row_newbcast:{i} row_mask:0xf bank_mask:0xf')
            a(f'v_mov_b32 v{RING+1}, v{vT+1}')
            self.stamp('dw')
        L2 = o['LOOK2']
        def b2_read(m):
            H, ct = divmod(m, 4)
            for rd in range(2): self.tr(Br + 4 * (m % 8) + 2 * rd, vB + ct, (H & 3) * 4096 + rd * 512, ('B', m))
            if H % 4 == 3 and H < 31: a(f'v_xor_b32 v{vB+ct}, {((H >> 2) ^ ((H >> 2) + 1)) * 16384}, v{vB+ct}')
        def a2_load(H):
            if H % 4 == 0: S(T7, '(T4 ^ n) + T6', n=H * 1024)
            self.bl(ARS[H % AD2], 4, vL16, rWS, T7, (H % 4) * 1024, 'sc1', ('A', H))
        self.spoll([(0, 2, T5, 0)], range(2), d_work)
        self.stamp('ook1')
        if not o['earlyD']: a('s_barrier')
        for H in range(AD2):
            if H == 4 and o['earlyD']: a('s_barrier')
            a2_load(H)
            if H == 0:
                for m in range(L2): b2_read(m)
        self.stamp('ook')
        S(T0, 'rt*1024 + UP'); va(vT + 6, [(0, 4, 64)])
        self.ld_up = lambda: self.bl(up, 2, vT + 6, rWS, T0, 0, 'sc1', 'up')
        lpend = []
        for H in range(32):
            if self.prof and o.get('ls2'):
                if lpend: r_, k_ = lpend.pop(0); a(f'v_writelane_b32 v255, s{r_}, {k_}')
                if H < 31:
                    r_ = sPL + 2 * (self.nst % 4)
                    a.items.append(('raw', f'    s_memtime {sr(r_, 2)}')); lpend.append((r_, self.nst)); self.stnames.append(f'n{H}'); self.nst += 1
            if o.get('g2p') and H in (0, o['g2p']):
                a(f's_cmp_lt_u32 s{sWAVE}, 4\ns_cbranch_scc1 L_G2P{H}\ns_setprio {1 if H == 0 else 0}\nL_G2P{H}:')
            vm.wait(('A', H))
            for ct in range(4):
                m = 4 * H + ct
                pw = o['pairw2']
                if ct % pw == 0: lg.wait(('B', m + pw - 1))
                a(f'v_mfma_f32_16x16x32_bf16 {vr(acc + 4*ct, 4)}, {vr(Br + 4*(m % 8), 4)}, {vr(ARS[H % AD2], 4)}, ' + ('0' if H == 0 else vr(acc + 4*ct, 4)))
                if m + L2 < 128: b2_read(m + L2)
            if H + AD2 < 32: a2_load(H + AD2)
            if H + AD2 == 31: self.ld_up()
            if H == o['f3at']: self.ffn_reg(fw[3])
        self.stamp('gemm2')
        if o.get('dbg'):
            S(T1, '(wg*8 + w)*32768 + 0x4000000'); va(vT, [(0, 6, 4)])
            for k, r in enumerate(list(range(40, 104)) + [24, 25, 26, 27]):
                if k % 16 == 0 and k: S(T1, 'T1 + 4096')
                self.bs(r, 1, vT, rWS, T1, (k % 16) * 256, '', 'dbg')
                if k % 16 == 15: vm.wait('dbg')

    def tail(self):
        a, vm, lg, o, S, va = self.a, self.vm, self.lg, self.o, self.S, self.vaa
        R, fw = self.R, o['fwin']
        E2 = range(0, 16, 2)
        acc, gaf, cbf, sbf, gbf, xf, fr, up = [R[k] for k in 'acc gaf cbf sbf gbf xf fr up'.split()]
        FR, held, fq = self.FL, self.held, self.fq
        g16, hh, h2p, op, sd4, kk = AR + 40, AR + 56, AR + 72, AR + 80, AR + 88, AR + 92
        vSt, vRow, mm, rs, key, vTa = RING + 27, RING + 1, RING + 2, RING + 3, RING + 4, RING + 5
        x1f = xf
        swp = lambda b: [a(f'v_permlane32_swap_b32 v{b+p}, v{b+q}') for p, q in ((0, 2), (1, 3), (4, 6), (5, 7))]
        for h in range(2):
            rg = range(8 * h, 8 * h + 8)
            self.round_list([acc + i for i in rg])
            for i in range(8 * h, 8 * h + 8, 2): self.pk('mul', acc + i, acc + i, gaf + i)
            self.round_list([acc + i for i in rg])
            for i in range(8 * h, 8 * h + 8, 2): self.pk('add', acc + i, acc + i, xf + i)
            for i in range(4 * h, 4 * h + 4): a(f'v_cvt_pk_bf16_f32 v{XR+i}, v{acc+2*i}, v{acc+2*i+1}')
            for i in range(4 * h, 4 * h + 4): a(f'v_dot2_f32_bf16 v{vT+(i&1)}, v{XR+i}, v{XR+i}, ' + ('0' if i < 2 else f'v{vT+(i&1)}'))
            a(f'v_mfma_f32_16x16x32_bf16 {vr(sd4, 4)}, {vr(fr + 4*h, 4)}, {vr(XR + 4*h, 4)}, ' + ('0' if h == 0 else vr(sd4, 4)))
        self.nopk = False
        a(f'v_add_f32 v{vT}, v{vT}, v{vT+1}')
        for sw in ('v_permlane32_swap_b32', 'v_permlane16_swap_b32'):
            a(f'v_mov_b32 v{vT+1}, v{vT}')
            a(f'{sw} v{vT}, v{vT+1}')
            a(f'v_add_f32 v{vT if "32" in sw[:14] else sd4 + 3}, v{vT}, v{vT+1}')
        a('s_mov_b64 exec, 0xffff')
        self.bs(sd4, 4, vL16, rWS, sZ2, 0, 'sc1')
        a('s_mov_b64 exec, -1')
        a('s_barrier')
        self.push(RING + 1, sZ3, 16, vT + 2, 'L_PE')
        self.stamp('x1pub')
        self.ffn_dma(fw[4])
        S(T2, 'w*4096')
        a(f'v_add_u32 v{vT}, s{T2}, v{vL16}')
        a(f'v_add_u32 v{vT+3}, {L_DN}, v{vT}')
        vm.wait('up')
        self.tagcheck([up + 1], vT + 2)
        a('s_cbranch_vccz L_UPOK')
        q0 = list(vm.q)
        self.poll(self.ld_up, [up + 1], vT + 2)
        vm.q = q0
        a('L_UPOK:')
        S(T1, '(rt*8 + w)*4096 + ST')
        def sym_write(v0_, v1_):
            vm.wait('ffr')
            for m, i, r in self.sym:
                assert o['symat'] == 0 or r < AV
                a(f'ds_write_b128 v{v0_ if m < 2 else v1_}, {vr(r, 4)} offset:{self.f_lds(m, i) - (L_GU if m < 2 else L_DN)}')
        def sym_late():
            S(T2, 'w*4096'); a(f'v_add_u32 v{vT+4}, s{T2}, v{vL16}\nv_add_u32 v{vT+7}, {L_DN}, v{vT+4}')
            sym_write(vT + 4, vT + 7)
        def e_work():
            for ctl in ('quad_perm:[1,0,3,2]', 'quad_perm:[2,3,0,1]', 'row_half_mirror', 'row_mirror'): self.dpp('v_add_f32', up, up, up, ctl)
            for i in range(8): self.unpack(x1f + 2 * i, x1f + 2 * i + 1, XR + i)
            S(T2, 'w*512 + rt*2')
            va(vRow, [(0, 4, 32)], T2)
            a(f'v_xor_b32 v{vT+1}, 0x4000, v{vT}\nv_xor_b32 v{vT+4}, 0x4000, v{vT+3}')
            if o['symat'] == 0: sym_write(vT, vT + 3)
            for g in range(2):
                if not held[g]: continue
                a(f's_cmp_{"ge" if g == 0 else "lt"}_u32 s{sWAVE}, 4\ns_cbranch_scc1 L_FW{g}')
                for n, (m, i) in enumerate(held[g]):
                    for far in range(2):
                        a(f'ds_write_b128 v{(vT if m < 2 else vT + 3) + far}, {vr(FR + 8*n + 4*far, 4)} offset:{self.f_lds(m, i) - (L_GU if m < 2 else L_DN)}')
                a(f'L_FW{g}:')
            self.stamp('ew')
        self.inbox(3, 2, work=e_work)
        a('s_barrier')
        self.stamp('x1ok')
        def try_p(loads, check, between, nm='re'):
            loads()
            vm.q[-1] = tg = ('try', a.label('T'))
            between()
            vm.wait(tg)
            OK, L = a.label('POK'), a.label('PRE')
            check()
            a(f's_cbranch_vccz {OK}')
            q = list(vm.q)
            self.stamp(nm)
            a(f'{L}:')
            loads(); vm.wait_all()
            check()
            a(f"""s_cbranch_vccz {OK}
            s_add_u32 s{sSPIN}, s{sSPIN}, 1
            s_cmp_lt_u32 s{sSPIN}, {SPIN_LIMIT}
            s_cbranch_scc1 {L}""")
            vm.q = q
            a(f'{OK}:')
        vGr, vDr, vXs, ffn, fdn = RING + 6, RING + 7, RING + 24, FR, AQ
        vRt = RING + 14
        def out_calc(part):
            u = RING + 16; assert o['ocut'][1] != 5
            if part == o['ocut'][0]:
                for i in range(8): self.unpack(hh + 2 * i, hh + 2 * i + 1, h2p + i)
                for i in E2: self.pk('mul', hh + i, hh + i, gbf + i)
                self.round_list([hh + i for i in range(16)])
            if part == o['ocut'][1]:
                S(T0, 'w*2048 + L_TR')
                va(u, [(4, 2, 16)]); va(u + 1, [(0, 3, 16)]); a(f'v_xor_b32 v{u}, v{u}, v{u+1}')
                va(u + 2, [(0, 4, 128)], T0); a(f'v_add_u32 v{u}, v{u}, v{u+2}'); a(f'v_xor_b32 v{u+2}, 64, v{u}')
                va(u + 3, [(3, 3, 16)]); a(f'v_xor_b32 v{u+1}, v{u+3}, v{u+1}'); va(u + 3, [(3, 3, 128)], T0); a(f'v_add_u32 v{u+1}, v{u+1}, v{u+3}')
                S(T0, '2047 - rt*128 - w*16'); va(vRt + 1, [(3, 3, 1)])
                a(f'v_sub_u32 v{vRt}, s{T0}, v{vRt+1}\nv_subrev_u32 v{vRt+1}, 8, v{vRt}')
                va(vTa, [(3, 3, 2048), (0, 3, 16)])
            if part == o['ocut'][2]:
                for i in E2: self.pk('add', hh + i, hh + i, x1f + i)
                for i in range(8): a(f'v_cvt_pk_bf16_f32 v{op+i}, v{hh+2*i}, v{hh+2*i+1}')
                swp(op)
                a(f'ds_write_b128 v{u}, {vr(op, 4)}\nds_write_b128 v{u+2}, {vr(op + 4, 4)}')
                a(f'ds_read_b128 {vr(op, 4)}, v{u+1}\nds_read_b128 {vr(op + 4, 4)}, v{u+1} offset:1024')
        def e_between():
            if o['gbar']: a('s_barrier')
            self.ffn_dma(fw[5])
            for dst, q in ((cbf, 5), (sbf, 14), (gbf, 15)):
                for i in range(16): a(f'v_mov_b32_dpp v{dst+i}, v{RING+q} row_newbcast:{i} row_mask:0xf bank_mask:0xf')
            out_calc(4)
            if o['symat'] == 1: sym_late()
            S(T2, 'w*8 + L_K1'); a(f'v_mov_b32 v{vT}, s{T2}')
            va(vT + 1, [(0, 3, 8)], None, L_K1)
            va(vT + 2, [(0, 2, 64 * 4096), (2, 2, 2 * 4096)])
            S(T3, '((cb >> 3) + (cb & 7)*8)*4096 + (rt >> 1)*64 + (rt & 1)*16 + INB + 2560')
        s_, d_, q_, t_ = g16, g16 + 1, g16 + 3, g16 + 4
        def e_check():
            for h in (0, 2):
                self.pk('add', g16 + h, g16 + h, g16 + 4 + h); self.pk('add', g16 + 8 + h, g16 + 8 + h, g16 + 12 + h)
            for h in (0, 2): self.pk('add', g16 + h, g16 + h, g16 + 8 + h)
            a(f'''v_add_f32 v{d_}, v{d_}, v{g16+2}
            v_add_f32 v{t_+1}, v{s_}, v{q_}
            v_cmp_u_f32 vcc, v{d_}, v{t_+1}''')
        try_p(lambda: [self.bl(g16 + 4 * i, 4, vL16, rWS, T1, i * 1024, 'sc1') for i in range(4)], e_check, e_between, 'stre')
        self.stamp('x1ld')
        a(f"""
        v_mov_b32 v{t_}, v{q_}
        v_permlane32_swap_b32 v{q_}, v{t_}
        v_permlane32_swap_b32 v{s_}, v{d_}
        v_add_f32 v{q_}, v{q_}, v{t_}
        v_add_f32 v{s_}, v{s_}, v{d_}
        v_permlane16_swap_b32 v{s_}, v{q_}
        v_add_f32 v{d_}, v{s_}, v{q_}
        v_add_f32 v{q_}, v{s_}, v{q_}
        v_permlane16_swap_b32 v{d_}, v{q_}
        v_mov_b32 v{s_}, v{d_}
        v_mul_f32 v{q_}, 0x3a800000, v{q_}
        v_permlane32_swap_b32 v{s_}, v{d_}
        v_mul_f32 v{s_}, 0x3a800000, v{s_}
        v_fma_f32 v{rs}, -v{s_}, v{s_}, v{q_}
        v_cvt_pk_bf16_f32 v{mm}, 0, v{s_}
        v_max_f32 v{rs}, 0, v{rs}""")
        self.round1(rs)
        a(f'v_fma_f32 v{d_}, -v{mm}, v{up}, v{d_}')
        a(f'v_add_f32 v{rs}, 0x3727c5ac, v{rs}')
        self.round1(rs)
        a(f'v_sqrt_f32 v{rs}, v{rs}')
        self.round1(rs)
        a(f"""v_rcp_f32 v{rs}, v{rs}
        v_mul_f32 v{key}, v{d_}, v{rs}
        v_ashrrev_i32 v{t_}, 31, v{key}
        v_or_b32 v{t_}, 0x80000000, v{t_}
        v_xor_b32 v{key}, v{key}, v{t_}
        s_mov_b32 s{T2}, 0xfffff000
        v_and_or_b32 v{key}, v{key}, s{T2}, v{vRow}""")
        hi, lo = kk, kk + 1
        def merge2(ctl):
            self.dpp('v_min_u32', t_, hi, hi, ctl); self.dpp('v_max_u32', lo, lo, lo, ctl); self.dpp('v_max_u32', hi, hi, hi, ctl)
            a(f'v_max_u32 v{lo}, v{lo}, v{t_}')
        self.dpp('v_max_u32', hi, key, key, 'quad_perm:[1,0,3,2]'); self.dpp('v_min_u32', lo, key, key, 'quad_perm:[1,0,3,2]')
        for ctl in ('quad_perm:[2,3,0,1]', 'row_half_mirror', 'row_mirror'): merge2(ctl)
        self.dw('ds_write_b64', vT, hi, 2)
        self.stamp('ln2')
        self.barrier()
        self.dr('ds_read_b64', hi, 2, vT + 1)
        for i in E2: self.pk('add', hh + i, x1f + i, mm, bc=(1,), neg=(1,))
        lg.wait_all()
        for ctl in ('quad_perm:[1,0,3,2]', 'quad_perm:[2,3,0,1]', 'row_half_mirror'): merge2(ctl)
        a(f"""v_cmp_eq_u32 {sr(sC2, 2)}, v{key}, v{lo}
        v_cmp_eq_u32 vcc, v{key}, v{hi}
        v_or_b32 v{kk+2}, 1, v{lo}
        v_mov_b32 v{kk+1}, s{sTAG}
        v_mov_b32 v{kk+3}, s{sTAG}
        s_or_b64 {sr(sCM, 2)}, vcc, {sr(sC2, 2)}
        s_cmp_lg_u32 s{sWAVE}, 0
        s_cbranch_scc1 L_NOF
        s_mov_b64 exec, 0xffff""")
        self.bs(kk, 4, vT + 2, rWS, T3, 0, 'sc1', count=False)
        a(f"""s_mov_b64 exec, -1
        L_NOF:""")
        if o['cprio']: a(f's_cmp_eq_u64 {sr(sCM, 2)}, 0\ns_cbranch_scc1 L_NOPR\ns_setprio 1\nL_NOPR:')
        self.stamp('Fpub')
        def f_work():
            self.round_list([hh + i for i in range(16)])
            for i in E2: self.pk('mul', hh + i, hh + i, rs, bc=(1,))
            self.round_list([hh + i for i in range(16)])
            for i in E2: self.pk('mul', hh + i, hh + i, cbf + i)
            self.round_list([hh + i for i in range(16)])
            for i in E2: self.pk('add', hh + i, hh + i, sbf + i)
            for i in range(8): a(f'v_cvt_pk_bf16_f32 v{h2p+i}, v{hh+2*i}, v{hh+2*i+1}')
            a(f"""s_cmp_eq_u64 {sr(sCM, 2)}, 0
            s_cbranch_scc1 L_NOCAND""")
            for h in range(2): a(f'v_mfma_f32_16x16x32_bf16 {vr(sd4, 4)}, {vr(fr + 4*h, 4)}, {vr(h2p + 4*h, 4)}, ' + ('0' if h == 0 else vr(sd4, 4)))
            for i in range(8): a(f'v_mov_b32 v{op+i}, v{h2p+i}')
            S(T2, 'rt*16384 + cb*512 + XS')
            va(vT + 3, [(4, 2, 16)])
            a(f'v_add_u32 v{vT+4}, 8192, v{vT+3}')
            swp(op); swp(XR)
            a(f'v_cndmask_b32 v{vT+3}, v{vT+3}, v{vT+4}, {sr(sC2, 2)}')
            a(f's_mov_b64 exec, {sr(sCM, 2)}')
            for h in range(2): self.bs(op + 4 * h, 4, vT + 3, rWS, T2, 64 * h, 'sc1', count=False)
            a(f's_mov_b32 exec_hi, 0\ns_and_b32 exec_lo, s{sCM}, 0xffff')
            self.bs(sd4 + 3, 1, vT + 3, rWS, T2, 256, 'sc1', count=False)
            a(f's_mov_b64 exec, {sr(sCM, 2)}')
            for h in range(2): self.bs(XR + 4 * h, 4, vT + 3, rWS, T2, 128 + 64 * h, 'sc1', count=False)
            a('s_mov_b64 exec, -1\ns_setprio 0\nL_NOCAND:')
            self.stamp('cand')
            self.ffn_dma(fw[6])
            if o['symat'] == 2: sym_late()
            out_calc(0)
        S(T0, 'w*16 + L_K2'); a(f'v_mov_b32 v{vT}, s{T0}')
        va(vT + 1, [(0, 3, 16)], None, L_K2)
        self.inbox(5, 8, (1, 3, 5, 7), f_work)
        P = sPL
        a(f"""s_min_u32 s{P+1}, s{P}, s{P+4}
        s_min_u32 s{P+3}, s{P+2}, s{P+4}
        s_min_u32 s{P+5}, s{P}, s{P+6}
        s_max_u32 s{P}, s{P}, s{P+4}
        s_max_u32 s{P+2}, s{P+2}, s{P+6}
        s_max_u32 s{P+3}, s{P+3}, s{P+5}
        s_max_u32 s{P+1}, s{P+1}, s{P+2}
        v_mov_b32 v{kk}, s{P}
        v_mov_b32 v{kk+2}, s{P+3}
        v_mov_b32 v{kk+1}, s{P+1}""")
        self.dw('ds_write_b128', vT, kk, 4)
        self.stamp('F2p')
        out_calc(1)
        gu_late = [p for p in fq if p[0] < 2]; assert not gu_late
        dn_late = len(fq) > 0
        def dn_read(s, tag=None):
            self.tr(fdn + 4 * s, vDr, s * 8192, tag); self.tr(fdn + 4 * s + 2, vDr, s * 8192 + 1024, tag)
        vm.wait('ffn')
        self.barrier()
        self.stamp('F2')
        self.r128(kk, vT + 1, 0, 'k2')
        a(f'v_and_b32 v{vT+4}, 8, v{vL}')
        a(f'v_cmp_eq_u32 {sr(sCMP, 2)}, 0, v{vT+4}')
        a(f'v_cmp_gt_u32 {sr(sPL, 2)}, 16, v{vL}')
        a(f'v_cmp_gt_u32 {sr(sPL + 2, 2)}, 32, v{vL}')
        lg.wait('k2')
        t = g16
        for ctl in ('quad_perm:[1,0,3,2]', 'quad_perm:[2,3,0,1]', 'row_half_mirror'):
            self.dpp('v_min_u32', t, kk, kk, ctl); self.dpp('v_min_u32', t + 1, kk + 1, kk, ctl); self.dpp('v_min_u32', t + 2, kk, kk + 1, ctl)
            self.dpp('v_max_u32', kk + 2, kk + 2, kk + 2, ctl); self.dpp('v_max_u32', kk + 1, kk + 1, kk + 1, ctl); self.dpp('v_max_u32', kk, kk, kk, ctl)
            a(f'v_max3_u32 v{kk+2}, v{kk+2}, v{t+1}, v{t+2}')
            a(f'v_max_u32 v{kk+1}, v{kk+1}, v{t}')
        xa, xb, rp, kr = g16, g16 + 4, g16 + 8, g16 + 9
        a(f"""v_cndmask_b32 v{t}, v{kk+1}, v{kk}, {sr(sCMP, 2)}
        v_cndmask_b32 v{kr}, v{kk+2}, v{kk+1}, {sr(sPL + 2, 2)}
        v_and_b32 v{t+1}, 31, v{kk+2}
        v_and_b32 v{t}, 31, v{t}
        v_cndmask_b32 v{kr}, v{kr}, v{kk}, {sr(sPL, 2)}
        v_lshl_add_u32 v{vT}, v{t}, 13, v{vXs}
        v_lshl_add_u32 v{vT+1}, v{t+1}, 13, v{vXs}
        v_and_b32 v{t+2}, 31, v{kr}
        v_lshl_add_u32 v{vT+2}, v{t+2}, 13, v{vXs+1}""")
        def sel_work():
            self.stamp('sel')
            if o['gbar'] and (fq or o['outat'] in (0, 3)): a('s_barrier')
            self.ffn_dma(len(fq))
            for k in range(3): a(f'v_readfirstlane_b32 s{sY0+[0, 3, 4][k]}, v{kk+k}')
            for s in range(8):
                self.tr(ffn + 4 * s, vGr, s * 1024); self.tr(ffn + 4 * s + 2, vGr, s * 1024 + 512)
            for k in range(3 if o['outat'] in (0, 3) else 0): S(T4 + k, '(((y >> 1) & 15)*128 + ((y >> 5) & 127)) ^ 2047'.replace('y', ('y0', 'y1', 'y2')[k]))
            out_calc(2)
            lg.wait_all()
            if o['outat'] in (0, 3):
                for h in range(2 if o['outat'] == 0 else 1):
                    for k in range(3): a(f'v_cmp_ne_u32 {sr(sPL + 2*k, 2)}, s{T4+k}, v{vRt+h}')
                    a(f's_and_b64 vcc, {sr(sPL, 2)}, {sr(sPL + 2, 2)}\ns_and_b64 exec, vcc, {sr(sPL + 4, 2)}')
                    self.bs(op + 4 * h, 4, vTa, rOUT, (sROW0, sROW1)[h], 0, o.get('outmod', 'sc1'))
                    a('s_mov_b64 exec, -1')
            a(f'v_bfe_u32 v{vT+3}, v{kr}, 1, 4\nv_bfe_u32 v{kr}, v{kr}, 5, 7\nv_lshl_or_b32 v{kr}, v{vT+3}, 7, v{kr}\nv_xor_b32 v{kr}, 0x7ff, v{kr}')
        try_p(lambda: [self.bl(xa, 4, vT, rWS, '0', 0, 'sc1'), self.bl(xb, 4, vT + 1, rWS, '0', 0, 'sc1'), self.bl(rp, 1, vT + 2, rWS, '0', 0, 'sc1')],
              lambda: a(f'v_max3_u32 v{vT+3}, v{xa}, v{xb}, v{rp}\nv_cmp_eq_u32 vcc, -1, v{vT+3}'), sel_work, 'xsre')
        self.stamp('xsel')
        for ctl in ('quad_perm:[1,0,3,2]', 'quad_perm:[2,3,0,1]', 'row_half_mirror', 'row_mirror'): self.dpp('v_add_f32', rp, rp, rp, ctl)
        a(f"""v_cvt_pk_bf16_f32 v{rp}, 0, v{rp}
        v_ashrrev_i32 v{vT+3}, 31, v{rp}
        v_or_b32 v{vT+3}, 0x80000000, v{vT+3}
        v_xor_b32 v{rp}, v{rp}, v{vT+3}
        v_lshrrev_b32 v{rp}, 16, v{rp}
        v_lshl_or_b32 v{rp}, v{rp}, 11, v{kr}
        v_readlane_b32 s{P}, v{rp}, 0
        v_readlane_b32 s{P+1}, v{rp}, 16
        v_readlane_b32 s{P+2}, v{rp}, 32
        s_not_b64 {sr(P + 4, 2)}, {sr(sCMP, 2)}
        s_cmp_lt_u32 s{P}, s{P+1}
        s_cselect_b64 {sr(P + 4, 2)}, {sr(sCMP, 2)}, {sr(P + 4, 2)}
        s_cselect_b32 s{P+3}, s{P}, s{P+1}
        s_cmp_gt_u32 s{P+2}, s{P+3}
        s_cselect_b64 vcc, {sr(P + 4, 2)}, 0""")
        for i in range(4): a(f'v_cndmask_b32 v{xa+i}, v{xa+i}, v{xb+i}, vcc')
        a(f"""s_bitcmp1_b32 vcc_lo, 0
        s_cselect_b32 s{P}, s{P+2}, s{P}
        s_cselect_b32 s{T6}, s{T4}, s{T6}
        s_cselect_b32 s{T4}, s{sY2}, s{sY0}
        s_bitcmp1_b32 vcc_lo, 8
        s_cselect_b32 s{P+1}, s{P+2}, s{P+1}
        s_cselect_b32 s{T6}, s{T5}, s{T6}
        s_cselect_b32 s{T5}, s{sY2}, s{sY1}""")
        gd = [gaf + 4 * i for i in range(4)] + [cbf + 4 * i for i in range(4)]
        lg.wait_all()
        for s in range(8):
            a(f'v_mfma_f32_16x16x32_bf16 {vr(gd[s], 4)}, {vr(xa, 4)}, {vr(ffn + 4*s, 4)}, 0')
        p0, p1 = xb, xb + 2
        for p, b in ((p0, 0), (p1, 4)):
            a(f'v_add_f32 v{p}, v{gd[b]}, v{gd[b+1]+1}')
            a(f'v_add_f32 v{p+1}, v{gd[b+2]+2}, v{gd[b+3]+3}')
        a(f"""v_add_f32 v{p0}, v{p0}, v{p0+1}
        v_add_f32 v{p1}, v{p1}, v{p1+1}
        v_mov_b32 v{p0+1}, s{sTAG}
        v_permlane16_swap_b32 v{p1}, v{p1+1}
        s_cmp_ge_u32 s{sJ}, 28
        s_cbranch_scc1 L_NOHP
        v_add_f32 v{p0}, v{p0}, v{p1+1}
        v_add_f32 v{p1}, v{p0}, 0
        v_mov_b32 v{p1+1}, s{sTAG}
        v_permlane32_swap_b32 v{p0}, v{p1}
        s_mov_b64 exec, 0xffff""")
        self.bs(p0, 4, vL16, rWS, sZ1, 0, 'sc1', count=False)
        a("""s_mov_b64 exec, -1
        L_NOHP:""")
        self.stamp('Hpub')
        if not dn_late and not o['dnsplit']:
            for s in range(4): dn_read(s)
        def out_store(hs=None):
            for h in (hs or range(o['outat'] >= 3, 2)):
                a(f"""v_cmp_ne_u32 vcc, s{sK1}, v{vRt+h}
                v_cmp_ne_u32 {sr(sCMP, 2)}, s{sK2}, v{vRt+h}
                s_and_b64 exec, vcc, {sr(sCMP, 2)}""")
                self.bs(op + 4 * h, 4, vTa, rOUT, (sROW0, sROW1)[h], 0, o.get('outmod', 'sc1'))
                a('s_mov_b64 exec, -1')
        if o['outat']:
            a(f's_and_b32 s{sK1}, s{P}, 2047\ns_and_b32 s{sK2}, s{P+1}, 2047')
            out_calc(3)
            lg.wait_all()
        if o['outat'] == 1:
            a('s_barrier')
            out_store()
        if o['outat'] in (0, 3):
            for h in range(2 if o['outat'] == 0 else 1):
                a(f"""v_cmp_eq_u32 vcc, s{T6}, v{vRt+h}
                s_and_b64 exec, vcc, -1
                s_cbranch_execz L_NOLO{h}""")
                self.bs(op + 4 * h, 4, vTa, rOUT, (sROW0, sROW1)[h], 0, o.get('outmod', 'sc1'), count=False)
                a(f'L_NOLO{h}:\ns_mov_b64 exec, -1')
        self.stamp('outst')
        fz, x1, st = g16 + 12, AV, kk
        a(f"""s_cmp_lg_u32 s{sRow}, 7
        s_cbranch_scc1 L_NONON
        v_mov_b32 v{vT+2}, s{sTAG}
        v_mov_b32 v{vT+3}, 0
        s_mov_b64 exec, 1""")
        self.bs(vT + 2, 1, vT + 3, rWS, '0', 0, 'sc1', count=False)
        a(f"""s_mov_b64 exec, -1
        L_NONON:
        s_cmp_ge_u32 s{sJ}, 28
        s_cbranch_scc1 {'L_FIN3' if o['outat'] >= 2 else 'L_FIN'}""")
        gA = g16
        va(gA, [(2, 1, 128), (5, 1, 16)], None, L_ACT)
        va(gA + 1, [(4, 2, 56 * 128), (0, 4, 8)])
        S(sFG, '(kq*8 + w)*(4*56*128) + fs*128 + GGR')
        va(gA + 2, [(0, 1, 2 * 4096), (1, 1, 64 * 4096)])
        S(sFD, '((w & 1)*4 + (kq >> 1) + ((kq & 1)*4 + (w >> 1))*8)*4096 + x*64 + (j >> 2)*4 + INB + 3072')
        def dn_go():
            if o['dnsplit'] and not dn_late:
                vm.wait('fdn'); a('s_barrier')
                for s in range(4): dn_read(s)
            out_calc(5)
            if o['outat'] == 4: assert o['dnsplit'] and not dn_late and 5 not in o['ocut']; out_store([0])
        q1 = list(vm.q)
        a(f's_cmp_lt_u32 s{sWAVE}, 4\ns_cbranch_scc1 L_HW')
        dn_go()
        a(f"""s_cmp_lg_u32 s{sWAVE}, 7
        s_cbranch_scc1 L_NOH""")
        a(f"""s_bitcmp1_b32 s{sJ}, 3
        s_cselect_b32 s{T2}, s{P+1}, s{P}
        s_cselect_b32 s{T4}, s{T5}, s{T4}
        s_andn2_b32 s{T5}, 2047, s{T2}""")
        S(T6, 'cb*4 + (x >> 1)')
        S(T7, '((T6 >> 1)*4 + (j >> 3)*2 + (T6 & 1))*(56*128) + GGR')
        S(sU, 'T5*2048 + T6*32')
        va(vT + 6, [(0, 3, 4)])
        S(T0, '(x >> 1)*64 + L_GB'); va(vT + 1, [(0, 3, 8)], T0)
        a(f'ds_read_b64 {vr(fz + 2, 2)}, v{vT+1}')
        S(sY0, '(T4 & 31)*8192 + cb*512 + (x >> 1)*32 + XS')
        a(f"""s_lshr_b32 s{T0}, s{T2}, 11
        s_lshl_b32 s{T0}, s{T0}, 16
        s_ashr_i32 s{T2}, s{T0}, 31
        s_andn2_b32 s{T2}, 0x7fff0000, s{T2}
        s_or_b32 s{T2}, s{T2}, 0x80000000
        s_xor_b32 s{T0}, s{T0}, s{T2}
        v_mov_b32 v{fz}, s{T0}
        v_mul_f32 v{fz}, s{sL2E}, v{fz}
        v_exp_f32 v{fz}, -v{fz}
        v_add_f32 v{fz}, 1.0, v{fz}
        v_rcp_f32 v{fz}, v{fz}""")
        self.round1(fz)
        q0 = list(vm.q)
        a(f'v_mov_b32 v{vT+1}, s{sTAG}\nv_not_b32 v{vT+2}, v{vT+1}')
        self.poll(lambda: (self.bl(st, 1, vT + 6, rWS, sY0, 0, 'sc1'), self.bl(st + 1, 1, vT + 6, rWS, sY0, 128, 'sc1')), [st + 2], vT,
                  lambda: a(f'''v_max_u32 v{st+2}, v{st}, v{st+1}
                  v_cmp_ne_u32 vcc, -1, v{st+2}
                  v_cndmask_b32 v{st+2}, v{vT+2}, v{vT+1}, vcc'''))
        vm.q = q0
        self.unpack(st + 2, st + 3, st + 1)
        a(f'v_and_b32 v{st+1}, s{sMASK}, v{st}\nv_lshlrev_b32 v{st}, 16, v{st}')
        a('s_branch L_NOH')
        a('L_HW:')
        vm.q = q1; lg.reset()
        S(T0, 'w*256 + z0')
        va(vT, [(4, 2, 2048), (0, 4, 16)])
        S(T2, 'w*32 + L_ACT'); va(vT + 1, [(5, 1, 128), (2, 1, 16), (1, 1, 8), (3, 1, 4), (0, 1, 2)], T2)
        q0 = list(vm.q)
        g, u = x1, x1 + 4
        if not o['Hdir']:
            self.spoll([(q, 1, T0, q * 2048 + 1024 + 252) for q in range(4)], range(4), dn_go)
            self.stamp('Hpre')
        self.poll(lambda: [self.bl(x1 + 4 * m, 4, vT, rWS, T0, m * 1024, 'sc1') for m in range(2)], [g + 1, g + 3, u + 1, u + 3], vT + 2)
        a(f"""v_permlane32_swap_b32 v{g}, v{g+2}
        v_permlane32_swap_b32 v{u}, v{u+2}
        v_add_f32 v{g}, v{g}, v{g+2}
        v_add_f32 v{u}, v{u}, v{u+2}
        v_mov_b32 v{g+2}, v{g}
        v_mov_b32 v{u+2}, v{u}
        v_permlane16_swap_b32 v{g}, v{g+2}
        v_permlane16_swap_b32 v{u}, v{u+2}
        v_add_f32 v{g}, v{g}, v{g+2}
        v_add_f32 v{u}, v{u}, v{u+2}""")
        self.round2(g, u)
        self.silu(g, vT + 2)
        a(f"""v_mul_f32 v{g}, v{g}, v{u}
        v_cvt_pk_bf16_f32 v{g}, v{g}, v{g}
        ds_write_b16 v{vT+1}, v{g}
        L_NOH:""")
        vm.q = q0
        vm.wait('ffn'); vm.wait('fdn')
        self.barrier()
        self.stamp('Hok')
        for s in range(4):
            self.r128(x1 + 4 * s, gA, s * 32, ('ac', s))
            if dn_late: dn_read(s, ('ac', s))
        for s in range(4):
            lg.wait(('ac', s))
            a(f'v_mfma_f32_32x32x16_bf16 {vr(hh, 16)}, {vr(x1 + 4*s, 4)}, {vr(fdn + 4*s, 4)}, ' + ('0' if s == 0 else vr(hh, 16)))
        a(f'v_mov_b32 v{hh+1}, s{sTAG}')
        self.bs(hh, 2, gA + 1, rWS, sFG, 0, 'sc1')
        if not o['Gdir']:
            a('s_mov_b64 exec, 15')
            self.bs(hh + 1, 1, gA + 2, rWS, sFD, 0, 'sc1')
            a('s_mov_b64 exec, -1')
        self.stamp('Gpub')
        if o['outat'] >= 2:
            a('s_barrier\ns_branch L_FIN2\nL_FIN3:')
            out_calc(5)
            a('s_waitcnt lgkmcnt(0)')
            if o['outat'] == 4: out_store([0])
            a('L_FIN2:')
            out_store()
        a(f"""s_cmp_ge_u32 s{sJ}, 16
        s_cbranch_scc1 L_FIN""")
        if not o['Gdir']:
            self.inbox(6, 8, range(7))
            self.stamp('Gpre')
            a('s_barrier')
        a(f"""s_cmp_lg_u32 s{sWAVE}, 7
        s_cbranch_scc1 L_FIN""")
        S(T0, 'T7 + 4096')
        gg = [x1 + 4 * i for i in range(7)]
        def g_ld():
            [self.bl(gg[n], 4, vL16, rWS, (T7, T0)[n >> 2], (n & 3) * 1024, 'sc1') for n in range(7)]
        self.poll(g_ld, [gg[n] + 1 + 2 * e for n in range(7) for e in range(2)], vT)
        self.stamp('Gok')
        y0, y1 = gg[0], gg[0] + 1
        for p_, q_ in ((0, 1), (2, 3), (4, 5), (0, 2), (4, 6)):
            for e in (0, 2): a(f'v_add_f32 v{gg[p_]+e}, v{gg[p_]+e}, v{gg[q_]+e}')
        a(f'v_add_f32 v{y0}, v{gg[0]}, v{gg[4]}\nv_add_f32 v{y1}, v{gg[0]+2}, v{gg[4]+2}')
        a(f"""v_permlane32_swap_b32 v{y0}, v{y1}
        v_add_f32 v{y0}, v{y0}, v{y1}""")
        self.dpp('v_add_f32', y0, y0, y0, 'row_ror:8')
        a(f"""v_mov_b32 v{y1}, v{y0}
        v_permlane16_swap_b32 v{y0}, v{y1}
        v_add_f32 v{y1}, v{y0}, v{y1}
        v_cvt_pk_bf16_f32 v{y0}, 0, v{y1}
        v_cvt_pk_bf16_f32 v{y1}, 0, v{y1}
        v_permlane32_swap_b32 v{y0}, v{y1}""")
        self.pk('mul', y0, y0, fz, bc=(1,))
        self.round2(y0, y1)
        self.pk('add', y0, y0, st)
        self.round2(y0, y1)
        self.pk('mul', y0, y0, fz + 2)
        self.round2(y0, y1)
        self.pk('add', y0, y0, st + 2)
        a(f'v_cvt_pk_bf16_f32 v{y0}, v{y0}, v{y1}')
        a('s_mov_b64 exec, 0xff')
        self.bs(y0, 1, vT + 6, rOUT, sU, 0, o.get('finmod', ''))
        a('s_mov_b64 exec, -1')
        a('L_FIN:')

    def finish(self):
        a, S, o = self.a, self.S, self.o
        if o.get('exfil'):
            a('s_waitcnt vmcnt(0) lgkmcnt(0)')
            self.stamp('fin')
            a(f'''v_readlane_b32 s{T0}, v255, 0
            v_readlane_b32 s{T1}, v255, 1
            v_readlane_b32 s{T2}, v255, 2
            s_sub_u32 s{T2}, s{T2}, s{T1}
            s_max_i32 s{T2}, s{T2}, 0
            s_min_u32 s{T2}, s{T2}, 10000
            s_mul_i32 s{T2}, s{T2}, 10
            s_add_u32 s{T2}, s{T2}, 6000
            L_XPAD:
            s_memrealtime {sr(sTM, 2)}
            s_waitcnt lgkmcnt(0)
            s_sub_u32 s{T1}, s{sTM}, s{T0}
            s_cmp_lt_u32 s{T1}, s{T2}
            s_cbranch_scc1 L_XPAD''')
        if self.o.get('dbg2'):
            S(T1, '(wg*8 + w)*32768 + 0x4000000'); self.vaa(vT, [(0, 6, 4)])
            for k, r in enumerate(list(range(72, 104)) + list(range(120, 136)) + list(range(176, 184))):
                if k % 16 == 0 and k: S(T1, 'T1 + 4096')
                self.bs(r, 1, vT, rWS, T1, (k % 16) * 256, '', 'dbg')
                if k % 16 == 15: self.vm.wait('dbg')
        if self.prof:
            a('s_waitcnt vmcnt(0) lgkmcnt(0)')
            self.stamp('end')
            a(f's_memrealtime {sr(sTM, 2)}')
            a('s_waitcnt lgkmcnt(0)')
            a(f'v_writelane_b32 v255, s{sTM}, 61')
            S(T0, '(wg*8 + w)*256 + STAMPS')
            a(f'v_writelane_b32 v255, s{sSPIN}, 62')
            a(f'v_lshlrev_b32 v{vT+1}, 2, v{vL}')
            a(f'buffer_store_dword v255, v{vT+1}, {sr(rWS, 4)}, s{T0} offen')
            S(T0, 'T0 + 0x100000')
            a(f'buffer_store_dword v254, v{vT+1}, {sr(rWS, 4)}, s{T0} offen')
        a('L_END:')
        a('s_endpgm')

    def pads(self):
        import subprocess, re
        a = self.a
        src = '.amdgcn_target "amdgcn-amd-amdhsa--gfx950"\n.text\n' + a.text().replace('CODE_KB', '20480')
        out = subprocess.run(['llvm-mc', '-triple=amdgcn-amd-amdhsa', '-mcpu=gfx950', '-show-encoding'], input=src, capture_output=True, text=True, check=True).stdout
        sizes = [len(m.split(',')) for m in re.findall(r'; encoding: \[([^\]]*)\]', out)]
        tour = next(i for i, x in enumerate(a.items) if x == ('raw', ';TOUR'))
        NT = 16
        addr = self.o['kofs']; full = True; k = 0; items = []; pads = []; page = 0
        for i, (kind, v) in enumerate(a.items):
            isins = kind == 'ins' or (kind == 'raw' and v.startswith('    s_'))
            if i == tour: items.append((kind, v)); addr += 4 * 48; continue
            if isins:
                if addr // 4096 > page and full and i > tour:
                    page = addr // 4096; pads.append(page)
                    items.append(('raw', f'L_PAD{page}:\n    s_cbranch_execz L_RET{page}')); addr += 4
                elif i < tour: page = addr // 4096
                addr += sizes[k]; k += 1
                if kind == 'ins' and ('s', 'exec_lo') in v.dst + [('s', 'exec_lo') if ('s', 'exec_hi') in v.dst else None]:
                    full = v.text.replace(' ', '') in ('s_mov_b64exec,-1', 's_mov_b32exec_hi,-1')
            items.append((kind, v))
        assert k == len(sizes), (k, len(sizes))
        t = ['s_mov_b64 exec, 0']
        chains = [pads[c::4] for c in range(4)]
        for c in range(4): t += [f's_cmp_eq_u32 s{sWAVE}, {4 + c}', f's_cbranch_scc1 L_PAD{chains[c][0]}']
        t.append('s_branch L_TEND')
        n = len(t)
        for ch in chains:
            for p, q in zip(ch, ch[1:] + [None]):
                t += [f'L_RET{p}:', f's_branch ' + (f'L_PAD{q}' if q else 'L_TEND')]; n += 1
        assert n <= 47
        t += ['s_nop 0'] * (47 - n) + ['L_TEND:', 's_mov_b64 exec, -1']
        j = items.index(('raw', ';TOUR'))
        items[j] = ('raw', '\n'.join(x if x.endswith(':') else '    ' + x for x in t))
        a.items = items

    def text(self):
        a = self.a
        npad = a.fix_hazards()
        errs = a.check_waits([NAME])
        for e in errs[:10]: print('WAITERR', e, file=sys.stderr)
        assert not errs
        import re
        for k, v in a.items:
            if k == 'ins' and v.mn.startswith('v_pk_'):
                m = re.search(r'op_sel:\[([\d,]+)\]', v.text)
                vs = [i for i, x in enumerate(v.ops[1:]) if x.startswith('v')]
                assert self.o.get('badpk') or not (m and any(m.group(1).split(',')[i] == '1' for i in vs[1:])), v.text
        if self.o['tour']: self.pads()
        hdr = open(os.path.join(os.path.dirname(os.path.abspath(__file__)), 'header.txt')).read()
        s = hdr + '; @launch grid=(256,1,1) block=(512,1,1) lds=163840\n'
        s += '.amdgcn_target "amdgcn-amd-amdhsa--gfx950"\n.text\n'
        s += f'.globl {NAME}\n.p2align {12 if self.o["al12"] else 8}\n.type {NAME},@function\n'
        body = a.text()
        import subprocess, tempfile
        with tempfile.TemporaryDirectory() as td:
            open(td + '/t.s', 'w').write('.amdgcn_target "amdgcn-amd-amdhsa--gfx950"\n.text\n' + body.replace('CODE_KB', '20480'))
            subprocess.run(['clang', '-x', 'assembler', '-target', 'amdgcn-amd-amdhsa', '-mcpu=gfx950', '-c', td + '/t.s', '-o', td + '/t.o'], check=True)
            subprocess.run(['llvm-objcopy', '-O', 'binary', '-j', '.text', td + '/t.o', td + '/t.bin'], check=True)
            size = os.path.getsize(td + '/t.bin')
        print('; code bytes', size, file=sys.stderr)
        s += body.replace('CODE_KB', str((size // 1024 + 1) * 1024))
        s += '.p2align 10\n.fill 768, 4, 0xbf800000\n'
        s += '.section .rodata,"a"\n' + kernel_desc(NAME, 256, 102)
        print(f'; nops {npad}, instrs {sum(1 for k, _ in a.items if k == "ins")}', file=sys.stderr)
        return s


if __name__ == '__main__':
    import argparse, json
    ap = argparse.ArgumentParser()
    ap.add_argument('-o', default='/dev/stdout')
    ap.add_argument('--prof', action='store_true')
    ap.add_argument('--opts', default='{}')
    args = ap.parse_args()
    g = Gen(args.prof, json.loads(args.opts)).build()
    t = g.text()
    open(args.o, 'w').write(t)
    if args.prof: open(args.o + '.stamps', 'w').write(json.dumps(g.stnames))
```

```python
import sys, os
sys.path.insert(0, os.path.dirname(os.path.abspath(__file__)))
from asm import *

NAME = 'adaLN_cond__linear_kernel_hedgehog__moe_arch_mod__prompt_kernel'

NONCE = 0x0
MODP2 = 0x020000
SINB = 0x200000
AINB = 0x080000
INB = 0x100000
HF = 0x400000
OF = 0x800000
ST = 0xC00000
XS = 0xD00000
UP = 0xD80000
HGR = 0x1400000
ZP = 0x1480000
GGR = 0x1500000
KVP = 0x1800000
KIN = 0x1C00000
STAMPS = 0x1600000
WS_BYTES = 268435456

REG = 49152
MISC = 147456
L_A1 = MISC
L_ST = MISC + 6144
L_MP = MISC + 8192
L_WPHI = MISC + 12288
L_KH = 0
L_QH = MISC + 4096
L_KVF = MISC
L_ZF = MISC + 8192
L_M2 = MISC + 9984
L_MD = MISC + 12288
L_K1 = MISC + 8704
L_K2 = MISC + 8832
L_ACT = MISC + 9216
L_GB = MISC + 9728
L_HV = 32768
L_PHK = 0
L_XT = 2 * REG + 32768
L_TR = 98304
L_GU = 0
L_DN = 65536
UR = 393216

SPIN_LIMIT = 200000

sWAVE, sTAG, sSPIN, sMASK, sL2E = 3, 4, 5, 6, 7
sX, sJ, sR1, sHP, sCB = 8, 9, 10, 11, 12
T0, T1, T2, T3, T4, T5, T6, T7 = 13, 14, 15, 16, 17, 18, 19, 20
sRT = 21
sCMP = 22
sPL = 24
rWS, rX, rW, rWO, rWM, rWG, rWU, rWD, rOUT = 32, 36, 40, 44, 48, 52, 56, 60, 64
KA = 68
pWPHI, pWR, pC = KA + 4, KA + 10, KA + 18
sK1, sK2, sROW0, sROW1, sFS, sKQ, sKH, sRB = 68, 69, 70, 71, 74, 75, 76, 77
sFG, sFD, sU, sW1K, sU0, sWB = 80, 81, 82, 83, 84, 85
sAB, sM2, sWO, sY0 = 88, 89, 90, 91
sINB, sRow, sY1, sY2 = 92, 93, 94, 95
sZ0, sZ1, sZ2, sZ3 = 72, 73, 86, 87
sCM = 84
sC2 = 88
XT = (96, 97, 98, 99)
sTM = 100
ENV = dict(wg=2, w=sWAVE, x=sX, j=sJ, r1=sR1, hp=sHP, cb=sCB, rt=sRT, row=sRow, kh=sKH, rb=sRB, fs=sFS, kq=sKQ,
           w1k=sW1K, u=sU, fg=sFG, fd=sFD, u0=sU0, wb=sWB, ab=sAB, m2=sM2, wo=sWO, y0=sY0, y1=sY1, y2=sY2,
           z0=sZ0, k1=sK1, k2=sK2, row0=sROW0, row1=sROW1,
           T0=T0, T1=T1, T2=T2, T3=T3, T4=T4, T5=T5, T6=T6, T7=T7)

vL, vL16, vWd, vT = 1, 2, 3, 4
XR = 12
vB = 20
vS0, vS1 = 26, 27
RING = 28
AK, AV, AQ = 56, 88, 120
AR = 152
SP = 248


POS = [(0, 1, 32), (3, 2, 64), (2, 1, 256), (1, 1, 512)]


class Stream:
    def __init__(self, g): self.g, self.q, self.wake = g, [], 0
    def add(self, fn, v=0, l=0): self.q.append((v, l, fn))
    def sleep(self, k): self.q.append(('sleep', k, None))
    def until(self, n): self.q.append(('until', n, None))
    def cap(self, fn):
        a = self.g.a
        keep = a.items; a.items = []
        fn()
        body = a.items; a.items = keep
        run = []
        for it in body:
            i = it[1]
            assert it[0] == 'ins' and i.cls in ('valu', 'salu', 'mfma'), it
            run.append(it)
            if i.cls == 'salu': continue
            c = 8 if (i.cls == 'mfma' or i.is_trans or 'permlane' in i.mn) else 6 if i.mn.startswith(('v_fma', 'v_max3', 'v_min3', 'v_lshl_', 'v_bfe')) else 4.75 if i.mn.startswith('v_cvt') else 4
            self.q.append((c + (len(run) - 1), 0, (lambda r=run: a.items.extend(r)))); run = []
        if run: self.q.append((len(run), 0, (lambda r=run: a.items.extend(r))))
    def mark(self, name): self.q.append((0, 0, lambda: (self.g.marks.add(name), self.g.markn.append((name, self.g.cur[0])))))
    def pull(self, bud, full):
        n = self.g.cur[0]
        while self.q and n >= self.wake:
            v, l, fn = self.q[0]
            if v == 'sleep': self.wake = n + l; self.q.pop(0); continue
            if v == 'until': self.wake = max(n, l); self.q.pop(0); continue
            if l > bud[1]: return
            if v > bud[0] and bud[0] < full:
                bud[0] = -1; return
            self.q.pop(0); fn(); bud[0] -= v; bud[1] -= l


DEFAULTS = dict(wburst=(0, 2, 2, 0, 6, 0), xtat=0, mrot=0, wrat=0, xfirst=0, fF=0, f3at=27, symat=0, wpre=(0, 2), dnsplit=1, lateB=1, wo0=0, m2k0=11, m2n0=4, mdlate=0, m2gap=10, m2cut=60, aoff=6, wpace=0, cprio=1, g2p=22, tlb=0, tlbk=2, tsin=0, tz=0, outat=2, gbar=1, fbar=0, xorw=1, LOOK=6, A00=8, A0=8, Apos=(6, 6, 6, 6, 6, 6, 5, 5, 5, 5),
                wsched={5: 'k10 v10', 6: 'k11 v11', 7: 'k12 v12', 8: 'k13 v13', 9: 'k14 q10', 10: 'k15 q11', 11: 'v14 v15 q12', 12: 'q13 q14 q15'},
                bA=271, bH=295, kbud=10, vbud=5, wcost=5, kdel=1, hh=0.25, hq=0.97, hpf=(0.3, 0.7), fA=2, woA=4, hgap=(20, 14), fpre=8, m2c=4, m2k3='(j & 1)*2 + 1', m2g=5, m2e=7, m2nb=1, m2db=2, apos=0, hprio=3, qmid=8, qsplit=16, wowin=(4, 4, 4), AD2=8, LOOK2=7, g2r='(j & 1)*4', Hdir=0, Gdir=0, C2dir=0, poisat=4, earlyD=1, ocut=(0, 2, 2), pairw2=4, worot=1, fwin=(0, 0, 0, 3, 2, 3, 2), prio=2, tour=1, al12=1, kofs=0x300)


class Gen:
    def __init__(self, prof=False, opts=None):
        self.a = Asm()
        self.vm = Counter(self.a, 'vmcnt', 63)
        self.lg = Counter(self.a, 'lgkmcnt', 15)
        self.marks = set(); self.markn = []
        self.vL = vL
        self.prof = prof
        self.nopk = False
        self.nst = 0
        self.stnames = []
        self.S = SExpr(self.a, ENV, {k: v for k, v in globals().items() if isinstance(v, int) and k.isupper() and k not in ENV}, XT)
        self.o = dict(DEFAULTS)
        if opts: self.o.update(opts)

    def bl(self, dst, n, voff, srd, soff, imm=0, mods='', tag=None):
        op = {1: 'dword', 2: 'dwordx2', 4: 'dwordx4'}[n]
        so = soff if isinstance(soff, str) else (sr(soff))
        self.a(f'buffer_load_{op} {vr(dst, n)}, v{voff}, {sr(srd, 4)}, {so} offen' + (f' offset:{imm}' if imm else '') + (' ' + mods if mods else ''))
        self.vm.issue(tag)
    def bs(self, src, n, voff, srd, soff, imm=0, mods='', tag=None, count=True):
        op = {1: 'dword', 2: 'dwordx2', 4: 'dwordx4'}[n]
        so = soff if isinstance(soff, str) else (sr(soff))
        self.a(f'buffer_store_{op} {vr(src, n)}, v{voff}, {sr(srd, 4)}, {so} offen' + (f' offset:{imm}' if imm else '') + (' ' + mods if mods else ''))
        if count: self.vm.issue(tag)
    def dma(self, voff, srd, soff, imm=0, mods='', tag=None):
        self.a(f'buffer_load_dwordx4 v{voff}, {sr(srd, 4)}, {sr(soff)} offen' + (f' offset:{imm}' if imm else '') + (' ' + mods if mods else '') + ' lds')
        self.vm.issue(tag)
    def dr(self, op, dst, n, addr, off=0, tag=None):
        assert 0 <= off < 65536, off
        self.a(f'{op} {vr(dst, n)}, v{addr}' + (f' offset:{off}' if off else ''))
        self.lg.issue(tag)
    def tr(self, dst, addr, off, tag=None): self.dr('ds_read_b64_tr_b16', dst, 2, addr, off, tag)
    def r128(self, dst, addr, off=0, tag=None): self.dr('ds_read_b128', dst, 4, addr, off, tag)
    def dw(self, op, addr, src, n, off=0, tag=None):
        assert 0 <= off < 65536, off
        self.a(f'{op} v{addr}, {vr(src, n)}' + (f' offset:{off}' if off else ''))
        self.lg.issue(tag)
    def barrier(self):
        self.lg.wait_all()
        self.a('s_barrier')
    def stamp(self, name):
        if self.o.get('jit') and name not in ('karg', 'fin', 'end'):
            L = self.a.label('JIT')
            self.a(f's_memtime {sr(sTM, 2)}'); self.lg.wait_all()
            self.a(f's_mul_i32 s{sTM}, s{sTM}, 0x9e3779b1\ns_lshr_b32 s{sTM}, s{sTM}, {32 - self.o["jit"]}\ns_add_u32 s{sTM}, s{sTM}, 1\n{L}:\ns_sleep 1\ns_sub_u32 s{sTM}, s{sTM}, 1\ns_cmp_lg_u32 s{sTM}, 0\ns_cbranch_scc1 {L}')
        ex = self.o.get('exfil')
        if ex and name in ex[:2]:
            self.a(f's_memrealtime {sr(sTM, 2)}')
            self.lg.wait_all()
            self.a(f'v_writelane_b32 v255, s{sTM}, {1 + ex.index(name)}')
        if not self.prof: return
        only = self.o.get('only')
        if only and name not in only and name != 'end': return
        self.a(f's_memtime {sr(sTM, 2)}')
        self.a(f's_memrealtime s[0:1]')
        self.lg.wait_all()
        self.a(f'v_writelane_b32 v255, s{sTM}, {self.nst}')
        self.a(f'v_writelane_b32 v254, s0, {self.nst}')
        self.stnames.append(name)
        self.nst += 1
        assert self.nst <= 60
    def unpack(self, lo, hi, src):
        self.a(f'v_lshlrev_b32 v{lo}, 16, v{src}')
        self.a(f'v_and_b32 v{hi}, s{sMASK}, v{src}')
    def round1(self, r):
        self.a(f'v_cvt_pk_bf16_f32 v{r}, 0, v{r}')
    def round2(self, r0, r1):
        self.round1(r0); self.round1(r1)
    def round_list(self, regs):
        for r in regs: self.round1(r)
    def pk(self, op, d, s0, s1, s2=None, bc=(), neg=()):
        srcs = [s0, s1] + ([s2] if s2 is not None else [])
        if self.nopk:
            for h in range(2):
                t = []
                for k, r in enumerate(srcs):
                    kind, n = r if isinstance(r, tuple) else ('v', r)
                    t.append(('-' if k in neg else '') + f'{kind}{n if k in bc else n + h}')
                e64 = '' if op == 'fma' else ('_e64' if (neg or t[1][0] == 's') else '')
                self.a(f'v_{op}_f32{e64} v{d+h}, ' + ', '.join(t))
            return
        if 1 in bc and not isinstance(s1, tuple) and s1 & 1 and not self.o.get('badpk'):
            assert 0 not in bc
            sw = lambda t: tuple({0: 1, 1: 0}.get(k, k) for k in t)
            srcs[0], srcs[1] = srcs[1], srcs[0]; bc, neg = sw(bc), sw(neg)
        txt, sel, selhi = [], [], []
        for k, r in enumerate(srcs):
            kind, n = r if isinstance(r, tuple) else ('v', r)
            if k in bc:
                txt.append(f'{kind}[{n & ~1}:{(n & ~1) + 1}]'); sel.append(n & 1); selhi.append(n & 1)
            else:
                assert n % 2 == 0
                txt.append(f'{kind}[{n}:{n+1}]'); sel.append(0); selhi.append(1)
        assert d % 2 == 0
        m = ''
        if any(sel): m += ' op_sel:[' + ','.join(map(str, sel)) + ']'
        if not all(selhi): m += ' op_sel_hi:[' + ','.join(map(str, selhi)) + ']'
        if neg:
            ng = ','.join('1' if k in neg else '0' for k in range(len(srcs)))
            m += f' neg_lo:[{ng}] neg_hi:[{ng}]'
        self.a(f'v_pk_{op}_f32 v[{d}:{d+1}], ' + ', '.join(txt) + m)
    def dpp(self, op, d, s0, s1, ctl):
        self.a(f'{op}_dpp v{d}, v{s0}, v{s1} {ctl} row_mask:0xf bank_mask:0xf')
    def allreduce(self, v, t, op='v_add_f32', lo=True, b3=True):
        if lo:
            self.dpp(op, v, v, v, 'quad_perm:[1,0,3,2]')
            self.dpp(op, v, v, v, 'quad_perm:[2,3,0,1]')
            self.dpp(op, v, v, v, 'row_half_mirror')
        self.dpp(op, v, v, v, 'row_ror:8')
        self.a(f'v_mov_b32 v{t}, v{v}')
        self.a(f'v_permlane16_swap_b32 v{v}, v{t}')
        self.a(f'{op} v{v}, v{v}, v{t}')
        self.a(f'v_mov_b32 v{t}, v{v}')
        self.a(f'v_permlane32_swap_b32 v{v}, v{t}')
        self.a(f'{op} v{v}, v{v}, v{t}')
    def poll(self, loads, tagregs, tmp=None, post=None):
        a = self.a
        L, D = a.label('POLL'), a.label('PDONE')
        a(f'{L}:')
        loads()
        self.vm.wait_all()
        if post: post()
        if len(tagregs) == 1:
            a(f'v_cmp_ne_u32 vcc, s{sTAG}, v{tagregs[0]}')
        else:
            a(f'v_bitop3_b32 v{tmp}, v{tagregs[0]}, v{tagregs[1]}, s{sTAG} bitop3:0x7e')
            for t in tagregs[2:]: a(f'v_bitop3_b32 v{tmp}, v{tmp}, v{t}, s{sTAG} bitop3:0xf6')
            a(f'v_cmp_ne_u32 vcc, 0, v{tmp}')
        a(f's_cbranch_vccz {D}')
        a(f's_add_u32 s{sSPIN}, s{sSPIN}, 1')
        a(f's_cmp_lt_u32 s{sSPIN}, {SPIN_LIMIT}')
        a(f's_cbranch_scc1 {L}')
        a(f'{D}:')
    def weave(self, fn, extras):
        a = self.a
        keep = a.items; a.items = []
        fn()
        body = a.items; a.items = keep
        extras = list(extras); n = len(extras)
        for i, it in enumerate(body):
            while extras and (n - len(extras)) * len(body) <= i * n: extras.pop(0)()
            a.items.append(it)
        for e in extras: e()
    def tagcheck(self, tagregs, tmp):
        a = self.a
        if len(tagregs) == 1:
            a(f'v_cmp_ne_u32 vcc, s{sTAG}, v{tagregs[0]}')
        else:
            a(f'v_bitop3_b32 v{tmp}, v{tagregs[0]}, v{tagregs[1]}, s{sTAG} bitop3:0x7e')
            for t in tagregs[2:]: a(f'v_bitop3_b32 v{tmp}, v{tmp}, v{t}, s{sTAG} bitop3:0xf6')
            a(f'v_cmp_ne_u32 vcc, 0, v{tmp}')
    def try_load(self, loads, tagregs, tmp=None, between=None, pre=None):
        a = self.a
        n0 = len(self.vm.q)
        loads()
        self.vm.q[-1] = tg = ('try', a.label('T'))
        if between: between()
        self.vm.wait(tg)
        OK = a.label('TOK')
        self.tagcheck(tagregs, tmp)
        a(f's_cbranch_vccz {OK}')
        q, l = list(self.vm.q), list(self.lg.q)
        if pre: pre()
        self.poll(loads, tagregs, tmp)
        self.vm.q, self.lg.q = q, l
        a(f'{OK}:')
    def spoll(self, loads, checks, work=None):
        a = self.a
        L, C, D = a.label('SPOLL'), a.label('SCHK'), a.label('SDONE')
        def issue():
            for d, n, so, imm in loads:
                op = {1: 'dword', 2: 'dwordx2', 4: 'dwordx4', 8: 'dwordx8'}[n]
                a(f's_load_{op} {sr(sPL + d, n)}, {sr(rWS, 2)}, s{so} offset:{imm} glc')
        if work:
            issue(); work()
            a(f's_branch {C}')
        a(f'{L}:')
        issue()
        a(f'{C}:')
        a(f's_add_u32 s{sSPIN}, s{sSPIN}, 1')
        a(f's_cmp_ge_u32 s{sSPIN}, {SPIN_LIMIT}')
        self.lg.wait_all()
        a(f's_cbranch_scc1 {D}')
        for k in checks:
            a(f's_cmp_lg_u32 s{sPL + k}, s{sTAG}')
            a(f's_cbranch_scc1 {L}')
        a(f'{D}:')
    def inbox(self, box, n, checks=None, work=None):
        self.spoll([(0, n, sINB, box * 512)], range(n) if checks is None else checks, work)
    def va(self, dst, terms, sreg=None, const=0, tmp=None):
        a = self.a; vL = self.vL
        first = True
        for sh, bits, mult in terms:
            full = sh + bits >= 6
            src = vL
            t = dst if first else tmp
            if sh == 0 and full: pass
            elif full: a(f'v_lshrrev_b32 v{t}, {sh}, v{vL}'); src = t
            elif sh == 0: a(f'v_and_b32 v{t}, {(1 << bits) - 1}, v{vL}'); src = t
            else: a(f'v_bfe_u32 v{t}, v{vL}, {sh}, {bits}'); src = t
            p2 = mult & (mult - 1) == 0
            k = mult.bit_length() - 1
            if first:
                if p2 and sreg is not None: a(f'v_lshl_add_u32 v{dst}, v{src}, {k}, s{sreg}'); sreg = None
                elif p2 and k: a(f'v_lshlrev_b32 v{dst}, {k}, v{src}')
                elif p2:
                    if src != dst: a(f'v_mov_b32 v{dst}, v{src}')
                else: a(f'v_mul_u32_u24 v{dst}, {mult}, v{src}')
            else:
                assert p2
                a(f'v_lshl_add_u32 v{dst}, v{src}, {k}, v{dst}')
            first = False
        if sreg is not None: a(f'v_add_u32 v{dst}, s{sreg}, v{dst}')
        if const: a(f'v_add_u32 v{dst}, {const}, v{dst}')
    def push(self, vaddr, soff, nl, vtmp, lab, wave=0):
        a = self.a
        a(f's_cmp_lg_u32 s{sWAVE}, {wave}')
        a(f's_cbranch_scc1 {lab}')
        a(f'v_mov_b32 v{vtmp}, s{sTAG}')
        a(f's_mov_b32 exec_hi, 0')
        if nl < 32: a(f's_mov_b32 exec_lo, {(1 << nl) - 1}')
        self.bs(vtmp, 1, vaddr, rWS, soff, 0, 'sc1', count=False)
        a('s_mov_b64 exec, -1')
        a(f'{lab}:')
    def silu(self, v, t):
        a = self.a
        a(f'v_mul_f32 v{t}, s{sL2E}, v{v}')
        a(f'v_exp_f32 v{t}, -v{t}')
        a(f'v_add_f32 v{t}, 1.0, v{t}')
        a(f'v_rcp_f32 v{t}, v{t}')
        a(f'v_mul_f32 v{v}, v{v}, v{t}')
        self.round1(v)
    def gemv_ops(self, wregs, cregs, acc, t0, t1, packed):
        ops = []
        assert t0 % 2 == 0 and t1 == t0 + 1
        for i, (w, c) in enumerate(zip(wregs, cregs)):
            cp = f'v[{c & ~1}:{(c & ~1) + 1}]'
            for d in range(4):
                tt = t0 + 2 * (d & 1)
                ops.append(f'v_lshlrev_b32 v{tt}, 16, v{w+d}')
                ops.append(f'v_and_b32 v{tt+1}, s{sMASK}, v{w+d}')
                ac = f'v[{acc+2*d}:{acc+2*d+1}]'
                if not packed:
                    for h in range(2): ops.append(f'v_mul_f32 v{acc+2*d+h}, v{tt+h}, v{c}' if i == 0 else f'v_fmac_f32 v{acc+2*d+h}, v{tt+h}, v{c}')
                elif i == 0: ops.append(f'v_pk_mul_f32 {ac}, {cp}, v[{tt}:{tt+1}] op_sel:[{c & 1},0] op_sel_hi:[{c & 1},1]')
                else: ops.append(f'v_pk_fma_f32 {ac}, {cp}, v[{tt}:{tt+1}], {ac} op_sel:[{c & 1},0,0] op_sel_hi:[{c & 1},1,1]')
        for i in range(4): ops.append(f'v_permlane32_swap_b32 v{acc+i}, v{acc+4+i}')
        for i in range(4): ops.append(f'v_add_f32 v{acc+i}, v{acc+i}, v{acc+4+i}')
        for i in range(2): ops.append(f'v_permlane16_swap_b32 v{acc+i}, v{acc+2+i}')
        for i in range(2): ops.append(f'v_add_f32 v{acc+i}, v{acc+i}, v{acc+2+i}')
        for i in range(2): ops.append(f'v_add_f32_dpp v{acc+i}, v{acc+i}, v{acc+i} row_ror:8 row_mask:0xf bank_mask:0xf')
        ops.append(f'v_mov_b32_dpp v{acc}, v{acc+1} quad_perm:[0,1,2,3] row_mask:0xf bank_mask:0xc')
        return ops
    def sum8(self, b):
        self.pk('add', b, b, b + 2); self.pk('add', b + 4, b + 4, b + 6); self.pk('add', b, b, b + 4)
        self.a(f'v_add_f32 v{b}, v{b}, v{b+1}')
    def softmax_pm(self, p, e, out, t, mid=None, part=0, split=0, stage=None):
        a = self.a
        mx, mn, u0, u1, s0, s1 = t, t + 1, t + 2, t + 3, t + 4, t + 6
        if part != 2:
            self.round_list([p + i for i in range(16)])
            a(f'v_max3_f32 v{mx}, v{p}, v{p+1}, v{p+2}')
            a(f'v_min3_f32 v{mn}, v{p}, v{p+1}, v{p+2}')
            for i in range(3, 15, 2):
                a(f'v_max3_f32 v{mx}, v{mx}, v{p+i}, v{p+i+1}')
                a(f'v_min3_f32 v{mn}, v{mn}, v{p+i}, v{p+i+1}')
            a(f'v_max_f32 v{u0}, v{mx}, v{p+15}')
            a(f'v_min_f32 v{u1}, v{mn}, v{p+15}')
            a(f'v_max_f32 v{mx}, v{mx}, v{p+15}')
            a(f'v_min_f32 v{mn}, v{mn}, v{p+15}')
            a(f'v_permlane32_swap_b32 v{mx}, v{u0}')
            a(f'v_permlane32_swap_b32 v{mn}, v{u1}')
            a(f'v_max_f32 v{mx}, v{mx}, v{u0}')
            a(f'v_min_f32 v{mn}, v{mn}, v{u1}')
            self.pk('mul', mx, mx, ('s', sL2E), bc=(1,))
            mn2 = mn
            if not self.nopk: a(f'v_mov_b32 v{u0}, v{mn}'); mn2 = u0
            for i in range(0, 16, 2):
                self.pk('fma', e + i, p + i, ('s', sL2E), mx, bc=(1, 2), neg=(2,))
                self.pk('fma', p + i, p + i, ('s', sL2E), mn2, bc=(1, 2), neg=(0,))
        for i in range(split if part == 2 else 0, 16):
            if mid and i == mid[0]: mid[1]()
            if part == 1 and i == split: return
            a(f'v_exp_f32 v{e+i}, v{e+i}')
            a(f'v_exp_f32 v{p+i}, v{p+i}')
        self.pk('add', s0, e, e + 2); self.pk('add', s1, p, p + 2)
        for i in range(4, 16, 2):
            self.pk('add', s0, s0, e + i); self.pk('add', s1, s1, p + i)
        a(f'v_add_f32 v{u0}, v{s0}, v{s0+1}')
        a(f'v_add_f32 v{u1}, v{s1}, v{s1+1}')
        a(f'v_add_f32 v{mx}, v{s0}, v{s0+1}')
        a(f'v_add_f32 v{mn}, v{s1}, v{s1+1}')
        a(f'v_permlane32_swap_b32 v{mx}, v{u0}')
        a(f'v_permlane32_swap_b32 v{mn}, v{u1}')
        self.pk('add', mx, mx, u0)
        a(f'v_rcp_f32 v{mx}, v{mx}')
        a(f'v_rcp_f32 v{mn}, v{mn}')
        for i in range(0, 16, 2):
            self.pk('mul', e + i, e + i, mx, bc=(1,))
            self.pk('mul', p + i, p + i, mn, bc=(1,))
        for i in range(8): a(f'v_cvt_pk_bf16_f32 v{out+i}, v{e+2*i}, v{e+2*i+1}')
        for i in range(8): a(f'v_cvt_pk_bf16_f32 v{out+8+i}, v{p+2*i}, v{p+2*i+1}')
    def ln_stats(self, xp, t, m_out, sd_out, fill=()):
        a = self.a
        fill = list(fill)
        def pad(n):
            for _ in range(n):
                if fill: a(fill.pop(0))
        s, u = t, t + 4
        a(f'v_mov_b32 v{u}, 0x3f803f80')
        for i in range(8):
            k = 2 * (i & 1)
            a(f'v_dot2_f32_bf16 v{s+k}, v{xp+i}, v{u}, ' + ('0' if i < 2 else f'v{s+k}'))
            a(f'v_dot2_f32_bf16 v{s+k+1}, v{xp+i}, v{xp+i}, ' + ('0' if i < 2 else f'v{s+k+1}'))
        pad(3)
        self.pk('add', s, s, s + 2)
        for ctl in ('quad_perm:[1,0,3,2]', 'quad_perm:[2,3,0,1]', 'row_half_mirror', 'row_ror:8'):
            pad(2 if ctl.endswith('3,2]') else 1)
            self.dpp('v_add_f32', s, s, s, ctl); self.dpp('v_add_f32', s + 1, s + 1, s + 1, ctl)
        pad(2)
        a(f'v_permlane16_swap_b32 v{s}, v{s+1}')
        a(f'v_add_f32 v{u}, v{s}, v{s+1}')
        a(f'v_add_f32 v{s}, v{s}, v{s+1}')
        pad(2)
        a(f'v_permlane32_swap_b32 v{s}, v{u}')
        a(f'v_add_f32 v{s}, v{s}, v{u}')
        a(f'v_mul_f32 v{u}, 0x3a800000, v{s}')
        a(f'v_mul_f32 v{s}, 0x3a800000, v{s}')
        pad(2)
        a(f'v_permlane16_swap_b32 v{s}, v{u}')
        a(f'v_fma_f32 v{sd_out}, -v{s}, v{s}, v{u}')
        a(f'v_cvt_pk_bf16_f32 v{m_out}, 0, v{s}')
        a(f'v_max_f32 v{sd_out}, 0, v{sd_out}')
        self.round1(sd_out)
        a(f'v_add_f32 v{sd_out}, 0x3727c5ac, v{sd_out}')
        self.round1(sd_out)
        a(f'v_sqrt_f32 v{sd_out}, v{sd_out}')
        pad(99)
        self.round1(sd_out)

    def build(self):
        self.front()
        self.gemm1()
        self.middle()
        self.gemm2()
        self.tail()
        self.finish()
        return self

    def vaa(self, dst, terms, sreg=None, const=0): self.va(dst, terms, sreg, const, vT + 5)

    def front(self):
        a, vm, lg, o, S, va = self.a, self.vm, self.lg, self.o, self.S, self.vaa
        E2 = range(0, 16, 2)
        a(f'{NAME}:')
        a(f's_load_dwordx16 {sr(KA, 16)}, s[0:1], 0')
        a(f's_load_dwordx8 {sr(KA + 16, 8)}, s[0:1], 64')
        a(f's_load_dwordx2 {sr(rWS, 2)}, s[0:1], 104')
        a('s_cmp_ge_u32 s2, 256')
        a('s_cbranch_scc1 L_END')
        if self.prof:
            a(f's_memrealtime {sr(sCMP, 2)}')
            a(f's_memtime {sr(sTM, 2)}')
            a('v_mov_b32 v255, 0')
            a('v_mov_b32 v254, 0')
            self.stnames.append('start'); self.nst = 1
        if o.get('exfil'): a(f's_memrealtime {sr(sTM, 2)}')
        a(f"""v_lshrrev_b32 v{vT}, 6, v0
        v_and_b32 v{vL}, 63, v0
        s_nop 0
        v_readfirstlane_b32 s{sWAVE}, v{vT}
        v_lshlrev_b32 v{vL16}, 4, v{vL}""")
        for srd, size in ((rX, 4194304), (rWM, 12582912), (rWS, WS_BYTES), (rW, 6291456), (rWO, 2097152), (rWG, 7340032), (rWU, 7340032), (rWD, 7340032), (rOUT, 4194304)):
            a(f's_mov_b32 s{srd+2}, {size}')
            a(f's_mov_b32 s{srd+3}, 0x20000')
        a(f"""s_mov_b32 s{sSPIN}, 0
        s_mov_b32 s{sMASK}, 0xffff0000
        s_mov_b32 s{sL2E}, 0x3fb8aa3b""")
        if o.get('xflip'): a(f's_xor_b32 s2, s2, {o["xflip"]}')
        S(sX, 'wg & 7'); S(sJ, 'wg >> 3')
        S(sRow, 'wg*8 + w')
        S(sR1, '(x & 4)*2 + (j >> 2)'); S(sHP, '(x & 3)*4 + ((j & 3) ^ q)', q=o.get('hpx', 2))
        S(sCB, '(x & 1)*8 + (j & 7)')
        S(sRT, '(x >> 1)*4 + (j >> 3)')
        S(sINB, '(wg*64 + w)*64 + INB')
        xs_raw, wm, cv, st, acc, xs, mp, hp = AR, AR + 8, AR + 16, AR + 20, AR + 24, AR + 32, AR + 48, AR + 64
        vWM, vCo, vL8, vL32S, vGA, vXT = SP, SP + 1, SP + 2, SP + 3, SP + 4, vT + 6
        self.vWM, self.vL8, self.vL32S, self.vGA = vWM, vL8, vL32S, vGA
        S(T3, '((x >> 1)*256 + j*8 + w)*4096 + (x & 1)*1024')
        va(vT + 4, [(0, 5, 16), (5, 1, 2048)])
        S(T2, '(x*8 + w)*32')
        S(T0, 'T2*6144 + (j ^ 1)*128'); S(T1, 'T0 + 12288')
        S(T5, '(rt*8 + w)*32768 + cb*128' if not o.get('fakext') else '((x*16 + (j >> 1))*32768) + (j & 1)*1024 + w*128')
        S(T4, '(((x >> 1)*16 + cb)*16 + w)*512 + AINB')
        va(vWM, [(3, 3, 2 * 12288), (0, 3, 16)])
        va(vCo, [(3, 3, 4)], T2)
        va(vXT, [(0, 3, 16)]); va(vT + 7, [(3, 3, 16)]); a(f'v_xor_b32 v{vXT}, v{vXT}, v{vT+7}')
        va(vT + 7, [(3, 3, 2048)]); a(f'v_add_u32 v{vXT}, v{vXT}, v{vT+7}')
        a('s_waitcnt lgkmcnt(0)')
        if self.prof:
            a(f'v_writelane_b32 v255, s{sTM}, 0')
            a(f'v_writelane_b32 v255, s{sCMP}, 63')
            a(f'v_writelane_b32 v254, s{sCMP}, 0')
        if o.get('exfil'):
            for k in range(3): a(f'v_writelane_b32 v255, s{sTM}, {k}')
        self.stamp('karg')
        a(f'global_load_dword v{cv+1}, v{vCo}, {sr(pC, 2)}'); vm.issue('c')
        a(f's_mov_b64 {sr(rWM, 2)}, {sr(KA + 20, 2)}')
        self.bl(wm, 4, vWM, rWM, T0, 0, 'nt', 'wm')
        self.bl(wm + 4, 4, vWM, rWM, T1, 0, 'nt', 'wm')
        a(f's_load_dword s{sTAG}, {sr(rWS, 2)}, {NONCE}')
        a(f's_mov_b64 {sr(rX, 2)}, {sr(KA, 2)}')
        a(f's_load_dword s{sPL}, {sr(rWS, 2)}, s{sINB} offset:0 glc')
        for q in range(2): a(f's_load_dword s{sPL + 1 + q}, {sr(rWS, 2)}, s{T4} offset:{q * 4096 + 508} glc')
        if o['tlb'] & 1:
            S(T6, '(w & 1)*2097152 + HF')
            a(f's_load_dword s{sPL + 5}, {sr(rWS, 2)}, s{T6} offset:0')
        if o['tsin']:
            S(T6, '(wg*8 + w)*512 + SINB')
            for q in range(2): a(f's_load_dword s{sPL + 3 + q}, {sr(rWS, 2)}, s{T6} offset:{q * 256 + 252} glc')
        if o.get('bar0', 1): a('s_barrier')
        self.bl(xs_raw, 4, vT + 4, rX, T3, 0, o.get('xsm', 'nt'), 'xs')
        self.bl(xs_raw + 4, 4, vT + 4, rX, T3, 512, o.get('xsm', 'nt'), 'xs')
        for srd, k in ((rW, 2), (rWO, 6), (rWG, 12), (rWU, 14), (rWD, 16), (rOUT, 22)):
            a(f's_mov_b64 {sr(srd, 2)}, {sr(KA + k, 2)}')
        a(f"""s_getpc_b64 {sr(sCMP, 2)}
        s_and_b32 s{sCMP}, s{sCMP}, 0xfffffc00""")
        S(T6, '(j*8 + w)*128')
        va(vT, [(5, 1, 32768)], T6)
        a(f'v_min_u32 v{vT}, CODE_KB, v{vT}')
        a(f'global_load_dword v{vT+7}, v{vT}, {sr(sCMP, 2)}'); vm.issue()
        S(sKH, 'w >> 2'); S(sRB, 'w & 3'); S(sW1K, 'w*1024')
        S(sFS, 'x*7 + (j >> 2)'); S(sKQ, 'j & 3')
        va(vT + 2, [(4, 1, 64)]); va(vWd, [(0, 3, 16)])
        a(f'v_xor_b32 v{vWd}, v{vWd}, v{vT+2}'); va(vT + 2, [(3, 3, 6144)]); a(f'v_add_u32 v{vWd}, v{vWd}, v{vT+2}')
        S(sU0, o.get('u0', 'j & 12')); S(sWB, 'w*49152 + hp*128')
        wq = self.wq = [(n, t) for n in range(6) for t in 'kvq']
        def w_next(cnt=1):
            for _ in range(cnt):
                n, t = wq.pop(0)
                if t == 'k':
                    if n < 4:
                        S(sY1, '((j >> 4)*q) ^ n', n=n, q=2 * o['xorw'])
                        S(sY0, '((y1 + u0) & 15)*UR + wb'); S(sY1, 'y1*8192 + w1k')
                    else:
                        S(sY0, '((u0 + n) & 15)*UR + wb', n=n); S(sY1, 'w1k + q', q=n * 8192)
                S(sU, 'y0 + q', q=dict(q=0, k=2048, v=4096)[t]); S('m0', 'y1 + q', q='kvq'.index(t) * REG)
                self.dma(vWd, rW, sU, 0, o.get('wm0', '') if n < 2 else o.get('wm1', ''), ('W', n))
        wb = list(o['wburst'])
        va(vL8, [(0, 6, 8)])
        a(f'v_add_u32 v{vL32S}, {MISC}, v{vL16}')
        S(T0, '(w >> 2)*1024 + MISC'); S(T1, 'w & 3')
        va(vGA, [(0, 2, 1)]); a(f'v_xor_b32 v{vGA}, s{T1}, v{vGA}\nv_lshl_add_u32 v{vGA}, v{vGA}, 2, s{T0}')
        va(vT + 2, [(4, 2, 32), (0, 3, 128), (3, 1, 16)]); a(f'v_add_u32 v{vGA}, v{vGA}, v{vT+2}')
        self.stamp('issued')
        def xt_load():
            for h in range(2):
                S('m0', 'w*2048 + q', q=L_XT + h * 1024)
                self.dma(vXT, rX, T5, 0, '', 'xt')
                if h == 0: S(T5, 'T5 + 16384')
        if o['xtat'] == 0: xt_load()
        S(T0, '((((w >> 1)*16 + ((j ^ 1) & 15))*2 + (j >> 4))*8 + x)*512 + AINB')
        S(T7, '((x & 6) + ((j & 24) + w)*8)*4096 + (j & 7)*512 + (x & 1)*256 + SINB')
        vm.wait('c')
        self.unpack(cv, cv + 1, cv + 1)
        for i in range(2): self.silu(cv + i, vT + i)
        w_next(o['wpre'][0])
        vm.wait('wm')
        self.stamp('wmok')
        w_next(o['wpre'][1])
        for s in self.gemv_ops([wm, wm + 4], [cv, cv + 1], acc, vT, vT + 1, True): a(s)
        a(f"""s_waitcnt lgkmcnt(0)
        s_mul_i32 s{sTAG}, s{sTAG}, 0x9e3779b1
        s_add_u32 s{sTAG}, s{sTAG}, 0x7f4a7c15""")
        self.dw('ds_write_b32', vGA, acc, 1, L_A1 - MISC)
        self.barrier()
        self.r128(acc, vL32S, L_A1 - MISC); self.r128(acc + 4, vL32S, L_A1 - MISC + 1024)
        if o['xtat'] == 1: xt_load()
        lg.wait_all()
        self.sum8(acc)
        a(f'v_mov_b32 v{acc+1}, s{sTAG}')
        a(f"""s_bitcmp1_b32 s{sWAVE}, 0
        s_cselect_b32 exec_lo, 0, -1
        s_cselect_b32 exec_hi, -1, 0""")
        self.bs(acc, 2, vL8, rWS, T0, 0, 'sc1')
        a('s_mov_b64 exec, -1')
        self.stamp('A1pub')
        w_next(wb[0])
        vm.wait('xs')
        self.stamp('xsok')
        u1 = vT + 4
        a(f'v_mov_b32 v{u1}, 0x3f803f80')
        for i in range(8):
            k = 2 * (i & 1)
            a(f'v_dot2_f32_bf16 v{vT+k}, v{xs_raw+i}, v{u1}, ' + ('0' if i < 2 else f'v{vT+k}'))
            a(f'v_dot2_f32_bf16 v{vT+k+1}, v{xs_raw+i}, v{xs_raw+i}, ' + ('0' if i < 2 else f'v{vT+k+1}'))
        S(T0, 'w*32 + L_ST'); va(u1, [(5, 1, 16), (4, 1, 8)], T0)
        self.pk('add', st, vT, vT + 2)
        va(vT + 1, [(0, 4, 16)], None, L_ST)
        va(vT, [(0, 4, 16), (4, 1, 4096)])
        for ctl in ('quad_perm:[1,0,3,2]', 'quad_perm:[2,3,0,1]', 'row_half_mirror', 'row_mirror'):
            self.dpp('v_add_f32', st, st, st, ctl); self.dpp('v_add_f32', st + 1, st + 1, st + 1, ctl)
        a(f"""v_permlane16_swap_b32 v{st}, v{st+1}
        v_add_f32 v{st}, v{st}, v{st+1}
        v_mov_b32 v{st+1}, s{sTAG}""")
        self.dw('ds_write_b64', u1, st, 2)
        self.barrier()
        self.r128(st, vT + 1)
        lg.wait_all()
        a('s_mov_b32 exec_hi, 0')
        self.bs(st, 4, vT, rWS, T7, 0, 'sc1')
        a('s_mov_b32 exec_hi, -1')
        self.stamp('A2pub')
        if o['xtat'] == 2: xt_load()
        w_next(wb[1])
        mg = acc
        def pre_work():
            va(vT, [(0, 5, 16), (5, 1, 4096)])
            S(T1, 'w & 3'); S(T2, '(w >> 2)*1024 + L_MP')
            va(vT + 1, [(4, 1, 1), (2, 1, 2)]); a(f'v_xor_b32 v{vT+1}, s{T1}, v{vT+1}\nv_lshl_add_u32 v{vT+1}, v{vT+1}, 2, s{T2}')
            va(vT + 2, POS + [(5, 1, 2048)]); a(f'v_add_u32 v{vT+1}, v{vT+1}, v{vT+2}')
            S(T1, '(wg*8 + w)*512 + SINB')
            va(vT + 4, [(0, 5, 16)])
        def x_unpack():
            S(T2, 'w*2048 + L_XT')
            va(hp, [(4, 2, 16)]); va(hp + 1, [(0, 3, 16)]); a(f'v_xor_b32 v{hp}, v{hp}, v{hp+1}')
            va(hp + 1, [(0, 4, 128)], T2); a(f'v_add_u32 v{hp}, v{hp}, v{hp+1}\nv_xor_b32 v{hp+1}, 64, v{hp}')
            vm.wait('xt')
            a(f'ds_read_b128 {vr(XR, 4)}, v{hp}\nds_read_b128 {vr(XR + 4, 4)}, v{hp+1}')
        def x_unpack2():
            for p, q in ((0, 2), (1, 3), (4, 6), (5, 7)): a(f'v_permlane32_swap_b32 v{XR+p}, v{XR+q}')
            for i in range(8): self.unpack(xs + 2 * i, xs + 2 * i + 1, XR + i)
        self.spoll([(q, 1, T4, q * 4096 + 508) for q in range(2)], range(2), work=pre_work)
        self.stamp('apre')
        if o.get('abar', 0): a('s_barrier')
        st_ld = lambda: self.bl(st, 4, vT + 4, rWS, T1, 0, 'sc1', 'st')
        def st_go():
            self.spoll([(q, 1, T1, q * 256 + 252) for q in range(2)], range(2), work=x_unpack)
            st_ld()
            if o['fbar']: a('s_barrier')
            w_next(wb[2])
            x_unpack2()
        self.try_load(lambda: self.bl(mg, 4, vT, rWS, T4, 0, 'sc1'), [mg + 1, mg + 3], vT + 3, st_go)
        self.stamp('modok')
        a(f'ds_write2_b32 v{vT+1}, v{mg}, v{mg+2} offset0:0 offset1:4'); lg.issue()
        self.barrier()
        for i in (2, 3, 0, 1): self.r128(mp + 4 * i, vL32S, L_MP - MISC + i * 1024, i >> 1)
        S(T0, 'hp*4096 + w*512')
        a(f'v_add_u32 v{vT}, s{T0}, v{vL16}')
        S('m0', 'w*512 + L_WPHI')
        a('s_mov_b32 exec_hi, 0')
        a(f'global_load_lds_dwordx4 v{vT}, {sr(pWPHI, 2)}'); vm.issue()
        a('s_mov_b32 exec_hi, -1')
        w_next(wb[3])
        S(T0, '((rt*16 + cb)*4 + (w >> 1))*4096 + (w & 1)*256 + HF')
        va(vT, [(0, 4, 16), (4, 1, 1024), (5, 1, 512)])
        def mod_sum():
            lg.wait(1); self.sum8(mp + 8)
            self.round1(mp + 8)
            lg.wait(0); self.sum8(mp)
            a(f'v_add_f32 v{mp+8}, 1.0, v{mp+8}')
            self.round2(mp + 8, mp)
        if not o['xfirst']: mod_sum()
        vm.wait('st')
        self.tagcheck([st + 1, st + 3], vT + 3)
        a('s_cbranch_vccz L_STOK')
        q0 = list(vm.q)
        self.poll(st_ld, [st + 1, st + 3], vT + 3)
        vm.q = q0
        a('L_STOK:')
        self.stamp('statok')
        a(f"""v_permlane16_swap_b32 v{st}, v{st+2}
        v_add_f32 v{st+3}, v{st}, v{st+2}
        v_mul_f32 v{st+2}, 0x3a800000, v{st+3}
        v_mul_f32 v{st+3}, 0x3a800000, v{st+3}
        v_permlane16_swap_b32 v{st+2}, v{st+3}
        v_fma_f32 v{st}, -v{st+2}, v{st+2}, v{st+3}
        v_cvt_pk_bf16_f32 v{st+1}, 0, v{st+2}
        v_max_f32 v{st}, 0, v{st}""")
        self.round1(st)
        for i in E2[:4]: self.pk('add', xs + i, xs + i, st + 1, bc=(1,), neg=(1,))
        a(f'v_add_f32 v{st}, 0x3727c5ac, v{st}')
        self.round1(st)
        a(f'v_sqrt_f32 v{st}, v{st}')
        for i in E2[4:]: self.pk('add', xs + i, xs + i, st + 1, bc=(1,), neg=(1,))
        self.round1(st)
        a(f'v_rcp_f32 v{st}, v{st}')
        self.round_list([xs + i for i in range(16)])
        for i in E2: self.pk('mul', xs + i, xs + i, st, bc=(1,))
        if o['xfirst']: mod_sum()
        self.round_list([xs + i for i in range(16)])
        for h in range(2):
            rg = range(8 * h, 8 * h + 8)
            for i in rg: self.dpp('v_mul_f32', xs + i, mp + 8, xs + i, f'row_newbcast:{i}')
            self.round_list([xs + i for i in rg])
            for i in rg: self.dpp('v_add_f32', xs + i, mp, xs + i, f'row_newbcast:{i}')
            for i in range(4 * h, 4 * h + 4): a(f'v_cvt_pk_bf16_f32 v{hp+i}, v{xs+2*i}, v{xs+2*i+1}')
            self.bs(hp + 4 * h, 4, vT, rWS, T0, 2048 * h, 'sc1', 'hs')
        self.stamp('hst')
        va(vB, [(2, 2, 128), (3, 1, 64), (4, 1, 32), (0, 2, 8), (5, 1, 512)])
        a(f'v_xor_b32 v{vB+1}, 64, v{vB}')
        for q in (1, 2):
            for h in range(2): a(f'v_add_u32 v{vB+2*q+h}, {q*REG}, v{vB+h}')
        va(vT + 1, [(0, 2, 8 * 4096), (2, 2, 4096)])
        S(T0, '((rt >> 3)*4 + (rt & 7)*32)*4096 + (cb >> 1)*64 + (cb & 1)*4 + INB')
        S(sAB, 'r1*262144 + rb*4096 + HF')
        a(f"""s_cmp_ge_u32 s{sJ}, {0 if o.get('noffn') else 28}
        s_cselect_b32 s{rWG+2}, 0, s{rWG+2}
        s_cselect_b32 s{rWU+2}, 0, s{rWU+2}
        s_cselect_b32 s{rWD+2}, 0, s{rWD+2}""")
        vm.wait('hs')
        a('s_barrier')
        self.push(vT + 1, T0, 16, vT + 2, 'L_PB')
        self.stamp('hpub')
        w_next(wb[4])
        vWo, vFG, vFD = vS0, vS1, SP + 5
        def setup():
            S(sWO, 'w*16384 + cb*128' if not o.get('fake84') else 'w*16384 + ((x & 3)*4 + (j & 3))*128'); S(sY2, '(j >> 2)*262144' if o.get('fake84') else '((j & 1)*8 + (j >> 3)*2)*131072' if o['worot'] else '(j & 1)*1048576')
            S(sFG, '(kq*8 + w)*(32*7168) + fs*128'); S(sFD, '(fs*8 + w)*16384 + kq*512')
            S(sM2, '((x & 3)*8 + w)*(32*12288) + (j*2 + (x >> 2))*128 + 4096')
            S(T1, '(w & 1)*64')
            va(vT + 2, [(4, 1, 32)], T1); va(vWo, [(0, 3, 16)])
            a(f'v_xor_b32 v{vWo}, v{vWo}, v{vT+2}'); va(vT + 2, [(3, 3, 2048)]); a(f'v_add_u32 v{vWo}, v{vWo}, v{vT+2}')
            S(T1, '(w & 2)*32'); va(vT + 2, [(4, 1, 32)], T1); va(vFG, [(0, 3, 16)])
            a(f'v_xor_b32 v{vFG}, v{vFG}, v{vT+2}'); va(vT + 2, [(3, 3, 7168)]); a(f'v_add_u32 v{vFG}, v{vFG}, v{vT+2}')
            S(T1, '(w & 1)*128')
            va(vT + 2, [(5, 1, 64)], T1); va(vFD, [(0, 5, 16), (5, 1, 2048)])
            a(f'v_xor_b32 v{vFD}, v{vFD}, v{vT+2}')
            S(T3, 'u0*16384'); a(f'v_add_u32 v{vCo}, s{sAB}, v{vL16}')
            S(T1, 'rb*2048 + L_QH'); a(f'v_add_u32 v0, s{T1}, v{vL16}')
        S(T6, 'wg*4096 + INB'); S(T7, '(w & 3)*128 + T6'); S(T6, 'u0*32 + T6')
        a(f's_cmp_ge_u32 s{sWAVE}, 4\ns_cselect_b32 s{T6}, s{T7}, s{T6}')
        bpoll = self.bpoll = lambda work=None: self.spoll([(0, 2, T6, 0), (2, 2, T6, 64)], range(4), work)
        if o['lateB']:
            def bw():
                w_next(wb[5]); setup()
                if o['fF']:
                    a(f's_cmp_lt_u32 s{sWAVE}, 4\ns_cbranch_scc1 L_NFF')
                    for k in range(o['fF']):
                        for far in range(2):
                            S(sU, 'fg + q', q=(k * 8 * 7168 - far * 4 * 32 * 7168) & 0xffffffff)
                            a(f'buffer_load_dwordx4 {vr(AK + 8*k + 4*far, 4)}, v{vFG}, {sr(rWG, 4)}, s{sU} offen nt')
                    a('L_NFF:')
                a(';TOUR')
                a(f's_cmp_ge_u32 s{sWAVE}, 4\ns_cbranch_scc1 L_HELP')
            bpoll(bw)
        else: bpoll(lambda: (w_next(wb[5]), setup(), a(';TOUR')))
        assert len(wq) >= 6
        assert len(wq) % 3 == 0 and len(wq) <= (6 if o['xorw'] else 12)

    def gemm1(self):
        a, vm, lg, o, S, va = self.a, self.vm, self.lg, self.o, self.S, self.vaa
        LOOK = o['LOOK']; NB = LOOK + 1; assert NB <= 7
        vWo, vFG, vFD, vHo = vS0, vS1, SP + 5, 0
        self.vWo, self.vFG, self.vFD = vWo, vFG, vFD
        m2w, m2c = AV, AV + 24
        FL = self.FL = AK
        cur = self.cur = [0]
        TOK = [(0, 3, 16), (3, 2, 256), (5, 1, 128)]
        def cvt8(d, s_):
            for i in range(8): a(f'v_cvt_pk_bf16_f32 v{d+i}, v{s_+2*i}, v{s_+2*i+1}')
        self.cvt8 = cvt8
        fq = self.fq = [(m, i) for m in range(3) for i in range(4)]
        held = self.held = ([], [])
        def f_src(m, i, far=0):
            q = (i * 8 * 7168 + far * 4 * 32 * 7168, i * 4096 + far * 4 * 16384)[m == 2]
            S(sU, ('fg', 'fd')[m == 2] + ' + q', q=q & 0xffffffff)
            return (vFG, (rWG, rWU)[m]) if m < 2 else (vFD, rWD)
        def f_lds(m, i): return (L_GU + m * 32768 if m < 2 else L_DN) + i * 1024
        def f_ld(g, k, far, count=True):
            m, i = held[g][k]
            v, r = f_src(m, i, far * (1 - 2 * g))
            a(f'buffer_load_dwordx4 {vr(FL + 8*k + 4*far, 4)}, v{v}, {sr(r, 4)}, s{sU} offen nt')
            if count: vm.issue('ffn')
        sym = self.sym = []
        def ffn_reg(n=1):
            for _ in range(n):
                m, i = fq.pop(0)
                r0 = 8 * len(held[1]) + 4 * len(sym); assert r0 < 64 and (r0 < 32 or o['m2c'] >= 3)
                assert o['m2c'] != 4 or r0 < 32 or 'm2pub' in self.marks
                v, r = f_src(m, i)
                self.bl(FL + r0, 4, v, r, sU, 0, 'nt', 'ffr')
                sym.append((m, i, FL + r0))
        def ffn_dma(n=1):
            for _ in range(n):
                m, i = fq.pop(0)
                v, r = f_src(m, i)
                S('m0', 'w1k*4 + q', q=f_lds(m, i))
                self.dma(v, r, sU, 0, 'nt', 'ffn' if m < 2 or not o['dnsplit'] else 'fdn')
        self.ffn_reg, self.ffn_dma, self.f_lds = ffn_reg, ffn_dma, f_lds
        for _ in range(o['fA']): held[1].append(fq.pop(0))
        def m2_ld(i):
            if i == 0:
                S(sU, '((x & 3)*8 + w)*64'); self.va(m2c + 4, [(3, 3, 2)], sU, 0, m2c + 5)
                for k in range(4): a(f'global_load_ushort v{m2c+k}, v{m2c+4}, {sr(pC, 2)} offset:{16*k}'); vm.issue('m2')
            S(sU, 'm2 + q', q=i * 8 * 12288)
            self.bl(m2w + 4 * i, 4, self.vWM, rWM, sU, 0, 'nt', 'm2')
        wslot = lambda p: p
        def wo_dma(p, back=0):
            S(sU, '(y2 ^ q) + wo' + (' - 65536' if back else ''), q=p * 131072)
            S('m0', 'w1k + q', q=wslot(p) * 8192 - 4096 * back)
            self.dma(vWo, rWO, sU, 0, o.get('wom', ''), 'wo')
        self.wo_dma = wo_dma
        def poison(backs, t):
            a(f'v_mov_b32 v{t}, -1\nv_mov_b32 v{t+1}, -1\nv_mov_b32 v{t+2}, -1\nv_mov_b32 v{t+3}, -1')
            for back in backs:
                S(T6, '((rt*8 + w - q)*16 + cb)*256 + ST', q=4 * back); self.va(t + 4, [(0, 6, 4)])
                self.bs(t, 1, t + 4, rWS, T6, 0, 'sc1')
            S(T6, 'rt*16384 + cb*512 + XS'); self.va(t + 4, [(0, 5, 16), (5, 1, 8192)], None, 0, t + 5)
            a(f's_cmp_lg_u32 s{sWAVE}, 5\ns_cbranch_scc1 L_NOPO')
            self.bs(t, 4, t + 4, rWS, T6, 0, 'sc1', count=False)
            a('L_NOPO:')
        self.poison = poison
        def kv_prep():
            vPA, vPB, ones = AK + 28, AK + 29, AK + 24; assert o['fA'] <= 3
            self.va(vPB, [(0, 1, 8), (2, 2, 16), (4, 1, 64), (1, 1, 128), (5, 1, 256)], None, 0, vPA)
            S(T0, 'w*4096 + L_PHK'); a(f'v_add_u32 v{vPA}, s{T0}, v{vPB}')
            S(T0, 'kh*8192 + L_HV'); a(f'v_add_u32 v{vPB}, s{T0}, v{vPB}')
            for i in range(4): a(f'v_mov_b32 v{ones+i}, 0x3f803f80')
            S(T0, '((hp*8 + w)*32 + r1)*1024 + KVP'); S(T2, 'T0 + 16384')
            S(T3, '(hp*8 + w)*1024 + ZP'); S(T1, 'r1*64 + T3')
        seq = []
        for sg in range(36): seq += [(t, h, sg) for t in 'kqv' for h in range(2)]
        for sg in range(36, 40): seq += [('k', h, sg) for h in range(2)]
        for sg in range(36, 40): seq += [(t, h, sg) for t in 'qv' for h in range(2)]
        for h in range(2): seq += [('k', h, sg) for sg in range(40, 64)]
        for t in 'vq':
            for sg in range(40, 64): seq += [(t, h, sg) for h in ((1, 0) if (t, sg) == ('q', 63) else (0, 1))]
        bA, bH, bQ = o['bA'], o['bH'], 335
        assert bA >= 271
        bars = [24 * k - 1 for k in range(1, 10)] + [223, 239, 253, bA, bH, bQ]
        first, last = {}, {}
        for n, (t, h, sg) in enumerate(seq):
            first.setdefault(f'{t}{sg >> 2}', n); last[f'{t}{sg >> 2}'] = n; last[('A', sg)] = n
        if not o['lateB']: a(f's_cmp_ge_u32 s{sWAVE}, 4\ns_cbranch_scc1 L_HELP')
        a(f's_setprio {o["prio"]}')
        q_hok = list(vm.q)
        ACC = dict(k=AK, v=AV, q=AQ)
        nxt = [0]; late = []
        def a_load():
            while late: a(late.pop(0))
            sg = nxt[0]; nxt[0] += 1
            assert sg < 16 or cur[0] > bars[0]
            if o.get('noA') and sg >= 12: return
            self.bl(AR + 4 * (sg % 24), 4, SP + 1, rWS, T3, (sg % 4) * 1024, 'sc1', ('A', sg))
            if sg % 4 == 3: late.extend([f's_add_u32 s{T3}, s{T3}, 16384', f's_and_b32 s{T3}, s{T3}, 0x3ffff'])
        def b_read(n):
            t, h, sg = seq[n]
            s = sg & 3
            off = ((sg >> 2) % 6) * 8192 + (s >> 1) * 4096 + (s & 1) * 1024
            d = RING + 4 * (n % NB); v = vB + 2 * 'kvq'.index(t) + h
            self.tr(d, v, off, ('B', n)); self.tr(d + 2, v, off + 2048, ('B', n))
        self.nopk = True
        stk, stv = Stream(self), Stream(self)
        for h in range(2):
            for q in range(2):
                stk.cap(lambda: [a(f'v_cvt_pk_bf16_f32 v{AK+16*h+4*q+i}, v{AK+16*h+8*q+2*i}, v{AK+16*h+8*q+2*i+1}') for i in range(4)])
                stk.add(lambda h=h, q=q: self.dw('ds_write_b128', vHo, AK + 16 * h + 4 * q, 4, q * 1024, f'kh{h}'), o['wcost'], 1)
            stk.mark(f'kh{h}')
            if h == 0:
                stk.cap(lambda: a(f'v_subrev_u32 v{vHo}, {L_QH - L_HV}, v{vHo}'))
                stk.until(288 + o['kdel'])
        stk.until(bH + 1)
        stk.cap(lambda: (S(T1, 'rb*2048 + L_HV'), self.va(vHo, TOK, T1, 0, vT)))
        for h in range(2):
            for q in range(2):
                stv.cap(lambda: [a(f'v_cvt_pk_bf16_f32 v{AV+16*h+4*q+i}, v{AV+16*h+8*q+2*i}, v{AV+16*h+8*q+2*i+1}') for i in range(4)])
                stv.add(lambda h=h, q=q: self.dw('ds_write_b128', vHo, AV + 16 * h + 4 * q, 4, h * 8192 + q * 1024, 'vst'), o['wcost'], 1)
        stv.cap(kv_prep)
        if o['m2c'] == 0:
            stv.sleep(4)
            stv.add(lambda: lg.wait('vst'))
            for i in range(4): stv.add(lambda i=i: m2_ld(i), 0, 1); stv.sleep(o.get('fgap', 4))
        while nxt[0] < o['A00']: a_load()
        vm.wait(('W', 3 if o['xorw'] else 1))
        a('s_barrier')
        self.stamp('hok')
        if not nxt[0]: a_load()
        for n in range(LOOK): b_read(n)
        while nxt[0] < o['A0']: a_load()
        seen = set(); lpend = []; owe = [0]
        Apos = list(o['Apos']); assert o['A0'] + sum(Apos) == 64
        for n in range(384):
            t, h, sg = seq[n]; cur[0] = n
            if ('A', sg) not in seen:
                assert sg < nxt[0]
                vm.wait(('A', sg)); seen.add(('A', sg))
            lg.wait(('B', n))
            d = ACC[t] + 16 * h
            a(f'v_mfma_f32_32x32x16_bf16 {vr(d, 16)}, {vr(RING + 4*(n % NB), 4)}, {vr(AR + 4*(sg % 24), 4)}, ' + (vr(d, 16) if sg else '0'))
            if self.prof and o.get('ls'):
                l0, l1, lst = o['ls']
                if lpend and n >= lpend[0][0]:
                    _, r_, k_ = lpend.pop(0); a(f'v_writelane_b32 v255, s{r_}, {k_}')
                if l0 <= n < l1 and (n - l0) % lst == 0:
                    r_ = sPL + 2 * (self.nst % 4)
                    a.items.append(('raw', f'    s_memtime {sr(r_, 2)}')); lpend.append((n + 4, r_, self.nst)); self.stnames.append(f'n{n}'); self.nst += 1
            def a_try():
                p, r = divmod(n, 24)
                ao = o['aoff'] if p else 0; r -= ao
                if n < 240 and r >= 0 and (r + 1) * Apos[p] // (24 - ao) > r * Apos[p] // (24 - ao): owe[0] += 1
                if owe[0] and (nxt[0] < 24 or last[('A', nxt[0] - 24)] <= n): a_load(); owe[0] -= 1
                elif late: a(late.pop(0))
            if o['apos'] == 0: a_try()
            bud = [o['kbud'], 1]
            if n >= 264 + o['kdel']: stk.pull(bud, bud[0])
            bud = [o['vbud'], 1]
            if n > bQ + 2: stv.pull(bud, bud[0])
            if n + LOOK < 384: b_read(n + LOOK)
            if o['apos'] == 1: a_try()
            if n in bars:
                if n in (bA, bH):
                    assert f'kh{int(n == bH)}' in self.marks
                    lg.wait(f'kh{int(n == bH)}')
                    if 'prio2' in o and n == bA: a(f's_setprio {o["prio2"]}')
                if not (o.get('noB') and n < 200): a('s_barrier')
                if o.get('gst'): self.stamp(f'b{n}')
        assert not (stk.q or stv.q) and nxt[0] == 64
        self.stamp('gemm1')
        vq, wph = AR + 16, AR + 24
        S(T4, 'rb*2048 + L_QH'); a(f'v_add_u32 v{vHo}, s{T4}, v{vL16}')
        va(vT, [(2, 2, 64), (4, 1, 32), (0, 2, 8), (5, 1, 256)], None, L_WPHI)
        for s in range(2):
            for u in range(2): self.tr(wph + 4 * s + 2 * u, vT, s * 1024 + u * 512)
        cvt8(AR, AQ + 16)
        for q in range(2): self.dw('ds_write_b128', vHo, AR + 4 * q, 4, q * 1024)
        cvt8(vq, AQ)
        if o['m2c'] == 1:
            for i in range(4): m2_ld(i)
        a('s_setprio 0')
        a('s_branch L_JOIN')
        a('L_HELP:')
        vm.q = list(q_hok) + ['ffn'] * (2 * o['fF']); lg.reset()
        vm.wait(('W', 3 if o['xorw'] else 1))
        a('s_barrier')
        vis = {}
        pace = [1]
        def w_sec(t, n):
            if o.get('noW'): return
            for back in (1, 0):
                S(sU, '((u0 + n) & 15)*UR + wb + q', n=n, q=(dict(q=0, k=2048, v=4096)[t] - back * 4 * 49152) & 0xffffffff)
                S('m0', 'w1k + q', q='kvq'.index(t) * REG + (n % 6) * 8192 - back * 4096)
                self.dma(vWd, rW, sU, 0, '', ('W', t, n))
                if o['wpace'] and pace[0]: a(f's_waitcnt vmcnt({o["wpace"]})')
        for n, t in self.wq: w_sec(t, n)
        if o['lateB']:
            lg.wait_all(); self.bpoll()
        ka, wp2, pa, pb, ee, vPW = AR, AR + 16, AR + 32, AR + 48, AR + 64, AR + 80
        va(vT, [(2, 2, 64), (4, 1, 32), (0, 2, 8), (5, 1, 256)], None, L_WPHI)
        for hs in range(4):
            for u in range(2): self.tr(wp2 + 4 * hs + 2 * u, vT, hs * 1024 + u * 512)
        S(T1, 'rb*1024 + L_PHK'); va(vPW, TOK, T1)
        def touch(boxes):
            a('s_waitcnt lgkmcnt(0)')
            for q, b in enumerate(boxes):
                a(f's_load_dword s{sPL + 2*q}, {sr(rWS, 2)}, s{sINB} offset:{b * 512} glc')
                a(f's_load_dword s{sPL + 2*q + 1}, {sr(rWS, 2)}, s{sINB} offset:{b * 512 - 256} glc')
        wsched = {int(k): v.split() for k, v in o['wsched'].items()}
        for k in range(1, 5): wsched[k] = [f'{t}{k + 5}' for t in 'kqv'] + wsched.get(k, [])
        need = {}
        for u in first:
            k = len([b for b in bars if b < first[u] - LOOK])
            if k: need.setdefault(k, []).append(u)
        done = {f'{t}{n}' for n in range(6) for t in 'kvq'}
        def h_bar(k):
            if k < 5: vm.wait(('W', k + 1))
            for u in need.get(k, []):
                assert u in done, (u, k)
                vm.wait(('W', u[0], int(u[1:])))
            if not (o.get('noB') and k < 9): a('s_barrier')
            for u in wsched.get(k, []):
                assert last[f'{u[0]}{int(u[1:]) - 6}'] <= bars[k - 1], (u, k)
                w_sec(u[0], int(u[1:])); done.add(u)
        hm, hc, ha, ht = AV, AQ, AQ + 8, AQ + 16
        if o.get('fP'): S(T4, o['fP'])
        if o['m2c'] == 4:
            hc, ha, ht = RING + 8, AR + 44, vT + 4
            def m2h(i):
                S(sU, 'T6 + q', q=i * 12288)
                self.bl(hm + 4 * i, 4, self.vWM, rWM, sU, 0, 'nt', 'm2h')
        if o['m2c'] >= 3:
            S(T5, o['m2k3'])
            assert o['m2c'] == 4
            S(sU, '((x & 3)*4 + w - 4)*128'); self.va(ht, [(3, 3, 16)], sU)
            a(f'global_load_dwordx4 {vr(hc + 4, 4)}, v{ht}, {sr(pC, 2)}'); vm.issue('c2')
            va(self.vWM, [(3, 3, 8 * 12288), (0, 3, 16)])
            S(T6, '((x & 3)*4 + w - 4)*(64*12288) + (j*2 + (x >> 2))*128 + 4096')
        for k in range(1, 14):
            if k == 13: lg.wait_all()
            if o['m2c'] == 3 and k == o['m2e'] + 1: lg.wait_all()
            h_bar(k)
            if o['m2c'] == 4 and k == o['m2k0']:
                for i in range(o['m2n0']): m2h(i)
            if o['m2c'] == 4 and k == 3:
                vm.wait('c2')
                for i in range(4): self.unpack(hc + 2 * i, hc + 2 * i + 1, hc + 4 + i) if i < 3 else (a(f'v_lshlrev_b32 v{hc+6}, 16, v{hc+7}'), a(f'v_and_b32 v{hc+7}, s{sMASK}, v{hc+7}'))
                for i in range(8): self.silu(hc + i, ht + (i & 1))
            if o['m2c'] == 3:
                nb = o['m2nb']
                for b in range(nb):
                    if k <= o['m2g'] - o.get('m2lag', 2) and k - b * o['m2db'] >= 1:
                        a(f's_cmp_lg_u32 s{T5}, {k - b * o["m2db"]}\ns_cbranch_scc1 L_NM2_{k}_{b}')
                        for i in range(b * 8 // nb, (b + 1) * 8 // nb):
                            S(sU, 'T6 + q', q=i * 8 * 12288)
                            a(f'buffer_load_dwordx4 {vr(hm + 4*i, 4)}, v{self.vWM}, {sr(rWM, 4)}, s{sU} offen nt')
                        a(f'L_NM2_{k}_{b}:')
                if k == 3:
                    vm.wait('c2')
                    for i in range(8):
                        a(f'v_lshlrev_b32 v{hc+i}, 16, v{hc+i}')
                        self.silu(hc + i, ht + (i & 1))
                g0 = o['m2g']
                ke = o['m2e']
                if g0 <= k <= ke:
                    if k == g0:
                        vm.wait(('W', 'k', k + 4 if o.get('m2lag', 2) == 2 else k + 5))
                        mops = self.gemv_ops([hm + 4 * i for i in range(8)], [hc + i for i in range(8)], ha, ht, ht + 1, False)
                    if o.get('gprio'): a('s_setprio 3')
                    for _ in range(len(mops) if k == ke else 144 // (ke + 1 - g0)): a(mops.pop(0))
                    if o.get('gprio'): a('s_setprio 0')
                    if k == ke: self.dw('ds_write_b32', self.vGA, ha, 1, L_M2 - MISC)
                if k == ke + 1:
                    a(f"""s_cmp_lg_u32 s{sWAVE}, 4
                    s_cbranch_scc1 L_M2F
                    ds_read_b128 {vr(ha, 4)}, v{self.vL32S} offset:{L_M2 - MISC + 1024}""")
                    S(T0, '((j*2 + (x >> 2))*4 + (x & 3))*512 + MODP2')
                    a(f"""s_waitcnt lgkmcnt(0)
                    v_add_f32 v{ha}, v{ha}, v{ha+1}
                    v_add_f32 v{ha+2}, v{ha+2}, v{ha+3}
                    v_mov_b32 v{ha+1}, s{sTAG}
                    v_add_f32 v{ha}, v{ha}, v{ha+2}""")
                    self.bs(ha, 2, self.vL8, rWS, T0, 0, 'sc1', count=False)
                    a('L_M2F:')
            if o.get('fP') and k <= 8:
                a(f's_cmp_lg_u32 s{T4}, {k}\ns_cbranch_scc1 L_NFP_{k}')
                for i in range(o.get('fPn', o['fA'])):
                    for far in range(2): f_ld(1, i, far, False)
                a(f'L_NFP_{k}:')
            if k == 2 and o['poisat'] == 0: poison((0, 1), AR + 88); S(T6, '((x & 3)*4 + w - 4)*(64*12288) + (j*2 + (x >> 2))*128 + 4096')
            if k in (1, 3, 5) and o.get('touch', 1): touch({1: (1, 7), 3: (2, 3), 5: (5, 6)}[k])
            if k == o['tlbk'] and o['tlb'] & 2:
                a(f's_cmp_lg_u32 s{sWAVE}, 7\ns_cbranch_scc1 L_NTLB\ns_waitcnt lgkmcnt(0)')
                S(T0, '(j & 15)*2097152'); S(T1, '(j & 3)*2097152'); S(T2, '(j & 1)*2097152')
                a(f's_load_dword s{sPL}, {sr(rWS, 2)}, s{T0} offset:0')
                for q, r in enumerate((rWG, rWU, rWD)): a(f's_load_dword s{sPL + 1 + q}, {sr(r, 2)}, s{T1} offset:0')
                a(f's_load_dword s{sPL + 4}, {sr(rOUT, 2)}, s{T2} offset:0')
                a(f's_load_dword s{sPL + 5}, {sr(rWO, 2)}, 0')
                a('L_NTLB:')
            if k == 4 and o.get('tm2'):
                S(T0, '((j*2 + (x >> 2))*4 + (x & 3))*512 + (w - 4)*128 + MODP2')
                a('s_waitcnt lgkmcnt(0)')
                for q in range(2): a(f's_load_dword s{sPL + q}, {sr(rWS, 2)}, s{T0} offset:{q * 64} glc')
            if k == 6 and o['tz']:
                S(T0, '(hp*8 + w - 4)*1024 + r1*64 + ZP'); S(T1, '(rt*16 + cb)*64 + UP')
                a('s_waitcnt lgkmcnt(0)')
                for q in range(2): a(f's_load_dword s{sPL + q}, {sr(rWS, 2)}, s{T0} offset:{q * 4096} glc')
                a(f's_load_dword s{sPL + 2}, {sr(rWS, 2)}, s{T1} offset:0 glc')
            if k == 12: kv_prep()
            if k == 8 and o.get('touch', 1):
                S(T0, 'fs*8192 + (w - 4)*256 + HGR')
                a('s_waitcnt lgkmcnt(0)')
                for q in range(4): a(f's_load_dword s{sPL + q}, {sr(rWS, 2)}, s{T0} offset:{q * 2048 + 1024 + 252} glc')
        pace[0] = 0
        def logits(h, pp):
            if o.get('hprio'): a(f's_setprio {o["hprio"]}')
            for q in range(2): self.r128(ka + 4 * q, vHo, q * 1024, ('kh', q))
            if h == 0: a(f'v_subrev_u32 v{vHo}, {L_QH - L_HV}, v{vHo}')
            for q in range(2):
                lg.wait(('kh', q))
                a(f'v_mfma_f32_32x32x16_bf16 {vr(pp, 16)}, {vr(wp2 + 8*h + 4*q, 4)}, {vr(ka + 4*q, 4)}, ' + (vr(pp, 16) if q else '0'))
            if o.get('hprio') and not o.get('hlong'): a('s_setprio 0')
        logits(0, pa)
        self.stamp('klog')
        hs = Stream(self)
        for h, pp in ((0, pa), (1, pb)):
            hs.cap(lambda: self.softmax_pm(pp, ee, ee, vT))
            k = max(i for i, it in enumerate(hs.q) if it[0] == 4.75) - 8
            tailq = hs.q[k + 1:]; hs.q = hs.q[:k + 1]
            wr = lambda fb, h=h: (0, 0, lambda: self.dw('ds_write_b128', vPW, ee + 4 * fb, 4, h * 16384 + fb * 4096, ('phk', h)))
            hs.q += [wr(0)] + tailq[:4] + [wr(1), wr(2)] + tailq[4:] + [wr(3)]
            if h == 0:
                n1 = len(hs.q)
                hs.add(lambda: None)
        hs.q.insert(n1 + 34, (0, 0, lambda: lg.wait(('phk', 0))))
        ex = {}
        def put(i, fn):
            while i in ex: i += 1
            ex[i] = fn
        nq = int(n1 * o['hq'])
        put(nq, lambda: h_bar(15))
        nh = int(n1 * o['hh'])
        put(nh, lambda: (h_bar(14), logits(1, pb)))
        g1, g2 = o['hgap']
        if o.get('hpf'):
            put(int(n1 * o['hpf'][0]), lambda: a('s_setprio 3')); put(int(n1 * o['hpf'][1]), lambda: a('s_setprio 0'))
        ff = [(lambda k=k, far=far: f_ld(1, k, far)) for k in range(o['fA']) for far in range(2) if not (o.get('fP') and k < o.get('fPn', 9)) and k >= o['fF']]
        pre = [(lambda k=k: m2_ld(k)) for k in range(4)] if o['m2c'] < 2 else []
        if o['m2c'] == 4:
            for i in range(o['m2n0'], 8): put(3 + o['m2gap'] * (i - o['m2n0']), lambda i=i: m2h(i))
            self.m2h = (hm, hc, ha, ht)
        npre = o['fpre'] - len(pre)
        pre += ff[:npre]; ff = ff[npre:]
        for k, fn in enumerate(pre): put(nh + 5 + g1 * k, fn)
        wl = self.wo_left = [6, 7, 8, 9, 10, 11] + [12, 13, 14, 15] + [0, 1, 2, 3, 4, 5]
        post = []
        for k in range(o['woA']): post += [lambda: wo_dma(wl[0], 1), lambda: wo_dma(wl.pop(0))]
        post = post[:8] + ff + post[8:] if o.get('wofirst', 1) else ff + post
        for k, fn in enumerate(post): put(nq + 5 + g2 * k, fn)
        for i, (v_, l_, fn) in enumerate(hs.q):
            if i in ex: ex.pop(i)()
            fn()
        for i in sorted(ex): ex[i]()
        self.nopk = False
        S(T4, 'rb*2048 + L_QH'); a(f'v_add_u32 v{vHo}, s{T4}, v{vL16}')
        assert wph == wp2 + 8
        if o.get('hprio'): a('s_setprio 0')
        self.stamp('ksm')
        self.m2after = vm.q[::-1].index('m2h') if 'm2h' in vm.q else 60
        a('L_JOIN:')
        vm.q = ['m2'] * (8 if o['m2c'] < 2 else 0); lg.q = [None]
        self.m2_ld = m2_ld
        self.vHo = vHo

    def middle(self):
        a, vm, lg, o, S, va = self.a, self.vm, self.lg, self.o, self.S, self.vaa
        vL8, vL32S, vGA, vHo, ffn_reg = self.vL8, self.vL32S, self.vGA, self.vHo, self.ffn_reg
        pp, ee, ph, vq, wph = AQ, AQ + 16, AR, AR + 16, AR + 24
        fA, fB, kvd, zd, ones = AR + 32, AR + 48, AR + 80, AR + 88, AK + 24
        kp, zz, zf, kf, k2 = AR + 32, AR + 40, AR + 44, AR + 60, AR + 76
        m2w, m2a, m2c, m2t = AV, AV + 16, AV + 24, AV + 28
        vPA, vPB, vPC, vKP, vXF = AK + 28, AK + 29, RING + 18, RING + 19, RING + 20
        md, wr1 = RING, RING + 4
        self.md, self.wr1 = md, wr1
        wl = self.wo_left
        wo1 = lambda: self.wo_dma(wl.pop(0))
        fw = o['fwin']
        self.barrier()
        self.stamp('phik')
        def kvm(u):
            lg.wait(('kv', u))
            for db in range(2):
                a(f'v_mfma_f32_16x16x32_bf16 {vr(kvd + 4*db, 4)}, {vr(fA + 4*u, 4)}, {vr(fB + 8*u + 4*db, 4)}, ' + ('0' if u == 0 else vr(kvd + 4*db, 4)))
            a(f'v_mfma_f32_16x16x32_bf16 {vr(zd, 4)}, {vr(fA + 4*u, 4)}, {vr(ones, 4)}, ' + ('0' if u == 0 else vr(zd, 4)))
        for ts in range(4):
            self.tr(fA + 4 * ts, vPA, ts * 1024, ('kv', ts)); self.tr(fA + 4 * ts + 2, vPA, ts * 1024 + 512, ('kv', ts))
            for db in range(2):
                for rd in range(2): self.tr(fB + 8 * ts + 4 * db + 2 * rd, vPB, ts * 2048 + db * 1024 + rd * 512, ('kv', ts))
            if ts >= 2: kvm(ts - 2)
        kvm(2); kvm(3)
        a(f"""s_cmp_lt_u32 s{sWAVE}, 4
        s_cbranch_scc1 L_NOQX
        ds_read_b128 {vr(vq, 4)}, v{vHo}
        ds_read_b128 {vr(vq + 4, 4)}, v{vHo} offset:1024
        L_NOQX:""")
        self.bs(kvd, 4, vL16, rWS, T0, 0, 'sc1', 'kvs')
        self.bs(kvd + 4, 4, vL16, rWS, T2, 0, 'sc1', 'kvs')
        a('s_mov_b32 exec_lo, 0x00010001')
        a('s_mov_b32 exec_hi, 0x00010001')
        self.bs(zd, 4, vL, rWS, T1, 0, 'sc1', 'kvs')
        a('s_mov_b64 exec, -1')
        lg.wait_all()
        a(f'v_mfma_f32_32x32x16_bf16 {vr(pp, 16)}, {vr(wph, 4)}, {vr(vq, 4)}, 0')
        a(f'v_mfma_f32_32x32x16_bf16 {vr(pp, 16)}, {vr(wph + 4, 4)}, {vr(vq + 4, 4)}, {vr(pp, 16)}')
        self.stamp('kvst')
        if o['wo0']:
            a('s_barrier')
            for _ in range(o['wo0']): assert wl[0] >= 6; wo1()
        if o['poisat'] == 1: self.poison((0,), AR + 84)
        if o['m2c'] == 2:
            for i in range(4): self.m2_ld(i)
        va(vPC, [(0, 3, 32 * 4096), (3, 1, 4 * 4096)])
        S(T4, '(wg & 0x1b)*4096 + (r1 >> 1)*64 + (r1 & 1)*4 + INB + 512')
        va(vKP, [(3, 3, 1024), (0, 3, 16)])
        va(vXF, [(0, 3, 16), (5, 1, 8)])
        qm, qs = o['qmid'], o['qsplit']
        MR = o['mrot']
        def halves(fc, fh):
            L1, L2 = a.label('L_H'), a.label('L_J')
            a(f's_cmp_ge_u32 s{sWAVE}, 4\ns_cbranch_scc1 {L1}')
            q, w_ = list(vm.q), list(wl)
            fc()
            a(f's_branch {L2}\n{L1}:')
            vm.q = q; wl[:] = w_
            fh()
            a(f'{L2}:')
        def m2_pub(off):
            a(f"""s_cmp_lg_u32 s{sWAVE}, 3
            s_cbranch_scc1 L_M2F
            ds_read_b128 {vr(ha, 4)}, v{vL32S} offset:{off + 1024}""")
            S(T5, '((j*2 + (x >> 2))*4 + (x & 3))*512 + MODP2')
            a(f"""s_waitcnt lgkmcnt(0)
            v_add_f32 v{ha}, v{ha}, v{ha+1}
            v_add_f32 v{ha+2}, v{ha+2}, v{ha+3}
            v_mov_b32 v{ha+1}, s{sTAG}
            v_add_f32 v{ha}, v{ha}, v{ha+2}""")
            self.bs(ha, 2, vL8, rWS, T5, 0, 'sc1', count=False)
            a('L_M2F:')
            self.marks.add('m2pub')
        if o['m2c'] == 4:
            hm, hc, ha, ht = self.m2h
            hops = self.gemv_ops([hm + 4 * i for i in range(8)], [hc + i for i in range(8)], ha, ht, ht + 1, True)
        if MR:
            def g_():
                a(f's_waitcnt vmcnt({self.m2after + 3})')
                for s_ in hops: a(s_)
                a(f'ds_write_b32 v{vGA}, v{ha} offset:{L_A1 - MISC}\ns_waitcnt lgkmcnt(0)')
            halves(lambda: self.softmax_pm(pp, ee, ph, vT, part=1, split=qm), g_)
        else: self.softmax_pm(pp, ee, ph, vT, part=1, split=qm)
        vm.wait('kvs')
        a('s_barrier')
        self.push(vPC, T4, 16, vPB, 'L_PC')
        self.stamp('kvpub')
        if o['poisat'] == 2: self.poison((0,), AR + 84)
        exps = lambda: [a(f'v_exp_f32 v{r+i}, v{r+i}') for i in range(qm, qs) for r in (ee, pp)]
        if MR: m2_pub(L_A1 - MISC)
        else: self.weave(exps, [wo1] * o['wowin'][0])
        S(T0, '(hp*16 + r1)*16384 + w*128 + KVP'); S(T1, 'T0 + 8192')
        S(T2, '(hp*16 + r1)*1024 + w*128 + KIN'); S(T4, 'T4 + 6*512')
        def sel_prep2():
            vDr, vHs, vSt = RING + 7, RING + 26, RING + 27
            S(T6, 'w*64')
            va(vDr, [(2, 1, 512), (3, 1, 4096), (5, 1, 2048), (2, 2, 64), (4, 1, 32), (0, 2, 8)])
            a(f'v_xor_b32 v{vDr}, s{T6}, v{vDr}'); a(f'v_add_u32 v{vDr}, {L_DN}, v{vDr}')
        def sel_prep():
            vGr, vXs = RING + 6, RING + 24; assert o['AD2'] <= 8
            S(T6, '(w >> 2)*32768 + (w & 3)*32 + L_GU')
            va(vGr, [(4, 2, 8192), (2, 2, 128), (3, 2, 32), (0, 2, 8)]); a(f'v_xor_b32 v{vGr}, s{T6}, v{vGr}')
            S(T6, 'kq*2048 + XS'); va(vXs, [(0, 3, 16), (4, 2, 512)], T6)
            va(vXs + 1, [(0, 4, 512)], None, XS + 256)
            S(sZ0, 'fs*8192 + HGR'); S(sZ1, '(kq*8 + w)*256 + z0')
            S(sZ2, '((rt*8 + w)*16 + cb)*256 + ST')
            S(sZ3, '((rt >> 2)*2 + (rt & 3)*64)*4096 + (cb >> 1)*64 + (cb & 1)*4 + INB + 1536')
            S(sROW0, '(rt*8 + w)*32768 + cb*128'); S(sROW1, 'row0 + 16384')
        nw = o['wowin'][0] + o['wowin'][1]
        if MR: self.inbox(1, 2, work=lambda: (halves(lambda: self.weave(lambda: (exps(), self.softmax_pm(pp, ee, ph, vT, part=2, split=qs)), [wo1] * nw),
                                                     lambda: self.weave(lambda: (self.softmax_pm(pp, ee, ph, vT, part=1, split=qm), exps()), [wo1] * nw)), self.stamp('cw')))
        else: self.inbox(1, 2, work=lambda: (self.weave(lambda: self.softmax_pm(pp, ee, ph, vT, part=2, split=qs), [wo1] * o['wowin'][1]), self.stamp('cw')))
        a('s_barrier')
        self.stamp('kvok')
        self.bl(kp, 4, vKP, rWS, T0, 0, 'sc1', 'kp')
        self.bl(kp + 4, 4, vKP, rWS, T1, 0, 'sc1', 'kp')
        self.bl(zz, 4, vL16, rWS, T3, 0, 'sc1', 'z')
        if o['wrat'] == 0:
            S(T6, 'cb*128'); self.va(wr1, [(0, 2, 2), (5, 1, 8), (4, 1, 16), (2, 2, 32)], T6, 0, md)
            a(f'global_load_ushort v{wr1}, v{wr1}, {sr(pWR, 2)}'); vm.issue()
        if fw[0] or o['poisat'] == 5: a('s_barrier')
        if o['poisat'] == 5: self.poison((0,), AR + 84)
        ffn_reg(fw[0])
        if MR: halves(lambda: None, lambda: self.softmax_pm(pp, ee, ph, vT, part=2, split=qs))
        S(T1, 'w*32 + L_ZF'); va(vT + 2, [(0, 2, 8), (5, 1, 4)], T1)
        S(T1, 'w*1024 + L_KVF'); va(vT + 1, [(0, 4, 16), (5, 1, 512), (4, 1, 8)], T1)
        S(T1, 'kh*128 + L_ZF'); va(vT + 3, [(5, 1, 16)], T1)
        S(T1, 'kh*4096 + L_KVF'); a(f'v_add_u32 v{vPA}, s{T1}, v{vL16}')
        M2 = o['m2c'] < 3
        m2ops = []; k = o.get('m2k', 24)
        if M2:
            vm.wait('m2')
            for i in range(4):
                a(f'v_lshlrev_b32 v{m2c+i}, 16, v{m2c+i}')
                self.silu(m2c + i, m2t + (i & 1))
            m2ops = self.gemv_ops([m2w + 4 * i for i in range(4)], [m2c + i for i in range(4)], m2a, m2t, m2t + 1, True)
        for s_ in m2ops[:k]: a(s_)
        if o['m2c'] == 4 and not MR:
            a(f's_cmp_lt_u32 s{sWAVE}, 4\ns_cbranch_scc1 L_HG1')
            for s_ in hops: a(s_)
            a(f'ds_write_b32 v{vGA}, v{ha} offset:{L_M2 - MISC}\nL_HG1:')
        def red4(r, ctls):
            for i in range(2): a(f'v_permlane32_swap_b32 v{r+i}, v{r+2+i}')
            self.pk('add', r, r, r + 2)
            for ctl in ctls:
                for i in range(2): self.dpp('v_add_f32', r + i, r + i, r + i, ctl)
            for i in range(2): a(f'v_mov_b32 v{r+2+i}, v{r+i}')
            for i in range(2): a(f'v_permlane16_swap_b32 v{r+i}, v{r+2+i}')
            self.pk('add', r, r, r + 2)
            a(f'v_cvt_pk_bf16_f32 v{r}, v{r}, v{r+1}')
        vm.wait('kp')
        self.pk('add', kp, kp, kp + 4); self.pk('add', kp + 2, kp + 2, kp + 6)
        red4(kp, ['row_ror:8'])
        a(f"""v_mov_b32 v{kp+1}, s{sTAG}
        s_mov_b32 exec_lo, 0xff
        s_mov_b32 exec_hi, 0xff""")
        self.bs(kp, 2, vXF, rWS, T2, 0, 'sc1')
        a('s_mov_b64 exec, -1')
        if o['C2dir'] == 0:
            self.barrier()
            self.push(vPC, T4, 16, vPB, 'L_PC2')
        if o['m2c'] == 4 and not MR: m2_pub(L_M2 - MISC)
        self.stamp('c2pub')
        if o['poisat'] == 6: self.poison((0,), AR + 84)
        num, den = pp, ee
        vm.wait('z')
        self.weave(lambda: (red4(zz, ['row_ror:4', 'row_ror:8']), [a(s_) for s_ in m2ops[k:]]), [wo1] * o['wowin'][2])
        self.dw('ds_write_b32', vT + 2, zz, 1)
        if M2: self.dw('ds_write_b32', vGA, m2a, 1, L_M2 - MISC)
        self.barrier()
        for fb in range(4): self.r128(zf + 4 * fb, vT + 3, fb * 32)
        if M2: self.r128(m2a, vL32S, L_M2 - MISC); self.r128(m2a + 4, vL32S, L_M2 - MISC + 1024)
        S(T5, '((j*2 + (x >> 2))*4 + (x & 3))*512 + MODP2')
        lg.wait_all()
        S(T0, '(hp*8 + w)*2048 + KIN')
        def wr_load():
            S(T6, 'cb*128'); self.va(wr1, [(0, 2, 2), (5, 1, 8), (4, 1, 16), (2, 2, 32)], T6, 0, md)
            a(f'global_load_ushort v{wr1}, v{wr1}, {sr(pWR, 2)}'); vm.issue()
        def den_work():
            for fb in range(4):
                a(f'v_mfma_f32_32x32x16_bf16 {vr(den, 16)}, {vr(zf + 4*fb, 4)}, {vr(ph + 4*fb, 4)}, ' + ('0' if fb == 0 else vr(den, 16)))
            sel_prep()
            if M2:
                a(f's_cmp_lg_u32 s{sWAVE}, 3\ns_cbranch_scc1 L_M2F')
                self.nopk = True; self.sum8(m2a); self.nopk = False
                a(f'v_mov_b32 v{m2a+1}, s{sTAG}')
                self.bs(m2a, 2, vL8, rWS, T5, 0, 'sc1', count=False)
                a('L_M2F:')
            self.round1(den)
            a(f'v_add_f32 v{den}, 0x358637bd, v{den}')
            self.round1(den)
            a(f'v_rcp_f32 v{den}, v{den}')
            self.stamp('c2w')
        ldk2 = lambda: [self.bl(k2 + 4 * q, 4, vL16, rWS, T0, q * 1024, 'sc1') for q in range(2)]
        if o['C2dir'] == 0:
            self.inbox(7, 2, work=den_work)
            self.stamp('c2h')
        if o['C2dir'] == 2: den_work()
        self.try_load(ldk2, [k2 + 1, k2 + 3, k2 + 5, k2 + 7], vT, lambda: (wr_load() if o['wrat'] == 1 else None, ffn_reg(fw[1]), sel_prep2(), den_work() if o['C2dir'] == 1 else None))
        for db in range(2):
            a(f'ds_write2_b32 v{vT+1}, v{k2+4*db}, v{k2+4*db+2} offset0:{64*db} offset1:{64*db+1}'); lg.issue()
        self.barrier()
        self.stamp('kvred')
        for fb in range(4): self.r128(kf + 4 * fb, vPA, fb * 1024, ('kf', fb))
        S(T0, '((r1*8 + rb*2)*32 + hp*2 + kh)*1024 + OF')
        va(vKP, [(0, 4, 16), (4, 1, 32768), (5, 1, 256)])
        for fb in range(4):
            lg.wait(('kf', fb))
            a(f'v_mfma_f32_32x32x16_bf16 {vr(num, 16)}, {vr(kf + 4*fb, 4)}, {vr(ph + 4*fb, 4)}, ' + ('0' if fb == 0 else vr(num, 16)))
        S(T5, '((w >> 1)*16 + cb)*2048 + (w & 1)*1024 + MODP2')
        self.ld_md = lambda: self.bl(md, 4, vL16, rWS, T5, 0, 'sc1', 'md')
        if not o['mdlate']: self.ld_md()
        for h in range(2):
            self.round_list([num + i for i in range(8 * h, 8 * h + 8)])
            for i in range(8 * h, 8 * h + 8, 2): self.pk('mul', num + i, num + i, den, bc=(1,))
            for i in range(4 * h, 4 * h + 4): a(f'v_cvt_pk_bf16_f32 v{vq+i}, v{num+2*i}, v{num+2*i+1}')
            self.bs(vq + 4 * h, 4, vKP, rWS, T0, 512 * h, 'sc1', 'os')
        self.stamp('ost')
        if o['wrat'] == 2: wr_load()
        if o['mdlate'] in (1, 3): self.ld_md()
        if o['poisat'] == 3: self.poison((0,), AR + 84)
        while wl: wo1()

    def gemm2(self):
        a, vm, lg, o, S, va = self.a, self.vm, self.lg, self.o, self.S, self.vaa
        md, wr1, fw = self.md, self.wr1, o['fwin']
        AD2 = o['AD2']
        R = self.R = dict(acc=AQ, gaf=AQ + 16, cbf=AR + 16, sbf=AV, gbf=AV + 16, xf=AR, fr=AR + 32, Br=AR + 40, Ar=AR + 72, vB=RING + 8, sv=RING, up=RING + 12)
        acc, gaf, cbf, sbf, gbf, xf, fr, Br, Ar, vB, sv, up = [R[k] for k in 'acc gaf cbf sbf gbf xf fr Br Ar vB sv up'.split()]
        ARS = [Ar + 4 * i for i in range(6)] + [RING + 16, RING + 20, RING + 24]; assert AD2 <= 9
        va(vB, [(2, 2, 128), (4, 2, 1024), (0, 1, 16), (1, 1, 8), (3, 2, 32)])
        S(T4, '(w ^ (%s))*4096' % o['g2r']); S(T1, '(T4*4) ^ (y2 >> 4)')
        a(f'v_add_u32 v{vB}, s{T1}, v{vB}')
        for ct in range(1, 4): a(f'v_xor_b32 v{vB+ct}, {32*ct}, v{vB}')
        va(vT + 1, [(0, 3, 8 * 4096), (3, 1, 4096)])
        S(T2, '((r1 >> 2)*2 + (r1 & 3)*64)*4096 + (hp >> 1)*64 + (hp & 1)*4 + INB + 1024')
        for i in range(8): self.unpack(xf + 2 * i, xf + 2 * i + 1, XR + i)
        S(T6, '(rt*8 + w)*32768 + OF' if not o.get('fake84') else '(r1*8 + w)*32768 + OF')
        def md_stage():
            vm.wait('md')
            self.tagcheck([md + 1, md + 3], vT + 2)
            a('s_cbranch_vccz L_MGOK')
            q0 = list(vm.q)
            self.poll(self.ld_md, [md + 1, md + 3], vT + 2)
            vm.q = q0
            a('L_MGOK:')
            a(f'ds_write2_b32 v{vT}, v{md}, v{md+2} offset0:0 offset1:4'); lg.issue()
        S(T1, '(w & 1)*2'); S(T3, '(w >> 1)*1024 + L_MD')
        va(vT, [(4, 1, 1), (2, 1, 2)]); va(vT + 3, [(5, 1, 1)], T1)
        a(f'v_xor_b32 v{vT}, v{vT}, v{vT+3}\nv_lshl_add_u32 v{vT}, v{vT}, 2, s{T3}')
        va(vT + 3, POS); a(f'v_add_u32 v{vT}, v{vT}, v{vT+3}')
        if o['mdlate'] in (0, 3): md_stage()
        vm.wait('os'); vm.wait('wo')
        self.barrier()
        self.push(vT + 1, T2, 16, vT + 2, 'L_PD')
        self.stamp('opub')
        if o['poisat'] == 4:
            t = AR + 84
            a(f'v_mov_b32 v{t}, -1\nv_mov_b32 v{t+1}, -1\nv_mov_b32 v{t+2}, -1\nv_mov_b32 v{t+3}, -1\ns_mov_b64 exec, 0xffff')
            self.bs(t, 4, vL16, rWS, sZ2, 0, 'sc1')
            a(f's_mov_b64 exec, -1\ns_cmp_lg_u32 s{sWAVE}, 5\ns_cbranch_scc1 L_NOPO')
            S(T3, 'rt*16384 + cb*512 + XS'); self.va(t + 4, [(0, 5, 16), (5, 1, 8192)], None, 0, t + 5)
            self.bs(t, 4, t + 4, rWS, T3, 0, 'sc1', count=False)
            a('L_NOPO:')
        if o['mdlate'] == 2: self.ld_md()
        if o['mdlate'] in (1, 2): md_stage(); self.barrier()
        S(T5, 'wg*4096 + (T4 >> 6) + INB + 1024')
        self.ffn_reg(fw[2])
        t4 = Br
        for q in range(4): self.r128(t4 + 4 * q, self.vL32S, L_MD - MISC + q * 1024)
        va(vT + 4, [(0, 2, 4), (5, 1, 16), (4, 1, 32), (2, 2, 64)], None, L_GB)
        S(T0, '(rt*16 + cb)*64 + UP')
        va(vT + 6, [(0, 6, 2)], None, L_M2); va(vT + 7, [(0, 2, 128), (4, 2, 32)], None, L_M2)
        lg.wait_all()
        def d_work():
            for q in range(4):
                self.pk('add', t4 + 4 * q, t4 + 4 * q, t4 + 4 * q + 2)
                a(f'v_add_f32 v{sv+q}, v{t4+4*q}, v{t4+4*q+1}')
            self.round_list([sv + q for q in range(4)])
            a(f'v_add_f32 v{sv+2}, 1.0, v{sv+2}')
            a(f'v_lshlrev_b32 v{wr1}, 16, v{wr1}')
            self.round1(sv + 2)
            a(f'ds_write_b32 v{vT+4}, v{sv+3}')
            uu, hi, lo, t = t4, t4 + 1, t4 + 2, t4 + 4
            a(f'v_mul_f32 v{uu}, v{sv+2}, v{wr1}')
            a(f'v_cvt_pk_bf16_f32 v{hi}, 0, v{uu}')
            a(f'v_sub_f32 v{lo}, v{uu}, v{hi}')
            self.allreduce(uu, t + 3)
            for k, r in enumerate((hi, lo, wr1)): a(f'v_mov_b32_dpp v{t+k}, v{r} row_shl:1 row_mask:0xf bank_mask:0xf')
            for k, r in enumerate((hi, lo, wr1)): a(f'v_cvt_pk_bf16_f32 v{t+k}, v{r}, v{t+k}')
            a(f"""v_mov_b32 v{uu+1}, s{sTAG}
            v_mov_b32 v{uu+2}, 0
            s_cmp_lg_u32 s{sWAVE}, 2
            s_cbranch_scc1 L_NOUP
            s_mov_b64 exec, 1""")
            self.bs(uu, 2, uu + 2, rWS, T0, 0, 'sc1', count=False)
            a('s_mov_b64 exec, -1\nL_NOUP:')
            a(f'v_mov_b32 v{t+3}, 0x3f803f80\ns_mov_b32 exec_lo, 0x55555555\ns_mov_b32 exec_hi, 0x55555555')
            for k in range(4): a(f'ds_write_b32 v{vT+6}, v{t + (k + 3) % 4} offset:{128*k}')
            a('s_mov_b64 exec, -1')
            a(f'ds_read_b128 {vr(fr, 4)}, v{vT+7}\nds_read_b128 {vr(fr + 4, 4)}, v{vT+7} offset:16')
            a(f'v_mov_b32 v{RING+14}, v{sv+1}\nv_mov_b32 v{RING+15}, v{sv+3}\nv_mov_b32 v{RING+5}, v{sv+2}')
            for dst, q in ((gaf, 0),):
                for i in range(16): a(f'v_mov_b32_dpp v{dst+i}, v{sv+q} row_newbcast:{i} row_mask:0xf bank_mask:0xf')
            a(f'v_mov_b32 v{RING+1}, v{vT+1}')
            self.stamp('dw')
        L2 = o['LOOK2']
        def b2_read(m):
            H, ct = divmod(m, 4)
            for rd in range(2): self.tr(Br + 4 * (m % 8) + 2 * rd, vB + ct, (H & 3) * 4096 + rd * 512, ('B', m))
            if H % 4 == 3 and H < 31: a(f'v_xor_b32 v{vB+ct}, {((H >> 2) ^ ((H >> 2) + 1)) * 16384}, v{vB+ct}')
        def a2_load(H):
            if H % 4 == 0: S(T7, '(T4 ^ n) + T6', n=H * 1024)
            self.bl(ARS[H % AD2], 4, vL16, rWS, T7, (H % 4) * 1024, 'sc1', ('A', H))
        self.spoll([(0, 2, T5, 0)], range(2), d_work)
        self.stamp('ook1')
        if not o['earlyD']: a('s_barrier')
        for H in range(AD2):
            if H == 4 and o['earlyD']: a('s_barrier')
            a2_load(H)
            if H == 0:
                for m in range(L2): b2_read(m)
        self.stamp('ook')
        S(T0, 'rt*1024 + UP'); va(vT + 6, [(0, 4, 64)])
        self.ld_up = lambda: self.bl(up, 2, vT + 6, rWS, T0, 0, 'sc1', 'up')
        lpend = []
        for H in range(32):
            if self.prof and o.get('ls2'):
                if lpend: r_, k_ = lpend.pop(0); a(f'v_writelane_b32 v255, s{r_}, {k_}')
                if H < 31:
                    r_ = sPL + 2 * (self.nst % 4)
                    a.items.append(('raw', f'    s_memtime {sr(r_, 2)}')); lpend.append((r_, self.nst)); self.stnames.append(f'n{H}'); self.nst += 1
            if o.get('g2p') and H in (0, o['g2p']):
                a(f's_cmp_lt_u32 s{sWAVE}, 4\ns_cbranch_scc1 L_G2P{H}\ns_setprio {1 if H == 0 else 0}\nL_G2P{H}:')
            vm.wait(('A', H))
            for ct in range(4):
                m = 4 * H + ct
                pw = o['pairw2']
                if ct % pw == 0: lg.wait(('B', m + pw - 1))
                a(f'v_mfma_f32_16x16x32_bf16 {vr(acc + 4*ct, 4)}, {vr(Br + 4*(m % 8), 4)}, {vr(ARS[H % AD2], 4)}, ' + ('0' if H == 0 else vr(acc + 4*ct, 4)))
                if m + L2 < 128: b2_read(m + L2)
            if H + AD2 < 32: a2_load(H + AD2)
            if H + AD2 == 31: self.ld_up()
            if H == o['f3at']: self.ffn_reg(fw[3])
        self.stamp('gemm2')
        if o.get('dbg'):
            S(T1, '(wg*8 + w)*32768 + 0x4000000'); va(vT, [(0, 6, 4)])
            for k, r in enumerate(list(range(40, 104)) + [24, 25, 26, 27]):
                if k % 16 == 0 and k: S(T1, 'T1 + 4096')
                self.bs(r, 1, vT, rWS, T1, (k % 16) * 256, '', 'dbg')
                if k % 16 == 15: vm.wait('dbg')

    def tail(self):
        a, vm, lg, o, S, va = self.a, self.vm, self.lg, self.o, self.S, self.vaa
        R, fw = self.R, o['fwin']
        E2 = range(0, 16, 2)
        acc, gaf, cbf, sbf, gbf, xf, fr, up = [R[k] for k in 'acc gaf cbf sbf gbf xf fr up'.split()]
        FR, held, fq = self.FL, self.held, self.fq
        g16, hh, h2p, op, sd4, kk = AR + 40, AR + 56, AR + 72, AR + 80, AR + 88, AR + 92
        vSt, vRow, mm, rs, key, vTa = RING + 27, RING + 1, RING + 2, RING + 3, RING + 4, RING + 5
        x1f = xf
        swp = lambda b: [a(f'v_permlane32_swap_b32 v{b+p}, v{b+q}') for p, q in ((0, 2), (1, 3), (4, 6), (5, 7))]
        for h in range(2):
            rg = range(8 * h, 8 * h + 8)
            self.round_list([acc + i for i in rg])
            for i in range(8 * h, 8 * h + 8, 2): self.pk('mul', acc + i, acc + i, gaf + i)
            self.round_list([acc + i for i in rg])
            for i in range(8 * h, 8 * h + 8, 2): self.pk('add', acc + i, acc + i, xf + i)
            for i in range(4 * h, 4 * h + 4): a(f'v_cvt_pk_bf16_f32 v{XR+i}, v{acc+2*i}, v{acc+2*i+1}')
            for i in range(4 * h, 4 * h + 4): a(f'v_dot2_f32_bf16 v{vT+(i&1)}, v{XR+i}, v{XR+i}, ' + ('0' if i < 2 else f'v{vT+(i&1)}'))
            a(f'v_mfma_f32_16x16x32_bf16 {vr(sd4, 4)}, {vr(fr + 4*h, 4)}, {vr(XR + 4*h, 4)}, ' + ('0' if h == 0 else vr(sd4, 4)))
        self.nopk = False
        a(f'v_add_f32 v{vT}, v{vT}, v{vT+1}')
        for sw in ('v_permlane32_swap_b32', 'v_permlane16_swap_b32'):
            a(f'v_mov_b32 v{vT+1}, v{vT}')
            a(f'{sw} v{vT}, v{vT+1}')
            a(f'v_add_f32 v{vT if "32" in sw[:14] else sd4 + 3}, v{vT}, v{vT+1}')
        a('s_mov_b64 exec, 0xffff')
        self.bs(sd4, 4, vL16, rWS, sZ2, 0, 'sc1')
        a('s_mov_b64 exec, -1')
        a('s_barrier')
        self.push(RING + 1, sZ3, 16, vT + 2, 'L_PE')
        self.stamp('x1pub')
        self.ffn_dma(fw[4])
        S(T2, 'w*4096')
        a(f'v_add_u32 v{vT}, s{T2}, v{vL16}')
        a(f'v_add_u32 v{vT+3}, {L_DN}, v{vT}')
        vm.wait('up')
        self.tagcheck([up + 1], vT + 2)
        a('s_cbranch_vccz L_UPOK')
        q0 = list(vm.q)
        self.poll(self.ld_up, [up + 1], vT + 2)
        vm.q = q0
        a('L_UPOK:')
        S(T1, '(rt*8 + w)*4096 + ST')
        def sym_write(v0_, v1_):
            vm.wait('ffr')
            for m, i, r in self.sym:
                assert o['symat'] == 0 or r < AV
                a(f'ds_write_b128 v{v0_ if m < 2 else v1_}, {vr(r, 4)} offset:{self.f_lds(m, i) - (L_GU if m < 2 else L_DN)}')
        def sym_late():
            S(T2, 'w*4096'); a(f'v_add_u32 v{vT+4}, s{T2}, v{vL16}\nv_add_u32 v{vT+7}, {L_DN}, v{vT+4}')
            sym_write(vT + 4, vT + 7)
        def e_work():
            for ctl in ('quad_perm:[1,0,3,2]', 'quad_perm:[2,3,0,1]', 'row_half_mirror', 'row_mirror'): self.dpp('v_add_f32', up, up, up, ctl)
            for i in range(8): self.unpack(x1f + 2 * i, x1f + 2 * i + 1, XR + i)
            S(T2, 'w*512 + rt*2')
            va(vRow, [(0, 4, 32)], T2)
            a(f'v_xor_b32 v{vT+1}, 0x4000, v{vT}\nv_xor_b32 v{vT+4}, 0x4000, v{vT+3}')
            if o['symat'] == 0: sym_write(vT, vT + 3)
            for g in range(2):
                if not held[g]: continue
                a(f's_cmp_{"ge" if g == 0 else "lt"}_u32 s{sWAVE}, 4\ns_cbranch_scc1 L_FW{g}')
                for n, (m, i) in enumerate(held[g]):
                    for far in range(2):
                        a(f'ds_write_b128 v{(vT if m < 2 else vT + 3) + far}, {vr(FR + 8*n + 4*far, 4)} offset:{self.f_lds(m, i) - (L_GU if m < 2 else L_DN)}')
                a(f'L_FW{g}:')
            self.stamp('ew')
        self.inbox(3, 2, work=e_work)
        a('s_barrier')
        self.stamp('x1ok')
        def try_p(loads, check, between, nm='re'):
            loads()
            vm.q[-1] = tg = ('try', a.label('T'))
            between()
            vm.wait(tg)
            OK, L = a.label('POK'), a.label('PRE')
            check()
            a(f's_cbranch_vccz {OK}')
            q = list(vm.q)
            self.stamp(nm)
            a(f'{L}:')
            loads(); vm.wait_all()
            check()
            a(f"""s_cbranch_vccz {OK}
            s_add_u32 s{sSPIN}, s{sSPIN}, 1
            s_cmp_lt_u32 s{sSPIN}, {SPIN_LIMIT}
            s_cbranch_scc1 {L}""")
            vm.q = q
            a(f'{OK}:')
        vGr, vDr, vXs, ffn, fdn = RING + 6, RING + 7, RING + 24, FR, AQ
        vRt = RING + 14
        def out_calc(part):
            u = RING + 16; assert o['ocut'][1] != 5
            if part == o['ocut'][0]:
                for i in range(8): self.unpack(hh + 2 * i, hh + 2 * i + 1, h2p + i)
                for i in E2: self.pk('mul', hh + i, hh + i, gbf + i)
                self.round_list([hh + i for i in range(16)])
            if part == o['ocut'][1]:
                S(T0, 'w*2048 + L_TR')
                va(u, [(4, 2, 16)]); va(u + 1, [(0, 3, 16)]); a(f'v_xor_b32 v{u}, v{u}, v{u+1}')
                va(u + 2, [(0, 4, 128)], T0); a(f'v_add_u32 v{u}, v{u}, v{u+2}'); a(f'v_xor_b32 v{u+2}, 64, v{u}')
                va(u + 3, [(3, 3, 16)]); a(f'v_xor_b32 v{u+1}, v{u+3}, v{u+1}'); va(u + 3, [(3, 3, 128)], T0); a(f'v_add_u32 v{u+1}, v{u+1}, v{u+3}')
                S(T0, '2047 - rt*128 - w*16'); va(vRt + 1, [(3, 3, 1)])
                a(f'v_sub_u32 v{vRt}, s{T0}, v{vRt+1}\nv_subrev_u32 v{vRt+1}, 8, v{vRt}')
                va(vTa, [(3, 3, 2048), (0, 3, 16)])
            if part == o['ocut'][2]:
                for i in E2: self.pk('add', hh + i, hh + i, x1f + i)
                for i in range(8): a(f'v_cvt_pk_bf16_f32 v{op+i}, v{hh+2*i}, v{hh+2*i+1}')
                swp(op)
                a(f'ds_write_b128 v{u}, {vr(op, 4)}\nds_write_b128 v{u+2}, {vr(op + 4, 4)}')
                a(f'ds_read_b128 {vr(op, 4)}, v{u+1}\nds_read_b128 {vr(op + 4, 4)}, v{u+1} offset:1024')
        def e_between():
            if o['gbar']: a('s_barrier')
            self.ffn_dma(fw[5])
            for dst, q in ((cbf, 5), (sbf, 14), (gbf, 15)):
                for i in range(16): a(f'v_mov_b32_dpp v{dst+i}, v{RING+q} row_newbcast:{i} row_mask:0xf bank_mask:0xf')
            out_calc(4)
            if o['symat'] == 1: sym_late()
            S(T2, 'w*8 + L_K1'); a(f'v_mov_b32 v{vT}, s{T2}')
            va(vT + 1, [(0, 3, 8)], None, L_K1)
            va(vT + 2, [(0, 2, 64 * 4096), (2, 2, 2 * 4096)])
            S(T3, '((cb >> 3) + (cb & 7)*8)*4096 + (rt >> 1)*64 + (rt & 1)*16 + INB + 2560')
        s_, d_, q_, t_ = g16, g16 + 1, g16 + 3, g16 + 4
        def e_check():
            for h in (0, 2):
                self.pk('add', g16 + h, g16 + h, g16 + 4 + h); self.pk('add', g16 + 8 + h, g16 + 8 + h, g16 + 12 + h)
            for h in (0, 2): self.pk('add', g16 + h, g16 + h, g16 + 8 + h)
            a(f'''v_add_f32 v{d_}, v{d_}, v{g16+2}
            v_add_f32 v{t_+1}, v{s_}, v{q_}
            v_cmp_u_f32 vcc, v{d_}, v{t_+1}''')
        try_p(lambda: [self.bl(g16 + 4 * i, 4, vL16, rWS, T1, i * 1024, 'sc1') for i in range(4)], e_check, e_between, 'stre')
        self.stamp('x1ld')
        a(f"""
        v_mov_b32 v{t_}, v{q_}
        v_permlane32_swap_b32 v{q_}, v{t_}
        v_permlane32_swap_b32 v{s_}, v{d_}
        v_add_f32 v{q_}, v{q_}, v{t_}
        v_add_f32 v{s_}, v{s_}, v{d_}
        v_permlane16_swap_b32 v{s_}, v{q_}
        v_add_f32 v{d_}, v{s_}, v{q_}
        v_add_f32 v{q_}, v{s_}, v{q_}
        v_permlane16_swap_b32 v{d_}, v{q_}
        v_mov_b32 v{s_}, v{d_}
        v_mul_f32 v{q_}, 0x3a800000, v{q_}
        v_permlane32_swap_b32 v{s_}, v{d_}
        v_mul_f32 v{s_}, 0x3a800000, v{s_}
        v_fma_f32 v{rs}, -v{s_}, v{s_}, v{q_}
        v_cvt_pk_bf16_f32 v{mm}, 0, v{s_}
        v_max_f32 v{rs}, 0, v{rs}""")
        self.round1(rs)
        a(f'v_fma_f32 v{d_}, -v{mm}, v{up}, v{d_}')
        a(f'v_add_f32 v{rs}, 0x3727c5ac, v{rs}')
        self.round1(rs)
        a(f'v_sqrt_f32 v{rs}, v{rs}')
        self.round1(rs)
        a(f"""v_rcp_f32 v{rs}, v{rs}
        v_mul_f32 v{key}, v{d_}, v{rs}
        v_ashrrev_i32 v{t_}, 31, v{key}
        v_or_b32 v{t_}, 0x80000000, v{t_}
        v_xor_b32 v{key}, v{key}, v{t_}
        s_mov_b32 s{T2}, 0xfffff000
        v_and_or_b32 v{key}, v{key}, s{T2}, v{vRow}""")
        hi, lo = kk, kk + 1
        def merge2(ctl):
            self.dpp('v_min_u32', t_, hi, hi, ctl); self.dpp('v_max_u32', lo, lo, lo, ctl); self.dpp('v_max_u32', hi, hi, hi, ctl)
            a(f'v_max_u32 v{lo}, v{lo}, v{t_}')
        self.dpp('v_max_u32', hi, key, key, 'quad_perm:[1,0,3,2]'); self.dpp('v_min_u32', lo, key, key, 'quad_perm:[1,0,3,2]')
        for ctl in ('quad_perm:[2,3,0,1]', 'row_half_mirror', 'row_mirror'): merge2(ctl)
        self.dw('ds_write_b64', vT, hi, 2)
        self.stamp('ln2')
        self.barrier()
        self.dr('ds_read_b64', hi, 2, vT + 1)
        for i in E2: self.pk('add', hh + i, x1f + i, mm, bc=(1,), neg=(1,))
        lg.wait_all()
        for ctl in ('quad_perm:[1,0,3,2]', 'quad_perm:[2,3,0,1]', 'row_half_mirror'): merge2(ctl)
        a(f"""v_cmp_eq_u32 {sr(sC2, 2)}, v{key}, v{lo}
        v_cmp_eq_u32 vcc, v{key}, v{hi}
        v_or_b32 v{kk+2}, 1, v{lo}
        v_mov_b32 v{kk+1}, s{sTAG}
        v_mov_b32 v{kk+3}, s{sTAG}
        s_or_b64 {sr(sCM, 2)}, vcc, {sr(sC2, 2)}
        s_cmp_lg_u32 s{sWAVE}, 0
        s_cbranch_scc1 L_NOF
        s_mov_b64 exec, 0xffff""")
        self.bs(kk, 4, vT + 2, rWS, T3, 0, 'sc1', count=False)
        a(f"""s_mov_b64 exec, -1
        L_NOF:""")
        if o['cprio']: a(f's_cmp_eq_u64 {sr(sCM, 2)}, 0\ns_cbranch_scc1 L_NOPR\ns_setprio 1\nL_NOPR:')
        self.stamp('Fpub')
        def f_work():
            self.round_list([hh + i for i in range(16)])
            for i in E2: self.pk('mul', hh + i, hh + i, rs, bc=(1,))
            self.round_list([hh + i for i in range(16)])
            for i in E2: self.pk('mul', hh + i, hh + i, cbf + i)
            self.round_list([hh + i for i in range(16)])
            for i in E2: self.pk('add', hh + i, hh + i, sbf + i)
            for i in range(8): a(f'v_cvt_pk_bf16_f32 v{h2p+i}, v{hh+2*i}, v{hh+2*i+1}')
            a(f"""s_cmp_eq_u64 {sr(sCM, 2)}, 0
            s_cbranch_scc1 L_NOCAND""")
            for h in range(2): a(f'v_mfma_f32_16x16x32_bf16 {vr(sd4, 4)}, {vr(fr + 4*h, 4)}, {vr(h2p + 4*h, 4)}, ' + ('0' if h == 0 else vr(sd4, 4)))
            for i in range(8): a(f'v_mov_b32 v{op+i}, v{h2p+i}')
            S(T2, 'rt*16384 + cb*512 + XS')
            va(vT + 3, [(4, 2, 16)])
            a(f'v_add_u32 v{vT+4}, 8192, v{vT+3}')
            swp(op); swp(XR)
            a(f'v_cndmask_b32 v{vT+3}, v{vT+3}, v{vT+4}, {sr(sC2, 2)}')
            a(f's_mov_b64 exec, {sr(sCM, 2)}')
            for h in range(2): self.bs(op + 4 * h, 4, vT + 3, rWS, T2, 64 * h, 'sc1', count=False)
            a(f's_mov_b32 exec_hi, 0\ns_and_b32 exec_lo, s{sCM}, 0xffff')
            self.bs(sd4 + 3, 1, vT + 3, rWS, T2, 256, 'sc1', count=False)
            a(f's_mov_b64 exec, {sr(sCM, 2)}')
            for h in range(2): self.bs(XR + 4 * h, 4, vT + 3, rWS, T2, 128 + 64 * h, 'sc1', count=False)
            a('s_mov_b64 exec, -1\ns_setprio 0\nL_NOCAND:')
            self.stamp('cand')
            self.ffn_dma(fw[6])
            if o['symat'] == 2: sym_late()
            out_calc(0)
        S(T0, 'w*16 + L_K2'); a(f'v_mov_b32 v{vT}, s{T0}')
        va(vT + 1, [(0, 3, 16)], None, L_K2)
        self.inbox(5, 8, (1, 3, 5, 7), f_work)
        P = sPL
        a(f"""s_min_u32 s{P+1}, s{P}, s{P+4}
        s_min_u32 s{P+3}, s{P+2}, s{P+4}
        s_min_u32 s{P+5}, s{P}, s{P+6}
        s_max_u32 s{P}, s{P}, s{P+4}
        s_max_u32 s{P+2}, s{P+2}, s{P+6}
        s_max_u32 s{P+3}, s{P+3}, s{P+5}
        s_max_u32 s{P+1}, s{P+1}, s{P+2}
        v_mov_b32 v{kk}, s{P}
        v_mov_b32 v{kk+2}, s{P+3}
        v_mov_b32 v{kk+1}, s{P+1}""")
        self.dw('ds_write_b128', vT, kk, 4)
        self.stamp('F2p')
        out_calc(1)
        gu_late = [p for p in fq if p[0] < 2]; assert not gu_late
        dn_late = len(fq) > 0
        def dn_read(s, tag=None):
            self.tr(fdn + 4 * s, vDr, s * 8192, tag); self.tr(fdn + 4 * s + 2, vDr, s * 8192 + 1024, tag)
        vm.wait('ffn')
        self.barrier()
        self.stamp('F2')
        self.r128(kk, vT + 1, 0, 'k2')
        a(f'v_and_b32 v{vT+4}, 8, v{vL}')
        a(f'v_cmp_eq_u32 {sr(sCMP, 2)}, 0, v{vT+4}')
        a(f'v_cmp_gt_u32 {sr(sPL, 2)}, 16, v{vL}')
        a(f'v_cmp_gt_u32 {sr(sPL + 2, 2)}, 32, v{vL}')
        lg.wait('k2')
        t = g16
        for ctl in ('quad_perm:[1,0,3,2]', 'quad_perm:[2,3,0,1]', 'row_half_mirror'):
            self.dpp('v_min_u32', t, kk, kk, ctl); self.dpp('v_min_u32', t + 1, kk + 1, kk, ctl); self.dpp('v_min_u32', t + 2, kk, kk + 1, ctl)
            self.dpp('v_max_u32', kk + 2, kk + 2, kk + 2, ctl); self.dpp('v_max_u32', kk + 1, kk + 1, kk + 1, ctl); self.dpp('v_max_u32', kk, kk, kk, ctl)
            a(f'v_max3_u32 v{kk+2}, v{kk+2}, v{t+1}, v{t+2}')
            a(f'v_max_u32 v{kk+1}, v{kk+1}, v{t}')
        xa, xb, rp, kr = g16, g16 + 4, g16 + 8, g16 + 9
        a(f"""v_cndmask_b32 v{t}, v{kk+1}, v{kk}, {sr(sCMP, 2)}
        v_cndmask_b32 v{kr}, v{kk+2}, v{kk+1}, {sr(sPL + 2, 2)}
        v_and_b32 v{t+1}, 31, v{kk+2}
        v_and_b32 v{t}, 31, v{t}
        v_cndmask_b32 v{kr}, v{kr}, v{kk}, {sr(sPL, 2)}
        v_lshl_add_u32 v{vT}, v{t}, 13, v{vXs}
        v_lshl_add_u32 v{vT+1}, v{t+1}, 13, v{vXs}
        v_and_b32 v{t+2}, 31, v{kr}
        v_lshl_add_u32 v{vT+2}, v{t+2}, 13, v{vXs+1}""")
        def sel_work():
            self.stamp('sel')
            if o['gbar'] and (fq or o['outat'] in (0, 3)): a('s_barrier')
            self.ffn_dma(len(fq))
            for k in range(3): a(f'v_readfirstlane_b32 s{sY0+[0, 3, 4][k]}, v{kk+k}')
            for s in range(8):
                self.tr(ffn + 4 * s, vGr, s * 1024); self.tr(ffn + 4 * s + 2, vGr, s * 1024 + 512)
            for k in range(3 if o['outat'] in (0, 3) else 0): S(T4 + k, '(((y >> 1) & 15)*128 + ((y >> 5) & 127)) ^ 2047'.replace('y', ('y0', 'y1', 'y2')[k]))
            out_calc(2)
            lg.wait_all()
            if o['outat'] in (0, 3):
                for h in range(2 if o['outat'] == 0 else 1):
                    for k in range(3): a(f'v_cmp_ne_u32 {sr(sPL + 2*k, 2)}, s{T4+k}, v{vRt+h}')
                    a(f's_and_b64 vcc, {sr(sPL, 2)}, {sr(sPL + 2, 2)}\ns_and_b64 exec, vcc, {sr(sPL + 4, 2)}')
                    self.bs(op + 4 * h, 4, vTa, rOUT, (sROW0, sROW1)[h], 0, o.get('outmod', 'sc1'))
                    a('s_mov_b64 exec, -1')
            a(f'v_bfe_u32 v{vT+3}, v{kr}, 1, 4\nv_bfe_u32 v{kr}, v{kr}, 5, 7\nv_lshl_or_b32 v{kr}, v{vT+3}, 7, v{kr}\nv_xor_b32 v{kr}, 0x7ff, v{kr}')
        try_p(lambda: [self.bl(xa, 4, vT, rWS, '0', 0, 'sc1'), self.bl(xb, 4, vT + 1, rWS, '0', 0, 'sc1'), self.bl(rp, 1, vT + 2, rWS, '0', 0, 'sc1')],
              lambda: a(f'v_max3_u32 v{vT+3}, v{xa}, v{xb}, v{rp}\nv_cmp_eq_u32 vcc, -1, v{vT+3}'), sel_work, 'xsre')
        self.stamp('xsel')
        for ctl in ('quad_perm:[1,0,3,2]', 'quad_perm:[2,3,0,1]', 'row_half_mirror', 'row_mirror'): self.dpp('v_add_f32', rp, rp, rp, ctl)
        a(f"""v_cvt_pk_bf16_f32 v{rp}, 0, v{rp}
        v_ashrrev_i32 v{vT+3}, 31, v{rp}
        v_or_b32 v{vT+3}, 0x80000000, v{vT+3}
        v_xor_b32 v{rp}, v{rp}, v{vT+3}
        v_lshrrev_b32 v{rp}, 16, v{rp}
        v_lshl_or_b32 v{rp}, v{rp}, 11, v{kr}
        v_readlane_b32 s{P}, v{rp}, 0
        v_readlane_b32 s{P+1}, v{rp}, 16
        v_readlane_b32 s{P+2}, v{rp}, 32
        s_not_b64 {sr(P + 4, 2)}, {sr(sCMP, 2)}
        s_cmp_lt_u32 s{P}, s{P+1}
        s_cselect_b64 {sr(P + 4, 2)}, {sr(sCMP, 2)}, {sr(P + 4, 2)}
        s_cselect_b32 s{P+3}, s{P}, s{P+1}
        s_cmp_gt_u32 s{P+2}, s{P+3}
        s_cselect_b64 vcc, {sr(P + 4, 2)}, 0""")
        for i in range(4): a(f'v_cndmask_b32 v{xa+i}, v{xa+i}, v{xb+i}, vcc')
        a(f"""s_bitcmp1_b32 vcc_lo, 0
        s_cselect_b32 s{P}, s{P+2}, s{P}
        s_cselect_b32 s{T6}, s{T4}, s{T6}
        s_cselect_b32 s{T4}, s{sY2}, s{sY0}
        s_bitcmp1_b32 vcc_lo, 8
        s_cselect_b32 s{P+1}, s{P+2}, s{P+1}
        s_cselect_b32 s{T6}, s{T5}, s{T6}
        s_cselect_b32 s{T5}, s{sY2}, s{sY1}""")
        gd = [gaf + 4 * i for i in range(4)] + [cbf + 4 * i for i in range(4)]
        lg.wait_all()
        for s in range(8):
            a(f'v_mfma_f32_16x16x32_bf16 {vr(gd[s], 4)}, {vr(xa, 4)}, {vr(ffn + 4*s, 4)}, 0')
        p0, p1 = xb, xb + 2
        for p, b in ((p0, 0), (p1, 4)):
            a(f'v_add_f32 v{p}, v{gd[b]}, v{gd[b+1]+1}')
            a(f'v_add_f32 v{p+1}, v{gd[b+2]+2}, v{gd[b+3]+3}')
        a(f"""v_add_f32 v{p0}, v{p0}, v{p0+1}
        v_add_f32 v{p1}, v{p1}, v{p1+1}
        v_mov_b32 v{p0+1}, s{sTAG}
        v_permlane16_swap_b32 v{p1}, v{p1+1}
        s_cmp_ge_u32 s{sJ}, 28
        s_cbranch_scc1 L_NOHP
        v_add_f32 v{p0}, v{p0}, v{p1+1}
        v_add_f32 v{p1}, v{p0}, 0
        v_mov_b32 v{p1+1}, s{sTAG}
        v_permlane32_swap_b32 v{p0}, v{p1}
        s_mov_b64 exec, 0xffff""")
        self.bs(p0, 4, vL16, rWS, sZ1, 0, 'sc1', count=False)
        a("""s_mov_b64 exec, -1
        L_NOHP:""")
        self.stamp('Hpub')
        if not dn_late and not o['dnsplit']:
            for s in range(4): dn_read(s)
        def out_store(hs=None):
            for h in (hs or range(o['outat'] >= 3, 2)):
                a(f"""v_cmp_ne_u32 vcc, s{sK1}, v{vRt+h}
                v_cmp_ne_u32 {sr(sCMP, 2)}, s{sK2}, v{vRt+h}
                s_and_b64 exec, vcc, {sr(sCMP, 2)}""")
                self.bs(op + 4 * h, 4, vTa, rOUT, (sROW0, sROW1)[h], 0, o.get('outmod', 'sc1'))
                a('s_mov_b64 exec, -1')
        if o['outat']:
            a(f's_and_b32 s{sK1}, s{P}, 2047\ns_and_b32 s{sK2}, s{P+1}, 2047')
            out_calc(3)
            lg.wait_all()
        if o['outat'] == 1:
            a('s_barrier')
            out_store()
        if o['outat'] in (0, 3):
            for h in range(2 if o['outat'] == 0 else 1):
                a(f"""v_cmp_eq_u32 vcc, s{T6}, v{vRt+h}
                s_and_b64 exec, vcc, -1
                s_cbranch_execz L_NOLO{h}""")
                self.bs(op + 4 * h, 4, vTa, rOUT, (sROW0, sROW1)[h], 0, o.get('outmod', 'sc1'), count=False)
                a(f'L_NOLO{h}:\ns_mov_b64 exec, -1')
        self.stamp('outst')
        fz, x1, st = g16 + 12, AV, kk
        a(f"""s_cmp_lg_u32 s{sRow}, 7
        s_cbranch_scc1 L_NONON
        v_mov_b32 v{vT+2}, s{sTAG}
        v_mov_b32 v{vT+3}, 0
        s_mov_b64 exec, 1""")
        self.bs(vT + 2, 1, vT + 3, rWS, '0', 0, 'sc1', count=False)
        a(f"""s_mov_b64 exec, -1
        L_NONON:
        s_cmp_ge_u32 s{sJ}, 28
        s_cbranch_scc1 {'L_FIN3' if o['outat'] >= 2 else 'L_FIN'}""")
        gA = g16
        va(gA, [(2, 1, 128), (5, 1, 16)], None, L_ACT)
        va(gA + 1, [(4, 2, 56 * 128), (0, 4, 8)])
        S(sFG, '(kq*8 + w)*(4*56*128) + fs*128 + GGR')
        va(gA + 2, [(0, 1, 2 * 4096), (1, 1, 64 * 4096)])
        S(sFD, '((w & 1)*4 + (kq >> 1) + ((kq & 1)*4 + (w >> 1))*8)*4096 + x*64 + (j >> 2)*4 + INB + 3072')
        def dn_go():
            if o['dnsplit'] and not dn_late:
                vm.wait('fdn'); a('s_barrier')
                for s in range(4): dn_read(s)
            out_calc(5)
            if o['outat'] == 4: assert o['dnsplit'] and not dn_late and 5 not in o['ocut']; out_store([0])
        q1 = list(vm.q)
        a(f's_cmp_lt_u32 s{sWAVE}, 4\ns_cbranch_scc1 L_HW')
        dn_go()
        a(f"""s_cmp_lg_u32 s{sWAVE}, 7
        s_cbranch_scc1 L_NOH""")
        a(f"""s_bitcmp1_b32 s{sJ}, 3
        s_cselect_b32 s{T2}, s{P+1}, s{P}
        s_cselect_b32 s{T4}, s{T5}, s{T4}
        s_andn2_b32 s{T5}, 2047, s{T2}""")
        S(T6, 'cb*4 + (x >> 1)')
        S(T7, '((T6 >> 1)*4 + (j >> 3)*2 + (T6 & 1))*(56*128) + GGR')
        S(sU, 'T5*2048 + T6*32')
        va(vT + 6, [(0, 3, 4)])
        S(T0, '(x >> 1)*64 + L_GB'); va(vT + 1, [(0, 3, 8)], T0)
        a(f'ds_read_b64 {vr(fz + 2, 2)}, v{vT+1}')
        S(sY0, '(T4 & 31)*8192 + cb*512 + (x >> 1)*32 + XS')
        a(f"""s_lshr_b32 s{T0}, s{T2}, 11
        s_lshl_b32 s{T0}, s{T0}, 16
        s_ashr_i32 s{T2}, s{T0}, 31
        s_andn2_b32 s{T2}, 0x7fff0000, s{T2}
        s_or_b32 s{T2}, s{T2}, 0x80000000
        s_xor_b32 s{T0}, s{T0}, s{T2}
        v_mov_b32 v{fz}, s{T0}
        v_mul_f32 v{fz}, s{sL2E}, v{fz}
        v_exp_f32 v{fz}, -v{fz}
        v_add_f32 v{fz}, 1.0, v{fz}
        v_rcp_f32 v{fz}, v{fz}""")
        self.round1(fz)
        q0 = list(vm.q)
        a(f'v_mov_b32 v{vT+1}, s{sTAG}\nv_not_b32 v{vT+2}, v{vT+1}')
        self.poll(lambda: (self.bl(st, 1, vT + 6, rWS, sY0, 0, 'sc1'), self.bl(st + 1, 1, vT + 6, rWS, sY0, 128, 'sc1')), [st + 2], vT,
                  lambda: a(f'''v_max_u32 v{st+2}, v{st}, v{st+1}
                  v_cmp_ne_u32 vcc, -1, v{st+2}
                  v_cndmask_b32 v{st+2}, v{vT+2}, v{vT+1}, vcc'''))
        vm.q = q0
        self.unpack(st + 2, st + 3, st + 1)
        a(f'v_and_b32 v{st+1}, s{sMASK}, v{st}\nv_lshlrev_b32 v{st}, 16, v{st}')
        a('s_branch L_NOH')
        a('L_HW:')
        vm.q = q1; lg.reset()
        S(T0, 'w*256 + z0')
        va(vT, [(4, 2, 2048), (0, 4, 16)])
        S(T2, 'w*32 + L_ACT'); va(vT + 1, [(5, 1, 128), (2, 1, 16), (1, 1, 8), (3, 1, 4), (0, 1, 2)], T2)
        q0 = list(vm.q)
        g, u = x1, x1 + 4
        if not o['Hdir']:
            self.spoll([(q, 1, T0, q * 2048 + 1024 + 252) for q in range(4)], range(4), dn_go)
            self.stamp('Hpre')
        self.poll(lambda: [self.bl(x1 + 4 * m, 4, vT, rWS, T0, m * 1024, 'sc1') for m in range(2)], [g + 1, g + 3, u + 1, u + 3], vT + 2)
        a(f"""v_permlane32_swap_b32 v{g}, v{g+2}
        v_permlane32_swap_b32 v{u}, v{u+2}
        v_add_f32 v{g}, v{g}, v{g+2}
        v_add_f32 v{u}, v{u}, v{u+2}
        v_mov_b32 v{g+2}, v{g}
        v_mov_b32 v{u+2}, v{u}
        v_permlane16_swap_b32 v{g}, v{g+2}
        v_permlane16_swap_b32 v{u}, v{u+2}
        v_add_f32 v{g}, v{g}, v{g+2}
        v_add_f32 v{u}, v{u}, v{u+2}""")
        self.round2(g, u)
        self.silu(g, vT + 2)
        a(f"""v_mul_f32 v{g}, v{g}, v{u}
        v_cvt_pk_bf16_f32 v{g}, v{g}, v{g}
        ds_write_b16 v{vT+1}, v{g}
        L_NOH:""")
        vm.q = q0
        vm.wait('ffn'); vm.wait('fdn')
        self.barrier()
        self.stamp('Hok')
        for s in range(4):
            self.r128(x1 + 4 * s, gA, s * 32, ('ac', s))
            if dn_late: dn_read(s, ('ac', s))
        for s in range(4):
            lg.wait(('ac', s))
            a(f'v_mfma_f32_32x32x16_bf16 {vr(hh, 16)}, {vr(x1 + 4*s, 4)}, {vr(fdn + 4*s, 4)}, ' + ('0' if s == 0 else vr(hh, 16)))
        a(f'v_mov_b32 v{hh+1}, s{sTAG}')
        self.bs(hh, 2, gA + 1, rWS, sFG, 0, 'sc1')
        if not o['Gdir']:
            a('s_mov_b64 exec, 15')
            self.bs(hh + 1, 1, gA + 2, rWS, sFD, 0, 'sc1')
            a('s_mov_b64 exec, -1')
        self.stamp('Gpub')
        if o['outat'] >= 2:
            a('s_barrier\ns_branch L_FIN2\nL_FIN3:')
            out_calc(5)
            a('s_waitcnt lgkmcnt(0)')
            if o['outat'] == 4: out_store([0])
            a('L_FIN2:')
            out_store()
        a(f"""s_cmp_ge_u32 s{sJ}, 16
        s_cbranch_scc1 L_FIN""")
        if not o['Gdir']:
            self.inbox(6, 8, range(7))
            self.stamp('Gpre')
            a('s_barrier')
        a(f"""s_cmp_lg_u32 s{sWAVE}, 7
        s_cbranch_scc1 L_FIN""")
        S(T0, 'T7 + 4096')
        gg = [x1 + 4 * i for i in range(7)]
        def g_ld():
            [self.bl(gg[n], 4, vL16, rWS, (T7, T0)[n >> 2], (n & 3) * 1024, 'sc1') for n in range(7)]
        self.poll(g_ld, [gg[n] + 1 + 2 * e for n in range(7) for e in range(2)], vT)
        self.stamp('Gok')
        y0, y1 = gg[0], gg[0] + 1
        for p_, q_ in ((0, 1), (2, 3), (4, 5), (0, 2), (4, 6)):
            for e in (0, 2): a(f'v_add_f32 v{gg[p_]+e}, v{gg[p_]+e}, v{gg[q_]+e}')
        a(f'v_add_f32 v{y0}, v{gg[0]}, v{gg[4]}\nv_add_f32 v{y1}, v{gg[0]+2}, v{gg[4]+2}')
        a(f"""v_permlane32_swap_b32 v{y0}, v{y1}
        v_add_f32 v{y0}, v{y0}, v{y1}""")
        self.dpp('v_add_f32', y0, y0, y0, 'row_ror:8')
        a(f"""v_mov_b32 v{y1}, v{y0}
        v_permlane16_swap_b32 v{y0}, v{y1}
        v_add_f32 v{y1}, v{y0}, v{y1}
        v_cvt_pk_bf16_f32 v{y0}, 0, v{y1}
        v_cvt_pk_bf16_f32 v{y1}, 0, v{y1}
        v_permlane32_swap_b32 v{y0}, v{y1}""")
        self.pk('mul', y0, y0, fz, bc=(1,))
        self.round2(y0, y1)
        self.pk('add', y0, y0, st)
        self.round2(y0, y1)
        self.pk('mul', y0, y0, fz + 2)
        self.round2(y0, y1)
        self.pk('add', y0, y0, st + 2)
        a(f'v_cvt_pk_bf16_f32 v{y0}, v{y0}, v{y1}')
        a('s_mov_b64 exec, 0xff')
        self.bs(y0, 1, vT + 6, rOUT, sU, 0, o.get('finmod', ''))
        a('s_mov_b64 exec, -1')
        a('L_FIN:')

    def finish(self):
        a, S, o = self.a, self.S, self.o
        if o.get('exfil'):
            a('s_waitcnt vmcnt(0) lgkmcnt(0)')
            self.stamp('fin')
            a(f'''v_readlane_b32 s{T0}, v255, 0
            v_readlane_b32 s{T1}, v255, 1
            v_readlane_b32 s{T2}, v255, 2
            s_sub_u32 s{T2}, s{T2}, s{T1}
            s_max_i32 s{T2}, s{T2}, 0
            s_min_u32 s{T2}, s{T2}, 10000
            s_mul_i32 s{T2}, s{T2}, 10
            s_add_u32 s{T2}, s{T2}, 6000
            L_XPAD:
            s_memrealtime {sr(sTM, 2)}
            s_waitcnt lgkmcnt(0)
            s_sub_u32 s{T1}, s{sTM}, s{T0}
            s_cmp_lt_u32 s{T1}, s{T2}
            s_cbranch_scc1 L_XPAD''')
        if self.o.get('dbg2'):
            S(T1, '(wg*8 + w)*32768 + 0x4000000'); self.vaa(vT, [(0, 6, 4)])
            for k, r in enumerate(list(range(72, 104)) + list(range(120, 136)) + list(range(176, 184))):
                if k % 16 == 0 and k: S(T1, 'T1 + 4096')
                self.bs(r, 1, vT, rWS, T1, (k % 16) * 256, '', 'dbg')
                if k % 16 == 15: self.vm.wait('dbg')
        if self.prof:
            a('s_waitcnt vmcnt(0) lgkmcnt(0)')
            self.stamp('end')
            a(f's_memrealtime {sr(sTM, 2)}')
            a('s_waitcnt lgkmcnt(0)')
            a(f'v_writelane_b32 v255, s{sTM}, 61')
            S(T0, '(wg*8 + w)*256 + STAMPS')
            a(f'v_writelane_b32 v255, s{sSPIN}, 62')
            a(f'v_lshlrev_b32 v{vT+1}, 2, v{vL}')
            a(f'buffer_store_dword v255, v{vT+1}, {sr(rWS, 4)}, s{T0} offen')
            S(T0, 'T0 + 0x100000')
            a(f'buffer_store_dword v254, v{vT+1}, {sr(rWS, 4)}, s{T0} offen')
        a('L_END:')
        a('s_endpgm')

    def pads(self):
        import subprocess, re
        a = self.a
        src = '.amdgcn_target "amdgcn-amd-amdhsa--gfx950"\n.text\n' + a.text().replace('CODE_KB', '20480')
        out = subprocess.run(['llvm-mc', '-triple=amdgcn-amd-amdhsa', '-mcpu=gfx950', '-show-encoding'], input=src, capture_output=True, text=True, check=True).stdout
        sizes = [len(m.split(',')) for m in re.findall(r'; encoding: \[([^\]]*)\]', out)]
        tour = next(i for i, x in enumerate(a.items) if x == ('raw', ';TOUR'))
        NT = 16
        addr = self.o['kofs']; full = True; k = 0; items = []; pads = []; page = 0
        for i, (kind, v) in enumerate(a.items):
            isins = kind == 'ins' or (kind == 'raw' and v.startswith('    s_'))
            if i == tour: items.append((kind, v)); addr += 4 * 48; continue
            if isins:
                if addr // 4096 > page and full and i > tour:
                    page = addr // 4096; pads.append(page)
                    items.append(('raw', f'L_PAD{page}:\n    s_cbranch_execz L_RET{page}')); addr += 4
                elif i < tour: page = addr // 4096
                addr += sizes[k]; k += 1
                if kind == 'ins' and ('s', 'exec_lo') in v.dst + [('s', 'exec_lo') if ('s', 'exec_hi') in v.dst else None]:
                    full = v.text.replace(' ', '') in ('s_mov_b64exec,-1', 's_mov_b32exec_hi,-1')
            items.append((kind, v))
        assert k == len(sizes), (k, len(sizes))
        t = ['s_mov_b64 exec, 0']
        chains = [pads[c::4] for c in range(4)]
        for c in range(4): t += [f's_cmp_eq_u32 s{sWAVE}, {4 + c}', f's_cbranch_scc1 L_PAD{chains[c][0]}']
        t.append('s_branch L_TEND')
        n = len(t)
        for ch in chains:
            for p, q in zip(ch, ch[1:] + [None]):
                t += [f'L_RET{p}:', f's_branch ' + (f'L_PAD{q}' if q else 'L_TEND')]; n += 1
        assert n <= 47
        t += ['s_nop 0'] * (47 - n) + ['L_TEND:', 's_mov_b64 exec, -1']
        j = items.index(('raw', ';TOUR'))
        items[j] = ('raw', '\n'.join(x if x.endswith(':') else '    ' + x for x in t))
        a.items = items

    def text(self):
        a = self.a
        npad = a.fix_hazards()
        errs = a.check_waits([NAME])
        for e in errs[:10]: print('WAITERR', e, file=sys.stderr)
        assert not errs
        import re
        for k, v in a.items:
            if k == 'ins' and v.mn.startswith('v_pk_'):
                m = re.search(r'op_sel:\[([\d,]+)\]', v.text)
                vs = [i for i, x in enumerate(v.ops[1:]) if x.startswith('v')]
                assert self.o.get('badpk') or not (m and any(m.group(1).split(',')[i] == '1' for i in vs[1:])), v.text
        if self.o['tour']: self.pads()
        hdr = open(os.path.join(os.path.dirname(os.path.abspath(__file__)), 'header.txt')).read()
        s = hdr + '; @launch grid=(256,1,1) block=(512,1,1) lds=163840\n'
        s += '.amdgcn_target "amdgcn-amd-amdhsa--gfx950"\n.text\n'
        s += f'.globl {NAME}\n.p2align {12 if self.o["al12"] else 8}\n.type {NAME},@function\n'
        body = a.text()
        import subprocess, tempfile
        with tempfile.TemporaryDirectory() as td:
            open(td + '/t.s', 'w').write('.amdgcn_target "amdgcn-amd-amdhsa--gfx950"\n.text\n' + body.replace('CODE_KB', '20480'))
            subprocess.run(['clang', '-x', 'assembler', '-target', 'amdgcn-amd-amdhsa', '-mcpu=gfx950', '-c', td + '/t.s', '-o', td + '/t.o'], check=True)
            subprocess.run(['llvm-objcopy', '-O', 'binary', '-j', '.text', td + '/t.o', td + '/t.bin'], check=True)
            size = os.path.getsize(td + '/t.bin')
        print('; code bytes', size, file=sys.stderr)
        s += body.replace('CODE_KB', str((size // 1024 + 1) * 1024))
        s += '.p2align 10\n.fill 768, 4, 0xbf800000\n'
        s += '.section .rodata,"a"\n' + kernel_desc(NAME, 256, 102)
        print(f'; nops {npad}, instrs {sum(1 for k, _ in a.items if k == "ins")}', file=sys.stderr)
        return s


if __name__ == '__main__':
    import argparse, json
    ap = argparse.ArgumentParser()
    ap.add_argument('-o', default='/dev/stdout')
    ap.add_argument('--prof', action='store_true')
    ap.add_argument('--opts', default='{}')
    args = ap.parse_args()
    g = Gen(args.prof, json.loads(args.opts)).build()
    t = g.text()
    open(args.o, 'w').write(t)
    if args.prof: open(args.o + '.stamps', 'w').write(json.dumps(g.stnames))
```

```python
import sys, os
sys.path.insert(0, os.path.dirname(os.path.abspath(__file__)))
from asm import *

NAME = 'adaLN_cond__linear_kernel_hedgehog__moe_arch_mod__prompt_kernel'

NONCE = 0x0
MODP2 = 0x020000
SINB = 0x200000
AINB = 0x080000
INB = 0x100000
HF = 0x400000
OF = 0x800000
ST = 0xC00000
XS = 0xD00000
UP = 0xD80000
HGR = 0x1400000
ZP = 0x1480000
GGR = 0x1500000
KVP = 0x1800000
KIN = 0x1C00000
STAMPS = 0x1600000
WS_BYTES = 268435456

REG = 49152
MISC = 147456
L_A1 = MISC
L_ST = MISC + 6144
L_MP = MISC + 8192
L_WPHI = MISC + 12288
L_KH = 0
L_QH = MISC + 4096
L_KVF = MISC
L_ZF = MISC + 8192
L_M2 = MISC + 9984
L_MD = MISC + 12288
L_K1 = MISC + 8704
L_K2 = MISC + 8832
L_ACT = MISC + 9216
L_GB = MISC + 9728
L_HV = 32768
L_PHK = 0
L_XT = 2 * REG + 32768
L_TR = 98304
L_GU = 0
L_DN = 65536
UR = 393216

SPIN_LIMIT = 200000

sWAVE, sTAG, sSPIN, sMASK, sL2E = 3, 4, 5, 6, 7
sX, sJ, sR1, sHP, sCB = 8, 9, 10, 11, 12
T0, T1, T2, T3, T4, T5, T6, T7 = 13, 14, 15, 16, 17, 18, 19, 20
sRT = 21
sCMP = 22
sPL = 24
rWS, rX, rW, rWO, rWM, rWG, rWU, rWD, rOUT = 32, 36, 40, 44, 48, 52, 56, 60, 64
KA = 68
pWPHI, pWR, pC = KA + 4, KA + 10, KA + 18
sK1, sK2, sROW0, sROW1, sFS, sKQ, sKH, sRB = 68, 69, 70, 71, 74, 75, 76, 77
sFG, sFD, sU, sW1K, sU0, sWB = 80, 81, 82, 83, 84, 85
sAB, sM2, sWO, sY0 = 88, 89, 90, 91
sINB, sRow, sY1, sY2 = 92, 93, 94, 95
sZ0, sZ1, sZ2, sZ3 = 72, 73, 86, 87
sCM = 84
sC2 = 88
XT = (96, 97, 98, 99)
sTM = 100
ENV = dict(wg=2, w=sWAVE, x=sX, j=sJ, r1=sR1, hp=sHP, cb=sCB, rt=sRT, row=sRow, kh=sKH, rb=sRB, fs=sFS, kq=sKQ,
           w1k=sW1K, u=sU, fg=sFG, fd=sFD, u0=sU0, wb=sWB, ab=sAB, m2=sM2, wo=sWO, y0=sY0, y1=sY1, y2=sY2,
           z0=sZ0, k1=sK1, k2=sK2, row0=sROW0, row1=sROW1,
           T0=T0, T1=T1, T2=T2, T3=T3, T4=T4, T5=T5, T6=T6, T7=T7)

vL, vL16, vWd, vT = 1, 2, 3, 4
XR = 12
vB = 20
vS0, vS1 = 26, 27
RING = 28
AK, AV, AQ = 56, 88, 120
AR = 152
SP = 248


POS = [(0, 1, 32), (3, 2, 64), (2, 1, 256), (1, 1, 512)]


class Stream:
    def __init__(self, g): self.g, self.q, self.wake = g, [], 0
    def add(self, fn, v=0, l=0): self.q.append((v, l, fn))
    def sleep(self, k): self.q.append(('sleep', k, None))
    def until(self, n): self.q.append(('until', n, None))
    def cap(self, fn):
        a = self.g.a
        keep = a.items; a.items = []
        fn()
        body = a.items; a.items = keep
        run = []
        for it in body:
            i = it[1]
            assert it[0] == 'ins' and i.cls in ('valu', 'salu', 'mfma'), it
            run.append(it)
            if i.cls == 'salu': continue
            c = 8 if (i.cls == 'mfma' or i.is_trans or 'permlane' in i.mn) else 6 if i.mn.startswith(('v_fma', 'v_max3', 'v_min3', 'v_lshl_', 'v_bfe')) else 4.75 if i.mn.startswith('v_cvt') else 4
            self.q.append((c + (len(run) - 1), 0, (lambda r=run: a.items.extend(r)))); run = []
        if run: self.q.append((len(run), 0, (lambda r=run: a.items.extend(r))))
    def mark(self, name): self.q.append((0, 0, lambda: (self.g.marks.add(name), self.g.markn.append((name, self.g.cur[0])))))
    def pull(self, bud, full):
        n = self.g.cur[0]
        while self.q and n >= self.wake:
            v, l, fn = self.q[0]
            if v == 'sleep': self.wake = n + l; self.q.pop(0); continue
            if v == 'until': self.wake = max(n, l); self.q.pop(0); continue
            if l > bud[1]: return
            if v > bud[0] and bud[0] < full:
                bud[0] = -1; return
            self.q.pop(0); fn(); bud[0] -= v; bud[1] -= l


DEFAULTS = dict(wburst=(0, 2, 2, 0, 6, 0), xtat=0, pairw1=2, mrot=0, wrat=0, xfirst=0, fF=0, f3at=27, symat=0, wpre=(0, 2), dnsplit=1, lateB=1, wo0=0, m2k0=11, m2n0=4, mdlate=0, m2gap=10, m2cut=60, aoff=6, wpace=0, cprio=1, g2p=22, tlb=0, tlbk=2, tsin=0, tz=0, outat=2, gbar=1, fbar=0, xorw=1, LOOK=6, A00=8, A0=8, Apos=(6, 6, 6, 6, 6, 6, 5, 5, 5, 5),
                wsched={5: 'k10 v10 q10', 6: 'k11 v11 q11', 7: 'k12 v12', 8: 'k13 v13 q12', 9: 'k14 v14', 10: 'k15', 11: 'v15 q13', 12: 'q14 q15'},
                bA=271, bH=295, kbud=10, vbud=5, wcost=5, kdel=1, hh=0.25, hq=0.97, hpf=(0.3, 0.7), fA=2, woA=4, hgap=(20, 14), fpre=8, m2c=4, m2k3='(j & 1)*2 + 1', m2g=5, m2e=7, m2nb=1, m2db=2, apos=0, hprio=3, qmid=8, qsplit=16, wowin=(4, 4, 4), AD2=8, LOOK2=7, g2r='(j & 1)*4', Hdir=0, Gdir=0, C2dir=0, poisat=4, earlyD=1, ocut=(0, 2, 2), pairw2=4, worot=1, fwin=(0, 0, 0, 3, 2, 3, 2), prio=2, tour=1, al12=1, kofs=0x300)


class Gen:
    def __init__(self, prof=False, opts=None):
        self.a = Asm()
        self.vm = Counter(self.a, 'vmcnt', 63)
        self.lg = Counter(self.a, 'lgkmcnt', 15)
        self.marks = set(); self.markn = []
        self.vL = vL
        self.prof = prof
        self.nopk = False
        self.nst = 0
        self.stnames = []
        self.S = SExpr(self.a, ENV, {k: v for k, v in globals().items() if isinstance(v, int) and k.isupper() and k not in ENV}, XT)
        self.o = dict(DEFAULTS)
        if opts: self.o.update(opts)

    def bl(self, dst, n, voff, srd, soff, imm=0, mods='', tag=None):
        op = {1: 'dword', 2: 'dwordx2', 4: 'dwordx4'}[n]
        so = soff if isinstance(soff, str) else (sr(soff))
        self.a(f'buffer_load_{op} {vr(dst, n)}, v{voff}, {sr(srd, 4)}, {so} offen' + (f' offset:{imm}' if imm else '') + (' ' + mods if mods else ''))
        self.vm.issue(tag)
    def bs(self, src, n, voff, srd, soff, imm=0, mods='', tag=None, count=True):
        op = {1: 'dword', 2: 'dwordx2', 4: 'dwordx4'}[n]
        so = soff if isinstance(soff, str) else (sr(soff))
        self.a(f'buffer_store_{op} {vr(src, n)}, v{voff}, {sr(srd, 4)}, {so} offen' + (f' offset:{imm}' if imm else '') + (' ' + mods if mods else ''))
        if count: self.vm.issue(tag)
    def dma(self, voff, srd, soff, imm=0, mods='', tag=None):
        self.a(f'buffer_load_dwordx4 v{voff}, {sr(srd, 4)}, {sr(soff)} offen' + (f' offset:{imm}' if imm else '') + (' ' + mods if mods else '') + ' lds')
        self.vm.issue(tag)
    def dr(self, op, dst, n, addr, off=0, tag=None):
        assert 0 <= off < 65536, off
        self.a(f'{op} {vr(dst, n)}, v{addr}' + (f' offset:{off}' if off else ''))
        self.lg.issue(tag)
    def tr(self, dst, addr, off, tag=None): self.dr('ds_read_b64_tr_b16', dst, 2, addr, off, tag)
    def r128(self, dst, addr, off=0, tag=None): self.dr('ds_read_b128', dst, 4, addr, off, tag)
    def dw(self, op, addr, src, n, off=0, tag=None):
        assert 0 <= off < 65536, off
        self.a(f'{op} v{addr}, {vr(src, n)}' + (f' offset:{off}' if off else ''))
        self.lg.issue(tag)
    def barrier(self):
        self.lg.wait_all()
        self.a('s_barrier')
    def stamp(self, name):
        if self.o.get('jit') and name not in ('karg', 'fin', 'end'):
            L = self.a.label('JIT')
            self.a(f's_memtime {sr(sTM, 2)}'); self.lg.wait_all()
            self.a(f's_mul_i32 s{sTM}, s{sTM}, 0x9e3779b1\ns_lshr_b32 s{sTM}, s{sTM}, {32 - self.o["jit"]}\ns_add_u32 s{sTM}, s{sTM}, 1\n{L}:\ns_sleep 1\ns_sub_u32 s{sTM}, s{sTM}, 1\ns_cmp_lg_u32 s{sTM}, 0\ns_cbranch_scc1 {L}')
        ex = self.o.get('exfil')
        if ex and name in ex[:2]:
            self.a(f's_memrealtime {sr(sTM, 2)}')
            self.lg.wait_all()
            self.a(f'v_writelane_b32 v255, s{sTM}, {1 + ex.index(name)}')
        if not self.prof: return
        only = self.o.get('only')
        if only and name not in only and name != 'end': return
        self.a(f's_memtime {sr(sTM, 2)}')
        self.a(f's_memrealtime s[0:1]')
        self.lg.wait_all()
        self.a(f'v_writelane_b32 v255, s{sTM}, {self.nst}')
        self.a(f'v_writelane_b32 v254, s0, {self.nst}')
        self.stnames.append(name)
        self.nst += 1
        assert self.nst <= 60
    def unpack(self, lo, hi, src):
        self.a(f'v_lshlrev_b32 v{lo}, 16, v{src}')
        self.a(f'v_and_b32 v{hi}, s{sMASK}, v{src}')
    def round1(self, r):
        self.a(f'v_cvt_pk_bf16_f32 v{r}, 0, v{r}')
    def round2(self, r0, r1):
        self.round1(r0); self.round1(r1)
    def round_list(self, regs):
        for r in regs: self.round1(r)
    def pk(self, op, d, s0, s1, s2=None, bc=(), neg=()):
        srcs = [s0, s1] + ([s2] if s2 is not None else [])
        if self.nopk:
            for h in range(2):
                t = []
                for k, r in enumerate(srcs):
                    kind, n = r if isinstance(r, tuple) else ('v', r)
                    t.append(('-' if k in neg else '') + f'{kind}{n if k in bc else n + h}')
                e64 = '' if op == 'fma' else ('_e64' if (neg or t[1][0] == 's') else '')
                self.a(f'v_{op}_f32{e64} v{d+h}, ' + ', '.join(t))
            return
        if 1 in bc and not isinstance(s1, tuple) and s1 & 1 and not self.o.get('badpk'):
            assert 0 not in bc
            sw = lambda t: tuple({0: 1, 1: 0}.get(k, k) for k in t)
            srcs[0], srcs[1] = srcs[1], srcs[0]; bc, neg = sw(bc), sw(neg)
        txt, sel, selhi = [], [], []
        for k, r in enumerate(srcs):
            kind, n = r if isinstance(r, tuple) else ('v', r)
            if k in bc:
                txt.append(f'{kind}[{n & ~1}:{(n & ~1) + 1}]'); sel.append(n & 1); selhi.append(n & 1)
            else:
                assert n % 2 == 0
                txt.append(f'{kind}[{n}:{n+1}]'); sel.append(0); selhi.append(1)
        assert d % 2 == 0
        m = ''
        if any(sel): m += ' op_sel:[' + ','.join(map(str, sel)) + ']'
        if not all(selhi): m += ' op_sel_hi:[' + ','.join(map(str, selhi)) + ']'
        if neg:
            ng = ','.join('1' if k in neg else '0' for k in range(len(srcs)))
            m += f' neg_lo:[{ng}] neg_hi:[{ng}]'
        self.a(f'v_pk_{op}_f32 v[{d}:{d+1}], ' + ', '.join(txt) + m)
    def dpp(self, op, d, s0, s1, ctl):
        self.a(f'{op}_dpp v{d}, v{s0}, v{s1} {ctl} row_mask:0xf bank_mask:0xf')
    def allreduce(self, v, t, op='v_add_f32', lo=True, b3=True):
        if lo:
            self.dpp(op, v, v, v, 'quad_perm:[1,0,3,2]')
            self.dpp(op, v, v, v, 'quad_perm:[2,3,0,1]')
            self.dpp(op, v, v, v, 'row_half_mirror')
        self.dpp(op, v, v, v, 'row_ror:8')
        self.a(f'v_mov_b32 v{t}, v{v}')
        self.a(f'v_permlane16_swap_b32 v{v}, v{t}')
        self.a(f'{op} v{v}, v{v}, v{t}')
        self.a(f'v_mov_b32 v{t}, v{v}')
        self.a(f'v_permlane32_swap_b32 v{v}, v{t}')
        self.a(f'{op} v{v}, v{v}, v{t}')
    def poll(self, loads, tagregs, tmp=None, post=None):
        a = self.a
        L, D = a.label('POLL'), a.label('PDONE')
        a(f'{L}:')
        loads()
        self.vm.wait_all()
        if post: post()
        if len(tagregs) == 1:
            a(f'v_cmp_ne_u32 vcc, s{sTAG}, v{tagregs[0]}')
        else:
            a(f'v_bitop3_b32 v{tmp}, v{tagregs[0]}, v{tagregs[1]}, s{sTAG} bitop3:0x7e')
            for t in tagregs[2:]: a(f'v_bitop3_b32 v{tmp}, v{tmp}, v{t}, s{sTAG} bitop3:0xf6')
            a(f'v_cmp_ne_u32 vcc, 0, v{tmp}')
        a(f's_cbranch_vccz {D}')
        a(f's_add_u32 s{sSPIN}, s{sSPIN}, 1')
        a(f's_cmp_lt_u32 s{sSPIN}, {SPIN_LIMIT}')
        a(f's_cbranch_scc1 {L}')
        a(f'{D}:')
    def weave(self, fn, extras):
        a = self.a
        keep = a.items; a.items = []
        fn()
        body = a.items; a.items = keep
        extras = list(extras); n = len(extras)
        for i, it in enumerate(body):
            while extras and (n - len(extras)) * len(body) <= i * n: extras.pop(0)()
            a.items.append(it)
        for e in extras: e()
    def tagcheck(self, tagregs, tmp):
        a = self.a
        if len(tagregs) == 1:
            a(f'v_cmp_ne_u32 vcc, s{sTAG}, v{tagregs[0]}')
        else:
            a(f'v_bitop3_b32 v{tmp}, v{tagregs[0]}, v{tagregs[1]}, s{sTAG} bitop3:0x7e')
            for t in tagregs[2:]: a(f'v_bitop3_b32 v{tmp}, v{tmp}, v{t}, s{sTAG} bitop3:0xf6')
            a(f'v_cmp_ne_u32 vcc, 0, v{tmp}')
    def try_load(self, loads, tagregs, tmp=None, between=None, pre=None):
        a = self.a
        n0 = len(self.vm.q)
        loads()
        self.vm.q[-1] = tg = ('try', a.label('T'))
        if between: between()
        self.vm.wait(tg)
        OK = a.label('TOK')
        self.tagcheck(tagregs, tmp)
        a(f's_cbranch_vccz {OK}')
        q, l = list(self.vm.q), list(self.lg.q)
        if pre: pre()
        self.poll(loads, tagregs, tmp)
        self.vm.q, self.lg.q = q, l
        a(f'{OK}:')
    def spoll(self, loads, checks, work=None):
        a = self.a
        L, C, D = a.label('SPOLL'), a.label('SCHK'), a.label('SDONE')
        def issue():
            for d, n, so, imm in loads:
                op = {1: 'dword', 2: 'dwordx2', 4: 'dwordx4', 8: 'dwordx8'}[n]
                a(f's_load_{op} {sr(sPL + d, n)}, {sr(rWS, 2)}, s{so} offset:{imm} glc')
        if work:
            issue(); work()
            a(f's_branch {C}')
        a(f'{L}:')
        issue()
        a(f'{C}:')
        a(f's_add_u32 s{sSPIN}, s{sSPIN}, 1')
        a(f's_cmp_ge_u32 s{sSPIN}, {SPIN_LIMIT}')
        self.lg.wait_all()
        a(f's_cbranch_scc1 {D}')
        for k in checks:
            a(f's_cmp_lg_u32 s{sPL + k}, s{sTAG}')
            a(f's_cbranch_scc1 {L}')
        a(f'{D}:')
    def inbox(self, box, n, checks=None, work=None):
        self.spoll([(0, n, sINB, box * 512)], range(n) if checks is None else checks, work)
    def va(self, dst, terms, sreg=None, const=0, tmp=None):
        a = self.a; vL = self.vL
        first = True
        for sh, bits, mult in terms:
            full = sh + bits >= 6
            src = vL
            t = dst if first else tmp
            if sh == 0 and full: pass
            elif full: a(f'v_lshrrev_b32 v{t}, {sh}, v{vL}'); src = t
            elif sh == 0: a(f'v_and_b32 v{t}, {(1 << bits) - 1}, v{vL}'); src = t
            else: a(f'v_bfe_u32 v{t}, v{vL}, {sh}, {bits}'); src = t
            p2 = mult & (mult - 1) == 0
            k = mult.bit_length() - 1
            if first:
                if p2 and sreg is not None: a(f'v_lshl_add_u32 v{dst}, v{src}, {k}, s{sreg}'); sreg = None
                elif p2 and k: a(f'v_lshlrev_b32 v{dst}, {k}, v{src}')
                elif p2:
                    if src != dst: a(f'v_mov_b32 v{dst}, v{src}')
                else: a(f'v_mul_u32_u24 v{dst}, {mult}, v{src}')
            else:
                assert p2
                a(f'v_lshl_add_u32 v{dst}, v{src}, {k}, v{dst}')
            first = False
        if sreg is not None: a(f'v_add_u32 v{dst}, s{sreg}, v{dst}')
        if const: a(f'v_add_u32 v{dst}, {const}, v{dst}')
    def push(self, vaddr, soff, nl, vtmp, lab, wave=0):
        a = self.a
        a(f's_cmp_lg_u32 s{sWAVE}, {wave}')
        a(f's_cbranch_scc1 {lab}')
        a(f'v_mov_b32 v{vtmp}, s{sTAG}')
        a(f's_mov_b32 exec_hi, 0')
        if nl < 32: a(f's_mov_b32 exec_lo, {(1 << nl) - 1}')
        self.bs(vtmp, 1, vaddr, rWS, soff, 0, 'sc1', count=False)
        a('s_mov_b64 exec, -1')
        a(f'{lab}:')
    def silu(self, v, t):
        a = self.a
        a(f'v_mul_f32 v{t}, s{sL2E}, v{v}')
        a(f'v_exp_f32 v{t}, -v{t}')
        a(f'v_add_f32 v{t}, 1.0, v{t}')
        a(f'v_rcp_f32 v{t}, v{t}')
        a(f'v_mul_f32 v{v}, v{v}, v{t}')
        self.round1(v)
    def gemv_ops(self, wregs, cregs, acc, t0, t1, packed):
        ops = []
        assert t0 % 2 == 0 and t1 == t0 + 1
        for i, (w, c) in enumerate(zip(wregs, cregs)):
            cp = f'v[{c & ~1}:{(c & ~1) + 1}]'
            for d in range(4):
                tt = t0 + 2 * (d & 1)
                ops.append(f'v_lshlrev_b32 v{tt}, 16, v{w+d}')
                ops.append(f'v_and_b32 v{tt+1}, s{sMASK}, v{w+d}')
                ac = f'v[{acc+2*d}:{acc+2*d+1}]'
                if not packed:
                    for h in range(2): ops.append(f'v_mul_f32 v{acc+2*d+h}, v{tt+h}, v{c}' if i == 0 else f'v_fmac_f32 v{acc+2*d+h}, v{tt+h}, v{c}')
                elif i == 0: ops.append(f'v_pk_mul_f32 {ac}, {cp}, v[{tt}:{tt+1}] op_sel:[{c & 1},0] op_sel_hi:[{c & 1},1]')
                else: ops.append(f'v_pk_fma_f32 {ac}, {cp}, v[{tt}:{tt+1}], {ac} op_sel:[{c & 1},0,0] op_sel_hi:[{c & 1},1,1]')
        for i in range(4): ops.append(f'v_permlane32_swap_b32 v{acc+i}, v{acc+4+i}')
        for i in range(4): ops.append(f'v_add_f32 v{acc+i}, v{acc+i}, v{acc+4+i}')
        for i in range(2): ops.append(f'v_permlane16_swap_b32 v{acc+i}, v{acc+2+i}')
        for i in range(2): ops.append(f'v_add_f32 v{acc+i}, v{acc+i}, v{acc+2+i}')
        for i in range(2): ops.append(f'v_add_f32_dpp v{acc+i}, v{acc+i}, v{acc+i} row_ror:8 row_mask:0xf bank_mask:0xf')
        ops.append(f'v_mov_b32_dpp v{acc}, v{acc+1} quad_perm:[0,1,2,3] row_mask:0xf bank_mask:0xc')
        return ops
    def sum8(self, b):
        self.pk('add', b, b, b + 2); self.pk('add', b + 4, b + 4, b + 6); self.pk('add', b, b, b + 4)
        self.a(f'v_add_f32 v{b}, v{b}, v{b+1}')
    def softmax_pm(self, p, e, out, t, mid=None, part=0, split=0, stage=None):
        a = self.a
        mx, mn, u0, u1, s0, s1 = t, t + 1, t + 2, t + 3, t + 4, t + 6
        if part != 2:
            self.round_list([p + i for i in range(16)])
            a(f'v_max3_f32 v{mx}, v{p}, v{p+1}, v{p+2}')
            a(f'v_min3_f32 v{mn}, v{p}, v{p+1}, v{p+2}')
            for i in range(3, 15, 2):
                a(f'v_max3_f32 v{mx}, v{mx}, v{p+i}, v{p+i+1}')
                a(f'v_min3_f32 v{mn}, v{mn}, v{p+i}, v{p+i+1}')
            a(f'v_max_f32 v{u0}, v{mx}, v{p+15}')
            a(f'v_min_f32 v{u1}, v{mn}, v{p+15}')
            a(f'v_max_f32 v{mx}, v{mx}, v{p+15}')
            a(f'v_min_f32 v{mn}, v{mn}, v{p+15}')
            a(f'v_permlane32_swap_b32 v{mx}, v{u0}')
            a(f'v_permlane32_swap_b32 v{mn}, v{u1}')
            a(f'v_max_f32 v{mx}, v{mx}, v{u0}')
            a(f'v_min_f32 v{mn}, v{mn}, v{u1}')
            self.pk('mul', mx, mx, ('s', sL2E), bc=(1,))
            mn2 = mn
            if not self.nopk: a(f'v_mov_b32 v{u0}, v{mn}'); mn2 = u0
            for i in range(0, 16, 2):
                self.pk('fma', e + i, p + i, ('s', sL2E), mx, bc=(1, 2), neg=(2,))
                self.pk('fma', p + i, p + i, ('s', sL2E), mn2, bc=(1, 2), neg=(0,))
        for i in range(split if part == 2 else 0, 16):
            if mid and i == mid[0]: mid[1]()
            if part == 1 and i == split: return
            a(f'v_exp_f32 v{e+i}, v{e+i}')
            a(f'v_exp_f32 v{p+i}, v{p+i}')
        self.pk('add', s0, e, e + 2); self.pk('add', s1, p, p + 2)
        for i in range(4, 16, 2):
            self.pk('add', s0, s0, e + i); self.pk('add', s1, s1, p + i)
        a(f'v_add_f32 v{u0}, v{s0}, v{s0+1}')
        a(f'v_add_f32 v{u1}, v{s1}, v{s1+1}')
        a(f'v_add_f32 v{mx}, v{s0}, v{s0+1}')
        a(f'v_add_f32 v{mn}, v{s1}, v{s1+1}')
        a(f'v_permlane32_swap_b32 v{mx}, v{u0}')
        a(f'v_permlane32_swap_b32 v{mn}, v{u1}')
        self.pk('add', mx, mx, u0)
        a(f'v_rcp_f32 v{mx}, v{mx}')
        a(f'v_rcp_f32 v{mn}, v{mn}')
        for i in range(0, 16, 2):
            self.pk('mul', e + i, e + i, mx, bc=(1,))
            self.pk('mul', p + i, p + i, mn, bc=(1,))
        for i in range(8): a(f'v_cvt_pk_bf16_f32 v{out+i}, v{e+2*i}, v{e+2*i+1}')
        for i in range(8): a(f'v_cvt_pk_bf16_f32 v{out+8+i}, v{p+2*i}, v{p+2*i+1}')
    def ln_stats(self, xp, t, m_out, sd_out, fill=()):
        a = self.a
        fill = list(fill)
        def pad(n):
            for _ in range(n):
                if fill: a(fill.pop(0))
        s, u = t, t + 4
        a(f'v_mov_b32 v{u}, 0x3f803f80')
        for i in range(8):
            k = 2 * (i & 1)
            a(f'v_dot2_f32_bf16 v{s+k}, v{xp+i}, v{u}, ' + ('0' if i < 2 else f'v{s+k}'))
            a(f'v_dot2_f32_bf16 v{s+k+1}, v{xp+i}, v{xp+i}, ' + ('0' if i < 2 else f'v{s+k+1}'))
        pad(3)
        self.pk('add', s, s, s + 2)
        for ctl in ('quad_perm:[1,0,3,2]', 'quad_perm:[2,3,0,1]', 'row_half_mirror', 'row_ror:8'):
            pad(2 if ctl.endswith('3,2]') else 1)
            self.dpp('v_add_f32', s, s, s, ctl); self.dpp('v_add_f32', s + 1, s + 1, s + 1, ctl)
        pad(2)
        a(f'v_permlane16_swap_b32 v{s}, v{s+1}')
        a(f'v_add_f32 v{u}, v{s}, v{s+1}')
        a(f'v_add_f32 v{s}, v{s}, v{s+1}')
        pad(2)
        a(f'v_permlane32_swap_b32 v{s}, v{u}')
        a(f'v_add_f32 v{s}, v{s}, v{u}')
        a(f'v_mul_f32 v{u}, 0x3a800000, v{s}')
        a(f'v_mul_f32 v{s}, 0x3a800000, v{s}')
        pad(2)
        a(f'v_permlane16_swap_b32 v{s}, v{u}')
        a(f'v_fma_f32 v{sd_out}, -v{s}, v{s}, v{u}')
        a(f'v_cvt_pk_bf16_f32 v{m_out}, 0, v{s}')
        a(f'v_max_f32 v{sd_out}, 0, v{sd_out}')
        self.round1(sd_out)
        a(f'v_add_f32 v{sd_out}, 0x3727c5ac, v{sd_out}')
        self.round1(sd_out)
        a(f'v_sqrt_f32 v{sd_out}, v{sd_out}')
        pad(99)
        self.round1(sd_out)

    def build(self):
        self.front()
        self.gemm1()
        self.middle()
        self.gemm2()
        self.tail()
        self.finish()
        return self

    def vaa(self, dst, terms, sreg=None, const=0): self.va(dst, terms, sreg, const, vT + 5)

    def front(self):
        a, vm, lg, o, S, va = self.a, self.vm, self.lg, self.o, self.S, self.vaa
        E2 = range(0, 16, 2)
        a(f'{NAME}:')
        a(f's_load_dwordx16 {sr(KA, 16)}, s[0:1], 0')
        a(f's_load_dwordx8 {sr(KA + 16, 8)}, s[0:1], 64')
        a(f's_load_dwordx2 {sr(rWS, 2)}, s[0:1], 104')
        a('s_cmp_ge_u32 s2, 256')
        a('s_cbranch_scc1 L_END')
        if self.prof:
            a(f's_memrealtime {sr(sCMP, 2)}')
            a(f's_memtime {sr(sTM, 2)}')
            a('v_mov_b32 v255, 0')
            a('v_mov_b32 v254, 0')
            self.stnames.append('start'); self.nst = 1
        if o.get('exfil'): a(f's_memrealtime {sr(sTM, 2)}')
        a(f"""v_lshrrev_b32 v{vT}, 6, v0
        v_and_b32 v{vL}, 63, v0
        s_nop 0
        v_readfirstlane_b32 s{sWAVE}, v{vT}
        v_lshlrev_b32 v{vL16}, 4, v{vL}""")
        for srd, size in ((rX, 4194304), (rWM, 12582912), (rWS, WS_BYTES), (rW, 6291456), (rWO, 2097152), (rWG, 7340032), (rWU, 7340032), (rWD, 7340032), (rOUT, 4194304)):
            a(f's_mov_b32 s{srd+2}, {size}')
            a(f's_mov_b32 s{srd+3}, 0x20000')
        a(f"""s_mov_b32 s{sSPIN}, 0
        s_mov_b32 s{sMASK}, 0xffff0000
        s_mov_b32 s{sL2E}, 0x3fb8aa3b""")
        if o.get('xflip'): a(f's_xor_b32 s2, s2, {o["xflip"]}')
        S(sX, 'wg & 7'); S(sJ, 'wg >> 3')
        S(sRow, 'wg*8 + w')
        S(sR1, '(x & 4)*2 + (j >> 2)'); S(sHP, '(x & 3)*4 + ((j & 3) ^ q)', q=o.get('hpx', 2))
        S(sCB, '(x & 1)*8 + (j & 7)')
        S(sRT, '(x >> 1)*4 + (j >> 3)')
        S(sINB, '(wg*64 + w)*64 + INB')
        xs_raw, wm, cv, st, acc, xs, mp, hp = AR, AR + 8, AR + 16, AR + 20, AR + 24, AR + 32, AR + 48, AR + 64
        vWM, vCo, vL8, vL32S, vGA, vXT = SP, SP + 1, SP + 2, SP + 3, SP + 4, vT + 6
        self.vWM, self.vL8, self.vL32S, self.vGA = vWM, vL8, vL32S, vGA
        S(T3, '((x >> 1)*256 + j*8 + w)*4096 + (x & 1)*1024')
        va(vT + 4, [(0, 5, 16), (5, 1, 2048)])
        S(T2, '(x*8 + w)*32')
        S(T0, 'T2*6144 + (j ^ 1)*128'); S(T1, 'T0 + 12288')
        S(T5, '(rt*8 + w)*32768 + cb*128' if not o.get('fakext') else '((x*16 + (j >> 1))*32768) + (j & 1)*1024 + w*128')
        S(T4, '(((x >> 1)*16 + cb)*16 + w)*512 + AINB')
        va(vWM, [(3, 3, 2 * 12288), (0, 3, 16)])
        va(vCo, [(3, 3, 4)], T2)
        va(vXT, [(0, 3, 16)]); va(vT + 7, [(3, 3, 16)]); a(f'v_xor_b32 v{vXT}, v{vXT}, v{vT+7}')
        va(vT + 7, [(3, 3, 2048)]); a(f'v_add_u32 v{vXT}, v{vXT}, v{vT+7}')
        a('s_waitcnt lgkmcnt(0)')
        if self.prof:
            a(f'v_writelane_b32 v255, s{sTM}, 0')
            a(f'v_writelane_b32 v255, s{sCMP}, 63')
            a(f'v_writelane_b32 v254, s{sCMP}, 0')
        if o.get('exfil'):
            for k in range(3): a(f'v_writelane_b32 v255, s{sTM}, {k}')
        self.stamp('karg')
        a(f'global_load_dword v{cv+1}, v{vCo}, {sr(pC, 2)}'); vm.issue('c')
        a(f's_mov_b64 {sr(rWM, 2)}, {sr(KA + 20, 2)}')
        self.bl(wm, 4, vWM, rWM, T0, 0, 'nt', 'wm')
        self.bl(wm + 4, 4, vWM, rWM, T1, 0, 'nt', 'wm')
        a(f's_load_dword s{sTAG}, {sr(rWS, 2)}, {NONCE}')
        a(f's_mov_b64 {sr(rX, 2)}, {sr(KA, 2)}')
        a(f's_load_dword s{sPL}, {sr(rWS, 2)}, s{sINB} offset:0 glc')
        for q in range(2): a(f's_load_dword s{sPL + 1 + q}, {sr(rWS, 2)}, s{T4} offset:{q * 4096 + 508} glc')
        if o['tlb'] & 1:
            S(T6, '(w & 1)*2097152 + HF')
            a(f's_load_dword s{sPL + 5}, {sr(rWS, 2)}, s{T6} offset:0')
        if o['tsin']:
            S(T6, '(wg*8 + w)*512 + SINB')
            for q in range(2): a(f's_load_dword s{sPL + 3 + q}, {sr(rWS, 2)}, s{T6} offset:{q * 256 + 252} glc')
        if o.get('bar0', 1): a('s_barrier')
        self.bl(xs_raw, 4, vT + 4, rX, T3, 0, o.get('xsm', 'nt'), 'xs')
        self.bl(xs_raw + 4, 4, vT + 4, rX, T3, 512, o.get('xsm', 'nt'), 'xs')
        for srd, k in ((rW, 2), (rWO, 6), (rWG, 12), (rWU, 14), (rWD, 16), (rOUT, 22)):
            a(f's_mov_b64 {sr(srd, 2)}, {sr(KA + k, 2)}')
        a(f"""s_getpc_b64 {sr(sCMP, 2)}
        s_and_b32 s{sCMP}, s{sCMP}, 0xfffffc00""")
        S(T6, '(j*8 + w)*128')
        va(vT, [(5, 1, 32768)], T6)
        a(f'v_min_u32 v{vT}, CODE_KB, v{vT}')
        a(f'global_load_dword v{vT+7}, v{vT}, {sr(sCMP, 2)}'); vm.issue()
        S(sKH, 'w >> 2'); S(sRB, 'w & 3'); S(sW1K, 'w*1024')
        S(sFS, 'x*7 + (j >> 2)'); S(sKQ, 'j & 3')
        va(vT + 2, [(4, 1, 64)]); va(vWd, [(0, 3, 16)])
        a(f'v_xor_b32 v{vWd}, v{vWd}, v{vT+2}'); va(vT + 2, [(3, 3, 6144)]); a(f'v_add_u32 v{vWd}, v{vWd}, v{vT+2}')
        S(sU0, o.get('u0', 'j & 12')); S(sWB, 'w*49152 + hp*128')
        wq = self.wq = [(n, t) for n in range(6) for t in 'kvq']
        def w_next(cnt=1):
            for _ in range(cnt):
                n, t = wq.pop(0)
                if t == 'k':
                    if n < 4:
                        S(sY1, '((j >> 4)*q) ^ n', n=n, q=2 * o['xorw'])
                        S(sY0, '((y1 + u0) & 15)*UR + wb'); S(sY1, 'y1*8192 + w1k')
                    else:
                        S(sY0, '((u0 + n) & 15)*UR + wb', n=n); S(sY1, 'w1k + q', q=n * 8192)
                S(sU, 'y0 + q', q=dict(q=0, k=2048, v=4096)[t]); S('m0', 'y1 + q', q='kvq'.index(t) * REG)
                self.dma(vWd, rW, sU, 0, o.get('wm0', '') if n < 2 else o.get('wm1', ''), ('W', n))
        wb = list(o['wburst'])
        va(vL8, [(0, 6, 8)])
        a(f'v_add_u32 v{vL32S}, {MISC}, v{vL16}')
        S(T0, '(w >> 2)*1024 + MISC'); S(T1, 'w & 3')
        va(vGA, [(0, 2, 1)]); a(f'v_xor_b32 v{vGA}, s{T1}, v{vGA}\nv_lshl_add_u32 v{vGA}, v{vGA}, 2, s{T0}')
        va(vT + 2, [(4, 2, 32), (0, 3, 128), (3, 1, 16)]); a(f'v_add_u32 v{vGA}, v{vGA}, v{vT+2}')
        self.stamp('issued')
        def xt_load():
            for h in range(2):
                S('m0', 'w*2048 + q', q=L_XT + h * 1024)
                self.dma(vXT, rX, T5, 0, '', 'xt')
                if h == 0: S(T5, 'T5 + 16384')
        if o['xtat'] == 0: xt_load()
        S(T0, '((((w >> 1)*16 + ((j ^ 1) & 15))*2 + (j >> 4))*8 + x)*512 + AINB')
        S(T7, '((x & 6) + ((j & 24) + w)*8)*4096 + (j & 7)*512 + (x & 1)*256 + SINB')
        vm.wait('c')
        self.unpack(cv, cv + 1, cv + 1)
        for i in range(2): self.silu(cv + i, vT + i)
        w_next(o['wpre'][0])
        vm.wait('wm')
        self.stamp('wmok')
        w_next(o['wpre'][1])
        for s in self.gemv_ops([wm, wm + 4], [cv, cv + 1], acc, vT, vT + 1, True): a(s)
        a(f"""s_waitcnt lgkmcnt(0)
        s_mul_i32 s{sTAG}, s{sTAG}, 0x9e3779b1
        s_add_u32 s{sTAG}, s{sTAG}, 0x7f4a7c15""")
        self.dw('ds_write_b32', vGA, acc, 1, L_A1 - MISC)
        self.barrier()
        self.r128(acc, vL32S, L_A1 - MISC); self.r128(acc + 4, vL32S, L_A1 - MISC + 1024)
        if o['xtat'] == 1: xt_load()
        lg.wait_all()
        self.sum8(acc)
        a(f'v_mov_b32 v{acc+1}, s{sTAG}')
        a(f"""s_bitcmp1_b32 s{sWAVE}, 0
        s_cselect_b32 exec_lo, 0, -1
        s_cselect_b32 exec_hi, -1, 0""")
        self.bs(acc, 2, vL8, rWS, T0, 0, 'sc1')
        a('s_mov_b64 exec, -1')
        self.stamp('A1pub')
        w_next(wb[0])
        vm.wait('xs')
        self.stamp('xsok')
        u1 = vT + 4
        a(f'v_mov_b32 v{u1}, 0x3f803f80')
        for i in range(8):
            k = 2 * (i & 1)
            a(f'v_dot2_f32_bf16 v{vT+k}, v{xs_raw+i}, v{u1}, ' + ('0' if i < 2 else f'v{vT+k}'))
            a(f'v_dot2_f32_bf16 v{vT+k+1}, v{xs_raw+i}, v{xs_raw+i}, ' + ('0' if i < 2 else f'v{vT+k+1}'))
        S(T0, 'w*32 + L_ST'); va(u1, [(5, 1, 16), (4, 1, 8)], T0)
        self.pk('add', st, vT, vT + 2)
        va(vT + 1, [(0, 4, 16)], None, L_ST)
        va(vT, [(0, 4, 16), (4, 1, 4096)])
        for ctl in ('quad_perm:[1,0,3,2]', 'quad_perm:[2,3,0,1]', 'row_half_mirror', 'row_mirror'):
            self.dpp('v_add_f32', st, st, st, ctl); self.dpp('v_add_f32', st + 1, st + 1, st + 1, ctl)
        a(f"""v_permlane16_swap_b32 v{st}, v{st+1}
        v_add_f32 v{st}, v{st}, v{st+1}
        v_mov_b32 v{st+1}, s{sTAG}""")
        self.dw('ds_write_b64', u1, st, 2)
        self.barrier()
        self.r128(st, vT + 1)
        lg.wait_all()
        a('s_mov_b32 exec_hi, 0')
        self.bs(st, 4, vT, rWS, T7, 0, 'sc1')
        a('s_mov_b32 exec_hi, -1')
        self.stamp('A2pub')
        if o['xtat'] == 2: xt_load()
        w_next(wb[1])
        mg = acc
        def pre_work():
            va(vT, [(0, 5, 16), (5, 1, 4096)])
            S(T1, 'w & 3'); S(T2, '(w >> 2)*1024 + L_MP')
            va(vT + 1, [(4, 1, 1), (2, 1, 2)]); a(f'v_xor_b32 v{vT+1}, s{T1}, v{vT+1}\nv_lshl_add_u32 v{vT+1}, v{vT+1}, 2, s{T2}')
            va(vT + 2, POS + [(5, 1, 2048)]); a(f'v_add_u32 v{vT+1}, v{vT+1}, v{vT+2}')
            S(T1, '(wg*8 + w)*512 + SINB')
            va(vT + 4, [(0, 5, 16)])
        def x_unpack():
            S(T2, 'w*2048 + L_XT')
            va(hp, [(4, 2, 16)]); va(hp + 1, [(0, 3, 16)]); a(f'v_xor_b32 v{hp}, v{hp}, v{hp+1}')
            va(hp + 1, [(0, 4, 128)], T2); a(f'v_add_u32 v{hp}, v{hp}, v{hp+1}\nv_xor_b32 v{hp+1}, 64, v{hp}')
            vm.wait('xt')
            a(f'ds_read_b128 {vr(XR, 4)}, v{hp}\nds_read_b128 {vr(XR + 4, 4)}, v{hp+1}')
        def x_unpack2():
            for p, q in ((0, 2), (1, 3), (4, 6), (5, 7)): a(f'v_permlane32_swap_b32 v{XR+p}, v{XR+q}')
            for i in range(8): self.unpack(xs + 2 * i, xs + 2 * i + 1, XR + i)
        self.spoll([(q, 1, T4, q * 4096 + 508) for q in range(2)], range(2), work=pre_work)
        self.stamp('apre')
        if o.get('abar', 0): a('s_barrier')
        st_ld = lambda: self.bl(st, 4, vT + 4, rWS, T1, 0, 'sc1', 'st')
        def st_go():
            self.spoll([(q, 1, T1, q * 256 + 252) for q in range(2)], range(2), work=x_unpack)
            st_ld()
            if o['fbar']: a('s_barrier')
            w_next(wb[2])
            x_unpack2()
        self.try_load(lambda: self.bl(mg, 4, vT, rWS, T4, 0, 'sc1'), [mg + 1, mg + 3], vT + 3, st_go)
        self.stamp('modok')
        a(f'ds_write2_b32 v{vT+1}, v{mg}, v{mg+2} offset0:0 offset1:4'); lg.issue()
        self.barrier()
        for i in (2, 3, 0, 1): self.r128(mp + 4 * i, vL32S, L_MP - MISC + i * 1024, i >> 1)
        S(T0, 'hp*4096 + w*512')
        a(f'v_add_u32 v{vT}, s{T0}, v{vL16}')
        S('m0', 'w*512 + L_WPHI')
        a('s_mov_b32 exec_hi, 0')
        a(f'global_load_lds_dwordx4 v{vT}, {sr(pWPHI, 2)}'); vm.issue()
        a('s_mov_b32 exec_hi, -1')
        w_next(wb[3])
        S(T0, '((rt*16 + cb)*4 + (w >> 1))*4096 + (w & 1)*256 + HF')
        va(vT, [(0, 4, 16), (4, 1, 1024), (5, 1, 512)])
        def mod_sum():
            lg.wait(1); self.sum8(mp + 8)
            self.round1(mp + 8)
            lg.wait(0); self.sum8(mp)
            a(f'v_add_f32 v{mp+8}, 1.0, v{mp+8}')
            self.round2(mp + 8, mp)
        if not o['xfirst']: mod_sum()
        vm.wait('st')
        self.tagcheck([st + 1, st + 3], vT + 3)
        a('s_cbranch_vccz L_STOK')
        q0 = list(vm.q)
        self.poll(st_ld, [st + 1, st + 3], vT + 3)
        vm.q = q0
        a('L_STOK:')
        self.stamp('statok')
        a(f"""v_permlane16_swap_b32 v{st}, v{st+2}
        v_add_f32 v{st+3}, v{st}, v{st+2}
        v_mul_f32 v{st+2}, 0x3a800000, v{st+3}
        v_mul_f32 v{st+3}, 0x3a800000, v{st+3}
        v_permlane16_swap_b32 v{st+2}, v{st+3}
        v_fma_f32 v{st}, -v{st+2}, v{st+2}, v{st+3}
        v_cvt_pk_bf16_f32 v{st+1}, 0, v{st+2}
        v_max_f32 v{st}, 0, v{st}""")
        self.round1(st)
        for i in E2[:4]: self.pk('add', xs + i, xs + i, st + 1, bc=(1,), neg=(1,))
        a(f'v_add_f32 v{st}, 0x3727c5ac, v{st}')
        self.round1(st)
        a(f'v_sqrt_f32 v{st}, v{st}')
        for i in E2[4:]: self.pk('add', xs + i, xs + i, st + 1, bc=(1,), neg=(1,))
        self.round1(st)
        a(f'v_rcp_f32 v{st}, v{st}')
        self.round_list([xs + i for i in range(16)])
        for i in E2: self.pk('mul', xs + i, xs + i, st, bc=(1,))
        if o['xfirst']: mod_sum()
        self.round_list([xs + i for i in range(16)])
        for h in range(2):
            rg = range(8 * h, 8 * h + 8)
            for i in rg: self.dpp('v_mul_f32', xs + i, mp + 8, xs + i, f'row_newbcast:{i}')
            self.round_list([xs + i for i in rg])
            for i in rg: self.dpp('v_add_f32', xs + i, mp, xs + i, f'row_newbcast:{i}')
            for i in range(4 * h, 4 * h + 4): a(f'v_cvt_pk_bf16_f32 v{hp+i}, v{xs+2*i}, v{xs+2*i+1}')
            self.bs(hp + 4 * h, 4, vT, rWS, T0, 2048 * h, 'sc1', 'hs')
        self.stamp('hst')
        va(vB, [(2, 2, 128), (3, 1, 64), (4, 1, 32), (0, 2, 8), (5, 1, 512)])
        a(f'v_xor_b32 v{vB+1}, 64, v{vB}')
        for q in (1, 2):
            for h in range(2): a(f'v_add_u32 v{vB+2*q+h}, {q*REG}, v{vB+h}')
        va(vT + 1, [(0, 2, 8 * 4096), (2, 2, 4096)])
        S(T0, '((rt >> 3)*4 + (rt & 7)*32)*4096 + (cb >> 1)*64 + (cb & 1)*4 + INB')
        S(sAB, 'r1*262144 + rb*4096 + HF')
        a(f"""s_cmp_ge_u32 s{sJ}, {0 if o.get('noffn') else 28}
        s_cselect_b32 s{rWG+2}, 0, s{rWG+2}
        s_cselect_b32 s{rWU+2}, 0, s{rWU+2}
        s_cselect_b32 s{rWD+2}, 0, s{rWD+2}""")
        vm.wait('hs')
        a('s_barrier')
        self.push(vT + 1, T0, 16, vT + 2, 'L_PB')
        self.stamp('hpub')
        w_next(wb[4])
        vWo, vFG, vFD = vS0, vS1, SP + 5
        def setup():
            S(sWO, 'w*16384 + cb*128' if not o.get('fake84') else 'w*16384 + ((x & 3)*4 + (j & 3))*128'); S(sY2, '(j >> 2)*262144' if o.get('fake84') else '((j & 1)*8 + (j >> 3)*2)*131072' if o['worot'] else '(j & 1)*1048576')
            S(sFG, '(kq*8 + w)*(32*7168) + fs*128'); S(sFD, '(fs*8 + w)*16384 + kq*512')
            S(sM2, '((x & 3)*8 + w)*(32*12288) + (j*2 + (x >> 2))*128 + 4096')
            S(T1, '(w & 1)*64')
            va(vT + 2, [(4, 1, 32)], T1); va(vWo, [(0, 3, 16)])
            a(f'v_xor_b32 v{vWo}, v{vWo}, v{vT+2}'); va(vT + 2, [(3, 3, 2048)]); a(f'v_add_u32 v{vWo}, v{vWo}, v{vT+2}')
            S(T1, '(w & 2)*32'); va(vT + 2, [(4, 1, 32)], T1); va(vFG, [(0, 3, 16)])
            a(f'v_xor_b32 v{vFG}, v{vFG}, v{vT+2}'); va(vT + 2, [(3, 3, 7168)]); a(f'v_add_u32 v{vFG}, v{vFG}, v{vT+2}')
            S(T1, '(w & 1)*128')
            va(vT + 2, [(5, 1, 64)], T1); va(vFD, [(0, 5, 16), (5, 1, 2048)])
            a(f'v_xor_b32 v{vFD}, v{vFD}, v{vT+2}')
            S(T3, 'u0*16384'); a(f'v_add_u32 v{vCo}, s{sAB}, v{vL16}')
            S(T1, 'rb*2048 + L_QH'); a(f'v_add_u32 v0, s{T1}, v{vL16}')
        S(T6, 'wg*4096 + INB'); S(T7, '(w & 3)*128 + T6'); S(T6, 'u0*32 + T6')
        a(f's_cmp_ge_u32 s{sWAVE}, 4\ns_cselect_b32 s{T6}, s{T7}, s{T6}')
        bpoll = self.bpoll = lambda work=None: self.spoll([(0, 2, T6, 0), (2, 2, T6, 64)], range(4), work)
        if o['lateB']:
            def bw():
                w_next(wb[5]); setup()
                if o['fF']:
                    a(f's_cmp_lt_u32 s{sWAVE}, 4\ns_cbranch_scc1 L_NFF')
                    for k in range(o['fF']):
                        for far in range(2):
                            S(sU, 'fg + q', q=(k * 8 * 7168 - far * 4 * 32 * 7168) & 0xffffffff)
                            a(f'buffer_load_dwordx4 {vr(AK + 8*k + 4*far, 4)}, v{vFG}, {sr(rWG, 4)}, s{sU} offen nt')
                    a('L_NFF:')
                a(';TOUR')
                a(f's_cmp_ge_u32 s{sWAVE}, 4\ns_cbranch_scc1 L_HELP')
            bpoll(bw)
        else: bpoll(lambda: (w_next(wb[5]), setup(), a(';TOUR')))
        assert len(wq) >= 6
        assert len(wq) % 3 == 0 and len(wq) <= (6 if o['xorw'] else 12)

    def gemm1(self):
        a, vm, lg, o, S, va = self.a, self.vm, self.lg, self.o, self.S, self.vaa
        LOOK = o['LOOK']; NB = LOOK + 1; assert NB <= 7
        vWo, vFG, vFD, vHo = vS0, vS1, SP + 5, 0
        self.vWo, self.vFG, self.vFD = vWo, vFG, vFD
        m2w, m2c = AV, AV + 24
        FL = self.FL = AK
        cur = self.cur = [0]
        TOK = [(0, 3, 16), (3, 2, 256), (5, 1, 128)]
        def cvt8(d, s_):
            for i in range(8): a(f'v_cvt_pk_bf16_f32 v{d+i}, v{s_+2*i}, v{s_+2*i+1}')
        self.cvt8 = cvt8
        fq = self.fq = [(m, i) for m in range(3) for i in range(4)]
        held = self.held = ([], [])
        def f_src(m, i, far=0):
            q = (i * 8 * 7168 + far * 4 * 32 * 7168, i * 4096 + far * 4 * 16384)[m == 2]
            S(sU, ('fg', 'fd')[m == 2] + ' + q', q=q & 0xffffffff)
            return (vFG, (rWG, rWU)[m]) if m < 2 else (vFD, rWD)
        def f_lds(m, i): return (L_GU + m * 32768 if m < 2 else L_DN) + i * 1024
        def f_ld(g, k, far, count=True):
            m, i = held[g][k]
            v, r = f_src(m, i, far * (1 - 2 * g))
            a(f'buffer_load_dwordx4 {vr(FL + 8*k + 4*far, 4)}, v{v}, {sr(r, 4)}, s{sU} offen nt')
            if count: vm.issue('ffn')
        sym = self.sym = []
        def ffn_reg(n=1):
            for _ in range(n):
                m, i = fq.pop(0)
                r0 = 8 * len(held[1]) + 4 * len(sym); assert r0 < 64 and (r0 < 32 or o['m2c'] >= 3)
                assert o['m2c'] != 4 or r0 < 32 or 'm2pub' in self.marks
                v, r = f_src(m, i)
                self.bl(FL + r0, 4, v, r, sU, 0, 'nt', 'ffr')
                sym.append((m, i, FL + r0))
        def ffn_dma(n=1):
            for _ in range(n):
                m, i = fq.pop(0)
                v, r = f_src(m, i)
                S('m0', 'w1k*4 + q', q=f_lds(m, i))
                self.dma(v, r, sU, 0, 'nt', 'ffn' if m < 2 or not o['dnsplit'] else 'fdn')
        self.ffn_reg, self.ffn_dma, self.f_lds = ffn_reg, ffn_dma, f_lds
        for _ in range(o['fA']): held[1].append(fq.pop(0))
        def m2_ld(i):
            if i == 0:
                S(sU, '((x & 3)*8 + w)*64'); self.va(m2c + 4, [(3, 3, 2)], sU, 0, m2c + 5)
                for k in range(4): a(f'global_load_ushort v{m2c+k}, v{m2c+4}, {sr(pC, 2)} offset:{16*k}'); vm.issue('m2')
            S(sU, 'm2 + q', q=i * 8 * 12288)
            self.bl(m2w + 4 * i, 4, self.vWM, rWM, sU, 0, 'nt', 'm2')
        wslot = lambda p: p
        def wo_dma(p, back=0):
            S(sU, '(y2 ^ q) + wo' + (' - 65536' if back else ''), q=p * 131072)
            S('m0', 'w1k + q', q=wslot(p) * 8192 - 4096 * back)
            self.dma(vWo, rWO, sU, 0, o.get('wom', ''), 'wo')
        self.wo_dma = wo_dma
        def poison(backs, t):
            a(f'v_mov_b32 v{t}, -1\nv_mov_b32 v{t+1}, -1\nv_mov_b32 v{t+2}, -1\nv_mov_b32 v{t+3}, -1')
            for back in backs:
                S(T6, '((rt*8 + w - q)*16 + cb)*256 + ST', q=4 * back); self.va(t + 4, [(0, 6, 4)])
                self.bs(t, 1, t + 4, rWS, T6, 0, 'sc1')
            S(T6, 'rt*16384 + cb*512 + XS'); self.va(t + 4, [(0, 5, 16), (5, 1, 8192)], None, 0, t + 5)
            a(f's_cmp_lg_u32 s{sWAVE}, 5\ns_cbranch_scc1 L_NOPO')
            self.bs(t, 4, t + 4, rWS, T6, 0, 'sc1', count=False)
            a('L_NOPO:')
        self.poison = poison
        def kv_prep():
            vPA, vPB, ones = AK + 28, AK + 29, AK + 24; assert o['fA'] <= 3
            self.va(vPB, [(0, 1, 8), (2, 2, 16), (4, 1, 64), (1, 1, 128), (5, 1, 256)], None, 0, vPA)
            S(T0, 'w*4096 + L_PHK'); a(f'v_add_u32 v{vPA}, s{T0}, v{vPB}')
            S(T0, 'kh*8192 + L_HV'); a(f'v_add_u32 v{vPB}, s{T0}, v{vPB}')
            for i in range(4): a(f'v_mov_b32 v{ones+i}, 0x3f803f80')
            S(T0, '((hp*8 + w)*32 + r1)*1024 + KVP'); S(T2, 'T0 + 16384')
            S(T3, '(hp*8 + w)*1024 + ZP'); S(T1, 'r1*64 + T3')
        seq = []
        for sg in range(36): seq += [(t, h, sg) for t in 'kqv' for h in range(2)]
        for sg in range(36, 40): seq += [('k', h, sg) for h in range(2)]
        for sg in range(36, 40): seq += [(t, h, sg) for t in 'qv' for h in range(2)]
        for h in range(2): seq += [('k', h, sg) for sg in range(40, 64)]
        for t in 'vq':
            for sg in range(40, 64): seq += [(t, h, sg) for h in ((1, 0) if (t, sg) == ('q', 63) else (0, 1))]
        bA, bH, bQ = o['bA'], o['bH'], 335
        assert bA >= 271
        bars = [24 * k - 1 for k in range(1, 10)] + [223, 239, 253, bA, bH, bQ]
        first, last = {}, {}
        for n, (t, h, sg) in enumerate(seq):
            first.setdefault(f'{t}{sg >> 2}', n); last[f'{t}{sg >> 2}'] = n; last[('A', sg)] = n
        if not o['lateB']: a(f's_cmp_ge_u32 s{sWAVE}, 4\ns_cbranch_scc1 L_HELP')
        a(f's_setprio {o["prio"]}')
        q_hok = list(vm.q)
        ACC = dict(k=AK, v=AV, q=AQ)
        nxt = [0]; late = []
        def a_load():
            while late: a(late.pop(0))
            sg = nxt[0]; nxt[0] += 1
            assert sg < 16 or cur[0] > bars[0]
            if o.get('noA') and sg >= 12: return
            self.bl(AR + 4 * (sg % 24), 4, SP + 1, rWS, T3, (sg % 4) * 1024, 'sc1', ('A', sg))
            if sg % 4 == 3: late.extend([f's_add_u32 s{T3}, s{T3}, 16384', f's_and_b32 s{T3}, s{T3}, 0x3ffff'])
        def b_read(n):
            t, h, sg = seq[n]
            s = sg & 3
            off = ((sg >> 2) % 6) * 8192 + (s >> 1) * 4096 + (s & 1) * 1024
            d = RING + 4 * (n % NB); v = vB + 2 * 'kvq'.index(t) + h
            self.tr(d, v, off, ('B', n)); self.tr(d + 2, v, off + 2048, ('B', n))
        self.nopk = True
        stk, stv = Stream(self), Stream(self)
        for h in range(2):
            for q in range(2):
                stk.cap(lambda: [a(f'v_cvt_pk_bf16_f32 v{AK+16*h+4*q+i}, v{AK+16*h+8*q+2*i}, v{AK+16*h+8*q+2*i+1}') for i in range(4)])
                stk.add(lambda h=h, q=q: self.dw('ds_write_b128', vHo, AK + 16 * h + 4 * q, 4, q * 1024, f'kh{h}'), o['wcost'], 1)
            stk.mark(f'kh{h}')
            if h == 0:
                stk.cap(lambda: a(f'v_subrev_u32 v{vHo}, {L_QH - L_HV}, v{vHo}'))
                stk.until(288 + o['kdel'])
        stk.until(bH + 1)
        stk.cap(lambda: (S(T1, 'rb*2048 + L_HV'), self.va(vHo, TOK, T1, 0, vT)))
        for h in range(2):
            for q in range(2):
                stv.cap(lambda: [a(f'v_cvt_pk_bf16_f32 v{AV+16*h+4*q+i}, v{AV+16*h+8*q+2*i}, v{AV+16*h+8*q+2*i+1}') for i in range(4)])
                stv.add(lambda h=h, q=q: self.dw('ds_write_b128', vHo, AV + 16 * h + 4 * q, 4, h * 8192 + q * 1024, 'vst'), o['wcost'], 1)
        stv.cap(kv_prep)
        if o['m2c'] == 0:
            stv.sleep(4)
            stv.add(lambda: lg.wait('vst'))
            for i in range(4): stv.add(lambda i=i: m2_ld(i), 0, 1); stv.sleep(o.get('fgap', 4))
        while nxt[0] < o['A00']: a_load()
        vm.wait(('W', 3 if o['xorw'] else 1))
        a('s_barrier')
        self.stamp('hok')
        if not nxt[0]: a_load()
        for n in range(LOOK): b_read(n)
        while nxt[0] < o['A0']: a_load()
        seen = set(); lpend = []; owe = [0]
        Apos = list(o['Apos']); assert o['A0'] + sum(Apos) == 64
        for n in range(384):
            t, h, sg = seq[n]; cur[0] = n
            if ('A', sg) not in seen:
                assert sg < nxt[0]
                vm.wait(('A', sg)); seen.add(('A', sg))
            pw = o['pairw1']
            if n % pw == 0: lg.wait(('B', n + pw - 1))
            if o.get('al8') is not None: a.items.append(('raw', ';AL8'))
            d = ACC[t] + 16 * h
            a(f'v_mfma_f32_32x32x16_bf16 {vr(d, 16)}, {vr(RING + 4*(n % NB), 4)}, {vr(AR + 4*(sg % 24), 4)}, ' + (vr(d, 16) if sg else '0'))
            if self.prof and o.get('ls'):
                l0, l1, lst = o['ls']
                if lpend and n >= lpend[0][0]:
                    _, r_, k_ = lpend.pop(0); a(f'v_writelane_b32 v255, s{r_}, {k_}')
                if l0 <= n < l1 and (n - l0) % lst == 0:
                    r_ = sPL + 2 * (self.nst % 4)
                    a.items.append(('raw', f'    s_memtime {sr(r_, 2)}')); lpend.append((n + 4, r_, self.nst)); self.stnames.append(f'n{n}'); self.nst += 1
            def a_try():
                p, r = divmod(n, 24)
                ao = o['aoff'] if p else 0; r -= ao
                if n < 240 and r >= 0 and (r + 1) * Apos[p] // (24 - ao) > r * Apos[p] // (24 - ao): owe[0] += 1
                if owe[0] and (nxt[0] < 24 or last[('A', nxt[0] - 24)] <= n): a_load(); owe[0] -= 1
                elif late: a(late.pop(0))
            if o['apos'] == 0: a_try()
            bud = [o['kbud'], 1]
            if n >= 264 + o['kdel']: stk.pull(bud, bud[0])
            bud = [o['vbud'], 1]
            if n > bQ + 2: stv.pull(bud, bud[0])
            if n + LOOK < 384: b_read(n + LOOK)
            if o['apos'] == 1: a_try()
            if n in bars:
                if n in (bA, bH):
                    assert f'kh{int(n == bH)}' in self.marks
                    lg.wait(f'kh{int(n == bH)}')
                    if 'prio2' in o and n == bA: a(f's_setprio {o["prio2"]}')
                if not (o.get('noB') and n < 200): a('s_barrier')
                if o.get('gst'): self.stamp(f'b{n}')
        assert not (stk.q or stv.q) and nxt[0] == 64
        self.stamp('gemm1')
        vq, wph = AR + 16, AR + 24
        S(T4, 'rb*2048 + L_QH'); a(f'v_add_u32 v{vHo}, s{T4}, v{vL16}')
        va(vT, [(2, 2, 64), (4, 1, 32), (0, 2, 8), (5, 1, 256)], None, L_WPHI)
        for s in range(2):
            for u in range(2): self.tr(wph + 4 * s + 2 * u, vT, s * 1024 + u * 512)
        cvt8(AR, AQ + 16)
        for q in range(2): self.dw('ds_write_b128', vHo, AR + 4 * q, 4, q * 1024)
        cvt8(vq, AQ)
        if o['m2c'] == 1:
            for i in range(4): m2_ld(i)
        a('s_setprio 0')
        a('s_branch L_JOIN')
        a('L_HELP:')
        vm.q = list(q_hok) + ['ffn'] * (2 * o['fF']); lg.reset()
        vm.wait(('W', 3 if o['xorw'] else 1))
        a('s_barrier')
        vis = {}
        pace = [1]
        def w_sec(t, n):
            if o.get('noW'): return
            for back in (1, 0):
                S(sU, '((u0 + n) & 15)*UR + wb + q', n=n, q=(dict(q=0, k=2048, v=4096)[t] - back * 4 * 49152) & 0xffffffff)
                S('m0', 'w1k + q', q='kvq'.index(t) * REG + (n % 6) * 8192 - back * 4096)
                self.dma(vWd, rW, sU, 0, '', ('W', t, n))
                if o['wpace'] and pace[0]: a(f's_waitcnt vmcnt({o["wpace"]})')
        ka, wp2, pa, pb, ee, vPW = AR, AR + 16, AR + 32, AR + 48, AR + 64, AR + 80
        if o['lateB']:
            lg.wait_all(); self.bpoll(lambda: [w_sec(t, n) for n, t in self.wq])
        else:
            for n, t in self.wq: w_sec(t, n)
        def h_setup():
            va(vT, [(2, 2, 64), (4, 1, 32), (0, 2, 8), (5, 1, 256)], None, L_WPHI)
            for hs in range(4):
                for u in range(2): self.tr(wp2 + 4 * hs + 2 * u, vT, hs * 1024 + u * 512)
            S(T1, 'rb*1024 + L_PHK'); va(vPW, TOK, T1)
        def touch(boxes):
            a('s_waitcnt lgkmcnt(0)')
            for q, b in enumerate(boxes):
                a(f's_load_dword s{sPL + 2*q}, {sr(rWS, 2)}, s{sINB} offset:{b * 512} glc')
                a(f's_load_dword s{sPL + 2*q + 1}, {sr(rWS, 2)}, s{sINB} offset:{b * 512 - 256} glc')
        wsched = {int(k): v.split() for k, v in o['wsched'].items()}
        for k in range(1, 5): wsched[k] = [f'{t}{k + 5}' for t in 'kqv'] + wsched.get(k, [])
        need = {}
        for u in first:
            k = len([b for b in bars if b < first[u] - LOOK])
            if k: need.setdefault(k, []).append(u)
        done = {f'{t}{n}' for n in range(6) for t in 'kvq'}
        def h_bar(k):
            if k < 5: vm.wait(('W', k + 1))
            for u in need.get(k, []):
                assert u in done, (u, k)
                vm.wait(('W', u[0], int(u[1:])))
            if not (o.get('noB') and k < 9): a('s_barrier')
            for u in wsched.get(k, []):
                assert last[f'{u[0]}{int(u[1:]) - 6}'] <= bars[k - 1], (u, k)
                w_sec(u[0], int(u[1:])); done.add(u)
        hm, hc, ha, ht = AV, AQ, AQ + 8, AQ + 16
        if o.get('fP'): S(T4, o['fP'])
        if o['m2c'] == 4:
            hc, ha, ht = RING + 8, AR + 44, vT + 4
            def m2h(i):
                S(sU, 'T6 + q', q=i * 12288)
                self.bl(hm + 4 * i, 4, self.vWM, rWM, sU, 0, 'nt', 'm2h')
        def m2_setup():
            if o['m2c'] >= 3:
                S(T5, o['m2k3'])
                assert o['m2c'] == 4
                S(sU, '((x & 3)*4 + w - 4)*128'); self.va(ht, [(3, 3, 16)], sU)
                a(f'global_load_dwordx4 {vr(hc + 4, 4)}, v{ht}, {sr(pC, 2)}'); vm.issue('c2')
                va(self.vWM, [(3, 3, 8 * 12288), (0, 3, 16)])
                S(T6, '((x & 3)*4 + w - 4)*(64*12288) + (j*2 + (x >> 2))*128 + 4096')
        for k in range(1, 14):
            if k == 13: lg.wait_all()
            if o['m2c'] == 3 and k == o['m2e'] + 1: lg.wait_all()
            h_bar(k)
            if k == 1: h_setup(); m2_setup()
            if o['m2c'] == 4 and k == o['m2k0']:
                for i in range(o['m2n0']): m2h(i)
            if o['m2c'] == 4 and k == 3:
                vm.wait('c2')
                for i in range(4): self.unpack(hc + 2 * i, hc + 2 * i + 1, hc + 4 + i) if i < 3 else (a(f'v_lshlrev_b32 v{hc+6}, 16, v{hc+7}'), a(f'v_and_b32 v{hc+7}, s{sMASK}, v{hc+7}'))
                for i in range(8): self.silu(hc + i, ht + (i & 1))
            if o['m2c'] == 3:
                nb = o['m2nb']
                for b in range(nb):
                    if k <= o['m2g'] - o.get('m2lag', 2) and k - b * o['m2db'] >= 1:
                        a(f's_cmp_lg_u32 s{T5}, {k - b * o["m2db"]}\ns_cbranch_scc1 L_NM2_{k}_{b}')
                        for i in range(b * 8 // nb, (b + 1) * 8 // nb):
                            S(sU, 'T6 + q', q=i * 8 * 12288)
                            a(f'buffer_load_dwordx4 {vr(hm + 4*i, 4)}, v{self.vWM}, {sr(rWM, 4)}, s{sU} offen nt')
                        a(f'L_NM2_{k}_{b}:')
                if k == 3:
                    vm.wait('c2')
                    for i in range(8):
                        a(f'v_lshlrev_b32 v{hc+i}, 16, v{hc+i}')
                        self.silu(hc + i, ht + (i & 1))
                g0 = o['m2g']
                ke = o['m2e']
                if g0 <= k <= ke:
                    if k == g0:
                        vm.wait(('W', 'k', k + 4 if o.get('m2lag', 2) == 2 else k + 5))
                        mops = self.gemv_ops([hm + 4 * i for i in range(8)], [hc + i for i in range(8)], ha, ht, ht + 1, False)
                    if o.get('gprio'): a('s_setprio 3')
                    for _ in range(len(mops) if k == ke else 144 // (ke + 1 - g0)): a(mops.pop(0))
                    if o.get('gprio'): a('s_setprio 0')
                    if k == ke: self.dw('ds_write_b32', self.vGA, ha, 1, L_M2 - MISC)
                if k == ke + 1:
                    a(f"""s_cmp_lg_u32 s{sWAVE}, 4
                    s_cbranch_scc1 L_M2F
                    ds_read_b128 {vr(ha, 4)}, v{self.vL32S} offset:{L_M2 - MISC + 1024}""")
                    S(T0, '((j*2 + (x >> 2))*4 + (x & 3))*512 + MODP2')
                    a(f"""s_waitcnt lgkmcnt(0)
                    v_add_f32 v{ha}, v{ha}, v{ha+1}
                    v_add_f32 v{ha+2}, v{ha+2}, v{ha+3}
                    v_mov_b32 v{ha+1}, s{sTAG}
                    v_add_f32 v{ha}, v{ha}, v{ha+2}""")
                    self.bs(ha, 2, self.vL8, rWS, T0, 0, 'sc1', count=False)
                    a('L_M2F:')
            if o.get('fP') and k <= 8:
                a(f's_cmp_lg_u32 s{T4}, {k}\ns_cbranch_scc1 L_NFP_{k}')
                for i in range(o.get('fPn', o['fA'])):
                    for far in range(2): f_ld(1, i, far, False)
                a(f'L_NFP_{k}:')
            if k == 2 and o['poisat'] == 0: poison((0, 1), AR + 88); S(T6, '((x & 3)*4 + w - 4)*(64*12288) + (j*2 + (x >> 2))*128 + 4096')
            if k in (1, 3, 5) and o.get('touch', 1): touch({1: (1, 7), 3: (2, 3), 5: (5, 6)}[k])
            if k == o['tlbk'] and o['tlb'] & 2:
                a(f's_cmp_lg_u32 s{sWAVE}, 7\ns_cbranch_scc1 L_NTLB\ns_waitcnt lgkmcnt(0)')
                S(T0, '(j & 15)*2097152'); S(T1, '(j & 3)*2097152'); S(T2, '(j & 1)*2097152')
                a(f's_load_dword s{sPL}, {sr(rWS, 2)}, s{T0} offset:0')
                for q, r in enumerate((rWG, rWU, rWD)): a(f's_load_dword s{sPL + 1 + q}, {sr(r, 2)}, s{T1} offset:0')
                a(f's_load_dword s{sPL + 4}, {sr(rOUT, 2)}, s{T2} offset:0')
                a(f's_load_dword s{sPL + 5}, {sr(rWO, 2)}, 0')
                a('L_NTLB:')
            if k == 4 and o.get('tm2'):
                S(T0, '((j*2 + (x >> 2))*4 + (x & 3))*512 + (w - 4)*128 + MODP2')
                a('s_waitcnt lgkmcnt(0)')
                for q in range(2): a(f's_load_dword s{sPL + q}, {sr(rWS, 2)}, s{T0} offset:{q * 64} glc')
            if k == 6 and o['tz']:
                S(T0, '(hp*8 + w - 4)*1024 + r1*64 + ZP'); S(T1, '(rt*16 + cb)*64 + UP')
                a('s_waitcnt lgkmcnt(0)')
                for q in range(2): a(f's_load_dword s{sPL + q}, {sr(rWS, 2)}, s{T0} offset:{q * 4096} glc')
                a(f's_load_dword s{sPL + 2}, {sr(rWS, 2)}, s{T1} offset:0 glc')
            if k == 12: kv_prep()
            if k == 8 and o.get('touch', 1):
                S(T0, 'fs*8192 + (w - 4)*256 + HGR')
                a('s_waitcnt lgkmcnt(0)')
                for q in range(4): a(f's_load_dword s{sPL + q}, {sr(rWS, 2)}, s{T0} offset:{q * 2048 + 1024 + 252} glc')
        pace[0] = 0
        def logits(h, pp):
            if o.get('hprio'): a(f's_setprio {o["hprio"]}')
            for q in range(2): self.r128(ka + 4 * q, vHo, q * 1024, ('kh', q))
            if h == 0: a(f'v_subrev_u32 v{vHo}, {L_QH - L_HV}, v{vHo}')
            for q in range(2):
                lg.wait(('kh', q))
                a(f'v_mfma_f32_32x32x16_bf16 {vr(pp, 16)}, {vr(wp2 + 8*h + 4*q, 4)}, {vr(ka + 4*q, 4)}, ' + (vr(pp, 16) if q else '0'))
            if o.get('hprio') and not o.get('hlong'): a('s_setprio 0')
        logits(0, pa)
        self.stamp('klog')
        hs = Stream(self)
        for h, pp in ((0, pa), (1, pb)):
            hs.cap(lambda: self.softmax_pm(pp, ee, ee, vT))
            k = max(i for i, it in enumerate(hs.q) if it[0] == 4.75) - 8
            tailq = hs.q[k + 1:]; hs.q = hs.q[:k + 1]
            wr = lambda fb, h=h: (0, 0, lambda: self.dw('ds_write_b128', vPW, ee + 4 * fb, 4, h * 16384 + fb * 4096, ('phk', h)))
            hs.q += [wr(0)] + tailq[:4] + [wr(1), wr(2)] + tailq[4:] + [wr(3)]
            if h == 0:
                n1 = len(hs.q)
                hs.add(lambda: None)
        hs.q.insert(n1 + 34, (0, 0, lambda: lg.wait(('phk', 0))))
        ex = {}
        def put(i, fn):
            while i in ex: i += 1
            ex[i] = fn
        nq = int(n1 * o['hq'])
        put(nq, lambda: h_bar(15))
        nh = int(n1 * o['hh'])
        put(nh, lambda: (h_bar(14), logits(1, pb)))
        g1, g2 = o['hgap']
        if o.get('hpf'):
            put(int(n1 * o['hpf'][0]), lambda: a('s_setprio 3')); put(int(n1 * o['hpf'][1]), lambda: a('s_setprio 0'))
        ff = [(lambda k=k, far=far: f_ld(1, k, far)) for k in range(o['fA']) for far in range(2) if not (o.get('fP') and k < o.get('fPn', 9)) and k >= o['fF']]
        pre = [(lambda k=k: m2_ld(k)) for k in range(4)] if o['m2c'] < 2 else []
        if o['m2c'] == 4:
            for i in range(o['m2n0'], 8): put(3 + o['m2gap'] * (i - o['m2n0']), lambda i=i: m2h(i))
            self.m2h = (hm, hc, ha, ht)
        npre = o['fpre'] - len(pre)
        pre += ff[:npre]; ff = ff[npre:]
        for k, fn in enumerate(pre): put(nh + 5 + g1 * k, fn)
        wl = self.wo_left = [6, 7, 8, 9, 10, 11] + [12, 13, 14, 15] + [0, 1, 2, 3, 4, 5]
        post = []
        for k in range(o['woA']): post += [lambda: wo_dma(wl[0], 1), lambda: wo_dma(wl.pop(0))]
        post = post[:8] + ff + post[8:] if o.get('wofirst', 1) else ff + post
        for k, fn in enumerate(post): put(nq + 5 + g2 * k, fn)
        for i, (v_, l_, fn) in enumerate(hs.q):
            if i in ex: ex.pop(i)()
            fn()
        for i in sorted(ex): ex[i]()
        self.nopk = False
        S(T4, 'rb*2048 + L_QH'); a(f'v_add_u32 v{vHo}, s{T4}, v{vL16}')
        assert wph == wp2 + 8
        if o.get('hprio'): a('s_setprio 0')
        self.stamp('ksm')
        self.m2after = vm.q[::-1].index('m2h') if 'm2h' in vm.q else 60
        a('L_JOIN:')
        vm.q = ['m2'] * (8 if o['m2c'] < 2 else 0); lg.q = [None]
        self.m2_ld = m2_ld
        self.vHo = vHo

    def middle(self):
        a, vm, lg, o, S, va = self.a, self.vm, self.lg, self.o, self.S, self.vaa
        vL8, vL32S, vGA, vHo, ffn_reg = self.vL8, self.vL32S, self.vGA, self.vHo, self.ffn_reg
        pp, ee, ph, vq, wph = AQ, AQ + 16, AR, AR + 16, AR + 24
        fA, fB, kvd, zd, ones = AR + 32, AR + 48, AR + 80, AR + 88, AK + 24
        kp, zz, zf, kf, k2 = AR + 32, AR + 40, AR + 44, AR + 60, AR + 76
        m2w, m2a, m2c, m2t = AV, AV + 16, AV + 24, AV + 28
        vPA, vPB, vPC, vKP, vXF = AK + 28, AK + 29, RING + 18, RING + 19, RING + 20
        md, wr1 = RING, RING + 4
        self.md, self.wr1 = md, wr1
        wl = self.wo_left
        wo1 = lambda: self.wo_dma(wl.pop(0))
        fw = o['fwin']
        self.barrier()
        self.stamp('phik')
        def kvm(u):
            lg.wait(('kv', u))
            for db in range(2):
                a(f'v_mfma_f32_16x16x32_bf16 {vr(kvd + 4*db, 4)}, {vr(fA + 4*u, 4)}, {vr(fB + 8*u + 4*db, 4)}, ' + ('0' if u == 0 else vr(kvd + 4*db, 4)))
            a(f'v_mfma_f32_16x16x32_bf16 {vr(zd, 4)}, {vr(fA + 4*u, 4)}, {vr(ones, 4)}, ' + ('0' if u == 0 else vr(zd, 4)))
        for ts in range(4):
            self.tr(fA + 4 * ts, vPA, ts * 1024, ('kv', ts)); self.tr(fA + 4 * ts + 2, vPA, ts * 1024 + 512, ('kv', ts))
            for db in range(2):
                for rd in range(2): self.tr(fB + 8 * ts + 4 * db + 2 * rd, vPB, ts * 2048 + db * 1024 + rd * 512, ('kv', ts))
            if ts >= 2: kvm(ts - 2)
        kvm(2); kvm(3)
        a(f"""s_cmp_lt_u32 s{sWAVE}, 4
        s_cbranch_scc1 L_NOQX
        ds_read_b128 {vr(vq, 4)}, v{vHo}
        ds_read_b128 {vr(vq + 4, 4)}, v{vHo} offset:1024
        L_NOQX:""")
        self.bs(kvd, 4, vL16, rWS, T0, 0, 'sc1', 'kvs')
        self.bs(kvd + 4, 4, vL16, rWS, T2, 0, 'sc1', 'kvs')
        a('s_mov_b32 exec_lo, 0x00010001')
        a('s_mov_b32 exec_hi, 0x00010001')
        self.bs(zd, 4, vL, rWS, T1, 0, 'sc1', 'kvs')
        a('s_mov_b64 exec, -1')
        lg.wait_all()
        a(f'v_mfma_f32_32x32x16_bf16 {vr(pp, 16)}, {vr(wph, 4)}, {vr(vq, 4)}, 0')
        a(f'v_mfma_f32_32x32x16_bf16 {vr(pp, 16)}, {vr(wph + 4, 4)}, {vr(vq + 4, 4)}, {vr(pp, 16)}')
        self.stamp('kvst')
        if o['wo0']:
            a('s_barrier')
            for _ in range(o['wo0']): assert wl[0] >= 6; wo1()
        if o['poisat'] == 1: self.poison((0,), AR + 84)
        if o['m2c'] == 2:
            for i in range(4): self.m2_ld(i)
        va(vPC, [(0, 3, 32 * 4096), (3, 1, 4 * 4096)])
        S(T4, '(wg & 0x1b)*4096 + (r1 >> 1)*64 + (r1 & 1)*4 + INB + 512')
        va(vKP, [(3, 3, 1024), (0, 3, 16)])
        va(vXF, [(0, 3, 16), (5, 1, 8)])
        qm, qs = o['qmid'], o['qsplit']
        MR = o['mrot']
        def halves(fc, fh):
            L1, L2 = a.label('L_H'), a.label('L_J')
            a(f's_cmp_ge_u32 s{sWAVE}, 4\ns_cbranch_scc1 {L1}')
            q, w_ = list(vm.q), list(wl)
            fc()
            a(f's_branch {L2}\n{L1}:')
            vm.q = q; wl[:] = w_
            fh()
            a(f'{L2}:')
        def m2_pub(off):
            a(f"""s_cmp_lg_u32 s{sWAVE}, 3
            s_cbranch_scc1 L_M2F
            ds_read_b128 {vr(ha, 4)}, v{vL32S} offset:{off + 1024}""")
            S(T5, '((j*2 + (x >> 2))*4 + (x & 3))*512 + MODP2')
            a(f"""s_waitcnt lgkmcnt(0)
            v_add_f32 v{ha}, v{ha}, v{ha+1}
            v_add_f32 v{ha+2}, v{ha+2}, v{ha+3}
            v_mov_b32 v{ha+1}, s{sTAG}
            v_add_f32 v{ha}, v{ha}, v{ha+2}""")
            self.bs(ha, 2, vL8, rWS, T5, 0, 'sc1', count=False)
            a('L_M2F:')
            self.marks.add('m2pub')
        if o['m2c'] == 4:
            hm, hc, ha, ht = self.m2h
            hops = self.gemv_ops([hm + 4 * i for i in range(8)], [hc + i for i in range(8)], ha, ht, ht + 1, True)
        if MR:
            def g_():
                a(f's_waitcnt vmcnt({self.m2after + 3})')
                for s_ in hops: a(s_)
                a(f'ds_write_b32 v{vGA}, v{ha} offset:{L_A1 - MISC}\ns_waitcnt lgkmcnt(0)')
            halves(lambda: self.softmax_pm(pp, ee, ph, vT, part=1, split=qm), g_)
        else: self.softmax_pm(pp, ee, ph, vT, part=1, split=qm)
        vm.wait('kvs')
        a('s_barrier')
        self.push(vPC, T4, 16, vPB, 'L_PC')
        self.stamp('kvpub')
        if o['poisat'] == 2: self.poison((0,), AR + 84)
        exps = lambda: [a(f'v_exp_f32 v{r+i}, v{r+i}') for i in range(qm, qs) for r in (ee, pp)]
        if MR: m2_pub(L_A1 - MISC)
        else: self.weave(exps, [wo1] * o['wowin'][0])
        S(T0, '(hp*16 + r1)*16384 + w*128 + KVP'); S(T1, 'T0 + 8192')
        S(T2, '(hp*16 + r1)*1024 + w*128 + KIN'); S(T4, 'T4 + 6*512')
        def sel_prep2():
            vDr, vHs, vSt = RING + 7, RING + 26, RING + 27
            S(T6, 'w*64')
            va(vDr, [(2, 1, 512), (3, 1, 4096), (5, 1, 2048), (2, 2, 64), (4, 1, 32), (0, 2, 8)])
            a(f'v_xor_b32 v{vDr}, s{T6}, v{vDr}'); a(f'v_add_u32 v{vDr}, {L_DN}, v{vDr}')
        def sel_prep():
            vGr, vXs = RING + 6, RING + 24; assert o['AD2'] <= 8
            S(T6, '(w >> 2)*32768 + (w & 3)*32 + L_GU')
            va(vGr, [(4, 2, 8192), (2, 2, 128), (3, 2, 32), (0, 2, 8)]); a(f'v_xor_b32 v{vGr}, s{T6}, v{vGr}')
            S(T6, 'kq*2048 + XS'); va(vXs, [(0, 3, 16), (4, 2, 512)], T6)
            va(vXs + 1, [(0, 4, 512)], None, XS + 256)
            S(sZ0, 'fs*8192 + HGR'); S(sZ1, '(kq*8 + w)*256 + z0')
            S(sZ2, '((rt*8 + w)*16 + cb)*256 + ST')
            S(sZ3, '((rt >> 2)*2 + (rt & 3)*64)*4096 + (cb >> 1)*64 + (cb & 1)*4 + INB + 1536')
            S(sROW0, '(rt*8 + w)*32768 + cb*128'); S(sROW1, 'row0 + 16384')
        nw = o['wowin'][0] + o['wowin'][1]
        if MR: self.inbox(1, 2, work=lambda: (halves(lambda: self.weave(lambda: (exps(), self.softmax_pm(pp, ee, ph, vT, part=2, split=qs)), [wo1] * nw),
                                                     lambda: self.weave(lambda: (self.softmax_pm(pp, ee, ph, vT, part=1, split=qm), exps()), [wo1] * nw)), self.stamp('cw')))
        else: self.inbox(1, 2, work=lambda: (self.weave(lambda: self.softmax_pm(pp, ee, ph, vT, part=2, split=qs), [wo1] * o['wowin'][1]), self.stamp('cw')))
        a('s_barrier')
        self.stamp('kvok')
        self.bl(kp, 4, vKP, rWS, T0, 0, 'sc1', 'kp')
        self.bl(kp + 4, 4, vKP, rWS, T1, 0, 'sc1', 'kp')
        self.bl(zz, 4, vL16, rWS, T3, 0, 'sc1', 'z')
        if o['wrat'] == 0:
            S(T6, 'cb*128'); self.va(wr1, [(0, 2, 2), (5, 1, 8), (4, 1, 16), (2, 2, 32)], T6, 0, md)
            a(f'global_load_ushort v{wr1}, v{wr1}, {sr(pWR, 2)}'); vm.issue()
        if fw[0] or o['poisat'] == 5: a('s_barrier')
        if o['poisat'] == 5: self.poison((0,), AR + 84)
        ffn_reg(fw[0])
        if MR: halves(lambda: None, lambda: self.softmax_pm(pp, ee, ph, vT, part=2, split=qs))
        S(T1, 'w*32 + L_ZF'); va(vT + 2, [(0, 2, 8), (5, 1, 4)], T1)
        S(T1, 'w*1024 + L_KVF'); va(vT + 1, [(0, 4, 16), (5, 1, 512), (4, 1, 8)], T1)
        S(T1, 'kh*128 + L_ZF'); va(vT + 3, [(5, 1, 16)], T1)
        S(T1, 'kh*4096 + L_KVF'); a(f'v_add_u32 v{vPA}, s{T1}, v{vL16}')
        M2 = o['m2c'] < 3
        m2ops = []; k = o.get('m2k', 24)
        if M2:
            vm.wait('m2')
            for i in range(4):
                a(f'v_lshlrev_b32 v{m2c+i}, 16, v{m2c+i}')
                self.silu(m2c + i, m2t + (i & 1))
            m2ops = self.gemv_ops([m2w + 4 * i for i in range(4)], [m2c + i for i in range(4)], m2a, m2t, m2t + 1, True)
        for s_ in m2ops[:k]: a(s_)
        if o['m2c'] == 4 and not MR:
            a(f's_cmp_lt_u32 s{sWAVE}, 4\ns_cbranch_scc1 L_HG1')
            for s_ in hops: a(s_)
            a(f'ds_write_b32 v{vGA}, v{ha} offset:{L_M2 - MISC}\nL_HG1:')
        def red4(r, ctls):
            for i in range(2): a(f'v_permlane32_swap_b32 v{r+i}, v{r+2+i}')
            self.pk('add', r, r, r + 2)
            for ctl in ctls:
                for i in range(2): self.dpp('v_add_f32', r + i, r + i, r + i, ctl)
            for i in range(2): a(f'v_mov_b32 v{r+2+i}, v{r+i}')
            for i in range(2): a(f'v_permlane16_swap_b32 v{r+i}, v{r+2+i}')
            self.pk('add', r, r, r + 2)
            a(f'v_cvt_pk_bf16_f32 v{r}, v{r}, v{r+1}')
        vm.wait('kp')
        self.pk('add', kp, kp, kp + 4); self.pk('add', kp + 2, kp + 2, kp + 6)
        red4(kp, ['row_ror:8'])
        a(f"""v_mov_b32 v{kp+1}, s{sTAG}
        s_mov_b32 exec_lo, 0xff
        s_mov_b32 exec_hi, 0xff""")
        self.bs(kp, 2, vXF, rWS, T2, 0, 'sc1')
        a('s_mov_b64 exec, -1')
        if o['C2dir'] == 0:
            self.barrier()
            self.push(vPC, T4, 16, vPB, 'L_PC2')
        if o['m2c'] == 4 and not MR: m2_pub(L_M2 - MISC)
        self.stamp('c2pub')
        if o['poisat'] == 6: self.poison((0,), AR + 84)
        num, den = pp, ee
        vm.wait('z')
        self.weave(lambda: (red4(zz, ['row_ror:4', 'row_ror:8']), [a(s_) for s_ in m2ops[k:]]), [wo1] * o['wowin'][2])
        self.dw('ds_write_b32', vT + 2, zz, 1)
        if M2: self.dw('ds_write_b32', vGA, m2a, 1, L_M2 - MISC)
        self.barrier()
        for fb in range(4): self.r128(zf + 4 * fb, vT + 3, fb * 32)
        if M2: self.r128(m2a, vL32S, L_M2 - MISC); self.r128(m2a + 4, vL32S, L_M2 - MISC + 1024)
        S(T5, '((j*2 + (x >> 2))*4 + (x & 3))*512 + MODP2')
        lg.wait_all()
        S(T0, '(hp*8 + w)*2048 + KIN')
        def wr_load():
            S(T6, 'cb*128'); self.va(wr1, [(0, 2, 2), (5, 1, 8), (4, 1, 16), (2, 2, 32)], T6, 0, md)
            a(f'global_load_ushort v{wr1}, v{wr1}, {sr(pWR, 2)}'); vm.issue()
        def den_work():
            for fb in range(4):
                a(f'v_mfma_f32_32x32x16_bf16 {vr(den, 16)}, {vr(zf + 4*fb, 4)}, {vr(ph + 4*fb, 4)}, ' + ('0' if fb == 0 else vr(den, 16)))
            sel_prep()
            if M2:
                a(f's_cmp_lg_u32 s{sWAVE}, 3\ns_cbranch_scc1 L_M2F')
                self.nopk = True; self.sum8(m2a); self.nopk = False
                a(f'v_mov_b32 v{m2a+1}, s{sTAG}')
                self.bs(m2a, 2, vL8, rWS, T5, 0, 'sc1', count=False)
                a('L_M2F:')
            self.round1(den)
            a(f'v_add_f32 v{den}, 0x358637bd, v{den}')
            self.round1(den)
            a(f'v_rcp_f32 v{den}, v{den}')
            self.stamp('c2w')
        ldk2 = lambda: [self.bl(k2 + 4 * q, 4, vL16, rWS, T0, q * 1024, 'sc1') for q in range(2)]
        if o['C2dir'] == 0:
            self.inbox(7, 2, work=den_work)
            self.stamp('c2h')
        if o['C2dir'] == 2: den_work()
        self.try_load(ldk2, [k2 + 1, k2 + 3, k2 + 5, k2 + 7], vT, lambda: (wr_load() if o['wrat'] == 1 else None, ffn_reg(fw[1]), sel_prep2(), den_work() if o['C2dir'] == 1 else None))
        for db in range(2):
            a(f'ds_write2_b32 v{vT+1}, v{k2+4*db}, v{k2+4*db+2} offset0:{64*db} offset1:{64*db+1}'); lg.issue()
        self.barrier()
        self.stamp('kvred')
        for fb in range(4): self.r128(kf + 4 * fb, vPA, fb * 1024, ('kf', fb))
        S(T0, '((r1*8 + rb*2)*32 + hp*2 + kh)*1024 + OF')
        va(vKP, [(0, 4, 16), (4, 1, 32768), (5, 1, 256)])
        for fb in range(4):
            lg.wait(('kf', fb))
            a(f'v_mfma_f32_32x32x16_bf16 {vr(num, 16)}, {vr(kf + 4*fb, 4)}, {vr(ph + 4*fb, 4)}, ' + ('0' if fb == 0 else vr(num, 16)))
        S(T5, '((w >> 1)*16 + cb)*2048 + (w & 1)*1024 + MODP2')
        self.ld_md = lambda: self.bl(md, 4, vL16, rWS, T5, 0, 'sc1', 'md')
        if not o['mdlate']: self.ld_md()
        for h in range(2):
            self.round_list([num + i for i in range(8 * h, 8 * h + 8)])
            for i in range(8 * h, 8 * h + 8, 2): self.pk('mul', num + i, num + i, den, bc=(1,))
            for i in range(4 * h, 4 * h + 4): a(f'v_cvt_pk_bf16_f32 v{vq+i}, v{num+2*i}, v{num+2*i+1}')
            self.bs(vq + 4 * h, 4, vKP, rWS, T0, 512 * h, 'sc1', 'os')
        self.stamp('ost')
        if o['wrat'] == 2: wr_load()
        if o['mdlate'] in (1, 3): self.ld_md()
        if o['poisat'] == 3: self.poison((0,), AR + 84)
        while wl: wo1()

    def gemm2(self):
        a, vm, lg, o, S, va = self.a, self.vm, self.lg, self.o, self.S, self.vaa
        md, wr1, fw = self.md, self.wr1, o['fwin']
        AD2 = o['AD2']
        R = self.R = dict(acc=AQ, gaf=AQ + 16, cbf=AR + 16, sbf=AV, gbf=AV + 16, xf=AR, fr=AR + 32, Br=AR + 40, Ar=AR + 72, vB=RING + 8, sv=RING, up=RING + 12)
        acc, gaf, cbf, sbf, gbf, xf, fr, Br, Ar, vB, sv, up = [R[k] for k in 'acc gaf cbf sbf gbf xf fr Br Ar vB sv up'.split()]
        ARS = [Ar + 4 * i for i in range(6)] + [RING + 16, RING + 20, RING + 24]; assert AD2 <= 9
        va(vB, [(2, 2, 128), (4, 2, 1024), (0, 1, 16), (1, 1, 8), (3, 2, 32)])
        S(T4, '(w ^ (%s))*4096' % o['g2r']); S(T1, '(T4*4) ^ (y2 >> 4)')
        a(f'v_add_u32 v{vB}, s{T1}, v{vB}')
        for ct in range(1, 4): a(f'v_xor_b32 v{vB+ct}, {32*ct}, v{vB}')
        va(vT + 1, [(0, 3, 8 * 4096), (3, 1, 4096)])
        S(T2, '((r1 >> 2)*2 + (r1 & 3)*64)*4096 + (hp >> 1)*64 + (hp & 1)*4 + INB + 1024')
        for i in range(8): self.unpack(xf + 2 * i, xf + 2 * i + 1, XR + i)
        S(T6, '(rt*8 + w)*32768 + OF' if not o.get('fake84') else '(r1*8 + w)*32768 + OF')
        def md_stage():
            vm.wait('md')
            self.tagcheck([md + 1, md + 3], vT + 2)
            a('s_cbranch_vccz L_MGOK')
            q0 = list(vm.q)
            self.poll(self.ld_md, [md + 1, md + 3], vT + 2)
            vm.q = q0
            a('L_MGOK:')
            a(f'ds_write2_b32 v{vT}, v{md}, v{md+2} offset0:0 offset1:4'); lg.issue()
        S(T1, '(w & 1)*2'); S(T3, '(w >> 1)*1024 + L_MD')
        va(vT, [(4, 1, 1), (2, 1, 2)]); va(vT + 3, [(5, 1, 1)], T1)
        a(f'v_xor_b32 v{vT}, v{vT}, v{vT+3}\nv_lshl_add_u32 v{vT}, v{vT}, 2, s{T3}')
        va(vT + 3, POS); a(f'v_add_u32 v{vT}, v{vT}, v{vT+3}')
        if o['mdlate'] in (0, 3): md_stage()
        vm.wait('os'); vm.wait('wo')
        self.barrier()
        self.push(vT + 1, T2, 16, vT + 2, 'L_PD')
        self.stamp('opub')
        if o['poisat'] == 4:
            t = AR + 84
            a(f'v_mov_b32 v{t}, -1\nv_mov_b32 v{t+1}, -1\nv_mov_b32 v{t+2}, -1\nv_mov_b32 v{t+3}, -1\ns_mov_b64 exec, 0xffff')
            self.bs(t, 4, vL16, rWS, sZ2, 0, 'sc1')
            a(f's_mov_b64 exec, -1\ns_cmp_lg_u32 s{sWAVE}, 5\ns_cbranch_scc1 L_NOPO')
            S(T3, 'rt*16384 + cb*512 + XS'); self.va(t + 4, [(0, 5, 16), (5, 1, 8192)], None, 0, t + 5)
            self.bs(t, 4, t + 4, rWS, T3, 0, 'sc1', count=False)
            a('L_NOPO:')
        if o['mdlate'] == 2: self.ld_md()
        if o['mdlate'] in (1, 2): md_stage(); self.barrier()
        S(T5, 'wg*4096 + (T4 >> 6) + INB + 1024')
        self.ffn_reg(fw[2])
        t4 = Br
        for q in range(4): self.r128(t4 + 4 * q, self.vL32S, L_MD - MISC + q * 1024)
        va(vT + 4, [(0, 2, 4), (5, 1, 16), (4, 1, 32), (2, 2, 64)], None, L_GB)
        S(T0, '(rt*16 + cb)*64 + UP')
        va(vT + 6, [(0, 6, 2)], None, L_M2); va(vT + 7, [(0, 2, 128), (4, 2, 32)], None, L_M2)
        lg.wait_all()
        def d_work():
            for q in range(4):
                self.pk('add', t4 + 4 * q, t4 + 4 * q, t4 + 4 * q + 2)
                a(f'v_add_f32 v{sv+q}, v{t4+4*q}, v{t4+4*q+1}')
            self.round_list([sv + q for q in range(4)])
            a(f'v_add_f32 v{sv+2}, 1.0, v{sv+2}')
            a(f'v_lshlrev_b32 v{wr1}, 16, v{wr1}')
            self.round1(sv + 2)
            a(f'ds_write_b32 v{vT+4}, v{sv+3}')
            uu, hi, lo, t = t4, t4 + 1, t4 + 2, t4 + 4
            a(f'v_mul_f32 v{uu}, v{sv+2}, v{wr1}')
            a(f'v_cvt_pk_bf16_f32 v{hi}, 0, v{uu}')
            a(f'v_sub_f32 v{lo}, v{uu}, v{hi}')
            self.allreduce(uu, t + 3)
            for k, r in enumerate((hi, lo, wr1)): a(f'v_mov_b32_dpp v{t+k}, v{r} row_shl:1 row_mask:0xf bank_mask:0xf')
            for k, r in enumerate((hi, lo, wr1)): a(f'v_cvt_pk_bf16_f32 v{t+k}, v{r}, v{t+k}')
            a(f"""v_mov_b32 v{uu+1}, s{sTAG}
            v_mov_b32 v{uu+2}, 0
            s_cmp_lg_u32 s{sWAVE}, 2
            s_cbranch_scc1 L_NOUP
            s_mov_b64 exec, 1""")
            self.bs(uu, 2, uu + 2, rWS, T0, 0, 'sc1', count=False)
            a('s_mov_b64 exec, -1\nL_NOUP:')
            a(f'v_mov_b32 v{t+3}, 0x3f803f80\ns_mov_b32 exec_lo, 0x55555555\ns_mov_b32 exec_hi, 0x55555555')
            for k in range(4): a(f'ds_write_b32 v{vT+6}, v{t + (k + 3) % 4} offset:{128*k}')
            a('s_mov_b64 exec, -1')
            a(f'ds_read_b128 {vr(fr, 4)}, v{vT+7}\nds_read_b128 {vr(fr + 4, 4)}, v{vT+7} offset:16')
            a(f'v_mov_b32 v{RING+14}, v{sv+1}\nv_mov_b32 v{RING+15}, v{sv+3}\nv_mov_b32 v{RING+5}, v{sv+2}')
            for dst, q in ((gaf, 0),):
                for i in range(16): a(f'v_mov_b32_dpp v{dst+i}, v{sv+q} row_newbcast:{i} row_mask:0xf bank_mask:0xf')
            a(f'v_mov_b32 v{RING+1}, v{vT+1}')
            self.stamp('dw')
        L2 = o['LOOK2']
        def b2_read(m):
            H, ct = divmod(m, 4)
            for rd in range(2): self.tr(Br + 4 * (m % 8) + 2 * rd, vB + ct, (H & 3) * 4096 + rd * 512, ('B', m))
            if H % 4 == 3 and H < 31: a(f'v_xor_b32 v{vB+ct}, {((H >> 2) ^ ((H >> 2) + 1)) * 16384}, v{vB+ct}')
        def a2_load(H):
            if H % 4 == 0: S(T7, '(T4 ^ n) + T6', n=H * 1024)
            self.bl(ARS[H % AD2], 4, vL16, rWS, T7, (H % 4) * 1024, 'sc1', ('A', H))
        self.spoll([(0, 2, T5, 0)], range(2), d_work)
        self.stamp('ook1')
        if not o['earlyD']: a('s_barrier')
        for H in range(AD2):
            if H == 4 and o['earlyD']: a('s_barrier')
            a2_load(H)
            if H == 0:
                for m in range(L2): b2_read(m)
        self.stamp('ook')
        S(T0, 'rt*1024 + UP'); va(vT + 6, [(0, 4, 64)])
        self.ld_up = lambda: self.bl(up, 2, vT + 6, rWS, T0, 0, 'sc1', 'up')
        lpend = []
        for H in range(32):
            if self.prof and o.get('ls2'):
                if lpend: r_, k_ = lpend.pop(0); a(f'v_writelane_b32 v255, s{r_}, {k_}')
                if H < 31:
                    r_ = sPL + 2 * (self.nst % 4)
                    a.items.append(('raw', f'    s_memtime {sr(r_, 2)}')); lpend.append((r_, self.nst)); self.stnames.append(f'n{H}'); self.nst += 1
            if o.get('g2p') and H in (0, o['g2p']):
                a(f's_cmp_lt_u32 s{sWAVE}, 4\ns_cbranch_scc1 L_G2P{H}\ns_setprio {1 if H == 0 else 0}\nL_G2P{H}:')
            vm.wait(('A', H))
            for ct in range(4):
                m = 4 * H + ct
                pw = o['pairw2']
                if ct % pw == 0: lg.wait(('B', m + pw - 1))
                if ct == 0 and o.get('al8g') is not None: a.items.append(('raw', ';AL8g'))
                a(f'v_mfma_f32_16x16x32_bf16 {vr(acc + 4*ct, 4)}, {vr(Br + 4*(m % 8), 4)}, {vr(ARS[H % AD2], 4)}, ' + ('0' if H == 0 else vr(acc + 4*ct, 4)))
                if m + L2 < 128: b2_read(m + L2)
            if H + AD2 < 32: a2_load(H + AD2)
            if H + AD2 == 31: self.ld_up()
            if H == o['f3at']: self.ffn_reg(fw[3])
        self.stamp('gemm2')
        if o.get('dbg'):
            S(T1, '(wg*8 + w)*32768 + 0x4000000'); va(vT, [(0, 6, 4)])
            for k, r in enumerate(list(range(40, 104)) + [24, 25, 26, 27]):
                if k % 16 == 0 and k: S(T1, 'T1 + 4096')
                self.bs(r, 1, vT, rWS, T1, (k % 16) * 256, '', 'dbg')
                if k % 16 == 15: vm.wait('dbg')

    def tail(self):
        a, vm, lg, o, S, va = self.a, self.vm, self.lg, self.o, self.S, self.vaa
        R, fw = self.R, o['fwin']
        E2 = range(0, 16, 2)
        acc, gaf, cbf, sbf, gbf, xf, fr, up = [R[k] for k in 'acc gaf cbf sbf gbf xf fr up'.split()]
        FR, held, fq = self.FL, self.held, self.fq
        g16, hh, h2p, op, sd4, kk = AR + 40, AR + 56, AR + 72, AR + 80, AR + 88, AR + 92
        vSt, vRow, mm, rs, key, vTa = RING + 27, RING + 1, RING + 2, RING + 3, RING + 4, RING + 5
        x1f = xf
        swp = lambda b: [a(f'v_permlane32_swap_b32 v{b+p}, v{b+q}') for p, q in ((0, 2), (1, 3), (4, 6), (5, 7))]
        for h in range(2):
            rg = range(8 * h, 8 * h + 8)
            self.round_list([acc + i for i in rg])
            for i in range(8 * h, 8 * h + 8, 2): self.pk('mul', acc + i, acc + i, gaf + i)
            self.round_list([acc + i for i in rg])
            for i in range(8 * h, 8 * h + 8, 2): self.pk('add', acc + i, acc + i, xf + i)
            for i in range(4 * h, 4 * h + 4): a(f'v_cvt_pk_bf16_f32 v{XR+i}, v{acc+2*i}, v{acc+2*i+1}')
            for i in range(4 * h, 4 * h + 4): a(f'v_dot2_f32_bf16 v{vT+(i&1)}, v{XR+i}, v{XR+i}, ' + ('0' if i < 2 else f'v{vT+(i&1)}'))
            a(f'v_mfma_f32_16x16x32_bf16 {vr(sd4, 4)}, {vr(fr + 4*h, 4)}, {vr(XR + 4*h, 4)}, ' + ('0' if h == 0 else vr(sd4, 4)))
        self.nopk = False
        a(f'v_add_f32 v{vT}, v{vT}, v{vT+1}')
        for sw in ('v_permlane32_swap_b32', 'v_permlane16_swap_b32'):
            a(f'v_mov_b32 v{vT+1}, v{vT}')
            a(f'{sw} v{vT}, v{vT+1}')
            a(f'v_add_f32 v{vT if "32" in sw[:14] else sd4 + 3}, v{vT}, v{vT+1}')
        a('s_mov_b64 exec, 0xffff')
        self.bs(sd4, 4, vL16, rWS, sZ2, 0, 'sc1')
        a('s_mov_b64 exec, -1')
        a('s_barrier')
        self.push(RING + 1, sZ3, 16, vT + 2, 'L_PE')
        self.stamp('x1pub')
        self.ffn_dma(fw[4])
        S(T2, 'w*4096')
        a(f'v_add_u32 v{vT}, s{T2}, v{vL16}')
        a(f'v_add_u32 v{vT+3}, {L_DN}, v{vT}')
        vm.wait('up')
        self.tagcheck([up + 1], vT + 2)
        a('s_cbranch_vccz L_UPOK')
        q0 = list(vm.q)
        self.poll(self.ld_up, [up + 1], vT + 2)
        vm.q = q0
        a('L_UPOK:')
        S(T1, '(rt*8 + w)*4096 + ST')
        def sym_write(v0_, v1_):
            vm.wait('ffr')
            for m, i, r in self.sym:
                assert o['symat'] == 0 or r < AV
                a(f'ds_write_b128 v{v0_ if m < 2 else v1_}, {vr(r, 4)} offset:{self.f_lds(m, i) - (L_GU if m < 2 else L_DN)}')
        def sym_late():
            S(T2, 'w*4096'); a(f'v_add_u32 v{vT+4}, s{T2}, v{vL16}\nv_add_u32 v{vT+7}, {L_DN}, v{vT+4}')
            sym_write(vT + 4, vT + 7)
        def e_work():
            for ctl in ('quad_perm:[1,0,3,2]', 'quad_perm:[2,3,0,1]', 'row_half_mirror', 'row_mirror'): self.dpp('v_add_f32', up, up, up, ctl)
            for i in range(8): self.unpack(x1f + 2 * i, x1f + 2 * i + 1, XR + i)
            S(T2, 'w*512 + rt*2')
            va(vRow, [(0, 4, 32)], T2)
            a(f'v_xor_b32 v{vT+1}, 0x4000, v{vT}\nv_xor_b32 v{vT+4}, 0x4000, v{vT+3}')
            if o['symat'] == 0: sym_write(vT, vT + 3)
            for g in range(2):
                if not held[g]: continue
                a(f's_cmp_{"ge" if g == 0 else "lt"}_u32 s{sWAVE}, 4\ns_cbranch_scc1 L_FW{g}')
                for n, (m, i) in enumerate(held[g]):
                    for far in range(2):
                        a(f'ds_write_b128 v{(vT if m < 2 else vT + 3) + far}, {vr(FR + 8*n + 4*far, 4)} offset:{self.f_lds(m, i) - (L_GU if m < 2 else L_DN)}')
                a(f'L_FW{g}:')
            self.stamp('ew')
        self.inbox(3, 2, work=e_work)
        a('s_barrier')
        self.stamp('x1ok')
        def try_p(loads, check, between, nm='re'):
            loads()
            vm.q[-1] = tg = ('try', a.label('T'))
            between()
            vm.wait(tg)
            OK, L = a.label('POK'), a.label('PRE')
            check()
            a(f's_cbranch_vccz {OK}')
            q = list(vm.q)
            self.stamp(nm)
            a(f'{L}:')
            loads(); vm.wait_all()
            check()
            a(f"""s_cbranch_vccz {OK}
            s_add_u32 s{sSPIN}, s{sSPIN}, 1
            s_cmp_lt_u32 s{sSPIN}, {SPIN_LIMIT}
            s_cbranch_scc1 {L}""")
            vm.q = q
            a(f'{OK}:')
        vGr, vDr, vXs, ffn, fdn = RING + 6, RING + 7, RING + 24, FR, AQ
        vRt = RING + 14
        def out_calc(part):
            u = RING + 16; assert o['ocut'][1] != 5
            if part == o['ocut'][0]:
                for i in range(8): self.unpack(hh + 2 * i, hh + 2 * i + 1, h2p + i)
                for i in E2: self.pk('mul', hh + i, hh + i, gbf + i)
                self.round_list([hh + i for i in range(16)])
            if part == o['ocut'][1]:
                S(T0, 'w*2048 + L_TR')
                va(u, [(4, 2, 16)]); va(u + 1, [(0, 3, 16)]); a(f'v_xor_b32 v{u}, v{u}, v{u+1}')
                va(u + 2, [(0, 4, 128)], T0); a(f'v_add_u32 v{u}, v{u}, v{u+2}'); a(f'v_xor_b32 v{u+2}, 64, v{u}')
                va(u + 3, [(3, 3, 16)]); a(f'v_xor_b32 v{u+1}, v{u+3}, v{u+1}'); va(u + 3, [(3, 3, 128)], T0); a(f'v_add_u32 v{u+1}, v{u+1}, v{u+3}')
                S(T0, '2047 - rt*128 - w*16'); va(vRt + 1, [(3, 3, 1)])
                a(f'v_sub_u32 v{vRt}, s{T0}, v{vRt+1}\nv_subrev_u32 v{vRt+1}, 8, v{vRt}')
                va(vTa, [(3, 3, 2048), (0, 3, 16)])
            if part == o['ocut'][2]:
                for i in E2: self.pk('add', hh + i, hh + i, x1f + i)
                for i in range(8): a(f'v_cvt_pk_bf16_f32 v{op+i}, v{hh+2*i}, v{hh+2*i+1}')
                swp(op)
                a(f'ds_write_b128 v{u}, {vr(op, 4)}\nds_write_b128 v{u+2}, {vr(op + 4, 4)}')
                a(f'ds_read_b128 {vr(op, 4)}, v{u+1}\nds_read_b128 {vr(op + 4, 4)}, v{u+1} offset:1024')
        def e_between():
            if o['gbar']: a('s_barrier')
            self.ffn_dma(fw[5])
            for dst, q in ((cbf, 5), (sbf, 14), (gbf, 15)):
                for i in range(16): a(f'v_mov_b32_dpp v{dst+i}, v{RING+q} row_newbcast:{i} row_mask:0xf bank_mask:0xf')
            out_calc(4)
            if o['symat'] == 1: sym_late()
            S(T2, 'w*8 + L_K1'); a(f'v_mov_b32 v{vT}, s{T2}')
            va(vT + 1, [(0, 3, 8)], None, L_K1)
            va(vT + 2, [(0, 2, 64 * 4096), (2, 2, 2 * 4096)])
            S(T3, '((cb >> 3) + (cb & 7)*8)*4096 + (rt >> 1)*64 + (rt & 1)*16 + INB + 2560')
        s_, d_, q_, t_ = g16, g16 + 1, g16 + 3, g16 + 4
        def e_check():
            for h in (0, 2):
                self.pk('add', g16 + h, g16 + h, g16 + 4 + h); self.pk('add', g16 + 8 + h, g16 + 8 + h, g16 + 12 + h)
            for h in (0, 2): self.pk('add', g16 + h, g16 + h, g16 + 8 + h)
            a(f'''v_add_f32 v{d_}, v{d_}, v{g16+2}
            v_add_f32 v{t_+1}, v{s_}, v{q_}
            v_cmp_u_f32 vcc, v{d_}, v{t_+1}''')
        try_p(lambda: [self.bl(g16 + 4 * i, 4, vL16, rWS, T1, i * 1024, 'sc1') for i in range(4)], e_check, e_between, 'stre')
        self.stamp('x1ld')
        a(f"""
        v_mov_b32 v{t_}, v{q_}
        v_permlane32_swap_b32 v{q_}, v{t_}
        v_permlane32_swap_b32 v{s_}, v{d_}
        v_add_f32 v{q_}, v{q_}, v{t_}
        v_add_f32 v{s_}, v{s_}, v{d_}
        v_permlane16_swap_b32 v{s_}, v{q_}
        v_add_f32 v{d_}, v{s_}, v{q_}
        v_add_f32 v{q_}, v{s_}, v{q_}
        v_permlane16_swap_b32 v{d_}, v{q_}
        v_mov_b32 v{s_}, v{d_}
        v_mul_f32 v{q_}, 0x3a800000, v{q_}
        v_permlane32_swap_b32 v{s_}, v{d_}
        v_mul_f32 v{s_}, 0x3a800000, v{s_}
        v_fma_f32 v{rs}, -v{s_}, v{s_}, v{q_}
        v_cvt_pk_bf16_f32 v{mm}, 0, v{s_}
        v_max_f32 v{rs}, 0, v{rs}""")
        self.round1(rs)
        a(f'v_fma_f32 v{d_}, -v{mm}, v{up}, v{d_}')
        a(f'v_add_f32 v{rs}, 0x3727c5ac, v{rs}')
        self.round1(rs)
        a(f'v_sqrt_f32 v{rs}, v{rs}')
        self.round1(rs)
        a(f"""v_rcp_f32 v{rs}, v{rs}
        v_mul_f32 v{key}, v{d_}, v{rs}
        v_ashrrev_i32 v{t_}, 31, v{key}
        v_or_b32 v{t_}, 0x80000000, v{t_}
        v_xor_b32 v{key}, v{key}, v{t_}
        s_mov_b32 s{T2}, 0xfffff000
        v_and_or_b32 v{key}, v{key}, s{T2}, v{vRow}""")
        hi, lo = kk, kk + 1
        def merge2(ctl):
            self.dpp('v_min_u32', t_, hi, hi, ctl); self.dpp('v_max_u32', lo, lo, lo, ctl); self.dpp('v_max_u32', hi, hi, hi, ctl)
            a(f'v_max_u32 v{lo}, v{lo}, v{t_}')
        self.dpp('v_max_u32', hi, key, key, 'quad_perm:[1,0,3,2]'); self.dpp('v_min_u32', lo, key, key, 'quad_perm:[1,0,3,2]')
        for ctl in ('quad_perm:[2,3,0,1]', 'row_half_mirror', 'row_mirror'): merge2(ctl)
        self.dw('ds_write_b64', vT, hi, 2)
        self.stamp('ln2')
        self.barrier()
        self.dr('ds_read_b64', hi, 2, vT + 1)
        for i in E2: self.pk('add', hh + i, x1f + i, mm, bc=(1,), neg=(1,))
        lg.wait_all()
        for ctl in ('quad_perm:[1,0,3,2]', 'quad_perm:[2,3,0,1]', 'row_half_mirror'): merge2(ctl)
        a(f"""v_cmp_eq_u32 {sr(sC2, 2)}, v{key}, v{lo}
        v_cmp_eq_u32 vcc, v{key}, v{hi}
        v_or_b32 v{kk+2}, 1, v{lo}
        v_mov_b32 v{kk+1}, s{sTAG}
        v_mov_b32 v{kk+3}, s{sTAG}
        s_or_b64 {sr(sCM, 2)}, vcc, {sr(sC2, 2)}
        s_cmp_lg_u32 s{sWAVE}, 0
        s_cbranch_scc1 L_NOF
        s_mov_b64 exec, 0xffff""")
        self.bs(kk, 4, vT + 2, rWS, T3, 0, 'sc1', count=False)
        a(f"""s_mov_b64 exec, -1
        L_NOF:""")
        if o['cprio']: a(f's_cmp_eq_u64 {sr(sCM, 2)}, 0\ns_cbranch_scc1 L_NOPR\ns_setprio 1\nL_NOPR:')
        self.stamp('Fpub')
        def f_work():
            self.round_list([hh + i for i in range(16)])
            for i in E2: self.pk('mul', hh + i, hh + i, rs, bc=(1,))
            self.round_list([hh + i for i in range(16)])
            for i in E2: self.pk('mul', hh + i, hh + i, cbf + i)
            self.round_list([hh + i for i in range(16)])
            for i in E2: self.pk('add', hh + i, hh + i, sbf + i)
            for i in range(8): a(f'v_cvt_pk_bf16_f32 v{h2p+i}, v{hh+2*i}, v{hh+2*i+1}')
            a(f"""s_cmp_eq_u64 {sr(sCM, 2)}, 0
            s_cbranch_scc1 L_NOCAND""")
            for h in range(2): a(f'v_mfma_f32_16x16x32_bf16 {vr(sd4, 4)}, {vr(fr + 4*h, 4)}, {vr(h2p + 4*h, 4)}, ' + ('0' if h == 0 else vr(sd4, 4)))
            for i in range(8): a(f'v_mov_b32 v{op+i}, v{h2p+i}')
            S(T2, 'rt*16384 + cb*512 + XS')
            va(vT + 3, [(4, 2, 16)])
            a(f'v_add_u32 v{vT+4}, 8192, v{vT+3}')
            swp(op); swp(XR)
            a(f'v_cndmask_b32 v{vT+3}, v{vT+3}, v{vT+4}, {sr(sC2, 2)}')
            a(f's_mov_b64 exec, {sr(sCM, 2)}')
            for h in range(2): self.bs(op + 4 * h, 4, vT + 3, rWS, T2, 64 * h, 'sc1', count=False)
            a(f's_mov_b32 exec_hi, 0\ns_and_b32 exec_lo, s{sCM}, 0xffff')
            self.bs(sd4 + 3, 1, vT + 3, rWS, T2, 256, 'sc1', count=False)
            a(f's_mov_b64 exec, {sr(sCM, 2)}')
            for h in range(2): self.bs(XR + 4 * h, 4, vT + 3, rWS, T2, 128 + 64 * h, 'sc1', count=False)
            a('s_mov_b64 exec, -1\ns_setprio 0\nL_NOCAND:')
            self.stamp('cand')
            self.ffn_dma(fw[6])
            if o['symat'] == 2: sym_late()
            out_calc(0)
        S(T0, 'w*16 + L_K2'); a(f'v_mov_b32 v{vT}, s{T0}')
        va(vT + 1, [(0, 3, 16)], None, L_K2)
        self.inbox(5, 8, (1, 3, 5, 7), f_work)
        P = sPL
        a(f"""s_min_u32 s{P+1}, s{P}, s{P+4}
        s_min_u32 s{P+3}, s{P+2}, s{P+4}
        s_min_u32 s{P+5}, s{P}, s{P+6}
        s_max_u32 s{P}, s{P}, s{P+4}
        s_max_u32 s{P+2}, s{P+2}, s{P+6}
        s_max_u32 s{P+3}, s{P+3}, s{P+5}
        s_max_u32 s{P+1}, s{P+1}, s{P+2}
        v_mov_b32 v{kk}, s{P}
        v_mov_b32 v{kk+2}, s{P+3}
        v_mov_b32 v{kk+1}, s{P+1}""")
        self.dw('ds_write_b128', vT, kk, 4)
        self.stamp('F2p')
        out_calc(1)
        gu_late = [p for p in fq if p[0] < 2]; assert not gu_late
        dn_late = len(fq) > 0
        def dn_read(s, tag=None):
            self.tr(fdn + 4 * s, vDr, s * 8192, tag); self.tr(fdn + 4 * s + 2, vDr, s * 8192 + 1024, tag)
        vm.wait('ffn')
        self.barrier()
        self.stamp('F2')
        self.r128(kk, vT + 1, 0, 'k2')
        a(f'v_and_b32 v{vT+4}, 8, v{vL}')
        a(f'v_cmp_eq_u32 {sr(sCMP, 2)}, 0, v{vT+4}')
        a(f'v_cmp_gt_u32 {sr(sPL, 2)}, 16, v{vL}')
        a(f'v_cmp_gt_u32 {sr(sPL + 2, 2)}, 32, v{vL}')
        lg.wait('k2')
        t = g16
        for ctl in ('quad_perm:[1,0,3,2]', 'quad_perm:[2,3,0,1]', 'row_half_mirror'):
            self.dpp('v_min_u32', t, kk, kk, ctl); self.dpp('v_min_u32', t + 1, kk + 1, kk, ctl); self.dpp('v_min_u32', t + 2, kk, kk + 1, ctl)
            self.dpp('v_max_u32', kk + 2, kk + 2, kk + 2, ctl); self.dpp('v_max_u32', kk + 1, kk + 1, kk + 1, ctl); self.dpp('v_max_u32', kk, kk, kk, ctl)
            a(f'v_max3_u32 v{kk+2}, v{kk+2}, v{t+1}, v{t+2}')
            a(f'v_max_u32 v{kk+1}, v{kk+1}, v{t}')
        xa, xb, rp, kr = g16, g16 + 4, g16 + 8, g16 + 9
        a(f"""v_cndmask_b32 v{t}, v{kk+1}, v{kk}, {sr(sCMP, 2)}
        v_cndmask_b32 v{kr}, v{kk+2}, v{kk+1}, {sr(sPL + 2, 2)}
        v_and_b32 v{t+1}, 31, v{kk+2}
        v_and_b32 v{t}, 31, v{t}
        v_cndmask_b32 v{kr}, v{kr}, v{kk}, {sr(sPL, 2)}
        v_lshl_add_u32 v{vT}, v{t}, 13, v{vXs}
        v_lshl_add_u32 v{vT+1}, v{t+1}, 13, v{vXs}
        v_and_b32 v{t+2}, 31, v{kr}
        v_lshl_add_u32 v{vT+2}, v{t+2}, 13, v{vXs+1}""")
        def sel_work():
            self.stamp('sel')
            if o['gbar'] and (fq or o['outat'] in (0, 3)): a('s_barrier')
            self.ffn_dma(len(fq))
            for k in range(3): a(f'v_readfirstlane_b32 s{sY0+[0, 3, 4][k]}, v{kk+k}')
            for s in range(8):
                self.tr(ffn + 4 * s, vGr, s * 1024); self.tr(ffn + 4 * s + 2, vGr, s * 1024 + 512)
            for k in range(3 if o['outat'] in (0, 3) else 0): S(T4 + k, '(((y >> 1) & 15)*128 + ((y >> 5) & 127)) ^ 2047'.replace('y', ('y0', 'y1', 'y2')[k]))
            out_calc(2)
            lg.wait_all()
            if o['outat'] in (0, 3):
                for h in range(2 if o['outat'] == 0 else 1):
                    for k in range(3): a(f'v_cmp_ne_u32 {sr(sPL + 2*k, 2)}, s{T4+k}, v{vRt+h}')
                    a(f's_and_b64 vcc, {sr(sPL, 2)}, {sr(sPL + 2, 2)}\ns_and_b64 exec, vcc, {sr(sPL + 4, 2)}')
                    self.bs(op + 4 * h, 4, vTa, rOUT, (sROW0, sROW1)[h], 0, o.get('outmod', 'sc1'))
                    a('s_mov_b64 exec, -1')
            a(f'v_bfe_u32 v{vT+3}, v{kr}, 1, 4\nv_bfe_u32 v{kr}, v{kr}, 5, 7\nv_lshl_or_b32 v{kr}, v{vT+3}, 7, v{kr}\nv_xor_b32 v{kr}, 0x7ff, v{kr}')
        try_p(lambda: [self.bl(xa, 4, vT, rWS, '0', 0, 'sc1'), self.bl(xb, 4, vT + 1, rWS, '0', 0, 'sc1'), self.bl(rp, 1, vT + 2, rWS, '0', 0, 'sc1')],
              lambda: a(f'v_max3_u32 v{vT+3}, v{xa}, v{xb}, v{rp}\nv_cmp_eq_u32 vcc, -1, v{vT+3}'), sel_work, 'xsre')
        self.stamp('xsel')
        for ctl in ('quad_perm:[1,0,3,2]', 'quad_perm:[2,3,0,1]', 'row_half_mirror', 'row_mirror'): self.dpp('v_add_f32', rp, rp, rp, ctl)
        a(f"""v_cvt_pk_bf16_f32 v{rp}, 0, v{rp}
        v_ashrrev_i32 v{vT+3}, 31, v{rp}
        v_or_b32 v{vT+3}, 0x80000000, v{vT+3}
        v_xor_b32 v{rp}, v{rp}, v{vT+3}
        v_lshrrev_b32 v{rp}, 16, v{rp}
        v_lshl_or_b32 v{rp}, v{rp}, 11, v{kr}
        v_readlane_b32 s{P}, v{rp}, 0
        v_readlane_b32 s{P+1}, v{rp}, 16
        v_readlane_b32 s{P+2}, v{rp}, 32
        s_not_b64 {sr(P + 4, 2)}, {sr(sCMP, 2)}
        s_cmp_lt_u32 s{P}, s{P+1}
        s_cselect_b64 {sr(P + 4, 2)}, {sr(sCMP, 2)}, {sr(P + 4, 2)}
        s_cselect_b32 s{P+3}, s{P}, s{P+1}
        s_cmp_gt_u32 s{P+2}, s{P+3}
        s_cselect_b64 vcc, {sr(P + 4, 2)}, 0""")
        for i in range(4): a(f'v_cndmask_b32 v{xa+i}, v{xa+i}, v{xb+i}, vcc')
        a(f"""s_bitcmp1_b32 vcc_lo, 0
        s_cselect_b32 s{P}, s{P+2}, s{P}
        s_cselect_b32 s{T6}, s{T4}, s{T6}
        s_cselect_b32 s{T4}, s{sY2}, s{sY0}
        s_bitcmp1_b32 vcc_lo, 8
        s_cselect_b32 s{P+1}, s{P+2}, s{P+1}
        s_cselect_b32 s{T6}, s{T5}, s{T6}
        s_cselect_b32 s{T5}, s{sY2}, s{sY1}""")
        gd = [gaf + 4 * i for i in range(4)] + [cbf + 4 * i for i in range(4)]
        lg.wait_all()
        for s in range(8):
            a(f'v_mfma_f32_16x16x32_bf16 {vr(gd[s], 4)}, {vr(xa, 4)}, {vr(ffn + 4*s, 4)}, 0')
        p0, p1 = xb, xb + 2
        for p, b in ((p0, 0), (p1, 4)):
            a(f'v_add_f32 v{p}, v{gd[b]}, v{gd[b+1]+1}')
            a(f'v_add_f32 v{p+1}, v{gd[b+2]+2}, v{gd[b+3]+3}')
        a(f"""v_add_f32 v{p0}, v{p0}, v{p0+1}
        v_add_f32 v{p1}, v{p1}, v{p1+1}
        v_mov_b32 v{p0+1}, s{sTAG}
        v_permlane16_swap_b32 v{p1}, v{p1+1}
        s_cmp_ge_u32 s{sJ}, 28
        s_cbranch_scc1 L_NOHP
        v_add_f32 v{p0}, v{p0}, v{p1+1}
        v_add_f32 v{p1}, v{p0}, 0
        v_mov_b32 v{p1+1}, s{sTAG}
        v_permlane32_swap_b32 v{p0}, v{p1}
        s_mov_b64 exec, 0xffff""")
        self.bs(p0, 4, vL16, rWS, sZ1, 0, 'sc1', count=False)
        a("""s_mov_b64 exec, -1
        L_NOHP:""")
        self.stamp('Hpub')
        if not dn_late and not o['dnsplit']:
            for s in range(4): dn_read(s)
        def out_store(hs=None):
            for h in (hs or range(o['outat'] >= 3, 2)):
                a(f"""v_cmp_ne_u32 vcc, s{sK1}, v{vRt+h}
                v_cmp_ne_u32 {sr(sCMP, 2)}, s{sK2}, v{vRt+h}
                s_and_b64 exec, vcc, {sr(sCMP, 2)}""")
                self.bs(op + 4 * h, 4, vTa, rOUT, (sROW0, sROW1)[h], 0, o.get('outmod', 'sc1'))
                a('s_mov_b64 exec, -1')
        if o['outat']:
            a(f's_and_b32 s{sK1}, s{P}, 2047\ns_and_b32 s{sK2}, s{P+1}, 2047')
            out_calc(3)
            lg.wait_all()
        if o['outat'] == 1:
            a('s_barrier')
            out_store()
        if o['outat'] in (0, 3):
            for h in range(2 if o['outat'] == 0 else 1):
                a(f"""v_cmp_eq_u32 vcc, s{T6}, v{vRt+h}
                s_and_b64 exec, vcc, -1
                s_cbranch_execz L_NOLO{h}""")
                self.bs(op + 4 * h, 4, vTa, rOUT, (sROW0, sROW1)[h], 0, o.get('outmod', 'sc1'), count=False)
                a(f'L_NOLO{h}:\ns_mov_b64 exec, -1')
        self.stamp('outst')
        fz, x1, st = g16 + 12, AV, kk
        a(f"""s_cmp_lg_u32 s{sRow}, 7
        s_cbranch_scc1 L_NONON
        v_mov_b32 v{vT+2}, s{sTAG}
        v_mov_b32 v{vT+3}, 0
        s_mov_b64 exec, 1""")
        self.bs(vT + 2, 1, vT + 3, rWS, '0', 0, 'sc1', count=False)
        a(f"""s_mov_b64 exec, -1
        L_NONON:
        s_cmp_ge_u32 s{sJ}, 28
        s_cbranch_scc1 {'L_FIN3' if o['outat'] >= 2 else 'L_FIN'}""")
        gA = g16
        va(gA, [(2, 1, 128), (5, 1, 16)], None, L_ACT)
        va(gA + 1, [(4, 2, 56 * 128), (0, 4, 8)])
        S(sFG, '(kq*8 + w)*(4*56*128) + fs*128 + GGR')
        va(gA + 2, [(0, 1, 2 * 4096), (1, 1, 64 * 4096)])
        S(sFD, '((w & 1)*4 + (kq >> 1) + ((kq & 1)*4 + (w >> 1))*8)*4096 + x*64 + (j >> 2)*4 + INB + 3072')
        def dn_go():
            if o['dnsplit'] and not dn_late:
                vm.wait('fdn'); a('s_barrier')
                for s in range(4): dn_read(s)
            out_calc(5)
            if o['outat'] == 4: assert o['dnsplit'] and not dn_late and 5 not in o['ocut']; out_store([0])
        q1 = list(vm.q)
        a(f's_cmp_lt_u32 s{sWAVE}, 4\ns_cbranch_scc1 L_HW')
        dn_go()
        a(f"""s_cmp_lg_u32 s{sWAVE}, 7
        s_cbranch_scc1 L_NOH""")
        a(f"""s_bitcmp1_b32 s{sJ}, 3
        s_cselect_b32 s{T2}, s{P+1}, s{P}
        s_cselect_b32 s{T4}, s{T5}, s{T4}
        s_andn2_b32 s{T5}, 2047, s{T2}""")
        S(T6, 'cb*4 + (x >> 1)')
        S(T7, '((T6 >> 1)*4 + (j >> 3)*2 + (T6 & 1))*(56*128) + GGR')
        S(sU, 'T5*2048 + T6*32')
        va(vT + 6, [(0, 3, 4)])
        S(T0, '(x >> 1)*64 + L_GB'); va(vT + 1, [(0, 3, 8)], T0)
        a(f'ds_read_b64 {vr(fz + 2, 2)}, v{vT+1}')
        S(sY0, '(T4 & 31)*8192 + cb*512 + (x >> 1)*32 + XS')
        a(f"""s_lshr_b32 s{T0}, s{T2}, 11
        s_lshl_b32 s{T0}, s{T0}, 16
        s_ashr_i32 s{T2}, s{T0}, 31
        s_andn2_b32 s{T2}, 0x7fff0000, s{T2}
        s_or_b32 s{T2}, s{T2}, 0x80000000
        s_xor_b32 s{T0}, s{T0}, s{T2}
        v_mov_b32 v{fz}, s{T0}
        v_mul_f32 v{fz}, s{sL2E}, v{fz}
        v_exp_f32 v{fz}, -v{fz}
        v_add_f32 v{fz}, 1.0, v{fz}
        v_rcp_f32 v{fz}, v{fz}""")
        self.round1(fz)
        q0 = list(vm.q)
        a(f'v_mov_b32 v{vT+1}, s{sTAG}\nv_not_b32 v{vT+2}, v{vT+1}')
        self.poll(lambda: (self.bl(st, 1, vT + 6, rWS, sY0, 0, 'sc1'), self.bl(st + 1, 1, vT + 6, rWS, sY0, 128, 'sc1')), [st + 2], vT,
                  lambda: a(f'''v_max_u32 v{st+2}, v{st}, v{st+1}
                  v_cmp_ne_u32 vcc, -1, v{st+2}
                  v_cndmask_b32 v{st+2}, v{vT+2}, v{vT+1}, vcc'''))
        vm.q = q0
        self.unpack(st + 2, st + 3, st + 1)
        a(f'v_and_b32 v{st+1}, s{sMASK}, v{st}\nv_lshlrev_b32 v{st}, 16, v{st}')
        a('s_branch L_NOH')
        a('L_HW:')
        vm.q = q1; lg.reset()
        S(T0, 'w*256 + z0')
        va(vT, [(4, 2, 2048), (0, 4, 16)])
        S(T2, 'w*32 + L_ACT'); va(vT + 1, [(5, 1, 128), (2, 1, 16), (1, 1, 8), (3, 1, 4), (0, 1, 2)], T2)
        q0 = list(vm.q)
        g, u = x1, x1 + 4
        if not o['Hdir']:
            self.spoll([(q, 1, T0, q * 2048 + 1024 + 252) for q in range(4)], range(4), dn_go)
            self.stamp('Hpre')
        self.poll(lambda: [self.bl(x1 + 4 * m, 4, vT, rWS, T0, m * 1024, 'sc1') for m in range(2)], [g + 1, g + 3, u + 1, u + 3], vT + 2)
        a(f"""v_permlane32_swap_b32 v{g}, v{g+2}
        v_permlane32_swap_b32 v{u}, v{u+2}
        v_add_f32 v{g}, v{g}, v{g+2}
        v_add_f32 v{u}, v{u}, v{u+2}
        v_mov_b32 v{g+2}, v{g}
        v_mov_b32 v{u+2}, v{u}
        v_permlane16_swap_b32 v{g}, v{g+2}
        v_permlane16_swap_b32 v{u}, v{u+2}
        v_add_f32 v{g}, v{g}, v{g+2}
        v_add_f32 v{u}, v{u}, v{u+2}""")
        self.round2(g, u)
        self.silu(g, vT + 2)
        a(f"""v_mul_f32 v{g}, v{g}, v{u}
        v_cvt_pk_bf16_f32 v{g}, v{g}, v{g}
        ds_write_b16 v{vT+1}, v{g}
        L_NOH:""")
        vm.q = q0
        vm.wait('ffn'); vm.wait('fdn')
        self.barrier()
        self.stamp('Hok')
        for s in range(4):
            self.r128(x1 + 4 * s, gA, s * 32, ('ac', s))
            if dn_late: dn_read(s, ('ac', s))
        for s in range(4):
            lg.wait(('ac', s))
            a(f'v_mfma_f32_32x32x16_bf16 {vr(hh, 16)}, {vr(x1 + 4*s, 4)}, {vr(fdn + 4*s, 4)}, ' + ('0' if s == 0 else vr(hh, 16)))
        a(f'v_mov_b32 v{hh+1}, s{sTAG}')
        self.bs(hh, 2, gA + 1, rWS, sFG, 0, 'sc1')
        if not o['Gdir']:
            a('s_mov_b64 exec, 15')
            self.bs(hh + 1, 1, gA + 2, rWS, sFD, 0, 'sc1')
            a('s_mov_b64 exec, -1')
        self.stamp('Gpub')
        if o['outat'] >= 2:
            a('s_barrier\ns_branch L_FIN2\nL_FIN3:')
            out_calc(5)
            a('s_waitcnt lgkmcnt(0)')
            if o['outat'] == 4: out_store([0])
            a('L_FIN2:')
            out_store()
        a(f"""s_cmp_ge_u32 s{sJ}, 16
        s_cbranch_scc1 L_FIN""")
        if not o['Gdir']:
            self.inbox(6, 8, range(7))
            self.stamp('Gpre')
            a('s_barrier')
        a(f"""s_cmp_lg_u32 s{sWAVE}, 7
        s_cbranch_scc1 L_FIN""")
        S(T0, 'T7 + 4096')
        gg = [x1 + 4 * i for i in range(7)]
        def g_ld():
            [self.bl(gg[n], 4, vL16, rWS, (T7, T0)[n >> 2], (n & 3) * 1024, 'sc1') for n in range(7)]
        self.poll(g_ld, [gg[n] + 1 + 2 * e for n in range(7) for e in range(2)], vT)
        self.stamp('Gok')
        y0, y1 = gg[0], gg[0] + 1
        for p_, q_ in ((0, 1), (2, 3), (4, 5), (0, 2), (4, 6)):
            for e in (0, 2): a(f'v_add_f32 v{gg[p_]+e}, v{gg[p_]+e}, v{gg[q_]+e}')
        a(f'v_add_f32 v{y0}, v{gg[0]}, v{gg[4]}\nv_add_f32 v{y1}, v{gg[0]+2}, v{gg[4]+2}')
        a(f"""v_permlane32_swap_b32 v{y0}, v{y1}
        v_add_f32 v{y0}, v{y0}, v{y1}""")
        self.dpp('v_add_f32', y0, y0, y0, 'row_ror:8')
        a(f"""v_mov_b32 v{y1}, v{y0}
        v_permlane16_swap_b32 v{y0}, v{y1}
        v_add_f32 v{y1}, v{y0}, v{y1}
        v_cvt_pk_bf16_f32 v{y0}, 0, v{y1}
        v_cvt_pk_bf16_f32 v{y1}, 0, v{y1}
        v_permlane32_swap_b32 v{y0}, v{y1}""")
        self.pk('mul', y0, y0, fz, bc=(1,))
        self.round2(y0, y1)
        self.pk('add', y0, y0, st)
        self.round2(y0, y1)
        self.pk('mul', y0, y0, fz + 2)
        self.round2(y0, y1)
        self.pk('add', y0, y0, st + 2)
        a(f'v_cvt_pk_bf16_f32 v{y0}, v{y0}, v{y1}')
        a('s_mov_b64 exec, 0xff')
        self.bs(y0, 1, vT + 6, rOUT, sU, 0, o.get('finmod', ''))
        a('s_mov_b64 exec, -1')
        a('L_FIN:')

    def finish(self):
        a, S, o = self.a, self.S, self.o
        if o.get('exfil'):
            a('s_waitcnt vmcnt(0) lgkmcnt(0)')
            self.stamp('fin')
            a(f'''v_readlane_b32 s{T0}, v255, 0
            v_readlane_b32 s{T1}, v255, 1
            v_readlane_b32 s{T2}, v255, 2
            s_sub_u32 s{T2}, s{T2}, s{T1}
            s_max_i32 s{T2}, s{T2}, 0
            s_min_u32 s{T2}, s{T2}, 10000
            s_mul_i32 s{T2}, s{T2}, 10
            s_add_u32 s{T2}, s{T2}, 6000
            L_XPAD:
            s_memrealtime {sr(sTM, 2)}
            s_waitcnt lgkmcnt(0)
            s_sub_u32 s{T1}, s{sTM}, s{T0}
            s_cmp_lt_u32 s{T1}, s{T2}
            s_cbranch_scc1 L_XPAD''')
        if self.o.get('dbg2'):
            S(T1, '(wg*8 + w)*32768 + 0x4000000'); self.vaa(vT, [(0, 6, 4)])
            for k, r in enumerate(list(range(72, 104)) + list(range(120, 136)) + list(range(176, 184))):
                if k % 16 == 0 and k: S(T1, 'T1 + 4096')
                self.bs(r, 1, vT, rWS, T1, (k % 16) * 256, '', 'dbg')
                if k % 16 == 15: self.vm.wait('dbg')
        if self.prof:
            a('s_waitcnt vmcnt(0) lgkmcnt(0)')
            self.stamp('end')
            a(f's_memrealtime {sr(sTM, 2)}')
            a('s_waitcnt lgkmcnt(0)')
            a(f'v_writelane_b32 v255, s{sTM}, 61')
            S(T0, '(wg*8 + w)*256 + STAMPS')
            a(f'v_writelane_b32 v255, s{sSPIN}, 62')
            a(f'v_lshlrev_b32 v{vT+1}, 2, v{vL}')
            a(f'buffer_store_dword v255, v{vT+1}, {sr(rWS, 4)}, s{T0} offen')
            S(T0, 'T0 + 0x100000')
            a(f'buffer_store_dword v254, v{vT+1}, {sr(rWS, 4)}, s{T0} offen')
        a('L_END:')
        a('s_endpgm')

    def pads(self):
        import subprocess, re
        a = self.a
        src = '.amdgcn_target "amdgcn-amd-amdhsa--gfx950"\n.text\n' + a.text().replace('CODE_KB', '20480')
        out = subprocess.run(['llvm-mc', '-triple=amdgcn-amd-amdhsa', '-mcpu=gfx950', '-show-encoding'], input=src, capture_output=True, text=True, check=True).stdout
        sizes = [len(m.split(',')) for m in re.findall(r'; encoding: \[([^\]]*)\]', out)]
        tour = next(i for i, x in enumerate(a.items) if x == ('raw', ';TOUR'))
        NT = 16
        addr = self.o['kofs']; full = True; k = 0; items = []; pads = []; page = 0
        for i, (kind, v) in enumerate(a.items):
            isins = kind == 'ins' or (kind == 'raw' and v.startswith('    s_'))
            if i == tour: items.append((kind, v)); addr += 4 * 48; continue
            if kind == 'raw' and v.startswith(';AL8'):
                if addr % 8 != self.o[v[1:].lower()]: items.append(('raw', '    s_nop 0')); addr += 4
                continue
            if isins:
                if addr // 4096 > page and full and i > tour:
                    page = addr // 4096; pads.append(page)
                    items.append(('raw', f'L_PAD{page}:\n    s_cbranch_execz L_RET{page}')); addr += 4
                elif i < tour: page = addr // 4096
                addr += sizes[k]; k += 1
                if kind == 'ins' and ('s', 'exec_lo') in v.dst + [('s', 'exec_lo') if ('s', 'exec_hi') in v.dst else None]:
                    full = v.text.replace(' ', '') in ('s_mov_b64exec,-1', 's_mov_b32exec_hi,-1')
            items.append((kind, v))
        assert k == len(sizes), (k, len(sizes))
        t = ['s_mov_b64 exec, 0']
        chains = [pads[c::4] for c in range(4)]
        for c in range(4): t += [f's_cmp_eq_u32 s{sWAVE}, {4 + c}', f's_cbranch_scc1 L_PAD{chains[c][0]}']
        t.append('s_branch L_TEND')
        n = len(t)
        for ch in chains:
            for p, q in zip(ch, ch[1:] + [None]):
                t += [f'L_RET{p}:', f's_branch ' + (f'L_PAD{q}' if q else 'L_TEND')]; n += 1
        assert n <= 47
        t += ['s_nop 0'] * (47 - n) + ['L_TEND:', 's_mov_b64 exec, -1']
        j = items.index(('raw', ';TOUR'))
        items[j] = ('raw', '\n'.join(x if x.endswith(':') else '    ' + x for x in t))
        a.items = items

    def text(self):
        a = self.a
        npad = a.fix_hazards()
        errs = a.check_waits([NAME])
        for e in errs[:10]: print('WAITERR', e, file=sys.stderr)
        assert not errs
        import re
        for k, v in a.items:
            if k == 'ins' and v.mn.startswith('v_pk_'):
                m = re.search(r'op_sel:\[([\d,]+)\]', v.text)
                vs = [i for i, x in enumerate(v.ops[1:]) if x.startswith('v')]
                assert self.o.get('badpk') or not (m and any(m.group(1).split(',')[i] == '1' for i in vs[1:])), v.text
        if self.o['tour']: self.pads()
        hdr = open(os.path.join(os.path.dirname(os.path.abspath(__file__)), 'header.txt')).read()
        s = hdr + '; @launch grid=(256,1,1) block=(512,1,1) lds=163840\n'
        s += '.amdgcn_target "amdgcn-amd-amdhsa--gfx950"\n.text\n'
        s += f'.globl {NAME}\n.p2align {12 if self.o["al12"] else 8}\n.type {NAME},@function\n'
        body = a.text()
        import subprocess, tempfile
        with tempfile.TemporaryDirectory() as td:
            open(td + '/t.s', 'w').write('.amdgcn_target "amdgcn-amd-amdhsa--gfx950"\n.text\n' + body.replace('CODE_KB', '20480'))
            subprocess.run(['clang', '-x', 'assembler', '-target', 'amdgcn-amd-amdhsa', '-mcpu=gfx950', '-c', td + '/t.s', '-o', td + '/t.o'], check=True)
            subprocess.run(['llvm-objcopy', '-O', 'binary', '-j', '.text', td + '/t.o', td + '/t.bin'], check=True)
            size = os.path.getsize(td + '/t.bin')
        print('; code bytes', size, file=sys.stderr)
        s += body.replace('CODE_KB', str((size // 1024 + 1) * 1024))
        s += '.p2align 10\n.fill 768, 4, 0xbf800000\n'
        s += '.section .rodata,"a"\n' + kernel_desc(NAME, 256, 102)
        print(f'; nops {npad}, instrs {sum(1 for k, _ in a.items if k == "ins")}', file=sys.stderr)
        return s


if __name__ == '__main__':
    import argparse, json
    ap = argparse.ArgumentParser()
    ap.add_argument('-o', default='/dev/stdout')
    ap.add_argument('--prof', action='store_true')
    ap.add_argument('--opts', default='{}')
    args = ap.parse_args()
    g = Gen(args.prof, json.loads(args.opts)).build()
    t = g.text()
    open(args.o, 'w').write(t)
    if args.prof: open(args.o + '.stamps', 'w').write(json.dumps(g.stnames))
```
